```python
import torch

def _softmax(x, axis=-1):
    return torch.softmax(x, dim=axis)
def _gelu(x):
    return torch.nn.functional.gelu(x, approximate="tanh")
def _silu(x):
    return torch.nn.functional.silu(x)
def _sigmoid(x):
    return torch.sigmoid(x)
def _layernorm(x, axis=-1, eps=1e-5):
    m = x.mean(dim=axis, keepdim=True)
    v = x.var(dim=axis, keepdim=True, unbiased=False)
    return (x - m) / torch.sqrt(v + eps)
def _scatter_add(tgt, idx, src, axis=0):
    return tgt.clone().index_add_(axis, idx, src)
def _segment_sum(src, seg, n):
    out = torch.zeros((n,) + src.shape[1:], dtype=src.dtype)
    return out.index_add_(0, seg, src)
def _pad(x, pw):
    flat = tuple(v for pair in reversed(pw) for v in pair)
    return torch.nn.functional.pad(x, flat)

kernel_name = 'sequential_preLN__linear_kernel_hedgehog__dense_activation_silu__prompt'

def setup_inputs():

    _w = (lambda a: (lambda t: t.to(torch.bfloat16) if t.is_floating_point() else t)(torch.as_tensor(a)))
    def _A_setup():
        B, S, D, H = 1, 2048, 448, 16
        Dh = D // H
        return {
            "x": _w((lambda *s: torch.randn(*s, dtype=torch.bfloat16) * 0.05)(B, S, D)),
            "wqkv": _w((lambda *s: torch.randn(*s, dtype=torch.bfloat16) * 0.2)(D, 3 * D)),
            "w_phi": _w((lambda *s: torch.randn(*s, dtype=torch.bfloat16) * 0.2)(H, Dh, Dh) * (Dh ** -0.5)),
            "wo": _w((lambda *s: torch.randn(*s, dtype=torch.bfloat16) * 0.05)(D, D)),
        }
    _A_in = _A_setup()

    def _B_setup():
        B, S, D, F = 1, 2048, 448, 1792
        return {
            "x": _w((lambda *s: torch.randn(*s, dtype=torch.bfloat16) * 0.05)(B, S, D)),
            "w1": _w((lambda *s: torch.randn(*s, dtype=torch.bfloat16) * 3.2)(D, F) * (D ** -0.5)),
            "w2": _w((lambda *s: torch.randn(*s, dtype=torch.bfloat16) * 0.1)(F, D) * (F ** -0.5)),
        }
    _B_in = _B_setup()

    return {
        "A_x": _A_in["x"],
        "A_wqkv": _A_in["wqkv"],
        "A_w_phi": _A_in["w_phi"],
        "A_wo": _A_in["wo"],
        "B_x": _B_in["x"],
        "B_w1": _B_in["w1"],
        "B_w2": _B_in["w2"],
    }

def reference(A_x, A_wqkv, A_w_phi, A_wo, B_x, B_w1, B_w2):
    def _A_ref(x, wqkv, w_phi, wo):
        B, S, D = x.shape
        H = 16; Dh = D // H
        qkv = (lambda x, *d: x.permute(*d))((x @ wqkv).reshape(B, S, 3, H, Dh), 2, 0, 3, 1, 4)
        q, k, v = qkv[0], qkv[1], qkv[2]
        pq = torch.einsum("bhsd,hdf->bhsf", q, w_phi)
        pk = torch.einsum("bhsd,hdf->bhsf", k, w_phi)
        phi_q = torch.concatenate([_softmax(pq, axis=-1), _softmax(-pq, axis=-1)], axis=-1)
        phi_k = torch.concatenate([_softmax(pk, axis=-1), _softmax(-pk, axis=-1)], axis=-1)
        kv = torch.einsum("bhsf,bhsd->bhfd", phi_k, v)
        z  = torch.einsum("bhsf->bhf", phi_k)
        num = torch.einsum("bhqf,bhfd->bhqd", phi_q, kv)
        den = torch.einsum("bhqf,bhf->bhq", phi_q, z)[..., None] + 1e-6
        o = num / den
        return (lambda x, *d: x.permute(*d))(o, 0, 2, 1, 3).reshape(B, S, D) @ wo

    def _B_ref(x, w1, w2):
        h = torch.einsum("bsd,df->bsf", x, w1)
        h = _silu(h)
        out = torch.einsum("bsf,fd->bsd", h, w2)
        return out

    x = A_x
    h = x + _A_ref(_layernorm(x, axis=-1), A_wqkv, A_w_phi, A_wo)
    h2 = h + _B_ref(_layernorm(h, axis=-1), B_w1, B_w2)
    return h2
```

```python
import re

REG_RE = re.compile(r'(?<![\w.])([vas])(\d+)(?![\w\[])|(?<![\w.])([vas])\[(\d+):(\d+)\]')
TRANS = ('v_exp_f32', 'v_log_f32', 'v_rcp_f32', 'v_rsq_f32', 'v_sqrt_f32', 'v_sin_f32', 'v_cos_f32')


def regs_of(tok):
    out = []
    for m in REG_RE.finditer(tok):
        if m.group(1):
            out.append((m.group(1), int(m.group(2))))
        else:
            for i in range(int(m.group(4)), int(m.group(5)) + 1):
                out.append((m.group(3), i))
    t = tok.strip()
    if re.search(r'\bvcc\b', t):
        out += [('s', 106), ('s', 107)]
    if re.search(r'\bvcc_lo\b', t):
        out += [('s', 106)]
    if re.search(r'\bvcc_hi\b', t):
        out += [('s', 107)]
    if re.search(r'\bexec\b', t):
        out += [('s', 126), ('s', 127)]
    if re.search(r'\bm0\b', t):
        out += [('s', 124)]
    return out


def split_ops(rest):
    ops, depth, cur = [], 0, ''
    for ch in rest:
        if ch in '[(':
            depth += 1
        if ch in '])':
            depth -= 1
        if ch == ',' and depth == 0:
            ops.append(cur.strip())
            cur = ''
        else:
            cur += ch
    if cur.strip():
        ops.append(cur.strip())
    return ops


class Ins:
    def __init__(self, text):
        self.text = text
        code = text.split(';')[0].strip()
        self.is_label = code.endswith(':')
        self.is_dir = code.startswith('.') and not self.is_label
        self.empty = (code == '')
        self.op = ''
        self.w = set()
        self.r = set()
        self.kind = 'none'
        self.srcc = set()
        self.ab = set()
        self.passes = 0
        self.states = 1
        self.widestore = set()
        self.ldsdma = False
        if self.is_label or self.is_dir or self.empty:
            self.states = 0
            return
        parts = code.split(None, 1)
        op = parts[0]
        for suf in ('_e32', '_e64'):
            if op.endswith(suf):
                op = op[:-4]
        self.op = op
        ops = split_ops(parts[1]) if len(parts) > 1 else []
        R = [regs_of(o) for o in ops]
        flat = lambda l: set(x for y in l for x in y)
        if op == 's_nop':
            self.kind = 'salu'
            self.states = int(ops[0], 0) + 1
        elif op.startswith('v_mfma'):
            self.kind = 'mfma'
            self.w = set(R[0])
            self.ab = flat(R[1:3])
            self.srcc = set(R[3])
            self.r = self.ab | self.srcc
            self.passes = 8 if '32x32x16' in op else 4
            assert '32x32x16' in op or '16x16x32' in op, op
        elif op.startswith('ds_'):
            self.kind = 'ds'
            if op.startswith('ds_read') or '_rtn' in op or 'permute' in op or 'swizzle' in op:
                self.w = set(R[0])
                self.r = flat(R[1:])
            else:
                self.r = flat(R)
        elif op.startswith('buffer_') or op.startswith('global_'):
            self.kind = 'vmem'
            islds = bool(re.search(r'\blds\b', code)) or 'load_lds' in op
            if op in ('buffer_wbl2', 'buffer_inv'):
                pass
            elif islds:
                self.r = flat(R) | {('s', 124)}
                self.ldsdma = True
            elif '_load' in op:
                self.w = set(R[0])
                self.r = flat(R[1:])
                if 'd16' in op:
                    self.r |= set(R[0])
            elif 'atomic' in op:
                self.r = flat(R)
                if re.search(r'\bsc0\b', code):
                    self.w = set(R[0])
            else:
                self.r = flat(R)
                if op.endswith('x4') or op.endswith('x3'):
                    self.widestore = set(R[0]) if op.startswith('buffer_') else set(R[1])
        elif op.startswith('s_'):
            self.kind = 'salu'
            if op.startswith('s_cmp') or op.startswith('s_cbranch') or op in (
                    's_branch', 's_waitcnt', 's_barrier', 's_endpgm', 's_sleep', 's_setprio', 's_bitcmp0_b32',
                    's_bitcmp1_b32'):
                self.r = flat(R)
            else:
                self.w = set(R[0]) if R else set()
                self.r = flat(R[1:])
                if 'saveexec' in op:
                    self.w |= {('s', 126), ('s', 127)}
        elif op.startswith('v_'):
            self.kind = 'valu'
            self.w = set(R[0])
            self.r = flat(R[1:])
            if op.startswith('v_permlane') and 'swap' in op:
                self.w = flat(R[:2])
                self.r = flat(R[:2])
            if op in ('v_fmac_f32', 'v_dot2c_f32_bf16', 'v_writelane_b32'):
                self.r |= set(R[0])
            if op.startswith('v_add_co') or op.startswith('v_sub_co') or op.startswith('v_addc_co'):
                self.w = flat(R[:2])
                self.r = flat(R[2:])
            if op.startswith('v_cmpx'):
                self.w |= {('s', 126), ('s', 127)}
        else:
            raise ValueError('unknown instruction: ' + text)
        self.dpp = ('_dpp' in op) or (' quad_perm' in code) or (' row_' in code)
        self.trans = op in TRANS
        self.dot = op.startswith('v_dot')


def need(p, c):
    n = 0
    vw = {x for x in p.w if x[0] in 'va'}
    sw = {x for x in p.w if x[0] == 's'}
    if p.kind == 'valu':
        if c.kind == 'mfma' and (vw & c.r):
            n = max(n, 3 if p.dot else 2)
        if c.kind == 'valu':
            if p.trans and not c.trans and (vw & c.r):
                n = max(n, 1)
            if c.op.startswith('v_permlane') and (vw & c.r):
                n = max(n, 2)
            if c.op in ('v_readfirstlane_b32', 'v_readlane_b32') and (vw & c.r):
                n = max(n, 1)
            if c.dpp and (vw & c.r):
                n = max(n, 2)
            if sw & c.r:
                n = max(n, 4 if c.op in ('v_readlane_b32', 'v_writelane_b32') else 2)
            if 'sdwa' in p.op and (vw & (c.r | c.w)):
                n = max(n, 1)
            if p.dot and (vw & (c.r | c.w)):
                if c.op == p.op and p.op == 'v_dot2c_f32_bf16' and c.w == p.w:
                    pass
                else:
                    n = max(n, 3)
        if c.kind in ('vmem', 'ds') and p.dot and (vw & c.r):
            n = max(n, 3)
        if c.kind == 'vmem' and (sw & c.r):
            n = max(n, 5)
        if ('s', 126) in p.w:
            if c.kind == 'mfma':
                n = max(n, 4)
            if c.kind == 'valu' and (c.dpp):
                n = max(n, 5)
            if c.kind == 'valu' and (c.op.startswith('v_permlane') or c.op.startswith('v_read') or c.op.startswith('v_writelane')):
                n = max(n, 4)
    if p.kind == 'mfma':
        big = {8: 12, 4: 8}[p.passes]
        if c.kind == 'mfma':
            if p.w & c.ab:
                n = max(n, big)
            if p.w & c.srcc:
                if not (p.w == c.srcc and p.passes == c.passes):
                    n = max(n, {8: 10, 4: 6}[p.passes])
            elif p.w & c.w:
                n = max(n, big)
        elif c.kind in ('valu', 'vmem', 'ds'):
            if p.w & (c.r | c.w):
                n = max(n, big)
            if c.kind == 'valu' and (p.srcc & c.w):
                n = max(n, {8: 7, 4: 3}[p.passes])
    if p.kind == 'salu' and ('s', 124) in p.w and c.ldsdma:
        n = max(n, 1)
    if p.widestore and (p.widestore & c.w):
        n = max(n, 2 if c.kind == 'valu' else 1)
    return n


def fix_hazards(lines, window=24):
    out = []
    hist = []
    nins = 0
    for t in lines:
        c = Ins(t)
        if c.states == 0:
            out.append(t)
            continue
        req = 0
        dist = 0
        for p in reversed(hist[-window:]):
            k = need(p, c) - dist
            if k > req:
                req = k
            dist += p.states
            if dist >= 20:
                break
        while req > 0:
            k = min(req, 16)
            nop = 's_nop %d' % (k - 1)
            out.append('  ' + nop)
            hist.append(Ins(nop))
            nins += 1
            req -= k
        out.append(t)
        hist.append(c)
        if c.op in ('s_endpgm', 's_branch'):
            hist = []
    return out, nins


class Asm:
    def __init__(self):
        self.lines = []
        self._lab = 0

    def __call__(self, fmt, *a):
        s = fmt % a if a else fmt
        for l in s.split('\n'):
            l = l.strip()
            if l:
                self.lines.append(l if l.endswith(':') else '  ' + l)

    def label(self, base='L'):
        self._lab += 1
        return '%s_%d' % (base, self._lab)

    def comment(self, s):
        self.lines.append('  ; ' + s)


def v(i, n=1):
    return 'v%d' % i if n == 1 else 'v[%d:%d]' % (i, i + n - 1)


def a(i, n=1):
    return 'a%d' % i if n == 1 else 'a[%d:%d]' % (i, i + n - 1)


def s(i, n=1):
    return 's%d' % i if n == 1 else 's[%d:%d]' % (i, i + n - 1)


def interleave(main, fill, per):
    out = []
    k = 0
    for l in main:
        out.append(l)
        if l.strip().startswith('v_mfma'):
            out += fill[k:k + per]
            k += per
    out += fill[k:]
    return out
```

```python
import sys
import os
sys.path.insert(0, os.path.dirname(os.path.abspath(__file__)))
from asmlib import Asm, fix_hazards, v, a, s

NAME = 'sequential_preLN__linear_kernel_hedgehog__dense_activation_silu__prompt'
S, D, H, DH, F = 2048, 448, 16, 28, 1792
MB = 1 << 20
WS_KVP, WS_PHIQ, WS_OB, WS_HB, WS_H1B = 0, 2 * MB, 6 * MB, 8 * MB, 10 * MB
WS_SIZE = 18 * MB
LOG2E = 0x3fb8aa3b
ONES = 0x3f803f80
MFMA = 'v_mfma_f32_32x32x16_bf16'


class RA:
    def __init__(self, start, limit=256):
        self.n = start
        self.limit = limit

    def __call__(self, cnt=1, align=1):
        if cnt >= 2 and align < 2:
            align = 2
        if cnt >= 4 and align < 4:
            align = 4
        self.n = (self.n + align - 1) // align * align
        r = self.n
        self.n += cnt
        assert self.n <= self.limit, 'out of registers'
        return r


def srd(A, d, ptr, size):
    A('s_mov_b32 s%d, s%d', d, ptr)
    A('s_and_b32 s%d, s%d, 0xffff', d + 1, ptr + 1)
    A('s_mov_b32 s%d, 0x%x', d + 2, size)
    A('s_mov_b32 s%d, 0x20000', d + 3)


def kernel_head(A, name):
    A.lines.append('.p2align 8')
    A.lines.append('.globl %s' % name)
    A.lines.append('.type %s,@function' % name)
    A.lines.append('%s:' % name)
    A('s_mov_b32 s90, 0x100000')


def kd(name, vgpr, sgpr=96):
    acc = (vgpr + 3) // 4 * 4
    return '''.amdhsa_kernel %s
  .amdhsa_next_free_vgpr %d
  .amdhsa_next_free_sgpr %d
  .amdhsa_accum_offset %d
  .amdhsa_group_segment_fixed_size 0
  .amdhsa_kernarg_size 80
  .amdhsa_user_sgpr_count 2
  .amdhsa_user_sgpr_kernarg_segment_ptr 1
  .amdhsa_system_sgpr_workgroup_id_x 1
  .amdhsa_float_denorm_mode_32 3
  .amdhsa_float_denorm_mode_16_64 3
.end_amdhsa_kernel''' % (name, vgpr, sgpr, acc)


def wait_lds_ge(A, vtmp, vzero, off, sprog, n):
    lo, done = A.label('W'), A.label('WD')
    A('s_cmp_ge_u32 s%d, %d', sprog, n)
    A('s_cbranch_scc1 %s', done)
    A('%s:', lo)
    A('ds_read_b32 v%d, v%d offset:%d', vtmp, vzero, off)
    A('s_waitcnt lgkmcnt(0)')
    A('v_readfirstlane_b32 s%d, v%d', sprog, vtmp)
    A('s_sub_u32 s90, s90, 1')
    A('s_cbranch_scc1 %s', done)
    A('s_cmp_ge_u32 s%d, %d', sprog, n)
    A('s_cbranch_scc0 %s', lo)
    A('%s:', done)


def lds_arrive_wait(A, vtmp, vzero, vone, off, stmp, n):
    A('s_waitcnt lgkmcnt(0)')
    A('s_mov_b64 exec, 1')
    A('ds_add_u32 v%d, v%d offset:%d', vzero, vone, off)
    A('s_mov_b64 exec, -1')
    lo = A.label('W')
    A('%s:', lo)
    A('ds_read_b32 v%d, v%d offset:%d', vtmp, vzero, off)
    A('s_waitcnt lgkmcnt(0)')
    A('v_readfirstlane_b32 s%d, v%d', stmp, vtmp)
    done = A.label('WD')
    A('s_sub_u32 s90, s90, 1')
    A('s_cbranch_scc1 %s', done)
    A('s_cmp_ge_u32 s%d, %d', stmp, n)
    A('s_cbranch_scc0 %s', lo)
    A('%s:', done)


def hilo_c(A, src, f, tmp):
    A('v_cvt_pk_bf16_f32 v%d, v%d, v%d', f, src, src)
    A('v_and_b32 v%d, 0xffff0000, v%d', tmp, f)
    A('v_sub_f32 v%d, v%d, v%d', tmp, src, tmp)
    A('v_cvt_pk_bf16_f32 v%d, v%d, 0', f + 1, tmp)


def hilo_m(A, src, f, tmp):
    A('v_cvt_pk_bf16_f32 v%d, v%d, 0', f + 1, src)
    A('v_lshlrev_b32 v%d, 16, v%d', tmp, f + 1)
    A('v_sub_f32 v%d, v%d, v%d', tmp, src, tmp)
    A('v_cvt_pk_bf16_f32 v%d, v%d, v%d', f, src, tmp)


def ln_stats(A, sm, sq, t0, t1, negmean, rstd, std=None):
    A('v_add_f32 v%d, v%d, v%d', sm, sm, sm + 1)
    A('v_add_f32 v%d, v%d, v%d', sq, sq, sq + 1)
    A('v_permlane32_swap_b32 v%d, v%d', sm, sq)
    A('v_add_f32 v%d, v%d, v%d', t0, sm, sq)
    A('v_mul_f32 v%d, 0x%x, v%d', t0, 0x3b124925, t0)
    A('v_mov_b32 v%d, v%d', t1, t0)
    A('v_permlane32_swap_b32 v%d, v%d', t0, t1)
    A('v_fma_f32 v%d, -v%d, v%d, v%d', t1, t0, t0, t1)
    A('v_max_f32 v%d, 0, v%d', t1, t1)
    A('v_add_f32 v%d, 0x%x, v%d', t1, 0x3727c5ac, t1)
    A('v_rsq_f32 v%d, v%d', rstd, t1)
    A('v_sub_f32 v%d, 0, v%d', negmean, t0)
    if std is not None:
        A('v_mul_f32 v%d, v%d, v%d', std, t1, rstd)


def softmax_pm(A, p, sc, e, out, t, s_hi):
    A('v_cndmask_b32 v%d, v%d, v%d, s[%d:%d]', p + 12, p + 12, p + 14, s_hi, s_hi + 1)
    A('v_cndmask_b32 v%d, v%d, v%d, s[%d:%d]', p + 13, p + 13, p + 15, s_hi, s_hi + 1)
    mx, mn = t, t + 1
    A('v_max3_f32 v%d, v%d, v%d, v%d', mx, p, p + 1, p + 2)
    A('v_min3_f32 v%d, v%d, v%d, v%d', mn, p, p + 1, p + 2)
    for i in range(3, 13, 2):
        A('v_max3_f32 v%d, v%d, v%d, v%d', mx, mx, p + i, p + i + 1)
        A('v_min3_f32 v%d, v%d, v%d, v%d', mn, mn, p + i, p + i + 1)
    A('v_max_f32 v%d, v%d, v%d', mx, mx, p + 13)
    A('v_min_f32 v%d, v%d, v%d', mn, mn, p + 13)
    A('v_sub_f32 v%d, 0, v%d', mn, mn)
    A('v_permlane32_swap_b32 v%d, v%d', mx, mn)
    A('v_max_f32 v%d, v%d, v%d', mx, mx, mn)
    A('v_mul_f32 v%d, v%d, v%d', mx, mx, sc)
    A('v_mov_b32 v%d, v%d', mn, mx)
    A('v_permlane32_swap_b32 v%d, v%d', mx, mn)
    for i in range(14):
        A('v_fma_f32 v%d, v%d, v%d, -v%d', e + i, p + i, sc, mx)
        A('v_fma_f32 v%d, -v%d, v%d, -v%d', e + 14 + i, p + i, sc, mn)
    for i in range(28):
        A('v_exp_f32 v%d, v%d', e + i, e + i)
    sp, sn = t + 2, t + 3
    A('v_add_f32 v%d, v%d, v%d', sp, e, e + 1)
    A('v_add_f32 v%d, v%d, v%d', sn, e + 14, e + 15)
    for i in range(2, 14):
        A('v_add_f32 v%d, v%d, v%d', sp, sp, e + i)
        A('v_add_f32 v%d, v%d, v%d', sn, sn, e + 14 + i)
    A('v_permlane32_swap_b32 v%d, v%d', sp, sn)
    A('v_add_f32 v%d, v%d, v%d', sp, sp, sn)
    A('v_rcp_f32 v%d, v%d', sp, sp)
    A('v_mov_b32 v%d, v%d', sn, sp)
    A('v_permlane32_swap_b32 v%d, v%d', sp, sn)
    for i in range(14):
        A('v_mul_f32 v%d, v%d, v%d', e + i, e + i, sp)
        A('v_mul_f32 v%d, v%d, v%d', e + 14 + i, e + 14 + i, sn)
    for i in range(7):
        A('v_cvt_pk_bf16_f32 v%d, v%d, v%d', out + i, e + 2 * i, e + 2 * i + 1)
        A('v_cvt_pk_bf16_f32 v%d, v%d, v%d', out + 8 + i, e + 14 + 2 * i, e + 15 + 2 * i)
    A('v_mov_b32 v%d, 0', out + 7)
    A('v_mov_b32 v%d, 0', out + 15)


def cvt8(A, dst, src):
    for i in range(8):
        A('v_cvt_pk_bf16_f32 v%d, v%d, v%d', dst + i, src + 2 * i, src + 2 * i + 1)


K1_X, K1_W, K1_PHI, K1_MISC = 0, 65536, 65536 + 86016, 65536 + 86016 + 2048
K1_LDS = K1_MISC + 1024


def gen_k1(A):
    name = 'p1_kernel'
    kernel_head(A, name)
    end = A.label('END')
    A('s_cmp_ge_u32 s2, 256')
    A('s_cbranch_scc1 %s', end)
    A('s_load_dwordx4 s[4:7], s[0:1], 0')
    A('s_load_dwordx2 s[8:9], s[0:1], 16')
    A('s_load_dwordx2 s[10:11], s[0:1], 72')
    SX, SW, SP, SWS = 12, 16, 20, 24
    sTB, sH, sWV, sC0, sPROG, sT, sT2, sONES, sC = 28, 29, 30, 31, 32, 33, 34, 35, 36
    sHI, sPADL, sZA, sZB = 38, 40, 42, 44
    A('s_and_b32 s%d, s2, 7', sT)
    A('s_lshr_b32 s%d, s2, 3', sT2)
    A('s_and_b32 s%d, s%d, 15', sH, sT2)
    A('s_lshr_b32 s%d, s%d, 4', sTB, sT2)
    A('s_lshl_b32 s%d, s%d, 1', sC, sT)
    A('s_add_u32 s%d, s%d, s%d', sTB, sTB, sC)
    A('s_add_u32 s%d, s%d, s%d', sC0, sT, sT2)
    A('s_mul_i32 s%d, s%d, 37', sT, sC0)
    A('s_lshr_b32 s%d, s%d, 8', sT, sT)
    A('s_mul_i32 s%d, s%d, 7', sT, sT)
    A('s_sub_u32 s%d, s%d, s%d', sC0, sC0, sT)
    R = RA(1)
    vL = R()
    A('v_lshrrev_b32 v%d, 6, v0', vL)
    A('v_readfirstlane_b32 s%d, v%d', sWV, vL)
    A('v_and_b32 v%d, 63, v0', vL)
    vZ, vONE, vT0, vT1 = R(), R(), R(), R()
    A('v_mov_b32 v%d, 0', vZ)
    A('v_mov_b32 v%d, 1', vONE)
    A('s_mov_b32 s%d, 0', sPROG)
    A('s_mov_b32 s%d, 0x%x', sONES, ONES)
    A('s_waitcnt lgkmcnt(0)')
    srd(A, SX, 4, S * D * 2)
    srd(A, SW, 6, D * 3 * D * 2)
    srd(A, SP, 8, H * DH * DH * 2)
    srd(A, SWS, 10, WS_SIZE)
    FLAG_PROG, FLAG_SYNC = K1_MISC, K1_MISC + 4
    RSTD_OFF = K1_MISC + 256
    comp = A.label('COMP')
    A('s_cmp_lt_u32 s%d, 4', sWV)
    A('s_cbranch_scc1 %s', comp)

    vFL = R()
    A('v_mov_b32 v%d, %d', vFL, FLAG_PROG)
    A('ds_write_b32 v%d, v%d', vFL, vZ)
    A('ds_write_b32 v%d, v%d offset:4', vFL, vZ)
    A('v_lshlrev_b32 v%d, 4, v%d', vT0, vL)
    A('s_mul_i32 s%d, s%d, 1568', sT, sH)
    A('s_mov_b32 m0, %d', K1_PHI)
    A('buffer_load_dwordx4 v%d, s[%d:%d], s%d offen lds', vT0, SP, SP + 3, sT)
    A('s_add_u32 s%d, s%d, 1024', sT, sT)
    A('s_mov_b32 m0, %d', K1_PHI + 1024)
    A('buffer_load_dwordx4 v%d, s[%d:%d], s%d offen lds', vT0, SP, SP + 3, sT)
    A('v_lshrrev_b32 v%d, 2, v%d', vT0, vL)
    A('v_mul_u32_u24 v%d, 2688, v%d', vT0, vT0)
    A('v_and_b32 v%d, 3, v%d', vT1, vL)
    A('v_lshl_add_u32 v%d, v%d, 4, v%d', vT0, vT1, vT0)
    A('s_mul_i32 s%d, s%d, 56', sT, sH)
    A('s_and_b32 s%d, s%d, 0xfffffff0', sT, sT)
    A('v_add_u32 v%d, s%d, v%d', vT0, sT, vT0)
    A('s_waitcnt lgkmcnt(0)')
    A('s_barrier')
    DEPTH = 4
    n = 0
    for pi, part in enumerate((1, 2, 0)):
        A('s_mov_b32 s%d, s%d', sC, sC0)
        for i in range(7):
            A('s_mul_i32 s%d, s%d, %d', sT, sC, 64 * 2688)
            A('s_add_u32 s%d, s%d, %d', sT, sT, part * 896)
            for u in range(4):
                A('s_mov_b32 m0, %d', K1_W + pi * 28672 + i * 4096 + u * 1024)
                A('buffer_load_dwordx4 v%d, s[%d:%d], s%d offen lds', vT0, SW, SW + 3, sT)
                if u < 3:
                    A('s_add_u32 s%d, s%d, %d', sT, sT, 16 * 2688)
            A('s_add_u32 s%d, s%d, 1', sC, sC)
            A('s_cmp_eq_u32 s%d, 7', sC)
            A('s_cselect_b32 s%d, 0, s%d', sC, sC)
            n += 1
            if n > DEPTH - 1:
                A('s_waitcnt vmcnt(%d)', 4 * (DEPTH - 1))
                A('v_mov_b32 v%d, %d', vT1, n - DEPTH + 1)
                A('ds_write_b32 v%d, v%d', vFL, vT1)
    for k in range(DEPTH - 2, -1, -1):
        A('s_waitcnt vmcnt(%d)', 4 * k)
        A('v_mov_b32 v%d, %d', vT1, n - k)
        A('ds_write_b32 v%d, v%d', vFL, vT1)
    A('s_waitcnt lgkmcnt(0)')
    A('s_endpgm')

    A('%s:', comp)
    vXE, vXO = R(), R()
    vXA = R(4)
    vWA = R(3)
    vSM, vSQ = R(2), R(2)
    vCS = R(2)
    vNM, vRS, vSC = R(), R(), R()
    vTT = R(4)
    vMF, vCF = R(4), R(4)
    vPH = R(8)
    vID = R(8)
    vWF = R(28)
    vE = vWF
    vAC, vAC2 = R(16), R(16)
    vPK = R(16)
    vX = R(112, 4)
    sXB, sM0 = 46, 47
    A('v_lshrrev_b32 v%d, 3, v%d', vT0, vL)
    A('s_lshl_b32 s%d, s%d, 5', sT, sWV)
    A('v_add_u32 v%d, s%d, v%d', vT0, sT, vT0)
    A('v_mul_u32_u24 v%d, 896, v%d', vT0, vT0)
    A('v_lshrrev_b32 v%d, 4, v%d', vT1, vL)
    A('v_and_b32 v%d, 7, v%d', vXE, vL)
    A('v_xor_b32 v%d, v%d, v%d', vXE, vXE, vT1)
    A('v_xor_b32 v%d, 4, v%d', vXO, vXE)
    A('v_lshl_add_u32 v%d, v%d, 4, v%d', vXE, vXE, vT0)
    A('v_lshl_add_u32 v%d, v%d, 4, v%d', vXO, vXO, vT0)
    A('s_mul_i32 s%d, s%d, %d', sXB, sTB, 128 * 896)
    A('s_lshl_b32 s%d, s%d, 14', sM0, sWV)
    A('s_mov_b32 s%d, s%d', sC, sC0)

    def issue_x(slot):
        A('s_lshl_b32 s%d, s%d, 7', sT, sC)
        A('s_add_u32 s%d, s%d, s%d', sT, sT, sXB)
        for u in range(4):
            A('s_add_u32 m0, s%d, %d', sM0, K1_X + slot * 4096 + u * 1024)
            A('buffer_load_dwordx4 v%d, s[%d:%d], s%d offen lds', (vXE, vXO)[u & 1], SX, SX + 3, sT)
            if u < 3:
                A('s_add_u32 s%d, s%d, %d', sT, sT, 8 * 896)
        A('s_add_u32 s%d, s%d, 1', sC, sC)
        A('s_cmp_eq_u32 s%d, 7', sC)
        A('s_cselect_b32 s%d, 0, s%d', sC, sC)

    for i in range(4):
        issue_x(i)
    A('v_and_b32 v%d, 31, v%d', vT0, vL)
    A('v_lshlrev_b32 v%d, 7, v%d', vTT, vT0)
    A('v_add_u32 v%d, s%d, v%d', vTT, sM0, vTT)
    A('v_bfe_u32 v%d, v%d, 1, 3', vT0, vL)
    A('v_lshrrev_b32 v%d, 5, v%d', vT1, vL)
    A('v_xor_b32 v%d, v%d, v%d', vT0, vT0, vT1)
    for q in range(4):
        A('v_xor_b32 v%d, %d, v%d', vXA + q, 2 * q, vT0)
        A('v_lshl_add_u32 v%d, v%d, 4, v%d', vXA + q, vXA + q, vTT)
    A('v_bfe_u32 v%d, v%d, 2, 2', vT0, vL)
    A('v_lshl_add_u32 v%d, v%d, 3, v%d', vT0, vT1, vT0)
    A('v_lshlrev_b32 v%d, 6, v%d', vT0, vT0)
    A('v_bfe_u32 v%d, v%d, 4, 1', vTT, vL)
    A('v_lshl_add_u32 v%d, v%d, 5, v%d', vT0, vTT, vT0)
    A('v_and_b32 v%d, 3, v%d', vTT, vL)
    A('v_lshl_add_u32 v%d, v%d, 3, v%d', vT0, vTT, vT0)
    for pi in range(3):
        A('v_add_u32 v%d, %d, v%d', vWA + pi, K1_W + pi * 28672, vT0)
    for r in (vSM, vSM + 1, vSQ, vSQ + 1, vCS, vCS + 1, vMF + 2, vMF + 3, vCF + 2, vCF + 3):
        A('v_mov_b32 v%d, 0', r)
    A('s_mov_b32 s%d, 0', sHI)
    A('s_mov_b32 s%d, -1', sHI + 1)
    A('s_bitcmp1_b32 s%d, 0', sH)
    A('s_cselect_b32 s%d, 0xf, 0xf0000000', sPADL)
    A('s_mov_b32 s%d, s%d', sPADL + 1, sPADL)
    A('s_cselect_b32 s%d, -1, 0', sZA)
    A('s_mov_b32 s%d, 0', sZA + 1)
    A('s_mov_b32 s%d, 0', sZB)
    A('s_cselect_b32 s%d, 0, -1', sZB + 1)
    A('v_and_b32 v%d, 31, v%d', vT0, vL)
    A('v_lshlrev_b32 v%d, 2, v%d', vTT, vT1)
    A('v_sub_u32 v%d, v%d, v%d', vT0, vT0, vTT)
    A('v_mov_b32 v%d, 0x3f80', vTT)
    A('v_mov_b32 v%d, 0x3f800000', vTT + 1)
    for sidx in range(2):
        for rr in range(4):
            m = 16 * sidx + 8 * (rr >> 1) + 2 * (rr & 1)
            A('v_cmp_eq_u32 vcc, %d, v%d', m, vT0)
            A('v_cndmask_b32 v%d, 0, v%d, vcc', vID + 4 * sidx + rr, vTT)
            A('v_cmp_eq_u32 vcc, %d, v%d', m + 1, vT0)
            A('v_cndmask_b32 v%d, v%d, v%d, vcc', vID + 4 * sidx + rr, vID + 4 * sidx + rr, vTT + 1)
    A('s_barrier')

    def gemm_chunk(pi, i, acc, swap, first):
        wait_lds_ge(A, vT0, vZ2, 0, sPROG, pi * 7 + i + 1)
        for q in range(4):
            for z in range(2):
                A('ds_read_b64_tr_b16 v[%d:%d], v%d offset:%d', vWF + 4 * q + 2 * z, vWF + 4 * q + 2 * z + 1,
                  vWA + pi, i * 4096 + q * 1024 + z * 256)
        for q in range(4):
            A('s_waitcnt lgkmcnt(%d)', 6 - 2 * q)
            xf, wf = v(vX + (4 * i + q) * 4, 4), v(vWF + 4 * q, 4)
            c = '0' if (first and q == 0) else v(acc, 16)
            if swap:
                A('%s %s, %s, %s, %s', MFMA, v(acc, 16), xf, wf, c)
            else:
                A('%s %s, %s, %s, %s', MFMA, v(acc, 16), wf, xf, c)
            for z in range(4):
                A('v_dot2c_f32_bf16 v%d, s%d, v%d', vCS + (z & 1), sONES, vWF + 4 * q + z)

    vZ2 = R()
    A('v_mov_b32 v%d, %d', vZ2, FLAG_PROG)
    for i in range(7):
        A('s_waitcnt vmcnt(%d)', (12, 12, 12, 12, 8, 4, 0)[i])
        for q in range(4):
            A('ds_read_b128 %s, v%d offset:%d', v(vX + (4 * i + q) * 4, 4), vXA + q, K1_X + (i & 3) * 4096)
        A('s_waitcnt lgkmcnt(0)')
        if i < 3:
            issue_x(i)
        for r in range(16):
            x = vX + 16 * i + r
            A('v_dot2c_f32_bf16 v%d, s%d, v%d', vSM + (r & 1), sONES, x)
            A('v_dot2c_f32_bf16 v%d, v%d, v%d', vSQ + (r & 1), x, x)
        gemm_chunk(0, i, vAC, False, i == 0)
    A('v_bfe_u32 v%d, v%d, 2, 2', vT0, vL)
    A('v_lshrrev_b32 v%d, 5, v%d', vT1, vL)
    A('v_lshl_add_u32 v%d, v%d, 2, v%d', vT0, vT1, vT0)
    A('v_mul_u32_u24 v%d, 56, v%d', vT0, vT0)
    A('v_and_b32 v%d, 3, v%d', vT1, vL)
    A('v_bfe_u32 v%d, v%d, 4, 1', vTT, vL)
    A('v_lshl_add_u32 v%d, v%d, 2, v%d', vT1, vTT, vT1)
    A('v_min_u32 v%d, 6, v%d', vT1, vT1)
    A('v_lshl_add_u32 v%d, v%d, 3, v%d', vT0, vT1, vT0)
    A('s_and_b32 s%d, s%d, 1', sT, sH)
    A('s_mul_i32 s%d, s%d, 224', sT, sT)
    A('s_sub_u32 s%d, %d, s%d', sT, K1_PHI, sT)
    A('v_add_u32 v%d, s%d, v%d', vT0, sT, vT0)
    for sidx in range(2):
        for z in range(2):
            A('ds_read_b64_tr_b16 v[%d:%d], v%d offset:%d', vPH + 4 * sidx + 2 * z, vPH + 4 * sidx + 2 * z + 1,
              vT0, (16 * sidx + 8 * z) * 56)
    ln_stats(A, vSM, vSQ, vT0, vT1, vNM, vRS)
    A('v_mul_f32 v%d, 0x%x, v%d', vSC, LOG2E, vRS)
    hilo_m(A, vNM, vMF, vT0)
    A('v_and_b32 v%d, 31, v%d', vT0, vL)
    A('s_lshl_b32 s%d, s%d, 7', sT, sWV)
    A('s_add_u32 s%d, s%d, %d', sT, sT, RSTD_OFF)
    vRA = R()
    A('v_lshl_add_u32 v%d, v%d, 2, s%d', vT0, vT0, sT)
    A('ds_write_b32 v%d, v%d', vT0, vRS)
    A('v_lshrrev_b32 v%d, 5, v%d', vRA, vL)
    A('v_lshl_add_u32 v%d, v%d, 4, s%d', vRA, vRA, sT)
    A('s_waitcnt lgkmcnt(0)')
    for r in (0, 1):
        A('v_cndmask_b32 v%d, v%d, 0, s[%d:%d]', vPH + r, vPH + r, sZA, sZA + 1)
        A('v_cndmask_b32 v%d, v%d, 0, s[%d:%d]', vPH + 6 + r, vPH + 6 + r, sZB, sZB + 1)

    def feature(out):
        A('v_add_f32 v%d, v%d, v%d', vCS, vCS, vCS + 1)
        hilo_c(A, vCS, vCF, vT0)
        A('v_mov_b32 v%d, 0', vCS)
        A('v_mov_b32 v%d, 0', vCS + 1)
        A('%s %s, %s, %s, %s', MFMA, v(vAC, 16), v(vCF, 4), v(vMF, 4), v(vAC, 16))
        cvt8(A, vE, vAC)
        A('%s %s, %s, %s, 0', MFMA, v(vAC, 16), v(vPH, 4), v(vE, 4))
        A('%s %s, %s, %s, %s', MFMA, v(vAC, 16), v(vPH + 4, 4), v(vE + 4, 4), v(vAC, 16))
        softmax_pm(A, vAC, vSC, vE, out, vTT, sHI)

    feature(vPK)
    for t, acc in ((0, vAC), (1, vAC2)):
        A('%s %s, %s, %s, 0', MFMA, v(acc, 16), v(vPK + 8 * t, 4), v(vID, 4))
        A('%s %s, %s, %s, %s', MFMA, v(acc, 16), v(vPK + 8 * t + 4, 4), v(vID + 4, 4), v(acc, 16))
    cvt8(A, vPK, vAC)
    cvt8(A, vPK + 8, vAC2)
    for i in range(7):
        gemm_chunk(1, i, vAC, True, i == 0)
    for q in range(4):
        A('ds_read_b128 %s, v%d offset:%d', v(vE + 4 * q, 4), vRA, q * 32)
    A('v_add_f32 v%d, v%d, v%d', vCS, vCS, vCS + 1)
    hilo_c(A, vCS, vCF, vT0)
    A('v_mov_b32 v%d, 0', vCS)
    A('v_mov_b32 v%d, 0', vCS + 1)
    A('%s %s, %s, %s, %s', MFMA, v(vAC, 16), v(vMF, 4), v(vCF, 4), v(vAC, 16))
    A('s_waitcnt lgkmcnt(0)')
    for r in range(16):
        A('v_mul_f32 v%d, v%d, v%d', vAC + r, vAC + r, vE + r)
    cvt8(A, vE + 16, vAC)
    A('v_mov_b32 v%d, 0x%x', vT0, ONES)
    for r in range(8):
        A('v_cndmask_b32 v%d, v%d, v%d, s[%d:%d]', vE + 16 + r, vE + 16 + r, vT0, sPADL, sPADL + 1)
    for t, acc in ((0, vAC), (1, vAC2)):
        A('%s %s, %s, %s, 0', MFMA, v(acc, 16), v(vPK + 8 * t, 4), v(vE + 16, 4))
        A('%s %s, %s, %s, %s', MFMA, v(acc, 16), v(vPK + 8 * t + 4, 4), v(vE + 20, 4), v(acc, 16))
    A('v_lshlrev_b32 v%d, 4, v%d', vT1, vL)
    A('v_add_u32 v%d, s%d, v%d', vT0, sM0, vT1)
    assert vAC2 == vAC + 16
    for q in range(8):
        A('ds_write_b128 v%d, %s offset:%d', vT0, v(vAC + 4 * q, 4), K1_X + q * 1024)
    lds_arrive_wait(A, vT0, vZ2, vONE, 4, sT, 4)
    A('s_lshl_b32 s%d, s%d, 11', sT, sWV)
    A('v_add_u32 v%d, s%d, v%d', vT0, sT, vT1)
    for w in range(4):
        for q in range(2):
            A('ds_read_b128 %s, v%d offset:%d', v(vAC + 8 * w + 4 * q, 4), vT0, K1_X + w * 16384 + q * 1024)
    A('s_waitcnt lgkmcnt(0)')
    for r in range(8):
        A('v_add_f32 v%d, v%d, v%d', vAC + r, vAC + r, vAC + 8 + r)
        A('v_add_f32 v%d, v%d, v%d', vAC + 16 + r, vAC + 16 + r, vAC + 24 + r)
    for r in range(8):
        A('v_add_f32 v%d, v%d, v%d', vAC + r, vAC + r, vAC + 16 + r)
    A('s_lshl_b32 s%d, s%d, 4', sT2, sH)
    A('s_add_u32 s%d, s%d, s%d', sT2, sT2, sTB)
    A('s_lshl_b32 s%d, s%d, 13', sT2, sT2)
    A('s_add_u32 s%d, s%d, %d', sT2, sT2, WS_KVP)
    for q in range(2):
        A('buffer_store_dwordx4 %s, v%d, s[%d:%d], s%d offen offset:%d', v(vAC + 4 * q, 4), vT0, SWS, SWS + 3, sT2,
          q * 1024)
    for i in range(7):
        gemm_chunk(2, i, vAC, False, i == 0)
    feature(vPK)
    A('s_lshl_b32 s%d, s%d, 4', sT2, sTB)
    A('s_add_u32 s%d, s%d, s%d', sT2, sT2, sH)
    A('s_lshl_b32 s%d, s%d, 2', sT2, sT2)
    A('s_add_u32 s%d, s%d, s%d', sT2, sT2, sWV)
    A('s_lshl_b32 s%d, s%d, 12', sT2, sT2)
    A('s_add_u32 s%d, s%d, %d', sT2, sT2, WS_PHIQ)
    A('v_lshlrev_b32 v%d, 4, v%d', vT1, vL)
    for q in range(4):
        A('buffer_store_dwordx4 %s, v%d, s[%d:%d], s%d offen offset:%d', v(vPK + 4 * q, 4), vT1, SWS, SWS + 3, sT2,
          q * 1024)
    A('%s:', end)
    A('s_endpgm')
    return name, R.n


def gen_k1b(A):
    name = 'p2a_kernel'
    kernel_head(A, name)
    end = A.label('END')
    A('s_cmp_ge_u32 s2, 256')
    A('s_cbranch_scc1 %s', end)
    A('s_load_dwordx2 s[10:11], s[0:1], 72')
    SWS = 24
    sTB, sH, sWV, sT, sT2, sC = 28, 29, 30, 33, 34, 36
    sZA, sZB, sODD = 42, 44, 46
    A('s_and_b32 s%d, s2, 7', sT)
    A('s_lshr_b32 s%d, s2, 3', sT2)
    A('s_and_b32 s%d, s%d, 15', sH, sT2)
    A('s_lshr_b32 s%d, s%d, 4', sTB, sT2)
    A('s_lshl_b32 s%d, s%d, 1', sC, sT)
    A('s_add_u32 s%d, s%d, s%d', sTB, sTB, sC)
    R = RA(1)
    vL, vT0, vT1, vO = R(), R(), R(), R()
    A('v_lshrrev_b32 v%d, 6, v0', vL)
    A('v_readfirstlane_b32 s%d, v%d', sWV, vL)
    A('v_and_b32 v%d, 63, v0', vL)
    A('v_lshlrev_b32 v%d, 4, v%d', vO, vL)
    A('s_waitcnt lgkmcnt(0)')
    srd(A, SWS, 10, WS_SIZE)
    vPK = R(16)
    vKV = R(16)
    vAC = R(16)
    vP = R(128)
    A('s_lshl_b32 s%d, s%d, 17', sT2, sH)
    A('s_lshl_b32 s%d, s%d, 11', sT, sWV)
    A('s_add_u32 s%d, s%d, s%d', sT2, sT2, sT)
    A('s_add_u32 s%d, s%d, %d', sT2, sT2, WS_KVP)
    for p in range(16):
        for q in range(2):
            A('buffer_load_dwordx4 %s, v%d, s[%d:%d], s%d offen offset:%d', v(vP + 8 * p + 4 * q, 4), vO, SWS, SWS + 3,
              sT2, q * 1024)
        A('s_add_u32 s%d, s%d, 8192', sT2, sT2)
    A('s_lshl_b32 s%d, s%d, 4', sT2, sTB)
    A('s_add_u32 s%d, s%d, s%d', sT2, sT2, sH)
    A('s_lshl_b32 s%d, s%d, 2', sT2, sT2)
    A('s_add_u32 s%d, s%d, s%d', sT2, sT2, sWV)
    A('s_lshl_b32 s%d, s%d, 12', sT2, sT2)
    A('s_add_u32 s%d, s%d, %d', sT2, sT2, WS_PHIQ)
    for q in range(4):
        A('buffer_load_dwordx4 %s, v%d, s[%d:%d], s%d offen offset:%d', v(vPK + 4 * q, 4), vO, SWS, SWS + 3, sT2,
          q * 1024)
    for p in range(1, 16):
        A('s_waitcnt vmcnt(%d)', 4 + 2 * (15 - p))
        for r in range(8):
            A('v_add_f32 v%d, v%d, v%d', vP + r, vP + r, vP + 8 * p + r)
    for r in range(4):
        A('v_cvt_pk_bf16_f32 v%d, v%d, v%d', vKV + r, vP + 2 * r, vP + 2 * r + 1)
    A('s_lshl_b32 s%d, s%d, 10', sT, sWV)
    A('v_add_u32 v%d, s%d, v%d', vT0, sT, vO)
    A('ds_write_b128 v%d, %s', vT0, v(vKV, 4))
    A('s_waitcnt lgkmcnt(0)')
    A('s_barrier')
    for q in range(4):
        A('ds_read_b128 %s, v%d offset:%d', v(vKV + 4 * q, 4), vO, q * 1024)
    A('s_bitcmp1_b32 s%d, 0', sH)
    A('s_cselect_b32 s%d, -1, 0', sZA)
    A('s_mov_b32 s%d, 0', sZA + 1)
    A('s_mov_b32 s%d, 0', sZB)
    A('s_cselect_b32 s%d, 0, -1', sZB + 1)
    A('s_cselect_b64 s[%d:%d], -1, 0', sODD, sODD + 1)
    A('s_waitcnt vmcnt(0) lgkmcnt(0)')
    for q in range(4):
        A('%s %s, %s, %s, %s', MFMA, v(vAC, 16), v(vKV + 4 * q, 4), v(vPK + 4 * q, 4), '0' if q == 0 else v(vAC, 16))
    A('v_mov_b32 v%d, v%d', vT0, vAC)
    A('v_mov_b32 v%d, v%d', vT1, vAC + 12)
    vT2, vT3 = R(), R()
    A('v_mov_b32 v%d, v%d', vT2, vT0)
    A('v_mov_b32 v%d, v%d', vT3, vT1)
    A('v_permlane32_swap_b32 v%d, v%d', vT0, vT2)
    A('v_permlane32_swap_b32 v%d, v%d', vT1, vT3)
    A('v_cndmask_b32 v%d, v%d, v%d, s[%d:%d]', vT0, vT3, vT0, sODD, sODD + 1)
    A('v_add_f32 v%d, 0x%x, v%d', vT0, 0x358637bd, vT0)
    A('v_rcp_f32 v%d, v%d', vT0, vT0)
    for r in range(16):
        A('v_mul_f32 v%d, v%d, v%d', vAC + r, vAC + r, vT0)
    cvt8(A, vKV, vAC)
    for r in (0, 1):
        A('v_cndmask_b32 v%d, v%d, 0, s[%d:%d]', vKV + r, vKV + r, sZA, sZA + 1)
        A('v_cndmask_b32 v%d, v%d, 0, s[%d:%d]', vKV + 6 + r, vKV + 6 + r, sZB, sZB + 1)
    A('s_lshl_b32 s%d, s%d, 2', sT2, sTB)
    A('s_add_u32 s%d, s%d, s%d', sT2, sT2, sWV)
    A('s_lshl_b32 s%d, s%d, 4', sT2, sT2)
    A('s_add_u32 s%d, s%d, s%d', sT2, sT2, sH)
    A('s_lshl_b32 s%d, s%d, 11', sT2, sT2)
    A('s_add_u32 s%d, s%d, %d', sT2, sT2, WS_OB)
    for q in range(2):
        A('buffer_store_dwordx4 %s, v%d, s[%d:%d], s%d offen offset:%d', v(vKV + 4 * q, 4), vO, SWS, SWS + 3, sT2,
          q * 1024)
    A('%s:', end)
    A('s_endpgm')
    return name, R.n


G_W, G_X, G_MISC = 0, 147456, 147456 + 8192
G_LDS = G_MISC + 64
RING = 9


def gen_g64(A, ffn):
    name = 'p4_kernel' if ffn else 'p2b_kernel'
    kernel_head(A, name)
    end = A.label('END')
    A('s_cmp_ge_u32 s2, 224')
    A('s_cbranch_scc1 %s', end)
    A('s_load_dwordx2 s[4:5], s[0:1], %d', 56 if ffn else 0)
    A('s_load_dwordx2 s[6:7], s[0:1], %d', 48 if ffn else 24)
    A('s_load_dwordx2 s[10:11], s[0:1], 72')
    SX, SW, SWS = 12, 16, 24
    sTQ, sNB, sWV, sPROG, sT, sT2, sG, sKH, sB = 28, 29, 30, 32, 33, 34, 35, 36, 37
    A('s_and_b32 s%d, s2, 7', sT)
    A('s_lshr_b32 s%d, s2, 3', sT2)
    A('s_mul_i32 s%d, s%d, 37', sTQ, sT2)
    A('s_lshr_b32 s%d, s%d, 8', sTQ, sTQ)
    A('s_mul_i32 s%d, s%d, 7', sNB, sTQ)
    A('s_sub_u32 s%d, s%d, s%d', sNB, sT2, sNB)
    A('s_lshl_b32 s%d, s%d, 2', sT, sT)
    A('s_add_u32 s%d, s%d, s%d', sTQ, sTQ, sT)
    R = RA(1)
    vL, vZ, vONE, vT0, vT1, vFL = R(), R(), R(), R(), R(), R()
    A('v_lshrrev_b32 v%d, 6, v0', vL)
    A('v_readfirstlane_b32 s%d, v%d', sWV, vL)
    A('v_and_b32 v%d, 63, v0', vL)
    A('v_mov_b32 v%d, 0', vZ)
    A('v_mov_b32 v%d, 1', vONE)
    A('v_mov_b32 v%d, %d', vFL, G_MISC)
    A('s_mov_b32 s%d, 0', sPROG)
    A('s_waitcnt lgkmcnt(0)')
    srd(A, SX, 4, S * D * 2)
    srd(A, SW, 6, (F if ffn else D) * D * 2)
    srd(A, SWS, 10, WS_SIZE)
    comp = A.label('COMP')
    A('s_cmp_lt_u32 s%d, 4', sWV)
    A('s_cbranch_scc1 %s', comp)
    for o in (0, 4, 8, 12):
        A('ds_write_b32 v%d, v%d offset:%d', vFL, vZ, o)
    A('v_lshrrev_b32 v%d, 3, v%d', vT0, vL)
    A('v_mul_u32_u24 v%d, 896, v%d', vT0, vT0)
    vXo = R()
    A('v_and_b32 v%d, 7, v%d', vT1, vL)
    A('v_lshl_add_u32 v%d, v%d, 4, v%d', vXo, vT1, vT0)
    vT2 = R()
    A('v_lshrrev_b32 v%d, 2, v%d', vT2, vL)
    A('v_and_b32 v%d, 4, v%d', vT2, vT2)
    A('v_xor_b32 v%d, v%d, v%d', vT1, vT1, vT2)
    A('v_lshl_add_u32 v%d, v%d, 4, v%d', vT0, vT1, vT0)
    A('s_lshl_b32 s%d, s%d, 7', sB, sNB)
    A('s_waitcnt lgkmcnt(0)')
    A('s_barrier')
    if not ffn:
        A('s_mul_i32 s%d, s%d, %d', sT, sTQ, 64 * 896)
        A('s_add_u32 s%d, s%d, s%d', sT, sT, sB)
        for u in range(8):
            A('s_mov_b32 m0, %d', G_X + u * 1024)
            A('buffer_load_dwordx4 v%d, s[%d:%d], s%d offen lds', vXo, SX, SX + 3, sT)
            A('s_add_u32 s%d, s%d, %d', sT, sT, 8 * 896)
        A('s_mov_b32 s%d, s%d', sT, sB)
        for u in range(56):
            A('s_mov_b32 m0, %d', G_W + u * 1024)
            A('buffer_load_dwordx4 v%d, s[%d:%d], s%d offen lds', vT0, SW, SW + 3, sT)
            A('s_add_u32 s%d, s%d, %d', sT, sT, 8 * 896)
            if u == 40:
                A('s_waitcnt vmcnt(30)')
        A('s_waitcnt vmcnt(0)')
        A('ds_write_b32 v%d, v%d', vFL, vONE)
    else:
        DEPTH = 3
        sR = 38
        A('s_mov_b32 s%d, 0', sR)
        for c in range(14):
            if c >= RING:
                wait_lds_ge(A, vT1, vFL, 8, sR, 4 * (c - RING + 1))
            for kh in range(2):
                A('s_add_u32 s%d, s%d, %d', sT, sB, (kh * 896 + c * 64) * 896)
                for u in range(8):
                    A('s_mov_b32 m0, %d', G_W + kh * RING * 8192 + (c % RING) * 8192 + u * 1024)
                    A('buffer_load_dwordx4 v%d, s[%d:%d], s%d offen lds', vT0, SW, SW + 3, sT)
                    if u < 7:
                        A('s_add_u32 s%d, s%d, %d', sT, sT, 8 * 896)
            n = c + 1
            if n > DEPTH - 1:
                A('s_waitcnt vmcnt(%d)', 16 * (DEPTH - 1))
                A('v_mov_b32 v%d, %d', vT1, n - DEPTH + 1)
                A('ds_write_b32 v%d, v%d', vFL, vT1)
        for k in range(DEPTH - 2, -1, -1):
            A('s_waitcnt vmcnt(%d)', 16 * k)
            A('v_mov_b32 v%d, %d', vT1, 14 - k)
            A('ds_write_b32 v%d, v%d', vFL, vT1)
    A('s_waitcnt lgkmcnt(0)')
    A('s_endpgm')
    A('%s:', comp)
    R.n = vFL + 1
    vO = R()
    vWA = R(2)
    vWB = R(2)
    vTT = R(4)
    vHP = R(8)
    vWF = R(32)
    vAC = R(32)
    NB = 24 if ffn else 16
    vB = R(4 * NB)
    A('s_and_b32 s%d, s%d, 1', sG, sWV)
    A('s_lshr_b32 s%d, s%d, 1', sKH, sWV)
    A('v_lshlrev_b32 v%d, 4, v%d', vO, vL)
    A('s_lshl_b32 s%d, s%d, 1', sT, sTQ)
    A('s_add_u32 s%d, s%d, s%d', sG, sG, sT)
    nks = 56 if ffn else 16
    A('s_mul_i32 s%d, s%d, %d', sB, sG, 2 * nks * 1024)
    A('s_mul_i32 s%d, s%d, %d', sT, sKH, nks * 1024)
    A('s_add_u32 s%d, s%d, s%d', sB, sB, sT)
    A('s_add_u32 s%d, s%d, %d', sB, sB, WS_H1B if ffn else WS_OB)
    sHB = 38
    A('s_mul_i32 s%d, s%d, 28', sHB, sG)
    A('s_lshl_b32 s%d, s%d, 2', sT, sNB)
    A('s_add_u32 s%d, s%d, s%d', sHB, sHB, sT)
    A('s_lshl_b32 s%d, s%d, 1', sT, sKH)
    A('s_add_u32 s%d, s%d, s%d', sHB, sHB, sT)
    A('s_lshl_b32 s%d, s%d, 10', sHB, sHB)
    A('s_add_u32 s%d, s%d, %d', sHB, sHB, WS_HB)
    if ffn:
        for q in range(2):
            A('buffer_load_dwordx4 %s, v%d, s[%d:%d], s%d offen offset:%d', v(vHP + 4 * q, 4), vO, SWS, SWS + 3, sHB,
              q * 1024)

    def issue_b(k):
        A('buffer_load_dwordx4 %s, v%d, s[%d:%d], s%d offen offset:%d', v(vB + 4 * (k % NB), 4), vO, SWS, SWS + 3, sB,
          (k & 3) * 1024)
        if (k & 3) == 3:
            A('s_add_u32 s%d, s%d, 4096', sB, sB)

    for k in range(NB):
        issue_b(k)
    A('v_bfe_u32 v%d, v%d, 2, 2', vT0, vL)
    A('v_lshrrev_b32 v%d, 5, v%d', vT1, vL)
    A('v_lshl_add_u32 v%d, v%d, 2, v%d', vT0, vT1, vT0)
    A('v_lshlrev_b32 v%d, 7, v%d', vT0, vT0)
    A('v_bfe_u32 v%d, v%d, 4, 1', vT1, vL)
    A('v_lshl_add_u32 v%d, v%d, 5, v%d', vT0, vT1, vT0)
    A('v_and_b32 v%d, 3, v%d', vT1, vL)
    A('v_lshl_add_u32 v%d, v%d, 3, v%d', vT0, vT1, vT0)
    A('v_bfe_u32 v%d, v%d, 3, 1', vT1, vL)
    A('v_lshl_add_u32 v%d, v%d, 6, v%d', vWA, vT1, vT0)
    A('v_xor_b32 v%d, 64, v%d', vWA + 1, vWA)
    A('s_mul_i32 s%d, s%d, %d', sT, sKH, RING * 8192 if ffn else 224 * 128)
    A('s_add_u32 s%d, s%d, %d', sT, sT, G_W)
    for q in range(2):
        A('v_add_u32 v%d, s%d, v%d', vWA + q, sT, vWA + q)
        A('v_add_u32 v%d, 0x8000, v%d', vWB + q, vWA + q)
    A('s_barrier')

    def wrow(k):
        if ffn:
            return ((k // 4) % RING) * 64 + (k % 4) * 16
        hh = k // 2
        return 28 * hh - 4 * (hh & 1) + 16 * (k & 1)

    def read_w(k):
        buf = vWF + 8 * (k % 4)
        for nt in range(2):
            for z in range(2):
                off = (wrow(k) + 8 * z) * 128
                base = vWA
                if off >= 0x8000:
                    off -= 0x8000
                    base = vWB
                A('ds_read_b64_tr_b16 v[%d:%d], v%d offset:%d', buf + 4 * nt + 2 * z, buf + 4 * nt + 2 * z + 1, base + nt,
                  off)

    issued = NB
    extra = 0
    for c in range(nks // 4):
        wait_lds_ge(A, vT0, vFL, 0, sPROG, (c + 1) if ffn else 1)
        for q in range(4):
            read_w(4 * c + q)
        for q in range(4):
            k = 4 * c + q
            A('s_waitcnt vmcnt(%d) lgkmcnt(%d)', issued - k - 1, min(15, 12 - 4 * q))
            for nt in range(2):
                A('%s %s, %s, %s, %s', MFMA, v(vAC + 16 * nt, 16), v(vWF + 8 * q + 4 * nt, 4), v(vB + 4 * (k % NB), 4),
                  '0' if k == 0 else v(vAC + 16 * nt, 16))
        if ffn and c < 14 - RING:
            A('s_mov_b64 exec, 1')
            A('ds_add_u32 v%d, v%d offset:8', vFL, vONE)
            A('s_mov_b64 exec, -1')
        for q in range(4):
            if issued < nks:
                issue_b(issued)
                issued += 1
    lds_arrive_wait(A, vT0, vFL, vONE, 4, sT, 4)
    A('s_cmp_eq_u32 s%d, 0', sKH)
    sK0 = 40
    A('s_cselect_b64 s[%d:%d], -1, 0', sK0, sK0 + 1)
    for r in range(16):
        A('v_cndmask_b32 v%d, v%d, v%d, s[%d:%d]', vWF + r, vAC + r, vAC + 16 + r, sK0, sK0 + 1)
        A('v_cndmask_b32 v%d, v%d, v%d, s[%d:%d]', vAC + r, vAC + 16 + r, vAC + r, sK0, sK0 + 1)
    A('s_lshl_b32 s%d, s%d, 12', sT, sWV)
    A('v_add_u32 v%d, s%d, v%d', vT1, sT, vO)
    for q in range(4):
        A('ds_write_b128 v%d, %s offset:%d', vT1, v(vWF + 4 * q, 4), G_W + q * 1024)
    lds_arrive_wait(A, vT0, vFL, vONE, 12, sT, 4)
    A('v_xor_b32 v%d, 0x2000, v%d', vT1, vT1)
    for q in range(4):
        A('ds_read_b128 %s, v%d offset:%d', v(vWF + 4 * q, 4), vT1, G_W + q * 1024)
    if not ffn:
        A('v_and_b32 v%d, 31, v%d', vT0, vL)
        A('v_lshlrev_b32 v%d, 7, v%d', vT0, vT0)
        A('v_lshrrev_b32 v%d, 5, v%d', vT1, vL)
        A('v_lshl_add_u32 v%d, v%d, 3, v%d', vT0, vT1, vT0)
        A('s_and_b32 s%d, s%d, 1', sT, sWV)
        A('s_lshl_b32 s%d, s%d, 12', sT, sT)
        A('s_lshl_b32 s%d, s%d, 6', sT2, sKH)
        A('s_add_u32 s%d, s%d, s%d', sT, sT, sT2)
        A('s_add_u32 s%d, s%d, %d', sT, sT, G_X)
        A('v_add_u32 v%d, s%d, v%d', vT0, sT, vT0)
        for q in range(4):
            A('ds_read_b64 v[%d:%d], v%d offset:%d', vHP + 2 * q, vHP + 2 * q + 1, vT0, q * 16)
    A('s_waitcnt vmcnt(0) lgkmcnt(0)')
    for r in range(16):
        A('v_add_f32 v%d, v%d, v%d', vAC + r, vAC + r, vWF + r)
    if True:
        for r in range(8):
            A('v_lshlrev_b32 v%d, 16, v%d', vT0, vHP + r)
            A('v_and_b32 v%d, 0xffff0000, v%d', vT1, vHP + r)
            A('v_add_f32 v%d, v%d, v%d', vAC + 2 * r, vAC + 2 * r, vT0)
            A('v_add_f32 v%d, v%d, v%d', vAC + 2 * r + 1, vAC + 2 * r + 1, vT1)
    cvt8(A, vHP, vAC)
    if not ffn:
        for q in range(2):
            A('buffer_store_dwordx4 %s, v%d, s[%d:%d], s%d offen offset:%d', v(vHP + 4 * q, 4), vO, SWS, SWS + 3, sHB,
              q * 1024)
    else:
        for q in range(2):
            A('v_permlane32_swap_b32 v%d, v%d', vHP + 4 * q, vHP + 4 * q + 2)
            A('v_permlane32_swap_b32 v%d, v%d', vHP + 4 * q + 1, vHP + 4 * q + 3)
        A('v_and_b32 v%d, 31, v%d', vT0, vL)
        A('v_mul_u32_u24 v%d, 896, v%d', vT0, vT0)
        A('v_lshrrev_b32 v%d, 5, v%d', vT1, vL)
        A('v_lshl_add_u32 v%d, v%d, 4, v%d', vT0, vT1, vT0)
        A('s_mul_i32 s%d, s%d, %d', sT, sG, 32 * 896)
        A('s_lshl_b32 s%d, s%d, 7', sT2, sNB)
        A('s_add_u32 s%d, s%d, s%d', sT, sT, sT2)
        A('s_lshl_b32 s%d, s%d, 6', sT2, sKH)
        A('s_add_u32 s%d, s%d, s%d', sT, sT, sT2)
        for q in range(2):
            A('buffer_store_dwordx4 %s, v%d, s[%d:%d], s%d offen offset:%d', v(vHP + 4 * q, 4), vT0, SX, SX + 3, sT,
              q * 32)
    A('%s:', end)
    A('s_endpgm')
    return name, R.n


P3_W, P3_MISC = 0, 114688
P3_LDS = P3_MISC + 64


def gen_k3(A):
    name = 'p3_kernel'
    kernel_head(A, name)
    end = A.label('END')
    A('s_cmp_ge_u32 s2, 224')
    A('s_cbranch_scc1 %s', end)
    A('s_load_dwordx2 s[6:7], s[0:1], 40')
    A('s_load_dwordx2 s[10:11], s[0:1], 72')
    SW, SWS = 16, 24
    sTB, sFB, sWV, sPROG, sT, sT2, sG, sB, sONES = 28, 29, 30, 32, 33, 34, 35, 37, 38
    A('s_and_b32 s%d, s2, 7', sT)
    A('s_lshr_b32 s%d, s2, 3', sFB)
    A('s_cmp_ge_u32 s%d, 14', sFB)
    A('s_cselect_b32 s%d, 1, 0', sTB)
    A('s_cselect_b32 s%d, 14, 0', sT2)
    A('s_sub_u32 s%d, s%d, s%d', sFB, sFB, sT2)
    A('s_lshl_b32 s%d, s%d, 1', sT, sT)
    A('s_add_u32 s%d, s%d, s%d', sTB, sTB, sT)
    R = RA(1)
    vL, vZ, vT0, vT1, vFL = R(), R(), R(), R(), R()
    A('v_lshrrev_b32 v%d, 6, v0', vL)
    A('v_readfirstlane_b32 s%d, v%d', sWV, vL)
    A('v_and_b32 v%d, 63, v0', vL)
    A('v_mov_b32 v%d, 0', vZ)
    A('v_mov_b32 v%d, %d', vFL, P3_MISC)
    A('s_mov_b32 s%d, 0', sPROG)
    A('s_mov_b32 s%d, 0x%x', sONES, ONES)
    A('s_waitcnt lgkmcnt(0)')
    srd(A, SW, 6, D * F * 2)
    srd(A, SWS, 10, WS_SIZE)
    comp = A.label('COMP')
    A('s_cmp_lt_u32 s%d, 4', sWV)
    A('s_cbranch_scc1 %s', comp)
    A('ds_write_b32 v%d, v%d', vFL, vZ)
    vT2 = R()
    A('v_lshrrev_b32 v%d, 4, v%d', vT0, vL)
    A('v_mul_u32_u24 v%d, 3584, v%d', vT0, vT0)
    A('v_and_b32 v%d, 15, v%d', vT1, vL)
    A('v_lshrrev_b32 v%d, 2, v%d', vT2, vL)
    A('v_and_b32 v%d, 12, v%d', vT2, vT2)
    A('v_xor_b32 v%d, v%d, v%d', vT1, vT1, vT2)
    A('v_lshl_add_u32 v%d, v%d, 4, v%d', vT0, vT1, vT0)
    A('s_lshl_b32 s%d, s%d, 8', sT, sFB)
    A('s_waitcnt lgkmcnt(0)')
    A('s_barrier')
    DEPTH = 3
    for c in range(7):
        for u in range(16):
            A('s_mov_b32 m0, %d', P3_W + c * 16384 + u * 1024)
            A('buffer_load_dwordx4 v%d, s[%d:%d], s%d offen lds', vT0, SW, SW + 3, sT)
            A('s_add_u32 s%d, s%d, %d', sT, sT, 4 * 3584)
        n = c + 1
        if n > DEPTH - 1:
            A('s_waitcnt vmcnt(%d)', 16 * (DEPTH - 1))
            A('v_mov_b32 v%d, %d', vT1, n - DEPTH + 1)
            A('ds_write_b32 v%d, v%d', vFL, vT1)
    for k in range(DEPTH - 2, -1, -1):
        A('s_waitcnt vmcnt(%d)', 16 * k)
        A('v_mov_b32 v%d, %d', vT1, 7 - k)
        A('ds_write_b32 v%d, v%d', vFL, vT1)
    A('s_waitcnt lgkmcnt(0)')
    A('s_endpgm')
    A('%s:', comp)
    R.n = vFL + 1
    vO = R()
    vWA, vWB = R(4), R(4)
    vSM, vSQ = R(2), R(2)
    vCS = R(4)
    vNM, vRS, vSD, vC1 = R(), R(), R(), R()
    vMF, vCF = R(4), R(4)
    vWF = R(32)
    vAC = R(64)
    vB = R(112)
    A('v_lshlrev_b32 v%d, 4, v%d', vO, vL)
    A('s_lshl_b32 s%d, s%d, 2', sG, sTB)
    A('s_add_u32 s%d, s%d, s%d', sG, sG, sWV)
    A('s_mul_i32 s%d, s%d, %d', sB, sG, 28 * 1024)
    A('s_add_u32 s%d, s%d, %d', sB, sB, WS_HB)
    for k in range(28):
        A('buffer_load_dwordx4 %s, v%d, s[%d:%d], s%d offen offset:%d', v(vB + 4 * k, 4), vO, SWS, SWS + 3, sB,
          (k & 3) * 1024)
        if (k & 3) == 3:
            A('s_add_u32 s%d, s%d, 4096', sB, sB)
    A('v_bfe_u32 v%d, v%d, 2, 2', vT0, vL)
    A('v_lshrrev_b32 v%d, 5, v%d', vT1, vL)
    A('v_lshl_add_u32 v%d, v%d, 2, v%d', vT1, vT1, vT0)
    A('v_lshlrev_b32 v%d, 8, v%d', vT1, vT1)
    A('v_lshl_add_u32 v%d, v%d, 6, v%d', vT0, vT0, vT1)
    A('v_bfe_u32 v%d, v%d, 4, 1', vT1, vL)
    A('v_lshl_add_u32 v%d, v%d, 5, v%d', vT0, vT1, vT0)
    A('v_and_b32 v%d, 3, v%d', vT1, vL)
    A('v_lshl_add_u32 v%d, v%d, 3, v%d', vT0, vT1, vT0)
    for nt in range(4):
        A('v_xor_b32 v%d, %d, v%d', vWA + nt, 64 * nt, vT0)
        A('v_add_u32 v%d, 0x10000, v%d', vWB + nt, vWA + nt)
    for r in [vSM, vSM + 1, vSQ, vSQ + 1, vMF + 2, vMF + 3, vCF + 2, vCF + 3] + [vCS + i for i in range(4)]:
        A('v_mov_b32 v%d, 0', r)
    A('s_barrier')

    def read_w(k):
        buf = vWF + 16 * (k & 1)
        for nt in range(4):
            for z in range(2):
                off = P3_W + (16 * k + 8 * z) * 256
                base = vWA
                if off >= 0x10000:
                    off -= 0x10000
                    base = vWB
                A('ds_read_b64_tr_b16 v[%d:%d], v%d offset:%d', buf + 4 * nt + 2 * z, buf + 4 * nt + 2 * z + 1, base + nt,
                  off)

    for k in range(28):
        if k % 4 == 0:
            wait_lds_ge(A, vT0, vFL, 0, sPROG, k // 4 + 1)
            read_w(k)
        if k % 4 != 3:
            read_w(k + 1)
        A('s_waitcnt vmcnt(%d) lgkmcnt(%d)', 27 - k, 8 if k % 4 != 3 else 0)
        buf = vWF + 16 * (k & 1)
        for nt in range(4):
            A('%s %s, %s, %s, %s', MFMA, v(vAC + 16 * nt, 16), v(buf + 4 * nt, 4), v(vB + 4 * k, 4),
              '0' if k == 0 else v(vAC + 16 * nt, 16))
            for z in range(4):
                A('v_dot2c_f32_bf16 v%d, s%d, v%d', vCS + nt, sONES, buf + 4 * nt + z)
            x = vB + 4 * k + nt
            A('v_dot2c_f32_bf16 v%d, s%d, v%d', vSM + (nt & 1), sONES, x)
            A('v_dot2c_f32_bf16 v%d, v%d, v%d', vSQ + (nt & 1), x, x)
    ln_stats(A, vSM, vSQ, vT0, vT1, vNM, vRS, vSD)
    A('v_mul_f32 v%d, 0x%x, v%d', vC1, LOG2E ^ 0x80000000, vRS)
    hilo_m(A, vNM, vMF, vT0)
    A('s_mul_i32 s%d, s%d, 112', sB, sG)
    A('s_lshl_b32 s%d, s%d, 3', sT, sFB)
    A('s_add_u32 s%d, s%d, s%d', sB, sB, sT)
    A('s_lshl_b32 s%d, s%d, 10', sB, sB)
    A('s_add_u32 s%d, s%d, %d', sB, sB, WS_H1B)
    for nt in range(4):
        hilo_c(A, vCS + nt, vCF, vT0)
        acc = vAC + 16 * nt
        A('%s %s, %s, %s, %s', MFMA, v(acc, 16), v(vCF, 4), v(vMF, 4), v(acc, 16))
        e = vWF
        for r in range(16):
            A('v_mul_f32 v%d, v%d, v%d', e + r, acc + r, vC1)
        for r in range(16):
            A('v_exp_f32 v%d, v%d', e + r, e + r)
        for r in range(16):
            A('v_fma_f32 v%d, v%d, v%d, v%d', e + r, e + r, vSD, vSD)
        for r in range(16):
            A('v_rcp_f32 v%d, v%d', e + r, e + r)
        for r in range(16):
            A('v_mul_f32 v%d, v%d, v%d', e + r, e + r, acc + r)
        cvt8(A, acc, e)
        for q in range(2):
            A('buffer_store_dwordx4 %s, v%d, s[%d:%d], s%d offen offset:%d', v(acc + 4 * q, 4), vO, SWS, SWS + 3, sB,
              ((2 * nt + q) & 3) * 1024)
        if nt == 1:
            A('s_add_u32 s%d, s%d, 4096', sB, sB)
    A('%s:', end)
    A('s_endpgm')
    return name, R.n


def main():
    out = sys.argv[1] if len(sys.argv) > 1 else 'cdna_kernels/%s.s' % NAME
    extra = int(os.environ.get('EXTRA_EMPTY', '0'))
    A = Asm()
    ks = []
    ks.append(gen_k1(A) + (256, 320, K1_LDS))
    ks.append(gen_k1b(A) + (256, 256, 4096))
    ks.append(gen_g64(A, False) + (224, 320, G_LDS))
    ks.append(gen_k3(A) + (224, 320, P3_LDS))
    ks.append(gen_g64(A, True) + (224, 320, G_LDS))
    if extra:
        kernel_head(A, 'empty_kernel')
        A('s_endpgm')
    lines, nn = fix_hazards(A.lines)
    hdr = ['; generated by gen/gen1.py (hand-written generator)']
    for (n, vg, grid, blk, lds) in ks:
        hdr.append('; @launch kernel=%s grid=(%d,1,1) block=(%d,1,1) lds=%d' % (n, grid, blk, lds))
    for i in range(extra):
        hdr.append('; @launch kernel=empty_kernel grid=(256,1,1) block=(256,1,1) lds=0')
    hdr += ['.amdgcn_target "amdgcn-amd-amdhsa--gfx950"', '.text']
    tail = ['.section .rodata,"a"']
    for (n, vg, grid, blk, lds) in ks:
        tail += ['.p2align 6', kd(n, vg)]
    if extra:
        tail += ['.p2align 6', kd('empty_kernel', 8)]
    open(out, 'w').write('\n'.join(hdr + lines + tail) + '\n')
    print('wrote', out, 'nops inserted', nn, [(k[0], k[1]) for k in ks])


if __name__ == '__main__':
    main()
```

```python
import re

REG_RE = re.compile(r'(?<![\w.])([vas])(\d+)(?![\w\[])|(?<![\w.])([vas])\[(\d+):(\d+)\]')
TRANS = ('v_exp_f32', 'v_log_f32', 'v_rcp_f32', 'v_rsq_f32', 'v_sqrt_f32', 'v_sin_f32', 'v_cos_f32')


def regs_of(tok):
    out = []
    for m in REG_RE.finditer(tok):
        if m.group(1):
            out.append((m.group(1), int(m.group(2))))
        else:
            for i in range(int(m.group(4)), int(m.group(5)) + 1):
                out.append((m.group(3), i))
    t = tok.strip()
    if re.search(r'\bvcc\b', t):
        out += [('s', 106), ('s', 107)]
    if re.search(r'\bvcc_lo\b', t):
        out += [('s', 106)]
    if re.search(r'\bvcc_hi\b', t):
        out += [('s', 107)]
    if re.search(r'\bexec\b', t):
        out += [('s', 126), ('s', 127)]
    if re.search(r'\bm0\b', t):
        out += [('s', 124)]
    return out


def split_ops(rest):
    ops, depth, cur = [], 0, ''
    for ch in rest:
        if ch in '[(':
            depth += 1
        if ch in '])':
            depth -= 1
        if ch == ',' and depth == 0:
            ops.append(cur.strip())
            cur = ''
        else:
            cur += ch
    if cur.strip():
        ops.append(cur.strip())
    return ops


class Ins:
    def __init__(self, text):
        self.text = text
        code = text.split(';')[0].strip()
        self.is_label = code.endswith(':')
        self.is_dir = code.startswith('.') and not self.is_label
        self.empty = (code == '')
        self.op = ''
        self.w = set()
        self.r = set()
        self.kind = 'none'
        self.srcc = set()
        self.ab = set()
        self.passes = 0
        self.states = 1
        self.widestore = set()
        self.ldsdma = False
        if self.is_label or self.is_dir or self.empty:
            self.states = 0
            return
        parts = code.split(None, 1)
        op = parts[0]
        for suf in ('_e32', '_e64'):
            if op.endswith(suf):
                op = op[:-4]
        self.op = op
        ops = split_ops(parts[1]) if len(parts) > 1 else []
        R = [regs_of(o) for o in ops]
        flat = lambda l: set(x for y in l for x in y)
        if op == 's_nop':
            self.kind = 'salu'
            self.states = int(ops[0], 0) + 1
        elif op.startswith('v_mfma'):
            self.kind = 'mfma'
            self.w = set(R[0])
            self.ab = flat(R[1:3])
            self.srcc = set(R[3])
            self.r = self.ab | self.srcc
            self.passes = 8 if '32x32x16' in op else 4
            assert '32x32x16' in op or '16x16x32' in op, op
        elif op.startswith('ds_'):
            self.kind = 'ds'
            if op.startswith('ds_read') or '_rtn' in op or 'permute' in op or 'swizzle' in op:
                self.w = set(R[0])
                self.r = flat(R[1:])
            else:
                self.r = flat(R)
        elif op.startswith('buffer_') or op.startswith('global_'):
            self.kind = 'vmem'
            islds = bool(re.search(r'\blds\b', code)) or 'load_lds' in op
            if op in ('buffer_wbl2', 'buffer_inv'):
                pass
            elif islds:
                self.r = flat(R) | {('s', 124)}
                self.ldsdma = True
            elif '_load' in op:
                self.w = set(R[0])
                self.r = flat(R[1:])
                if 'd16' in op:
                    self.r |= set(R[0])
            elif 'atomic' in op:
                self.r = flat(R)
                if re.search(r'\bsc0\b', code):
                    self.w = set(R[0])
            else:
                self.r = flat(R)
                if op.endswith('x4') or op.endswith('x3'):
                    self.widestore = set(R[0]) if op.startswith('buffer_') else set(R[1])
        elif op.startswith('s_'):
            self.kind = 'salu'
            if op.startswith('s_cmp') or op.startswith('s_cbranch') or op in (
                    's_branch', 's_waitcnt', 's_barrier', 's_endpgm', 's_sleep', 's_setprio', 's_bitcmp0_b32',
                    's_bitcmp1_b32'):
                self.r = flat(R)
            else:
                self.w = set(R[0]) if R else set()
                self.r = flat(R[1:])
                if 'saveexec' in op:
                    self.w |= {('s', 126), ('s', 127)}
        elif op.startswith('v_'):
            self.kind = 'valu'
            self.w = set(R[0])
            self.r = flat(R[1:])
            if op.startswith('v_permlane') and 'swap' in op:
                self.w = flat(R[:2])
                self.r = flat(R[:2])
            if op in ('v_fmac_f32', 'v_dot2c_f32_bf16', 'v_writelane_b32'):
                self.r |= set(R[0])
            if op.startswith('v_add_co') or op.startswith('v_sub_co') or op.startswith('v_addc_co'):
                self.w = flat(R[:2])
                self.r = flat(R[2:])
            if op.startswith('v_cmpx'):
                self.w |= {('s', 126), ('s', 127)}
        else:
            raise ValueError('unknown instruction: ' + text)
        self.dpp = ('_dpp' in op) or (' quad_perm' in code) or (' row_' in code)
        self.trans = op in TRANS
        self.dot = op.startswith('v_dot')


def need(p, c):
    n = 0
    vw = {x for x in p.w if x[0] in 'va'}
    sw = {x for x in p.w if x[0] == 's'}
    if p.kind == 'valu':
        if c.kind == 'mfma' and (vw & c.r):
            n = max(n, 3 if p.dot else 2)
        if c.kind == 'valu':
            if p.trans and not c.trans and (vw & c.r):
                n = max(n, 1)
            if c.op.startswith('v_permlane') and (vw & c.r):
                n = max(n, 2)
            if c.op in ('v_readfirstlane_b32', 'v_readlane_b32') and (vw & c.r):
                n = max(n, 1)
            if c.dpp and (vw & c.r):
                n = max(n, 2)
            if sw & c.r:
                n = max(n, 4 if c.op in ('v_readlane_b32', 'v_writelane_b32') else 2)
            if 'sdwa' in p.op and (vw & (c.r | c.w)):
                n = max(n, 1)
            if p.dot and (vw & (c.r | c.w)):
                if c.op == p.op and p.op == 'v_dot2c_f32_bf16' and c.w == p.w:
                    pass
                else:
                    n = max(n, 3)
        if c.kind in ('vmem', 'ds') and p.dot and (vw & c.r):
            n = max(n, 3)
        if c.kind == 'vmem' and (sw & c.r):
            n = max(n, 5)
        if ('s', 126) in p.w:
            if c.kind == 'mfma':
                n = max(n, 4)
            if c.kind == 'valu' and (c.dpp):
                n = max(n, 5)
            if c.kind == 'valu' and (c.op.startswith('v_permlane') or c.op.startswith('v_read') or c.op.startswith('v_writelane')):
                n = max(n, 4)
    if p.kind == 'mfma':
        big = {8: 12, 4: 8}[p.passes]
        if c.kind == 'mfma':
            if p.w & c.ab:
                n = max(n, big)
            if p.w & c.srcc:
                if not (p.w == c.srcc and p.passes == c.passes):
                    n = max(n, {8: 10, 4: 6}[p.passes])
            elif p.w & c.w:
                n = max(n, big)
        elif c.kind in ('valu', 'vmem', 'ds'):
            if p.w & (c.r | c.w):
                n = max(n, big)
            if c.kind == 'valu' and (p.srcc & c.w):
                n = max(n, {8: 7, 4: 3}[p.passes])
    if p.kind == 'salu' and ('s', 124) in p.w and c.ldsdma:
        n = max(n, 1)
    if p.widestore and (p.widestore & c.w):
        n = max(n, 2 if c.kind == 'valu' else 1)
    return n


def fix_hazards(lines, window=40):
    out = []
    hist = []
    nins = 0
    open_regions = []
    seen = set()
    for t in lines:
        c = Ins(t)
        if c.states == 0:
            if c.is_label:
                lab = t.split(';')[0].strip()[:-1]
                seen.add(lab)
                open_regions = [r for r in open_regions if r != lab]
            out.append(t)
            continue
        c.regions = frozenset(open_regions)
        req = 0
        dist = 0
        for p in reversed(hist):
            k = need(p, c) - dist
            if k > req:
                req = k
            if p.regions <= c.regions:
                dist += p.states
            if dist >= 20:
                break
        while req > 0:
            k = min(req, 16)
            nop = 's_nop %d' % (k - 1)
            out.append('  ' + nop)
            n = Ins(nop)
            n.regions = c.regions
            hist.append(n)
            nins += 1
            req -= k
        out.append(t)
        hist.append(c)
        if c.op.startswith('s_cbranch') or c.op == 's_branch':
            tgt = t.split(';')[0].split()[-1]
            if tgt not in seen:
                open_regions.append(tgt)
        if c.op == 's_endpgm':
            hist = []
    return out, nins


class Asm:
    def __init__(self):
        self.lines = []
        self._lab = 0

    def __call__(self, fmt, *a):
        s = fmt % a if a else fmt
        for l in s.split('\n'):
            l = l.strip()
            if l:
                self.lines.append(l if l.endswith(':') else '  ' + l)

    def label(self, base='L'):
        self._lab += 1
        return '%s_%d' % (base, self._lab)

    def comment(self, s):
        self.lines.append('  ; ' + s)


def v(i, n=1):
    return 'v%d' % i if n == 1 else 'v[%d:%d]' % (i, i + n - 1)


def a(i, n=1):
    return 'a%d' % i if n == 1 else 'a[%d:%d]' % (i, i + n - 1)


def s(i, n=1):
    return 's%d' % i if n == 1 else 's[%d:%d]' % (i, i + n - 1)


def interleave(main, fill, per):
    out = []
    k = 0
    for l in main:
        out.append(l)
        if l.strip().startswith('v_mfma'):
            out += fill[k:k + per]
            k += per
    out += fill[k:]
    return out
```

```python
import sys
import os
sys.path.insert(0, os.path.dirname(os.path.abspath(__file__)))
from asmlib import Asm, fix_hazards, v

NAME = 'sequential_preLN__linear_kernel_hedgehog__dense_activation_silu__prompt'
S, D, H, DH, F = 2048, 448, 16, 28, 1792
MB = 1 << 20
E = lambda k, d: int(os.environ.get(k, d))
STAMPS = E('STAMPS', 0)
MAP = E('MAP', 0)
FAST = E('FAST', 1)
CODEPF = E('CODEPF', 1)
WARM = E('WARM', 1)
WS_KVP = 0
WS_OB = 2 * MB
WS_HB = 4 * MB
WS_H1B = 8 * MB
WS_FLG = 16 * MB
F1, F2, F3, F4, FREG, FEP = WS_FLG, WS_FLG + 0x1000, WS_FLG + 0x3000, WS_FLG + 0x5000, WS_FLG + 0x9000, WS_FLG + 0xA000
WS_STAMP = 17 * MB
WS_SIZE = 18 * MB
LOG2E = 0x3fb8aa3b
ONES = 0x3f803f80
MFMA = 'v_mfma_f32_32x32x16_bf16'
L_A, L_B = 0, 65536
L_XRES = 57344
L_SC0, L_SC1 = 57344, 147456
L_PHI, L_EX, L_MISC = 151552, 155648, 162816
LDS_SIZE = 163840
M_PW, M_LP, M_RSTD = 0, 16, 512

SX, SW, SP, SWS, SWO, SW1, SW2, SOUT = 12, 16, 20, 24, 28, 32, 36, 40
sTB, sH, sWV, sC0, sPROG, sT, sT2, sONES, sC, sTAG, sFASTF, sI, sXCD = 44, 45, 46, 47, 48, 49, 50, 51, 52, 53, 54, 55, 3
sHI, sPADL, sZA, sZB, sODD, sMSK = 4, 6, 8, 10, 92, 94
sTQ, sNB, sTB3, sFB, sG, sKH, sB, sXB, sM0, sSPIN = 96, 97, 98, 99, 100, 101, 88, 89, 91, 90
vL, vMI, vT0, vT1, vO = 1, 2, 3, 4, 5
vTT = 8
vXE, vXO = 6, 7
vXA = 12
vWA = 16
vSM, vSQ, vCS = 20, 22, 24
vNM, vRS, vSC, vRA = 26, 27, 28, 29
vSD, vC1 = 30, 31
vPW = 32
vXR = 144

_st = {'n': 0}


def stamp(A):
    if STAMPS:
        assert _st['n'] < 16, 'too many stamps'
        A('s_memtime s[%d:%d]', 56 + 2 * _st['n'], 57 + 2 * _st['n'])
        _st['n'] += 1


def stamp_flush(A):
    if STAMPS:
        A('s_waitcnt vmcnt(0)')
        stamp(A)
        A('s_waitcnt vmcnt(0) lgkmcnt(0)')
        A('s_lshl_b32 s%d, s2, 3', sT)
        A('s_add_u32 s%d, s%d, s%d', sT, sT, sWV)
        A('s_lshl_b32 s%d, s%d, 6', sT, sT)
        A('s_add_u32 s%d, s%d, %d', sT, sT, WS_STAMP)
        A('s_mov_b64 exec, 1')
        A('v_mov_b32 v1, 0')
        for i in range(16):
            if i < _st['n']:
                A('v_mov_b32 v2, s%d', 56 + 2 * i)
            else:
                A('v_mov_b32 v2, 0')
            A('buffer_store_dword v2, v1, s[%d:%d], s%d offen offset:%d', SWS, SWS + 3, sT, 4 * i)
            A('s_nop 1')


def srd(A, d, ptr, size):
    A('s_mov_b32 s%d, s%d', d, ptr)
    A('s_and_b32 s%d, s%d, 0xffff', d + 1, ptr + 1)
    A('s_mov_b32 s%d, 0x%x', d + 2, size)
    A('s_mov_b32 s%d, 0x20000', d + 3)


def spin_guard(A, done):
    A('s_sub_u32 s%d, s%d, 1', sSPIN, sSPIN)
    A('s_cbranch_scc1 %s', done)


def wait_lp(A, n):
    lo, done = A.label('W'), A.label('WD')
    A('s_cmp_ge_u32 s%d, %d', sPROG, n)
    A('s_cbranch_scc1 %s', done)
    A('%s:', lo)
    A('ds_read_b32 v%d, v%d offset:%d', vPW, vMI, M_LP)
    A('s_waitcnt lgkmcnt(0)')
    A('v_readfirstlane_b32 s%d, v%d', sPROG, vPW)
    spin_guard(A, done)
    A('s_cmp_ge_u32 s%d, %d', sPROG, n)
    A('s_cbranch_scc0 %s', lo)
    A('%s:', done)


def set_stage(A, n):
    A('v_mov_b32 v%d, %d', vT0, n)
    A('ds_write_b32 v%d, v%d offset:%d', vRA_PW, vT0, M_PW)


vRA_PW = 35 + 1


def wait_stage(A, n, which=(0, 1, 2, 3), body=None, sdst=None):
    lo, done = A.label('W'), A.label('WD')
    sd = sT if sdst is None else sdst
    if sdst is not None:
        A('s_cmp_ge_u32 s%d, %d', sd, n)
        A('s_cbranch_scc1 %s', done)
    A('%s:', lo)
    A('ds_read_b128 v[%d:%d], v%d offset:%d', vPW, vPW + 3, vMI, M_PW)
    k = body() if body else 0
    A('s_waitcnt lgkmcnt(%d)', k)
    w = list(which)
    if len(w) == 4:
        A('v_min3_u32 v%d, v%d, v%d, v%d', vPW, vPW, vPW + 1, vPW + 2)
        A('v_min_u32 v%d, v%d, v%d', vPW, vPW, vPW + 3)
        r = vPW
    elif len(w) == 2:
        A('v_min_u32 v%d, v%d, v%d', vPW + w[0], vPW + w[0], vPW + w[1])
        r = vPW + w[0]
    else:
        r = vPW + w[0]
    A('v_readfirstlane_b32 s%d, v%d', sd, r)
    spin_guard(A, done)
    A('s_cmp_ge_u32 s%d, %d', sd, n)
    A('s_cbranch_scc0 %s', lo)
    A('%s:', done)


def poll_global(A, soff, nlanes, vtmp=vT0):
    lo, done = A.label('P'), A.label('PD')
    A('v_lshlrev_b32 v%d, 2, v%d', vT1, vL)
    A('s_mov_b64 exec, 0x%x', (1 << nlanes) - 1)
    A('%s:', lo)
    A('buffer_load_dword v%d, v%d, s[%d:%d], s%d offen sc1', vtmp, vT1, SWS, SWS + 3, soff)
    A('s_waitcnt vmcnt(0)')
    A('v_cmp_ne_u32 vcc, s%d, v%d', sTAG, vtmp)
    spin_guard(A, done)
    A('s_cbranch_vccnz %s', lo)
    A('%s:', done)
    A('s_mov_b64 exec, -1')


def publish(A, stores, sflag, local):
    def emit(bits):
        for st in stores:
            A(st % bits)
        A('v_mov_b32 v%d, s%d', vT0, sTAG)
        A('v_mov_b32 v%d, 0', vT1)
        A('s_waitcnt vmcnt(0)')
        A('s_mov_b64 exec, 1')
        A('buffer_store_dword v%d, v%d, s[%d:%d], s%d offen%s', vT0, vT1, SWS, SWS + 3, sflag, bits)
        A('s_mov_b64 exec, -1')
    if local and FAST:
        slow, done = A.label('SL'), A.label('SD')
        A('s_cmp_eq_u32 s%d, 0', sFASTF)
        A('s_cbranch_scc1 %s', slow)
        emit('')
        A('s_branch %s', done)
        A('%s:', slow)
        emit(' sc1')
        A('%s:', done)
    else:
        emit(' sc1')


def hilo_c(A, src, f, tmp):
    A('v_cvt_pk_bf16_f32 v%d, v%d, v%d', f, src, src)
    A('v_and_b32 v%d, 0xffff0000, v%d', tmp, f)
    A('v_sub_f32 v%d, v%d, v%d', tmp, src, tmp)
    A('v_cvt_pk_bf16_f32 v%d, v%d, 0', f + 1, tmp)


def hilo_m(A, src, f, tmp):
    A('v_cvt_pk_bf16_f32 v%d, v%d, 0', f + 1, src)
    A('v_lshlrev_b32 v%d, 16, v%d', tmp, f + 1)
    A('v_sub_f32 v%d, v%d, v%d', tmp, src, tmp)
    A('v_cvt_pk_bf16_f32 v%d, v%d, v%d', f, src, tmp)


def ln_stats(A, sm, sq, t0, t1, negmean, rstd, std=None):
    A('v_permlane32_swap_b32 v%d, v%d', sm, sq)
    A('v_add_f32 v%d, v%d, v%d', t0, sm, sq)
    A('v_mul_f32 v%d, 0x%x, v%d', t0, 0x3b124925, t0)
    A('v_mov_b32 v%d, v%d', t1, t0)
    A('v_permlane32_swap_b32 v%d, v%d', t0, t1)
    A('v_fma_f32 v%d, -v%d, v%d, v%d', t1, t0, t0, t1)
    A('v_max_f32 v%d, 0, v%d', t1, t1)
    A('v_add_f32 v%d, 0x%x, v%d', t1, 0x3727c5ac, t1)
    A('v_rsq_f32 v%d, v%d', rstd, t1)
    A('v_sub_f32 v%d, 0, v%d', negmean, t0)
    if std is not None:
        A('v_mul_f32 v%d, v%d, v%d', std, t1, rstd)


def softmax_pm(A, p, sc, e, out, t):
    A('v_cndmask_b32 v%d, v%d, v%d, s[%d:%d]', p + 12, p + 12, p + 14, sHI, sHI + 1)
    A('v_cndmask_b32 v%d, v%d, v%d, s[%d:%d]', p + 13, p + 13, p + 15, sHI, sHI + 1)
    mx, mn = t, t + 1
    A('v_max3_f32 v%d, v%d, v%d, v%d', mx, p, p + 1, p + 2)
    A('v_min3_f32 v%d, v%d, v%d, v%d', mn, p, p + 1, p + 2)
    for i in range(3, 13, 2):
        A('v_max3_f32 v%d, v%d, v%d, v%d', mx, mx, p + i, p + i + 1)
        A('v_min3_f32 v%d, v%d, v%d, v%d', mn, mn, p + i, p + i + 1)
    A('v_max_f32 v%d, v%d, v%d', mx, mx, p + 13)
    A('v_min_f32 v%d, v%d, v%d', mn, mn, p + 13)
    A('v_sub_f32 v%d, 0, v%d', mn, mn)
    A('v_permlane32_swap_b32 v%d, v%d', mx, mn)
    A('v_max_f32 v%d, v%d, v%d', mx, mx, mn)
    A('v_mul_f32 v%d, v%d, v%d', mx, mx, sc)
    A('v_mov_b32 v%d, v%d', mn, mx)
    A('v_permlane32_swap_b32 v%d, v%d', mx, mn)
    for i in range(14):
        A('v_fma_f32 v%d, v%d, v%d, -v%d', e + i, p + i, sc, mx)
        A('v_fma_f32 v%d, -v%d, v%d, -v%d', e + 14 + i, p + i, sc, mn)
    for i in range(28):
        A('v_exp_f32 v%d, v%d', e + i, e + i)
    for base, dst in ((e, p), (e + 14, p + 2)):
        A('v_pk_add_f32 v[%d:%d], v[%d:%d], v[%d:%d]', dst, dst + 1, base, base + 1, base + 2, base + 3)
    for i in range(4, 14, 2):
        for base, dst in ((e, p), (e + 14, p + 2)):
            A('v_pk_add_f32 v[%d:%d], v[%d:%d], v[%d:%d]', dst, dst + 1, dst, dst + 1, base + i, base + i + 1)
    sp, sn = t + 2, t
    A('v_add_f32 v%d, v%d, v%d', sp, p, p + 1)
    A('v_add_f32 v%d, v%d, v%d', sn, p + 2, p + 3)
    A('v_permlane32_swap_b32 v%d, v%d', sp, sn)
    A('v_add_f32 v%d, v%d, v%d', sp, sp, sn)
    A('v_rcp_f32 v%d, v%d', sp, sp)
    A('v_mov_b32 v%d, v%d', sn, sp)
    A('v_permlane32_swap_b32 v%d, v%d', sp, sn)
    for i in range(0, 14, 2):
        A('v_pk_mul_f32 v[%d:%d], v[%d:%d], v[%d:%d] op_sel_hi:[1,0]', e + i, e + i + 1, e + i, e + i + 1, sp, sp + 1)
        A('v_pk_mul_f32 v[%d:%d], v[%d:%d], v[%d:%d] op_sel_hi:[1,0]', e + 14 + i, e + 15 + i, e + 14 + i, e + 15 + i,
          sn, sn + 1)
    for i in range(7):
        A('v_cvt_pk_bf16_f32 v%d, v%d, v%d', out + i, e + 2 * i, e + 2 * i + 1)
        A('v_cvt_pk_bf16_f32 v%d, v%d, v%d', out + 8 + i, e + 14 + 2 * i, e + 15 + 2 * i)
    A('v_mov_b32 v%d, 0', out + 7)
    A('v_mov_b32 v%d, 0', out + 15)


def cvt8(A, dst, src, n=8):
    for i in range(n):
        A('v_cvt_pk_bf16_f32 v%d, v%d, v%d', dst + i, src + 2 * i, src + 2 * i + 1)


def mfma(A, d, a_, b_, first=False):
    A('%s %s, %s, %s, %s', MFMA, v(d, 16), v(a_, 4), v(b_, 4), '0' if first else v(d, 16))


def merge(main, fill, start=0):
    idx = [i for i, l in enumerate(main) if l.strip().startswith('v_mfma')][start:]
    out, k = [], 0
    n = len(idx)
    pos = {i: j for j, i in enumerate(idx)}
    for i, l in enumerate(main):
        out.append(l)
        if i in pos:
            upto = (len(fill) * (pos[i] + 1) + n - 1) // n
            out += fill[k:upto]
            k = max(k, upto)
    out += fill[k:]
    return out


def w2_slot(n):
    if n < 6:
        return L_B + 32768 + n * 8192
    if n < 10:
        return L_B + (n - 6) * 8192
    if n < 17:
        return L_A + (n - 10) * 8192
    return w2_slot(n - 17)


def w1_slot(c):
    return L_B + (c % 5) * 16384


LP = {}


def gen_loader(A):
    vW, vW128, vXo, vW256 = 6, 7, 8, 9
    state = {'items': [], 'n': 0}
    DEPTH = E('LDEPTH', 16)

    def signal(n):
        A('v_mov_b32 v%d, %d', vT0, n)
        A('ds_write_b32 v%d, v%d offset:%d', vMI, vT0, M_LP)

    def item_done(name, cnt):
        state['n'] += 1
        assert LP.setdefault(name, state['n']) == state['n']
        state['items'].append((state['n'], cnt))
        while True:
            younger = sum(c for _, c in state['items'][1:])
            if len(state['items']) > 1 and younger >= DEPTH:
                A('s_waitcnt vmcnt(%d)', younger)
                signal(state['items'][0][0])
                state['items'].pop(0)
            else:
                break

    def drain():
        while state['items']:
            younger = sum(c for _, c in state['items'][1:])
            A('s_waitcnt vmcnt(%d)', younger)
            signal(state['items'][0][0])
            state['items'].pop(0)

    def gate(n, which=(0, 1, 2, 3)):
        drain()
        wait_stage(A, n, which)

    def dma(lds, voff, srd_, step=None, bits=''):
        A('s_mov_b32 m0, %d', lds)
        A('buffer_load_dwordx4 v%d, s[%d:%d], s%d offen%s lds', voff, srd_, srd_ + 3, sT, bits)
        if step:
            A('s_add_u32 s%d, s%d, %d', sT, sT, step)

    A('v_lshrrev_b32 v%d, 2, v%d', vW, vL)
    A('v_mul_u32_u24 v%d, 2688, v%d', vW, vW)
    A('v_and_b32 v%d, 3, v%d', vT1, vL)
    A('v_lshl_add_u32 v%d, v%d, 4, v%d', vW, vT1, vW)
    A('s_mul_i32 s%d, s%d, 56', sT, sH)
    A('s_and_b32 s%d, s%d, 0xfffffff0', sT, sT)
    A('v_add_u32 v%d, s%d, v%d', vW, sT, vW)
    pre = 0
    for pi, part in enumerate((1, 2, 0)):
        stamp(A)
        A('s_mov_b32 s%d, s%d', sC, sC0)
        for i in range(7):
            A('s_mul_i32 s%d, s%d, %d', sT, sC, 64 * 2688)
            A('s_add_u32 s%d, s%d, %d', sT, sT, part * 896)
            for u in range(4):
                dma(L_B + pi * 28672 + i * 4096 + u * 1024, vW, SW, 16 * 2688 if u < 3 else None)
            A('s_add_u32 s%d, s%d, 1', sC, sC)
            A('s_cmp_eq_u32 s%d, 7', sC)
            A('s_cselect_b32 s%d, 0, s%d', sC, sC)
            extra = 0
            if pi == 0 and i == 1:
                A('s_mul_i32 s%d, s%d, 1568', sT, sH)
                dma(L_PHI, vO, SP, 1024)
                dma(L_PHI + 1024, vO, SP)
                extra = 2
                if CODEPF:
                    A('s_lshl_b32 s%d, s%d, 10', sT, sI)
                    A('v_add_u32 v%d, s%d, v%d', vT1, sT, vO)
                    A('global_load_dwordx4 v[40:43], v%d, s[%d:%d]', vT1, sMSK, sMSK + 1)
                    extra += 1
                if FAST:
                    A('s_waitcnt lgkmcnt(0)')
                    tag_compute(A)
                    A('s_getreg_b32 s%d, hwreg(HW_REG_XCC_ID)', sT2)
                    A('s_and_b32 s%d, s%d, 15', sT2, sT2)
                    A('s_add_u32 s%d, s%d, s%d', sT2, sT2, sTAG)
                    A('v_mov_b32 v%d, s%d', vT0, sT2)
                    A('v_mov_b32 v%d, 0', vT1)
                    A('s_lshl_b32 s%d, s%d, 7', sT, sXCD)
                    A('s_lshl_b32 s%d, s%d, 2', sT2, sI)
                    A('s_add_u32 s%d, s%d, s%d', sT, sT, sT2)
                    A('s_add_u32 s%d, s%d, %d', sT, sT, FREG)
                    A('s_mov_b64 exec, 1')
                    A('buffer_store_dword v%d, v%d, s[%d:%d], s%d offen sc1', vT0, vT1, SWS, SWS + 3, sT)
                    A('s_mov_b64 exec, -1')
                    extra += 1
            item_done(('W', pi, i), 4 + extra)
    if not FAST:
        A('s_waitcnt lgkmcnt(0)')
        tag_compute(A)
    if WARM:
        cnt = 0
        for srd_, size in ((SWO, D * D * 2), (SW1, D * F * 2), (SW2, D * F * 2)):
            per = (size // 256 + 1023) // 1024
            A('s_mul_i32 s%d, s2, %d', sT, size // 256)
            for u in range(per):
                A('buffer_load_dwordx4 v[40:43], v%d, s[%d:%d], s%d offen', vO, srd_, srd_ + 3, sT)
                A('s_add_u32 s%d, s%d, 1024', sT, sT)
                cnt += 1
        item_done('warm', cnt)
    lend = A.label('LEND')
    drain()
    stamp(A)
    A('s_cmp_ge_u32 s%d, 28', sI)
    A('s_cbranch_scc1 %s', lend)
    A('v_lshrrev_b32 v%d, 3, v%d', vW128, vL)
    A('v_mul_u32_u24 v%d, 896, v%d', vW128, vW128)
    A('v_and_b32 v%d, 7, v%d', vT1, vL)
    A('v_lshl_add_u32 v%d, v%d, 4, v%d', vXo, vT1, vW128)
    A('v_lshrrev_b32 v%d, 2, v%d', vT0, vL)
    A('v_and_b32 v%d, 4, v%d', vT0, vT0)
    A('v_xor_b32 v%d, v%d, v%d', vT1, vT1, vT0)
    A('v_lshl_add_u32 v%d, v%d, 4, v%d', vW128, vT1, vW128)
    A('v_lshrrev_b32 v%d, 4, v%d', vW256, vL)
    A('v_mul_u32_u24 v%d, 3584, v%d', vW256, vW256)
    A('v_and_b32 v%d, 15, v%d', vT1, vL)
    A('v_lshrrev_b32 v%d, 2, v%d', vT0, vL)
    A('v_and_b32 v%d, 12, v%d', vT0, vT0)
    A('v_xor_b32 v%d, v%d, v%d', vT1, vT1, vT0)
    A('v_lshl_add_u32 v%d, v%d, 4, v%d', vW256, vT1, vW256)
    A('s_lshl_b32 s%d, s%d, 7', sB, sNB)
    gate(2)
    stamp(A)
    A('s_mul_i32 s%d, s%d, %d', sT, sTQ, 64 * 896)
    A('s_add_u32 s%d, s%d, s%d', sT, sT, sB)
    for u in range(8):
        dma(L_XRES + u * 1024, vXo, SX, 8 * 896)
    item_done('xres', 8)
    A('s_mov_b32 s%d, s%d', sT, sB)
    for c in range(7):
        for u in range(8):
            dma(L_A + c * 8192 + u * 1024, vW128, SWO, 8 * 896)
        item_done(('wo', c), 8)

    def w1_chunk(c):
        A('s_lshl_b32 s%d, s%d, 8', sT, sFB)
        A('s_add_u32 s%d, s%d, %d', sT, sT, c * 64 * 3584)
        for u in range(16):
            dma(w1_slot(c) + u * 1024, vW256, SW1, 4 * 3584 if u < 15 else None)
        item_done(('w1', c), 16)

    def w2_item(n):
        c, kh = n >> 1, n & 1
        A('s_add_u32 s%d, s%d, %d', sT, sB, (kh * 896 + c * 64) * 896)
        for u in range(8):
            dma(w2_slot(n) + u * 1024, vW128, SW2, 8 * 896 if u < 7 else None)
        item_done(('w2', n), 8)

    def h_group(gi):
        drain()
        A('s_lshl_b32 s%d, s%d, 2', sT2, sTB3)
        A('s_add_u32 s%d, s%d, %d', sT2, sT2, gi)
        A('s_lshl_b32 s%d, s%d, 6', sT, sT2)
        A('s_add_u32 s%d, s%d, %d', sT, sT, F3)
        poll_global(A, sT, 14)
        A('s_lshl_b32 s%d, s%d, 15', sT, sT2)
        A('s_add_u32 s%d, s%d, %d', sT, sT, WS_HB)
        for q in range(4):
            for u in range(8):
                dma(L_A + (gi & 1) * 32768 + (8 * q + u) * 1024, vO, SWS, 1024, ' sc1')
            item_done(('h', gi, q), 8)

    for c in range(3):
        w1_chunk(c)
    gate(3)
    for c in (3, 4):
        w1_chunk(c)
    stamp(A)
    gate(5)
    for c in (5, 6):
        w1_chunk(c)
    gate(7)
    stamp(A)
    h_group(0)
    stamp(A)
    h_group(1)
    w2_item(0)
    w2_item(1)
    gate(9)
    h_group(2)
    for n in (2, 3, 4):
        w2_item(n)
    gate(10)
    h_group(3)
    for n in range(5, 10):
        w2_item(n)
    stamp(A)
    gate(12)
    stamp(A)
    for n in range(10, 17):
        w2_item(n)
    for n in range(17, 28):
        m = n - 17
        gate(13 + (m >> 1), (0, 1) if (m & 1) == 0 else (2, 3))
        w2_item(n)
    drain()
    A('%s:', lend)
    A('s_waitcnt lgkmcnt(0)')
    stamp_flush(A)
    A('s_endpgm')


def tag_compute(A):
    A('s_mul_i32 s%d, s%d, 0x%x', sTAG, sTAG, 1664525)
    A('s_add_u32 s%d, s%d, 0x%x', sTAG, sTAG, 1013904223)


def gen_compute(A, end):
    vPH, vID, vWF, vAC, vPK = 36 + 4, 48, 56, 88, 120
    vMF, vCF = 136, 140
    vE = vWF
    vAC2 = vAC + 16
    vX = vXR
    A('v_lshrrev_b32 v%d, 3, v%d', vT0, vL)
    A('s_lshl_b32 s%d, s%d, 5', sT, sWV)
    A('v_add_u32 v%d, s%d, v%d', vT0, sT, vT0)
    A('v_mul_u32_u24 v%d, 896, v%d', vT0, vT0)
    A('v_lshrrev_b32 v%d, 4, v%d', vT1, vL)
    A('v_and_b32 v%d, 7, v%d', vXE, vL)
    A('v_xor_b32 v%d, v%d, v%d', vXE, vXE, vT1)
    A('v_xor_b32 v%d, 4, v%d', vXO, vXE)
    A('v_lshl_add_u32 v%d, v%d, 4, v%d', vXE, vXE, vT0)
    A('v_lshl_add_u32 v%d, v%d, 4, v%d', vXO, vXO, vT0)
    A('s_mul_i32 s%d, s%d, %d', sXB, sTB, 128 * 896)
    A('s_lshl_b32 s%d, s%d, 14', sM0, sWV)
    A('s_mov_b32 s%d, s%d', sC, sC0)

    def issue_x(slot):
        A('s_lshl_b32 s%d, s%d, 7', sT, sC)
        A('s_add_u32 s%d, s%d, s%d', sT, sT, sXB)
        for u in range(4):
            A('s_add_u32 m0, s%d, %d', sM0, L_A + slot * 4096 + u * 1024)
            A('buffer_load_dwordx4 v%d, s[%d:%d], s%d offen lds', (vXE, vXO)[u & 1], SX, SX + 3, sT)
            if u < 3:
                A('s_add_u32 s%d, s%d, %d', sT, sT, 8 * 896)
        A('s_add_u32 s%d, s%d, 1', sC, sC)
        A('s_cmp_eq_u32 s%d, 7', sC)
        A('s_cselect_b32 s%d, 0, s%d', sC, sC)

    issue_x(0)
    A('v_and_b32 v%d, 31, v%d', vT0, vL)
    A('v_lshlrev_b32 v%d, 7, v%d', vTT, vT0)
    A('v_add_u32 v%d, s%d, v%d', vTT, sM0, vTT)
    A('v_bfe_u32 v%d, v%d, 1, 3', vT0, vL)
    A('v_lshrrev_b32 v%d, 5, v%d', vT1, vL)
    A('v_xor_b32 v%d, v%d, v%d', vT0, vT0, vT1)
    for q in range(4):
        A('v_xor_b32 v%d, %d, v%d', vXA + q, 2 * q, vT0)
        A('v_lshl_add_u32 v%d, v%d, 4, v%d', vXA + q, vXA + q, vTT)
    A('v_bfe_u32 v%d, v%d, 2, 2', vT0, vL)
    A('v_lshl_add_u32 v%d, v%d, 3, v%d', vT0, vT1, vT0)
    A('v_lshlrev_b32 v%d, 6, v%d', vT0, vT0)
    A('v_bfe_u32 v%d, v%d, 4, 1', vTT, vL)
    A('v_lshl_add_u32 v%d, v%d, 5, v%d', vT0, vTT, vT0)
    A('v_and_b32 v%d, 3, v%d', vTT, vL)
    A('v_lshl_add_u32 v%d, v%d, 3, v%d', vT0, vTT, vT0)
    for pi in range(3):
        A('v_add_u32 v%d, %d, v%d', vWA + pi, L_B + pi * 28672, vT0)
    issue_x(1)
    for r in (vSM, vSM + 1, vSQ, vSQ + 1, vCS, vCS + 1, vMF + 2, vMF + 3, vCF + 2, vCF + 3):
        A('v_mov_b32 v%d, 0', r)
    A('s_mov_b32 s%d, 0', sHI)
    A('s_mov_b32 s%d, -1', sHI + 1)
    A('s_bitcmp1_b32 s%d, 0', sH)
    A('s_cselect_b32 s%d, 0xf, 0xf0000000', sPADL)
    A('s_mov_b32 s%d, s%d', sPADL + 1, sPADL)
    A('s_cselect_b32 s%d, -1, 0', sZA)
    A('s_mov_b32 s%d, 0', sZA + 1)
    A('s_mov_b32 s%d, 0', sZB)
    A('s_cselect_b32 s%d, 0, -1', sZB + 1)
    A('s_cselect_b64 s[%d:%d], -1, 0', sODD, sODD + 1)
    issue_x(2)
    A('v_and_b32 v%d, 31, v%d', vT0, vL)
    A('v_lshlrev_b32 v%d, 2, v%d', vTT, vT1)
    A('v_sub_u32 v%d, v%d, v%d', vT0, vT0, vTT)
    A('v_mov_b32 v%d, 0x3f80', vTT)
    A('v_mov_b32 v%d, 0x3f800000', vTT + 1)
    for sidx in range(2):
        for rr in range(4):
            m = 16 * sidx + 8 * (rr >> 1) + 2 * (rr & 1)
            A('v_cmp_eq_u32 vcc, %d, v%d', m, vT0)
            A('v_cndmask_b32 v%d, 0, v%d, vcc', vID + 4 * sidx + rr, vTT)
            A('v_cmp_eq_u32 vcc, %d, v%d', m + 1, vT0)
            A('v_cndmask_b32 v%d, v%d, v%d, vcc', vID + 4 * sidx + rr, vID + 4 * sidx + rr, vTT + 1)
    issue_x(3)
    A('s_waitcnt lgkmcnt(0)')
    tag_compute(A)

    def read_w(pi, i):
        wait_lp(A, LP[('W', pi, i)])
        buf = vWF + 16 * (i & 1)
        for q in range(4):
            for z in range(2):
                A('ds_read_b64_tr_b16 v[%d:%d], v%d offset:%d', buf + 4 * q + 2 * z, buf + 4 * q + 2 * z + 1,
                  vWA + pi, i * 4096 + q * 1024 + z * 256)

    def chunk_math(i, swap, last_extra=None):
        buf = vWF + 16 * (i & 1)
        for r in range(16):
            A('v_dot2c_f32_bf16 v%d, s%d, v%d', vCS + (r & 1), sONES, buf + r)
        if i == 6:
            A('v_add_f32 v%d, v%d, v%d', vCS, vCS, vCS + 1)
        for q in range(4):
            xf, wf = vX + (4 * i + q) * 4, buf + 4 * q
            if swap:
                mfma(A, vAC, xf, wf, i == 0 and q == 0)
            else:
                mfma(A, vAC, wf, xf, i == 0 and q == 0)
            if i == 6 and q == 0:
                hilo_c(A, vCS, vCF, vT0)
                A('v_mov_b32 v%d, 0', vCS)
                A('v_mov_b32 v%d, 0', vCS + 1)
            if i == 6 and q == 1 and last_extra:
                last_extra()

    for i in range(7):
        A('s_waitcnt vmcnt(%d)', (12, 12, 12, 12, 8, 4, 0)[i])
        for q in range(4):
            A('ds_read_b128 %s, v%d offset:%d', v(vX + (4 * i + q) * 4, 4), vXA + q, L_A + (i & 3) * 4096)
        A('s_waitcnt lgkmcnt(0)')
        if i < 3:
            issue_x(i)
        read_w(0, i)
        for r in range(16):
            x = vX + 16 * i + r
            A('v_dot2c_f32_bf16 v%d, s%d, v%d', vSM + (r & 1), sONES, x)
            A('v_dot2c_f32_bf16 v%d, v%d, v%d', vSQ + (r & 1), x, x)
        if i == 3:
            A('v_bfe_u32 v%d, v%d, 2, 2', vT0, vL)
            A('v_lshrrev_b32 v%d, 5, v%d', vT1, vL)
            A('v_lshl_add_u32 v%d, v%d, 2, v%d', vT0, vT1, vT0)
            A('v_mul_u32_u24 v%d, 56, v%d', vT0, vT0)
            A('v_and_b32 v%d, 3, v%d', vT1, vL)
            A('v_bfe_u32 v%d, v%d, 4, 1', vTT, vL)
            A('v_lshl_add_u32 v%d, v%d, 2, v%d', vT1, vTT, vT1)
            A('v_min_u32 v%d, 6, v%d', vT1, vT1)
            A('v_lshl_add_u32 v%d, v%d, 3, v%d', vT0, vT1, vT0)
            A('s_and_b32 s%d, s%d, 1', sT, sH)
            A('s_mul_i32 s%d, s%d, 224', sT, sT)
            A('s_sub_u32 s%d, %d, s%d', sT, L_PHI, sT)
            A('v_add_u32 v%d, s%d, v%d', vT0, sT, vT0)
            for sidx in range(2):
                for z in range(2):
                    A('ds_read_b64_tr_b16 v[%d:%d], v%d offset:%d', vPH + 4 * sidx + 2 * z, vPH + 4 * sidx + 2 * z + 1,
                      vT0, (16 * sidx + 8 * z) * 56)
        A('s_waitcnt lgkmcnt(0)')
        if i == 3:
            for r in (0, 1):
                A('v_cndmask_b32 v%d, v%d, 0, s[%d:%d]', vPH + r, vPH + r, sZA, sZA + 1)
                A('v_cndmask_b32 v%d, v%d, 0, s[%d:%d]', vPH + 6 + r, vPH + 6 + r, sZB, sZB + 1)

        def stats():
            A('v_add_f32 v%d, v%d, v%d', vSM, vSM, vSM + 1)
            A('v_add_f32 v%d, v%d, v%d', vSQ, vSQ, vSQ + 1)
            ln_stats(A, vSM, vSQ, vT0, vT1, vNM, vRS)
            hilo_m(A, vNM, vMF, vT0)
            A('v_mul_f32 v%d, 0x%x, v%d', vSC, LOG2E, vRS)
        chunk_math(i, False, stats)
    stamp(A)

    def feature(out, mid=None):
        mfma(A, vAC, vCF, vMF)
        if mid:
            mid()
        cvt8(A, vE, vAC)
        mfma(A, vAC, vPH, vE, True)
        mfma(A, vAC, vPH + 4, vE + 4)
        softmax_pm(A, vAC, vSC, vE, out, vTT)

    def rstd_to_lds():
        A('v_and_b32 v%d, 31, v%d', vT0, vL)
        A('s_lshl_b32 s%d, s%d, 7', sT, sWV)
        A('s_add_u32 s%d, s%d, %d', sT, sT, L_MISC + M_RSTD)
        A('v_lshl_add_u32 v%d, v%d, 2, s%d', vT0, vT0, sT)
        A('ds_write_b32 v%d, v%d', vT0, vRS)
        A('v_lshrrev_b32 v%d, 5, v%d', vRA, vL)
        A('v_lshl_add_u32 v%d, v%d, 4, s%d', vRA, vRA, sT)

    feature(vPK, rstd_to_lds)
    for t, acc in ((0, vAC), (1, vAC2)):
        mfma(A, acc, vPK + 8 * t, vID, True)
        mfma(A, acc, vPK + 8 * t + 4, vID + 4)
    read_w(1, 0)
    vOW = vXE
    A('v_add_u32 v%d, s%d, v%d', vOW, sM0, vO)
    cvt8(A, vPK, vAC)
    cvt8(A, vPK + 8, vAC2)
    for q in range(4):
        A('ds_write_b128 v%d, %s offset:%d', vOW, v(vPK + 4 * q, 4), L_A + q * 1024)
    stamp(A)
    for i in range(7):
        A('s_waitcnt lgkmcnt(0)')
        if i == 6:
            for q in range(4):
                A('ds_read_b128 %s, v%d offset:%d', v(vAC2 + 4 * q, 4), vRA, q * 32)
        chunk_math(i, True)
        if i < 6:
            read_w(1, i + 1)
    mfma(A, vAC, vMF, vCF)
    stamp(A)
    A('v_mov_b32 v%d, 0x%x', vT1, ONES)
    A('s_waitcnt lgkmcnt(0)')
    for r in range(0, 16, 2):
        A('v_pk_mul_f32 v[%d:%d], v[%d:%d], v[%d:%d]', vAC + r, vAC + r + 1, vAC + r, vAC + r + 1, vAC2 + r, vAC2 + r + 1)
    cvt8(A, vPK, vAC)
    for r in range(8):
        A('v_cndmask_b32 v%d, v%d, v%d, s[%d:%d]', vPK + r, vPK + r, vT1, sPADL, sPADL + 1)
    for q in range(2):
        A('ds_write_b128 v%d, %s offset:%d', vOW, v(vPK + 4 * q, 4), L_A + 4096 + q * 1024)
    set_stage(A, 1)
    skip = A.label('NOKV')
    A('s_cmp_ge_u32 s%d, 2', sWV)
    A('s_cbranch_scc1 %s', skip)
    A('s_lshl_b32 s%d, s%d, 11', sT2, sWV)
    A('v_add_u32 v%d, s%d, v%d', vTT, sT2, vO)
    Vr = [vAC2, vAC2 + 4, vAC2 + 8, vAC2 + 12, vPK, vPK + 4, vPK + 8, vPK + 12]

    def kv_reads():
        for w in range(3):
            for q in range(2):
                A('ds_read_b128 %s, v%d offset:%d', v(vWF + 8 * w + 4 * q, 4), vTT, L_A + w * 16384 + q * 1024)
                A('ds_read_b128 %s, v%d offset:%d', v(Vr[2 * w + q], 4), vO, L_A + w * 16384 + 4096 + q * 1024)
        return 12
    wait_stage(A, 1, body=kv_reads)
    for q in range(2):
        A('ds_read_b128 %s, v%d offset:%d', v(vWF + 24 + 4 * q, 4), vTT, L_A + 3 * 16384 + q * 1024)
        A('ds_read_b128 %s, v%d offset:%d', v(Vr[6 + q], 4), vO, L_A + 3 * 16384 + 4096 + q * 1024)
    for k in range(8):
        A('s_waitcnt lgkmcnt(%d)', 14 - 2 * k)
        mfma(A, vAC, vWF + 4 * k, Vr[k], k == 0)
    set_stage(A, 2)
    A('s_lshl_b32 s%d, s%d, 4', sB, sH)
    A('s_add_u32 s%d, s%d, s%d', sB, sB, sTB)
    A('s_lshl_b32 s%d, s%d, 12', sB, sB)
    A('s_add_u32 s%d, s%d, s%d', sB, sB, sT2)
    A('s_add_u32 s%d, s%d, %d', sB, sB, WS_KVP)
    A('s_lshl_b32 s%d, s%d, 1', sT2, sH)
    A('s_add_u32 s%d, s%d, s%d', sT2, sT2, sWV)
    A('s_lshl_b32 s%d, s%d, 4', sT2, sT2)
    A('s_add_u32 s%d, s%d, s%d', sT2, sT2, sTB)
    A('s_lshl_b32 s%d, s%d, 2', sT2, sT2)
    A('s_add_u32 s%d, s%d, %d', sT2, sT2, F1)
    if MAP == 3:
        fast_check(A)
    cvt8(A, vPK, vAC)
    publish(A, ['buffer_store_dwordx4 %s, v%d, s[%d:%d], s%d offen offset:%d%%s' % (
        v(vPK + 4 * q, 4), vO, SWS, SWS + 3, sB, q * 1024) for q in range(2)], sT2, MAP == 3)
    A('%s:', skip)
    set_stage(A, 2)
    stamp(A)
    read_w(2, 0)
    for i in range(7):
        A('s_waitcnt lgkmcnt(0)')
        if i == 6:
            set_stage(A, 3)
        chunk_math(i, False)
        if i < 6:
            read_w(2, i + 1)
    feature(vPK)
    stamp(A)
    fast_check(A)
    A('s_lshl_b32 s%d, s%d, 1', sT2, sH)
    A('s_lshr_b32 s%d, s%d, 1', sT, sWV)
    A('s_add_u32 s%d, s%d, s%d', sT2, sT2, sT)
    A('s_lshl_b32 s%d, s%d, 6', sT2, sT2)
    A('s_add_u32 s%d, s%d, %d', sT2, sT2, F1)
    A('s_lshl_b32 s%d, s%d, 16', sB, sH)
    A('s_lshl_b32 s%d, s%d, 10', sT, sWV)
    A('s_add_u32 s%d, s%d, s%d', sB, sB, sT)
    A('s_add_u32 s%d, s%d, %d', sB, sB, WS_KVP)
    poll_global(A, sT2, 16)
    stamp(A)
    for p in range(16):
        A('buffer_load_dwordx4 %s, v%d, s[%d:%d], s%d offen sc1', v(vX + 4 * p, 4), vO, SWS, SWS + 3, sB)
        A('s_add_u32 s%d, s%d, 4096', sB, sB)
    for p in range(16):
        A('s_waitcnt vmcnt(%d)', 15 - p)
        mfma(A, vAC, vID, vX + 4 * p, p == 0)
    A('s_lshl_b32 s%d, s%d, 10', sT, sWV)
    A('v_add_u32 v%d, s%d, v%d', vT1, sT, vO)
    A('v_add_u32 v%d, %d, v%d', vT1, L_EX, vT1)
    A('v_add_u32 v%d, %d, v%d', vTT, L_EX, vO)
    cvt8(A, vWF, vAC, 4)
    A('ds_write_b128 v%d, %s', vT1, v(vWF, 4))
    set_stage(A, 4)

    def ex_reads():
        for q in range(4):
            A('ds_read_b128 %s, v%d offset:%d', v(vWF + 4 * q, 4), vTT, q * 1024)
        return 4
    wait_stage(A, 4, body=ex_reads)
    for q in range(4):
        A('s_waitcnt lgkmcnt(%d)', 3 - q)
        mfma(A, vAC, vWF + 4 * q, vPK + 4 * q, q == 0)
    A('s_lshl_b32 s%d, s%d, 2', sT2, sTB)
    A('s_add_u32 s%d, s%d, s%d', sT2, sT2, sWV)
    A('s_lshl_b32 s%d, s%d, 4', sT2, sT2)
    A('s_add_u32 s%d, s%d, s%d', sT2, sT2, sH)
    A('s_lshl_b32 s%d, s%d, 11', sB, sT2)
    A('s_add_u32 s%d, s%d, %d', sB, sB, WS_OB)
    A('s_lshl_b32 s%d, s%d, 2', sT2, sT2)
    A('s_add_u32 s%d, s%d, %d', sT2, sT2, F2)
    A('v_cndmask_b32 v%d, v%d, v%d, s[%d:%d]', vT0, vAC + 12, vAC, sODD, sODD + 1)
    A('v_mov_b32 v%d, v%d', vT1, vT0)
    A('v_permlane32_swap_b32 v%d, v%d', vT0, vT1)
    A('v_cndmask_b32 v%d, v%d, v%d, s[%d:%d]', vTT, vT1, vT0, sODD, sODD + 1)
    A('v_add_f32 v%d, 0x%x, v%d', vTT, 0x358637bd, vTT)
    A('v_rcp_f32 v%d, v%d', vTT, vTT)
    for r in range(0, 16, 2):
        A('v_pk_mul_f32 v[%d:%d], v[%d:%d], v[%d:%d] op_sel_hi:[1,0]', vAC + r, vAC + r + 1, vAC + r, vAC + r + 1, vTT,
          vTT + 1)
    cvt8(A, vPK, vAC)
    for r in (0, 1):
        A('v_cndmask_b32 v%d, v%d, 0, s[%d:%d]', vPK + r, vPK + r, sZA, sZA + 1)
        A('v_cndmask_b32 v%d, v%d, 0, s[%d:%d]', vPK + 6 + r, vPK + 6 + r, sZB, sZB + 1)
    publish(A, ['buffer_store_dwordx4 %s, v%d, s[%d:%d], s%d offen offset:%d%%s' % (
        v(vPK + 4 * q, 4), vO, SWS, SWS + 3, sB, q * 1024) for q in range(2)], sT2, MAP == 0)
    stamp(A)
    fin = A.label('FIN')
    A('s_cmp_ge_u32 s%d, 28', sI)
    A('s_cbranch_scc1 %s', fin)

    vW1A = vXA
    A('v_bfe_u32 v%d, v%d, 2, 2', vT0, vL)
    A('v_lshrrev_b32 v%d, 5, v%d', vT1, vL)
    A('v_lshl_add_u32 v%d, v%d, 2, v%d', vT1, vT1, vT0)
    A('v_lshlrev_b32 v%d, 8, v%d', vW1A, vT1)
    A('v_lshlrev_b32 v%d, 7, v%d', vWA, vT1)
    A('v_xor_b32 v%d, s%d, v%d', vT0, sWV, vT0)
    A('v_lshl_add_u32 v%d, v%d, 6, v%d', vW1A, vT0, vW1A)
    A('v_bfe_u32 v%d, v%d, 4, 1', vT1, vL)
    A('v_lshlrev_b32 v%d, 5, v%d', vT1, vT1)
    A('v_and_b32 v%d, 3, v%d', vT0, vL)
    A('v_lshl_add_u32 v%d, v%d, 3, v%d', vT1, vT0, vT1)
    A('v_add3_u32 v%d, v%d, v%d, %s', vW1A, vW1A, vT1, 0)
    A('v_add_u32 v%d, %d, v%d', vW1A, L_B, vW1A)
    A('v_add_u32 v%d, 0x8000, v%d', vW1A + 1, vW1A)
    A('v_add_u32 v%d, v%d, v%d', vWA, vWA, vT1)
    A('v_bfe_u32 v%d, v%d, 3, 1', vT1, vL)
    A('v_lshl_add_u32 v%d, v%d, 6, v%d', vWA, vT1, vWA)
    A('v_xor_b32 v%d, 64, v%d', vWA + 1, vWA)

    def w1_copy(c):
        wait_lp(A, LP[('w1', c)])
        for q in range(4):
            for z in range(2):
                off = w1_slot(c) - L_B + (16 * q + 8 * z) * 256
                base = vW1A
                if off >= 0x8000:
                    off -= 0x8000
                    base += 1
                r = vXR + (4 * c + q) * 4 + 2 * z
                A('ds_read_b64_tr_b16 v[%d:%d], v%d offset:%d', r, r + 1, base, off)

    for c in range(5):
        w1_copy(c)
    set_stage(A, 5)
    vHP = 120
    vB2 = [40 + 4 * k for k in range(8)] + [224 + 4 * k for k in range(8)]
    vWF2 = 72
    A('s_and_b32 s%d, s%d, 1', sG, sWV)
    A('s_lshr_b32 s%d, s%d, 1', sKH, sWV)
    A('s_lshl_b32 s%d, s%d, 1', sT, sTQ)
    A('s_add_u32 s%d, s%d, s%d', sG, sG, sT)
    A('s_lshl_b32 s%d, s%d, 6', sT, sKH)
    A('v_xor_b32 v%d, s%d, v%d', vWA, sT, vWA)
    A('v_xor_b32 v%d, s%d, v%d', vWA + 1, sT, vWA + 1)
    A('s_mul_i32 s%d, s%d, %d', sT, sKH, 224 * 128)
    A('v_add_u32 v%d, s%d, v%d', vWA + 2, sT, vWA)
    A('v_add_u32 v%d, s%d, v%d', vWA + 3, sT, vWA + 1)
    wait_lp(A, LP[('wo', 6)])
    A('v_and_b32 v%d, 31, v%d', vT0, vL)
    A('v_lshlrev_b32 v%d, 7, v%d', vT0, vT0)
    A('v_lshrrev_b32 v%d, 5, v%d', vT1, vL)
    A('v_lshl_add_u32 v%d, v%d, 3, v%d', vT0, vT1, vT0)
    A('s_and_b32 s%d, s%d, 1', sT, sWV)
    A('s_lshl_b32 s%d, s%d, 12', sT, sT)
    A('s_lshl_b32 s%d, s%d, 6', sT2, sKH)
    A('s_add_u32 s%d, s%d, s%d', sT, sT, sT2)
    A('v_add_u32 v%d, s%d, v%d', vT0, sT, vT0)
    for q in range(4):
        A('ds_read_b64 v[%d:%d], v%d offset:%d', vHP + 2 * q, vHP + 2 * q + 1, vT0, L_XRES + q * 16)
    A('v_mov_b32 v%d, 1', vT1)
    A('ds_write_b32 v%d, v%d offset:32', vRA_PW, vT1)

    def wo_row(k):
        hh = k // 2
        return 28 * hh - 4 * (hh & 1) + 16 * (k & 1)

    def read_wo(k):
        buf = vWF2 + 8 * (k & 1)
        for nt in range(2):
            for z in range(2):
                A('ds_read_b64_tr_b16 v[%d:%d], v%d offset:%d', buf + 4 * nt + 2 * z, buf + 4 * nt + 2 * z + 1,
                  vWA + 2 + nt, L_A + (wo_row(k) + 8 * z) * 128)

    def unpack_hp():
        for r in range(8):
            A('v_lshlrev_b32 v%d, 16, v%d', vAC + 2 * r, vHP + r)
            A('v_and_b32 v%d, 0xffff0000, v%d', vAC + 2 * r + 1, vHP + r)

    read_wo(0)
    A('s_waitcnt lgkmcnt(4)')
    unpack_hp()
    vSW, vSR = vXA + 2, vXA + 3
    A('s_and_b32 s%d, s%d, 1', sT, sWV)
    A('s_lshl_b32 s%d, s%d, 12', sT, sT)
    A('v_add_u32 v%d, s%d, v%d', vSW, sT, vO)
    A('s_cmp_eq_u32 s%d, 0', sKH)
    A('s_cselect_b32 s%d, %d, %d', sT, L_SC0 >> 12, L_SC1 >> 12)
    A('s_cselect_b32 s%d, %d, %d', sT2, L_SC1 >> 12, L_SC0 >> 12)
    A('s_lshl_b32 s%d, s%d, 12', sT, sT)
    A('s_lshl_b32 s%d, s%d, 12', sT2, sT2)
    A('v_add_u32 v%d, s%d, v%d', vSR, sT2, vSW)
    A('v_add_u32 v%d, s%d, v%d', vSW, sT, vSW)
    vPP = vSM
    A('s_xor_b32 s%d, s%d, 2', sT, sWV)
    A('s_lshl_b32 s%d, s%d, 2', sT, sT)
    A('v_add_u32 v%d, s%d, v%d', vPP, sT, vMI)
    A('s_lshl_b32 s%d, s%d, 15', sB, sG)
    A('s_lshl_b32 s%d, s%d, 14', sT, sKH)
    A('s_add_u32 s%d, s%d, s%d', sB, sB, sT)
    A('s_add_u32 s%d, s%d, %d', sB, sB, WS_OB)
    A('s_lshl_b32 s%d, s%d, 6', sT2, sG)
    A('s_lshl_b32 s%d, s%d, 5', sT, sKH)
    A('s_add_u32 s%d, s%d, s%d', sT2, sT2, sT)
    A('s_add_u32 s%d, s%d, %d', sT2, sT2, F2)
    poll_global(A, sT2, 8)
    stamp(A)
    for k in range(16):
        A('buffer_load_dwordx4 %s, v%d, s[%d:%d], s%d offen offset:%d sc1', v(vB2[k], 4), vO, SWS, SWS + 3, sB,
          (k & 3) * 1024)
        if (k & 3) == 3:
            A('s_add_u32 s%d, s%d, 4096', sB, sB)
    for k in range(16):
        if k < 15:
            read_wo(k + 1)
        A('s_waitcnt vmcnt(%d) lgkmcnt(%d)', 15 - k, 4 if k < 15 else 0)
        buf = vWF2 + 8 * (k & 1)
        mfma(A, vAC + 16, buf + 4, vB2[k], k == 0)
        mfma(A, vAC, buf, vB2[k])

    def exchange(st):
        for q in range(4):
            A('ds_write_b128 v%d, %s offset:%d', vSW, v(vAC + 16 + 4 * q, 4), q * 1024)
        set_stage(A, st)
        lo, done = A.label('W'), A.label('WD')
        A('%s:', lo)
        A('ds_read_b32 v%d, v%d offset:%d', vPW, vPP, M_PW)
        for q in range(4):
            A('ds_read_b128 %s, v%d offset:%d', v(vWF2 + 4 * q, 4), vSR, q * 1024)
        A('s_waitcnt lgkmcnt(4)')
        A('v_readfirstlane_b32 s%d, v%d', sT, vPW)
        spin_guard(A, done)
        A('s_cmp_ge_u32 s%d, %d', sT, st)
        A('s_cbranch_scc0 %s', lo)
        A('%s:', done)
        for q in range(4):
            A('s_waitcnt lgkmcnt(%d)', 3 - q)
            for r in (0, 2):
                a0 = vAC + 4 * q + r
                A('v_pk_add_f32 v[%d:%d], v[%d:%d], v[%d:%d]', a0, a0 + 1, a0, a0 + 1, vWF2 + 4 * q + r,
                  vWF2 + 4 * q + r + 1)

    lo, done = A.label('W'), A.label('WD')
    A('%s:', lo)
    A('ds_read_b32 v%d, v%d offset:%d', vPW, vPP, M_PW + 32)
    A('s_waitcnt lgkmcnt(0)')
    A('v_readfirstlane_b32 s%d, v%d', sT, vPW)
    spin_guard(A, done)
    A('s_cmp_ge_u32 s%d, 1', sT)
    A('s_cbranch_scc0 %s', lo)
    A('%s:', done)
    exchange(6)
    set_stage(A, 7)
    cvt8(A, vHP, vAC)
    A('v_mov_b32 v%d, 0', vTT)
    A('v_mov_b32 v%d, 0', vTT + 1)
    for r in range(8):
        A('v_dot2c_f32_bf16 v%d, s%d, v%d', vTT, sONES, vHP + r)
        A('v_dot2c_f32_bf16 v%d, v%d, v%d', vTT + 1, vHP + r, vHP + r)
    A('s_lshl_b32 s%d, s%d, 1', sT2, sNB)
    A('s_add_u32 s%d, s%d, s%d', sT2, sT2, sKH)
    A('s_lshl_b32 s%d, s%d, 15', sB, sG)
    A('s_add_u32 s%d, s%d, %d', sB, sB, WS_HB)
    A('s_lshl_b32 s%d, s%d, 8', sC, sT2)
    A('s_add_u32 s%d, s%d, s%d', sC, sC, sB)
    A('s_add_u32 s%d, s%d, %d', sC, sC, 28 * 1024)
    A('s_lshl_b32 s%d, s%d, 11', sT, sT2)
    A('s_add_u32 s%d, s%d, s%d', sB, sB, sT)
    A('s_lshl_b32 s%d, s%d, 2', sT2, sT2)
    A('s_lshl_b32 s%d, s%d, 6', sT, sG)
    A('s_add_u32 s%d, s%d, s%d', sT2, sT2, sT)
    A('s_add_u32 s%d, s%d, %d', sT2, sT2, F3)
    A('v_permlane32_swap_b32 v%d, v%d', vTT, vTT + 1)
    A('v_add_f32 v%d, v%d, v%d', vTT, vTT, vTT + 1)
    A('v_lshlrev_b32 v%d, 2, v%d', vTT + 1, vL)
    publish(A, ['buffer_store_dwordx4 %s, v%d, s[%d:%d], s%d offen offset:%d%%s' % (
        v(vHP + 4 * q, 4), vO, SWS, SWS + 3, sB, q * 1024) for q in range(2)] +
        ['buffer_store_dword v%d, v%d, s[%d:%d], s%d offen%%s' % (vTT, vTT + 1, SWS, SWS + 3, sC)], sT2, True)
    stamp(A)
    for c in (5, 6):
        w1_copy(c)
    for r in range(80):
        A('v_dot2c_f32_bf16 v%d, s%d, v%d', vCS + (r & 1), sONES, vXR + r)
    A('s_waitcnt lgkmcnt(0)')
    set_stage(A, 8)
    for r in range(80, 112):
        A('v_dot2c_f32_bf16 v%d, s%d, v%d', vCS + (r & 1), sONES, vXR + r)
    A('v_add_f32 v%d, v%d, v%d', vCS, vCS, vCS + 1)
    hilo_c(A, vCS, vCF, vT0)
    vBR = 40
    vE3 = 72
    vST = 128
    vSDp, vC1p = [vSD, vNM], [vC1, vSC]
    vL4 = vSQ
    A('v_lshlrev_b32 v%d, 2, v%d', vL4, vL)
    A('s_mul_i32 s%d, s%d, %d', sB, sTB3, 4 * 112)
    A('s_lshl_b32 s%d, s%d, 3', sT, sFB)
    A('s_add_u32 s%d, s%d, s%d', sB, sB, sT)
    A('s_lshl_b32 s%d, s%d, 1', sT, sWV)
    A('s_add_u32 s%d, s%d, s%d', sB, sB, sT)
    A('s_lshl_b32 s%d, s%d, 10', sB, sB)
    A('s_add_u32 s%d, s%d, %d', sB, sB, WS_H1B)
    A('s_lshl_b32 s%d, s%d, 10', sC, sTB3)
    A('s_lshl_b32 s%d, s%d, 4', sT, sFB)
    A('s_add_u32 s%d, s%d, s%d', sC, sC, sT)
    A('s_lshl_b32 s%d, s%d, 2', sT, sWV)
    A('s_add_u32 s%d, s%d, s%d', sC, sC, sT)
    A('s_add_u32 s%d, s%d, %d', sC, sC, F4)

    def p3_epilogue(B, gi):
        acc = vAC + 16 * (gi & 1)
        e = vE3
        sd, c1 = vSDp[gi & 1], vC1p[gi & 1]
        for r in range(16):
            B('v_mul_f32 v%d, v%d, v%d', e + r, acc + r, c1)
            if r >= 1:
                B('v_exp_f32 v%d, v%d', e + r - 1, e + r - 1)
        B('v_exp_f32 v%d, v%d', e + 15, e + 15)
        for r in range(16):
            B('v_fma_f32 v%d, v%d, v%d, v%d', e + r, e + r, sd, sd)
            if r >= 1:
                B('v_rcp_f32 v%d, v%d', e + r - 1, e + r - 1)
        B('v_rcp_f32 v%d, v%d', e + 15, e + 15)
        for r in range(16):
            B('v_mul_f32 v%d, v%d, v%d', e + r, e + r, acc + r)
        cvt8(B, e, e)

    def p3_publish():
        publish(A, ['buffer_store_dwordx4 %s, v%d, s[%d:%d], s%d offen offset:%d%%s' % (
            v(vE3 + 4 * q, 4), vO, SWS, SWS + 3, sB, q * 1024) for q in range(2)], sC, True)
        A('s_add_u32 s%d, s%d, %d', sB, sB, 112 * 1024)
        A('s_add_u32 s%d, s%d, 256', sC, sC)

    for gi in range(4):
        base = L_A + (gi & 1) * 32768
        acc = vAC + 16 * (gi & 1)
        M = Asm()
        M._lab = A._lab

        def rd(k):
            M('ds_read_b128 %s, v%d offset:%d', v(vBR + 4 * (k % 8), 4), vO, base + k * 1024)
        PRE = 4
        wait_lp(M, LP[('h', gi, 0)])
        for k in range(PRE):
            rd(k)
        for k in range(28):
            kk = k + PRE
            extra = 0
            if kk < 28:
                if kk % 8 == 0:
                    wait_lp(M, LP[('h', gi, kk // 8)])
                rd(kk)
            out = min(PRE, 27 - k)
            if k == 21:
                for q in range(14):
                    pass
            M('s_waitcnt lgkmcnt(%d)', out)
            mfma(M, acc, vXR + 4 * k, vBR + 4 * (k % 8), k == 0)
        A._lab = M._lab
        Fi = Asm()
        if gi > 0:
            p3_epilogue(Fi, gi - 1)
        A.lines += merge(M.lines, Fi.lines, 1)
        for q in range(7):
            A('ds_read2st64_b32 v[%d:%d], v%d offset0:%d offset1:%d', vBR + 2 * q, vBR + 2 * q + 1, vL4,
              (base + 28 * 1024) // 256 + 2 * q, (base + 28 * 1024) // 256 + 2 * q + 1)
        if gi > 0:
            p3_publish()
        A('s_waitcnt lgkmcnt(0)')
        set_stage(A, 9 + gi)
        for q in range(1, 7):
            A('v_pk_add_f32 v[%d:%d], v[%d:%d], v[%d:%d]', vBR, vBR + 1, vBR, vBR + 1, vBR + 2 * q, vBR + 2 * q + 1)
        t0, t1 = vTT, vTT + 1
        A('v_add_f32 v%d, v%d, v%d', t0, vBR, vBR + 1)
        A('v_mul_f32 v%d, 0x%x, v%d', t0, 0x3b124925, t0)
        A('v_mov_b32 v%d, v%d', t1, t0)
        A('v_permlane32_swap_b32 v%d, v%d', t0, t1)
        A('v_fma_f32 v%d, -v%d, v%d, v%d', t1, t0, t0, t1)
        A('v_max_f32 v%d, 0, v%d', t1, t1)
        A('v_add_f32 v%d, 0x%x, v%d', t1, 0x3727c5ac, t1)
        A('v_rsq_f32 v%d, v%d', vRS, t1)
        A('v_sub_f32 v%d, 0, v%d', t0, t0)
        hilo_m(A, t0, vMF, vT0)
        mfma(A, acc, vCF, vMF)
        A('v_mul_f32 v%d, v%d, v%d', vSDp[gi & 1], t1, vRS)
        A('v_mul_f32 v%d, 0x%x, v%d', vC1p[gi & 1], LOG2E ^ 0x80000000, vRS)
        if gi == 0:
            stamp(A)
    stamp(A)
    p3_epilogue(A, 3)
    p3_publish()
    stamp(A)
    NB = 28
    vWF4 = 40
    unpack_hp()
    A('s_mul_i32 s%d, s%d, %d', sB, sG, 112 * 1024)
    A('s_mul_i32 s%d, s%d, %d', sT, sKH, 56 * 1024)
    A('s_add_u32 s%d, s%d, s%d', sB, sB, sT)
    A('s_add_u32 s%d, s%d, %d', sB, sB, WS_H1B)
    A('s_lshl_b32 s%d, s%d, 8', sT2, sG)
    A('s_mul_i32 s%d, s%d, 112', sT, sKH)
    A('s_add_u32 s%d, s%d, s%d', sT2, sT2, sT)
    A('s_add_u32 s%d, s%d, %d', sT2, sT2, F4)

    def w2_base(c):
        A('s_cmp_eq_u32 s%d, 0', sKH)
        A('s_cselect_b32 s%d, %d, %d', sT, w2_slot(2 * c) >> 12, w2_slot(2 * c + 1) >> 12)
        A('s_lshl_b32 s%d, s%d, 12', sT, sT)
        A('v_add_u32 v%d, s%d, v%d', vWA + 2, sT, vWA)
        A('v_add_u32 v%d, s%d, v%d', vWA + 3, sT, vWA + 1)

    def read_w2(k):
        if k % 4 == 0:
            wait_lp(A, LP[('w2', 2 * (k // 4) + 1)])
            w2_base(k // 4)
        buf = vWF4 + 8 * (k & 3)
        for nt in range(2):
            for z in range(2):
                A('ds_read_b64_tr_b16 v[%d:%d], v%d offset:%d', buf + 4 * nt + 2 * z, buf + 4 * nt + 2 * z + 1,
                  vWA + 2 + nt, ((k % 4) * 16 + 8 * z) * 128)

    def issue_b(k):
        A('buffer_load_dwordx4 %s, v%d, s[%d:%d], s%d offen offset:%d sc1', v(vXR + 4 * (k % NB), 4), vO, SWS, SWS + 3,
          sB, (k & 3) * 1024)
        if (k & 3) == 3:
            A('s_add_u32 s%d, s%d, 4096', sB, sB)

    read_w2(0)
    read_w2(1)
    poll_global(A, sT2, 28)
    stamp(A)
    INFL = E('P4INFL', 16)
    for k in range(INFL):
        issue_b(k)
    issued = INFL
    for k in range(56):
        if k + 2 < 56:
            read_w2(k + 2)
        A('s_waitcnt vmcnt(%d) lgkmcnt(%d)', issued - k - 1, 8 if k + 2 < 56 else (4 if k + 1 < 56 else 0))
        if k % 4 == 3 and (k // 4) <= 5:
            set_stage(A, 13 + k // 4)
        buf = vWF4 + 8 * (k & 3)
        mfma(A, vAC + 16, buf + 4, vXR + 4 * (k % NB), k == 0)
        mfma(A, vAC, buf, vXR + 4 * (k % NB))
        if issued < 56:
            issue_b(issued)
            issued += 1
    stamp(A)
    exchange(27)
    cvt8(A, vHP, vAC)
    for q in range(2):
        A('v_permlane32_swap_b32 v%d, v%d', vHP + 4 * q, vHP + 4 * q + 2)
        A('v_permlane32_swap_b32 v%d, v%d', vHP + 4 * q + 1, vHP + 4 * q + 3)
    A('v_and_b32 v%d, 31, v%d', vT0, vL)
    A('v_mul_u32_u24 v%d, 896, v%d', vT0, vT0)
    A('v_lshrrev_b32 v%d, 5, v%d', vT1, vL)
    A('v_lshl_add_u32 v%d, v%d, 4, v%d', vT0, vT1, vT0)
    A('s_mul_i32 s%d, s%d, %d', sT, sG, 32 * 896)
    A('s_lshl_b32 s%d, s%d, 7', sT2, sNB)
    A('s_add_u32 s%d, s%d, s%d', sT, sT, sT2)
    A('s_lshl_b32 s%d, s%d, 6', sT2, sKH)
    A('s_add_u32 s%d, s%d, s%d', sT, sT, sT2)
    for q in range(2):
        A('buffer_store_dwordx4 %s, v%d, s[%d:%d], s%d offen offset:%d', v(vHP + 4 * q, 4), vT0, SOUT, SOUT + 3, sT,
          q * 32)
    A('s_or_b32 s%d, s2, s%d', sT, sWV)
    A('s_cmp_lg_u32 s%d, 0', sT)
    A('s_cbranch_scc1 %s', fin)
    A('v_mov_b32 v%d, s%d', vT0, sTAG)
    A('v_mov_b32 v%d, %d', vT1, FEP)
    A('s_mov_b64 exec, 1')
    A('buffer_store_dword v%d, v%d, s[%d:%d], 0 offen', vT0, vT1, SWS, SWS + 3)
    A('s_mov_b64 exec, -1')
    A('%s:', fin)
    stamp_flush(A)


def fast_check(A):
    if not FAST:
        return
    A('s_getreg_b32 s%d, hwreg(HW_REG_XCC_ID)', sC)
    A('s_and_b32 s%d, s%d, 15', sC, sC)
    A('s_add_u32 s%d, s%d, s%d', sC, sC, sTAG)
    A('s_lshl_b32 s%d, s%d, 7', sT, sXCD)
    A('s_add_u32 s%d, s%d, %d', sT, sT, FREG)
    A('v_and_b32 v%d, 31, v%d', vT1, vL)
    A('v_lshlrev_b32 v%d, 2, v%d', vT1, vT1)
    A('buffer_load_dword v%d, v%d, s[%d:%d], s%d offen sc1', vT0, vT1, SWS, SWS + 3, sT)
    A('s_waitcnt vmcnt(0)')
    A('v_cmp_ne_u32 vcc, s%d, v%d', sC, vT0)
    A('s_cmp_eq_u64 vcc, 0')
    A('s_cselect_b32 s%d, 1, 0', sFASTF)


def gen():
    A = Asm()
    name = NAME + '_kernel'
    A.lines += ['.p2align 8', '.globl %s' % name, '.type %s,@function' % name, '%s:' % name]
    end = A.label('END')
    A('s_getpc_b64 s[%d:%d]', sMSK, sMSK + 1)
    A('s_cmp_ge_u32 s2, 256')
    A('s_cbranch_scc1 %s', end)
    A('s_load_dwordx16 s[64:79], s[0:1], 0')
    A('s_load_dwordx2 s[80:81], s[0:1], 72')
    A('s_mov_b32 s%d, 0x400000', sSPIN)
    A('s_and_b32 s%d, s2, 7', sXCD)
    A('s_lshr_b32 s%d, s2, 3', sI)
    if MAP == 0:
        perm = [0, 1, 3, 5, 7, 8, 10, 12, 14, 15, 2, 4, 6, 9, 11, 13]
        lo = sum(perm[i] << (4 * i) for i in range(8))
        hi = sum(perm[8 + i] << (4 * i) for i in range(8))
        A('s_mov_b32 s%d, 0x%x', sHI, lo)
        A('s_mov_b32 s%d, 0x%x', sHI + 1, hi)
        A('s_lshr_b32 s%d, s%d, 1', sT, sI)
        A('s_lshl_b32 s%d, s%d, 2', sT, sT)
        A('s_lshr_b64 s[%d:%d], s[%d:%d], s%d', sHI, sHI + 1, sHI, sHI + 1, sT)
        A('s_and_b32 s%d, s%d, 15', sH, sHI)
        A('s_and_b32 s%d, s%d, 1', sTB, sI)
        A('s_lshl_b32 s%d, s%d, 1', sT, sXCD)
        A('s_add_u32 s%d, s%d, s%d', sTB, sTB, sT)
    else:
        A('s_lshr_b32 s%d, s%d, 1', sTB, sI)
        A('s_and_b32 s%d, s%d, 1', sH, sI)
        A('s_lshl_b32 s%d, s%d, 1', sT, sXCD)
        A('s_add_u32 s%d, s%d, s%d', sH, sH, sT)
    A('s_add_u32 s%d, s%d, s%d', sC0, sXCD, sI)
    A('s_mul_i32 s%d, s%d, 37', sT, sC0)
    A('s_lshr_b32 s%d, s%d, 8', sT, sT)
    A('s_mul_i32 s%d, s%d, 7', sT, sT)
    A('s_sub_u32 s%d, s%d, s%d', sC0, sC0, sT)
    A('s_mul_i32 s%d, s%d, 37', sTQ, sI)
    A('s_lshr_b32 s%d, s%d, 8', sTQ, sTQ)
    A('s_mul_i32 s%d, s%d, 7', sNB, sTQ)
    A('s_sub_u32 s%d, s%d, s%d', sNB, sI, sNB)
    A('s_lshr_b32 s%d, s%d, 1', sTB3, sTQ)
    A('s_mul_i32 s%d, s%d, 14', sFB, sTB3)
    A('s_sub_u32 s%d, s%d, s%d', sFB, sI, sFB)
    A('s_lshl_b32 s%d, s%d, 2', sT, sXCD)
    A('s_add_u32 s%d, s%d, s%d', sTQ, sTQ, sT)
    A('s_lshl_b32 s%d, s%d, 1', sT, sXCD)
    A('s_add_u32 s%d, s%d, s%d', sTB3, sTB3, sT)
    A('v_lshrrev_b32 v%d, 6, v0', vL)
    A('v_readfirstlane_b32 s%d, v%d', sWV, vL)
    A('v_lshlrev_b32 v%d, 2, v%d', vRA_PW, vL)
    A('v_add_u32 v%d, %d, v%d', vRA_PW, L_MISC, vRA_PW)
    A('v_and_b32 v%d, 63, v0', vL)
    A('v_lshlrev_b32 v%d, 4, v%d', vO, vL)
    A('v_mov_b32 v%d, %d', vMI, L_MISC)
    A('v_mov_b32 v%d, 0', vT0)
    A('ds_write_b32 v%d, v%d', vRA_PW, vT0)
    A('ds_write_b32 v%d, v%d offset:32', vRA_PW, vT0)
    A('s_mov_b32 s%d, 0', sPROG)
    A('s_mov_b32 s%d, 0', sFASTF)
    A('s_mov_b32 s%d, 0x%x', sONES, ONES)
    A('s_waitcnt lgkmcnt(0)')
    A('s_barrier')
    A('s_add_u32 s82, s80, %d', FEP)
    A('s_addc_u32 s83, s81, 0')
    A('s_load_dword s%d, s[82:83], 0', sTAG)
    srd(A, SX, 64, S * D * 2)
    srd(A, SW, 66, D * 3 * D * 2)
    srd(A, SP, 68, H * DH * DH * 2)
    srd(A, SWO, 70, D * D * 2)
    srd(A, SW1, 74, D * F * 2)
    srd(A, SW2, 76, D * F * 2)
    srd(A, SOUT, 78, S * D * 2)
    srd(A, SWS, 80, WS_SIZE)
    _st['n'] = 0
    stamp(A)
    comp = A.label('COMP')
    A('s_cmp_lt_u32 s%d, 4', sWV)
    A('s_cbranch_scc1 %s', comp)
    gen_loader(A)
    A('%s:', comp)
    _st['n'] = 1
    gen_compute(A, end)
    A('%s:', end)
    A('s_endpgm')
    return A, name


def main():
    out = sys.argv[1] if len(sys.argv) > 1 else 'cdna_kernels/%s.s' % NAME
    A, name = gen()
    lines, nn = fix_hazards(A.lines)
    hdr = ['; generated by gen/gen2.py (hand-written generator script)',
           '; @launch grid=(256,1,1) block=(320,1,1) lds=%d' % LDS_SIZE,
           '.amdgcn_target "amdgcn-amd-amdhsa--gfx950"', '.text']
    tail = ['.p2align 8', '.fill 8192, 4, 0xbf800000', '.section .rodata,"a"', '.p2align 6', '''.amdhsa_kernel %s
  .amdhsa_next_free_vgpr 256
  .amdhsa_next_free_sgpr 102
  .amdhsa_accum_offset 256
  .amdhsa_group_segment_fixed_size 0
  .amdhsa_kernarg_size 80
  .amdhsa_user_sgpr_count 2
  .amdhsa_user_sgpr_kernarg_segment_ptr 1
  .amdhsa_system_sgpr_workgroup_id_x 1
  .amdhsa_float_denorm_mode_32 3
  .amdhsa_float_denorm_mode_16_64 3
.end_amdhsa_kernel''' % name]
    open(out, 'w').write('\n'.join(hdr + lines + tail) + '\n')
    print('wrote', out, 'lines', len(lines), 'nops', nn)


if __name__ == '__main__':
    main()
```

```python
import sys
import os
sys.path.insert(0, os.path.dirname(os.path.abspath(__file__)))
from asmlib import Asm, fix_hazards, v

NAME = 'sequential_preLN__linear_kernel_hedgehog__dense_activation_silu__prompt'
S, D, H, DH, F = 2048, 448, 16, 28, 1792
MB = 1 << 20
E = lambda k, d: int(os.environ.get(k, d))
STAMPS = E('STAMPS', 0)
MAP = E('MAP', 0)
FAST = E('FAST', 1)
CODEPF = E('CODEPF', 1)
WARM = E('WARM', 1)
WS_KVP = 0
WS_OB = 2 * MB
WS_HB = 4 * MB
WS_H1B = 8 * MB
WS_FLG = 16 * MB
F1, F2, F3, F4, FREG, FEP = WS_FLG, WS_FLG + 0x1000, WS_FLG + 0x3000, WS_FLG + 0x5000, WS_FLG + 0x9000, WS_FLG + 0xA000
WS_STAMP = 17 * MB
WS_SIZE = 18 * MB
LOG2E = 0x3fb8aa3b
ONES = 0x3f803f80
MFMA = 'v_mfma_f32_32x32x16_bf16'
L_A, L_B = 0, 65536
L_XRES = 57344
L_WP = (114688, 0, 32768)
L_KVA, L_KVV = 65536, 81920
L_SC0, L_SC1 = 57344, 147456
L_PHI, L_EX, L_CF, L_MISC = 151552, 155648, 159744, 162816
LDS_SIZE = 163840
M_PW, M_RES, M_FAST, M_RSTD = 0, 32, 64, 512

SX, SW, SP, SWS, SWO, SW1, SW2, SOUT = 12, 16, 20, 24, 28, 32, 36, 40
sTB, sH, sWV, sC0, sPROG, sT, sT2, sONES, sC, sTAG, sFASTF, sI, sXCD = 44, 45, 46, 47, 48, 49, 50, 51, 52, 53, 54, 55, 3
sHI, sPADL, sZA, sZB, sODD, sPC = 4, 6, 8, 10, 92, 94
sTQ, sNB, sTB3, sFB, sG, sKH, sB, sXB, sM0, sSPIN = 96, 97, 98, 99, 100, 101, 88, 89, 91, 90
sPROG1, sFL = 0, 1
vL, vMI, vT0, vT1, vO = 1, 2, 3, 4, 5
vTAG, vMY = 6, 7
vTT = 8
vXA = 12
vWA = 16
vSM, vSQ = 20, 22
vNM, vRS, vSC, vRA = 24, 25, 26, 27
vXD = 28
vPW = 32
vCA = 36
vXR = 144

_st = {'n': 0}
C0 = 3
HELP = {'on': False}


def prio(A, hi):
    if HELP['on'] and E('HPRIO', 2):
        A('s_setprio %d', E('HPRIO', 2) if hi else 0)
LP = {}


STSET = os.environ.get('STSET', 'main')


def stamp(A, tag='main'):
    if STAMPS and (tag == STSET or tag == 'all' or (HELP['on'] and tag == 'main')):
        assert _st['n'] < 16, 'too many stamps'
        A('s_memtime s[%d:%d]', 56 + 2 * _st['n'], 57 + 2 * _st['n'])
        _st['n'] += 1


def stamp_flush(A):
    if STAMPS:
        A('s_waitcnt vmcnt(0)')
        stamp(A, 'all')
        A('s_waitcnt vmcnt(0) lgkmcnt(0)')
        A('s_lshl_b32 s%d, s2, 3', sT)
        A('s_add_u32 s%d, s%d, s%d', sT, sT, sWV)
        A('s_lshl_b32 s%d, s%d, 6', sT, sT)
        A('s_add_u32 s%d, s%d, %d', sT, sT, WS_STAMP)
        A('s_mov_b64 exec, 1')
        A('v_mov_b32 v1, 0')
        for i in range(16):
            if i < _st['n']:
                A('v_mov_b32 v2, s%d', 56 + 2 * i)
            else:
                A('v_mov_b32 v2, 0')
            A('buffer_store_dword v2, v1, s[%d:%d], s%d offen offset:%d', SWS, SWS + 3, sT, 4 * i)
            A('s_nop 1')


def srd(A, d, ptr, size):
    A('s_mov_b32 s%d, s%d', d, ptr)
    A('s_and_b32 s%d, s%d, 0xffff', d + 1, ptr + 1)
    A('s_mov_b32 s%d, 0x%x', d + 2, size)
    A('s_mov_b32 s%d, 0x20000', d + 3)


def spin_guard(A, done):
    A('s_sub_u32 s%d, s%d, 1', sSPIN, sSPIN)
    A('s_cbranch_scc1 %s', done)


def wait_word(A, w, n, cache=None, sleep=0, body=None):
    lo, done = A.label('W'), A.label('WD')
    sd = sT if cache is None else cache
    if cache is not None and body is None:
        A('s_cmp_ge_u32 s%d, %d', sd, n)
        A('s_cbranch_scc1 %s', done)
    prio(A, 0)
    A('%s:', lo)
    if sleep:
        A('s_sleep %d', sleep)
    A('ds_read_b32 v%d, v%d offset:%d', vPW, vMI, M_PW + 4 * w)
    k = body() if body else 0
    A('s_waitcnt lgkmcnt(%d)', k)
    A('v_readfirstlane_b32 s%d, v%d', sd, vPW)
    spin_guard(A, done)
    A('s_cmp_ge_u32 s%d, %d', sd, n)
    A('s_cbranch_scc0 %s', lo)
    prio(A, 1)
    A('%s:', done)


def wait_lp(A, name, sleep=0):
    w, n = LP[name]
    wait_word(A, w, n, {4: sPROG, 5: sPROG1, 7: sPROG1}[w], sleep)


def set_stage(A, n):
    A('v_mov_b32 v%d, %d', vT0, n)
    A('ds_write_b32 v%d, v%d', vMY, vT0)


def wait_stage(A, n, which=(0, 1, 2, 3), body=None, sleep=0):
    lo, done = A.label('W'), A.label('WD')
    prio(A, 0)
    A('%s:', lo)
    if sleep:
        A('s_sleep %d', sleep)
    A('ds_read_b128 v[%d:%d], v%d offset:%d', vPW, vPW + 3, vMI, M_PW + 16 * (which[0] // 4))
    k = body() if body else 0
    A('s_waitcnt lgkmcnt(%d)', k)
    w = [x % 4 for x in which]
    if len(w) == 4:
        A('v_min3_u32 v%d, v%d, v%d, v%d', vPW, vPW, vPW + 1, vPW + 2)
        A('v_min_u32 v%d, v%d, v%d', vPW, vPW, vPW + 3)
        r = vPW
    else:
        A('v_min_u32 v%d, v%d, v%d', vPW + w[0], vPW + w[0], vPW + w[1])
        r = vPW + w[0]
    A('v_readfirstlane_b32 s%d, v%d', sT, r)
    spin_guard(A, done)
    A('s_cmp_ge_u32 s%d, %d', sT, n)
    A('s_cbranch_scc0 %s', lo)
    A('%s:', done)
    prio(A, 1)


def poll_global(A, soff, nlanes):
    lo, done = A.label('P'), A.label('PD')
    A('v_lshlrev_b32 v%d, 2, v%d', vT1, vL)
    A('s_mov_b64 exec, 0x%x', (1 << nlanes) - 1)
    A('%s:', lo)
    A('buffer_load_dword v%d, v%d, s[%d:%d], s%d offen sc1', vT0, vT1, SWS, SWS + 3, soff)
    A('s_waitcnt vmcnt(0)')
    A('v_cmp_ne_u32 vcc, s%d, v%d', sTAG, vT0)
    spin_guard(A, done)
    A('s_cbranch_vccnz %s', lo)
    A('%s:', done)
    A('s_mov_b64 exec, -1')


def poll_scalar(A, soff, n):
    lo, done = A.label('P'), A.label('PD')
    A('s_add_u32 s%d, s%d, s%d', sPC, SWS, soff)
    A('s_addc_u32 s%d, s%d, 0', sPC + 1, SWS + 1)
    base = 72
    A('%s:', lo)
    A('s_load_dwordx%d s[%d:%d], s[%d:%d], 0 glc', n, base, base + n - 1, sPC, sPC + 1)
    A('s_waitcnt lgkmcnt(0)')
    A('s_and_b64 s[%d:%d], s[%d:%d], s[%d:%d]', sHI, sHI + 1, base, base + 1, base + 2, base + 3)
    A('s_or_b64 s[%d:%d], s[%d:%d], s[%d:%d]', sPADL, sPADL + 1, base, base + 1, base + 2, base + 3)
    for k in range(4, n, 2):
        A('s_and_b64 s[%d:%d], s[%d:%d], s[%d:%d]', sHI, sHI + 1, sHI, sHI + 1, base + k, base + k + 1)
        A('s_or_b64 s[%d:%d], s[%d:%d], s[%d:%d]', sPADL, sPADL + 1, sPADL, sPADL + 1, base + k, base + k + 1)
    A('s_and_b32 s%d, s%d, s%d', sHI, sHI, sHI + 1)
    A('s_or_b32 s%d, s%d, s%d', sPADL, sPADL, sPADL + 1)
    A('s_xor_b32 s%d, s%d, s%d', sHI, sHI, sTAG)
    A('s_xor_b32 s%d, s%d, s%d', sPADL, sPADL, sTAG)
    spin_guard(A, done)
    A('s_or_b32 s%d, s%d, s%d', sHI, sHI, sPADL)
    A('s_cbranch_scc1 %s', lo)
    A('%s:', done)


def two_ways(A, fn, local):
    if local and FAST:
        slow, done = A.label('SL'), A.label('SD')
        A('s_cmp_eq_u32 s%d, 0', sFASTF)
        A('s_cbranch_scc1 %s', slow)
        fn('')
        A('s_branch %s', done)
        A('%s:', slow)
        fn(' sc1')
        A('%s:', done)
    else:
        fn(' sc1')


def pub_stores(A, stores, local):
    def fn(bits):
        for st in stores:
            A(st % bits)
    two_ways(A, fn, local)


def pub_flag(A, sflag, local):
    A('s_waitcnt vmcnt(0)')
    A('s_mov_b64 exec, 1')
    two_ways(A, lambda bits: A('buffer_store_dword v%d, v%d, s[%d:%d], s%d offen%s', vTAG, vO, SWS, SWS + 3, sflag,
                               bits), local)
    A('s_mov_b64 exec, -1')


def st4(reg, soff, off):
    return 'buffer_store_dwordx4 %s, v%d, s[%d:%d], s%d offen offset:%d%%s' % (v(reg, 4), vO, SWS, SWS + 3, soff, off)


def hilo_c(A, src, f, tmp):
    A('v_cvt_pk_bf16_f32 v%d, v%d, v%d', f, src, src)
    A('v_and_b32 v%d, 0xffff0000, v%d', tmp, f)
    A('v_sub_f32 v%d, v%d, v%d', tmp, src, tmp)
    A('v_cvt_pk_bf16_f32 v%d, v%d, 0', f + 1, tmp)


def hilo_m(A, src, f, tmp):
    A('v_cvt_pk_bf16_f32 v%d, v%d, 0', f + 1, src)
    A('v_lshlrev_b32 v%d, 16, v%d', tmp, f + 1)
    A('v_sub_f32 v%d, v%d, v%d', tmp, src, tmp)
    A('v_cvt_pk_bf16_f32 v%d, v%d, v%d', f, src, tmp)


def ln_finish(A, t0, t1, negmean, rstd):
    A('v_mul_f32 v%d, 0x%x, v%d', t0, 0x3b124925, t0)
    A('v_mov_b32 v%d, v%d', t1, t0)
    A('v_permlane32_swap_b32 v%d, v%d', t0, t1)
    A('v_fma_f32 v%d, -v%d, v%d, v%d', t1, t0, t0, t1)
    A('v_max_f32 v%d, 0, v%d', t1, t1)
    A('v_add_f32 v%d, 0x%x, v%d', t1, 0x3727c5ac, t1)
    A('v_rsq_f32 v%d, v%d', rstd, t1)
    A('v_sub_f32 v%d, 0, v%d', negmean, t0)


def softmax_pm(A, p, sc, e, out, t):
    A('v_cndmask_b32 v%d, v%d, v%d, s[%d:%d]', p + 12, p + 12, p + 14, sHI, sHI + 1)
    A('v_cndmask_b32 v%d, v%d, v%d, s[%d:%d]', p + 13, p + 13, p + 15, sHI, sHI + 1)
    mx, mn = t, t + 1
    A('v_max3_f32 v%d, v%d, v%d, v%d', mx, p, p + 1, p + 2)
    A('v_min3_f32 v%d, v%d, v%d, v%d', mn, p, p + 1, p + 2)
    for i in range(3, 13, 2):
        A('v_max3_f32 v%d, v%d, v%d, v%d', mx, mx, p + i, p + i + 1)
        A('v_min3_f32 v%d, v%d, v%d, v%d', mn, mn, p + i, p + i + 1)
    A('v_max_f32 v%d, v%d, v%d', mx, mx, p + 13)
    A('v_min_f32 v%d, v%d, v%d', mn, mn, p + 13)
    A('v_sub_f32 v%d, 0, v%d', mn, mn)
    A('v_permlane32_swap_b32 v%d, v%d', mx, mn)
    A('v_max_f32 v%d, v%d, v%d', mx, mx, mn)
    A('v_mul_f32 v%d, v%d, v%d', mx, mx, sc)
    A('v_mov_b32 v%d, v%d', mn, mx)
    A('v_permlane32_swap_b32 v%d, v%d', mx, mn)
    for i in range(14):
        A('v_fma_f32 v%d, v%d, v%d, -v%d', e + i, p + i, sc, mx)
        A('v_fma_f32 v%d, -v%d, v%d, -v%d', e + 14 + i, p + i, sc, mn)
    for i in range(28):
        A('v_exp_f32 v%d, v%d', e + i, e + i)
    for base, dst in ((e, p), (e + 14, p + 2)):
        A('v_pk_add_f32 v[%d:%d], v[%d:%d], v[%d:%d]', dst, dst + 1, base, base + 1, base + 2, base + 3)
    for i in range(4, 14, 2):
        for base, dst in ((e, p), (e + 14, p + 2)):
            A('v_pk_add_f32 v[%d:%d], v[%d:%d], v[%d:%d]', dst, dst + 1, dst, dst + 1, base + i, base + i + 1)
    sp, sn = t + 2, t
    A('v_add_f32 v%d, v%d, v%d', sp, p, p + 1)
    A('v_add_f32 v%d, v%d, v%d', sn, p + 2, p + 3)
    A('v_permlane32_swap_b32 v%d, v%d', sp, sn)
    A('v_add_f32 v%d, v%d, v%d', sp, sp, sn)
    A('v_rcp_f32 v%d, v%d', sp, sp)
    A('v_mov_b32 v%d, v%d', sn, sp)
    A('v_permlane32_swap_b32 v%d, v%d', sp, sn)
    for i in range(0, 14, 2):
        A('v_pk_mul_f32 v[%d:%d], v[%d:%d], v[%d:%d] op_sel_hi:[1,0]', e + i, e + i + 1, e + i, e + i + 1, sp, sp + 1)
        A('v_pk_mul_f32 v[%d:%d], v[%d:%d], v[%d:%d] op_sel_hi:[1,0]', e + 14 + i, e + 15 + i, e + 14 + i, e + 15 + i,
          sn, sn + 1)
    for i in range(7):
        A('v_cvt_pk_bf16_f32 v%d, v%d, v%d', out + i, e + 2 * i, e + 2 * i + 1)
        A('v_cvt_pk_bf16_f32 v%d, v%d, v%d', out + 8 + i, e + 14 + 2 * i, e + 15 + 2 * i)
    A('v_mov_b32 v%d, 0', out + 7)
    A('v_mov_b32 v%d, 0', out + 15)


def cvt8(A, dst, src, n=8):
    for i in range(n):
        A('v_cvt_pk_bf16_f32 v%d, v%d, v%d', dst + i, src + 2 * i, src + 2 * i + 1)


def mfma(A, d, a_, b_, first=False):
    A('%s %s, %s, %s, %s', MFMA, v(d, 16), v(a_, 4), v(b_, 4), '0' if first else v(d, 16))


def merge(main, blocks, start, stop):
    idx = [i for i, l in enumerate(main) if l.strip().startswith('v_mfma')][start:stop]
    out, k = [], 0
    n = len(idx)
    pos = {i: j for j, i in enumerate(idx)}
    for i, l in enumerate(main):
        out.append(l)
        if i in pos:
            upto = (len(blocks) * (pos[i] + 1) + n - 1) // n
            for b in blocks[k:upto]:
                out += b
            k = max(k, upto)
    assert k >= len(blocks)
    return out


def sub(A):
    B = Asm()
    B._lab = A._lab + 1000
    A._lab += 2000
    return B


def w2_slot(n):
    if n < 6:
        return L_B + 32768 + n * 8192
    if n < 10:
        return L_B + (n - 6) * 8192
    if n < 17:
        return L_A + (n - 10) * 8192
    return w2_slot(n - 17)


def w1_slot(c):
    return L_B + ((c + 2) % 5) * 16384


def tag_compute(A):
    A('s_waitcnt lgkmcnt(0)')
    A('s_mul_i32 s%d, s%d, 0x%x', sTAG, sTAG, 1664525)
    A('s_add_u32 s%d, s%d, 0x%x', sTAG, sTAG, 1013904223)
    A('v_mov_b32 v%d, s%d', vTAG, sTAG)


def fast_check(A):
    A('s_getreg_b32 s%d, hwreg(HW_REG_XCC_ID)', sC)
    A('s_and_b32 s%d, s%d, 15', sC, sC)
    A('s_add_u32 s%d, s%d, s%d', sC, sC, sTAG)
    A('s_lshl_b32 s%d, s%d, 7', sT, sXCD)
    A('s_add_u32 s%d, s%d, %d', sT, sT, FREG)
    A('v_and_b32 v%d, 31, v%d', vT1, vL)
    A('v_lshlrev_b32 v%d, 2, v%d', vT1, vT1)
    A('buffer_load_dword v%d, v%d, s[%d:%d], s%d offen sc1', vT0, vT1, SWS, SWS + 3, sT)
    A('s_waitcnt vmcnt(0)')
    A('v_cmp_ne_u32 vcc, s%d, v%d', sC, vT0)
    A('s_cmp_eq_u64 vcc, 0')
    A('s_cselect_b32 s%d, 1, 0', sFASTF)


class Stream:
    def __init__(self, A, wave, depth, first=0):
        self.A, self.wave, self.depth = A, wave, depth
        self.items = []
        self.issued = 0
        self.known = 0
        self.n = first

    def wait_to(self, left):
        if self.issued - left <= self.known:
            return
        self.A('s_waitcnt vmcnt(%d)', left)
        self.known = self.issued - left
        last = None
        while self.items and self.items[0][1] <= self.known:
            last = self.items.pop(0)[0]
        if last is not None:
            set_stage(self.A, last)

    def room(self, k):
        self.wait_to(max(self.depth - k, 0))
        self.issued += k

    def done(self, name, cnt=None):
        self.n += 1
        assert LP.setdefault(name, (self.wave, self.n)) == (self.wave, self.n), name
        self.items.append((self.n, self.issued))

    def drain(self):
        self.drain_to(0)

    def drain_to(self, keep):
        while len(self.items) > keep:
            self.wait_to(self.issued - self.items[0][1])

    def save(self):
        return (list(self.items), self.issued, self.known)

    def restore(self, s):
        self.items, self.issued, self.known = list(s[0]), s[1], s[2]

    def dma4(self, lds, voffs, srd_, step=None, bits=''):
        A = self.A
        A('s_mov_b32 m0, %d', lds)
        self.room(4)
        for u in range(4):
            A('buffer_load_dwordx4 v%d, s[%d:%d], s%d offen offset:%d%s lds', voffs[u], srd_, srd_ + 3, sT, u * 1024,
              bits)
        if step:
            A('s_add_u32 s%d, s%d, %d', sT, sT, step)


def spread4(A, base, step):
    for u in range(1, 4):
        A('v_add_u32 v%d, %d, v%d', base + u, u * (step - 1024), base)


def wtr_base(A):
    A('v_lshrrev_b32 v%d, 5, v%d', vT1, vL)
    A('v_bfe_u32 v%d, v%d, 2, 2', vT0, vL)
    A('v_lshl_add_u32 v%d, v%d, 3, v%d', vT0, vT1, vT0)
    A('v_lshlrev_b32 v%d, 6, v%d', vT0, vT0)
    A('v_bfe_u32 v%d, v%d, 4, 1', vTT, vL)
    A('v_lshl_add_u32 v%d, v%d, 5, v%d', vT0, vTT, vT0)
    A('v_and_b32 v%d, 3, v%d', vTT, vL)
    A('v_lshl_add_u32 v%d, v%d, 3, v%d', vT0, vTT, vT0)
    for pi in range(3):
        A('v_add_u32 v%d, %d, v%d', vWA + pi, L_WP[pi], vT0)
    A('v_lshlrev_b32 v%d, 3, v%d', vCA, vL)
    A('v_add_u32 v%d, %d, v%d', vCA, L_CF, vCA)


def sel_frags(A, vID):
    A('v_lshrrev_b32 v%d, 5, v%d', vT1, vL)
    A('v_and_b32 v%d, 31, v%d', vT0, vL)
    A('v_lshlrev_b32 v%d, 2, v%d', vTT, vT1)
    A('v_sub_u32 v%d, v%d, v%d', vT0, vT0, vTT)
    A('v_mov_b32 v%d, 0x3f80', vTT)
    A('v_mov_b32 v%d, 0x3f800000', vTT + 1)
    for sidx in range(2):
        for rr in range(4):
            m = 16 * sidx + 8 * (rr >> 1) + 2 * (rr & 1)
            A('v_cmp_eq_u32 vcc, %d, v%d', m, vT0)
            A('v_cndmask_b32 v%d, 0, v%d, vcc', vID + 4 * sidx + rr, vTT)
            A('v_cmp_eq_u32 vcc, %d, v%d', m + 1, vT0)
            A('v_cndmask_b32 v%d, v%d, v%d, vcc', vID + 4 * sidx + rr, vID + 4 * sidx + rr, vTT + 1)


def read_w(A, pi, i, buf, sleep=0):
    wait_lp(A, ('W', pi, i), sleep)
    for q in range(4):
        for z in range(2):
            A('ds_read_b64_tr_b16 v[%d:%d], v%d offset:%d', buf + 4 * q + 2 * z, buf + 4 * q + 2 * z + 1,
              vWA + pi, i * 4096 + q * 1024 + z * 256)


def colsum(A, spi):
    vCS, vB_, buf = 40, 44, 48
    A('v_mov_b32 v%d, 0', vCS)
    A('v_mov_b32 v%d, 0', vCS + 1)
    A('s_cmp_eq_u32 s%d, 1', spi)
    A('s_cselect_b32 s%d, 0, %d', sT, L_WP[2])
    A('s_cmp_eq_u32 s%d, 0', spi)
    A('s_cselect_b32 s%d, %d, s%d', sT, L_WP[0], sT)
    assert L_WP[1] == 0
    A('v_add_u32 v%d, s%d, v%d', vB_, sT, vWA + 1)
    A('s_mul_i32 s%d, s%d, 7', sC, spi)
    A('s_add_u32 s%d, s%d, 7', sT2, sC)
    top, lo, ok = A.label('CS'), A.label('W'), A.label('WD')
    A('%s:', top)
    A('s_cmp_gt_u32 s%d, s%d', sPROG, sC)
    A('s_cbranch_scc1 %s', ok)
    prio(A, 0)
    A('%s:', lo)
    A('ds_read_b32 v%d, v%d offset:%d', vPW, vMI, M_PW + 16)
    A('s_waitcnt lgkmcnt(0)')
    A('v_readfirstlane_b32 s%d, v%d', sPROG, vPW)
    spin_guard(A, ok)
    A('s_cmp_gt_u32 s%d, s%d', sPROG, sC)
    A('s_cbranch_scc0 %s', lo)
    prio(A, 1)
    A('%s:', ok)
    for q in range(4):
        for z in range(2):
            A('ds_read_b64_tr_b16 v[%d:%d], v%d offset:%d', buf + 4 * q + 2 * z, buf + 4 * q + 2 * z + 1, vB_,
              q * 1024 + z * 256)
    A('v_add_u32 v%d, 4096, v%d', vB_, vB_)
    A('s_add_u32 s%d, s%d, 1', sC, sC)
    for q in range(4):
        A('s_waitcnt lgkmcnt(%d)', 6 - 2 * q)
        for r in range(4):
            A('v_dot2c_f32_bf16 v%d, s%d, v%d', vCS + (r & 1), sONES, buf + 4 * q + r)
    A('s_cmp_lt_u32 s%d, s%d', sC, sT2)
    A('s_cbranch_scc1 %s', top)
    A('v_add_f32 v%d, v%d, v%d', vCS, vCS, vCS + 1)
    hilo_c(A, vCS, vCS + 2, vT0)
    A('s_lshl_b32 s%d, s%d, 9', sT, spi)
    A('v_add_u32 v%d, s%d, v%d', vB_, sT, vCA)
    A('ds_write_b64 v%d, v[%d:%d]', vB_, vCS + 2, vCS + 3)


def gen_h0(A):
    St = Stream(A, 4, E('WDEPTH', 8))
    vW, vW128, vXo, vW256 = 40, 44, 48, 52
    A('v_lshrrev_b32 v%d, 2, v%d', vW, vL)
    A('v_mul_u32_u24 v%d, 2688, v%d', vW, vW)
    A('v_and_b32 v%d, 3, v%d', vT1, vL)
    A('v_lshl_add_u32 v%d, v%d, 4, v%d', vW, vT1, vW)
    A('s_mul_i32 s%d, s%d, 56', sT, sH)
    A('s_and_b32 s%d, s%d, 0xfffffff0', sT, sT)
    A('v_add_u32 v%d, s%d, v%d', vW, sT, vW)
    spread4(A, vW, 16 * 2688)
    q4 = lambda b: [b, b + 1, b + 2, b + 3]
    vTC = 56
    NT = E('NTOUCH', 16)
    A('v_lshlrev_b32 v%d, 7, v%d', vTC, vL)
    A('s_sub_u32 s%d, s%d, 12', sXB, sI)
    A('s_cselect_b32 s%d, 0x7f000000, 0', sM0)
    A('s_lshl_b32 s%d, s%d, 13', sXB, sXB)
    A('s_add_u32 s%d, s%d, s%d', sXB, sXB, sM0)
    A('v_add_u32 v%d, s%d, v%d', vTC, sXB, vTC)
    A('s_lshl_b32 s%d, s%d, 18', sXB, sXCD)
    plan = [(SW1, None, k * 163840) for k in range(10)] + [(SWO, None, k * 163840) for k in range(3)]
    plan += [(SWS, WS_OB, 0), (SWS, WS_OB, 163840 - 65536), (SWS, WS_HB, 0), (SWS, WS_HB, 163840 - 65536)]
    n = 0
    for pi, part in enumerate((1, 2, 0)):
        if pi >= 1:
            St.drain_to(E('XGATEKEEP', 4))
            wait_stage(A, pi)
            if pi == 1 and E('XG2', 4) >= 0:
                St.drain()
                wait_lp(A, ('x', E('XG2', 4)))
        stamp(A)
        if pi == 1:
            St.depth = E('WDEPTH2', 24)
        A('s_mov_b32 s%d, s%d', sC, sC0)
        for i in range(7):
            A('s_mul_i32 s%d, s%d, %d', sT, sC, 64 * 2688)
            A('s_add_u32 s%d, s%d, %d', sT, sT, part * 896)
            St.dma4(L_WP[pi] + i * 4096, q4(vW), SW)
            A('s_add_u32 s%d, s%d, 1', sC, sC)
            A('s_cmp_eq_u32 s%d, 7', sC)
            A('s_cselect_b32 s%d, 0, s%d', sC, sC)
            St.done(('W', pi, i))
            k = n - (21 - len(plan))
            if MAP == 0 and E('L2WARM', 0) and k >= 0:
                srd_, base, off = plan[k]
                if base is None:
                    A('s_mov_b32 s%d, %d', sT, off)
                else:
                    A('s_add_u32 s%d, s%d, %d', sT, sXB, base + off)
                St.issued += 1
                A('buffer_load_dword v%d, v%d, s[%d:%d], s%d offen', vTC + 1, vTC, srd_, srd_ + 3, sT)
            n += 1
    lend = A.label('LEND')
    act = A.label('ACT')
    A('s_cmp_lt_u32 s%d, 28', sI)
    A('s_cbranch_scc1 %s', act)
    keep = St.save()
    St.drain()
    St.restore(keep)
    if E('TOUCH', 1):
        def touch(srd_, base, per_xcd, n):
            A('s_mul_i32 s%d, s%d, %d', sT, sXCD, per_xcd)
            A('s_sub_u32 s%d, s%d, 28', sT2, sI)
            A('s_mul_i32 s%d, s%d, %d', sT2, sT2, n * 8192)
            A('s_add_u32 s%d, s%d, s%d', sT, sT, sT2)
            A('s_add_u32 s%d, s%d, %d', sT, sT, base)
            A('s_mov_b32 s%d, %d', sC, n)
            lo = A.label('T')
            A('%s:', lo)
            A('buffer_load_dword v%d, v%d, s[%d:%d], s%d offen', vW + 1, vW, srd_, srd_ + 3, sT)
            A('s_add_u32 s%d, s%d, 8192', sT, sT)
            A('s_waitcnt vmcnt(%d)', E('TDEPTH', 6))
            A('s_sub_u32 s%d, s%d, 1', sC, sC)
            A('s_cmp_lg_u32 s%d, 0', sC)
            A('s_cbranch_scc1 %s', lo)
        A('v_lshlrev_b32 v%d, 7, v%d', vW, vL)
        if not (MAP == 0 and E('L2WARM', 0)):
            if MAP == 0:
                touch(SWS, WS_OB, 262144, 8)
            touch(SWS, WS_HB, 262144, 8)
        wait_stage(A, C0 + 5, sleep=2)
        touch(SWS, WS_H1B, 8 * 112 * 1024, 28)
        touch(SW2, 0, 0, 49)
    A('s_branch %s', lend)
    A('%s:', act)
    A('v_lshrrev_b32 v%d, 3, v%d', vW128, vL)
    A('v_mul_u32_u24 v%d, 896, v%d', vW128, vW128)
    A('v_and_b32 v%d, 7, v%d', vT1, vL)
    A('v_lshl_add_u32 v%d, v%d, 4, v%d', vXo, vT1, vW128)
    A('v_lshrrev_b32 v%d, 2, v%d', vT0, vL)
    A('v_and_b32 v%d, 4, v%d', vT0, vT0)
    A('v_xor_b32 v%d, v%d, v%d', vT1, vT1, vT0)
    A('v_lshl_add_u32 v%d, v%d, 4, v%d', vW128, vT1, vW128)
    A('v_lshrrev_b32 v%d, 4, v%d', vW256, vL)
    A('v_mul_u32_u24 v%d, 3584, v%d', vW256, vW256)
    A('v_and_b32 v%d, 15, v%d', vT1, vL)
    A('v_lshrrev_b32 v%d, 2, v%d', vT0, vL)
    A('v_and_b32 v%d, 12, v%d', vT0, vT0)
    A('v_xor_b32 v%d, v%d, v%d', vT1, vT1, vT0)
    A('v_lshl_add_u32 v%d, v%d, 4, v%d', vW256, vT1, vW256)
    spread4(A, vW128, 8 * 896)
    spread4(A, vXo, 8 * 896)
    spread4(A, vW256, 4 * 3584)
    A('s_lshl_b32 s%d, s%d, 7', sB, sNB)

    def w1_chunk(c):
        A('s_lshl_b32 s%d, s%d, 8', sT, sFB)
        A('s_add_u32 s%d, s%d, %d', sT, sT, c * 64 * 3584)
        for u in range(4):
            St.dma4(w1_slot(c) + u * 4096, q4(vW256), SW1, 16 * 3584 if u < 3 else None)
        St.done(('w1', c), 16)

    def w2_item(n):
        c, kh = n >> 1, n & 1
        A('s_add_u32 s%d, s%d, %d', sT, sB, (kh * 896 + c * 64) * 896)
        for u in range(2):
            St.dma4(w2_slot(n) + u * 4096, q4(vW128), SW2, 32 * 896 if u < 1 else None)
        St.done(('w2', n), 8)

    St.drain_to(3)
    wait_stage(A, 3)
    wait_word(A, 5, 1)
    stamp(A)
    for c in range(3):
        w1_chunk(c)
        St.depth = E('LDEPTH', 32)
    wait_stage(A, 2, (5, 6))
    for c in (3, 4):
        w1_chunk(c)
    stamp(A)
    wait_stage(A, C0 + 3)
    wait_word(A, 7, 8)
    A('s_mul_i32 s%d, s%d, %d', sT, sTQ, 64 * 896)
    A('s_add_u32 s%d, s%d, s%d', sT, sT, sB)
    for u in range(2):
        St.dma4(L_XRES + u * 4096, q4(vXo), SX, 32 * 896)
    St.done('xres', 8)
    A('s_mov_b32 s%d, s%d', sT, sB)
    for c in range(7):
        for u in range(2):
            St.dma4(L_A + c * 8192 + u * 4096, q4(vW128), SWO, 32 * 896)
        St.done(('wo', c), 8)
    stamp(A)
    wait_stage(A, C0 + 4)
    for c in (5, 6):
        w1_chunk(c)
    St.drain()
    stamp(A)
    wait_stage(A, C0 + 8, sleep=1)
    wait_lp(A, ('h', E('W2AFTER', 1), 3))
    stamp(A)
    St.depth = E('W2DEPTH', 24)
    for n in range(10):
        w2_item(n)
    St.drain()
    stamp(A)
    wait_stage(A, C0 + 12, sleep=1)
    stamp(A)
    St.depth = E('W2DEPTH2', 40)
    for n in range(10, 17):
        w2_item(n)
    St.depth = E('W2DEPTH3', 32)
    for n in range(17, 28):
        m = n - 17
        wait_stage(A, C0 + 13 + (m >> 1), (0, 1) if (m & 1) == 0 else (2, 3))
        w2_item(n)
    St.drain()
    A('%s:', lend)
    A('s_waitcnt lgkmcnt(0)')
    stamp_flush(A)
    A('s_endpgm')


def gen_h1(A):
    St = Stream(A, 7, E('XDEPTH', 16))
    A('v_lshrrev_b32 v%d, 3, v%d', vT0, vL)
    A('v_mul_u32_u24 v%d, 896, v%d', vT0, vT0)
    A('v_lshrrev_b32 v%d, 4, v%d', vT1, vL)
    A('v_and_b32 v%d, 7, v%d', vXD, vL)
    A('v_xor_b32 v%d, v%d, v%d', vXD, vXD, vT1)
    A('v_xor_b32 v%d, 4, v%d', vXD + 1, vXD)
    A('v_lshl_add_u32 v%d, v%d, 4, v%d', vXD, vXD, vT0)
    A('v_lshl_add_u32 v%d, v%d, 4, v%d', vXD + 1, vXD + 1, vT0)
    A('v_add_u32 v%d, %d, v%d', vXD + 1, 8 * 896 - 1024, vXD + 1)
    A('v_add_u32 v%d, %d, v%d', vXD + 2, 2 * (8 * 896 - 1024), vXD)
    A('v_add_u32 v%d, %d, v%d', vXD + 3, 2 * (8 * 896 - 1024), vXD + 1)
    A('s_mul_i32 s%d, s%d, %d', sXB, sTB, 128 * 896)
    A('s_mov_b32 s%d, s%d', sC, sC0)
    for i in range(7):
        A('s_lshl_b32 s%d, s%d, 7', sT, sC)
        A('s_add_u32 s%d, s%d, s%d', sT, sT, sXB)
        for w in range(4):
            St.dma4(L_A + i * 16384 + w * 4096, [vXD, vXD + 1, vXD + 2, vXD + 3], SX, 32 * 896 if w < 3 else None)
        A('s_add_u32 s%d, s%d, 1', sC, sC)
        A('s_cmp_eq_u32 s%d, 7', sC)
        A('s_cselect_b32 s%d, 0, s%d', sC, sC)
        St.done(('x', i), 16)
    stamp(A)
    St.drain()
    stamp(A)
    wtr_base(A)
    tag_compute(A)
    if WARM:
        for srd_, size in ((SW2, D * F * 2),) if (MAP == 0 and E('L2WARM', 0)) else (
                (SW1, D * F * 2), (SWO, D * D * 2), (SW2, D * F * 2)):
            A('s_mul_i32 s%d, s2, %d', sT, size // 256)
            A('v_lshlrev_b32 v%d, 7, v%d', vT1, vL)
            A('s_mov_b64 exec, 0x%x', (1 << ((size // 256 + 127) // 128)) - 1) if size // 256 < 4096 else None
            if size // 256 >= 4096:
                A('s_mov_b32 exec_hi, 0x%x', (1 << ((size // 256 + 127) // 128 - 32)) - 1)
            A('buffer_load_dword v64, v%d, s[%d:%d], s%d offen', vT1, srd_, srd_ + 3, sT)
            A('s_mov_b64 exec, -1')
    A('s_mov_b32 s%d, 2', sG)
    colsum(A, sG)
    if FAST:
        fast_check(A)
        A('v_mov_b32 v%d, s%d', vT0, sFASTF)
        A('ds_write_b32 v%d, v%d offset:%d', vMI, vT0, M_FAST)
    set_stage(A, 8)
    stamp(A)
    lend = A.label('LEND')
    A('s_cmp_ge_u32 s%d, 28', sI)
    A('s_cbranch_scc1 %s', lend)
    St = Stream(A, 7, E('HDEPTH', 24), 8)
    for gi in range(4):
        A('s_lshl_b32 s%d, s%d, 2', sT2, sTB3)
        A('s_add_u32 s%d, s%d, %d', sT2, sT2, gi)
        A('s_lshl_b32 s%d, s%d, 15', sB, sT2)
        A('s_add_u32 s%d, s%d, %d', sB, sB, WS_HB)
        if gi == 0:
            wait_stage(A, C0 + 7, sleep=1)
            stamp(A)
        if gi >= 2:
            St.drain()
        if gi % 2 == 0:
            A('s_lshl_b32 s%d, s%d, 6', sT2, sT2)
            A('s_add_u32 s%d, s%d, %d', sT2, sT2, F3)
            lo, done = A.label('P'), A.label('PD')
            A('v_lshlrev_b32 v%d, 2, v%d', vT1, vL)
            A('s_mov_b64 exec, 0x3fff3fff')
            A('%s:', lo)
            A('buffer_load_dword v%d, v%d, s[%d:%d], s%d offen sc1', vT0, vT1, SWS, SWS + 3, sT2)
            A('s_waitcnt vmcnt(0)')
            A('v_cmp_ne_u32 vcc, s%d, v%d', sTAG, vT0)
            spin_guard(A, done)
            A('s_cbranch_vccnz %s', lo)
            A('%s:', done)
            A('s_mov_b64 exec, -1')
            stamp(A)
        if gi >= 2:
            wait_stage(A, C0 + 7 + gi)
            stamp(A)
        A('s_mov_b32 s%d, s%d', sT, sB)
        for q in range(4):
            for u in range(2):
                St.dma4(L_A + (gi & 1) * 32768 + q * 8192 + u * 4096, [vO] * 4, SWS, 4096, ' sc1')
            St.done(('h', gi, q), 8)
    St.drain()
    A('%s:', lend)
    A('s_waitcnt lgkmcnt(0)')
    stamp_flush(A)
    A('s_endpgm')


def gen_h23(A):
    vID, vAF, vVF, vAC, vG = 64, 72, 104, 136, 72
    sTL = sKH
    A('s_sub_u32 s%d, s%d, 5', sTL, sWV)
    skip = A.label('NOST')
    A('s_cmp_eq_u32 s%d, 1', sTL)
    A('s_cbranch_scc1 %s', skip)
    A('s_mul_i32 s%d, s%d, 1568', sT, sH)
    A('s_mov_b32 m0, %d', L_PHI)
    A('buffer_load_dwordx4 v%d, s[%d:%d], s%d offen lds', vO, SP, SP + 3, sT)
    A('buffer_load_dwordx4 v%d, s[%d:%d], s%d offen offset:1024 lds', vO, SP, SP + 3, sT)
    if CODEPF:
        A('s_mul_i32 s%d, s%d, %d', sT, sI, 1280)
        A('v_lshlrev_b32 v%d, 7, v%d', vT1, vL)
        A('v_add_u32 v%d, s%d, v%d', vT1, sT, vT1)
        A('s_mov_b64 exec, 0x3ff')
        A('global_load_dword v72, v%d, s[%d:%d]', vT1, sPC, sPC + 1)
        A('s_mov_b64 exec, -1')
    A('%s:', skip)
    wtr_base(A)
    sel_frags(A, vID)
    tag_compute(A)
    if FAST:
        skip = A.label('NORG')
        A('s_cmp_eq_u32 s%d, 0', sTL)
        A('s_cbranch_scc1 %s', skip)
        A('s_getreg_b32 s%d, hwreg(HW_REG_XCC_ID)', sT2)
        A('s_and_b32 s%d, s%d, 15', sT2, sT2)
        A('s_add_u32 s%d, s%d, s%d', sT2, sT2, sTAG)
        A('v_mov_b32 v%d, s%d', vT0, sT2)
        A('s_lshl_b32 s%d, s%d, 7', sT, sXCD)
        A('s_lshl_b32 s%d, s%d, 2', sT2, sI)
        A('s_add_u32 s%d, s%d, s%d', sT, sT, sT2)
        A('s_add_u32 s%d, s%d, %d', sT, sT, FREG)
        A('s_mov_b64 exec, 1')
        A('buffer_store_dword v%d, v%d, s[%d:%d], s%d offen sc1', vT0, vO, SWS, SWS + 3, sT)
        A('s_mov_b64 exec, -1')
        A('%s:', skip)
    if MAP == 3:
        A('s_lshl_b32 s%d, s%d, 4', sT, sH)
        A('s_add_u32 s%d, s%d, s%d', sT, sT, sTB)
        A('s_lshl_b32 s%d, s%d, 12', sT, sT)
        A('s_lshl_b32 s%d, s%d, 11', sT2, sTL)
        A('s_add_u32 s%d, s%d, s%d', sT, sT, sT2)
        A('v_lshlrev_b32 v%d, 7, v%d', vT1, vL)
        A('s_mov_b64 exec, 0xffff')
        A('buffer_load_dword v73, v%d, s[%d:%d], s%d offen', vT1, SWS, SWS + 3, sT)
        A('s_mov_b64 exec, -1')
    colsum(A, sTL)
    A('s_waitcnt vmcnt(0)')
    set_stage(A, 1)
    stamp(A)
    A('s_lshl_b32 s%d, s%d, 11', sT2, sTL)
    A('v_add_u32 v%d, s%d, v%d', vTT, sT2, vO)
    A('v_add_u32 v%d, %d, v%d', vTT + 1, L_KVA, vTT)
    A('v_add_u32 v%d, %d, v%d', vTT + 2, L_KVV, vO)
    A('s_lshl_b32 s%d, s%d, 16', sXB, sH)
    A('s_add_u32 s%d, s%d, s%d', sXB, sXB, sT2)
    A('s_add_u32 s%d, s%d, %d', sXB, sXB, WS_KVP)
    A('s_lshl_b32 s%d, s%d, 12', sB, sTB)
    A('s_add_u32 s%d, s%d, s%d', sB, sB, sXB)
    A('s_lshl_b32 s%d, s%d, 1', sM0, sH)
    A('s_add_u32 s%d, s%d, s%d', sM0, sM0, sTL)
    A('s_lshl_b32 s%d, s%d, 6', sM0, sM0)
    A('s_add_u32 s%d, s%d, %d', sM0, sM0, F1)
    A('s_lshl_b32 s%d, s%d, 2', sFL, sTB)
    A('s_add_u32 s%d, s%d, s%d', sFL, sFL, sM0)
    if MAP == 3 and FAST:
        wait_lp(A, ('W', 1, 3), 2)
        fast_check(A)

    def kv_reads():
        for w in range(3):
            for q in range(2):
                A('ds_read_b128 %s, v%d offset:%d', v(vAF + 8 * w + 4 * q, 4), vTT + 1, w * 4096 + q * 1024)
                A('ds_read_b128 %s, v%d offset:%d', v(vVF + 8 * w + 4 * q, 4), vTT + 2, w * 4096 + q * 1024)
        return 12
    wait_lp(A, ('W', 1, 6), 2)
    wait_stage(A, C0 + 1)
    stamp(A)
    kv_reads()
    for q in range(2):
        A('ds_read_b128 %s, v%d offset:%d', v(vAF + 24 + 4 * q, 4), vTT + 1, 3 * 4096 + q * 1024)
        A('ds_read_b128 %s, v%d offset:%d', v(vVF + 24 + 4 * q, 4), vTT + 2, 3 * 4096 + q * 1024)
    for k in range(8):
        A('s_waitcnt lgkmcnt(%d)', 14 - 2 * k)
        mfma(A, vAC, vAF + 4 * k, vVF + 4 * k, k == 0)
    set_stage(A, 2)
    cvt8(A, vAF, vAC)
    pub_stores(A, [st4(vAF + 4 * q, sB, q * 1024) for q in range(2)], MAP == 3)
    pub_flag(A, sFL, MAP == 3)
    stamp(A)
    if MAP == 0 and E('SPOLL', 1):
        poll_scalar(A, sM0, 16)
    else:
        poll_global(A, sM0, 16)
    stamp(A)
    vG = [72 + 4 * k for k in range(16)] + [152 + 4 * k for k in range(16)]
    for p in range(16):
        for q in range(2):
            A('buffer_load_dwordx4 %s, v%d, s[%d:%d], s%d offen offset:%d sc1', v(vG[2 * p + q], 4), vO, SWS, SWS + 3,
              sXB, q * 1024)
        A('s_add_u32 s%d, s%d, 4096', sXB, sXB)
    for k in range(32):
        A('s_waitcnt vmcnt(%d)', 31 - k)
        mfma(A, vAC, vID + 4 * (k & 1), vG[k], k == 0)
    A('v_add_u32 v%d, %d, v%d', vTT, L_EX, vTT)
    cvt8(A, 72, vAC)
    for q in range(2):
        A('ds_write_b128 v%d, %s offset:%d', vTT, v(72 + 4 * q, 4), q * 1024)
    set_stage(A, 3)
    stamp(A)
    lend = A.label('LEND')
    A('s_cmp_ge_u32 s%d, 28', sI)
    A('s_cbranch_scc1 %s', lend)
    A('s_cmp_eq_u32 s%d, 0', sTL)
    A('s_cbranch_scc1 %s', lend)
    A('v_lshlrev_b32 v%d, 2, v%d', vXA, vL)
    A('v_add_u32 v%d, %d, v%d', vTT + 2, L_EX, vO)
    for gi in range(4):
        base = L_A + (gi & 1) * 32768
        wait_lp(A, ('h', gi, 0), 1 if gi == 0 else 0)
        for q in range(7):
            A('ds_read2st64_b32 v[%d:%d], v%d offset0:%d offset1:%d', 72 + 2 * q, 73 + 2 * q, vXA,
              base // 256 + 2 * q, base // 256 + 2 * q + 1)
        A('s_waitcnt lgkmcnt(0)')
        for q in range(1, 7):
            A('v_pk_add_f32 v[72:73], v[72:73], v[%d:%d]', 72 + 2 * q, 73 + 2 * q)
        A('v_add_f32 v%d, v72, v73', vTT)
        ln_finish(A, vTT, vTT + 1, vNM, vRS)
        hilo_m(A, vNM, 88, vT0)
        A('v_mul_f32 v90, v%d, v%d', vTT + 1, vRS)
        A('v_mul_f32 v91, 0x%x, v%d', LOG2E ^ 0x80000000, vRS)
        A('ds_write_b128 v%d, v[88:91] offset:%d', vTT + 2, gi * 1024)
        set_stage(A, 4 + gi)
    A('%s:', lend)
    A('s_waitcnt lgkmcnt(0)')
    stamp_flush(A)
    A('s_endpgm')


def gen_compute(A):
    vPH, vID, vWF, vAC, vPK = 40, 48, 56, 88, 120
    vMF, vCF = 136, 140
    vE = vWF
    vAC2 = vAC + 16
    vX = vXR
    A('s_setprio %d', E('CPRIO', 1))
    A('s_lshl_b32 s%d, s%d, 12', sM0, sWV)
    A('v_and_b32 v%d, 31, v%d', vT0, vL)
    A('v_lshlrev_b32 v%d, 7, v%d', vTT, vT0)
    A('v_add_u32 v%d, s%d, v%d', vTT, sM0, vTT)
    A('v_bfe_u32 v%d, v%d, 1, 3', vT0, vL)
    A('v_lshrrev_b32 v%d, 5, v%d', vT1, vL)
    A('v_xor_b32 v%d, v%d, v%d', vT0, vT0, vT1)
    for q in range(4):
        A('v_xor_b32 v%d, %d, v%d', vXA + q, 2 * q, vT0)
        A('v_lshl_add_u32 v%d, v%d, 4, v%d', vXA + q, vXA + q, vTT)
    wtr_base(A)
    for r in (vSM, vSM + 1, vSQ, vSQ + 1, vMF + 2, vMF + 3, vCF + 2, vCF + 3):
        A('v_mov_b32 v%d, 0', r)
    A('s_mov_b32 s%d, 0', sHI)
    A('s_mov_b32 s%d, -1', sHI + 1)
    A('s_bitcmp1_b32 s%d, 0', sH)
    A('s_cselect_b32 s%d, 0xf, 0xf0000000', sPADL)
    A('s_mov_b32 s%d, s%d', sPADL + 1, sPADL)
    A('s_cselect_b32 s%d, -1, 0', sZA)
    A('s_mov_b32 s%d, 0', sZA + 1)
    A('s_mov_b32 s%d, 0', sZB)
    A('s_cselect_b32 s%d, 0, -1', sZB + 1)
    A('s_cselect_b64 s[%d:%d], -1, 0', sODD, sODD + 1)
    sel_frags(A, vID)
    vPA = vRA
    A('v_bfe_u32 v%d, v%d, 2, 2', vT0, vL)
    A('v_lshrrev_b32 v%d, 5, v%d', vT1, vL)
    A('v_lshl_add_u32 v%d, v%d, 2, v%d', vT0, vT1, vT0)
    A('v_mul_u32_u24 v%d, 56, v%d', vT0, vT0)
    A('v_and_b32 v%d, 3, v%d', vT1, vL)
    A('v_bfe_u32 v%d, v%d, 4, 1', vTT, vL)
    A('v_lshl_add_u32 v%d, v%d, 2, v%d', vT1, vTT, vT1)
    A('v_min_u32 v%d, 6, v%d', vT1, vT1)
    A('v_lshl_add_u32 v%d, v%d, 3, v%d', vT0, vT1, vT0)
    A('s_and_b32 s%d, s%d, 1', sT, sH)
    A('s_mul_i32 s%d, s%d, 224', sT, sT)
    A('s_sub_u32 s%d, %d, s%d', sT, L_PHI, sT)
    A('v_add_u32 v%d, s%d, v%d', vPA, sT, vT0)
    tag_compute(A)

    def mm1(i, q, swap):
        buf = vWF + 16 * (i & 1)
        xf, wf = vX + (4 * i + q) * 4, buf + 4 * q
        if swap:
            mfma(A, vAC, xf, wf, i == 0 and q == 0)
        else:
            mfma(A, vAC, wf, xf, i == 0 and q == 0)

    def rw2(pi, i, q):
        buf = vWF + 16 * (i & 1)
        for z in range(2):
            A('ds_read_b64_tr_b16 v[%d:%d], v%d offset:%d', buf + 4 * q + 2 * z, buf + 4 * q + 2 * z + 1,
              vWA + pi, i * 4096 + q * 1024 + z * 256)

    vXH = vXD
    for q in range(4):
        A('v_add_u32 v%d, 0x10000, v%d', vXH + q, vXA + q)
    for i in range(7):
        stamp(A, 'k')
        wait_lp(A, ('x', i))
        stamp(A, 'k')
        for q in range(4):
            A('ds_read_b128 %s, v%d offset:%d', v(vX + (4 * i + q) * 4, 4), (vXA if i < 4 else vXH) + q,
              (i & 3) * 16384)
        if i in (1, 3):
            set_stage(A, (i + 1) // 2)
        if i > 0:
            A('s_waitcnt lgkmcnt(%d)', 5 if i in (1, 3) else 4)
            for q in range(4):
                mm1(i - 1, q, False)
        read_w(A, 0, i, vWF + 16 * (i & 1))
        A('s_waitcnt lgkmcnt(8)')
        for r in range(16):
            x = vX + 16 * i + r
            A('v_dot2c_f32_bf16 v%d, s%d, v%d', vSM + (r & 1), sONES, x)
            A('v_dot2c_f32_bf16 v%d, v%d, v%d', vSQ + (r & 1), x, x)
    set_stage(A, 3)
    A('s_waitcnt lgkmcnt(1)')
    for q in range(4):
        mm1(6, q, False)
    A('v_add_f32 v%d, v%d, v%d', vSM, vSM, vSM + 1)
    A('v_add_f32 v%d, v%d, v%d', vSQ, vSQ, vSQ + 1)
    A('v_permlane32_swap_b32 v%d, v%d', vSM, vSQ)
    A('v_add_f32 v%d, v%d, v%d', vT0, vSM, vSQ)
    ln_finish(A, vT0, vT1, vNM, vRS)
    hilo_m(A, vNM, vMF, vT0)
    A('v_mul_f32 v%d, 0x%x, v%d', vSC, LOG2E, vRS)

    def cf_phi_reads():
        A('ds_read_b64 v[%d:%d], v%d', vCF, vCF + 1, vCA)
        for sidx in range(2):
            for z in range(2):
                A('ds_read_b64_tr_b16 v[%d:%d], v%d offset:%d', vPH + 4 * sidx + 2 * z, vPH + 4 * sidx + 2 * z + 1,
                  vPA, (16 * sidx + 8 * z) * 56)
        return 5
    wait_word(A, 5, 1, body=cf_phi_reads)
    stamp(A)
    A('s_waitcnt lgkmcnt(4)')

    def feature(out, mid=None):
        mfma(A, vAC, vCF, vMF)
        if mid:
            mid()
        cvt8(A, vE, vAC)
        mfma(A, vAC, vPH, vE, True)
        mfma(A, vAC, vPH + 4, vE + 4)
        softmax_pm(A, vAC, vSC, vE, out, vTT)

    def mid_k():
        A('v_and_b32 v%d, 31, v%d', vT0, vL)
        A('s_lshl_b32 s%d, s%d, 7', sT, sWV)
        A('s_add_u32 s%d, s%d, %d', sT, sT, L_MISC + M_RSTD)
        A('v_lshl_add_u32 v%d, v%d, 2, s%d', vT0, vT0, sT)
        A('s_waitcnt lgkmcnt(0)')
        A('ds_write_b32 v%d, v%d', vT0, vRS)
        A('v_lshrrev_b32 v%d, 5, v%d', vRA, vL)
        A('v_lshl_add_u32 v%d, v%d, 4, s%d', vRA, vRA, sT)
        for r in (0, 1):
            A('v_cndmask_b32 v%d, v%d, 0, s[%d:%d]', vPH + r, vPH + r, sZA, sZA + 1)
            A('v_cndmask_b32 v%d, v%d, 0, s[%d:%d]', vPH + 6 + r, vPH + 6 + r, sZB, sZB + 1)

    feature(vPK, mid_k)
    for t, acc in ((0, vAC), (1, vAC2)):
        mfma(A, acc, vPK + 8 * t, vID, True)
        mfma(A, acc, vPK + 8 * t + 4, vID + 4)
    read_w(A, 1, 0, vWF)
    vOW = vXD
    A('v_add_u32 v%d, s%d, v%d', vOW, sM0, vO)
    A('v_add_u32 v%d, %d, v%d', vOW, L_KVA, vOW)
    cvt8(A, vPK, vAC)
    cvt8(A, vPK + 8, vAC2)
    for q in range(4):
        A('ds_write_b128 v%d, %s offset:%d', vOW, v(vPK + 4 * q, 4), q * 1024)
    for q in range(4):
        A('ds_read_b128 %s, v%d offset:%d', v(vAC2 + 4 * q, 4), vRA, q * 32)
    stamp(A)

    def gemm_part(pi, swap, at_last=None):
        A('s_waitcnt lgkmcnt(0)')
        for i in range(7):
            if i < 6:
                wait_lp(A, ('W', pi, i + 1))
            elif at_last:
                at_last()
            for q in range(4):
                if i > 0:
                    A('s_waitcnt lgkmcnt(%d)', 6 if i < 6 else (6 - 2 * q + (1 if at_last else 0)))
                mm1(i, q, swap)
                if i < 6:
                    rw2(pi, i + 1, q)

    def cf_read(pi):
        def f():
            A('ds_read_b64 v[%d:%d], v%d offset:%d', vCF, vCF + 1, vCA, pi * 512)
            return 1
        return f

    gemm_part(1, True)
    wait_word(A, 6, 1, body=cf_read(1))
    A('v_mov_b32 v%d, 0x%x', vT1, ONES)
    A('s_waitcnt lgkmcnt(0)')
    mfma(A, vAC, vMF, vCF)
    stamp(A)
    for r in range(0, 16, 2):
        A('v_pk_mul_f32 v[%d:%d], v[%d:%d], v[%d:%d]', vAC + r, vAC + r + 1, vAC + r, vAC + r + 1, vAC2 + r, vAC2 + r + 1)
    cvt8(A, vPK, vAC)
    for r in range(8):
        A('v_cndmask_b32 v%d, v%d, v%d, s[%d:%d]', vPK + r, vPK + r, vT1, sPADL, sPADL + 1)
    for q in range(2):
        A('ds_write_b128 v%d, %s offset:%d', vOW, v(vPK + 4 * q, 4), L_KVV - L_KVA + q * 1024)
    set_stage(A, C0 + 1)
    read_w(A, 2, 0, vWF)
    gemm_part(2, False, lambda: set_stage(A, C0 + 3))

    def cfq_reads():
        A('ds_read_b64 v[%d:%d], v%d offset:%d', vCF, vCF + 1, vCA, 2 * 512)
        A('ds_read_b32 v%d, v%d offset:%d', vPW + 1, vMI, M_FAST)
        return 2
    wait_word(A, 7, 8, body=cfq_reads)
    A('s_waitcnt lgkmcnt(0)')
    A('v_readfirstlane_b32 s%d, v%d', sFASTF, vPW + 1)
    feature(vPK)
    stamp(A)
    vW1A = vXA
    A('v_bfe_u32 v%d, v%d, 2, 2', vT0, vL)
    A('v_lshrrev_b32 v%d, 5, v%d', vT1, vL)
    A('v_lshl_add_u32 v%d, v%d, 2, v%d', vT1, vT1, vT0)
    A('v_lshlrev_b32 v%d, 8, v%d', vW1A, vT1)
    A('v_lshlrev_b32 v%d, 7, v%d', vWA, vT1)
    A('v_xor_b32 v%d, s%d, v%d', vT0, sWV, vT0)
    A('v_lshl_add_u32 v%d, v%d, 6, v%d', vW1A, vT0, vW1A)
    A('v_bfe_u32 v%d, v%d, 4, 1', vT1, vL)
    A('v_lshlrev_b32 v%d, 5, v%d', vT1, vT1)
    A('v_and_b32 v%d, 3, v%d', vT0, vL)
    A('v_lshl_add_u32 v%d, v%d, 3, v%d', vT1, vT0, vT1)
    A('v_add_u32 v%d, v%d, v%d', vW1A, vW1A, vT1)
    A('v_add_u32 v%d, %d, v%d', vW1A, L_B, vW1A)
    A('v_add_u32 v%d, 0x8000, v%d', vW1A + 1, vW1A)
    A('v_add_u32 v%d, v%d, v%d', vWA, vWA, vT1)
    A('v_bfe_u32 v%d, v%d, 3, 1', vT1, vL)
    A('v_lshl_add_u32 v%d, v%d, 6, v%d', vWA, vT1, vWA)

    def w1_copy(c):
        wait_lp(A, ('w1', c))
        for q in range(4):
            for z in range(2):
                off = w1_slot(c) - L_B + (16 * q + 8 * z) * 256
                base = vW1A
                if off >= 0x8000:
                    off -= 0x8000
                    base += 1
                r = vXR + (4 * c + q) * 4 + 2 * z
                A('ds_read_b64_tr_b16 v[%d:%d], v%d offset:%d', r, r + 1, base, off)

    idle = A.label('IDLE')
    A('s_cmp_ge_u32 s%d, 28', sI)
    A('s_cbranch_scc1 %s', idle)
    w1_copy(0)
    w1_copy(1)
    set_stage(A, C0 + 4)
    A('%s:', idle)
    A('s_lshl_b32 s%d, s%d, 2', sFL, sTB)
    A('s_add_u32 s%d, s%d, s%d', sFL, sFL, sWV)
    A('s_lshl_b32 s%d, s%d, 4', sFL, sFL)
    A('s_add_u32 s%d, s%d, s%d', sFL, sFL, sH)
    A('s_lshl_b32 s%d, s%d, 11', sB, sFL)
    A('s_add_u32 s%d, s%d, %d', sB, sB, WS_OB)
    A('s_lshl_b32 s%d, s%d, 2', sFL, sFL)
    A('s_add_u32 s%d, s%d, %d', sFL, sFL, F2)
    vEX = vXD + 1
    A('v_add_u32 v%d, %d, v%d', vEX, L_EX, vO)

    def ex_reads():
        for q in range(4):
            A('ds_read_b128 %s, v%d offset:%d', v(vWF + 4 * q, 4), vEX, q * 1024)
        return 4
    wait_stage(A, 3, (5, 6), body=ex_reads)
    stamp(A)
    for q in range(4):
        A('s_waitcnt lgkmcnt(%d)', 3 - q)
        mfma(A, vAC, vWF + 4 * q, vPK + 4 * q, q == 0)
    A('v_cndmask_b32 v%d, v%d, v%d, s[%d:%d]', vT0, vAC + 12, vAC, sODD, sODD + 1)
    A('v_mov_b32 v%d, v%d', vT1, vT0)
    A('v_permlane32_swap_b32 v%d, v%d', vT0, vT1)
    A('v_cndmask_b32 v%d, v%d, v%d, s[%d:%d]', vTT, vT1, vT0, sODD, sODD + 1)
    A('v_add_f32 v%d, 0x%x, v%d', vTT, 0x358637bd, vTT)
    A('v_rcp_f32 v%d, v%d', vTT, vTT)
    for r in range(0, 16, 2):
        A('v_pk_mul_f32 v[%d:%d], v[%d:%d], v[%d:%d] op_sel_hi:[1,0]', vAC + r, vAC + r + 1, vAC + r, vAC + r + 1, vTT,
          vTT + 1)
    cvt8(A, vPK, vAC)
    for r in (0, 1):
        A('v_cndmask_b32 v%d, v%d, 0, s[%d:%d]', vPK + r, vPK + r, sZA, sZA + 1)
        A('v_cndmask_b32 v%d, v%d, 0, s[%d:%d]', vPK + 6 + r, vPK + 6 + r, sZB, sZB + 1)
    pub_stores(A, [st4(vPK + 4 * q, sB, q * 1024) for q in range(2)], MAP == 0)
    A('s_and_b32 s%d, s%d, 1', sG, sWV)
    A('s_lshr_b32 s%d, s%d, 1', sKH, sWV)
    A('s_lshl_b32 s%d, s%d, 1', sT, sTQ)
    A('s_add_u32 s%d, s%d, s%d', sG, sG, sT)
    A('s_lshl_b32 s%d, s%d, 6', sT, sKH)
    A('v_xor_b32 v%d, s%d, v%d', vWA, sT, vWA)
    A('v_xor_b32 v%d, 64, v%d', vWA + 1, vWA)
    A('s_mul_i32 s%d, s%d, %d', sT, sKH, 224 * 128)
    A('v_add_u32 v%d, s%d, v%d', vWA + 2, sT, vWA)
    A('v_add_u32 v%d, s%d, v%d', vWA + 3, sT, vWA + 1)
    vSW, vSR, vPP, vXS = vXA + 2, vXA + 3, vSM, vSM + 1
    A('s_and_b32 s%d, s%d, 1', sC, sWV)
    A('s_lshl_b32 s%d, s%d, 12', sC, sC)
    A('v_add_u32 v%d, s%d, v%d', vSW, sC, vO)
    A('s_cmp_eq_u32 s%d, 0', sKH)
    A('s_cselect_b32 s%d, %d, %d', sT, L_SC0 >> 12, L_SC1 >> 12)
    A('s_cselect_b32 s%d, %d, %d', sT2, L_SC1 >> 12, L_SC0 >> 12)
    A('s_lshl_b32 s%d, s%d, 12', sT, sT)
    A('s_lshl_b32 s%d, s%d, 12', sT2, sT2)
    A('v_add_u32 v%d, s%d, v%d', vSR, sT2, vSW)
    A('v_add_u32 v%d, s%d, v%d', vSW, sT, vSW)
    A('v_xor_b32 v%d, 8, v%d', vPP, vMY)
    A('v_and_b32 v%d, 31, v%d', vXS, vL)
    A('v_lshlrev_b32 v%d, 7, v%d', vXS, vXS)
    A('v_lshrrev_b32 v%d, 5, v%d', vT1, vL)
    A('v_lshl_add_u32 v%d, v%d, 3, v%d', vXS, vT1, vXS)
    A('s_lshl_b32 s%d, s%d, 6', sT2, sKH)
    A('s_add_u32 s%d, s%d, s%d', sC, sC, sT2)
    A('v_add_u32 v%d, s%d, v%d', vXS, sC, vXS)
    A('s_lshl_b32 s%d, s%d, 15', sB, sG)
    A('s_lshl_b32 s%d, s%d, 14', sT, sKH)
    A('s_add_u32 s%d, s%d, s%d', sB, sB, sT)
    A('s_add_u32 s%d, s%d, %d', sB, sB, WS_OB)
    A('s_lshl_b32 s%d, s%d, 6', sC, sG)
    A('s_lshl_b32 s%d, s%d, 5', sT, sKH)
    A('s_add_u32 s%d, s%d, s%d', sC, sC, sT)
    A('s_add_u32 s%d, s%d, %d', sC, sC, F2)
    pub_flag(A, sFL, MAP == 0)
    set_stage(A, C0 + 5)
    stamp(A)
    fin = A.label('FIN')
    A('s_cmp_ge_u32 s%d, 28', sI)
    A('s_cbranch_scc1 %s', fin)

    vHP = 120
    vB2 = [40 + 4 * k for k in range(8)] + [224 + 4 * k for k in range(8)]
    vWF2 = 72
    wait_lp(A, ('wo', 6))
    for q in range(4):
        A('ds_read_b64 v[%d:%d], v%d offset:%d', vHP + 2 * q, vHP + 2 * q + 1, vXS, L_XRES + q * 16)
    A('v_mov_b32 v%d, 1', vT1)
    A('ds_write_b32 v%d, v%d offset:%d', vMY, vT1, M_RES)

    def wo_row(k):
        hh = k // 2
        return 28 * hh - 4 * (hh & 1) + 16 * (k & 1)

    def read_wo(k):
        buf = vWF2 + 8 * (k & 1)
        for nt in range(2):
            for z in range(2):
                A('ds_read_b64_tr_b16 v[%d:%d], v%d offset:%d', buf + 4 * nt + 2 * z, buf + 4 * nt + 2 * z + 1,
                  vWA + 2 + nt, L_A + (wo_row(k) + 8 * z) * 128)

    def unpack_hp():
        for r in range(8):
            A('v_lshlrev_b32 v%d, 16, v%d', vAC + 2 * r, vHP + r)
            A('v_and_b32 v%d, 0xffff0000, v%d', vAC + 2 * r + 1, vHP + r)

    read_wo(0)
    A('s_waitcnt lgkmcnt(4)')
    unpack_hp()
    if MAP == 3 and E('SPOLL', 1):
        poll_scalar(A, sC, 8)
    else:
        poll_global(A, sC, 8)
    stamp(A)
    for k in range(16):
        A('buffer_load_dwordx4 %s, v%d, s[%d:%d], s%d offen offset:%d sc1', v(vB2[k], 4), vO, SWS, SWS + 3, sB,
          (k & 3) * 1024)
        if (k & 3) == 3:
            A('s_add_u32 s%d, s%d, 4096', sB, sB)
    A('s_lshl_b32 s%d, s%d, 1', sT2, sNB)
    A('s_add_u32 s%d, s%d, s%d', sT2, sT2, sKH)
    A('s_lshl_b32 s%d, s%d, 15', sB, sG)
    A('s_add_u32 s%d, s%d, %d', sB, sB, WS_HB)
    A('s_lshl_b32 s%d, s%d, 8', sC, sT2)
    A('s_add_u32 s%d, s%d, s%d', sC, sC, sB)
    A('s_lshl_b32 s%d, s%d, 11', sT, sT2)
    A('s_add_u32 s%d, s%d, s%d', sB, sB, sT)
    A('s_add_u32 s%d, s%d, 4096', sB, sB)
    A('s_lshl_b32 s%d, s%d, 2', sFL, sT2)
    A('s_lshl_b32 s%d, s%d, 6', sT, sG)
    A('s_add_u32 s%d, s%d, s%d', sFL, sFL, sT)
    A('s_add_u32 s%d, s%d, %d', sFL, sFL, F3)
    lo, done = A.label('W'), A.label('WD')
    A('%s:', lo)
    A('ds_read_b32 v%d, v%d offset:%d', vPW, vPP, M_RES)
    A('s_waitcnt lgkmcnt(0)')
    A('v_readfirstlane_b32 s%d, v%d', sT, vPW)
    spin_guard(A, done)
    A('s_cmp_ge_u32 s%d, 1', sT)
    A('s_cbranch_scc0 %s', lo)
    A('%s:', done)
    for k in range(16):
        if k < 15:
            read_wo(k + 1)
        A('s_waitcnt vmcnt(%d) lgkmcnt(%d)', 15 - k, 4 if k < 15 else 0)
        buf = vWF2 + 8 * (k & 1)
        mfma(A, vAC + 16, buf + 4, vB2[k], k == 0)
        mfma(A, vAC, buf, vB2[k])
    stamp(A)

    def exchange(st):
        for q in range(4):
            A('ds_write_b128 v%d, %s offset:%d', vSW, v(vAC + 16 + 4 * q, 4), q * 1024)
        set_stage(A, st)
        lo, done = A.label('W'), A.label('WD')
        A('%s:', lo)
        A('ds_read_b32 v%d, v%d', vPW, vPP)
        for q in range(4):
            A('ds_read_b128 %s, v%d offset:%d', v(vWF2 + 4 * q, 4), vSR, q * 1024)
        A('s_waitcnt lgkmcnt(4)')
        A('v_readfirstlane_b32 s%d, v%d', sT, vPW)
        spin_guard(A, done)
        A('s_cmp_ge_u32 s%d, %d', sT, st)
        A('s_cbranch_scc0 %s', lo)
        A('%s:', done)
        for q in range(4):
            A('s_waitcnt lgkmcnt(%d)', 3 - q)
            for r in (0, 2):
                a0 = vAC + 4 * q + r
                A('v_pk_add_f32 v[%d:%d], v[%d:%d], v[%d:%d]', a0, a0 + 1, a0, a0 + 1, vWF2 + 4 * q + r,
                  vWF2 + 4 * q + r + 1)

    exchange(C0 + 6)
    set_stage(A, C0 + 7)
    cvt8(A, vHP, vAC)
    pub_stores(A, [st4(vHP + 4 * q, sB, q * 1024) for q in range(2)], True)
    A('v_mov_b32 v%d, 0', vTT)
    A('v_mov_b32 v%d, 0', vTT + 1)
    for r in range(8):
        A('v_dot2c_f32_bf16 v%d, s%d, v%d', vTT, sONES, vHP + r)
        A('v_dot2c_f32_bf16 v%d, v%d, v%d', vTT + 1, vHP + r, vHP + r)
    A('v_lshlrev_b32 v%d, 2, v%d', vTT + 2, vL)
    A('v_permlane32_swap_b32 v%d, v%d', vTT, vTT + 1)
    A('v_add_f32 v%d, v%d, v%d', vTT, vTT, vTT + 1)
    pub_stores(A, ['buffer_store_dword v%d, v%d, s[%d:%d], s%d offen%%s' % (vTT, vTT + 2, SWS, SWS + 3, sC)], True)
    for c in (2, 3):
        w1_copy(c)
    pub_flag(A, sFL, True)
    stamp(A)
    vCS = vSQ
    for c in (4, 5, 6):
        w1_copy(c)
    set_stage(A, C0 + 8)
    A('v_mov_b32 v%d, 0', vCS)
    A('v_mov_b32 v%d, 0', vCS + 1)
    for r in range(112):
        if r == 32:
            A('s_waitcnt lgkmcnt(0)')
        A('v_dot2c_f32_bf16 v%d, s%d, v%d', vCS + (r & 1), sONES, vXR + r)
    A('v_add_f32 v%d, v%d, v%d', vCS, vCS, vCS + 1)
    hilo_c(A, vCS, vCF, vT0)
    vBR = 40
    vE3 = 72
    vSTp = [128, 132]
    A('s_mul_i32 s%d, s%d, %d', sB, sTB3, 4 * 112)
    A('s_lshl_b32 s%d, s%d, 3', sT, sFB)
    A('s_add_u32 s%d, s%d, s%d', sB, sB, sT)
    A('s_lshl_b32 s%d, s%d, 1', sT, sWV)
    A('s_add_u32 s%d, s%d, s%d', sB, sB, sT)
    A('s_lshl_b32 s%d, s%d, 10', sB, sB)
    A('s_add_u32 s%d, s%d, %d', sB, sB, WS_H1B)
    A('s_lshl_b32 s%d, s%d, 10', sFL, sTB3)
    A('s_lshl_b32 s%d, s%d, 4', sT, sFB)
    A('s_add_u32 s%d, s%d, s%d', sFL, sFL, sT)
    A('s_lshl_b32 s%d, s%d, 2', sT, sWV)
    A('s_add_u32 s%d, s%d, s%d', sFL, sFL, sT)
    A('s_add_u32 s%d, s%d, %d', sFL, sFL, F4)

    def p3_epilogue(gi):
        B = sub(A)
        acc = vAC + 16 * (gi & 1)
        e = vE3
        sd, c1 = vSTp[gi & 1] + 2, vSTp[gi & 1] + 3
        for r in range(16):
            B('v_mul_f32 v%d, v%d, v%d', e + r, acc + r, c1)
            if r >= 1:
                B('v_exp_f32 v%d, v%d', e + r - 1, e + r - 1)
        B('v_exp_f32 v%d, v%d', e + 15, e + 15)
        for r in range(16):
            B('v_fma_f32 v%d, v%d, v%d, v%d', e + r, e + r, sd, sd)
            if r >= 1:
                B('v_rcp_f32 v%d, v%d', e + r - 1, e + r - 1)
        B('v_rcp_f32 v%d, v%d', e + 15, e + 15)
        for r in range(16):
            B('v_mul_f32 v%d, v%d, v%d', e + r, e + r, acc + r)
        cvt8(B, acc, e)
        blocks = [[l] for l in B.lines]
        B = sub(A)
        pub_stores(B, [st4(acc + 4 * q, sB, q * 1024) for q in range(2)], True)
        B('s_add_u32 s%d, s%d, %d', sB, sB, 112 * 1024)
        blocks.append(B.lines)
        return blocks

    def p3_flag(B):
        pub_flag(B, sFL, True)
        B('s_add_u32 s%d, s%d, 256', sFL, sFL)

    PRE = E('P3PRE', 6)
    for gi in range(4):
        base = L_A + (gi & 1) * 32768 + 4096
        acc = vAC + 16 * (gi & 1)
        M = sub(A)

        def rd(k):
            if (k + 4) % 8 == 0 or k == 0:
                wait_lp(M, ('h', gi, (k + 4) // 8))
            M('ds_read_b128 %s, v%d offset:%d', v(vBR + 4 * (k % 8), 4), vO, base + k * 1024)
        for k in range(PRE):
            rd(k)
        for k in range(28):
            if k + PRE < 28:
                rd(k + PRE)
            if k == 28 - PRE:
                def st_read():
                    M('ds_read_b128 %s, v%d offset:%d', v(vSTp[gi & 1], 4), vEX, gi * 1024)
                    return 1
                wait_word(M, 6, 4 + gi, body=st_read)
                M('s_waitcnt lgkmcnt(0)')
                set_stage(M, C0 + 9 + gi)
                M('v_mov_b32 v%d, v%d', vMF, vSTp[gi & 1])
                M('v_mov_b32 v%d, v%d', vMF + 1, vSTp[gi & 1] + 1)
            if k < 28 - PRE and k % 2 == 0:
                M('s_waitcnt lgkmcnt(%d)', PRE - 1)
            if k in (0, 12):
                stamp(M, 'p3')
            if k == 4 and gi >= 2:
                p3_flag(M)
            mfma(M, acc, vXR + 4 * k, vBR + 4 * (k % 8), k == 0)
        mfma(M, acc, vCF, vMF)
        A.lines += merge(M.lines, p3_epilogue(gi - 1) if gi > 0 else [], 1, 27)
        if gi == 0:
            stamp(A)
        stamp(A, 'p3')
    stamp(A)
    for j, b in enumerate(p3_epilogue(3)):
        if j == 40:
            p3_flag(A)
        A.lines += b
    NB = 28
    vWF4 = 40
    A('s_mul_i32 s%d, s%d, %d', sB, sG, 112 * 1024)
    A('s_mul_i32 s%d, s%d, %d', sT, sKH, 56 * 1024)
    A('s_add_u32 s%d, s%d, s%d', sB, sB, sT)
    A('s_add_u32 s%d, s%d, %d', sB, sB, WS_H1B)
    A('s_lshl_b32 s%d, s%d, 8', sC, sG)
    A('s_mul_i32 s%d, s%d, 112', sT, sKH)
    A('s_add_u32 s%d, s%d, s%d', sC, sC, sT)
    A('s_add_u32 s%d, s%d, %d', sC, sC, F4)

    def w2_base(c):
        A('s_cmp_eq_u32 s%d, 0', sKH)
        A('s_cselect_b32 s%d, %d, %d', sT, w2_slot(2 * c) >> 12, w2_slot(2 * c + 1) >> 12)
        A('s_lshl_b32 s%d, s%d, 12', sT, sT)
        A('v_add_u32 v%d, s%d, v%d', vWA + 2, sT, vWA)
        A('v_add_u32 v%d, s%d, v%d', vWA + 3, sT, vWA + 1)

    def read_w2(k):
        if k % 4 == 0:
            wait_lp(A, ('w2', 2 * (k // 4) + 1))
            w2_base(k // 4)
        buf = vWF4 + 8 * (k & 3)
        for nt in range(2):
            for z in range(2):
                A('ds_read_b64_tr_b16 v[%d:%d], v%d offset:%d', buf + 4 * nt + 2 * z, buf + 4 * nt + 2 * z + 1,
                  vWA + 2 + nt, ((k % 4) * 16 + 8 * z) * 128)

    def issue_b(k):
        A('buffer_load_dwordx4 %s, v%d, s[%d:%d], s%d offen offset:%d sc1', v(vXR + 4 * (k % NB), 4), vO, SWS, SWS + 3,
          sB, (k & 3) * 1024)
        if (k & 3) == 3:
            A('s_add_u32 s%d, s%d, 4096', sB, sB)

    unpack_hp()
    read_w2(0)
    read_w2(1)
    p3_flag(A)
    stamp(A)
    poll_global(A, sC, 28)
    stamp(A)
    INFL = E('P4INFL', 10)
    for k in range(INFL):
        issue_b(k)
    issued = INFL
    for k in range(56):
        if k + 2 < 56:
            read_w2(k + 2)
        A('s_waitcnt vmcnt(%d) lgkmcnt(%d)', issued - k - 1, 8 if k + 2 < 56 else (4 if k + 1 < 56 else 0))
        if k % 4 == 0:
            stamp(A, 'p4')
        if k % 4 == 3 and (k // 4) <= 5:
            set_stage(A, C0 + 13 + k // 4)
        buf = vWF4 + 8 * (k & 3)
        mfma(A, vAC + 16, buf + 4, vXR + 4 * (k % NB), k == 0)
        mfma(A, vAC, buf, vXR + 4 * (k % NB))
        if issued < 56:
            issue_b(issued)
            issued += 1
    stamp(A)
    A('v_and_b32 v%d, 31, v%d', vTT, vL)
    A('v_mul_u32_u24 v%d, 896, v%d', vTT, vTT)
    A('v_lshrrev_b32 v%d, 5, v%d', vT1, vL)
    A('v_lshl_add_u32 v%d, v%d, 4, v%d', vTT, vT1, vTT)
    A('s_mul_i32 s%d, s%d, %d', sB, sG, 32 * 896)
    A('s_lshl_b32 s%d, s%d, 7', sT2, sNB)
    A('s_add_u32 s%d, s%d, s%d', sB, sB, sT2)
    A('s_lshl_b32 s%d, s%d, 6', sT2, sKH)
    A('s_add_u32 s%d, s%d, s%d', sB, sB, sT2)
    exchange(C0 + 27)
    cvt8(A, vHP, vAC)
    for q in range(2):
        A('v_permlane32_swap_b32 v%d, v%d', vHP + 4 * q, vHP + 4 * q + 2)
        A('v_permlane32_swap_b32 v%d, v%d', vHP + 4 * q + 1, vHP + 4 * q + 3)
    for q in range(2):
        A('buffer_store_dwordx4 %s, v%d, s[%d:%d], s%d offen offset:%d', v(vHP + 4 * q, 4), vTT, SOUT, SOUT + 3, sB,
          q * 32)
    A('s_or_b32 s%d, s2, s%d', sT, sWV)
    A('s_cmp_lg_u32 s%d, 0', sT)
    A('s_cbranch_scc1 %s', fin)
    A('s_mov_b32 s%d, %d', sT, FEP)
    A('s_mov_b64 exec, 1')
    A('buffer_store_dword v%d, v%d, s[%d:%d], s%d offen', vTAG, vO, SWS, SWS + 3, sT)
    A('s_mov_b64 exec, -1')
    A('%s:', fin)
    stamp_flush(A)


def gen():
    A = Asm()
    name = NAME + '_kernel'
    A.lines += ['.p2align 8', '.globl %s' % name, '.type %s,@function' % name, '%s:' % name]
    end = A.label('END')
    A('s_getpc_b64 s[%d:%d]', sPC, sPC + 1)
    A('s_cmp_ge_u32 s2, 256')
    A('s_cbranch_scc1 %s', end)
    A('s_load_dwordx16 s[64:79], s[0:1], 0')
    A('s_load_dwordx2 s[80:81], s[0:1], 72')
    A('s_mov_b32 s%d, 0x400000', sSPIN)
    A('s_and_b32 s%d, s2, 7', sXCD)
    A('s_lshr_b32 s%d, s2, 3', sI)
    if MAP == 0:
        perm = [2, 4, 6, 9, 11, 13, 0, 1, 3, 5, 7, 8, 10, 12, 14, 15]
        lo = sum(perm[i] << (4 * i) for i in range(8))
        hi = sum(perm[8 + i] << (4 * i) for i in range(8))
        A('s_mov_b32 s%d, 0x%x', sHI, lo)
        A('s_mov_b32 s%d, 0x%x', sHI + 1, hi)
        A('s_lshr_b32 s%d, s%d, 1', sT, sI)
        A('s_lshl_b32 s%d, s%d, 2', sT, sT)
        A('s_lshr_b64 s[%d:%d], s[%d:%d], s%d', sHI, sHI + 1, sHI, sHI + 1, sT)
        A('s_and_b32 s%d, s%d, 15', sH, sHI)
        A('s_and_b32 s%d, s%d, 1', sTB, sI)
        A('s_lshl_b32 s%d, s%d, 1', sT, sXCD)
        A('s_add_u32 s%d, s%d, s%d', sTB, sTB, sT)
    else:
        A('s_lshr_b32 s%d, s%d, 1', sTB, sI)
        A('s_and_b32 s%d, s%d, 1', sH, sI)
        A('s_lshl_b32 s%d, s%d, 1', sT, sXCD)
        A('s_add_u32 s%d, s%d, s%d', sH, sH, sT)
    A('s_add_u32 s%d, s%d, s%d', sC0, sXCD, sI)
    A('s_mul_i32 s%d, s%d, 37', sT, sC0)
    A('s_lshr_b32 s%d, s%d, 8', sT, sT)
    A('s_mul_i32 s%d, s%d, 7', sT, sT)
    A('s_sub_u32 s%d, s%d, s%d', sC0, sC0, sT)
    A('s_mul_i32 s%d, s%d, 37', sTQ, sI)
    A('s_lshr_b32 s%d, s%d, 8', sTQ, sTQ)
    A('s_mul_i32 s%d, s%d, 7', sNB, sTQ)
    A('s_sub_u32 s%d, s%d, s%d', sNB, sI, sNB)
    A('s_lshr_b32 s%d, s%d, 1', sTB3, sTQ)
    A('s_mul_i32 s%d, s%d, 14', sFB, sTB3)
    A('s_sub_u32 s%d, s%d, s%d', sFB, sI, sFB)
    A('s_lshl_b32 s%d, s%d, 2', sT, sXCD)
    A('s_add_u32 s%d, s%d, s%d', sTQ, sTQ, sT)
    A('s_lshl_b32 s%d, s%d, 1', sT, sXCD)
    A('s_add_u32 s%d, s%d, s%d', sTB3, sTB3, sT)
    A('v_lshrrev_b32 v%d, 6, v0', vL)
    A('v_readfirstlane_b32 s%d, v%d', sWV, vL)
    A('v_lshlrev_b32 v%d, 2, v%d', vMY, vL)
    A('v_add_u32 v%d, %d, v%d', vMY, L_MISC, vMY)
    A('v_and_b32 v%d, 63, v0', vL)
    A('v_lshlrev_b32 v%d, 4, v%d', vO, vL)
    A('v_mov_b32 v%d, %d', vMI, L_MISC)
    A('v_mov_b32 v%d, 0', vT0)
    A('ds_write_b32 v%d, v%d', vMY, vT0)
    A('ds_write_b32 v%d, v%d offset:%d', vMY, vT0, M_RES)
    A('ds_write_b32 v%d, v%d offset:%d', vMY, vT0, M_FAST)
    A('s_mov_b32 s%d, 0', sPROG)
    A('s_mov_b32 s%d, 0', sFASTF)
    A('s_mov_b32 s%d, 0x%x', sONES, ONES)
    A('s_waitcnt lgkmcnt(0)')
    A('s_barrier')
    A('s_mov_b32 s%d, 0', sPROG1)
    A('s_add_u32 s82, s80, %d', FEP)
    A('s_addc_u32 s83, s81, 0')
    A('s_load_dword s%d, s[82:83], 0', sTAG)
    srd(A, SX, 64, S * D * 2)
    srd(A, SW, 66, D * 3 * D * 2)
    srd(A, SP, 68, H * DH * DH * 2)
    srd(A, SWO, 70, D * D * 2)
    srd(A, SW1, 74, D * F * 2)
    srd(A, SW2, 76, D * F * 2)
    srd(A, SOUT, 78, S * D * 2)
    srd(A, SWS, 80, WS_SIZE)
    _st['n'] = 0
    stamp(A, 'all')
    for i in range(7):
        LP[('x', i)] = (7, 1 + i)
    for gi in range(4):
        for q in range(4):
            LP[('h', gi, q)] = (7, 9 + 4 * gi + q)
    l0, l1, l2 = A.label('H0'), A.label('H1'), A.label('H23')
    A('s_cmp_eq_u32 s%d, 4', sWV)
    A('s_cbranch_scc1 %s', l0)
    A('s_cmp_eq_u32 s%d, 7', sWV)
    A('s_cbranch_scc1 %s', l1)
    A('s_cmp_ge_u32 s%d, 5', sWV)
    A('s_cbranch_scc1 %s', l2)
    parts = {}
    for lab, fn in ((l0, gen_h0), (l1, gen_h1), (l2, gen_h23)):
        B = sub(A)
        B._lab = A._lab + 100000
        A._lab += 200000
        B('%s:', lab)
        B('s_nop 4')
        HELP['on'] = True
        prio(B, 1)
        _st['n'] = 1
        fn(B)
        HELP['on'] = False
        parts[lab] = B.lines
    _st['n'] = 1
    gen_compute(A)
    A('%s:', end)
    A('s_endpgm')
    for lab in (l0, l1, l2):
        A.lines += parts[lab]
    return A, name


def main():
    out = sys.argv[1] if len(sys.argv) > 1 else 'cdna_kernels/%s.s' % NAME
    A, name = gen()
    lines, nn = fix_hazards(A.lines)
    hdr = ['; generated by gen/gen4.py (hand-written generator script)',
           '; @launch grid=(256,1,1) block=(512,1,1) lds=%d' % LDS_SIZE,
           '.amdgcn_target "amdgcn-amd-amdhsa--gfx950"', '.text']
    tail = ['.p2align 8', '.fill 2048, 4, 0xbf800000', '.section .rodata,"a"', '.p2align 6', '''.amdhsa_kernel %s
  .amdhsa_next_free_vgpr 256
  .amdhsa_next_free_sgpr 102
  .amdhsa_accum_offset 256
  .amdhsa_group_segment_fixed_size 0
  .amdhsa_kernarg_size 80
  .amdhsa_user_sgpr_count 2
  .amdhsa_user_sgpr_kernarg_segment_ptr 1
  .amdhsa_system_sgpr_workgroup_id_x 1
  .amdhsa_float_denorm_mode_32 3
  .amdhsa_float_denorm_mode_16_64 3
.end_amdhsa_kernel''' % name]
    open(out, 'w').write('\n'.join(hdr + lines + tail) + '\n')
    print('wrote', out, 'lines', len(lines), 'nops', nn)


if __name__ == '__main__':
    main()
```

```python
import re

REG_RE = re.compile(r'(?<![\w.])([vas])(\d+)(?![\w\[])|(?<![\w.])([vas])\[(\d+):(\d+)\]')
TRANS = ('v_exp_f32', 'v_log_f32', 'v_rcp_f32', 'v_rsq_f32', 'v_sqrt_f32', 'v_sin_f32', 'v_cos_f32')


def regs_of(tok):
    out = []
    for m in REG_RE.finditer(tok):
        if m.group(1):
            out.append((m.group(1), int(m.group(2))))
        else:
            for i in range(int(m.group(4)), int(m.group(5)) + 1):
                out.append((m.group(3), i))
    t = tok.strip()
    if re.search(r'\bvcc\b', t):
        out += [('s', 106), ('s', 107)]
    if re.search(r'\bvcc_lo\b', t):
        out += [('s', 106)]
    if re.search(r'\bvcc_hi\b', t):
        out += [('s', 107)]
    if re.search(r'\bexec\b', t):
        out += [('s', 126), ('s', 127)]
    if re.search(r'\bm0\b', t):
        out += [('s', 124)]
    return out


def split_ops(rest):
    ops, depth, cur = [], 0, ''
    for ch in rest:
        if ch in '[(':
            depth += 1
        if ch in '])':
            depth -= 1
        if ch == ',' and depth == 0:
            ops.append(cur.strip())
            cur = ''
        else:
            cur += ch
    if cur.strip():
        ops.append(cur.strip())
    return ops


class Ins:
    def __init__(self, text):
        self.text = text
        code = text.split(';')[0].strip()
        self.is_label = code.endswith(':')
        self.is_dir = code.startswith('.') and not self.is_label
        self.empty = (code == '')
        self.op = ''
        self.w = set()
        self.r = set()
        self.kind = 'none'
        self.srcc = set()
        self.ab = set()
        self.passes = 0
        self.states = 1
        self.widestore = set()
        self.ldsdma = False
        if self.is_label or self.is_dir or self.empty:
            self.states = 0
            return
        parts = code.split(None, 1)
        op = parts[0]
        for suf in ('_e32', '_e64'):
            if op.endswith(suf):
                op = op[:-4]
        self.op = op
        ops = split_ops(parts[1]) if len(parts) > 1 else []
        R = [regs_of(o) for o in ops]
        flat = lambda l: set(x for y in l for x in y)
        if op == 's_nop':
            self.kind = 'salu'
            self.states = int(ops[0], 0) + 1
        elif op.startswith('v_mfma'):
            self.kind = 'mfma'
            self.w = set(R[0])
            self.ab = flat(R[1:3])
            self.srcc = set(R[3])
            self.r = self.ab | self.srcc
            self.passes = 8 if '32x32x16' in op else 4
            assert '32x32x16' in op or '16x16x32' in op, op
        elif op.startswith('ds_'):
            self.kind = 'ds'
            if op.startswith('ds_read') or '_rtn' in op or 'permute' in op or 'swizzle' in op:
                self.w = set(R[0])
                self.r = flat(R[1:])
            else:
                self.r = flat(R)
        elif op.startswith('buffer_') or op.startswith('global_'):
            self.kind = 'vmem'
            islds = bool(re.search(r'\blds\b', code)) or 'load_lds' in op
            if op in ('buffer_wbl2', 'buffer_inv'):
                pass
            elif islds:
                self.r = flat(R) | {('s', 124)}
                self.ldsdma = True
            elif '_load' in op:
                self.w = set(R[0])
                self.r = flat(R[1:])
                if 'd16' in op:
                    self.r |= set(R[0])
            elif 'atomic' in op:
                self.r = flat(R)
                if re.search(r'\bsc0\b', code):
                    self.w = set(R[0])
            else:
                self.r = flat(R)
                if op.endswith('x4') or op.endswith('x3'):
                    self.widestore = set(R[0]) if op.startswith('buffer_') else set(R[1])
        elif op.startswith('s_'):
            self.kind = 'salu'
            if op.startswith('s_cmp') or op.startswith('s_cbranch') or op in (
                    's_branch', 's_waitcnt', 's_barrier', 's_endpgm', 's_sleep', 's_setprio', 's_bitcmp0_b32',
                    's_bitcmp1_b32', 's_setpc_b64'):
                self.r = flat(R)
            else:
                self.w = set(R[0]) if R else set()
                self.r = flat(R[1:])
                if 'saveexec' in op:
                    self.w |= {('s', 126), ('s', 127)}
        elif op.startswith('v_'):
            self.kind = 'valu'
            self.w = set(R[0])
            self.r = flat(R[1:])
            if op.startswith('v_permlane') and 'swap' in op:
                self.w = flat(R[:2])
                self.r = flat(R[:2])
            if op in ('v_fmac_f32', 'v_dot2c_f32_bf16', 'v_writelane_b32'):
                self.r |= set(R[0])
            if op.startswith('v_add_co') or op.startswith('v_sub_co') or op.startswith('v_addc_co'):
                self.w = flat(R[:2])
                self.r = flat(R[2:])
            if op.startswith('v_cmpx'):
                self.w |= {('s', 126), ('s', 127)}
        else:
            raise ValueError('unknown instruction: ' + text)
        self.dpp = ('_dpp' in op) or (' quad_perm' in code) or (' row_' in code)
        self.trans = op in TRANS
        self.dot = op.startswith('v_dot')


def need(p, c):
    n = 0
    vw = {x for x in p.w if x[0] in 'va'}
    sw = {x for x in p.w if x[0] == 's'}
    if p.kind == 'valu':
        if c.kind == 'mfma' and (vw & c.r):
            n = max(n, 3 if p.dot else 2)
        if c.kind == 'valu':
            if p.trans and not c.trans and (vw & c.r):
                n = max(n, 1)
            if c.op.startswith('v_permlane') and (vw & c.r):
                n = max(n, 2)
            if c.op in ('v_readfirstlane_b32', 'v_readlane_b32') and (vw & c.r):
                n = max(n, 1)
            if c.dpp and (vw & c.r):
                n = max(n, 2)
            if sw & c.r:
                n = max(n, 4 if c.op in ('v_readlane_b32', 'v_writelane_b32') else 2)
            if 'sdwa' in p.op and (vw & (c.r | c.w)):
                n = max(n, 1)
            if p.dot and (vw & (c.r | c.w)):
                if c.op == p.op and p.op == 'v_dot2c_f32_bf16' and c.w == p.w:
                    pass
                else:
                    n = max(n, 3)
        if c.kind in ('vmem', 'ds') and p.dot and (vw & c.r):
            n = max(n, 3)
        if c.kind == 'vmem' and (sw & c.r):
            n = max(n, 5)
        if ('s', 126) in p.w:
            if c.kind == 'mfma':
                n = max(n, 4)
            if c.kind == 'valu' and (c.dpp):
                n = max(n, 5)
            if c.kind == 'valu' and (c.op.startswith('v_permlane') or c.op.startswith('v_read') or c.op.startswith('v_writelane')):
                n = max(n, 4)
    if p.kind == 'mfma':
        big = {8: 12, 4: 8}[p.passes]
        if c.kind == 'mfma':
            if p.w & c.ab:
                n = max(n, big)
            if p.w & c.srcc:
                if not (p.w == c.srcc and p.passes == c.passes):
                    n = max(n, {8: 10, 4: 6}[p.passes])
            elif p.w & c.w:
                n = max(n, big)
        elif c.kind in ('valu', 'vmem', 'ds'):
            if p.w & (c.r | c.w):
                n = max(n, big)
            if c.kind == 'valu' and (p.srcc & c.w):
                n = max(n, {8: 7, 4: 3}[p.passes])
    if p.kind == 'salu' and ('s', 124) in p.w and c.ldsdma:
        n = max(n, 1)
    if p.widestore and (p.widestore & c.w):
        n = max(n, 2 if c.kind == 'valu' else 1)
    return n


def fix_hazards(lines, window=40):
    out = []
    hist = []
    nins = 0
    open_regions = []
    seen = set()
    for t in lines:
        c = Ins(t)
        if c.states == 0:
            if c.is_label:
                lab = t.split(';')[0].strip()[:-1]
                seen.add(lab)
                open_regions = [r for r in open_regions if r != lab]
            out.append(t)
            continue
        c.regions = frozenset(open_regions)
        req = 0
        dist = 0
        for p in reversed(hist):
            k = need(p, c) - dist
            if k > req:
                req = k
            if p.regions <= c.regions:
                dist += p.states
            if dist >= 20:
                break
        while req > 0:
            k = min(req, 16)
            nop = 's_nop %d' % (k - 1)
            out.append('  ' + nop)
            n = Ins(nop)
            n.regions = c.regions
            hist.append(n)
            nins += 1
            req -= k
        out.append(t)
        hist.append(c)
        if c.op.startswith('s_cbranch') or c.op == 's_branch':
            tgt = t.split(';')[0].split()[-1]
            if tgt not in seen:
                open_regions.append(tgt)
        if c.op in ('s_endpgm',):
            hist = []
            open_regions = []
    return out, nins


class Asm:
    def __init__(self):
        self.lines = []
        self._lab = 0

    def __call__(self, fmt, *a):
        s = fmt % a if a else fmt
        for l in s.split('\n'):
            l = l.strip()
            if l:
                self.lines.append(l if l.endswith(':') else '  ' + l)

    _n = [0]

    def label(self, base='L'):
        Asm._n[0] += 1
        return '%s_%d' % (base, Asm._n[0])

    def comment(self, s):
        self.lines.append('  ; ' + s)


def v(i, n=1):
    return 'v%d' % i if n == 1 else 'v[%d:%d]' % (i, i + n - 1)


def a(i, n=1):
    return 'a%d' % i if n == 1 else 'a[%d:%d]' % (i, i + n - 1)


def s(i, n=1):
    return 's%d' % i if n == 1 else 's[%d:%d]' % (i, i + n - 1)


def interleave(main, fill, per):
    out = []
    k = 0
    for l in main:
        out.append(l)
        if l.strip().startswith('v_mfma'):
            out += fill[k:k + per]
            k += per
    out += fill[k:]
    return out
```

```python
import sys
import os
sys.path.insert(0, os.path.dirname(os.path.abspath(__file__)))
from asmlib import Asm, fix_hazards, v

NAME = 'sequential_preLN__linear_kernel_hedgehog__dense_activation_silu__prompt'
S, D, H, DH, F = 2048, 448, 16, 28, 1792
MB = 1 << 20
E = lambda k, d: int(os.environ.get(k, d))
STAMPS = E('STAMPS', 0)
MAP = E('MAP', 0)
FAST = E('FAST', 1)
CODEPF = E('CODEPF', 1)
WARM = E('WARM', 1)
WT1 = E('WT1', 0)
WTO = E('WTO', 0)
TOUCHAT = E('TOUCHAT', 0)
WS_KVP = 0
WS_OB = 2 * MB
WS_HB = 4 * MB
WS_H1B = 8 * MB
WS_FLG = 16 * MB
F1, F2, F3, F4, FREG, FEP = WS_FLG, WS_FLG + 0x1000, WS_FLG + 0x3000, WS_FLG + 0x5000, WS_FLG + 0x9000, WS_FLG + 0xA000
WS_STAMP = 17 * MB
WS_SIZE = 18 * MB
LOG2E = 0x3fb8aa3b
ONES = 0x3f803f80
MFMA = 'v_mfma_f32_32x32x16_bf16'
L_X = 0
L_WP = (114688, 0, 32768)
L_KVA, L_KVV = 65536, 81920
L_A = 98304
L_SC0, L_SC1 = 49152, 57344
L_XRES = L_SC0
B16 = (0, 16384, 65536, 81920, 32768)
L_PHI, L_EX, L_CF, L_MISC = 159744 - 2048 + 2048 + 1536, 155648, 159744, 163328
LDS_SIZE = 163840
M_PW, M_RES, M_FAST = 0, 32, 64
L_RSTD = L_EX

SX, SW, SP, SWS, SWO, SW1, SW2, SOUT = 12, 16, 20, 24, 28, 32, 36, 40
sTB, sH, sWV, sC0, sPROG, sT, sT2, sONES, sC, sTAG, sFASTF, sI, sXCD = 44, 45, 46, 47, 48, 49, 50, 51, 52, 53, 54, 55, 3
sHI, sPADL, sZA, sZB, sODD, sPC = 4, 6, 8, 10, 92, 94
sTQ, sNB, sTB3, sFB, sG, sKH, sB, sXB, sM0, sSPIN = 96, 97, 98, 99, 100, 101, 88, 89, 91, 90
sPROG1, sFL = 0, 1
vL, vMI, vT0, vT1, vO = 1, 2, 3, 4, 5
vTAG, vMY = 6, 7
vTT = 8
vXA = 12
vWA = 16
vSM, vSQ = 20, 22
vNM, vRS, vSC, vRA = 24, 25, 26, 27
vXD = 28
vPW = 32
vCA = 36
vXR = 144
vPK_ = 37
CACHE = {4: sPROG, 7: sPROG1, 6: sC0}

_st = {'n': 0}
C0 = 3
HELP = {'on': False}


def prio(A, hi):
    if HELP['on'] and E('HPRIO', 2):
        A('s_setprio %d', E('HPRIO', 2) if hi else 0)
LP = {}


STSET = os.environ.get('STSET', 'main')


DBGT = E('DBGT', 0)


def stamp(A, tag='main'):
    if DBGT and not HELP['on'] and tag in ('main', 'all'):
        A('s_memrealtime s[%d:%d]', 56 + 2 * _st['n'], 57 + 2 * _st['n'])
        _st['n'] += 1
        return
    if STAMPS and (tag == STSET or tag == 'all' or (HELP['on'] and tag == 'main')):
        assert _st['n'] < 15, 'too many stamps'
        A('s_memtime s[%d:%d]', 56 + 2 * _st['n'], 57 + 2 * _st['n'])
        _st['n'] += 1


def stamp_flush(A):
    if DBGT and not HELP['on']:
        A('s_waitcnt vmcnt(0)')
        stamp(A, 'all')
        skip = A.label('DS')
        A('s_waitcnt vmcnt(0) lgkmcnt(0)')
        A('s_cmp_ge_u32 s%d, 28', sI)
        A('s_cbranch_scc1 %s', skip)
        A('s_mov_b64 exec, 1')
        A('v_mov_b32 v1, 0')
        A('s_not_b32 s4, s56')
        A('v_mov_b32 v2, s4')
        A('global_atomic_umax v1, v2, s[86:87] offset:60')
        for i in range(_st['n']):
            A('v_mov_b32 v%d, s%d', 8 + i, 56 + 2 * i)
            A('global_atomic_umax v1, v%d, s[86:87] offset:%d', 8 + i, 4 * i)
        A('%s:', skip)
        return
    if STAMPS:
        A('s_waitcnt vmcnt(0)')
        stamp(A, 'all')
        A('s_memrealtime s[4:5]')
        A('s_waitcnt vmcnt(0) lgkmcnt(0)')
        A('s_sub_u32 s4, s4, s86')
        A('s_lshl_b32 s4, s4, 20')
        A('s_and_b32 s86, s86, 0xfffff')
        A('s_or_b32 s86, s86, s4')
        A('s_lshl_b32 s%d, s2, 3', sT)
        A('s_add_u32 s%d, s%d, s%d', sT, sT, sWV)
        A('s_lshl_b32 s%d, s%d, 6', sT, sT)
        A('s_add_u32 s%d, s%d, %d', sT, sT, WS_STAMP)
        A('s_mov_b64 exec, 1')
        A('v_mov_b32 v1, 0')
        for i in range(16):
            if i < _st['n']:
                A('v_mov_b32 v2, s%d', 56 + 2 * i)
            elif i == 15:
                A('v_mov_b32 v2, s86')
            else:
                A('v_mov_b32 v2, 0')
            A('buffer_store_dword v2, v1, s[%d:%d], s%d offen offset:%d', SWS, SWS + 3, sT, 4 * i)
            A('s_nop 1')


def srd(A, d, ptr, size):
    A('s_mov_b32 s%d, s%d', d, ptr)
    A('s_and_b32 s%d, s%d, 0xffff', d + 1, ptr + 1)
    A('s_mov_b32 s%d, 0x%x', d + 2, size)
    A('s_mov_b32 s%d, 0x20000', d + 3)


COLD = []


def cold_block(A, fn):
    ent, back = A.label('CE'), A.label('CB')
    B = sub(A)
    B('%s:', ent)
    B('s_nop 15')
    fn(B, back)
    B('s_nop 7')
    B('s_branch %s', back)
    COLD.extend(B.lines)
    return ent, back


def spin_guard(A, done):
    A('s_sub_u32 s%d, s%d, 1', sSPIN, sSPIN)
    A('s_cbranch_scc1 %s', done)


def wait_word(A, w, n, cache=None, sleep=0, body=None):
    sd = sT if cache is None else cache

    def loop(B, done, body=None):
        lo = B.label('W')
        prio(B, 0)
        B('%s:', lo)
        if sleep:
            B('s_sleep %d', sleep)
        B('ds_read_b32 v%d, v%d offset:%d', vPW, vMI, M_PW + 4 * w)
        k = body() if body else 0
        B('s_waitcnt lgkmcnt(%d)', k)
        B('v_readfirstlane_b32 s%d, v%d', sd, vPW)
        spin_guard(B, done)
        B('s_cmp_ge_u32 s%d, %d', sd, n)
        B('s_cbranch_scc0 %s', lo)
        prio(B, 1)
    if cache is not None and body is None and not HELP['on'] and not HELP.get('inline'):
        ent, back = cold_block(A, loop)
        A('s_cmp_ge_u32 s%d, %d', sd, n)
        A('s_cbranch_scc0 %s', ent)
        A('%s:', back)
        return
    done = A.label('WD')
    if cache is not None and body is None:
        A('s_cmp_ge_u32 s%d, %d', sd, n)
        A('s_cbranch_scc1 %s', done)
    loop(A, done, body)
    A('%s:', done)


def wait_lp(A, name, sleep=0):
    w, n = LP[name]
    wait_word(A, w, n, CACHE[w], sleep)


def set_stage(A, n):
    A('v_mov_b32 v%d, %d', vT0, n)
    A('ds_write_b32 v%d, v%d', vMY, vT0)


def wait_stage(A, n, which=(0, 1, 2, 3), body=None, sleep=0):
    lo, done = A.label('W'), A.label('WD')
    prio(A, 0)
    A('%s:', lo)
    if sleep:
        A('s_sleep %d', sleep)
    A('ds_read_b128 v[%d:%d], v%d offset:%d', vPW, vPW + 3, vMI, M_PW + 16 * (which[0] // 4))
    k = body() if body else 0
    A('s_waitcnt lgkmcnt(%d)', k)
    w = [x % 4 for x in which]
    if len(w) == 4:
        A('v_min3_u32 v%d, v%d, v%d, v%d', vPW, vPW, vPW + 1, vPW + 2)
        A('v_min_u32 v%d, v%d, v%d', vPW, vPW, vPW + 3)
        r = vPW
    else:
        A('v_min_u32 v%d, v%d, v%d', vPW + w[0], vPW + w[0], vPW + w[1])
        r = vPW + w[0]
    A('v_readfirstlane_b32 s%d, v%d', sT, r)
    spin_guard(A, done)
    A('s_cmp_ge_u32 s%d, %d', sT, n)
    A('s_cbranch_scc0 %s', lo)
    A('%s:', done)
    prio(A, 1)


def poll_global(A, soff, nlanes):
    lo, done = A.label('P'), A.label('PD')
    A('v_lshlrev_b32 v%d, 2, v%d', vT1, vL)
    A('s_mov_b64 exec, 0x%x', (1 << nlanes) - 1)
    A('%s:', lo)
    A('buffer_load_dword v%d, v%d, s[%d:%d], s%d offen sc1', vT0, vT1, SWS, SWS + 3, soff)
    A('s_waitcnt vmcnt(0)')
    A('v_cmp_ne_u32 vcc, s%d, v%d', sTAG, vT0)
    spin_guard(A, done)
    A('s_cbranch_vccnz %s', lo)
    A('%s:', done)
    A('s_mov_b64 exec, -1')


def poll_scalar(A, soff, n):
    lo, done = A.label('P'), A.label('PD')
    A('s_add_u32 s%d, s%d, s%d', sPC, SWS, soff)
    A('s_addc_u32 s%d, s%d, 0', sPC + 1, SWS + 1)
    base = 68 if STAMPS else 72
    A('%s:', lo)
    A('s_load_dwordx%d s[%d:%d], s[%d:%d], 0 glc', n, base, base + n - 1, sPC, sPC + 1)
    A('s_waitcnt lgkmcnt(0)')
    A('s_and_b64 s[%d:%d], s[%d:%d], s[%d:%d]', sHI, sHI + 1, base, base + 1, base + 2, base + 3)
    A('s_or_b64 s[%d:%d], s[%d:%d], s[%d:%d]', sPADL, sPADL + 1, base, base + 1, base + 2, base + 3)
    for k in range(4, n, 2):
        A('s_and_b64 s[%d:%d], s[%d:%d], s[%d:%d]', sHI, sHI + 1, sHI, sHI + 1, base + k, base + k + 1)
        A('s_or_b64 s[%d:%d], s[%d:%d], s[%d:%d]', sPADL, sPADL + 1, sPADL, sPADL + 1, base + k, base + k + 1)
    A('s_and_b32 s%d, s%d, s%d', sHI, sHI, sHI + 1)
    A('s_or_b32 s%d, s%d, s%d', sPADL, sPADL, sPADL + 1)
    A('s_xor_b32 s%d, s%d, s%d', sHI, sHI, sTAG)
    A('s_xor_b32 s%d, s%d, s%d', sPADL, sPADL, sTAG)
    spin_guard(A, done)
    A('s_or_b32 s%d, s%d, s%d', sHI, sHI, sPADL)
    A('s_cbranch_scc1 %s', lo)
    A('%s:', done)


def two_ways(A, fn, local):
    if local and FAST:
        ent, back = cold_block(A, lambda B, back: fn(B, ' sc1'))
        A('s_cmp_eq_u32 s%d, 0', sFASTF)
        A('s_cbranch_scc1 %s', ent)
        fn(A, '')
        A('%s:', back)
    else:
        fn(A, ' sc1')


def pub_stores(A, stores, local):
    def fn(B, bits):
        for st in stores:
            B(st % bits)
    two_ways(A, fn, local)


def pub_flag(A, sflag, local):
    A('s_waitcnt vmcnt(0)')
    A('s_mov_b64 exec, 1')
    two_ways(A, lambda B, bits: B('buffer_store_dword v%d, v%d, s[%d:%d], s%d offen%s', vTAG, vO, SWS, SWS + 3, sflag,
                                  bits), local)
    A('s_mov_b64 exec, -1')


def st4(reg, soff, off):
    return 'buffer_store_dwordx4 %s, v%d, s[%d:%d], s%d offen offset:%d%%s' % (v(reg, 4), vO, SWS, SWS + 3, soff, off)


def hilo_c(A, src, f, tmp):
    A('v_cvt_pk_bf16_f32 v%d, v%d, v%d', f, src, src)
    A('v_and_b32 v%d, 0xffff0000, v%d', tmp, f)
    A('v_sub_f32 v%d, v%d, v%d', tmp, src, tmp)
    A('v_cvt_pk_bf16_f32 v%d, v%d, 0', f + 1, tmp)


def hilo_m(A, src, f, tmp):
    A('v_cvt_pk_bf16_f32 v%d, v%d, 0', f + 1, src)
    A('v_lshlrev_b32 v%d, 16, v%d', tmp, f + 1)
    A('v_sub_f32 v%d, v%d, v%d', tmp, src, tmp)
    A('v_cvt_pk_bf16_f32 v%d, v%d, v%d', f, src, tmp)


def ln_finish(A, t0, t1, negmean, rstd):
    A('v_mul_f32 v%d, 0x%x, v%d', t0, 0x3b124925, t0)
    A('v_mov_b32 v%d, v%d', t1, t0)
    A('v_permlane32_swap_b32 v%d, v%d', t0, t1)
    A('v_fma_f32 v%d, -v%d, v%d, v%d', t1, t0, t0, t1)
    A('v_max_f32 v%d, 0, v%d', t1, t1)
    A('v_add_f32 v%d, 0x%x, v%d', t1, 0x3727c5ac, t1)
    A('v_rsq_f32 v%d, v%d', rstd, t1)
    A('v_sub_f32 v%d, 0, v%d', negmean, t0)


def softmax_pm(A, p, sc, e, t):
    A('v_cndmask_b32 v%d, v%d, v%d, s[%d:%d]', p + 12, p + 12, p + 14, sHI, sHI + 1)
    A('v_cndmask_b32 v%d, v%d, v%d, s[%d:%d]', p + 13, p + 13, p + 15, sHI, sHI + 1)
    mx, mn = t, t + 1
    A('v_max3_f32 v%d, v%d, v%d, v%d', mx, p, p + 1, p + 2)
    A('v_min3_f32 v%d, v%d, v%d, v%d', mn, p, p + 1, p + 2)
    for i in range(3, 13, 2):
        A('v_max3_f32 v%d, v%d, v%d, v%d', mx, mx, p + i, p + i + 1)
        A('v_min3_f32 v%d, v%d, v%d, v%d', mn, mn, p + i, p + i + 1)
    A('v_max_f32 v%d, v%d, v%d', mx, mx, p + 13)
    A('v_min_f32 v%d, v%d, v%d', mn, mn, p + 13)
    A('v_sub_f32 v%d, 0, v%d', mn, mn)
    A('v_permlane32_swap_b32 v%d, v%d', mx, mn)
    A('v_max_f32 v%d, v%d, v%d', mx, mx, mn)
    A('v_mul_f32 v%d, v%d, v%d', mx, mx, sc)
    A('v_mov_b32 v%d, v%d', mn, mx)
    A('v_permlane32_swap_b32 v%d, v%d', mx, mn)
    for i in range(14):
        A('v_fma_f32 v%d, -v%d, v%d, -v%d', e + i, p + i, sc, mn)
        A('v_fma_f32 v%d, v%d, v%d, -v%d', p + i, p + i, sc, mx)
        if i:
            A('v_exp_f32 v%d, v%d', e + i - 1, e + i - 1)
            A('v_exp_f32 v%d, v%d', p + i - 1, p + i - 1)
    A('v_exp_f32 v%d, v%d', e + 13, e + 13)
    A('v_exp_f32 v%d, v%d', p + 13, p + 13)
    if PKSM:
        for base in (p, e):
            A('v_pk_add_f32 v[%d:%d], v[%d:%d], v[%d:%d]', base + 14, base + 15, base, base + 1, base + 2, base + 3)
        for i in range(4, 14, 2):
            for base in (p, e):
                A('v_pk_add_f32 v[%d:%d], v[%d:%d], v[%d:%d]', base + 14, base + 15, base + 14, base + 15, base + i,
                  base + i + 1)
    else:
        for base in (p, e):
            A('v_add_f32 v%d, v%d, v%d', base + 14, base, base + 2)
            A('v_add_f32 v%d, v%d, v%d', base + 15, base + 1, base + 3)
        for i in range(4, 14):
            for base in (p, e):
                A('v_add_f32 v%d, v%d, v%d', base + 14 + (i & 1), base + 14 + (i & 1), base + i)
    sp, sn = t + 2, t
    A('v_add_f32 v%d, v%d, v%d', sp, p + 14, p + 15)
    A('v_add_f32 v%d, v%d, v%d', sn, e + 14, e + 15)
    A('v_permlane32_swap_b32 v%d, v%d', sp, sn)
    A('v_add_f32 v%d, v%d, v%d', sp, sp, sn)
    A('v_rcp_f32 v%d, v%d', sp, sp)
    A('v_mov_b32 v%d, v%d', sn, sp)
    A('v_permlane32_swap_b32 v%d, v%d', sp, sn)
    for i in range(0, 14, 2):
        for base, r in ((p, sp), (e, sn)):
            if PKSM:
                A('v_pk_mul_f32 v[%d:%d], v[%d:%d], v[%d:%d] op_sel_hi:[1,0]', base + i, base + i + 1, base + i,
                  base + i + 1, r, r + 1)
            else:
                A('v_mul_f32 v%d, v%d, v%d', base + i, base + i, r)
                A('v_mul_f32 v%d, v%d, v%d', base + i + 1, base + i + 1, r)
    for i, (a0, a1) in enumerate(((0, 1), (2, 3), (4, 5), (6, None), (7, 8), (9, 10), (11, 12), (13, None))):
        for base in (p, e):
            A('v_cvt_pk_bf16_f32 v%d, v%d, %s', base + i, base + a0, '0' if a1 is None else 'v%d' % (base + a1))


PKSM = E('PKSM', 1)


def cvt8(A, dst, src, n=8):
    for i in range(n):
        A('v_cvt_pk_bf16_f32 v%d, v%d, v%d', dst + i, src + 2 * i, src + 2 * i + 1)


def mfma(A, d, a_, b_, first=False):
    A('%s %s, %s, %s, %s', MFMA, v(d, 16), v(a_, 4), v(b_, 4), '0' if first else v(d, 16))


def merge(main, blocks, start, stop):
    idx = [i for i, l in enumerate(main) if l.strip().startswith('v_mfma')][start:stop]
    out, k = [], 0
    n = len(idx)
    pos = {i: j for j, i in enumerate(idx)}
    for i, l in enumerate(main):
        out.append(l)
        if i in pos:
            upto = (len(blocks) * (pos[i] + 1) + n - 1) // n
            for b in blocks[k:upto]:
                out += b
            k = max(k, upto)
    assert k >= len(blocks)
    return out


def sub(A):
    return Asm()


L_H = (L_A, L_A + 28672, 0, 65536)
W2S = [32768, 40960] + [L_A + k * 8192 for k in range(7)] + [k * 8192 for k in range(4)] + [
    65536 + k * 8192 for k in range(4)]
W2GATE = {2: 9, 5: 10, 9: 11, 13: 12}


def w2_slot(n):
    return W2S[n % 17]


def w1_slot(c):
    return B16[c % 5]


class LdsQ:
    def __init__(self, A):
        self.A, self.q = A, []
        self.peeked = False

    def op(self, tag, fmt, *a):
        self.A(fmt, *a)
        self.q.append(tag)

    def need(self, tag):
        idx = [i for i, x in enumerate(self.q) if x == tag]
        if not idx:
            return None
        n = len(self.q) - 1 - idx[-1]
        self.q = self.q[idx[-1] + 1:]
        return min(n, 15)

    def wait(self, tag, vm=None):
        n = self.need(tag)
        if n is None and vm is None:
            return
        self.A('s_waitcnt' + ('' if vm is None else ' vmcnt(%d)' % vm) + ('' if n is None else ' lgkmcnt(%d)' % n))

    def stage(self, n):
        set_stage(self.A, n)
        self.q.append('st')

    def peek(self, w):
        self.op('pk', 'ds_read_b32 v%d, v%d offset:%d', vPK_, vMI, M_PW + 4 * w)
        self.peeked = True

    def take(self, w):
        if not self.peeked:
            return
        self.peeked = False
        self.wait('pk')
        self.A('v_readfirstlane_b32 s%d, v%d', CACHE[w], vPK_)


def tag_compute(A):
    A('s_waitcnt lgkmcnt(0)')
    A('s_mul_i32 s%d, s%d, 0x%x', sTAG, sTAG, 1664525)
    A('s_add_u32 s%d, s%d, 0x%x', sTAG, sTAG, 1013904223)
    A('v_mov_b32 v%d, s%d', vTAG, sTAG)


def fast_check(A):
    A('s_getreg_b32 s%d, hwreg(HW_REG_XCC_ID)', sC)
    A('s_and_b32 s%d, s%d, 15', sC, sC)
    A('s_add_u32 s%d, s%d, s%d', sC, sC, sTAG)
    A('s_lshl_b32 s%d, s%d, 7', sT, sXCD)
    A('s_add_u32 s%d, s%d, %d', sT, sT, FREG)
    A('v_and_b32 v%d, 31, v%d', vT1, vL)
    A('v_lshlrev_b32 v%d, 2, v%d', vT1, vT1)
    A('buffer_load_dword v%d, v%d, s[%d:%d], s%d offen sc1', vT0, vT1, SWS, SWS + 3, sT)
    A('s_waitcnt vmcnt(0)')
    A('v_cmp_ne_u32 vcc, s%d, v%d', sC, vT0)
    A('s_cmp_eq_u64 vcc, 0')
    A('s_cselect_b32 s%d, 1, 0', sFASTF)


class Stream:
    def __init__(self, A, wave, depth, first=0):
        self.A, self.wave, self.depth = A, wave, depth
        self.items = []
        self.issued = 0
        self.known = 0
        self.n = first

    def wait_to(self, left):
        if self.issued - left <= self.known:
            return
        self.A('s_waitcnt vmcnt(%d)', left)
        self.known = self.issued - left
        last = None
        while self.items and self.items[0][1] <= self.known:
            last = self.items.pop(0)[0]
        if last is not None:
            set_stage(self.A, last)

    def room(self, k):
        self.wait_to(max(self.depth - k, 0))
        self.issued += k

    def done(self, name, cnt=None):
        self.n += 1
        assert LP.setdefault(name, (self.wave, self.n)) == (self.wave, self.n), name
        self.items.append((self.n, self.issued))

    def drain(self):
        self.drain_to(0)

    def drain_to(self, keep):
        while len(self.items) > keep:
            self.wait_to(self.issued - self.items[0][1])

    def save(self):
        return (list(self.items), self.issued, self.known)

    def restore(self, s):
        self.items, self.issued, self.known = list(s[0]), s[1], s[2]

    def dma4(self, lds, voffs, srd_, step=None, bits=''):
        A = self.A
        A('s_mov_b32 m0, %d', lds)
        self.room(4)
        for u in range(4):
            A('buffer_load_dwordx4 v%d, s[%d:%d], s%d offen offset:%d%s lds', voffs[u], srd_, srd_ + 3, sT, u * 1024,
              bits)
        if step:
            A('s_add_u32 s%d, s%d, %d', sT, sT, step)


def spread4(A, base, step):
    for u in range(1, 4):
        A('v_add_u32 v%d, %d, v%d', base + u, u * (step - 1024), base)


def wtr_base(A):
    A('v_lshrrev_b32 v%d, 5, v%d', vT1, vL)
    A('v_bfe_u32 v%d, v%d, 2, 2', vT0, vL)
    A('v_lshl_add_u32 v%d, v%d, 3, v%d', vT0, vT1, vT0)
    A('v_lshlrev_b32 v%d, 6, v%d', vT0, vT0)
    A('v_bfe_u32 v%d, v%d, 4, 1', vTT, vL)
    A('v_lshl_add_u32 v%d, v%d, 5, v%d', vT0, vTT, vT0)
    A('v_and_b32 v%d, 3, v%d', vTT, vL)
    A('v_lshl_add_u32 v%d, v%d, 3, v%d', vT0, vTT, vT0)
    for pi in range(3):
        A('v_add_u32 v%d, %d, v%d', vWA + pi, L_WP[pi], vT0)
    A('v_lshlrev_b32 v%d, 3, v%d', vCA, vL)
    A('v_add_u32 v%d, %d, v%d', vCA, L_CF, vCA)


def sel_frags(A, vID):
    A('v_lshrrev_b32 v%d, 5, v%d', vT1, vL)
    A('v_and_b32 v%d, 31, v%d', vT0, vL)
    A('v_lshlrev_b32 v%d, 2, v%d', vTT, vT1)
    A('v_sub_u32 v%d, v%d, v%d', vT0, vT0, vTT)
    A('v_mov_b32 v%d, 0x3f80', vTT)
    A('v_mov_b32 v%d, 0x3f800000', vTT + 1)
    for sidx in range(2):
        for rr in range(4):
            m = 16 * sidx + 8 * (rr >> 1) + 2 * (rr & 1)
            A('v_cmp_eq_u32 vcc, %d, v%d', m, vT0)
            A('v_cndmask_b32 v%d, 0, v%d, vcc', vID + 4 * sidx + rr, vTT)
            A('v_cmp_eq_u32 vcc, %d, v%d', m + 1, vT0)
            A('v_cndmask_b32 v%d, v%d, v%d, vcc', vID + 4 * sidx + rr, vID + 4 * sidx + rr, vTT + 1)


def read_w(A, pi, i, buf, sleep=0):
    wait_lp(A, ('W', pi, i), sleep)
    for q in range(4):
        for z in range(2):
            A('ds_read_b64_tr_b16 v[%d:%d], v%d offset:%d', buf + 4 * q + 2 * z, buf + 4 * q + 2 * z + 1,
              vWA + pi, i * 4096 + q * 1024 + z * 256)


def colsum(A, spi):
    vCS, vB_, buf = 40, 44, 48
    A('v_mov_b32 v%d, 0', vCS)
    A('v_mov_b32 v%d, 0', vCS + 1)
    A('s_cmp_eq_u32 s%d, 1', spi)
    A('s_cselect_b32 s%d, 0, %d', sT, L_WP[2])
    A('s_cmp_eq_u32 s%d, 0', spi)
    A('s_cselect_b32 s%d, %d, s%d', sT, L_WP[0], sT)
    assert L_WP[1] == 0
    A('v_add_u32 v%d, s%d, v%d', vB_, sT, vWA + 1)
    A('s_mul_i32 s%d, s%d, 7', sC, spi)
    A('s_add_u32 s%d, s%d, 7', sT2, sC)
    top, lo, ok = A.label('CS'), A.label('W'), A.label('WD')
    A('%s:', top)
    A('s_cmp_gt_u32 s%d, s%d', sPROG, sC)
    A('s_cbranch_scc1 %s', ok)
    prio(A, 0)
    A('%s:', lo)
    A('ds_read_b32 v%d, v%d offset:%d', vPW, vMI, M_PW + 16)
    A('s_waitcnt lgkmcnt(0)')
    A('v_readfirstlane_b32 s%d, v%d', sPROG, vPW)
    spin_guard(A, ok)
    A('s_cmp_gt_u32 s%d, s%d', sPROG, sC)
    A('s_cbranch_scc0 %s', lo)
    prio(A, 1)
    A('%s:', ok)
    for q in range(4):
        for z in range(2):
            A('ds_read_b64_tr_b16 v[%d:%d], v%d offset:%d', buf + 4 * q + 2 * z, buf + 4 * q + 2 * z + 1, vB_,
              q * 1024 + z * 256)
    A('v_add_u32 v%d, 4096, v%d', vB_, vB_)
    A('s_add_u32 s%d, s%d, 1', sC, sC)
    for q in range(4):
        A('s_waitcnt lgkmcnt(%d)', 6 - 2 * q)
        for r in range(4):
            A('v_dot2c_f32_bf16 v%d, s%d, v%d', vCS + (r & 1), sONES, buf + 4 * q + r)
    A('s_cmp_lt_u32 s%d, s%d', sC, sT2)
    A('s_cbranch_scc1 %s', top)
    A('v_add_f32 v%d, v%d, v%d', vCS, vCS, vCS + 1)
    hilo_c(A, vCS, vCS + 2, vT0)
    A('s_lshl_b32 s%d, s%d, 9', sT, spi)
    A('v_add_u32 v%d, s%d, v%d', vB_, sT, vCA)
    A('ds_write_b64 v%d, v[%d:%d]', vB_, vCS + 2, vCS + 3)


def rest_srds(A):
    A('s_add_u32 s82, s80, %d', FEP)
    A('s_addc_u32 s83, s81, 0')
    A('s_load_dword s%d, s[82:83], 0', sTAG)
    srd(A, SP, 68, H * DH * DH * 2)
    srd(A, SWO, 70, D * D * 2)
    srd(A, SW1, 74, D * F * 2)
    srd(A, SW2, 76, D * F * 2)
    srd(A, SOUT, 78, S * D * 2)
    srd(A, SWS, 80, WS_SIZE)


def rot_next(A):
    A('s_add_u32 s%d, s%d, 1', sC, sC)
    A('s_cmp_eq_u32 s%d, 7', sC)
    A('s_cselect_b32 s%d, 0, s%d', sC, sC)


def sig_dyn(A, sval):
    A('v_mov_b32 v%d, s%d', vT0, sval)
    A('ds_write_b32 v%d, v%d', vMY, vT0)


def early_offsets(A):
    A('v_lshrrev_b32 v%d, 3, v%d', vT0, vL)
    A('v_mul_u32_u24 v%d, 896, v%d', vT0, vT0)
    A('v_lshrrev_b32 v%d, 4, v%d', vT1, vL)
    A('v_and_b32 v%d, 7, v%d', vXD, vL)
    A('v_xor_b32 v%d, v%d, v%d', vXD, vXD, vT1)
    A('v_xor_b32 v%d, 4, v%d', vXD + 1, vXD)
    A('v_lshl_add_u32 v%d, v%d, 4, v%d', vXD, vXD, vT0)
    A('v_lshl_add_u32 v%d, v%d, 4, v%d', vXD + 1, vXD + 1, vT0)
    A('v_add_u32 v%d, %d, v%d', vXD + 1, 8 * 896 - 1024, vXD + 1)
    A('v_add_u32 v%d, %d, v%d', vXD + 2, 2 * (8 * 896 - 1024), vXD)
    A('v_add_u32 v%d, %d, v%d', vXD + 3, 2 * (8 * 896 - 1024), vXD + 1)
    vW = 40
    A('v_lshrrev_b32 v%d, 2, v%d', vW, vL)
    A('v_mul_u32_u24 v%d, 2688, v%d', vW, vW)
    A('v_and_b32 v%d, 3, v%d', vT1, vL)
    A('v_lshl_add_u32 v%d, v%d, 4, v%d', vW, vT1, vW)
    A('s_mul_i32 s%d, s%d, 56', sT, sH)
    A('s_and_b32 s%d, s%d, 0xfffffff0', sT, sT)
    A('v_add_u32 v%d, s%d, v%d', vW, sT, vW)
    spread4(A, vW, 16 * 2688)
    A('s_mul_i32 s%d, s%d, %d', sXB, sTB, 128 * 896)
    A('s_mov_b32 s%d, s%d', sC, sC0)


def early_x(A):
    depth = E('XDEPTH', 16)
    wsig = ((depth - 4) // 4) % 4
    lag = (depth - 4 - 4 * wsig) // 16
    A('s_mov_b32 s%d, %d', sG, -lag)
    A('s_mov_b32 m0, %d', L_X)
    top = A.label('XL')
    A('%s:', top)
    A('s_lshl_b32 s%d, s%d, 7', sT, sC)
    A('s_add_u32 s%d, s%d, s%d', sT, sT, sXB)
    for w in range(4):
        A('s_waitcnt vmcnt(%d)', depth - 4)
        if w == wsig:
            A('s_max_i32 s%d, s%d, 0', sT2, sG)
            sig_dyn(A, sT2)
        for u in range(4):
            A('buffer_load_dwordx4 v%d, s[%d:%d], s%d offen offset:%d lds', vXD + u, SX, SX + 3, sT, u * 1024)
        A('s_add_u32 m0, m0, 4096')
        if w < 3:
            A('s_add_u32 s%d, s%d, %d', sT, sT, 32 * 896)
    rot_next(A)
    A('s_add_u32 s%d, s%d, 1', sG, sG)
    A('s_cmp_lt_i32 s%d, %d', sG, 7 - lag)
    A('s_cbranch_scc1 %s', top)
    stamp(A)
    for n in range(7 - lag, 8):
        A('s_waitcnt vmcnt(%d)', 16 * (7 - n))
        set_stage(A, n)


def early_w(A):
    vW = 40

    def part_loop(pi, depth, floor):
        lag = (depth - 4) // 4
        stamp(A)
        A('s_mov_b32 s%d, s%d', sC, sC0)
        A('s_mov_b32 s%d, %d', sG, 7 * pi - lag)
        A('s_mov_b32 m0, %d', L_WP[pi])
        top = A.label('WL')
        A('%s:', top)
        A('s_mul_i32 s%d, s%d, %d', sT, sC, 64 * 2688)
        A('s_add_u32 s%d, s%d, %d', sT, sT, (1, 2, 0)[pi] * 896)
        A('s_max_i32 s%d, s%d, %d', sT2, sG, floor)
        A('s_waitcnt vmcnt(%d)', depth - 4)
        sig_dyn(A, sT2)
        for u in range(4):
            A('buffer_load_dwordx4 v%d, s[%d:%d], s%d offen offset:%d lds', vW + u, SW, SW + 3, sT, u * 1024)
        A('s_add_u32 m0, m0, 4096')
        rot_next(A)
        A('s_add_u32 s%d, s%d, 1', sG, sG)
        A('s_cmp_lt_i32 s%d, %d', sG, 7 * pi + 7 - lag)
        A('s_cbranch_scc1 %s', top)
        return lag
    lag = part_loop(0, E('WDEPTH', 8), 0)
    for n in range(7 - lag, 8):
        A('s_waitcnt vmcnt(%d)', 4 * (7 - n))
        set_stage(A, n)
    wait_stage(A, 1)
    if E('XG2', 4) >= 0:
        wait_lp(A, ('x', E('XG2', 4)))
    part_loop(1, E('WDEPTH2', 24), 7)
    wait_stage(A, 2)
    part_loop(2, E('WDEPTH2', 24), 7)


def gen_h0(A):
    St = Stream(A, 4, E('WDEPTH2', 24), 21)
    St.issued = 84
    St.known = 84 - St.depth
    St.items = [(n + 1, 4 * n + 4) for n in range(21) if 4 * n + 4 > St.known]
    vW, vW128, vXo, vW256 = 40, 44, 48, 52
    q4 = lambda b: [b, b + 1, b + 2, b + 3]
    rest_srds(A)
    lend = A.label('LEND')
    act = A.label('ACT')
    A('s_cmp_lt_u32 s%d, 28', sI)
    A('s_cbranch_scc1 %s', act)
    keep = St.save()
    St.drain()
    St.restore(keep)
    if E('TOUCH', 1):
        def touch(srd_, base, per_xcd, n):
            A('s_mul_i32 s%d, s%d, %d', sT, sXCD, per_xcd)
            A('s_sub_u32 s%d, s%d, 28', sT2, sI)
            A('s_mul_i32 s%d, s%d, %d', sT2, sT2, n * 8192)
            A('s_add_u32 s%d, s%d, s%d', sT, sT, sT2)
            A('s_add_u32 s%d, s%d, %d', sT, sT, base)
            A('s_mov_b32 s%d, %d', sC, n)
            lo = A.label('T')
            A('%s:', lo)
            A('buffer_load_dword v%d, v%d, s[%d:%d], s%d offen', vW + 1, vW, srd_, srd_ + 3, sT)
            A('s_add_u32 s%d, s%d, 8192', sT, sT)
            A('s_waitcnt vmcnt(%d)', E('TDEPTH', 6))
            A('s_sub_u32 s%d, s%d, 1', sC, sC)
            A('s_cmp_lg_u32 s%d, 0', sC)
            A('s_cbranch_scc1 %s', lo)
        A('v_lshlrev_b32 v%d, 7, v%d', vW, vL)
        wait_stage(A, C0 + 5, sleep=2)
        if not WT1:
            touch(SWS, WS_H1B, 8 * 112 * 1024, 28)
        touch(SW2, 0, 0, 49)
    A('s_branch %s', lend)
    A('%s:', act)
    A('v_lshrrev_b32 v%d, 3, v%d', vW128, vL)
    A('v_mul_u32_u24 v%d, 896, v%d', vW128, vW128)
    A('v_and_b32 v%d, 7, v%d', vT1, vL)
    A('v_lshl_add_u32 v%d, v%d, 4, v%d', vXo, vT1, vW128)
    A('v_lshrrev_b32 v%d, 2, v%d', vT0, vL)
    A('v_and_b32 v%d, 4, v%d', vT0, vT0)
    A('v_xor_b32 v%d, v%d, v%d', vT1, vT1, vT0)
    A('v_lshl_add_u32 v%d, v%d, 4, v%d', vW128, vT1, vW128)
    A('v_lshrrev_b32 v%d, 4, v%d', vW256, vL)
    A('v_mul_u32_u24 v%d, 3584, v%d', vW256, vW256)
    A('v_and_b32 v%d, 15, v%d', vT1, vL)
    A('v_lshrrev_b32 v%d, 2, v%d', vT0, vL)
    A('v_and_b32 v%d, 12, v%d', vT0, vT0)
    A('v_xor_b32 v%d, v%d, v%d', vT1, vT1, vT0)
    A('v_lshl_add_u32 v%d, v%d, 4, v%d', vW256, vT1, vW256)
    spread4(A, vW128, 8 * 896)
    spread4(A, vXo, 8 * 896)
    spread4(A, vW256, 4 * 3584)
    A('s_lshl_b32 s%d, s%d, 7', sB, sNB)

    def w1_chunk(c):
        A('s_lshl_b32 s%d, s%d, 8', sT, sFB)
        A('s_add_u32 s%d, s%d, %d', sT, sT, c * 64 * 3584)
        for u in range(4):
            St.dma4(w1_slot(c) + u * 4096, q4(vW256), SW1, 16 * 3584 if u < 3 else None)
        St.done(('w1', c), 16)

    def w2_item(n):
        c, kh = n >> 1, n & 1
        A('s_add_u32 s%d, s%d, %d', sT, sB, (kh * 896 + c * 64) * 896)
        for u in range(2):
            St.dma4(w2_slot(n) + u * 4096, q4(vW128), SW2, 32 * 896 if u < 1 else None)
        St.done(('w2', n), 8)

    St.drain_to(3)
    wait_stage(A, 3)
    wait_word(A, 5, 1)
    stamp(A)
    A('s_mov_b32 s%d, s%d', sB + 0, sB)
    A('s_mov_b32 s%d, s%d', sT, sB)
    for c in range(7):
        for u in range(2):
            St.dma4(L_A + c * 8192 + u * 4096, q4(vW128), SWO, 32 * 896)
        if c == 2:
            St.depth = E('LDEPTH', 32)
    St.done('wo')
    wait_stage(A, 2, (5, 6))
    stamp(A)
    for c in range(4):
        w1_chunk(c)
    St.drain()
    stamp(A)
    wait_stage(A, C0 + 4)
    wait_word(A, 7, 8)
    if E('GPAUSE', 1):
        wait_stage(A, 3, (5, 6))
    stamp(A)
    A('s_mul_i32 s%d, s%d, %d', sT, sTQ, 64 * 896)
    A('s_add_u32 s%d, s%d, s%d', sT, sT, sB)
    for u in range(2):
        St.dma4(L_XRES + u * 4096, q4(vXo), SX, 32 * 896)
    St.done('xres')
    for c in (4, 5, 6):
        w1_chunk(c)
    St.drain()
    stamp(A)
    wait_stage(A, C0 + 8, sleep=1)
    wait_lp(A, ('h', E('W2AFTER', 3), E('W2AFTERQ', 0)), 1)
    stamp(A)
    St.depth = E('W2DEPTH', 32)
    for n in range(17):
        if n in W2GATE:
            wait_stage(A, C0 + W2GATE[n])
            if n == 13:
                stamp(A)
        w2_item(n)
    stamp(A)
    St.depth = E('W2DEPTH3', 32)
    for n in range(17, 28):
        m = n - 17
        wait_stage(A, C0 + 13 + (m >> 1), (0, 1) if (m & 1) == 0 else (2, 3))
        w2_item(n)
    St.drain()
    A('%s:', lend)
    A('s_waitcnt lgkmcnt(0)')
    stamp_flush(A)
    A('s_endpgm')


def gen_h1(A):
    stamp(A)
    rest_srds(A)
    wtr_base(A)
    tag_compute(A)
    def extras():
        if WARM:
            for srd_, size in ((SWO, D * D * 2), (SW1, D * F * 2), (SW2, D * F * 2)):
                A('s_mul_i32 s%d, s2, %d', sT, size // 256)
                A('v_lshlrev_b32 v%d, 7, v%d', vT1, vL)
                A('s_mov_b64 exec, 0x%x', (1 << ((size // 256 + 127) // 128)) - 1) if size // 256 < 4096 else None
                if size // 256 >= 4096:
                    A('s_mov_b32 exec_hi, 0x%x', (1 << ((size // 256 + 127) // 128 - 32)) - 1)
                A('buffer_load_dword v64, v%d, s[%d:%d], s%d offen', vT1, srd_, srd_ + 3, sT)
                A('s_mov_b64 exec, -1')
        if E('TOUCH', 1) and not WTO:
            A('s_lshl_b32 s%d, s%d, 18', sT, sXCD)
            A('s_lshl_b32 s%d, s%d, 13', sT2, sI)
            A('s_add_u32 s%d, s%d, s%d', sT, sT, sT2)
            A('v_lshlrev_b32 v%d, 7, v%d', vT1, vL)
            for base in ((WS_OB, WS_HB) if MAP == 0 else (WS_HB,)):
                A('s_add_u32 s%d, s%d, %d', sT2, sT, base)
                A('buffer_load_dword v64, v%d, s[%d:%d], s%d offen', vT1, SWS, SWS + 3, sT2)

    if TOUCHAT == 1:
        wait_lp(A, ('W', 1, 6), 1)
    if TOUCHAT <= 1:
        extras()
    if FAST:
        fast_check(A)
        A('v_mov_b32 v%d, s%d', vT0, sFASTF)
        A('ds_write_b32 v%d, v%d offset:%d', vMI, vT0, M_FAST)
    A('s_mov_b32 s%d, 2', sG)
    colsum(A, sG)
    set_stage(A, 8)
    if TOUCHAT == 2:
        extras()
    stamp(A)
    lend = A.label('LEND')
    A('s_cmp_ge_u32 s%d, 28', sI)
    A('s_cbranch_scc1 %s', lend)
    St = Stream(A, 7, E('HDEPTH', 24), 8)
    for gi in range(4):
        A('s_lshl_b32 s%d, s%d, 2', sT2, sTB3)
        A('s_add_u32 s%d, s%d, %d', sT2, sT2, gi)
        A('s_lshl_b32 s%d, s%d, 15', sB, sT2)
        A('s_add_u32 s%d, s%d, %d', sB, sB, WS_HB + 4096)
        if gi == 0:
            wait_stage(A, C0 + 7, sleep=1)
            stamp(A)
        if gi == 2:
            St.drain()
        if gi % 2 == 0:
            A('s_lshl_b32 s%d, s%d, 6', sT2, sT2)
            A('s_add_u32 s%d, s%d, %d', sT2, sT2, F3)
            lo, done = A.label('P'), A.label('PD')
            A('v_lshlrev_b32 v%d, 2, v%d', vT1, vL)
            A('s_mov_b64 exec, 0x3fff3fff')
            A('%s:', lo)
            A('buffer_load_dword v%d, v%d, s[%d:%d], s%d offen sc1', vT0, vT1, SWS, SWS + 3, sT2)
            A('s_waitcnt vmcnt(0)')
            A('v_cmp_ne_u32 vcc, s%d, v%d', sTAG, vT0)
            spin_guard(A, done)
            A('s_cbranch_vccnz %s', lo)
            A('%s:', done)
            A('s_mov_b64 exec, -1')
            St.n += 1
            assert LP[('hf', gi)] == (7, St.n)
            set_stage(A, St.n)
            stamp(A)
        if gi == 2:
            wait_stage(A, C0 + 8)
            stamp(A)
        A('s_mov_b32 s%d, s%d', sT, sB)
        for u in range(7):
            St.dma4(L_H[gi] + u * 4096, [vO] * 4, SWS, 4096, ' sc1')
            if u % 2 == 0:
                St.done(('h', gi, u // 2))
    St.drain()
    A('%s:', lend)
    A('s_waitcnt lgkmcnt(0)')
    stamp_flush(A)
    A('s_endpgm')


def gen_h23(A):
    vID, vAF, vVF, vAC, vG = 64, 72, 104, 136, 72
    rest_srds(A)
    sTL = sKH
    A('s_sub_u32 s%d, s%d, 5', sTL, sWV)
    skip = A.label('NOST')
    A('s_cmp_eq_u32 s%d, 1', sTL)
    A('s_cbranch_scc1 %s', skip)
    A('s_mul_i32 s%d, s%d, 1568', sT, sH)
    A('s_mov_b32 m0, %d', L_PHI)
    A('buffer_load_dwordx4 v%d, s[%d:%d], s%d offen lds', vO, SP, SP + 3, sT)
    A('buffer_load_dwordx4 v%d, s[%d:%d], s%d offen offset:1024 lds', vO, SP, SP + 3, sT)
    if CODEPF:
        A('s_mul_i32 s%d, s%d, %d', sT, sI, 1280)
        A('v_lshlrev_b32 v%d, 7, v%d', vT1, vL)
        A('v_add_u32 v%d, s%d, v%d', vT1, sT, vT1)
        A('s_mov_b64 exec, 0x3ff')
        A('global_load_dword v72, v%d, s[%d:%d]', vT1, sPC, sPC + 1)
        A('s_mov_b64 exec, -1')
    A('%s:', skip)
    wtr_base(A)
    sel_frags(A, vID)
    tag_compute(A)
    if FAST:
        skip = A.label('NORG')
        A('s_cmp_eq_u32 s%d, 0', sTL)
        A('s_cbranch_scc1 %s', skip)
        A('s_getreg_b32 s%d, hwreg(HW_REG_XCC_ID)', sT2)
        A('s_and_b32 s%d, s%d, 15', sT2, sT2)
        A('s_add_u32 s%d, s%d, s%d', sT2, sT2, sTAG)
        A('v_mov_b32 v%d, s%d', vT0, sT2)
        A('s_lshl_b32 s%d, s%d, 7', sT, sXCD)
        A('s_lshl_b32 s%d, s%d, 2', sT2, sI)
        A('s_add_u32 s%d, s%d, s%d', sT, sT, sT2)
        A('s_add_u32 s%d, s%d, %d', sT, sT, FREG)
        A('s_mov_b64 exec, 1')
        A('buffer_store_dword v%d, v%d, s[%d:%d], s%d offen sc1', vT0, vO, SWS, SWS + 3, sT)
        A('s_mov_b64 exec, -1')
        A('%s:', skip)
    if MAP == 3:
        A('s_lshl_b32 s%d, s%d, 4', sT, sH)
        A('s_add_u32 s%d, s%d, s%d', sT, sT, sTB)
        A('s_lshl_b32 s%d, s%d, 12', sT, sT)
        A('s_lshl_b32 s%d, s%d, 11', sT2, sTL)
        A('s_add_u32 s%d, s%d, s%d', sT, sT, sT2)
        A('v_lshlrev_b32 v%d, 7, v%d', vT1, vL)
        A('s_mov_b64 exec, 0xffff')
        A('buffer_load_dword v73, v%d, s[%d:%d], s%d offen', vT1, SWS, SWS + 3, sT)
        A('s_mov_b64 exec, -1')
    colsum(A, sTL)
    A('s_waitcnt vmcnt(0)')
    set_stage(A, 1)
    stamp(A)
    A('s_lshl_b32 s%d, s%d, 11', sT2, sTL)
    A('v_add_u32 v%d, s%d, v%d', vTT, sT2, vO)
    A('v_add_u32 v%d, %d, v%d', vTT + 1, L_KVA, vTT)
    A('v_add_u32 v%d, %d, v%d', vTT + 2, L_KVV, vO)
    A('s_lshl_b32 s%d, s%d, 16', sXB, sH)
    A('s_add_u32 s%d, s%d, s%d', sXB, sXB, sT2)
    A('s_add_u32 s%d, s%d, %d', sXB, sXB, WS_KVP)
    A('s_lshl_b32 s%d, s%d, 12', sB, sTB)
    A('s_add_u32 s%d, s%d, s%d', sB, sB, sXB)
    A('s_lshl_b32 s%d, s%d, 1', sM0, sH)
    A('s_add_u32 s%d, s%d, s%d', sM0, sM0, sTL)
    A('s_lshl_b32 s%d, s%d, 6', sM0, sM0)
    A('s_add_u32 s%d, s%d, %d', sM0, sM0, F1)
    A('s_lshl_b32 s%d, s%d, 2', sFL, sTB)
    A('s_add_u32 s%d, s%d, s%d', sFL, sFL, sM0)
    if MAP == 3 and FAST:
        wait_lp(A, ('W', 1, 3), 2)
        fast_check(A)

    def kv_reads():
        for w in range(3):
            for q in range(2):
                A('ds_read_b128 %s, v%d offset:%d', v(vAF + 8 * w + 4 * q, 4), vTT + 1, w * 4096 + q * 1024)
                A('ds_read_b128 %s, v%d offset:%d', v(vVF + 8 * w + 4 * q, 4), vTT + 2, w * 4096 + q * 1024)
        return 12
    wait_lp(A, ('W', 1, 6), 2)
    wait_stage(A, C0 + 1)
    stamp(A)
    kv_reads()
    for q in range(2):
        A('ds_read_b128 %s, v%d offset:%d', v(vAF + 24 + 4 * q, 4), vTT + 1, 3 * 4096 + q * 1024)
        A('ds_read_b128 %s, v%d offset:%d', v(vVF + 24 + 4 * q, 4), vTT + 2, 3 * 4096 + q * 1024)
    for k in range(8):
        A('s_waitcnt lgkmcnt(%d)', 14 - 2 * k)
        mfma(A, vAC, vAF + 4 * k, vVF + 4 * k, k == 0)
    set_stage(A, 2)
    cvt8(A, vAF, vAC)
    pub_stores(A, [st4(vAF + 4 * q, sB, q * 1024) for q in range(2)], MAP == 3)
    pub_flag(A, sFL, MAP == 3)
    stamp(A)
    if MAP == 0 and E('SPOLL', 1):
        poll_scalar(A, sM0, 16)
    else:
        poll_global(A, sM0, 16)
    stamp(A)
    vG = [72 + 4 * k for k in range(16)] + [152 + 4 * k for k in range(16)]
    for p in range(16):
        for q in range(2):
            A('buffer_load_dwordx4 %s, v%d, s[%d:%d], s%d offen offset:%d sc1', v(vG[2 * p + q], 4), vO, SWS, SWS + 3,
              sXB, q * 1024)
        A('s_add_u32 s%d, s%d, 4096', sXB, sXB)
    for k in range(32):
        A('s_waitcnt vmcnt(%d)', 31 - k)
        mfma(A, vAC, vID + 4 * (k & 1), vG[k], k == 0)
    A('v_add_u32 v%d, %d, v%d', vTT, L_EX, vTT)
    cvt8(A, 72, vAC)
    for q in range(2):
        A('ds_write_b128 v%d, %s offset:%d', vTT, v(72 + 4 * q, 4), q * 1024)
    set_stage(A, 3)
    stamp(A)
    lend = A.label('LEND')
    A('s_cmp_ge_u32 s%d, 28', sI)
    A('s_cbranch_scc1 %s', lend)
    A('s_cmp_eq_u32 s%d, 0', sTL)
    A('s_cbranch_scc1 %s', lend)
    A('v_lshlrev_b32 v%d, 2, v%d', vXA, vL)
    A('v_add_u32 v%d, %d, v%d', vTT + 2, L_EX, vO)
    A('s_lshl_b32 s%d, s%d, 17', sB, sTB3)
    A('s_add_u32 s%d, s%d, %d', sB, sB, WS_HB)
    for gi in range(4):
        if gi % 2 == 0:
            wait_lp(A, ('hf', gi), 1)
        for q in range(14):
            A('buffer_load_dword v%d, v%d, s[%d:%d], s%d offen offset:%d sc1', 72 + q, vXA, SWS, SWS + 3, sB, q * 256)
        A('s_add_u32 s%d, s%d, 32768', sB, sB)
        A('s_waitcnt vmcnt(0)')
        for q in range(1, 7):
            A('v_pk_add_f32 v[72:73], v[72:73], v[%d:%d]', 72 + 2 * q, 73 + 2 * q)
        A('v_add_f32 v%d, v72, v73', vTT)
        ln_finish(A, vTT, vTT + 1, vNM, vRS)
        hilo_m(A, vNM, 88, vT0)
        A('v_mul_f32 v90, v%d, v%d', vTT + 1, vRS)
        A('v_mul_f32 v91, 0x%x, v%d', LOG2E ^ 0x80000000, vRS)
        A('ds_write_b128 v%d, v[88:91] offset:%d', vTT + 2, gi * 1024)
        set_stage(A, 4 + gi)
    A('%s:', lend)
    A('s_waitcnt lgkmcnt(0)')
    stamp_flush(A)
    A('s_endpgm')


def gen_compute(A):
    vPH, vID, vWF, vAC, vPK = 40, 48, 56, 88, 120
    vMF, vCF = 136, 140
    vE = vWF
    vAC2 = vAC + 16
    vX = vXR
    A('s_setprio %d', E('CPRIO', 1))
    rest_srds(A)
    A('s_lshl_b32 s%d, s%d, 12', sM0, sWV)
    A('v_and_b32 v%d, 31, v%d', vT0, vL)
    A('v_lshlrev_b32 v%d, 7, v%d', vTT, vT0)
    A('v_add_u32 v%d, s%d, v%d', vTT, sM0, vTT)
    A('v_bfe_u32 v%d, v%d, 1, 3', vT0, vL)
    A('v_lshrrev_b32 v%d, 5, v%d', vT1, vL)
    A('v_xor_b32 v%d, v%d, v%d', vT0, vT0, vT1)
    for q in range(4):
        A('v_xor_b32 v%d, %d, v%d', vXA + q, 2 * q, vT0)
        A('v_lshl_add_u32 v%d, v%d, 4, v%d', vXA + q, vXA + q, vTT)
    wtr_base(A)
    for r in (vSM, vSM + 1, vSQ, vSQ + 1, vMF + 2, vMF + 3, vCF + 2, vCF + 3):
        A('v_mov_b32 v%d, 0', r)
    A('s_mov_b32 s%d, 0', sHI)
    A('s_mov_b32 s%d, -1', sHI + 1)
    A('s_bitcmp1_b32 s%d, 0', sH)
    A('s_cselect_b32 s%d, 0xf, 0xf0000000', sPADL)
    A('s_mov_b32 s%d, s%d', sPADL + 1, sPADL)
    A('s_cselect_b32 s%d, -1, 0', sZA)
    A('s_mov_b32 s%d, 0', sZA + 1)
    A('s_mov_b32 s%d, 0', sZB)
    A('s_cselect_b32 s%d, 0, -1', sZB + 1)
    A('s_cselect_b64 s[%d:%d], -1, 0', sODD, sODD + 1)
    sel_frags(A, vID)
    vPA = vRA
    A('v_bfe_u32 v%d, v%d, 2, 2', vT0, vL)
    A('v_lshrrev_b32 v%d, 5, v%d', vT1, vL)
    A('v_lshl_add_u32 v%d, v%d, 2, v%d', vT0, vT1, vT0)
    A('v_mul_u32_u24 v%d, 56, v%d', vT0, vT0)
    A('v_and_b32 v%d, 3, v%d', vT1, vL)
    A('v_bfe_u32 v%d, v%d, 4, 1', vTT, vL)
    A('v_lshl_add_u32 v%d, v%d, 2, v%d', vT1, vTT, vT1)
    A('v_min_u32 v%d, 6, v%d', vT1, vT1)
    A('v_lshl_add_u32 v%d, v%d, 3, v%d', vT0, vT1, vT0)
    A('s_and_b32 s%d, s%d, 1', sT, sH)
    A('s_mul_i32 s%d, s%d, 224', sT, sT)
    A('s_sub_u32 s%d, %d, s%d', sT, L_PHI, sT)
    A('v_add_u32 v%d, s%d, v%d', vPA, sT, vT0)
    tag_compute(A)

    def mm1(B, acc, i, q, swap):
        buf = vWF + 16 * (i & 1)
        xf, wf = vX + (4 * i + q) * 4, buf + 4 * q
        if swap:
            mfma(B, acc, xf, wf, i == 0 and q == 0)
        else:
            mfma(B, acc, wf, xf, i == 0 and q == 0)

    def rw2(Q, pi, i, q):
        buf = vWF + 16 * (i & 1)
        for z in range(2):
            Q.op(('w', i, q), 'ds_read_b64_tr_b16 v[%d:%d], v%d offset:%d', buf + 4 * q + 2 * z, buf + 4 * q + 2 * z + 1,
                 vWA + pi, i * 4096 + q * 1024 + z * 256)

    vXH = vXD
    for q in range(4):
        A('v_add_u32 v%d, 0x10000, v%d', vXH + q, vXA + q)
    Q = LdsQ(A)
    for i in range(7):
        if i:
            stamp(A, 'k')
        wait_lp(A, ('x', i))
        stamp(A, 'k')
        for q in range(4):
            Q.op(('x', i), 'ds_read_b128 %s, v%d offset:%d', v(vX + (4 * i + q) * 4, 4), (vXA if i < 4 else vXH) + q,
                 (i & 3) * 16384)
        if i in (1, 3):
            Q.stage((i + 1) // 2)
        wait_lp(A, ('W', 0, i))
        for q in range(4):
            if i > 0:
                Q.wait(('w', i - 1, q))
                mm1(A, vAC, i - 1, q, False)
            rw2(Q, 0, i, q)
        if i < 6:
            Q.op('pk2', 'ds_read_b128 v[%d:%d], v%d offset:%d', vTT, vTT + 3, vMI, M_PW + 16)
        Q.wait(('x', i))
        for r in range(16):
            x = vX + 16 * i + r
            A('v_dot2c_f32_bf16 v%d, s%d, v%d', vSM + (r & 1), sONES, x)
            A('v_dot2c_f32_bf16 v%d, v%d, v%d', vSQ + (r & 1), x, x)
        if i < 6:
            Q.wait('pk2')
            A('v_readfirstlane_b32 s%d, v%d', sPROG, vTT)
            A('v_readfirstlane_b32 s%d, v%d', sPROG1, vTT + 3)
    Q.stage(3)
    B = sub(A)
    B('v_add_f32 v%d, v%d, v%d', vSM, vSM, vSM + 1)
    B('v_add_f32 v%d, v%d, v%d', vSQ, vSQ, vSQ + 1)
    B('v_permlane32_swap_b32 v%d, v%d', vSM, vSQ)
    B('v_add_f32 v%d, v%d, v%d', vT0, vSM, vSQ)
    ln_finish(B, vT0, vT1, vNM, vRS)
    hilo_m(B, vNM, vMF, vT0)
    B('v_mul_f32 v%d, 0x%x, v%d', vSC, LOG2E, vRS)
    M = sub(A)
    Q.A = M
    for q in range(4):
        Q.wait(('w', 6, q))
        mm1(M, vAC, 6, q, False)
    A.lines += merge(M.lines, [[l] for l in B.lines], 0, 4)

    def cf_phi_reads():
        A('ds_read_b64 v[%d:%d], v%d', vCF, vCF + 1, vCA)
        for sidx in range(2):
            for z in range(2):
                A('ds_read_b64_tr_b16 v[%d:%d], v%d offset:%d', vPH + 4 * sidx + 2 * z, vPH + 4 * sidx + 2 * z + 1,
                  vPA, (16 * sidx + 8 * z) * 56)
        return 5
    wait_word(A, 5, 1, body=cf_phi_reads)
    stamp(A)
    A('s_waitcnt lgkmcnt(4)')

    def project(mid=None):
        mfma(A, vAC, vCF, vMF)
        if mid:
            mid()
        cvt8(A, vPK, vAC)
        mfma(A, vAC, vPH, vPK, True)
        mfma(A, vAC, vPH + 4, vPK + 4)

    def mid_k():
        A('v_and_b32 v%d, 31, v%d', vT0, vL)
        A('s_lshl_b32 s%d, s%d, 7', sT, sWV)
        A('s_add_u32 s%d, s%d, %d', sT, sT, L_RSTD)
        A('v_lshl_add_u32 v%d, v%d, 2, s%d', vT0, vT0, sT)
        A('s_waitcnt lgkmcnt(0)')
        A('ds_write_b32 v%d, v%d', vT0, vRS)
        A('v_lshrrev_b32 v%d, 5, v%d', vRA, vL)
        A('v_lshl_add_u32 v%d, v%d, 4, s%d', vRA, vRA, sT)
        for r in (0, 1):
            A('v_cndmask_b32 v%d, v%d, 0, s[%d:%d]', vPH + r, vPH + r, sZA, sZA + 1)
            A('v_cndmask_b32 v%d, v%d, 0, s[%d:%d]', vPH + 6 + r, vPH + 6 + r, sZB, sZB + 1)

    def gemm_part(B, acc, pi, swap, last_stage=None):
        Q = LdsQ(B)
        wait_lp(B, ('W', pi, 0))
        for q in range(4):
            rw2(Q, pi, 0, q)
        for i in range(7):
            if i == 6 and last_stage:
                Q.stage(last_stage)
            for q in range(4):
                Q.wait(('w', i, q))
                if q == 0:
                    Q.take(4)
                mm1(B, acc, i, q, swap)
                if i < 6:
                    if q == 0:
                        wait_lp(B, ('W', pi, i + 1))
                        if i < 5:
                            Q.peek(4)
                    rw2(Q, pi, i + 1, q)

    vOW = vXD
    A('v_add_u32 v%d, s%d, v%d', vOW, sM0, vO)
    A('v_add_u32 v%d, %d, v%d', vOW, L_KVA, vOW)
    project(mid_k)
    M, B = sub(A), sub(A)
    gemm_part(M, vAC2, 1, True)
    softmax_pm(B, vAC, vSC, vPK, vTT)
    if E('VOVL', 1):
        A.lines += merge(M.lines, [[l] for l in B.lines], 0, 28)
    else:
        A.lines += B.lines + M.lines

    def cfv_reads():
        A('ds_read_b64 v[%d:%d], v%d offset:%d', vCF, vCF + 1, vCA, 512)
        for q in range(4):
            A('ds_read_b128 %s, v%d offset:%d', v((vAC + 8, vAC + 12, vPK + 8, vPK + 12)[q], 4), vRA, q * 32)
        return 5
    for t_, src in ((0, vAC), (1, vPK)):
        mfma(A, vWF + 16 * t_, src, vID, True)
        mfma(A, vWF + 16 * t_, src + 4, vID + 4)
    wait_word(A, 6, 1, body=cfv_reads)
    A('s_waitcnt lgkmcnt(4)')
    mfma(A, vAC2, vMF, vCF)
    A('v_mov_b32 v%d, 0x%x', vT1, ONES)
    cvt8(A, vWF, vWF)
    cvt8(A, vWF + 8, vWF + 16)
    for q in range(4):
        A('ds_write_b128 v%d, %s offset:%d', vOW, v(vWF + 4 * q, 4), q * 1024)
    A('s_waitcnt lgkmcnt(4)')
    for r in range(0, 16, 2):
        rs = (vAC + 8 + r) if r < 8 else (vPK + r)
        A('v_pk_mul_f32 v[%d:%d], v[%d:%d], v[%d:%d]', vAC2 + r, vAC2 + r + 1, vAC2 + r, vAC2 + r + 1, rs, rs + 1)
    cvt8(A, vPK, vAC2)
    for r in range(8):
        A('v_cndmask_b32 v%d, v%d, v%d, s[%d:%d]', vPK + r, vPK + r, vT1, sPADL, sPADL + 1)
    for q in range(2):
        A('ds_write_b128 v%d, %s offset:%d', vOW, v(vPK + 4 * q, 4), L_KVV - L_KVA + q * 1024)
    set_stage(A, C0 + 1)
    stamp(A)
    gemm_part(A, vAC, 2, False, C0 + 3)

    def cfq_reads():
        A('ds_read_b64 v[%d:%d], v%d offset:%d', vCF, vCF + 1, vCA, 2 * 512)
        A('ds_read_b32 v%d, v%d offset:%d', vPW + 1, vMI, M_FAST)
        return 2
    wait_word(A, 7, 8, body=cfq_reads)
    A('s_waitcnt lgkmcnt(0)')
    A('v_readfirstlane_b32 s%d, v%d', sFASTF, vPW + 1)
    project()
    softmax_pm(A, vAC, vSC, vPK, vTT)
    vQF = [vAC, vAC + 4, vPK, vPK + 4]
    stamp(A)
    vW1A = vXA
    A('v_bfe_u32 v%d, v%d, 2, 2', vT0, vL)
    A('v_lshrrev_b32 v%d, 5, v%d', vT1, vL)
    A('v_lshl_add_u32 v%d, v%d, 2, v%d', vT1, vT1, vT0)
    A('v_lshlrev_b32 v%d, 8, v%d', vW1A, vT1)
    A('v_lshlrev_b32 v%d, 7, v%d', vWA, vT1)
    A('v_xor_b32 v%d, s%d, v%d', vT0, sWV, vT0)
    A('v_lshl_add_u32 v%d, v%d, 6, v%d', vW1A, vT0, vW1A)
    A('v_bfe_u32 v%d, v%d, 4, 1', vT1, vL)
    A('v_lshlrev_b32 v%d, 5, v%d', vT1, vT1)
    A('v_and_b32 v%d, 3, v%d', vT0, vL)
    A('v_lshl_add_u32 v%d, v%d, 3, v%d', vT1, vT0, vT1)
    A('v_add_u32 v%d, v%d, v%d', vW1A, vW1A, vT1)
    A('v_add_u32 v%d, 0x8000, v%d', vW1A + 1, vW1A)
    A('v_add_u32 v%d, v%d, v%d', vWA, vWA, vT1)
    A('v_bfe_u32 v%d, v%d, 3, 1', vT1, vL)
    A('v_lshl_add_u32 v%d, v%d, 6, v%d', vWA, vT1, vWA)

    def w1_copy(c):
        wait_lp(A, ('w1', c))
        for q in range(4):
            for z in range(2):
                off = w1_slot(c) + (16 * q + 8 * z) * 256
                base = vW1A
                if off >= 0x8000:
                    off -= 0x8000
                    base += 1
                r = vXR + (4 * c + q) * 4 + 2 * z
                A('ds_read_b64_tr_b16 v[%d:%d], v%d offset:%d', r, r + 1, base, off)

    idle = A.label('IDLE')
    A('s_cmp_ge_u32 s%d, 28', sI)
    A('s_cbranch_scc1 %s', idle)
    w1_copy(0)
    w1_copy(1)
    set_stage(A, C0 + 4)
    A('%s:', idle)
    A('s_lshl_b32 s%d, s%d, 2', sFL, sTB)
    A('s_add_u32 s%d, s%d, s%d', sFL, sFL, sWV)
    A('s_lshl_b32 s%d, s%d, 4', sFL, sFL)
    A('s_add_u32 s%d, s%d, s%d', sFL, sFL, sH)
    A('s_lshl_b32 s%d, s%d, 11', sB, sFL)
    A('s_add_u32 s%d, s%d, %d', sB, sB, WS_OB)
    A('s_lshl_b32 s%d, s%d, 2', sFL, sFL)
    A('s_add_u32 s%d, s%d, %d', sFL, sFL, F2)
    vEX = vXD + 1
    A('v_add_u32 v%d, %d, v%d', vEX, L_EX, vO)

    def ex_reads():
        for q in range(4):
            A('ds_read_b128 %s, v%d offset:%d', v(vWF + 4 * q, 4), vEX, q * 1024)
        return 4
    wait_stage(A, 3, (5, 6), body=ex_reads)
    stamp(A)
    for q in range(4):
        A('s_waitcnt lgkmcnt(%d)', 3 - q)
        mfma(A, vAC2, vWF + 4 * q, vQF[q], q == 0)
    A('v_cndmask_b32 v%d, v%d, v%d, s[%d:%d]', vT0, vAC2 + 12, vAC2, sODD, sODD + 1)
    A('v_mov_b32 v%d, v%d', vT1, vT0)
    A('v_permlane32_swap_b32 v%d, v%d', vT0, vT1)
    A('v_cndmask_b32 v%d, v%d, v%d, s[%d:%d]', vTT, vT1, vT0, sODD, sODD + 1)
    A('v_add_f32 v%d, 0x%x, v%d', vTT, 0x358637bd, vTT)
    A('v_rcp_f32 v%d, v%d', vTT, vTT)
    for r in range(0, 16, 2):
        A('v_pk_mul_f32 v[%d:%d], v[%d:%d], v[%d:%d] op_sel_hi:[1,0]', vAC2 + r, vAC2 + r + 1, vAC2 + r, vAC2 + r + 1,
          vTT, vTT + 1)
    cvt8(A, vPK, vAC2)
    for r in (0, 1):
        A('v_cndmask_b32 v%d, v%d, 0, s[%d:%d]', vPK + r, vPK + r, sZA, sZA + 1)
        A('v_cndmask_b32 v%d, v%d, 0, s[%d:%d]', vPK + 6 + r, vPK + 6 + r, sZB, sZB + 1)
    pub_stores(A, [st4(vPK + 4 * q, sB, q * 1024) for q in range(2)], MAP == 0 and not WTO)
    A('s_and_b32 s%d, s%d, 1', sG, sWV)
    A('s_lshr_b32 s%d, s%d, 1', sKH, sWV)
    A('s_lshl_b32 s%d, s%d, 1', sT, sTQ)
    A('s_add_u32 s%d, s%d, s%d', sG, sG, sT)
    A('s_lshl_b32 s%d, s%d, 6', sT, sKH)
    A('v_xor_b32 v%d, s%d, v%d', vWA, sT, vWA)
    A('v_xor_b32 v%d, 64, v%d', vWA + 1, vWA)
    A('s_mul_i32 s%d, s%d, %d', sT, sKH, 224 * 128)
    A('s_add_u32 s%d, s%d, %d', sT, sT, L_A)
    A('v_add_u32 v%d, s%d, v%d', vWA + 2, sT, vWA)
    A('v_add_u32 v%d, s%d, v%d', vWA + 3, sT, vWA + 1)
    vSW, vSR, vPP, vXS = vXA + 2, vXA + 3, vSM, vSM + 1
    A('s_and_b32 s%d, s%d, 1', sC, sWV)
    A('s_lshl_b32 s%d, s%d, 12', sC, sC)
    A('v_add_u32 v%d, s%d, v%d', vSW, sC, vO)
    A('s_cmp_eq_u32 s%d, 0', sKH)
    A('s_cselect_b32 s%d, %d, %d', sT, L_SC0 >> 12, L_SC1 >> 12)
    A('s_cselect_b32 s%d, %d, %d', sT2, L_SC1 >> 12, L_SC0 >> 12)
    A('s_lshl_b32 s%d, s%d, 12', sT, sT)
    A('s_lshl_b32 s%d, s%d, 12', sT2, sT2)
    A('v_add_u32 v%d, s%d, v%d', vSR, sT2, vSW)
    A('v_add_u32 v%d, s%d, v%d', vSW, sT, vSW)
    A('v_xor_b32 v%d, 8, v%d', vPP, vMY)
    A('v_and_b32 v%d, 31, v%d', vXS, vL)
    A('v_lshlrev_b32 v%d, 7, v%d', vXS, vXS)
    A('v_lshrrev_b32 v%d, 5, v%d', vT1, vL)
    A('v_lshl_add_u32 v%d, v%d, 3, v%d', vXS, vT1, vXS)
    A('s_lshl_b32 s%d, s%d, 6', sT2, sKH)
    A('s_add_u32 s%d, s%d, s%d', sC, sC, sT2)
    A('v_add_u32 v%d, s%d, v%d', vXS, sC, vXS)
    A('s_lshl_b32 s%d, s%d, 15', sB, sG)
    A('s_lshl_b32 s%d, s%d, 14', sT, sKH)
    A('s_add_u32 s%d, s%d, s%d', sB, sB, sT)
    A('s_add_u32 s%d, s%d, %d', sB, sB, WS_OB)
    A('s_lshl_b32 s%d, s%d, 6', sC, sG)
    A('s_lshl_b32 s%d, s%d, 5', sT, sKH)
    A('s_add_u32 s%d, s%d, s%d', sC, sC, sT)
    A('s_add_u32 s%d, s%d, %d', sC, sC, F2)
    pub_flag(A, sFL, MAP == 0)
    set_stage(A, C0 + 5)
    stamp(A)
    fin = A.label('FIN')
    A('s_cmp_ge_u32 s%d, 28', sI)
    A('s_cbranch_scc1 %s', fin)

    vHP = 120
    vB2 = [40 + 4 * k for k in range(8)] + [224 + 4 * k for k in range(8)]
    vWF2 = 72
    wait_lp(A, 'wo')

    def wo_row(k):
        hh = k // 2
        return 28 * hh - 4 * (hh & 1) + 16 * (k & 1)

    def read_wo(k):
        buf = vWF2 + 8 * (k & 1)
        for nt in range(2):
            for z in range(2):
                A('ds_read_b64_tr_b16 v[%d:%d], v%d offset:%d', buf + 4 * nt + 2 * z, buf + 4 * nt + 2 * z + 1,
                  vWA + 2 + nt, (wo_row(k) + 8 * z) * 128)

    def unpack_hp():
        for r in range(8):
            A('v_lshlrev_b32 v%d, 16, v%d', vAC + 2 * r, vHP + r)
            A('v_and_b32 v%d, 0xffff0000, v%d', vAC + 2 * r + 1, vHP + r)

    read_wo(0)
    if MAP == 3 and E('SPOLL', 1):
        poll_scalar(A, sC, 8)
    else:
        poll_global(A, sC, 8)
    stamp(A)
    for k in range(16):
        A('buffer_load_dwordx4 %s, v%d, s[%d:%d], s%d offen offset:%d sc1', v(vB2[k], 4), vO, SWS, SWS + 3, sB,
          (k & 3) * 1024)
        if (k & 3) == 3:
            A('s_add_u32 s%d, s%d, 4096', sB, sB)
    A('s_lshl_b32 s%d, s%d, 1', sT2, sNB)
    A('s_add_u32 s%d, s%d, s%d', sT2, sT2, sKH)
    A('s_lshl_b32 s%d, s%d, 15', sB, sG)
    A('s_add_u32 s%d, s%d, %d', sB, sB, WS_HB)
    A('s_lshl_b32 s%d, s%d, 8', sC, sT2)
    A('s_add_u32 s%d, s%d, s%d', sC, sC, sB)
    A('s_lshl_b32 s%d, s%d, 11', sT, sT2)
    A('s_add_u32 s%d, s%d, s%d', sB, sB, sT)
    A('s_add_u32 s%d, s%d, 4096', sB, sB)
    A('s_lshl_b32 s%d, s%d, 2', sFL, sT2)
    A('s_lshl_b32 s%d, s%d, 6', sT, sG)
    A('s_add_u32 s%d, s%d, s%d', sFL, sFL, sT)
    A('s_add_u32 s%d, s%d, %d', sFL, sFL, F3)
    wait_lp(A, 'xres')
    for q in range(4):
        A('ds_read_b64 v[%d:%d], v%d offset:%d', vHP + 2 * q, vHP + 2 * q + 1, vXS, L_XRES + q * 16)
    A('v_mov_b32 v%d, 1', vT1)
    A('ds_write_b32 v%d, v%d offset:%d', vMY, vT1, M_RES)
    A('s_waitcnt lgkmcnt(1)')
    unpack_hp()
    lo, done = A.label('W'), A.label('WD')
    A('%s:', lo)
    A('ds_read_b32 v%d, v%d offset:%d', vPW, vPP, M_RES)
    A('s_waitcnt lgkmcnt(0)')
    A('v_readfirstlane_b32 s%d, v%d', sT, vPW)
    spin_guard(A, done)
    A('s_cmp_ge_u32 s%d, 1', sT)
    A('s_cbranch_scc0 %s', lo)
    A('%s:', done)
    for k in range(16):
        if k < 15:
            read_wo(k + 1)
        A('s_waitcnt vmcnt(%d) lgkmcnt(%d)', 15 - k, 4 if k < 15 else 0)
        buf = vWF2 + 8 * (k & 1)
        mfma(A, vAC + 16, buf + 4, vB2[k], k == 0)
        mfma(A, vAC, buf, vB2[k])
    stamp(A)

    def exchange(st):
        for q in range(4):
            A('ds_write_b128 v%d, %s offset:%d', vSW, v(vAC + 16 + 4 * q, 4), q * 1024)
        set_stage(A, st)
        lo, done = A.label('W'), A.label('WD')
        A('%s:', lo)
        A('ds_read_b32 v%d, v%d', vPW, vPP)
        for q in range(4):
            A('ds_read_b128 %s, v%d offset:%d', v(vWF2 + 4 * q, 4), vSR, q * 1024)
        A('s_waitcnt lgkmcnt(4)')
        A('v_readfirstlane_b32 s%d, v%d', sT, vPW)
        spin_guard(A, done)
        A('s_cmp_ge_u32 s%d, %d', sT, st)
        A('s_cbranch_scc0 %s', lo)
        A('%s:', done)
        for q in range(4):
            A('s_waitcnt lgkmcnt(%d)', 3 - q)
            for r in (0, 2):
                a0 = vAC + 4 * q + r
                A('v_pk_add_f32 v[%d:%d], v[%d:%d], v[%d:%d]', a0, a0 + 1, a0, a0 + 1, vWF2 + 4 * q + r,
                  vWF2 + 4 * q + r + 1)

    exchange(C0 + 6)
    set_stage(A, C0 + 7)
    cvt8(A, vHP, vAC)
    pub_stores(A, [st4(vHP + 4 * q, sB, q * 1024) for q in range(2)], not WTO)
    A('v_mov_b32 v%d, 0', vTT)
    A('v_mov_b32 v%d, 0', vTT + 1)
    for r in range(8):
        A('v_dot2c_f32_bf16 v%d, s%d, v%d', vTT, sONES, vHP + r)
        A('v_dot2c_f32_bf16 v%d, v%d, v%d', vTT + 1, vHP + r, vHP + r)
    A('v_lshlrev_b32 v%d, 2, v%d', vTT + 2, vL)
    A('v_permlane32_swap_b32 v%d, v%d', vTT, vTT + 1)
    A('v_add_f32 v%d, v%d, v%d', vTT, vTT, vTT + 1)
    pub_stores(A, ['buffer_store_dword v%d, v%d, s[%d:%d], s%d offen%%s' % (vTT, vTT + 2, SWS, SWS + 3, sC)], not WTO)
    for c in (2, 3):
        w1_copy(c)
    pub_flag(A, sFL, True)
    stamp(A)
    vCS = vSQ
    for c in (4, 5, 6):
        w1_copy(c)
    set_stage(A, C0 + 8)
    A('v_mov_b32 v%d, 0', vCS)
    A('v_mov_b32 v%d, 0', vCS + 1)
    for r in range(112):
        if r == 32:
            A('s_waitcnt lgkmcnt(0)')
        A('v_dot2c_f32_bf16 v%d, s%d, v%d', vCS + (r & 1), sONES, vXR + r)
    A('v_add_f32 v%d, v%d, v%d', vCS, vCS, vCS + 1)
    hilo_c(A, vCS, vCF, vT0)
    vBR = 40
    vE3 = 72
    vMF2, vSD = 128, 132
    A('s_mul_i32 s%d, s%d, %d', sB, sTB3, 4 * 112)
    A('s_lshl_b32 s%d, s%d, 3', sT, sFB)
    A('s_add_u32 s%d, s%d, s%d', sB, sB, sT)
    A('s_lshl_b32 s%d, s%d, 1', sT, sWV)
    A('s_add_u32 s%d, s%d, s%d', sB, sB, sT)
    A('s_lshl_b32 s%d, s%d, 10', sB, sB)
    A('s_add_u32 s%d, s%d, %d', sB, sB, WS_H1B)
    A('s_lshl_b32 s%d, s%d, 10', sFL, sTB3)
    A('s_lshl_b32 s%d, s%d, 4', sT, sFB)
    A('s_add_u32 s%d, s%d, s%d', sFL, sFL, sT)
    A('s_lshl_b32 s%d, s%d, 2', sT, sWV)
    A('s_add_u32 s%d, s%d, s%d', sFL, sFL, sT)
    A('s_add_u32 s%d, s%d, %d', sFL, sFL, F4)

    def p3_epilogue(gi, packed=False):
        B = sub(A)
        acc = vAC + 16 * (gi & 1)
        e = vE3
        sd, c1 = vSD, vSD + 1
        if packed:
            pk = lambda r: 'v[%d:%d]' % (r, r + 1)
            for r in range(0, 16, 2):
                B('v_pk_mul_f32 %s, %s, %s op_sel:[0,1] op_sel_hi:[1,1]', pk(e + r), pk(acc + r), pk(sd))
            for r in range(16):
                B('v_exp_f32 v%d, v%d', e + r, e + r)
            for r in range(0, 16, 2):
                B('v_pk_fma_f32 %s, %s, %s, %s op_sel_hi:[1,0,0]', pk(e + r), pk(e + r), pk(sd), pk(sd))
            for r in range(16):
                B('v_rcp_f32 v%d, v%d', e + r, e + r)
            for r in range(0, 16, 2):
                B('v_pk_mul_f32 %s, %s, %s', pk(e + r), pk(e + r), pk(acc + r))
        else:
            for r in range(16):
                B('v_mul_f32 v%d, v%d, v%d', e + r, acc + r, c1)
                if r >= 1:
                    B('v_exp_f32 v%d, v%d', e + r - 1, e + r - 1)
            B('v_exp_f32 v%d, v%d', e + 15, e + 15)
            for r in range(16):
                B('v_fma_f32 v%d, v%d, v%d, v%d', e + r, e + r, sd, sd)
                if r >= 1:
                    B('v_rcp_f32 v%d, v%d', e + r - 1, e + r - 1)
            B('v_rcp_f32 v%d, v%d', e + 15, e + 15)
            for r in range(16):
                B('v_mul_f32 v%d, v%d, v%d', e + r, e + r, acc + r)
        cvt8(B, acc, e)
        blocks = [[l] for l in B.lines]
        B = sub(A)
        pub_stores(B, [st4(acc + 4 * q, sB, q * 1024) for q in range(2)], not WT1)
        B('s_add_u32 s%d, s%d, %d', sB, sB, 112 * 1024)
        blocks.append(B.lines)
        return blocks

    def p3_flag(B):
        pub_flag(B, sFL, True)
        B('s_add_u32 s%d, s%d, 256', sFL, sFL)

    PRE = E('P3PRE', 6)
    vHB = vXD + 2
    A('v_add_u32 v%d, %d, v%d', vHB, L_A, vO)
    A('v_add_u32 v%d, %d, v%d', vHB + 1, 65536, vO)
    A('s_mov_b32 s%d, 0', CACHE[6])
    Q = LdsQ(A)

    def rd(n):
        gi, k = divmod(n, 28)
        if (k + 5) % 8 == 0 and k != 3:
            Q.take(7)
        if (k + 4) % 8 == 0 or k == 0:
            wait_lp(Q.A, ('h', gi, (k + 4) // 8))
        Q.op(('b', n), 'ds_read_b128 %s, v%d offset:%d', v(vBR + 4 * (n % 8), 4), (vHB, vHB, vO, vHB + 1)[gi],
             (28672 if gi == 1 else 0) + k * 1024)
        if k == 27:
            Q.stage(C0 + 9 + gi)
        nn = n + PRE + 2
        if nn < 112 and ((nn % 28 + 4) % 8 == 0 or nn % 28 == 0) and nn % 28 != 4:
            Q.peek(7)

    for n in range(PRE):
        rd(n)
    for gi in range(4):
        acc = vAC + 16 * (gi & 1)
        M = sub(A)
        Q.A = M
        for k in range(28):
            n = 28 * gi + k
            if n + PRE < 112:
                rd(n + PRE)
            if k == 14:
                Q.op('s6', 'ds_read_b32 v%d, v%d offset:%d', vPK_ + 1, vMI, M_PW + 24)
                Q.op('sf', 'ds_read_b128 %s, v%d offset:%d', v(vMF2, 4), vEX, gi * 1024)
            if k == 24:
                Q.wait('sf')
                M('v_readfirstlane_b32 s%d, v%d', sC, vPK_ + 1)

                def st_slow(B, back):
                    def st_read():
                        B('ds_read_b128 %s, v%d offset:%d', v(vMF2, 4), vEX, gi * 1024)
                        return 0
                    wait_word(B, 6, 4 + gi, body=st_read)
                ent, back = cold_block(M, st_slow)
            if k == 25:
                M('s_cmp_ge_u32 s%d, %d', sC, 4 + gi)
                M('s_cbranch_scc0 %s', ent)
                M('%s:', back)
                M('v_mov_b32 v%d, v%d', vMF, vMF2)
                M('v_mov_b32 v%d, v%d', vMF + 1, vMF2 + 1)
            if k % 2 == 0:
                Q.wait(('b', n + 1))
            if k in (0, 12):
                stamp(M, 'p3')
            if gi == 3 and k % 2 == 0 and k:
                stamp(M, 'p33')
            if k == E('P3FLAGK', 14) and gi >= 2:
                p3_flag(M)
            mfma(M, acc, vXR + 4 * k, vBR + 4 * (n % 8), k == 0)
        mfma(M, acc, vCF, vMF)
        M('v_mov_b32 v%d, v%d', vSD, vMF2 + 2)
        M('v_mov_b32 v%d, v%d', vSD + 1, vMF2 + 3)
        A.lines += merge(M.lines, p3_epilogue(gi - 1) if gi > 0 else [], 1, 27)
        if gi == 0:
            stamp(A)
        stamp(A, 'p3')
    stamp(A)
    for j, b in enumerate(p3_epilogue(3, True)):
        if j == 30:
            p3_flag(A)
        A.lines += b
    NB = 28
    vWF4 = 40
    A('s_mul_i32 s%d, s%d, %d', sB, sG, 112 * 1024)
    A('s_mul_i32 s%d, s%d, %d', sT, sKH, 56 * 1024)
    A('s_add_u32 s%d, s%d, s%d', sB, sB, sT)
    A('s_add_u32 s%d, s%d, %d', sB, sB, WS_H1B)
    A('s_lshl_b32 s%d, s%d, 8', sC, sG)
    A('s_mul_i32 s%d, s%d, 112', sT, sKH)
    A('s_add_u32 s%d, s%d, s%d', sC, sC, sT)
    A('s_add_u32 s%d, s%d, %d', sC, sC, F4)

    def w2_base(c):
        A('s_cmp_eq_u32 s%d, 0', sKH)
        A('s_cselect_b32 s%d, %d, %d', sT, w2_slot(2 * c) >> 12, w2_slot(2 * c + 1) >> 12)
        A('s_lshl_b32 s%d, s%d, 12', sT, sT)
        A('v_add_u32 v%d, s%d, v%d', vWA + 2, sT, vWA)
        A('v_add_u32 v%d, s%d, v%d', vWA + 3, sT, vWA + 1)

    Q = LdsQ(A)

    def read_w2(k):
        if k % 4 == 3:
            Q.take(4)
        if k % 4 == 0:
            wait_lp(A, ('w2', 2 * (k // 4) + 1))
            w2_base(k // 4)
        buf = vWF4 + 8 * (k & 3)
        for nt in range(2):
            for z in range(2):
                Q.op(('w', k), 'ds_read_b64_tr_b16 v[%d:%d], v%d offset:%d', buf + 4 * nt + 2 * z,
                     buf + 4 * nt + 2 * z + 1, vWA + 2 + nt, ((k % 4) * 16 + 8 * z) * 128)
        if k % 4 == 0 and k < 52:
            Q.peek(4)
        if k % 4 == 3 and (k // 4) <= 5:
            Q.stage(C0 + 13 + k // 4)

    def issue_b(k):
        A('buffer_load_dwordx4 %s, v%d, s[%d:%d], s%d offen offset:%d sc1', v(vXR + 4 * (k % NB), 4), vO, SWS, SWS + 3,
          sB, (k & 3) * 1024)
        if (k & 3) == 3:
            A('s_add_u32 s%d, s%d, 4096', sB, sB)

    unpack_hp()
    read_w2(0)
    read_w2(1)
    p3_flag(A)
    stamp(A)
    poll_global(A, sC, 28)
    stamp(A)
    INFL = E('P4INFL', 10)
    for k in range(INFL):
        issue_b(k)
    issued = INFL
    for k in range(56):
        if k + 2 < 56:
            read_w2(k + 2)
        Q.wait(('w', k), issued - k - 1)
        if k % 4 == 0 and k:
            stamp(A, 'p4')
        if 40 <= k < 53:
            stamp(A, 'p44')
        buf = vWF4 + 8 * (k & 3)
        mfma(A, vAC + 16, buf + 4, vXR + 4 * (k % NB), k == 0)
        mfma(A, vAC, buf, vXR + 4 * (k % NB))
        if issued < 56:
            issue_b(issued)
            issued += 1
    stamp(A)
    A('v_and_b32 v%d, 31, v%d', vTT, vL)
    A('v_mul_u32_u24 v%d, 896, v%d', vTT, vTT)
    A('v_lshrrev_b32 v%d, 5, v%d', vT1, vL)
    A('v_lshl_add_u32 v%d, v%d, 4, v%d', vTT, vT1, vTT)
    A('s_mul_i32 s%d, s%d, %d', sB, sG, 32 * 896)
    A('s_lshl_b32 s%d, s%d, 7', sT2, sNB)
    A('s_add_u32 s%d, s%d, s%d', sB, sB, sT2)
    A('s_lshl_b32 s%d, s%d, 6', sT2, sKH)
    A('s_add_u32 s%d, s%d, s%d', sB, sB, sT2)
    exchange(C0 + 27)
    cvt8(A, vHP, vAC)
    for q in range(2):
        A('v_permlane32_swap_b32 v%d, v%d', vHP + 4 * q, vHP + 4 * q + 2)
        A('v_permlane32_swap_b32 v%d, v%d', vHP + 4 * q + 1, vHP + 4 * q + 3)
    for q in range(2):
        A('buffer_store_dwordx4 %s, v%d, s[%d:%d], s%d offen offset:%d', v(vHP + 4 * q, 4), vTT, SOUT, SOUT + 3, sB,
          q * 32)
    A('s_or_b32 s%d, s2, s%d', sT, sWV)
    A('s_cmp_lg_u32 s%d, 0', sT)
    A('s_cbranch_scc1 %s', fin)
    A('s_mov_b32 s%d, %d', sT, FEP)
    A('s_mov_b64 exec, 1')
    A('buffer_store_dword v%d, v%d, s[%d:%d], s%d offen', vTAG, vO, SWS, SWS + 3, sT)
    A('s_mov_b64 exec, -1')
    A('%s:', fin)
    stamp_flush(A)


def gen():
    A = Asm()
    name = NAME + '_kernel'
    A.lines += ['.p2align 8', '.globl %s' % name, '.type %s,@function' % name, '%s:' % name]
    end = A.label('END')
    A('s_getpc_b64 s[%d:%d]', sPC, sPC + 1)
    A('s_cmp_ge_u32 s2, 256')
    A('s_cbranch_scc1 %s', end)
    A('s_load_dwordx16 s[64:79], s[0:1], 0')
    A('s_load_dwordx2 s[80:81], s[0:1], 72')
    if DBGT:
        A('s_load_dwordx2 s[86:87], s[0:1], 64')
    A('s_mov_b32 s%d, 0x400000', sSPIN)
    A('s_and_b32 s%d, s2, 7', sXCD)
    A('s_lshr_b32 s%d, s2, 3', sI)
    if MAP == 0:
        perm = [2, 4, 6, 9, 11, 13, 0, 1, 3, 5, 7, 8, 10, 12, 14, 15]
        lo = sum(perm[i] << (4 * i) for i in range(8))
        hi = sum(perm[8 + i] << (4 * i) for i in range(8))
        A('s_mov_b32 s%d, 0x%x', sHI, lo)
        A('s_mov_b32 s%d, 0x%x', sHI + 1, hi)
        A('s_lshr_b32 s%d, s%d, 1', sT, sI)
        A('s_lshl_b32 s%d, s%d, 2', sT, sT)
        A('s_lshr_b64 s[%d:%d], s[%d:%d], s%d', sHI, sHI + 1, sHI, sHI + 1, sT)
        A('s_and_b32 s%d, s%d, 15', sH, sHI)
        A('s_and_b32 s%d, s%d, 1', sTB, sI)
        A('s_lshl_b32 s%d, s%d, 1', sT, sXCD)
        A('s_add_u32 s%d, s%d, s%d', sTB, sTB, sT)
    else:
        A('s_lshr_b32 s%d, s%d, 1', sTB, sI)
        A('s_and_b32 s%d, s%d, 1', sH, sI)
        A('s_lshl_b32 s%d, s%d, 1', sT, sXCD)
        A('s_add_u32 s%d, s%d, s%d', sH, sH, sT)
    A('s_add_u32 s%d, s%d, s%d', sC0, sXCD, sI)
    A('s_mul_i32 s%d, s%d, 37', sT, sC0)
    A('s_lshr_b32 s%d, s%d, 8', sT, sT)
    A('s_mul_i32 s%d, s%d, 7', sT, sT)
    A('s_sub_u32 s%d, s%d, s%d', sC0, sC0, sT)
    A('s_mul_i32 s%d, s%d, 37', sTQ, sI)
    A('s_lshr_b32 s%d, s%d, 8', sTQ, sTQ)
    A('s_mul_i32 s%d, s%d, 7', sNB, sTQ)
    A('s_sub_u32 s%d, s%d, s%d', sNB, sI, sNB)
    A('s_lshr_b32 s%d, s%d, 1', sTB3, sTQ)
    A('s_mul_i32 s%d, s%d, 14', sFB, sTB3)
    A('s_sub_u32 s%d, s%d, s%d', sFB, sI, sFB)
    A('s_lshl_b32 s%d, s%d, 2', sT, sXCD)
    A('s_add_u32 s%d, s%d, s%d', sTQ, sTQ, sT)
    A('s_lshl_b32 s%d, s%d, 1', sT, sXCD)
    A('s_add_u32 s%d, s%d, s%d', sTB3, sTB3, sT)
    A('v_lshrrev_b32 v%d, 6, v0', vL)
    A('v_readfirstlane_b32 s%d, v%d', sWV, vL)
    A('v_lshlrev_b32 v%d, 2, v%d', vMY, vL)
    A('v_add_u32 v%d, %d, v%d', vMY, L_MISC, vMY)
    A('v_and_b32 v%d, 63, v0', vL)
    A('v_lshlrev_b32 v%d, 4, v%d', vO, vL)
    A('v_mov_b32 v%d, %d', vMI, L_MISC)
    A('v_mov_b32 v%d, 0', vT0)
    A('ds_write_b32 v%d, v%d', vMY, vT0)
    A('ds_write_b32 v%d, v%d offset:%d', vMY, vT0, M_RES)
    A('ds_write_b32 v%d, v%d offset:%d', vMY, vT0, M_FAST)
    A('s_mov_b32 s%d, 0', sPROG)
    A('s_mov_b32 s%d, 0', sFASTF)
    A('s_mov_b32 s%d, 0x%x', sONES, ONES)
    early_offsets(A)
    A('s_waitcnt lgkmcnt(0)')
    A('s_barrier')
    A('s_mov_b32 s%d, 0', sPROG1)
    srd(A, SX, 64, S * D * 2)
    srd(A, SW, 66, D * 3 * D * 2)
    _st['n'] = 0
    stamp(A, 'all')
    if STAMPS:
        A('s_memrealtime s[86:87]')
    for i in range(7):
        LP[('x', i)] = (7, 1 + i)
    for gi in range(4):
        LP[('hf', gi)] = (7, 9 + 9 * (gi // 2))
        for q in range(4):
            LP[('h', gi, q)] = (7, 10 + 4 * gi + gi // 2 + q)
    for pi in range(3):
        for i in range(7):
            LP[('W', pi, i)] = (4, 7 * pi + i + 1)
    l0, l1, l2, lw, lc = A.label('H0'), A.label('H1'), A.label('H23'), A.label('EW'), A.label('EC')
    A('s_cmp_eq_u32 s%d, 4', sWV)
    A('s_cbranch_scc1 %s', lw)
    A('s_cmp_lg_u32 s%d, 7', sWV)
    A('s_cbranch_scc1 %s', lc)
    HELP['on'] = True
    nst = {}
    prio(A, 1)
    _st['n'] = 1
    early_x(A)
    nst[l1] = _st['n']
    A('s_branch %s', l1)
    A('%s:', lw)
    prio(A, 1)
    _st['n'] = 1
    early_w(A)
    nst[l0] = _st['n']
    nst[l2] = 1
    A('s_branch %s', l0)
    A('%s:', lc)
    A('s_cmp_ge_u32 s%d, 5', sWV)
    A('s_cbranch_scc1 %s', l2)
    parts = {}
    for lab, fn in ((l0, gen_h0), (l1, gen_h1), (l2, gen_h23)):
        B = sub(A)
        B('%s:', lab)
        B('s_nop 4')
        HELP['on'] = True
        prio(B, 1)
        _st['n'] = nst[lab]
        fn(B)
        HELP['on'] = False
        parts[lab] = B.lines
    _st['n'] = 1
    gen_compute(A)
    A('%s:', end)
    A('s_endpgm')
    for lab in (l0, l1, l2):
        A.lines += parts[lab]
    A.lines += COLD
    return A, name


def main():
    out = sys.argv[1] if len(sys.argv) > 1 else 'cdna_kernels/%s.s' % NAME
    A, name = gen()
    lines, nn = fix_hazards(A.lines)
    hdr = ['; generated by gen/gen5.py (hand-written generator script)',
           '; @launch grid=(256,1,1) block=(512,1,1) lds=%d' % LDS_SIZE,
           '.amdgcn_target "amdgcn-amd-amdhsa--gfx950"', '.text']
    tail = ['.p2align 8', '.fill 2048, 4, 0xbf800000', '.section .rodata,"a"', '.p2align 6', '''.amdhsa_kernel %s
  .amdhsa_next_free_vgpr 256
  .amdhsa_next_free_sgpr 102
  .amdhsa_accum_offset 256
  .amdhsa_group_segment_fixed_size 0
  .amdhsa_kernarg_size 80
  .amdhsa_user_sgpr_count 2
  .amdhsa_user_sgpr_kernarg_segment_ptr 1
  .amdhsa_system_sgpr_workgroup_id_x 1
  .amdhsa_float_denorm_mode_32 3
  .amdhsa_float_denorm_mode_16_64 3
.end_amdhsa_kernel''' % name]
    open(out, 'w').write('\n'.join(hdr + lines + tail) + '\n')
    print('wrote', out, 'lines', len(lines), 'nops', nn)


if __name__ == '__main__':
    main()
```

```python
import sys
import os
sys.path.insert(0, os.path.dirname(os.path.abspath(__file__)))
from asmlib import Asm, fix_hazards, v

NAME = 'sequential_preLN__linear_kernel_hedgehog__dense_activation_silu__prompt'
S, D, H, DH, F = 2048, 448, 16, 28, 1792
MB = 1 << 20
E = lambda k, d: int(os.environ.get(k, d))
STAMPS = E('STAMPS', 0)
MAP = E('MAP', 0)
FAST = E('FAST', 1)
CODEPF = E('CODEPF', 1)
WARM = E('WARM', 1)
WT1 = E('WT1', 0)
WTO = E('WTO', 0)
TOUCHAT = E('TOUCHAT', 0)
WS_KVP = 0
WS_OB = 2 * MB
WS_HB = 4 * MB
WS_H1B = 8 * MB
WS_FLG = 16 * MB
F1, F2, F3, F4, FREG, FEP = WS_FLG, WS_FLG + 0x1000, WS_FLG + 0x3000, WS_FLG + 0x5000, WS_FLG + 0x9000, WS_FLG + 0xA000
WS_STAMP = 17 * MB
WS_SIZE = 18 * MB
LOG2E = 0x3fb8aa3b
ONES = 0x3f803f80
MFMA = 'v_mfma_f32_32x32x16_bf16'
L_X = 0
L_WP = (114688, 0, 32768)
L_KVA, L_KVV = 65536, 81920
L_A = 98304
L_SC0, L_SC1 = 49152, 57344
L_XRES = L_SC0
B16 = (0, 16384, 65536, 81920, 32768)
L_PHI, L_EX, L_CF, L_MISC = 159744 - 2048 + 2048 + 1536, 155648, 159744, 163328
LDS_SIZE = 163840
M_PW, M_RES, M_FAST = 0, 32, 64
L_RSTD = L_EX

SX, SW, SP, SWS, SWO, SW1, SW2, SOUT = 12, 16, 20, 24, 28, 32, 36, 40
sTB, sH, sWV, sC0, sPROG, sT, sT2, sONES, sC, sTAG, sFASTF, sI, sXCD = 44, 45, 46, 47, 48, 49, 50, 51, 52, 53, 54, 55, 3
sHI, sPADL, sZA, sZB, sODD, sPC = 4, 6, 8, 10, 92, 94
sTQ, sNB, sTB3, sFB, sG, sKH, sB, sXB, sM0, sSPIN = 96, 97, 98, 99, 100, 101, 88, 89, 91, 90
sPROG1, sFL = 0, 1
vL, vMI, vT0, vT1, vO = 1, 2, 3, 4, 5
vTAG, vMY = 6, 7
vTT = 8
vXA = 12
vWA = 16
vSM, vSQ = 20, 22
vNM, vRS, vSC, vRA = 24, 25, 26, 27
vXD = 28
vPW = 32
vCA = 36
vXR = 144
vPK_ = 37
CACHE = {4: sPROG, 7: sPROG1, 6: sC0}

_st = {'n': 0}
C0 = 3
HELP = {'on': False}


def prio(A, hi):
    if HELP['on'] and E('HPRIO', 2):
        A('s_setprio %d', E('HPRIO', 2) if hi else 0)
LP = {}


STSET = os.environ.get('STSET', 'main')


DBGT = E('DBGT', 0)


def stamp(A, tag='main'):
    if DBGT and not HELP['on'] and tag in ('main', 'all'):
        A('s_memrealtime s[%d:%d]', 56 + 2 * _st['n'], 57 + 2 * _st['n'])
        _st['n'] += 1
        return
    if STAMPS and (tag == STSET or tag == 'all' or (HELP['on'] and tag == 'main')):
        assert _st['n'] < 15, 'too many stamps'
        A('s_memtime s[%d:%d]', 56 + 2 * _st['n'], 57 + 2 * _st['n'])
        _st['n'] += 1


def stamp_flush(A):
    if DBGT and not HELP['on']:
        A('s_waitcnt vmcnt(0)')
        stamp(A, 'all')
        skip = A.label('DS')
        A('s_waitcnt vmcnt(0) lgkmcnt(0)')
        A('s_cmp_ge_u32 s%d, 28', sI)
        A('s_cbranch_scc1 %s', skip)
        A('s_mov_b64 exec, 1')
        A('v_mov_b32 v1, 0')
        A('s_not_b32 s4, s56')
        A('v_mov_b32 v2, s4')
        A('global_atomic_umax v1, v2, s[86:87] offset:60')
        for i in range(_st['n']):
            A('v_mov_b32 v%d, s%d', 8 + i, 56 + 2 * i)
            A('global_atomic_umax v1, v%d, s[86:87] offset:%d', 8 + i, 4 * i)
        A('%s:', skip)
        return
    if STAMPS:
        A('s_waitcnt vmcnt(0)')
        stamp(A, 'all')
        A('s_memrealtime s[4:5]')
        A('s_waitcnt vmcnt(0) lgkmcnt(0)')
        A('s_sub_u32 s4, s4, s86')
        A('s_lshl_b32 s4, s4, 20')
        A('s_and_b32 s86, s86, 0xfffff')
        A('s_or_b32 s86, s86, s4')
        A('s_lshl_b32 s%d, s2, 3', sT)
        A('s_add_u32 s%d, s%d, s%d', sT, sT, sWV)
        A('s_lshl_b32 s%d, s%d, 6', sT, sT)
        A('s_add_u32 s%d, s%d, %d', sT, sT, WS_STAMP)
        A('s_mov_b64 exec, 1')
        A('v_mov_b32 v1, 0')
        for i in range(16):
            if i < _st['n']:
                A('v_mov_b32 v2, s%d', 56 + 2 * i)
            elif i == 15:
                A('v_mov_b32 v2, s86')
            else:
                A('v_mov_b32 v2, 0')
            A('buffer_store_dword v2, v1, s[%d:%d], s%d offen offset:%d', SWS, SWS + 3, sT, 4 * i)
            A('s_nop 1')


def srd(A, d, ptr, size):
    A('s_mov_b32 s%d, s%d', d, ptr)
    A('s_and_b32 s%d, s%d, 0xffff', d + 1, ptr + 1)
    A('s_mov_b32 s%d, 0x%x', d + 2, size)
    A('s_mov_b32 s%d, 0x20000', d + 3)


COLD = []


def cold_block(A, fn):
    ent, back = A.label('CE'), A.label('CB')
    B = sub(A)
    B('%s:', ent)
    B('s_nop 15')
    fn(B, back)
    B('s_nop 7')
    B('s_branch %s', back)
    COLD.extend(B.lines)
    return ent, back


def spin_guard(A, done):
    A('s_sub_u32 s%d, s%d, 1', sSPIN, sSPIN)
    A('s_cbranch_scc1 %s', done)


def wait_word(A, w, n, cache=None, sleep=0, body=None):
    sd = sT if cache is None else cache

    def loop(B, done, body=None):
        lo = B.label('W')
        prio(B, 0)
        B('%s:', lo)
        if sleep:
            B('s_sleep %d', sleep)
        B('ds_read_b32 v%d, v%d offset:%d', vPW, vMI, M_PW + 4 * w)
        k = body() if body else 0
        B('s_waitcnt lgkmcnt(%d)', k)
        B('v_readfirstlane_b32 s%d, v%d', sd, vPW)
        spin_guard(B, done)
        B('s_cmp_ge_u32 s%d, %d', sd, n)
        B('s_cbranch_scc0 %s', lo)
        prio(B, 1)
    if cache is not None and body is None and not HELP['on'] and not HELP.get('inline'):
        ent, back = cold_block(A, loop)
        A('s_cmp_ge_u32 s%d, %d', sd, n)
        A('s_cbranch_scc0 %s', ent)
        A('%s:', back)
        return
    done = A.label('WD')
    if cache is not None and body is None:
        A('s_cmp_ge_u32 s%d, %d', sd, n)
        A('s_cbranch_scc1 %s', done)
    loop(A, done, body)
    A('%s:', done)


def wait_lp(A, name, sleep=0):
    w, n = LP[name]
    wait_word(A, w, n, CACHE[w], sleep)


def set_stage(A, n):
    A('v_mov_b32 v%d, %d', vT0, n)
    A('ds_write_b32 v%d, v%d', vMY, vT0)


def wait_stage(A, n, which=(0, 1, 2, 3), body=None, sleep=0):
    lo, done = A.label('W'), A.label('WD')
    prio(A, 0)
    A('%s:', lo)
    if sleep:
        A('s_sleep %d', sleep)
    A('ds_read_b128 v[%d:%d], v%d offset:%d', vPW, vPW + 3, vMI, M_PW + 16 * (which[0] // 4))
    k = body() if body else 0
    A('s_waitcnt lgkmcnt(%d)', k)
    w = [x % 4 for x in which]
    if len(w) == 4:
        A('v_min3_u32 v%d, v%d, v%d, v%d', vPW, vPW, vPW + 1, vPW + 2)
        A('v_min_u32 v%d, v%d, v%d', vPW, vPW, vPW + 3)
        r = vPW
    else:
        A('v_min_u32 v%d, v%d, v%d', vPW + w[0], vPW + w[0], vPW + w[1])
        r = vPW + w[0]
    A('v_readfirstlane_b32 s%d, v%d', sT, r)
    spin_guard(A, done)
    A('s_cmp_ge_u32 s%d, %d', sT, n)
    A('s_cbranch_scc0 %s', lo)
    A('%s:', done)
    prio(A, 1)


def poll_global(A, soff, nlanes):
    lo, done = A.label('P'), A.label('PD')
    A('v_lshlrev_b32 v%d, 2, v%d', vT1, vL)
    A('s_mov_b64 exec, 0x%x', (1 << nlanes) - 1)
    A('%s:', lo)
    A('buffer_load_dword v%d, v%d, s[%d:%d], s%d offen sc1', vT0, vT1, SWS, SWS + 3, soff)
    A('s_waitcnt vmcnt(0)')
    A('v_cmp_ne_u32 vcc, s%d, v%d', sTAG, vT0)
    spin_guard(A, done)
    A('s_cbranch_vccnz %s', lo)
    A('%s:', done)
    A('s_mov_b64 exec, -1')


def poll_scalar(A, soff, n):
    lo, done = A.label('P'), A.label('PD')
    A('s_add_u32 s%d, s%d, s%d', sPC, SWS, soff)
    A('s_addc_u32 s%d, s%d, 0', sPC + 1, SWS + 1)
    base = 68 if STAMPS else 72
    A('%s:', lo)
    A('s_load_dwordx%d s[%d:%d], s[%d:%d], 0 glc', n, base, base + n - 1, sPC, sPC + 1)
    A('s_waitcnt lgkmcnt(0)')
    A('s_and_b64 s[%d:%d], s[%d:%d], s[%d:%d]', sHI, sHI + 1, base, base + 1, base + 2, base + 3)
    A('s_or_b64 s[%d:%d], s[%d:%d], s[%d:%d]', sPADL, sPADL + 1, base, base + 1, base + 2, base + 3)
    for k in range(4, n, 2):
        A('s_and_b64 s[%d:%d], s[%d:%d], s[%d:%d]', sHI, sHI + 1, sHI, sHI + 1, base + k, base + k + 1)
        A('s_or_b64 s[%d:%d], s[%d:%d], s[%d:%d]', sPADL, sPADL + 1, sPADL, sPADL + 1, base + k, base + k + 1)
    A('s_and_b32 s%d, s%d, s%d', sHI, sHI, sHI + 1)
    A('s_or_b32 s%d, s%d, s%d', sPADL, sPADL, sPADL + 1)
    A('s_xor_b32 s%d, s%d, s%d', sHI, sHI, sTAG)
    A('s_xor_b32 s%d, s%d, s%d', sPADL, sPADL, sTAG)
    spin_guard(A, done)
    A('s_or_b32 s%d, s%d, s%d', sHI, sHI, sPADL)
    A('s_cbranch_scc1 %s', lo)
    A('%s:', done)


def two_ways(A, fn, local):
    if local and FAST:
        ent, back = cold_block(A, lambda B, back: fn(B, ' sc1'))
        A('s_cmp_eq_u32 s%d, 0', sFASTF)
        A('s_cbranch_scc1 %s', ent)
        fn(A, '')
        A('%s:', back)
    else:
        fn(A, ' sc1')


def pub_stores(A, stores, local):
    def fn(B, bits):
        for st in stores:
            B(st % bits)
    two_ways(A, fn, local)


def pub_flag(A, sflag, local):
    A('s_waitcnt vmcnt(0)')
    A('s_mov_b64 exec, 1')
    two_ways(A, lambda B, bits: B('buffer_store_dword v%d, v%d, s[%d:%d], s%d offen%s', vTAG, vO, SWS, SWS + 3, sflag,
                                  bits), local)
    A('s_mov_b64 exec, -1')


def st4(reg, soff, off):
    return 'buffer_store_dwordx4 %s, v%d, s[%d:%d], s%d offen offset:%d%%s' % (v(reg, 4), vO, SWS, SWS + 3, soff, off)


def hilo_c(A, src, f, tmp):
    A('v_cvt_pk_bf16_f32 v%d, v%d, v%d', f, src, src)
    A('v_and_b32 v%d, 0xffff0000, v%d', tmp, f)
    A('v_sub_f32 v%d, v%d, v%d', tmp, src, tmp)
    A('v_cvt_pk_bf16_f32 v%d, v%d, 0', f + 1, tmp)


def hilo_m(A, src, f, tmp):
    A('v_cvt_pk_bf16_f32 v%d, v%d, 0', f + 1, src)
    A('v_lshlrev_b32 v%d, 16, v%d', tmp, f + 1)
    A('v_sub_f32 v%d, v%d, v%d', tmp, src, tmp)
    A('v_cvt_pk_bf16_f32 v%d, v%d, v%d', f, src, tmp)


def ln_finish(A, t0, t1, negmean, rstd):
    A('v_mul_f32 v%d, 0x%x, v%d', t0, 0x3b124925, t0)
    A('v_mov_b32 v%d, v%d', t1, t0)
    A('v_permlane32_swap_b32 v%d, v%d', t0, t1)
    A('v_fma_f32 v%d, -v%d, v%d, v%d', t1, t0, t0, t1)
    A('v_max_f32 v%d, 0, v%d', t1, t1)
    A('v_add_f32 v%d, 0x%x, v%d', t1, 0x3727c5ac, t1)
    A('v_rsq_f32 v%d, v%d', rstd, t1)
    A('v_sub_f32 v%d, 0, v%d', negmean, t0)


def softmax_pm(A, p, sc, e, t):
    A('v_cndmask_b32 v%d, v%d, v%d, s[%d:%d]', p + 12, p + 12, p + 14, sHI, sHI + 1)
    A('v_cndmask_b32 v%d, v%d, v%d, s[%d:%d]', p + 13, p + 13, p + 15, sHI, sHI + 1)
    mx, mn = t, t + 1
    A('v_max3_f32 v%d, v%d, v%d, v%d', mx, p, p + 1, p + 2)
    A('v_min3_f32 v%d, v%d, v%d, v%d', mn, p, p + 1, p + 2)
    for i in range(3, 13, 2):
        A('v_max3_f32 v%d, v%d, v%d, v%d', mx, mx, p + i, p + i + 1)
        A('v_min3_f32 v%d, v%d, v%d, v%d', mn, mn, p + i, p + i + 1)
    A('v_max_f32 v%d, v%d, v%d', mx, mx, p + 13)
    A('v_min_f32 v%d, v%d, v%d', mn, mn, p + 13)
    A('v_sub_f32 v%d, 0, v%d', mn, mn)
    A('v_permlane32_swap_b32 v%d, v%d', mx, mn)
    A('v_max_f32 v%d, v%d, v%d', mx, mx, mn)
    A('v_mul_f32 v%d, v%d, v%d', mx, mx, sc)
    A('v_mov_b32 v%d, v%d', mn, mx)
    A('v_permlane32_swap_b32 v%d, v%d', mx, mn)
    for i in range(14):
        A('v_fma_f32 v%d, -v%d, v%d, -v%d', e + i, p + i, sc, mn)
        A('v_fma_f32 v%d, v%d, v%d, -v%d', p + i, p + i, sc, mx)
        if i:
            A('v_exp_f32 v%d, v%d', e + i - 1, e + i - 1)
            A('v_exp_f32 v%d, v%d', p + i - 1, p + i - 1)
    A('v_exp_f32 v%d, v%d', e + 13, e + 13)
    A('v_exp_f32 v%d, v%d', p + 13, p + 13)
    if PKSM:
        for base in (p, e):
            A('v_pk_add_f32 v[%d:%d], v[%d:%d], v[%d:%d]', base + 14, base + 15, base, base + 1, base + 2, base + 3)
        for i in range(4, 14, 2):
            for base in (p, e):
                A('v_pk_add_f32 v[%d:%d], v[%d:%d], v[%d:%d]', base + 14, base + 15, base + 14, base + 15, base + i,
                  base + i + 1)
    else:
        for base in (p, e):
            A('v_add_f32 v%d, v%d, v%d', base + 14, base, base + 2)
            A('v_add_f32 v%d, v%d, v%d', base + 15, base + 1, base + 3)
        for i in range(4, 14):
            for base in (p, e):
                A('v_add_f32 v%d, v%d, v%d', base + 14 + (i & 1), base + 14 + (i & 1), base + i)
    sp, sn = t + 2, t
    A('v_add_f32 v%d, v%d, v%d', sp, p + 14, p + 15)
    A('v_add_f32 v%d, v%d, v%d', sn, e + 14, e + 15)
    A('v_permlane32_swap_b32 v%d, v%d', sp, sn)
    A('v_add_f32 v%d, v%d, v%d', sp, sp, sn)
    A('v_rcp_f32 v%d, v%d', sp, sp)
    A('v_mov_b32 v%d, v%d', sn, sp)
    A('v_permlane32_swap_b32 v%d, v%d', sp, sn)
    for i in range(0, 14, 2):
        for base, r in ((p, sp), (e, sn)):
            if PKSM:
                A('v_pk_mul_f32 v[%d:%d], v[%d:%d], v[%d:%d] op_sel_hi:[1,0]', base + i, base + i + 1, base + i,
                  base + i + 1, r, r + 1)
            else:
                A('v_mul_f32 v%d, v%d, v%d', base + i, base + i, r)
                A('v_mul_f32 v%d, v%d, v%d', base + i + 1, base + i + 1, r)
    for i, (a0, a1) in enumerate(((0, 1), (2, 3), (4, 5), (6, None), (7, 8), (9, 10), (11, 12), (13, None))):
        for base in (p, e):
            A('v_cvt_pk_bf16_f32 v%d, v%d, %s', base + i, base + a0, '0' if a1 is None else 'v%d' % (base + a1))


PKSM = E('PKSM', 1)


def cvt8(A, dst, src, n=8):
    for i in range(n):
        A('v_cvt_pk_bf16_f32 v%d, v%d, v%d', dst + i, src + 2 * i, src + 2 * i + 1)


def mfma(A, d, a_, b_, first=False):
    A('%s %s, %s, %s, %s', MFMA, v(d, 16), v(a_, 4), v(b_, 4), '0' if first else v(d, 16))


def merge(main, blocks, start, stop):
    idx = [i for i, l in enumerate(main) if l.strip().startswith('v_mfma')][start:stop]
    out, k = [], 0
    n = len(idx)
    pos = {i: j for j, i in enumerate(idx)}
    for i, l in enumerate(main):
        out.append(l)
        if i in pos:
            upto = (len(blocks) * (pos[i] + 1) + n - 1) // n
            for b in blocks[k:upto]:
                out += b
            k = max(k, upto)
    assert k >= len(blocks)
    return out


def sub(A):
    return Asm()


L_H = (L_A, L_A + 28672, 0, 65536)
W2S = [32768, 40960] + [L_A + k * 8192 for k in range(7)] + [k * 8192 for k in range(4)] + [
    65536 + k * 8192 for k in range(4)]
W2GATE = {2: 9, 5: 10, 9: 11, 13: 12}


def w2_slot(n):
    return W2S[n % 17]


def w1_slot(c):
    return B16[c % 5]


class LdsQ:
    def __init__(self, A):
        self.A, self.q = A, []
        self.peeked = False

    def op(self, tag, fmt, *a):
        self.A(fmt, *a)
        self.q.append(tag)

    def need(self, tag):
        idx = [i for i, x in enumerate(self.q) if x == tag]
        if not idx:
            return None
        n = len(self.q) - 1 - idx[-1]
        self.q = self.q[idx[-1] + 1:]
        return min(n, 15)

    def wait(self, tag, vm=None):
        n = self.need(tag)
        if n is None and vm is None:
            return
        self.A('s_waitcnt' + ('' if vm is None else ' vmcnt(%d)' % vm) + ('' if n is None else ' lgkmcnt(%d)' % n))

    def stage(self, n):
        set_stage(self.A, n)
        self.q.append('st')

    def peek(self, w):
        self.op('pk', 'ds_read_b32 v%d, v%d offset:%d', vPK_, vMI, M_PW + 4 * w)
        self.peeked = True

    def take(self, w):
        if not self.peeked:
            return
        self.peeked = False
        self.wait('pk')
        self.A('v_readfirstlane_b32 s%d, v%d', CACHE[w], vPK_)


def tag_compute(A):
    A('s_waitcnt lgkmcnt(0)')
    A('s_mul_i32 s%d, s%d, 0x%x', sTAG, sTAG, 1664525)
    A('s_add_u32 s%d, s%d, 0x%x', sTAG, sTAG, 1013904223)
    A('v_mov_b32 v%d, s%d', vTAG, sTAG)


def fast_check(A):
    A('s_getreg_b32 s%d, hwreg(HW_REG_XCC_ID)', sC)
    A('s_and_b32 s%d, s%d, 15', sC, sC)
    A('s_add_u32 s%d, s%d, s%d', sC, sC, sTAG)
    A('s_lshl_b32 s%d, s%d, 7', sT, sXCD)
    A('s_add_u32 s%d, s%d, %d', sT, sT, FREG)
    A('v_and_b32 v%d, 31, v%d', vT1, vL)
    A('v_lshlrev_b32 v%d, 2, v%d', vT1, vT1)
    A('buffer_load_dword v%d, v%d, s[%d:%d], s%d offen sc1', vT0, vT1, SWS, SWS + 3, sT)
    A('s_waitcnt vmcnt(0)')
    A('v_cmp_ne_u32 vcc, s%d, v%d', sC, vT0)
    A('s_cmp_eq_u64 vcc, 0')
    A('s_cselect_b32 s%d, 1, 0', sFASTF)


class Stream:
    def __init__(self, A, wave, depth, first=0):
        self.A, self.wave, self.depth = A, wave, depth
        self.items = []
        self.issued = 0
        self.known = 0
        self.n = first

    def wait_to(self, left):
        if self.issued - left <= self.known:
            return
        self.A('s_waitcnt vmcnt(%d)', left)
        self.known = self.issued - left
        last = None
        while self.items and self.items[0][1] <= self.known:
            last = self.items.pop(0)[0]
        if last is not None:
            set_stage(self.A, last)

    def room(self, k):
        self.wait_to(max(self.depth - k, 0))
        self.issued += k

    def done(self, name, cnt=None):
        self.n += 1
        assert LP.setdefault(name, (self.wave, self.n)) == (self.wave, self.n), name
        self.items.append((self.n, self.issued))

    def drain(self):
        self.drain_to(0)

    def drain_to(self, keep):
        while len(self.items) > keep:
            self.wait_to(self.issued - self.items[0][1])

    def save(self):
        return (list(self.items), self.issued, self.known)

    def restore(self, s):
        self.items, self.issued, self.known = list(s[0]), s[1], s[2]

    def dma4(self, lds, voffs, srd_, step=None, bits=''):
        A = self.A
        A('s_mov_b32 m0, %d', lds)
        self.room(4)
        for u in range(4):
            A('buffer_load_dwordx4 v%d, s[%d:%d], s%d offen offset:%d%s lds', voffs[u], srd_, srd_ + 3, sT, u * 1024,
              bits)
        if step:
            A('s_add_u32 s%d, s%d, %d', sT, sT, step)


def spread4(A, base, step):
    for u in range(1, 4):
        A('v_add_u32 v%d, %d, v%d', base + u, u * (step - 1024), base)


def wtr_base(A):
    A('v_lshrrev_b32 v%d, 5, v%d', vT1, vL)
    A('v_bfe_u32 v%d, v%d, 2, 2', vT0, vL)
    A('v_lshl_add_u32 v%d, v%d, 3, v%d', vT0, vT1, vT0)
    A('v_lshlrev_b32 v%d, 6, v%d', vT0, vT0)
    A('v_bfe_u32 v%d, v%d, 4, 1', vTT, vL)
    A('v_lshl_add_u32 v%d, v%d, 5, v%d', vT0, vTT, vT0)
    A('v_and_b32 v%d, 3, v%d', vTT, vL)
    A('v_lshl_add_u32 v%d, v%d, 3, v%d', vT0, vTT, vT0)
    for pi in range(3):
        A('v_add_u32 v%d, %d, v%d', vWA + pi, L_WP[pi], vT0)
    A('v_lshlrev_b32 v%d, 3, v%d', vCA, vL)
    A('v_add_u32 v%d, %d, v%d', vCA, L_CF, vCA)


def sel_frags(A, vID):
    A('v_lshrrev_b32 v%d, 5, v%d', vT1, vL)
    A('v_and_b32 v%d, 31, v%d', vT0, vL)
    A('v_lshlrev_b32 v%d, 2, v%d', vTT, vT1)
    A('v_sub_u32 v%d, v%d, v%d', vT0, vT0, vTT)
    A('v_mov_b32 v%d, 0x3f80', vTT)
    A('v_mov_b32 v%d, 0x3f800000', vTT + 1)
    for sidx in range(2):
        for rr in range(4):
            m = 16 * sidx + 8 * (rr >> 1) + 2 * (rr & 1)
            A('v_cmp_eq_u32 vcc, %d, v%d', m, vT0)
            A('v_cndmask_b32 v%d, 0, v%d, vcc', vID + 4 * sidx + rr, vTT)
            A('v_cmp_eq_u32 vcc, %d, v%d', m + 1, vT0)
            A('v_cndmask_b32 v%d, v%d, v%d, vcc', vID + 4 * sidx + rr, vID + 4 * sidx + rr, vTT + 1)


def read_w(A, pi, i, buf, sleep=0):
    wait_lp(A, ('W', pi, i), sleep)
    for q in range(4):
        for z in range(2):
            A('ds_read_b64_tr_b16 v[%d:%d], v%d offset:%d', buf + 4 * q + 2 * z, buf + 4 * q + 2 * z + 1,
              vWA + pi, i * 4096 + q * 1024 + z * 256)


def colsum(A, spi):
    vCS, vB_, buf = 40, 44, 48
    A('v_mov_b32 v%d, 0', vCS)
    A('v_mov_b32 v%d, 0', vCS + 1)
    A('s_cmp_eq_u32 s%d, 1', spi)
    A('s_cselect_b32 s%d, 0, %d', sT, L_WP[2])
    A('s_cmp_eq_u32 s%d, 0', spi)
    A('s_cselect_b32 s%d, %d, s%d', sT, L_WP[0], sT)
    assert L_WP[1] == 0
    A('v_add_u32 v%d, s%d, v%d', vB_, sT, vWA + 1)
    A('s_mul_i32 s%d, s%d, 7', sC, spi)
    A('s_add_u32 s%d, s%d, 7', sT2, sC)
    top, lo, ok = A.label('CS'), A.label('W'), A.label('WD')
    A('%s:', top)
    A('s_cmp_gt_u32 s%d, s%d', sPROG, sC)
    A('s_cbranch_scc1 %s', ok)
    prio(A, 0)
    A('%s:', lo)
    A('ds_read_b32 v%d, v%d offset:%d', vPW, vMI, M_PW + 16)
    A('s_waitcnt lgkmcnt(0)')
    A('v_readfirstlane_b32 s%d, v%d', sPROG, vPW)
    spin_guard(A, ok)
    A('s_cmp_gt_u32 s%d, s%d', sPROG, sC)
    A('s_cbranch_scc0 %s', lo)
    prio(A, 1)
    A('%s:', ok)
    for q in range(4):
        for z in range(2):
            A('ds_read_b64_tr_b16 v[%d:%d], v%d offset:%d', buf + 4 * q + 2 * z, buf + 4 * q + 2 * z + 1, vB_,
              q * 1024 + z * 256)
    A('v_add_u32 v%d, 4096, v%d', vB_, vB_)
    A('s_add_u32 s%d, s%d, 1', sC, sC)
    for q in range(4):
        A('s_waitcnt lgkmcnt(%d)', 6 - 2 * q)
        for r in range(4):
            A('v_dot2c_f32_bf16 v%d, s%d, v%d', vCS + (r & 1), sONES, buf + 4 * q + r)
    A('s_cmp_lt_u32 s%d, s%d', sC, sT2)
    A('s_cbranch_scc1 %s', top)
    A('v_add_f32 v%d, v%d, v%d', vCS, vCS, vCS + 1)
    hilo_c(A, vCS, vCS + 2, vT0)
    A('s_lshl_b32 s%d, s%d, 9', sT, spi)
    A('v_add_u32 v%d, s%d, v%d', vB_, sT, vCA)
    A('ds_write_b64 v%d, v[%d:%d]', vB_, vCS + 2, vCS + 3)


def rest_srds(A):
    A('s_add_u32 s82, s80, %d', FEP)
    A('s_addc_u32 s83, s81, 0')
    A('s_load_dword s%d, s[82:83], 0', sTAG)
    srd(A, SP, 68, H * DH * DH * 2)
    srd(A, SWO, 70, D * D * 2)
    srd(A, SW1, 74, D * F * 2)
    srd(A, SW2, 76, D * F * 2)
    srd(A, SOUT, 78, S * D * 2)
    srd(A, SWS, 80, WS_SIZE)


def rot_next(A):
    A('s_add_u32 s%d, s%d, 1', sC, sC)
    A('s_cmp_eq_u32 s%d, 7', sC)
    A('s_cselect_b32 s%d, 0, s%d', sC, sC)


def sig_dyn(A, sval):
    A('v_mov_b32 v%d, s%d', vT0, sval)
    A('ds_write_b32 v%d, v%d', vMY, vT0)


def early_offsets(A):
    A('v_lshrrev_b32 v%d, 3, v%d', vT0, vL)
    A('v_mul_u32_u24 v%d, 896, v%d', vT0, vT0)
    A('v_lshrrev_b32 v%d, 4, v%d', vT1, vL)
    A('v_and_b32 v%d, 7, v%d', vXD, vL)
    A('v_xor_b32 v%d, v%d, v%d', vXD, vXD, vT1)
    A('v_xor_b32 v%d, 4, v%d', vXD + 1, vXD)
    A('v_lshl_add_u32 v%d, v%d, 4, v%d', vXD, vXD, vT0)
    A('v_lshl_add_u32 v%d, v%d, 4, v%d', vXD + 1, vXD + 1, vT0)
    A('v_add_u32 v%d, %d, v%d', vXD + 1, 8 * 896 - 1024, vXD + 1)
    A('v_add_u32 v%d, %d, v%d', vXD + 2, 2 * (8 * 896 - 1024), vXD)
    A('v_add_u32 v%d, %d, v%d', vXD + 3, 2 * (8 * 896 - 1024), vXD + 1)
    vW = 40
    A('v_lshrrev_b32 v%d, 2, v%d', vW, vL)
    A('v_mul_u32_u24 v%d, 2688, v%d', vW, vW)
    A('v_and_b32 v%d, 3, v%d', vT1, vL)
    A('v_lshl_add_u32 v%d, v%d, 4, v%d', vW, vT1, vW)
    A('s_mul_i32 s%d, s%d, 56', sT, sH)
    A('s_and_b32 s%d, s%d, 0xfffffff0', sT, sT)
    A('v_add_u32 v%d, s%d, v%d', vW, sT, vW)
    spread4(A, vW, 16 * 2688)
    A('s_mul_i32 s%d, s%d, %d', sXB, sTB, 128 * 896)
    A('s_mov_b32 s%d, s%d', sC, sC0)


def early_x(A):
    depth = E('XDEPTH', 16)
    wsig = ((depth - 4) // 4) % 4
    lag = (depth - 4 - 4 * wsig) // 16
    A('s_mov_b32 s%d, %d', sG, -lag)
    A('s_mov_b32 m0, %d', L_X)
    top = A.label('XL')
    A('%s:', top)
    A('s_lshl_b32 s%d, s%d, 7', sT, sC)
    A('s_add_u32 s%d, s%d, s%d', sT, sT, sXB)
    for w in range(4):
        A('s_waitcnt vmcnt(%d)', depth - 4)
        if w == wsig:
            A('s_max_i32 s%d, s%d, 0', sT2, sG)
            sig_dyn(A, sT2)
        for u in range(4):
            A('buffer_load_dwordx4 v%d, s[%d:%d], s%d offen offset:%d lds', vXD + u, SX, SX + 3, sT, u * 1024)
        A('s_add_u32 m0, m0, 4096')
        if w < 3:
            A('s_add_u32 s%d, s%d, %d', sT, sT, 32 * 896)
    rot_next(A)
    A('s_add_u32 s%d, s%d, 1', sG, sG)
    A('s_cmp_lt_i32 s%d, %d', sG, 7 - lag)
    A('s_cbranch_scc1 %s', top)
    stamp(A)
    for n in range(7 - lag, 8):
        A('s_waitcnt vmcnt(%d)', 16 * (7 - n))
        set_stage(A, n)


def early_w(A):
    vW = 40

    def part_loop(pi, depth, floor):
        lag = (depth - 4) // 4
        stamp(A)
        A('s_mov_b32 s%d, s%d', sC, sC0)
        A('s_mov_b32 s%d, %d', sG, 7 * pi - lag)
        A('s_mov_b32 m0, %d', L_WP[pi])
        top = A.label('WL')
        A('%s:', top)
        A('s_mul_i32 s%d, s%d, %d', sT, sC, 64 * 2688)
        A('s_add_u32 s%d, s%d, %d', sT, sT, (1, 2, 0)[pi] * 896)
        A('s_max_i32 s%d, s%d, %d', sT2, sG, floor)
        A('s_waitcnt vmcnt(%d)', depth - 4)
        sig_dyn(A, sT2)
        for u in range(4):
            A('buffer_load_dwordx4 v%d, s[%d:%d], s%d offen offset:%d lds', vW + u, SW, SW + 3, sT, u * 1024)
        A('s_add_u32 m0, m0, 4096')
        rot_next(A)
        A('s_add_u32 s%d, s%d, 1', sG, sG)
        A('s_cmp_lt_i32 s%d, %d', sG, 7 * pi + 7 - lag)
        A('s_cbranch_scc1 %s', top)
        return lag
    lag = part_loop(0, E('WDEPTH', 8), 0)
    for n in range(7 - lag, 8):
        A('s_waitcnt vmcnt(%d)', 4 * (7 - n))
        set_stage(A, n)
    wait_stage(A, 1)
    if E('XG2', 4) >= 0:
        wait_lp(A, ('x', E('XG2', 4)))
    part_loop(1, E('WDEPTH2', 24), 7)
    wait_stage(A, 2)
    part_loop(2, E('WDEPTH2', 24), 7)


def gen_h0(A):
    St = Stream(A, 4, E('WDEPTH2', 24), 21)
    St.issued = 84
    St.known = 84 - St.depth
    St.items = [(n + 1, 4 * n + 4) for n in range(21) if 4 * n + 4 > St.known]
    vW, vW128, vXo, vW256 = 40, 44, 48, 52
    q4 = lambda b: [b, b + 1, b + 2, b + 3]
    rest_srds(A)
    lend = A.label('LEND')
    act = A.label('ACT')
    A('s_cmp_lt_u32 s%d, 28', sI)
    A('s_cbranch_scc1 %s', act)
    keep = St.save()
    St.drain()
    St.restore(keep)
    if E('TOUCH', 1):
        def touch(srd_, base, per_xcd, n):
            A('s_mul_i32 s%d, s%d, %d', sT, sXCD, per_xcd)
            A('s_sub_u32 s%d, s%d, 28', sT2, sI)
            A('s_mul_i32 s%d, s%d, %d', sT2, sT2, n * 8192)
            A('s_add_u32 s%d, s%d, s%d', sT, sT, sT2)
            A('s_add_u32 s%d, s%d, %d', sT, sT, base)
            A('s_mov_b32 s%d, %d', sC, n)
            lo = A.label('T')
            A('%s:', lo)
            A('buffer_load_dword v%d, v%d, s[%d:%d], s%d offen', vW + 1, vW, srd_, srd_ + 3, sT)
            A('s_add_u32 s%d, s%d, 8192', sT, sT)
            A('s_waitcnt vmcnt(%d)', E('TDEPTH', 6))
            A('s_sub_u32 s%d, s%d, 1', sC, sC)
            A('s_cmp_lg_u32 s%d, 0', sC)
            A('s_cbranch_scc1 %s', lo)
        A('v_lshlrev_b32 v%d, 7, v%d', vW, vL)
        wait_stage(A, C0 + 5, sleep=2)
        if not WT1:
            touch(SWS, WS_H1B, 8 * 112 * 1024, 28)
        touch(SW2, 0, 0, 49)
    A('s_branch %s', lend)
    A('%s:', act)
    A('v_lshrrev_b32 v%d, 3, v%d', vW128, vL)
    A('v_mul_u32_u24 v%d, 896, v%d', vW128, vW128)
    A('v_and_b32 v%d, 7, v%d', vT1, vL)
    A('v_lshl_add_u32 v%d, v%d, 4, v%d', vXo, vT1, vW128)
    A('v_lshrrev_b32 v%d, 2, v%d', vT0, vL)
    A('v_and_b32 v%d, 4, v%d', vT0, vT0)
    A('v_xor_b32 v%d, v%d, v%d', vT1, vT1, vT0)
    A('v_lshl_add_u32 v%d, v%d, 4, v%d', vW128, vT1, vW128)
    A('v_lshrrev_b32 v%d, 4, v%d', vW256, vL)
    A('v_mul_u32_u24 v%d, 3584, v%d', vW256, vW256)
    A('v_and_b32 v%d, 15, v%d', vT1, vL)
    A('v_lshrrev_b32 v%d, 2, v%d', vT0, vL)
    A('v_and_b32 v%d, 12, v%d', vT0, vT0)
    A('v_xor_b32 v%d, v%d, v%d', vT1, vT1, vT0)
    A('v_lshl_add_u32 v%d, v%d, 4, v%d', vW256, vT1, vW256)
    spread4(A, vW128, 8 * 896)
    spread4(A, vXo, 8 * 896)
    spread4(A, vW256, 4 * 3584)
    A('s_lshl_b32 s%d, s%d, 7', sB, sNB)

    def w1_chunk(c):
        A('s_lshl_b32 s%d, s%d, 8', sT, sFB)
        A('s_add_u32 s%d, s%d, %d', sT, sT, c * 64 * 3584)
        for u in range(4):
            St.dma4(w1_slot(c) + u * 4096, q4(vW256), SW1, 16 * 3584 if u < 3 else None)
        St.done(('w1', c), 16)

    def w2_item(n):
        c, kh = n >> 1, n & 1
        A('s_add_u32 s%d, s%d, %d', sT, sB, (kh * 896 + c * 64) * 896)
        for u in range(2):
            St.dma4(w2_slot(n) + u * 4096, q4(vW128), SW2, 32 * 896 if u < 1 else None)
        St.done(('w2', n), 8)

    St.drain_to(3)
    wait_stage(A, 3)
    wait_word(A, 5, 1)
    stamp(A)
    A('s_mov_b32 s%d, s%d', sB + 0, sB)
    A('s_mov_b32 s%d, s%d', sT, sB)
    for c in range(7):
        for u in range(2):
            St.dma4(L_A + c * 8192 + u * 4096, q4(vW128), SWO, 32 * 896)
        if c == 2:
            St.depth = E('LDEPTH', 32)
    St.done('wo')
    wait_stage(A, 2, (5, 6))
    stamp(A)
    for c in range(4):
        w1_chunk(c)
    St.drain()
    stamp(A)
    wait_stage(A, C0 + 4)
    wait_word(A, 7, 8)
    if E('GPAUSE', 1):
        wait_stage(A, 3, (5, 6))
    stamp(A)
    A('s_mul_i32 s%d, s%d, %d', sT, sTQ, 64 * 896)
    A('s_add_u32 s%d, s%d, s%d', sT, sT, sB)
    for u in range(2):
        St.dma4(L_XRES + u * 4096, q4(vXo), SX, 32 * 896)
    St.done('xres')
    for c in (4, 5, 6):
        w1_chunk(c)
    St.drain()
    stamp(A)
    wait_stage(A, C0 + 8, sleep=1)
    wait_lp(A, ('h', E('W2AFTER', 3), E('W2AFTERQ', 0)), 1)
    stamp(A)
    St.depth = E('W2DEPTH', 32)
    for n in range(17):
        if n in W2GATE:
            wait_stage(A, C0 + W2GATE[n])
            if n == 13:
                stamp(A)
        w2_item(n)
    stamp(A)
    St.depth = E('W2DEPTH3', 32)
    for n in range(17, 28):
        m = n - 17
        wait_stage(A, C0 + 13 + (m >> 1), (0, 1) if (m & 1) == 0 else (2, 3))
        w2_item(n)
    St.drain()
    A('%s:', lend)
    A('s_waitcnt lgkmcnt(0)')
    stamp_flush(A)
    A('s_endpgm')


def gen_h1(A):
    stamp(A)
    rest_srds(A)
    wtr_base(A)
    tag_compute(A)
    def extras():
        if WARM:
            for srd_, size in ((SWO, D * D * 2), (SW1, D * F * 2), (SW2, D * F * 2)):
                A('s_mul_i32 s%d, s2, %d', sT, size // 256)
                A('v_lshlrev_b32 v%d, 7, v%d', vT1, vL)
                A('s_mov_b64 exec, 0x%x', (1 << ((size // 256 + 127) // 128)) - 1) if size // 256 < 4096 else None
                if size // 256 >= 4096:
                    A('s_mov_b32 exec_hi, 0x%x', (1 << ((size // 256 + 127) // 128 - 32)) - 1)
                A('buffer_load_dword v64, v%d, s[%d:%d], s%d offen', vT1, srd_, srd_ + 3, sT)
                A('s_mov_b64 exec, -1')
        if E('TOUCH', 1) and not WTO:
            A('s_lshl_b32 s%d, s%d, 18', sT, sXCD)
            A('s_lshl_b32 s%d, s%d, 13', sT2, sI)
            A('s_add_u32 s%d, s%d, s%d', sT, sT, sT2)
            A('v_lshlrev_b32 v%d, 7, v%d', vT1, vL)
            for base in ((WS_OB, WS_HB) if MAP == 0 else (WS_HB,)):
                A('s_add_u32 s%d, s%d, %d', sT2, sT, base)
                A('buffer_load_dword v64, v%d, s[%d:%d], s%d offen', vT1, SWS, SWS + 3, sT2)

    if TOUCHAT == 1:
        wait_lp(A, ('W', 1, 6), 1)
    if TOUCHAT <= 1:
        extras()
    if FAST:
        fast_check(A)
        A('v_mov_b32 v%d, s%d', vT0, sFASTF)
        A('ds_write_b32 v%d, v%d offset:%d', vMI, vT0, M_FAST)
    A('s_mov_b32 s%d, 2', sG)
    colsum(A, sG)
    set_stage(A, 8)
    if TOUCHAT == 2:
        extras()
    stamp(A)
    lend = A.label('LEND')
    A('s_cmp_ge_u32 s%d, 28', sI)
    A('s_cbranch_scc1 %s', lend)
    St = Stream(A, 7, E('HDEPTH', 24), 8)
    for gi in range(4):
        A('s_lshl_b32 s%d, s%d, 2', sT2, sTB3)
        A('s_add_u32 s%d, s%d, %d', sT2, sT2, gi)
        A('s_lshl_b32 s%d, s%d, 15', sB, sT2)
        A('s_add_u32 s%d, s%d, %d', sB, sB, WS_HB + 4096)
        if gi == 0:
            wait_stage(A, C0 + 7, sleep=1)
            stamp(A)
        if gi == 2:
            St.drain()
        if gi % 2 == 0:
            A('s_lshl_b32 s%d, s%d, 6', sT2, sT2)
            A('s_add_u32 s%d, s%d, %d', sT2, sT2, F3)
            lo, done = A.label('P'), A.label('PD')
            A('v_lshlrev_b32 v%d, 2, v%d', vT1, vL)
            A('s_mov_b64 exec, 0x3fff3fff')
            A('%s:', lo)
            A('buffer_load_dword v%d, v%d, s[%d:%d], s%d offen sc1', vT0, vT1, SWS, SWS + 3, sT2)
            A('s_waitcnt vmcnt(0)')
            A('v_cmp_ne_u32 vcc, s%d, v%d', sTAG, vT0)
            spin_guard(A, done)
            A('s_cbranch_vccnz %s', lo)
            A('%s:', done)
            A('s_mov_b64 exec, -1')
            St.n += 1
            assert LP[('hf', gi)] == (7, St.n)
            set_stage(A, St.n)
            stamp(A)
        if gi == 2:
            wait_stage(A, C0 + 8)
            stamp(A)
        A('s_mov_b32 s%d, s%d', sT, sB)
        for u in range(7):
            St.dma4(L_H[gi] + u * 4096, [vO] * 4, SWS, 4096, ' sc1')
            if u % 2 == 0:
                St.done(('h', gi, u // 2))
    St.drain()
    A('%s:', lend)
    A('s_waitcnt lgkmcnt(0)')
    stamp_flush(A)
    A('s_endpgm')


def gen_h23(A):
    vID, vAF, vVF, vAC, vG = 64, 72, 104, 136, 72
    rest_srds(A)
    sTL = sKH
    A('s_sub_u32 s%d, s%d, 5', sTL, sWV)
    skip = A.label('NOST')
    A('s_cmp_eq_u32 s%d, 1', sTL)
    A('s_cbranch_scc1 %s', skip)
    A('s_mul_i32 s%d, s%d, 1568', sT, sH)
    A('s_mov_b32 m0, %d', L_PHI)
    A('buffer_load_dwordx4 v%d, s[%d:%d], s%d offen lds', vO, SP, SP + 3, sT)
    A('buffer_load_dwordx4 v%d, s[%d:%d], s%d offen offset:1024 lds', vO, SP, SP + 3, sT)
    if CODEPF:
        A('s_mul_i32 s%d, s%d, %d', sT, sI, 1280)
        A('v_lshlrev_b32 v%d, 7, v%d', vT1, vL)
        A('v_add_u32 v%d, s%d, v%d', vT1, sT, vT1)
        A('s_mov_b64 exec, 0x3ff')
        A('global_load_dword v72, v%d, s[%d:%d]', vT1, sPC, sPC + 1)
        A('s_mov_b64 exec, -1')
    A('%s:', skip)
    wtr_base(A)
    sel_frags(A, vID)
    tag_compute(A)
    if FAST:
        skip = A.label('NORG')
        A('s_cmp_eq_u32 s%d, 0', sTL)
        A('s_cbranch_scc1 %s', skip)
        A('s_getreg_b32 s%d, hwreg(HW_REG_XCC_ID)', sT2)
        A('s_and_b32 s%d, s%d, 15', sT2, sT2)
        A('s_add_u32 s%d, s%d, s%d', sT2, sT2, sTAG)
        A('v_mov_b32 v%d, s%d', vT0, sT2)
        A('s_lshl_b32 s%d, s%d, 7', sT, sXCD)
        A('s_lshl_b32 s%d, s%d, 2', sT2, sI)
        A('s_add_u32 s%d, s%d, s%d', sT, sT, sT2)
        A('s_add_u32 s%d, s%d, %d', sT, sT, FREG)
        A('s_mov_b64 exec, 1')
        A('buffer_store_dword v%d, v%d, s[%d:%d], s%d offen sc1', vT0, vO, SWS, SWS + 3, sT)
        A('s_mov_b64 exec, -1')
        A('%s:', skip)
    if MAP == 3:
        A('s_lshl_b32 s%d, s%d, 4', sT, sH)
        A('s_add_u32 s%d, s%d, s%d', sT, sT, sTB)
        A('s_lshl_b32 s%d, s%d, 12', sT, sT)
        A('s_lshl_b32 s%d, s%d, 11', sT2, sTL)
        A('s_add_u32 s%d, s%d, s%d', sT, sT, sT2)
        A('v_lshlrev_b32 v%d, 7, v%d', vT1, vL)
        A('s_mov_b64 exec, 0xffff')
        A('buffer_load_dword v73, v%d, s[%d:%d], s%d offen', vT1, SWS, SWS + 3, sT)
        A('s_mov_b64 exec, -1')
    colsum(A, sTL)
    A('s_waitcnt vmcnt(0)')
    set_stage(A, 1)
    stamp(A)
    A('s_lshl_b32 s%d, s%d, 11', sT2, sTL)
    A('v_add_u32 v%d, s%d, v%d', vTT, sT2, vO)
    A('v_add_u32 v%d, %d, v%d', vTT + 1, L_KVA, vTT)
    A('v_add_u32 v%d, %d, v%d', vTT + 2, L_KVV, vO)
    A('s_lshl_b32 s%d, s%d, 16', sXB, sH)
    A('s_add_u32 s%d, s%d, s%d', sXB, sXB, sT2)
    A('s_add_u32 s%d, s%d, %d', sXB, sXB, WS_KVP)
    A('s_lshl_b32 s%d, s%d, 12', sB, sTB)
    A('s_add_u32 s%d, s%d, s%d', sB, sB, sXB)
    A('s_lshl_b32 s%d, s%d, 1', sM0, sH)
    A('s_add_u32 s%d, s%d, s%d', sM0, sM0, sTL)
    A('s_lshl_b32 s%d, s%d, 6', sM0, sM0)
    A('s_add_u32 s%d, s%d, %d', sM0, sM0, F1)
    A('s_lshl_b32 s%d, s%d, 2', sFL, sTB)
    A('s_add_u32 s%d, s%d, s%d', sFL, sFL, sM0)
    if MAP == 3 and FAST:
        wait_lp(A, ('W', 1, 3), 2)
        fast_check(A)

    def kv_reads():
        for w in range(3):
            for q in range(2):
                A('ds_read_b128 %s, v%d offset:%d', v(vAF + 8 * w + 4 * q, 4), vTT + 1, w * 4096 + q * 1024)
                A('ds_read_b128 %s, v%d offset:%d', v(vVF + 8 * w + 4 * q, 4), vTT + 2, w * 4096 + q * 1024)
        return 12
    wait_lp(A, ('W', 1, 6), 2)
    wait_stage(A, C0 + 1)
    stamp(A)
    kv_reads()
    for q in range(2):
        A('ds_read_b128 %s, v%d offset:%d', v(vAF + 24 + 4 * q, 4), vTT + 1, 3 * 4096 + q * 1024)
        A('ds_read_b128 %s, v%d offset:%d', v(vVF + 24 + 4 * q, 4), vTT + 2, 3 * 4096 + q * 1024)
    for k in range(8):
        A('s_waitcnt lgkmcnt(%d)', 14 - 2 * k)
        mfma(A, vAC, vAF + 4 * k, vVF + 4 * k, k == 0)
    set_stage(A, 2)
    cvt8(A, vAF, vAC)
    pub_stores(A, [st4(vAF + 4 * q, sB, q * 1024) for q in range(2)], MAP == 3)
    pub_flag(A, sFL, MAP == 3)
    stamp(A)
    if MAP == 0 and E('SPOLL', 1):
        poll_scalar(A, sM0, 16)
    else:
        poll_global(A, sM0, 16)
    stamp(A)
    vG = [72 + 4 * k for k in range(16)] + [152 + 4 * k for k in range(16)]
    for p in range(16):
        for q in range(2):
            A('buffer_load_dwordx4 %s, v%d, s[%d:%d], s%d offen offset:%d sc1', v(vG[2 * p + q], 4), vO, SWS, SWS + 3,
              sXB, q * 1024)
        A('s_add_u32 s%d, s%d, 4096', sXB, sXB)
    for k in range(32):
        A('s_waitcnt vmcnt(%d)', 31 - k)
        mfma(A, vAC, vID + 4 * (k & 1), vG[k], k == 0)
    A('v_add_u32 v%d, %d, v%d', vTT, L_EX, vTT)
    cvt8(A, 72, vAC)
    for q in range(2):
        A('ds_write_b128 v%d, %s offset:%d', vTT, v(72 + 4 * q, 4), q * 1024)
    set_stage(A, 3)
    stamp(A)
    lend = A.label('LEND')
    A('s_cmp_ge_u32 s%d, 28', sI)
    A('s_cbranch_scc1 %s', lend)
    A('s_cmp_eq_u32 s%d, 0', sTL)
    A('s_cbranch_scc1 %s', lend)
    A('v_lshlrev_b32 v%d, 2, v%d', vXA, vL)
    A('v_add_u32 v%d, %d, v%d', vTT + 2, L_EX, vO)
    A('s_lshl_b32 s%d, s%d, 17', sB, sTB3)
    A('s_add_u32 s%d, s%d, %d', sB, sB, WS_HB)
    for gi in range(4):
        if gi % 2 == 0:
            wait_lp(A, ('hf', gi), 1)
        for q in range(14):
            A('buffer_load_dword v%d, v%d, s[%d:%d], s%d offen offset:%d sc1', 72 + q, vXA, SWS, SWS + 3, sB, q * 256)
        A('s_add_u32 s%d, s%d, 32768', sB, sB)
        A('s_waitcnt vmcnt(0)')
        for q in range(1, 7):
            A('v_pk_add_f32 v[72:73], v[72:73], v[%d:%d]', 72 + 2 * q, 73 + 2 * q)
        A('v_add_f32 v%d, v72, v73', vTT)
        ln_finish(A, vTT, vTT + 1, vNM, vRS)
        hilo_m(A, vNM, 88, vT0)
        A('v_mul_f32 v90, v%d, v%d', vTT + 1, vRS)
        A('v_mul_f32 v91, 0x%x, v%d', LOG2E ^ 0x80000000, vRS)
        A('ds_write_b128 v%d, v[88:91] offset:%d', vTT + 2, gi * 1024)
        set_stage(A, 4 + gi)
    A('%s:', lend)
    A('s_waitcnt lgkmcnt(0)')
    stamp_flush(A)
    A('s_endpgm')


def gen_compute(A):
    vPH, vID, vWF, vAC, vPK = 40, 48, 56, 88, 120
    vMF, vCF = 136, 140
    vE = vWF
    vAC2 = vAC + 16
    vX = vXR
    A('s_setprio %d', E('CPRIO', 1))
    rest_srds(A)
    A('s_lshl_b32 s%d, s%d, 12', sM0, sWV)
    A('v_and_b32 v%d, 31, v%d', vT0, vL)
    A('v_lshlrev_b32 v%d, 7, v%d', vTT, vT0)
    A('v_add_u32 v%d, s%d, v%d', vTT, sM0, vTT)
    A('v_bfe_u32 v%d, v%d, 1, 3', vT0, vL)
    A('v_lshrrev_b32 v%d, 5, v%d', vT1, vL)
    A('v_xor_b32 v%d, v%d, v%d', vT0, vT0, vT1)
    for q in range(4):
        A('v_xor_b32 v%d, %d, v%d', vXA + q, 2 * q, vT0)
        A('v_lshl_add_u32 v%d, v%d, 4, v%d', vXA + q, vXA + q, vTT)
    wtr_base(A)
    for r in (vSM, vSM + 1, vSQ, vSQ + 1, vMF + 2, vMF + 3, vCF + 2, vCF + 3):
        A('v_mov_b32 v%d, 0', r)
    A('s_mov_b32 s%d, 0', sHI)
    A('s_mov_b32 s%d, -1', sHI + 1)
    A('s_bitcmp1_b32 s%d, 0', sH)
    A('s_cselect_b32 s%d, 0xf, 0xf0000000', sPADL)
    A('s_mov_b32 s%d, s%d', sPADL + 1, sPADL)
    A('s_cselect_b32 s%d, -1, 0', sZA)
    A('s_mov_b32 s%d, 0', sZA + 1)
    A('s_mov_b32 s%d, 0', sZB)
    A('s_cselect_b32 s%d, 0, -1', sZB + 1)
    A('s_cselect_b64 s[%d:%d], -1, 0', sODD, sODD + 1)
    sel_frags(A, vID)
    vPA = vRA
    A('v_bfe_u32 v%d, v%d, 2, 2', vT0, vL)
    A('v_lshrrev_b32 v%d, 5, v%d', vT1, vL)
    A('v_lshl_add_u32 v%d, v%d, 2, v%d', vT0, vT1, vT0)
    A('v_mul_u32_u24 v%d, 56, v%d', vT0, vT0)
    A('v_and_b32 v%d, 3, v%d', vT1, vL)
    A('v_bfe_u32 v%d, v%d, 4, 1', vTT, vL)
    A('v_lshl_add_u32 v%d, v%d, 2, v%d', vT1, vTT, vT1)
    A('v_min_u32 v%d, 6, v%d', vT1, vT1)
    A('v_lshl_add_u32 v%d, v%d, 3, v%d', vT0, vT1, vT0)
    A('s_and_b32 s%d, s%d, 1', sT, sH)
    A('s_mul_i32 s%d, s%d, 224', sT, sT)
    A('s_sub_u32 s%d, %d, s%d', sT, L_PHI, sT)
    A('v_add_u32 v%d, s%d, v%d', vPA, sT, vT0)
    tag_compute(A)

    def mm1(B, acc, i, q, swap):
        buf = vWF + 16 * (i & 1)
        xf, wf = vX + (4 * i + q) * 4, buf + 4 * q
        if swap:
            mfma(B, acc, xf, wf, i == 0 and q == 0)
        else:
            mfma(B, acc, wf, xf, i == 0 and q == 0)

    def rw2(Q, pi, i, q):
        buf = vWF + 16 * (i & 1)
        for z in range(2):
            Q.op(('w', i, q), 'ds_read_b64_tr_b16 v[%d:%d], v%d offset:%d', buf + 4 * q + 2 * z, buf + 4 * q + 2 * z + 1,
                 vWA + pi, i * 4096 + q * 1024 + z * 256)

    vXH = vXD
    for q in range(4):
        A('v_add_u32 v%d, 0x10000, v%d', vXH + q, vXA + q)
    Q = LdsQ(A)
    for i in range(7):
        if i:
            stamp(A, 'k')
        wait_lp(A, ('x', i))
        stamp(A, 'k')
        for q in range(4):
            Q.op(('x', i), 'ds_read_b128 %s, v%d offset:%d', v(vX + (4 * i + q) * 4, 4), (vXA if i < 4 else vXH) + q,
                 (i & 3) * 16384)
        if i in (1, 3):
            Q.stage((i + 1) // 2)
        wait_lp(A, ('W', 0, i))
        for q in range(4):
            if i > 0:
                Q.wait(('w', i - 1, q))
                mm1(A, vAC, i - 1, q, False)
            rw2(Q, 0, i, q)
        if i < 6:
            Q.op('pk2', 'ds_read_b128 v[%d:%d], v%d offset:%d', vTT, vTT + 3, vMI, M_PW + 16)
        Q.wait(('x', i))
        for r in range(16):
            x = vX + 16 * i + r
            A('v_dot2c_f32_bf16 v%d, s%d, v%d', vSM + (r & 1), sONES, x)
            A('v_dot2c_f32_bf16 v%d, v%d, v%d', vSQ + (r & 1), x, x)
        if i < 6:
            Q.wait('pk2')
            A('v_readfirstlane_b32 s%d, v%d', sPROG, vTT)
            A('v_readfirstlane_b32 s%d, v%d', sPROG1, vTT + 3)
    Q.stage(3)
    B = sub(A)
    B('v_add_f32 v%d, v%d, v%d', vSM, vSM, vSM + 1)
    B('v_add_f32 v%d, v%d, v%d', vSQ, vSQ, vSQ + 1)
    B('v_permlane32_swap_b32 v%d, v%d', vSM, vSQ)
    B('v_add_f32 v%d, v%d, v%d', vT0, vSM, vSQ)
    ln_finish(B, vT0, vT1, vNM, vRS)
    hilo_m(B, vNM, vMF, vT0)
    B('v_mul_f32 v%d, 0x%x, v%d', vSC, LOG2E, vRS)
    M = sub(A)
    Q.A = M
    for q in range(4):
        Q.wait(('w', 6, q))
        mm1(M, vAC, 6, q, False)
    A.lines += merge(M.lines, [[l] for l in B.lines], 0, 4)

    def cf_phi_reads():
        A('ds_read_b64 v[%d:%d], v%d', vCF, vCF + 1, vCA)
        for sidx in range(2):
            for z in range(2):
                A('ds_read_b64_tr_b16 v[%d:%d], v%d offset:%d', vPH + 4 * sidx + 2 * z, vPH + 4 * sidx + 2 * z + 1,
                  vPA, (16 * sidx + 8 * z) * 56)
        return 5
    wait_word(A, 5, 1, body=cf_phi_reads)
    stamp(A)
    A('s_waitcnt lgkmcnt(4)')

    def project(mid=None):
        mfma(A, vAC, vCF, vMF)
        if mid:
            mid()
        cvt8(A, vPK, vAC)
        mfma(A, vAC, vPH, vPK, True)
        mfma(A, vAC, vPH + 4, vPK + 4)

    def mid_k():
        A('v_and_b32 v%d, 31, v%d', vT0, vL)
        A('s_lshl_b32 s%d, s%d, 7', sT, sWV)
        A('s_add_u32 s%d, s%d, %d', sT, sT, L_RSTD)
        A('v_lshl_add_u32 v%d, v%d, 2, s%d', vT0, vT0, sT)
        A('s_waitcnt lgkmcnt(0)')
        A('ds_write_b32 v%d, v%d', vT0, vRS)
        A('v_lshrrev_b32 v%d, 5, v%d', vRA, vL)
        A('v_lshl_add_u32 v%d, v%d, 4, s%d', vRA, vRA, sT)
        for r in (0, 1):
            A('v_cndmask_b32 v%d, v%d, 0, s[%d:%d]', vPH + r, vPH + r, sZA, sZA + 1)
            A('v_cndmask_b32 v%d, v%d, 0, s[%d:%d]', vPH + 6 + r, vPH + 6 + r, sZB, sZB + 1)

    def gemm_part(B, acc, pi, swap, last_stage=None):
        Q = LdsQ(B)
        wait_lp(B, ('W', pi, 0))
        for q in range(4):
            rw2(Q, pi, 0, q)
        for i in range(7):
            if i == 6 and last_stage:
                Q.stage(last_stage)
            for q in range(4):
                Q.wait(('w', i, q))
                if q == 0:
                    Q.take(4)
                mm1(B, acc, i, q, swap)
                if i < 6:
                    if q == 0:
                        wait_lp(B, ('W', pi, i + 1))
                        if i < 5:
                            Q.peek(4)
                    rw2(Q, pi, i + 1, q)

    vOW = vXD
    A('v_add_u32 v%d, s%d, v%d', vOW, sM0, vO)
    A('v_add_u32 v%d, %d, v%d', vOW, L_KVA, vOW)
    project(mid_k)
    M, B = sub(A), sub(A)
    gemm_part(M, vAC2, 1, True)
    softmax_pm(B, vAC, vSC, vPK, vTT)
    if E('VOVL', 1):
        A.lines += merge(M.lines, [[l] for l in B.lines], 0, 28)
    else:
        A.lines += B.lines + M.lines

    def cfv_reads():
        A('ds_read_b64 v[%d:%d], v%d offset:%d', vCF, vCF + 1, vCA, 512)
        for q in range(4):
            A('ds_read_b128 %s, v%d offset:%d', v((vAC + 8, vAC + 12, vPK + 8, vPK + 12)[q], 4), vRA, q * 32)
        return 5
    for t_, src in ((0, vAC), (1, vPK)):
        mfma(A, vWF + 16 * t_, src, vID, True)
        mfma(A, vWF + 16 * t_, src + 4, vID + 4)
    wait_word(A, 6, 1, body=cfv_reads)
    A('s_waitcnt lgkmcnt(4)')
    mfma(A, vAC2, vMF, vCF)
    A('v_mov_b32 v%d, 0x%x', vT1, ONES)
    cvt8(A, vWF, vWF)
    cvt8(A, vWF + 8, vWF + 16)
    for q in range(4):
        A('ds_write_b128 v%d, %s offset:%d', vOW, v(vWF + 4 * q, 4), q * 1024)
    A('s_waitcnt lgkmcnt(4)')
    for r in range(0, 16, 2):
        rs = (vAC + 8 + r) if r < 8 else (vPK + r)
        A('v_pk_mul_f32 v[%d:%d], v[%d:%d], v[%d:%d]', vAC2 + r, vAC2 + r + 1, vAC2 + r, vAC2 + r + 1, rs, rs + 1)
    cvt8(A, vPK, vAC2)
    for r in range(8):
        A('v_cndmask_b32 v%d, v%d, v%d, s[%d:%d]', vPK + r, vPK + r, vT1, sPADL, sPADL + 1)
    for q in range(2):
        A('ds_write_b128 v%d, %s offset:%d', vOW, v(vPK + 4 * q, 4), L_KVV - L_KVA + q * 1024)
    set_stage(A, C0 + 1)
    stamp(A)
    gemm_part(A, vAC, 2, False, C0 + 3)

    def cfq_reads():
        A('ds_read_b64 v[%d:%d], v%d offset:%d', vCF, vCF + 1, vCA, 2 * 512)
        A('ds_read_b32 v%d, v%d offset:%d', vPW + 1, vMI, M_FAST)
        return 2
    wait_word(A, 7, 8, body=cfq_reads)
    A('s_waitcnt lgkmcnt(0)')
    A('v_readfirstlane_b32 s%d, v%d', sFASTF, vPW + 1)
    project()
    softmax_pm(A, vAC, vSC, vPK, vTT)
    vQF = [vAC, vAC + 4, vPK, vPK + 4]
    stamp(A)
    vW1A = vXA
    A('v_bfe_u32 v%d, v%d, 2, 2', vT0, vL)
    A('v_lshrrev_b32 v%d, 5, v%d', vT1, vL)
    A('v_lshl_add_u32 v%d, v%d, 2, v%d', vT1, vT1, vT0)
    A('v_lshlrev_b32 v%d, 8, v%d', vW1A, vT1)
    A('v_lshlrev_b32 v%d, 7, v%d', vWA, vT1)
    A('v_xor_b32 v%d, s%d, v%d', vT0, sWV, vT0)
    A('v_lshl_add_u32 v%d, v%d, 6, v%d', vW1A, vT0, vW1A)
    A('v_bfe_u32 v%d, v%d, 4, 1', vT1, vL)
    A('v_lshlrev_b32 v%d, 5, v%d', vT1, vT1)
    A('v_and_b32 v%d, 3, v%d', vT0, vL)
    A('v_lshl_add_u32 v%d, v%d, 3, v%d', vT1, vT0, vT1)
    A('v_add_u32 v%d, v%d, v%d', vW1A, vW1A, vT1)
    A('v_add_u32 v%d, 0x8000, v%d', vW1A + 1, vW1A)
    A('v_add_u32 v%d, v%d, v%d', vWA, vWA, vT1)
    A('v_bfe_u32 v%d, v%d, 3, 1', vT1, vL)
    A('v_lshl_add_u32 v%d, v%d, 6, v%d', vWA, vT1, vWA)

    def w1_copy(c):
        wait_lp(A, ('w1', c))
        for q in range(4):
            for z in range(2):
                off = w1_slot(c) + (16 * q + 8 * z) * 256
                base = vW1A
                if off >= 0x8000:
                    off -= 0x8000
                    base += 1
                r = vXR + (4 * c + q) * 4 + 2 * z
                A('ds_read_b64_tr_b16 v[%d:%d], v%d offset:%d', r, r + 1, base, off)

    idle = A.label('IDLE')
    A('s_cmp_ge_u32 s%d, 28', sI)
    A('s_cbranch_scc1 %s', idle)
    w1_copy(0)
    w1_copy(1)
    set_stage(A, C0 + 4)
    A('%s:', idle)
    A('s_lshl_b32 s%d, s%d, 2', sFL, sTB)
    A('s_add_u32 s%d, s%d, s%d', sFL, sFL, sWV)
    A('s_lshl_b32 s%d, s%d, 4', sFL, sFL)
    A('s_add_u32 s%d, s%d, s%d', sFL, sFL, sH)
    A('s_lshl_b32 s%d, s%d, 11', sB, sFL)
    A('s_add_u32 s%d, s%d, %d', sB, sB, WS_OB)
    A('s_lshl_b32 s%d, s%d, 2', sFL, sFL)
    A('s_add_u32 s%d, s%d, %d', sFL, sFL, F2)
    vEX = vXD + 1
    A('v_add_u32 v%d, %d, v%d', vEX, L_EX, vO)

    def ex_reads():
        for q in range(4):
            A('ds_read_b128 %s, v%d offset:%d', v(vWF + 4 * q, 4), vEX, q * 1024)
        return 4
    wait_stage(A, 3, (5, 6), body=ex_reads)
    stamp(A)
    for q in range(4):
        A('s_waitcnt lgkmcnt(%d)', 3 - q)
        mfma(A, vAC2, vWF + 4 * q, vQF[q], q == 0)
    A('v_cndmask_b32 v%d, v%d, v%d, s[%d:%d]', vT0, vAC2 + 12, vAC2, sODD, sODD + 1)
    A('v_mov_b32 v%d, v%d', vT1, vT0)
    A('v_permlane32_swap_b32 v%d, v%d', vT0, vT1)
    A('v_cndmask_b32 v%d, v%d, v%d, s[%d:%d]', vTT, vT1, vT0, sODD, sODD + 1)
    A('v_add_f32 v%d, 0x%x, v%d', vTT, 0x358637bd, vTT)
    A('v_rcp_f32 v%d, v%d', vTT, vTT)
    for r in range(0, 16, 2):
        A('v_pk_mul_f32 v[%d:%d], v[%d:%d], v[%d:%d] op_sel_hi:[1,0]', vAC2 + r, vAC2 + r + 1, vAC2 + r, vAC2 + r + 1,
          vTT, vTT + 1)
    cvt8(A, vPK, vAC2)
    for r in (0, 1):
        A('v_cndmask_b32 v%d, v%d, 0, s[%d:%d]', vPK + r, vPK + r, sZA, sZA + 1)
        A('v_cndmask_b32 v%d, v%d, 0, s[%d:%d]', vPK + 6 + r, vPK + 6 + r, sZB, sZB + 1)
    pub_stores(A, [st4(vPK + 4 * q, sB, q * 1024) for q in range(2)], MAP == 0 and not WTO)
    A('s_and_b32 s%d, s%d, 1', sG, sWV)
    A('s_lshr_b32 s%d, s%d, 1', sKH, sWV)
    A('s_lshl_b32 s%d, s%d, 1', sT, sTQ)
    A('s_add_u32 s%d, s%d, s%d', sG, sG, sT)
    A('s_lshl_b32 s%d, s%d, 6', sT, sKH)
    A('v_xor_b32 v%d, s%d, v%d', vWA, sT, vWA)
    A('v_xor_b32 v%d, 64, v%d', vWA + 1, vWA)
    A('s_mul_i32 s%d, s%d, %d', sT, sKH, 224 * 128)
    A('s_add_u32 s%d, s%d, %d', sT, sT, L_A)
    A('v_add_u32 v%d, s%d, v%d', vWA + 2, sT, vWA)
    A('v_add_u32 v%d, s%d, v%d', vWA + 3, sT, vWA + 1)
    vSW, vSR, vPP, vXS = vXA + 2, vXA + 3, vSM, vSM + 1
    A('s_and_b32 s%d, s%d, 1', sC, sWV)
    A('s_lshl_b32 s%d, s%d, 12', sC, sC)
    A('v_add_u32 v%d, s%d, v%d', vSW, sC, vO)
    A('s_cmp_eq_u32 s%d, 0', sKH)
    A('s_cselect_b32 s%d, %d, %d', sT, L_SC0 >> 12, L_SC1 >> 12)
    A('s_cselect_b32 s%d, %d, %d', sT2, L_SC1 >> 12, L_SC0 >> 12)
    A('s_lshl_b32 s%d, s%d, 12', sT, sT)
    A('s_lshl_b32 s%d, s%d, 12', sT2, sT2)
    A('v_add_u32 v%d, s%d, v%d', vSR, sT2, vSW)
    A('v_add_u32 v%d, s%d, v%d', vSW, sT, vSW)
    A('v_xor_b32 v%d, 8, v%d', vPP, vMY)
    A('v_and_b32 v%d, 31, v%d', vXS, vL)
    A('v_lshlrev_b32 v%d, 7, v%d', vXS, vXS)
    A('v_lshrrev_b32 v%d, 5, v%d', vT1, vL)
    A('v_lshl_add_u32 v%d, v%d, 3, v%d', vXS, vT1, vXS)
    A('s_lshl_b32 s%d, s%d, 6', sT2, sKH)
    A('s_add_u32 s%d, s%d, s%d', sC, sC, sT2)
    A('v_add_u32 v%d, s%d, v%d', vXS, sC, vXS)
    A('s_lshl_b32 s%d, s%d, 15', sB, sG)
    A('s_lshl_b32 s%d, s%d, 14', sT, sKH)
    A('s_add_u32 s%d, s%d, s%d', sB, sB, sT)
    A('s_add_u32 s%d, s%d, %d', sB, sB, WS_OB)
    A('s_lshl_b32 s%d, s%d, 6', sC, sG)
    A('s_lshl_b32 s%d, s%d, 5', sT, sKH)
    A('s_add_u32 s%d, s%d, s%d', sC, sC, sT)
    A('s_add_u32 s%d, s%d, %d', sC, sC, F2)
    pub_flag(A, sFL, MAP == 0)
    set_stage(A, C0 + 5)
    stamp(A)
    fin = A.label('FIN')
    A('s_cmp_ge_u32 s%d, 28', sI)
    A('s_cbranch_scc1 %s', fin)

    vHP = 120
    vB2 = [40 + 4 * k for k in range(8)] + [224 + 4 * k for k in range(8)]
    vWF2 = 72
    wait_lp(A, 'wo')

    def wo_row(k):
        hh = k // 2
        return 28 * hh - 4 * (hh & 1) + 16 * (k & 1)

    def read_wo(k):
        buf = vWF2 + 8 * (k & 1)
        for nt in range(2):
            for z in range(2):
                A('ds_read_b64_tr_b16 v[%d:%d], v%d offset:%d', buf + 4 * nt + 2 * z, buf + 4 * nt + 2 * z + 1,
                  vWA + 2 + nt, (wo_row(k) + 8 * z) * 128)

    def unpack_hp():
        for r in range(8):
            A('v_lshlrev_b32 v%d, 16, v%d', vAC + 2 * r, vHP + r)
            A('v_and_b32 v%d, 0xffff0000, v%d', vAC + 2 * r + 1, vHP + r)

    read_wo(0)
    if MAP == 3 and E('SPOLL', 1):
        poll_scalar(A, sC, 8)
    else:
        poll_global(A, sC, 8)
    stamp(A)
    for k in range(16):
        A('buffer_load_dwordx4 %s, v%d, s[%d:%d], s%d offen offset:%d sc1', v(vB2[k], 4), vO, SWS, SWS + 3, sB,
          (k & 3) * 1024)
        if (k & 3) == 3:
            A('s_add_u32 s%d, s%d, 4096', sB, sB)
    A('s_lshl_b32 s%d, s%d, 1', sT2, sNB)
    A('s_add_u32 s%d, s%d, s%d', sT2, sT2, sKH)
    A('s_lshl_b32 s%d, s%d, 15', sB, sG)
    A('s_add_u32 s%d, s%d, %d', sB, sB, WS_HB)
    A('s_lshl_b32 s%d, s%d, 8', sC, sT2)
    A('s_add_u32 s%d, s%d, s%d', sC, sC, sB)
    A('s_lshl_b32 s%d, s%d, 11', sT, sT2)
    A('s_add_u32 s%d, s%d, s%d', sB, sB, sT)
    A('s_add_u32 s%d, s%d, 4096', sB, sB)
    A('s_lshl_b32 s%d, s%d, 2', sFL, sT2)
    A('s_lshl_b32 s%d, s%d, 6', sT, sG)
    A('s_add_u32 s%d, s%d, s%d', sFL, sFL, sT)
    A('s_add_u32 s%d, s%d, %d', sFL, sFL, F3)
    wait_lp(A, 'xres')
    for q in range(4):
        A('ds_read_b64 v[%d:%d], v%d offset:%d', vHP + 2 * q, vHP + 2 * q + 1, vXS, L_XRES + q * 16)
    A('v_mov_b32 v%d, 1', vT1)
    A('ds_write_b32 v%d, v%d offset:%d', vMY, vT1, M_RES)
    A('s_waitcnt lgkmcnt(1)')
    unpack_hp()
    lo, done = A.label('W'), A.label('WD')
    A('%s:', lo)
    A('ds_read_b32 v%d, v%d offset:%d', vPW, vPP, M_RES)
    A('s_waitcnt lgkmcnt(0)')
    A('v_readfirstlane_b32 s%d, v%d', sT, vPW)
    spin_guard(A, done)
    A('s_cmp_ge_u32 s%d, 1', sT)
    A('s_cbranch_scc0 %s', lo)
    A('%s:', done)
    for k in range(16):
        if k < 15:
            read_wo(k + 1)
        A('s_waitcnt vmcnt(%d) lgkmcnt(%d)', 15 - k, 4 if k < 15 else 0)
        buf = vWF2 + 8 * (k & 1)
        mfma(A, vAC + 16, buf + 4, vB2[k], k == 0)
        mfma(A, vAC, buf, vB2[k])
    stamp(A)

    def exchange(st):
        for q in range(4):
            A('ds_write_b128 v%d, %s offset:%d', vSW, v(vAC + 16 + 4 * q, 4), q * 1024)
        set_stage(A, st)
        lo, done = A.label('W'), A.label('WD')
        A('%s:', lo)
        A('ds_read_b32 v%d, v%d', vPW, vPP)
        for q in range(4):
            A('ds_read_b128 %s, v%d offset:%d', v(vWF2 + 4 * q, 4), vSR, q * 1024)
        A('s_waitcnt lgkmcnt(4)')
        A('v_readfirstlane_b32 s%d, v%d', sT, vPW)
        spin_guard(A, done)
        A('s_cmp_ge_u32 s%d, %d', sT, st)
        A('s_cbranch_scc0 %s', lo)
        A('%s:', done)
        for q in range(4):
            A('s_waitcnt lgkmcnt(%d)', 3 - q)
            for r in (0, 2):
                a0 = vAC + 4 * q + r
                A('v_pk_add_f32 v[%d:%d], v[%d:%d], v[%d:%d]', a0, a0 + 1, a0, a0 + 1, vWF2 + 4 * q + r,
                  vWF2 + 4 * q + r + 1)

    exchange(C0 + 6)
    set_stage(A, C0 + 7)
    cvt8(A, vHP, vAC)
    pub_stores(A, [st4(vHP + 4 * q, sB, q * 1024) for q in range(2)], not WTO)
    A('v_mov_b32 v%d, 0', vTT)
    A('v_mov_b32 v%d, 0', vTT + 1)
    for r in range(8):
        A('v_dot2c_f32_bf16 v%d, s%d, v%d', vTT, sONES, vHP + r)
        A('v_dot2c_f32_bf16 v%d, v%d, v%d', vTT + 1, vHP + r, vHP + r)
    A('v_lshlrev_b32 v%d, 2, v%d', vTT + 2, vL)
    A('v_permlane32_swap_b32 v%d, v%d', vTT, vTT + 1)
    A('v_add_f32 v%d, v%d, v%d', vTT, vTT, vTT + 1)
    pub_stores(A, ['buffer_store_dword v%d, v%d, s[%d:%d], s%d offen%%s' % (vTT, vTT + 2, SWS, SWS + 3, sC)], not WTO)
    for c in (2, 3):
        w1_copy(c)
    pub_flag(A, sFL, True)
    stamp(A)
    vCS = vSQ
    for c in (4, 5, 6):
        w1_copy(c)
    set_stage(A, C0 + 8)
    A('v_mov_b32 v%d, 0', vCS)
    A('v_mov_b32 v%d, 0', vCS + 1)
    for r in range(112):
        if r == 32:
            A('s_waitcnt lgkmcnt(0)')
        A('v_dot2c_f32_bf16 v%d, s%d, v%d', vCS + (r & 1), sONES, vXR + r)
    A('v_add_f32 v%d, v%d, v%d', vCS, vCS, vCS + 1)
    hilo_c(A, vCS, vCF, vT0)
    vBR = 40
    vE3 = 72
    vMF2, vSD = 128, 132
    A('s_mul_i32 s%d, s%d, %d', sB, sTB3, 4 * 112)
    A('s_lshl_b32 s%d, s%d, 3', sT, sFB)
    A('s_add_u32 s%d, s%d, s%d', sB, sB, sT)
    A('s_lshl_b32 s%d, s%d, 1', sT, sWV)
    A('s_add_u32 s%d, s%d, s%d', sB, sB, sT)
    A('s_lshl_b32 s%d, s%d, 10', sB, sB)
    A('s_add_u32 s%d, s%d, %d', sB, sB, WS_H1B)
    A('s_lshl_b32 s%d, s%d, 10', sFL, sTB3)
    A('s_lshl_b32 s%d, s%d, 4', sT, sFB)
    A('s_add_u32 s%d, s%d, s%d', sFL, sFL, sT)
    A('s_lshl_b32 s%d, s%d, 2', sT, sWV)
    A('s_add_u32 s%d, s%d, s%d', sFL, sFL, sT)
    A('s_add_u32 s%d, s%d, %d', sFL, sFL, F4)

    def p3_epilogue(gi, packed=False):
        B = sub(A)
        acc = vAC + 16 * (gi & 1)
        e = vE3
        sd, c1 = vSD, vSD + 1
        if packed:
            pk = lambda r: 'v[%d:%d]' % (r, r + 1)
            for r in range(0, 16, 2):
                B('v_pk_mul_f32 %s, %s, %s op_sel:[0,1] op_sel_hi:[1,1]', pk(e + r), pk(acc + r), pk(sd))
            for r in range(16):
                B('v_exp_f32 v%d, v%d', e + r, e + r)
            for r in range(0, 16, 2):
                B('v_pk_fma_f32 %s, %s, %s, %s op_sel_hi:[1,0,0]', pk(e + r), pk(e + r), pk(sd), pk(sd))
            for r in range(16):
                B('v_rcp_f32 v%d, v%d', e + r, e + r)
            for r in range(0, 16, 2):
                B('v_pk_mul_f32 %s, %s, %s', pk(e + r), pk(e + r), pk(acc + r))
        else:
            for r in range(16):
                B('v_mul_f32 v%d, v%d, v%d', e + r, acc + r, c1)
                if r >= 1:
                    B('v_exp_f32 v%d, v%d', e + r - 1, e + r - 1)
            B('v_exp_f32 v%d, v%d', e + 15, e + 15)
            for r in range(16):
                B('v_fma_f32 v%d, v%d, v%d, v%d', e + r, e + r, sd, sd)
                if r >= 1:
                    B('v_rcp_f32 v%d, v%d', e + r - 1, e + r - 1)
            B('v_rcp_f32 v%d, v%d', e + 15, e + 15)
            for r in range(16):
                B('v_mul_f32 v%d, v%d, v%d', e + r, e + r, acc + r)
        cvt8(B, acc, e)
        blocks = [[l] for l in B.lines]
        B = sub(A)
        pub_stores(B, [st4(acc + 4 * q, sB, q * 1024) for q in range(2)], not WT1)
        B('s_add_u32 s%d, s%d, %d', sB, sB, 112 * 1024)
        blocks.append(B.lines)
        return blocks

    def p3_flag(B):
        pub_flag(B, sFL, True)
        B('s_add_u32 s%d, s%d, 256', sFL, sFL)

    PRE = E('P3PRE', 6)
    vHB = vXD + 2
    A('v_add_u32 v%d, %d, v%d', vHB, L_A, vO)
    A('v_add_u32 v%d, %d, v%d', vHB + 1, 65536, vO)
    A('s_mov_b32 s%d, 0', CACHE[6])
    Q = LdsQ(A)

    def rd(n):
        gi, k = divmod(n, 28)
        if (k + 5) % 8 == 0 and k != 3:
            Q.take(7)
        if (k + 4) % 8 == 0 or k == 0:
            wait_lp(Q.A, ('h', gi, (k + 4) // 8))
        Q.op(('b', n), 'ds_read_b128 %s, v%d offset:%d', v(vBR + 4 * (n % 8), 4), (vHB, vHB, vO, vHB + 1)[gi],
             (28672 if gi == 1 else 0) + k * 1024)
        if k == 27:
            Q.stage(C0 + 9 + gi)
        nn = n + PRE + 2
        if nn < 112 and ((nn % 28 + 4) % 8 == 0 or nn % 28 == 0) and nn % 28 != 4:
            Q.peek(7)

    for n in range(PRE):
        rd(n)
    for gi in range(4):
        acc = vAC + 16 * (gi & 1)
        M = sub(A)
        Q.A = M
        for k in range(28):
            n = 28 * gi + k
            if n + PRE < 112:
                rd(n + PRE)
            if k == 14:
                Q.op('s6', 'ds_read_b32 v%d, v%d offset:%d', vPK_ + 1, vMI, M_PW + 24)
                Q.op('sf', 'ds_read_b128 %s, v%d offset:%d', v(vMF2, 4), vEX, gi * 1024)
            if k == 24:
                Q.wait('sf')
                M('v_readfirstlane_b32 s%d, v%d', sC, vPK_ + 1)

                def st_slow(B, back):
                    def st_read():
                        B('ds_read_b128 %s, v%d offset:%d', v(vMF2, 4), vEX, gi * 1024)
                        return 0
                    wait_word(B, 6, 4 + gi, body=st_read)
                ent, back = cold_block(M, st_slow)
            if k == 25:
                M('s_cmp_ge_u32 s%d, %d', sC, 4 + gi)
                M('s_cbranch_scc0 %s', ent)
                M('%s:', back)
                M('v_mov_b32 v%d, v%d', vMF, vMF2)
                M('v_mov_b32 v%d, v%d', vMF + 1, vMF2 + 1)
            if k % 2 == 0:
                Q.wait(('b', n + 1))
            if k in (0, 12):
                stamp(M, 'p3')
            if gi == 3 and k % 2 == 0 and k:
                stamp(M, 'p33')
            if k == E('P3FLAGK', 14) and gi >= 2:
                p3_flag(M)
            mfma(M, acc, vXR + 4 * k, vBR + 4 * (n % 8), k == 0)
        mfma(M, acc, vCF, vMF)
        M('v_mov_b32 v%d, v%d', vSD, vMF2 + 2)
        M('v_mov_b32 v%d, v%d', vSD + 1, vMF2 + 3)
        A.lines += merge(M.lines, p3_epilogue(gi - 1) if gi > 0 else [], 1, 27)
        if gi == 0:
            stamp(A)
        stamp(A, 'p3')
    stamp(A)
    for j, b in enumerate(p3_epilogue(3, True)):
        if j == 30:
            p3_flag(A)
        A.lines += b
    NB = 28
    vWF4 = 40
    A('s_mul_i32 s%d, s%d, %d', sB, sG, 112 * 1024)
    A('s_mul_i32 s%d, s%d, %d', sT, sKH, 56 * 1024)
    A('s_add_u32 s%d, s%d, s%d', sB, sB, sT)
    A('s_add_u32 s%d, s%d, %d', sB, sB, WS_H1B)
    A('s_lshl_b32 s%d, s%d, 8', sC, sG)
    A('s_mul_i32 s%d, s%d, 112', sT, sKH)
    A('s_add_u32 s%d, s%d, s%d', sC, sC, sT)
    A('s_add_u32 s%d, s%d, %d', sC, sC, F4)

    def w2_base(c):
        A('s_cmp_eq_u32 s%d, 0', sKH)
        A('s_cselect_b32 s%d, %d, %d', sT, w2_slot(2 * c) >> 12, w2_slot(2 * c + 1) >> 12)
        A('s_lshl_b32 s%d, s%d, 12', sT, sT)
        A('v_add_u32 v%d, s%d, v%d', vWA + 2, sT, vWA)
        A('v_add_u32 v%d, s%d, v%d', vWA + 3, sT, vWA + 1)

    Q = LdsQ(A)

    def read_w2(k):
        if k % 4 == 3:
            Q.take(4)
        if k % 4 == 0:
            wait_lp(A, ('w2', 2 * (k // 4) + 1))
            w2_base(k // 4)
        buf = vWF4 + 8 * (k & 3)
        for nt in range(2):
            for z in range(2):
                Q.op(('w', k), 'ds_read_b64_tr_b16 v[%d:%d], v%d offset:%d', buf + 4 * nt + 2 * z,
                     buf + 4 * nt + 2 * z + 1, vWA + 2 + nt, ((k % 4) * 16 + 8 * z) * 128)
        if k % 4 == 0 and k < 52:
            Q.peek(4)
        if k % 4 == 3 and (k // 4) <= 5:
            Q.stage(C0 + 13 + k // 4)

    def issue_b(k):
        A('buffer_load_dwordx4 %s, v%d, s[%d:%d], s%d offen offset:%d sc1', v(vXR + 4 * (k % NB), 4), vO, SWS, SWS + 3,
          sB, (k & 3) * 1024)
        if (k & 3) == 3:
            A('s_add_u32 s%d, s%d, 4096', sB, sB)

    unpack_hp()
    read_w2(0)
    read_w2(1)
    p3_flag(A)
    stamp(A)
    poll_global(A, sC, 28)
    stamp(A)
    INFL = E('P4INFL', 10)
    for k in range(INFL):
        issue_b(k)
    issued = INFL
    for k in range(56):
        if k + 2 < 56:
            read_w2(k + 2)
        Q.wait(('w', k), issued - k - 1)
        if k % 4 == 0 and k:
            stamp(A, 'p4')
        if 40 <= k < 53:
            stamp(A, 'p44')
        buf = vWF4 + 8 * (k & 3)
        mfma(A, vAC + 16, buf + 4, vXR + 4 * (k % NB), k == 0)
        mfma(A, vAC, buf, vXR + 4 * (k % NB))
        if issued < 56:
            issue_b(issued)
            issued += 1
    stamp(A)
    A('v_and_b32 v%d, 31, v%d', vTT, vL)
    A('v_mul_u32_u24 v%d, 896, v%d', vTT, vTT)
    A('v_lshrrev_b32 v%d, 5, v%d', vT1, vL)
    A('v_lshl_add_u32 v%d, v%d, 4, v%d', vTT, vT1, vTT)
    A('s_mul_i32 s%d, s%d, %d', sB, sG, 32 * 896)
    A('s_lshl_b32 s%d, s%d, 7', sT2, sNB)
    A('s_add_u32 s%d, s%d, s%d', sB, sB, sT2)
    A('s_lshl_b32 s%d, s%d, 6', sT2, sKH)
    A('s_add_u32 s%d, s%d, s%d', sB, sB, sT2)
    exchange(C0 + 27)
    cvt8(A, vHP, vAC)
    for q in range(2):
        A('v_permlane32_swap_b32 v%d, v%d', vHP + 4 * q, vHP + 4 * q + 2)
        A('v_permlane32_swap_b32 v%d, v%d', vHP + 4 * q + 1, vHP + 4 * q + 3)
    for q in range(2):
        A('buffer_store_dwordx4 %s, v%d, s[%d:%d], s%d offen offset:%d', v(vHP + 4 * q, 4), vTT, SOUT, SOUT + 3, sB,
          q * 32)
    A('s_or_b32 s%d, s2, s%d', sT, sWV)
    A('s_cmp_lg_u32 s%d, 0', sT)
    A('s_cbranch_scc1 %s', fin)
    A('s_mov_b32 s%d, %d', sT, FEP)
    A('s_mov_b64 exec, 1')
    A('buffer_store_dword v%d, v%d, s[%d:%d], s%d offen', vTAG, vO, SWS, SWS + 3, sT)
    A('s_mov_b64 exec, -1')
    A('%s:', fin)
    if E('PADTO', 0):
        lo = A.label('PAD')
        A('s_waitcnt vmcnt(0) lgkmcnt(0)')
        A('%s:', lo)
        A('s_memrealtime s[4:5]')
        A('s_waitcnt lgkmcnt(0)')
        A('s_sub_u32 s4, s4, s84')
        A('s_cmp_lt_u32 s4, %d', E('PADTO', 0))
        A('s_cbranch_scc1 %s', lo)
    stamp_flush(A)


def gen():
    A = Asm()
    name = NAME + '_kernel'
    A.lines += ['.p2align 8', '.globl %s' % name, '.type %s,@function' % name, '%s:' % name]
    end = A.label('END')
    if E('PADTO', 0):
        A('s_memrealtime s[84:85]')
    A('s_getpc_b64 s[%d:%d]', sPC, sPC + 1)
    A('s_cmp_ge_u32 s2, 256')
    A('s_cbranch_scc1 %s', end)
    A('s_load_dwordx16 s[64:79], s[0:1], 0')
    A('s_load_dwordx2 s[80:81], s[0:1], 72')
    if DBGT:
        A('s_load_dwordx2 s[86:87], s[0:1], 64')
    A('s_mov_b32 s%d, 0x400000', sSPIN)
    A('s_and_b32 s%d, s2, 7', sXCD)
    A('s_lshr_b32 s%d, s2, 3', sI)
    if MAP == 0:
        perm = [2, 4, 6, 9, 11, 13, 0, 1, 3, 5, 7, 8, 10, 12, 14, 15]
        lo = sum(perm[i] << (4 * i) for i in range(8))
        hi = sum(perm[8 + i] << (4 * i) for i in range(8))
        A('s_mov_b32 s%d, 0x%x', sHI, lo)
        A('s_mov_b32 s%d, 0x%x', sHI + 1, hi)
        A('s_lshr_b32 s%d, s%d, 1', sT, sI)
        A('s_lshl_b32 s%d, s%d, 2', sT, sT)
        A('s_lshr_b64 s[%d:%d], s[%d:%d], s%d', sHI, sHI + 1, sHI, sHI + 1, sT)
        A('s_and_b32 s%d, s%d, 15', sH, sHI)
        A('s_and_b32 s%d, s%d, 1', sTB, sI)
        A('s_lshl_b32 s%d, s%d, 1', sT, sXCD)
        A('s_add_u32 s%d, s%d, s%d', sTB, sTB, sT)
    else:
        A('s_lshr_b32 s%d, s%d, 1', sTB, sI)
        A('s_and_b32 s%d, s%d, 1', sH, sI)
        A('s_lshl_b32 s%d, s%d, 1', sT, sXCD)
        A('s_add_u32 s%d, s%d, s%d', sH, sH, sT)
    A('s_add_u32 s%d, s%d, s%d', sC0, sXCD, sI)
    A('s_mul_i32 s%d, s%d, 37', sT, sC0)
    A('s_lshr_b32 s%d, s%d, 8', sT, sT)
    A('s_mul_i32 s%d, s%d, 7', sT, sT)
    A('s_sub_u32 s%d, s%d, s%d', sC0, sC0, sT)
    A('s_mul_i32 s%d, s%d, 37', sTQ, sI)
    A('s_lshr_b32 s%d, s%d, 8', sTQ, sTQ)
    A('s_mul_i32 s%d, s%d, 7', sNB, sTQ)
    A('s_sub_u32 s%d, s%d, s%d', sNB, sI, sNB)
    A('s_lshr_b32 s%d, s%d, 1', sTB3, sTQ)
    A('s_mul_i32 s%d, s%d, 14', sFB, sTB3)
    A('s_sub_u32 s%d, s%d, s%d', sFB, sI, sFB)
    A('s_lshl_b32 s%d, s%d, 2', sT, sXCD)
    A('s_add_u32 s%d, s%d, s%d', sTQ, sTQ, sT)
    A('s_lshl_b32 s%d, s%d, 1', sT, sXCD)
    A('s_add_u32 s%d, s%d, s%d', sTB3, sTB3, sT)
    A('v_lshrrev_b32 v%d, 6, v0', vL)
    A('v_readfirstlane_b32 s%d, v%d', sWV, vL)
    A('v_lshlrev_b32 v%d, 2, v%d', vMY, vL)
    A('v_add_u32 v%d, %d, v%d', vMY, L_MISC, vMY)
    A('v_and_b32 v%d, 63, v0', vL)
    A('v_lshlrev_b32 v%d, 4, v%d', vO, vL)
    A('v_mov_b32 v%d, %d', vMI, L_MISC)
    A('v_mov_b32 v%d, 0', vT0)
    A('ds_write_b32 v%d, v%d', vMY, vT0)
    A('ds_write_b32 v%d, v%d offset:%d', vMY, vT0, M_RES)
    A('ds_write_b32 v%d, v%d offset:%d', vMY, vT0, M_FAST)
    A('s_mov_b32 s%d, 0', sPROG)
    A('s_mov_b32 s%d, 0', sFASTF)
    A('s_mov_b32 s%d, 0x%x', sONES, ONES)
    early_offsets(A)
    A('s_waitcnt lgkmcnt(0)')
    A('s_barrier')
    A('s_mov_b32 s%d, 0', sPROG1)
    srd(A, SX, 64, S * D * 2)
    srd(A, SW, 66, D * 3 * D * 2)
    _st['n'] = 0
    stamp(A, 'all')
    if STAMPS:
        A('s_memrealtime s[86:87]')
    for i in range(7):
        LP[('x', i)] = (7, 1 + i)
    for gi in range(4):
        LP[('hf', gi)] = (7, 9 + 9 * (gi // 2))
        for q in range(4):
            LP[('h', gi, q)] = (7, 10 + 4 * gi + gi // 2 + q)
    for pi in range(3):
        for i in range(7):
            LP[('W', pi, i)] = (4, 7 * pi + i + 1)
    l0, l1, l2, lw, lc = A.label('H0'), A.label('H1'), A.label('H23'), A.label('EW'), A.label('EC')
    A('s_cmp_eq_u32 s%d, 4', sWV)
    A('s_cbranch_scc1 %s', lw)
    A('s_cmp_lg_u32 s%d, 7', sWV)
    A('s_cbranch_scc1 %s', lc)
    HELP['on'] = True
    nst = {}
    prio(A, 1)
    _st['n'] = 1
    early_x(A)
    nst[l1] = _st['n']
    A('s_branch %s', l1)
    A('%s:', lw)
    prio(A, 1)
    _st['n'] = 1
    early_w(A)
    nst[l0] = _st['n']
    nst[l2] = 1
    A('s_branch %s', l0)
    A('%s:', lc)
    A('s_cmp_ge_u32 s%d, 5', sWV)
    A('s_cbranch_scc1 %s', l2)
    parts = {}
    for lab, fn in ((l0, gen_h0), (l1, gen_h1), (l2, gen_h23)):
        B = sub(A)
        B('%s:', lab)
        B('s_nop 4')
        HELP['on'] = True
        prio(B, 1)
        _st['n'] = nst[lab]
        fn(B)
        HELP['on'] = False
        parts[lab] = B.lines
    _st['n'] = 1
    gen_compute(A)
    A('%s:', end)
    A('s_endpgm')
    for lab in (l0, l1, l2):
        A.lines += parts[lab]
    A.lines += COLD
    return A, name


def main():
    out = sys.argv[1] if len(sys.argv) > 1 else 'cdna_kernels/%s.s' % NAME
    A, name = gen()
    lines, nn = fix_hazards(A.lines)
    hdr = ['; generated by gen/gen5.py (hand-written generator script)',
           '; @launch grid=(256,1,1) block=(512,1,1) lds=%d' % LDS_SIZE,
           '.amdgcn_target "amdgcn-amd-amdhsa--gfx950"', '.text']
    tail = ['.p2align 8', '.fill 2048, 4, 0xbf800000', '.section .rodata,"a"', '.p2align 6', '''.amdhsa_kernel %s
  .amdhsa_next_free_vgpr 256
  .amdhsa_next_free_sgpr 102
  .amdhsa_accum_offset 256
  .amdhsa_group_segment_fixed_size 0
  .amdhsa_kernarg_size 80
  .amdhsa_user_sgpr_count 2
  .amdhsa_user_sgpr_kernarg_segment_ptr 1
  .amdhsa_system_sgpr_workgroup_id_x 1
  .amdhsa_float_denorm_mode_32 3
  .amdhsa_float_denorm_mode_16_64 3
.end_amdhsa_kernel''' % name]
    open(out, 'w').write('\n'.join(hdr + lines + tail) + '\n')
    print('wrote', out, 'lines', len(lines), 'nops', nn)


if __name__ == '__main__':
    main()
```

```python
import sys
import os
sys.path.insert(0, os.path.dirname(os.path.abspath(__file__)))
from asmlib import Asm, fix_hazards, v

NAME = 'sequential_preLN__linear_kernel_hedgehog__dense_activation_silu__prompt'
S, D, H, DH, F = 2048, 448, 16, 28, 1792
MB = 1 << 20
E = lambda k, d: int(os.environ.get(k, d))
STAMPS = E('STAMPS', 0)
MAP = E('MAP', 0)
FAST = E('FAST', 1)
CODEPF = E('CODEPF', 1)
WARM = E('WARM', 1)
WT1 = E('WT1', 0)
WTO = E('WTO', 0)
TOUCHAT = E('TOUCHAT', 0)
WS_KVP = 0
WS_OB = 2 * MB
WS_HB = 4 * MB
WS_H1B = 8 * MB
WS_FLG = 16 * MB
F1, F2, F3, F4, FREG, FEP = WS_FLG, WS_FLG + 0x1000, WS_FLG + 0x3000, WS_FLG + 0x5000, WS_FLG + 0x9000, WS_FLG + 0xA000
WS_STAMP = 17 * MB
WS_SIZE = 18 * MB
LOG2E = 0x3fb8aa3b
ONES = 0x3f803f80
MFMA = 'v_mfma_f32_32x32x16_bf16'
L_X = 0
L_WP = (114688, 0, 32768)
L_KVA, L_KVV = 65536, 81920
L_A = 98304
L_SC0, L_SC1 = 49152, 57344
L_XRES = L_SC0
B16 = (0, 16384, 65536, 81920, 32768)
L_PHI, L_EX, L_CF, L_MISC = 159744 - 2048 + 2048 + 1536, 155648, 159744, 163328
LDS_SIZE = 163840
M_PW, M_RES, M_FAST = 0, 32, 64
L_RSTD = L_EX

SX, SW, SP, SWS, SWO, SW1, SW2, SOUT = 12, 16, 20, 24, 28, 32, 36, 40
sTB, sH, sWV, sC0, sPROG, sT, sT2, sONES, sC, sTAG, sFASTF, sI, sXCD = 44, 45, 46, 47, 48, 49, 50, 51, 52, 53, 54, 55, 3
sHI, sPADL, sZA, sZB, sODD, sPC = 4, 6, 8, 10, 92, 94
sTQ, sNB, sTB3, sFB, sG, sKH, sB, sXB, sM0, sSPIN = 96, 97, 98, 99, 100, 101, 88, 89, 91, 90
sPROG1, sFL = 0, 1
vL, vMI, vT0, vT1, vO = 1, 2, 3, 4, 5
vTAG, vMY = 6, 7
vTT = 8
vXA = 12
vWA = 16
vSM, vSQ = 20, 22
vNM, vRS, vSC, vRA = 24, 25, 26, 27
vXD = 28
vPW = 32
vCA = 36
vXR = 144
vPK_ = 37
CACHE = {4: sPROG, 7: sPROG1, 6: sC0}

_st = {'n': 0}
C0 = 3
HELP = {'on': False}


def prio(A, hi):
    if HELP['on'] and E('HPRIO', 2):
        A('s_setprio %d', E('HPRIO', 2) if hi else 0)
LP = {}


STSET = os.environ.get('STSET', 'main')


DBGT = E('DBGT', 0)


PROBE = E('PROBE', -1)


def stamp(A, tag='main'):
    if PROBE >= 0:
        if not HELP['on'] and tag in ('main', 'all'):
            if _st['n'] == PROBE:
                A('s_memrealtime s[56:57]')
            _st['n'] += 1
        return
    if DBGT and not HELP['on'] and tag in ('main', 'all'):
        A('s_memrealtime s[%d:%d]', 56 + 2 * _st['n'], 57 + 2 * _st['n'])
        _st['n'] += 1
        return
    if STAMPS and (tag == STSET or tag == 'all' or (HELP['on'] and tag == 'main')):
        assert _st['n'] < 15, 'too many stamps'
        A('s_memtime s[%d:%d]', 56 + 2 * _st['n'], 57 + 2 * _st['n'])
        _st['n'] += 1


def stamp_flush(A):
    if DBGT and not HELP['on']:
        A('s_waitcnt vmcnt(0)')
        stamp(A, 'all')
        skip = A.label('DS')
        A('s_waitcnt vmcnt(0) lgkmcnt(0)')
        A('s_cmp_ge_u32 s%d, 28', sI)
        A('s_cbranch_scc1 %s', skip)
        A('s_mov_b64 exec, 1')
        A('v_mov_b32 v1, 0')
        A('s_not_b32 s4, s56')
        A('v_mov_b32 v2, s4')
        A('global_atomic_umax v1, v2, s[86:87] offset:60')
        for i in range(_st['n']):
            A('v_mov_b32 v%d, s%d', 8 + i, 56 + 2 * i)
            A('global_atomic_umax v1, v%d, s[86:87] offset:%d', 8 + i, 4 * i)
        A('%s:', skip)
        return
    if STAMPS:
        A('s_waitcnt vmcnt(0)')
        stamp(A, 'all')
        A('s_memrealtime s[4:5]')
        A('s_waitcnt vmcnt(0) lgkmcnt(0)')
        A('s_sub_u32 s4, s4, s86')
        A('s_lshl_b32 s4, s4, 20')
        A('s_and_b32 s86, s86, 0xfffff')
        A('s_or_b32 s86, s86, s4')
        A('s_lshl_b32 s%d, s2, 3', sT)
        A('s_add_u32 s%d, s%d, s%d', sT, sT, sWV)
        A('s_lshl_b32 s%d, s%d, 6', sT, sT)
        A('s_add_u32 s%d, s%d, %d', sT, sT, WS_STAMP)
        A('s_mov_b64 exec, 1')
        A('v_mov_b32 v1, 0')
        for i in range(16):
            if i < _st['n']:
                A('v_mov_b32 v2, s%d', 56 + 2 * i)
            elif i == 15:
                A('v_mov_b32 v2, s86')
            else:
                A('v_mov_b32 v2, 0')
            A('buffer_store_dword v2, v1, s[%d:%d], s%d offen offset:%d', SWS, SWS + 3, sT, 4 * i)
            A('s_nop 1')


def srd(A, d, ptr, size):
    A('s_mov_b32 s%d, s%d', d, ptr)
    A('s_and_b32 s%d, s%d, 0xffff', d + 1, ptr + 1)
    A('s_mov_b32 s%d, 0x%x', d + 2, size)
    A('s_mov_b32 s%d, 0x20000', d + 3)


COLD = []


def cold_block(A, fn):
    ent, back = A.label('CE'), A.label('CB')
    B = sub(A)
    B('%s:', ent)
    B('s_nop 15')
    fn(B, back)
    B('s_nop 7')
    B('s_branch %s', back)
    COLD.extend(B.lines)
    return ent, back


def spin_guard(A, done):
    A('s_sub_u32 s%d, s%d, 1', sSPIN, sSPIN)
    A('s_cbranch_scc1 %s', done)


def wait_word(A, w, n, cache=None, sleep=0, body=None):
    sd = sT if cache is None else cache

    def loop(B, done, body=None):
        lo = B.label('W')
        prio(B, 0)
        B('%s:', lo)
        if sleep:
            B('s_sleep %d', sleep)
        B('ds_read_b32 v%d, v%d offset:%d', vPW, vMI, M_PW + 4 * w)
        k = body() if body else 0
        B('s_waitcnt lgkmcnt(%d)', k)
        B('v_readfirstlane_b32 s%d, v%d', sd, vPW)
        spin_guard(B, done)
        B('s_cmp_ge_u32 s%d, %d', sd, n)
        B('s_cbranch_scc0 %s', lo)
        prio(B, 1)
    if cache is not None and body is None and not HELP['on'] and not HELP.get('inline'):
        ent, back = cold_block(A, loop)
        A('s_cmp_ge_u32 s%d, %d', sd, n)
        A('s_cbranch_scc0 %s', ent)
        A('%s:', back)
        return
    done = A.label('WD')
    if cache is not None and body is None:
        A('s_cmp_ge_u32 s%d, %d', sd, n)
        A('s_cbranch_scc1 %s', done)
    loop(A, done, body)
    A('%s:', done)


def wait_lp(A, name, sleep=0):
    w, n = LP[name]
    wait_word(A, w, n, CACHE[w], sleep)


def set_stage(A, n):
    A('v_mov_b32 v%d, %d', vT0, n)
    A('ds_write_b32 v%d, v%d', vMY, vT0)


def wait_stage(A, n, which=(0, 1, 2, 3), body=None, sleep=0):
    lo, done = A.label('W'), A.label('WD')
    prio(A, 0)
    A('%s:', lo)
    if sleep:
        A('s_sleep %d', sleep)
    A('ds_read_b128 v[%d:%d], v%d offset:%d', vPW, vPW + 3, vMI, M_PW + 16 * (which[0] // 4))
    k = body() if body else 0
    A('s_waitcnt lgkmcnt(%d)', k)
    w = [x % 4 for x in which]
    if len(w) == 4:
        A('v_min3_u32 v%d, v%d, v%d, v%d', vPW, vPW, vPW + 1, vPW + 2)
        A('v_min_u32 v%d, v%d, v%d', vPW, vPW, vPW + 3)
        r = vPW
    else:
        A('v_min_u32 v%d, v%d, v%d', vPW + w[0], vPW + w[0], vPW + w[1])
        r = vPW + w[0]
    A('v_readfirstlane_b32 s%d, v%d', sT, r)
    spin_guard(A, done)
    A('s_cmp_ge_u32 s%d, %d', sT, n)
    A('s_cbranch_scc0 %s', lo)
    A('%s:', done)
    prio(A, 1)


def poll_global(A, soff, nlanes):
    lo, done = A.label('P'), A.label('PD')
    A('v_lshlrev_b32 v%d, 2, v%d', vT1, vL)
    A('s_mov_b64 exec, 0x%x', (1 << nlanes) - 1)
    A('%s:', lo)
    A('buffer_load_dword v%d, v%d, s[%d:%d], s%d offen sc1', vT0, vT1, SWS, SWS + 3, soff)
    A('s_waitcnt vmcnt(0)')
    A('v_cmp_ne_u32 vcc, s%d, v%d', sTAG, vT0)
    spin_guard(A, done)
    A('s_cbranch_vccnz %s', lo)
    A('%s:', done)
    A('s_mov_b64 exec, -1')


def poll_scalar(A, soff, n):
    lo, done = A.label('P'), A.label('PD')
    A('s_add_u32 s%d, s%d, s%d', sPC, SWS, soff)
    A('s_addc_u32 s%d, s%d, 0', sPC + 1, SWS + 1)
    base = 68 if STAMPS else 72
    A('%s:', lo)
    A('s_load_dwordx%d s[%d:%d], s[%d:%d], 0 glc', n, base, base + n - 1, sPC, sPC + 1)
    A('s_waitcnt lgkmcnt(0)')
    A('s_and_b64 s[%d:%d], s[%d:%d], s[%d:%d]', sHI, sHI + 1, base, base + 1, base + 2, base + 3)
    A('s_or_b64 s[%d:%d], s[%d:%d], s[%d:%d]', sPADL, sPADL + 1, base, base + 1, base + 2, base + 3)
    for k in range(4, n, 2):
        A('s_and_b64 s[%d:%d], s[%d:%d], s[%d:%d]', sHI, sHI + 1, sHI, sHI + 1, base + k, base + k + 1)
        A('s_or_b64 s[%d:%d], s[%d:%d], s[%d:%d]', sPADL, sPADL + 1, sPADL, sPADL + 1, base + k, base + k + 1)
    A('s_and_b32 s%d, s%d, s%d', sHI, sHI, sHI + 1)
    A('s_or_b32 s%d, s%d, s%d', sPADL, sPADL, sPADL + 1)
    A('s_xor_b32 s%d, s%d, s%d', sHI, sHI, sTAG)
    A('s_xor_b32 s%d, s%d, s%d', sPADL, sPADL, sTAG)
    spin_guard(A, done)
    A('s_or_b32 s%d, s%d, s%d', sHI, sHI, sPADL)
    A('s_cbranch_scc1 %s', lo)
    A('%s:', done)


def two_ways(A, fn, local):
    if local and FAST:
        ent, back = cold_block(A, lambda B, back: fn(B, ' sc1'))
        A('s_cmp_eq_u32 s%d, 0', sFASTF)
        A('s_cbranch_scc1 %s', ent)
        fn(A, '')
        A('%s:', back)
    else:
        fn(A, ' sc1')


def pub_stores(A, stores, local):
    def fn(B, bits):
        for st in stores:
            B(st % bits)
    two_ways(A, fn, local)


def pub_flag(A, sflag, local):
    A('s_waitcnt vmcnt(0)')
    A('s_mov_b64 exec, 1')
    two_ways(A, lambda B, bits: B('buffer_store_dword v%d, v%d, s[%d:%d], s%d offen%s', vTAG, vO, SWS, SWS + 3, sflag,
                                  bits), local)
    A('s_mov_b64 exec, -1')


def st4(reg, soff, off):
    return 'buffer_store_dwordx4 %s, v%d, s[%d:%d], s%d offen offset:%d%%s' % (v(reg, 4), vO, SWS, SWS + 3, soff, off)


def hilo_c(A, src, f, tmp):
    A('v_cvt_pk_bf16_f32 v%d, v%d, v%d', f, src, src)
    A('v_and_b32 v%d, 0xffff0000, v%d', tmp, f)
    A('v_sub_f32 v%d, v%d, v%d', tmp, src, tmp)
    A('v_cvt_pk_bf16_f32 v%d, v%d, 0', f + 1, tmp)


def hilo_m(A, src, f, tmp):
    A('v_cvt_pk_bf16_f32 v%d, v%d, 0', f + 1, src)
    A('v_lshlrev_b32 v%d, 16, v%d', tmp, f + 1)
    A('v_sub_f32 v%d, v%d, v%d', tmp, src, tmp)
    A('v_cvt_pk_bf16_f32 v%d, v%d, v%d', f, src, tmp)


def ln_finish(A, t0, t1, negmean, rstd):
    A('v_mul_f32 v%d, 0x%x, v%d', t0, 0x3b124925, t0)
    A('v_mov_b32 v%d, v%d', t1, t0)
    A('v_permlane32_swap_b32 v%d, v%d', t0, t1)
    A('v_fma_f32 v%d, -v%d, v%d, v%d', t1, t0, t0, t1)
    A('v_max_f32 v%d, 0, v%d', t1, t1)
    A('v_add_f32 v%d, 0x%x, v%d', t1, 0x3727c5ac, t1)
    A('v_rsq_f32 v%d, v%d', rstd, t1)
    A('v_sub_f32 v%d, 0, v%d', negmean, t0)


def softmax_pm(A, p, sc, e, t):
    A('v_cndmask_b32 v%d, v%d, v%d, s[%d:%d]', p + 12, p + 12, p + 14, sHI, sHI + 1)
    A('v_cndmask_b32 v%d, v%d, v%d, s[%d:%d]', p + 13, p + 13, p + 15, sHI, sHI + 1)
    mx, mn = t, t + 1
    A('v_max3_f32 v%d, v%d, v%d, v%d', mx, p, p + 1, p + 2)
    A('v_min3_f32 v%d, v%d, v%d, v%d', mn, p, p + 1, p + 2)
    for i in range(3, 13, 2):
        A('v_max3_f32 v%d, v%d, v%d, v%d', mx, mx, p + i, p + i + 1)
        A('v_min3_f32 v%d, v%d, v%d, v%d', mn, mn, p + i, p + i + 1)
    A('v_max_f32 v%d, v%d, v%d', mx, mx, p + 13)
    A('v_min_f32 v%d, v%d, v%d', mn, mn, p + 13)
    A('v_sub_f32 v%d, 0, v%d', mn, mn)
    A('v_permlane32_swap_b32 v%d, v%d', mx, mn)
    A('v_max_f32 v%d, v%d, v%d', mx, mx, mn)
    A('v_mul_f32 v%d, v%d, v%d', mx, mx, sc)
    A('v_mov_b32 v%d, v%d', mn, mx)
    A('v_permlane32_swap_b32 v%d, v%d', mx, mn)
    for i in range(14):
        A('v_fma_f32 v%d, -v%d, v%d, -v%d', e + i, p + i, sc, mn)
        A('v_fma_f32 v%d, v%d, v%d, -v%d', p + i, p + i, sc, mx)
        if i:
            A('v_exp_f32 v%d, v%d', e + i - 1, e + i - 1)
            A('v_exp_f32 v%d, v%d', p + i - 1, p + i - 1)
    A('v_exp_f32 v%d, v%d', e + 13, e + 13)
    A('v_exp_f32 v%d, v%d', p + 13, p + 13)
    if PKSM:
        for base in (p, e):
            A('v_pk_add_f32 v[%d:%d], v[%d:%d], v[%d:%d]', base + 14, base + 15, base, base + 1, base + 2, base + 3)
        for i in range(4, 14, 2):
            for base in (p, e):
                A('v_pk_add_f32 v[%d:%d], v[%d:%d], v[%d:%d]', base + 14, base + 15, base + 14, base + 15, base + i,
                  base + i + 1)
    else:
        for base in (p, e):
            A('v_add_f32 v%d, v%d, v%d', base + 14, base, base + 2)
            A('v_add_f32 v%d, v%d, v%d', base + 15, base + 1, base + 3)
        for i in range(4, 14):
            for base in (p, e):
                A('v_add_f32 v%d, v%d, v%d', base + 14 + (i & 1), base + 14 + (i & 1), base + i)
    sp, sn = t + 2, t
    A('v_add_f32 v%d, v%d, v%d', sp, p + 14, p + 15)
    A('v_add_f32 v%d, v%d, v%d', sn, e + 14, e + 15)
    A('v_permlane32_swap_b32 v%d, v%d', sp, sn)
    A('v_add_f32 v%d, v%d, v%d', sp, sp, sn)
    A('v_rcp_f32 v%d, v%d', sp, sp)
    A('v_mov_b32 v%d, v%d', sn, sp)
    A('v_permlane32_swap_b32 v%d, v%d', sp, sn)
    for i in range(0, 14, 2):
        for base, r in ((p, sp), (e, sn)):
            if PKSM:
                A('v_pk_mul_f32 v[%d:%d], v[%d:%d], v[%d:%d] op_sel_hi:[1,0]', base + i, base + i + 1, base + i,
                  base + i + 1, r, r + 1)
            else:
                A('v_mul_f32 v%d, v%d, v%d', base + i, base + i, r)
                A('v_mul_f32 v%d, v%d, v%d', base + i + 1, base + i + 1, r)
    for i, (a0, a1) in enumerate(((0, 1), (2, 3), (4, 5), (6, None), (7, 8), (9, 10), (11, 12), (13, None))):
        for base in (p, e):
            A('v_cvt_pk_bf16_f32 v%d, v%d, %s', base + i, base + a0, '0' if a1 is None else 'v%d' % (base + a1))


PKSM = E('PKSM', 1)


def cvt8(A, dst, src, n=8):
    for i in range(n):
        A('v_cvt_pk_bf16_f32 v%d, v%d, v%d', dst + i, src + 2 * i, src + 2 * i + 1)


def mfma(A, d, a_, b_, first=False):
    A('%s %s, %s, %s, %s', MFMA, v(d, 16), v(a_, 4), v(b_, 4), '0' if first else v(d, 16))


def merge(main, blocks, start, stop):
    idx = [i for i, l in enumerate(main) if l.strip().startswith('v_mfma')][start:stop]
    out, k = [], 0
    n = len(idx)
    pos = {i: j for j, i in enumerate(idx)}
    for i, l in enumerate(main):
        out.append(l)
        if i in pos:
            upto = (len(blocks) * (pos[i] + 1) + n - 1) // n
            for b in blocks[k:upto]:
                out += b
            k = max(k, upto)
    assert k >= len(blocks)
    return out


def sub(A):
    return Asm()


L_H = (L_A, L_A + 28672, 0, 65536)
W2S = [32768, 40960] + [L_A + k * 8192 for k in range(7)] + [k * 8192 for k in range(4)] + [
    65536 + k * 8192 for k in range(4)]
W2GATE = {2: 9, 5: 10, 9: 11, 13: 12}


def w2_slot(n):
    return W2S[n % 17]


def w1_slot(c):
    return B16[c % 5]


class LdsQ:
    def __init__(self, A):
        self.A, self.q = A, []
        self.peeked = False

    def op(self, tag, fmt, *a):
        self.A(fmt, *a)
        self.q.append(tag)

    def need(self, tag):
        idx = [i for i, x in enumerate(self.q) if x == tag]
        if not idx:
            return None
        n = len(self.q) - 1 - idx[-1]
        self.q = self.q[idx[-1] + 1:]
        return min(n, 15)

    def wait(self, tag, vm=None):
        n = self.need(tag)
        if n is None and vm is None:
            return
        self.A('s_waitcnt' + ('' if vm is None else ' vmcnt(%d)' % vm) + ('' if n is None else ' lgkmcnt(%d)' % n))

    def stage(self, n):
        set_stage(self.A, n)
        self.q.append('st')

    def peek(self, w):
        self.op('pk', 'ds_read_b32 v%d, v%d offset:%d', vPK_, vMI, M_PW + 4 * w)
        self.peeked = True

    def take(self, w):
        if not self.peeked:
            return
        self.peeked = False
        self.wait('pk')
        self.A('v_readfirstlane_b32 s%d, v%d', CACHE[w], vPK_)


def tag_compute(A):
    A('s_waitcnt lgkmcnt(0)')
    A('s_mul_i32 s%d, s%d, 0x%x', sTAG, sTAG, 1664525)
    A('s_add_u32 s%d, s%d, 0x%x', sTAG, sTAG, 1013904223)
    A('v_mov_b32 v%d, s%d', vTAG, sTAG)


def fast_check(A):
    A('s_getreg_b32 s%d, hwreg(HW_REG_XCC_ID)', sC)
    A('s_and_b32 s%d, s%d, 15', sC, sC)
    A('s_add_u32 s%d, s%d, s%d', sC, sC, sTAG)
    A('s_lshl_b32 s%d, s%d, 7', sT, sXCD)
    A('s_add_u32 s%d, s%d, %d', sT, sT, FREG)
    A('v_and_b32 v%d, 31, v%d', vT1, vL)
    A('v_lshlrev_b32 v%d, 2, v%d', vT1, vT1)
    A('buffer_load_dword v%d, v%d, s[%d:%d], s%d offen sc1', vT0, vT1, SWS, SWS + 3, sT)
    A('s_waitcnt vmcnt(0)')
    A('v_cmp_ne_u32 vcc, s%d, v%d', sC, vT0)
    A('s_cmp_eq_u64 vcc, 0')
    A('s_cselect_b32 s%d, 1, 0', sFASTF)


class Stream:
    def __init__(self, A, wave, depth, first=0):
        self.A, self.wave, self.depth = A, wave, depth
        self.items = []
        self.issued = 0
        self.known = 0
        self.n = first

    def wait_to(self, left):
        if self.issued - left <= self.known:
            return
        self.A('s_waitcnt vmcnt(%d)', left)
        self.known = self.issued - left
        last = None
        while self.items and self.items[0][1] <= self.known:
            last = self.items.pop(0)[0]
        if last is not None:
            set_stage(self.A, last)

    def room(self, k):
        self.wait_to(max(self.depth - k, 0))
        self.issued += k

    def done(self, name, cnt=None):
        self.n += 1
        assert LP.setdefault(name, (self.wave, self.n)) == (self.wave, self.n), name
        self.items.append((self.n, self.issued))

    def drain(self):
        self.drain_to(0)

    def drain_to(self, keep):
        while len(self.items) > keep:
            self.wait_to(self.issued - self.items[0][1])

    def save(self):
        return (list(self.items), self.issued, self.known)

    def restore(self, s):
        self.items, self.issued, self.known = list(s[0]), s[1], s[2]

    def dma4(self, lds, voffs, srd_, step=None, bits=''):
        A = self.A
        A('s_mov_b32 m0, %d', lds)
        self.room(4)
        for u in range(4):
            A('buffer_load_dwordx4 v%d, s[%d:%d], s%d offen offset:%d%s lds', voffs[u], srd_, srd_ + 3, sT, u * 1024,
              bits)
        if step:
            A('s_add_u32 s%d, s%d, %d', sT, sT, step)


def spread4(A, base, step):
    for u in range(1, 4):
        A('v_add_u32 v%d, %d, v%d', base + u, u * (step - 1024), base)


def wtr_base(A):
    A('v_lshrrev_b32 v%d, 5, v%d', vT1, vL)
    A('v_bfe_u32 v%d, v%d, 2, 2', vT0, vL)
    A('v_lshl_add_u32 v%d, v%d, 3, v%d', vT0, vT1, vT0)
    A('v_lshlrev_b32 v%d, 6, v%d', vT0, vT0)
    A('v_bfe_u32 v%d, v%d, 4, 1', vTT, vL)
    A('v_lshl_add_u32 v%d, v%d, 5, v%d', vT0, vTT, vT0)
    A('v_and_b32 v%d, 3, v%d', vTT, vL)
    A('v_lshl_add_u32 v%d, v%d, 3, v%d', vT0, vTT, vT0)
    for pi in range(3):
        A('v_add_u32 v%d, %d, v%d', vWA + pi, L_WP[pi], vT0)
    A('v_lshlrev_b32 v%d, 3, v%d', vCA, vL)
    A('v_add_u32 v%d, %d, v%d', vCA, L_CF, vCA)


def sel_frags(A, vID):
    A('v_lshrrev_b32 v%d, 5, v%d', vT1, vL)
    A('v_and_b32 v%d, 31, v%d', vT0, vL)
    A('v_lshlrev_b32 v%d, 2, v%d', vTT, vT1)
    A('v_sub_u32 v%d, v%d, v%d', vT0, vT0, vTT)
    A('v_mov_b32 v%d, 0x3f80', vTT)
    A('v_mov_b32 v%d, 0x3f800000', vTT + 1)
    for sidx in range(2):
        for rr in range(4):
            m = 16 * sidx + 8 * (rr >> 1) + 2 * (rr & 1)
            A('v_cmp_eq_u32 vcc, %d, v%d', m, vT0)
            A('v_cndmask_b32 v%d, 0, v%d, vcc', vID + 4 * sidx + rr, vTT)
            A('v_cmp_eq_u32 vcc, %d, v%d', m + 1, vT0)
            A('v_cndmask_b32 v%d, v%d, v%d, vcc', vID + 4 * sidx + rr, vID + 4 * sidx + rr, vTT + 1)


def read_w(A, pi, i, buf, sleep=0):
    wait_lp(A, ('W', pi, i), sleep)
    for q in range(4):
        for z in range(2):
            A('ds_read_b64_tr_b16 v[%d:%d], v%d offset:%d', buf + 4 * q + 2 * z, buf + 4 * q + 2 * z + 1,
              vWA + pi, i * 4096 + q * 1024 + z * 256)


def colsum(A, spi):
    vCS, vB_, buf = 40, 44, 48
    A('v_mov_b32 v%d, 0', vCS)
    A('v_mov_b32 v%d, 0', vCS + 1)
    A('s_cmp_eq_u32 s%d, 1', spi)
    A('s_cselect_b32 s%d, 0, %d', sT, L_WP[2])
    A('s_cmp_eq_u32 s%d, 0', spi)
    A('s_cselect_b32 s%d, %d, s%d', sT, L_WP[0], sT)
    assert L_WP[1] == 0
    A('v_add_u32 v%d, s%d, v%d', vB_, sT, vWA + 1)
    A('s_mul_i32 s%d, s%d, 7', sC, spi)
    A('s_add_u32 s%d, s%d, 7', sT2, sC)
    top, lo, ok = A.label('CS'), A.label('W'), A.label('WD')
    A('%s:', top)
    A('s_cmp_gt_u32 s%d, s%d', sPROG, sC)
    A('s_cbranch_scc1 %s', ok)
    prio(A, 0)
    A('%s:', lo)
    A('ds_read_b32 v%d, v%d offset:%d', vPW, vMI, M_PW + 16)
    A('s_waitcnt lgkmcnt(0)')
    A('v_readfirstlane_b32 s%d, v%d', sPROG, vPW)
    spin_guard(A, ok)
    A('s_cmp_gt_u32 s%d, s%d', sPROG, sC)
    A('s_cbranch_scc0 %s', lo)
    prio(A, 1)
    A('%s:', ok)
    for q in range(4):
        for z in range(2):
            A('ds_read_b64_tr_b16 v[%d:%d], v%d offset:%d', buf + 4 * q + 2 * z, buf + 4 * q + 2 * z + 1, vB_,
              q * 1024 + z * 256)
    A('v_add_u32 v%d, 4096, v%d', vB_, vB_)
    A('s_add_u32 s%d, s%d, 1', sC, sC)
    for q in range(4):
        A('s_waitcnt lgkmcnt(%d)', 6 - 2 * q)
        for r in range(4):
            A('v_dot2c_f32_bf16 v%d, s%d, v%d', vCS + (r & 1), sONES, buf + 4 * q + r)
    A('s_cmp_lt_u32 s%d, s%d', sC, sT2)
    A('s_cbranch_scc1 %s', top)
    A('v_add_f32 v%d, v%d, v%d', vCS, vCS, vCS + 1)
    hilo_c(A, vCS, vCS + 2, vT0)
    A('s_lshl_b32 s%d, s%d, 9', sT, spi)
    A('v_add_u32 v%d, s%d, v%d', vB_, sT, vCA)
    A('ds_write_b64 v%d, v[%d:%d]', vB_, vCS + 2, vCS + 3)


def rest_srds(A):
    A('s_add_u32 s82, s80, %d', FEP)
    A('s_addc_u32 s83, s81, 0')
    A('s_load_dword s%d, s[82:83], 0', sTAG)
    srd(A, SP, 68, H * DH * DH * 2)
    srd(A, SWO, 70, D * D * 2)
    srd(A, SW1, 74, D * F * 2)
    srd(A, SW2, 76, D * F * 2)
    srd(A, SOUT, 78, S * D * 2)
    srd(A, SWS, 80, WS_SIZE)


def rot_next(A):
    A('s_add_u32 s%d, s%d, 1', sC, sC)
    A('s_cmp_eq_u32 s%d, 7', sC)
    A('s_cselect_b32 s%d, 0, s%d', sC, sC)


def sig_dyn(A, sval):
    A('v_mov_b32 v%d, s%d', vT0, sval)
    A('ds_write_b32 v%d, v%d', vMY, vT0)


def early_offsets(A):
    A('v_lshrrev_b32 v%d, 3, v%d', vT0, vL)
    A('v_mul_u32_u24 v%d, 896, v%d', vT0, vT0)
    A('v_lshrrev_b32 v%d, 4, v%d', vT1, vL)
    A('v_and_b32 v%d, 7, v%d', vXD, vL)
    A('v_xor_b32 v%d, v%d, v%d', vXD, vXD, vT1)
    A('v_xor_b32 v%d, 4, v%d', vXD + 1, vXD)
    A('v_lshl_add_u32 v%d, v%d, 4, v%d', vXD, vXD, vT0)
    A('v_lshl_add_u32 v%d, v%d, 4, v%d', vXD + 1, vXD + 1, vT0)
    A('v_add_u32 v%d, %d, v%d', vXD + 1, 8 * 896 - 1024, vXD + 1)
    A('v_add_u32 v%d, %d, v%d', vXD + 2, 2 * (8 * 896 - 1024), vXD)
    A('v_add_u32 v%d, %d, v%d', vXD + 3, 2 * (8 * 896 - 1024), vXD + 1)
    vW = 40
    A('v_lshrrev_b32 v%d, 2, v%d', vW, vL)
    A('v_mul_u32_u24 v%d, 2688, v%d', vW, vW)
    A('v_and_b32 v%d, 3, v%d', vT1, vL)
    A('v_lshl_add_u32 v%d, v%d, 4, v%d', vW, vT1, vW)
    A('s_mul_i32 s%d, s%d, 56', sT, sH)
    A('s_and_b32 s%d, s%d, 0xfffffff0', sT, sT)
    A('v_add_u32 v%d, s%d, v%d', vW, sT, vW)
    spread4(A, vW, 16 * 2688)
    A('s_mul_i32 s%d, s%d, %d', sXB, sTB, 128 * 896)
    A('s_mov_b32 s%d, s%d', sC, sC0)


def early_x(A):
    depth = E('XDEPTH', 16)
    wsig = ((depth - 4) // 4) % 4
    lag = (depth - 4 - 4 * wsig) // 16
    A('s_mov_b32 s%d, %d', sG, -lag)
    A('s_mov_b32 m0, %d', L_X)
    top = A.label('XL')
    A('%s:', top)
    A('s_lshl_b32 s%d, s%d, 7', sT, sC)
    A('s_add_u32 s%d, s%d, s%d', sT, sT, sXB)
    for w in range(4):
        A('s_waitcnt vmcnt(%d)', depth - 4)
        if w == wsig:
            A('s_max_i32 s%d, s%d, 0', sT2, sG)
            sig_dyn(A, sT2)
        for u in range(4):
            A('buffer_load_dwordx4 v%d, s[%d:%d], s%d offen offset:%d lds', vXD + u, SX, SX + 3, sT, u * 1024)
        A('s_add_u32 m0, m0, 4096')
        if w < 3:
            A('s_add_u32 s%d, s%d, %d', sT, sT, 32 * 896)
    rot_next(A)
    A('s_add_u32 s%d, s%d, 1', sG, sG)
    A('s_cmp_lt_i32 s%d, %d', sG, 7 - lag)
    A('s_cbranch_scc1 %s', top)
    stamp(A)
    for n in range(7 - lag, 8):
        A('s_waitcnt vmcnt(%d)', 16 * (7 - n))
        set_stage(A, n)


def early_w(A):
    vW = 40

    def part_loop(pi, depth, floor):
        lag = (depth - 4) // 4
        stamp(A)
        A('s_mov_b32 s%d, s%d', sC, sC0)
        A('s_mov_b32 s%d, %d', sG, 7 * pi - lag)
        A('s_mov_b32 m0, %d', L_WP[pi])
        top = A.label('WL')
        A('%s:', top)
        A('s_mul_i32 s%d, s%d, %d', sT, sC, 64 * 2688)
        A('s_add_u32 s%d, s%d, %d', sT, sT, (1, 2, 0)[pi] * 896)
        A('s_max_i32 s%d, s%d, %d', sT2, sG, floor)
        A('s_waitcnt vmcnt(%d)', depth - 4)
        sig_dyn(A, sT2)
        for u in range(4):
            A('buffer_load_dwordx4 v%d, s[%d:%d], s%d offen offset:%d lds', vW + u, SW, SW + 3, sT, u * 1024)
        A('s_add_u32 m0, m0, 4096')
        rot_next(A)
        A('s_add_u32 s%d, s%d, 1', sG, sG)
        A('s_cmp_lt_i32 s%d, %d', sG, 7 * pi + 7 - lag)
        A('s_cbranch_scc1 %s', top)
        return lag
    lag = part_loop(0, E('WDEPTH', 8), 0)
    for n in range(7 - lag, 8):
        A('s_waitcnt vmcnt(%d)', 4 * (7 - n))
        set_stage(A, n)
    wait_stage(A, 1)
    if E('XG2', 4) >= 0:
        wait_lp(A, ('x', E('XG2', 4)))
    part_loop(1, E('WDEPTH2', 24), 7)
    wait_stage(A, 2)
    part_loop(2, E('WDEPTH2', 24), 7)


def gen_h0(A):
    St = Stream(A, 4, E('WDEPTH2', 24), 21)
    St.issued = 84
    St.known = 84 - St.depth
    St.items = [(n + 1, 4 * n + 4) for n in range(21) if 4 * n + 4 > St.known]
    vW, vW128, vXo, vW256 = 40, 44, 48, 52
    q4 = lambda b: [b, b + 1, b + 2, b + 3]
    rest_srds(A)
    lend = A.label('LEND')
    act = A.label('ACT')
    A('s_cmp_lt_u32 s%d, 28', sI)
    A('s_cbranch_scc1 %s', act)
    keep = St.save()
    St.drain()
    St.restore(keep)
    if E('TOUCH', 1):
        def touch(srd_, base, per_xcd, n):
            A('s_mul_i32 s%d, s%d, %d', sT, sXCD, per_xcd)
            A('s_sub_u32 s%d, s%d, 28', sT2, sI)
            A('s_mul_i32 s%d, s%d, %d', sT2, sT2, n * 8192)
            A('s_add_u32 s%d, s%d, s%d', sT, sT, sT2)
            A('s_add_u32 s%d, s%d, %d', sT, sT, base)
            A('s_mov_b32 s%d, %d', sC, n)
            lo = A.label('T')
            A('%s:', lo)
            A('buffer_load_dword v%d, v%d, s[%d:%d], s%d offen', vW + 1, vW, srd_, srd_ + 3, sT)
            A('s_add_u32 s%d, s%d, 8192', sT, sT)
            A('s_waitcnt vmcnt(%d)', E('TDEPTH', 6))
            A('s_sub_u32 s%d, s%d, 1', sC, sC)
            A('s_cmp_lg_u32 s%d, 0', sC)
            A('s_cbranch_scc1 %s', lo)
        A('v_lshlrev_b32 v%d, 7, v%d', vW, vL)
        wait_stage(A, C0 + 5, sleep=2)
        if not WT1:
            touch(SWS, WS_H1B, 8 * 112 * 1024, 28)
        touch(SW2, 0, 0, 49)
    A('s_branch %s', lend)
    A('%s:', act)
    A('v_lshrrev_b32 v%d, 3, v%d', vW128, vL)
    A('v_mul_u32_u24 v%d, 896, v%d', vW128, vW128)
    A('v_and_b32 v%d, 7, v%d', vT1, vL)
    A('v_lshl_add_u32 v%d, v%d, 4, v%d', vXo, vT1, vW128)
    A('v_lshrrev_b32 v%d, 2, v%d', vT0, vL)
    A('v_and_b32 v%d, 4, v%d', vT0, vT0)
    A('v_xor_b32 v%d, v%d, v%d', vT1, vT1, vT0)
    A('v_lshl_add_u32 v%d, v%d, 4, v%d', vW128, vT1, vW128)
    A('v_lshrrev_b32 v%d, 4, v%d', vW256, vL)
    A('v_mul_u32_u24 v%d, 3584, v%d', vW256, vW256)
    A('v_and_b32 v%d, 15, v%d', vT1, vL)
    A('v_lshrrev_b32 v%d, 2, v%d', vT0, vL)
    A('v_and_b32 v%d, 12, v%d', vT0, vT0)
    A('v_xor_b32 v%d, v%d, v%d', vT1, vT1, vT0)
    A('v_lshl_add_u32 v%d, v%d, 4, v%d', vW256, vT1, vW256)
    spread4(A, vW128, 8 * 896)
    spread4(A, vXo, 8 * 896)
    spread4(A, vW256, 4 * 3584)
    A('s_lshl_b32 s%d, s%d, 7', sB, sNB)

    def w1_chunk(c):
        A('s_lshl_b32 s%d, s%d, 8', sT, sFB)
        A('s_add_u32 s%d, s%d, %d', sT, sT, c * 64 * 3584)
        for u in range(4):
            St.dma4(w1_slot(c) + u * 4096, q4(vW256), SW1, 16 * 3584 if u < 3 else None)
        St.done(('w1', c), 16)

    def w2_item(n):
        c, kh = n >> 1, n & 1
        A('s_add_u32 s%d, s%d, %d', sT, sB, (kh * 896 + c * 64) * 896)
        for u in range(2):
            St.dma4(w2_slot(n) + u * 4096, q4(vW128), SW2, 32 * 896 if u < 1 else None)
        St.done(('w2', n), 8)

    St.drain_to(3)
    wait_stage(A, 3)
    wait_word(A, 5, 1)
    stamp(A)
    A('s_mov_b32 s%d, s%d', sB + 0, sB)
    A('s_mov_b32 s%d, s%d', sT, sB)
    for c in range(7):
        for u in range(2):
            St.dma4(L_A + c * 8192 + u * 4096, q4(vW128), SWO, 32 * 896)
        if c == 2:
            St.depth = E('LDEPTH', 32)
    St.done('wo')
    wait_stage(A, 2, (5, 6))
    stamp(A)
    for c in range(4):
        w1_chunk(c)
    St.drain()
    stamp(A)
    wait_stage(A, C0 + 4)
    wait_word(A, 7, 8)
    if E('GPAUSE', 1):
        wait_stage(A, 3, (5, 6))
    stamp(A)
    A('s_mul_i32 s%d, s%d, %d', sT, sTQ, 64 * 896)
    A('s_add_u32 s%d, s%d, s%d', sT, sT, sB)
    for u in range(2):
        St.dma4(L_XRES + u * 4096, q4(vXo), SX, 32 * 896)
    St.done('xres')
    for c in (4, 5, 6):
        w1_chunk(c)
    St.drain()
    stamp(A)
    wait_stage(A, C0 + 8, sleep=1)
    wait_lp(A, ('h', E('W2AFTER', 3), E('W2AFTERQ', 0)), 1)
    stamp(A)
    St.depth = E('W2DEPTH', 32)
    for n in range(17):
        if n in W2GATE:
            wait_stage(A, C0 + W2GATE[n])
            if n == 13:
                stamp(A)
        w2_item(n)
    stamp(A)
    St.depth = E('W2DEPTH3', 32)
    for n in range(17, 28):
        m = n - 17
        wait_stage(A, C0 + 13 + (m >> 1), (0, 1) if (m & 1) == 0 else (2, 3))
        w2_item(n)
    St.drain()
    A('%s:', lend)
    A('s_waitcnt lgkmcnt(0)')
    stamp_flush(A)
    A('s_endpgm')


def gen_h1(A):
    stamp(A)
    rest_srds(A)
    wtr_base(A)
    tag_compute(A)
    def extras():
        if WARM:
            for srd_, size in ((SWO, D * D * 2), (SW1, D * F * 2), (SW2, D * F * 2)):
                A('s_mul_i32 s%d, s2, %d', sT, size // 256)
                A('v_lshlrev_b32 v%d, 7, v%d', vT1, vL)
                A('s_mov_b64 exec, 0x%x', (1 << ((size // 256 + 127) // 128)) - 1) if size // 256 < 4096 else None
                if size // 256 >= 4096:
                    A('s_mov_b32 exec_hi, 0x%x', (1 << ((size // 256 + 127) // 128 - 32)) - 1)
                A('buffer_load_dword v64, v%d, s[%d:%d], s%d offen', vT1, srd_, srd_ + 3, sT)
                A('s_mov_b64 exec, -1')
        if E('TOUCH', 1) and not WTO:
            A('s_lshl_b32 s%d, s%d, 18', sT, sXCD)
            A('s_lshl_b32 s%d, s%d, 13', sT2, sI)
            A('s_add_u32 s%d, s%d, s%d', sT, sT, sT2)
            A('v_lshlrev_b32 v%d, 7, v%d', vT1, vL)
            for base in ((WS_OB, WS_HB) if MAP == 0 else (WS_HB,)):
                A('s_add_u32 s%d, s%d, %d', sT2, sT, base)
                A('buffer_load_dword v64, v%d, s[%d:%d], s%d offen', vT1, SWS, SWS + 3, sT2)

    if TOUCHAT == 1:
        wait_lp(A, ('W', 1, 6), 1)
    if TOUCHAT <= 1:
        extras()
    if FAST:
        fast_check(A)
        A('v_mov_b32 v%d, s%d', vT0, sFASTF)
        A('ds_write_b32 v%d, v%d offset:%d', vMI, vT0, M_FAST)
    A('s_mov_b32 s%d, 2', sG)
    colsum(A, sG)
    set_stage(A, 8)
    if TOUCHAT == 2:
        extras()
    stamp(A)
    lend = A.label('LEND')
    A('s_cmp_ge_u32 s%d, 28', sI)
    A('s_cbranch_scc1 %s', lend)
    St = Stream(A, 7, E('HDEPTH', 24), 8)
    for gi in range(4):
        A('s_lshl_b32 s%d, s%d, 2', sT2, sTB3)
        A('s_add_u32 s%d, s%d, %d', sT2, sT2, gi)
        A('s_lshl_b32 s%d, s%d, 15', sB, sT2)
        A('s_add_u32 s%d, s%d, %d', sB, sB, WS_HB + 4096)
        if gi == 0:
            wait_stage(A, C0 + 7, sleep=1)
            stamp(A)
        if gi == 2:
            St.drain()
        if gi % 2 == 0:
            A('s_lshl_b32 s%d, s%d, 6', sT2, sT2)
            A('s_add_u32 s%d, s%d, %d', sT2, sT2, F3)
            lo, done = A.label('P'), A.label('PD')
            A('v_lshlrev_b32 v%d, 2, v%d', vT1, vL)
            A('s_mov_b64 exec, 0x3fff3fff')
            A('%s:', lo)
            A('buffer_load_dword v%d, v%d, s[%d:%d], s%d offen sc1', vT0, vT1, SWS, SWS + 3, sT2)
            A('s_waitcnt vmcnt(0)')
            A('v_cmp_ne_u32 vcc, s%d, v%d', sTAG, vT0)
            spin_guard(A, done)
            A('s_cbranch_vccnz %s', lo)
            A('%s:', done)
            A('s_mov_b64 exec, -1')
            St.n += 1
            assert LP[('hf', gi)] == (7, St.n)
            set_stage(A, St.n)
            stamp(A)
        if gi == 2:
            wait_stage(A, C0 + 8)
            stamp(A)
        A('s_mov_b32 s%d, s%d', sT, sB)
        for u in range(7):
            St.dma4(L_H[gi] + u * 4096, [vO] * 4, SWS, 4096, ' sc1')
            if u % 2 == 0:
                St.done(('h', gi, u // 2))
    St.drain()
    A('%s:', lend)
    A('s_waitcnt lgkmcnt(0)')
    stamp_flush(A)
    A('s_endpgm')


def gen_h23(A):
    vID, vAF, vVF, vAC, vG = 64, 72, 104, 136, 72
    rest_srds(A)
    sTL = sKH
    A('s_sub_u32 s%d, s%d, 5', sTL, sWV)
    skip = A.label('NOST')
    A('s_cmp_eq_u32 s%d, 1', sTL)
    A('s_cbranch_scc1 %s', skip)
    A('s_mul_i32 s%d, s%d, 1568', sT, sH)
    A('s_mov_b32 m0, %d', L_PHI)
    A('buffer_load_dwordx4 v%d, s[%d:%d], s%d offen lds', vO, SP, SP + 3, sT)
    A('buffer_load_dwordx4 v%d, s[%d:%d], s%d offen offset:1024 lds', vO, SP, SP + 3, sT)
    if CODEPF:
        A('s_mul_i32 s%d, s%d, %d', sT, sI, 1280)
        A('v_lshlrev_b32 v%d, 7, v%d', vT1, vL)
        A('v_add_u32 v%d, s%d, v%d', vT1, sT, vT1)
        A('s_mov_b64 exec, 0x3ff')
        A('global_load_dword v72, v%d, s[%d:%d]', vT1, sPC, sPC + 1)
        A('s_mov_b64 exec, -1')
    A('%s:', skip)
    wtr_base(A)
    sel_frags(A, vID)
    tag_compute(A)
    if FAST:
        skip = A.label('NORG')
        A('s_cmp_eq_u32 s%d, 0', sTL)
        A('s_cbranch_scc1 %s', skip)
        A('s_getreg_b32 s%d, hwreg(HW_REG_XCC_ID)', sT2)
        A('s_and_b32 s%d, s%d, 15', sT2, sT2)
        A('s_add_u32 s%d, s%d, s%d', sT2, sT2, sTAG)
        A('v_mov_b32 v%d, s%d', vT0, sT2)
        A('s_lshl_b32 s%d, s%d, 7', sT, sXCD)
        A('s_lshl_b32 s%d, s%d, 2', sT2, sI)
        A('s_add_u32 s%d, s%d, s%d', sT, sT, sT2)
        A('s_add_u32 s%d, s%d, %d', sT, sT, FREG)
        A('s_mov_b64 exec, 1')
        A('buffer_store_dword v%d, v%d, s[%d:%d], s%d offen sc1', vT0, vO, SWS, SWS + 3, sT)
        A('s_mov_b64 exec, -1')
        A('%s:', skip)
    if MAP == 3:
        A('s_lshl_b32 s%d, s%d, 4', sT, sH)
        A('s_add_u32 s%d, s%d, s%d', sT, sT, sTB)
        A('s_lshl_b32 s%d, s%d, 12', sT, sT)
        A('s_lshl_b32 s%d, s%d, 11', sT2, sTL)
        A('s_add_u32 s%d, s%d, s%d', sT, sT, sT2)
        A('v_lshlrev_b32 v%d, 7, v%d', vT1, vL)
        A('s_mov_b64 exec, 0xffff')
        A('buffer_load_dword v73, v%d, s[%d:%d], s%d offen', vT1, SWS, SWS + 3, sT)
        A('s_mov_b64 exec, -1')
    colsum(A, sTL)
    A('s_waitcnt vmcnt(0)')
    set_stage(A, 1)
    stamp(A)
    A('s_lshl_b32 s%d, s%d, 11', sT2, sTL)
    A('v_add_u32 v%d, s%d, v%d', vTT, sT2, vO)
    A('v_add_u32 v%d, %d, v%d', vTT + 1, L_KVA, vTT)
    A('v_add_u32 v%d, %d, v%d', vTT + 2, L_KVV, vO)
    A('s_lshl_b32 s%d, s%d, 16', sXB, sH)
    A('s_add_u32 s%d, s%d, s%d', sXB, sXB, sT2)
    A('s_add_u32 s%d, s%d, %d', sXB, sXB, WS_KVP)
    A('s_lshl_b32 s%d, s%d, 12', sB, sTB)
    A('s_add_u32 s%d, s%d, s%d', sB, sB, sXB)
    A('s_lshl_b32 s%d, s%d, 1', sM0, sH)
    A('s_add_u32 s%d, s%d, s%d', sM0, sM0, sTL)
    A('s_lshl_b32 s%d, s%d, 6', sM0, sM0)
    A('s_add_u32 s%d, s%d, %d', sM0, sM0, F1)
    A('s_lshl_b32 s%d, s%d, 2', sFL, sTB)
    A('s_add_u32 s%d, s%d, s%d', sFL, sFL, sM0)
    if MAP == 3 and FAST:
        wait_lp(A, ('W', 1, 3), 2)
        fast_check(A)

    def kv_reads():
        for w in range(3):
            for q in range(2):
                A('ds_read_b128 %s, v%d offset:%d', v(vAF + 8 * w + 4 * q, 4), vTT + 1, w * 4096 + q * 1024)
                A('ds_read_b128 %s, v%d offset:%d', v(vVF + 8 * w + 4 * q, 4), vTT + 2, w * 4096 + q * 1024)
        return 12
    wait_lp(A, ('W', 1, 6), 2)
    wait_stage(A, C0 + 1)
    stamp(A)
    kv_reads()
    for q in range(2):
        A('ds_read_b128 %s, v%d offset:%d', v(vAF + 24 + 4 * q, 4), vTT + 1, 3 * 4096 + q * 1024)
        A('ds_read_b128 %s, v%d offset:%d', v(vVF + 24 + 4 * q, 4), vTT + 2, 3 * 4096 + q * 1024)
    for k in range(8):
        A('s_waitcnt lgkmcnt(%d)', 14 - 2 * k)
        mfma(A, vAC, vAF + 4 * k, vVF + 4 * k, k == 0)
    set_stage(A, 2)
    cvt8(A, vAF, vAC)
    pub_stores(A, [st4(vAF + 4 * q, sB, q * 1024) for q in range(2)], MAP == 3)
    pub_flag(A, sFL, MAP == 3)
    stamp(A)
    if MAP == 0 and E('SPOLL', 1):
        poll_scalar(A, sM0, 16)
    else:
        poll_global(A, sM0, 16)
    stamp(A)
    vG = [72 + 4 * k for k in range(16)] + [152 + 4 * k for k in range(16)]
    for p in range(16):
        for q in range(2):
            A('buffer_load_dwordx4 %s, v%d, s[%d:%d], s%d offen offset:%d sc1', v(vG[2 * p + q], 4), vO, SWS, SWS + 3,
              sXB, q * 1024)
        A('s_add_u32 s%d, s%d, 4096', sXB, sXB)
    for k in range(32):
        A('s_waitcnt vmcnt(%d)', 31 - k)
        mfma(A, vAC, vID + 4 * (k & 1), vG[k], k == 0)
    A('v_add_u32 v%d, %d, v%d', vTT, L_EX, vTT)
    cvt8(A, 72, vAC)
    for q in range(2):
        A('ds_write_b128 v%d, %s offset:%d', vTT, v(72 + 4 * q, 4), q * 1024)
    set_stage(A, 3)
    stamp(A)
    lend = A.label('LEND')
    A('s_cmp_ge_u32 s%d, 28', sI)
    A('s_cbranch_scc1 %s', lend)
    A('s_cmp_eq_u32 s%d, 0', sTL)
    A('s_cbranch_scc1 %s', lend)
    A('v_lshlrev_b32 v%d, 2, v%d', vXA, vL)
    A('v_add_u32 v%d, %d, v%d', vTT + 2, L_EX, vO)
    A('s_lshl_b32 s%d, s%d, 17', sB, sTB3)
    A('s_add_u32 s%d, s%d, %d', sB, sB, WS_HB)
    for gi in range(4):
        if gi % 2 == 0:
            wait_lp(A, ('hf', gi), 1)
        for q in range(14):
            A('buffer_load_dword v%d, v%d, s[%d:%d], s%d offen offset:%d sc1', 72 + q, vXA, SWS, SWS + 3, sB, q * 256)
        A('s_add_u32 s%d, s%d, 32768', sB, sB)
        A('s_waitcnt vmcnt(0)')
        for q in range(1, 7):
            A('v_pk_add_f32 v[72:73], v[72:73], v[%d:%d]', 72 + 2 * q, 73 + 2 * q)
        A('v_add_f32 v%d, v72, v73', vTT)
        ln_finish(A, vTT, vTT + 1, vNM, vRS)
        hilo_m(A, vNM, 88, vT0)
        A('v_mul_f32 v90, v%d, v%d', vTT + 1, vRS)
        A('v_mul_f32 v91, 0x%x, v%d', LOG2E ^ 0x80000000, vRS)
        A('ds_write_b128 v%d, v[88:91] offset:%d', vTT + 2, gi * 1024)
        set_stage(A, 4 + gi)
    A('%s:', lend)
    A('s_waitcnt lgkmcnt(0)')
    stamp_flush(A)
    A('s_endpgm')


def gen_compute(A):
    vPH, vID, vWF, vAC, vPK = 40, 48, 56, 88, 120
    vMF, vCF = 136, 140
    vE = vWF
    vAC2 = vAC + 16
    vX = vXR
    A('s_setprio %d', E('CPRIO', 1))
    rest_srds(A)
    A('s_lshl_b32 s%d, s%d, 12', sM0, sWV)
    A('v_and_b32 v%d, 31, v%d', vT0, vL)
    A('v_lshlrev_b32 v%d, 7, v%d', vTT, vT0)
    A('v_add_u32 v%d, s%d, v%d', vTT, sM0, vTT)
    A('v_bfe_u32 v%d, v%d, 1, 3', vT0, vL)
    A('v_lshrrev_b32 v%d, 5, v%d', vT1, vL)
    A('v_xor_b32 v%d, v%d, v%d', vT0, vT0, vT1)
    for q in range(4):
        A('v_xor_b32 v%d, %d, v%d', vXA + q, 2 * q, vT0)
        A('v_lshl_add_u32 v%d, v%d, 4, v%d', vXA + q, vXA + q, vTT)
    wtr_base(A)
    for r in (vSM, vSM + 1, vSQ, vSQ + 1, vMF + 2, vMF + 3, vCF + 2, vCF + 3):
        A('v_mov_b32 v%d, 0', r)
    A('s_mov_b32 s%d, 0', sHI)
    A('s_mov_b32 s%d, -1', sHI + 1)
    A('s_bitcmp1_b32 s%d, 0', sH)
    A('s_cselect_b32 s%d, 0xf, 0xf0000000', sPADL)
    A('s_mov_b32 s%d, s%d', sPADL + 1, sPADL)
    A('s_cselect_b32 s%d, -1, 0', sZA)
    A('s_mov_b32 s%d, 0', sZA + 1)
    A('s_mov_b32 s%d, 0', sZB)
    A('s_cselect_b32 s%d, 0, -1', sZB + 1)
    A('s_cselect_b64 s[%d:%d], -1, 0', sODD, sODD + 1)
    sel_frags(A, vID)
    vPA = vRA
    A('v_bfe_u32 v%d, v%d, 2, 2', vT0, vL)
    A('v_lshrrev_b32 v%d, 5, v%d', vT1, vL)
    A('v_lshl_add_u32 v%d, v%d, 2, v%d', vT0, vT1, vT0)
    A('v_mul_u32_u24 v%d, 56, v%d', vT0, vT0)
    A('v_and_b32 v%d, 3, v%d', vT1, vL)
    A('v_bfe_u32 v%d, v%d, 4, 1', vTT, vL)
    A('v_lshl_add_u32 v%d, v%d, 2, v%d', vT1, vTT, vT1)
    A('v_min_u32 v%d, 6, v%d', vT1, vT1)
    A('v_lshl_add_u32 v%d, v%d, 3, v%d', vT0, vT1, vT0)
    A('s_and_b32 s%d, s%d, 1', sT, sH)
    A('s_mul_i32 s%d, s%d, 224', sT, sT)
    A('s_sub_u32 s%d, %d, s%d', sT, L_PHI, sT)
    A('v_add_u32 v%d, s%d, v%d', vPA, sT, vT0)
    tag_compute(A)

    def mm1(B, acc, i, q, swap):
        buf = vWF + 16 * (i & 1)
        xf, wf = vX + (4 * i + q) * 4, buf + 4 * q
        if swap:
            mfma(B, acc, xf, wf, i == 0 and q == 0)
        else:
            mfma(B, acc, wf, xf, i == 0 and q == 0)

    def rw2(Q, pi, i, q):
        buf = vWF + 16 * (i & 1)
        for z in range(2):
            Q.op(('w', i, q), 'ds_read_b64_tr_b16 v[%d:%d], v%d offset:%d', buf + 4 * q + 2 * z, buf + 4 * q + 2 * z + 1,
                 vWA + pi, i * 4096 + q * 1024 + z * 256)

    vXH = vXD
    for q in range(4):
        A('v_add_u32 v%d, 0x10000, v%d', vXH + q, vXA + q)
    Q = LdsQ(A)
    for i in range(7):
        if i:
            stamp(A, 'k')
        wait_lp(A, ('x', i))
        stamp(A, 'k')
        for q in range(4):
            Q.op(('x', i), 'ds_read_b128 %s, v%d offset:%d', v(vX + (4 * i + q) * 4, 4), (vXA if i < 4 else vXH) + q,
                 (i & 3) * 16384)
        if i in (1, 3):
            Q.stage((i + 1) // 2)
        wait_lp(A, ('W', 0, i))
        for q in range(4):
            if i > 0:
                Q.wait(('w', i - 1, q))
                mm1(A, vAC, i - 1, q, False)
            rw2(Q, 0, i, q)
        if i < 6:
            Q.op('pk2', 'ds_read_b128 v[%d:%d], v%d offset:%d', vTT, vTT + 3, vMI, M_PW + 16)
        Q.wait(('x', i))
        for r in range(16):
            x = vX + 16 * i + r
            A('v_dot2c_f32_bf16 v%d, s%d, v%d', vSM + (r & 1), sONES, x)
            A('v_dot2c_f32_bf16 v%d, v%d, v%d', vSQ + (r & 1), x, x)
        if i < 6:
            Q.wait('pk2')
            A('v_readfirstlane_b32 s%d, v%d', sPROG, vTT)
            A('v_readfirstlane_b32 s%d, v%d', sPROG1, vTT + 3)
    Q.stage(3)
    B = sub(A)
    B('v_add_f32 v%d, v%d, v%d', vSM, vSM, vSM + 1)
    B('v_add_f32 v%d, v%d, v%d', vSQ, vSQ, vSQ + 1)
    B('v_permlane32_swap_b32 v%d, v%d', vSM, vSQ)
    B('v_add_f32 v%d, v%d, v%d', vT0, vSM, vSQ)
    ln_finish(B, vT0, vT1, vNM, vRS)
    hilo_m(B, vNM, vMF, vT0)
    B('v_mul_f32 v%d, 0x%x, v%d', vSC, LOG2E, vRS)
    M = sub(A)
    Q.A = M
    for q in range(4):
        Q.wait(('w', 6, q))
        mm1(M, vAC, 6, q, False)
    A.lines += merge(M.lines, [[l] for l in B.lines], 0, 4)

    def cf_phi_reads():
        A('ds_read_b64 v[%d:%d], v%d', vCF, vCF + 1, vCA)
        for sidx in range(2):
            for z in range(2):
                A('ds_read_b64_tr_b16 v[%d:%d], v%d offset:%d', vPH + 4 * sidx + 2 * z, vPH + 4 * sidx + 2 * z + 1,
                  vPA, (16 * sidx + 8 * z) * 56)
        return 5
    wait_word(A, 5, 1, body=cf_phi_reads)
    stamp(A)
    A('s_waitcnt lgkmcnt(4)')

    def project(mid=None):
        mfma(A, vAC, vCF, vMF)
        if mid:
            mid()
        cvt8(A, vPK, vAC)
        mfma(A, vAC, vPH, vPK, True)
        mfma(A, vAC, vPH + 4, vPK + 4)

    def mid_k():
        A('v_and_b32 v%d, 31, v%d', vT0, vL)
        A('s_lshl_b32 s%d, s%d, 7', sT, sWV)
        A('s_add_u32 s%d, s%d, %d', sT, sT, L_RSTD)
        A('v_lshl_add_u32 v%d, v%d, 2, s%d', vT0, vT0, sT)
        A('s_waitcnt lgkmcnt(0)')
        A('ds_write_b32 v%d, v%d', vT0, vRS)
        A('v_lshrrev_b32 v%d, 5, v%d', vRA, vL)
        A('v_lshl_add_u32 v%d, v%d, 4, s%d', vRA, vRA, sT)
        for r in (0, 1):
            A('v_cndmask_b32 v%d, v%d, 0, s[%d:%d]', vPH + r, vPH + r, sZA, sZA + 1)
            A('v_cndmask_b32 v%d, v%d, 0, s[%d:%d]', vPH + 6 + r, vPH + 6 + r, sZB, sZB + 1)

    def gemm_part(B, acc, pi, swap, last_stage=None):
        Q = LdsQ(B)
        wait_lp(B, ('W', pi, 0))
        for q in range(4):
            rw2(Q, pi, 0, q)
        for i in range(7):
            if i == 6 and last_stage:
                Q.stage(last_stage)
            for q in range(4):
                Q.wait(('w', i, q))
                if q == 0:
                    Q.take(4)
                mm1(B, acc, i, q, swap)
                if i < 6:
                    if q == 0:
                        wait_lp(B, ('W', pi, i + 1))
                        if i < 5:
                            Q.peek(4)
                    rw2(Q, pi, i + 1, q)

    vOW = vXD
    A('v_add_u32 v%d, s%d, v%d', vOW, sM0, vO)
    A('v_add_u32 v%d, %d, v%d', vOW, L_KVA, vOW)
    project(mid_k)
    M, B = sub(A), sub(A)
    gemm_part(M, vAC2, 1, True)
    softmax_pm(B, vAC, vSC, vPK, vTT)
    if E('VOVL', 1):
        A.lines += merge(M.lines, [[l] for l in B.lines], 0, 28)
    else:
        A.lines += B.lines + M.lines

    def cfv_reads():
        A('ds_read_b64 v[%d:%d], v%d offset:%d', vCF, vCF + 1, vCA, 512)
        for q in range(4):
            A('ds_read_b128 %s, v%d offset:%d', v((vAC + 8, vAC + 12, vPK + 8, vPK + 12)[q], 4), vRA, q * 32)
        return 5
    for t_, src in ((0, vAC), (1, vPK)):
        mfma(A, vWF + 16 * t_, src, vID, True)
        mfma(A, vWF + 16 * t_, src + 4, vID + 4)
    wait_word(A, 6, 1, body=cfv_reads)
    A('s_waitcnt lgkmcnt(4)')
    mfma(A, vAC2, vMF, vCF)
    A('v_mov_b32 v%d, 0x%x', vT1, ONES)
    cvt8(A, vWF, vWF)
    cvt8(A, vWF + 8, vWF + 16)
    for q in range(4):
        A('ds_write_b128 v%d, %s offset:%d', vOW, v(vWF + 4 * q, 4), q * 1024)
    A('s_waitcnt lgkmcnt(4)')
    for r in range(0, 16, 2):
        rs = (vAC + 8 + r) if r < 8 else (vPK + r)
        A('v_pk_mul_f32 v[%d:%d], v[%d:%d], v[%d:%d]', vAC2 + r, vAC2 + r + 1, vAC2 + r, vAC2 + r + 1, rs, rs + 1)
    cvt8(A, vPK, vAC2)
    for r in range(8):
        A('v_cndmask_b32 v%d, v%d, v%d, s[%d:%d]', vPK + r, vPK + r, vT1, sPADL, sPADL + 1)
    for q in range(2):
        A('ds_write_b128 v%d, %s offset:%d', vOW, v(vPK + 4 * q, 4), L_KVV - L_KVA + q * 1024)
    set_stage(A, C0 + 1)
    stamp(A)
    gemm_part(A, vAC, 2, False, C0 + 3)

    def cfq_reads():
        A('ds_read_b64 v[%d:%d], v%d offset:%d', vCF, vCF + 1, vCA, 2 * 512)
        A('ds_read_b32 v%d, v%d offset:%d', vPW + 1, vMI, M_FAST)
        return 2
    wait_word(A, 7, 8, body=cfq_reads)
    A('s_waitcnt lgkmcnt(0)')
    A('v_readfirstlane_b32 s%d, v%d', sFASTF, vPW + 1)
    project()
    softmax_pm(A, vAC, vSC, vPK, vTT)
    vQF = [vAC, vAC + 4, vPK, vPK + 4]
    stamp(A)
    vW1A = vXA
    A('v_bfe_u32 v%d, v%d, 2, 2', vT0, vL)
    A('v_lshrrev_b32 v%d, 5, v%d', vT1, vL)
    A('v_lshl_add_u32 v%d, v%d, 2, v%d', vT1, vT1, vT0)
    A('v_lshlrev_b32 v%d, 8, v%d', vW1A, vT1)
    A('v_lshlrev_b32 v%d, 7, v%d', vWA, vT1)
    A('v_xor_b32 v%d, s%d, v%d', vT0, sWV, vT0)
    A('v_lshl_add_u32 v%d, v%d, 6, v%d', vW1A, vT0, vW1A)
    A('v_bfe_u32 v%d, v%d, 4, 1', vT1, vL)
    A('v_lshlrev_b32 v%d, 5, v%d', vT1, vT1)
    A('v_and_b32 v%d, 3, v%d', vT0, vL)
    A('v_lshl_add_u32 v%d, v%d, 3, v%d', vT1, vT0, vT1)
    A('v_add_u32 v%d, v%d, v%d', vW1A, vW1A, vT1)
    A('v_add_u32 v%d, 0x8000, v%d', vW1A + 1, vW1A)
    A('v_add_u32 v%d, v%d, v%d', vWA, vWA, vT1)
    A('v_bfe_u32 v%d, v%d, 3, 1', vT1, vL)
    A('v_lshl_add_u32 v%d, v%d, 6, v%d', vWA, vT1, vWA)

    def w1_copy(c):
        wait_lp(A, ('w1', c))
        for q in range(4):
            for z in range(2):
                off = w1_slot(c) + (16 * q + 8 * z) * 256
                base = vW1A
                if off >= 0x8000:
                    off -= 0x8000
                    base += 1
                r = vXR + (4 * c + q) * 4 + 2 * z
                A('ds_read_b64_tr_b16 v[%d:%d], v%d offset:%d', r, r + 1, base, off)

    idle = A.label('IDLE')
    A('s_cmp_ge_u32 s%d, 28', sI)
    A('s_cbranch_scc1 %s', idle)
    w1_copy(0)
    w1_copy(1)
    set_stage(A, C0 + 4)
    A('%s:', idle)
    A('s_lshl_b32 s%d, s%d, 2', sFL, sTB)
    A('s_add_u32 s%d, s%d, s%d', sFL, sFL, sWV)
    A('s_lshl_b32 s%d, s%d, 4', sFL, sFL)
    A('s_add_u32 s%d, s%d, s%d', sFL, sFL, sH)
    A('s_lshl_b32 s%d, s%d, 11', sB, sFL)
    A('s_add_u32 s%d, s%d, %d', sB, sB, WS_OB)
    A('s_lshl_b32 s%d, s%d, 2', sFL, sFL)
    A('s_add_u32 s%d, s%d, %d', sFL, sFL, F2)
    vEX = vXD + 1
    A('v_add_u32 v%d, %d, v%d', vEX, L_EX, vO)

    def ex_reads():
        for q in range(4):
            A('ds_read_b128 %s, v%d offset:%d', v(vWF + 4 * q, 4), vEX, q * 1024)
        return 4
    wait_stage(A, 3, (5, 6), body=ex_reads)
    stamp(A)
    for q in range(4):
        A('s_waitcnt lgkmcnt(%d)', 3 - q)
        mfma(A, vAC2, vWF + 4 * q, vQF[q], q == 0)
    A('v_cndmask_b32 v%d, v%d, v%d, s[%d:%d]', vT0, vAC2 + 12, vAC2, sODD, sODD + 1)
    A('v_mov_b32 v%d, v%d', vT1, vT0)
    A('v_permlane32_swap_b32 v%d, v%d', vT0, vT1)
    A('v_cndmask_b32 v%d, v%d, v%d, s[%d:%d]', vTT, vT1, vT0, sODD, sODD + 1)
    A('v_add_f32 v%d, 0x%x, v%d', vTT, 0x358637bd, vTT)
    A('v_rcp_f32 v%d, v%d', vTT, vTT)
    for r in range(0, 16, 2):
        A('v_pk_mul_f32 v[%d:%d], v[%d:%d], v[%d:%d] op_sel_hi:[1,0]', vAC2 + r, vAC2 + r + 1, vAC2 + r, vAC2 + r + 1,
          vTT, vTT + 1)
    cvt8(A, vPK, vAC2)
    for r in (0, 1):
        A('v_cndmask_b32 v%d, v%d, 0, s[%d:%d]', vPK + r, vPK + r, sZA, sZA + 1)
        A('v_cndmask_b32 v%d, v%d, 0, s[%d:%d]', vPK + 6 + r, vPK + 6 + r, sZB, sZB + 1)
    pub_stores(A, [st4(vPK + 4 * q, sB, q * 1024) for q in range(2)], MAP == 0 and not WTO)
    A('s_and_b32 s%d, s%d, 1', sG, sWV)
    A('s_lshr_b32 s%d, s%d, 1', sKH, sWV)
    A('s_lshl_b32 s%d, s%d, 1', sT, sTQ)
    A('s_add_u32 s%d, s%d, s%d', sG, sG, sT)
    A('s_lshl_b32 s%d, s%d, 6', sT, sKH)
    A('v_xor_b32 v%d, s%d, v%d', vWA, sT, vWA)
    A('v_xor_b32 v%d, 64, v%d', vWA + 1, vWA)
    A('s_mul_i32 s%d, s%d, %d', sT, sKH, 224 * 128)
    A('s_add_u32 s%d, s%d, %d', sT, sT, L_A)
    A('v_add_u32 v%d, s%d, v%d', vWA + 2, sT, vWA)
    A('v_add_u32 v%d, s%d, v%d', vWA + 3, sT, vWA + 1)
    vSW, vSR, vPP, vXS = vXA + 2, vXA + 3, vSM, vSM + 1
    A('s_and_b32 s%d, s%d, 1', sC, sWV)
    A('s_lshl_b32 s%d, s%d, 12', sC, sC)
    A('v_add_u32 v%d, s%d, v%d', vSW, sC, vO)
    A('s_cmp_eq_u32 s%d, 0', sKH)
    A('s_cselect_b32 s%d, %d, %d', sT, L_SC0 >> 12, L_SC1 >> 12)
    A('s_cselect_b32 s%d, %d, %d', sT2, L_SC1 >> 12, L_SC0 >> 12)
    A('s_lshl_b32 s%d, s%d, 12', sT, sT)
    A('s_lshl_b32 s%d, s%d, 12', sT2, sT2)
    A('v_add_u32 v%d, s%d, v%d', vSR, sT2, vSW)
    A('v_add_u32 v%d, s%d, v%d', vSW, sT, vSW)
    A('v_xor_b32 v%d, 8, v%d', vPP, vMY)
    A('v_and_b32 v%d, 31, v%d', vXS, vL)
    A('v_lshlrev_b32 v%d, 7, v%d', vXS, vXS)
    A('v_lshrrev_b32 v%d, 5, v%d', vT1, vL)
    A('v_lshl_add_u32 v%d, v%d, 3, v%d', vXS, vT1, vXS)
    A('s_lshl_b32 s%d, s%d, 6', sT2, sKH)
    A('s_add_u32 s%d, s%d, s%d', sC, sC, sT2)
    A('v_add_u32 v%d, s%d, v%d', vXS, sC, vXS)
    A('s_lshl_b32 s%d, s%d, 15', sB, sG)
    A('s_lshl_b32 s%d, s%d, 14', sT, sKH)
    A('s_add_u32 s%d, s%d, s%d', sB, sB, sT)
    A('s_add_u32 s%d, s%d, %d', sB, sB, WS_OB)
    A('s_lshl_b32 s%d, s%d, 6', sC, sG)
    A('s_lshl_b32 s%d, s%d, 5', sT, sKH)
    A('s_add_u32 s%d, s%d, s%d', sC, sC, sT)
    A('s_add_u32 s%d, s%d, %d', sC, sC, F2)
    pub_flag(A, sFL, MAP == 0)
    set_stage(A, C0 + 5)
    stamp(A)
    fin = A.label('FIN')
    A('s_cmp_ge_u32 s%d, 28', sI)
    A('s_cbranch_scc1 %s', fin)

    vHP = 120
    vB2 = [40 + 4 * k for k in range(8)] + [224 + 4 * k for k in range(8)]
    vWF2 = 72
    wait_lp(A, 'wo')

    def wo_row(k):
        hh = k // 2
        return 28 * hh - 4 * (hh & 1) + 16 * (k & 1)

    def read_wo(k):
        buf = vWF2 + 8 * (k & 1)
        for nt in range(2):
            for z in range(2):
                A('ds_read_b64_tr_b16 v[%d:%d], v%d offset:%d', buf + 4 * nt + 2 * z, buf + 4 * nt + 2 * z + 1,
                  vWA + 2 + nt, (wo_row(k) + 8 * z) * 128)

    def unpack_hp():
        for r in range(8):
            A('v_lshlrev_b32 v%d, 16, v%d', vAC + 2 * r, vHP + r)
            A('v_and_b32 v%d, 0xffff0000, v%d', vAC + 2 * r + 1, vHP + r)

    read_wo(0)
    if MAP == 3 and E('SPOLL', 1):
        poll_scalar(A, sC, 8)
    else:
        poll_global(A, sC, 8)
    stamp(A)
    for k in range(16):
        A('buffer_load_dwordx4 %s, v%d, s[%d:%d], s%d offen offset:%d sc1', v(vB2[k], 4), vO, SWS, SWS + 3, sB,
          (k & 3) * 1024)
        if (k & 3) == 3:
            A('s_add_u32 s%d, s%d, 4096', sB, sB)
    A('s_lshl_b32 s%d, s%d, 1', sT2, sNB)
    A('s_add_u32 s%d, s%d, s%d', sT2, sT2, sKH)
    A('s_lshl_b32 s%d, s%d, 15', sB, sG)
    A('s_add_u32 s%d, s%d, %d', sB, sB, WS_HB)
    A('s_lshl_b32 s%d, s%d, 8', sC, sT2)
    A('s_add_u32 s%d, s%d, s%d', sC, sC, sB)
    A('s_lshl_b32 s%d, s%d, 11', sT, sT2)
    A('s_add_u32 s%d, s%d, s%d', sB, sB, sT)
    A('s_add_u32 s%d, s%d, 4096', sB, sB)
    A('s_lshl_b32 s%d, s%d, 2', sFL, sT2)
    A('s_lshl_b32 s%d, s%d, 6', sT, sG)
    A('s_add_u32 s%d, s%d, s%d', sFL, sFL, sT)
    A('s_add_u32 s%d, s%d, %d', sFL, sFL, F3)
    wait_lp(A, 'xres')
    for q in range(4):
        A('ds_read_b64 v[%d:%d], v%d offset:%d', vHP + 2 * q, vHP + 2 * q + 1, vXS, L_XRES + q * 16)
    A('v_mov_b32 v%d, 1', vT1)
    A('ds_write_b32 v%d, v%d offset:%d', vMY, vT1, M_RES)
    A('s_waitcnt lgkmcnt(1)')
    unpack_hp()
    lo, done = A.label('W'), A.label('WD')
    A('%s:', lo)
    A('ds_read_b32 v%d, v%d offset:%d', vPW, vPP, M_RES)
    A('s_waitcnt lgkmcnt(0)')
    A('v_readfirstlane_b32 s%d, v%d', sT, vPW)
    spin_guard(A, done)
    A('s_cmp_ge_u32 s%d, 1', sT)
    A('s_cbranch_scc0 %s', lo)
    A('%s:', done)
    for k in range(16):
        if k < 15:
            read_wo(k + 1)
        A('s_waitcnt vmcnt(%d) lgkmcnt(%d)', 15 - k, 4 if k < 15 else 0)
        buf = vWF2 + 8 * (k & 1)
        mfma(A, vAC + 16, buf + 4, vB2[k], k == 0)
        mfma(A, vAC, buf, vB2[k])
    stamp(A)

    def exchange(st):
        for q in range(4):
            A('ds_write_b128 v%d, %s offset:%d', vSW, v(vAC + 16 + 4 * q, 4), q * 1024)
        set_stage(A, st)
        lo, done = A.label('W'), A.label('WD')
        A('%s:', lo)
        A('ds_read_b32 v%d, v%d', vPW, vPP)
        for q in range(4):
            A('ds_read_b128 %s, v%d offset:%d', v(vWF2 + 4 * q, 4), vSR, q * 1024)
        A('s_waitcnt lgkmcnt(4)')
        A('v_readfirstlane_b32 s%d, v%d', sT, vPW)
        spin_guard(A, done)
        A('s_cmp_ge_u32 s%d, %d', sT, st)
        A('s_cbranch_scc0 %s', lo)
        A('%s:', done)
        for q in range(4):
            A('s_waitcnt lgkmcnt(%d)', 3 - q)
            for r in (0, 2):
                a0 = vAC + 4 * q + r
                A('v_pk_add_f32 v[%d:%d], v[%d:%d], v[%d:%d]', a0, a0 + 1, a0, a0 + 1, vWF2 + 4 * q + r,
                  vWF2 + 4 * q + r + 1)

    exchange(C0 + 6)
    set_stage(A, C0 + 7)
    cvt8(A, vHP, vAC)
    pub_stores(A, [st4(vHP + 4 * q, sB, q * 1024) for q in range(2)], not WTO)
    A('v_mov_b32 v%d, 0', vTT)
    A('v_mov_b32 v%d, 0', vTT + 1)
    for r in range(8):
        A('v_dot2c_f32_bf16 v%d, s%d, v%d', vTT, sONES, vHP + r)
        A('v_dot2c_f32_bf16 v%d, v%d, v%d', vTT + 1, vHP + r, vHP + r)
    A('v_lshlrev_b32 v%d, 2, v%d', vTT + 2, vL)
    A('v_permlane32_swap_b32 v%d, v%d', vTT, vTT + 1)
    A('v_add_f32 v%d, v%d, v%d', vTT, vTT, vTT + 1)
    pub_stores(A, ['buffer_store_dword v%d, v%d, s[%d:%d], s%d offen%%s' % (vTT, vTT + 2, SWS, SWS + 3, sC)], not WTO)
    for c in (2, 3):
        w1_copy(c)
    pub_flag(A, sFL, True)
    stamp(A)
    vCS = vSQ
    for c in (4, 5, 6):
        w1_copy(c)
    set_stage(A, C0 + 8)
    A('v_mov_b32 v%d, 0', vCS)
    A('v_mov_b32 v%d, 0', vCS + 1)
    for r in range(112):
        if r == 32:
            A('s_waitcnt lgkmcnt(0)')
        A('v_dot2c_f32_bf16 v%d, s%d, v%d', vCS + (r & 1), sONES, vXR + r)
    A('v_add_f32 v%d, v%d, v%d', vCS, vCS, vCS + 1)
    hilo_c(A, vCS, vCF, vT0)
    vBR = 40
    vE3 = 72
    vMF2, vSD = 128, 132
    A('s_mul_i32 s%d, s%d, %d', sB, sTB3, 4 * 112)
    A('s_lshl_b32 s%d, s%d, 3', sT, sFB)
    A('s_add_u32 s%d, s%d, s%d', sB, sB, sT)
    A('s_lshl_b32 s%d, s%d, 1', sT, sWV)
    A('s_add_u32 s%d, s%d, s%d', sB, sB, sT)
    A('s_lshl_b32 s%d, s%d, 10', sB, sB)
    A('s_add_u32 s%d, s%d, %d', sB, sB, WS_H1B)
    A('s_lshl_b32 s%d, s%d, 10', sFL, sTB3)
    A('s_lshl_b32 s%d, s%d, 4', sT, sFB)
    A('s_add_u32 s%d, s%d, s%d', sFL, sFL, sT)
    A('s_lshl_b32 s%d, s%d, 2', sT, sWV)
    A('s_add_u32 s%d, s%d, s%d', sFL, sFL, sT)
    A('s_add_u32 s%d, s%d, %d', sFL, sFL, F4)

    def p3_epilogue(gi, packed=False):
        B = sub(A)
        acc = vAC + 16 * (gi & 1)
        e = vE3
        sd, c1 = vSD, vSD + 1
        if packed:
            pk = lambda r: 'v[%d:%d]' % (r, r + 1)
            for r in range(0, 16, 2):
                B('v_pk_mul_f32 %s, %s, %s op_sel:[0,1] op_sel_hi:[1,1]', pk(e + r), pk(acc + r), pk(sd))
            for r in range(16):
                B('v_exp_f32 v%d, v%d', e + r, e + r)
            for r in range(0, 16, 2):
                B('v_pk_fma_f32 %s, %s, %s, %s op_sel_hi:[1,0,0]', pk(e + r), pk(e + r), pk(sd), pk(sd))
            for r in range(16):
                B('v_rcp_f32 v%d, v%d', e + r, e + r)
            for r in range(0, 16, 2):
                B('v_pk_mul_f32 %s, %s, %s', pk(e + r), pk(e + r), pk(acc + r))
        else:
            for r in range(16):
                B('v_mul_f32 v%d, v%d, v%d', e + r, acc + r, c1)
                if r >= 1:
                    B('v_exp_f32 v%d, v%d', e + r - 1, e + r - 1)
            B('v_exp_f32 v%d, v%d', e + 15, e + 15)
            for r in range(16):
                B('v_fma_f32 v%d, v%d, v%d, v%d', e + r, e + r, sd, sd)
                if r >= 1:
                    B('v_rcp_f32 v%d, v%d', e + r - 1, e + r - 1)
            B('v_rcp_f32 v%d, v%d', e + 15, e + 15)
            for r in range(16):
                B('v_mul_f32 v%d, v%d, v%d', e + r, e + r, acc + r)
        cvt8(B, acc, e)
        blocks = [[l] for l in B.lines]
        B = sub(A)
        pub_stores(B, [st4(acc + 4 * q, sB, q * 1024) for q in range(2)], not WT1)
        B('s_add_u32 s%d, s%d, %d', sB, sB, 112 * 1024)
        blocks.append(B.lines)
        return blocks

    def p3_flag(B):
        pub_flag(B, sFL, True)
        B('s_add_u32 s%d, s%d, 256', sFL, sFL)

    PRE = E('P3PRE', 6)
    vHB = vXD + 2
    A('v_add_u32 v%d, %d, v%d', vHB, L_A, vO)
    A('v_add_u32 v%d, %d, v%d', vHB + 1, 65536, vO)
    A('s_mov_b32 s%d, 0', CACHE[6])
    Q = LdsQ(A)

    def rd(n):
        gi, k = divmod(n, 28)
        if (k + 5) % 8 == 0 and k != 3:
            Q.take(7)
        if (k + 4) % 8 == 0 or k == 0:
            wait_lp(Q.A, ('h', gi, (k + 4) // 8))
        Q.op(('b', n), 'ds_read_b128 %s, v%d offset:%d', v(vBR + 4 * (n % 8), 4), (vHB, vHB, vO, vHB + 1)[gi],
             (28672 if gi == 1 else 0) + k * 1024)
        if k == 27:
            Q.stage(C0 + 9 + gi)
        nn = n + PRE + 2
        if nn < 112 and ((nn % 28 + 4) % 8 == 0 or nn % 28 == 0) and nn % 28 != 4:
            Q.peek(7)

    for n in range(PRE):
        rd(n)
    for gi in range(4):
        acc = vAC + 16 * (gi & 1)
        M = sub(A)
        Q.A = M
        for k in range(28):
            n = 28 * gi + k
            if n + PRE < 112:
                rd(n + PRE)
            if k == 14:
                Q.op('s6', 'ds_read_b32 v%d, v%d offset:%d', vPK_ + 1, vMI, M_PW + 24)
                Q.op('sf', 'ds_read_b128 %s, v%d offset:%d', v(vMF2, 4), vEX, gi * 1024)
            if k == 24:
                Q.wait('sf')
                M('v_readfirstlane_b32 s%d, v%d', sC, vPK_ + 1)

                def st_slow(B, back):
                    def st_read():
                        B('ds_read_b128 %s, v%d offset:%d', v(vMF2, 4), vEX, gi * 1024)
                        return 0
                    wait_word(B, 6, 4 + gi, body=st_read)
                ent, back = cold_block(M, st_slow)
            if k == 25:
                M('s_cmp_ge_u32 s%d, %d', sC, 4 + gi)
                M('s_cbranch_scc0 %s', ent)
                M('%s:', back)
                M('v_mov_b32 v%d, v%d', vMF, vMF2)
                M('v_mov_b32 v%d, v%d', vMF + 1, vMF2 + 1)
            if k % 2 == 0:
                Q.wait(('b', n + 1))
            if k in (0, 12):
                stamp(M, 'p3')
            if gi == 3 and k % 2 == 0 and k:
                stamp(M, 'p33')
            if k == E('P3FLAGK', 14) and gi >= 2:
                p3_flag(M)
            mfma(M, acc, vXR + 4 * k, vBR + 4 * (n % 8), k == 0)
        mfma(M, acc, vCF, vMF)
        M('v_mov_b32 v%d, v%d', vSD, vMF2 + 2)
        M('v_mov_b32 v%d, v%d', vSD + 1, vMF2 + 3)
        A.lines += merge(M.lines, p3_epilogue(gi - 1) if gi > 0 else [], 1, 27)
        if gi == 0:
            stamp(A)
        stamp(A, 'p3')
    stamp(A)
    for j, b in enumerate(p3_epilogue(3, True)):
        if j == 30:
            p3_flag(A)
        A.lines += b
    NB = 28
    vWF4 = 40
    A('s_mul_i32 s%d, s%d, %d', sB, sG, 112 * 1024)
    A('s_mul_i32 s%d, s%d, %d', sT, sKH, 56 * 1024)
    A('s_add_u32 s%d, s%d, s%d', sB, sB, sT)
    A('s_add_u32 s%d, s%d, %d', sB, sB, WS_H1B)
    A('s_lshl_b32 s%d, s%d, 8', sC, sG)
    A('s_mul_i32 s%d, s%d, 112', sT, sKH)
    A('s_add_u32 s%d, s%d, s%d', sC, sC, sT)
    A('s_add_u32 s%d, s%d, %d', sC, sC, F4)

    def w2_base(c):
        A('s_cmp_eq_u32 s%d, 0', sKH)
        A('s_cselect_b32 s%d, %d, %d', sT, w2_slot(2 * c) >> 12, w2_slot(2 * c + 1) >> 12)
        A('s_lshl_b32 s%d, s%d, 12', sT, sT)
        A('v_add_u32 v%d, s%d, v%d', vWA + 2, sT, vWA)
        A('v_add_u32 v%d, s%d, v%d', vWA + 3, sT, vWA + 1)

    Q = LdsQ(A)

    def read_w2(k):
        if k % 4 == 3:
            Q.take(4)
        if k % 4 == 0:
            wait_lp(A, ('w2', 2 * (k // 4) + 1))
            w2_base(k // 4)
        buf = vWF4 + 8 * (k & 3)
        for nt in range(2):
            for z in range(2):
                Q.op(('w', k), 'ds_read_b64_tr_b16 v[%d:%d], v%d offset:%d', buf + 4 * nt + 2 * z,
                     buf + 4 * nt + 2 * z + 1, vWA + 2 + nt, ((k % 4) * 16 + 8 * z) * 128)
        if k % 4 == 0 and k < 52:
            Q.peek(4)
        if k % 4 == 3 and (k // 4) <= 5:
            Q.stage(C0 + 13 + k // 4)

    def issue_b(k):
        A('buffer_load_dwordx4 %s, v%d, s[%d:%d], s%d offen offset:%d sc1', v(vXR + 4 * (k % NB), 4), vO, SWS, SWS + 3,
          sB, (k & 3) * 1024)
        if (k & 3) == 3:
            A('s_add_u32 s%d, s%d, 4096', sB, sB)

    unpack_hp()
    read_w2(0)
    read_w2(1)
    p3_flag(A)
    stamp(A)
    poll_global(A, sC, 28)
    stamp(A)
    INFL = E('P4INFL', 10)
    for k in range(INFL):
        issue_b(k)
    issued = INFL
    for k in range(56):
        if k + 2 < 56:
            read_w2(k + 2)
        Q.wait(('w', k), issued - k - 1)
        if k % 4 == 0 and k:
            stamp(A, 'p4')
        if 40 <= k < 53:
            stamp(A, 'p44')
        buf = vWF4 + 8 * (k & 3)
        mfma(A, vAC + 16, buf + 4, vXR + 4 * (k % NB), k == 0)
        mfma(A, vAC, buf, vXR + 4 * (k % NB))
        if issued < 56:
            issue_b(issued)
            issued += 1
    stamp(A)
    A('v_and_b32 v%d, 31, v%d', vTT, vL)
    A('v_mul_u32_u24 v%d, 896, v%d', vTT, vTT)
    A('v_lshrrev_b32 v%d, 5, v%d', vT1, vL)
    A('v_lshl_add_u32 v%d, v%d, 4, v%d', vTT, vT1, vTT)
    A('s_mul_i32 s%d, s%d, %d', sB, sG, 32 * 896)
    A('s_lshl_b32 s%d, s%d, 7', sT2, sNB)
    A('s_add_u32 s%d, s%d, s%d', sB, sB, sT2)
    A('s_lshl_b32 s%d, s%d, 6', sT2, sKH)
    A('s_add_u32 s%d, s%d, s%d', sB, sB, sT2)
    exchange(C0 + 27)
    cvt8(A, vHP, vAC)
    for q in range(2):
        A('v_permlane32_swap_b32 v%d, v%d', vHP + 4 * q, vHP + 4 * q + 2)
        A('v_permlane32_swap_b32 v%d, v%d', vHP + 4 * q + 1, vHP + 4 * q + 3)
    for q in range(2):
        A('buffer_store_dwordx4 %s, v%d, s[%d:%d], s%d offen offset:%d', v(vHP + 4 * q, 4), vTT, SOUT, SOUT + 3, sB,
          q * 32)
    A('s_or_b32 s%d, s2, s%d', sT, sWV)
    A('s_cmp_lg_u32 s%d, 0', sT)
    A('s_cbranch_scc1 %s', fin)
    A('s_mov_b32 s%d, %d', sT, FEP)
    A('s_mov_b64 exec, 1')
    A('buffer_store_dword v%d, v%d, s[%d:%d], s%d offen', vTAG, vO, SWS, SWS + 3, sT)
    A('s_mov_b64 exec, -1')
    A('%s:', fin)
    if E('PADTO', 0):
        lo = A.label('PAD')
        A('s_waitcnt vmcnt(0) lgkmcnt(0)')
        A('s_mov_b32 s6, %d', E('PADTO', 0))
        if PROBE >= 0:
            A('s_sub_u32 s7, s56, s84')
            A('s_lshl_b32 s7, s7, 2')
            A('s_cmp_ge_u32 s%d, 28', sI)
            A('s_cselect_b32 s7, 0, s7')
            A('s_add_u32 s6, s6, s7')
        A('%s:', lo)
        A('s_memrealtime s[4:5]')
        A('s_waitcnt lgkmcnt(0)')
        A('s_sub_u32 s4, s4, s84')
        A('s_cmp_lt_u32 s4, s6')
        A('s_cbranch_scc1 %s', lo)
    stamp_flush(A)


def gen():
    A = Asm()
    name = NAME + '_kernel'
    A.lines += ['.p2align 8', '.globl %s' % name, '.type %s,@function' % name, '%s:' % name]
    end = A.label('END')
    if E('PADTO', 0):
        A('s_memrealtime s[84:85]')
    A('s_getpc_b64 s[%d:%d]', sPC, sPC + 1)
    A('s_cmp_ge_u32 s2, 256')
    A('s_cbranch_scc1 %s', end)
    A('s_load_dwordx16 s[64:79], s[0:1], 0')
    A('s_load_dwordx2 s[80:81], s[0:1], 72')
    if DBGT:
        A('s_load_dwordx2 s[86:87], s[0:1], 64')
    A('s_mov_b32 s%d, 0x400000', sSPIN)
    A('s_and_b32 s%d, s2, 7', sXCD)
    A('s_lshr_b32 s%d, s2, 3', sI)
    if MAP == 0:
        perm = [2, 4, 6, 9, 11, 13, 0, 1, 3, 5, 7, 8, 10, 12, 14, 15]
        lo = sum(perm[i] << (4 * i) for i in range(8))
        hi = sum(perm[8 + i] << (4 * i) for i in range(8))
        A('s_mov_b32 s%d, 0x%x', sHI, lo)
        A('s_mov_b32 s%d, 0x%x', sHI + 1, hi)
        A('s_lshr_b32 s%d, s%d, 1', sT, sI)
        A('s_lshl_b32 s%d, s%d, 2', sT, sT)
        A('s_lshr_b64 s[%d:%d], s[%d:%d], s%d', sHI, sHI + 1, sHI, sHI + 1, sT)
        A('s_and_b32 s%d, s%d, 15', sH, sHI)
        A('s_and_b32 s%d, s%d, 1', sTB, sI)
        A('s_lshl_b32 s%d, s%d, 1', sT, sXCD)
        A('s_add_u32 s%d, s%d, s%d', sTB, sTB, sT)
    else:
        A('s_lshr_b32 s%d, s%d, 1', sTB, sI)
        A('s_and_b32 s%d, s%d, 1', sH, sI)
        A('s_lshl_b32 s%d, s%d, 1', sT, sXCD)
        A('s_add_u32 s%d, s%d, s%d', sH, sH, sT)
    A('s_add_u32 s%d, s%d, s%d', sC0, sXCD, sI)
    A('s_mul_i32 s%d, s%d, 37', sT, sC0)
    A('s_lshr_b32 s%d, s%d, 8', sT, sT)
    A('s_mul_i32 s%d, s%d, 7', sT, sT)
    A('s_sub_u32 s%d, s%d, s%d', sC0, sC0, sT)
    A('s_mul_i32 s%d, s%d, 37', sTQ, sI)
    A('s_lshr_b32 s%d, s%d, 8', sTQ, sTQ)
    A('s_mul_i32 s%d, s%d, 7', sNB, sTQ)
    A('s_sub_u32 s%d, s%d, s%d', sNB, sI, sNB)
    A('s_lshr_b32 s%d, s%d, 1', sTB3, sTQ)
    A('s_mul_i32 s%d, s%d, 14', sFB, sTB3)
    A('s_sub_u32 s%d, s%d, s%d', sFB, sI, sFB)
    A('s_lshl_b32 s%d, s%d, 2', sT, sXCD)
    A('s_add_u32 s%d, s%d, s%d', sTQ, sTQ, sT)
    A('s_lshl_b32 s%d, s%d, 1', sT, sXCD)
    A('s_add_u32 s%d, s%d, s%d', sTB3, sTB3, sT)
    A('v_lshrrev_b32 v%d, 6, v0', vL)
    A('v_readfirstlane_b32 s%d, v%d', sWV, vL)
    A('v_lshlrev_b32 v%d, 2, v%d', vMY, vL)
    A('v_add_u32 v%d, %d, v%d', vMY, L_MISC, vMY)
    A('v_and_b32 v%d, 63, v0', vL)
    A('v_lshlrev_b32 v%d, 4, v%d', vO, vL)
    A('v_mov_b32 v%d, %d', vMI, L_MISC)
    A('v_mov_b32 v%d, 0', vT0)
    A('ds_write_b32 v%d, v%d', vMY, vT0)
    A('ds_write_b32 v%d, v%d offset:%d', vMY, vT0, M_RES)
    A('ds_write_b32 v%d, v%d offset:%d', vMY, vT0, M_FAST)
    A('s_mov_b32 s%d, 0', sPROG)
    A('s_mov_b32 s%d, 0', sFASTF)
    A('s_mov_b32 s%d, 0x%x', sONES, ONES)
    early_offsets(A)
    A('s_waitcnt lgkmcnt(0)')
    A('s_barrier')
    A('s_mov_b32 s%d, 0', sPROG1)
    srd(A, SX, 64, S * D * 2)
    srd(A, SW, 66, D * 3 * D * 2)
    _st['n'] = 0
    stamp(A, 'all')
    if STAMPS:
        A('s_memrealtime s[86:87]')
    for i in range(7):
        LP[('x', i)] = (7, 1 + i)
    for gi in range(4):
        LP[('hf', gi)] = (7, 9 + 9 * (gi // 2))
        for q in range(4):
            LP[('h', gi, q)] = (7, 10 + 4 * gi + gi // 2 + q)
    for pi in range(3):
        for i in range(7):
            LP[('W', pi, i)] = (4, 7 * pi + i + 1)
    l0, l1, l2, lw, lc = A.label('H0'), A.label('H1'), A.label('H23'), A.label('EW'), A.label('EC')
    A('s_cmp_eq_u32 s%d, 4', sWV)
    A('s_cbranch_scc1 %s', lw)
    A('s_cmp_lg_u32 s%d, 7', sWV)
    A('s_cbranch_scc1 %s', lc)
    HELP['on'] = True
    nst = {}
    prio(A, 1)
    _st['n'] = 1
    early_x(A)
    nst[l1] = _st['n']
    A('s_branch %s', l1)
    A('%s:', lw)
    prio(A, 1)
    _st['n'] = 1
    early_w(A)
    nst[l0] = _st['n']
    nst[l2] = 1
    A('s_branch %s', l0)
    A('%s:', lc)
    A('s_cmp_ge_u32 s%d, 5', sWV)
    A('s_cbranch_scc1 %s', l2)
    parts = {}
    for lab, fn in ((l0, gen_h0), (l1, gen_h1), (l2, gen_h23)):
        B = sub(A)
        B('%s:', lab)
        B('s_nop 4')
        HELP['on'] = True
        prio(B, 1)
        _st['n'] = nst[lab]
        fn(B)
        HELP['on'] = False
        parts[lab] = B.lines
    _st['n'] = 1
    gen_compute(A)
    A('%s:', end)
    A('s_endpgm')
    for lab in (l0, l1, l2):
        A.lines += parts[lab]
    A.lines += COLD
    return A, name


def main():
    out = sys.argv[1] if len(sys.argv) > 1 else 'cdna_kernels/%s.s' % NAME
    A, name = gen()
    lines, nn = fix_hazards(A.lines)
    hdr = ['; generated by gen/gen5.py (hand-written generator script)',
           '; @launch grid=(256,1,1) block=(512,1,1) lds=%d' % LDS_SIZE,
           '.amdgcn_target "amdgcn-amd-amdhsa--gfx950"', '.text']
    tail = ['.p2align 8', '.fill 2048, 4, 0xbf800000', '.section .rodata,"a"', '.p2align 6', '''.amdhsa_kernel %s
  .amdhsa_next_free_vgpr 256
  .amdhsa_next_free_sgpr 102
  .amdhsa_accum_offset 256
  .amdhsa_group_segment_fixed_size 0
  .amdhsa_kernarg_size 80
  .amdhsa_user_sgpr_count 2
  .amdhsa_user_sgpr_kernarg_segment_ptr 1
  .amdhsa_system_sgpr_workgroup_id_x 1
  .amdhsa_float_denorm_mode_32 3
  .amdhsa_float_denorm_mode_16_64 3
.end_amdhsa_kernel''' % name]
    open(out, 'w').write('\n'.join(hdr + lines + tail) + '\n')
    print('wrote', out, 'lines', len(lines), 'nops', nn)


if __name__ == '__main__':
    main()
```

```python
import sys
import os
sys.path.insert(0, os.path.dirname(os.path.abspath(__file__)))
from asmlib import Asm, fix_hazards, v

NAME = 'sequential_preLN__linear_kernel_hedgehog__dense_activation_silu__prompt'
S, D, H, DH, F = 2048, 448, 16, 28, 1792
MB = 1 << 20
E = lambda k, d: int(os.environ.get(k, d))
STAMPS = E('STAMPS', 0)
MAP = E('MAP', 0)
FAST = E('FAST', 1)
CODEPF = E('CODEPF', 1)
WARM = E('WARM', 1)
WT1 = E('WT1', 0)
WTO = E('WTO', 0)
TOUCHAT = E('TOUCHAT', 1)
LDB = (' sc1', '', ' nt')[E('LDB', 0)]
HLATE = E('HLATE', 1)
WS_KVP = 0
WS_OB = 2 * MB
WS_HB = 4 * MB
WS_H1B = 8 * MB
WS_FLG = 16 * MB
F1, F2, F3, F4, FREG, FEP = WS_FLG + 0x10000, WS_FLG + 0x1000, WS_FLG + 0x3000, WS_FLG + 0x5000, WS_FLG + 0x9000, WS_FLG + 0xA000
WS_STAMP = 17 * MB
WS_SIZE = 18 * MB
LOG2E = 0x3fb8aa3b
ONES = 0x3f803f80
MFMA = 'v_mfma_f32_32x32x16_bf16'
L_X = 0
L_WP = (114688, 0, 32768)
L_KVA, L_KVV = 65536, 81920
L_A = 98304
L_SC0, L_SC1 = 49152, 57344
L_XRES = L_SC0
B16 = (0, 16384, 65536, 81920, 32768)
L_PHI, L_EX, L_CF, L_MISC = 159744 - 2048 + 2048 + 1536, 155648, 159744, 163328
LDS_SIZE = 163840
M_PW, M_RES, M_FAST = 0, 32, 64
L_RSTD = L_EX

SX, SW, SP, SWS, SWO, SW1, SW2, SOUT = 12, 16, 20, 24, 28, 32, 36, 40
sTB, sH, sWV, sC0, sPROG, sT, sT2, sONES, sC, sTAG, sFASTF, sI, sXCD = 44, 45, 46, 47, 48, 49, 50, 51, 52, 53, 54, 55, 3
sHI, sPADL, sZA, sZB, sODD, sPC = 4, 6, 8, 10, 92, 94
sTQ, sNB, sTB3, sFB, sG, sKH, sB, sXB, sM0, sSPIN = 96, 97, 98, 99, 100, 101, 88, 89, 91, 90
sPROG1, sFL = 0, 1
vL, vMI, vT0, vT1, vO = 1, 2, 3, 4, 5
vTAG, vMY = 6, 7
vTT = 8
vXA = 12
vWA = 16
vSM, vSQ = 20, 22
vNM, vRS, vSC, vRA = 24, 25, 26, 27
vXD = 28
vPW = 32
vCA = 36
vXR = 144
vPK_ = 37
CACHE = {4: sPROG, 7: sPROG1, 5: sC0, 6: sTB}

_st = {'n': 0}
C0 = 4
HELP = {'on': False}


def prio(A, hi):
    if HELP['on'] and E('HPRIO', 2) and not HELP.get('hot'):
        A('s_setprio %d', E('HPRIO', 2) if hi else 0)
LP = {}


STSET = os.environ.get('STSET', 'main')


DBGT = E('DBGT', 0)


PROBE = E('PROBE', -1)


def stamp(A, tag='main'):
    if PROBE >= 0:
        if not HELP['on'] and tag in ('main', 'all'):
            if _st['n'] == PROBE:
                A('s_memrealtime s[56:57]')
            _st['n'] += 1
        return
    if DBGT and not HELP['on'] and tag in ('main', 'all'):
        A('s_memrealtime s[%d:%d]', 56 + 2 * _st['n'], 57 + 2 * _st['n'])
        _st['n'] += 1
        return
    if STAMPS and (tag == STSET or tag == 'all' or (HELP['on'] and tag == 'main')):
        assert _st['n'] < 15, 'too many stamps'
        A('s_memtime s[%d:%d]', 56 + 2 * _st['n'], 57 + 2 * _st['n'])
        _st['n'] += 1


def stamp_flush(A):
    if DBGT and not HELP['on']:
        A('s_waitcnt vmcnt(0)')
        stamp(A, 'all')
        skip = A.label('DS')
        A('s_waitcnt vmcnt(0) lgkmcnt(0)')
        A('s_cmp_ge_u32 s%d, 28', sI)
        A('s_cbranch_scc1 %s', skip)
        A('s_mov_b64 exec, 1')
        A('v_mov_b32 v1, 0')
        A('s_not_b32 s4, s56')
        A('v_mov_b32 v2, s4')
        A('global_atomic_umax v1, v2, s[86:87] offset:60')
        for i in range(_st['n']):
            A('v_mov_b32 v%d, s%d', 8 + i, 56 + 2 * i)
            A('global_atomic_umax v1, v%d, s[86:87] offset:%d', 8 + i, 4 * i)
        A('%s:', skip)
        return
    if STAMPS:
        A('s_waitcnt vmcnt(0)')
        stamp(A, 'all')
        A('s_memrealtime s[4:5]')
        A('s_waitcnt vmcnt(0) lgkmcnt(0)')
        A('s_sub_u32 s4, s4, s86')
        A('s_lshl_b32 s4, s4, 20')
        A('s_and_b32 s86, s86, 0xfffff')
        A('s_or_b32 s86, s86, s4')
        A('s_lshl_b32 s%d, s2, 3', sT)
        A('s_add_u32 s%d, s%d, s%d', sT, sT, sWV)
        A('s_lshl_b32 s%d, s%d, 6', sT, sT)
        A('s_add_u32 s%d, s%d, %d', sT, sT, WS_STAMP)
        A('s_mov_b64 exec, 1')
        A('v_mov_b32 v1, 0')
        for i in range(16):
            if i < _st['n']:
                A('v_mov_b32 v2, s%d', 56 + 2 * i)
            elif i == 15:
                A('v_mov_b32 v2, s86')
            else:
                A('v_mov_b32 v2, 0')
            A('buffer_store_dword v2, v1, s[%d:%d], s%d offen offset:%d', SWS, SWS + 3, sT, 4 * i)
            A('s_nop 1')


def srd(A, d, ptr, size):
    A('s_mov_b32 s%d, s%d', d, ptr)
    A('s_and_b32 s%d, s%d, 0xffff', d + 1, ptr + 1)
    A('s_mov_b32 s%d, 0x%x', d + 2, size)
    A('s_mov_b32 s%d, 0x20000', d + 3)


COLD = []


def cold_block(A, fn):
    ent, back = A.label('CE'), A.label('CB')
    B = sub(A)
    B('%s:', ent)
    B('s_nop 15')
    fn(B, back)
    B('s_nop 7')
    B('s_branch %s', back)
    COLD.extend(B.lines)
    return ent, back


def spin_guard(A, done):
    A('s_sub_u32 s%d, s%d, 1', sSPIN, sSPIN)
    A('s_cbranch_scc1 %s', done)


def wait_word(A, w, n, cache=None, sleep=0, body=None):
    sd = sT if cache is None else cache

    def loop(B, done, body=None):
        lo = B.label('W')
        prio(B, 0)
        B('%s:', lo)
        if sleep:
            B('s_sleep %d', sleep)
        B('ds_read_b32 v%d, v%d offset:%d', vPW, vMI, M_PW + 4 * w)
        k = body() if body else 0
        B('s_waitcnt lgkmcnt(%d)', k)
        B('v_readfirstlane_b32 s%d, v%d', sd, vPW)
        spin_guard(B, done)
        B('s_cmp_ge_u32 s%d, %d', sd, n)
        B('s_cbranch_scc0 %s', lo)
        prio(B, 1)
    if cache is not None and body is None and not HELP['on']:
        A('s_getpc_b64 s[%d:%d]', sPC, sPC + 1)
        A('s_cmp_ge_u32 s%d, %d', sd, n)
        A('s_cbranch_scc0 REFRESH_%d', w)
        return
    done = A.label('WD')
    if cache is not None and body is None:
        A('s_cmp_ge_u32 s%d, %d', sd, n)
        A('s_cbranch_scc1 %s', done)
    loop(A, done, body)
    A('%s:', done)


def wait_lp(A, name, sleep=0):
    w, n = LP[name]
    wait_word(A, w, n, CACHE[w], sleep)


def set_stage(A, n):
    A('v_mov_b32 v%d, %d', vT0, n)
    A('ds_write_b32 v%d, v%d', vMY, vT0)


def wait_stage(A, n, which=(0, 1, 2, 3), body=None, sleep=0):
    lo, done = A.label('W'), A.label('WD')
    prio(A, 0)
    A('%s:', lo)
    if sleep:
        A('s_sleep %d', sleep)
    A('ds_read_b128 v[%d:%d], v%d offset:%d', vPW, vPW + 3, vMI, M_PW + 16 * (which[0] // 4))
    k = body() if body else 0
    A('s_waitcnt lgkmcnt(%d)', k)
    w = [x % 4 for x in which]
    if len(w) == 4:
        A('v_min3_u32 v%d, v%d, v%d, v%d', vPW, vPW, vPW + 1, vPW + 2)
        A('v_min_u32 v%d, v%d, v%d', vPW, vPW, vPW + 3)
        r = vPW
    else:
        A('v_min_u32 v%d, v%d, v%d', vPW + w[0], vPW + w[0], vPW + w[1])
        r = vPW + w[0]
    A('v_readfirstlane_b32 s%d, v%d', sT, r)
    spin_guard(A, done)
    A('s_cmp_ge_u32 s%d, %d', sT, n)
    A('s_cbranch_scc0 %s', lo)
    A('%s:', done)
    prio(A, 1)


def poll_global(A, soff, nlanes):
    lo, done = A.label('P'), A.label('PD')
    A('v_lshlrev_b32 v%d, 2, v%d', vT1, vL)
    A('s_mov_b64 exec, 0x%x', (1 << nlanes) - 1)
    A('%s:', lo)
    A('buffer_load_dword v%d, v%d, s[%d:%d], s%d offen sc1', vT0, vT1, SWS, SWS + 3, soff)
    A('s_waitcnt vmcnt(0)')
    A('v_cmp_ne_u32 vcc, s%d, v%d', sTAG, vT0)
    spin_guard(A, done)
    A('s_cbranch_vccnz %s', lo)
    A('%s:', done)
    A('s_mov_b64 exec, -1')


def poll_scalar(A, soff, n):
    lo, done = A.label('P'), A.label('PD')
    A('s_add_u32 s%d, s%d, s%d', sPC, SWS, soff)
    A('s_addc_u32 s%d, s%d, 0', sPC + 1, SWS + 1)
    base = 68 if STAMPS else 72
    A('%s:', lo)
    if E('PSLEEP', 0):
        A('s_sleep %d', E('PSLEEP', 0))
    A('s_load_dwordx%d s[%d:%d], s[%d:%d], 0 glc', n, base, base + n - 1, sPC, sPC + 1)
    A('s_waitcnt lgkmcnt(0)')
    A('s_and_b64 s[%d:%d], s[%d:%d], s[%d:%d]', sHI, sHI + 1, base, base + 1, base + 2, base + 3)
    A('s_or_b64 s[%d:%d], s[%d:%d], s[%d:%d]', sPADL, sPADL + 1, base, base + 1, base + 2, base + 3)
    for k in range(4, n, 2):
        A('s_and_b64 s[%d:%d], s[%d:%d], s[%d:%d]', sHI, sHI + 1, sHI, sHI + 1, base + k, base + k + 1)
        A('s_or_b64 s[%d:%d], s[%d:%d], s[%d:%d]', sPADL, sPADL + 1, sPADL, sPADL + 1, base + k, base + k + 1)
    A('s_and_b32 s%d, s%d, s%d', sHI, sHI, sHI + 1)
    A('s_or_b32 s%d, s%d, s%d', sPADL, sPADL, sPADL + 1)
    A('s_xor_b32 s%d, s%d, s%d', sHI, sHI, sTAG)
    A('s_xor_b32 s%d, s%d, s%d', sPADL, sPADL, sTAG)
    spin_guard(A, done)
    A('s_or_b32 s%d, s%d, s%d', sHI, sHI, sPADL)
    A('s_cbranch_scc1 %s', lo)
    A('%s:', done)


def two_ways(A, fn, local):
    if local and FAST:
        ent, back = cold_block(A, lambda B, back: fn(B, ' sc1'))
        A('s_cmp_eq_u32 s%d, 0', sFASTF)
        A('s_cbranch_scc1 %s', ent)
        fn(A, '')
        A('%s:', back)
    else:
        fn(A, ' sc1')


def pub_stores(A, stores, local):
    def fn(B, bits):
        for st in stores:
            B(st % bits)
    two_ways(A, fn, local)


def pub_flag(A, sflag, local, drain=True):
    if drain:
        A('s_waitcnt vmcnt(0)')
    A('s_mov_b64 exec, 1')
    two_ways(A, lambda B, bits: B('buffer_store_dword v%d, v%d, s[%d:%d], s%d offen%s', vTAG, vO, SWS, SWS + 3, sflag,
                                  bits), local)
    A('s_mov_b64 exec, -1')


def st4(reg, soff, off):
    return 'buffer_store_dwordx4 %s, v%d, s[%d:%d], s%d offen offset:%d%%s' % (v(reg, 4), vO, SWS, SWS + 3, soff, off)


def hilo_c(A, src, f, tmp):
    A('v_cvt_pk_bf16_f32 v%d, v%d, v%d', f, src, src)
    A('v_and_b32 v%d, 0xffff0000, v%d', tmp, f)
    A('v_sub_f32 v%d, v%d, v%d', tmp, src, tmp)
    A('v_cvt_pk_bf16_f32 v%d, v%d, 0', f + 1, tmp)


def hilo_m(A, src, f, tmp):
    A('v_cvt_pk_bf16_f32 v%d, v%d, 0', f + 1, src)
    A('v_lshlrev_b32 v%d, 16, v%d', tmp, f + 1)
    A('v_sub_f32 v%d, v%d, v%d', tmp, src, tmp)
    A('v_cvt_pk_bf16_f32 v%d, v%d, v%d', f, src, tmp)


def ln_finish(A, t0, t1, negmean, rstd):
    A('v_mul_f32 v%d, 0x%x, v%d', t0, 0x3b124925, t0)
    A('v_mov_b32 v%d, v%d', t1, t0)
    A('v_permlane32_swap_b32 v%d, v%d', t0, t1)
    A('v_fma_f32 v%d, -v%d, v%d, v%d', t1, t0, t0, t1)
    A('v_max_f32 v%d, 0, v%d', t1, t1)
    A('v_add_f32 v%d, 0x%x, v%d', t1, 0x3727c5ac, t1)
    A('v_rsq_f32 v%d, v%d', rstd, t1)
    A('v_sub_f32 v%d, 0, v%d', negmean, t0)


def softmax_pm(A, p, sc, e, t):
    A('v_cndmask_b32 v%d, v%d, v%d, s[%d:%d]', p + 12, p + 12, p + 14, sHI, sHI + 1)
    A('v_cndmask_b32 v%d, v%d, v%d, s[%d:%d]', p + 13, p + 13, p + 15, sHI, sHI + 1)
    mx, mn = t, t + 1
    A('v_max3_f32 v%d, v%d, v%d, v%d', mx, p, p + 1, p + 2)
    A('v_min3_f32 v%d, v%d, v%d, v%d', mn, p, p + 1, p + 2)
    for i in range(3, 13, 2):
        A('v_max3_f32 v%d, v%d, v%d, v%d', mx, mx, p + i, p + i + 1)
        A('v_min3_f32 v%d, v%d, v%d, v%d', mn, mn, p + i, p + i + 1)
    A('v_max_f32 v%d, v%d, v%d', mx, mx, p + 13)
    A('v_min_f32 v%d, v%d, v%d', mn, mn, p + 13)
    A('v_sub_f32 v%d, 0, v%d', mn, mn)
    A('v_permlane32_swap_b32 v%d, v%d', mx, mn)
    A('v_max_f32 v%d, v%d, v%d', mx, mx, mn)
    A('v_mul_f32 v%d, v%d, v%d', mx, mx, sc)
    A('v_mov_b32 v%d, v%d', mn, mx)
    A('v_permlane32_swap_b32 v%d, v%d', mx, mn)
    for i in range(14):
        A('v_fma_f32 v%d, -v%d, v%d, -v%d', e + i, p + i, sc, mn)
        A('v_fma_f32 v%d, v%d, v%d, -v%d', p + i, p + i, sc, mx)
        if i:
            A('v_exp_f32 v%d, v%d', e + i - 1, e + i - 1)
            A('v_exp_f32 v%d, v%d', p + i - 1, p + i - 1)
    A('v_exp_f32 v%d, v%d', e + 13, e + 13)
    A('v_exp_f32 v%d, v%d', p + 13, p + 13)
    if PKSM:
        for base in (p, e):
            A('v_pk_add_f32 v[%d:%d], v[%d:%d], v[%d:%d]', base + 14, base + 15, base, base + 1, base + 2, base + 3)
        for i in range(4, 14, 2):
            for base in (p, e):
                A('v_pk_add_f32 v[%d:%d], v[%d:%d], v[%d:%d]', base + 14, base + 15, base + 14, base + 15, base + i,
                  base + i + 1)
    else:
        for base in (p, e):
            A('v_add_f32 v%d, v%d, v%d', base + 14, base, base + 2)
            A('v_add_f32 v%d, v%d, v%d', base + 15, base + 1, base + 3)
        for i in range(4, 14):
            for base in (p, e):
                A('v_add_f32 v%d, v%d, v%d', base + 14 + (i & 1), base + 14 + (i & 1), base + i)
    sp, sn = t + 2, t
    A('v_add_f32 v%d, v%d, v%d', sp, p + 14, p + 15)
    A('v_add_f32 v%d, v%d, v%d', sn, e + 14, e + 15)
    A('v_permlane32_swap_b32 v%d, v%d', sp, sn)
    A('v_add_f32 v%d, v%d, v%d', sp, sp, sn)
    A('v_rcp_f32 v%d, v%d', sp, sp)
    A('v_mov_b32 v%d, v%d', sn, sp)
    A('v_permlane32_swap_b32 v%d, v%d', sp, sn)
    for i in range(0, 14, 2):
        for base, r in ((p, sp), (e, sn)):
            if PKSM:
                A('v_pk_mul_f32 v[%d:%d], v[%d:%d], v[%d:%d] op_sel_hi:[1,0]', base + i, base + i + 1, base + i,
                  base + i + 1, r, r + 1)
            else:
                A('v_mul_f32 v%d, v%d, v%d', base + i, base + i, r)
                A('v_mul_f32 v%d, v%d, v%d', base + i + 1, base + i + 1, r)
    for i, (a0, a1) in enumerate(((0, 1), (2, 3), (4, 5), (6, None), (7, 8), (9, 10), (11, 12), (13, None))):
        for base in (p, e):
            A('v_cvt_pk_bf16_f32 v%d, v%d, %s', base + i, base + a0, '0' if a1 is None else 'v%d' % (base + a1))


PKSM = E('PKSM', 1)


def cvt8(A, dst, src, n=8):
    for i in range(n):
        A('v_cvt_pk_bf16_f32 v%d, v%d, v%d', dst + i, src + 2 * i, src + 2 * i + 1)


def mfma(A, d, a_, b_, first=False):
    A('%s %s, %s, %s, %s', MFMA, v(d, 16), v(a_, 4), v(b_, 4), '0' if first else v(d, 16))


def merge(main, blocks, start, stop):
    idx = [i for i, l in enumerate(main) if l.strip().startswith('v_mfma')][start:stop]
    out, k = [], 0
    n = len(idx)
    pos = {i: j for j, i in enumerate(idx)}
    for i, l in enumerate(main):
        out.append(l)
        if i in pos:
            upto = (len(blocks) * (pos[i] + 1) + n - 1) // n
            for b in blocks[k:upto]:
                out += b
            k = max(k, upto)
    assert k >= len(blocks)
    return out


def sub(A):
    return Asm()


L_H = (L_A, L_A + 28672, 0, 65536)
W2S = [32768, 40960] + [L_A + k * 8192 for k in range(7)] + [k * 8192 for k in range(4)] + [
    65536 + k * 8192 for k in range(4)]
W2GATE = {2: 9, 5: 10, 9: 11, 13: 12}


def w2_slot(n):
    return W2S[n % 17]


def w1_slot(c):
    return B16[c % 5]


class LdsQ:
    def __init__(self, A):
        self.A, self.q = A, []
        self.peeked = False

    def op(self, tag, fmt, *a):
        self.A(fmt, *a)
        self.q.append(tag)

    def need(self, tag):
        idx = [i for i, x in enumerate(self.q) if x == tag]
        if not idx:
            return None
        n = len(self.q) - 1 - idx[-1]
        self.q = self.q[idx[-1] + 1:]
        return min(n, 15)

    def wait(self, tag, vm=None):
        n = self.need(tag)
        if n is None and vm is None:
            return
        self.A('s_waitcnt' + ('' if vm is None else ' vmcnt(%d)' % vm) + ('' if n is None else ' lgkmcnt(%d)' % n))

    def stage(self, n):
        set_stage(self.A, n)
        self.q.append('st')

    def peek(self, w):
        self.op('pk', 'ds_read_b32 v%d, v%d offset:%d', vPK_, vMI, M_PW + 4 * w)
        self.peeked = True

    def take(self, w):
        if not self.peeked:
            return
        self.peeked = False
        self.wait('pk')
        self.A('v_readfirstlane_b32 s%d, v%d', CACHE[w], vPK_)


def tag_compute(A):
    A('s_waitcnt lgkmcnt(0)')
    A('s_mul_i32 s%d, s%d, 0x%x', sTAG, sTAG, 1664525)
    A('s_add_u32 s%d, s%d, 0x%x', sTAG, sTAG, 1013904223)
    A('v_mov_b32 v%d, s%d', vTAG, sTAG)


def fast_check(A):
    A('s_getreg_b32 s%d, hwreg(HW_REG_XCC_ID)', sC)
    A('s_and_b32 s%d, s%d, 15', sC, sC)
    A('s_add_u32 s%d, s%d, s%d', sC, sC, sTAG)
    A('s_lshl_b32 s%d, s%d, 7', sT, sXCD)
    A('s_add_u32 s%d, s%d, %d', sT, sT, FREG)
    A('v_and_b32 v%d, 31, v%d', vT1, vL)
    A('v_lshlrev_b32 v%d, 2, v%d', vT1, vT1)
    A('buffer_load_dword v%d, v%d, s[%d:%d], s%d offen sc1', vT0, vT1, SWS, SWS + 3, sT)
    A('s_waitcnt vmcnt(0)')
    A('v_cmp_ne_u32 vcc, s%d, v%d', sC, vT0)
    A('s_cmp_eq_u64 vcc, 0')
    A('s_cselect_b32 s%d, 1, 0', sFASTF)


class Stream:
    def __init__(self, A, wave, depth, first=0):
        self.A, self.wave, self.depth = A, wave, depth
        self.items = []
        self.issued = 0
        self.known = 0
        self.n = first

    def wait_to(self, left):
        if self.issued - left <= self.known:
            return
        self.A('s_waitcnt vmcnt(%d)', left)
        self.known = self.issued - left
        last = None
        while self.items and self.items[0][1] <= self.known:
            last = self.items.pop(0)[0]
        if last is not None:
            set_stage(self.A, last)

    def room(self, k):
        self.wait_to(max(self.depth - k, 0))
        self.issued += k

    def done(self, name, cnt=None):
        self.n += 1
        assert LP.setdefault(name, (self.wave, self.n)) == (self.wave, self.n), name
        self.items.append((self.n, self.issued))

    def drain(self):
        self.drain_to(0)

    def drain_to(self, keep):
        while len(self.items) > keep:
            self.wait_to(self.issued - self.items[0][1])

    def save(self):
        return (list(self.items), self.issued, self.known)

    def restore(self, s):
        self.items, self.issued, self.known = list(s[0]), s[1], s[2]

    def dma4(self, lds, voffs, srd_, step=None, bits=''):
        A = self.A
        A('s_mov_b32 m0, %d', lds)
        self.room(4)
        for u in range(4):
            A('buffer_load_dwordx4 v%d, s[%d:%d], s%d offen offset:%d%s lds', voffs[u], srd_, srd_ + 3, sT, u * 1024,
              bits)
        if step:
            A('s_add_u32 s%d, s%d, %d', sT, sT, step)


def reg4(St, regs, voffs, srd_, step=None):
    St.room(4)
    for u in range(4):
        St.A('buffer_load_dwordx4 %s, v%d, s[%d:%d], s%d offen offset:%d', v(regs[u], 4), voffs[u], srd_, srd_ + 3, sT,
             u * 1024)
    if step:
        St.A('s_add_u32 s%d, s%d, %d', sT, sT, step)


def spill(St, name, regs, lds):
    A = St.A
    assert not St.items
    A('v_add_u32 v%d, %d, v%d', vT1, lds, vO)
    for j, r in enumerate(regs):
        A('ds_write_b128 v%d, %s offset:%d', vT1, v(r, 4), j * 1024)
    St.n += 1
    assert LP.setdefault(name, (St.wave, St.n)) == (St.wave, St.n), name
    set_stage(A, St.n)


def off128(A, vW128, vXo=None):
    A('v_lshrrev_b32 v%d, 3, v%d', vW128, vL)
    A('v_mul_u32_u24 v%d, 896, v%d', vW128, vW128)
    A('v_and_b32 v%d, 7, v%d', vT1, vL)
    if vXo is not None:
        A('v_lshl_add_u32 v%d, v%d, 4, v%d', vXo, vT1, vW128)
        spread4(A, vXo, 8 * 896)
    A('v_lshrrev_b32 v%d, 2, v%d', vT0, vL)
    A('v_and_b32 v%d, 4, v%d', vT0, vT0)
    A('v_xor_b32 v%d, v%d, v%d', vT1, vT1, vT0)
    A('v_lshl_add_u32 v%d, v%d, 4, v%d', vW128, vT1, vW128)
    spread4(A, vW128, 8 * 896)


def h_and_w2(A, wave, first):
    if wave != 7 and not W2REG:
        return
    St = Stream(A, wave, E('HDEPTH', 24), first)
    vW128 = 12
    off128(A, vW128)
    if wave == 7:
        A('s_lshl_b32 s%d, s%d, 17', sB, sTB3)
        A('s_add_u32 s%d, s%d, %d', sB, sB, WS_HB)
        A('s_lshl_b32 s%d, s%d, 8', sT2, sTB3)
        A('s_add_u32 s%d, s%d, %d', sT2, sT2, F3)
        A('v_lshlrev_b32 v%d, 2, v%d', vT1, vL)
        wait_stage(A, C0 + 7, sleep=1)
        stamp(A)
        lo, done = A.label('P'), A.label('PD')
        A('s_mov_b32 exec_lo, 0x3fff3fff')
        A('s_mov_b32 exec_hi, 0x3fff3fff')
        A('%s:', lo)
        A('buffer_load_dword v%d, v%d, s[%d:%d], s%d offen sc1', vT0, vT1, SWS, SWS + 3, sT2)
        A('s_waitcnt vmcnt(0)')
        A('v_cmp_ne_u32 vcc, s%d, v%d', sTAG, vT0)
        spin_guard(A, done)
        A('s_cbranch_vccnz %s', lo)
        A('%s:', done)
        A('s_mov_b64 exec, -1')
        stamp(A)
        for gi in range(4):
            if gi == 2:
                wait_stage(A, C0 + 8)
            A('s_add_u32 s%d, s%d, %d', sT, sB, gi * 32768 + 4096)
            for u in range(7):
                St.dma4(L_H[gi] + u * 4096, [vO] * 4, SWS, 4096, LDB)
                if u == 2:
                    A('s_add_u32 s%d, s%d, %d', sT, sB, gi * 32768)
                    St.dma4(L_SC0 + gi * 4096, [vO] * 4, SWS, 4 * 4096, ' sc1')
                if u % 2 == 0:
                    St.done(('h', gi, u // 2))
                if gi == 0 and u == E('HFIRST', 2):
                    St.drain_to(1)
        St.drain_to(E('HKEEP', 1))
    else:
        wait_stage(A, C0 + 8, sleep=2)
        wait_lp(A, ('h', E('W2AFTER', 3), E('W2AFTERQ', 1)), 1)
    stamp(A)
    w2_stage(St, wave)
    St.drain()
    St.wait_to(0)
    stamp(A)
    w2_spill(St, wave)


W2REG = E('W2REG', 0)
W2OWN = {7: (16, 17, 24, 25), 4: (18, 19, 26, 27), 5: (20, 21), 6: (22, 23)} if W2REG else {7: (), 4: (), 5: (), 6: ()}


def w2_stage(St, wave):
    A = St.A
    vW128 = 12
    A('s_lshl_b32 s%d, s%d, 7', sB, sNB)
    for j, n in enumerate(W2OWN[wave]):
        c, kh = n >> 1, n & 1
        A('s_add_u32 s%d, s%d, %d', sT, sB, (kh * 896 + c * 64) * 896)
        for u in range(2):
            r0 = 40 + 32 * j + 16 * u
            reg4(St, [r0, r0 + 4, r0 + 8, r0 + 12], [vW128 + k for k in range(4)], SW2, 32 * 896 if u < 1 else None)


def w2_spill(St, wave):
    A = St.A
    HELP['hot'] = True
    for j, n in enumerate(W2OWN[wave]):
        m = n - 17
        if n == 16:
            wait_stage(A, C0 + 12, sleep=2)
        else:
            wait_stage(A, C0 + 13 + (m >> 1), (0, 1) if (m & 1) == 0 else (2, 3), sleep=2 if j == 0 else 1)
        spill(St, ('w2', n), [40 + 32 * j + 4 * k for k in range(8)], w2_slot(n))
    HELP['hot'] = False


def spread4(A, base, step):
    for u in range(1, 4):
        A('v_add_u32 v%d, %d, v%d', base + u, u * (step - 1024), base)


def wtr_base(A):
    A('v_lshrrev_b32 v%d, 5, v%d', vT1, vL)
    A('v_bfe_u32 v%d, v%d, 2, 2', vT0, vL)
    A('v_lshl_add_u32 v%d, v%d, 3, v%d', vT0, vT1, vT0)
    A('v_lshlrev_b32 v%d, 6, v%d', vT0, vT0)
    A('v_bfe_u32 v%d, v%d, 4, 1', vTT, vL)
    A('v_lshl_add_u32 v%d, v%d, 5, v%d', vT0, vTT, vT0)
    A('v_and_b32 v%d, 3, v%d', vTT, vL)
    A('v_lshl_add_u32 v%d, v%d, 3, v%d', vT0, vTT, vT0)
    for pi in range(3):
        A('v_add_u32 v%d, %d, v%d', vWA + pi, L_WP[pi], vT0)
    A('v_lshlrev_b32 v%d, 3, v%d', vCA, vL)
    A('v_add_u32 v%d, %d, v%d', vCA, L_CF, vCA)


def sel_frags(A, vID):
    A('v_lshrrev_b32 v%d, 5, v%d', vT1, vL)
    A('v_and_b32 v%d, 31, v%d', vT0, vL)
    A('v_lshlrev_b32 v%d, 2, v%d', vTT, vT1)
    A('v_sub_u32 v%d, v%d, v%d', vT0, vT0, vTT)
    A('v_mov_b32 v%d, 0x3f80', vTT)
    A('v_mov_b32 v%d, 0x3f800000', vTT + 1)
    for sidx in range(2):
        for rr in range(4):
            m = 16 * sidx + 8 * (rr >> 1) + 2 * (rr & 1)
            A('v_cmp_eq_u32 vcc, %d, v%d', m, vT0)
            A('v_cndmask_b32 v%d, 0, v%d, vcc', vID + 4 * sidx + rr, vTT)
            A('v_cmp_eq_u32 vcc, %d, v%d', m + 1, vT0)
            A('v_cndmask_b32 v%d, v%d, v%d, vcc', vID + 4 * sidx + rr, vID + 4 * sidx + rr, vTT + 1)


def read_w(A, pi, i, buf, sleep=0):
    wait_lp(A, ('W', pi, i), sleep)
    for q in range(4):
        for z in range(2):
            A('ds_read_b64_tr_b16 v[%d:%d], v%d offset:%d', buf + 4 * q + 2 * z, buf + 4 * q + 2 * z + 1,
              vWA + pi, i * 4096 + q * 1024 + z * 256)


def colsum(A, spi):
    vCS, vB_, buf = 40, 44, 48
    A('v_mov_b32 v%d, 0', vCS)
    A('v_mov_b32 v%d, 0', vCS + 1)
    A('s_cmp_eq_u32 s%d, 1', spi)
    A('s_cselect_b32 s%d, 0, %d', sT, L_WP[2])
    A('s_cmp_eq_u32 s%d, 0', spi)
    A('s_cselect_b32 s%d, %d, s%d', sT, L_WP[0], sT)
    assert L_WP[1] == 0
    A('v_add_u32 v%d, s%d, v%d', vB_, sT, vWA + 1)
    A('s_mul_i32 s%d, s%d, 7', sC, spi)
    A('s_add_u32 s%d, s%d, 7', sT2, sC)
    top, lo, ok = A.label('CS'), A.label('W'), A.label('WD')
    A('%s:', top)
    A('s_cmp_gt_u32 s%d, s%d', sPROG, sC)
    A('s_cbranch_scc1 %s', ok)
    prio(A, 0)
    A('%s:', lo)
    A('ds_read_b32 v%d, v%d offset:%d', vPW, vMI, M_PW + 16)
    A('s_waitcnt lgkmcnt(0)')
    A('v_readfirstlane_b32 s%d, v%d', sPROG, vPW)
    spin_guard(A, ok)
    A('s_cmp_gt_u32 s%d, s%d', sPROG, sC)
    A('s_cbranch_scc0 %s', lo)
    prio(A, 1)
    A('%s:', ok)
    for q in range(4):
        for z in range(2):
            A('ds_read_b64_tr_b16 v[%d:%d], v%d offset:%d', buf + 4 * q + 2 * z, buf + 4 * q + 2 * z + 1, vB_,
              q * 1024 + z * 256)
    A('v_add_u32 v%d, 4096, v%d', vB_, vB_)
    A('s_add_u32 s%d, s%d, 1', sC, sC)
    for q in range(4):
        A('s_waitcnt lgkmcnt(%d)', 6 - 2 * q)
        for r in range(4):
            A('v_dot2c_f32_bf16 v%d, s%d, v%d', vCS + (r & 1), sONES, buf + 4 * q + r)
    A('s_cmp_lt_u32 s%d, s%d', sC, sT2)
    A('s_cbranch_scc1 %s', top)
    A('v_add_f32 v%d, v%d, v%d', vCS, vCS, vCS + 1)
    hilo_c(A, vCS, vCS + 2, vT0)
    A('s_lshl_b32 s%d, s%d, 9', sT, spi)
    A('v_add_u32 v%d, s%d, v%d', vB_, sT, vCA)
    A('ds_write_b64 v%d, v[%d:%d]', vB_, vCS + 2, vCS + 3)


def rest_srds(A):
    A('s_add_u32 s82, s80, %d', FEP)
    A('s_addc_u32 s83, s81, 0')
    A('s_load_dword s%d, s[82:83], 0', sTAG)
    srd(A, SP, 68, H * DH * DH * 2)
    srd(A, SWO, 70, D * D * 2)
    srd(A, SW1, 74, D * F * 2)
    srd(A, SW2, 76, D * F * 2)
    srd(A, SOUT, 78, S * D * 2)
    srd(A, SWS, 80, WS_SIZE)


def rot_next(A):
    A('s_add_u32 s%d, s%d, 1', sC, sC)
    A('s_cmp_eq_u32 s%d, 7', sC)
    A('s_cselect_b32 s%d, 0, s%d', sC, sC)


def sig_dyn(A, sval):
    A('v_mov_b32 v%d, s%d', vT0, sval)
    A('ds_write_b32 v%d, v%d', vMY, vT0)


def early_offsets(A):
    A('v_lshrrev_b32 v%d, 3, v%d', vT0, vL)
    A('v_mul_u32_u24 v%d, 896, v%d', vT0, vT0)
    A('v_lshrrev_b32 v%d, 4, v%d', vT1, vL)
    A('v_and_b32 v%d, 7, v%d', vXD, vL)
    A('v_xor_b32 v%d, v%d, v%d', vXD, vXD, vT1)
    A('v_xor_b32 v%d, 4, v%d', vXD + 1, vXD)
    A('v_lshl_add_u32 v%d, v%d, 4, v%d', vXD, vXD, vT0)
    A('v_lshl_add_u32 v%d, v%d, 4, v%d', vXD + 1, vXD + 1, vT0)
    A('v_add_u32 v%d, %d, v%d', vXD + 1, 8 * 896 - 1024, vXD + 1)
    A('v_add_u32 v%d, %d, v%d', vXD + 2, 2 * (8 * 896 - 1024), vXD)
    A('v_add_u32 v%d, %d, v%d', vXD + 3, 2 * (8 * 896 - 1024), vXD + 1)
    vW = 40
    A('v_lshrrev_b32 v%d, 2, v%d', vW, vL)
    A('v_mul_u32_u24 v%d, 2688, v%d', vW, vW)
    A('v_and_b32 v%d, 3, v%d', vT1, vL)
    A('v_lshl_add_u32 v%d, v%d, 4, v%d', vW, vT1, vW)
    A('s_mul_i32 s%d, s%d, 56', sT, sH)
    A('s_and_b32 s%d, s%d, 0xfffffff0', sT, sT)
    A('v_add_u32 v%d, s%d, v%d', vW, sT, vW)
    spread4(A, vW, 16 * 2688)
    A('s_mul_i32 s%d, s%d, %d', sXB, sTB, 128 * 896)
    A('s_mov_b32 s%d, s%d', sC, sC0)


def early_x(A):
    depth = E('XDEPTH', 16)
    wsig = ((depth - 4) // 4) % 4
    lag = (depth - 4 - 4 * wsig) // 16
    A('s_mov_b32 s%d, %d', sG, -lag)
    A('s_mov_b32 m0, %d', L_X)
    top = A.label('XL')
    A('%s:', top)
    A('s_lshl_b32 s%d, s%d, 7', sT, sC)
    A('s_add_u32 s%d, s%d, s%d', sT, sT, sXB)
    for w in range(4):
        A('s_waitcnt vmcnt(%d)', depth - 4)
        if w == wsig:
            A('s_max_i32 s%d, s%d, 0', sT2, sG)
            sig_dyn(A, sT2)
        for u in range(4):
            A('buffer_load_dwordx4 v%d, s[%d:%d], s%d offen offset:%d lds', vXD + u, SX, SX + 3, sT, u * 1024)
        A('s_add_u32 m0, m0, 4096')
        if w < 3:
            A('s_add_u32 s%d, s%d, %d', sT, sT, 32 * 896)
    rot_next(A)
    A('s_add_u32 s%d, s%d, 1', sG, sG)
    A('s_cmp_lt_i32 s%d, %d', sG, 7 - lag)
    A('s_cbranch_scc1 %s', top)
    stamp(A)
    for n in range(7 - lag, 8):
        A('s_waitcnt vmcnt(%d)', 16 * (7 - n))
        set_stage(A, n)


def early_w(A):
    vW = 40

    def part_loop(pi, depth, floor):
        lag = (depth - 4) // 4
        stamp(A)
        A('s_mov_b32 s%d, s%d', sC, sC0)
        A('s_mov_b32 s%d, %d', sG, 7 * pi - lag)
        A('s_mov_b32 m0, %d', L_WP[pi])
        top = A.label('WL')
        A('%s:', top)
        A('s_mul_i32 s%d, s%d, %d', sT, sC, 64 * 2688)
        A('s_add_u32 s%d, s%d, %d', sT, sT, (1, 2, 0)[pi] * 896)
        A('s_max_i32 s%d, s%d, %d', sT2, sG, floor)
        A('s_waitcnt vmcnt(%d)', depth - 4)
        sig_dyn(A, sT2)
        for u in range(4):
            A('buffer_load_dwordx4 v%d, s[%d:%d], s%d offen offset:%d lds', vW + u, SW, SW + 3, sT, u * 1024)
        A('s_add_u32 m0, m0, 4096')
        rot_next(A)
        A('s_add_u32 s%d, s%d, 1', sG, sG)
        A('s_cmp_lt_i32 s%d, %d', sG, 7 * pi + 7 - lag)
        A('s_cbranch_scc1 %s', top)
        return lag
    lag = part_loop(0, E('WDEPTH', 8), 0)
    for n in range(7 - lag, 8):
        A('s_waitcnt vmcnt(%d)', 4 * (7 - n))
        set_stage(A, n)
    wait_stage(A, 1)
    if E('XG2', 4) >= 0:
        wait_lp(A, ('x', E('XG2', 4)))
    part_loop(1, E('WDEPTH2', 24), 7)
    wait_stage(A, 2)
    part_loop(2, E('WDEPTH2', 24), 7)


def gen_h0(A):
    St = Stream(A, 4, E('WDEPTH2', 24), 21)
    St.issued = 84
    St.known = 84 - St.depth
    St.items = [(n + 1, 4 * n + 4) for n in range(21) if 4 * n + 4 > St.known]
    vW, vW128, vXo, vW256 = 40, 12, 16, 20
    q4 = lambda b: [b, b + 1, b + 2, b + 3]
    rest_srds(A)
    lend = A.label('LEND')
    act = A.label('ACT')
    A('s_cmp_lt_u32 s%d, 28', sI)
    A('s_cbranch_scc1 %s', act)
    keep = St.save()
    St.drain()
    St.restore(keep)
    if E('TOUCH', 1):
        def touch(srd_, base, per_xcd, n):
            A('s_mul_i32 s%d, s%d, %d', sT, sXCD, per_xcd)
            A('s_sub_u32 s%d, s%d, 28', sT2, sI)
            A('s_mul_i32 s%d, s%d, %d', sT2, sT2, n * 8192)
            A('s_add_u32 s%d, s%d, s%d', sT, sT, sT2)
            A('s_add_u32 s%d, s%d, %d', sT, sT, base)
            A('s_mov_b32 s%d, %d', sC, n)
            lo = A.label('T')
            A('%s:', lo)
            A('buffer_load_dword v%d, v%d, s[%d:%d], s%d offen', vW + 1, vW, srd_, srd_ + 3, sT)
            A('s_add_u32 s%d, s%d, 8192', sT, sT)
            A('s_waitcnt vmcnt(%d)', E('TDEPTH', 6))
            A('s_sub_u32 s%d, s%d, 1', sC, sC)
            A('s_cmp_lg_u32 s%d, 0', sC)
            A('s_cbranch_scc1 %s', lo)
        A('v_lshlrev_b32 v%d, 7, v%d', vW, vL)
        wait_stage(A, C0 + 5, sleep=2)
        if HLATE and not WTO:
            touch(SWS, WS_HB, 262144, 8)
        if not WT1:
            touch(SWS, WS_H1B, 8 * 112 * 1024, 28)
        if E('W2WARM', 1):
            touch(SW2, 0, 0, 49)
    A('s_branch %s', lend)
    A('%s:', act)
    off128(A, vW128, vXo)
    A('v_lshrrev_b32 v%d, 4, v%d', vW256, vL)
    A('v_mul_u32_u24 v%d, 3584, v%d', vW256, vW256)
    A('v_and_b32 v%d, 15, v%d', vT1, vL)
    A('v_lshrrev_b32 v%d, 2, v%d', vT0, vL)
    A('v_and_b32 v%d, 12, v%d', vT0, vT0)
    A('v_xor_b32 v%d, v%d, v%d', vT1, vT1, vT0)
    A('v_lshl_add_u32 v%d, v%d, 4, v%d', vW256, vT1, vW256)
    spread4(A, vW256, 4 * 3584)
    A('s_lshl_b32 s%d, s%d, 7', sB, sNB)

    def w1_chunk(c):
        A('s_lshl_b32 s%d, s%d, 8', sT, sFB)
        A('s_add_u32 s%d, s%d, %d', sT, sT, c * 64 * 3584)
        for u in range(4):
            St.dma4(w1_slot(c) + u * 4096, q4(vW256), SW1, 16 * 3584 if u < 3 else None)
        St.done(('w1', c), 16)

    def w2_item(n):
        c, kh = n >> 1, n & 1
        A('s_add_u32 s%d, s%d, %d', sT, sB, (kh * 896 + c * 64) * 896)
        for u in range(2):
            St.dma4(w2_slot(n) + u * 4096, q4(vW128), SW2, 32 * 896 if u < 1 else None)
        St.done(('w2', n), 8)

    St.drain_to(3)
    wait_stage(A, 3)
    wait_word(A, 5, 1)
    stamp(A)
    A('s_mov_b32 s%d, s%d', sT, sB)
    for c in range(7):
        for u in range(2):
            St.dma4(L_A + c * 8192 + u * 4096, q4(vW128), SWO, 32 * 896)
        if c == 2:
            St.depth = E('LDEPTH', 32)
    St.done('wo')
    SR = [24, 28] + list(range(40, 256, 4))
    A('s_mul_i32 s%d, s%d, %d', sT, sTQ, 64 * 896)
    A('s_add_u32 s%d, s%d, s%d', sT, sT, sB)
    for u in range(2):
        reg4(St, SR[4 * u:4 * u + 4], q4(vXo), SX, 32 * 896)
    A('s_lshl_b32 s%d, s%d, 8', sT, sFB)
    A('s_add_u32 s%d, s%d, %d', sT, sT, 4 * 64 * 3584)
    for u in range(12):
        reg4(St, SR[8 + 4 * u:12 + 4 * u], q4(vW256), SW1, 16 * 3584)
    stamp(A)
    wait_stage(A, 2, (5, 6))
    stamp(A)
    for c in range(4):
        w1_chunk(c)
    St.drain()
    stamp(A)
    wait_stage(A, C0 + 3)
    wait_word(A, 7, 8)
    spill(St, 'xres', SR[0:8], L_XRES)
    spill(St, ('w1', 4), SR[8:24], w1_slot(4))
    wait_stage(A, C0 + 4)
    spill(St, ('w1', 5), SR[24:40], w1_slot(5))
    spill(St, ('w1', 6), SR[40:56], w1_slot(6))
    stamp(A)
    wait_stage(A, C0 + 8, sleep=1)
    wait_lp(A, ('h', E('W2AFTER', 3), E('W2AFTERQ', 1)), 1)
    stamp(A)
    St.depth = E('W2DEPTH', 24)
    for n in range(16):
        if n == E('W4STAGE', 9):
            w2_stage(St, 4)
        if n in W2GATE:
            St.drain()
            wait_stage(A, C0 + W2GATE[n])
        w2_item(n)
    if not W2REG:
        w2_item(16)
        St.depth = E('W2DEPTH3', 32)
        for n in range(17, 28):
            m = n - 17
            wait_stage(A, C0 + 13 + (m >> 1), (0, 1) if (m & 1) == 0 else (2, 3))
            w2_item(n)
    St.drain()
    stamp(A)
    w2_spill(St, 4)
    A('%s:', lend)
    A('s_waitcnt lgkmcnt(0)')
    stamp_flush(A)
    A('s_endpgm')


def gen_h1(A):
    stamp(A)
    rest_srds(A)
    wtr_base(A)
    tag_compute(A)
    def extras():
        if WARM:
            for srd_, size in ((SWO, D * D * 2), (SW1, D * F * 2), (SW2, D * F * 2)):
                A('s_mul_i32 s%d, s2, %d', sT, size // 256)
                A('v_lshlrev_b32 v%d, 7, v%d', vT1, vL)
                A('s_mov_b64 exec, 0x%x', (1 << ((size // 256 + 127) // 128)) - 1) if size // 256 < 4096 else None
                if size // 256 >= 4096:
                    A('s_mov_b32 exec_hi, 0x%x', (1 << ((size // 256 + 127) // 128 - 32)) - 1)
                A('buffer_load_dword v64, v%d, s[%d:%d], s%d offen', vT1, srd_, srd_ + 3, sT)
                A('s_mov_b64 exec, -1')
        if E('TOUCH', 1) and not WTO:
            A('s_lshl_b32 s%d, s%d, 18', sT, sXCD)
            A('s_lshl_b32 s%d, s%d, 13', sT2, sI)
            A('s_add_u32 s%d, s%d, s%d', sT, sT, sT2)
            A('v_lshlrev_b32 v%d, 7, v%d', vT1, vL)
            for base in ([WS_OB] if MAP == 0 else []) + ([] if HLATE else [WS_HB]):
                A('s_add_u32 s%d, s%d, %d', sT2, sT, base)
                A('buffer_load_dword v64, v%d, s[%d:%d], s%d offen', vT1, SWS, SWS + 3, sT2)

    if TOUCHAT == 1:
        wait_lp(A, ('W', 1, 6), 1)
    if TOUCHAT <= 1:
        extras()
    if FAST:
        fast_check(A)
        A('v_mov_b32 v%d, s%d', vT0, sFASTF)
        A('ds_write_b32 v%d, v%d offset:%d', vMI, vT0, M_FAST)
    A('s_mov_b32 s%d, 2', sG)
    colsum(A, sG)
    set_stage(A, 8)
    if TOUCHAT == 2:
        extras()
    stamp(A)
    lend = A.label('LEND')
    A('s_cmp_ge_u32 s%d, 28', sI)
    A('s_cbranch_scc1 %s', lend)
    h_and_w2(A, 7, 8)
    A('%s:', lend)
    A('s_waitcnt lgkmcnt(0)')
    stamp_flush(A)
    A('s_endpgm')


def gen_h23(A):
    vID, vAF, vVF, vAC, vG = 64, 72, 104, 136, 72
    rest_srds(A)
    sTL = sKH
    A('s_sub_u32 s%d, s%d, 5', sTL, sWV)
    skip = A.label('NOST')
    A('s_cmp_eq_u32 s%d, 1', sTL)
    A('s_cbranch_scc1 %s', skip)
    A('s_mul_i32 s%d, s%d, 1568', sT, sH)
    A('s_mov_b32 m0, %d', L_PHI)
    A('buffer_load_dwordx4 v%d, s[%d:%d], s%d offen lds', vO, SP, SP + 3, sT)
    A('buffer_load_dwordx4 v%d, s[%d:%d], s%d offen offset:1024 lds', vO, SP, SP + 3, sT)
    if CODEPF:
        A('s_mul_i32 s%d, s%d, %d', sT, sI, 1280)
        A('v_lshlrev_b32 v%d, 7, v%d', vT1, vL)
        A('v_add_u32 v%d, s%d, v%d', vT1, sT, vT1)
        A('s_mov_b64 exec, 0x3ff')
        A('global_load_dword v72, v%d, s[%d:%d]', vT1, sPC, sPC + 1)
        A('s_mov_b64 exec, -1')
    A('%s:', skip)
    wtr_base(A)
    sel_frags(A, vID)
    tag_compute(A)
    if FAST:
        skip = A.label('NORG')
        A('s_cmp_eq_u32 s%d, 0', sTL)
        A('s_cbranch_scc1 %s', skip)
        A('s_getreg_b32 s%d, hwreg(HW_REG_XCC_ID)', sT2)
        A('s_and_b32 s%d, s%d, 15', sT2, sT2)
        A('s_add_u32 s%d, s%d, s%d', sT2, sT2, sTAG)
        A('v_mov_b32 v%d, s%d', vT0, sT2)
        A('s_lshl_b32 s%d, s%d, 7', sT, sXCD)
        A('s_lshl_b32 s%d, s%d, 2', sT2, sI)
        A('s_add_u32 s%d, s%d, s%d', sT, sT, sT2)
        A('s_add_u32 s%d, s%d, %d', sT, sT, FREG)
        A('s_mov_b64 exec, 1')
        A('buffer_store_dword v%d, v%d, s[%d:%d], s%d offen sc1', vT0, vO, SWS, SWS + 3, sT)
        A('s_mov_b64 exec, -1')
        A('%s:', skip)
    if MAP == 3:
        A('s_lshl_b32 s%d, s%d, 4', sT, sH)
        A('s_add_u32 s%d, s%d, s%d', sT, sT, sTB)
        A('s_lshl_b32 s%d, s%d, 12', sT, sT)
        A('s_lshl_b32 s%d, s%d, 11', sT2, sTL)
        A('s_add_u32 s%d, s%d, s%d', sT, sT, sT2)
        A('v_lshlrev_b32 v%d, 7, v%d', vT1, vL)
        A('s_mov_b64 exec, 0xffff')
        A('buffer_load_dword v73, v%d, s[%d:%d], s%d offen', vT1, SWS, SWS + 3, sT)
        A('s_mov_b64 exec, -1')
    colsum(A, sTL)
    A('s_waitcnt vmcnt(0)')
    set_stage(A, 1)
    stamp(A)
    A('s_lshl_b32 s%d, s%d, 11', sT2, sTL)
    A('v_add_u32 v%d, s%d, v%d', vTT, sT2, vO)
    A('v_add_u32 v%d, %d, v%d', vTT + 1, L_KVA, vTT)
    A('v_add_u32 v%d, %d, v%d', vTT + 2, L_KVV, vO)
    A('s_lshl_b32 s%d, s%d, 16', sXB, sH)
    A('s_add_u32 s%d, s%d, s%d', sXB, sXB, sT2)
    A('s_add_u32 s%d, s%d, %d', sXB, sXB, WS_KVP)
    A('s_lshl_b32 s%d, s%d, 12', sB, sTB)
    A('s_add_u32 s%d, s%d, s%d', sB, sB, sXB)
    A('s_lshl_b32 s%d, s%d, 1', sM0, sH)
    A('s_add_u32 s%d, s%d, s%d', sM0, sM0, sTL)
    FSH = E('F1SH', 8)
    A('s_lshl_b32 s%d, s%d, %d', sM0, sM0, 4 + FSH)
    A('s_add_u32 s%d, s%d, %d', sM0, sM0, F1)
    A('s_lshl_b32 s%d, s%d, 2', sFL, sTB)
    A('s_add_u32 s%d, s%d, s%d', sFL, sFL, sM0)
    A('s_lshl_b32 s%d, s%d, %d', sT, sTB, FSH)
    A('s_add_u32 s%d, s%d, s%d', sM0, sM0, sT)
    A('s_add_u32 s%d, s%d, s%d', sPC, SWS, sM0)
    A('s_addc_u32 s%d, s%d, 0', sPC + 1, SWS + 1)
    A('v_lshlrev_b32 v%d, %d, v%d', vXA, FSH, vL)
    A('v_lshlrev_b32 v%d, 2, v%d', vXA + 1, vL)
    if MAP == 3 and FAST:
        wait_lp(A, ('W', 1, 3), 2)
        fast_check(A)

    vTA = 152
    wait_stage(A, C0)
    for k in range(8):
        A('ds_read_b128 %s, v%d offset:%d', v(vVF + 4 * k, 4), vTT + 1, (k >> 1) * 4096 + (k & 1) * 1024)
    for k in range(8):
        A('s_waitcnt lgkmcnt(%d)', 7 - k)
        mfma(A, vTA + 16 * (k >> 1), vVF + 4 * k, vID + 4 * (k & 1), (k & 1) == 0)
    for w in range(4):
        cvt8(A, vAF + 8 * w, vTA + 16 * w)

    def v_reads():
        for k in range(8):
            A('ds_read_b128 %s, v%d offset:%d', v(vVF + 4 * k, 4), vTT + 2, (k >> 1) * 4096 + (k & 1) * 1024)
        return 8
    wait_stage(A, C0 + 1, body=v_reads)
    stamp(A)
    for k in range(8):
        A('s_waitcnt lgkmcnt(%d)', 7 - k)
        mfma(A, vAC, vAF + 4 * k, vVF + 4 * k, k == 0)
    set_stage(A, 2)
    cvt8(A, vAF, vAC)
    pub_stores(A, [st4(vAF + 4 * q, sB, q * 1024) for q in range(2)], MAP == 3)
    if not E('NODRAIN', 0):
        A('s_waitcnt vmcnt(0)')
    A('s_mov_b64 exec, 0xffff')
    two_ways(A, lambda B, bits: B('buffer_store_dword v%d, v%d, s[%d:%d], s%d offen%s', vTAG, vXA, SWS, SWS + 3, sFL,
                                  bits), MAP == 3)
    A('s_mov_b64 exec, -1')
    stamp(A)
    sRDY, sPND, sRET = sHI, sHI + 1, sPADL
    base = 68 if STAMPS else 72
    pol = A.label('POLL')
    B = sub(A)
    lo, out = B.label('P'), B.label('PD')
    B('%s:', pol)
    B('%s:', lo)
    if E('PSLEEP', 0):
        B('s_sleep %d', E('PSLEEP', 0))
    if E('SPOLL', 1):
        B('s_load_dwordx16 s[%d:%d], s[%d:%d], 0 glc', base, base + 15, sPC, sPC + 1)
        B('s_mov_b32 s%d, 0', sRDY)
        B('s_waitcnt lgkmcnt(0)')
        for p_ in range(15, -1, -1):
            B('s_cmp_eq_u32 s%d, s%d', base + p_, sTAG)
            B('s_addc_u32 s%d, s%d, s%d', sRDY, sRDY, sRDY)
    else:
        B('s_mov_b64 exec, 0xffff')
        B('buffer_load_dword v%d, v%d, s[%d:%d], s%d offen sc1', vT0, vXA + 1, SWS, SWS + 3, sM0)
        B('s_waitcnt vmcnt(0)')
        B('v_cmp_eq_u32 vcc, s%d, v%d', sTAG, vT0)
        B('s_mov_b64 exec, -1')
        B('s_mov_b32 s%d, vcc_lo', sRDY)
    B('s_sub_u32 s%d, s%d, 1', sSPIN, sSPIN)
    B('s_cselect_b32 s%d, -1, s%d', sRDY, sRDY)
    B('s_and_b32 s%d, s%d, s%d', sRDY, sRDY, sPND)
    B('s_cbranch_scc0 %s', lo)
    B('s_setpc_b64 s[%d:%d]', sRET, sRET + 1)
    COLD.extend(B.lines)
    A('s_mov_b32 s%d, 0', sRDY)
    A('s_mov_b32 s%d, 0xffff', sPND)
    vG = [72 + 4 * k for k in range(16)] + [152 + 4 * k for k in range(16)]
    GD = E('GLAG', 8)

    def gmm(k, issued):
        for q in range(2):
            A('s_waitcnt vmcnt(%d)', 2 * issued - (2 * k + q) - 1)
            mfma(A, vAC, vID + 4 * q, vG[2 * k + q], k == 0 and q == 0)
    for k in range(16):
        have = A.label('HV')
        A('s_cmp_lg_u32 s%d, 0', sRDY)
        A('s_cbranch_scc1 %s', have)
        A('s_call_b64 s[%d:%d], %s', sRET, sRET + 1, pol)
        A('%s:', have)
        A('s_ff1_i32_b32 s%d, s%d', sT, sRDY)
        A('s_bitset0_b32 s%d, s%d', sRDY, sT)
        A('s_bitset0_b32 s%d, s%d', sPND, sT)
        A('s_lshl_b32 s%d, s%d, 12', sT, sT)
        A('s_add_u32 s%d, s%d, s%d', sT, sT, sXB)
        for q in range(2):
            A('buffer_load_dwordx4 %s, v%d, s[%d:%d], s%d offen offset:%d sc1', v(vG[2 * k + q], 4), vO, SWS, SWS + 3,
              sT, q * 1024)
        if k == E('GST', 15):
            stamp(A)
        if k >= GD:
            gmm(k - GD, k + 1)
    for k in range(16 - GD, 16):
        gmm(k, 16)
    A('v_add_u32 v%d, %d, v%d', vTT, L_EX, vTT)
    cvt8(A, 72, vAC)
    for q in range(2):
        A('ds_write_b128 v%d, %s offset:%d', vTT, v(72 + 4 * q, 4), q * 1024)
    set_stage(A, 3)
    stamp(A)
    lend = A.label('LEND')
    A('s_cmp_ge_u32 s%d, 28', sI)
    A('s_cbranch_scc1 %s', lend)
    l5 = A.label('H5')
    A('s_cmp_eq_u32 s%d, 0', sTL)
    A('s_cbranch_scc1 %s', l5)
    A('s_mov_b32 s%d, 0', CACHE[5])
    A('v_lshlrev_b32 v%d, 2, v%d', vXA, vL)
    A('v_add_u32 v%d, %d, v%d', vTT + 2, L_EX, vO)
    wait_stage(A, C0 + 7, sleep=2)
    HELP['hot'] = True
    for gi in range(4):
        wait_lp(A, ('h', gi, 1), 1)
        base = L_SC0 + gi * 4096
        for q in range(7):
            A('ds_read2st64_b32 v[%d:%d], v%d offset0:%d offset1:%d', 72 + 2 * q, 73 + 2 * q, vXA,
              base // 256 + 2 * q, base // 256 + 2 * q + 1)
        A('s_waitcnt lgkmcnt(0)')
        for q in range(2, 14):
            A('v_add_f32 v%d, v%d, v%d', 72 + (q & 1), 72 + (q & 1), 72 + q)
        A('v_add_f32 v%d, v72, v73', vTT)
        ln_finish(A, vTT, vTT + 1, vNM, vRS)
        hilo_m(A, vNM, 88, vT0)
        A('v_mul_f32 v90, v%d, v%d', vTT + 1, vRS)
        A('v_mul_f32 v91, 0x%x, v%d', LOG2E ^ 0x80000000, vRS)
        A('ds_write_b128 v%d, v[88:91] offset:%d', vTT + 2, gi * 1024)
        set_stage(A, 4 + gi)
    HELP['hot'] = False
    n6 = _st['n']
    h_and_w2(A, 6, 7)
    _st['n'] = n6
    A('s_branch %s', lend)
    A('%s:', l5)
    h_and_w2(A, 5, 3)
    A('%s:', lend)
    A('s_waitcnt lgkmcnt(0)')
    stamp_flush(A)
    A('s_endpgm')


def refresh_routines(A):
    for w in (7, 4, 5, 6):
        if w in (5, 6) and not W2REG:
            continue
        A('REFRESH_%d:', w)
        A('ds_read_b32 v%d, v%d offset:%d', vPW, vMI, M_PW + 4 * w)
        A('s_waitcnt lgkmcnt(0)')
        A('v_readfirstlane_b32 s%d, v%d', CACHE[w], vPW)
        A('s_sub_u32 s%d, s%d, 1', sSPIN, sSPIN)
        A('s_cselect_b32 s%d, -1, s%d', CACHE[w], CACHE[w])
        A('s_setpc_b64 s[%d:%d]', sPC, sPC + 1)


def gen_compute(A):
    vPH, vID, vWF, vAC, vPK = 40, 48, 56, 88, 120
    vMF, vCF = 136, 140
    vE = vWF
    vAC2 = vAC + 16
    vX = vXR
    A('s_setprio %d', E('CPRIO', 1))
    rest_srds(A)
    A('s_lshl_b32 s%d, s%d, 12', sM0, sWV)
    A('v_and_b32 v%d, 31, v%d', vT0, vL)
    A('v_lshlrev_b32 v%d, 7, v%d', vTT, vT0)
    A('v_add_u32 v%d, s%d, v%d', vTT, sM0, vTT)
    A('v_bfe_u32 v%d, v%d, 1, 3', vT0, vL)
    A('v_lshrrev_b32 v%d, 5, v%d', vT1, vL)
    A('v_xor_b32 v%d, v%d, v%d', vT0, vT0, vT1)
    for q in range(4):
        A('v_xor_b32 v%d, %d, v%d', vXA + q, 2 * q, vT0)
        A('v_lshl_add_u32 v%d, v%d, 4, v%d', vXA + q, vXA + q, vTT)
    wtr_base(A)
    for r in (vSM, vSM + 1, vSQ, vSQ + 1, vMF + 2, vMF + 3, vCF + 2, vCF + 3):
        A('v_mov_b32 v%d, 0', r)
    A('s_mov_b32 s%d, 0', sHI)
    A('s_mov_b32 s%d, -1', sHI + 1)
    A('s_bitcmp1_b32 s%d, 0', sH)
    A('s_cselect_b32 s%d, 0xf, 0xf0000000', sPADL)
    A('s_mov_b32 s%d, s%d', sPADL + 1, sPADL)
    A('s_cselect_b32 s%d, -1, 0', sZA)
    A('s_mov_b32 s%d, 0', sZA + 1)
    A('s_mov_b32 s%d, 0', sZB)
    A('s_cselect_b32 s%d, 0, -1', sZB + 1)
    A('s_cselect_b64 s[%d:%d], -1, 0', sODD, sODD + 1)
    vPA = vRA
    A('v_bfe_u32 v%d, v%d, 2, 2', vT0, vL)
    A('v_lshrrev_b32 v%d, 5, v%d', vT1, vL)
    A('v_lshl_add_u32 v%d, v%d, 2, v%d', vT0, vT1, vT0)
    A('v_mul_u32_u24 v%d, 56, v%d', vT0, vT0)
    A('v_and_b32 v%d, 3, v%d', vT1, vL)
    A('v_bfe_u32 v%d, v%d, 4, 1', vTT, vL)
    A('v_lshl_add_u32 v%d, v%d, 2, v%d', vT1, vTT, vT1)
    A('v_min_u32 v%d, 6, v%d', vT1, vT1)
    A('v_lshl_add_u32 v%d, v%d, 3, v%d', vT0, vT1, vT0)
    A('s_and_b32 s%d, s%d, 1', sT, sH)
    A('s_mul_i32 s%d, s%d, 224', sT, sT)
    A('s_sub_u32 s%d, %d, s%d', sT, L_PHI, sT)
    A('v_add_u32 v%d, s%d, v%d', vPA, sT, vT0)
    tag_compute(A)

    def mm1(B, acc, i, q, swap):
        buf = vWF + 16 * (i & 1)
        xf, wf = vX + (4 * i + q) * 4, buf + 4 * q
        if swap:
            mfma(B, acc, xf, wf, i == 0 and q == 0)
        else:
            mfma(B, acc, wf, xf, i == 0 and q == 0)

    def rw2(Q, pi, i, q):
        buf = vWF + 16 * (i & 1)
        for z in range(2):
            Q.op(('w', i, q), 'ds_read_b64_tr_b16 v[%d:%d], v%d offset:%d', buf + 4 * q + 2 * z, buf + 4 * q + 2 * z + 1,
                 vWA + pi, i * 4096 + q * 1024 + z * 256)

    vXH = vXD
    for q in range(4):
        A('v_add_u32 v%d, 0x10000, v%d', vXH + q, vXA + q)
    Q = LdsQ(A)
    for i in range(7):
        if i:
            stamp(A, 'k')
        HELP['inline'] = i < E('KINL', 2)
        wait_lp(A, ('x', i))
        HELP['inline'] = False
        stamp(A, 'k')
        for q in range(4):
            Q.op(('x', i), 'ds_read_b128 %s, v%d offset:%d', v(vX + (4 * i + q) * 4, 4), (vXA if i < 4 else vXH) + q,
                 (i & 3) * 16384)
        if i in (1, 3):
            Q.stage((i + 1) // 2)
        wait_lp(A, ('W', 0, i))
        for q in range(4):
            if i > 0:
                Q.wait(('w', i - 1, q))
                mm1(A, vAC, i - 1, q, False)
            rw2(Q, 0, i, q)
        if i < 6:
            Q.op('pk2', 'ds_read_b128 v[%d:%d], v%d offset:%d', vTT, vTT + 3, vMI, M_PW + 16)
        Q.wait(('x', i))
        for r in range(16):
            x = vX + 16 * i + r
            A('v_dot2c_f32_bf16 v%d, s%d, v%d', vSM + (r & 1), sONES, x)
            A('v_dot2c_f32_bf16 v%d, v%d, v%d', vSQ + (r & 1), x, x)
        if i < 6:
            Q.wait('pk2')
            A('v_readfirstlane_b32 s%d, v%d', sPROG, vTT)
            A('v_readfirstlane_b32 s%d, v%d', sPROG1, vTT + 3)
    Q.stage(3)
    B = sub(A)
    B('v_add_f32 v%d, v%d, v%d', vSM, vSM, vSM + 1)
    B('v_add_f32 v%d, v%d, v%d', vSQ, vSQ, vSQ + 1)
    B('v_permlane32_swap_b32 v%d, v%d', vSM, vSQ)
    B('v_add_f32 v%d, v%d, v%d', vT0, vSM, vSQ)
    ln_finish(B, vT0, vT1, vNM, vRS)
    hilo_m(B, vNM, vMF, vT0)
    B('v_mul_f32 v%d, 0x%x, v%d', vSC, LOG2E, vRS)
    M = sub(A)
    Q.A = M
    for q in range(4):
        Q.wait(('w', 6, q))
        mm1(M, vAC, 6, q, False)
    A.lines += merge(M.lines, [[l] for l in B.lines], 0, 4)

    def cf_phi_reads():
        A('ds_read_b64 v[%d:%d], v%d', vCF, vCF + 1, vCA)
        for sidx in range(2):
            for z in range(2):
                A('ds_read_b64_tr_b16 v[%d:%d], v%d offset:%d', vPH + 4 * sidx + 2 * z, vPH + 4 * sidx + 2 * z + 1,
                  vPA, (16 * sidx + 8 * z) * 56)
        return 5
    stamp(A, 'v')
    wait_word(A, 5, 1, body=cf_phi_reads)
    stamp(A)
    stamp(A, 'v')
    A('s_waitcnt lgkmcnt(4)')

    def project(mid=None):
        mfma(A, vAC, vCF, vMF)
        if mid:
            mid()
        cvt8(A, vPK, vAC)
        mfma(A, vAC, vPH, vPK, True)
        mfma(A, vAC, vPH + 4, vPK + 4)

    def mid_k():
        A('v_and_b32 v%d, 31, v%d', vT0, vL)
        A('s_lshl_b32 s%d, s%d, 7', sT, sWV)
        A('s_add_u32 s%d, s%d, %d', sT, sT, L_RSTD)
        A('v_lshl_add_u32 v%d, v%d, 2, s%d', vT0, vT0, sT)
        A('s_waitcnt lgkmcnt(0)')
        A('ds_write_b32 v%d, v%d', vT0, vRS)
        A('v_lshrrev_b32 v%d, 5, v%d', vRA, vL)
        A('v_lshl_add_u32 v%d, v%d, 4, s%d', vRA, vRA, sT)
        for r in (0, 1):
            A('v_cndmask_b32 v%d, v%d, 0, s[%d:%d]', vPH + r, vPH + r, sZA, sZA + 1)
            A('v_cndmask_b32 v%d, v%d, 0, s[%d:%d]', vPH + 6 + r, vPH + 6 + r, sZB, sZB + 1)

    def gemm_head(B, pi):
        Q = LdsQ(B)
        wait_lp(B, ('W', pi, 0))
        for q in range(4):
            rw2(Q, pi, 0, q)
        return Q

    def gemm_part(B, acc, pi, swap, last_stage=None, Q=None):
        if Q is None:
            Q = gemm_head(B, pi)
        for i in range(7):
            if i == 6 and last_stage:
                Q.stage(last_stage)
            if pi == 1 and i in (0, 2, 4, 6):
                stamp(B, 'v')
            for q in range(4):
                Q.wait(('w', i, q))
                if q == 0:
                    Q.take(4)
                mm1(B, acc, i, q, swap)
                if i < 6:
                    if q == 0:
                        wait_lp(B, ('W', pi, i + 1))
                        if i < 5:
                            Q.peek(4)
                    rw2(Q, pi, i + 1, q)

    vOW = vXD
    A('v_add_u32 v%d, s%d, v%d', vOW, sM0, vO)
    A('v_add_u32 v%d, %d, v%d', vOW, L_KVA, vOW)
    project(mid_k)
    stamp(A, 'v')
    B = sub(A)
    softmax_pm(B, vAC, vSC, vPK, vTT)
    A.lines += B.lines[:-30]
    Q = gemm_head(A, 1)
    A.lines += B.lines[-30:]
    for q, src in enumerate((vAC, vAC + 4, vPK, vPK + 4)):
        Q.op('pw', 'ds_write_b128 v%d, %s offset:%d', vOW, v(src, 4), q * 1024)
    Q.stage(C0)
    for q in range(4):
        Q.op('rs', 'ds_read_b128 %s, v%d offset:%d', v(vAC + 4 * q, 4), vRA, q * 32)
    stamp(A, 'v')
    gemm_part(A, vAC2, 1, True, None, Q)
    stamp(A, 'v')

    def cfv_reads():
        A('ds_read_b64 v[%d:%d], v%d offset:%d', vCF, vCF + 1, vCA, 512)
        return 1
    wait_word(A, 6, 1, body=cfv_reads)
    stamp(A, 'v')
    A('s_waitcnt lgkmcnt(0)')
    mfma(A, vAC2, vMF, vCF)
    A('v_mov_b32 v%d, 0x%x', vT1, ONES)
    for r in range(0, 16, 2):
        A('v_pk_mul_f32 v[%d:%d], v[%d:%d], v[%d:%d]', vAC2 + r, vAC2 + r + 1, vAC2 + r, vAC2 + r + 1, vAC + r,
          vAC + r + 1)
    cvt8(A, vPK, vAC2)
    for r in range(8):
        A('v_cndmask_b32 v%d, v%d, v%d, s[%d:%d]', vPK + r, vPK + r, vT1, sPADL, sPADL + 1)
    for q in range(2):
        A('ds_write_b128 v%d, %s offset:%d', vOW, v(vPK + 4 * q, 4), L_KVV - L_KVA + q * 1024)
    set_stage(A, C0 + 1)
    stamp(A)
    stamp(A, 'v')
    gemm_part(A, vAC, 2, False, C0 + 3)

    def cfq_reads():
        A('ds_read_b64 v[%d:%d], v%d offset:%d', vCF, vCF + 1, vCA, 2 * 512)
        A('ds_read_b32 v%d, v%d offset:%d', vPW + 1, vMI, M_FAST)
        return 2
    wait_word(A, 7, 8, body=cfq_reads)
    A('s_waitcnt lgkmcnt(0)')
    A('v_readfirstlane_b32 s%d, v%d', sFASTF, vPW + 1)
    project()
    softmax_pm(A, vAC, vSC, vPK, vTT)
    vQF = [vAC, vAC + 4, vPK, vPK + 4]
    stamp(A)
    vW1A = vXA
    A('v_bfe_u32 v%d, v%d, 2, 2', vT0, vL)
    A('v_lshrrev_b32 v%d, 5, v%d', vT1, vL)
    A('v_lshl_add_u32 v%d, v%d, 2, v%d', vT1, vT1, vT0)
    A('v_lshlrev_b32 v%d, 8, v%d', vW1A, vT1)
    A('v_lshlrev_b32 v%d, 7, v%d', vWA, vT1)
    A('v_xor_b32 v%d, s%d, v%d', vT0, sWV, vT0)
    A('v_lshl_add_u32 v%d, v%d, 6, v%d', vW1A, vT0, vW1A)
    A('v_bfe_u32 v%d, v%d, 4, 1', vT1, vL)
    A('v_lshlrev_b32 v%d, 5, v%d', vT1, vT1)
    A('v_and_b32 v%d, 3, v%d', vT0, vL)
    A('v_lshl_add_u32 v%d, v%d, 3, v%d', vT1, vT0, vT1)
    A('v_add_u32 v%d, v%d, v%d', vW1A, vW1A, vT1)
    A('v_add_u32 v%d, 0x8000, v%d', vW1A + 1, vW1A)
    A('v_add_u32 v%d, v%d, v%d', vWA, vWA, vT1)
    A('v_bfe_u32 v%d, v%d, 3, 1', vT1, vL)
    A('v_lshl_add_u32 v%d, v%d, 6, v%d', vWA, vT1, vWA)

    def w1_copy(c):
        wait_lp(A, ('w1', c))
        for q in range(4):
            for z in range(2):
                off = w1_slot(c) + (16 * q + 8 * z) * 256
                base = vW1A
                if off >= 0x8000:
                    off -= 0x8000
                    base += 1
                r = vXR + (4 * c + q) * 4 + 2 * z
                A('ds_read_b64_tr_b16 v[%d:%d], v%d offset:%d', r, r + 1, base, off)

    idle = A.label('IDLE')
    A('s_cmp_ge_u32 s%d, 28', sI)
    A('s_cbranch_scc1 %s', idle)
    if not E('QUIET', 0):
        w1_copy(0)
        w1_copy(1)
        set_stage(A, C0 + 4)
    A('%s:', idle)
    A('s_lshl_b32 s%d, s%d, 2', sFL, sTB)
    A('s_add_u32 s%d, s%d, s%d', sFL, sFL, sWV)
    A('s_lshl_b32 s%d, s%d, 4', sFL, sFL)
    A('s_add_u32 s%d, s%d, s%d', sFL, sFL, sH)
    A('s_lshl_b32 s%d, s%d, 11', sB, sFL)
    A('s_add_u32 s%d, s%d, %d', sB, sB, WS_OB)
    A('s_lshl_b32 s%d, s%d, 2', sFL, sFL)
    A('s_add_u32 s%d, s%d, %d', sFL, sFL, F2)
    vEX = vXD + 1
    A('v_add_u32 v%d, %d, v%d', vEX, L_EX, vO)

    def ex_reads():
        for q in range(4):
            A('ds_read_b128 %s, v%d offset:%d', v(vWF + 4 * q, 4), vEX, q * 1024)
        return 4
    wait_stage(A, 3, (5, 6), body=ex_reads)
    stamp(A)
    for q in range(4):
        A('s_waitcnt lgkmcnt(%d)', 3 - q)
        mfma(A, vAC2, vWF + 4 * q, vQF[q], q == 0)
    A('v_cndmask_b32 v%d, v%d, v%d, s[%d:%d]', vT0, vAC2 + 12, vAC2, sODD, sODD + 1)
    A('v_mov_b32 v%d, v%d', vT1, vT0)
    A('v_permlane32_swap_b32 v%d, v%d', vT0, vT1)
    A('v_cndmask_b32 v%d, v%d, v%d, s[%d:%d]', vTT, vT1, vT0, sODD, sODD + 1)
    A('v_add_f32 v%d, 0x%x, v%d', vTT, 0x358637bd, vTT)
    A('v_rcp_f32 v%d, v%d', vTT, vTT)
    for r in range(0, 16, 2):
        A('v_pk_mul_f32 v[%d:%d], v[%d:%d], v[%d:%d] op_sel_hi:[1,0]', vAC2 + r, vAC2 + r + 1, vAC2 + r, vAC2 + r + 1,
          vTT, vTT + 1)
    cvt8(A, vPK, vAC2)
    for r in (0, 1):
        A('v_cndmask_b32 v%d, v%d, 0, s[%d:%d]', vPK + r, vPK + r, sZA, sZA + 1)
        A('v_cndmask_b32 v%d, v%d, 0, s[%d:%d]', vPK + 6 + r, vPK + 6 + r, sZB, sZB + 1)
    pub_stores(A, [st4(vPK + 4 * q, sB, q * 1024) for q in range(2)], MAP == 0 and not WTO)
    A('s_and_b32 s%d, s%d, 1', sG, sWV)
    A('s_lshr_b32 s%d, s%d, 1', sKH, sWV)
    A('s_lshl_b32 s%d, s%d, 1', sT, sTQ)
    A('s_add_u32 s%d, s%d, s%d', sG, sG, sT)
    A('s_lshl_b32 s%d, s%d, 6', sT, sKH)
    A('v_xor_b32 v%d, s%d, v%d', vWA, sT, vWA)
    A('v_xor_b32 v%d, 64, v%d', vWA + 1, vWA)
    A('s_mul_i32 s%d, s%d, %d', sT, sKH, 224 * 128)
    A('s_add_u32 s%d, s%d, %d', sT, sT, L_A)
    A('v_add_u32 v%d, s%d, v%d', vWA + 2, sT, vWA)
    A('v_add_u32 v%d, s%d, v%d', vWA + 3, sT, vWA + 1)
    vSW, vSR, vPP, vXS = vXA + 2, vXA + 3, vSM, vSM + 1
    A('s_and_b32 s%d, s%d, 1', sC, sWV)
    A('s_lshl_b32 s%d, s%d, 12', sC, sC)
    A('v_add_u32 v%d, s%d, v%d', vSW, sC, vO)
    A('s_cmp_eq_u32 s%d, 0', sKH)
    A('s_cselect_b32 s%d, %d, %d', sT, L_SC0 >> 12, L_SC1 >> 12)
    A('s_cselect_b32 s%d, %d, %d', sT2, L_SC1 >> 12, L_SC0 >> 12)
    A('s_lshl_b32 s%d, s%d, 12', sT, sT)
    A('s_lshl_b32 s%d, s%d, 12', sT2, sT2)
    A('v_add_u32 v%d, s%d, v%d', vSR, sT2, vSW)
    A('v_add_u32 v%d, s%d, v%d', vSW, sT, vSW)
    A('v_xor_b32 v%d, 8, v%d', vPP, vMY)
    A('v_and_b32 v%d, 31, v%d', vXS, vL)
    A('v_lshlrev_b32 v%d, 7, v%d', vXS, vXS)
    A('v_lshrrev_b32 v%d, 5, v%d', vT1, vL)
    A('v_lshl_add_u32 v%d, v%d, 3, v%d', vXS, vT1, vXS)
    A('s_lshl_b32 s%d, s%d, 6', sT2, sKH)
    A('s_add_u32 s%d, s%d, s%d', sC, sC, sT2)
    A('v_add_u32 v%d, s%d, v%d', vXS, sC, vXS)
    A('s_lshl_b32 s%d, s%d, 15', sB, sG)
    A('s_lshl_b32 s%d, s%d, 14', sT, sKH)
    A('s_add_u32 s%d, s%d, s%d', sB, sB, sT)
    A('s_add_u32 s%d, s%d, %d', sB, sB, WS_OB)
    A('s_lshl_b32 s%d, s%d, 6', sC, sG)
    A('s_lshl_b32 s%d, s%d, 5', sT, sKH)
    A('s_add_u32 s%d, s%d, s%d', sC, sC, sT)
    A('s_add_u32 s%d, s%d, %d', sC, sC, F2)
    pub_flag(A, sFL, MAP == 0)
    if E('QUIET', 0):
        idle = A.label('IDLE')
        A('s_cmp_ge_u32 s%d, 28', sI)
        A('s_cbranch_scc1 %s', idle)
        w1_copy(0)
        w1_copy(1)
        A('%s:', idle)
    set_stage(A, C0 + 5)
    stamp(A)
    fin = A.label('FIN')
    A('s_cmp_ge_u32 s%d, 28', sI)
    A('s_cbranch_scc1 %s', fin)

    vHP = 120
    vB2 = [40 + 4 * k for k in range(8)] + [224 + 4 * k for k in range(8)]
    vWF2 = 72
    wait_lp(A, 'wo')

    def wo_row(k):
        hh = k // 2
        return 28 * hh - 4 * (hh & 1) + 16 * (k & 1)

    def read_wo(k):
        buf = vWF2 + 8 * (k & 1)
        for nt in range(2):
            for z in range(2):
                A('ds_read_b64_tr_b16 v[%d:%d], v%d offset:%d', buf + 4 * nt + 2 * z, buf + 4 * nt + 2 * z + 1,
                  vWA + 2 + nt, (wo_row(k) + 8 * z) * 128)

    def unpack_hp():
        for r in range(8):
            A('v_lshlrev_b32 v%d, 16, v%d', vAC + 2 * r, vHP + r)
            A('v_and_b32 v%d, 0xffff0000, v%d', vAC + 2 * r + 1, vHP + r)

    wait_lp(A, 'xres')
    for q in range(4):
        A('ds_read_b64 v[%d:%d], v%d offset:%d', vHP + 2 * q, vHP + 2 * q + 1, vXS, L_XRES + q * 16)
    A('v_mov_b32 v%d, 1', vT1)
    A('ds_write_b32 v%d, v%d offset:%d', vMY, vT1, M_RES)
    A('s_waitcnt lgkmcnt(1)')
    unpack_hp()
    lo, done = A.label('W'), A.label('WD')
    A('%s:', lo)
    A('ds_read_b32 v%d, v%d offset:%d', vPW, vPP, M_RES)
    A('s_waitcnt lgkmcnt(0)')
    A('v_readfirstlane_b32 s%d, v%d', sT, vPW)
    spin_guard(A, done)
    A('s_cmp_ge_u32 s%d, 1', sT)
    A('s_cbranch_scc0 %s', lo)
    A('%s:', done)
    read_wo(0)
    if MAP == 3 and E('SPOLL', 1):
        poll_scalar(A, sC, 8)
    else:
        poll_global(A, sC, 8)
    stamp(A)
    stamp(A, 'p2')
    for k in range(16):
        A('buffer_load_dwordx4 %s, v%d, s[%d:%d], s%d offen offset:%d sc1', v(vB2[k], 4), vO, SWS, SWS + 3, sB,
          (k & 3) * 1024)
        if (k & 3) == 3:
            A('s_add_u32 s%d, s%d, 4096', sB, sB)
    A('s_lshl_b32 s%d, s%d, 1', sT2, sNB)
    A('s_add_u32 s%d, s%d, s%d', sT2, sT2, sKH)
    A('s_lshl_b32 s%d, s%d, 15', sB, sG)
    A('s_add_u32 s%d, s%d, %d', sB, sB, WS_HB)
    A('s_lshl_b32 s%d, s%d, 8', sC, sT2)
    A('s_add_u32 s%d, s%d, s%d', sC, sC, sB)
    A('s_lshl_b32 s%d, s%d, 11', sT, sT2)
    A('s_add_u32 s%d, s%d, s%d', sB, sB, sT)
    A('s_add_u32 s%d, s%d, 4096', sB, sB)
    A('s_lshl_b32 s%d, s%d, 2', sFL, sT2)
    A('s_lshl_b32 s%d, s%d, 6', sT, sG)
    A('s_add_u32 s%d, s%d, s%d', sFL, sFL, sT)
    A('s_add_u32 s%d, s%d, %d', sFL, sFL, F3)
    for k in range(16):
        if k < 15:
            read_wo(k + 1)
        A('s_waitcnt vmcnt(%d) lgkmcnt(%d)', 15 - k, 4 if k < 15 else 0)
        if k % 4 == 0:
            stamp(A, 'p2')
        buf = vWF2 + 8 * (k & 1)
        mfma(A, vAC + 16, buf + 4, vB2[k], k == 0)
        mfma(A, vAC, buf, vB2[k])
    stamp(A)

    def exchange(st):
        for q in range(4):
            A('ds_write_b128 v%d, %s offset:%d', vSW, v(vAC + 16 + 4 * q, 4), q * 1024)
        set_stage(A, st)
        lo, done = A.label('W'), A.label('WD')
        A('%s:', lo)
        A('ds_read_b32 v%d, v%d', vPW, vPP)
        for q in range(4):
            A('ds_read_b128 %s, v%d offset:%d', v(vWF2 + 4 * q, 4), vSR, q * 1024)
        A('s_waitcnt lgkmcnt(4)')
        A('v_readfirstlane_b32 s%d, v%d', sT, vPW)
        spin_guard(A, done)
        A('s_cmp_ge_u32 s%d, %d', sT, st)
        A('s_cbranch_scc0 %s', lo)
        A('%s:', done)
        for q in range(4):
            A('s_waitcnt lgkmcnt(%d)', 3 - q)
            for r in (0, 2):
                a0 = vAC + 4 * q + r
                A('v_pk_add_f32 v[%d:%d], v[%d:%d], v[%d:%d]', a0, a0 + 1, a0, a0 + 1, vWF2 + 4 * q + r,
                  vWF2 + 4 * q + r + 1)

    stamp(A, 'p2')
    exchange(C0 + 6)
    stamp(A, 'p2')
    set_stage(A, C0 + 7)
    cvt8(A, vHP, vAC)
    pub_stores(A, [st4(vHP + 4 * q, sB, q * 1024) for q in range(2)], not WTO)
    A('v_mov_b32 v%d, 0', vTT)
    A('v_mov_b32 v%d, 0', vTT + 1)
    for r in range(8):
        A('v_dot2c_f32_bf16 v%d, s%d, v%d', vTT, sONES, vHP + r)
        A('v_dot2c_f32_bf16 v%d, v%d, v%d', vTT + 1, vHP + r, vHP + r)
    A('v_lshlrev_b32 v%d, 2, v%d', vTT + 2, vL)
    A('v_permlane32_swap_b32 v%d, v%d', vTT, vTT + 1)
    A('v_add_f32 v%d, v%d, v%d', vTT, vTT, vTT + 1)
    pub_stores(A, ['buffer_store_dword v%d, v%d, s[%d:%d], s%d offen%%s' % (vTT, vTT + 2, SWS, SWS + 3, sC)], not WTO)
    stamp(A, 'p2')
    for c in (2, 3):
        w1_copy(c)
    stamp(A, 'p2')
    pub_flag(A, sFL, True)
    stamp(A, 'p2')
    stamp(A)
    vCS = vSQ
    for c in (4, 5, 6):
        w1_copy(c)
    set_stage(A, C0 + 8)
    A('v_mov_b32 v%d, 0', vCS)
    A('v_mov_b32 v%d, 0', vCS + 1)
    for r in range(112):
        if r == 32:
            A('s_waitcnt lgkmcnt(0)')
        A('v_dot2c_f32_bf16 v%d, s%d, v%d', vCS + (r & 1), sONES, vXR + r)
    A('v_add_f32 v%d, v%d, v%d', vCS, vCS, vCS + 1)
    hilo_c(A, vCS, vCF, vT0)
    vBR = 40
    vE3 = 72
    vMF2, vSD = 128, 132
    A('s_mul_i32 s%d, s%d, %d', sB, sTB3, 4 * 112)
    A('s_lshl_b32 s%d, s%d, 3', sT, sFB)
    A('s_add_u32 s%d, s%d, s%d', sB, sB, sT)
    A('s_lshl_b32 s%d, s%d, 1', sT, sWV)
    A('s_add_u32 s%d, s%d, s%d', sB, sB, sT)
    A('s_lshl_b32 s%d, s%d, 10', sB, sB)
    A('s_add_u32 s%d, s%d, %d', sB, sB, WS_H1B)
    A('s_lshl_b32 s%d, s%d, 10', sFL, sTB3)
    A('s_lshl_b32 s%d, s%d, 4', sT, sFB)
    A('s_add_u32 s%d, s%d, s%d', sFL, sFL, sT)
    A('s_lshl_b32 s%d, s%d, 2', sT, sWV)
    A('s_add_u32 s%d, s%d, s%d', sFL, sFL, sT)
    A('s_add_u32 s%d, s%d, %d', sFL, sFL, F4)

    def p3_epilogue(gi, packed=False):
        B = sub(A)
        acc = vAC + 16 * (gi & 1)
        e = vE3
        sd, c1 = vSD, vSD + 1
        if packed:
            pk = lambda r: 'v[%d:%d]' % (r, r + 1)
            for r in range(0, 16, 2):
                B('v_pk_mul_f32 %s, %s, %s op_sel:[0,1] op_sel_hi:[1,1]', pk(e + r), pk(acc + r), pk(sd))
            for r in range(16):
                B('v_exp_f32 v%d, v%d', e + r, e + r)
            for r in range(0, 16, 2):
                B('v_pk_fma_f32 %s, %s, %s, %s op_sel_hi:[1,0,0]', pk(e + r), pk(e + r), pk(sd), pk(sd))
            for r in range(16):
                B('v_rcp_f32 v%d, v%d', e + r, e + r)
            for r in range(0, 16, 2):
                B('v_pk_mul_f32 %s, %s, %s', pk(e + r), pk(e + r), pk(acc + r))
        else:
            for r in range(16):
                B('v_mul_f32 v%d, v%d, v%d', e + r, acc + r, c1)
                if r >= 1:
                    B('v_exp_f32 v%d, v%d', e + r - 1, e + r - 1)
            B('v_exp_f32 v%d, v%d', e + 15, e + 15)
            for r in range(16):
                B('v_fma_f32 v%d, v%d, v%d, v%d', e + r, e + r, sd, sd)
                if r >= 1:
                    B('v_rcp_f32 v%d, v%d', e + r - 1, e + r - 1)
            B('v_rcp_f32 v%d, v%d', e + 15, e + 15)
            for r in range(16):
                B('v_mul_f32 v%d, v%d, v%d', e + r, e + r, acc + r)
        cvt8(B, acc, e)
        blocks = [[l] for l in B.lines]
        B = sub(A)
        pub_stores(B, [st4(acc + 4 * q, sB, q * 1024) for q in range(2)], not WT1)
        B('s_add_u32 s%d, s%d, %d', sB, sB, 112 * 1024)
        blocks.append(B.lines)
        return blocks

    def p3_flag(B, drain=True):
        pub_flag(B, sFL, True, drain)
        B('s_add_u32 s%d, s%d, 256', sFL, sFL)

    PRE = E('P3PRE', 6)
    vHB = vXD + 2
    A('v_add_u32 v%d, %d, v%d', vHB, L_A, vO)
    A('v_add_u32 v%d, %d, v%d', vHB + 1, 65536, vO)
    A('s_mov_b32 s%d, 0', CACHE[5])
    A('s_mov_b32 s%d, 0', CACHE[6])
    Q = LdsQ(A)

    def rd(n):
        gi, k = divmod(n, 28)
        if (k + 5) % 8 == 0 and k != 3:
            Q.take(7)
        if (k + 4) % 8 == 0 or k == 0:
            wait_lp(Q.A, ('h', gi, (k + 4) // 8))
        Q.op(('b', n), 'ds_read_b128 %s, v%d offset:%d', v(vBR + 4 * (n % 8), 4), (vHB, vHB, vO, vHB + 1)[gi],
             (28672 if gi == 1 else 0) + k * 1024)
        if k == 27:
            Q.stage(C0 + 9 + gi)
        nn = n + PRE + 2
        if nn < 112 and ((nn % 28 + 4) % 8 == 0 or nn % 28 == 0) and nn % 28 != 4:
            Q.peek(7)

    stamp(A, 'p2')
    HELP['inline'] = True
    for n in range(PRE):
        rd(n)
    HELP['inline'] = False
    for gi in range(4):
        acc = vAC + 16 * (gi & 1)
        M = sub(A)
        Q.A = M
        for k in range(28):
            n = 28 * gi + k
            if n + PRE < 112:
                rd(n + PRE)
            if k == 14:
                Q.op('s6', 'ds_read_b32 v%d, v%d offset:%d', vPK_ + 1, vMI, M_PW + 24)
                Q.op('sf', 'ds_read_b128 %s, v%d offset:%d', v(vMF2, 4), vEX, gi * 1024)
            if k == 24:
                Q.wait('sf')
                M('v_readfirstlane_b32 s%d, v%d', sC, vPK_ + 1)

                def st_slow(B, back):
                    def st_read():
                        B('ds_read_b128 %s, v%d offset:%d', v(vMF2, 4), vEX, gi * 1024)
                        return 0
                    wait_word(B, 6, 4 + gi, body=st_read)
                ent, back = cold_block(M, st_slow)
            if k == 25:
                M('s_cmp_ge_u32 s%d, %d', sC, 4 + gi)
                M('s_cbranch_scc0 %s', ent)
                M('%s:', back)
                M('v_mov_b32 v%d, v%d', vMF, vMF2)
                M('v_mov_b32 v%d, v%d', vMF + 1, vMF2 + 1)
            if k % 2 == 0:
                Q.wait(('b', n + 1))
            if k in (0, 12):
                stamp(M, 'p3')
            if gi == E('P33', 3) and k >= 15 - 13 * (gi == 0) and (gi or k % 2 == 0):
                stamp(M, 'p33')
            if k == E('P3FLAGK', 25) and gi >= 2:
                p3_flag(M)
            mfma(M, acc, vXR + 4 * k, vBR + 4 * (n % 8), k == 0)
        mfma(M, acc, vCF, vMF)
        M('v_mov_b32 v%d, v%d', vSD, vMF2 + 2)
        M('v_mov_b32 v%d, v%d', vSD + 1, vMF2 + 3)
        A.lines += merge(M.lines, p3_epilogue(gi - 1, E('P3PK', 0)) if gi > 0 else [], 1, 27)
        if gi == 0:
            stamp(A)
        stamp(A, 'p3')
    stamp(A)
    for j, b in enumerate(p3_epilogue(3, True)):
        if j in (0, 8, 24, 30, 48, 56, 64):
            stamp(A, 'p3e')
        A.lines += b
    stamp(A, 'p3e')
    NB = 28
    vWF4 = 40
    A('s_mul_i32 s%d, s%d, %d', sB, sG, 112 * 1024)
    A('s_mul_i32 s%d, s%d, %d', sT, sKH, 56 * 1024)
    A('s_add_u32 s%d, s%d, s%d', sB, sB, sT)
    A('s_add_u32 s%d, s%d, %d', sB, sB, WS_H1B)
    A('s_lshl_b32 s%d, s%d, 8', sC, sG)
    A('s_mul_i32 s%d, s%d, 112', sT, sKH)
    A('s_add_u32 s%d, s%d, s%d', sC, sC, sT)
    A('s_add_u32 s%d, s%d, %d', sC, sC, F4)

    def w2_base(c):
        A('s_cmp_eq_u32 s%d, 0', sKH)
        A('s_cselect_b32 s%d, %d, %d', sT, w2_slot(2 * c) >> 12, w2_slot(2 * c + 1) >> 12)
        A('s_lshl_b32 s%d, s%d, 12', sT, sT)
        A('v_add_u32 v%d, s%d, v%d', vWA + 2, sT, vWA)
        A('v_add_u32 v%d, s%d, v%d', vWA + 3, sT, vWA + 1)

    Q = LdsQ(A)

    def read_w2(k):
        if k % 4 == 3 and k < 52:
            Q.take(LP[('w2', 2 * (k // 4) + 3)][0])
        if k % 4 == 0:
            wait_lp(A, ('w2', 2 * (k // 4) + 1))
            w2_base(k // 4)
        buf = vWF4 + 8 * (k & 3)
        for nt in range(2):
            for z in range(2):
                Q.op(('w', k), 'ds_read_b64_tr_b16 v[%d:%d], v%d offset:%d', buf + 4 * nt + 2 * z,
                     buf + 4 * nt + 2 * z + 1, vWA + 2 + nt, ((k % 4) * 16 + 8 * z) * 128)
        if k % 4 == 0 and k < 52:
            Q.peek(LP[('w2', 2 * (k // 4) + 3)][0])
        if k % 4 == 3 and (k // 4) <= 5:
            Q.stage(C0 + 13 + k // 4)

    def issue_b(k):
        A('buffer_load_dwordx4 %s, v%d, s[%d:%d], s%d offen offset:%d%s', v(vXR + 4 * (k % NB), 4), vO, SWS, SWS + 3,
          sB, (k & 3) * 1024, LDB)
        if (k & 3) == 3:
            A('s_add_u32 s%d, s%d, 4096', sB, sB)

    unpack_hp()
    read_w2(0)
    read_w2(1)
    stamp(A, 'p3e')
    p3_flag(A)
    p3_flag(A, False)
    stamp(A)
    stamp(A, 'p3e')
    poll_global(A, sC, 28)
    stamp(A)
    stamp(A, 'p3e')
    INFL = E('P4INFL', 10)
    for k in range(INFL):
        issue_b(k)
    issued = INFL
    for k in range(56):
        if k + 2 < 56:
            read_w2(k + 2)
        Q.wait(('w', k), issued - k - 1)
        if k % 4 == 0 and k:
            stamp(A, 'p4')
        if 40 <= k < 53:
            stamp(A, 'p44')
        buf = vWF4 + 8 * (k & 3)
        mfma(A, vAC + 16, buf + 4, vXR + 4 * (k % NB), k == 0)
        if issued < 56:
            issue_b(issued)
            issued += 1
        mfma(A, vAC, buf, vXR + 4 * (k % NB))
    stamp(A)
    A('v_and_b32 v%d, 31, v%d', vTT, vL)
    A('v_mul_u32_u24 v%d, 896, v%d', vTT, vTT)
    A('v_lshrrev_b32 v%d, 5, v%d', vT1, vL)
    A('v_lshl_add_u32 v%d, v%d, 4, v%d', vTT, vT1, vTT)
    A('s_mul_i32 s%d, s%d, %d', sB, sG, 32 * 896)
    A('s_lshl_b32 s%d, s%d, 7', sT2, sNB)
    A('s_add_u32 s%d, s%d, s%d', sB, sB, sT2)
    A('s_lshl_b32 s%d, s%d, 6', sT2, sKH)
    A('s_add_u32 s%d, s%d, s%d', sB, sB, sT2)
    exchange(C0 + 27)
    cvt8(A, vHP, vAC)
    for q in range(2):
        A('v_permlane32_swap_b32 v%d, v%d', vHP + 4 * q, vHP + 4 * q + 2)
        A('v_permlane32_swap_b32 v%d, v%d', vHP + 4 * q + 1, vHP + 4 * q + 3)
    for q in range(2):
        A('buffer_store_dwordx4 %s, v%d, s[%d:%d], s%d offen offset:%d', v(vHP + 4 * q, 4), vTT, SOUT, SOUT + 3, sB,
          q * 32)
    A('s_or_b32 s%d, s2, s%d', sT, sWV)
    A('s_cmp_lg_u32 s%d, 0', sT)
    A('s_cbranch_scc1 %s', fin)
    A('s_mov_b32 s%d, %d', sT, FEP)
    A('s_mov_b64 exec, 1')
    A('buffer_store_dword v%d, v%d, s[%d:%d], s%d offen', vTAG, vO, SWS, SWS + 3, sT)
    A('s_mov_b64 exec, -1')
    A('%s:', fin)
    if E('PADTO', 0):
        lo = A.label('PAD')
        A('s_waitcnt vmcnt(0) lgkmcnt(0)')
        A('s_mov_b32 s6, %d', E('PADTO', 0))
        if PROBE >= 0:
            A('s_sub_u32 s7, s56, s84')
            A('s_lshl_b32 s7, s7, 2')
            A('s_cmp_ge_u32 s%d, 28', sI)
            A('s_cselect_b32 s7, 0, s7')
            A('s_add_u32 s6, s6, s7')
        A('%s:', lo)
        A('s_memrealtime s[4:5]')
        A('s_waitcnt lgkmcnt(0)')
        A('s_sub_u32 s4, s4, s84')
        A('s_cmp_lt_u32 s4, s6')
        A('s_cbranch_scc1 %s', lo)
    stamp_flush(A)


def gen():
    A = Asm()
    name = NAME + '_kernel'
    A.lines += ['.p2align 8', '.globl %s' % name, '.type %s,@function' % name, '%s:' % name]
    end = A.label('END')
    if E('PADTO', 0):
        A('s_memrealtime s[84:85]')
    A('s_getpc_b64 s[%d:%d]', sPC, sPC + 1)
    A('s_cmp_ge_u32 s2, 256')
    A('s_cbranch_scc1 %s', end)
    A('s_load_dwordx16 s[64:79], s[0:1], 0')
    A('s_load_dwordx2 s[80:81], s[0:1], 72')
    if DBGT:
        A('s_load_dwordx2 s[86:87], s[0:1], 64')
    A('s_mov_b32 s%d, 0x400000', sSPIN)
    A('s_and_b32 s%d, s2, 7', sXCD)
    A('s_lshr_b32 s%d, s2, 3', sI)
    if MAP == 0:
        perm = [2, 4, 6, 9, 11, 13, 0, 1, 3, 5, 7, 8, 10, 12, 14, 15]
        lo = sum(perm[i] << (4 * i) for i in range(8))
        hi = sum(perm[8 + i] << (4 * i) for i in range(8))
        A('s_mov_b32 s%d, 0x%x', sHI, lo)
        A('s_mov_b32 s%d, 0x%x', sHI + 1, hi)
        A('s_lshr_b32 s%d, s%d, 1', sT, sI)
        A('s_lshl_b32 s%d, s%d, 2', sT, sT)
        A('s_lshr_b64 s[%d:%d], s[%d:%d], s%d', sHI, sHI + 1, sHI, sHI + 1, sT)
        A('s_and_b32 s%d, s%d, 15', sH, sHI)
        A('s_and_b32 s%d, s%d, 1', sTB, sI)
        A('s_lshl_b32 s%d, s%d, 1', sT, sXCD)
        A('s_add_u32 s%d, s%d, s%d', sTB, sTB, sT)
    else:
        A('s_lshr_b32 s%d, s%d, 1', sTB, sI)
        A('s_and_b32 s%d, s%d, 1', sH, sI)
        A('s_lshl_b32 s%d, s%d, 1', sT, sXCD)
        A('s_add_u32 s%d, s%d, s%d', sH, sH, sT)
    A('s_add_u32 s%d, s%d, s%d', sC0, sXCD, sI)
    A('s_mul_i32 s%d, s%d, 37', sT, sC0)
    A('s_lshr_b32 s%d, s%d, 8', sT, sT)
    A('s_mul_i32 s%d, s%d, 7', sT, sT)
    A('s_sub_u32 s%d, s%d, s%d', sC0, sC0, sT)
    A('s_mul_i32 s%d, s%d, 37', sTQ, sI)
    A('s_lshr_b32 s%d, s%d, 8', sTQ, sTQ)
    A('s_mul_i32 s%d, s%d, 7', sNB, sTQ)
    A('s_sub_u32 s%d, s%d, s%d', sNB, sI, sNB)
    A('s_lshr_b32 s%d, s%d, 1', sTB3, sTQ)
    A('s_mul_i32 s%d, s%d, 14', sFB, sTB3)
    A('s_sub_u32 s%d, s%d, s%d', sFB, sI, sFB)
    A('s_lshl_b32 s%d, s%d, 2', sT, sXCD)
    A('s_add_u32 s%d, s%d, s%d', sTQ, sTQ, sT)
    A('s_lshl_b32 s%d, s%d, 1', sT, sXCD)
    A('s_add_u32 s%d, s%d, s%d', sTB3, sTB3, sT)
    A('v_lshrrev_b32 v%d, 6, v0', vL)
    A('v_readfirstlane_b32 s%d, v%d', sWV, vL)
    A('v_lshlrev_b32 v%d, 2, v%d', vMY, vL)
    A('v_add_u32 v%d, %d, v%d', vMY, L_MISC, vMY)
    A('v_and_b32 v%d, 63, v0', vL)
    A('v_lshlrev_b32 v%d, 4, v%d', vO, vL)
    A('v_mov_b32 v%d, %d', vMI, L_MISC)
    A('v_mov_b32 v%d, 0', vT0)
    A('ds_write_b32 v%d, v%d', vMY, vT0)
    A('ds_write_b32 v%d, v%d offset:%d', vMY, vT0, M_RES)
    A('ds_write_b32 v%d, v%d offset:%d', vMY, vT0, M_FAST)
    A('s_mov_b32 s%d, 0', sPROG)
    A('s_mov_b32 s%d, 0', sFASTF)
    A('s_mov_b32 s%d, 0x%x', sONES, ONES)
    early_offsets(A)
    A('s_waitcnt lgkmcnt(0)')
    A('s_barrier')
    A('s_mov_b32 s%d, 0', sPROG1)
    srd(A, SX, 64, S * D * 2)
    srd(A, SW, 66, D * 3 * D * 2)
    _st['n'] = 0
    stamp(A, 'all')
    if STAMPS:
        A('s_memrealtime s[86:87]')
    for i in range(7):
        LP[('x', i)] = (7, 1 + i)
    for gi in range(4):
        for q in range(4):
            LP[('h', gi, q)] = (7, 9 + 4 * gi + q)
    for pi in range(3):
        for i in range(7):
            LP[('W', pi, i)] = (4, 7 * pi + i + 1)
    l0, l1, l2, lw, lc = A.label('H0'), A.label('H1'), A.label('H23'), A.label('EW'), A.label('EC')
    A('s_cmp_eq_u32 s%d, 4', sWV)
    A('s_cbranch_scc1 %s', lw)
    A('s_cmp_lg_u32 s%d, 7', sWV)
    A('s_cbranch_scc1 %s', lc)
    HELP['on'] = True
    nst = {}
    prio(A, 1)
    _st['n'] = 1
    early_x(A)
    nst[l1] = _st['n']
    A('s_branch %s', l1)
    A('%s:', lw)
    prio(A, 1)
    _st['n'] = 1
    early_w(A)
    nst[l0] = _st['n']
    nst[l2] = 1
    A('s_branch %s', l0)
    refresh_routines(A)
    A('%s:', lc)
    A('s_cmp_ge_u32 s%d, 5', sWV)
    A('s_cbranch_scc1 %s', l2)
    parts = {}
    for lab, fn in ((l0, gen_h0), (l1, gen_h1), (l2, gen_h23)):
        B = sub(A)
        B('%s:', lab)
        B('s_nop 4')
        HELP['on'] = True
        prio(B, 1)
        _st['n'] = nst[lab]
        fn(B)
        HELP['on'] = False
        parts[lab] = B.lines
    _st['n'] = 1
    gen_compute(A)
    A('%s:', end)
    A('s_endpgm')
    for lab in (l0, l1, l2):
        A.lines += parts[lab]
    A.lines += COLD
    return A, name


def main():
    out = sys.argv[1] if len(sys.argv) > 1 else 'cdna_kernels/%s.s' % NAME
    A, name = gen()
    lines, nn = fix_hazards(A.lines)
    hdr = ['; generated by gen/gen6.py (hand-written generator script)',
           '; @launch grid=(256,1,1) block=(512,1,1) lds=%d' % LDS_SIZE,
           '.amdgcn_target "amdgcn-amd-amdhsa--gfx950"', '.text']
    tail = ['.p2align 8', '.fill 2048, 4, 0xbf800000', '.section .rodata,"a"', '.p2align 6', '''.amdhsa_kernel %s
  .amdhsa_next_free_vgpr 256
  .amdhsa_next_free_sgpr 102
  .amdhsa_accum_offset 256
  .amdhsa_group_segment_fixed_size 0
  .amdhsa_kernarg_size 80
  .amdhsa_user_sgpr_count 2
  .amdhsa_user_sgpr_kernarg_segment_ptr 1
  .amdhsa_system_sgpr_workgroup_id_x 1
  .amdhsa_float_denorm_mode_32 3
  .amdhsa_float_denorm_mode_16_64 3
.end_amdhsa_kernel''' % name]
    open(out, 'w').write('\n'.join(hdr + lines + tail) + '\n')
    print('wrote', out, 'lines', len(lines), 'nops', nn)


if __name__ == '__main__':
    main()
```

```python
import sys
import os
sys.path.insert(0, os.path.dirname(os.path.abspath(__file__)))
from asmlib import Asm, fix_hazards, v

NAME = 'sequential_preLN__linear_kernel_hedgehog__dense_activation_silu__prompt'
S, D, H, DH, F = 2048, 448, 16, 28, 1792
MB = 1 << 20
E = lambda k, d: int(os.environ.get(k, d))
STAMPS = E('STAMPS', 0)
MAP = E('MAP', 0)
FAST = E('FAST', 1)
CODEPF = E('CODEPF', 1)
WARM = E('WARM', 0)
WT1 = E('WT1', 0)
WTO = E('WTO', 0)
TOUCHAT = E('TOUCHAT', 2)
LDB = (' sc1', '', ' nt')[E('LDB', 0)]
HLATE = E('HLATE', 1)
WS_KVP = 0
WS_OB = 2 * MB
WS_HB = 4 * MB
WS_H1B = 8 * MB
WS_FLG = 16 * MB
F1, F2, F3, F4, FREG, FEP = WS_FLG + 0x10000, WS_FLG + 0x1000, WS_FLG + 0x3000, WS_FLG + 0x5000, WS_FLG + 0x9000, WS_FLG + 0xA000
F2X = WS_FLG + 0x40000
WS_STAMP = 17 * MB
WS_SIZE = 18 * MB
LOG2E = 0x3fb8aa3b
ONES = 0x3f803f80
MFMA = 'v_mfma_f32_32x32x16_bf16'
L_X = 0
L_WP = (114688, 0, 32768)
L_KVA, L_KVV = 65536, 81920
L_A = 98304
L_SC0, L_SC1 = 49152, 57344
L_XRES = L_SC0
B16 = (0, 16384, 65536, 81920, 32768)
L_PHI, L_EX, L_CF, L_MISC = 159744 - 2048 + 2048 + 1536, 155648, 159744, 163328
LDS_SIZE = 163840
M_PW, M_RES, M_FAST, M_CP = 0, 32, 64, 96
L_RSTD = L_EX

SX, SW, SP, SWS, SWO, SW1, SW2, SOUT = 12, 16, 20, 24, 28, 32, 36, 40
sTB, sH, sWV, sC0, sPROG, sT, sT2, sONES, sC, sTAG, sFASTF, sI, sXCD = 44, 45, 46, 47, 48, 49, 50, 51, 52, 53, 54, 55, 3
sHI, sPADL, sZA, sZB, sODD, sPC = 4, 6, 8, 10, 92, 94
sTQ, sNB, sTB3, sFB, sG, sKH, sB, sXB, sM0, sSPIN = 96, 97, 98, 99, 100, 101, 88, 89, 91, 90
sPROG1, sFL = 0, 1
vL, vMI, vT0, vT1, vO = 1, 2, 3, 4, 5
vTAG, vMY = 6, 7
vTT = 8
vXA = 12
vWA = 16
vSM, vSQ = 20, 22
vNM, vRS, vSC, vRA = 24, 25, 26, 27
vXD = 28
vPW = 32
vCA = 36
vXR = 144
vPK_ = 37
CACHE = {4: sPROG, 7: sPROG1, 5: sC0, 6: sTB}

_st = {'n': 0}
C0 = 4
HELP = {'on': False}


def prio(A, hi):
    if HELP['on'] and E('HPRIO', 2) and not HELP.get('hot'):
        A('s_setprio %d', E('HPRIO', 2) if hi else 0)
LP = {}


STSET = os.environ.get('STSET', 'main')


DBGT = E('DBGT', 0)


PROBE = E('PROBE', -1)


def stamp(A, tag='main'):
    if PROBE >= 0:
        if not HELP['on'] and tag in ('main', 'all'):
            if _st['n'] == PROBE:
                A('s_memrealtime s[56:57]')
            _st['n'] += 1
        return
    if DBGT and not HELP['on'] and tag in ('main', 'all'):
        A('s_memrealtime s[%d:%d]', 56 + 2 * _st['n'], 57 + 2 * _st['n'])
        _st['n'] += 1
        return
    if STAMPS and (tag == STSET or tag == 'all' or (HELP['on'] and tag == 'main')):
        assert _st['n'] < 15, 'too many stamps'
        A('s_memtime s[%d:%d]', 56 + 2 * _st['n'], 57 + 2 * _st['n'])
        _st['n'] += 1


def stamp_flush(A):
    if DBGT and not HELP['on']:
        A('s_waitcnt vmcnt(0)')
        stamp(A, 'all')
        skip = A.label('DS')
        A('s_waitcnt vmcnt(0) lgkmcnt(0)')
        A('s_cmp_ge_u32 s%d, 28', sI)
        A('s_cbranch_scc1 %s', skip)
        A('s_mov_b64 exec, 1')
        A('v_mov_b32 v1, 0')
        A('s_not_b32 s4, s56')
        A('v_mov_b32 v2, s4')
        A('global_atomic_umax v1, v2, s[86:87] offset:60')
        for i in range(_st['n']):
            A('v_mov_b32 v%d, s%d', 8 + i, 56 + 2 * i)
            A('global_atomic_umax v1, v%d, s[86:87] offset:%d', 8 + i, 4 * i)
        A('%s:', skip)
        return
    if STAMPS:
        A('s_waitcnt vmcnt(0)')
        stamp(A, 'all')
        A('s_memrealtime s[4:5]')
        A('s_waitcnt vmcnt(0) lgkmcnt(0)')
        A('s_sub_u32 s4, s4, s86')
        A('s_lshl_b32 s4, s4, 20')
        A('s_and_b32 s86, s86, 0xfffff')
        A('s_or_b32 s86, s86, s4')
        A('s_lshl_b32 s%d, s2, 3', sT)
        A('s_add_u32 s%d, s%d, s%d', sT, sT, sWV)
        A('s_lshl_b32 s%d, s%d, 6', sT, sT)
        A('s_add_u32 s%d, s%d, %d', sT, sT, WS_STAMP)
        A('s_mov_b64 exec, 1')
        A('v_mov_b32 v1, 0')
        for i in range(16):
            if i < _st['n']:
                A('v_mov_b32 v2, s%d', 56 + 2 * i)
            elif i == 15:
                A('v_mov_b32 v2, s86')
            else:
                A('v_mov_b32 v2, 0')
            A('buffer_store_dword v2, v1, s[%d:%d], s%d offen offset:%d', SWS, SWS + 3, sT, 4 * i)
            A('s_nop 1')


def srd(A, d, ptr, size):
    A('s_mov_b32 s%d, s%d', d, ptr)
    A('s_and_b32 s%d, s%d, 0xffff', d + 1, ptr + 1)
    A('s_mov_b32 s%d, 0x%x', d + 2, size)
    A('s_mov_b32 s%d, 0x20000', d + 3)


COLD = []


def cold_block(A, fn):
    ent, back = A.label('CE'), A.label('CB')
    B = sub(A)
    B('%s:', ent)
    B('s_nop 15')
    fn(B, back)
    B('s_nop 7')
    B('s_branch %s', back)
    COLD.extend(B.lines)
    return ent, back


def spin_guard(A, done):
    A('s_sub_u32 s%d, s%d, 1', sSPIN, sSPIN)
    A('s_cbranch_scc1 %s', done)


def wait_word(A, w, n, cache=None, sleep=0, body=None):
    sd = sT if cache is None else cache

    def loop(B, done, body=None):
        lo = B.label('W')
        prio(B, 0)
        B('%s:', lo)
        if sleep:
            B('s_sleep %d', sleep)
        B('ds_read_b32 v%d, v%d offset:%d', vPW, vMI, M_PW + 4 * w)
        k = body() if body else 0
        B('s_waitcnt lgkmcnt(%d)', k)
        B('v_readfirstlane_b32 s%d, v%d', sd, vPW)
        spin_guard(B, done)
        B('s_cmp_ge_u32 s%d, %d', sd, n)
        B('s_cbranch_scc0 %s', lo)
        prio(B, 1)
    if cache is not None and body is None and not HELP['on']:
        A('s_getpc_b64 s[%d:%d]', sPC, sPC + 1)
        A('s_cmp_ge_u32 s%d, %d', sd, n)
        A('s_cbranch_scc0 REFRESH_%d', w)
        return
    done = A.label('WD')
    if cache is not None and body is None:
        A('s_cmp_ge_u32 s%d, %d', sd, n)
        A('s_cbranch_scc1 %s', done)
    loop(A, done, body)
    A('%s:', done)


def wait_lp(A, name, sleep=0):
    w, n = LP[name]
    wait_word(A, w, n, CACHE[w], sleep)


def set_stage(A, n):
    A('v_mov_b32 v%d, %d', vT0, n)
    A('ds_write_b32 v%d, v%d', vMY, vT0)


def wait_stage(A, n, which=(0, 1, 2, 3), body=None, sleep=0, base=M_PW):
    lo, done = A.label('W'), A.label('WD')
    prio(A, 0)
    A('%s:', lo)
    if sleep:
        A('s_sleep %d', sleep)
    A('ds_read_b128 v[%d:%d], v%d offset:%d', vPW, vPW + 3, vMI, base + 16 * (which[0] // 4))
    k = body() if body else 0
    A('s_waitcnt lgkmcnt(%d)', k)
    w = [x % 4 for x in which]
    if len(w) == 4:
        A('v_min3_u32 v%d, v%d, v%d, v%d', vPW, vPW, vPW + 1, vPW + 2)
        A('v_min_u32 v%d, v%d, v%d', vPW, vPW, vPW + 3)
        r = vPW
    else:
        A('v_min_u32 v%d, v%d, v%d', vPW + w[0], vPW + w[0], vPW + w[1])
        r = vPW + w[0]
    A('v_readfirstlane_b32 s%d, v%d', sT, r)
    spin_guard(A, done)
    A('s_cmp_ge_u32 s%d, %d', sT, n)
    A('s_cbranch_scc0 %s', lo)
    A('%s:', done)
    prio(A, 1)


def poll_global(A, soff, nlanes):
    lo, done = A.label('P'), A.label('PD')
    A('v_lshlrev_b32 v%d, 2, v%d', vT1, vL)
    A('s_mov_b64 exec, 0x%x', (1 << nlanes) - 1)
    A('%s:', lo)
    A('buffer_load_dword v%d, v%d, s[%d:%d], s%d offen sc1', vT0, vT1, SWS, SWS + 3, soff)
    A('s_waitcnt vmcnt(0)')
    A('v_cmp_ne_u32 vcc, s%d, v%d', sTAG, vT0)
    spin_guard(A, done)
    A('s_cbranch_vccnz %s', lo)
    A('%s:', done)
    A('s_mov_b64 exec, -1')


def poll_scalar(A, soff, n):
    lo, done = A.label('P'), A.label('PD')
    A('s_add_u32 s%d, s%d, s%d', sPC, SWS, soff)
    A('s_addc_u32 s%d, s%d, 0', sPC + 1, SWS + 1)
    base = 76
    assert n == 8
    A('%s:', lo)
    if E('PSLEEP', 0):
        A('s_sleep %d', E('PSLEEP', 0))
    A('s_load_dwordx%d s[%d:%d], s[%d:%d], 0 glc', n, base, base + n - 1, sPC, sPC + 1)
    A('s_waitcnt lgkmcnt(0)')
    A('s_and_b64 s[%d:%d], s[%d:%d], s[%d:%d]', sHI, sHI + 1, base, base + 1, base + 2, base + 3)
    A('s_or_b64 s[%d:%d], s[%d:%d], s[%d:%d]', sPADL, sPADL + 1, base, base + 1, base + 2, base + 3)
    for k in range(4, n, 2):
        A('s_and_b64 s[%d:%d], s[%d:%d], s[%d:%d]', sHI, sHI + 1, sHI, sHI + 1, base + k, base + k + 1)
        A('s_or_b64 s[%d:%d], s[%d:%d], s[%d:%d]', sPADL, sPADL + 1, sPADL, sPADL + 1, base + k, base + k + 1)
    A('s_and_b32 s%d, s%d, s%d', sHI, sHI, sHI + 1)
    A('s_or_b32 s%d, s%d, s%d', sPADL, sPADL, sPADL + 1)
    A('s_xor_b32 s%d, s%d, s%d', sHI, sHI, sTAG)
    A('s_xor_b32 s%d, s%d, s%d', sPADL, sPADL, sTAG)
    spin_guard(A, done)
    A('s_or_b32 s%d, s%d, s%d', sHI, sHI, sPADL)
    A('s_cbranch_scc1 %s', lo)
    A('%s:', done)


def two_ways(A, fn, local):
    if local and FAST:
        ent, back = cold_block(A, lambda B, back: fn(B, ' sc1'))
        A('s_cmp_eq_u32 s%d, 0', sFASTF)
        A('s_cbranch_scc1 %s', ent)
        fn(A, '')
        A('%s:', back)
    else:
        fn(A, ' sc1')


def pub_stores(A, stores, local):
    def fn(B, bits):
        for st in stores:
            B(st % bits)
    two_ways(A, fn, local)


def pub_flag(A, sflag, local, drain=True):
    if drain:
        A('s_waitcnt vmcnt(0)')
    A('s_mov_b64 exec, 1')
    two_ways(A, lambda B, bits: B('buffer_store_dword v%d, v%d, s[%d:%d], s%d offen%s', vTAG, vO, SWS, SWS + 3, sflag,
                                  bits), local)
    A('s_mov_b64 exec, -1')


def st4(reg, soff, off):
    return 'buffer_store_dwordx4 %s, v%d, s[%d:%d], s%d offen offset:%d%%s' % (v(reg, 4), vO, SWS, SWS + 3, soff, off)


def hilo_c(A, src, f, tmp):
    A('v_cvt_pk_bf16_f32 v%d, v%d, v%d', f, src, src)
    A('v_and_b32 v%d, 0xffff0000, v%d', tmp, f)
    A('v_sub_f32 v%d, v%d, v%d', tmp, src, tmp)
    A('v_cvt_pk_bf16_f32 v%d, v%d, 0', f + 1, tmp)


def hilo_m(A, src, f, tmp):
    A('v_cvt_pk_bf16_f32 v%d, v%d, 0', f + 1, src)
    A('v_lshlrev_b32 v%d, 16, v%d', tmp, f + 1)
    A('v_sub_f32 v%d, v%d, v%d', tmp, src, tmp)
    A('v_cvt_pk_bf16_f32 v%d, v%d, v%d', f, src, tmp)


def ln_finish(A, t0, t1, negmean, rstd):
    A('v_mul_f32 v%d, 0x%x, v%d', t0, 0x3b124925, t0)
    A('v_mov_b32 v%d, v%d', t1, t0)
    A('v_permlane32_swap_b32 v%d, v%d', t0, t1)
    A('v_fma_f32 v%d, -v%d, v%d, v%d', t1, t0, t0, t1)
    A('v_max_f32 v%d, 0, v%d', t1, t1)
    A('v_add_f32 v%d, 0x%x, v%d', t1, 0x3727c5ac, t1)
    A('v_rsq_f32 v%d, v%d', rstd, t1)
    A('v_sub_f32 v%d, 0, v%d', negmean, t0)


def softmax_pm(A, p, sc, e, t):
    A('v_cndmask_b32 v%d, v%d, v%d, s[%d:%d]', p + 12, p + 12, p + 14, sHI, sHI + 1)
    A('v_cndmask_b32 v%d, v%d, v%d, s[%d:%d]', p + 13, p + 13, p + 15, sHI, sHI + 1)
    mx, mn = t, t + 1
    A('v_max3_f32 v%d, v%d, v%d, v%d', mx, p, p + 1, p + 2)
    A('v_min3_f32 v%d, v%d, v%d, v%d', mn, p, p + 1, p + 2)
    for i in range(3, 13, 2):
        A('v_max3_f32 v%d, v%d, v%d, v%d', mx, mx, p + i, p + i + 1)
        A('v_min3_f32 v%d, v%d, v%d, v%d', mn, mn, p + i, p + i + 1)
    A('v_max_f32 v%d, v%d, v%d', mx, mx, p + 13)
    A('v_min_f32 v%d, v%d, v%d', mn, mn, p + 13)
    A('v_sub_f32 v%d, 0, v%d', mn, mn)
    A('v_permlane32_swap_b32 v%d, v%d', mx, mn)
    A('v_max_f32 v%d, v%d, v%d', mx, mx, mn)
    A('v_mul_f32 v%d, v%d, v%d', mx, mx, sc)
    A('v_mov_b32 v%d, v%d', mn, mx)
    A('v_permlane32_swap_b32 v%d, v%d', mx, mn)
    for i in range(14):
        A('v_fma_f32 v%d, -v%d, v%d, -v%d', e + i, p + i, sc, mn)
        A('v_fma_f32 v%d, v%d, v%d, -v%d', p + i, p + i, sc, mx)
        if i:
            A('v_exp_f32 v%d, v%d', e + i - 1, e + i - 1)
            A('v_exp_f32 v%d, v%d', p + i - 1, p + i - 1)
    A('v_exp_f32 v%d, v%d', e + 13, e + 13)
    A('v_exp_f32 v%d, v%d', p + 13, p + 13)
    if PKSM:
        for base in (p, e):
            A('v_pk_add_f32 v[%d:%d], v[%d:%d], v[%d:%d]', base + 14, base + 15, base, base + 1, base + 2, base + 3)
        for i in range(4, 14, 2):
            for base in (p, e):
                A('v_pk_add_f32 v[%d:%d], v[%d:%d], v[%d:%d]', base + 14, base + 15, base + 14, base + 15, base + i,
                  base + i + 1)
    else:
        for base in (p, e):
            A('v_add_f32 v%d, v%d, v%d', base + 14, base, base + 2)
            A('v_add_f32 v%d, v%d, v%d', base + 15, base + 1, base + 3)
        for i in range(4, 14):
            for base in (p, e):
                A('v_add_f32 v%d, v%d, v%d', base + 14 + (i & 1), base + 14 + (i & 1), base + i)
    sp, sn = t + 2, t
    A('v_add_f32 v%d, v%d, v%d', sp, p + 14, p + 15)
    A('v_add_f32 v%d, v%d, v%d', sn, e + 14, e + 15)
    A('v_permlane32_swap_b32 v%d, v%d', sp, sn)
    A('v_add_f32 v%d, v%d, v%d', sp, sp, sn)
    A('v_rcp_f32 v%d, v%d', sp, sp)
    A('v_mov_b32 v%d, v%d', sn, sp)
    A('v_permlane32_swap_b32 v%d, v%d', sp, sn)
    for i in range(0, 14, 2):
        for base, r in ((p, sp), (e, sn)):
            if PKSM:
                A('v_pk_mul_f32 v[%d:%d], v[%d:%d], v[%d:%d] op_sel_hi:[1,0]', base + i, base + i + 1, base + i,
                  base + i + 1, r, r + 1)
            else:
                A('v_mul_f32 v%d, v%d, v%d', base + i, base + i, r)
                A('v_mul_f32 v%d, v%d, v%d', base + i + 1, base + i + 1, r)
    for i, (a0, a1) in enumerate(((0, 1), (2, 3), (4, 5), (6, None), (7, 8), (9, 10), (11, 12), (13, None))):
        for base in (p, e):
            A('v_cvt_pk_bf16_f32 v%d, v%d, %s', base + i, base + a0, '0' if a1 is None else 'v%d' % (base + a1))


PKSM = E('PKSM', 1)


def cvt8(A, dst, src, n=8):
    for i in range(n):
        A('v_cvt_pk_bf16_f32 v%d, v%d, v%d', dst + i, src + 2 * i, src + 2 * i + 1)


def mfma(A, d, a_, b_, first=False):
    A('%s %s, %s, %s, %s', MFMA, v(d, 16), v(a_, 4), v(b_, 4), '0' if first else v(d, 16))


def merge(main, blocks, start, stop):
    idx = [i for i, l in enumerate(main) if l.strip().startswith('v_mfma')][start:stop]
    out, k = [], 0
    n = len(idx)
    pos = {i: j for j, i in enumerate(idx)}
    for i, l in enumerate(main):
        out.append(l)
        if i in pos:
            upto = (len(blocks) * (pos[i] + 1) + n - 1) // n
            for b in blocks[k:upto]:
                out += b
            k = max(k, upto)
    assert k >= len(blocks)
    return out


def sub(A):
    return Asm()


L_H = (L_A, L_A + 28672, 0, 65536)
W2S = [32768, 40960] + [L_A + k * 8192 for k in range(7)] + [k * 8192 for k in range(4)] + [
    65536 + k * 8192 for k in range(4)]
W2GATE = {2: 9, 5: 10, 9: 11, 13: 12}


def w2_slot(n):
    return W2S[n % 17]


def w1_slot(c):
    return B16[c % 5]


class LdsQ:
    def __init__(self, A):
        self.A, self.q = A, []
        self.peeked = False

    def op(self, tag, fmt, *a):
        self.A(fmt, *a)
        self.q.append(tag)

    def need(self, tag):
        idx = [i for i, x in enumerate(self.q) if x == tag]
        if not idx:
            return None
        n = len(self.q) - 1 - idx[-1]
        self.q = self.q[idx[-1] + 1:]
        return min(n, 15)

    def wait(self, tag, vm=None):
        n = self.need(tag)
        if n is None and vm is None:
            return
        self.A('s_waitcnt' + ('' if vm is None else ' vmcnt(%d)' % vm) + ('' if n is None else ' lgkmcnt(%d)' % n))

    def stage(self, n):
        set_stage(self.A, n)
        self.q.append('st')

    def peek(self, w):
        self.op('pk', 'ds_read_b32 v%d, v%d offset:%d', vPK_, vMI, M_PW + 4 * w)
        self.peeked = True

    def take(self, w):
        if not self.peeked:
            return
        self.peeked = False
        self.wait('pk')
        self.A('v_readfirstlane_b32 s%d, v%d', CACHE[w], vPK_)


def tag_compute(A):
    A('s_waitcnt lgkmcnt(0)')
    A('s_mul_i32 s%d, s%d, 0x%x', sTAG, sTAG, 1664525)
    A('s_add_u32 s%d, s%d, 0x%x', sTAG, sTAG, 1013904223)
    A('v_mov_b32 v%d, s%d', vTAG, sTAG)


def fast_check(A):
    A('s_getreg_b32 s%d, hwreg(HW_REG_XCC_ID)', sC)
    A('s_and_b32 s%d, s%d, 15', sC, sC)
    A('s_add_u32 s%d, s%d, s%d', sC, sC, sTAG)
    A('s_lshl_b32 s%d, s%d, 7', sT, sXCD)
    A('s_add_u32 s%d, s%d, %d', sT, sT, FREG)
    A('v_and_b32 v%d, 31, v%d', vT1, vL)
    A('v_lshlrev_b32 v%d, 2, v%d', vT1, vT1)
    A('buffer_load_dword v%d, v%d, s[%d:%d], s%d offen sc1', vT0, vT1, SWS, SWS + 3, sT)
    A('s_waitcnt vmcnt(0)')
    A('v_cmp_ne_u32 vcc, s%d, v%d', sC, vT0)
    A('s_cmp_eq_u64 vcc, 0')
    A('s_cselect_b32 s%d, 1, 0', sFASTF)


class Stream:
    def __init__(self, A, wave, depth, first=0):
        self.A, self.wave, self.depth = A, wave, depth
        self.items = []
        self.issued = 0
        self.known = 0
        self.n = first

    def wait_to(self, left):
        if self.issued - left <= self.known:
            return
        self.A('s_waitcnt vmcnt(%d)', left)
        self.known = self.issued - left
        last = None
        while self.items and self.items[0][1] <= self.known:
            last = self.items.pop(0)[0]
        if last is not None:
            set_stage(self.A, last)

    def room(self, k):
        self.wait_to(max(self.depth - k, 0))
        self.issued += k

    def done(self, name, cnt=None):
        self.n += 1
        assert LP.setdefault(name, (self.wave, self.n)) == (self.wave, self.n), name
        self.items.append((self.n, self.issued))

    def drain(self):
        self.drain_to(0)

    def drain_to(self, keep):
        while len(self.items) > keep:
            self.wait_to(self.issued - self.items[0][1])

    def save(self):
        return (list(self.items), self.issued, self.known)

    def restore(self, s):
        self.items, self.issued, self.known = list(s[0]), s[1], s[2]

    def dma4(self, lds, voffs, srd_, step=None, bits=''):
        A = self.A
        if isinstance(lds, tuple):
            A('s_add_u32 m0, s%d, %d', lds[0], lds[1])
        else:
            A('s_mov_b32 m0, %d', lds)
        self.room(4)
        for u in range(4):
            A('buffer_load_dwordx4 v%d, s[%d:%d], s%d offen offset:%d%s lds', voffs[u], srd_, srd_ + 3, sT, u * 1024,
              bits)
        if step:
            A('s_add_u32 s%d, s%d, %d', sT, sT, step)


def reg4(St, regs, voffs, srd_, step=None):
    St.room(4)
    for u in range(4):
        St.A('buffer_load_dwordx4 %s, v%d, s[%d:%d], s%d offen offset:%d', v(regs[u], 4), voffs[u], srd_, srd_ + 3, sT,
             u * 1024)
    if step:
        St.A('s_add_u32 s%d, s%d, %d', sT, sT, step)


def spill(St, name, regs, lds):
    A = St.A
    assert not St.items
    A('v_add_u32 v%d, %d, v%d', vT1, lds, vO)
    for j, r in enumerate(regs):
        A('ds_write_b128 v%d, %s offset:%d', vT1, v(r, 4), j * 1024)
    St.n += 1
    assert LP.setdefault(name, (St.wave, St.n)) == (St.wave, St.n), name
    set_stage(A, St.n)


def off128(A, vW128, vXo=None):
    A('v_lshrrev_b32 v%d, 3, v%d', vW128, vL)
    A('v_mul_u32_u24 v%d, 896, v%d', vW128, vW128)
    A('v_and_b32 v%d, 7, v%d', vT1, vL)
    if vXo is not None:
        A('v_lshl_add_u32 v%d, v%d, 4, v%d', vXo, vT1, vW128)
        spread4(A, vXo, 8 * 896)
    A('v_lshrrev_b32 v%d, 2, v%d', vT0, vL)
    A('v_and_b32 v%d, 4, v%d', vT0, vT0)
    A('v_xor_b32 v%d, v%d, v%d', vT1, vT1, vT0)
    A('v_lshl_add_u32 v%d, v%d, 4, v%d', vW128, vT1, vW128)
    spread4(A, vW128, 8 * 896)


def h_and_w2(A, wave, first):
    if wave != 7 and not W2REG:
        return
    St = Stream(A, wave, E('HDEPTH', 24), first)
    vW128 = 12
    off128(A, vW128)
    if wave == 7:
        A('s_lshl_b32 s%d, s%d, 17', sB, sTB3)
        A('s_add_u32 s%d, s%d, %d', sB, sB, WS_HB)
        rot_calc(A, sG, 'w1')
        for u in range(7):
            rot_idx(A, 4 + u, sG, u, 7)
            A('s_lshl_b32 s%d, s%d, 12', 4 + u, 4 + u)
            A('s_add_u32 s%d, s%d, s%d', 4 + u, 4 + u, sB)
            A('s_add_u32 s%d, s%d, 4096', 4 + u, 4 + u)
        A('s_lshl_b32 s%d, s%d, 8', sT2, sTB3)
        A('s_add_u32 s%d, s%d, %d', sT2, sT2, F3)
        A('v_lshlrev_b32 v%d, 2, v%d', vT1, vL)
        wait_stage(A, C0 + 7, sleep=1)
        stamp(A)
        lo, done = A.label('P'), A.label('PD')
        A('s_mov_b32 exec_lo, 0x3fff3fff')
        A('s_mov_b32 exec_hi, 0x3fff3fff')
        A('%s:', lo)
        A('buffer_load_dword v%d, v%d, s[%d:%d], s%d offen sc1', vT0, vT1, SWS, SWS + 3, sT2)
        A('s_waitcnt vmcnt(0)')
        A('v_cmp_ne_u32 vcc, s%d, v%d', sTAG, vT0)
        spin_guard(A, done)
        A('s_cbranch_vccnz %s', lo)
        A('%s:', done)
        A('s_mov_b64 exec, -1')
        stamp(A)
        for gi in range(4):
            if gi == 2:
                wait_stage(A, C0 + 8)
            for u in range(7):
                A('s_add_u32 s%d, s%d, %d', sT, 4 + u, gi * 32768)
                St.dma4(L_H[gi] + u * 4096, [vO] * 4, SWS, None, LDB)
                if u == 2:
                    A('s_add_u32 s%d, s%d, %d', sT, sB, gi * 32768)
                    St.dma4(L_SC0 + gi * 4096, [vO] * 4, SWS, None, ' sc1')
                if u % 2 == 0:
                    St.done(('h', gi, u // 2))
                if gi == 0 and u == E('HFIRST', 2):
                    St.drain_to(1)
        St.drain_to(E('HKEEP', 1))
    else:
        wait_stage(A, C0 + 8, sleep=2)
        wait_lp(A, ('h', E('W2AFTER', 3), E('W2AFTERQ', 1)), 1)
    stamp(A)
    w2_stage(St, wave)
    St.drain()
    St.wait_to(0)
    stamp(A)
    w2_spill(St, wave)


W2REG = E('W2REG', 0)
W2OWN = {7: (16, 17, 24, 25), 4: (18, 19, 26, 27), 5: (20, 21), 6: (22, 23)} if W2REG else {7: (), 4: (), 5: (), 6: ()}


def w2_stage(St, wave):
    A = St.A
    vW128 = 12
    A('s_lshl_b32 s%d, s%d, 7', sB, sNB)
    for j, n in enumerate(W2OWN[wave]):
        c, kh = n >> 1, n & 1
        A('s_add_u32 s%d, s%d, %d', sT, sB, (kh * 896 + c * 64) * 896)
        for u in range(2):
            r0 = 40 + 32 * j + 16 * u
            reg4(St, [r0, r0 + 4, r0 + 8, r0 + 12], [vW128 + k for k in range(4)], SW2, 32 * 896 if u < 1 else None)


def w2_spill(St, wave):
    A = St.A
    HELP['hot'] = True
    for j, n in enumerate(W2OWN[wave]):
        m = n - 17
        if n == 16:
            wait_stage(A, C0 + 12, sleep=2)
        else:
            wait_stage(A, C0 + 13 + (m >> 1), (0, 1) if (m & 1) == 0 else (2, 3), sleep=2 if j == 0 else 1)
        spill(St, ('w2', n), [40 + 32 * j + 4 * k for k in range(8)], w2_slot(n))
    HELP['hot'] = False


def spread4(A, base, step):
    for u in range(1, 4):
        A('v_add_u32 v%d, %d, v%d', base + u, u * (step - 1024), base)


def wtr_base(A):
    A('v_lshrrev_b32 v%d, 5, v%d', vT1, vL)
    A('v_bfe_u32 v%d, v%d, 2, 2', vT0, vL)
    A('v_lshl_add_u32 v%d, v%d, 3, v%d', vT0, vT1, vT0)
    A('v_lshlrev_b32 v%d, 6, v%d', vT0, vT0)
    A('v_bfe_u32 v%d, v%d, 4, 1', vTT, vL)
    A('v_lshl_add_u32 v%d, v%d, 5, v%d', vT0, vTT, vT0)
    A('v_and_b32 v%d, 3, v%d', vTT, vL)
    A('v_lshl_add_u32 v%d, v%d, 3, v%d', vT0, vTT, vT0)
    for pi in range(3):
        A('v_add_u32 v%d, %d, v%d', vWA + pi, L_WP[pi], vT0)
    A('v_lshlrev_b32 v%d, 3, v%d', vCA, vL)
    A('v_add_u32 v%d, %d, v%d', vCA, L_CF, vCA)


def sel_frags(A, vID):
    A('v_lshrrev_b32 v%d, 5, v%d', vT1, vL)
    A('v_and_b32 v%d, 31, v%d', vT0, vL)
    A('v_lshlrev_b32 v%d, 2, v%d', vTT, vT1)
    A('v_sub_u32 v%d, v%d, v%d', vT0, vT0, vTT)
    A('v_mov_b32 v%d, 0x3f80', vTT)
    A('v_mov_b32 v%d, 0x3f800000', vTT + 1)
    for sidx in range(2):
        for rr in range(4):
            m = 16 * sidx + 8 * (rr >> 1) + 2 * (rr & 1)
            A('v_cmp_eq_u32 vcc, %d, v%d', m, vT0)
            A('v_cndmask_b32 v%d, 0, v%d, vcc', vID + 4 * sidx + rr, vTT)
            A('v_cmp_eq_u32 vcc, %d, v%d', m + 1, vT0)
            A('v_cndmask_b32 v%d, v%d, v%d, vcc', vID + 4 * sidx + rr, vID + 4 * sidx + rr, vTT + 1)


def read_w(A, pi, i, buf, sleep=0):
    wait_lp(A, ('W', pi, i), sleep)
    for q in range(4):
        for z in range(2):
            A('ds_read_b64_tr_b16 v[%d:%d], v%d offset:%d', buf + 4 * q + 2 * z, buf + 4 * q + 2 * z + 1,
              vWA + pi, i * 4096 + q * 1024 + z * 256)


def colsum(A, spi):
    vCS, vB_, buf = 40, 44, 48
    A('v_mov_b32 v%d, 0', vCS)
    A('v_mov_b32 v%d, 0', vCS + 1)
    A('s_cmp_eq_u32 s%d, 1', spi)
    A('s_cselect_b32 s%d, 0, %d', sT, L_WP[2])
    A('s_cmp_eq_u32 s%d, 0', spi)
    A('s_cselect_b32 s%d, %d, s%d', sT, L_WP[0], sT)
    assert L_WP[1] == 0
    A('v_add_u32 v%d, s%d, v%d', vB_, sT, vWA + 1)
    A('s_mul_i32 s%d, s%d, 7', sC, spi)
    A('s_add_u32 s%d, s%d, 7', sT2, sC)
    top, lo, ok = A.label('CS'), A.label('W'), A.label('WD')
    A('%s:', top)
    A('s_cmp_gt_u32 s%d, s%d', sPROG, sC)
    A('s_cbranch_scc1 %s', ok)
    prio(A, 0)
    A('%s:', lo)
    A('ds_read_b32 v%d, v%d offset:%d', vPW, vMI, M_PW + 16)
    A('s_waitcnt lgkmcnt(0)')
    A('v_readfirstlane_b32 s%d, v%d', sPROG, vPW)
    spin_guard(A, ok)
    A('s_cmp_gt_u32 s%d, s%d', sPROG, sC)
    A('s_cbranch_scc0 %s', lo)
    prio(A, 1)
    A('%s:', ok)
    for q in range(4):
        for z in range(2):
            A('ds_read_b64_tr_b16 v[%d:%d], v%d offset:%d', buf + 4 * q + 2 * z, buf + 4 * q + 2 * z + 1, vB_,
              q * 1024 + z * 256)
    A('v_add_u32 v%d, 4096, v%d', vB_, vB_)
    A('s_add_u32 s%d, s%d, 1', sC, sC)
    for q in range(4):
        A('s_waitcnt lgkmcnt(%d)', 6 - 2 * q)
        for r in range(4):
            A('v_dot2c_f32_bf16 v%d, s%d, v%d', vCS + (r & 1), sONES, buf + 4 * q + r)
    A('s_cmp_lt_u32 s%d, s%d', sC, sT2)
    A('s_cbranch_scc1 %s', top)
    A('v_add_f32 v%d, v%d, v%d', vCS, vCS, vCS + 1)
    hilo_c(A, vCS, vCS + 2, vT0)
    A('s_lshl_b32 s%d, s%d, 9', sT, spi)
    A('v_add_u32 v%d, s%d, v%d', vB_, sT, vCA)
    A('ds_write_b64 v%d, v[%d:%d]', vB_, vCS + 2, vCS + 3)


ROT = E('ROT', 1)


def rot_calc(A, dst, kind):
    if not ROT:
        A('s_mov_b32 s%d, 0', dst)
        return
    if kind == 'w1':
        A('s_and_b32 s%d, s%d, 1', dst, sTB3)
        A('s_mul_i32 s%d, s%d, 3', dst, dst)
        mod = 7
    elif kind == 'wo':
        A('s_and_b32 s%d, s%d, 3', dst, sTQ)
        A('s_lshl_b32 s%d, s%d, 1', dst, dst)
        mod = 7
    else:
        A('s_and_b32 s%d, s%d, 3', dst, sTQ)
        A('s_mul_i32 s%d, s%d, 7', dst, dst)
        A('s_lshr_b32 s%d, s%d, 1', dst, dst)
        mod = 14
    A('s_add_u32 s%d, s%d, s%d', dst, dst, sXCD)
    A('s_cmp_ge_u32 s%d, %d', dst, mod)
    A('s_cselect_b32 s%d, %d, 0', sT, mod)
    A('s_sub_u32 s%d, s%d, s%d', dst, dst, sT)


def rot_idx(A, dst, rot, j, mod):
    A('s_add_u32 s%d, s%d, %d', dst, rot, j)
    A('s_cmp_ge_u32 s%d, %d', dst, mod)
    A('s_cselect_b32 s%d, %d, 0', sT2, mod)
    A('s_sub_u32 s%d, s%d, s%d', dst, dst, sT2)


def rest_srds(A):
    A('s_add_u32 s82, s80, %d', FEP)
    A('s_addc_u32 s83, s81, 0')
    A('s_load_dword s%d, s[82:83], 0', sTAG)
    srd(A, SP, 68, H * DH * DH * 2)
    srd(A, SWO, 70, D * D * 2)
    srd(A, SW1, 74, D * F * 2)
    srd(A, SW2, 76, D * F * 2)
    srd(A, SOUT, 78, S * D * 2)
    srd(A, SWS, 80, WS_SIZE)


def rot_next(A):
    A('s_add_u32 s%d, s%d, 1', sC, sC)
    A('s_cmp_eq_u32 s%d, 7', sC)
    A('s_cselect_b32 s%d, 0, s%d', sC, sC)


def sig_dyn(A, sval):
    A('v_mov_b32 v%d, s%d', vT0, sval)
    A('ds_write_b32 v%d, v%d', vMY, vT0)


def early_offsets(A):
    A('v_lshrrev_b32 v%d, 3, v%d', vT0, vL)
    A('v_mul_u32_u24 v%d, 896, v%d', vT0, vT0)
    A('v_lshrrev_b32 v%d, 4, v%d', vT1, vL)
    A('v_and_b32 v%d, 7, v%d', vXD, vL)
    A('v_xor_b32 v%d, v%d, v%d', vXD, vXD, vT1)
    A('v_xor_b32 v%d, 4, v%d', vXD + 1, vXD)
    A('v_lshl_add_u32 v%d, v%d, 4, v%d', vXD, vXD, vT0)
    A('v_lshl_add_u32 v%d, v%d, 4, v%d', vXD + 1, vXD + 1, vT0)
    A('v_add_u32 v%d, %d, v%d', vXD + 1, 8 * 896 - 1024, vXD + 1)
    A('v_add_u32 v%d, %d, v%d', vXD + 2, 2 * (8 * 896 - 1024), vXD)
    A('v_add_u32 v%d, %d, v%d', vXD + 3, 2 * (8 * 896 - 1024), vXD + 1)
    vW = 40
    A('v_lshrrev_b32 v%d, 2, v%d', vW, vL)
    A('v_mul_u32_u24 v%d, 2688, v%d', vW, vW)
    A('v_and_b32 v%d, 3, v%d', vT1, vL)
    A('v_lshl_add_u32 v%d, v%d, 4, v%d', vW, vT1, vW)
    A('s_mul_i32 s%d, s%d, 56', sT, sH)
    A('s_and_b32 s%d, s%d, 0xfffffff0', sT, sT)
    A('v_add_u32 v%d, s%d, v%d', vW, sT, vW)
    spread4(A, vW, 16 * 2688)
    A('s_mul_i32 s%d, s%d, %d', sXB, sTB, 128 * 896)
    A('s_mov_b32 s%d, s%d', sC, sC0)


def early_x(A):
    depth = E('XDEPTH', 16)
    wsig = ((depth - 4) // 4) % 4
    lag = (depth - 4 - 4 * wsig) // 16
    A('s_mov_b32 s%d, %d', sG, -lag)
    A('s_mov_b32 m0, %d', L_X)
    top = A.label('XL')
    A('%s:', top)
    A('s_lshl_b32 s%d, s%d, 7', sT, sC)
    A('s_add_u32 s%d, s%d, s%d', sT, sT, sXB)
    for w in range(4):
        A('s_waitcnt vmcnt(%d)', depth - 4)
        if w == wsig:
            A('s_max_i32 s%d, s%d, 0', sT2, sG)
            sig_dyn(A, sT2)
        for u in range(4):
            A('buffer_load_dwordx4 v%d, s[%d:%d], s%d offen offset:%d lds', vXD + u, SX, SX + 3, sT, u * 1024)
        A('s_add_u32 m0, m0, 4096')
        if w < 3:
            A('s_add_u32 s%d, s%d, %d', sT, sT, 32 * 896)
    rot_next(A)
    A('s_add_u32 s%d, s%d, 1', sG, sG)
    A('s_cmp_lt_i32 s%d, %d', sG, 7 - lag)
    A('s_cbranch_scc1 %s', top)
    stamp(A)
    for n in range(7 - lag, 8):
        A('s_waitcnt vmcnt(%d)', 16 * (7 - n))
        set_stage(A, n)


def early_w(A):
    vW = 40

    def part_loop(pi, depth, floor):
        lag = (depth - 4) // 4
        stamp(A)
        A('s_mov_b32 s%d, s%d', sC, sC0)
        A('s_mov_b32 s%d, %d', sG, 7 * pi - lag)
        A('s_mov_b32 m0, %d', L_WP[pi])
        top = A.label('WL')
        A('%s:', top)
        A('s_mul_i32 s%d, s%d, %d', sT, sC, 64 * 2688)
        A('s_add_u32 s%d, s%d, %d', sT, sT, (1, 2, 0)[pi] * 896)
        A('s_max_i32 s%d, s%d, %d', sT2, sG, floor)
        A('s_waitcnt vmcnt(%d)', depth - 4)
        sig_dyn(A, sT2)
        for u in range(4):
            A('buffer_load_dwordx4 v%d, s[%d:%d], s%d offen offset:%d lds', vW + u, SW, SW + 3, sT, u * 1024)
        A('s_add_u32 m0, m0, 4096')
        rot_next(A)
        A('s_add_u32 s%d, s%d, 1', sG, sG)
        A('s_cmp_lt_i32 s%d, %d', sG, 7 * pi + 7 - lag)
        A('s_cbranch_scc1 %s', top)
        return lag
    lag = part_loop(0, E('WDEPTH', 8), 0)
    for n in range(7 - lag, 8):
        A('s_waitcnt vmcnt(%d)', 4 * (7 - n))
        set_stage(A, n)
    wait_stage(A, 1)
    if E('XG2', 4) >= 0:
        wait_lp(A, ('x', E('XG2', 4)))
    part_loop(1, E('WDEPTH2', 24), 7)


def gen_h0(A):
    St = Stream(A, 4, E('WDEPTH2', 24), 14)
    St.issued = 56
    St.known = 56 - St.depth
    St.items = [(n + 1, 4 * n + 4) for n in range(14) if 4 * n + 4 > St.known]
    vW, vW128, vXo, vW256 = 36, 12, 16, 20
    q4 = lambda b: [b, b + 1, b + 2, b + 3]
    for u in range(4):
        A('v_mov_b32 v%d, v%d', vW + u, 40 + u)
    rest_srds(A)

    def wq():
        wait_stage(A, 2)
        stamp(A)
        for i in range(7):
            rot_idx(A, sT, sC0, i, 7)
            A('s_mul_i32 s%d, s%d, %d', sT, sT, 64 * 2688)
            St.dma4(L_WP[2] + i * 4096, q4(vW), SW)
            St.done(('W', 2, i))
    lend = A.label('LEND')
    act = A.label('ACT')
    A('s_cmp_lt_u32 s%d, 28', sI)
    A('s_cbranch_scc1 %s', act)
    keep, n0 = St.save(), _st['n']
    wq()
    St.drain()
    St.restore(keep)
    St.n = 14
    if E('TOUCH', 1):
        def touch(srd_, base, per_xcd, n):
            A('s_mul_i32 s%d, s%d, %d', sT, sXCD, per_xcd)
            A('s_sub_u32 s%d, s%d, 28', sT2, sI)
            A('s_mul_i32 s%d, s%d, %d', sT2, sT2, n * 8192)
            A('s_add_u32 s%d, s%d, s%d', sT, sT, sT2)
            A('s_add_u32 s%d, s%d, %d', sT, sT, base)
            A('s_mov_b32 s%d, %d', sC, n)
            lo = A.label('T')
            A('%s:', lo)
            A('buffer_load_dword v%d, v%d, s[%d:%d], s%d offen', vW + 1, vW, srd_, srd_ + 3, sT)
            A('s_add_u32 s%d, s%d, 8192', sT, sT)
            A('s_waitcnt vmcnt(%d)', E('TDEPTH', 6))
            A('s_sub_u32 s%d, s%d, 1', sC, sC)
            A('s_cmp_lg_u32 s%d, 0', sC)
            A('s_cbranch_scc1 %s', lo)
        A('v_lshlrev_b32 v%d, 7, v%d', vW, vL)
        if E('TEARLY', 0):
            wait_stage(A, 3, (5, 6), sleep=2)
        else:
            wait_stage(A, C0 + 5, sleep=2)
        stamp(A)
        if HLATE and not WTO:
            touch(SWS, WS_HB, 262144, 8)
        stamp(A)
        if not WT1:
            touch(SWS, WS_H1B, 8 * 112 * 1024, 28)
        stamp(A)
        if E('W2WARM', 0):
            touch(SW2, 0, 0, 49)
        stamp(A)
    _st['n'] = n0
    A('s_branch %s', lend)
    A('%s:', act)
    off128(A, vW128)
    A('v_lshrrev_b32 v%d, 4, v%d', vW256, vL)
    A('v_mul_u32_u24 v%d, 3584, v%d', vW256, vW256)
    A('v_and_b32 v%d, 15, v%d', vT1, vL)
    A('v_lshrrev_b32 v%d, 2, v%d', vT0, vL)
    A('v_and_b32 v%d, 12, v%d', vT0, vT0)
    A('v_xor_b32 v%d, v%d, v%d', vT1, vT1, vT0)
    A('v_lshl_add_u32 v%d, v%d, 4, v%d', vW256, vT1, vW256)
    spread4(A, vW256, 4 * 3584)
    A('s_lshl_b32 s%d, s%d, 7', sB, sNB)

    sR1, sRO, sR2 = sG, sKH, sXB
    rot_calc(A, sR1, 'w1')
    rot_calc(A, sRO, 'wo')
    rot_calc(A, sR2, 'w2')

    def w1_off(c):
        rot_idx(A, sT, sR1, c, 7)
        A('s_mul_i32 s%d, s%d, %d', sT, sT, 64 * 3584)
        A('s_lshl_b32 s%d, s%d, 8', sT2, sFB)
        A('s_add_u32 s%d, s%d, s%d', sT, sT, sT2)

    def w1_chunk(c):
        w1_off(c)
        for u in range(4):
            St.dma4(w1_slot(c) + u * 4096, q4(vW256), SW1, 16 * 3584 if u < 3 else None)
        St.done(('w1', c), 16)

    def w2_item(n):
        c, kh = n >> 1, n & 1
        rot_idx(A, sT, sR2, c, 14)
        A('s_mul_i32 s%d, s%d, %d', sT, sT, 64 * 896)
        A('s_add_u32 s%d, s%d, s%d', sT, sT, sB)
        if kh:
            A('s_add_u32 s%d, s%d, %d', sT, sT, 896 * 896)
        for u in range(2):
            St.dma4(w2_slot(n) + u * 4096, q4(vW128), SW2, 32 * 896 if u < 1 else None)
        St.done(('w2', n), 8)

    SR = [24, 28] + list(range(40, 256, 4))

    def staged():
        for u in range(12):
            if u % 4 == 0:
                w1_off(4 + u // 4)
            reg4(St, SR[8 + 4 * u:12 + 4 * u], q4(vW256), SW1, 16 * 3584)
            if u == 5:
                St.depth = E('LDEPTH', 32)

    def wo():
        St.drain_to(3)
        wait_stage(A, 3)
        wait_word(A, 5, 1)
        stamp(A)
        for c in range(7):
            rot_idx(A, sC, sRO, c, 7)
            A('s_mul_i32 s%d, s%d, %d', sT, sC, 64 * 896)
            A('s_add_u32 s%d, s%d, s%d', sT, sT, sB)
            A('s_lshl_b32 s%d, s%d, 13', sC, sC)
            for u in range(2):
                St.dma4((sC, L_A + u * 4096), q4(vW128), SWO, 32 * 896 if u < 1 else None)
            if c == 2:
                St.depth = E('LDEPTH', 32)
        St.done('wo')
    def quiet():
        St.drain()
        if E('QLONG', 0):
            wait_stage(A, C0 + 5, sleep=1)
        else:
            wait_stage(A, 3, (5, 6), sleep=1)
    if E('ORDER', 1) == 0:
        wq(), wo(), staged()
    elif E('ORDER', 1) == 3:
        wq(), quiet(), wo(), staged()
    elif E('ORDER', 1) == 4:
        wq(), wo(), quiet(), staged()
    elif E('ORDER', 1) == 5:
        staged()
        St.depth = E('WDEPTH2', 24)
        wq(), wo(), quiet()
    else:
        if E('ORDER', 1) == 2:
            St.drain_to(2)
        staged()
        St.depth = E('WDEPTH2', 24)
        wq(), wo()
    stamp(A)
    wait_stage(A, 2, (5, 6))
    stamp(A)
    for c in range(4):
        w1_chunk(c)
    St.drain()
    stamp(A)
    wait_stage(A, C0 + 3)
    wait_word(A, 7, 8)
    spill(St, ('w1', 4), SR[8:24], w1_slot(4))
    wait_stage(A, 1, base=M_CP)
    spill(St, ('w1', 5), SR[24:40], w1_slot(5))
    spill(St, ('w1', 6), SR[40:56], w1_slot(6))
    stamp(A)
    wait_stage(A, C0 + 8, sleep=1)
    wait_lp(A, ('h', E('W2AFTER', 3), E('W2AFTERQ', 1)), 1)
    stamp(A)
    St.depth = E('W2DEPTH', 24)
    for n in range(16):
        if n == E('W4STAGE', 9):
            w2_stage(St, 4)
        if n in W2GATE:
            St.drain()
            wait_stage(A, C0 + W2GATE[n])
        w2_item(n)
    if not W2REG:
        w2_item(16)
        St.depth = E('W2DEPTH3', 32)
        for n in range(17, 28):
            m = n - 17
            wait_stage(A, C0 + 13 + (m >> 1), (0, 1) if (m & 1) == 0 else (2, 3))
            w2_item(n)
    St.drain()
    stamp(A)
    w2_spill(St, 4)
    A('%s:', lend)
    A('s_waitcnt lgkmcnt(0)')
    stamp_flush(A)
    A('s_endpgm')


def gen_h1(A):
    stamp(A)
    rest_srds(A)
    wtr_base(A)
    tag_compute(A)
    def extras():
        if WARM:
            for srd_, size in ((SWO, D * D * 2), (SW1, D * F * 2), (SW2, D * F * 2)):
                A('s_mul_i32 s%d, s2, %d', sT, size // 256)
                A('v_lshlrev_b32 v%d, 7, v%d', vT1, vL)
                A('s_mov_b64 exec, 0x%x', (1 << ((size // 256 + 127) // 128)) - 1) if size // 256 < 4096 else None
                if size // 256 >= 4096:
                    A('s_mov_b32 exec_hi, 0x%x', (1 << ((size // 256 + 127) // 128 - 32)) - 1)
                A('buffer_load_dword v64, v%d, s[%d:%d], s%d offen', vT1, srd_, srd_ + 3, sT)
                A('s_mov_b64 exec, -1')
        if E('TOUCH', 1) and not WTO:
            A('s_lshl_b32 s%d, s%d, 18', sT, sXCD)
            A('s_lshl_b32 s%d, s%d, 13', sT2, sI)
            A('s_add_u32 s%d, s%d, s%d', sT, sT, sT2)
            A('v_lshlrev_b32 v%d, 7, v%d', vT1, vL)
            for base in ([WS_OB] if MAP == 0 else []) + ([] if HLATE else [WS_HB]):
                A('s_add_u32 s%d, s%d, %d', sT2, sT, base)
                A('buffer_load_dword v64, v%d, s[%d:%d], s%d offen', vT1, SWS, SWS + 3, sT2)

    if TOUCHAT == 1:
        wait_lp(A, ('W', 1, 6), 1)
    if TOUCHAT <= 1:
        extras()
    if FAST:
        fast_check(A)
        A('v_mov_b32 v%d, s%d', vT0, sFASTF)
        A('ds_write_b32 v%d, v%d offset:%d', vMI, vT0, M_FAST)
    A('s_mov_b32 s%d, 2', sG)
    colsum(A, sG)
    set_stage(A, 8)
    if TOUCHAT == 2:
        extras()
    stamp(A)
    lend = A.label('LEND')
    A('s_cmp_ge_u32 s%d, 28', sI)
    A('s_cbranch_scc1 %s', lend)
    h_and_w2(A, 7, 8)
    A('%s:', lend)
    A('s_waitcnt lgkmcnt(0)')
    stamp_flush(A)
    A('s_endpgm')


def gen_h23(A):
    vID, vAF, vVF, vAC, vG = 64, 72, 104, 136, 72
    rest_srds(A)
    sTL = sKH
    A('s_sub_u32 s%d, s%d, 5', sTL, sWV)
    skip = A.label('NOST')
    A('s_cmp_eq_u32 s%d, 1', sTL)
    A('s_cbranch_scc1 %s', skip)
    A('s_mul_i32 s%d, s%d, 1568', sT, sH)
    A('s_mov_b32 m0, %d', L_PHI)
    A('buffer_load_dwordx4 v%d, s[%d:%d], s%d offen lds', vO, SP, SP + 3, sT)
    A('buffer_load_dwordx4 v%d, s[%d:%d], s%d offen offset:1024 lds', vO, SP, SP + 3, sT)
    if CODEPF:
        A('s_mul_i32 s%d, s%d, %d', sT, sI, 1280)
        A('v_lshlrev_b32 v%d, 7, v%d', vT1, vL)
        A('v_add_u32 v%d, s%d, v%d', vT1, sT, vT1)
        A('s_mov_b64 exec, 0x3ff')
        A('global_load_dword v72, v%d, s[%d:%d]', vT1, sPC, sPC + 1)
        A('s_mov_b64 exec, -1')
    A('%s:', skip)
    if E('TLB', 0):
        A('v_lshlrev_b32 v%d, 20, v%d', vT1, vL)
        A('s_lshl_b32 s%d, s%d, 7', sT, sI)
        for srd_ in (SWS, SOUT, SWO, SW1, SW2):
            A('buffer_load_dword v73, v%d, s[%d:%d], s%d offen', vT1, srd_, srd_ + 3, sT)
    wtr_base(A)
    sel_frags(A, vID)
    tag_compute(A)
    if FAST:
        skip = A.label('NORG')
        A('s_cmp_eq_u32 s%d, 0', sTL)
        A('s_cbranch_scc1 %s', skip)
        A('s_getreg_b32 s%d, hwreg(HW_REG_XCC_ID)', sT2)
        A('s_and_b32 s%d, s%d, 15', sT2, sT2)
        A('s_add_u32 s%d, s%d, s%d', sT2, sT2, sTAG)
        A('v_mov_b32 v%d, s%d', vT0, sT2)
        A('s_lshl_b32 s%d, s%d, 7', sT, sXCD)
        A('s_lshl_b32 s%d, s%d, 2', sT2, sI)
        A('s_add_u32 s%d, s%d, s%d', sT, sT, sT2)
        A('s_add_u32 s%d, s%d, %d', sT, sT, FREG)
        A('s_mov_b64 exec, 1')
        A('buffer_store_dword v%d, v%d, s[%d:%d], s%d offen sc1', vT0, vO, SWS, SWS + 3, sT)
        A('s_mov_b64 exec, -1')
        A('%s:', skip)
    if E('WARM6', -2) >= -1:
        skip = A.label('NOWM')
        A('s_cmp_eq_u32 s%d, 0', sTL)
        A('s_cbranch_scc1 %s', skip)
        if E('WARM6', -2) >= 0:
            wait_lp(A, ('x', E('WARM6', -2)), 1)
        lst = [(SWO, D * D * 2, 0), (SW1, D * F * 2, 0), (SW2, D * F * 2, 0)]
        if E('WARMW', 0):
            lst = [(SW, D * 3 * D * 2, 0)] + lst
        for srd_, size, _ in lst:
            A('s_mul_i32 s%d, s2, %d', sT, size // 256)
            A('v_lshlrev_b32 v%d, 7, v%d', vT1, vL)
            nl = (size // 256 + 127) // 128
            if nl < 32:
                A('s_mov_b64 exec, 0x%x', (1 << nl) - 1)
            else:
                A('s_mov_b32 exec_hi, 0x%x', (1 << (nl - 32)) - 1)
            A('buffer_load_dword v73, v%d, s[%d:%d], s%d offen', vT1, srd_, srd_ + 3, sT)
            A('s_mov_b64 exec, -1')
        A('%s:', skip)
    if MAP == 3:
        A('s_lshl_b32 s%d, s%d, 4', sT, sH)
        A('s_add_u32 s%d, s%d, s%d', sT, sT, sTB)
        A('s_lshl_b32 s%d, s%d, 12', sT, sT)
        A('s_lshl_b32 s%d, s%d, 11', sT2, sTL)
        A('s_add_u32 s%d, s%d, s%d', sT, sT, sT2)
        A('v_lshlrev_b32 v%d, 7, v%d', vT1, vL)
        A('s_mov_b64 exec, 0xffff')
        A('buffer_load_dword v73, v%d, s[%d:%d], s%d offen', vT1, SWS, SWS + 3, sT)
        A('s_mov_b64 exec, -1')
    colsum(A, sTL)
    A('s_waitcnt vmcnt(0)')
    set_stage(A, 1)
    stamp(A)
    A('s_lshl_b32 s%d, s%d, 11', sT2, sTL)
    A('v_add_u32 v%d, s%d, v%d', vTT, sT2, vO)
    A('v_add_u32 v%d, %d, v%d', vTT + 1, L_KVA, vTT)
    A('v_add_u32 v%d, %d, v%d', vTT + 2, L_KVV, vO)
    A('s_lshl_b32 s%d, s%d, 16', sXB, sH)
    A('s_add_u32 s%d, s%d, s%d', sXB, sXB, sT2)
    A('s_add_u32 s%d, s%d, %d', sXB, sXB, WS_KVP)
    A('s_lshl_b32 s%d, s%d, 12', sB, sTB)
    A('s_add_u32 s%d, s%d, s%d', sB, sB, sXB)
    A('s_lshl_b32 s%d, s%d, 1', sM0, sH)
    A('s_add_u32 s%d, s%d, s%d', sM0, sM0, sTL)
    FSH = E('F1SH', 8)
    A('s_lshl_b32 s%d, s%d, %d', sM0, sM0, 4 + FSH)
    A('s_add_u32 s%d, s%d, %d', sM0, sM0, F1)
    A('s_lshl_b32 s%d, s%d, 2', sFL, sTB)
    A('s_add_u32 s%d, s%d, s%d', sFL, sFL, sM0)
    A('s_lshl_b32 s%d, s%d, %d', sT, sTB, FSH)
    A('s_add_u32 s%d, s%d, s%d', sM0, sM0, sT)
    A('s_add_u32 s%d, s%d, s%d', sPC, SWS, sM0)
    A('s_addc_u32 s%d, s%d, 0', sPC + 1, SWS + 1)
    A('v_lshlrev_b32 v%d, %d, v%d', vXA, FSH, vL)
    A('v_lshlrev_b32 v%d, 2, v%d', vXA + 1, vL)
    if MAP == 3 and FAST:
        wait_lp(A, ('W', 1, 3), 2)
        fast_check(A)

    vTA = 152
    wait_stage(A, C0)
    for k in range(8):
        A('ds_read_b128 %s, v%d offset:%d', v(vVF + 4 * k, 4), vTT + 1, (k >> 1) * 4096 + (k & 1) * 1024)
    for k in range(8):
        A('s_waitcnt lgkmcnt(%d)', 7 - k)
        mfma(A, vTA + 16 * (k >> 1), vVF + 4 * k, vID + 4 * (k & 1), (k & 1) == 0)
    for w in range(4):
        cvt8(A, vAF + 8 * w, vTA + 16 * w)

    def v_reads():
        for k in range(8):
            A('ds_read_b128 %s, v%d offset:%d', v(vVF + 4 * k, 4), vTT + 2, (k >> 1) * 4096 + (k & 1) * 1024)
        return 8
    wait_stage(A, C0 + 1, body=v_reads)
    stamp(A)
    for k in range(8):
        A('s_waitcnt lgkmcnt(%d)', 7 - k)
        mfma(A, vAC, vAF + 4 * k, vVF + 4 * k, k == 0)
    set_stage(A, 2)
    cvt8(A, vAF, vAC)
    pub_stores(A, [st4(vAF + 4 * q, sB, q * 1024) for q in range(2)], MAP == 3)
    if not E('NODRAIN', 0):
        A('s_waitcnt vmcnt(0)')
    A('s_mov_b64 exec, 0xffff')
    two_ways(A, lambda B, bits: B('buffer_store_dword v%d, v%d, s[%d:%d], s%d offen%s', vTAG, vXA, SWS, SWS + 3, sFL,
                                  bits), MAP == 3)
    A('s_mov_b64 exec, -1')
    stamp(A)
    sRDY, sPND, sRET = sHI, sHI + 1, sPADL
    base = 68 if STAMPS else 72
    pol = A.label('POLL')
    B = sub(A)
    lo, out = B.label('P'), B.label('PD')
    B('%s:', pol)
    B('%s:', lo)
    if E('PSLEEP', 0):
        B('s_sleep %d', E('PSLEEP', 0))
    if E('SPOLL', 1) and MAP == 0:
        B('s_load_dwordx16 s[%d:%d], s[%d:%d], 0 glc', base, base + 15, sPC, sPC + 1)
        B('s_mov_b32 s%d, 0', sRDY)
        B('s_waitcnt lgkmcnt(0)')
        for p_ in range(15, -1, -1):
            B('s_cmp_eq_u32 s%d, s%d', base + p_, sTAG)
            B('s_addc_u32 s%d, s%d, s%d', sRDY, sRDY, sRDY)
    else:
        B('s_mov_b64 exec, 0xffff')
        B('buffer_load_dword v%d, v%d, s[%d:%d], s%d offen sc1', vT0, vXA + 1, SWS, SWS + 3, sM0)
        B('s_waitcnt vmcnt(0)')
        B('v_cmp_eq_u32 vcc, s%d, v%d', sTAG, vT0)
        B('s_mov_b64 exec, -1')
        B('s_mov_b32 s%d, vcc_lo', sRDY)
    B('s_sub_u32 s%d, s%d, 1', sSPIN, sSPIN)
    B('s_cselect_b32 s%d, -1, s%d', sRDY, sRDY)
    B('s_and_b32 s%d, s%d, s%d', sRDY, sRDY, sPND)
    B('s_cbranch_scc0 %s', lo)
    B('s_setpc_b64 s[%d:%d]', sRET, sRET + 1)
    over = A.label('OV')
    A('s_branch %s', over)
    A.lines += B.lines
    A('%s:', over)
    A('s_mov_b32 s%d, 0', sRDY)
    A('s_mov_b32 s%d, 0xffff', sPND)
    vG = [72 + 4 * k for k in range(16)] + [152 + 4 * k for k in range(16)]
    GD = E('GLAG', 8)

    def gmm(k, issued):
        for q in range(2):
            A('s_waitcnt vmcnt(%d)', 2 * issued - (2 * k + q) - 1)
            mfma(A, vAC, vID + 4 * q, vG[2 * k + q], k == 0 and q == 0)
    for k in range(16):
        A('s_getpc_b64 s[%d:%d]', sRET, sRET + 1)
        A('s_cmp_eq_u32 s%d, 0', sRDY)
        A('s_cbranch_scc1 %s', pol)
        A('s_ff1_i32_b32 s%d, s%d', sT, sRDY)
        A('s_bitset0_b32 s%d, s%d', sRDY, sT)
        A('s_bitset0_b32 s%d, s%d', sPND, sT)
        A('s_lshl_b32 s%d, s%d, 12', sT, sT)
        A('s_add_u32 s%d, s%d, s%d', sT, sT, sXB)
        for q in range(2):
            A('buffer_load_dwordx4 %s, v%d, s[%d:%d], s%d offen offset:%d sc1', v(vG[2 * k + q], 4), vO, SWS, SWS + 3,
              sT, q * 1024)
        if k == E('GST', 15):
            stamp(A)
        if k >= GD:
            gmm(k - GD, k + 1)
    for k in range(16 - GD, 16):
        gmm(k, 16)
    A('v_add_u32 v%d, %d, v%d', vTT, L_EX, vTT)
    cvt8(A, 72, vAC)
    for q in range(2):
        A('ds_write_b128 v%d, %s offset:%d', vTT, v(72 + 4 * q, 4), q * 1024)
    set_stage(A, 3)
    stamp(A)
    lend = A.label('LEND')
    A('s_cmp_ge_u32 s%d, 28', sI)
    A('s_cbranch_scc1 %s', lend)
    l5 = A.label('H5')
    A('s_cmp_eq_u32 s%d, 0', sTL)
    A('s_cbranch_scc1 %s', l5)
    A('s_mov_b32 s%d, 0', CACHE[5])
    A('v_lshlrev_b32 v%d, 2, v%d', vXA, vL)
    A('v_add_u32 v%d, %d, v%d', vTT + 2, L_EX, vO)
    wait_stage(A, C0 + 7, sleep=2)
    HELP['hot'] = True
    for gi in range(4):
        wait_lp(A, ('h', gi, 1), 1)
        base = L_SC0 + gi * 4096
        for q in range(7):
            A('ds_read2st64_b32 v[%d:%d], v%d offset0:%d offset1:%d', 72 + 2 * q, 73 + 2 * q, vXA,
              base // 256 + 2 * q, base // 256 + 2 * q + 1)
        A('s_waitcnt lgkmcnt(0)')
        for q in range(2, 14):
            A('v_add_f32 v%d, v%d, v%d', 72 + (q & 1), 72 + (q & 1), 72 + q)
        A('v_add_f32 v%d, v72, v73', vTT)
        ln_finish(A, vTT, vTT + 1, vNM, vRS)
        hilo_m(A, vNM, 88, vT0)
        A('v_mul_f32 v90, v%d, v%d', vTT + 1, vRS)
        A('v_mul_f32 v91, 0x%x, v%d', LOG2E ^ 0x80000000, vRS)
        A('ds_write_b128 v%d, v[88:91] offset:%d', vTT + 2, gi * 1024)
        set_stage(A, 4 + gi)
    HELP['hot'] = False
    n6 = _st['n']
    h_and_w2(A, 6, 7)
    _st['n'] = n6
    A('s_branch %s', lend)
    A('%s:', l5)
    h_and_w2(A, 5, 3)
    A('%s:', lend)
    A('s_waitcnt lgkmcnt(0)')
    stamp_flush(A)
    A('s_endpgm')


def refresh_routines(A):
    for w in (7, 4, 5, 6):
        if w in (5, 6) and not W2REG:
            continue
        A('REFRESH_%d:', w)
        A('ds_read_b32 v%d, v%d offset:%d', vPW, vMI, M_PW + 4 * w)
        A('s_waitcnt lgkmcnt(0)')
        A('v_readfirstlane_b32 s%d, v%d', CACHE[w], vPW)
        A('s_sub_u32 s%d, s%d, 1', sSPIN, sSPIN)
        A('s_cselect_b32 s%d, -1, s%d', CACHE[w], CACHE[w])
        A('s_setpc_b64 s[%d:%d]', sPC, sPC + 1)


def gen_compute(A):
    vPH, vID, vWF, vAC, vPK = 40, 48, 56, 88, 120
    vMF, vCF = 136, 140
    vE = vWF
    vAC2 = vAC + 16
    vX = vXR
    A('s_setprio %d', E('CPRIO', 1))
    rest_srds(A)
    A('s_lshl_b32 s%d, s%d, 12', sM0, sWV)
    A('v_and_b32 v%d, 31, v%d', vT0, vL)
    A('v_lshlrev_b32 v%d, 7, v%d', vTT, vT0)
    A('v_add_u32 v%d, s%d, v%d', vTT, sM0, vTT)
    A('v_bfe_u32 v%d, v%d, 1, 3', vT0, vL)
    A('v_lshrrev_b32 v%d, 5, v%d', vT1, vL)
    A('v_xor_b32 v%d, v%d, v%d', vT0, vT0, vT1)
    for q in range(4):
        A('v_xor_b32 v%d, %d, v%d', vXA + q, 2 * q, vT0)
        A('v_lshl_add_u32 v%d, v%d, 4, v%d', vXA + q, vXA + q, vTT)
    wtr_base(A)
    for r in (vSM, vSM + 1, vSQ, vSQ + 1, vMF + 2, vMF + 3, vCF + 2, vCF + 3):
        A('v_mov_b32 v%d, 0', r)
    A('s_mov_b32 s%d, 0', sHI)
    A('s_mov_b32 s%d, -1', sHI + 1)
    A('s_bitcmp1_b32 s%d, 0', sH)
    A('s_cselect_b32 s%d, 0xf, 0xf0000000', sPADL)
    A('s_mov_b32 s%d, s%d', sPADL + 1, sPADL)
    A('s_cselect_b32 s%d, -1, 0', sZA)
    A('s_mov_b32 s%d, 0', sZA + 1)
    A('s_mov_b32 s%d, 0', sZB)
    A('s_cselect_b32 s%d, 0, -1', sZB + 1)
    A('s_cselect_b64 s[%d:%d], -1, 0', sODD, sODD + 1)
    vPA = vRA
    A('v_bfe_u32 v%d, v%d, 2, 2', vT0, vL)
    A('v_lshrrev_b32 v%d, 5, v%d', vT1, vL)
    A('v_lshl_add_u32 v%d, v%d, 2, v%d', vT0, vT1, vT0)
    A('v_mul_u32_u24 v%d, 56, v%d', vT0, vT0)
    A('v_and_b32 v%d, 3, v%d', vT1, vL)
    A('v_bfe_u32 v%d, v%d, 4, 1', vTT, vL)
    A('v_lshl_add_u32 v%d, v%d, 2, v%d', vT1, vTT, vT1)
    A('v_min_u32 v%d, 6, v%d', vT1, vT1)
    A('v_lshl_add_u32 v%d, v%d, 3, v%d', vT0, vT1, vT0)
    A('s_and_b32 s%d, s%d, 1', sT, sH)
    A('s_mul_i32 s%d, s%d, 224', sT, sT)
    A('s_sub_u32 s%d, %d, s%d', sT, L_PHI, sT)
    A('v_add_u32 v%d, s%d, v%d', vPA, sT, vT0)
    tag_compute(A)

    def mm1(B, acc, i, q, swap):
        buf = vWF + 16 * (i & 1)
        xf, wf = vX + (4 * i + q) * 4, buf + 4 * q
        if swap:
            mfma(B, acc, xf, wf, i == 0 and q == 0)
        else:
            mfma(B, acc, wf, xf, i == 0 and q == 0)

    def rw2(Q, pi, i, q):
        buf = vWF + 16 * (i & 1)
        for z in range(2):
            Q.op(('w', i, q), 'ds_read_b64_tr_b16 v[%d:%d], v%d offset:%d', buf + 4 * q + 2 * z, buf + 4 * q + 2 * z + 1,
                 vWA + pi, i * 4096 + q * 1024 + z * 256)

    vXH = vXD
    for q in range(4):
        A('v_add_u32 v%d, 0x10000, v%d', vXH + q, vXA + q)
    Q = LdsQ(A)
    for i in range(7):
        if i:
            stamp(A, 'k')
        HELP['inline'] = i < E('KINL', 2)
        wait_lp(A, ('x', i))
        HELP['inline'] = False
        stamp(A, 'k')
        for q in range(4):
            Q.op(('x', i), 'ds_read_b128 %s, v%d offset:%d', v(vX + (4 * i + q) * 4, 4), (vXA if i < 4 else vXH) + q,
                 (i & 3) * 16384)
        if i in (1, 3):
            Q.stage((i + 1) // 2)
        wait_lp(A, ('W', 0, i))
        for q in range(4):
            if i > 0:
                Q.wait(('w', i - 1, q))
                mm1(A, vAC, i - 1, q, False)
            rw2(Q, 0, i, q)
        if i < 6:
            Q.op('pk2', 'ds_read_b128 v[%d:%d], v%d offset:%d', vTT, vTT + 3, vMI, M_PW + 16)
        Q.wait(('x', i))
        for r in range(16):
            x = vX + 16 * i + r
            A('v_dot2c_f32_bf16 v%d, s%d, v%d', vSM + (r & 1), sONES, x)
            A('v_dot2c_f32_bf16 v%d, v%d, v%d', vSQ + (r & 1), x, x)
        if i < 6:
            Q.wait('pk2')
            A('v_readfirstlane_b32 s%d, v%d', sPROG, vTT)
            A('v_readfirstlane_b32 s%d, v%d', sPROG1, vTT + 3)
    Q.stage(3)
    B = sub(A)
    B('v_add_f32 v%d, v%d, v%d', vSM, vSM, vSM + 1)
    B('v_add_f32 v%d, v%d, v%d', vSQ, vSQ, vSQ + 1)
    B('v_permlane32_swap_b32 v%d, v%d', vSM, vSQ)
    B('v_add_f32 v%d, v%d, v%d', vT0, vSM, vSQ)
    ln_finish(B, vT0, vT1, vNM, vRS)
    hilo_m(B, vNM, vMF, vT0)
    B('v_mul_f32 v%d, 0x%x, v%d', vSC, LOG2E, vRS)
    M = sub(A)
    Q.A = M
    for q in range(4):
        Q.wait(('w', 6, q))
        mm1(M, vAC, 6, q, False)
    A.lines += merge(M.lines, [[l] for l in B.lines], 0, 4)

    def cf_phi_reads():
        A('ds_read_b64 v[%d:%d], v%d', vCF, vCF + 1, vCA)
        for sidx in range(2):
            for z in range(2):
                A('ds_read_b64_tr_b16 v[%d:%d], v%d offset:%d', vPH + 4 * sidx + 2 * z, vPH + 4 * sidx + 2 * z + 1,
                  vPA, (16 * sidx + 8 * z) * 56)
        return 5
    stamp(A, 'v')
    wait_word(A, 5, 1, body=cf_phi_reads)
    stamp(A)
    stamp(A, 'v')
    A('s_waitcnt lgkmcnt(4)')

    def project(mid=None):
        mfma(A, vAC, vCF, vMF)
        if mid:
            mid()
        cvt8(A, vPK, vAC)
        mfma(A, vAC, vPH, vPK, True)
        mfma(A, vAC, vPH + 4, vPK + 4)

    def mid_k():
        A('v_and_b32 v%d, 31, v%d', vT0, vL)
        A('s_lshl_b32 s%d, s%d, 7', sT, sWV)
        A('s_add_u32 s%d, s%d, %d', sT, sT, L_RSTD)
        A('v_lshl_add_u32 v%d, v%d, 2, s%d', vT0, vT0, sT)
        A('s_waitcnt lgkmcnt(0)')
        A('ds_write_b32 v%d, v%d', vT0, vRS)
        A('v_lshrrev_b32 v%d, 5, v%d', vRA, vL)
        A('v_lshl_add_u32 v%d, v%d, 4, s%d', vRA, vRA, sT)
        for r in (0, 1):
            A('v_cndmask_b32 v%d, v%d, 0, s[%d:%d]', vPH + r, vPH + r, sZA, sZA + 1)
            A('v_cndmask_b32 v%d, v%d, 0, s[%d:%d]', vPH + 6 + r, vPH + 6 + r, sZB, sZB + 1)

    def gemm_head(B, pi):
        Q = LdsQ(B)
        wait_lp(B, ('W', pi, 0))
        for q in range(4):
            rw2(Q, pi, 0, q)
        return Q

    def gemm_part(B, acc, pi, swap, last_stage=None, Q=None):
        if Q is None:
            Q = gemm_head(B, pi)
        for i in range(7):
            if i == 6 and last_stage:
                Q.stage(last_stage)
            if pi == 1 and i in (0, 2, 4, 6):
                stamp(B, 'v')
            for q in range(4):
                Q.wait(('w', i, q))
                if q == 0:
                    Q.take(4)
                mm1(B, acc, i, q, swap)
                if i < 6:
                    if q == 0:
                        wait_lp(B, ('W', pi, i + 1))
                        if i < 5:
                            Q.peek(4)
                    rw2(Q, pi, i + 1, q)

    vOW = vXD
    A('v_add_u32 v%d, s%d, v%d', vOW, sM0, vO)
    A('v_add_u32 v%d, %d, v%d', vOW, L_KVA, vOW)
    project(mid_k)
    stamp(A, 'v')
    B = sub(A)
    softmax_pm(B, vAC, vSC, vPK, vTT)
    A.lines += B.lines[:-30]
    Q = gemm_head(A, 1)
    A.lines += B.lines[-30:]
    for q, src in enumerate((vAC, vAC + 4, vPK, vPK + 4)):
        Q.op('pw', 'ds_write_b128 v%d, %s offset:%d', vOW, v(src, 4), q * 1024)
    Q.stage(C0)
    for q in range(4):
        Q.op('rs', 'ds_read_b128 %s, v%d offset:%d', v(vAC + 4 * q, 4), vRA, q * 32)
    stamp(A, 'v')
    gemm_part(A, vAC2, 1, True, None, Q)
    stamp(A, 'v')

    def cfv_reads():
        A('ds_read_b64 v[%d:%d], v%d offset:%d', vCF, vCF + 1, vCA, 512)
        return 1
    wait_word(A, 6, 1, body=cfv_reads)
    stamp(A, 'v')
    A('s_waitcnt lgkmcnt(0)')
    mfma(A, vAC2, vMF, vCF)
    A('v_mov_b32 v%d, 0x%x', vT1, ONES)
    for r in range(0, 16, 2):
        A('v_pk_mul_f32 v[%d:%d], v[%d:%d], v[%d:%d]', vAC2 + r, vAC2 + r + 1, vAC2 + r, vAC2 + r + 1, vAC + r,
          vAC + r + 1)
    cvt8(A, vPK, vAC2)
    for r in range(8):
        A('v_cndmask_b32 v%d, v%d, v%d, s[%d:%d]', vPK + r, vPK + r, vT1, sPADL, sPADL + 1)
    for q in range(2):
        A('ds_write_b128 v%d, %s offset:%d', vOW, v(vPK + 4 * q, 4), L_KVV - L_KVA + q * 1024)
    set_stage(A, C0 + 1)
    stamp(A)
    stamp(A, 'v')
    gemm_part(A, vAC, 2, False, C0 + 3)
    vHP, vRX, vRO = 120, 48, vSM + 1

    def unpack_hp(src=120):
        for r in range(8):
            A('v_lshlrev_b32 v%d, 16, v%d', vAC + 2 * r, src + r)
            A('v_and_b32 v%d, 0xffff0000, v%d', vAC + 2 * r + 1, src + r)
    A('s_and_b32 s%d, s%d, 1', sG, sWV)
    A('s_lshr_b32 s%d, s%d, 1', sKH, sWV)
    A('s_lshl_b32 s%d, s%d, 1', sT, sTQ)
    A('s_add_u32 s%d, s%d, s%d', sG, sG, sT)
    A('v_and_b32 v%d, 31, v%d', vRO, vL)
    A('v_mul_u32_u24 v%d, 896, v%d', vRO, vRO)
    A('v_lshrrev_b32 v%d, 5, v%d', vT1, vL)
    A('v_lshl_add_u32 v%d, v%d, 4, v%d', vRO, vT1, vRO)
    A('s_mul_i32 s%d, s%d, %d', sT, sG, 32 * 896)
    A('s_lshl_b32 s%d, s%d, 7', sT2, sNB)
    A('s_add_u32 s%d, s%d, s%d', sT, sT, sT2)
    A('s_lshl_b32 s%d, s%d, 6', sT2, sKH)
    A('s_add_u32 s%d, s%d, s%d', sT, sT, sT2)
    A('v_add_u32 v%d, s%d, v%d', vRO, sT, vRO)
    for q in range(2):
        A('buffer_load_dwordx4 %s, v%d, s[%d:%d], 0 offen offset:%d', v(vRX + 4 * q, 4), vRO, SX, SX + 3, q * 32)

    def cfq_reads():
        A('ds_read_b64 v[%d:%d], v%d offset:%d', vCF, vCF + 1, vCA, 2 * 512)
        A('ds_read_b32 v%d, v%d offset:%d', vPW + 1, vMI, M_FAST)
        return 2
    wait_word(A, 7, 8, body=cfq_reads)
    A('s_waitcnt lgkmcnt(0)')
    A('v_readfirstlane_b32 s%d, v%d', sFASTF, vPW + 1)
    project()
    softmax_pm(A, vAC, vSC, vPK, vTT)
    vQF = [vAC, vAC + 4, vPK, vPK + 4]
    stamp(A)
    vW1A = vXA
    A('v_bfe_u32 v%d, v%d, 2, 2', vT0, vL)
    A('v_lshrrev_b32 v%d, 5, v%d', vT1, vL)
    A('v_lshl_add_u32 v%d, v%d, 2, v%d', vT1, vT1, vT0)
    A('v_lshlrev_b32 v%d, 8, v%d', vW1A, vT1)
    A('v_lshlrev_b32 v%d, 7, v%d', vWA, vT1)
    A('v_xor_b32 v%d, s%d, v%d', vT0, sWV, vT0)
    A('v_lshl_add_u32 v%d, v%d, 6, v%d', vW1A, vT0, vW1A)
    A('v_bfe_u32 v%d, v%d, 4, 1', vT1, vL)
    A('v_lshlrev_b32 v%d, 5, v%d', vT1, vT1)
    A('v_and_b32 v%d, 3, v%d', vT0, vL)
    A('v_lshl_add_u32 v%d, v%d, 3, v%d', vT1, vT0, vT1)
    A('v_add_u32 v%d, v%d, v%d', vW1A, vW1A, vT1)
    A('v_add_u32 v%d, 0x8000, v%d', vW1A + 1, vW1A)
    A('v_add_u32 v%d, v%d, v%d', vWA, vWA, vT1)
    A('v_bfe_u32 v%d, v%d, 3, 1', vT1, vL)
    A('v_lshl_add_u32 v%d, v%d, 6, v%d', vWA, vT1, vWA)

    def w1_copy(c):
        wait_lp(A, ('w1', c))
        for q in range(4):
            for z in range(2):
                off = w1_slot(c) + (16 * q + 8 * z) * 256
                base = vW1A
                if off >= 0x8000:
                    off -= 0x8000
                    base += 1
                r = vXR + (4 * c + q) * 4 + 2 * z
                A('ds_read_b64_tr_b16 v[%d:%d], v%d offset:%d', r, r + 1, base, off)

    sCPD = sXB
    A('s_mov_b32 s%d, 0', sCPD)

    def try_copy(block):
        skip = A.label('NC')
        A('s_cmp_lg_u32 s%d, 0', sCPD)
        A('s_cbranch_scc1 %s', skip)
        if not block:
            if block is not None:
                A('ds_read_b32 v%d, v%d offset:%d', vPW, vMI, M_PW + 16)
                A('s_waitcnt lgkmcnt(0)')
            A('v_readfirstlane_b32 s%d, v%d', sPROG, vPW)
            A('s_cmp_lt_u32 s%d, %d', sPROG, LP[('w1', 1)][1])
            A('s_cbranch_scc1 %s', skip)
        w1_copy(0)
        w1_copy(1)
        A('s_mov_b32 s%d, 1', sCPD)
        A('v_mov_b32 v%d, 1', vT0)
        A('ds_write_b32 v%d, v%d offset:%d', vMY, vT0, M_CP)
        A('%s:', skip)
    A('s_lshl_b32 s%d, s%d, 2', sFL, sTB)
    A('s_add_u32 s%d, s%d, s%d', sFL, sFL, sWV)
    A('s_lshl_b32 s%d, s%d, 4', sFL, sFL)
    A('s_add_u32 s%d, s%d, s%d', sFL, sFL, sH)
    A('s_lshl_b32 s%d, s%d, 11', sB, sFL)
    A('s_add_u32 s%d, s%d, %d', sB, sB, WS_OB)
    if MAP == 0:
        A('s_lshl_b32 s%d, s%d, 2', sFL, sFL)
        A('s_add_u32 s%d, s%d, %d', sFL, sFL, F2)
    else:
        A('s_lshr_b32 s%d, s%d, 3', sFL, sFL)
        A('s_lshl_b32 s%d, s%d, 10', sFL, sFL)
        A('s_and_b32 s%d, s%d, 7', sT, sH)
        A('s_lshl_b32 s%d, s%d, 2', sT, sT)
        A('s_add_u32 s%d, s%d, s%d', sFL, sFL, sT)
        A('s_add_u32 s%d, s%d, %d', sFL, sFL, F2X)
    vEX = vXD + 1
    A('v_add_u32 v%d, %d, v%d', vEX, L_EX, vO)

    def ex_reads():
        for q in range(4):
            A('ds_read_b128 %s, v%d offset:%d', v(vWF + 4 * q, 4), vEX, q * 1024)
        return 4
    lo, done = A.label('W'), A.label('WD')
    A('%s:', lo)
    A('ds_read_b128 v[%d:%d], v%d offset:%d', vPW, vPW + 3, vMI, M_PW + 16)
    ex_reads()
    A('s_waitcnt lgkmcnt(4)')
    A('v_min_u32 v%d, v%d, v%d', vPW + 1, vPW + 1, vPW + 2)
    A('v_readfirstlane_b32 s%d, v%d', sT, vPW + 1)
    spin_guard(A, done)
    A('s_cmp_ge_u32 s%d, 3', sT)
    A('s_cbranch_scc1 %s', done)
    try_copy(None)
    A('s_branch %s', lo)
    A('%s:', done)
    stamp(A)
    for q in range(4):
        A('s_waitcnt lgkmcnt(%d)', 3 - q)
        mfma(A, vAC2, vWF + 4 * q, vQF[q], q == 0)
    A('v_cndmask_b32 v%d, v%d, v%d, s[%d:%d]', vT0, vAC2 + 12, vAC2, sODD, sODD + 1)
    A('v_mov_b32 v%d, v%d', vT1, vT0)
    A('v_permlane32_swap_b32 v%d, v%d', vT0, vT1)
    A('v_cndmask_b32 v%d, v%d, v%d, s[%d:%d]', vTT, vT1, vT0, sODD, sODD + 1)
    A('v_add_f32 v%d, 0x%x, v%d', vTT, 0x358637bd, vTT)
    A('v_rcp_f32 v%d, v%d', vTT, vTT)
    for r in range(0, 16, 2):
        A('v_pk_mul_f32 v[%d:%d], v[%d:%d], v[%d:%d] op_sel_hi:[1,0]', vAC2 + r, vAC2 + r + 1, vAC2 + r, vAC2 + r + 1,
          vTT, vTT + 1)
    cvt8(A, vPK, vAC2)
    for r in (0, 1):
        A('v_cndmask_b32 v%d, v%d, 0, s[%d:%d]', vPK + r, vPK + r, sZA, sZA + 1)
        A('v_cndmask_b32 v%d, v%d, 0, s[%d:%d]', vPK + 6 + r, vPK + 6 + r, sZB, sZB + 1)
    pub_stores(A, [st4(vPK + 4 * q, sB, q * 1024) for q in range(2)], MAP == 0 and not WTO)
    A('s_waitcnt vmcnt(2)')
    for q in range(2):
        A('v_permlane32_swap_b32 v%d, v%d', vRX + 4 * q, vRX + 4 * q + 2)
        A('v_permlane32_swap_b32 v%d, v%d', vRX + 4 * q + 1, vRX + 4 * q + 3)
    unpack_hp(vRX)
    A('s_lshl_b32 s%d, s%d, 6', sT, sKH)
    A('v_xor_b32 v%d, s%d, v%d', vWA, sT, vWA)
    A('v_xor_b32 v%d, 64, v%d', vWA + 1, vWA)
    A('s_mul_i32 s%d, s%d, %d', sT, sKH, 224 * 128)
    A('s_add_u32 s%d, s%d, %d', sT, sT, L_A)
    A('v_add_u32 v%d, s%d, v%d', vWA + 2, sT, vWA)
    A('v_add_u32 v%d, s%d, v%d', vWA + 3, sT, vWA + 1)
    vSW, vSR, vPP = vXA + 2, vXA + 3, vSM
    A('s_and_b32 s%d, s%d, 1', sC, sWV)
    A('s_lshl_b32 s%d, s%d, 12', sC, sC)
    A('v_add_u32 v%d, s%d, v%d', vSW, sC, vO)
    A('s_cmp_eq_u32 s%d, 0', sKH)
    A('s_cselect_b32 s%d, %d, %d', sT, L_SC0 >> 12, L_SC1 >> 12)
    A('s_cselect_b32 s%d, %d, %d', sT2, L_SC1 >> 12, L_SC0 >> 12)
    A('s_lshl_b32 s%d, s%d, 12', sT, sT)
    A('s_lshl_b32 s%d, s%d, 12', sT2, sT2)
    A('v_add_u32 v%d, s%d, v%d', vSR, sT2, vSW)
    A('v_add_u32 v%d, s%d, v%d', vSW, sT, vSW)
    A('v_xor_b32 v%d, 8, v%d', vPP, vMY)
    A('s_lshl_b32 s%d, s%d, 15', sB, sG)
    A('s_lshl_b32 s%d, s%d, 14', sT, sKH)
    A('s_add_u32 s%d, s%d, s%d', sB, sB, sT)
    A('s_add_u32 s%d, s%d, %d', sB, sB, WS_OB)
    if MAP == 0:
        A('s_lshl_b32 s%d, s%d, 6', sC, sG)
        A('s_lshl_b32 s%d, s%d, 5', sT, sKH)
        A('s_add_u32 s%d, s%d, s%d', sC, sC, sT)
        A('s_add_u32 s%d, s%d, %d', sC, sC, F2)
        pub_flag(A, sFL, True)
    else:
        A('s_lshl_b32 s%d, s%d, 11', sC, sG)
        A('s_lshl_b32 s%d, s%d, 10', sT, sKH)
        A('s_add_u32 s%d, s%d, s%d', sC, sC, sT)
        A('s_lshl_b32 s%d, s%d, 7', sT, sNB)
        A('s_add_u32 s%d, s%d, s%d', sC, sC, sT)
        A('s_add_u32 s%d, s%d, %d', sC, sC, F2X)
        A('v_lshlrev_b32 v%d, 7, v%d', vT1, vL)
        if not E('NODRAIN2', 0):
            A('s_waitcnt vmcnt(0)')
        A('s_mov_b64 exec, 0x7f')
        A('buffer_store_dword v%d, v%d, s[%d:%d], s%d offen sc1', vTAG, vT1, SWS, SWS + 3, sFL)
        A('s_mov_b64 exec, -1')
    set_stage(A, C0 + 5)
    stamp(A)
    fin = A.label('FIN')
    A('s_cmp_ge_u32 s%d, 28', sI)
    A('s_cbranch_scc1 %s', fin)

    vB2 = [40 + 4 * k for k in range(8)] + [224 + 4 * k for k in range(8)]
    vWF2 = 72
    try_copy(False)
    wait_lp(A, 'wo')

    def wo_row(k):
        hh = k // 2
        return 28 * hh - 4 * (hh & 1) + 16 * (k & 1)

    def read_wo(k):
        buf = vWF2 + 8 * (k & 1)
        for nt in range(2):
            for z in range(2):
                A('ds_read_b64_tr_b16 v[%d:%d], v%d offset:%d', buf + 4 * nt + 2 * z, buf + 4 * nt + 2 * z + 1,
                  vWA + 2 + nt, (wo_row(k) + 8 * z) * 128)

    read_wo(0)
    if MAP == 3 and E('SPOLL', 1):
        poll_scalar(A, sC, 8)
    else:
        poll_global(A, sC, 8)
    stamp(A)
    stamp(A, 'p2')
    sOB = sM0
    A('s_mov_b32 s%d, s%d', sOB, sB)

    def ld_o(k):
        A('buffer_load_dwordx4 %s, v%d, s[%d:%d], s%d offen offset:%d sc1', v(vB2[k], 4), vO, SWS, SWS + 3, sOB,
          (k & 3) * 1024)
        if (k & 3) == 3:
            A('s_add_u32 s%d, s%d, 4096', sOB, sOB)
    P2I = E('P2INFL', 8)
    for k in range(P2I):
        ld_o(k)
    A('s_lshl_b32 s%d, s%d, 1', sT2, sNB)
    A('s_add_u32 s%d, s%d, s%d', sT2, sT2, sKH)
    A('s_lshl_b32 s%d, s%d, 15', sB, sG)
    A('s_add_u32 s%d, s%d, %d', sB, sB, WS_HB)
    A('s_lshl_b32 s%d, s%d, 8', sC, sT2)
    A('s_add_u32 s%d, s%d, s%d', sC, sC, sB)
    A('s_lshl_b32 s%d, s%d, 11', sT, sT2)
    A('s_add_u32 s%d, s%d, s%d', sB, sB, sT)
    A('s_add_u32 s%d, s%d, 4096', sB, sB)
    A('s_lshl_b32 s%d, s%d, 2', sFL, sT2)
    A('s_lshl_b32 s%d, s%d, 6', sT, sG)
    A('s_add_u32 s%d, s%d, s%d', sFL, sFL, sT)
    A('s_add_u32 s%d, s%d, %d', sFL, sFL, F3)
    for k in range(16):
        if k < 15:
            read_wo(k + 1)
        A('s_waitcnt vmcnt(%d) lgkmcnt(%d)', min(15, P2I + k - 1) - k, 4 if k < 15 else 0)
        if k % 4 == 0:
            stamp(A, 'p2')
        buf = vWF2 + 8 * (k & 1)
        mfma(A, vAC + 16, buf + 4, vB2[k], k == 0)
        if P2I + k < 16:
            ld_o(P2I + k)
        mfma(A, vAC, buf, vB2[k])
    stamp(A)

    def exchange(st):
        for q in range(4):
            A('ds_write_b128 v%d, %s offset:%d', vSW, v(vAC + 16 + 4 * q, 4), q * 1024)
        set_stage(A, st)
        lo, done = A.label('W'), A.label('WD')
        A('%s:', lo)
        A('ds_read_b32 v%d, v%d', vPW, vPP)
        for q in range(4):
            A('ds_read_b128 %s, v%d offset:%d', v(vWF2 + 4 * q, 4), vSR, q * 1024)
        A('s_waitcnt lgkmcnt(4)')
        A('v_readfirstlane_b32 s%d, v%d', sT, vPW)
        spin_guard(A, done)
        A('s_cmp_ge_u32 s%d, %d', sT, st)
        A('s_cbranch_scc0 %s', lo)
        A('%s:', done)
        for q in range(4):
            A('s_waitcnt lgkmcnt(%d)', 3 - q)
            for r in (0, 2):
                a0 = vAC + 4 * q + r
                A('v_pk_add_f32 v[%d:%d], v[%d:%d], v[%d:%d]', a0, a0 + 1, a0, a0 + 1, vWF2 + 4 * q + r,
                  vWF2 + 4 * q + r + 1)

    stamp(A, 'p2')
    exchange(C0 + 6)
    stamp(A, 'p2')
    set_stage(A, C0 + 7)
    cvt8(A, vHP, vAC)
    pub_stores(A, [st4(vHP + 4 * q, sB, q * 1024) for q in range(2)], not WTO)
    A('v_mov_b32 v%d, 0', vTT)
    A('v_mov_b32 v%d, 0', vTT + 1)
    for r in range(8):
        A('v_dot2c_f32_bf16 v%d, s%d, v%d', vTT, sONES, vHP + r)
        A('v_dot2c_f32_bf16 v%d, v%d, v%d', vTT + 1, vHP + r, vHP + r)
    A('v_lshlrev_b32 v%d, 2, v%d', vTT + 2, vL)
    A('v_permlane32_swap_b32 v%d, v%d', vTT, vTT + 1)
    A('v_add_f32 v%d, v%d, v%d', vTT, vTT, vTT + 1)
    pub_stores(A, ['buffer_store_dword v%d, v%d, s[%d:%d], s%d offen%%s' % (vTT, vTT + 2, SWS, SWS + 3, sC)], not WTO)
    stamp(A, 'p2')
    try_copy(False)
    stamp(A, 'p2')
    pub_flag(A, sFL, True)
    stamp(A, 'p2')
    try_copy(True)
    stamp(A)
    vCS = vSQ
    for c in (2, 3, 4, 5, 6):
        w1_copy(c)
    set_stage(A, C0 + 8)
    A('v_mov_b32 v%d, 0', vCS)
    A('v_mov_b32 v%d, 0', vCS + 1)
    for r in range(112):
        if r == 0:
            A('s_waitcnt lgkmcnt(15)')
        if r == 64:
            A('s_waitcnt lgkmcnt(0)')
        A('v_dot2c_f32_bf16 v%d, s%d, v%d', vCS + (r & 1), sONES, vXR + r)
    A('v_add_f32 v%d, v%d, v%d', vCS, vCS, vCS + 1)
    hilo_c(A, vCS, vCF, vT0)
    vBR = 40
    vE3 = 72
    vMF2, vSD = 128, 132
    A('s_mul_i32 s%d, s%d, %d', sB, sTB3, 4 * 112)
    A('s_lshl_b32 s%d, s%d, 3', sT, sFB)
    A('s_add_u32 s%d, s%d, s%d', sB, sB, sT)
    A('s_lshl_b32 s%d, s%d, 1', sT, sWV)
    A('s_add_u32 s%d, s%d, s%d', sB, sB, sT)
    A('s_lshl_b32 s%d, s%d, 10', sB, sB)
    A('s_add_u32 s%d, s%d, %d', sB, sB, WS_H1B)
    A('s_lshl_b32 s%d, s%d, 10', sFL, sTB3)
    A('s_lshl_b32 s%d, s%d, 4', sT, sFB)
    A('s_add_u32 s%d, s%d, s%d', sFL, sFL, sT)
    A('s_lshl_b32 s%d, s%d, 2', sT, sWV)
    A('s_add_u32 s%d, s%d, s%d', sFL, sFL, sT)
    A('s_add_u32 s%d, s%d, %d', sFL, sFL, F4)

    def p3_epilogue(gi, packed=False):
        B = sub(A)
        acc = vAC + 16 * (gi & 1)
        e = vE3
        sd, c1 = vSD, vSD + 1
        if packed:
            pk = lambda r: 'v[%d:%d]' % (r, r + 1)
            for r in range(0, 16, 2):
                B('v_pk_mul_f32 %s, %s, %s op_sel:[0,1] op_sel_hi:[1,1]', pk(e + r), pk(acc + r), pk(sd))
            for r in range(16):
                B('v_exp_f32 v%d, v%d', e + r, e + r)
            for r in range(0, 16, 2):
                B('v_pk_fma_f32 %s, %s, %s, %s op_sel_hi:[1,0,0]', pk(e + r), pk(e + r), pk(sd), pk(sd))
            for r in range(16):
                B('v_rcp_f32 v%d, v%d', e + r, e + r)
            for r in range(0, 16, 2):
                B('v_pk_mul_f32 %s, %s, %s', pk(e + r), pk(e + r), pk(acc + r))
        else:
            for r in range(16):
                B('v_mul_f32 v%d, v%d, v%d', e + r, acc + r, c1)
                if r >= 1:
                    B('v_exp_f32 v%d, v%d', e + r - 1, e + r - 1)
            B('v_exp_f32 v%d, v%d', e + 15, e + 15)
            for r in range(16):
                B('v_fma_f32 v%d, v%d, v%d, v%d', e + r, e + r, sd, sd)
                if r >= 1:
                    B('v_rcp_f32 v%d, v%d', e + r - 1, e + r - 1)
            B('v_rcp_f32 v%d, v%d', e + 15, e + 15)
            for r in range(16):
                B('v_mul_f32 v%d, v%d, v%d', e + r, e + r, acc + r)
        cvt8(B, acc, e)
        blocks = [[l] for l in B.lines]
        B = sub(A)
        pub_stores(B, [st4(acc + 4 * q, sB, q * 1024) for q in range(2)], not WT1)
        B('s_add_u32 s%d, s%d, %d', sB, sB, 112 * 1024)
        blocks.append(B.lines)
        return blocks

    def p3_flag(B, drain=True):
        pub_flag(B, sFL, True, drain)
        B('s_add_u32 s%d, s%d, 256', sFL, sFL)

    PRE = E('P3PRE', 6)
    vHB = vXD + 2
    A('v_add_u32 v%d, %d, v%d', vHB, L_A, vO)
    A('v_add_u32 v%d, %d, v%d', vHB + 1, 65536, vO)
    A('s_mov_b32 s%d, 0', CACHE[5])
    A('s_mov_b32 s%d, 0', CACHE[6])
    Q = LdsQ(A)

    def rd(n):
        gi, k = divmod(n, 28)
        if (k + 5) % 8 == 0 and k != 3:
            Q.take(7)
        if (k + 4) % 8 == 0 or k == 0:
            wait_lp(Q.A, ('h', gi, (k + 4) // 8))
        Q.op(('b', n), 'ds_read_b128 %s, v%d offset:%d', v(vBR + 4 * (n % 8), 4), (vHB, vHB, vO, vHB + 1)[gi],
             (28672 if gi == 1 else 0) + k * 1024)
        if k == 27:
            Q.stage(C0 + 9 + gi)
        nn = n + PRE + 2
        if nn < 112 and ((nn % 28 + 4) % 8 == 0 or nn % 28 == 0) and nn % 28 != 4:
            Q.peek(7)

    stamp(A, 'p2')
    HELP['inline'] = True
    for n in range(PRE):
        rd(n)
    HELP['inline'] = False
    for gi in range(4):
        acc = vAC + 16 * (gi & 1)
        M = sub(A)
        Q.A = M
        for k in range(28):
            n = 28 * gi + k
            if n + PRE < 112:
                rd(n + PRE)
            if k == 14:
                Q.op('s6', 'ds_read_b32 v%d, v%d offset:%d', vPK_ + 1, vMI, M_PW + 24)
                Q.op('sf', 'ds_read_b128 %s, v%d offset:%d', v(vMF2, 4), vEX, gi * 1024)
            if k == 24:
                Q.wait('sf')
                M('v_readfirstlane_b32 s%d, v%d', sC, vPK_ + 1)

                def st_slow(B, back):
                    def st_read():
                        B('ds_read_b128 %s, v%d offset:%d', v(vMF2, 4), vEX, gi * 1024)
                        return 0
                    wait_word(B, 6, 4 + gi, body=st_read)
                ent, back = cold_block(M, st_slow)
            if k == 25:
                M('s_cmp_ge_u32 s%d, %d', sC, 4 + gi)
                M('s_cbranch_scc0 %s', ent)
                M('%s:', back)
                M('v_mov_b32 v%d, v%d', vMF, vMF2)
                M('v_mov_b32 v%d, v%d', vMF + 1, vMF2 + 1)
            if k % 2 == 0:
                Q.wait(('b', n + 1))
            if k in (0, 12):
                stamp(M, 'p3')
            if gi == E('P33', 3) and k >= 15 - 13 * (gi == 0) and (gi or k % 2 == 0):
                stamp(M, 'p33')
            if k == E('P3FLAGK', 25) and gi >= 2:
                p3_flag(M)
            mfma(M, acc, vXR + 4 * k, vBR + 4 * (n % 8), k == 0)
        mfma(M, acc, vCF, vMF)
        M('v_mov_b32 v%d, v%d', vSD, vMF2 + 2)
        M('v_mov_b32 v%d, v%d', vSD + 1, vMF2 + 3)
        A.lines += merge(M.lines, p3_epilogue(gi - 1, E('P3PK', 0)) if gi > 0 else [], 1, 27)
        if gi == 0:
            stamp(A)
        stamp(A, 'p3')
    stamp(A)
    for j, b in enumerate(p3_epilogue(3, True)):
        if j in (0, 8, 24, 30, 48, 56, 64):
            stamp(A, 'p3e')
        A.lines += b
    stamp(A, 'p3e')
    NB = 28
    vWF4 = 40
    A('s_mul_i32 s%d, s%d, %d', sB, sG, 112 * 1024)
    A('s_mul_i32 s%d, s%d, %d', sT, sKH, 56 * 1024)
    A('s_add_u32 s%d, s%d, s%d', sB, sB, sT)
    A('s_add_u32 s%d, s%d, %d', sB, sB, WS_H1B)
    sEND = sM0
    A('s_add_u32 s%d, s%d, %d', sEND, sB, 56 * 1024)
    rot_calc(A, sC, 'w2')
    A('s_lshl_b32 s%d, s%d, 12', sC, sC)
    A('s_add_u32 s%d, s%d, s%d', sB, sB, sC)
    A('s_lshl_b32 s%d, s%d, 8', sC, sG)
    A('s_mul_i32 s%d, s%d, 112', sT, sKH)
    A('s_add_u32 s%d, s%d, s%d', sC, sC, sT)
    A('s_add_u32 s%d, s%d, %d', sC, sC, F4)

    def w2_base(c):
        A('s_cmp_eq_u32 s%d, 0', sKH)
        A('s_cselect_b32 s%d, %d, %d', sT, w2_slot(2 * c) >> 12, w2_slot(2 * c + 1) >> 12)
        A('s_lshl_b32 s%d, s%d, 12', sT, sT)
        A('v_add_u32 v%d, s%d, v%d', vWA + 2, sT, vWA)
        A('v_add_u32 v%d, s%d, v%d', vWA + 3, sT, vWA + 1)

    Q = LdsQ(A)

    def read_w2(k):
        if k % 4 == 3 and k < 52:
            Q.take(LP[('w2', 2 * (k // 4) + 3)][0])
        if k % 4 == 0:
            wait_lp(A, ('w2', 2 * (k // 4) + 1))
            w2_base(k // 4)
        buf = vWF4 + 8 * (k & 3)
        for nt in range(2):
            for z in range(2):
                Q.op(('w', k), 'ds_read_b64_tr_b16 v[%d:%d], v%d offset:%d', buf + 4 * nt + 2 * z,
                     buf + 4 * nt + 2 * z + 1, vWA + 2 + nt, ((k % 4) * 16 + 8 * z) * 128)
        if k % 4 == 0 and k < 52:
            Q.peek(LP[('w2', 2 * (k // 4) + 3)][0])
        if k % 4 == 3 and (k // 4) <= 5:
            Q.stage(C0 + 13 + k // 4)

    def issue_b(k):
        A('buffer_load_dwordx4 %s, v%d, s[%d:%d], s%d offen offset:%d%s', v(vXR + 4 * (k % NB), 4), vO, SWS, SWS + 3,
          sB, (k & 3) * 1024, LDB)
        if (k & 3) == 3:
            A('s_add_u32 s%d, s%d, 4096', sB, sB)
            A('s_cmp_eq_u32 s%d, s%d', sB, sEND)
            A('s_cselect_b32 s%d, %d, 0', sT2, 56 * 1024)
            A('s_sub_u32 s%d, s%d, s%d', sB, sB, sT2)

    unpack_hp()
    read_w2(0)
    read_w2(1)
    stamp(A, 'p3e')
    p3_flag(A)
    p3_flag(A, False)
    stamp(A)
    stamp(A, 'p3e')
    poll_global(A, sC, 28)
    stamp(A)
    stamp(A, 'p3e')
    INFL = E('P4INFL', 10)
    for k in range(INFL):
        issue_b(k)
    issued = INFL
    for k in range(56):
        if k + 2 < 56:
            read_w2(k + 2)
        Q.wait(('w', k), issued - k - 1)
        if k % 4 == 0 and k:
            stamp(A, 'p4')
        if 40 <= k < 53:
            stamp(A, 'p44')
        buf = vWF4 + 8 * (k & 3)
        mfma(A, vAC + 16, buf + 4, vXR + 4 * (k % NB), k == 0)
        if issued < 56:
            issue_b(issued)
            issued += 1
        mfma(A, vAC, buf, vXR + 4 * (k % NB))
    stamp(A)
    exchange(C0 + 27)
    cvt8(A, vHP, vAC)
    for q in range(2):
        A('v_permlane32_swap_b32 v%d, v%d', vHP + 4 * q, vHP + 4 * q + 2)
        A('v_permlane32_swap_b32 v%d, v%d', vHP + 4 * q + 1, vHP + 4 * q + 3)
    for q in range(2):
        A('buffer_store_dwordx4 %s, v%d, s[%d:%d], 0 offen offset:%d', v(vHP + 4 * q, 4), vRO, SOUT, SOUT + 3, q * 32)
    A('s_or_b32 s%d, s2, s%d', sT, sWV)
    A('s_cmp_lg_u32 s%d, 0', sT)
    A('s_cbranch_scc1 %s', fin)
    A('s_mov_b32 s%d, %d', sT, FEP)
    A('s_mov_b64 exec, 1')
    A('buffer_store_dword v%d, v%d, s[%d:%d], s%d offen', vTAG, vO, SWS, SWS + 3, sT)
    A('s_mov_b64 exec, -1')
    A('%s:', fin)
    if E('PADTO', 0):
        lo = A.label('PAD')
        A('s_waitcnt vmcnt(0) lgkmcnt(0)')
        A('s_mov_b32 s6, %d', E('PADTO', 0))
        if PROBE >= 0:
            A('s_sub_u32 s7, s56, s84')
            A('s_lshl_b32 s7, s7, 2')
            A('s_cmp_ge_u32 s%d, 28', sI)
            A('s_cselect_b32 s7, 0, s7')
            A('s_add_u32 s6, s6, s7')
        A('%s:', lo)
        A('s_memrealtime s[4:5]')
        A('s_waitcnt lgkmcnt(0)')
        A('s_sub_u32 s4, s4, s84')
        A('s_cmp_lt_u32 s4, s6')
        A('s_cbranch_scc1 %s', lo)
    stamp_flush(A)


def gen():
    A = Asm()
    name = NAME + '_kernel'
    A.lines += ['.p2align 8', '.globl %s' % name, '.type %s,@function' % name, '%s:' % name]
    end = A.label('END')
    if E('PADTO', 0):
        A('s_memrealtime s[84:85]')
    A('s_getpc_b64 s[%d:%d]', sPC, sPC + 1)
    A('s_cmp_ge_u32 s2, 256')
    A('s_cbranch_scc1 %s', end)
    A('s_load_dwordx16 s[64:79], s[0:1], 0')
    A('s_load_dwordx2 s[80:81], s[0:1], 72')
    if DBGT:
        A('s_load_dwordx2 s[86:87], s[0:1], 64')
    A('s_mov_b32 s%d, 0x400000', sSPIN)
    A('s_and_b32 s%d, s2, 7', sXCD)
    A('s_lshr_b32 s%d, s2, 3', sI)
    if MAP == 0:
        perm = [2, 4, 6, 9, 11, 13, 0, 1, 3, 5, 7, 8, 10, 12, 14, 15]
        lo = sum(perm[i] << (4 * i) for i in range(8))
        hi = sum(perm[8 + i] << (4 * i) for i in range(8))
        A('s_mov_b32 s%d, 0x%x', sHI, lo)
        A('s_mov_b32 s%d, 0x%x', sHI + 1, hi)
        A('s_lshr_b32 s%d, s%d, 1', sT, sI)
        A('s_lshl_b32 s%d, s%d, 2', sT, sT)
        A('s_lshr_b64 s[%d:%d], s[%d:%d], s%d', sHI, sHI + 1, sHI, sHI + 1, sT)
        A('s_and_b32 s%d, s%d, 15', sH, sHI)
        A('s_and_b32 s%d, s%d, 1', sTB, sI)
        A('s_lshl_b32 s%d, s%d, 1', sT, sXCD)
        A('s_add_u32 s%d, s%d, s%d', sTB, sTB, sT)
    else:
        A('s_lshr_b32 s%d, s%d, 1', sTB, sI)
        A('s_and_b32 s%d, s%d, 1', sH, sI)
        A('s_lshl_b32 s%d, s%d, 1', sT, sXCD)
        A('s_add_u32 s%d, s%d, s%d', sH, sH, sT)
    A('s_add_u32 s%d, s%d, s%d', sC0, sXCD, sI)
    A('s_mul_i32 s%d, s%d, 37', sT, sC0)
    A('s_lshr_b32 s%d, s%d, 8', sT, sT)
    A('s_mul_i32 s%d, s%d, 7', sT, sT)
    A('s_sub_u32 s%d, s%d, s%d', sC0, sC0, sT)
    A('s_mul_i32 s%d, s%d, 37', sTQ, sI)
    A('s_lshr_b32 s%d, s%d, 8', sTQ, sTQ)
    A('s_mul_i32 s%d, s%d, 7', sNB, sTQ)
    A('s_sub_u32 s%d, s%d, s%d', sNB, sI, sNB)
    A('s_lshr_b32 s%d, s%d, 1', sTB3, sTQ)
    A('s_mul_i32 s%d, s%d, 14', sFB, sTB3)
    A('s_sub_u32 s%d, s%d, s%d', sFB, sI, sFB)
    A('s_lshl_b32 s%d, s%d, 2', sT, sXCD)
    A('s_add_u32 s%d, s%d, s%d', sTQ, sTQ, sT)
    A('s_lshl_b32 s%d, s%d, 1', sT, sXCD)
    A('s_add_u32 s%d, s%d, s%d', sTB3, sTB3, sT)
    A('v_lshrrev_b32 v%d, 6, v0', vL)
    A('v_readfirstlane_b32 s%d, v%d', sWV, vL)
    A('v_lshlrev_b32 v%d, 2, v%d', vMY, vL)
    A('v_add_u32 v%d, %d, v%d', vMY, L_MISC, vMY)
    A('v_and_b32 v%d, 63, v0', vL)
    A('v_lshlrev_b32 v%d, 4, v%d', vO, vL)
    A('v_mov_b32 v%d, %d', vMI, L_MISC)
    A('v_mov_b32 v%d, 0', vT0)
    A('ds_write_b32 v%d, v%d', vMY, vT0)
    A('ds_write_b32 v%d, v%d offset:%d', vMY, vT0, M_RES)
    A('ds_write_b32 v%d, v%d offset:%d', vMY, vT0, M_FAST)
    A('ds_write_b32 v%d, v%d offset:%d', vMY, vT0, M_CP)
    A('s_mov_b32 s%d, 0', sPROG)
    A('s_mov_b32 s%d, 0', sFASTF)
    A('s_mov_b32 s%d, 0x%x', sONES, ONES)
    early_offsets(A)
    A('s_waitcnt lgkmcnt(0)')
    A('s_barrier')
    A('s_mov_b32 s%d, 0', sPROG1)
    srd(A, SX, 64, S * D * 2)
    srd(A, SW, 66, D * 3 * D * 2)
    _st['n'] = 0
    stamp(A, 'all')
    if STAMPS:
        A('s_memrealtime s[86:87]')
    for i in range(7):
        LP[('x', i)] = (7, 1 + i)
    for gi in range(4):
        for q in range(4):
            LP[('h', gi, q)] = (7, 9 + 4 * gi + q)
    for pi in range(3):
        for i in range(7):
            LP[('W', pi, i)] = (4, 7 * pi + i + 1)
    l0, l1, l2, lw, lc = A.label('H0'), A.label('H1'), A.label('H23'), A.label('EW'), A.label('EC')
    A('s_cmp_eq_u32 s%d, 4', sWV)
    A('s_cbranch_scc1 %s', lw)
    A('s_cmp_lg_u32 s%d, 7', sWV)
    A('s_cbranch_scc1 %s', lc)
    HELP['on'] = True
    nst = {}
    prio(A, 1)
    _st['n'] = 1
    early_x(A)
    nst[l1] = _st['n']
    A('s_branch %s', l1)
    A('%s:', lw)
    prio(A, 1)
    _st['n'] = 1
    early_w(A)
    nst[l0] = _st['n']
    nst[l2] = 1
    A('s_branch %s', l0)
    refresh_routines(A)
    A('%s:', lc)
    A('s_cmp_ge_u32 s%d, 5', sWV)
    A('s_cbranch_scc1 %s', l2)
    parts = {}
    for lab, fn in ((l0, gen_h0), (l1, gen_h1), (l2, gen_h23)):
        B = sub(A)
        B('%s:', lab)
        B('s_nop 4')
        HELP['on'] = True
        prio(B, 1)
        _st['n'] = nst[lab]
        fn(B)
        HELP['on'] = False
        parts[lab] = B.lines
    _st['n'] = 1
    gen_compute(A)
    A('%s:', end)
    A('s_endpgm')
    for lab in (l0, l1, l2):
        A.lines += parts[lab]
    A.lines += COLD
    return A, name


def main():
    out = sys.argv[1] if len(sys.argv) > 1 else 'cdna_kernels/%s.s' % NAME
    A, name = gen()
    lines, nn = fix_hazards(A.lines)
    hdr = ['; generated by gen/gen6.py (hand-written generator script)',
           '; @launch grid=(256,1,1) block=(512,1,1) lds=%d' % LDS_SIZE,
           '.amdgcn_target "amdgcn-amd-amdhsa--gfx950"', '.text']
    tail = ['.p2align 8', '.fill 2048, 4, 0xbf800000', '.section .rodata,"a"', '.p2align 6', '''.amdhsa_kernel %s
  .amdhsa_next_free_vgpr 256
  .amdhsa_next_free_sgpr 102
  .amdhsa_accum_offset 256
  .amdhsa_group_segment_fixed_size 0
  .amdhsa_kernarg_size 80
  .amdhsa_user_sgpr_count 2
  .amdhsa_user_sgpr_kernarg_segment_ptr 1
  .amdhsa_system_sgpr_workgroup_id_x 1
  .amdhsa_float_denorm_mode_32 3
  .amdhsa_float_denorm_mode_16_64 3
.end_amdhsa_kernel''' % name]
    open(out, 'w').write('\n'.join(hdr + lines + tail) + '\n')
    print('wrote', out, 'lines', len(lines), 'nops', nn)


if __name__ == '__main__':
    main()
```

```python
import sys
import os
sys.path.insert(0, os.path.dirname(os.path.abspath(__file__)))
from asmlib import Asm, fix_hazards, v

NAME = 'sequential_preLN__linear_kernel_hedgehog__dense_activation_silu__prompt'
S, D, H, DH, F = 2048, 448, 16, 28, 1792
MB = 1 << 20
E = lambda k, d: int(os.environ.get(k, d))
STAMPS = E('STAMPS', 0)
MAP = E('MAP', 0)
FAST = E('FAST', 1)
CODEPF = E('CODEPF', 1)
WARM = E('WARM', 0)
WT1 = E('WT1', 0)
WTO = E('WTO', 0)
TOUCHAT = E('TOUCHAT', 2)
LDB = (' sc1', '', ' nt')[E('LDB', 0)]
HLATE = E('HLATE', 1)
WS_KVP = 0
WS_OB = 2 * MB
WS_HB = 4 * MB
WS_H1B = 8 * MB
WS_FLG = 16 * MB
F1, F2, F3, F4, FREG, FEP = WS_FLG + 0x10000, WS_FLG + 0x1000, WS_FLG + 0x3000, WS_FLG + 0x70000, WS_FLG + 0x9000, WS_FLG + 0xA000
F2X = WS_FLG + 0x40000
WS_STAMP = 17 * MB
WS_SIZE = 18 * MB
LOG2E = 0x3fb8aa3b
ONES = 0x3f803f80
MFMA = 'v_mfma_f32_32x32x16_bf16'
L_X = 0
L_WP = (114688, 0, 32768)
L_KVA, L_KVV = 65536, 81920
L_A = 98304
L_SC0, L_SC1 = 49152, 57344
L_XRES = L_SC0
B16 = (0, 16384, 65536, 81920, 32768)
L_PHI, L_EX, L_CF, L_MISC = 159744 - 2048 + 2048 + 1536, 155648, 159744, 163328
LDS_SIZE = 163840
M_PW, M_EP, M_FAST, M_CP, M_LD = 0, 32, 64, 96, 128
L_RSTD = L_EX

SX, SW, SP, SWS, SWO, SW1, SW2, SOUT = 12, 16, 20, 24, 28, 32, 36, 40
sTB, sH, sWV, sC0, sPROG, sT, sT2, sONES, sC, sTAG, sFASTF, sI, sXCD = 44, 45, 46, 47, 48, 49, 50, 51, 52, 53, 54, 55, 3
sHI, sPADL, sZA, sZB, sODD, sPC = 4, 6, 8, 10, 92, 94
sTQ, sNB, sTB3, sFB, sG, sKH, sB, sXB, sM0, sSPIN = 96, 97, 98, 99, 100, 101, 88, 89, 91, 90
sPROG1, sFL = 0, 1
vL, vMI, vT0, vT1, vO = 1, 2, 3, 4, 5
vTAG, vMY = 6, 7
vTT = 8
vXA = 12
vWA = 16
vSM, vSQ = 20, 22
vNM, vRS, vSC, vRA = 24, 25, 26, 27
vXD = 28
vPW = 32
vCA = 36
vXR = 144
vPK_ = 37
CACHE = {4: sPROG, 7: sPROG1, 5: sC0}

_st = {'n': 0}
C0 = 4
HELP = {'on': False}


def prio(A, hi):
    if HELP['on'] and E('HPRIO', 2) and not HELP.get('hot'):
        A('s_setprio %d', E('HPRIO', 2) if hi else 0)
LP = {}


STSET = os.environ.get('STSET', 'main')


DBGT = E('DBGT', 0)


PROBE = E('PROBE', -1)


def stamp(A, tag='main'):
    if PROBE >= 0:
        if not HELP['on'] and tag in ('main', 'all'):
            if _st['n'] == PROBE:
                A('s_memrealtime s[56:57]')
            _st['n'] += 1
        return
    if DBGT and not HELP['on'] and tag in ('main', 'all'):
        A('s_memrealtime s[%d:%d]', 56 + 2 * _st['n'], 57 + 2 * _st['n'])
        _st['n'] += 1
        return
    if STAMPS and (tag == STSET or tag == 'all' or (HELP['on'] and tag == 'main')):
        assert _st['n'] < 15, 'too many stamps'
        A('s_memtime s[%d:%d]', 56 + 2 * _st['n'], 57 + 2 * _st['n'])
        _st['n'] += 1


def stamp_flush(A):
    if DBGT and not HELP['on']:
        A('s_waitcnt vmcnt(0)')
        stamp(A, 'all')
        skip = A.label('DS')
        A('s_waitcnt vmcnt(0) lgkmcnt(0)')
        A('s_cmp_ge_u32 s%d, 28', sI)
        A('s_cbranch_scc1 %s', skip)
        A('s_mov_b64 exec, 1')
        A('v_mov_b32 v1, 0')
        A('s_not_b32 s4, s56')
        A('v_mov_b32 v2, s4')
        A('global_atomic_umax v1, v2, s[86:87] offset:60')
        for i in range(_st['n']):
            A('v_mov_b32 v%d, s%d', 8 + i, 56 + 2 * i)
            A('global_atomic_umax v1, v%d, s[86:87] offset:%d', 8 + i, 4 * i)
        A('%s:', skip)
        return
    if STAMPS:
        A('s_waitcnt vmcnt(0)')
        stamp(A, 'all')
        A('s_memrealtime s[4:5]')
        A('s_waitcnt vmcnt(0) lgkmcnt(0)')
        A('s_sub_u32 s4, s4, s86')
        A('s_lshl_b32 s4, s4, 20')
        A('s_and_b32 s86, s86, 0xfffff')
        A('s_or_b32 s86, s86, s4')
        A('s_lshl_b32 s%d, s2, 3', sT)
        A('s_add_u32 s%d, s%d, s%d', sT, sT, sWV)
        A('s_lshl_b32 s%d, s%d, 6', sT, sT)
        A('s_add_u32 s%d, s%d, %d', sT, sT, WS_STAMP)
        A('s_mov_b64 exec, 1')
        A('v_mov_b32 v1, 0')
        for i in range(16):
            if i < _st['n']:
                A('v_mov_b32 v2, s%d', 56 + 2 * i)
            elif i == 15:
                A('v_mov_b32 v2, s86')
            else:
                A('v_mov_b32 v2, 0')
            A('buffer_store_dword v2, v1, s[%d:%d], s%d offen offset:%d', SWS, SWS + 3, sT, 4 * i)
            A('s_nop 1')


def srd(A, d, ptr, size):
    A('s_mov_b32 s%d, s%d', d, ptr)
    A('s_and_b32 s%d, s%d, 0xffff', d + 1, ptr + 1)
    A('s_mov_b32 s%d, 0x%x', d + 2, size)
    A('s_mov_b32 s%d, 0x20000', d + 3)


COLD = []


def cold_block(A, fn):
    ent, back = A.label('CE'), A.label('CB')
    B = sub(A)
    B('%s:', ent)
    B('s_nop 15')
    fn(B, back)
    B('s_nop 7')
    B('s_branch %s', back)
    COLD.extend(B.lines)
    return ent, back


def spin_guard(A, done):
    A('s_sub_u32 s%d, s%d, 1', sSPIN, sSPIN)
    A('s_cbranch_scc1 %s', done)


def wait_word(A, w, n, cache=None, sleep=0, body=None):
    sd = sT if cache is None else cache

    def loop(B, done, body=None):
        lo = B.label('W')
        prio(B, 0)
        B('%s:', lo)
        if sleep:
            B('s_sleep %d', sleep)
        B('ds_read_b32 v%d, v%d offset:%d', vPW, vMI, M_PW + 4 * w)
        k = body() if body else 0
        B('s_waitcnt lgkmcnt(%d)', k)
        B('v_readfirstlane_b32 s%d, v%d', sd, vPW)
        spin_guard(B, done)
        B('s_cmp_ge_u32 s%d, %d', sd, n)
        B('s_cbranch_scc0 %s', lo)
        prio(B, 1)
    if cache is not None and body is None and not HELP['on']:
        A('s_getpc_b64 s[%d:%d]', sPC, sPC + 1)
        A('s_cmp_ge_u32 s%d, %d', sd, n)
        A('s_cbranch_scc0 REFRESH_%d', w)
        return
    done = A.label('WD')
    if cache is not None and body is None:
        A('s_cmp_ge_u32 s%d, %d', sd, n)
        A('s_cbranch_scc1 %s', done)
    loop(A, done, body)
    A('%s:', done)


def wait_lp(A, name, sleep=0):
    w, n = LP[name]
    wait_word(A, w, n, CACHE[w], sleep)


def set_stage(A, n):
    A('v_mov_b32 v%d, %d', vT0, n)
    A('ds_write_b32 v%d, v%d', vMY, vT0)


def wait_stage(A, n, which=(0, 1, 2, 3), body=None, sleep=0, base=M_PW):
    lo, done = A.label('W'), A.label('WD')
    prio(A, 0)
    A('%s:', lo)
    if sleep:
        A('s_sleep %d', sleep)
    A('ds_read_b128 v[%d:%d], v%d offset:%d', vPW, vPW + 3, vMI, base + 16 * (which[0] // 4))
    k = body() if body else 0
    A('s_waitcnt lgkmcnt(%d)', k)
    w = [x % 4 for x in which]
    if len(w) == 4:
        A('v_min3_u32 v%d, v%d, v%d, v%d', vPW, vPW, vPW + 1, vPW + 2)
        A('v_min_u32 v%d, v%d, v%d', vPW, vPW, vPW + 3)
        r = vPW
    else:
        A('v_min_u32 v%d, v%d, v%d', vPW + w[0], vPW + w[0], vPW + w[1])
        r = vPW + w[0]
    A('v_readfirstlane_b32 s%d, v%d', sT, r)
    spin_guard(A, done)
    A('s_cmp_ge_u32 s%d, %d', sT, n)
    A('s_cbranch_scc0 %s', lo)
    A('%s:', done)
    prio(A, 1)


def poll_global(A, soff, nlanes):
    lo, done = A.label('P'), A.label('PD')
    A('v_lshlrev_b32 v%d, 2, v%d', vT1, vL)
    if nlanes <= 32:
        A('s_mov_b64 exec, 0x%x', (1 << nlanes) - 1)
    else:
        A('s_mov_b32 exec_lo, 0x%x', nlanes & 0xffffffff)
        A('s_mov_b32 exec_hi, 0x%x', nlanes >> 32)
    A('%s:', lo)
    A('buffer_load_dword v%d, v%d, s[%d:%d], s%d offen sc1', vT0, vT1, SWS, SWS + 3, soff)
    A('s_waitcnt vmcnt(0)')
    A('v_cmp_ne_u32 vcc, s%d, v%d', sTAG, vT0)
    spin_guard(A, done)
    A('s_cbranch_vccnz %s', lo)
    A('%s:', done)
    A('s_mov_b64 exec, -1')


def poll_scalar(A, soff, n):
    lo, done = A.label('P'), A.label('PD')
    A('s_add_u32 s%d, s%d, s%d', sPC, SWS, soff)
    A('s_addc_u32 s%d, s%d, 0', sPC + 1, SWS + 1)
    base = 76
    assert n == 8
    A('%s:', lo)
    if E('PSLEEP', 0):
        A('s_sleep %d', E('PSLEEP', 0))
    A('s_load_dwordx%d s[%d:%d], s[%d:%d], 0 glc', n, base, base + n - 1, sPC, sPC + 1)
    A('s_waitcnt lgkmcnt(0)')
    A('s_and_b64 s[%d:%d], s[%d:%d], s[%d:%d]', sHI, sHI + 1, base, base + 1, base + 2, base + 3)
    A('s_or_b64 s[%d:%d], s[%d:%d], s[%d:%d]', sPADL, sPADL + 1, base, base + 1, base + 2, base + 3)
    for k in range(4, n, 2):
        A('s_and_b64 s[%d:%d], s[%d:%d], s[%d:%d]', sHI, sHI + 1, sHI, sHI + 1, base + k, base + k + 1)
        A('s_or_b64 s[%d:%d], s[%d:%d], s[%d:%d]', sPADL, sPADL + 1, sPADL, sPADL + 1, base + k, base + k + 1)
    A('s_and_b32 s%d, s%d, s%d', sHI, sHI, sHI + 1)
    A('s_or_b32 s%d, s%d, s%d', sPADL, sPADL, sPADL + 1)
    A('s_xor_b32 s%d, s%d, s%d', sHI, sHI, sTAG)
    A('s_xor_b32 s%d, s%d, s%d', sPADL, sPADL, sTAG)
    spin_guard(A, done)
    A('s_or_b32 s%d, s%d, s%d', sHI, sHI, sPADL)
    A('s_cbranch_scc1 %s', lo)
    A('%s:', done)


def two_ways(A, fn, local):
    if local and FAST:
        ent, back = cold_block(A, lambda B, back: fn(B, ' sc1'))
        A('s_cmp_eq_u32 s%d, 0', sFASTF)
        A('s_cbranch_scc1 %s', ent)
        fn(A, '')
        A('%s:', back)
    else:
        fn(A, ' sc1')


def pub_stores(A, stores, local):
    def fn(B, bits):
        for st in stores:
            B(st % bits)
    two_ways(A, fn, local)


def pub_flag(A, sflag, local, drain=True):
    if drain:
        A('s_waitcnt vmcnt(0)')
    A('s_mov_b64 exec, 1')
    two_ways(A, lambda B, bits: B('buffer_store_dword v%d, v%d, s[%d:%d], s%d offen%s', vTAG, vO, SWS, SWS + 3, sflag,
                                  bits), local)
    A('s_mov_b64 exec, -1')


def pub_flag4(A):
    A('v_lshlrev_b32 v%d, 9, v%d', vT1, vL)
    A('s_waitcnt vmcnt(0)')
    A('s_mov_b64 exec, 15')
    two_ways(A, lambda B, bits: B('buffer_store_dword v%d, v%d, s[%d:%d], s%d offen%s', vTAG, vT1, SWS, SWS + 3, sFL,
                                  bits), True)
    A('s_mov_b64 exec, -1')


def st4(reg, soff, off):
    return 'buffer_store_dwordx4 %s, v%d, s[%d:%d], s%d offen offset:%d%%s' % (v(reg, 4), vO, SWS, SWS + 3, soff, off)


def hilo_c(A, src, f, tmp):
    A('v_cvt_pk_bf16_f32 v%d, v%d, v%d', f, src, src)
    A('v_and_b32 v%d, 0xffff0000, v%d', tmp, f)
    A('v_sub_f32 v%d, v%d, v%d', tmp, src, tmp)
    A('v_cvt_pk_bf16_f32 v%d, v%d, 0', f + 1, tmp)


def hilo_m(A, src, f, tmp):
    A('v_cvt_pk_bf16_f32 v%d, v%d, 0', f + 1, src)
    A('v_lshlrev_b32 v%d, 16, v%d', tmp, f + 1)
    A('v_sub_f32 v%d, v%d, v%d', tmp, src, tmp)
    A('v_cvt_pk_bf16_f32 v%d, v%d, v%d', f, src, tmp)


def ln_finish(A, t0, t1, negmean, rstd):
    A('v_mul_f32 v%d, 0x%x, v%d', t0, 0x3b124925, t0)
    A('v_mov_b32 v%d, v%d', t1, t0)
    A('v_permlane32_swap_b32 v%d, v%d', t0, t1)
    A('v_fma_f32 v%d, -v%d, v%d, v%d', t1, t0, t0, t1)
    A('v_max_f32 v%d, 0, v%d', t1, t1)
    A('v_add_f32 v%d, 0x%x, v%d', t1, 0x3727c5ac, t1)
    A('v_rsq_f32 v%d, v%d', rstd, t1)
    A('v_sub_f32 v%d, 0, v%d', negmean, t0)


def softmax_pm(A, p, sc, e, t):
    A('v_cndmask_b32 v%d, v%d, v%d, s[%d:%d]', p + 12, p + 12, p + 14, sHI, sHI + 1)
    A('v_cndmask_b32 v%d, v%d, v%d, s[%d:%d]', p + 13, p + 13, p + 15, sHI, sHI + 1)
    mx, mn = t, t + 1
    A('v_max3_f32 v%d, v%d, v%d, v%d', mx, p, p + 1, p + 2)
    A('v_min3_f32 v%d, v%d, v%d, v%d', mn, p, p + 1, p + 2)
    for i in range(3, 13, 2):
        A('v_max3_f32 v%d, v%d, v%d, v%d', mx, mx, p + i, p + i + 1)
        A('v_min3_f32 v%d, v%d, v%d, v%d', mn, mn, p + i, p + i + 1)
    A('v_max_f32 v%d, v%d, v%d', mx, mx, p + 13)
    A('v_min_f32 v%d, v%d, v%d', mn, mn, p + 13)
    A('v_sub_f32 v%d, 0, v%d', mn, mn)
    A('v_permlane32_swap_b32 v%d, v%d', mx, mn)
    A('v_max_f32 v%d, v%d, v%d', mx, mx, mn)
    A('v_mul_f32 v%d, v%d, v%d', mx, mx, sc)
    A('v_mov_b32 v%d, v%d', mn, mx)
    A('v_permlane32_swap_b32 v%d, v%d', mx, mn)
    for i in range(14):
        A('v_fma_f32 v%d, -v%d, v%d, -v%d', e + i, p + i, sc, mn)
        A('v_fma_f32 v%d, v%d, v%d, -v%d', p + i, p + i, sc, mx)
        if i:
            A('v_exp_f32 v%d, v%d', e + i - 1, e + i - 1)
            A('v_exp_f32 v%d, v%d', p + i - 1, p + i - 1)
    A('v_exp_f32 v%d, v%d', e + 13, e + 13)
    A('v_exp_f32 v%d, v%d', p + 13, p + 13)
    if PKSM:
        for base in (p, e):
            A('v_pk_add_f32 v[%d:%d], v[%d:%d], v[%d:%d]', base + 14, base + 15, base, base + 1, base + 2, base + 3)
        for i in range(4, 14, 2):
            for base in (p, e):
                A('v_pk_add_f32 v[%d:%d], v[%d:%d], v[%d:%d]', base + 14, base + 15, base + 14, base + 15, base + i,
                  base + i + 1)
    else:
        for base in (p, e):
            A('v_add_f32 v%d, v%d, v%d', base + 14, base, base + 2)
            A('v_add_f32 v%d, v%d, v%d', base + 15, base + 1, base + 3)
        for i in range(4, 14):
            for base in (p, e):
                A('v_add_f32 v%d, v%d, v%d', base + 14 + (i & 1), base + 14 + (i & 1), base + i)
    sp, sn = t + 2, t
    A('v_add_f32 v%d, v%d, v%d', sp, p + 14, p + 15)
    A('v_add_f32 v%d, v%d, v%d', sn, e + 14, e + 15)
    A('v_permlane32_swap_b32 v%d, v%d', sp, sn)
    A('v_add_f32 v%d, v%d, v%d', sp, sp, sn)
    A('v_rcp_f32 v%d, v%d', sp, sp)
    A('v_mov_b32 v%d, v%d', sn, sp)
    A('v_permlane32_swap_b32 v%d, v%d', sp, sn)
    for i in range(0, 14, 2):
        for base, r in ((p, sp), (e, sn)):
            if PKSM:
                A('v_pk_mul_f32 v[%d:%d], v[%d:%d], v[%d:%d] op_sel_hi:[1,0]', base + i, base + i + 1, base + i,
                  base + i + 1, r, r + 1)
            else:
                A('v_mul_f32 v%d, v%d, v%d', base + i, base + i, r)
                A('v_mul_f32 v%d, v%d, v%d', base + i + 1, base + i + 1, r)
    for i, (a0, a1) in enumerate(((0, 1), (2, 3), (4, 5), (6, None), (7, 8), (9, 10), (11, 12), (13, None))):
        for base in (p, e):
            A('v_cvt_pk_bf16_f32 v%d, v%d, %s', base + i, base + a0, '0' if a1 is None else 'v%d' % (base + a1))


PKSM = E('PKSM', 1)


def silu8(B, acc, e, sd, c1, out):
    for r in range(8):
        B('v_mul_f32 v%d, v%d, v%d', e + r, acc + r, c1)
        if r >= 1:
            B('v_exp_f32 v%d, v%d', e + r - 1, e + r - 1)
    B('v_exp_f32 v%d, v%d', e + 7, e + 7)
    for r in range(8):
        B('v_fma_f32 v%d, v%d, v%d, v%d', e + r, e + r, sd, sd)
        if r >= 1:
            B('v_rcp_f32 v%d, v%d', e + r - 1, e + r - 1)
    B('v_rcp_f32 v%d, v%d', e + 7, e + 7)
    for r in range(8):
        B('v_mul_f32 v%d, v%d, v%d', e + r, e + r, acc + r)
    cvt8(B, out, e, 4)


def cvt8(A, dst, src, n=8):
    for i in range(n):
        A('v_cvt_pk_bf16_f32 v%d, v%d, v%d', dst + i, src + 2 * i, src + 2 * i + 1)


def mfma(A, d, a_, b_, first=False):
    A('%s %s, %s, %s, %s', MFMA, v(d, 16), v(a_, 4), v(b_, 4), '0' if first else v(d, 16))


def merge(main, blocks, start, stop):
    idx = [i for i, l in enumerate(main) if l.strip().startswith('v_mfma')][start:stop]
    out, k = [], 0
    n = len(idx)
    pos = {i: j for j, i in enumerate(idx)}
    for i, l in enumerate(main):
        out.append(l)
        if i in pos:
            upto = (len(blocks) * (pos[i] + 1) + n - 1) // n
            for b in blocks[k:upto]:
                out += b
            k = max(k, upto)
    assert k >= len(blocks)
    return out


def sub(A):
    return Asm()


L_H = (L_A, L_A + 28672, 0, 65536)
W2S = [32768, 40960] + [L_A + k * 8192 for k in range(2)] + [L_SC0, L_SC1] + [L_A + k * 8192 for k in range(2, 7)] + [
    k * 8192 for k in range(4)] + [65536 + k * 8192 for k in range(4)]
W2GATE = {2: 9, 7: 10, 11: 11, 15: 12}
W2RE = dict(zip(range(19, 28), (0, 1, 2, 3, 6, 7, 8, 9, 10)))


def w2_slot(n):
    return W2S[W2RE.get(n, n)]


def w1_slot(c):
    return B16[c % 5]


class LdsQ:
    def __init__(self, A):
        self.A, self.q = A, []
        self.peeked = False

    def op(self, tag, fmt, *a):
        self.A(fmt, *a)
        self.q.append(tag)

    def need(self, tag):
        idx = [i for i, x in enumerate(self.q) if x == tag]
        if not idx:
            return None
        n = len(self.q) - 1 - idx[-1]
        self.q = self.q[idx[-1] + 1:]
        return min(n, 15)

    def wait(self, tag, vm=None):
        n = self.need(tag)
        if n is None and vm is None:
            return
        self.A('s_waitcnt' + ('' if vm is None else ' vmcnt(%d)' % vm) + ('' if n is None else ' lgkmcnt(%d)' % n))

    def stage(self, n):
        set_stage(self.A, n)
        self.q.append('st')

    def peek(self, w):
        if w == 5:
            self.op('pk', 'ds_read_b32 v%d, v%d', vPK_, vCA)
        else:
            self.op('pk', 'ds_read_b32 v%d, v%d offset:%d', vPK_, vMI, M_PW + 4 * w)
        self.peeked = True

    def take(self, w):
        if not self.peeked:
            return
        self.peeked = False
        self.wait('pk')
        self.A('v_readfirstlane_b32 s%d, v%d', CACHE[w], vPK_)


def tag_compute(A, t16=None):
    A('s_waitcnt lgkmcnt(0)')
    if t16 is not None:
        A('s_lshr_b32 s%d, s%d, 16', sT2, sTAG)
    A('s_mul_i32 s%d, s%d, 0x%x', sTAG, sTAG, 1664525)
    A('s_add_u32 s%d, s%d, 0x%x', sTAG, sTAG, 1013904223)
    A('v_mov_b32 v%d, s%d', vTAG, sTAG)
    if t16 is not None:
        A('s_and_b32 s%d, s%d, 0x3fff', t16, sTAG)
        A('s_and_b32 s%d, s%d, 0x4000', sT, sTAG)
        A('s_lshl_b32 s%d, s%d, 1', sT, sT)
        A('s_or_b32 s%d, s%d, s%d', t16, t16, sT)
        A('s_cmp_eq_u32 s%d, s%d', t16, sT2)
        A('s_cselect_b32 s%d, 1, 0', sT)
        A('s_xor_b32 s%d, s%d, s%d', t16, t16, sT)
        A('s_lshl_b32 s%d, s%d, 16', t16, t16)


def fast_check(A):
    A('s_getreg_b32 s%d, hwreg(HW_REG_XCC_ID)', sC)
    A('s_and_b32 s%d, s%d, 15', sC, sC)
    A('s_add_u32 s%d, s%d, s%d', sC, sC, sTAG)
    A('s_lshl_b32 s%d, s%d, 7', sT, sXCD)
    A('s_add_u32 s%d, s%d, %d', sT, sT, FREG)
    A('v_and_b32 v%d, 31, v%d', vT1, vL)
    A('v_lshlrev_b32 v%d, 2, v%d', vT1, vT1)
    A('buffer_load_dword v%d, v%d, s[%d:%d], s%d offen sc1', vT0, vT1, SWS, SWS + 3, sT)
    A('s_waitcnt vmcnt(0)')
    A('v_cmp_ne_u32 vcc, s%d, v%d', sC, vT0)
    A('s_cmp_eq_u64 vcc, 0')
    A('s_cselect_b32 s%d, 1, 0', sFASTF)


class Stream:
    def __init__(self, A, wave, depth, first=0):
        self.A, self.wave, self.depth = A, wave, depth
        self.items = []
        self.issued = 0
        self.known = 0
        self.n = first

    def wait_to(self, left):
        if self.issued - left <= self.known:
            return
        self.A('s_waitcnt vmcnt(%d)', left)
        self.known = self.issued - left
        last = None
        while self.items and self.items[0][1] <= self.known:
            last = self.items.pop(0)[0]
        if last is not None:
            set_stage(self.A, last)

    def room(self, k):
        self.wait_to(max(self.depth - k, 0))
        self.issued += k

    def done(self, name, cnt=None):
        self.n += 1
        assert LP.setdefault(name, (self.wave, self.n)) == (self.wave, self.n), name
        self.items.append((self.n, self.issued))

    def drain(self):
        self.drain_to(0)

    def drain_to(self, keep):
        while len(self.items) > keep:
            self.wait_to(self.issued - self.items[0][1])

    def save(self):
        return (list(self.items), self.issued, self.known)

    def restore(self, s):
        self.items, self.issued, self.known = list(s[0]), s[1], s[2]

    def dma4(self, lds, voffs, srd_, step=None, bits=''):
        A = self.A
        if isinstance(lds, tuple):
            A('s_add_u32 m0, s%d, %d', lds[0], lds[1])
        else:
            A('s_mov_b32 m0, %d', lds)
        self.room(4)
        for u in range(4):
            A('buffer_load_dwordx4 v%d, s[%d:%d], s%d offen offset:%d%s lds', voffs[u], srd_, srd_ + 3, sT, u * 1024,
              bits)
        if step:
            A('s_add_u32 s%d, s%d, %d', sT, sT, step)


def reg4(St, regs, voffs, srd_, step=None):
    St.room(4)
    for u in range(4):
        St.A('buffer_load_dwordx4 %s, v%d, s[%d:%d], s%d offen offset:%d', v(regs[u], 4), voffs[u], srd_, srd_ + 3, sT,
             u * 1024)
    if step:
        St.A('s_add_u32 s%d, s%d, %d', sT, sT, step)


def spill(St, name, regs, lds):
    A = St.A
    assert not St.items
    A('v_add_u32 v%d, %d, v%d', vT1, lds, vO)
    for j, r in enumerate(regs):
        A('ds_write_b128 v%d, %s offset:%d', vT1, v(r, 4), j * 1024)
    St.n += 1
    assert LP.setdefault(name, (St.wave, St.n)) == (St.wave, St.n), name
    set_stage(A, St.n)


def off128(A, vW128, vXo=None):
    A('v_lshrrev_b32 v%d, 3, v%d', vW128, vL)
    A('v_mul_u32_u24 v%d, 896, v%d', vW128, vW128)
    A('v_and_b32 v%d, 7, v%d', vT1, vL)
    if vXo is not None:
        A('v_lshl_add_u32 v%d, v%d, 4, v%d', vXo, vT1, vW128)
        spread4(A, vXo, 8 * 896)
    A('v_lshrrev_b32 v%d, 2, v%d', vT0, vL)
    A('v_and_b32 v%d, 4, v%d', vT0, vT0)
    A('v_xor_b32 v%d, v%d, v%d', vT1, vT1, vT0)
    A('v_lshl_add_u32 v%d, v%d, 4, v%d', vW128, vT1, vW128)
    spread4(A, vW128, 8 * 896)


def h_stream(A, first):
    wave = 7
    St = Stream(A, wave, E('HDEPTH', 24), first)
    if wave == 7:
        A('s_lshl_b32 s%d, s%d, 17', sB, sTB3)
        A('s_add_u32 s%d, s%d, %d', sB, sB, WS_HB)
        rot_calc(A, sG, 'w1')
        for u in range(7):
            rot_idx(A, 4 + u, sG, u, 7)
            A('s_lshl_b32 s%d, s%d, 12', 4 + u, 4 + u)
            A('s_add_u32 s%d, s%d, s%d', 4 + u, 4 + u, sB)
            A('s_add_u32 s%d, s%d, 4096', 4 + u, 4 + u)
        A('s_lshl_b32 s%d, s%d, 8', sT2, sTB3)
        A('s_add_u32 s%d, s%d, %d', sT2, sT2, F3)
        A('v_lshlrev_b32 v%d, 2, v%d', vT1, vL)
        W2T = E('W2T', 0)
        if W2T:
            A('v_mul_u32_u24 v40, 896, v%d', vL)
            A('s_and_b32 s%d, s%d, 3', sC, sTQ)
            A('s_mul_i32 s%d, s%d, %d', sC, sC, 448 * 896)
            A('s_lshl_b32 s%d, s%d, 7', sT, sNB)
            A('s_add_u32 s%d, s%d, s%d', sC, sC, sT)
            n1 = E('W2T1', 0)
            for u in range(7):
                if u == 0 and n1:
                    wait_stage(A, 3, (5, 6), sleep=1)
                if u == n1:
                    wait_stage(A, 1, base=M_LD, sleep=1)
                A('buffer_load_dword v41, v40, s[%d:%d], s%d offen', SW2, SW2 + 3, sC)
                A('s_add_u32 s%d, s%d, %d', sC, sC, 64 * 896)
        wait_stage(A, C0 + 7, sleep=1)
        stamp(A)
        lo, done = A.label('P'), A.label('PD')
        A('s_mov_b32 exec_lo, 0x3fff3fff')
        A('s_mov_b32 exec_hi, 0x3fff3fff')
        A('%s:', lo)
        A('buffer_load_dword v%d, v%d, s[%d:%d], s%d offen sc1', vT0, vT1, SWS, SWS + 3, sT2)
        A('s_waitcnt vmcnt(0)')
        A('v_cmp_ne_u32 vcc, s%d, v%d', sTAG, vT0)
        spin_guard(A, done)
        A('s_cbranch_vccnz %s', lo)
        A('%s:', done)
        A('s_mov_b64 exec, -1')
        stamp(A)
        for gi in range(4):
            if gi == 2:
                wait_stage(A, C0 + 8)
            A('s_and_b32 s%d, s%d, 1', sC, sFB)
            A('s_lshl_b32 s%d, s%d, 1', sC, sC)
            A('s_xor_b32 s%d, s%d, %d', sC, sC, gi)
            A('s_lshl_b32 s%d, s%d, 15', sC, sC)
            for u in range(7):
                A('s_add_u32 s%d, s%d, s%d', sT, 4 + u, sC)
                St.dma4(L_H[gi] + u * 4096, [vO] * 4, SWS, None, LDB)
                if u == 2:
                    A('s_add_u32 s%d, s%d, s%d', sT, sB, sC)
                    St.dma4(L_SC0 + gi * 4096, [vO] * 4, SWS, None, ' sc1')
                if u % 2 == 0:
                    St.done(('h', gi, u // 2))
                if gi == 0 and u == E('HFIRST', 2):
                    St.drain_to(1)
        St.drain()
    stamp(A)


def spread4(A, base, step):
    for u in range(1, 4):
        A('v_add_u32 v%d, %d, v%d', base + u, u * (step - 1024), base)


def wtr_base(A):
    A('v_lshrrev_b32 v%d, 5, v%d', vT1, vL)
    A('v_bfe_u32 v%d, v%d, 2, 2', vT0, vL)
    A('v_lshl_add_u32 v%d, v%d, 3, v%d', vT0, vT1, vT0)
    A('v_lshlrev_b32 v%d, 6, v%d', vT0, vT0)
    A('v_bfe_u32 v%d, v%d, 4, 1', vTT, vL)
    A('v_lshl_add_u32 v%d, v%d, 5, v%d', vT0, vTT, vT0)
    A('v_and_b32 v%d, 3, v%d', vTT, vL)
    A('v_lshl_add_u32 v%d, v%d, 3, v%d', vT0, vTT, vT0)
    for pi in range(3):
        A('v_add_u32 v%d, %d, v%d', vWA + pi, L_WP[pi], vT0)
    A('v_lshlrev_b32 v%d, 3, v%d', vCA, vL)
    A('v_add_u32 v%d, %d, v%d', vCA, L_CF, vCA)


def sel_frags(A, vID):
    A('v_lshrrev_b32 v%d, 5, v%d', vT1, vL)
    A('v_and_b32 v%d, 31, v%d', vT0, vL)
    A('v_lshlrev_b32 v%d, 2, v%d', vTT, vT1)
    A('v_sub_u32 v%d, v%d, v%d', vT0, vT0, vTT)
    A('v_mov_b32 v%d, 0x3f80', vTT)
    A('v_mov_b32 v%d, 0x3f800000', vTT + 1)
    for sidx in range(2):
        for rr in range(4):
            m = 16 * sidx + 8 * (rr >> 1) + 2 * (rr & 1)
            A('v_cmp_eq_u32 vcc, %d, v%d', m, vT0)
            A('v_cndmask_b32 v%d, 0, v%d, vcc', vID + 4 * sidx + rr, vTT)
            A('v_cmp_eq_u32 vcc, %d, v%d', m + 1, vT0)
            A('v_cndmask_b32 v%d, v%d, v%d, vcc', vID + 4 * sidx + rr, vID + 4 * sidx + rr, vTT + 1)


def read_w(A, pi, i, buf, sleep=0):
    wait_lp(A, ('W', pi, i), sleep)
    for q in range(4):
        for z in range(2):
            A('ds_read_b64_tr_b16 v[%d:%d], v%d offset:%d', buf + 4 * q + 2 * z, buf + 4 * q + 2 * z + 1,
              vWA + pi, i * 4096 + q * 1024 + z * 256)


def colsum(A, spi):
    vCS, vB_, buf = 40, 44, 48
    A('v_mov_b32 v%d, 0', vCS)
    A('v_mov_b32 v%d, 0', vCS + 1)
    A('s_cmp_eq_u32 s%d, 1', spi)
    A('s_cselect_b32 s%d, 0, %d', sT, L_WP[2])
    A('s_cmp_eq_u32 s%d, 0', spi)
    A('s_cselect_b32 s%d, %d, s%d', sT, L_WP[0], sT)
    assert L_WP[1] == 0
    A('v_add_u32 v%d, s%d, v%d', vB_, sT, vWA + 1)
    A('s_mul_i32 s%d, s%d, 7', sC, spi)
    A('s_add_u32 s%d, s%d, 7', sT2, sC)
    top, lo, ok = A.label('CS'), A.label('W'), A.label('WD')
    A('%s:', top)
    A('s_cmp_gt_u32 s%d, s%d', sPROG, sC)
    A('s_cbranch_scc1 %s', ok)
    prio(A, 0)
    A('%s:', lo)
    A('ds_read_b32 v%d, v%d offset:%d', vPW, vMI, M_PW + 16)
    A('s_waitcnt lgkmcnt(0)')
    A('v_readfirstlane_b32 s%d, v%d', sPROG, vPW)
    spin_guard(A, ok)
    A('s_cmp_gt_u32 s%d, s%d', sPROG, sC)
    A('s_cbranch_scc0 %s', lo)
    prio(A, 1)
    A('%s:', ok)
    for q in range(4):
        for z in range(2):
            A('ds_read_b64_tr_b16 v[%d:%d], v%d offset:%d', buf + 4 * q + 2 * z, buf + 4 * q + 2 * z + 1, vB_,
              q * 1024 + z * 256)
    A('v_add_u32 v%d, 4096, v%d', vB_, vB_)
    A('s_add_u32 s%d, s%d, 1', sC, sC)
    for q in range(4):
        A('s_waitcnt lgkmcnt(%d)', 6 - 2 * q)
        for r in range(4):
            A('v_dot2c_f32_bf16 v%d, s%d, v%d', vCS + (r & 1), sONES, buf + 4 * q + r)
    A('s_cmp_lt_u32 s%d, s%d', sC, sT2)
    A('s_cbranch_scc1 %s', top)
    A('v_add_f32 v%d, v%d, v%d', vCS, vCS, vCS + 1)
    hilo_c(A, vCS, vCS + 2, vT0)
    A('s_lshl_b32 s%d, s%d, 9', sT, spi)
    A('v_add_u32 v%d, s%d, v%d', vB_, sT, vCA)
    A('ds_write_b64 v%d, v[%d:%d]', vB_, vCS + 2, vCS + 3)


ROT = E('ROT', 1)
W2R = E('W2R', 1)


def rot_calc(A, dst, kind):
    if not ROT:
        A('s_mov_b32 s%d, 0', dst)
        return
    if kind == 'w1':
        A('s_and_b32 s%d, s%d, 1', dst, sTB3)
        A('s_mul_i32 s%d, s%d, 3', dst, dst)
        mod = 7
    elif kind == 'wo':
        A('s_and_b32 s%d, s%d, 3', dst, sTQ)
        A('s_lshl_b32 s%d, s%d, 1', dst, dst)
        mod = 7
    else:
        A('s_and_b32 s%d, s%d, 3', dst, sTQ)
        A('s_mul_i32 s%d, s%d, 7', dst, dst)
        A('s_lshr_b32 s%d, s%d, 1', dst, dst)
        mod = 14
    A('s_add_u32 s%d, s%d, s%d', dst, dst, sXCD)
    A('s_cmp_ge_u32 s%d, %d', dst, mod)
    A('s_cselect_b32 s%d, %d, 0', sT, mod)
    A('s_sub_u32 s%d, s%d, s%d', dst, dst, sT)


def rot_idx(A, dst, rot, j, mod):
    A('s_add_u32 s%d, s%d, %d', dst, rot, j)
    A('s_cmp_ge_u32 s%d, %d', dst, mod)
    A('s_cselect_b32 s%d, %d, 0', sT2, mod)
    A('s_sub_u32 s%d, s%d, s%d', dst, dst, sT2)


def blk_init(A, sb, sst, kh):
    A('s_and_b32 s%d, s%d, 1', sb, sTQ)
    if isinstance(kh, str):
        A('s_xor_b32 s%d, s%d, %s', sb, sb, kh)
    elif kh:
        A('s_xor_b32 s%d, s%d, 1', sb, sb)
    A('s_lshr_b32 s%d, s%d, 1', sT, sTQ)
    A('s_xor_b32 s%d, s%d, s%d', sT, sT, sXCD)
    A('s_sub_u32 s%d, 6, s%d', sT2, sb)
    A('s_bitcmp1_b32 s%d, 0', sT)
    A('s_cselect_b32 s%d, s%d, s%d', sb, sT2, sb)
    A('s_cselect_b32 s%d, 5, 2', sst)


def blk_next(A, sb, sst):
    A('s_add_u32 s%d, s%d, s%d', sb, sb, sst)
    A('s_cmp_ge_u32 s%d, 7', sb)
    A('s_cselect_b32 s%d, 7, 0', sT2)
    A('s_sub_u32 s%d, s%d, s%d', sb, sb, sT2)


def rest_srds(A):
    A('s_add_u32 s82, s80, %d', FEP)
    A('s_addc_u32 s83, s81, 0')
    A('s_load_dword s%d, s[82:83], 0', sTAG)
    srd(A, SP, 68, H * DH * DH * 2)
    srd(A, SWO, 70, D * D * 2)
    srd(A, SW1, 74, D * F * 2)
    srd(A, SW2, 76, D * F * 2)
    srd(A, SOUT, 78, S * D * 2)
    srd(A, SWS, 80, WS_SIZE)


def rot_next(A):
    A('s_add_u32 s%d, s%d, 1', sC, sC)
    A('s_cmp_eq_u32 s%d, 7', sC)
    A('s_cselect_b32 s%d, 0, s%d', sC, sC)


def sig_dyn(A, sval):
    A('v_mov_b32 v%d, s%d', vT0, sval)
    A('ds_write_b32 v%d, v%d', vMY, vT0)


def early_offsets(A):
    A('v_lshrrev_b32 v%d, 3, v%d', vT0, vL)
    A('v_mul_u32_u24 v%d, 896, v%d', vT0, vT0)
    A('v_lshrrev_b32 v%d, 4, v%d', vT1, vL)
    A('v_and_b32 v%d, 7, v%d', vXD, vL)
    A('v_xor_b32 v%d, v%d, v%d', vXD, vXD, vT1)
    A('v_xor_b32 v%d, 4, v%d', vXD + 1, vXD)
    A('v_lshl_add_u32 v%d, v%d, 4, v%d', vXD, vXD, vT0)
    A('v_lshl_add_u32 v%d, v%d, 4, v%d', vXD + 1, vXD + 1, vT0)
    A('v_add_u32 v%d, %d, v%d', vXD + 1, 8 * 896 - 1024, vXD + 1)
    A('v_add_u32 v%d, %d, v%d', vXD + 2, 2 * (8 * 896 - 1024), vXD)
    A('v_add_u32 v%d, %d, v%d', vXD + 3, 2 * (8 * 896 - 1024), vXD + 1)
    vW = 40
    A('v_lshrrev_b32 v%d, 2, v%d', vW, vL)
    A('v_mul_u32_u24 v%d, 2688, v%d', vW, vW)
    A('v_and_b32 v%d, 3, v%d', vT1, vL)
    A('v_lshl_add_u32 v%d, v%d, 4, v%d', vW, vT1, vW)
    A('s_mul_i32 s%d, s%d, 56', sT, sH)
    A('s_and_b32 s%d, s%d, 0xfffffff0', sT, sT)
    A('v_add_u32 v%d, s%d, v%d', vW, sT, vW)
    spread4(A, vW, 16 * 2688)
    A('s_mul_i32 s%d, s%d, %d', sXB, sTB, 128 * 896)
    A('s_mov_b32 s%d, s%d', sC, sC0)


def early_x(A):
    depth = E('XDEPTH', 16)
    wsig = ((depth - 4) // 4) % 4
    lag = (depth - 4 - 4 * wsig) // 16
    A('s_mov_b32 s%d, %d', sG, -lag)
    A('s_mov_b32 m0, %d', L_X)
    top = A.label('XL')
    A('%s:', top)
    A('s_lshl_b32 s%d, s%d, 7', sT, sC)
    A('s_add_u32 s%d, s%d, s%d', sT, sT, sXB)
    for w in range(4):
        A('s_waitcnt vmcnt(%d)', depth - 4)
        if w == wsig:
            A('s_max_i32 s%d, s%d, 0', sT2, sG)
            sig_dyn(A, sT2)
        for u in range(4):
            A('buffer_load_dwordx4 v%d, s[%d:%d], s%d offen offset:%d lds', vXD + u, SX, SX + 3, sT, u * 1024)
        A('s_add_u32 m0, m0, 4096')
        if w < 3:
            A('s_add_u32 s%d, s%d, %d', sT, sT, 32 * 896)
    rot_next(A)
    A('s_add_u32 s%d, s%d, 1', sG, sG)
    A('s_cmp_lt_i32 s%d, %d', sG, 7 - lag)
    A('s_cbranch_scc1 %s', top)
    stamp(A)
    for n in range(7 - lag, 8):
        A('s_waitcnt vmcnt(%d)', 16 * (7 - n))
        set_stage(A, n)


def early_w(A):
    vW = 40

    def part_loop(pi, depth, floor):
        lag = (depth - 4) // 4
        stamp(A)
        A('s_mov_b32 s%d, s%d', sC, sC0)
        A('s_mov_b32 s%d, %d', sG, 7 * pi - lag)
        A('s_mov_b32 m0, %d', L_WP[pi])
        top = A.label('WL')
        A('%s:', top)
        A('s_mul_i32 s%d, s%d, %d', sT, sC, 64 * 2688)
        A('s_add_u32 s%d, s%d, %d', sT, sT, (1, 2, 0)[pi] * 896)
        A('s_max_i32 s%d, s%d, %d', sT2, sG, floor)
        A('s_waitcnt vmcnt(%d)', depth - 4)
        sig_dyn(A, sT2)
        for u in range(4):
            A('buffer_load_dwordx4 v%d, s[%d:%d], s%d offen offset:%d lds', vW + u, SW, SW + 3, sT, u * 1024)
        A('s_add_u32 m0, m0, 4096')
        rot_next(A)
        A('s_add_u32 s%d, s%d, 1', sG, sG)
        A('s_cmp_lt_i32 s%d, %d', sG, 7 * pi + 7 - lag)
        A('s_cbranch_scc1 %s', top)
        return lag
    lag = part_loop(0, E('WDEPTH', 8), 0)
    for n in range(7 - lag, 8):
        A('s_waitcnt vmcnt(%d)', 4 * (7 - n))
        set_stage(A, n)
    wait_stage(A, 1)
    if E('XG2', 4) >= 0:
        wait_lp(A, ('x', E('XG2', 4)))
    part_loop(1, E('WDEPTH2', 24), 7)


def gen_h0(A):
    St = Stream(A, 4, E('WDEPTH2', 24), 14)
    St.issued = 56
    St.known = 56 - St.depth
    St.items = [(n + 1, 4 * n + 4) for n in range(14) if 4 * n + 4 > St.known]
    vW, vW128, vXo, vW256 = 36, 12, 16, 20
    q4 = lambda b: [b, b + 1, b + 2, b + 3]
    for u in range(4):
        A('v_mov_b32 v%d, v%d', vW + u, 40 + u)
    rest_srds(A)

    def wq():
        wait_stage(A, 2)
        stamp(A)
        for i in range(7):
            rot_idx(A, sT, sC0, i, 7)
            A('s_mul_i32 s%d, s%d, %d', sT, sT, 64 * 2688)
            St.dma4(L_WP[2] + i * 4096, q4(vW), SW)
            St.done(('W', 2, i))
    lend = A.label('LEND')
    act = A.label('ACT')
    A('s_cmp_lt_u32 s%d, 28', sI)
    A('s_cbranch_scc1 %s', act)
    keep, n0 = St.save(), _st['n']
    wq()
    St.drain()
    St.restore(keep)
    St.n = 14
    if E('TOUCH', 1):
        def touch(srd_, base, per_xcd, n):
            A('s_mul_i32 s%d, s%d, %d', sT, sXCD, per_xcd)
            A('s_sub_u32 s%d, s%d, 28', sT2, sI)
            A('s_mul_i32 s%d, s%d, %d', sT2, sT2, n * 8192)
            A('s_add_u32 s%d, s%d, s%d', sT, sT, sT2)
            A('s_add_u32 s%d, s%d, %d', sT, sT, base)
            A('s_mov_b32 s%d, %d', sC, n)
            lo = A.label('T')
            A('%s:', lo)
            A('buffer_load_dword v%d, v%d, s[%d:%d], s%d offen', vW + 1, vW, srd_, srd_ + 3, sT)
            A('s_add_u32 s%d, s%d, 8192', sT, sT)
            A('s_waitcnt vmcnt(%d)', E('TDEPTH', 6))
            A('s_sub_u32 s%d, s%d, 1', sC, sC)
            A('s_cmp_lg_u32 s%d, 0', sC)
            A('s_cbranch_scc1 %s', lo)
        A('v_lshlrev_b32 v%d, 7, v%d', vW, vL)
        if E('TEARLY', 0):
            wait_stage(A, 3, (5, 6), sleep=2)
        else:
            wait_stage(A, C0 + 5, sleep=2)
        stamp(A)
        if HLATE and not WTO:
            touch(SWS, WS_HB, 262144, 8)
        stamp(A)
        if not WT1:
            touch(SWS, WS_H1B, 8 * 112 * 1024, 28)
        stamp(A)
        if E('W2WARM', 0):
            touch(SW2, 0, 0, 49)
        stamp(A)
    _st['n'] = n0
    A('s_branch %s', lend)
    A('%s:', act)
    off128(A, vW128)
    A('v_lshrrev_b32 v%d, 4, v%d', vW256, vL)
    A('v_mul_u32_u24 v%d, 3584, v%d', vW256, vW256)
    A('v_and_b32 v%d, 15, v%d', vT1, vL)
    A('v_lshrrev_b32 v%d, 2, v%d', vT0, vL)
    A('v_and_b32 v%d, 12, v%d', vT0, vT0)
    A('v_xor_b32 v%d, v%d, v%d', vT1, vT1, vT0)
    A('v_lshl_add_u32 v%d, v%d, 4, v%d', vW256, vT1, vW256)
    spread4(A, vW256, 4 * 3584)
    A('s_lshl_b32 s%d, s%d, 7', sB, sNB)

    sR1, sRO, sR2 = sG, sKH, sXB
    rot_calc(A, sR1, 'w1')
    rot_calc(A, sRO, 'wo')
    sBK, sBS = [8, 9], 10
    blk_init(A, sBK[0], sBS, 0)
    blk_init(A, sBK[1], sBS, 1)

    def w1_off(c):
        rot_idx(A, sT, sR1, c, 7)
        A('s_mul_i32 s%d, s%d, %d', sT, sT, 64 * 3584)
        A('s_lshl_b32 s%d, s%d, 8', sT2, sFB)
        A('s_add_u32 s%d, s%d, s%d', sT, sT, sT2)

    def w1_chunk(c):
        w1_off(c)
        for u in range(4):
            St.dma4(w1_slot(c) + u * 4096, q4(vW256), SW1, 16 * 3584 if u < 3 else None)
        St.done(('w1', c), 16)

    def w2_item(n):
        c, kh = n >> 1, n & 1
        A('s_mul_i32 s%d, s%d, %d', sT, sBK[kh], 128 * 896)
        A('s_add_u32 s%d, s%d, s%d', sT, sT, sB)
        if kh or (c & 1):
            A('s_add_u32 s%d, s%d, %d', sT, sT, (kh * 896 + (c & 1) * 64) * 896)
        if c & 1:
            blk_next(A, sBK[kh], sBS)
        for u in range(2):
            St.dma4(w2_slot(n) + u * 4096, q4(vW128), SW2, 32 * 896 if u < 1 else None)
        St.done(('w2', n), 8)

    SR = [24, 28] + list(range(40, 256, 4))

    def staged():
        for u in range(12):
            if u % 4 == 0:
                w1_off(4 + u // 4)
            reg4(St, SR[8 + 4 * u:12 + 4 * u], q4(vW256), SW1, 16 * 3584)
            if u == 5:
                St.depth = E('LDEPTH', 32)

    def wo():
        St.drain_to(3)
        wait_stage(A, 3)
        wait_word(A, 5, 1)
        stamp(A)
        for c in range(7):
            rot_idx(A, sC, sRO, c, 7)
            A('s_mul_i32 s%d, s%d, %d', sT, sC, 64 * 896)
            A('s_add_u32 s%d, s%d, s%d', sT, sT, sB)
            A('s_lshl_b32 s%d, s%d, 13', sC, sC)
            for u in range(2):
                St.dma4((sC, L_A + u * 4096), q4(vW128), SWO, 32 * 896 if u < 1 else None)
            if c == 2:
                St.depth = E('LDEPTH', 32)
        St.done('wo')
    def quiet():
        St.drain()
        if E('QLONG', 0):
            wait_stage(A, C0 + 5, sleep=1)
        else:
            wait_stage(A, 3, (5, 6), sleep=1)
    if E('ORDER', 1) == 0:
        wq(), wo(), staged()
    elif E('ORDER', 1) == 3:
        wq(), quiet(), wo(), staged()
    elif E('ORDER', 1) == 4:
        wq(), wo(), quiet(), staged()
    elif E('ORDER', 1) == 5:
        staged()
        St.depth = E('WDEPTH2', 24)
        wq(), wo(), quiet()
    else:
        if E('ORDER', 1) == 2:
            St.drain_to(2)
        staged()
        St.depth = E('WDEPTH2', 24)
        wq(), wo()
    stamp(A)
    wait_stage(A, 2, (5, 6))
    stamp(A)
    for c in range(4):
        w1_chunk(c)
    St.drain()
    stamp(A)
    wait_stage(A, C0 + 3)
    wait_word(A, 7, 9)
    spill(St, ('w1', 4), SR[8:24], w1_slot(4))
    wait_stage(A, 1, base=M_CP)
    spill(St, ('w1', 5), SR[24:40], w1_slot(5))
    spill(St, ('w1', 6), SR[40:56], w1_slot(6))
    stamp(A)
    A('v_lshlrev_b32 v%d, 2, v%d', vCA, vL)
    A('v_add_u32 v%d, %d, v%d', vTT + 2, L_EX, vO)
    wait_stage(A, C0 + 7, sleep=2)
    HELP['hot'] = True
    for gi in range(4):
        wait_lp(A, ('h', gi, 1), 1)
        base = L_SC0 + gi * 4096
        for q in range(7):
            A('ds_read2st64_b32 v[%d:%d], v%d offset0:%d offset1:%d', 72 + 2 * q, 73 + 2 * q, vCA,
              base // 256 + 2 * q, base // 256 + 2 * q + 1)
        A('s_waitcnt lgkmcnt(0)')
        for q in range(2, 14):
            A('v_add_f32 v%d, v%d, v%d', 72 + (q & 1), 72 + (q & 1), 72 + q)
        A('v_add_f32 v%d, v72, v73', vTT)
        ln_finish(A, vTT, vTT + 1, vNM, vRS)
        hilo_m(A, vNM, 88, vT0)
        A('v_mul_f32 v90, v%d, v%d', vTT + 1, vRS)
        A('v_mul_f32 v91, 0x%x, v%d', LOG2E ^ 0x80000000, vRS)
        A('ds_write_b128 v%d, v[88:91] offset:%d', vTT + 2, gi * 1024)
        St.n += 1
        LP[('st', gi)] = (4, St.n)
        set_stage(A, St.n)
    HELP['hot'] = False
    stamp(A)
    St.depth = E('W2DEPTH', 24)
    for n in range(18 if W2R else 28):
        if n in W2GATE:
            wait_stage(A, C0 + W2GATE[n])
        if n == 19:
            stamp(A)
            wait_stage(A, C0 + 14)
            St.depth = E('W2DEPTH3', 32)
        if n >= 23:
            m = W2RE[n]
            wait_stage(A, C0 + 13 + (m >> 1), (0, 1) if (m & 1) == 0 else (2, 3))
        w2_item(n)
    St.drain()
    stamp(A)
    A('%s:', lend)
    A('s_waitcnt lgkmcnt(0)')
    stamp_flush(A)
    A('s_endpgm')


def gen_h1(A):
    stamp(A)
    rest_srds(A)
    wtr_base(A)
    tag_compute(A)
    def extras():
        if WARM:
            for srd_, size in ((SWO, D * D * 2), (SW1, D * F * 2), (SW2, D * F * 2)):
                A('s_mul_i32 s%d, s2, %d', sT, size // 256)
                A('v_lshlrev_b32 v%d, 7, v%d', vT1, vL)
                A('s_mov_b64 exec, 0x%x', (1 << ((size // 256 + 127) // 128)) - 1) if size // 256 < 4096 else None
                if size // 256 >= 4096:
                    A('s_mov_b32 exec_hi, 0x%x', (1 << ((size // 256 + 127) // 128 - 32)) - 1)
                A('buffer_load_dword v64, v%d, s[%d:%d], s%d offen', vT1, srd_, srd_ + 3, sT)
                A('s_mov_b64 exec, -1')
        if E('TOUCH', 1) and not WTO:
            A('s_lshl_b32 s%d, s%d, 18', sT, sXCD)
            A('s_lshl_b32 s%d, s%d, 13', sT2, sI)
            A('s_add_u32 s%d, s%d, s%d', sT, sT, sT2)
            A('v_lshlrev_b32 v%d, 7, v%d', vT1, vL)
            for base in ([WS_OB] if MAP == 0 else []) + ([] if HLATE else [WS_HB]):
                A('s_add_u32 s%d, s%d, %d', sT2, sT, base)
                A('buffer_load_dword v64, v%d, s[%d:%d], s%d offen', vT1, SWS, SWS + 3, sT2)

    if TOUCHAT == 0:
        extras()
    A('s_mov_b32 s%d, 1', sG)
    cs = A.label('CSL')
    A('%s:', cs)
    colsum(A, sG)
    A('s_add_u32 s%d, s%d, 7', sT, sG)
    sig_dyn(A, sT)
    A('s_add_u32 s%d, s%d, 1', sG, sG)
    A('s_cmp_lt_u32 s%d, 3', sG)
    A('s_cbranch_scc1 %s', cs)
    if TOUCHAT == 2:
        extras()
    stamp(A)
    lend = A.label('LEND')
    A('s_cmp_ge_u32 s%d, 28', sI)
    A('s_cbranch_scc1 %s', lend)
    h_stream(A, 9)
    A('%s:', lend)
    A('s_waitcnt lgkmcnt(0)')
    stamp_flush(A)
    A('s_endpgm')


def gen_h23(A):
    vID, vAF, vVF, vAC, vG = 64, 72, 104, 136, 72
    rest_srds(A)
    sTL = sKH
    A('s_sub_u32 s%d, s%d, 5', sTL, sWV)
    skip = A.label('NOST')
    A('s_cmp_eq_u32 s%d, 1', sTL)
    A('s_cbranch_scc1 %s', skip)
    A('s_mul_i32 s%d, s%d, 1568', sT, sH)
    A('s_mov_b32 m0, %d', L_PHI)
    A('buffer_load_dwordx4 v%d, s[%d:%d], s%d offen lds', vO, SP, SP + 3, sT)
    A('buffer_load_dwordx4 v%d, s[%d:%d], s%d offen offset:1024 lds', vO, SP, SP + 3, sT)
    if CODEPF:
        A('s_mul_i32 s%d, s%d, %d', sT, sI, 1280)
        A('v_lshlrev_b32 v%d, 7, v%d', vT1, vL)
        A('v_add_u32 v%d, s%d, v%d', vT1, sT, vT1)
        A('s_mov_b64 exec, 0x3ff')
        A('global_load_dword v72, v%d, s[%d:%d]', vT1, sPC, sPC + 1)
        A('s_mov_b64 exec, -1')
    A('%s:', skip)
    if E('TLB', 0):
        A('v_lshlrev_b32 v%d, 20, v%d', vT1, vL)
        A('s_lshl_b32 s%d, s%d, 7', sT, sI)
        for srd_ in (SWS, SOUT, SWO, SW1, SW2):
            A('buffer_load_dword v73, v%d, s[%d:%d], s%d offen', vT1, srd_, srd_ + 3, sT)
    wtr_base(A)
    sel_frags(A, vID)
    sT16 = sZA
    tag_compute(A, sT16)
    if FAST:
        skip = A.label('NORG')
        A('s_cmp_eq_u32 s%d, 0', sTL)
        A('s_cbranch_scc1 %s', skip)
        A('s_getreg_b32 s%d, hwreg(HW_REG_XCC_ID)', sT2)
        A('s_and_b32 s%d, s%d, 15', sT2, sT2)
        A('s_add_u32 s%d, s%d, s%d', sT2, sT2, sTAG)
        A('v_mov_b32 v%d, s%d', vT0, sT2)
        A('s_lshl_b32 s%d, s%d, 7', sT, sXCD)
        A('s_lshl_b32 s%d, s%d, 2', sT2, sI)
        A('s_add_u32 s%d, s%d, s%d', sT, sT, sT2)
        A('s_add_u32 s%d, s%d, %d', sT, sT, FREG)
        A('s_mov_b64 exec, 1')
        A('buffer_store_dword v%d, v%d, s[%d:%d], s%d offen sc1', vT0, vO, SWS, SWS + 3, sT)
        A('s_mov_b64 exec, -1')
        A('%s:', skip)
    six, both = A.label('SIX'), A.label('BOTH')
    A('s_cmp_eq_u32 s%d, 1', sTL)
    A('s_cbranch_scc1 %s', six)
    colsum(A, sTL)
    A('s_waitcnt vmcnt(0)')
    A('s_branch %s', both)
    A('%s:', six)
    if FAST:
        wait_lp(A, ('x', 6), 2)
        fast_check(A)
        A('v_mov_b32 v%d, s%d', vT0, sFASTF)
        A('ds_write_b32 v%d, v%d offset:%d', vMI, vT0, M_FAST)
    A('%s:', both)
    set_stage(A, 1)
    stamp(A)
    A('s_lshl_b32 s%d, s%d, 11', sT2, sTL)
    A('v_add_u32 v%d, s%d, v%d', vTT, sT2, vO)
    A('v_add_u32 v%d, %d, v%d', vTT + 1, L_KVA, vTT)
    A('v_add_u32 v%d, %d, v%d', vTT + 2, L_KVV, vO)
    A('s_lshl_b32 s%d, s%d, 16', sXB, sH)
    A('s_add_u32 s%d, s%d, s%d', sXB, sXB, sT2)
    A('s_add_u32 s%d, s%d, %d', sXB, sXB, WS_KVP)
    A('s_lshl_b32 s%d, s%d, 12', sB, sTB)
    A('s_add_u32 s%d, s%d, s%d', sB, sB, sXB)
    A('s_lshl_b32 s%d, s%d, 1', sM0, sH)
    A('s_add_u32 s%d, s%d, s%d', sM0, sM0, sTL)
    FSH = E('F1SH', 8)
    A('s_lshl_b32 s%d, s%d, %d', sM0, sM0, 4 + FSH)
    A('s_add_u32 s%d, s%d, %d', sM0, sM0, F1)
    A('s_lshl_b32 s%d, s%d, 2', sFL, sTB)
    A('s_add_u32 s%d, s%d, s%d', sFL, sFL, sM0)
    A('s_lshl_b32 s%d, s%d, %d', sT, sTB, FSH)
    A('s_add_u32 s%d, s%d, s%d', sM0, sM0, sT)
    A('s_add_u32 s%d, s%d, s%d', sPC, SWS, sM0)
    A('s_addc_u32 s%d, s%d, 0', sPC + 1, SWS + 1)
    A('v_lshlrev_b32 v%d, %d, v%d', vXA, FSH, vL)
    A('v_lshlrev_b32 v%d, 2, v%d', vXA + 1, vL)
    vTA = 152
    wait_stage(A, C0)
    for k in range(8):
        A('ds_read_b128 %s, v%d offset:%d', v(vVF + 4 * k, 4), vTT + 1, (k >> 1) * 4096 + (k & 1) * 1024)
    for k in range(8):
        A('s_waitcnt lgkmcnt(%d)', 7 - k)
        mfma(A, vTA + 16 * (k >> 1), vVF + 4 * k, vID + 4 * (k & 1), (k & 1) == 0)
    for w in range(4):
        cvt8(A, vAF + 8 * w, vTA + 16 * w)

    def v_reads():
        for k in range(8):
            A('ds_read_b128 %s, v%d offset:%d', v(vVF + 4 * k, 4), vTT + 2, (k >> 1) * 4096 + (k & 1) * 1024)
        return 8
    wait_stage(A, C0 + 1, body=v_reads)
    stamp(A)
    for k in range(8):
        A('s_waitcnt lgkmcnt(%d)', 7 - k)
        mfma(A, vAC, vAF + 4 * k, vVF + 4 * k, k == 0)
    set_stage(A, 2)
    cvt8(A, vAF, vAC)
    TAGS = E('TAGS', 1)
    if TAGS:
        for q in range(2):
            A('v_and_b32 v%d, 0xffff, v%d', vAF + 4 * q + 3, vAF + 4 * q + 3)
            A('v_or_b32 v%d, s%d, v%d', vAF + 4 * q + 3, sT16, vAF + 4 * q + 3)
    pub_stores(A, [st4(vAF + 4 * q, sB, q * 1024) for q in range(2)], MAP == 3)
    if not TAGS:
        A('s_waitcnt vmcnt(0)')
    A('s_mov_b64 exec, 0xffff')
    two_ways(A, lambda B, bits: B('buffer_store_dword v%d, v%d, s[%d:%d], s%d offen%s', vTAG, vXA, SWS, SWS + 3, sFL,
                                  bits), MAP == 3)
    A('s_mov_b64 exec, -1')
    stamp(A)
    sRDY, sPND, sRET = sHI, sHI + 1, sPADL
    base = 68 if STAMPS else 72
    pol = A.label('POLL')
    B = sub(A)
    lo, out = B.label('P'), B.label('PD')
    B('%s:', pol)
    B('%s:', lo)
    if E('PSLEEP', 0):
        B('s_sleep %d', E('PSLEEP', 0))
    if E('SPOLL', 1) and MAP == 0:
        B('s_load_dwordx16 s[%d:%d], s[%d:%d], 0 glc', base, base + 15, sPC, sPC + 1)
        B('s_mov_b32 s%d, 0', sRDY)
        B('s_waitcnt lgkmcnt(0)')
        for p_ in range(15, -1, -1):
            B('s_cmp_eq_u32 s%d, s%d', base + p_, sTAG)
            B('s_addc_u32 s%d, s%d, s%d', sRDY, sRDY, sRDY)
    else:
        B('s_mov_b64 exec, 0xffff')
        B('buffer_load_dword v%d, v%d, s[%d:%d], s%d offen sc1', vT0, vXA + 1, SWS, SWS + 3, sM0)
        B('s_waitcnt vmcnt(0)')
        B('v_cmp_eq_u32 vcc, s%d, v%d', sTAG, vT0)
        B('s_mov_b64 exec, -1')
        B('s_mov_b32 s%d, vcc_lo', sRDY)
    B('s_sub_u32 s%d, s%d, 1', sSPIN, sSPIN)
    B('s_cselect_b32 s%d, -1, s%d', sRDY, sRDY)
    B('s_and_b32 s%d, s%d, s%d', sRDY, sRDY, sPND)
    B('s_cbranch_scc0 %s', lo)
    B('s_setpc_b64 s[%d:%d]', sRET, sRET + 1)
    over = A.label('OV')
    A('s_branch %s', over)
    A.lines += B.lines
    A('%s:', over)
    A('s_mov_b32 s%d, 0', sRDY)
    A('s_mov_b32 s%d, 0xffff', sPND)
    vCK = vXA + 2
    A('v_mov_b32 v%d, 0', vCK)
    A('s_nop 1')
    vG = [72 + 4 * k for k in range(16)] + [152 + 4 * k for k in range(16)]
    GD = E('GLAG', 8)

    def gmm(k, issued):
        for q in range(2):
            A('s_waitcnt vmcnt(%d)', 2 * issued - (2 * k + q) - 1)
            mfma(A, vAC, vID + 4 * q, vG[2 * k + q], k == 0 and q == 0)
            if TAGS:
                A('v_xor_b32 v%d, s%d, v%d', vCK + 1, sT16, vG[2 * k + q] + 3)
                A('v_or_b32 v%d, v%d, v%d', vCK, vCK, vCK + 1)
    for k in range(16):
        A('s_getpc_b64 s[%d:%d]', sRET, sRET + 1)
        A('s_cmp_eq_u32 s%d, 0', sRDY)
        A('s_cbranch_scc1 %s', pol)
        A('s_ff1_i32_b32 s%d, s%d', sT, sRDY)
        A('s_bitset0_b32 s%d, s%d', sRDY, sT)
        A('s_bitset0_b32 s%d, s%d', sPND, sT)
        A('s_lshl_b32 s%d, s%d, 12', sT, sT)
        A('s_add_u32 s%d, s%d, s%d', sT, sT, sXB)
        for q in range(2):
            A('buffer_load_dwordx4 %s, v%d, s[%d:%d], s%d offen offset:%d sc1', v(vG[2 * k + q], 4), vO, SWS, SWS + 3,
              sT, q * 1024)
        if k == E('GST', 15):
            stamp(A)
        if k >= GD:
            gmm(k - GD, k + 1)
    for k in range(16 - GD, 16):
        gmm(k, 16)
    if TAGS:
        ok = A.label('TOK')
        A('v_cmp_lt_u32 vcc, 0xffff, v%d', vCK)
        spin_guard(A, ok)
        A('s_nop 15')
        A('s_cbranch_vccnz %s', over)
        A('%s:', ok)
    A('v_add_u32 v%d, %d, v%d', vTT, L_EX, vTT)
    cvt8(A, 72, vAC)
    for q in range(2):
        A('ds_write_b128 v%d, %s offset:%d', vTT, v(72 + 4 * q, 4), q * 1024)
    set_stage(A, 3)
    stamp(A)
    if W2R:
        lend = A.label('LEND')
        A('s_cmp_ge_u32 s%d, 28', sI)
        A('s_cbranch_scc1 %s', lend)
        St = Stream(A, 5, E('W2RDEPTH', 12), 3)
        off128(A, 12)
        sBK, sBS = 8, 10
        blk_init(A, sBK, sBS, 's%d' % sTL)
        for _ in range(4):
            blk_next(A, sBK, sBS)
        A('s_lshl_b32 s%d, s%d, 7', sB, sNB)
        A('s_mul_i32 s%d, s%d, %d', sT, sTL, 896 * 896)
        A('s_add_u32 s%d, s%d, s%d', sB, sB, sT)
        A('s_lshl_b32 s%d, s%d, 3', sT, sTL)
        A('v_add_u32 v%d, s%d, v%d', vCA, sT, vMI)
        wait_stage(A, C0 + 7, sleep=2)
        wait_lp(A, ('h', E('W2RG', 1), E('W2RQ', 0)), 1)
        stamp(A)
        for j, c in enumerate(range(9, 14)):
            A('s_mul_i32 s%d, s%d, %d', sT, sBK, 128 * 896)
            A('s_add_u32 s%d, s%d, s%d', sT, sT, sB)
            if c & 1:
                A('s_add_u32 s%d, s%d, %d', sT, sT, 64 * 896)
                blk_next(A, sBK, sBS)
            for u in range(2):
                r0 = 40 + 32 * j + 16 * u
                reg4(St, [r0, r0 + 4, r0 + 8, r0 + 12], [12, 13, 14, 15], SW2, 32 * 896 if u < 1 else None)
        St.wait_to(0)
        stamp(A)
        for j, c in enumerate(range(9, 14)):
            m = max(W2RE.get(2 * c, 0), W2RE[2 * c + 1])
            if j == 0 or (m >> 1) > 1:
                HELP['hot'] = True
                A('s_setprio 2')
                wait_stage(A, C0 + 13 + max(1, m >> 1), sleep=2)
                HELP['hot'] = False
            A('s_setprio %d', E('SPRIO', 0))
            A('s_cmp_eq_u32 s%d, 0', sTL)
            A('s_cselect_b32 s%d, %d, %d', sT, w2_slot(2 * c) >> 12, w2_slot(2 * c + 1) >> 12)
            A('s_lshl_b32 s%d, s%d, 12', sT, sT)
            A('v_add_u32 v%d, s%d, v%d', vT1, sT, vO)
            for k in range(8):
                r = 40 + 32 * j + 4 * k
                if E('SPW', 128) == 128:
                    A('ds_write_b128 v%d, %s offset:%d', vT1, v(r, 4), k * 1024)
                else:
                    A('ds_write_b64 v%d, %s offset:%d', vT1, v(r, 2), k * 1024)
                    A('ds_write_b64 v%d, %s offset:%d', vT1, v(r + 2, 2), k * 1024 + 8)
            set_stage(A, 4 + j)
            LP[('w2', 2 * c + 1)] = (5, 4 + j)
        A('%s:', lend)
    A('s_waitcnt lgkmcnt(0)')
    stamp_flush(A)
    A('s_endpgm')


def refresh_routines(A):
    for w in (7, 4, 5):
        A('REFRESH_%d:', w)
        if w == 5:
            A('ds_read_b32 v%d, v%d', vPW, vCA)
        else:
            A('ds_read_b32 v%d, v%d offset:%d', vPW, vMI, M_PW + 4 * w)
        A('s_waitcnt lgkmcnt(0)')
        A('v_readfirstlane_b32 s%d, v%d', CACHE[w], vPW)
        A('s_sub_u32 s%d, s%d, 1', sSPIN, sSPIN)
        A('s_cselect_b32 s%d, -1, s%d', CACHE[w], CACHE[w])
        A('s_setpc_b64 s[%d:%d]', sPC, sPC + 1)


def gen_compute(A):
    vPH, vID, vWF, vAC, vPK = 40, 48, 56, 88, 120
    vMF, vCF = 136, 140
    vE = vWF
    vAC2 = vAC + 16
    vX = vXR
    A('s_setprio %d', E('CPRIO', 1))
    rest_srds(A)
    A('s_lshl_b32 s%d, s%d, 12', sM0, sWV)
    A('v_and_b32 v%d, 31, v%d', vT0, vL)
    A('v_lshlrev_b32 v%d, 7, v%d', vTT, vT0)
    A('v_add_u32 v%d, s%d, v%d', vTT, sM0, vTT)
    A('v_bfe_u32 v%d, v%d, 1, 3', vT0, vL)
    A('v_lshrrev_b32 v%d, 5, v%d', vT1, vL)
    A('v_xor_b32 v%d, v%d, v%d', vT0, vT0, vT1)
    for q in range(4):
        A('v_xor_b32 v%d, %d, v%d', vXA + q, 2 * q, vT0)
        A('v_lshl_add_u32 v%d, v%d, 4, v%d', vXA + q, vXA + q, vTT)
    wtr_base(A)
    for r in (vSM, vSM + 1, vSQ, vSQ + 1, vMF + 2, vMF + 3, vCF + 2, vCF + 3):
        A('v_mov_b32 v%d, 0', r)
    A('s_mov_b32 s%d, 0', sHI)
    A('s_mov_b32 s%d, -1', sHI + 1)
    A('s_bitcmp1_b32 s%d, 0', sH)
    A('s_cselect_b32 s%d, 0xf, 0xf0000000', sPADL)
    A('s_mov_b32 s%d, s%d', sPADL + 1, sPADL)
    A('s_cselect_b32 s%d, -1, 0', sZA)
    A('s_mov_b32 s%d, 0', sZA + 1)
    A('s_mov_b32 s%d, 0', sZB)
    A('s_cselect_b32 s%d, 0, -1', sZB + 1)
    A('s_cselect_b64 s[%d:%d], -1, 0', sODD, sODD + 1)
    vPA = vRA
    A('v_bfe_u32 v%d, v%d, 2, 2', vT0, vL)
    A('v_lshrrev_b32 v%d, 5, v%d', vT1, vL)
    A('v_lshl_add_u32 v%d, v%d, 2, v%d', vT0, vT1, vT0)
    A('v_mul_u32_u24 v%d, 56, v%d', vT0, vT0)
    A('v_and_b32 v%d, 3, v%d', vT1, vL)
    A('v_bfe_u32 v%d, v%d, 4, 1', vTT, vL)
    A('v_lshl_add_u32 v%d, v%d, 2, v%d', vT1, vTT, vT1)
    A('v_min_u32 v%d, 6, v%d', vT1, vT1)
    A('v_lshl_add_u32 v%d, v%d, 3, v%d', vT0, vT1, vT0)
    A('s_and_b32 s%d, s%d, 1', sT, sH)
    A('s_mul_i32 s%d, s%d, 224', sT, sT)
    A('s_sub_u32 s%d, %d, s%d', sT, L_PHI, sT)
    A('v_add_u32 v%d, s%d, v%d', vPA, sT, vT0)
    tag_compute(A)

    def mm1(B, acc, i, q, swap):
        buf = vWF + 16 * (i & 1)
        xf, wf = vX + (4 * i + q) * 4, buf + 4 * q
        if swap:
            mfma(B, acc, xf, wf, i == 0 and q == 0)
        else:
            mfma(B, acc, wf, xf, i == 0 and q == 0)

    def rw2(Q, pi, i, q):
        buf = vWF + 16 * (i & 1)
        for z in range(2):
            Q.op(('w', i, q), 'ds_read_b64_tr_b16 v[%d:%d], v%d offset:%d', buf + 4 * q + 2 * z, buf + 4 * q + 2 * z + 1,
                 vWA + pi, i * 4096 + q * 1024 + z * 256)

    vXH = vXD
    for q in range(4):
        A('v_add_u32 v%d, 0x10000, v%d', vXH + q, vXA + q)
    Q = LdsQ(A)
    for i in range(7):
        if i:
            stamp(A, 'k')
        HELP['inline'] = i < E('KINL', 2)
        wait_lp(A, ('x', i))
        HELP['inline'] = False
        stamp(A, 'k')
        for q in range(4):
            Q.op(('x', i), 'ds_read_b128 %s, v%d offset:%d', v(vX + (4 * i + q) * 4, 4), (vXA if i < 4 else vXH) + q,
                 (i & 3) * 16384)
        if i in (1, 3):
            Q.stage((i + 1) // 2)
        wait_lp(A, ('W', 0, i))
        for q in range(4):
            if i > 0:
                Q.wait(('w', i - 1, q))
                mm1(A, vAC, i - 1, q, False)
            rw2(Q, 0, i, q)
        if i < 6:
            Q.op('pk2', 'ds_read_b128 v[%d:%d], v%d offset:%d', vTT, vTT + 3, vMI, M_PW + 16)
        Q.wait(('x', i))
        for r in range(16):
            x = vX + 16 * i + r
            A('v_dot2c_f32_bf16 v%d, s%d, v%d', vSM + (r & 1), sONES, x)
            A('v_dot2c_f32_bf16 v%d, v%d, v%d', vSQ + (r & 1), x, x)
        if i < 6:
            Q.wait('pk2')
            A('v_readfirstlane_b32 s%d, v%d', sPROG, vTT)
            A('v_readfirstlane_b32 s%d, v%d', sPROG1, vTT + 3)
    Q.stage(3)
    B = sub(A)
    B('v_add_f32 v%d, v%d, v%d', vSM, vSM, vSM + 1)
    B('v_add_f32 v%d, v%d, v%d', vSQ, vSQ, vSQ + 1)
    B('v_permlane32_swap_b32 v%d, v%d', vSM, vSQ)
    B('v_add_f32 v%d, v%d, v%d', vT0, vSM, vSQ)
    ln_finish(B, vT0, vT1, vNM, vRS)
    hilo_m(B, vNM, vMF, vT0)
    B('v_mul_f32 v%d, 0x%x, v%d', vSC, LOG2E, vRS)
    M = sub(A)
    Q.A = M
    for q in range(4):
        Q.wait(('w', 6, q))
        mm1(M, vAC, 6, q, False)
    A.lines += merge(M.lines, [[l] for l in B.lines], 0, 4)

    def cf_phi_reads():
        A('ds_read_b64 v[%d:%d], v%d', vCF, vCF + 1, vCA)
        for sidx in range(2):
            for z in range(2):
                A('ds_read_b64_tr_b16 v[%d:%d], v%d offset:%d', vPH + 4 * sidx + 2 * z, vPH + 4 * sidx + 2 * z + 1,
                  vPA, (16 * sidx + 8 * z) * 56)
        return 5
    stamp(A, 'v')
    wait_word(A, 5, 1, body=cf_phi_reads)
    stamp(A)
    stamp(A, 'v')
    A('s_waitcnt lgkmcnt(4)')

    def project(mid=None):
        mfma(A, vAC, vCF, vMF)
        if mid:
            mid()
        cvt8(A, vPK, vAC)
        mfma(A, vAC, vPH, vPK, True)
        mfma(A, vAC, vPH + 4, vPK + 4)

    def mid_k():
        A('v_and_b32 v%d, 31, v%d', vT0, vL)
        A('s_lshl_b32 s%d, s%d, 7', sT, sWV)
        A('s_add_u32 s%d, s%d, %d', sT, sT, L_RSTD)
        A('v_lshl_add_u32 v%d, v%d, 2, s%d', vT0, vT0, sT)
        A('s_waitcnt lgkmcnt(0)')
        A('ds_write_b32 v%d, v%d', vT0, vRS)
        A('v_lshrrev_b32 v%d, 5, v%d', vRA, vL)
        A('v_lshl_add_u32 v%d, v%d, 4, s%d', vRA, vRA, sT)
        for r in (0, 1):
            A('v_cndmask_b32 v%d, v%d, 0, s[%d:%d]', vPH + r, vPH + r, sZA, sZA + 1)
            A('v_cndmask_b32 v%d, v%d, 0, s[%d:%d]', vPH + 6 + r, vPH + 6 + r, sZB, sZB + 1)

    def gemm_head(B, pi):
        Q = LdsQ(B)
        wait_lp(B, ('W', pi, 0))
        for q in range(4):
            rw2(Q, pi, 0, q)
        return Q

    def gemm_part(B, acc, pi, swap, last_stage=None, Q=None):
        if Q is None:
            Q = gemm_head(B, pi)
        for i in range(7):
            if i == 6 and last_stage:
                Q.stage(last_stage)
            if pi == 1 and i in (0, 2, 4, 6):
                stamp(B, 'v')
            for q in range(4):
                Q.wait(('w', i, q))
                if q == 0:
                    Q.take(4)
                mm1(B, acc, i, q, swap)
                if i < 6:
                    if q == 0:
                        wait_lp(B, ('W', pi, i + 1))
                        if i < 5:
                            Q.peek(4)
                    rw2(Q, pi, i + 1, q)

    vOW = vXD
    A('v_add_u32 v%d, s%d, v%d', vOW, sM0, vO)
    A('v_add_u32 v%d, %d, v%d', vOW, L_KVA, vOW)
    project(mid_k)
    stamp(A, 'v')
    B = sub(A)
    softmax_pm(B, vAC, vSC, vPK, vTT)
    A.lines += B.lines[:-30]
    Q = gemm_head(A, 1)
    A.lines += B.lines[-30:]
    for q, src in enumerate((vAC, vAC + 4, vPK, vPK + 4)):
        Q.op('pw', 'ds_write_b128 v%d, %s offset:%d', vOW, v(src, 4), q * 1024)
    Q.stage(C0)
    for q in range(4):
        Q.op('rs', 'ds_read_b128 %s, v%d offset:%d', v(vAC + 4 * q, 4), vRA, q * 32)
    stamp(A, 'v')
    gemm_part(A, vAC2, 1, True, None, Q)
    stamp(A, 'v')

    def cfv_reads():
        A('ds_read_b64 v[%d:%d], v%d offset:%d', vCF, vCF + 1, vCA, 512)
        return 1
    wait_word(A, 7, 8, body=cfv_reads)
    stamp(A, 'v')
    A('s_waitcnt lgkmcnt(0)')
    mfma(A, vAC2, vMF, vCF)
    A('v_mov_b32 v%d, 0x%x', vT1, ONES)
    for r in range(0, 16, 2):
        A('v_pk_mul_f32 v[%d:%d], v[%d:%d], v[%d:%d]', vAC2 + r, vAC2 + r + 1, vAC2 + r, vAC2 + r + 1, vAC + r,
          vAC + r + 1)
    cvt8(A, vPK, vAC2)
    for r in range(8):
        A('v_cndmask_b32 v%d, v%d, v%d, s[%d:%d]', vPK + r, vPK + r, vT1, sPADL, sPADL + 1)
    for q in range(2):
        A('ds_write_b128 v%d, %s offset:%d', vOW, v(vPK + 4 * q, 4), L_KVV - L_KVA + q * 1024)
    set_stage(A, C0 + 1)
    stamp(A)
    stamp(A, 'v')
    gemm_part(A, vAC, 2, False, C0 + 3)
    vHP, vRX, vRO = 120, 48, vSM + 1

    def unpack_hp(src=120):
        for r in range(8):
            A('v_lshlrev_b32 v%d, 16, v%d', vAC + 2 * r, src + r)
            A('v_and_b32 v%d, 0xffff0000, v%d', vAC + 2 * r + 1, src + r)
    A('s_and_b32 s%d, s%d, 1', sG, sWV)
    A('s_lshr_b32 s%d, s%d, 1', sKH, sWV)
    A('s_lshl_b32 s%d, s%d, 1', sT, sTQ)
    A('s_add_u32 s%d, s%d, s%d', sG, sG, sT)
    A('v_and_b32 v%d, 31, v%d', vRO, vL)
    A('v_mul_u32_u24 v%d, 896, v%d', vRO, vRO)
    A('v_lshrrev_b32 v%d, 5, v%d', vT1, vL)
    A('v_lshl_add_u32 v%d, v%d, 4, v%d', vRO, vT1, vRO)
    A('s_mul_i32 s%d, s%d, %d', sT, sG, 32 * 896)
    A('s_lshl_b32 s%d, s%d, 7', sT2, sNB)
    A('s_add_u32 s%d, s%d, s%d', sT, sT, sT2)
    A('s_lshl_b32 s%d, s%d, 6', sT2, sKH)
    A('s_add_u32 s%d, s%d, s%d', sT, sT, sT2)
    A('v_add_u32 v%d, s%d, v%d', vRO, sT, vRO)
    for q in range(2):
        A('buffer_load_dwordx4 %s, v%d, s[%d:%d], 0 offen offset:%d', v(vRX + 4 * q, 4), vRO, SX, SX + 3, q * 32)

    def cfq_reads():
        A('ds_read_b64 v[%d:%d], v%d offset:%d', vCF, vCF + 1, vCA, 2 * 512)
        return 1
    wait_word(A, 7, 9, body=cfq_reads)
    A('s_waitcnt lgkmcnt(0)')
    project()
    softmax_pm(A, vAC, vSC, vPK, vTT)
    vQF = [vAC, vAC + 4, vPK, vPK + 4]
    stamp(A)
    vW1A = vXA
    A('v_bfe_u32 v%d, v%d, 2, 2', vT0, vL)
    A('v_lshrrev_b32 v%d, 5, v%d', vT1, vL)
    A('v_lshl_add_u32 v%d, v%d, 2, v%d', vT1, vT1, vT0)
    A('v_lshlrev_b32 v%d, 8, v%d', vW1A, vT1)
    A('v_lshlrev_b32 v%d, 7, v%d', vWA, vT1)
    A('v_xor_b32 v%d, s%d, v%d', vT0, sWV, vT0)
    A('v_lshl_add_u32 v%d, v%d, 6, v%d', vW1A, vT0, vW1A)
    A('v_bfe_u32 v%d, v%d, 4, 1', vT1, vL)
    A('v_lshlrev_b32 v%d, 5, v%d', vT1, vT1)
    A('v_and_b32 v%d, 3, v%d', vT0, vL)
    A('v_lshl_add_u32 v%d, v%d, 3, v%d', vT1, vT0, vT1)
    A('v_add_u32 v%d, v%d, v%d', vW1A, vW1A, vT1)
    A('v_add_u32 v%d, 0x8000, v%d', vW1A + 1, vW1A)
    A('v_add_u32 v%d, v%d, v%d', vWA, vWA, vT1)
    A('v_bfe_u32 v%d, v%d, 3, 1', vT1, vL)
    A('v_lshl_add_u32 v%d, v%d, 6, v%d', vWA, vT1, vWA)

    def w1_copy(c):
        wait_lp(A, ('w1', c))
        for q in range(4):
            for z in range(2):
                off = w1_slot(c) + (16 * q + 8 * z) * 256
                base = vW1A
                if off >= 0x8000:
                    off -= 0x8000
                    base += 1
                r = vXR + (4 * c + q) * 4 + 2 * z
                A('ds_read_b64_tr_b16 v[%d:%d], v%d offset:%d', r, r + 1, base, off)

    sCPD = sXB
    A('s_mov_b32 s%d, 0', sCPD)

    def try_copy(block):
        skip = A.label('NC')
        A('s_cmp_lg_u32 s%d, 0', sCPD)
        A('s_cbranch_scc1 %s', skip)
        if not block:
            if block is not None:
                A('ds_read_b32 v%d, v%d offset:%d', vPW, vMI, M_PW + 16)
                A('s_waitcnt lgkmcnt(0)')
            A('v_readfirstlane_b32 s%d, v%d', sPROG, vPW)
            A('s_cmp_lt_u32 s%d, %d', sPROG, LP[('w1', 1)][1])
            A('s_cbranch_scc1 %s', skip)
        w1_copy(0)
        w1_copy(1)
        A('s_mov_b32 s%d, 1', sCPD)
        A('v_mov_b32 v%d, 1', vT0)
        A('ds_write_b32 v%d, v%d offset:%d', vMY, vT0, M_CP)
        A('%s:', skip)
    A('s_lshl_b32 s%d, s%d, 2', sFL, sTB)
    A('s_add_u32 s%d, s%d, s%d', sFL, sFL, sWV)
    A('s_lshl_b32 s%d, s%d, 4', sFL, sFL)
    A('s_add_u32 s%d, s%d, s%d', sFL, sFL, sH)
    A('s_lshl_b32 s%d, s%d, 11', sB, sFL)
    A('s_add_u32 s%d, s%d, %d', sB, sB, WS_OB)
    if MAP == 0:
        A('s_lshl_b32 s%d, s%d, 2', sFL, sFL)
        A('s_add_u32 s%d, s%d, %d', sFL, sFL, F2)
    else:
        A('s_lshr_b32 s%d, s%d, 3', sFL, sFL)
        A('s_lshl_b32 s%d, s%d, 10', sFL, sFL)
        A('s_and_b32 s%d, s%d, 7', sT, sH)
        A('s_lshl_b32 s%d, s%d, 2', sT, sT)
        A('s_add_u32 s%d, s%d, s%d', sFL, sFL, sT)
        A('s_add_u32 s%d, s%d, %d', sFL, sFL, F2X)
    vEX = vXD + 1
    A('v_add_u32 v%d, %d, v%d', vEX, L_EX, vO)

    def ex_reads():
        for q in range(4):
            A('ds_read_b128 %s, v%d offset:%d', v(vWF + 4 * q, 4), vEX, q * 1024)
        return 4
    lo, done = A.label('W'), A.label('WD')
    A('%s:', lo)
    A('ds_read_b128 v[%d:%d], v%d offset:%d', vPW, vPW + 3, vMI, M_PW + 16)
    A('ds_read_b32 v%d, v%d offset:%d', vPK_, vMI, M_FAST)
    ex_reads()
    A('s_waitcnt lgkmcnt(4)')
    A('v_readfirstlane_b32 s%d, v%d', sFASTF, vPK_)
    A('v_min_u32 v%d, v%d, v%d', vPW + 1, vPW + 1, vPW + 2)
    A('v_readfirstlane_b32 s%d, v%d', sT, vPW + 1)
    spin_guard(A, done)
    A('s_cmp_ge_u32 s%d, 3', sT)
    A('s_cbranch_scc1 %s', done)
    try_copy(None)
    A('s_branch %s', lo)
    A('%s:', done)
    stamp(A)
    for q in range(4):
        A('s_waitcnt lgkmcnt(%d)', 3 - q)
        mfma(A, vAC2, vWF + 4 * q, vQF[q], q == 0)
    A('v_cndmask_b32 v%d, v%d, v%d, s[%d:%d]', vT0, vAC2 + 12, vAC2, sODD, sODD + 1)
    A('v_mov_b32 v%d, v%d', vT1, vT0)
    A('v_permlane32_swap_b32 v%d, v%d', vT0, vT1)
    A('v_cndmask_b32 v%d, v%d, v%d, s[%d:%d]', vTT, vT1, vT0, sODD, sODD + 1)
    A('v_add_f32 v%d, 0x%x, v%d', vTT, 0x358637bd, vTT)
    A('v_rcp_f32 v%d, v%d', vTT, vTT)
    for r in range(0, 16, 2):
        A('v_pk_mul_f32 v[%d:%d], v[%d:%d], v[%d:%d] op_sel_hi:[1,0]', vAC2 + r, vAC2 + r + 1, vAC2 + r, vAC2 + r + 1,
          vTT, vTT + 1)
    cvt8(A, vPK, vAC2)
    for r in (0, 1):
        A('v_cndmask_b32 v%d, v%d, 0, s[%d:%d]', vPK + r, vPK + r, sZA, sZA + 1)
        A('v_cndmask_b32 v%d, v%d, 0, s[%d:%d]', vPK + 6 + r, vPK + 6 + r, sZB, sZB + 1)
    pub_stores(A, [st4(vPK + 4 * q, sB, q * 1024) for q in range(2)], MAP == 0 and not WTO)
    A('s_waitcnt vmcnt(2)')
    for q in range(2):
        A('v_permlane32_swap_b32 v%d, v%d', vRX + 4 * q, vRX + 4 * q + 2)
        A('v_permlane32_swap_b32 v%d, v%d', vRX + 4 * q + 1, vRX + 4 * q + 3)
    unpack_hp(vRX)
    A('s_lshl_b32 s%d, s%d, 6', sT, sKH)
    A('v_xor_b32 v%d, s%d, v%d', vWA, sT, vWA)
    A('v_xor_b32 v%d, 64, v%d', vWA + 1, vWA)
    A('s_mul_i32 s%d, s%d, %d', sT, sKH, 224 * 128)
    A('s_add_u32 s%d, s%d, %d', sT, sT, L_A)
    A('v_add_u32 v%d, s%d, v%d', vWA + 2, sT, vWA)
    A('v_add_u32 v%d, s%d, v%d', vWA + 3, sT, vWA + 1)
    vSW, vSR, vPP = vXA + 2, vXA + 3, vSM
    A('s_and_b32 s%d, s%d, 1', sC, sWV)
    A('s_lshl_b32 s%d, s%d, 12', sC, sC)
    A('v_add_u32 v%d, s%d, v%d', vSW, sC, vO)
    A('s_cmp_eq_u32 s%d, 0', sKH)
    A('s_cselect_b32 s%d, %d, %d', sT, L_SC0 >> 12, L_SC1 >> 12)
    A('s_cselect_b32 s%d, %d, %d', sT2, L_SC1 >> 12, L_SC0 >> 12)
    A('s_lshl_b32 s%d, s%d, 12', sT, sT)
    A('s_lshl_b32 s%d, s%d, 12', sT2, sT2)
    A('v_add_u32 v%d, s%d, v%d', vSR, sT2, vSW)
    A('v_add_u32 v%d, s%d, v%d', vSW, sT, vSW)
    A('v_xor_b32 v%d, 8, v%d', vPP, vMY)
    A('s_lshl_b32 s%d, s%d, 15', sB, sG)
    A('s_lshl_b32 s%d, s%d, 14', sT, sKH)
    A('s_add_u32 s%d, s%d, s%d', sB, sB, sT)
    A('s_add_u32 s%d, s%d, %d', sB, sB, WS_OB)
    if MAP == 0:
        A('s_lshl_b32 s%d, s%d, 6', sC, sG)
        A('s_lshl_b32 s%d, s%d, 5', sT, sKH)
        A('s_add_u32 s%d, s%d, s%d', sC, sC, sT)
        A('s_add_u32 s%d, s%d, %d', sC, sC, F2)
        pub_flag(A, sFL, True)
    else:
        A('s_lshl_b32 s%d, s%d, 11', sC, sG)
        A('s_lshl_b32 s%d, s%d, 10', sT, sKH)
        A('s_add_u32 s%d, s%d, s%d', sC, sC, sT)
        A('s_lshl_b32 s%d, s%d, 7', sT, sNB)
        A('s_add_u32 s%d, s%d, s%d', sC, sC, sT)
        A('s_add_u32 s%d, s%d, %d', sC, sC, F2X)
        A('v_lshlrev_b32 v%d, 7, v%d', vT1, vL)
        if not E('NODRAIN2', 0):
            A('s_waitcnt vmcnt(0)')
        A('s_mov_b64 exec, 0x7f')
        A('buffer_store_dword v%d, v%d, s[%d:%d], s%d offen sc1', vTAG, vT1, SWS, SWS + 3, sFL)
        A('s_mov_b64 exec, -1')
    set_stage(A, C0 + 5)
    stamp(A)
    fin = A.label('FIN')
    A('s_cmp_ge_u32 s%d, 28', sI)
    A('s_cbranch_scc1 %s', fin)

    vB2 = [40 + 4 * k for k in range(8)] + [224 + 4 * k for k in range(8)]
    vWF2 = 72
    try_copy(False)
    wait_lp(A, 'wo')

    def wo_row(k):
        hh = k // 2
        return 28 * hh - 4 * (hh & 1) + 16 * (k & 1)

    def read_wo(k):
        buf = vWF2 + 8 * (k & 1)
        for nt in range(2):
            for z in range(2):
                A('ds_read_b64_tr_b16 v[%d:%d], v%d offset:%d', buf + 4 * nt + 2 * z, buf + 4 * nt + 2 * z + 1,
                  vWA + 2 + nt, (wo_row(k) + 8 * z) * 128)

    read_wo(0)
    if MAP == 3 and E('SPOLL', 1):
        poll_scalar(A, sC, 8)
    else:
        poll_global(A, sC, 8)
    stamp(A)
    stamp(A, 'p2')
    sOB = sM0
    A('s_mov_b32 s%d, s%d', sOB, sB)

    def ld_o(k):
        A('buffer_load_dwordx4 %s, v%d, s[%d:%d], s%d offen offset:%d sc1', v(vB2[k], 4), vO, SWS, SWS + 3, sOB,
          (k & 3) * 1024)
        if (k & 3) == 3:
            A('s_add_u32 s%d, s%d, 4096', sOB, sOB)
    P2I = E('P2INFL', 8)
    for k in range(P2I):
        ld_o(k)
    A('s_lshl_b32 s%d, s%d, 1', sT2, sNB)
    A('s_add_u32 s%d, s%d, s%d', sT2, sT2, sKH)
    A('s_lshl_b32 s%d, s%d, 15', sB, sG)
    A('s_add_u32 s%d, s%d, %d', sB, sB, WS_HB)
    A('s_lshl_b32 s%d, s%d, 8', sC, sT2)
    A('s_add_u32 s%d, s%d, s%d', sC, sC, sB)
    A('s_lshl_b32 s%d, s%d, 11', sT, sT2)
    A('s_add_u32 s%d, s%d, s%d', sB, sB, sT)
    A('s_add_u32 s%d, s%d, 4096', sB, sB)
    A('s_lshl_b32 s%d, s%d, 2', sFL, sT2)
    A('s_lshl_b32 s%d, s%d, 6', sT, sG)
    A('s_add_u32 s%d, s%d, s%d', sFL, sFL, sT)
    A('s_add_u32 s%d, s%d, %d', sFL, sFL, F3)
    for k in range(16):
        if k < 15:
            read_wo(k + 1)
        A('s_waitcnt vmcnt(%d) lgkmcnt(%d)', min(15, P2I + k - 1) - k, 4 if k < 15 else 0)
        if k % 4 == 0:
            stamp(A, 'p2')
        buf = vWF2 + 8 * (k & 1)
        mfma(A, vAC + 16, buf + 4, vB2[k], k == 0)
        if P2I + k < 16:
            ld_o(P2I + k)
        if P2I + k == E('LDSIG', 13):
            A('v_mov_b32 v%d, 1', vT0)
            A('ds_write_b32 v%d, v%d offset:%d', vMY, vT0, M_LD)
        mfma(A, vAC, buf, vB2[k])
    stamp(A)

    def exchange(st):
        for q in range(4):
            A('ds_write_b128 v%d, %s offset:%d', vSW, v(vAC + 16 + 4 * q, 4), q * 1024)
        set_stage(A, st)
        lo, done = A.label('W'), A.label('WD')
        A('%s:', lo)
        A('ds_read_b32 v%d, v%d', vPW, vPP)
        for q in range(4):
            A('ds_read_b128 %s, v%d offset:%d', v(vWF2 + 4 * q, 4), vSR, q * 1024)
        A('s_waitcnt lgkmcnt(4)')
        A('v_readfirstlane_b32 s%d, v%d', sT, vPW)
        spin_guard(A, done)
        A('s_cmp_ge_u32 s%d, %d', sT, st)
        A('s_cbranch_scc0 %s', lo)
        A('%s:', done)
        for q in range(4):
            A('s_waitcnt lgkmcnt(%d)', 3 - q)
            for r in (0, 2):
                a0 = vAC + 4 * q + r
                A('v_pk_add_f32 v[%d:%d], v[%d:%d], v[%d:%d]', a0, a0 + 1, a0, a0 + 1, vWF2 + 4 * q + r,
                  vWF2 + 4 * q + r + 1)

    stamp(A, 'p2')
    exchange(C0 + 6)
    stamp(A, 'p2')
    set_stage(A, C0 + 7)
    cvt8(A, vHP, vAC)
    pub_stores(A, [st4(vHP + 4 * q, sB, q * 1024) for q in range(2)], not WTO)
    A('v_mov_b32 v%d, 0', vTT)
    A('v_mov_b32 v%d, 0', vTT + 1)
    for r in range(8):
        A('v_dot2c_f32_bf16 v%d, s%d, v%d', vTT, sONES, vHP + r)
        A('v_dot2c_f32_bf16 v%d, v%d, v%d', vTT + 1, vHP + r, vHP + r)
    A('v_lshlrev_b32 v%d, 2, v%d', vTT + 2, vL)
    A('v_permlane32_swap_b32 v%d, v%d', vTT, vTT + 1)
    A('v_add_f32 v%d, v%d, v%d', vTT, vTT, vTT + 1)
    pub_stores(A, ['buffer_store_dword v%d, v%d, s[%d:%d], s%d offen%%s' % (vTT, vTT + 2, SWS, SWS + 3, sC)], not WTO)
    stamp(A, 'p2')
    try_copy(False)
    stamp(A, 'p2')
    pub_flag(A, sFL, True)
    stamp(A, 'p2')
    try_copy(True)
    stamp(A)
    vCS = vSQ
    for c in (2, 3, 4, 5, 6):
        w1_copy(c)
    set_stage(A, C0 + 8)
    A('v_mov_b32 v%d, 0', vCS)
    A('v_mov_b32 v%d, 0', vCS + 1)
    for r in range(112):
        if r == 0:
            A('s_waitcnt lgkmcnt(15)')
        if r == 64:
            A('s_waitcnt lgkmcnt(0)')
        A('v_dot2c_f32_bf16 v%d, s%d, v%d', vCS + (r & 1), sONES, vXR + r)
    A('v_add_f32 v%d, v%d, v%d', vCS, vCS, vCS + 1)
    hilo_c(A, vCS, vCF, vT0)
    vBR = 40
    vE3 = 72
    vMF2, vSD = 128, 132
    sBL, sFL2, sPF, sBK, sBS, sHB, sEM = 4, 5, 6, 7, 8, 9, 10
    A('s_mul_i32 s%d, s%d, %d', sB, sTB3, 4 * 112)
    A('s_lshl_b32 s%d, s%d, 3', sT, sFB)
    A('s_add_u32 s%d, s%d, s%d', sB, sB, sT)
    A('s_lshl_b32 s%d, s%d, 1', sT, sWV)
    A('s_add_u32 s%d, s%d, s%d', sB, sB, sT)
    A('s_lshl_b32 s%d, s%d, 10', sB, sB)
    A('s_add_u32 s%d, s%d, %d', sB, sB, WS_H1B)
    A('s_add_u32 s%d, s%d, %d', sBL, sB, 2 * 112 * 1024)
    A('s_lshl_b32 s%d, s%d, 9', sFL, sTB3)
    A('s_lshl_b32 s%d, s%d, 4', sT, sFB)
    A('s_add_u32 s%d, s%d, s%d', sFL, sFL, sT)
    A('s_lshl_b32 s%d, s%d, 2', sT, sWV)
    A('s_add_u32 s%d, s%d, s%d', sFL, sFL, sT)
    A('s_add_u32 s%d, s%d, %d', sFL, sFL, F4)
    A('s_add_u32 s%d, s%d, 256', sFL2, sFL)
    A('s_bitcmp1_b32 s%d, 0', sFB)
    A('s_cselect_b32 s%d, s%d, s%d', sT, sBL, sB)
    A('s_cselect_b32 s%d, s%d, s%d', sBL, sB, sBL)
    A('s_mov_b32 s%d, s%d', sB, sT)
    A('s_cselect_b32 s%d, s%d, s%d', sT, sFL2, sFL)
    A('s_cselect_b32 s%d, s%d, s%d', sFL2, sFL, sFL2)
    A('s_mov_b32 s%d, s%d', sFL, sT)
    A('s_lshl_b32 s%d, s%d, 8', sPF, sTQ)
    A('s_mul_i32 s%d, s%d, 112', sT, sKH)
    A('s_add_u32 s%d, s%d, s%d', sPF, sPF, sT)
    A('s_add_u32 s%d, s%d, %d', sPF, sPF, F4)
    A('s_mul_i32 s%d, s%d, %d', sHB, sG, 112 * 1024)
    A('s_mul_i32 s%d, s%d, %d', sT, sKH, 56 * 1024)
    A('s_add_u32 s%d, s%d, s%d', sHB, sHB, sT)
    A('s_add_u32 s%d, s%d, %d', sHB, sHB, WS_H1B)
    blk_init(A, sBK, sBS, 's%d' % sKH)
    A('s_bitcmp1_b32 s%d, 0', sBK)
    A('s_mov_b32 s%d, 0x0f0f0f0f', sEM)
    A('s_cselect_b32 s%d, 0x00f0f0f0, s%d', sEM, sEM)
    vL4, vPF = vNM, vRS
    A('s_mov_b32 s%d, 0', CACHE[5])
    A('s_lshl_b32 s%d, s%d, 2', sT, sKH)
    A('s_add_u32 s%d, s%d, %d', sT, sT, L_MISC + M_PW + 20)
    A('v_mov_b32 v%d, s%d', vCA, sT)
    A('v_lshlrev_b32 v%d, 2, v%d', vL4, vL)

    def p3_epilogue(gi, packed=False):
        B = sub(A)
        acc = vAC + 16 * (gi & 1)
        e = vE3
        sd, c1 = vSD, vSD + 1
        if packed:
            pk = lambda r: 'v[%d:%d]' % (r, r + 1)
            for r in range(0, 16, 2):
                B('v_pk_mul_f32 %s, %s, %s op_sel:[0,1] op_sel_hi:[1,1]', pk(e + r), pk(acc + r), pk(sd))
            for r in range(16):
                B('v_exp_f32 v%d, v%d', e + r, e + r)
            for r in range(0, 16, 2):
                B('v_pk_fma_f32 %s, %s, %s, %s op_sel_hi:[1,0,0]', pk(e + r), pk(e + r), pk(sd), pk(sd))
            for r in range(16):
                B('v_rcp_f32 v%d, v%d', e + r, e + r)
            for r in range(0, 16, 2):
                B('v_pk_mul_f32 %s, %s, %s', pk(e + r), pk(e + r), pk(acc + r))
            cvt8(B, acc, e)
        else:
            silu8(B, acc, e, sd, c1, acc)
            silu8(B, acc + 8, e + 8, sd, c1, acc + 4)
        blocks = [[l] for l in B.lines]
        B = sub(A)
        so = sB if gi < 2 else sBL
        pub_stores(B, [st4(acc + 4 * q, so, q * 1024) for q in range(2)], not WT1)
        if gi % 2 == 0:
            B('s_add_u32 s%d, s%d, %d', so, so, 112 * 1024)
        blocks.append(B.lines)
        return blocks

    def flag_load(B):
        B('s_mov_b64 exec, 0xfffffff')
        B('buffer_load_dword v%d, v%d, s[%d:%d], s%d offen sc1', vPF, vL4, SWS, SWS + 3, sPF)
        B('s_mov_b64 exec, -1')

    def flag_check(mask):
        def slow(B, back):
            lo = B.label('P')
            B('%s:', lo)
            flag_load(B)
            B('s_waitcnt vmcnt(0)')
            B('v_cmp_ne_u32 vcc, s%d, v%d', sTAG, vPF)
            spin_guard(B, back)
            B('s_and_b32 s%d, vcc_lo, %s', sT, mask)
            B('s_cbranch_scc1 %s', lo)
        ent, back = cold_block(A, slow)
        A('v_cmp_ne_u32 vcc, s%d, v%d', sTAG, vPF)
        A('s_and_b32 s%d, vcc_lo, %s', sT, mask)
        A('s_cbranch_scc1 %s', ent)
        A('%s:', back)

    PRE = E('P3PRE', 6)
    vHB = vXD + 2
    A('v_add_u32 v%d, %d, v%d', vHB, L_A, vO)
    A('v_add_u32 v%d, %d, v%d', vHB + 1, 65536, vO)
    Q = LdsQ(A)

    def rd(n):
        gi, k = divmod(n, 28)
        if (k + 5) % 8 == 0 and k != 3:
            Q.take(7)
        if (k + 4) % 8 == 0 or k == 0:
            wait_lp(Q.A, ('h', gi, (k + 4) // 8))
        Q.op(('b', n), 'ds_read_b128 %s, v%d offset:%d', v(vBR + 4 * (n % 8), 4), (vHB, vHB, vO, vHB + 1)[gi],
             (28672 if gi == 1 else 0) + k * 1024)
        if k == 27:
            Q.stage(C0 + 9 + gi)
        nn = n + PRE + 2
        if nn < 112 and ((nn % 28 + 4) % 8 == 0 or nn % 28 == 0) and nn % 28 != 4:
            Q.peek(7)

    stamp(A, 'p2')
    HELP['inline'] = True
    for n in range(PRE):
        rd(n)
    HELP['inline'] = False
    for gi in range(4):
        acc = vAC + 16 * (gi & 1)
        M = sub(A)
        Q.A = M
        for k in range(28):
            n = 28 * gi + k
            if n + PRE < 112:
                rd(n + PRE)
            if k == 16:
                Q.op('s6', 'ds_read_b128 v[%d:%d], v%d offset:%d', vTT, vTT + 3, vMI, M_PW + 16)
                Q.op('sf', 'ds_read_b128 %s, v%d offset:%d', v(vMF2, 4), vEX, gi * 1024)
            if k == 24:
                Q.wait('sf')
                M('v_readfirstlane_b32 s%d, v%d', sPROG, vTT)

                def st_slow(B, back):
                    def st_read():
                        B('ds_read_b128 %s, v%d offset:%d', v(vMF2, 4), vEX, gi * 1024)
                        return 0
                    wait_word(B, 4, LP[('st', gi)][1], body=st_read)
                ent, back = cold_block(M, st_slow)
            if k == 25:
                M('s_cmp_ge_u32 s%d, %d', sPROG, LP[('st', gi)][1])
                M('s_cbranch_scc0 %s', ent)
                M('%s:', back)
                M('v_mov_b32 v%d, v%d', vMF, vMF2)
                M('v_mov_b32 v%d, v%d', vMF + 1, vMF2 + 1)
            if k % 2 == 0:
                Q.wait(('b', n + 1))
            if k in (0, 12):
                stamp(M, 'p3')
            if gi == E('P33', 3) and k >= 15 - 13 * (gi == 0) and (gi or k % 2 == 0):
                stamp(M, 'p33')
            if gi == 3 and k == E('P3FLAGK', 11):
                pub_flag(M, sFL, True)
            if gi == 3 and k == 25:
                flag_load(M)
            mfma(M, acc, vXR + 4 * k, vBR + 4 * (n % 8), k == 0)
        mfma(M, acc, vCF, vMF)
        M('v_mov_b32 v%d, v%d', vSD, vMF2 + 2)
        M('v_mov_b32 v%d, v%d', vSD + 1, vMF2 + 3)
        A.lines += merge(M.lines, p3_epilogue(gi - 1) if gi > 0 else [], 1, 27)
        if gi == 0:
            stamp(A)
        stamp(A, 'p3')
    stamp(A)
    NB = 12
    vWF4 = 40
    vAP = vXR + 48

    def w2_base(c):
        A('s_cmp_eq_u32 s%d, 0', sKH)
        A('s_cselect_b32 s%d, %d, %d', sT, w2_slot(2 * c) >> 12, w2_slot(2 * c + 1) >> 12)
        A('s_lshl_b32 s%d, s%d, 12', sT, sT)
        A('v_add_u32 v%d, s%d, v%d', vWA + 2, sT, vWA)
        A('v_add_u32 v%d, s%d, v%d', vWA + 3, sT, vWA + 1)

    Q = LdsQ(A)

    def abuf(k):
        return vAP + 8 * k if k < 8 else vWF4 + 8 * (k & 3)

    def read_w2(k):
        if k % 4 == 3 and k < 52:
            Q.take(LP[('w2', 2 * (k // 4) + 3)][0])
        if k % 4 == 0:
            wait_lp(A, ('w2', 2 * (k // 4) + 1))
            w2_base(k // 4)
        buf = abuf(k)
        for nt in range(2):
            for z in range(2):
                Q.op(('w', k), 'ds_read_b64_tr_b16 v[%d:%d], v%d offset:%d', buf + 4 * nt + 2 * z,
                     buf + 4 * nt + 2 * z + 1, vWA + 2 + nt, ((k % 4) * 16 + 8 * z) * 128)
        if k % 4 == 0 and 4 < k < 52:
            Q.peek(LP[('w2', 2 * (k // 4) + 3)][0])
        if k % 4 == 3 and 1 <= (k // 4) <= 5:
            Q.stage(C0 + 13 + k // 4)

    vq = []

    def vm_need(tag):
        i = max(j for j, x in enumerate(vq) if x == tag)
        return len(vq) - 1 - i

    def issue_b(k):
        if k % 8 == 0:
            A('s_lshl_b32 s%d, s%d, 13', sM0, sBK)
            A('s_add_u32 s%d, s%d, s%d', sM0, sM0, sHB)
            blk_next(A, sBK, sBS)
        A('buffer_load_dwordx4 %s, v%d, s[%d:%d], s%d offen offset:%d%s', v(vXR + 4 * (k % NB), 4), vO, SWS, SWS + 3,
          sM0, (k & 3) * 1024, LDB)
        vq.append(('b', k))
        if k % 8 == 3:
            A('s_add_u32 s%d, s%d, 4096', sM0, sM0)

    INFL = E('P4INFL', 10)
    assert INFL < NB
    A('s_waitcnt vmcnt(2)')
    flag_check('s%d' % sEM)
    stamp(A)
    issued = 0
    for j, b in enumerate(p3_epilogue(3, True)):
        if j % 6 == 0 and j // 6 < 8:
            read_w2(j // 6)
        if j % 5 == 2 and issued < INFL:
            issue_b(issued)
            issued += 1
        A.lines += b
    vq += ['st', 'st']
    assert issued == INFL
    unpack_hp()
    stamp(A)
    KF, KL = E('P4KF', 3), E('P4KL', 9)
    pend = False
    for k in range(56):
        if 8 <= k + 2 < 56:
            read_w2(k + 2)
        need = vm_need(('b', k))
        if k == KF:
            need = min(need, vm_need('st'))
        Q.wait(('w', k), need)
        if k % 4 == 0 and k:
            stamp(A, 'p4')
        buf = abuf(k)
        mfma(A, vAC + 16, buf + 4, vXR + 4 * (k % NB), k == 0)
        if k == KF:
            pub_flag(A, sFL2, True, False)
            vq.append('fl')
        if k == KL:
            flag_load(A)
            vq.append('pf')
        if issued == 24 and not pend:
            if need <= vm_need('pf'):
                flag_check('0xfffffff')
                pend = True
        for _ in range(2):
            if issued < min(56, k + 1 + INFL) and (issued < 24 or pend):
                issue_b(issued)
                issued += 1
        mfma(A, vAC, buf, vXR + 4 * (k % NB))
    stamp(A)
    exchange(C0 + 27)
    cvt8(A, vHP, vAC)
    for q in range(2):
        A('v_permlane32_swap_b32 v%d, v%d', vHP + 4 * q, vHP + 4 * q + 2)
        A('v_permlane32_swap_b32 v%d, v%d', vHP + 4 * q + 1, vHP + 4 * q + 3)
    for q in range(2):
        A('buffer_store_dwordx4 %s, v%d, s[%d:%d], 0 offen offset:%d', v(vHP + 4 * q, 4), vRO, SOUT, SOUT + 3, q * 32)
    A('s_or_b32 s%d, s2, s%d', sT, sWV)
    A('s_cmp_lg_u32 s%d, 0', sT)
    A('s_cbranch_scc1 %s', fin)
    A('s_mov_b32 s%d, %d', sT, FEP)
    A('s_mov_b64 exec, 1')
    A('buffer_store_dword v%d, v%d, s[%d:%d], s%d offen', vTAG, vO, SWS, SWS + 3, sT)
    A('s_mov_b64 exec, -1')
    A('%s:', fin)
    if E('PADTO', 0):
        lo = A.label('PAD')
        A('s_waitcnt vmcnt(0) lgkmcnt(0)')
        A('s_mov_b32 s6, %d', E('PADTO', 0))
        if PROBE >= 0:
            A('s_sub_u32 s7, s56, s84')
            A('s_lshl_b32 s7, s7, 2')
            A('s_cmp_ge_u32 s%d, 28', sI)
            A('s_cselect_b32 s7, 0, s7')
            A('s_add_u32 s6, s6, s7')
        A('%s:', lo)
        A('s_memrealtime s[4:5]')
        A('s_waitcnt lgkmcnt(0)')
        A('s_sub_u32 s4, s4, s84')
        A('s_cmp_lt_u32 s4, s6')
        A('s_cbranch_scc1 %s', lo)
    stamp_flush(A)


def gen():
    A = Asm()
    name = NAME + '_kernel'
    A.lines += ['.p2align 8', '.globl %s' % name, '.type %s,@function' % name, '%s:' % name]
    end = A.label('END')
    if E('PADTO', 0):
        A('s_memrealtime s[84:85]')
    A('s_getpc_b64 s[%d:%d]', sPC, sPC + 1)
    A('s_cmp_ge_u32 s2, 256')
    A('s_cbranch_scc1 %s', end)
    A('s_load_dwordx16 s[64:79], s[0:1], 0')
    A('s_load_dwordx2 s[80:81], s[0:1], 72')
    if DBGT:
        A('s_load_dwordx2 s[86:87], s[0:1], 64')
    A('s_mov_b32 s%d, 0x400000', sSPIN)
    A('s_and_b32 s%d, s2, 7', sXCD)
    A('s_lshr_b32 s%d, s2, 3', sI)
    if MAP == 0:
        perm = [2, 4, 6, 9, 11, 13, 0, 1, 3, 5, 7, 8, 10, 12, 14, 15]
        lo = sum(perm[i] << (4 * i) for i in range(8))
        hi = sum(perm[8 + i] << (4 * i) for i in range(8))
        A('s_mov_b32 s%d, 0x%x', sHI, lo)
        A('s_mov_b32 s%d, 0x%x', sHI + 1, hi)
        A('s_lshr_b32 s%d, s%d, 1', sT, sI)
        A('s_lshl_b32 s%d, s%d, 2', sT, sT)
        A('s_lshr_b64 s[%d:%d], s[%d:%d], s%d', sHI, sHI + 1, sHI, sHI + 1, sT)
        A('s_and_b32 s%d, s%d, 15', sH, sHI)
        A('s_and_b32 s%d, s%d, 1', sTB, sI)
        A('s_lshl_b32 s%d, s%d, 1', sT, sXCD)
        A('s_add_u32 s%d, s%d, s%d', sTB, sTB, sT)
    else:
        A('s_lshr_b32 s%d, s%d, 1', sTB, sI)
        A('s_and_b32 s%d, s%d, 1', sH, sI)
        A('s_lshl_b32 s%d, s%d, 1', sT, sXCD)
        A('s_add_u32 s%d, s%d, s%d', sH, sH, sT)
    A('s_add_u32 s%d, s%d, s%d', sC0, sXCD, sI)
    A('s_mul_i32 s%d, s%d, 37', sT, sC0)
    A('s_lshr_b32 s%d, s%d, 8', sT, sT)
    A('s_mul_i32 s%d, s%d, 7', sT, sT)
    A('s_sub_u32 s%d, s%d, s%d', sC0, sC0, sT)
    A('s_mul_i32 s%d, s%d, 37', sTQ, sI)
    A('s_lshr_b32 s%d, s%d, 8', sTQ, sTQ)
    A('s_mul_i32 s%d, s%d, 7', sNB, sTQ)
    A('s_sub_u32 s%d, s%d, s%d', sNB, sI, sNB)
    A('s_lshr_b32 s%d, s%d, 1', sTB3, sTQ)
    A('s_mul_i32 s%d, s%d, 14', sFB, sTB3)
    A('s_sub_u32 s%d, s%d, s%d', sFB, sI, sFB)
    A('s_lshl_b32 s%d, s%d, 2', sT, sXCD)
    A('s_add_u32 s%d, s%d, s%d', sTQ, sTQ, sT)
    A('s_lshl_b32 s%d, s%d, 1', sT, sXCD)
    A('s_add_u32 s%d, s%d, s%d', sTB3, sTB3, sT)
    A('v_lshrrev_b32 v%d, 6, v0', vL)
    A('v_readfirstlane_b32 s%d, v%d', sWV, vL)
    A('v_lshlrev_b32 v%d, 2, v%d', vMY, vL)
    A('v_add_u32 v%d, %d, v%d', vMY, L_MISC, vMY)
    A('v_and_b32 v%d, 63, v0', vL)
    A('v_lshlrev_b32 v%d, 4, v%d', vO, vL)
    A('v_mov_b32 v%d, %d', vMI, L_MISC)
    A('v_mov_b32 v%d, 0', vT0)
    A('ds_write_b32 v%d, v%d', vMY, vT0)
    A('ds_write_b32 v%d, v%d offset:%d', vMY, vT0, M_EP)
    A('ds_write_b32 v%d, v%d offset:%d', vMY, vT0, M_FAST)
    A('ds_write_b32 v%d, v%d offset:%d', vMY, vT0, M_CP)
    A('ds_write_b32 v%d, v%d offset:%d', vMY, vT0, M_LD)
    A('s_mov_b32 s%d, 0', sPROG)
    A('s_mov_b32 s%d, 0', sFASTF)
    A('s_mov_b32 s%d, 0x%x', sONES, ONES)
    early_offsets(A)
    A('s_waitcnt lgkmcnt(0)')
    A('s_barrier')
    A('s_mov_b32 s%d, 0', sPROG1)
    srd(A, SX, 64, S * D * 2)
    srd(A, SW, 66, D * 3 * D * 2)
    _st['n'] = 0
    stamp(A, 'all')
    if STAMPS:
        A('s_memrealtime s[86:87]')
    for i in range(7):
        LP[('x', i)] = (7, 1 + i)
    for gi in range(4):
        for q in range(4):
            LP[('h', gi, q)] = (7, 10 + 4 * gi + q)
    for pi in range(3):
        for i in range(7):
            LP[('W', pi, i)] = (4, 7 * pi + i + 1)
    l0, l1, l2, lw, lc = A.label('H0'), A.label('H1'), A.label('H23'), A.label('EW'), A.label('EC')
    A('s_cmp_eq_u32 s%d, 4', sWV)
    A('s_cbranch_scc1 %s', lw)
    A('s_cmp_lg_u32 s%d, 7', sWV)
    A('s_cbranch_scc1 %s', lc)
    HELP['on'] = True
    nst = {}
    prio(A, 1)
    _st['n'] = 1
    early_x(A)
    nst[l1] = _st['n']
    A('s_branch %s', l1)
    A('%s:', lw)
    prio(A, 1)
    _st['n'] = 1
    early_w(A)
    nst[l0] = _st['n']
    nst[l2] = 1
    A('s_branch %s', l0)
    refresh_routines(A)
    A('%s:', lc)
    A('s_cmp_ge_u32 s%d, 5', sWV)
    A('s_cbranch_scc1 %s', l2)
    parts = {}
    for lab, fn in ((l0, gen_h0), (l1, gen_h1), (l2, gen_h23)):
        B = sub(A)
        B('%s:', lab)
        B('s_nop 4')
        HELP['on'] = True
        prio(B, 1)
        _st['n'] = nst[lab]
        fn(B)
        HELP['on'] = False
        parts[lab] = B.lines
    _st['n'] = 1
    gen_compute(A)
    A('%s:', end)
    A('s_endpgm')
    for lab in (l0, l1, l2):
        A.lines += parts[lab]
    A.lines += COLD
    return A, name


def main():
    out = sys.argv[1] if len(sys.argv) > 1 else 'cdna_kernels/%s.s' % NAME
    A, name = gen()
    lines, nn = fix_hazards(A.lines)
    hdr = ['; generated by gen/gen9.py (hand-written generator script)',
           '; @launch grid=(256,1,1) block=(512,1,1) lds=%d' % LDS_SIZE,
           '.amdgcn_target "amdgcn-amd-amdhsa--gfx950"', '.text']
    tail = ['.p2align 8', '.fill 2048, 4, 0xbf800000', '.section .rodata,"a"', '.p2align 6', '''.amdhsa_kernel %s
  .amdhsa_next_free_vgpr 256
  .amdhsa_next_free_sgpr 102
  .amdhsa_accum_offset 256
  .amdhsa_group_segment_fixed_size 0
  .amdhsa_kernarg_size 80
  .amdhsa_user_sgpr_count 2
  .amdhsa_user_sgpr_kernarg_segment_ptr 1
  .amdhsa_system_sgpr_workgroup_id_x 1
  .amdhsa_float_denorm_mode_32 3
  .amdhsa_float_denorm_mode_16_64 3
.end_amdhsa_kernel''' % name]
    open(out, 'w').write('\n'.join(hdr + lines + tail) + '\n')
    print('wrote', out, 'lines', len(lines), 'nops', nn)


if __name__ == '__main__':
    main()
```

```python
import sys
import os
sys.path.insert(0, os.path.dirname(os.path.abspath(__file__)))
from asmlib import Asm, fix_hazards, v

NAME = 'sequential_preLN__linear_kernel_hedgehog__dense_activation_silu__prompt'
S, D, H, DH, F = 2048, 448, 16, 28, 1792
MB = 1 << 20
E = lambda k, d: int(os.environ.get(k, d))
STAMPS = E('STAMPS', 0)
MAP = E('MAP', 0)
FAST = E('FAST', 1)
CODEPF = E('CODEPF', 1)
WARM = E('WARM', 0)
WT1 = E('WT1', 0)
WTO = E('WTO', 0)
TOUCHAT = E('TOUCHAT', 2)
LDB = (' sc1', '', ' nt')[E('LDB', 0)]
HLATE = E('HLATE', 1)
WS_KVP = 0
WS_OB = 2 * MB
WS_HB = 4 * MB
WS_H1B = 8 * MB
WS_FLG = 16 * MB
F1, F2, F3, F4, FREG, FEP = WS_FLG + 0x10000, WS_FLG + 0x1000, WS_FLG + 0x3000, WS_FLG + 0x70000, WS_FLG + 0x9000, WS_FLG + 0xA000
F2X = WS_FLG + 0x40000
WS_STAMP = 17 * MB
WS_SIZE = 18 * MB
LOG2E = 0x3fb8aa3b
ONES = 0x3f803f80
MFMA = 'v_mfma_f32_32x32x16_bf16'
L_X = 0
L_WP = (114688, 0, 32768)
L_KVA, L_KVV = 65536, 81920
L_A = 98304
L_SC0, L_SC1 = 49152, 57344
L_XRES = L_SC0
B16 = (0, 16384, 65536, 81920, 32768)
L_PHI, L_EX, L_CF, L_MISC = 159744 - 2048 + 2048 + 1536, 155648, 159744, 163328
LDS_SIZE = 163840
M_PW, M_EP, M_FAST, M_CP, M_LD = 0, 32, 64, 96, 128
L_RSTD = L_EX

SX, SW, SP, SWS, SWO, SW1, SW2, SOUT = 12, 16, 20, 24, 28, 32, 36, 40
sTB, sH, sWV, sC0, sPROG, sT, sT2, sONES, sC, sTAG, sFASTF, sI, sXCD = 44, 45, 46, 47, 48, 49, 50, 51, 52, 53, 54, 55, 3
sHI, sPADL, sZA, sZB, sODD, sPC = 4, 6, 8, 10, 92, 94
sTQ, sNB, sTB3, sFB, sG, sKH, sB, sXB, sM0, sSPIN = 96, 97, 98, 99, 100, 101, 88, 89, 91, 90
sPROG1, sFL = 0, 1
vL, vMI, vT0, vT1, vO = 1, 2, 3, 4, 5
vTAG, vMY = 6, 7
vTT = 8
vXA = 12
vWA = 16
vSM, vSQ = 20, 22
vNM, vRS, vSC, vRA = 24, 25, 26, 27
vXD = 28
vPW = 32
vCA = 36
vXR = 144
vPK_ = 37
CACHE = {4: sPROG, 7: sPROG1, 5: sC0}

_st = {'n': 0}
C0 = 4
HELP = {'on': False}


def prio(A, hi):
    if HELP['on'] and E('HPRIO', 2) and not HELP.get('hot'):
        A('s_setprio %d', E('HPRIO', 2) if hi else 0)
LP = {}


STSET = os.environ.get('STSET', 'main')


DBGT = E('DBGT', 0)


PROBE = E('PROBE', -1)


def stamp(A, tag='main'):
    if PROBE >= 0:
        if not HELP['on'] and tag in ('main', 'all'):
            if _st['n'] == PROBE:
                A('s_memrealtime s[56:57]')
            _st['n'] += 1
        return
    if DBGT and not HELP['on'] and tag in ('main', 'all'):
        A('s_memrealtime s[%d:%d]', 56 + 2 * _st['n'], 57 + 2 * _st['n'])
        _st['n'] += 1
        return
    if STAMPS and STSET == 'clk' and tag == 'main' and not HELP['on']:
        _st['m'] = _st.get('m', 0) + 1
        if _st['m'] in (1, 2, 4, 8, 10, 13):
            A('s_memtime s[%d:%d]', 56 + 2 * _st['n'], 57 + 2 * _st['n'])
            A('s_memrealtime s[%d:%d]', 58 + 2 * _st['n'], 59 + 2 * _st['n'])
            _st['n'] += 2
        return
    if STAMPS and (tag == STSET or tag == 'all' or (HELP['on'] and tag == 'main')):
        assert _st['n'] < 15, 'too many stamps'
        A('s_memtime s[%d:%d]', 56 + 2 * _st['n'], 57 + 2 * _st['n'])
        _st['n'] += 1


def stamp_flush(A):
    if DBGT and not HELP['on']:
        A('s_waitcnt vmcnt(0)')
        stamp(A, 'all')
        skip = A.label('DS')
        A('s_waitcnt vmcnt(0) lgkmcnt(0)')
        A('s_cmp_ge_u32 s%d, 28', sI)
        A('s_cbranch_scc1 %s', skip)
        A('s_mov_b64 exec, 1')
        A('v_mov_b32 v1, 0')
        A('s_not_b32 s4, s56')
        A('v_mov_b32 v2, s4')
        A('global_atomic_umax v1, v2, s[86:87] offset:60')
        for i in range(_st['n']):
            A('v_mov_b32 v%d, s%d', 8 + i, 56 + 2 * i)
            A('global_atomic_umax v1, v%d, s[86:87] offset:%d', 8 + i, 4 * i)
        A('%s:', skip)
        return
    if STAMPS:
        A('s_waitcnt vmcnt(0)')
        stamp(A, 'all')
        A('s_memrealtime s[4:5]')
        A('s_waitcnt vmcnt(0) lgkmcnt(0)')
        A('s_sub_u32 s4, s4, s86')
        A('s_lshl_b32 s4, s4, 20')
        A('s_and_b32 s86, s86, 0xfffff')
        A('s_or_b32 s86, s86, s4')
        A('s_lshl_b32 s%d, s2, 3', sT)
        A('s_add_u32 s%d, s%d, s%d', sT, sT, sWV)
        A('s_lshl_b32 s%d, s%d, 6', sT, sT)
        A('s_add_u32 s%d, s%d, %d', sT, sT, WS_STAMP)
        A('s_mov_b64 exec, 1')
        A('v_mov_b32 v1, 0')
        for i in range(16):
            if i < _st['n']:
                A('v_mov_b32 v2, s%d', 56 + 2 * i)
            elif i == 15:
                A('v_mov_b32 v2, s86')
            else:
                A('v_mov_b32 v2, 0')
            A('buffer_store_dword v2, v1, s[%d:%d], s%d offen offset:%d', SWS, SWS + 3, sT, 4 * i)
            A('s_nop 1')


def srd(A, d, ptr, size):
    A('s_mov_b32 s%d, s%d', d, ptr)
    A('s_and_b32 s%d, s%d, 0xffff', d + 1, ptr + 1)
    A('s_mov_b32 s%d, 0x%x', d + 2, size)
    A('s_mov_b32 s%d, 0x20000', d + 3)


COLD = []


def cold_block(A, fn):
    ent, back = A.label('CE'), A.label('CB')
    B = sub(A)
    B('%s:', ent)
    B('s_nop 15')
    fn(B, back)
    B('s_nop 7')
    B('s_branch %s', back)
    COLD.extend(B.lines)
    return ent, back


def again(A, br, lo, sleep=0):
    slp = max(sleep * E('SLPMUL', 1), E('HSLP', 0) if HELP['on'] else E('CSLP', 0))
    if slp:
        st = A.label('ZZ')
        COLD.extend(['%s:' % st, '  s_sleep %d' % slp, '  s_branch %s' % lo])
        lo = st
    A('%s %s', br, lo)


def spin_guard(A, done):
    A('s_sub_u32 s%d, s%d, 1', sSPIN, sSPIN)
    A('s_cbranch_scc1 %s', done)


def wait_word(A, w, n, cache=None, sleep=0, body=None):
    sd = sT if cache is None else cache

    def loop(B, done, body=None):
        lo = B.label('W')
        prio(B, 0)
        B('%s:', lo)
        B('ds_read_b32 v%d, v%d offset:%d', vPW, vMI, M_PW + 4 * w)
        k = body() if body else 0
        B('s_waitcnt lgkmcnt(%d)', k)
        B('v_readfirstlane_b32 s%d, v%d', sd, vPW)
        spin_guard(B, done)
        B('s_cmp_ge_u32 s%d, %d', sd, n)
        again(B, 's_cbranch_scc0', lo, sleep)
        prio(B, 1)
    if cache is not None and body is None and not HELP['on']:
        A('s_getpc_b64 s[%d:%d]', sPC, sPC + 1)
        A('s_cmp_ge_u32 s%d, %d', sd, n)
        A('s_cbranch_scc0 REFRESH_%d', w)
        return
    done = A.label('WD')
    if cache is not None and body is None:
        A('s_cmp_ge_u32 s%d, %d', sd, n)
        A('s_cbranch_scc1 %s', done)
    loop(A, done, body)
    A('%s:', done)


def wait_lp(A, name, sleep=0):
    w, n = LP[name]
    wait_word(A, w, n, CACHE[w], sleep)


def set_stage(A, n):
    A('v_mov_b32 v%d, %d', vT0, n)
    A('ds_write_b32 v%d, v%d', vMY, vT0)


def wait_stage(A, n, which=(0, 1, 2, 3), body=None, sleep=0, base=M_PW):
    lo, done = A.label('W'), A.label('WD')
    prio(A, 0)
    A('%s:', lo)
    A('ds_read_b128 v[%d:%d], v%d offset:%d', vPW, vPW + 3, vMI, base + 16 * (which[0] // 4))
    k = body() if body else 0
    A('s_waitcnt lgkmcnt(%d)', k)
    w = [x % 4 for x in which]
    if len(w) == 4:
        A('v_min3_u32 v%d, v%d, v%d, v%d', vPW, vPW, vPW + 1, vPW + 2)
        A('v_min_u32 v%d, v%d, v%d', vPW, vPW, vPW + 3)
        r = vPW
    else:
        A('v_min_u32 v%d, v%d, v%d', vPW + w[0], vPW + w[0], vPW + w[1])
        r = vPW + w[0]
    A('v_readfirstlane_b32 s%d, v%d', sT, r)
    spin_guard(A, done)
    A('s_cmp_ge_u32 s%d, %d', sT, n)
    again(A, 's_cbranch_scc0', lo, sleep)
    A('%s:', done)
    prio(A, 1)


def poll_global(A, soff, nlanes):
    lo, done = A.label('P'), A.label('PD')
    A('v_lshlrev_b32 v%d, 2, v%d', vT1, vL)
    if nlanes <= 32:
        A('s_mov_b64 exec, 0x%x', (1 << nlanes) - 1)
    else:
        A('s_mov_b32 exec_lo, 0x%x', nlanes & 0xffffffff)
        A('s_mov_b32 exec_hi, 0x%x', nlanes >> 32)
    A('%s:', lo)
    A('buffer_load_dword v%d, v%d, s[%d:%d], s%d offen sc1', vT0, vT1, SWS, SWS + 3, soff)
    A('s_waitcnt vmcnt(0)')
    A('v_cmp_ne_u32 vcc, s%d, v%d', sTAG, vT0)
    spin_guard(A, done)
    A('s_cbranch_vccnz %s', lo)
    A('%s:', done)
    A('s_mov_b64 exec, -1')


def poll_scalar(A, soff, n):
    lo, done = A.label('P'), A.label('PD')
    A('s_add_u32 s%d, s%d, s%d', sPC, SWS, soff)
    A('s_addc_u32 s%d, s%d, 0', sPC + 1, SWS + 1)
    base = 76
    assert n == 8
    A('%s:', lo)
    if E('PSLEEP', 0):
        A('s_sleep %d', E('PSLEEP', 0))
    A('s_load_dwordx%d s[%d:%d], s[%d:%d], 0 glc', n, base, base + n - 1, sPC, sPC + 1)
    A('s_waitcnt lgkmcnt(0)')
    A('s_and_b64 s[%d:%d], s[%d:%d], s[%d:%d]', sHI, sHI + 1, base, base + 1, base + 2, base + 3)
    A('s_or_b64 s[%d:%d], s[%d:%d], s[%d:%d]', sPADL, sPADL + 1, base, base + 1, base + 2, base + 3)
    for k in range(4, n, 2):
        A('s_and_b64 s[%d:%d], s[%d:%d], s[%d:%d]', sHI, sHI + 1, sHI, sHI + 1, base + k, base + k + 1)
        A('s_or_b64 s[%d:%d], s[%d:%d], s[%d:%d]', sPADL, sPADL + 1, sPADL, sPADL + 1, base + k, base + k + 1)
    A('s_and_b32 s%d, s%d, s%d', sHI, sHI, sHI + 1)
    A('s_or_b32 s%d, s%d, s%d', sPADL, sPADL, sPADL + 1)
    A('s_xor_b32 s%d, s%d, s%d', sHI, sHI, sTAG)
    A('s_xor_b32 s%d, s%d, s%d', sPADL, sPADL, sTAG)
    spin_guard(A, done)
    A('s_or_b32 s%d, s%d, s%d', sHI, sHI, sPADL)
    A('s_cbranch_scc1 %s', lo)
    A('%s:', done)


def two_ways(A, fn, local):
    if local and FAST:
        ent, back = cold_block(A, lambda B, back: fn(B, ' sc1'))
        A('s_cmp_eq_u32 s%d, 0', sFASTF)
        A('s_cbranch_scc1 %s', ent)
        fn(A, '')
        A('%s:', back)
    else:
        fn(A, ' sc1')


def pub_stores(A, stores, local):
    def fn(B, bits):
        for st in stores:
            B(st % bits)
    two_ways(A, fn, local)


def pub_flag(A, sflag, local, drain=True):
    if drain:
        A('s_waitcnt vmcnt(0)')
    A('s_mov_b64 exec, 1')
    two_ways(A, lambda B, bits: B('buffer_store_dword v%d, v%d, s[%d:%d], s%d offen%s', vTAG, vO, SWS, SWS + 3, sflag,
                                  bits), local)
    A('s_mov_b64 exec, -1')


def pub_flag4(A):
    A('v_lshlrev_b32 v%d, 9, v%d', vT1, vL)
    A('s_waitcnt vmcnt(0)')
    A('s_mov_b64 exec, 15')
    two_ways(A, lambda B, bits: B('buffer_store_dword v%d, v%d, s[%d:%d], s%d offen%s', vTAG, vT1, SWS, SWS + 3, sFL,
                                  bits), True)
    A('s_mov_b64 exec, -1')


def st4(reg, soff, off):
    return 'buffer_store_dwordx4 %s, v%d, s[%d:%d], s%d offen offset:%d%%s' % (v(reg, 4), vO, SWS, SWS + 3, soff, off)


def hilo_c(A, src, f, tmp):
    A('v_cvt_pk_bf16_f32 v%d, v%d, v%d', f, src, src)
    A('v_and_b32 v%d, 0xffff0000, v%d', tmp, f)
    A('v_sub_f32 v%d, v%d, v%d', tmp, src, tmp)
    A('v_cvt_pk_bf16_f32 v%d, v%d, 0', f + 1, tmp)


def hilo_m(A, src, f, tmp):
    A('v_cvt_pk_bf16_f32 v%d, v%d, 0', f + 1, src)
    A('v_lshlrev_b32 v%d, 16, v%d', tmp, f + 1)
    A('v_sub_f32 v%d, v%d, v%d', tmp, src, tmp)
    A('v_cvt_pk_bf16_f32 v%d, v%d, v%d', f, src, tmp)


def ln_finish(A, t0, t1, negmean, rstd):
    A('v_mul_f32 v%d, 0x%x, v%d', t0, 0x3b124925, t0)
    A('v_mov_b32 v%d, v%d', t1, t0)
    A('v_permlane32_swap_b32 v%d, v%d', t0, t1)
    A('v_fma_f32 v%d, -v%d, v%d, v%d', t1, t0, t0, t1)
    A('v_max_f32 v%d, 0, v%d', t1, t1)
    A('v_add_f32 v%d, 0x%x, v%d', t1, 0x3727c5ac, t1)
    A('v_rsq_f32 v%d, v%d', rstd, t1)
    A('v_sub_f32 v%d, 0, v%d', negmean, t0)


def softmax_pm(A, p, sc, e, t):
    A('v_cndmask_b32 v%d, v%d, v%d, s[%d:%d]', p + 12, p + 12, p + 14, sHI, sHI + 1)
    A('v_cndmask_b32 v%d, v%d, v%d, s[%d:%d]', p + 13, p + 13, p + 15, sHI, sHI + 1)
    mx, mn = t, t + 1
    A('v_max3_f32 v%d, v%d, v%d, v%d', mx, p, p + 1, p + 2)
    A('v_min3_f32 v%d, v%d, v%d, v%d', mn, p, p + 1, p + 2)
    for i in range(3, 13, 2):
        A('v_max3_f32 v%d, v%d, v%d, v%d', mx, mx, p + i, p + i + 1)
        A('v_min3_f32 v%d, v%d, v%d, v%d', mn, mn, p + i, p + i + 1)
    A('v_max_f32 v%d, v%d, v%d', mx, mx, p + 13)
    A('v_min_f32 v%d, v%d, v%d', mn, mn, p + 13)
    A('v_sub_f32 v%d, 0, v%d', mn, mn)
    A('v_permlane32_swap_b32 v%d, v%d', mx, mn)
    A('v_max_f32 v%d, v%d, v%d', mx, mx, mn)
    A('v_mul_f32 v%d, v%d, v%d', mx, mx, sc)
    A('v_mov_b32 v%d, v%d', mn, mx)
    A('v_permlane32_swap_b32 v%d, v%d', mx, mn)
    assert sc % 2 == 0 and mx % 2 == 0
    for i in range(0, 14, 2):
        A('v_pk_fma_f32 v[%d:%d], v[%d:%d], v[%d:%d], v[%d:%d] op_sel:[0,0,1] op_sel_hi:[1,0,1] neg_lo:[1,0,1] '
          'neg_hi:[1,0,1]', e + i, e + i + 1, p + i, p + i + 1, sc, sc + 1, mx, mx + 1)
        A('v_pk_fma_f32 v[%d:%d], v[%d:%d], v[%d:%d], v[%d:%d] op_sel_hi:[1,0,0] neg_lo:[0,0,1] neg_hi:[0,0,1]',
          p + i, p + i + 1, p + i, p + i + 1, sc, sc + 1, mx, mx + 1)
    for i in range(14):
        A('v_exp_f32 v%d, v%d', e + i, e + i)
        A('v_exp_f32 v%d, v%d', p + i, p + i)
    if PKSM:
        for base in (p, e):
            A('v_pk_add_f32 v[%d:%d], v[%d:%d], v[%d:%d]', base + 14, base + 15, base, base + 1, base + 2, base + 3)
        for i in range(4, 14, 2):
            for base in (p, e):
                A('v_pk_add_f32 v[%d:%d], v[%d:%d], v[%d:%d]', base + 14, base + 15, base + 14, base + 15, base + i,
                  base + i + 1)
    else:
        for base in (p, e):
            A('v_add_f32 v%d, v%d, v%d', base + 14, base, base + 2)
            A('v_add_f32 v%d, v%d, v%d', base + 15, base + 1, base + 3)
        for i in range(4, 14):
            for base in (p, e):
                A('v_add_f32 v%d, v%d, v%d', base + 14 + (i & 1), base + 14 + (i & 1), base + i)
    sp, sn = t + 2, t
    A('v_add_f32 v%d, v%d, v%d', sp, p + 14, p + 15)
    A('v_add_f32 v%d, v%d, v%d', sn, e + 14, e + 15)
    A('v_permlane32_swap_b32 v%d, v%d', sp, sn)
    A('v_add_f32 v%d, v%d, v%d', sp, sp, sn)
    A('v_rcp_f32 v%d, v%d', sp, sp)
    A('v_mov_b32 v%d, v%d', sn, sp)
    A('v_permlane32_swap_b32 v%d, v%d', sp, sn)
    for i in range(0, 14, 2):
        for base, r in ((p, sp), (e, sn)):
            if PKSM:
                A('v_pk_mul_f32 v[%d:%d], v[%d:%d], v[%d:%d] op_sel_hi:[1,0]', base + i, base + i + 1, base + i,
                  base + i + 1, r, r + 1)
            else:
                A('v_mul_f32 v%d, v%d, v%d', base + i, base + i, r)
                A('v_mul_f32 v%d, v%d, v%d', base + i + 1, base + i + 1, r)
    for i, (a0, a1) in enumerate(((0, 1), (2, 3), (4, 5), (6, None), (7, 8), (9, 10), (11, 12), (13, None))):
        for base in (p, e):
            A('v_cvt_pk_bf16_f32 v%d, v%d, %s', base + i, base + a0, '0' if a1 is None else 'v%d' % (base + a1))


PKSM = E('PKSM', 1)


def silu8(B, acc, e, sd, c1, out):
    for r in range(8):
        B('v_mul_f32 v%d, v%d, v%d', e + r, acc + r, c1)
        if r >= 1:
            B('v_exp_f32 v%d, v%d', e + r - 1, e + r - 1)
    B('v_exp_f32 v%d, v%d', e + 7, e + 7)
    for r in range(8):
        B('v_fma_f32 v%d, v%d, v%d, v%d', e + r, e + r, sd, sd)
        if r >= 1:
            B('v_rcp_f32 v%d, v%d', e + r - 1, e + r - 1)
    B('v_rcp_f32 v%d, v%d', e + 7, e + 7)
    for r in range(8):
        B('v_mul_f32 v%d, v%d, v%d', e + r, e + r, acc + r)
    cvt8(B, out, e, 4)


def cvt8(A, dst, src, n=8):
    for i in range(n):
        A('v_cvt_pk_bf16_f32 v%d, v%d, v%d', dst + i, src + 2 * i, src + 2 * i + 1)


def mfma(A, d, a_, b_, first=False):
    A('%s %s, %s, %s, %s', MFMA, v(d, 16), v(a_, 4), v(b_, 4), '0' if first else v(d, 16))


def merge(main, blocks, start, stop):
    idx = [i for i, l in enumerate(main) if l.strip().startswith('v_mfma')][start:stop]
    out, k = [], 0
    n = len(idx)
    pos = {i: j for j, i in enumerate(idx)}
    for i, l in enumerate(main):
        out.append(l)
        if i in pos:
            upto = (len(blocks) * (pos[i] + 1) + n - 1) // n
            for b in blocks[k:upto]:
                out += b
            k = max(k, upto)
    assert k >= len(blocks)
    return out


def sub(A):
    return Asm()


L_H = (L_A, L_A + 28672, 0, 65536)
W2S = [32768, 40960] + [L_A + k * 8192 for k in range(2)] + [L_SC0, L_SC1] + [L_A + k * 8192 for k in range(2, 7)] + [
    k * 8192 for k in range(4)] + [65536 + k * 8192 for k in range(4)]
W2GATE = {2: 9, 7: 10, 11: 11, 15: 12}
W2RE = dict(zip(range(19, 28), (0, 1, 2, 3, 6, 7, 8, 9, 10)))


def w2_slot(n):
    return W2S[W2RE.get(n, n)]


def w1_slot(c):
    return B16[c % 5]


class LdsQ:
    def __init__(self, A):
        self.A, self.q = A, []
        self.peeked = False

    def op(self, tag, fmt, *a):
        self.A(fmt, *a)
        self.q.append(tag)

    def need(self, tag):
        idx = [i for i, x in enumerate(self.q) if x == tag]
        if not idx:
            return None
        n = len(self.q) - 1 - idx[-1]
        self.q = self.q[idx[-1] + 1:]
        return min(n, 15)

    def wait(self, tag, vm=None):
        n = self.need(tag)
        if n is None and vm is None:
            return
        self.A('s_waitcnt' + ('' if vm is None else ' vmcnt(%d)' % vm) + ('' if n is None else ' lgkmcnt(%d)' % n))

    def stage(self, n):
        set_stage(self.A, n)
        self.q.append('st')

    def peek(self, w):
        if w == 5:
            self.op('pk', 'ds_read_b32 v%d, v%d', vPK_, vCA)
        else:
            self.op('pk', 'ds_read_b32 v%d, v%d offset:%d', vPK_, vMI, M_PW + 4 * w)
        self.peeked = True

    def take(self, w):
        if not self.peeked:
            return
        self.peeked = False
        self.wait('pk')
        self.A('v_readfirstlane_b32 s%d, v%d', CACHE[w], vPK_)


def tag_compute(A, t16=None):
    A('s_waitcnt lgkmcnt(0)')
    if t16 is not None:
        A('s_lshr_b32 s%d, s%d, 16', sT2, sTAG)
    A('s_mul_i32 s%d, s%d, 0x%x', sTAG, sTAG, 1664525)
    A('s_add_u32 s%d, s%d, 0x%x', sTAG, sTAG, 1013904223)
    A('v_mov_b32 v%d, s%d', vTAG, sTAG)
    if t16 is not None:
        A('s_and_b32 s%d, s%d, 0x3fff', t16, sTAG)
        A('s_and_b32 s%d, s%d, 0x4000', sT, sTAG)
        A('s_lshl_b32 s%d, s%d, 1', sT, sT)
        A('s_or_b32 s%d, s%d, s%d', t16, t16, sT)
        A('s_cmp_eq_u32 s%d, s%d', t16, sT2)
        A('s_cselect_b32 s%d, 1, 0', sT)
        A('s_xor_b32 s%d, s%d, s%d', t16, t16, sT)
        A('s_lshl_b32 s%d, s%d, 16', t16, t16)


def fast_check(A):
    A('s_getreg_b32 s%d, hwreg(HW_REG_XCC_ID)', sC)
    A('s_and_b32 s%d, s%d, 15', sC, sC)
    A('s_add_u32 s%d, s%d, s%d', sC, sC, sTAG)
    A('s_lshl_b32 s%d, s%d, 7', sT, sXCD)
    A('s_add_u32 s%d, s%d, %d', sT, sT, FREG)
    A('v_and_b32 v%d, 31, v%d', vT1, vL)
    A('v_lshlrev_b32 v%d, 2, v%d', vT1, vT1)
    A('buffer_load_dword v%d, v%d, s[%d:%d], s%d offen sc1', vT0, vT1, SWS, SWS + 3, sT)
    A('s_waitcnt vmcnt(0)')
    A('v_cmp_ne_u32 vcc, s%d, v%d', sC, vT0)
    A('s_cmp_eq_u64 vcc, 0')
    A('s_cselect_b32 s%d, 1, 0', sFASTF)


class Stream:
    def __init__(self, A, wave, depth, first=0):
        self.A, self.wave, self.depth = A, wave, depth
        self.items = []
        self.issued = 0
        self.known = 0
        self.n = first

    def wait_to(self, left):
        if self.issued - left <= self.known:
            return
        self.A('s_waitcnt vmcnt(%d)', left)
        self.known = self.issued - left
        last = None
        while self.items and self.items[0][1] <= self.known:
            last = self.items.pop(0)[0]
        if last is not None:
            set_stage(self.A, last)

    def room(self, k):
        self.wait_to(max(self.depth - k, 0))
        self.issued += k

    def done(self, name, cnt=None):
        self.n += 1
        assert LP.setdefault(name, (self.wave, self.n)) == (self.wave, self.n), name
        self.items.append((self.n, self.issued))

    def drain(self):
        self.drain_to(0)

    def drain_to(self, keep):
        while len(self.items) > keep:
            self.wait_to(self.issued - self.items[0][1])

    def save(self):
        return (list(self.items), self.issued, self.known)

    def restore(self, s):
        self.items, self.issued, self.known = list(s[0]), s[1], s[2]

    def dma4(self, lds, voffs, srd_, step=None, bits=''):
        A = self.A
        if isinstance(lds, tuple):
            A('s_add_u32 m0, s%d, %d', lds[0], lds[1])
        else:
            A('s_mov_b32 m0, %d', lds)
        self.room(4)
        for u in range(4):
            A('buffer_load_dwordx4 v%d, s[%d:%d], s%d offen offset:%d%s lds', voffs[u], srd_, srd_ + 3, sT, u * 1024,
              bits)
        if step:
            A('s_add_u32 s%d, s%d, %d', sT, sT, step)


def reg4(St, regs, voffs, srd_, step=None):
    St.room(4)
    for u in range(4):
        St.A('buffer_load_dwordx4 %s, v%d, s[%d:%d], s%d offen offset:%d', v(regs[u], 4), voffs[u], srd_, srd_ + 3, sT,
             u * 1024)
    if step:
        St.A('s_add_u32 s%d, s%d, %d', sT, sT, step)


def spill(St, name, regs, lds):
    A = St.A
    assert not St.items
    A('v_add_u32 v%d, %d, v%d', vT1, lds, vO)
    A('s_setprio %d', E('SPRIO', 0))
    for j, r in enumerate(regs):
        A('ds_write_b128 v%d, %s offset:%d', vT1, v(r, 4), j * 1024)
    St.n += 1
    assert LP.setdefault(name, (St.wave, St.n)) == (St.wave, St.n), name
    set_stage(A, St.n)


def off128(A, vW128, vXo=None):
    A('v_lshrrev_b32 v%d, 3, v%d', vW128, vL)
    A('v_mul_u32_u24 v%d, 896, v%d', vW128, vW128)
    A('v_and_b32 v%d, 7, v%d', vT1, vL)
    if vXo is not None:
        A('v_lshl_add_u32 v%d, v%d, 4, v%d', vXo, vT1, vW128)
        spread4(A, vXo, 8 * 896)
    A('v_lshrrev_b32 v%d, 2, v%d', vT0, vL)
    A('v_and_b32 v%d, 4, v%d', vT0, vT0)
    A('v_xor_b32 v%d, v%d, v%d', vT1, vT1, vT0)
    A('v_lshl_add_u32 v%d, v%d, 4, v%d', vW128, vT1, vW128)
    spread4(A, vW128, 8 * 896)


def h_stream(A, first):
    wave = 7
    St = Stream(A, wave, E('HDEPTH', 24), first)
    if wave == 7:
        A('s_lshl_b32 s%d, s%d, 17', sB, sTB3)
        A('s_add_u32 s%d, s%d, %d', sB, sB, WS_HB + (0x40000000 if E('ABL', 0) & 128 else 0))
        rot_calc(A, sG, 'w1')
        for u in range(7):
            rot_idx(A, 4 + u, sG, u, 7)
            A('s_lshl_b32 s%d, s%d, 12', 4 + u, 4 + u)
            A('s_add_u32 s%d, s%d, s%d', 4 + u, 4 + u, sB)
            A('s_add_u32 s%d, s%d, 4096', 4 + u, 4 + u)
        A('s_lshl_b32 s%d, s%d, 8', sT2, sTB3)
        A('s_add_u32 s%d, s%d, %d', sT2, sT2, F3)
        A('v_lshlrev_b32 v%d, 2, v%d', vT1, vL)
        A('s_and_b32 s%d, s%d, 1', sC, sFB)
        A('s_lshl_b32 s%d, s%d, 16', sC, sC)
        wait_stage(A, C0 + 7, sleep=1)
        stamp(A)
        lo, done = A.label('P'), A.label('PD')
        A('s_mov_b32 exec_lo, 0x3fff3fff')
        A('s_mov_b32 exec_hi, 0x3fff3fff')
        A('%s:', lo)
        A('buffer_load_dword v%d, v%d, s[%d:%d], s%d offen sc1', vT0, vT1, SWS, SWS + 3, sT2)
        A('s_waitcnt vmcnt(0)')
        A('v_cmp_ne_u32 vcc, s%d, v%d', sTAG, vT0)
        spin_guard(A, done)
        A('s_cbranch_vccnz %s', lo)
        A('%s:', done)
        A('s_mov_b64 exec, -1')
        stamp(A)
        for gi in range(4):
            if gi == 2:
                wait_stage(A, C0 + 8)
            if gi:
                A('s_xor_b32 s%d, s%d, %d', sC, sC, (gi ^ (gi - 1)) << 15)
            St.depth = E('HDEPTH0', 16) if gi == 0 else E('HDEPTH', 24)
            for u in range(7):
                A('s_add_u32 s%d, s%d, s%d', sT, 4 + u, sC)
                St.dma4(L_H[gi] + u * 4096, [vO] * 4, SWS, None, LDB)
                St.done(('h', gi, u))
                if u == (3 if gi == 0 else 0):
                    A('s_add_u32 s%d, s%d, s%d', sT, sB, sC)
                    St.dma4(L_SC0 + gi * 4096, [vO] * 4, SWS, None, ' sc1')
                    St.done(('hs', gi))
        St.drain()
    stamp(A)


def spread4(A, base, step):
    for u in range(1, 4):
        A('v_add_u32 v%d, %d, v%d', base + u, u * (step - 1024), base)


def wtr_base(A):
    A('v_lshrrev_b32 v%d, 5, v%d', vT1, vL)
    A('v_bfe_u32 v%d, v%d, 2, 2', vT0, vL)
    A('v_lshl_add_u32 v%d, v%d, 3, v%d', vT0, vT1, vT0)
    A('v_lshlrev_b32 v%d, 6, v%d', vT0, vT0)
    A('v_bfe_u32 v%d, v%d, 4, 1', vTT, vL)
    A('v_lshl_add_u32 v%d, v%d, 5, v%d', vT0, vTT, vT0)
    A('v_and_b32 v%d, 3, v%d', vTT, vL)
    A('v_lshl_add_u32 v%d, v%d, 3, v%d', vT0, vTT, vT0)
    for pi in range(3):
        A('v_add_u32 v%d, %d, v%d', vWA + pi, L_WP[pi], vT0)
    A('v_lshlrev_b32 v%d, 3, v%d', vCA, vL)
    A('v_add_u32 v%d, %d, v%d', vCA, L_CF, vCA)


def sel_frags(A, vID):
    A('v_lshrrev_b32 v%d, 5, v%d', vT1, vL)
    A('v_and_b32 v%d, 31, v%d', vT0, vL)
    A('v_lshlrev_b32 v%d, 2, v%d', vTT, vT1)
    A('v_sub_u32 v%d, v%d, v%d', vT0, vT0, vTT)
    A('v_mov_b32 v%d, 0x3f80', vTT)
    A('v_mov_b32 v%d, 0x3f800000', vTT + 1)
    for sidx in range(2):
        for rr in range(4):
            m = 16 * sidx + 8 * (rr >> 1) + 2 * (rr & 1)
            A('v_cmp_eq_u32 vcc, %d, v%d', m, vT0)
            A('v_cndmask_b32 v%d, 0, v%d, vcc', vID + 4 * sidx + rr, vTT)
            A('v_cmp_eq_u32 vcc, %d, v%d', m + 1, vT0)
            A('v_cndmask_b32 v%d, v%d, v%d, vcc', vID + 4 * sidx + rr, vID + 4 * sidx + rr, vTT + 1)


def read_w(A, pi, i, buf, sleep=0):
    wait_lp(A, ('W', pi, i), sleep)
    for q in range(4):
        for z in range(2):
            A('ds_read_b64_tr_b16 v[%d:%d], v%d offset:%d', buf + 4 * q + 2 * z, buf + 4 * q + 2 * z + 1,
              vWA + pi, i * 4096 + q * 1024 + z * 256)


def colsum(A, spi):
    vCS, vB_, buf = 40, 44, 48
    A('v_mov_b32 v%d, 0', vCS)
    A('v_mov_b32 v%d, 0', vCS + 1)
    A('s_cmp_eq_u32 s%d, 1', spi)
    A('s_cselect_b32 s%d, 0, %d', sT, L_WP[2])
    A('s_cmp_eq_u32 s%d, 0', spi)
    A('s_cselect_b32 s%d, %d, s%d', sT, L_WP[0], sT)
    assert L_WP[1] == 0
    A('v_add_u32 v%d, s%d, v%d', vB_, sT, vWA + 1)
    A('s_mul_i32 s%d, s%d, 7', sC, spi)
    A('s_add_u32 s%d, s%d, 7', sT2, sC)
    top, lo, ok = A.label('CS'), A.label('W'), A.label('WD')
    A('%s:', top)
    A('s_cmp_gt_u32 s%d, s%d', sPROG, sC)
    A('s_cbranch_scc1 %s', ok)
    prio(A, 0)
    A('%s:', lo)
    A('ds_read_b32 v%d, v%d offset:%d', vPW, vMI, M_PW + 16)
    A('s_waitcnt lgkmcnt(0)')
    A('v_readfirstlane_b32 s%d, v%d', sPROG, vPW)
    spin_guard(A, ok)
    A('s_cmp_gt_u32 s%d, s%d', sPROG, sC)
    again(A, 's_cbranch_scc0', lo)
    prio(A, 1)
    A('%s:', ok)
    for q in range(4):
        for z in range(2):
            A('ds_read_b64_tr_b16 v[%d:%d], v%d offset:%d', buf + 4 * q + 2 * z, buf + 4 * q + 2 * z + 1, vB_,
              q * 1024 + z * 256)
    A('v_add_u32 v%d, 4096, v%d', vB_, vB_)
    A('s_add_u32 s%d, s%d, 1', sC, sC)
    for q in range(4):
        A('s_waitcnt lgkmcnt(%d)', 6 - 2 * q)
        for r in range(4):
            A('v_dot2c_f32_bf16 v%d, s%d, v%d', vCS + (r & 1), sONES, buf + 4 * q + r)
    A('s_cmp_lt_u32 s%d, s%d', sC, sT2)
    A('s_cbranch_scc1 %s', top)
    A('v_add_f32 v%d, v%d, v%d', vCS, vCS, vCS + 1)
    hilo_c(A, vCS, vCS + 2, vT0)
    A('s_lshl_b32 s%d, s%d, 9', sT, spi)
    A('v_add_u32 v%d, s%d, v%d', vB_, sT, vCA)
    A('ds_write_b64 v%d, v[%d:%d]', vB_, vCS + 2, vCS + 3)


ROT = E('ROT', 1)
W2R = E('W2R', 0)


def rot_calc(A, dst, kind):
    if not ROT:
        A('s_mov_b32 s%d, 0', dst)
        return
    if kind == 'w1':
        A('s_and_b32 s%d, s%d, 1', dst, sTB3)
        A('s_mul_i32 s%d, s%d, 3', dst, dst)
        mod = 7
    elif kind == 'wo':
        A('s_and_b32 s%d, s%d, 3', dst, sTQ)
        A('s_lshl_b32 s%d, s%d, 1', dst, dst)
        mod = 7
    else:
        A('s_and_b32 s%d, s%d, 3', dst, sTQ)
        A('s_mul_i32 s%d, s%d, 7', dst, dst)
        A('s_lshr_b32 s%d, s%d, 1', dst, dst)
        mod = 14
    A('s_add_u32 s%d, s%d, s%d', dst, dst, sXCD)
    A('s_cmp_ge_u32 s%d, %d', dst, mod)
    A('s_cselect_b32 s%d, %d, 0', sT, mod)
    A('s_sub_u32 s%d, s%d, s%d', dst, dst, sT)


def rot_idx(A, dst, rot, j, mod):
    A('s_add_u32 s%d, s%d, %d', dst, rot, j)
    A('s_cmp_ge_u32 s%d, %d', dst, mod)
    A('s_cselect_b32 s%d, %d, 0', sT2, mod)
    A('s_sub_u32 s%d, s%d, s%d', dst, dst, sT2)


def blk_init(A, sb, sst, kh):
    A('s_and_b32 s%d, s%d, 1', sb, sTQ)
    if isinstance(kh, str):
        A('s_xor_b32 s%d, s%d, %s', sb, sb, kh)
    elif kh:
        A('s_xor_b32 s%d, s%d, 1', sb, sb)
    A('s_lshr_b32 s%d, s%d, 1', sT, sTQ)
    A('s_xor_b32 s%d, s%d, s%d', sT, sT, sXCD)
    A('s_sub_u32 s%d, 6, s%d', sT2, sb)
    A('s_bitcmp1_b32 s%d, 0', sT)
    A('s_cselect_b32 s%d, s%d, s%d', sb, sT2, sb)
    A('s_cselect_b32 s%d, 5, 2', sst)


def blk_next(A, sb, sst):
    A('s_add_u32 s%d, s%d, s%d', sb, sb, sst)
    A('s_cmp_ge_u32 s%d, 7', sb)
    A('s_cselect_b32 s%d, 7, 0', sT2)
    A('s_sub_u32 s%d, s%d, s%d', sb, sb, sT2)


def rest_srds(A):
    A('s_add_u32 s82, s80, %d', FEP)
    A('s_addc_u32 s83, s81, 0')
    A('s_load_dword s%d, s[82:83], 0', sTAG)
    srd(A, SP, 68, H * DH * DH * 2)
    ABL = E('ABL', 0)
    srd(A, SWO, 70, 0 if ABL & 1 else D * D * 2)
    srd(A, SW1, 74, 0 if ABL & 2 else D * F * 2)
    srd(A, SW2, 76, 0 if ABL & 4 else D * F * 2)
    srd(A, SOUT, 78, S * D * 2)
    srd(A, SWS, 80, WS_SIZE)


def rot_next(A):
    A('s_add_u32 s%d, s%d, 1', sC, sC)
    A('s_cmp_eq_u32 s%d, 7', sC)
    A('s_cselect_b32 s%d, 0, s%d', sC, sC)


def sig_dyn(A, sval):
    A('v_mov_b32 v%d, s%d', vT0, sval)
    A('ds_write_b32 v%d, v%d', vMY, vT0)


def early_offsets(A):
    A('v_lshrrev_b32 v%d, 3, v%d', vT0, vL)
    A('v_mul_u32_u24 v%d, 896, v%d', vT0, vT0)
    A('v_lshrrev_b32 v%d, 4, v%d', vT1, vL)
    A('v_and_b32 v%d, 7, v%d', vXD, vL)
    A('v_xor_b32 v%d, v%d, v%d', vXD, vXD, vT1)
    A('v_xor_b32 v%d, 4, v%d', vXD + 1, vXD)
    A('v_lshl_add_u32 v%d, v%d, 4, v%d', vXD, vXD, vT0)
    A('v_lshl_add_u32 v%d, v%d, 4, v%d', vXD + 1, vXD + 1, vT0)
    A('v_add_u32 v%d, %d, v%d', vXD + 1, 8 * 896 - 1024, vXD + 1)
    A('v_add_u32 v%d, %d, v%d', vXD + 2, 2 * (8 * 896 - 1024), vXD)
    A('v_add_u32 v%d, %d, v%d', vXD + 3, 2 * (8 * 896 - 1024), vXD + 1)
    vW = 40
    A('v_lshrrev_b32 v%d, 2, v%d', vW, vL)
    A('v_mul_u32_u24 v%d, 2688, v%d', vW, vW)
    A('v_and_b32 v%d, 3, v%d', vT1, vL)
    A('v_lshl_add_u32 v%d, v%d, 4, v%d', vW, vT1, vW)
    A('s_mul_i32 s%d, s%d, 56', sT, sH)
    A('s_and_b32 s%d, s%d, 0xfffffff0', sT, sT)
    A('v_add_u32 v%d, s%d, v%d', vW, sT, vW)
    spread4(A, vW, 16 * 2688)
    A('s_mul_i32 s%d, s%d, %d', sXB, sTB, 128 * 896)
    A('s_mov_b32 s%d, s%d', sC, sC0)


def early_x(A):
    depth = E('XDEPTH', 16)
    wsig = ((depth - 4) // 4) % 4
    lag = (depth - 4 - 4 * wsig) // 16
    A('s_mov_b32 s%d, %d', sG, -lag)
    A('s_mov_b32 m0, %d', L_X)
    top = A.label('XL')
    A('%s:', top)
    A('s_lshl_b32 s%d, s%d, 7', sT, sC)
    A('s_add_u32 s%d, s%d, s%d', sT, sT, sXB)
    for w in range(4):
        A('s_waitcnt vmcnt(%d)', depth - 4)
        if w == wsig:
            A('s_max_i32 s%d, s%d, 0', sT2, sG)
            sig_dyn(A, sT2)
        for u in range(4):
            A('buffer_load_dwordx4 v%d, s[%d:%d], s%d offen offset:%d lds', vXD + u, SX, SX + 3, sT, u * 1024)
        A('s_add_u32 m0, m0, 4096')
        if w < 3:
            A('s_add_u32 s%d, s%d, %d', sT, sT, 32 * 896)
    rot_next(A)
    A('s_add_u32 s%d, s%d, 1', sG, sG)
    A('s_cmp_lt_i32 s%d, %d', sG, 7 - lag)
    A('s_cbranch_scc1 %s', top)
    stamp(A)
    for n in range(7 - lag, 8):
        A('s_waitcnt vmcnt(%d)', 16 * (7 - n))
        set_stage(A, n)


def early_w(A):
    vW = 40

    def part_loop(pi, depth, floor):
        lag = (depth - 4) // 4
        stamp(A)
        A('s_mov_b32 s%d, s%d', sC, sC0)
        A('s_mov_b32 s%d, %d', sG, 7 * pi - lag)
        A('s_mov_b32 m0, %d', L_WP[pi])
        top = A.label('WL')
        A('%s:', top)
        A('s_mul_i32 s%d, s%d, %d', sT, sC, 64 * 2688)
        A('s_add_u32 s%d, s%d, %d', sT, sT, (1, 2, 0)[pi] * 896)
        A('s_max_i32 s%d, s%d, %d', sT2, sG, floor)
        A('s_waitcnt vmcnt(%d)', depth - 4)
        sig_dyn(A, sT2)
        for u in range(4):
            A('buffer_load_dwordx4 v%d, s[%d:%d], s%d offen offset:%d lds', vW + u, SW, SW + 3, sT, u * 1024)
        A('s_add_u32 m0, m0, 4096')
        rot_next(A)
        A('s_add_u32 s%d, s%d, 1', sG, sG)
        A('s_cmp_lt_i32 s%d, %d', sG, 7 * pi + 7 - lag)
        A('s_cbranch_scc1 %s', top)
        return lag
    lag = part_loop(0, E('WDEPTH', 8), 0)
    for n in range(7 - lag, 8):
        A('s_waitcnt vmcnt(%d)', 4 * (7 - n))
        set_stage(A, n)
    wait_stage(A, 1)
    if E('XG2', 4) >= 0:
        wait_lp(A, ('x', E('XG2', 4)))
    part_loop(1, E('WDEPTH2', 24), 7)


def gen_h0(A):
    St = Stream(A, 4, E('WDEPTH2', 24), 14)
    St.issued = 56
    St.known = 56 - St.depth
    St.items = [(n + 1, 4 * n + 4) for n in range(14) if 4 * n + 4 > St.known]
    vW, vW128, vXo, vW256 = 36, 12, 16, 20
    q4 = lambda b: [b, b + 1, b + 2, b + 3]
    for u in range(4):
        A('v_mov_b32 v%d, v%d', vW + u, 40 + u)
    rest_srds(A)

    def wq():
        wait_stage(A, 2)
        stamp(A)
        for i in range(7):
            rot_idx(A, sT, sC0, i, 7)
            A('s_mul_i32 s%d, s%d, %d', sT, sT, 64 * 2688)
            St.dma4(L_WP[2] + i * 4096, q4(vW), SW)
            St.done(('W', 2, i))
    lend = A.label('LEND')
    act = A.label('ACT')
    A('s_cmp_lt_u32 s%d, 28', sI)
    A('s_cbranch_scc1 %s', act)
    keep, n0 = St.save(), _st['n']
    wq()
    St.drain()
    St.restore(keep)
    St.n = 14
    if E('TOUCH', 1):
        def touch(srd_, base, per_xcd, n):
            A('s_mul_i32 s%d, s%d, %d', sT, sXCD, per_xcd)
            A('s_sub_u32 s%d, s%d, 28', sT2, sI)
            A('s_mul_i32 s%d, s%d, %d', sT2, sT2, n * 8192)
            A('s_add_u32 s%d, s%d, s%d', sT, sT, sT2)
            A('s_add_u32 s%d, s%d, %d', sT, sT, base)
            A('s_mov_b32 s%d, %d', sC, n)
            lo = A.label('T')
            A('%s:', lo)
            A('buffer_load_dword v%d, v%d, s[%d:%d], s%d offen', vW + 1, vW, srd_, srd_ + 3, sT)
            A('s_add_u32 s%d, s%d, 8192', sT, sT)
            A('s_waitcnt vmcnt(%d)', E('TDEPTH', 6))
            A('s_sub_u32 s%d, s%d, 1', sC, sC)
            A('s_cmp_lg_u32 s%d, 0', sC)
            A('s_cbranch_scc1 %s', lo)
        A('v_lshlrev_b32 v%d, 7, v%d', vW, vL)
        if E('TEARLY', 0):
            wait_stage(A, 3, (5, 6), sleep=2)
        else:
            wait_stage(A, C0 + 5, sleep=2)
        stamp(A)
        if HLATE and not WTO:
            touch(SWS, WS_HB, 262144, 8)
        stamp(A)
        if not WT1:
            touch(SWS, WS_H1B, 8 * 112 * 1024, 28)
        stamp(A)
        if E('W2WARM', 0):
            touch(SW2, 0, 0, 49)
        stamp(A)
        if E('WBL2', 0):
            tag_compute(A)
            skipw = A.label('NW')
            if E('WBL2', 0) == 1:
                A('s_cmp_lg_u32 s%d, 28', sI)
                A('s_cbranch_scc1 %s', skipw)
            A('s_lshl_b32 s%d, s%d, 2', sC, sXCD)
            A('s_add_u32 s%d, s%d, s%d', sC, sC, sI)
            A('s_sub_u32 s%d, s%d, 28', sC, sC)
            A('s_lshl_b32 s%d, s%d, 8', sC, sC)
            A('s_add_u32 s%d, s%d, %d', sC, sC, F4)
            poll_global(A, sC, (1 << 56) - 1)
            A('buffer_wbl2 sc1')
            A('s_waitcnt vmcnt(0)')
            A('%s:', skipw)
    _st['n'] = n0
    A('s_branch %s', lend)
    A('%s:', act)
    off128(A, vW128)
    A('v_lshrrev_b32 v%d, 4, v%d', vW256, vL)
    A('v_mul_u32_u24 v%d, 3584, v%d', vW256, vW256)
    A('v_and_b32 v%d, 15, v%d', vT1, vL)
    A('v_lshrrev_b32 v%d, 2, v%d', vT0, vL)
    A('v_and_b32 v%d, 12, v%d', vT0, vT0)
    A('v_xor_b32 v%d, v%d, v%d', vT1, vT1, vT0)
    A('v_lshl_add_u32 v%d, v%d, 4, v%d', vW256, vT1, vW256)
    spread4(A, vW256, 4 * 3584)
    A('s_lshl_b32 s%d, s%d, 7', sB, sNB)

    sR1, sRO, sR2 = sG, sKH, sXB
    rot_calc(A, sR1, 'w1')
    rot_calc(A, sRO, 'wo')
    sBK, sBS = [8, 9], 10
    blk_init(A, sBK[0], sBS, 0)
    blk_init(A, sBK[1], sBS, 1)

    def w1_off(c):
        rot_idx(A, sT, sR1, c, 7)
        A('s_mul_i32 s%d, s%d, %d', sT, sT, 64 * 3584)
        A('s_lshl_b32 s%d, s%d, 8', sT2, sFB)
        A('s_add_u32 s%d, s%d, s%d', sT, sT, sT2)

    def w1_chunk(c):
        w1_off(c)
        for u in range(4):
            St.dma4(w1_slot(c) + u * 4096, q4(vW256), SW1, 16 * 3584 if u < 3 else None)
        St.done(('w1', c), 16)

    def w2_item(n):
        c, kh = n >> 1, n & 1
        A('s_mul_i32 s%d, s%d, %d', sT, sBK[kh], 128 * 896)
        A('s_add_u32 s%d, s%d, s%d', sT, sT, sB)
        if kh or (c & 1):
            A('s_add_u32 s%d, s%d, %d', sT, sT, (kh * 896 + (c & 1) * 64) * 896)
        if c & 1:
            blk_next(A, sBK[kh], sBS)
        for u in range(2):
            St.dma4(w2_slot(n) + u * 4096, q4(vW128), SW2, 32 * 896 if u < 1 else None)
        St.done(('w2', n), 8)

    SR = [24, 28] + list(range(40, 256, 4))

    def staged():
        for u in range(12):
            if u % 4 == 0:
                w1_off(4 + u // 4)
            reg4(St, SR[8 + 4 * u:12 + 4 * u], q4(vW256), SW1, 16 * 3584)
            if u == 5:
                St.depth = E('LDEPTH', 32)

    def wo():
        St.drain_to(3)
        wait_stage(A, 3)
        wait_word(A, 5, 1)
        stamp(A)
        for c in range(7):
            rot_idx(A, sC, sRO, c, 7)
            A('s_mul_i32 s%d, s%d, %d', sT, sC, 64 * 896)
            A('s_add_u32 s%d, s%d, s%d', sT, sT, sB)
            A('s_lshl_b32 s%d, s%d, 13', sC, sC)
            for u in range(2):
                St.dma4((sC, L_A + u * 4096), q4(vW128), SWO, 32 * 896 if u < 1 else None)
            if c == 2:
                St.depth = E('LDEPTH', 32)
        St.done('wo')
    def quiet():
        St.drain()
        if E('QLONG', 0):
            wait_stage(A, C0 + 5, sleep=1)
        else:
            wait_stage(A, 3, (5, 6), sleep=1)
    if E('ORDER', 1) == 0:
        wq(), wo(), staged()
    elif E('ORDER', 1) == 3:
        wq(), quiet(), wo(), staged()
    elif E('ORDER', 1) == 4:
        wq(), wo(), quiet(), staged()
    elif E('ORDER', 1) == 5:
        staged()
        St.depth = E('WDEPTH2', 24)
        wq(), wo(), quiet()
    else:
        if E('ORDER', 1) == 2:
            St.drain_to(2)
        staged()
        St.depth = E('WDEPTH2', 24)
        wq(), wo()
    stamp(A)
    wait_stage(A, 2, (5, 6))
    stamp(A)
    for c in range(4):
        w1_chunk(c)
    St.drain()
    stamp(A)
    wait_stage(A, C0 + 3)
    wait_word(A, 7, 9)
    spill(St, ('w1', 4), SR[8:24], w1_slot(4))
    wait_stage(A, 1, base=M_CP)
    spill(St, ('w1', 5), SR[24:40], w1_slot(5))
    spill(St, ('w1', 6), SR[40:56], w1_slot(6))
    stamp(A)
    wait_stage(A, C0 + 8, sleep=2)
    wait_lp(A, ('h', E('W2AFTER', 2), E('W2AFTERQ', 1)), 1)
    stamp(A)
    St.depth = E('W2DEPTH', 24)
    for n in range(28):
        if n in W2GATE:
            wait_stage(A, C0 + W2GATE[n])
        if n == 4:
            wait_word(A, 5, 7)
        if n == 19:
            stamp(A)
            St.depth = E('W2DEPTH3', 32)
        if n >= 19:
            m = W2RE[n]
            wait_stage(A, C0 + 13 + (m >> 1), (0, 1) if (m & 1) == 0 else (2, 3))
        w2_item(n)
    St.drain()
    stamp(A)
    A('%s:', lend)
    A('s_waitcnt lgkmcnt(0)')
    stamp_flush(A)
    A('s_endpgm')


def gen_h1(A):
    stamp(A)
    rest_srds(A)
    wtr_base(A)
    tag_compute(A)
    def extras():
        if WARM:
            for srd_, size in ((SWO, D * D * 2), (SW1, D * F * 2), (SW2, D * F * 2)):
                A('s_mul_i32 s%d, s2, %d', sT, size // 256)
                A('v_lshlrev_b32 v%d, 7, v%d', vT1, vL)
                A('s_mov_b64 exec, 0x%x', (1 << ((size // 256 + 127) // 128)) - 1) if size // 256 < 4096 else None
                if size // 256 >= 4096:
                    A('s_mov_b32 exec_hi, 0x%x', (1 << ((size // 256 + 127) // 128 - 32)) - 1)
                A('buffer_load_dword v64, v%d, s[%d:%d], s%d offen', vT1, srd_, srd_ + 3, sT)
                A('s_mov_b64 exec, -1')
        if E('TOUCH', 1) and not WTO:
            A('s_lshl_b32 s%d, s%d, 18', sT, sXCD)
            A('s_lshl_b32 s%d, s%d, 13', sT2, sI)
            A('s_add_u32 s%d, s%d, s%d', sT, sT, sT2)
            A('v_lshlrev_b32 v%d, 7, v%d', vT1, vL)
            for base in ([WS_OB] if MAP == 0 else []) + ([] if HLATE else [WS_HB]):
                A('s_add_u32 s%d, s%d, %d', sT2, sT, base)
                A('buffer_load_dword v64, v%d, s[%d:%d], s%d offen', vT1, SWS, SWS + 3, sT2)

    if TOUCHAT == 0:
        extras()
    A('s_mov_b32 s%d, 1', sG)
    cs = A.label('CSL')
    A('%s:', cs)
    colsum(A, sG)
    A('s_add_u32 s%d, s%d, 7', sT, sG)
    sig_dyn(A, sT)
    A('s_add_u32 s%d, s%d, 1', sG, sG)
    A('s_cmp_lt_u32 s%d, 3', sG)
    A('s_cbranch_scc1 %s', cs)
    if TOUCHAT == 2:
        extras()
    stamp(A)
    lend = A.label('LEND')
    A('s_cmp_ge_u32 s%d, 28', sI)
    A('s_cbranch_scc1 %s', lend)
    h_stream(A, 9)
    A('%s:', lend)
    A('s_waitcnt lgkmcnt(0)')
    stamp_flush(A)
    A('s_endpgm')


def gen_h23(A):
    vID, vAF, vVF, vAC, vG = 64, 72, 104, 136, 72
    rest_srds(A)
    sTL = sKH
    A('s_sub_u32 s%d, s%d, 5', sTL, sWV)
    skip = A.label('NOST')
    A('s_cmp_eq_u32 s%d, 1', sTL)
    A('s_cbranch_scc1 %s', skip)
    A('s_mul_i32 s%d, s%d, 1568', sT, sH)
    A('s_mov_b32 m0, %d', L_PHI)
    A('buffer_load_dwordx4 v%d, s[%d:%d], s%d offen lds', vO, SP, SP + 3, sT)
    A('buffer_load_dwordx4 v%d, s[%d:%d], s%d offen offset:1024 lds', vO, SP, SP + 3, sT)
    if CODEPF:
        A('s_mul_i32 s%d, s%d, %d', sT, sI, 1280)
        A('v_lshlrev_b32 v%d, 7, v%d', vT1, vL)
        A('v_add_u32 v%d, s%d, v%d', vT1, sT, vT1)
        A('s_mov_b64 exec, 0x3ff')
        A('global_load_dword v72, v%d, s[%d:%d]', vT1, sPC, sPC + 1)
        A('s_mov_b64 exec, -1')
    A('%s:', skip)
    if E('TLB', 0):
        A('v_lshlrev_b32 v%d, 20, v%d', vT1, vL)
        A('s_lshl_b32 s%d, s%d, 7', sT, sI)
        for srd_ in (SWS, SOUT, SWO, SW1, SW2):
            A('buffer_load_dword v73, v%d, s[%d:%d], s%d offen', vT1, srd_, srd_ + 3, sT)
    wtr_base(A)
    sel_frags(A, vID)
    sT16 = sZA
    tag_compute(A, sT16)
    if FAST:
        skip = A.label('NORG')
        A('s_cmp_eq_u32 s%d, 0', sTL)
        A('s_cbranch_scc1 %s', skip)
        A('s_getreg_b32 s%d, hwreg(HW_REG_XCC_ID)', sT2)
        A('s_and_b32 s%d, s%d, 15', sT2, sT2)
        A('s_add_u32 s%d, s%d, s%d', sT2, sT2, sTAG)
        A('v_mov_b32 v%d, s%d', vT0, sT2)
        A('s_lshl_b32 s%d, s%d, 7', sT, sXCD)
        A('s_lshl_b32 s%d, s%d, 2', sT2, sI)
        A('s_add_u32 s%d, s%d, s%d', sT, sT, sT2)
        A('s_add_u32 s%d, s%d, %d', sT, sT, FREG)
        A('s_mov_b64 exec, 1')
        A('buffer_store_dword v%d, v%d, s[%d:%d], s%d offen sc1', vT0, vO, SWS, SWS + 3, sT)
        A('s_mov_b64 exec, -1')
        A('%s:', skip)
    six, both = A.label('SIX'), A.label('BOTH')
    A('s_cmp_eq_u32 s%d, 1', sTL)
    A('s_cbranch_scc1 %s', six)
    colsum(A, sTL)
    A('s_waitcnt vmcnt(0)')
    A('s_branch %s', both)
    A('%s:', six)
    if FAST:
        wait_lp(A, ('x', 6), 2)
        fast_check(A)
        A('v_mov_b32 v%d, s%d', vT0, sFASTF)
        A('ds_write_b32 v%d, v%d offset:%d', vMI, vT0, M_FAST)
    A('%s:', both)
    set_stage(A, 1)
    stamp(A)
    A('s_lshl_b32 s%d, s%d, 11', sT2, sTL)
    A('v_add_u32 v%d, s%d, v%d', vTT, sT2, vO)
    A('v_add_u32 v%d, %d, v%d', vTT + 1, L_KVA, vTT)
    A('v_add_u32 v%d, %d, v%d', vTT + 2, L_KVV, vO)
    A('s_lshl_b32 s%d, s%d, 16', sXB, sH)
    A('s_add_u32 s%d, s%d, s%d', sXB, sXB, sT2)
    A('s_add_u32 s%d, s%d, %d', sXB, sXB, WS_KVP)
    A('s_lshl_b32 s%d, s%d, 12', sB, sTB)
    A('s_add_u32 s%d, s%d, s%d', sB, sB, sXB)
    A('s_lshl_b32 s%d, s%d, 1', sM0, sH)
    A('s_add_u32 s%d, s%d, s%d', sM0, sM0, sTL)
    FSH = E('F1SH', 8)
    A('s_lshl_b32 s%d, s%d, %d', sM0, sM0, 4 + FSH)
    A('s_add_u32 s%d, s%d, %d', sM0, sM0, F1)
    A('s_lshl_b32 s%d, s%d, 2', sFL, sTB)
    A('s_add_u32 s%d, s%d, s%d', sFL, sFL, sM0)
    A('s_lshl_b32 s%d, s%d, %d', sT, sTB, FSH)
    A('s_add_u32 s%d, s%d, s%d', sM0, sM0, sT)
    A('s_add_u32 s%d, s%d, s%d', sPC, SWS, sM0)
    A('s_addc_u32 s%d, s%d, 0', sPC + 1, SWS + 1)
    A('v_lshlrev_b32 v%d, %d, v%d', vXA, FSH, vL)
    A('v_lshlrev_b32 v%d, 2, v%d', vXA + 1, vL)
    vTA = 152
    wait_stage(A, C0)
    for k in range(8):
        A('ds_read_b128 %s, v%d offset:%d', v(vVF + 4 * k, 4), vTT + 1, (k >> 1) * 4096 + (k & 1) * 1024)
    for k in range(8):
        A('s_waitcnt lgkmcnt(%d)', 7 - k)
        mfma(A, vTA + 16 * (k >> 1), vVF + 4 * k, vID + 4 * (k & 1), (k & 1) == 0)
    for w in range(4):
        cvt8(A, vAF + 8 * w, vTA + 16 * w)

    def v_reads():
        for k in range(8):
            A('ds_read_b128 %s, v%d offset:%d', v(vVF + 4 * k, 4), vTT + 2, (k >> 1) * 4096 + (k & 1) * 1024)
        return 8
    wait_stage(A, C0 + 1, body=v_reads)
    stamp(A)
    for k in range(8):
        A('s_waitcnt lgkmcnt(%d)', 7 - k)
        mfma(A, vAC, vAF + 4 * k, vVF + 4 * k, k == 0)
    set_stage(A, 2)
    cvt8(A, vAF, vAC)
    TAGS = E('TAGS', 1)
    if TAGS:
        for q in range(2):
            A('v_and_b32 v%d, 0xffff, v%d', vAF + 4 * q + 3, vAF + 4 * q + 3)
            A('v_or_b32 v%d, s%d, v%d', vAF + 4 * q + 3, sT16, vAF + 4 * q + 3)
    pub_stores(A, [st4(vAF + 4 * q, sB, q * 1024) for q in range(2)], MAP == 3)
    if not TAGS:
        A('s_waitcnt vmcnt(0)')
    A('s_mov_b64 exec, 0xffff')
    two_ways(A, lambda B, bits: B('buffer_store_dword v%d, v%d, s[%d:%d], s%d offen%s', vTAG, vXA, SWS, SWS + 3, sFL,
                                  bits), MAP == 3)
    A('s_mov_b64 exec, -1')
    stamp(A)
    sRDY, sPND, sRET = sHI, sHI + 1, sPADL
    base = 68 if STAMPS else 72
    pol = A.label('POLL')
    B = sub(A)
    lo, out = B.label('P'), B.label('PD')
    B('%s:', pol)
    B('%s:', lo)
    if E('PSLEEP', 0):
        B('s_sleep %d', E('PSLEEP', 0))
    if E('SPOLL', 1) and MAP == 0:
        B('s_load_dwordx16 s[%d:%d], s[%d:%d], 0 glc', base, base + 15, sPC, sPC + 1)
        B('s_mov_b32 s%d, 0', sRDY)
        B('s_waitcnt lgkmcnt(%d)', E('PPIPE', 8))
        for p_ in range(15, -1, -1):
            B('s_cmp_eq_u32 s%d, s%d', base + p_, sTAG)
            B('s_addc_u32 s%d, s%d, s%d', sRDY, sRDY, sRDY)
    else:
        B('s_mov_b64 exec, 0xffff')
        B('buffer_load_dword v%d, v%d, s[%d:%d], s%d offen sc1', vT0, vXA + 1, SWS, SWS + 3, sM0)
        B('s_waitcnt vmcnt(0)')
        B('v_cmp_eq_u32 vcc, s%d, v%d', sTAG, vT0)
        B('s_mov_b64 exec, -1')
        B('s_mov_b32 s%d, vcc_lo', sRDY)
    B('s_sub_u32 s%d, s%d, 1', sSPIN, sSPIN)
    B('s_cselect_b32 s%d, -1, s%d', sRDY, sRDY)
    B('s_and_b32 s%d, s%d, s%d', sRDY, sRDY, sPND)
    B('s_cbranch_scc0 %s', lo)
    B('s_setpc_b64 s[%d:%d]', sRET, sRET + 1)
    over = A.label('OV')
    A('s_not_b32 s%d, s%d', base, sTAG)
    A('s_mov_b32 s%d, s%d', base + 1, base)
    for k in range(2, 16, 2):
        A('s_mov_b64 s[%d:%d], s[%d:%d]', base + k, base + k + 1, base, base + 1)
    A('s_branch %s', over)
    A.lines += B.lines
    A('%s:', over)
    A('s_mov_b32 s%d, 0', sRDY)
    A('s_mov_b32 s%d, 0xffff', sPND)
    vCK = vXA + 2
    A('v_mov_b32 v%d, 0', vCK)
    A('s_nop 1')
    vG = [72 + 4 * k for k in range(16)] + [152 + 4 * k for k in range(16)]
    GD = E('GLAG', 8)

    def gmm(k, issued):
        for q in range(2):
            A('s_waitcnt vmcnt(%d)', 2 * issued - (2 * k + q) - 1)
            mfma(A, vAC, vID + 4 * q, vG[2 * k + q], k == 0 and q == 0)
            if TAGS:
                A('v_xor_b32 v%d, s%d, v%d', vCK + 1, sT16, vG[2 * k + q] + 3)
                A('v_or_b32 v%d, v%d, v%d', vCK, vCK, vCK + 1)
    for k in range(16):
        A('s_getpc_b64 s[%d:%d]', sRET, sRET + 1)
        A('s_cmp_eq_u32 s%d, 0', sRDY)
        A('s_cbranch_scc1 %s', pol)
        A('s_ff1_i32_b32 s%d, s%d', sT, sRDY)
        A('s_bitset0_b32 s%d, s%d', sRDY, sT)
        A('s_bitset0_b32 s%d, s%d', sPND, sT)
        A('s_lshl_b32 s%d, s%d, 12', sT, sT)
        A('s_add_u32 s%d, s%d, s%d', sT, sT, sXB)
        if E('ABL', 0) & 32:
            A('s_mov_b32 s%d, s%d', sT, sB)
        for q in range(2):
            A('buffer_load_dwordx4 %s, v%d, s[%d:%d], s%d offen offset:%d sc1', v(vG[2 * k + q], 4), vO, SWS, SWS + 3,
              sT, q * 1024)
        if k == E('GST', 15):
            stamp(A)
        if k >= GD:
            gmm(k - GD, k + 1)
    for k in range(16 - GD, 16):
        gmm(k, 16)
    if TAGS:
        ok = A.label('TOK')
        A('v_cmp_lt_u32 vcc, 0xffff, v%d', vCK)
        spin_guard(A, ok)
        A('s_nop 15')
        A('s_cbranch_vccnz %s', over)
        A('%s:', ok)
    A('v_add_u32 v%d, %d, v%d', vTT, L_EX, vTT)
    cvt8(A, 72, vAC)
    for q in range(2):
        A('ds_write_b128 v%d, %s offset:%d', vTT, v(72 + 4 * q, 4), q * 1024)
    set_stage(A, 3)
    stamp(A)
    lend = A.label('LEND')
    A('s_cmp_ge_u32 s%d, 28', sI)
    A('s_cbranch_scc1 %s', lend)
    A('s_cmp_eq_u32 s%d, 1', sTL)
    A('s_cbranch_scc1 %s', lend)
    A('v_lshlrev_b32 v%d, 2, v%d', vCA, vL)
    A('v_add_u32 v%d, %d, v%d', vTT + 2, L_EX, vO)
    wait_stage(A, C0 + 7, sleep=2)
    HELP['hot'] = bool(E('STHOT', 0))
    for gi in range(4):
        wait_lp(A, ('hs', gi), 1)
        if E('STPRIO', 2) != 2:
            A('s_setprio %d', E('STPRIO', 2))
        base = L_SC0 + gi * 4096
        for q in range(7):
            A('ds_read2st64_b32 v[%d:%d], v%d offset0:%d offset1:%d', 72 + 2 * q, 73 + 2 * q, vCA,
              base // 256 + 2 * q, base // 256 + 2 * q + 1)
        A('s_waitcnt lgkmcnt(0)')
        for q in range(2, 14):
            A('v_add_f32 v%d, v%d, v%d', 72 + (q & 1), 72 + (q & 1), 72 + q)
        A('v_add_f32 v%d, v72, v73', vTT)
        ln_finish(A, vTT, vTT + 1, vNM, vRS)
        hilo_m(A, vNM, 88, vT0)
        A('v_mul_f32 v90, v%d, v%d', vTT + 1, vRS)
        A('v_mul_f32 v91, 0x%x, v%d', LOG2E ^ 0x80000000, vRS)
        A('ds_write_b128 v%d, v[88:91] offset:%d', vTT + 2, gi * 1024)
        set_stage(A, 4 + gi)
    HELP['hot'] = False
    A('%s:', lend)
    A('s_waitcnt lgkmcnt(0)')
    stamp_flush(A)
    A('s_endpgm')


def refresh_routines(A):
    for w in (7, 4):
        A('REFRESH_%d:', w)
        if w == 5:
            A('ds_read_b32 v%d, v%d', vPW, vCA)
        else:
            A('ds_read_b32 v%d, v%d offset:%d', vPW, vMI, M_PW + 4 * w)
        if E('CSLP', 0):
            A('s_mov_b32 vcc_hi, s%d', CACHE[w])
        A('s_waitcnt lgkmcnt(0)')
        A('v_readfirstlane_b32 s%d, v%d', CACHE[w], vPW)
        if E('CSLP', 0):
            A('s_cmp_lg_u32 vcc_hi, s%d', CACHE[w])
            A('s_cbranch_scc1 REFD_%d', w)
            A('s_sleep %d', E('CSLP', 0))
            A('REFD_%d:', w)
        A('s_sub_u32 s%d, s%d, 1', sSPIN, sSPIN)
        A('s_cselect_b32 s%d, -1, s%d', CACHE[w], CACHE[w])
        A('s_setpc_b64 s[%d:%d]', sPC, sPC + 1)


def gen_compute(A):
    vPH, vID, vWF, vAC, vPK = 40, 48, 56, 88, 120
    vMF, vCF = 136, 140
    vE = vWF
    vAC2 = vAC + 16
    vX = vXR
    A('s_setprio %d', E('CPRIO', 1))
    rest_srds(A)
    A('s_lshl_b32 s%d, s%d, 12', sM0, sWV)
    A('v_and_b32 v%d, 31, v%d', vT0, vL)
    A('v_lshlrev_b32 v%d, 7, v%d', vTT, vT0)
    A('v_add_u32 v%d, s%d, v%d', vTT, sM0, vTT)
    A('v_bfe_u32 v%d, v%d, 1, 3', vT0, vL)
    A('v_lshrrev_b32 v%d, 5, v%d', vT1, vL)
    A('v_xor_b32 v%d, v%d, v%d', vT0, vT0, vT1)
    for q in range(4):
        A('v_xor_b32 v%d, %d, v%d', vXA + q, 2 * q, vT0)
        A('v_lshl_add_u32 v%d, v%d, 4, v%d', vXA + q, vXA + q, vTT)
    wtr_base(A)
    for r in (vSM, vSM + 1, vSQ, vSQ + 1, vMF + 2, vMF + 3, vCF + 2, vCF + 3):
        A('v_mov_b32 v%d, 0', r)
    A('s_mov_b32 s%d, 0', sHI)
    A('s_mov_b32 s%d, -1', sHI + 1)
    A('s_bitcmp1_b32 s%d, 0', sH)
    A('s_cselect_b32 s%d, 0xf, 0xf0000000', sPADL)
    A('s_mov_b32 s%d, s%d', sPADL + 1, sPADL)
    A('s_cselect_b32 s%d, -1, 0', sZA)
    A('s_mov_b32 s%d, 0', sZA + 1)
    A('s_mov_b32 s%d, 0', sZB)
    A('s_cselect_b32 s%d, 0, -1', sZB + 1)
    A('s_cselect_b64 s[%d:%d], -1, 0', sODD, sODD + 1)
    vPA = vRA
    A('v_bfe_u32 v%d, v%d, 2, 2', vT0, vL)
    A('v_lshrrev_b32 v%d, 5, v%d', vT1, vL)
    A('v_lshl_add_u32 v%d, v%d, 2, v%d', vT0, vT1, vT0)
    A('v_mul_u32_u24 v%d, 56, v%d', vT0, vT0)
    A('v_and_b32 v%d, 3, v%d', vT1, vL)
    A('v_bfe_u32 v%d, v%d, 4, 1', vTT, vL)
    A('v_lshl_add_u32 v%d, v%d, 2, v%d', vT1, vTT, vT1)
    A('v_min_u32 v%d, 6, v%d', vT1, vT1)
    A('v_lshl_add_u32 v%d, v%d, 3, v%d', vT0, vT1, vT0)
    A('s_and_b32 s%d, s%d, 1', sT, sH)
    A('s_mul_i32 s%d, s%d, 224', sT, sT)
    A('s_sub_u32 s%d, %d, s%d', sT, L_PHI, sT)
    A('v_add_u32 v%d, s%d, v%d', vPA, sT, vT0)
    tag_compute(A)

    def mm1(B, acc, i, q, swap):
        buf = vWF + 16 * (i & 1)
        xf, wf = vX + (4 * i + q) * 4, buf + 4 * q
        if swap:
            mfma(B, acc, xf, wf, i == 0 and q == 0)
        else:
            mfma(B, acc, wf, xf, i == 0 and q == 0)

    def rw2(Q, pi, i, q):
        buf = vWF + 16 * (i & 1)
        for z in range(2):
            Q.op(('w', i, q), 'ds_read_b64_tr_b16 v[%d:%d], v%d offset:%d', buf + 4 * q + 2 * z, buf + 4 * q + 2 * z + 1,
                 vWA + pi, i * 4096 + q * 1024 + z * 256)

    vXH = vXD
    for q in range(4):
        A('v_add_u32 v%d, 0x10000, v%d', vXH + q, vXA + q)
    Q = LdsQ(A)
    for i in range(7):
        if i:
            stamp(A, 'k')
        HELP['inline'] = i < E('KINL', 2)
        wait_lp(A, ('x', i))
        HELP['inline'] = False
        stamp(A, 'k')
        for q in range(4):
            Q.op(('x', i), 'ds_read_b128 %s, v%d offset:%d', v(vX + (4 * i + q) * 4, 4), (vXA if i < 4 else vXH) + q,
                 (i & 3) * 16384)
        if i in (1, 3):
            Q.stage((i + 1) // 2)
        wait_lp(A, ('W', 0, i))
        for q in range(4):
            if i > 0:
                Q.wait(('w', i - 1, q))
                mm1(A, vAC, i - 1, q, False)
            rw2(Q, 0, i, q)
        if i < 6:
            Q.op('pk2', 'ds_read_b128 v[%d:%d], v%d offset:%d', vTT, vTT + 3, vMI, M_PW + 16)
        Q.wait(('x', i))
        for r in range(16):
            x = vX + 16 * i + r
            A('v_dot2c_f32_bf16 v%d, s%d, v%d', vSM + (r & 1), sONES, x)
            A('v_dot2c_f32_bf16 v%d, v%d, v%d', vSQ + (r & 1), x, x)
        if i < 6:
            Q.wait('pk2')
            A('v_readfirstlane_b32 s%d, v%d', sPROG, vTT)
            A('v_readfirstlane_b32 s%d, v%d', sPROG1, vTT + 3)
    Q.stage(3)
    B = sub(A)
    B('v_add_f32 v%d, v%d, v%d', vSM, vSM, vSM + 1)
    B('v_add_f32 v%d, v%d, v%d', vSQ, vSQ, vSQ + 1)
    B('v_permlane32_swap_b32 v%d, v%d', vSM, vSQ)
    B('v_add_f32 v%d, v%d, v%d', vT0, vSM, vSQ)
    ln_finish(B, vT0, vT1, vNM, vRS)
    hilo_m(B, vNM, vMF, vT0)
    B('v_mul_f32 v%d, 0x%x, v%d', vSC, LOG2E, vRS)
    M = sub(A)
    Q.A = M
    for q in range(4):
        Q.wait(('w', 6, q))
        mm1(M, vAC, 6, q, False)
    A.lines += merge(M.lines, [[l] for l in B.lines], 0, 4)

    def cf_phi_reads():
        A('ds_read_b64 v[%d:%d], v%d', vCF, vCF + 1, vCA)
        for sidx in range(2):
            for z in range(2):
                A('ds_read_b64_tr_b16 v[%d:%d], v%d offset:%d', vPH + 4 * sidx + 2 * z, vPH + 4 * sidx + 2 * z + 1,
                  vPA, (16 * sidx + 8 * z) * 56)
        return 5
    stamp(A, 'v')
    wait_word(A, 5, 1, body=cf_phi_reads)
    stamp(A)
    stamp(A, 'v')
    A('s_waitcnt lgkmcnt(4)')

    def project(mid=None):
        mfma(A, vAC, vCF, vMF)
        if mid:
            mid()
        cvt8(A, vPK, vAC)
        mfma(A, vAC, vPH, vPK, True)
        mfma(A, vAC, vPH + 4, vPK + 4)

    def mid_k():
        A('v_and_b32 v%d, 31, v%d', vT0, vL)
        A('s_lshl_b32 s%d, s%d, 7', sT, sWV)
        A('s_add_u32 s%d, s%d, %d', sT, sT, L_RSTD)
        A('v_lshl_add_u32 v%d, v%d, 2, s%d', vT0, vT0, sT)
        A('s_waitcnt lgkmcnt(0)')
        A('ds_write_b32 v%d, v%d', vT0, vRS)
        A('v_lshrrev_b32 v%d, 5, v%d', vRA, vL)
        A('v_lshl_add_u32 v%d, v%d, 4, s%d', vRA, vRA, sT)
        for r in (0, 1):
            A('v_cndmask_b32 v%d, v%d, 0, s[%d:%d]', vPH + r, vPH + r, sZA, sZA + 1)
            A('v_cndmask_b32 v%d, v%d, 0, s[%d:%d]', vPH + 6 + r, vPH + 6 + r, sZB, sZB + 1)

    def gemm_head(B, pi):
        Q = LdsQ(B)
        wait_lp(B, ('W', pi, 0))
        for q in range(4):
            rw2(Q, pi, 0, q)
        return Q

    def gemm_part(B, acc, pi, swap, last_stage=None, Q=None):
        if Q is None:
            Q = gemm_head(B, pi)
        for i in range(7):
            if i == 6 and last_stage:
                Q.stage(last_stage)
            if pi == 1 and i in (0, 2, 4, 6):
                stamp(B, 'v')
            for q in range(4):
                Q.wait(('w', i, q))
                if q == 0:
                    Q.take(4)
                mm1(B, acc, i, q, swap)
                if i < 6:
                    if q == 0:
                        wait_lp(B, ('W', pi, i + 1))
                        if i < 5:
                            Q.peek(4)
                    rw2(Q, pi, i + 1, q)

    vOW = vXD
    A('v_add_u32 v%d, s%d, v%d', vOW, sM0, vO)
    A('v_add_u32 v%d, %d, v%d', vOW, L_KVA, vOW)
    project(mid_k)
    stamp(A, 'v')
    B = sub(A)
    softmax_pm(B, vAC, vSC, vPK, vTT)
    A.lines += B.lines[:-30]
    Q = gemm_head(A, 1)
    A.lines += B.lines[-30:]
    for q, src in enumerate((vAC, vAC + 4, vPK, vPK + 4)):
        Q.op('pw', 'ds_write_b128 v%d, %s offset:%d', vOW, v(src, 4), q * 1024)
    Q.stage(C0)
    for q in range(4):
        Q.op('rs', 'ds_read_b128 %s, v%d offset:%d', v(vAC + 4 * q, 4), vRA, q * 32)
    stamp(A, 'v')
    gemm_part(A, vAC2, 1, True, None, Q)
    stamp(A, 'v')

    def cfv_reads():
        A('ds_read_b64 v[%d:%d], v%d offset:%d', vCF, vCF + 1, vCA, 512)
        return 1
    wait_word(A, 7, 8, body=cfv_reads)
    stamp(A, 'v')
    A('s_waitcnt lgkmcnt(0)')
    mfma(A, vAC2, vMF, vCF)
    A('v_mov_b32 v%d, 0x%x', vT1, ONES)
    for r in range(0, 16, 2):
        A('v_pk_mul_f32 v[%d:%d], v[%d:%d], v[%d:%d]', vAC2 + r, vAC2 + r + 1, vAC2 + r, vAC2 + r + 1, vAC + r,
          vAC + r + 1)
    cvt8(A, vPK, vAC2)
    for r in range(8):
        A('v_cndmask_b32 v%d, v%d, v%d, s[%d:%d]', vPK + r, vPK + r, vT1, sPADL, sPADL + 1)
    for q in range(2):
        A('ds_write_b128 v%d, %s offset:%d', vOW, v(vPK + 4 * q, 4), L_KVV - L_KVA + q * 1024)
    set_stage(A, C0 + 1)
    stamp(A)
    stamp(A, 'v')
    gemm_part(A, vAC, 2, False, C0 + 3)
    vHP, vRX, vRO = 120, 48, vSM + 1

    def unpack_hp(src=120):
        for r in range(8):
            A('v_lshlrev_b32 v%d, 16, v%d', vAC + 2 * r, src + r)
            A('v_and_b32 v%d, 0xffff0000, v%d', vAC + 2 * r + 1, src + r)
    A('s_and_b32 s%d, s%d, 1', sG, sWV)
    A('s_lshr_b32 s%d, s%d, 1', sKH, sWV)
    A('s_lshl_b32 s%d, s%d, 1', sT, sTQ)
    A('s_add_u32 s%d, s%d, s%d', sG, sG, sT)
    A('v_and_b32 v%d, 31, v%d', vRO, vL)
    A('v_mul_u32_u24 v%d, 896, v%d', vRO, vRO)
    A('v_lshrrev_b32 v%d, 5, v%d', vT1, vL)
    A('v_lshl_add_u32 v%d, v%d, 4, v%d', vRO, vT1, vRO)
    A('s_mul_i32 s%d, s%d, %d', sT, sG, 32 * 896)
    A('s_lshl_b32 s%d, s%d, 7', sT2, sNB)
    A('s_add_u32 s%d, s%d, s%d', sT, sT, sT2)
    A('s_lshl_b32 s%d, s%d, 6', sT2, sKH)
    A('s_add_u32 s%d, s%d, s%d', sT, sT, sT2)
    A('v_add_u32 v%d, s%d, v%d', vRO, sT, vRO)
    for q in range(2):
        A('buffer_load_dwordx4 %s, v%d, s[%d:%d], 0 offen offset:%d', v(vRX + 4 * q, 4), vRO, SX, SX + 3, q * 32)

    def cfq_reads():
        A('ds_read_b64 v[%d:%d], v%d offset:%d', vCF, vCF + 1, vCA, 2 * 512)
        return 1
    wait_word(A, 7, 9, body=cfq_reads)
    A('s_waitcnt lgkmcnt(0)')
    project()
    softmax_pm(A, vAC, vSC, vPK, vTT)
    vQF = [vAC, vAC + 4, vPK, vPK + 4]
    stamp(A)
    vW1A = vXA
    A('v_bfe_u32 v%d, v%d, 2, 2', vT0, vL)
    A('v_lshrrev_b32 v%d, 5, v%d', vT1, vL)
    A('v_lshl_add_u32 v%d, v%d, 2, v%d', vT1, vT1, vT0)
    A('v_lshlrev_b32 v%d, 8, v%d', vW1A, vT1)
    A('v_lshlrev_b32 v%d, 7, v%d', vWA, vT1)
    A('v_xor_b32 v%d, s%d, v%d', vT0, sWV, vT0)
    A('v_lshl_add_u32 v%d, v%d, 6, v%d', vW1A, vT0, vW1A)
    A('v_bfe_u32 v%d, v%d, 4, 1', vT1, vL)
    A('v_lshlrev_b32 v%d, 5, v%d', vT1, vT1)
    A('v_and_b32 v%d, 3, v%d', vT0, vL)
    A('v_lshl_add_u32 v%d, v%d, 3, v%d', vT1, vT0, vT1)
    A('v_add_u32 v%d, v%d, v%d', vW1A, vW1A, vT1)
    A('v_add_u32 v%d, 0x8000, v%d', vW1A + 1, vW1A)
    A('v_add_u32 v%d, v%d, v%d', vWA, vWA, vT1)
    A('v_bfe_u32 v%d, v%d, 3, 1', vT1, vL)
    A('v_lshl_add_u32 v%d, v%d, 6, v%d', vWA, vT1, vWA)

    def w1_copy(c):
        wait_lp(A, ('w1', c))
        for q in range(4):
            for z in range(2):
                off = w1_slot(c) + (16 * q + 8 * z) * 256
                base = vW1A
                if off >= 0x8000:
                    off -= 0x8000
                    base += 1
                r = vXR + (4 * c + q) * 4 + 2 * z
                A('ds_read_b64_tr_b16 v[%d:%d], v%d offset:%d', r, r + 1, base, off)

    sCPD = sXB
    A('s_mov_b32 s%d, 0', sCPD)

    def try_copy(block):
        skip = A.label('NC')
        A('s_cmp_lg_u32 s%d, 0', sCPD)
        A('s_cbranch_scc1 %s', skip)
        if not block:
            if block is not None:
                A('ds_read_b32 v%d, v%d offset:%d', vPW, vMI, M_PW + 16)
                A('s_waitcnt lgkmcnt(0)')
            A('v_readfirstlane_b32 s%d, v%d', sPROG, vPW)
            A('s_cmp_lt_u32 s%d, %d', sPROG, LP[('w1', 1)][1])
            A('s_cbranch_scc1 %s', skip)
        w1_copy(0)
        w1_copy(1)
        A('s_mov_b32 s%d, 1', sCPD)
        A('v_mov_b32 v%d, 1', vT0)
        A('ds_write_b32 v%d, v%d offset:%d', vMY, vT0, M_CP)
        A('%s:', skip)
    A('s_lshl_b32 s%d, s%d, 2', sFL, sTB)
    A('s_add_u32 s%d, s%d, s%d', sFL, sFL, sWV)
    A('s_lshl_b32 s%d, s%d, 4', sFL, sFL)
    A('s_add_u32 s%d, s%d, s%d', sFL, sFL, sH)
    A('s_lshl_b32 s%d, s%d, 11', sB, sFL)
    A('s_add_u32 s%d, s%d, %d', sB, sB, WS_OB)
    if MAP == 0:
        A('s_lshl_b32 s%d, s%d, 2', sFL, sFL)
        A('s_add_u32 s%d, s%d, %d', sFL, sFL, F2)
    else:
        A('s_lshr_b32 s%d, s%d, 3', sFL, sFL)
        A('s_lshl_b32 s%d, s%d, 10', sFL, sFL)
        A('s_and_b32 s%d, s%d, 7', sT, sH)
        A('s_lshl_b32 s%d, s%d, 2', sT, sT)
        A('s_add_u32 s%d, s%d, s%d', sFL, sFL, sT)
        A('s_add_u32 s%d, s%d, %d', sFL, sFL, F2X)
    vEX = vXD + 1
    A('v_add_u32 v%d, %d, v%d', vEX, L_EX, vO)

    def ex_reads():
        for q in range(4):
            A('ds_read_b128 %s, v%d offset:%d', v(vWF + 4 * q, 4), vEX, q * 1024)
        return 4
    lo, done = A.label('W'), A.label('WD')
    A('%s:', lo)
    A('ds_read_b128 v[%d:%d], v%d offset:%d', vPW, vPW + 3, vMI, M_PW + 16)
    A('ds_read_b32 v%d, v%d offset:%d', vPK_, vMI, M_FAST)
    ex_reads()
    A('s_waitcnt lgkmcnt(4)')
    A('v_readfirstlane_b32 s%d, v%d', sFASTF, vPK_)
    A('v_min_u32 v%d, v%d, v%d', vPW + 1, vPW + 1, vPW + 2)
    A('v_readfirstlane_b32 s%d, v%d', sT, vPW + 1)
    spin_guard(A, done)
    A('s_cmp_ge_u32 s%d, 3', sT)
    A('s_cbranch_scc1 %s', done)
    try_copy(None)
    if E('CSLP', 0):
        A('s_sleep %d', E('CSLP', 0))
    A('s_branch %s', lo)
    A('%s:', done)
    stamp(A)
    for q in range(4):
        A('s_waitcnt lgkmcnt(%d)', 3 - q)
        mfma(A, vAC2, vWF + 4 * q, vQF[q], q == 0)
    A('v_cndmask_b32 v%d, v%d, v%d, s[%d:%d]', vT0, vAC2 + 12, vAC2, sODD, sODD + 1)
    A('v_mov_b32 v%d, v%d', vT1, vT0)
    A('v_permlane32_swap_b32 v%d, v%d', vT0, vT1)
    A('v_cndmask_b32 v%d, v%d, v%d, s[%d:%d]', vTT, vT1, vT0, sODD, sODD + 1)
    A('v_add_f32 v%d, 0x%x, v%d', vTT, 0x358637bd, vTT)
    A('v_rcp_f32 v%d, v%d', vTT, vTT)
    for r in range(0, 16, 2):
        A('v_pk_mul_f32 v[%d:%d], v[%d:%d], v[%d:%d] op_sel_hi:[1,0]', vAC2 + r, vAC2 + r + 1, vAC2 + r, vAC2 + r + 1,
          vTT, vTT + 1)
    cvt8(A, vPK, vAC2)
    for r in (0, 1):
        A('v_cndmask_b32 v%d, v%d, 0, s[%d:%d]', vPK + r, vPK + r, sZA, sZA + 1)
        A('v_cndmask_b32 v%d, v%d, 0, s[%d:%d]', vPK + 6 + r, vPK + 6 + r, sZB, sZB + 1)
    pub_stores(A, [st4(vPK + 4 * q, sB, q * 1024) for q in range(2)], MAP == 0 and not WTO)
    A('s_waitcnt vmcnt(2)')
    for q in range(2):
        A('v_permlane32_swap_b32 v%d, v%d', vRX + 4 * q, vRX + 4 * q + 2)
        A('v_permlane32_swap_b32 v%d, v%d', vRX + 4 * q + 1, vRX + 4 * q + 3)
    unpack_hp(vRX)
    A('s_lshl_b32 s%d, s%d, 6', sT, sKH)
    A('v_xor_b32 v%d, s%d, v%d', vWA, sT, vWA)
    A('v_xor_b32 v%d, 64, v%d', vWA + 1, vWA)
    A('s_mul_i32 s%d, s%d, %d', sT, sKH, 224 * 128)
    A('s_add_u32 s%d, s%d, %d', sT, sT, L_A)
    A('v_add_u32 v%d, s%d, v%d', vWA + 2, sT, vWA)
    A('v_add_u32 v%d, s%d, v%d', vWA + 3, sT, vWA + 1)
    vSW, vSR, vPP = vXA + 2, vXA + 3, vSM
    A('s_and_b32 s%d, s%d, 1', sC, sWV)
    A('s_lshl_b32 s%d, s%d, 12', sC, sC)
    A('v_add_u32 v%d, s%d, v%d', vSW, sC, vO)
    A('s_cmp_eq_u32 s%d, 0', sKH)
    A('s_cselect_b32 s%d, %d, %d', sT, L_SC0 >> 12, L_SC1 >> 12)
    A('s_cselect_b32 s%d, %d, %d', sT2, L_SC1 >> 12, L_SC0 >> 12)
    A('s_lshl_b32 s%d, s%d, 12', sT, sT)
    A('s_lshl_b32 s%d, s%d, 12', sT2, sT2)
    A('v_add_u32 v%d, s%d, v%d', vSR, sT2, vSW)
    A('v_add_u32 v%d, s%d, v%d', vSW, sT, vSW)
    A('v_xor_b32 v%d, 8, v%d', vPP, vMY)
    A('s_lshl_b32 s%d, s%d, 15', sB, sG)
    A('s_lshl_b32 s%d, s%d, 14', sT, sKH)
    A('s_add_u32 s%d, s%d, s%d', sB, sB, sT)
    A('s_add_u32 s%d, s%d, %d', sB, sB, WS_OB)
    if MAP == 0:
        A('s_lshl_b32 s%d, s%d, 6', sC, sG)
        A('s_lshl_b32 s%d, s%d, 5', sT, sKH)
        A('s_add_u32 s%d, s%d, s%d', sC, sC, sT)
        A('s_add_u32 s%d, s%d, %d', sC, sC, F2)
        pub_flag(A, sFL, True)
    else:
        A('s_lshl_b32 s%d, s%d, 11', sC, sG)
        A('s_lshl_b32 s%d, s%d, 10', sT, sKH)
        A('s_add_u32 s%d, s%d, s%d', sC, sC, sT)
        A('s_lshl_b32 s%d, s%d, 7', sT, sNB)
        A('s_add_u32 s%d, s%d, s%d', sC, sC, sT)
        A('s_add_u32 s%d, s%d, %d', sC, sC, F2X)
        A('v_lshlrev_b32 v%d, 7, v%d', vT1, vL)
        if not E('NODRAIN2', 0):
            A('s_waitcnt vmcnt(0)')
        A('s_mov_b64 exec, 0x7f')
        A('buffer_store_dword v%d, v%d, s[%d:%d], s%d offen sc1', vTAG, vT1, SWS, SWS + 3, sFL)
        A('s_mov_b64 exec, -1')
    set_stage(A, C0 + 5)
    stamp(A)
    fin = A.label('FIN')
    A('s_cmp_ge_u32 s%d, 28', sI)
    A('s_cbranch_scc1 %s', fin)

    vB2 = [40 + 4 * k for k in range(8)] + [224 + 4 * k for k in range(8)]
    vWF2 = 72
    try_copy(False)
    wait_lp(A, 'wo')

    def wo_row(k):
        hh = k // 2
        return 28 * hh - 4 * (hh & 1) + 16 * (k & 1)

    Q = LdsQ(A)
    LAG = E('P2LAG', 5)

    def read_wo(k, nt):
        buf = vWF2 + 8 * nt + 4 * (k & 1)
        for z in range(2):
            Q.op(('w', k, nt), 'ds_read_b64_tr_b16 v[%d:%d], v%d offset:%d', buf + 2 * z, buf + 2 * z + 1,
                 vWA + 2 + nt, (wo_row(k) + 8 * z) * 128)

    read_wo(0, 1)
    read_wo(0, 0)
    if MAP == 3 and E('SPOLL', 1):
        poll_scalar(A, sC, 8)
    else:
        poll_global(A, sC, 8)
    stamp(A)
    stamp(A, 'p2')
    sOB = sM0
    A('s_mov_b32 s%d, s%d', sOB, sB)

    def ld_o(k):
        A('buffer_load_dwordx4 %s, v%d, s[%d:%d], s%d offen offset:%d sc1', v(vB2[k], 4), vO, SWS, SWS + 3, sOB,
          (k & 3) * 1024)
        if (k & 3) == 3:
            A('s_add_u32 s%d, s%d, 4096', sOB, sOB)
    P2I = E('P2INFL', 8)
    for k in range(P2I):
        ld_o(k)
    A('s_lshl_b32 s%d, s%d, 1', sT2, sNB)
    A('s_add_u32 s%d, s%d, s%d', sT2, sT2, sKH)
    A('s_lshl_b32 s%d, s%d, 15', sB, sG)
    A('s_add_u32 s%d, s%d, %d', sB, sB, WS_HB)
    A('s_lshl_b32 s%d, s%d, 8', sC, sT2)
    A('s_add_u32 s%d, s%d, s%d', sC, sC, sB)
    A('s_lshl_b32 s%d, s%d, 11', sT, sT2)
    A('s_add_u32 s%d, s%d, s%d', sB, sB, sT)
    A('s_add_u32 s%d, s%d, 4096', sB, sB)
    A('s_lshl_b32 s%d, s%d, 2', sFL, sT2)
    A('s_lshl_b32 s%d, s%d, 6', sT, sG)
    A('s_add_u32 s%d, s%d, s%d', sFL, sFL, sT)
    A('s_add_u32 s%d, s%d, %d', sFL, sFL, F3)
    for k in range(16 + LAG):
        if k < 16:
            if k < 15:
                read_wo(k + 1, 1)
            Q.wait(('w', k, 1), min(15, P2I + k - 1) - k)
            if k % 4 == 0:
                stamp(A, 'p2')
            mfma(A, vAC + 16, vWF2 + 8 + 4 * (k & 1), vB2[k], k == 0)
            if P2I + k < 16:
                ld_o(P2I + k)
        j = k - LAG
        if j >= 0:
            if j < 15:
                read_wo(j + 1, 0)
            Q.wait(('w', j, 0))
            mfma(A, vAC, vWF2 + 4 * (j & 1), vB2[j])
        if k == 16 and LAG >= 2:
            for q in range(4):
                Q.op('x', 'ds_write_b128 v%d, %s offset:%d', vSW, v(vAC + 16 + 4 * q, 4), q * 1024)
            Q.stage(C0 + 6)
    stamp(A)

    def exchange(st, sent=False):
        if not sent:
            for q in range(4):
                A('ds_write_b128 v%d, %s offset:%d', vSW, v(vAC + 16 + 4 * q, 4), q * 1024)
            set_stage(A, st)
        lo, done = A.label('W'), A.label('WD')
        A('%s:', lo)
        A('ds_read_b32 v%d, v%d', vPW, vPP)
        for q in range(4):
            A('ds_read_b128 %s, v%d offset:%d', v(vWF2 + 4 * q, 4), vSR, q * 1024)
        A('s_waitcnt lgkmcnt(4)')
        A('v_readfirstlane_b32 s%d, v%d', sT, vPW)
        spin_guard(A, done)
        A('s_cmp_ge_u32 s%d, %d', sT, st)
        A('s_cbranch_scc0 %s', lo)
        A('%s:', done)
        for q in range(4):
            A('s_waitcnt lgkmcnt(%d)', 3 - q)
            for r in (0, 2):
                a0 = vAC + 4 * q + r
                A('v_pk_add_f32 v[%d:%d], v[%d:%d], v[%d:%d]', a0, a0 + 1, a0, a0 + 1, vWF2 + 4 * q + r,
                  vWF2 + 4 * q + r + 1)

    stamp(A, 'p2')
    exchange(C0 + 6, LAG >= 2)
    stamp(A, 'p2')
    set_stage(A, C0 + 7)
    cvt8(A, vHP, vAC)
    pub_stores(A, [st4(vHP + 4 * q, sB, q * 1024) for q in range(2)], not WTO)
    A('v_mov_b32 v%d, 0', vTT)
    A('v_mov_b32 v%d, 0', vTT + 1)
    for r in range(8):
        A('v_dot2c_f32_bf16 v%d, s%d, v%d', vTT, sONES, vHP + r)
        A('v_dot2c_f32_bf16 v%d, v%d, v%d', vTT + 1, vHP + r, vHP + r)
    A('v_lshlrev_b32 v%d, 2, v%d', vTT + 2, vL)
    A('v_permlane32_swap_b32 v%d, v%d', vTT, vTT + 1)
    A('v_add_f32 v%d, v%d, v%d', vTT, vTT, vTT + 1)
    pub_stores(A, ['buffer_store_dword v%d, v%d, s[%d:%d], s%d offen%%s' % (vTT, vTT + 2, SWS, SWS + 3, sC)], not WTO)
    stamp(A, 'p2')
    try_copy(True)
    for c in (2, 3, 4):
        w1_copy(c)
    stamp(A, 'p2')
    pub_flag(A, sFL, True)
    stamp(A, 'p2')
    stamp(A)
    vCS = vSQ
    for c in (5, 6):
        w1_copy(c)
    set_stage(A, C0 + 8)
    A('v_mov_b32 v%d, 0', vCS)
    A('v_mov_b32 v%d, 0', vCS + 1)
    for r in range(112):
        if r == 0:
            A('s_waitcnt lgkmcnt(15)')
        if r == 80:
            A('s_waitcnt lgkmcnt(0)')
        A('v_dot2c_f32_bf16 v%d, s%d, v%d', vCS + (r & 1), sONES, vXR + r)
    A('v_add_f32 v%d, v%d, v%d', vCS, vCS, vCS + 1)
    hilo_c(A, vCS, vCF, vT0)
    vBR = 40
    vE3 = 72
    vMF2, vSD = 128, 132
    sBL, sFL2, sPF, sBK, sBS, sHB, sEM = 4, 5, 6, 7, 8, 9, 10
    A('s_mul_i32 s%d, s%d, %d', sB, sTB3, 4 * 112)
    A('s_lshl_b32 s%d, s%d, 3', sT, sFB)
    A('s_add_u32 s%d, s%d, s%d', sB, sB, sT)
    A('s_lshl_b32 s%d, s%d, 1', sT, sWV)
    A('s_add_u32 s%d, s%d, s%d', sB, sB, sT)
    A('s_lshl_b32 s%d, s%d, 10', sB, sB)
    A('s_add_u32 s%d, s%d, %d', sB, sB, WS_H1B)
    A('s_add_u32 s%d, s%d, %d', sBL, sB, 2 * 112 * 1024)
    A('s_lshl_b32 s%d, s%d, 9', sFL, sTB3)
    A('s_lshl_b32 s%d, s%d, 4', sT, sFB)
    A('s_add_u32 s%d, s%d, s%d', sFL, sFL, sT)
    A('s_lshl_b32 s%d, s%d, 2', sT, sWV)
    A('s_add_u32 s%d, s%d, s%d', sFL, sFL, sT)
    A('s_add_u32 s%d, s%d, %d', sFL, sFL, F4)
    A('s_add_u32 s%d, s%d, 256', sFL2, sFL)
    A('s_bitcmp1_b32 s%d, 0', sFB)
    A('s_cselect_b32 s%d, s%d, s%d', sT, sBL, sB)
    A('s_cselect_b32 s%d, s%d, s%d', sBL, sB, sBL)
    A('s_mov_b32 s%d, s%d', sB, sT)
    A('s_cselect_b32 s%d, s%d, s%d', sT, sFL2, sFL)
    A('s_cselect_b32 s%d, s%d, s%d', sFL2, sFL, sFL2)
    A('s_mov_b32 s%d, s%d', sFL, sT)
    A('s_lshl_b32 s%d, s%d, 8', sPF, sTQ)
    A('s_mul_i32 s%d, s%d, 112', sT, sKH)
    A('s_add_u32 s%d, s%d, s%d', sPF, sPF, sT)
    A('s_add_u32 s%d, s%d, %d', sPF, sPF, F4)
    A('s_mul_i32 s%d, s%d, %d', sHB, sG, 112 * 1024)
    A('s_mul_i32 s%d, s%d, %d', sT, sKH, 56 * 1024)
    A('s_add_u32 s%d, s%d, s%d', sHB, sHB, sT)
    A('s_add_u32 s%d, s%d, %d', sHB, sHB, WS_H1B + (0x40000000 if E('ABL', 0) & 64 else 0))
    blk_init(A, sBK, sBS, 's%d' % sKH)
    A('s_bitcmp1_b32 s%d, 0', sBK)
    A('s_mov_b32 s%d, 0x0f0f0f0f', sEM)
    A('s_cselect_b32 s%d, 0x00f0f0f0, s%d', sEM, sEM)
    vL4, vPF = vNM, vRS
    A('s_mov_b32 s%d, 0', CACHE[5])
    A('s_lshl_b32 s%d, s%d, 2', sT, sKH)
    A('s_add_u32 s%d, s%d, %d', sT, sT, L_MISC + M_PW + 20)
    A('v_mov_b32 v%d, s%d', vCA, sT)
    A('v_lshlrev_b32 v%d, 2, v%d', vL4, vL)

    def p3_epilogue(gi, packed=False):
        B = sub(A)
        acc = vAC + 16 * (gi & 1)
        e = vE3
        sd, c1 = vSD, vSD + 1
        if packed:
            pk = lambda r: 'v[%d:%d]' % (r, r + 1)
            for r in range(0, 16, 2):
                B('v_pk_mul_f32 %s, %s, %s op_sel:[0,1] op_sel_hi:[1,1]', pk(e + r), pk(acc + r), pk(sd))
            for r in range(16):
                B('v_exp_f32 v%d, v%d', e + r, e + r)
            for r in range(0, 16, 2):
                B('v_pk_fma_f32 %s, %s, %s, %s op_sel_hi:[1,0,0]', pk(e + r), pk(e + r), pk(sd), pk(sd))
            for r in range(16):
                B('v_rcp_f32 v%d, v%d', e + r, e + r)
            for r in range(0, 16, 2):
                B('v_pk_mul_f32 %s, %s, %s', pk(e + r), pk(e + r), pk(acc + r))
            cvt8(B, acc, e)
        else:
            silu8(B, acc, e, sd, c1, acc)
            silu8(B, acc + 8, e + 8, sd, c1, acc + 4)
        blocks = [[l] for l in B.lines]
        if E('ABL', 0) & 256 and not packed:
            blocks = blocks[-4:]
        B = sub(A)
        so = sB if gi < 2 else sBL
        pub_stores(B, [st4(acc + 4 * q, so, q * 1024) for q in range(2)], not WT1)
        if gi % 2 == 0:
            B('s_add_u32 s%d, s%d, %d', so, so, 112 * 1024)
        blocks.append(B.lines)
        return blocks

    def flag_load(B):
        B('s_mov_b64 exec, 0xfffffff')
        B('buffer_load_dword v%d, v%d, s[%d:%d], s%d offen sc1', vPF, vL4, SWS, SWS + 3, sPF)
        B('s_mov_b64 exec, -1')

    def flag_check(mask):
        def slow(B, back):
            lo = B.label('P')
            B('%s:', lo)
            flag_load(B)
            B('s_waitcnt vmcnt(0)')
            B('v_cmp_ne_u32 vcc, s%d, v%d', sTAG, vPF)
            spin_guard(B, back)
            B('s_and_b32 s%d, vcc_lo, %s', sT, mask)
            B('s_cbranch_scc1 %s', lo)
        ent, back = cold_block(A, slow)
        A('v_cmp_ne_u32 vcc, s%d, v%d', sTAG, vPF)
        A('s_and_b32 s%d, vcc_lo, %s', sT, mask)
        A('s_cbranch_scc1 %s', ent)
        A('%s:', back)

    PRE = E('P3PRE', 6)
    vHB = vXD + 2
    A('v_add_u32 v%d, %d, v%d', vHB, L_A, vO)
    A('v_add_u32 v%d, %d, v%d', vHB + 1, 65536, vO)
    Q = LdsQ(A)

    def chk(n):
        gi, k = divmod(n, 28)
        if gi == 0:
            return k // 4 if k % 4 == 0 else None
        return {0: 1, 8: 3, 16: 6}.get(k)

    def rd(n):
        gi, k = divmod(n, 28)
        if n + 1 < 112 and chk(n + 1) is not None:
            Q.take(7)
        if chk(n) is not None:
            wait_lp(Q.A, ('h', gi, chk(n)))
        Q.op(('b', n), 'ds_read_b128 %s, v%d offset:%d', v(vBR + 4 * (n % 8), 4), (vHB, vHB, vO, vHB + 1)[gi],
             (28672 if gi == 1 else 0) + k * 1024)
        if k == 27:
            Q.stage(C0 + 9 + gi)
        nn = n + (PRE + 2 if n >= 20 else 4)
        if nn < 112 and chk(nn) is not None and not Q.peeked and (n < 20 or nn >= 28):
            Q.peek(7)

    stamp(A, 'p2')
    nrd = [0]

    def rd_upto(n):
        while nrd[0] <= min(n, 111):
            rd(nrd[0])
            nrd[0] += 1
    rd_upto(2)
    for gi in range(4):
        acc = vAC + 16 * (gi & 1)
        M = sub(A)
        Q.A = M
        for k in range(28):
            n = 28 * gi + k
            rd_upto(n + (3 if n < 22 else min(PRE, 3 + (n - 21))))
            if k == 16:
                Q.op('s6', 'ds_read_b128 v[%d:%d], v%d offset:%d', vTT, vTT + 3, vMI, M_PW + 16)
                Q.op('sf', 'ds_read_b128 %s, v%d offset:%d', v(vMF2, 4), vEX, gi * 1024)
            if k == 24:
                Q.wait('sf')
                M('v_readfirstlane_b32 s%d, v%d', sPROG, vTT)
                M('v_readfirstlane_b32 s%d, v%d', sC, vTT + 1)

                def st_slow(B, back):
                    def st_read():
                        B('ds_read_b128 %s, v%d offset:%d', v(vMF2, 4), vEX, gi * 1024)
                        return 0
                    wait_word(B, 5, LP[('st', gi)][1], body=st_read)
                ent, back = cold_block(M, st_slow)
            if k == 25:
                M('s_cmp_ge_u32 s%d, %d', sC, LP[('st', gi)][1])
                M('s_cbranch_scc0 %s', ent)
                M('%s:', back)
                M('v_mov_b32 v%d, v%d', vMF, vMF2)
                M('v_mov_b32 v%d, v%d', vMF + 1, vMF2 + 1)
            if k % 2 == 0:
                Q.wait(('b', n + 1))
            if k in (0, 12):
                stamp(M, 'p3')
            if gi == E('P33', 3) and k % 2 == 0 and k:
                stamp(M, 'p33')
            if gi == 3 and k == E('P3FLAGK', 11):
                pub_flag(M, sFL, True)
            if gi == 3 and k == 25:
                flag_load(M)
            mfma(M, acc, vXR + 4 * k, vBR + 4 * (n % 8), k == 0)
        mfma(M, acc, vCF, vMF)
        M('v_mov_b32 v%d, v%d', vSD, vMF2 + 2)
        M('v_mov_b32 v%d, v%d', vSD + 1, vMF2 + 3)
        A.lines += merge(M.lines, p3_epilogue(gi - 1) if gi > 0 else [], 1, 27)
        if gi == 0:
            stamp(A)
        stamp(A, 'p3')
    stamp(A)
    NB = 16
    vWF4 = 40
    vAP = vXR + 48

    def w2_base(c):
        A('s_cmp_eq_u32 s%d, 0', sKH)
        A('s_cselect_b32 s%d, %d, %d', sT, w2_slot(2 * c) >> 12, w2_slot(2 * c + 1) >> 12)
        A('s_lshl_b32 s%d, s%d, 12', sT, sT)
        A('v_add_u32 v%d, s%d, v%d', vWA + 2, sT, vWA)
        A('v_add_u32 v%d, s%d, v%d', vWA + 3, sT, vWA + 1)

    Q = LdsQ(A)

    def abuf(k):
        return vWF4 + 8 * (k & 3)

    def read_w2(k):
        if k % 4 == 3 and k < 52:
            Q.take(LP[('w2', 2 * (k // 4) + 3)][0])
        if k % 4 == 0:
            wait_lp(A, ('w2', 2 * (k // 4) + 1))
            w2_base(k // 4)
        buf = abuf(k)
        for nt in range(2):
            for z in range(2):
                Q.op(('w', k), 'ds_read_b64_tr_b16 v[%d:%d], v%d offset:%d', buf + 4 * nt + 2 * z,
                     buf + 4 * nt + 2 * z + 1, vWA + 2 + nt, ((k % 4) * 16 + 8 * z) * 128)
        if k % 4 == 0 and k < 52:
            Q.peek(LP[('w2', 2 * (k // 4) + 3)][0])
        if k % 4 == 3 and (k // 4) <= 5:
            Q.stage(C0 + 13 + k // 4)

    vq = []

    def vm_need(tag):
        i = max(j for j, x in enumerate(vq) if x == tag)
        return len(vq) - 1 - i

    def issue_b(k):
        if k % 8 == 0:
            A('s_lshl_b32 s%d, s%d, 13', sM0, sBK)
            A('s_add_u32 s%d, s%d, s%d', sM0, sM0, sHB)
            blk_next(A, sBK, sBS)
        A('buffer_load_dwordx4 %s, v%d, s[%d:%d], s%d offen offset:%d%s', v(vXR + 4 * (k % NB), 4), vO, SWS, SWS + 3,
          sM0, (k & 3) * 1024, LDB)
        vq.append(('b', k))
        if k % 8 == 3:
            A('s_add_u32 s%d, s%d, 4096', sM0, sM0)

    INFL = E('P4INFL', 10)
    assert INFL < NB
    A('s_waitcnt vmcnt(2)')
    flag_check('s%d' % sEM)
    stamp(A)
    issued = E('P4PRE', 4)
    for k in range(issued):
        issue_b(k)
    for b in p3_epilogue(3, True):
        A.lines += b
    vq += ['st', 'st']
    read_w2(0)
    read_w2(1)
    while issued < INFL:
        issue_b(issued)
        issued += 1
    unpack_hp()
    stamp(A)
    KF, KL, KC = E('P4KF', 3), E('P4KL', 11), E('P4KC', 16)
    pend = False
    for k in range(56):
        if k + 2 < 56:
            read_w2(k + 2)
        need = vm_need(('b', k))
        if k == KF:
            need = min(need, vm_need('st'))
        if k == KC:
            need = min(need, vm_need('pf'))
        Q.wait(('w', k), need)
        if k % 4 == 0 and k:
            stamp(A, 'p4')
        buf = abuf(k)
        mfma(A, vAC + 16, buf + 4, vXR + 4 * (k % NB), k == 0)
        if k == KF:
            pub_flag(A, sFL2, True, False)
            vq.append('fl')
        if k == KL:
            flag_load(A)
            vq.append('pf')
        if k == KC:
            flag_check('0xfffffff')
            pend = True
        for _ in range(2):
            if issued < min(56, k + 1 + INFL) and (issued < 24 or pend):
                issue_b(issued)
                issued += 1
        mfma(A, vAC, buf, vXR + 4 * (k % NB))
    stamp(A)
    exchange(C0 + 27)
    cvt8(A, vHP, vAC)
    for q in range(2):
        A('v_permlane32_swap_b32 v%d, v%d', vHP + 4 * q, vHP + 4 * q + 2)
        A('v_permlane32_swap_b32 v%d, v%d', vHP + 4 * q + 1, vHP + 4 * q + 3)
    for q in range(2):
        A('buffer_store_dwordx4 %s, v%d, s[%d:%d], 0 offen offset:%d', v(vHP + 4 * q, 4), vRO, SOUT, SOUT + 3, q * 32)
    A('s_or_b32 s%d, s2, s%d', sT, sWV)
    A('s_cmp_lg_u32 s%d, 0', sT)
    A('s_cbranch_scc1 %s', fin)
    A('s_mov_b32 s%d, %d', sT, FEP)
    A('s_mov_b64 exec, 1')
    A('buffer_store_dword v%d, v%d, s[%d:%d], s%d offen', vTAG, vO, SWS, SWS + 3, sT)
    A('s_mov_b64 exec, -1')
    A('%s:', fin)
    if E('PADTO', 0):
        lo = A.label('PAD')
        A('s_waitcnt vmcnt(0) lgkmcnt(0)')
        A('s_mov_b32 s6, %d', E('PADTO', 0))
        if PROBE >= 0:
            A('s_sub_u32 s7, s56, s84')
            A('s_lshl_b32 s7, s7, 2')
            A('s_cmp_ge_u32 s%d, 28', sI)
            A('s_cselect_b32 s7, 0, s7')
            A('s_add_u32 s6, s6, s7')
        A('%s:', lo)
        A('s_memrealtime s[4:5]')
        A('s_waitcnt lgkmcnt(0)')
        A('s_sub_u32 s4, s4, s84')
        A('s_cmp_lt_u32 s4, s6')
        A('s_cbranch_scc1 %s', lo)
    stamp_flush(A)


def gen():
    A = Asm()
    name = NAME + '_kernel'
    A.lines += ['.p2align 8', '.globl %s' % name, '.type %s,@function' % name, '%s:' % name]
    end = A.label('END')
    if E('PADTO', 0):
        A('s_memrealtime s[84:85]')
    A('s_getpc_b64 s[%d:%d]', sPC, sPC + 1)
    A('s_cmp_ge_u32 s2, 256')
    A('s_cbranch_scc1 %s', end)
    A('s_load_dwordx16 s[64:79], s[0:1], 0')
    A('s_load_dwordx2 s[80:81], s[0:1], 72')
    if DBGT:
        A('s_load_dwordx2 s[86:87], s[0:1], 64')
    A('s_mov_b32 s%d, 0x400000', sSPIN)
    A('s_and_b32 s%d, s2, 7', sXCD)
    A('s_lshr_b32 s%d, s2, 3', sI)
    if MAP == 0:
        perm = [2, 4, 6, 9, 11, 13, 0, 1, 3, 5, 7, 8, 10, 12, 14, 15]
        lo = sum(perm[i] << (4 * i) for i in range(8))
        hi = sum(perm[8 + i] << (4 * i) for i in range(8))
        A('s_mov_b32 s%d, 0x%x', sHI, lo)
        A('s_mov_b32 s%d, 0x%x', sHI + 1, hi)
        A('s_lshr_b32 s%d, s%d, 1', sT, sI)
        A('s_lshl_b32 s%d, s%d, 2', sT, sT)
        A('s_lshr_b64 s[%d:%d], s[%d:%d], s%d', sHI, sHI + 1, sHI, sHI + 1, sT)
        A('s_and_b32 s%d, s%d, 15', sH, sHI)
        A('s_and_b32 s%d, s%d, 1', sTB, sI)
        A('s_lshl_b32 s%d, s%d, 1', sT, sXCD)
        A('s_add_u32 s%d, s%d, s%d', sTB, sTB, sT)
    else:
        A('s_lshr_b32 s%d, s%d, 1', sTB, sI)
        A('s_and_b32 s%d, s%d, 1', sH, sI)
        A('s_lshl_b32 s%d, s%d, 1', sT, sXCD)
        A('s_add_u32 s%d, s%d, s%d', sH, sH, sT)
    A('s_add_u32 s%d, s%d, s%d', sC0, sXCD, sI)
    A('s_mul_i32 s%d, s%d, 37', sT, sC0)
    A('s_lshr_b32 s%d, s%d, 8', sT, sT)
    A('s_mul_i32 s%d, s%d, 7', sT, sT)
    A('s_sub_u32 s%d, s%d, s%d', sC0, sC0, sT)
    A('s_mul_i32 s%d, s%d, 37', sTQ, sI)
    A('s_lshr_b32 s%d, s%d, 8', sTQ, sTQ)
    A('s_mul_i32 s%d, s%d, 7', sNB, sTQ)
    A('s_sub_u32 s%d, s%d, s%d', sNB, sI, sNB)
    A('s_lshr_b32 s%d, s%d, 1', sTB3, sTQ)
    A('s_mul_i32 s%d, s%d, 14', sFB, sTB3)
    A('s_sub_u32 s%d, s%d, s%d', sFB, sI, sFB)
    A('s_lshl_b32 s%d, s%d, 2', sT, sXCD)
    A('s_add_u32 s%d, s%d, s%d', sTQ, sTQ, sT)
    A('s_lshl_b32 s%d, s%d, 1', sT, sXCD)
    A('s_add_u32 s%d, s%d, s%d', sTB3, sTB3, sT)
    A('v_lshrrev_b32 v%d, 6, v0', vL)
    A('v_readfirstlane_b32 s%d, v%d', sWV, vL)
    A('v_lshlrev_b32 v%d, 2, v%d', vMY, vL)
    A('v_add_u32 v%d, %d, v%d', vMY, L_MISC, vMY)
    A('v_and_b32 v%d, 63, v0', vL)
    A('v_lshlrev_b32 v%d, 4, v%d', vO, vL)
    A('v_mov_b32 v%d, %d', vMI, L_MISC)
    A('v_mov_b32 v%d, 0', vT0)
    A('ds_write_b32 v%d, v%d', vMY, vT0)
    A('ds_write_b32 v%d, v%d offset:%d', vMY, vT0, M_EP)
    A('ds_write_b32 v%d, v%d offset:%d', vMY, vT0, M_FAST)
    A('ds_write_b32 v%d, v%d offset:%d', vMY, vT0, M_CP)
    A('ds_write_b32 v%d, v%d offset:%d', vMY, vT0, M_LD)
    A('s_mov_b32 s%d, 0', sPROG)
    A('s_mov_b32 s%d, 0', sFASTF)
    A('s_mov_b32 s%d, 0x%x', sONES, ONES)
    early_offsets(A)
    A('s_waitcnt lgkmcnt(0)')
    A('s_barrier')
    A('s_mov_b32 s%d, 0', sPROG1)
    srd(A, SX, 64, 0 if E('ABL', 0) & 16 else S * D * 2)
    srd(A, SW, 66, 0 if E('ABL', 0) & 8 else D * 3 * D * 2)
    _st['n'] = 0
    stamp(A, 'all')
    if STAMPS:
        A('s_memrealtime s[86:87]')
    for i in range(7):
        LP[('x', i)] = (7, 1 + i)
    for gi in range(4):
        us = 3 if gi == 0 else 0
        LP[('hs', gi)] = (7, 10 + 8 * gi + us + 1)
        LP[('st', gi)] = (5, 4 + gi)
        for q in range(7):
            LP[('h', gi, q)] = (7, 10 + 8 * gi + q + (1 if q > us else 0))
    for pi in range(3):
        for i in range(7):
            LP[('W', pi, i)] = (4, 7 * pi + i + 1)
    l0, l1, l2, lw, lc = A.label('H0'), A.label('H1'), A.label('H23'), A.label('EW'), A.label('EC')
    A('s_cmp_eq_u32 s%d, 4', sWV)
    A('s_cbranch_scc1 %s', lw)
    A('s_cmp_lg_u32 s%d, 7', sWV)
    A('s_cbranch_scc1 %s', lc)
    HELP['on'] = True
    nst = {}
    prio(A, 1)
    _st['n'] = 1
    early_x(A)
    nst[l1] = _st['n']
    A('s_branch %s', l1)
    A('%s:', lw)
    prio(A, 1)
    _st['n'] = 1
    early_w(A)
    nst[l0] = _st['n']
    nst[l2] = 1
    A('s_branch %s', l0)
    refresh_routines(A)
    A('%s:', lc)
    A('s_cmp_ge_u32 s%d, 5', sWV)
    A('s_cbranch_scc1 %s', l2)
    parts = {}
    for lab, fn in ((l0, gen_h0), (l1, gen_h1), (l2, gen_h23)):
        B = sub(A)
        B('%s:', lab)
        B('s_nop 4')
        HELP['on'] = True
        prio(B, 1)
        _st['n'] = nst[lab]
        fn(B)
        HELP['on'] = False
        parts[lab] = B.lines
    _st['n'] = 1
    gen_compute(A)
    A('%s:', end)
    A('s_endpgm')
    for lab in (l0, l1, l2):
        A.lines += parts[lab]
    A.lines += COLD
    return A, name


def main():
    out = sys.argv[1] if len(sys.argv) > 1 else 'cdna_kernels/%s.s' % NAME
    A, name = gen()
    lines, nn = fix_hazards(A.lines)
    hdr = ['; generated by gen/gen11.py (hand-written generator script)',
           '; @launch grid=(256,1,1) block=(512,1,1) lds=%d' % LDS_SIZE,
           '.amdgcn_target "amdgcn-amd-amdhsa--gfx950"', '.text']
    tail = ['.p2align 8', '.fill 2048, 4, 0xbf800000', '.section .rodata,"a"', '.p2align 6', '''.amdhsa_kernel %s
  .amdhsa_next_free_vgpr 256
  .amdhsa_next_free_sgpr 102
  .amdhsa_accum_offset 256
  .amdhsa_group_segment_fixed_size 0
  .amdhsa_kernarg_size 80
  .amdhsa_user_sgpr_count 2
  .amdhsa_user_sgpr_kernarg_segment_ptr 1
  .amdhsa_system_sgpr_workgroup_id_x 1
  .amdhsa_float_denorm_mode_32 3
  .amdhsa_float_denorm_mode_16_64 3
.end_amdhsa_kernel''' % name]
    open(out, 'w').write('\n'.join(hdr + lines + tail) + '\n')
    print('wrote', out, 'lines', len(lines), 'nops', nn)


if __name__ == '__main__':
    main()
```

```python
import sys
import os
sys.path.insert(0, os.path.dirname(os.path.abspath(__file__)))
from asmlib import Asm, fix_hazards, v

NAME = 'sequential_preLN__linear_kernel_hedgehog__dense_activation_silu__prompt'
S, D, H, DH, F = 2048, 448, 16, 28, 1792
MB = 1 << 20
E = lambda k, d: int(os.environ.get(k, d))
STAMPS = E('STAMPS', 0)
MAP = E('MAP', 0)
FAST = E('FAST', 1)
CODEPF = E('CODEPF', 1)
WARM = E('WARM', 0)
WT1 = E('WT1', 0)
WTO = E('WTO', 0)
TOUCHAT = E('TOUCHAT', 2)
LDB = (' sc1', '', ' nt')[E('LDB', 0)]
HLATE = E('HLATE', 1)
WS_KVP = 0
WS_OB = 2 * MB
WS_HB = 4 * MB
WS_H1B = 8 * MB
WS_FLG = 16 * MB
F1, F2, F3, F4, FREG, FEP = WS_FLG + 0x10000, WS_FLG + 0x1000, WS_FLG + 0x3000, WS_FLG + 0x70000, WS_FLG + 0x9000, WS_FLG + 0xA000
F2X = WS_FLG + 0x40000
WS_STAMP = 17 * MB
WS_SIZE = 18 * MB
LOG2E = 0x3fb8aa3b
ONES = 0x3f803f80
MFMA = 'v_mfma_f32_32x32x16_bf16'
L_X = 0
L_WP = (114688, 0, 32768)
L_KVA, L_KVV = 65536, 81920
L_A = 98304
L_SC0, L_SC1 = 49152, 57344
L_XRES = L_SC0
B16 = (0, 16384, 65536, 81920, 32768)
L_PHI, L_EX, L_CF, L_MISC = 159744 - 2048 + 2048 + 1536, 155648, 159744, 163328
LDS_SIZE = 163840
M_PW, M_FAST, M_CP, M_LD = 0, 64, 96, 256
L_RSTD = L_EX

SX, SW, SP, SWS, SWO, SW1, SW2, SOUT = 12, 16, 20, 24, 28, 32, 36, 40
sTB, sH, sWV, sC0, sPROG, sT, sT2, sONES, sC, sTAG, sFASTF, sI, sXCD = 44, 45, 46, 47, 48, 49, 50, 51, 52, 53, 54, 55, 3
sHI, sPADL, sZA, sZB, sODD, sPC = 4, 6, 8, 10, 92, 94
sTQ, sNB, sTB3, sFB, sG, sKH, sB, sXB, sM0, sSPIN = 96, 97, 98, 99, 100, 101, 88, 89, 91, 90
sPROG1, sFL = 0, 1
vL, vMI, vT0, vT1, vO = 1, 2, 3, 4, 5
vTAG, vMY = 6, 7
vTT = 8
vXA = 12
vWA = 16
vSM, vSQ = 20, 22
vNM, vRS, vSC, vRA = 24, 25, 26, 27
vXD = 28
vPW = 32
vCA = 36
vXR = 144
vPK_ = 37
CACHE = {4: sPROG, 7: sPROG1, 5: sC0}

_st = {'n': 0}
C0 = 4
HELP = {'on': False}


def prio(A, hi):
    if HELP['on'] and E('HPRIO', 2) and not HELP.get('hot'):
        A('s_setprio %d', E('HPRIO', 2) if hi else 0)
LP = {}


STSET = os.environ.get('STSET', 'main')


DBGT = E('DBGT', 0)


PROBE = E('PROBE', -1)


def stamp(A, tag='main'):
    if PROBE >= 0:
        if not HELP['on'] and tag in ('main', 'all'):
            if _st['n'] == PROBE:
                A('s_memrealtime s[56:57]')
            _st['n'] += 1
        return
    if DBGT and not HELP['on'] and tag in ('main', 'all'):
        A('s_memrealtime s[%d:%d]', 56 + 2 * _st['n'], 57 + 2 * _st['n'])
        _st['n'] += 1
        return
    if STAMPS and STSET == 'clk' and tag == 'main' and not HELP['on']:
        _st['m'] = _st.get('m', 0) + 1
        if _st['m'] in (1, 2, 4, 8, 10, 13):
            A('s_memtime s[%d:%d]', 56 + 2 * _st['n'], 57 + 2 * _st['n'])
            A('s_memrealtime s[%d:%d]', 58 + 2 * _st['n'], 59 + 2 * _st['n'])
            _st['n'] += 2
        return
    if STAMPS and (tag == STSET or tag == 'all' or (HELP['on'] and tag == 'main')):
        assert _st['n'] < 15, 'too many stamps'
        A('s_memtime s[%d:%d]', 56 + 2 * _st['n'], 57 + 2 * _st['n'])
        _st['n'] += 1


def stamp_flush(A):
    if DBGT and not HELP['on']:
        A('s_waitcnt vmcnt(0)')
        stamp(A, 'all')
        skip = A.label('DS')
        A('s_waitcnt vmcnt(0) lgkmcnt(0)')
        A('s_cmp_ge_u32 s%d, 28', sI)
        A('s_cbranch_scc1 %s', skip)
        A('s_mov_b64 exec, 1')
        A('v_mov_b32 v1, 0')
        A('s_not_b32 s4, s56')
        A('v_mov_b32 v2, s4')
        A('global_atomic_umax v1, v2, s[86:87] offset:60')
        for i in range(_st['n']):
            A('v_mov_b32 v%d, s%d', 8 + i, 56 + 2 * i)
            A('global_atomic_umax v1, v%d, s[86:87] offset:%d', 8 + i, 4 * i)
        A('%s:', skip)
        return
    if STAMPS:
        A('s_waitcnt vmcnt(0)')
        stamp(A, 'all')
        A('s_memrealtime s[4:5]')
        A('s_waitcnt vmcnt(0) lgkmcnt(0)')
        A('s_sub_u32 s4, s4, s86')
        A('s_lshl_b32 s4, s4, 20')
        A('s_and_b32 s86, s86, 0xfffff')
        A('s_or_b32 s86, s86, s4')
        A('s_lshl_b32 s%d, s2, 3', sT)
        A('s_add_u32 s%d, s%d, s%d', sT, sT, sWV)
        A('s_lshl_b32 s%d, s%d, 6', sT, sT)
        A('s_add_u32 s%d, s%d, %d', sT, sT, WS_STAMP)
        A('s_mov_b64 exec, 1')
        A('v_mov_b32 v1, 0')
        for i in range(16):
            if i < _st['n']:
                A('v_mov_b32 v2, s%d', 56 + 2 * i)
            elif i == 15:
                A('v_mov_b32 v2, s86')
            else:
                A('v_mov_b32 v2, 0')
            A('buffer_store_dword v2, v1, s[%d:%d], s%d offen offset:%d', SWS, SWS + 3, sT, 4 * i)
            A('s_nop 1')


def srd(A, d, ptr, size):
    A('s_mov_b32 s%d, s%d', d, ptr)
    A('s_and_b32 s%d, s%d, 0xffff', d + 1, ptr + 1)
    A('s_mov_b32 s%d, 0x%x', d + 2, size)
    A('s_mov_b32 s%d, 0x20000', d + 3)


COLD = []


def cold_block(A, fn):
    ent, back = A.label('CE'), A.label('CB')
    B = sub(A)
    B('%s:', ent)
    B('s_nop 15')
    fn(B, back)
    B('s_nop 7')
    B('s_branch %s', back)
    COLD.extend(B.lines)
    return ent, back


def again(A, br, lo, sleep=0):
    slp = max(sleep * E('SLPMUL', 1), E('HSLP', 0) if HELP['on'] else E('CSLP', 0))
    if slp:
        st = A.label('ZZ')
        COLD.extend(['%s:' % st, '  s_sleep %d' % slp, '  s_branch %s' % lo])
        lo = st
    A('%s %s', br, lo)


def spin_guard(A, done):
    A('s_sub_u32 s%d, s%d, 1', sSPIN, sSPIN)
    A('s_cbranch_scc1 %s', done)


def wait_word(A, w, n, cache=None, sleep=0, body=None):
    sd = sT if cache is None else cache

    def loop(B, done, body=None):
        lo = B.label('W')
        prio(B, 0)
        B('%s:', lo)
        B('ds_read_b32 v%d, v%d offset:%d', vPW, vMI, M_PW + 4 * w)
        k = body() if body else 0
        B('s_waitcnt lgkmcnt(%d)', k)
        B('v_readfirstlane_b32 s%d, v%d', sd, vPW)
        spin_guard(B, done)
        B('s_cmp_ge_u32 s%d, %d', sd, n)
        again(B, 's_cbranch_scc0', lo, sleep)
        prio(B, 1)
    if cache is not None and body is None and not HELP['on']:
        A('s_getpc_b64 s[%d:%d]', sPC, sPC + 1)
        A('s_cmp_ge_u32 s%d, %d', sd, n)
        A('s_cbranch_scc0 REFRESH_%d', w)
        return
    done = A.label('WD')
    if cache is not None and body is None:
        A('s_cmp_ge_u32 s%d, %d', sd, n)
        A('s_cbranch_scc1 %s', done)
    loop(A, done, body)
    A('%s:', done)


def wait_lp(A, name, sleep=0):
    w, n = LP[name]
    wait_word(A, w, n, CACHE[w], sleep)


def set_stage(A, n):
    A('v_mov_b32 v%d, %d', vT0, n)
    A('ds_write_b32 v%d, v%d', vMY, vT0)


def wait_stage(A, n, which=(0, 1, 2, 3), body=None, sleep=0, base=M_PW):
    lo, done = A.label('W'), A.label('WD')
    prio(A, 0)
    A('%s:', lo)
    A('ds_read_b128 v[%d:%d], v%d offset:%d', vPW, vPW + 3, vMI, base + 16 * (which[0] // 4))
    k = body() if body else 0
    A('s_waitcnt lgkmcnt(%d)', k)
    w = [x % 4 for x in which]
    if len(w) == 4:
        A('v_min3_u32 v%d, v%d, v%d, v%d', vPW, vPW, vPW + 1, vPW + 2)
        A('v_min_u32 v%d, v%d, v%d', vPW, vPW, vPW + 3)
        r = vPW
    else:
        A('v_min_u32 v%d, v%d, v%d', vPW + w[0], vPW + w[0], vPW + w[1])
        r = vPW + w[0]
    A('v_readfirstlane_b32 s%d, v%d', sT, r)
    spin_guard(A, done)
    A('s_cmp_ge_u32 s%d, %d', sT, n)
    again(A, 's_cbranch_scc0', lo, sleep)
    A('%s:', done)
    prio(A, 1)


def poll_global(A, soff, nlanes):
    lo, done = A.label('P'), A.label('PD')
    A('v_lshlrev_b32 v%d, 2, v%d', vT1, vL)
    if nlanes <= 32:
        A('s_mov_b64 exec, 0x%x', (1 << nlanes) - 1)
    else:
        A('s_mov_b32 exec_lo, 0x%x', nlanes & 0xffffffff)
        A('s_mov_b32 exec_hi, 0x%x', nlanes >> 32)
    A('%s:', lo)
    A('buffer_load_dword v%d, v%d, s[%d:%d], s%d offen sc1', vT0, vT1, SWS, SWS + 3, soff)
    A('s_waitcnt vmcnt(0)')
    A('v_cmp_ne_u32 vcc, s%d, v%d', sTAG, vT0)
    spin_guard(A, done)
    A('s_cbranch_vccnz %s', lo)
    A('%s:', done)
    A('s_mov_b64 exec, -1')


def poll_scalar(A, soff, n):
    lo, done = A.label('P'), A.label('PD')
    A('s_add_u32 s%d, s%d, s%d', sPC, SWS, soff)
    A('s_addc_u32 s%d, s%d, 0', sPC + 1, SWS + 1)
    base = 76
    assert n == 8
    A('%s:', lo)
    if E('PSLEEP', 0):
        A('s_sleep %d', E('PSLEEP', 0))
    A('s_load_dwordx%d s[%d:%d], s[%d:%d], 0 glc', n, base, base + n - 1, sPC, sPC + 1)
    A('s_waitcnt lgkmcnt(0)')
    A('s_and_b64 s[%d:%d], s[%d:%d], s[%d:%d]', sHI, sHI + 1, base, base + 1, base + 2, base + 3)
    A('s_or_b64 s[%d:%d], s[%d:%d], s[%d:%d]', sPADL, sPADL + 1, base, base + 1, base + 2, base + 3)
    for k in range(4, n, 2):
        A('s_and_b64 s[%d:%d], s[%d:%d], s[%d:%d]', sHI, sHI + 1, sHI, sHI + 1, base + k, base + k + 1)
        A('s_or_b64 s[%d:%d], s[%d:%d], s[%d:%d]', sPADL, sPADL + 1, sPADL, sPADL + 1, base + k, base + k + 1)
    A('s_and_b32 s%d, s%d, s%d', sHI, sHI, sHI + 1)
    A('s_or_b32 s%d, s%d, s%d', sPADL, sPADL, sPADL + 1)
    A('s_xor_b32 s%d, s%d, s%d', sHI, sHI, sTAG)
    A('s_xor_b32 s%d, s%d, s%d', sPADL, sPADL, sTAG)
    spin_guard(A, done)
    A('s_or_b32 s%d, s%d, s%d', sHI, sHI, sPADL)
    A('s_cbranch_scc1 %s', lo)
    A('%s:', done)


def two_ways(A, fn, local):
    if local and FAST:
        ent, back = cold_block(A, lambda B, back: fn(B, ' sc1'))
        A('s_cmp_eq_u32 s%d, 0', sFASTF)
        A('s_cbranch_scc1 %s', ent)
        fn(A, '')
        A('%s:', back)
    else:
        fn(A, ' sc1')


def pub_stores(A, stores, local):
    def fn(B, bits):
        for st in stores:
            B(st % bits)
    two_ways(A, fn, local)


def pub_flag(A, sflag, local, drain=True):
    if drain:
        A('s_waitcnt vmcnt(0)')
    A('s_mov_b64 exec, 1')
    two_ways(A, lambda B, bits: B('buffer_store_dword v%d, v%d, s[%d:%d], s%d offen%s', vTAG, vO, SWS, SWS + 3, sflag,
                                  bits), local)
    A('s_mov_b64 exec, -1')


def pub_flag4(A):
    A('v_lshlrev_b32 v%d, 9, v%d', vT1, vL)
    A('s_waitcnt vmcnt(0)')
    A('s_mov_b64 exec, 15')
    two_ways(A, lambda B, bits: B('buffer_store_dword v%d, v%d, s[%d:%d], s%d offen%s', vTAG, vT1, SWS, SWS + 3, sFL,
                                  bits), True)
    A('s_mov_b64 exec, -1')


def st4(reg, soff, off):
    return 'buffer_store_dwordx4 %s, v%d, s[%d:%d], s%d offen offset:%d%%s' % (v(reg, 4), vO, SWS, SWS + 3, soff, off)


def hilo_c(A, src, f, tmp):
    A('v_cvt_pk_bf16_f32 v%d, v%d, v%d', f, src, src)
    A('v_and_b32 v%d, 0xffff0000, v%d', tmp, f)
    A('v_sub_f32 v%d, v%d, v%d', tmp, src, tmp)
    A('v_cvt_pk_bf16_f32 v%d, v%d, 0', f + 1, tmp)


def hilo_m(A, src, f, tmp):
    A('v_cvt_pk_bf16_f32 v%d, v%d, 0', f + 1, src)
    A('v_lshlrev_b32 v%d, 16, v%d', tmp, f + 1)
    A('v_sub_f32 v%d, v%d, v%d', tmp, src, tmp)
    A('v_cvt_pk_bf16_f32 v%d, v%d, v%d', f, src, tmp)


def ln_finish(A, t0, t1, negmean, rstd):
    A('v_mul_f32 v%d, 0x%x, v%d', t0, 0x3b124925, t0)
    A('v_mov_b32 v%d, v%d', t1, t0)
    A('v_permlane32_swap_b32 v%d, v%d', t0, t1)
    A('v_fma_f32 v%d, -v%d, v%d, v%d', t1, t0, t0, t1)
    A('v_max_f32 v%d, 0, v%d', t1, t1)
    A('v_add_f32 v%d, 0x%x, v%d', t1, 0x3727c5ac, t1)
    A('v_rsq_f32 v%d, v%d', rstd, t1)
    A('v_sub_f32 v%d, 0, v%d', negmean, t0)


def softmax_pm(A, p, sc, e, t):
    A('v_cndmask_b32 v%d, v%d, v%d, s[%d:%d]', p + 12, p + 12, p + 14, sHI, sHI + 1)
    A('v_cndmask_b32 v%d, v%d, v%d, s[%d:%d]', p + 13, p + 13, p + 15, sHI, sHI + 1)
    mx, mn = t, t + 1
    A('v_max3_f32 v%d, v%d, v%d, v%d', mx, p, p + 1, p + 2)
    A('v_min3_f32 v%d, v%d, v%d, v%d', mn, p, p + 1, p + 2)
    for i in range(3, 13, 2):
        A('v_max3_f32 v%d, v%d, v%d, v%d', mx, mx, p + i, p + i + 1)
        A('v_min3_f32 v%d, v%d, v%d, v%d', mn, mn, p + i, p + i + 1)
    A('v_max_f32 v%d, v%d, v%d', mx, mx, p + 13)
    A('v_min_f32 v%d, v%d, v%d', mn, mn, p + 13)
    A('v_sub_f32 v%d, 0, v%d', mn, mn)
    A('v_permlane32_swap_b32 v%d, v%d', mx, mn)
    A('v_max_f32 v%d, v%d, v%d', mx, mx, mn)
    A('v_mul_f32 v%d, v%d, v%d', mx, mx, sc)
    A('v_mov_b32 v%d, v%d', mn, mx)
    A('v_permlane32_swap_b32 v%d, v%d', mx, mn)
    assert sc % 2 == 0 and mx % 2 == 0
    for i in range(0, 14, 2):
        A('v_pk_fma_f32 v[%d:%d], v[%d:%d], v[%d:%d], v[%d:%d] op_sel:[0,0,1] op_sel_hi:[1,0,1] neg_lo:[1,0,1] '
          'neg_hi:[1,0,1]', e + i, e + i + 1, p + i, p + i + 1, sc, sc + 1, mx, mx + 1)
        A('v_pk_fma_f32 v[%d:%d], v[%d:%d], v[%d:%d], v[%d:%d] op_sel_hi:[1,0,0] neg_lo:[0,0,1] neg_hi:[0,0,1]',
          p + i, p + i + 1, p + i, p + i + 1, sc, sc + 1, mx, mx + 1)
    for i in range(14):
        A('v_exp_f32 v%d, v%d', e + i, e + i)
        A('v_exp_f32 v%d, v%d', p + i, p + i)
    if PKSM:
        for base in (p, e):
            A('v_pk_add_f32 v[%d:%d], v[%d:%d], v[%d:%d]', base + 14, base + 15, base, base + 1, base + 2, base + 3)
        for i in range(4, 14, 2):
            for base in (p, e):
                A('v_pk_add_f32 v[%d:%d], v[%d:%d], v[%d:%d]', base + 14, base + 15, base + 14, base + 15, base + i,
                  base + i + 1)
    else:
        for base in (p, e):
            A('v_add_f32 v%d, v%d, v%d', base + 14, base, base + 2)
            A('v_add_f32 v%d, v%d, v%d', base + 15, base + 1, base + 3)
        for i in range(4, 14):
            for base in (p, e):
                A('v_add_f32 v%d, v%d, v%d', base + 14 + (i & 1), base + 14 + (i & 1), base + i)
    sp, sn = t + 2, t
    A('v_add_f32 v%d, v%d, v%d', sp, p + 14, p + 15)
    A('v_add_f32 v%d, v%d, v%d', sn, e + 14, e + 15)
    A('v_permlane32_swap_b32 v%d, v%d', sp, sn)
    A('v_add_f32 v%d, v%d, v%d', sp, sp, sn)
    A('v_rcp_f32 v%d, v%d', sp, sp)
    A('v_mov_b32 v%d, v%d', sn, sp)
    A('v_permlane32_swap_b32 v%d, v%d', sp, sn)
    for i in range(0, 14, 2):
        for base, r in ((p, sp), (e, sn)):
            if PKSM:
                A('v_pk_mul_f32 v[%d:%d], v[%d:%d], v[%d:%d] op_sel_hi:[1,0]', base + i, base + i + 1, base + i,
                  base + i + 1, r, r + 1)
            else:
                A('v_mul_f32 v%d, v%d, v%d', base + i, base + i, r)
                A('v_mul_f32 v%d, v%d, v%d', base + i + 1, base + i + 1, r)
    for i, (a0, a1) in enumerate(((0, 1), (2, 3), (4, 5), (6, None), (7, 8), (9, 10), (11, 12), (13, None))):
        for base in (p, e):
            A('v_cvt_pk_bf16_f32 v%d, v%d, %s', base + i, base + a0, '0' if a1 is None else 'v%d' % (base + a1))


PKSM = E('PKSM', 1)


def silu8(B, acc, e, sd, c1, out):
    for r in range(8):
        B('v_mul_f32 v%d, v%d, v%d', e + r, acc + r, c1)
        if r >= 1:
            B('v_exp_f32 v%d, v%d', e + r - 1, e + r - 1)
    B('v_exp_f32 v%d, v%d', e + 7, e + 7)
    for r in range(8):
        B('v_fma_f32 v%d, v%d, v%d, v%d', e + r, e + r, sd, sd)
        if r >= 1:
            B('v_rcp_f32 v%d, v%d', e + r - 1, e + r - 1)
    B('v_rcp_f32 v%d, v%d', e + 7, e + 7)
    for r in range(8):
        B('v_mul_f32 v%d, v%d, v%d', e + r, e + r, acc + r)
    cvt8(B, out, e, 4)


def cvt8(A, dst, src, n=8):
    for i in range(n):
        A('v_cvt_pk_bf16_f32 v%d, v%d, v%d', dst + i, src + 2 * i, src + 2 * i + 1)


def mfma(A, d, a_, b_, first=False):
    A('%s %s, %s, %s, %s', MFMA, v(d, 16), v(a_, 4), v(b_, 4), '0' if first else v(d, 16))


def merge(main, blocks, start, stop):
    idx = [i for i, l in enumerate(main) if l.strip().startswith('v_mfma')][start:stop]
    out, k = [], 0
    n = len(idx)
    pos = {i: j for j, i in enumerate(idx)}
    for i, l in enumerate(main):
        out.append(l)
        if i in pos:
            upto = (len(blocks) * (pos[i] + 1) + n - 1) // n
            for b in blocks[k:upto]:
                out += b
            k = max(k, upto)
    assert k >= len(blocks)
    return out


def sub(A):
    return Asm()


L_H = (L_A, L_A + 28672, 0, 65536)
W2S = [32768, 40960] + [L_A + k * 8192 for k in range(2)] + [L_SC0, L_SC1] + [L_A + k * 8192 for k in range(2, 7)] + [
    k * 8192 for k in range(4)] + [65536 + k * 8192 for k in range(4)]
W2GATE = {2: 9, 7: 10, 11: 11, 15: 12}
W2RE = dict(zip(range(19, 28), (0, 1, 2, 3, 6, 7, 8, 9, 10)))


def w2_slot(n):
    return W2S[W2RE.get(n, n)]


def w1_slot(c):
    return B16[c % 5]


class LdsQ:
    def __init__(self, A):
        self.A, self.q = A, []
        self.peeked = False

    def op(self, tag, fmt, *a):
        self.A(fmt, *a)
        self.q.append(tag)

    def need(self, tag):
        idx = [i for i, x in enumerate(self.q) if x == tag]
        if not idx:
            return None
        n = len(self.q) - 1 - idx[-1]
        self.q = self.q[idx[-1] + 1:]
        return min(n, 15)

    def wait(self, tag, vm=None):
        n = self.need(tag)
        if n is None and vm is None:
            return
        self.A('s_waitcnt' + ('' if vm is None else ' vmcnt(%d)' % vm) + ('' if n is None else ' lgkmcnt(%d)' % n))

    def stage(self, n):
        set_stage(self.A, n)
        self.q.append('st')

    def peek(self, w):
        if w == 5:
            self.op('pk', 'ds_read_b32 v%d, v%d', vPK_, vCA)
        else:
            self.op('pk', 'ds_read_b32 v%d, v%d offset:%d', vPK_, vMI, M_PW + 4 * w)
        self.peeked = True

    def take(self, w):
        if not self.peeked:
            return
        self.peeked = False
        self.wait('pk')
        self.A('v_readfirstlane_b32 s%d, v%d', CACHE[w], vPK_)


def tag_compute(A, t16=None):
    A('s_waitcnt lgkmcnt(0)')
    if t16 is not None:
        A('s_lshr_b32 s%d, s%d, 16', sT2, sTAG)
    A('s_mul_i32 s%d, s%d, 0x%x', sTAG, sTAG, 1664525)
    A('s_add_u32 s%d, s%d, 0x%x', sTAG, sTAG, 1013904223)
    A('v_mov_b32 v%d, s%d', vTAG, sTAG)
    if t16 is not None:
        A('s_and_b32 s%d, s%d, 0x3fff', t16, sTAG)
        A('s_and_b32 s%d, s%d, 0x4000', sT, sTAG)
        A('s_lshl_b32 s%d, s%d, 1', sT, sT)
        A('s_or_b32 s%d, s%d, s%d', t16, t16, sT)
        A('s_cmp_eq_u32 s%d, s%d', t16, sT2)
        A('s_cselect_b32 s%d, 1, 0', sT)
        A('s_xor_b32 s%d, s%d, s%d', t16, t16, sT)
        A('s_lshl_b32 s%d, s%d, 16', t16, t16)


def fast_check(A):
    A('s_getreg_b32 s%d, hwreg(HW_REG_XCC_ID)', sC)
    A('s_and_b32 s%d, s%d, 15', sC, sC)
    A('s_add_u32 s%d, s%d, s%d', sC, sC, sTAG)
    A('s_lshl_b32 s%d, s%d, 7', sT, sXCD)
    A('s_add_u32 s%d, s%d, %d', sT, sT, FREG)
    A('v_and_b32 v%d, 31, v%d', vT1, vL)
    A('v_lshlrev_b32 v%d, 2, v%d', vT1, vT1)
    A('buffer_load_dword v%d, v%d, s[%d:%d], s%d offen sc1', vT0, vT1, SWS, SWS + 3, sT)
    A('s_waitcnt vmcnt(0)')
    A('v_cmp_ne_u32 vcc, s%d, v%d', sC, vT0)
    A('s_cmp_eq_u64 vcc, 0')
    A('s_cselect_b32 s%d, 1, 0', sFASTF)


class Stream:
    def __init__(self, A, wave, depth, first=0):
        self.A, self.wave, self.depth = A, wave, depth
        self.items = []
        self.issued = 0
        self.known = 0
        self.n = first

    def wait_to(self, left):
        if self.issued - left <= self.known:
            return
        self.A('s_waitcnt vmcnt(%d)', left)
        self.known = self.issued - left
        last = None
        while self.items and self.items[0][1] <= self.known:
            last = self.items.pop(0)[0]
        if last is not None:
            set_stage(self.A, last)

    def room(self, k):
        self.wait_to(max(self.depth - k, 0))
        self.issued += k

    def done(self, name, cnt=None):
        self.n += 1
        assert LP.setdefault(name, (self.wave, self.n)) == (self.wave, self.n), name
        self.items.append((self.n, self.issued))

    def drain(self):
        self.drain_to(0)

    def drain_to(self, keep):
        while len(self.items) > keep:
            self.wait_to(self.issued - self.items[0][1])

    def save(self):
        return (list(self.items), self.issued, self.known)

    def restore(self, s):
        self.items, self.issued, self.known = list(s[0]), s[1], s[2]

    def dma4(self, lds, voffs, srd_, step=None, bits=''):
        A = self.A
        if isinstance(lds, tuple):
            A('s_add_u32 m0, s%d, %d', lds[0], lds[1])
        else:
            A('s_mov_b32 m0, %d', lds)
        self.room(4)
        for u in range(4):
            A('buffer_load_dwordx4 v%d, s[%d:%d], s%d offen offset:%d%s lds', voffs[u], srd_, srd_ + 3, sT, u * 1024,
              bits)
        if step:
            A('s_add_u32 s%d, s%d, %d', sT, sT, step)


def reg4(St, regs, voffs, srd_, step=None):
    St.room(4)
    for u in range(4):
        St.A('buffer_load_dwordx4 %s, v%d, s[%d:%d], s%d offen offset:%d', v(regs[u], 4), voffs[u], srd_, srd_ + 3, sT,
             u * 1024)
    if step:
        St.A('s_add_u32 s%d, s%d, %d', sT, sT, step)


def spill(St, name, regs, lds):
    A = St.A
    assert not St.items
    A('v_add_u32 v%d, %d, v%d', vT1, lds, vO)
    A('s_setprio %d', E('SPRIO', 0))
    for j, r in enumerate(regs):
        A('ds_write_b128 v%d, %s offset:%d', vT1, v(r, 4), j * 1024)
    St.n += 1
    assert LP.setdefault(name, (St.wave, St.n)) == (St.wave, St.n), name
    set_stage(A, St.n)


def off128(A, vW128, vXo=None):
    A('v_lshrrev_b32 v%d, 3, v%d', vW128, vL)
    A('v_mul_u32_u24 v%d, 896, v%d', vW128, vW128)
    A('v_and_b32 v%d, 7, v%d', vT1, vL)
    if vXo is not None:
        A('v_lshl_add_u32 v%d, v%d, 4, v%d', vXo, vT1, vW128)
        spread4(A, vXo, 8 * 896)
    A('v_lshrrev_b32 v%d, 2, v%d', vT0, vL)
    A('v_and_b32 v%d, 4, v%d', vT0, vT0)
    A('v_xor_b32 v%d, v%d, v%d', vT1, vT1, vT0)
    A('v_lshl_add_u32 v%d, v%d, 4, v%d', vW128, vT1, vW128)
    spread4(A, vW128, 8 * 896)


def off256(A, vW256):
    A('v_lshrrev_b32 v%d, 4, v%d', vW256, vL)
    A('v_mul_u32_u24 v%d, 3584, v%d', vW256, vW256)
    A('v_and_b32 v%d, 15, v%d', vT1, vL)
    A('v_lshrrev_b32 v%d, 2, v%d', vT0, vL)
    A('v_and_b32 v%d, 12, v%d', vT0, vT0)
    A('v_xor_b32 v%d, v%d, v%d', vT1, vT1, vT0)
    A('v_lshl_add_u32 v%d, v%d, 4, v%d', vW256, vT1, vW256)
    spread4(A, vW256, 4 * 3584)


def h_stream(A, first):
    wave = 7
    St = Stream(A, wave, E('HDEPTH', 24), first)
    if wave == 7:
        A('s_lshl_b32 s%d, s%d, 17', sB, sTB3)
        A('s_add_u32 s%d, s%d, %d', sB, sB, WS_HB + (0x40000000 if E('ABL', 0) & 128 else 0))
        rot_calc(A, sG, 'w1')
        for u in range(7):
            rot_idx(A, 4 + u, sG, u, 7)
            A('s_lshl_b32 s%d, s%d, 12', 4 + u, 4 + u)
            A('s_add_u32 s%d, s%d, s%d', 4 + u, 4 + u, sB)
            A('s_add_u32 s%d, s%d, 4096', 4 + u, 4 + u)
        A('s_lshl_b32 s%d, s%d, 8', sT2, sTB3)
        A('s_add_u32 s%d, s%d, %d', sT2, sT2, F3)
        A('v_lshlrev_b32 v%d, 2, v%d', vT1, vL)
        A('s_and_b32 s%d, s%d, 1', sC, sFB)
        A('s_lshl_b32 s%d, s%d, 16', sC, sC)
        wait_stage(A, C0 + 7, sleep=1)
        stamp(A)
        lo, done = A.label('P'), A.label('PD')
        A('s_mov_b32 exec_lo, 0x3fff3fff')
        A('s_mov_b32 exec_hi, 0x3fff3fff')
        A('%s:', lo)
        A('buffer_load_dword v%d, v%d, s[%d:%d], s%d offen sc1', vT0, vT1, SWS, SWS + 3, sT2)
        A('s_waitcnt vmcnt(0)')
        A('v_cmp_ne_u32 vcc, s%d, v%d', sTAG, vT0)
        spin_guard(A, done)
        A('s_cbranch_vccnz %s', lo)
        A('%s:', done)
        A('s_mov_b64 exec, -1')
        stamp(A)
        for gi in range(4):
            if gi == 2:
                wait_stage(A, C0 + 8)
            if gi:
                A('s_xor_b32 s%d, s%d, %d', sC, sC, (gi ^ (gi - 1)) << 15)
            St.depth = E('HDEPTH0', 12) if gi == 0 else E('HDEPTH', 24)
            for u in range(7):
                A('s_add_u32 s%d, s%d, s%d', sT, 4 + u, sC)
                St.dma4(L_H[gi] + u * 4096, [vO] * 4, SWS, None, LDB)
                St.done(('h', gi, u))
                if u == (3 if gi == 0 else 0):
                    A('s_add_u32 s%d, s%d, s%d', sT, sB, sC)
                    St.dma4(L_SC0 + gi * 4096, [vO] * 4, SWS, None, ' sc1')
                    St.done(('hs', gi))
        St.drain()
    stamp(A)


def spread4(A, base, step):
    for u in range(1, 4):
        A('v_add_u32 v%d, %d, v%d', base + u, u * (step - 1024), base)


def wtr_base(A):
    A('v_lshrrev_b32 v%d, 5, v%d', vT1, vL)
    A('v_bfe_u32 v%d, v%d, 2, 2', vT0, vL)
    A('v_lshl_add_u32 v%d, v%d, 3, v%d', vT0, vT1, vT0)
    A('v_lshlrev_b32 v%d, 6, v%d', vT0, vT0)
    A('v_bfe_u32 v%d, v%d, 4, 1', vTT, vL)
    A('v_lshl_add_u32 v%d, v%d, 5, v%d', vT0, vTT, vT0)
    A('v_and_b32 v%d, 3, v%d', vTT, vL)
    A('v_lshl_add_u32 v%d, v%d, 3, v%d', vT0, vTT, vT0)
    for pi in range(3):
        A('v_add_u32 v%d, %d, v%d', vWA + pi, L_WP[pi], vT0)
    A('v_lshlrev_b32 v%d, 3, v%d', vCA, vL)
    A('v_add_u32 v%d, %d, v%d', vCA, L_CF, vCA)


def sel_frags(A, vID):
    A('v_lshrrev_b32 v%d, 5, v%d', vT1, vL)
    A('v_and_b32 v%d, 31, v%d', vT0, vL)
    A('v_lshlrev_b32 v%d, 2, v%d', vTT, vT1)
    A('v_sub_u32 v%d, v%d, v%d', vT0, vT0, vTT)
    A('v_mov_b32 v%d, 0x3f80', vTT)
    A('v_mov_b32 v%d, 0x3f800000', vTT + 1)
    for sidx in range(2):
        for rr in range(4):
            m = 16 * sidx + 8 * (rr >> 1) + 2 * (rr & 1)
            A('v_cmp_eq_u32 vcc, %d, v%d', m, vT0)
            A('v_cndmask_b32 v%d, 0, v%d, vcc', vID + 4 * sidx + rr, vTT)
            A('v_cmp_eq_u32 vcc, %d, v%d', m + 1, vT0)
            A('v_cndmask_b32 v%d, v%d, v%d, vcc', vID + 4 * sidx + rr, vID + 4 * sidx + rr, vTT + 1)


def read_w(A, pi, i, buf, sleep=0):
    wait_lp(A, ('W', pi, i), sleep)
    for q in range(4):
        for z in range(2):
            A('ds_read_b64_tr_b16 v[%d:%d], v%d offset:%d', buf + 4 * q + 2 * z, buf + 4 * q + 2 * z + 1,
              vWA + pi, i * 4096 + q * 1024 + z * 256)


def colsum(A, spi):
    vCS, vB_, buf = 40, 44, 48
    A('v_mov_b32 v%d, 0', vCS)
    A('v_mov_b32 v%d, 0', vCS + 1)
    A('s_cmp_eq_u32 s%d, 1', spi)
    A('s_cselect_b32 s%d, 0, %d', sT, L_WP[2])
    A('s_cmp_eq_u32 s%d, 0', spi)
    A('s_cselect_b32 s%d, %d, s%d', sT, L_WP[0], sT)
    assert L_WP[1] == 0
    A('v_add_u32 v%d, s%d, v%d', vB_, sT, vWA + 1)
    A('s_mul_i32 s%d, s%d, 7', sC, spi)
    A('s_add_u32 s%d, s%d, 7', sT2, sC)
    top, lo, ok = A.label('CS'), A.label('W'), A.label('WD')
    A('%s:', top)
    A('s_cmp_gt_u32 s%d, s%d', sPROG, sC)
    A('s_cbranch_scc1 %s', ok)
    prio(A, 0)
    A('%s:', lo)
    A('ds_read_b32 v%d, v%d offset:%d', vPW, vMI, M_PW + 16)
    A('s_waitcnt lgkmcnt(0)')
    A('v_readfirstlane_b32 s%d, v%d', sPROG, vPW)
    spin_guard(A, ok)
    A('s_cmp_gt_u32 s%d, s%d', sPROG, sC)
    again(A, 's_cbranch_scc0', lo)
    prio(A, 1)
    A('%s:', ok)
    for q in range(4):
        for z in range(2):
            A('ds_read_b64_tr_b16 v[%d:%d], v%d offset:%d', buf + 4 * q + 2 * z, buf + 4 * q + 2 * z + 1, vB_,
              q * 1024 + z * 256)
    A('v_add_u32 v%d, 4096, v%d', vB_, vB_)
    A('s_add_u32 s%d, s%d, 1', sC, sC)
    for q in range(4):
        A('s_waitcnt lgkmcnt(%d)', 6 - 2 * q)
        for r in range(4):
            A('v_dot2c_f32_bf16 v%d, s%d, v%d', vCS + (r & 1), sONES, buf + 4 * q + r)
    A('s_cmp_lt_u32 s%d, s%d', sC, sT2)
    A('s_cbranch_scc1 %s', top)
    A('v_add_f32 v%d, v%d, v%d', vCS, vCS, vCS + 1)
    hilo_c(A, vCS, vCS + 2, vT0)
    A('s_lshl_b32 s%d, s%d, 9', sT, spi)
    A('v_add_u32 v%d, s%d, v%d', vB_, sT, vCA)
    A('ds_write_b64 v%d, v[%d:%d]', vB_, vCS + 2, vCS + 3)


ROT = E('ROT', 1)
W7ST = 0
LATE = E('LATE', 1)
W2R = E('W2R', 0)


def rot_calc(A, dst, kind):
    if not ROT:
        A('s_mov_b32 s%d, 0', dst)
        return
    if kind == 'w1':
        A('s_and_b32 s%d, s%d, 1', dst, sTB3)
        A('s_mul_i32 s%d, s%d, %d', dst, dst, 4 if LATE else 3)
        mod = 7
    elif kind == 'wo':
        A('s_and_b32 s%d, s%d, 3', dst, sTQ)
        A('s_lshl_b32 s%d, s%d, 1', dst, dst)
        mod = 7
    else:
        A('s_and_b32 s%d, s%d, 3', dst, sTQ)
        A('s_mul_i32 s%d, s%d, 7', dst, dst)
        A('s_lshr_b32 s%d, s%d, 1', dst, dst)
        mod = 14
    A('s_add_u32 s%d, s%d, s%d', dst, dst, sXCD)
    A('s_cmp_ge_u32 s%d, %d', dst, mod)
    A('s_cselect_b32 s%d, %d, 0', sT, mod)
    A('s_sub_u32 s%d, s%d, s%d', dst, dst, sT)


def rot_idx(A, dst, rot, j, mod):
    A('s_add_u32 s%d, s%d, %d', dst, rot, j)
    A('s_cmp_ge_u32 s%d, %d', dst, mod)
    A('s_cselect_b32 s%d, %d, 0', sT2, mod)
    A('s_sub_u32 s%d, s%d, s%d', dst, dst, sT2)


def blk_init(A, sb, sst, kh):
    A('s_and_b32 s%d, s%d, 1', sb, sTQ)
    if isinstance(kh, str):
        A('s_xor_b32 s%d, s%d, %s', sb, sb, kh)
    elif kh:
        A('s_xor_b32 s%d, s%d, 1', sb, sb)
    A('s_lshr_b32 s%d, s%d, 1', sT, sTQ)
    A('s_xor_b32 s%d, s%d, s%d', sT, sT, sXCD)
    A('s_sub_u32 s%d, 6, s%d', sT2, sb)
    A('s_bitcmp1_b32 s%d, 0', sT)
    A('s_cselect_b32 s%d, s%d, s%d', sb, sT2, sb)
    A('s_cselect_b32 s%d, 5, 2', sst)


def blk_next(A, sb, sst):
    A('s_add_u32 s%d, s%d, s%d', sb, sb, sst)
    A('s_cmp_ge_u32 s%d, 7', sb)
    A('s_cselect_b32 s%d, 7, 0', sT2)
    A('s_sub_u32 s%d, s%d, s%d', sb, sb, sT2)


def rest_srds(A):
    A('s_add_u32 s82, s80, %d', FEP)
    A('s_addc_u32 s83, s81, 0')
    A('s_load_dword s%d, s[82:83], 0', sTAG)
    srd(A, SP, 68, H * DH * DH * 2)
    A('s_mul_i32 s%d, s%d, 37', sTQ, sI)
    A('s_lshr_b32 s%d, s%d, 8', sTQ, sTQ)
    A('s_mul_i32 s%d, s%d, 7', sNB, sTQ)
    A('s_sub_u32 s%d, s%d, s%d', sNB, sI, sNB)
    A('s_lshr_b32 s%d, s%d, 1', sTB3, sTQ)
    A('s_mul_i32 s%d, s%d, 14', sFB, sTB3)
    A('s_sub_u32 s%d, s%d, s%d', sFB, sI, sFB)
    A('s_lshl2_add_u32 s%d, s%d, s%d', sTQ, sXCD, sTQ)
    A('s_lshl1_add_u32 s%d, s%d, s%d', sTB3, sXCD, sTB3)
    A('v_lshlrev_b32 v%d, 4, v%d', vO, vL)
    A('s_mov_b32 s%d, 0', sFASTF)
    A('s_mov_b32 s%d, 0x%x', sONES, ONES)
    ABL = E('ABL', 0)
    srd(A, SWO, 70, 0 if ABL & 1 else D * D * 2)
    srd(A, SW1, 74, 0 if ABL & 2 else D * F * 2)
    srd(A, SW2, 76, 0 if ABL & 4 else D * F * 2)
    srd(A, SOUT, 78, S * D * 2)
    srd(A, SWS, 80, WS_SIZE)


def rot_next(A):
    A('s_add_u32 s%d, s%d, 1', sC, sC)
    A('s_cmp_eq_u32 s%d, 7', sC)
    A('s_cselect_b32 s%d, 0, s%d', sC, sC)


def sig_dyn(A, sval):
    A('v_mov_b32 v%d, s%d', vT0, sval)
    A('ds_write_b32 v%d, v%d', vMY, vT0)


def x_offsets(A):
    A('v_lshrrev_b32 v%d, 3, v%d', vT0, vL)
    A('v_mul_u32_u24 v%d, 896, v%d', vT0, vT0)
    A('v_lshrrev_b32 v%d, 4, v%d', vT1, vL)
    A('v_and_b32 v%d, 7, v%d', vXD, vL)
    A('v_xor_b32 v%d, v%d, v%d', vXD, vXD, vT1)
    A('v_xor_b32 v%d, 4, v%d', vXD + 1, vXD)
    A('v_lshl_add_u32 v%d, v%d, 4, v%d', vXD, vXD, vT0)
    A('v_lshl_add_u32 v%d, v%d, 4, v%d', vXD + 1, vXD + 1, vT0)
    A('v_add_u32 v%d, %d, v%d', vXD + 1, 8 * 896 - 1024, vXD + 1)
    A('v_add_u32 v%d, %d, v%d', vXD + 2, 2 * (8 * 896 - 1024), vXD)
    A('v_add_u32 v%d, %d, v%d', vXD + 3, 2 * (8 * 896 - 1024), vXD + 1)
    A('s_mul_i32 s%d, s%d, %d', sXB, sTB, 128 * 896)


def w_offsets(A):
    vW = 40
    A('v_lshrrev_b32 v%d, 2, v%d', vW, vL)
    A('v_mul_u32_u24 v%d, 2688, v%d', vW, vW)
    A('v_and_b32 v%d, 3, v%d', vT1, vL)
    A('v_lshl_add_u32 v%d, v%d, 4, v%d', vW, vT1, vW)
    A('s_mul_i32 s%d, s%d, 56', sT, sH)
    A('s_and_b32 s%d, s%d, 0xfffffff0', sT, sT)
    A('v_add_u32 v%d, s%d, v%d', vW, sT, vW)
    spread4(A, vW, 16 * 2688)


def early_x(A):
    depth = E('XDEPTH', 16)
    wsig = ((depth - 4) // 4) % 4
    lag = (depth - 4 - 4 * wsig) // 16
    A('s_mov_b32 s%d, %d', sG, 1 - lag)
    A('s_mov_b32 m0, %d', L_X + 16384)
    A('s_mov_b32 s%d, s%d', sC, sC0)
    rot_next(A)
    top = A.label('XL')
    A('%s:', top)
    A('s_lshl_b32 s%d, s%d, 7', sT, sC)
    A('s_add_u32 s%d, s%d, s%d', sT, sT, sXB)
    for w in range(4):
        A('s_waitcnt vmcnt(%d)', depth - 4)
        if w == wsig:
            A('s_max_i32 s%d, s%d, 0', sT2, sG)
            sig_dyn(A, sT2)
        for u in range(4):
            A('buffer_load_dwordx4 v%d, s[%d:%d], s%d offen offset:%d lds', vXD + u, SX, SX + 3, sT, u * 1024)
        A('s_add_u32 m0, m0, 4096')
        if w < 3:
            A('s_add_u32 s%d, s%d, %d', sT, sT, 32 * 896)
    rot_next(A)
    A('s_add_u32 s%d, s%d, 1', sG, sG)
    A('s_cmp_lt_i32 s%d, %d', sG, 7 - lag)
    A('s_cbranch_scc1 %s', top)
    stamp(A)
    for n in range(7 - lag, 8):
        A('s_waitcnt vmcnt(%d)', 16 * (7 - n))
        set_stage(A, n)


def early_w(A):
    vW = 40

    def part_loop(pi, depth, floor):
        lag = (depth - 4) // 4
        stamp(A)
        A('s_mov_b32 s%d, s%d', sC, sC0)
        A('s_mov_b32 s%d, %d', sG, 7 * pi - lag)
        A('s_mov_b32 m0, %d', L_WP[pi])
        top = A.label('WL')
        A('%s:', top)
        A('s_mul_i32 s%d, s%d, %d', sT, sC, 64 * 2688)
        A('s_add_u32 s%d, s%d, %d', sT, sT, (1, 2, 0)[pi] * 896)
        A('s_max_i32 s%d, s%d, %d', sT2, sG, floor)
        A('s_waitcnt vmcnt(%d)', depth - 4)
        sig_dyn(A, sT2)
        for u in range(4):
            A('buffer_load_dwordx4 v%d, s[%d:%d], s%d offen offset:%d lds', vW + u, SW, SW + 3, sT, u * 1024)
        A('s_add_u32 m0, m0, 4096')
        rot_next(A)
        A('s_add_u32 s%d, s%d, 1', sG, sG)
        A('s_cmp_lt_i32 s%d, %d', sG, 7 * pi + 7 - lag)
        A('s_cbranch_scc1 %s', top)
        return lag
    lag = part_loop(0, E('WDEPTH', 8), 0)
    for n in range(7 - lag, 8):
        A('s_waitcnt vmcnt(%d)', 4 * (7 - n))
        set_stage(A, n)
    wait_stage(A, 1)
    if E('XG2', 4) >= 0:
        wait_lp(A, ('x', E('XG2', 4)))
    part_loop(1, E('WDEPTH2', 24), 7)


def gen_h0(A):
    St = Stream(A, 4, E('WDEPTH2', 24), 14)
    St.issued = 56
    St.known = 56 - St.depth
    St.items = [(n + 1, 4 * n + 4) for n in range(14) if 4 * n + 4 > St.known]
    vW, vW128, vXo, vW256 = 36, 12, 16, 20
    q4 = lambda b: [b, b + 1, b + 2, b + 3]
    for u in range(4):
        A('v_mov_b32 v%d, v%d', vW + u, 40 + u)
    rest_srds(A)

    def wq():
        wait_stage(A, 2)
        stamp(A)
        for i in range(7):
            rot_idx(A, sT, sC0, i, 7)
            A('s_mul_i32 s%d, s%d, %d', sT, sT, 64 * 2688)
            St.dma4(L_WP[2] + i * 4096, q4(vW), SW)
            St.done(('W', 2, i))
    lend = A.label('LEND')
    act = A.label('ACT')
    A('s_cmp_lt_u32 s%d, 28', sI)
    A('s_cbranch_scc1 %s', act)
    keep, n0 = St.save(), _st['n']
    wq()
    St.drain()
    St.restore(keep)
    St.n = 14
    if E('TOUCH', 1):
        def touch(srd_, base, per_xcd, n):
            A('s_mul_i32 s%d, s%d, %d', sT, sXCD, per_xcd)
            A('s_sub_u32 s%d, s%d, 28', sT2, sI)
            A('s_mul_i32 s%d, s%d, %d', sT2, sT2, n * 8192)
            A('s_add_u32 s%d, s%d, s%d', sT, sT, sT2)
            A('s_add_u32 s%d, s%d, %d', sT, sT, base)
            A('s_mov_b32 s%d, %d', sC, n)
            lo = A.label('T')
            A('%s:', lo)
            A('buffer_load_dword v%d, v%d, s[%d:%d], s%d offen', vW + 1, vW, srd_, srd_ + 3, sT)
            A('s_add_u32 s%d, s%d, 8192', sT, sT)
            A('s_waitcnt vmcnt(%d)', E('TDEPTH', 6))
            A('s_sub_u32 s%d, s%d, 1', sC, sC)
            A('s_cmp_lg_u32 s%d, 0', sC)
            A('s_cbranch_scc1 %s', lo)
        A('v_lshlrev_b32 v%d, 7, v%d', vW, vL)
        if E('W2M', 1) == 2:
            touch(SW2, 0, 4 * 7 * 8192, 7)
        if E('TEARLY', 0):
            wait_stage(A, 3, (5, 6), sleep=2)
        else:
            wait_stage(A, C0 + 5, sleep=2)
        stamp(A)
        if HLATE and not WTO:
            touch(SWS, WS_HB, 262144, 8)
        if E('W2M', 1) == 1:
            touch(SW2, 0, 4 * 7 * 8192, 7)
        stamp(A)
        if not WT1:
            touch(SWS, WS_H1B, 8 * 112 * 1024, 28)
        stamp(A)
        if E('W2WARM', 0):
            touch(SW2, 0, 0, 49)
        stamp(A)
        if E('WBL2', 0):
            tag_compute(A)
            skipw = A.label('NW')
            if E('WBL2', 0) == 1:
                A('s_cmp_lg_u32 s%d, 28', sI)
                A('s_cbranch_scc1 %s', skipw)
            A('s_lshl_b32 s%d, s%d, 2', sC, sXCD)
            A('s_add_u32 s%d, s%d, s%d', sC, sC, sI)
            A('s_sub_u32 s%d, s%d, 28', sC, sC)
            A('s_lshl_b32 s%d, s%d, 8', sC, sC)
            A('s_add_u32 s%d, s%d, %d', sC, sC, F4)
            poll_global(A, sC, (1 << 56) - 1)
            A('buffer_wbl2 sc1')
            A('s_waitcnt vmcnt(0)')
            A('%s:', skipw)
    _st['n'] = n0
    A('s_branch %s', lend)
    A('%s:', act)
    off128(A, vW128)
    off256(A, vW256)
    A('s_lshl_b32 s%d, s%d, 7', sB, sNB)

    sR1, sRO, sR2 = sG, sKH, sXB
    rot_calc(A, sR1, 'w1')
    rot_calc(A, sRO, 'wo')
    sBK, sBS = [8, 9], 10
    blk_init(A, sBK[0], sBS, 0)
    blk_init(A, sBK[1], sBS, 1)

    def w1_off(c):
        rot_idx(A, sT, sR1, c, 7)
        A('s_mul_i32 s%d, s%d, %d', sT, sT, 64 * 3584)
        A('s_lshl_b32 s%d, s%d, 8', sT2, sFB)
        A('s_add_u32 s%d, s%d, s%d', sT, sT, sT2)

    def w1_chunk(c):
        w1_off(c)
        for u in range(4):
            St.dma4(w1_slot(c) + u * 4096, q4(vW256), SW1, 16 * 3584 if u < 3 else None)
        St.done(('w1', c), 16)

    def w2_item(n):
        c, kh = n >> 1, n & 1
        A('s_mul_i32 s%d, s%d, %d', sT, sBK[kh], 128 * 896)
        A('s_add_u32 s%d, s%d, s%d', sT, sT, sB)
        if kh or (c & 1):
            A('s_add_u32 s%d, s%d, %d', sT, sT, (kh * 896 + (c & 1) * 64) * 896)
        if c & 1:
            blk_next(A, sBK[kh], sBS)
        for u in range(2):
            St.dma4(w2_slot(n) + u * 4096, q4(vW128), SW2, 32 * 896 if u < 1 else None)
        St.done(('w2', n), 8)

    SR = [24, 28] + list(range(40, 256, 4))

    def staged():
        for u in range(12):
            if u % 4 == 0:
                w1_off((0 if LATE else 4) + u // 4)
            reg4(St, SR[8 + 4 * u:12 + 4 * u], q4(vW256), SW1, 16 * 3584)
            if u == 5:
                St.depth = E('LDEPTH', 32)

    def wo():
        St.drain_to(3)
        wait_stage(A, 3)
        wait_word(A, 5, 1)
        stamp(A)
        for c in range(7):
            rot_idx(A, sC, sRO, c, 7)
            A('s_mul_i32 s%d, s%d, %d', sT, sC, 64 * 896)
            A('s_add_u32 s%d, s%d, s%d', sT, sT, sB)
            A('s_lshl_b32 s%d, s%d, 13', sC, sC)
            for u in range(2):
                St.dma4((sC, L_A + u * 4096), q4(vW128), SWO, 32 * 896 if u < 1 else None)
            if c == 2:
                St.depth = E('LDEPTH', 32)
        St.done('wo')
    def quiet():
        St.drain()
        if E('QLONG', 0):
            wait_stage(A, C0 + 5, sleep=1)
        else:
            wait_stage(A, 3, (5, 6), sleep=1)
    if E('ORDER', 1) == 0:
        wq(), wo(), staged()
    elif E('ORDER', 1) == 3:
        wq(), quiet(), wo(), staged()
    elif E('ORDER', 1) == 4:
        wq(), wo(), quiet(), staged()
    elif E('ORDER', 1) == 5:
        staged()
        St.depth = E('WDEPTH2', 24)
        wq(), wo(), quiet()
    else:
        if E('ORDER', 1) == 2:
            St.drain_to(2)
        staged()
        St.depth = E('WDEPTH2', 24)
        wq(), wo()
    stamp(A)
    wait_stage(A, 2, (5, 6))
    stamp(A)
    if LATE:
        n3 = St.n
        St.n += 3
        w1_chunk(3)
        St.items, it3 = St.items[:-1], St.items[-1]
        St.drain()
        St.wait_to(16)
        St.n = n3
        for c in range(3):
            spill(St, ('w1', c), SR[8 + 16 * c:24 + 16 * c], w1_slot(c))
        St.n += 1
        St.items = [it3]
        St.drain()
        stamp(A)
        wait_stage(A, C0 + 3)
        wait_word(A, 7, 9)
        wait_stage(A, 1, base=M_CP)
        if LATE == 1:
            wait_stage(A, 1, base=M_LD)
        elif LATE == 2:
            wait_stage(A, 3, (5, 6))
        St.depth = E('LATEDEPTH', 20)
        for c in (4, 5, 6):
            w1_chunk(c)
        St.drain()
    else:
        for c in range(4):
            w1_chunk(c)
        St.drain()
        St.wait_to(0)
        stamp(A)
        wait_stage(A, C0 + 3)
        wait_word(A, 7, 9)
        spill(St, ('w1', 4), SR[8:24], w1_slot(4))
        wait_stage(A, 1, base=M_CP)
        spill(St, ('w1', 5), SR[24:40], w1_slot(5))
        spill(St, ('w1', 6), SR[40:56], w1_slot(6))
    stamp(A)
    wait_stage(A, C0 + 8, sleep=2)
    wait_lp(A, ('h', E('W2AFTER', 2), E('W2AFTERQ', 1)), 1)
    stamp(A)
    St.depth = E('W2DEPTH', 24)
    for n in range(28):
        if n in W2GATE:
            wait_stage(A, C0 + W2GATE[n])
        if n == 4:
            wait_word(A, 5, 7)
        if n == 19:
            stamp(A)
            St.depth = E('W2DEPTH3', 32)
        if n >= 19:
            m = W2RE[n]
            wait_stage(A, C0 + 13 + (m >> 1), (0, 1) if (m & 1) == 0 else (2, 3))
        w2_item(n)
    St.drain()
    stamp(A)
    A('%s:', lend)
    A('s_waitcnt lgkmcnt(0)')
    stamp_flush(A)
    A('s_endpgm')


def gen_h1(A):
    stamp(A)
    rest_srds(A)
    wtr_base(A)
    tag_compute(A)
    def extras():
        if WARM:
            for srd_, size in ((SWO, D * D * 2), (SW1, D * F * 2), (SW2, D * F * 2)):
                A('s_mul_i32 s%d, s2, %d', sT, size // 256)
                A('v_lshlrev_b32 v%d, 7, v%d', vT1, vL)
                A('s_mov_b64 exec, 0x%x', (1 << ((size // 256 + 127) // 128)) - 1) if size // 256 < 4096 else None
                if size // 256 >= 4096:
                    A('s_mov_b32 exec_hi, 0x%x', (1 << ((size // 256 + 127) // 128 - 32)) - 1)
                A('buffer_load_dword v63, v%d, s[%d:%d], s%d offen', vT1, srd_, srd_ + 3, sT)
                A('s_mov_b64 exec, -1')
        if E('TOUCH', 1) and not WTO:
            A('s_lshl_b32 s%d, s%d, 18', sT, sXCD)
            A('s_lshl_b32 s%d, s%d, 13', sT2, sI)
            A('s_add_u32 s%d, s%d, s%d', sT, sT, sT2)
            A('v_lshlrev_b32 v%d, 7, v%d', vT1, vL)
            for base in ([WS_OB] if MAP == 0 else []) + ([] if HLATE else [WS_HB]):
                A('s_add_u32 s%d, s%d, %d', sT2, sT, base)
                A('buffer_load_dword v63, v%d, s[%d:%d], s%d offen', vT1, SWS, SWS + 3, sT2)

    if TOUCHAT == 0:
        extras()
    A('s_mov_b32 s%d, 1', sG)
    off256(A, 20)
    rot_calc(A, sXB, 'w1')
    cs, cs2 = A.label('CSL'), A.label('CSM')
    St = Stream(A, 7, E('W7DEPTH', 16), 9)

    def stage7():
        for u in range(4 * W7ST):
            if u % 4 == 0:
                rot_idx(A, sT, sXB, u // 4, 7)
                A('s_mul_i32 s%d, s%d, %d', sT, sT, 64 * 3584)
                A('s_lshl_b32 s%d, s%d, 8', sT2, sFB)
                A('s_add_u32 s%d, s%d, s%d', sT, sT, sT2)
            reg4(St, [64 + 16 * u + 4 * k for k in range(4)], [20, 21, 22, 23], SW1, 16 * 3584)
    A('%s:', cs)
    colsum(A, sG)
    A('s_add_u32 s%d, s%d, 7', sT, sG)
    sig_dyn(A, sT)
    A('s_add_u32 s%d, s%d, 1', sG, sG)
    A('s_cmp_eq_u32 s%d, 3', sG)
    A('s_cbranch_scc1 %s', cs2)
    A('s_cmp_ge_u32 s%d, 28', sI)
    A('s_cbranch_scc1 %s', cs)
    stage7()
    A('s_branch %s', cs)
    A('%s:', cs2)
    if TOUCHAT == 2:
        extras()
    stamp(A)
    lend = A.label('LEND')
    A('s_cmp_ge_u32 s%d, 28', sI)
    A('s_cbranch_scc1 %s', lend)
    if W7ST:
        A('s_waitcnt vmcnt(%d)', 1 if TOUCHAT == 2 and not WARM else 0)
        wait_stage(A, 2, (5, 6))
        for c in range(W7ST):
            spill(St, ('w1', c), [64 + 64 * c + 4 * k for k in range(16)], w1_slot(c))
        stamp(A)
    h_stream(A, 9 + W7ST)
    A('%s:', lend)
    A('s_waitcnt lgkmcnt(0)')
    stamp_flush(A)
    A('s_endpgm')


def gen_h23(A):
    vID, vAF, vVF, vAC, vG = 64, 72, 104, 136, 72
    rest_srds(A)
    sTL = sKH
    A('s_sub_u32 s%d, s%d, 5', sTL, sWV)
    skip = A.label('NOST')
    A('s_cmp_eq_u32 s%d, 1', sTL)
    A('s_cbranch_scc1 %s', skip)
    A('s_mul_i32 s%d, s%d, 1568', sT, sH)
    A('s_mov_b32 m0, %d', L_PHI)
    A('buffer_load_dwordx4 v%d, s[%d:%d], s%d offen lds', vO, SP, SP + 3, sT)
    A('buffer_load_dwordx4 v%d, s[%d:%d], s%d offen offset:1024 lds', vO, SP, SP + 3, sT)
    if CODEPF:
        A('s_mul_i32 s%d, s%d, %d', sT, sI, 1280)
        A('v_lshlrev_b32 v%d, 7, v%d', vT1, vL)
        A('v_add_u32 v%d, s%d, v%d', vT1, sT, vT1)
        A('s_mov_b64 exec, 0x3ff')
        A('global_load_dword v72, v%d, s[%d:%d]', vT1, sPC, sPC + 1)
        A('s_mov_b64 exec, -1')
    A('%s:', skip)
    if E('TLB', 0):
        A('v_lshlrev_b32 v%d, 20, v%d', vT1, vL)
        A('s_lshl_b32 s%d, s%d, 7', sT, sI)
        for srd_ in (SWS, SOUT, SWO, SW1, SW2):
            A('buffer_load_dword v73, v%d, s[%d:%d], s%d offen', vT1, srd_, srd_ + 3, sT)
    wtr_base(A)
    sel_frags(A, vID)
    sT16 = sZA
    tag_compute(A, sT16)
    if FAST:
        skip = A.label('NORG')
        A('s_cmp_eq_u32 s%d, 0', sTL)
        A('s_cbranch_scc1 %s', skip)
        A('s_getreg_b32 s%d, hwreg(HW_REG_XCC_ID)', sT2)
        A('s_and_b32 s%d, s%d, 15', sT2, sT2)
        A('s_add_u32 s%d, s%d, s%d', sT2, sT2, sTAG)
        A('v_mov_b32 v%d, s%d', vT0, sT2)
        A('s_lshl_b32 s%d, s%d, 7', sT, sXCD)
        A('s_lshl_b32 s%d, s%d, 2', sT2, sI)
        A('s_add_u32 s%d, s%d, s%d', sT, sT, sT2)
        A('s_add_u32 s%d, s%d, %d', sT, sT, FREG)
        A('s_mov_b64 exec, 1')
        A('buffer_store_dword v%d, v%d, s[%d:%d], s%d offen sc1', vT0, vO, SWS, SWS + 3, sT)
        A('s_mov_b64 exec, -1')
        A('%s:', skip)
    six, both = A.label('SIX'), A.label('BOTH')
    A('s_cmp_eq_u32 s%d, 1', sTL)
    A('s_cbranch_scc1 %s', six)
    colsum(A, sTL)
    A('s_waitcnt vmcnt(0)')
    A('s_branch %s', both)
    A('%s:', six)
    if FAST:
        wait_lp(A, ('x', 6), 2)
        fast_check(A)
        A('v_mov_b32 v%d, s%d', vT0, sFASTF)
        A('ds_write_b32 v%d, v%d offset:%d', vMI, vT0, M_FAST)
    A('%s:', both)
    set_stage(A, 1)
    stamp(A)
    A('s_lshl_b32 s%d, s%d, 11', sT2, sTL)
    A('v_add_u32 v%d, s%d, v%d', vTT, sT2, vO)
    A('v_add_u32 v%d, %d, v%d', vTT + 1, L_KVA, vTT)
    A('v_add_u32 v%d, %d, v%d', vTT + 2, L_KVV, vO)
    A('s_lshl_b32 s%d, s%d, 16', sXB, sH)
    A('s_add_u32 s%d, s%d, s%d', sXB, sXB, sT2)
    A('s_add_u32 s%d, s%d, %d', sXB, sXB, WS_KVP)
    A('s_lshl_b32 s%d, s%d, 12', sB, sTB)
    A('s_add_u32 s%d, s%d, s%d', sB, sB, sXB)
    A('s_lshl_b32 s%d, s%d, 1', sM0, sH)
    A('s_add_u32 s%d, s%d, s%d', sM0, sM0, sTL)
    FSH = E('F1SH', 8)
    A('s_lshl_b32 s%d, s%d, %d', sM0, sM0, 4 + FSH)
    A('s_add_u32 s%d, s%d, %d', sM0, sM0, F1)
    A('s_lshl_b32 s%d, s%d, 2', sFL, sTB)
    A('s_add_u32 s%d, s%d, s%d', sFL, sFL, sM0)
    A('s_lshl_b32 s%d, s%d, %d', sT, sTB, FSH)
    A('s_add_u32 s%d, s%d, s%d', sM0, sM0, sT)
    A('s_add_u32 s%d, s%d, s%d', sPC, SWS, sM0)
    A('s_addc_u32 s%d, s%d, 0', sPC + 1, SWS + 1)
    A('v_lshlrev_b32 v%d, %d, v%d', vXA, FSH, vL)
    A('v_lshlrev_b32 v%d, 2, v%d', vXA + 1, vL)
    vTA = 152
    wait_stage(A, C0)
    for k in range(8):
        A('ds_read_b128 %s, v%d offset:%d', v(vVF + 4 * k, 4), vTT + 1, (k >> 1) * 4096 + (k & 1) * 1024)
    for k in range(8):
        A('s_waitcnt lgkmcnt(%d)', 7 - k)
        mfma(A, vTA + 16 * (k >> 1), vVF + 4 * k, vID + 4 * (k & 1), (k & 1) == 0)
    for w in range(4):
        cvt8(A, vAF + 8 * w, vTA + 16 * w)

    def v_reads():
        for k in range(8):
            A('ds_read_b128 %s, v%d offset:%d', v(vVF + 4 * k, 4), vTT + 2, (k >> 1) * 4096 + (k & 1) * 1024)
        return 8
    wait_stage(A, C0 + 1, body=v_reads)
    stamp(A)
    for k in range(8):
        A('s_waitcnt lgkmcnt(%d)', 7 - k)
        mfma(A, vAC, vAF + 4 * k, vVF + 4 * k, k == 0)
    set_stage(A, 2)
    cvt8(A, vAF, vAC)
    TAGS = E('TAGS', 1)
    if TAGS:
        for q in range(2):
            A('v_and_b32 v%d, 0xffff, v%d', vAF + 4 * q + 3, vAF + 4 * q + 3)
            A('v_or_b32 v%d, s%d, v%d', vAF + 4 * q + 3, sT16, vAF + 4 * q + 3)
    pub_stores(A, [st4(vAF + 4 * q, sB, q * 1024) for q in range(2)], MAP == 3)
    if not TAGS:
        A('s_waitcnt vmcnt(0)')
    A('s_mov_b64 exec, 0xffff')
    two_ways(A, lambda B, bits: B('buffer_store_dword v%d, v%d, s[%d:%d], s%d offen%s', vTAG, vXA, SWS, SWS + 3, sFL,
                                  bits), MAP == 3)
    A('s_mov_b64 exec, -1')
    stamp(A)
    sRDY, sPND, sRET = sHI, sHI + 1, sPADL
    base = 68 if STAMPS else 72
    pol = A.label('POLL')
    B = sub(A)
    lo, out = B.label('P'), B.label('PD')
    B('%s:', pol)
    B('%s:', lo)
    if E('PSLEEP', 0):
        B('s_sleep %d', E('PSLEEP', 0))
    if E('SPOLL', 1) and MAP == 0:
        B('s_load_dwordx16 s[%d:%d], s[%d:%d], 0 glc', base, base + 15, sPC, sPC + 1)
        B('s_mov_b32 s%d, 0', sRDY)
        B('s_waitcnt lgkmcnt(%d)', E('PPIPE', 8))
        for p_ in range(15, -1, -1):
            B('s_cmp_eq_u32 s%d, s%d', base + p_, sTAG)
            B('s_addc_u32 s%d, s%d, s%d', sRDY, sRDY, sRDY)
    else:
        B('s_mov_b64 exec, 0xffff')
        B('buffer_load_dword v%d, v%d, s[%d:%d], s%d offen sc1', vT0, vXA + 1, SWS, SWS + 3, sM0)
        B('s_waitcnt vmcnt(0)')
        B('v_cmp_eq_u32 vcc, s%d, v%d', sTAG, vT0)
        B('s_mov_b64 exec, -1')
        B('s_mov_b32 s%d, vcc_lo', sRDY)
    B('s_sub_u32 s%d, s%d, 1', sSPIN, sSPIN)
    B('s_cselect_b32 s%d, -1, s%d', sRDY, sRDY)
    B('s_and_b32 s%d, s%d, s%d', sRDY, sRDY, sPND)
    B('s_cbranch_scc0 %s', lo)
    B('s_setpc_b64 s[%d:%d]', sRET, sRET + 1)
    over = A.label('OV')
    A('s_not_b32 s%d, s%d', base, sTAG)
    A('s_mov_b32 s%d, s%d', base + 1, base)
    for k in range(2, 16, 2):
        A('s_mov_b64 s[%d:%d], s[%d:%d]', base + k, base + k + 1, base, base + 1)
    A('s_branch %s', over)
    A.lines += B.lines
    A('%s:', over)
    A('s_mov_b32 s%d, 0', sRDY)
    A('s_mov_b32 s%d, 0xffff', sPND)
    vCK = vXA + 2
    A('v_mov_b32 v%d, 0', vCK)
    A('s_nop 1')
    vG = [72 + 4 * k for k in range(16)] + [152 + 4 * k for k in range(16)]
    GD = E('GLAG', 8)

    def gmm(k, issued):
        for q in range(2):
            A('s_waitcnt vmcnt(%d)', 2 * issued - (2 * k + q) - 1)
            mfma(A, vAC, vID + 4 * q, vG[2 * k + q], k == 0 and q == 0)
            if TAGS:
                A('v_xor_b32 v%d, s%d, v%d', vCK + 1, sT16, vG[2 * k + q] + 3)
                A('v_or_b32 v%d, v%d, v%d', vCK, vCK, vCK + 1)
    for k in range(16):
        A('s_getpc_b64 s[%d:%d]', sRET, sRET + 1)
        A('s_cmp_eq_u32 s%d, 0', sRDY)
        A('s_cbranch_scc1 %s', pol)
        A('s_ff1_i32_b32 s%d, s%d', sT, sRDY)
        A('s_bitset0_b32 s%d, s%d', sRDY, sT)
        A('s_bitset0_b32 s%d, s%d', sPND, sT)
        A('s_lshl_b32 s%d, s%d, 12', sT, sT)
        A('s_add_u32 s%d, s%d, s%d', sT, sT, sXB)
        if E('ABL', 0) & 32:
            A('s_mov_b32 s%d, s%d', sT, sB)
        for q in range(2):
            A('buffer_load_dwordx4 %s, v%d, s[%d:%d], s%d offen offset:%d sc1', v(vG[2 * k + q], 4), vO, SWS, SWS + 3,
              sT, q * 1024)
        if k == E('GST', 15):
            stamp(A)
        if k >= GD:
            gmm(k - GD, k + 1)
    for k in range(16 - GD, 16):
        gmm(k, 16)
    if TAGS:
        ok = A.label('TOK')
        A('v_cmp_lt_u32 vcc, 0xffff, v%d', vCK)
        spin_guard(A, ok)
        A('s_nop 15')
        A('s_cbranch_vccnz %s', over)
        A('%s:', ok)
    A('v_add_u32 v%d, %d, v%d', vTT, L_EX, vTT)
    cvt8(A, 72, vAC)
    for q in range(2):
        A('ds_write_b128 v%d, %s offset:%d', vTT, v(72 + 4 * q, 4), q * 1024)
    set_stage(A, 3)
    stamp(A)
    lend = A.label('LEND')
    A('s_cmp_ge_u32 s%d, 28', sI)
    A('s_cbranch_scc1 %s', lend)
    A('s_cmp_eq_u32 s%d, 1', sTL)
    A('s_cbranch_scc1 %s', lend)
    A('v_lshlrev_b32 v%d, 2, v%d', vCA, vL)
    A('v_add_u32 v%d, %d, v%d', vTT + 2, L_EX, vO)
    wait_stage(A, C0 + 7, sleep=2)
    HELP['hot'] = bool(E('STHOT', 0))
    for gi in range(4):
        wait_lp(A, ('hs', gi), 1)
        if E('STPRIO', 2) != 2:
            A('s_setprio %d', E('STPRIO', 2))
        base = L_SC0 + gi * 4096
        for q in range(7):
            A('ds_read2st64_b32 v[%d:%d], v%d offset0:%d offset1:%d', 72 + 2 * q, 73 + 2 * q, vCA,
              base // 256 + 2 * q, base // 256 + 2 * q + 1)
        A('s_waitcnt lgkmcnt(0)')
        for q in range(2, 14):
            A('v_add_f32 v%d, v%d, v%d', 72 + (q & 1), 72 + (q & 1), 72 + q)
        A('v_add_f32 v%d, v72, v73', vTT)
        ln_finish(A, vTT, vTT + 1, vNM, vRS)
        hilo_m(A, vNM, 88, vT0)
        A('v_mul_f32 v90, v%d, v%d', vTT + 1, vRS)
        A('v_mul_f32 v91, 0x%x, v%d', LOG2E ^ 0x80000000, vRS)
        A('ds_write_b128 v%d, v[88:91] offset:%d', vTT + 2, gi * 1024)
        set_stage(A, 4 + gi)
    HELP['hot'] = False
    A('%s:', lend)
    A('s_waitcnt lgkmcnt(0)')
    stamp_flush(A)
    A('s_endpgm')


def refresh_routines(A):
    for w in (7, 4):
        A('REFRESH_%d:', w)
        if w == 5:
            A('ds_read_b32 v%d, v%d', vPW, vCA)
        else:
            A('ds_read_b32 v%d, v%d offset:%d', vPW, vMI, M_PW + 4 * w)
        if E('CSLP', 0):
            A('s_mov_b32 vcc_hi, s%d', CACHE[w])
        A('s_waitcnt lgkmcnt(0)')
        A('v_readfirstlane_b32 s%d, v%d', CACHE[w], vPW)
        if E('CSLP', 0):
            A('s_cmp_lg_u32 vcc_hi, s%d', CACHE[w])
            A('s_cbranch_scc1 REFD_%d', w)
            A('s_sleep %d', E('CSLP', 0))
            A('REFD_%d:', w)
        A('s_sub_u32 s%d, s%d, 1', sSPIN, sSPIN)
        A('s_cselect_b32 s%d, -1, s%d', CACHE[w], CACHE[w])
        A('s_setpc_b64 s[%d:%d]', sPC, sPC + 1)


def gen_compute(A):
    vPH, vID, vWF, vAC, vPK = 40, 48, 56, 88, 120
    vMF, vCF = 136, 140
    vE = vWF
    vAC2 = vAC + 16
    vX = vXR
    A('s_setprio %d', E('CPRIO', 1))
    rest_srds(A)
    A('s_lshl_b32 s%d, s%d, 12', sM0, sWV)
    A('v_and_b32 v%d, 31, v%d', vT0, vL)
    A('v_lshlrev_b32 v%d, 7, v%d', vTT, vT0)
    A('v_add_u32 v%d, s%d, v%d', vTT, sM0, vTT)
    A('v_bfe_u32 v%d, v%d, 1, 3', vT0, vL)
    A('v_lshrrev_b32 v%d, 5, v%d', vT1, vL)
    A('v_xor_b32 v%d, v%d, v%d', vT0, vT0, vT1)
    for q in range(4):
        A('v_xor_b32 v%d, %d, v%d', vXA + q, 2 * q, vT0)
        A('v_lshl_add_u32 v%d, v%d, 4, v%d', vXA + q, vXA + q, vTT)
    wtr_base(A)
    for r in (vSM, vSM + 1, vSQ, vSQ + 1, vMF + 2, vMF + 3, vCF + 2, vCF + 3):
        A('v_mov_b32 v%d, 0', r)
    A('s_mov_b32 s%d, 0', sHI)
    A('s_mov_b32 s%d, -1', sHI + 1)
    A('s_bitcmp1_b32 s%d, 0', sH)
    A('s_cselect_b32 s%d, 0xf, 0xf0000000', sPADL)
    A('s_mov_b32 s%d, s%d', sPADL + 1, sPADL)
    A('s_cselect_b32 s%d, -1, 0', sZA)
    A('s_mov_b32 s%d, 0', sZA + 1)
    A('s_mov_b32 s%d, 0', sZB)
    A('s_cselect_b32 s%d, 0, -1', sZB + 1)
    A('s_cselect_b64 s[%d:%d], -1, 0', sODD, sODD + 1)
    vPA = vRA
    A('v_bfe_u32 v%d, v%d, 2, 2', vT0, vL)
    A('v_lshrrev_b32 v%d, 5, v%d', vT1, vL)
    A('v_lshl_add_u32 v%d, v%d, 2, v%d', vT0, vT1, vT0)
    A('v_mul_u32_u24 v%d, 56, v%d', vT0, vT0)
    A('v_and_b32 v%d, 3, v%d', vT1, vL)
    A('v_bfe_u32 v%d, v%d, 4, 1', vTT, vL)
    A('v_lshl_add_u32 v%d, v%d, 2, v%d', vT1, vTT, vT1)
    A('v_min_u32 v%d, 6, v%d', vT1, vT1)
    A('v_lshl_add_u32 v%d, v%d, 3, v%d', vT0, vT1, vT0)
    A('s_and_b32 s%d, s%d, 1', sT, sH)
    A('s_mul_i32 s%d, s%d, 224', sT, sT)
    A('s_sub_u32 s%d, %d, s%d', sT, L_PHI, sT)
    A('v_add_u32 v%d, s%d, v%d', vPA, sT, vT0)
    tag_compute(A)

    def mm1(B, acc, i, q, swap):
        buf = vWF + 16 * (i & 1)
        xf, wf = vX + (4 * i + q) * 4, buf + 4 * q
        if swap:
            mfma(B, acc, xf, wf, i == 0 and q == 0)
        else:
            mfma(B, acc, wf, xf, i == 0 and q == 0)

    def rw2(Q, pi, i, q):
        buf = vWF + 16 * (i & 1)
        for z in range(2):
            Q.op(('w', i, q), 'ds_read_b64_tr_b16 v[%d:%d], v%d offset:%d', buf + 4 * q + 2 * z, buf + 4 * q + 2 * z + 1,
                 vWA + pi, i * 4096 + q * 1024 + z * 256)

    vXH = vXD
    for q in range(4):
        A('v_add_u32 v%d, 0x10000, v%d', vXH + q, vXA + q)
    Q = LdsQ(A)
    for i in range(7):
        if i:
            stamp(A, 'k')
        if i == 0:
            A('s_waitcnt vmcnt(0)')
        else:
            wait_lp(A, ('x', i))
        stamp(A, 'k')
        for q in range(4):
            Q.op(('x', i), 'ds_read_b128 %s, v%d offset:%d', v(vX + (4 * i + q) * 4, 4), (vXA if i < 4 else vXH) + q,
                 (i & 3) * 16384)
        if i in (1, 3):
            Q.stage((i + 1) // 2)
        wait_lp(A, ('W', 0, i))
        for q in range(4):
            if i > 0:
                Q.wait(('w', i - 1, q))
                mm1(A, vAC, i - 1, q, False)
            rw2(Q, 0, i, q)
        if i < 6:
            Q.op('pk2', 'ds_read_b128 v[%d:%d], v%d offset:%d', vTT, vTT + 3, vMI, M_PW + 16)
        Q.wait(('x', i))
        for r in range(16):
            x = vX + 16 * i + r
            A('v_dot2c_f32_bf16 v%d, s%d, v%d', vSM + (r & 1), sONES, x)
            A('v_dot2c_f32_bf16 v%d, v%d, v%d', vSQ + (r & 1), x, x)
        if i < 6:
            Q.wait('pk2')
            A('v_readfirstlane_b32 s%d, v%d', sPROG, vTT)
            A('v_readfirstlane_b32 s%d, v%d', sPROG1, vTT + 3)
    Q.stage(3)
    B = sub(A)
    B('v_add_f32 v%d, v%d, v%d', vSM, vSM, vSM + 1)
    B('v_add_f32 v%d, v%d, v%d', vSQ, vSQ, vSQ + 1)
    B('v_permlane32_swap_b32 v%d, v%d', vSM, vSQ)
    B('v_add_f32 v%d, v%d, v%d', vT0, vSM, vSQ)
    ln_finish(B, vT0, vT1, vNM, vRS)
    hilo_m(B, vNM, vMF, vT0)
    B('v_mul_f32 v%d, 0x%x, v%d', vSC, LOG2E, vRS)
    M = sub(A)
    Q.A = M
    for q in range(4):
        Q.wait(('w', 6, q))
        mm1(M, vAC, 6, q, False)
    A.lines += merge(M.lines, [[l] for l in B.lines], 0, 4)

    def cf_phi_reads():
        A('ds_read_b64 v[%d:%d], v%d', vCF, vCF + 1, vCA)
        for sidx in range(2):
            for z in range(2):
                A('ds_read_b64_tr_b16 v[%d:%d], v%d offset:%d', vPH + 4 * sidx + 2 * z, vPH + 4 * sidx + 2 * z + 1,
                  vPA, (16 * sidx + 8 * z) * 56)
        return 5
    stamp(A, 'v')
    wait_word(A, 5, 1, body=cf_phi_reads)
    stamp(A)
    stamp(A, 'v')
    A('s_waitcnt lgkmcnt(4)')

    def project(mid=None):
        mfma(A, vAC, vCF, vMF)
        if mid:
            mid()
        cvt8(A, vPK, vAC)
        mfma(A, vAC, vPH, vPK, True)
        mfma(A, vAC, vPH + 4, vPK + 4)

    def mid_k():
        A('v_and_b32 v%d, 31, v%d', vT0, vL)
        A('s_lshl_b32 s%d, s%d, 7', sT, sWV)
        A('s_add_u32 s%d, s%d, %d', sT, sT, L_RSTD)
        A('v_lshl_add_u32 v%d, v%d, 2, s%d', vT0, vT0, sT)
        A('s_waitcnt lgkmcnt(0)')
        A('ds_write_b32 v%d, v%d', vT0, vRS)
        A('v_lshrrev_b32 v%d, 5, v%d', vRA, vL)
        A('v_lshl_add_u32 v%d, v%d, 4, s%d', vRA, vRA, sT)
        for r in (0, 1):
            A('v_cndmask_b32 v%d, v%d, 0, s[%d:%d]', vPH + r, vPH + r, sZA, sZA + 1)
            A('v_cndmask_b32 v%d, v%d, 0, s[%d:%d]', vPH + 6 + r, vPH + 6 + r, sZB, sZB + 1)

    def gemm_head(B, pi):
        Q = LdsQ(B)
        wait_lp(B, ('W', pi, 0))
        for q in range(4):
            rw2(Q, pi, 0, q)
        return Q

    def gemm_part(B, acc, pi, swap, last_stage=None, Q=None):
        if Q is None:
            Q = gemm_head(B, pi)
        for i in range(7):
            if i == 6 and last_stage:
                Q.stage(last_stage)
            if pi == 1 and i in (0, 2, 4, 6):
                stamp(B, 'v')
            for q in range(4):
                Q.wait(('w', i, q))
                if q == 0:
                    Q.take(4)
                mm1(B, acc, i, q, swap)
                if i < 6:
                    if q == 0:
                        wait_lp(B, ('W', pi, i + 1))
                        if i < 5:
                            Q.peek(4)
                    rw2(Q, pi, i + 1, q)

    vOW = vXD
    A('v_add_u32 v%d, s%d, v%d', vOW, sM0, vO)
    A('v_add_u32 v%d, %d, v%d', vOW, L_KVA, vOW)
    project(mid_k)
    stamp(A, 'v')
    B = sub(A)
    softmax_pm(B, vAC, vSC, vPK, vTT)
    A.lines += B.lines[:-30]
    Q = gemm_head(A, 1)
    A.lines += B.lines[-30:]
    for q, src in enumerate((vAC, vAC + 4, vPK, vPK + 4)):
        Q.op('pw', 'ds_write_b128 v%d, %s offset:%d', vOW, v(src, 4), q * 1024)
    Q.stage(C0)
    for q in range(4):
        Q.op('rs', 'ds_read_b128 %s, v%d offset:%d', v(vAC + 4 * q, 4), vRA, q * 32)
    stamp(A, 'v')
    gemm_part(A, vAC2, 1, True, None, Q)
    stamp(A, 'v')

    def cfv_reads():
        A('ds_read_b64 v[%d:%d], v%d offset:%d', vCF, vCF + 1, vCA, 512)
        return 1
    wait_word(A, 7, 8, body=cfv_reads)
    stamp(A, 'v')
    A('s_waitcnt lgkmcnt(0)')
    mfma(A, vAC2, vMF, vCF)
    A('v_mov_b32 v%d, 0x%x', vT1, ONES)
    for r in range(0, 16, 2):
        A('v_pk_mul_f32 v[%d:%d], v[%d:%d], v[%d:%d]', vAC2 + r, vAC2 + r + 1, vAC2 + r, vAC2 + r + 1, vAC + r,
          vAC + r + 1)
    cvt8(A, vPK, vAC2)
    for r in range(8):
        A('v_cndmask_b32 v%d, v%d, v%d, s[%d:%d]', vPK + r, vPK + r, vT1, sPADL, sPADL + 1)
    for q in range(2):
        A('ds_write_b128 v%d, %s offset:%d', vOW, v(vPK + 4 * q, 4), L_KVV - L_KVA + q * 1024)
    set_stage(A, C0 + 1)
    stamp(A)
    stamp(A, 'v')
    gemm_part(A, vAC, 2, False, C0 + 3)
    vHP, vRX, vRO = 120, 48, vSM + 1

    def unpack_hp(src=120):
        for r in range(8):
            A('v_lshlrev_b32 v%d, 16, v%d', vAC + 2 * r, src + r)
            A('v_and_b32 v%d, 0xffff0000, v%d', vAC + 2 * r + 1, src + r)
    A('s_and_b32 s%d, s%d, 1', sG, sWV)
    A('s_lshr_b32 s%d, s%d, 1', sKH, sWV)
    A('s_lshl_b32 s%d, s%d, 1', sT, sTQ)
    A('s_add_u32 s%d, s%d, s%d', sG, sG, sT)
    A('v_and_b32 v%d, 31, v%d', vRO, vL)
    A('v_mul_u32_u24 v%d, 896, v%d', vRO, vRO)
    A('v_lshrrev_b32 v%d, 5, v%d', vT1, vL)
    A('v_lshl_add_u32 v%d, v%d, 4, v%d', vRO, vT1, vRO)
    A('s_mul_i32 s%d, s%d, %d', sT, sG, 32 * 896)
    A('s_lshl_b32 s%d, s%d, 7', sT2, sNB)
    A('s_add_u32 s%d, s%d, s%d', sT, sT, sT2)
    A('s_lshl_b32 s%d, s%d, 6', sT2, sKH)
    A('s_add_u32 s%d, s%d, s%d', sT, sT, sT2)
    A('v_add_u32 v%d, s%d, v%d', vRO, sT, vRO)
    for q in range(2):
        A('buffer_load_dwordx4 %s, v%d, s[%d:%d], 0 offen offset:%d', v(vRX + 4 * q, 4), vRO, SX, SX + 3, q * 32)

    def cfq_reads():
        A('ds_read_b64 v[%d:%d], v%d offset:%d', vCF, vCF + 1, vCA, 2 * 512)
        return 1
    wait_word(A, 7, 9, body=cfq_reads)
    A('s_waitcnt lgkmcnt(0)')
    project()
    softmax_pm(A, vAC, vSC, vPK, vTT)
    vQF = [vAC, vAC + 4, vPK, vPK + 4]
    stamp(A)
    vW1A = vXA
    A('v_bfe_u32 v%d, v%d, 2, 2', vT0, vL)
    A('v_lshrrev_b32 v%d, 5, v%d', vT1, vL)
    A('v_lshl_add_u32 v%d, v%d, 2, v%d', vT1, vT1, vT0)
    A('v_lshlrev_b32 v%d, 8, v%d', vW1A, vT1)
    A('v_lshlrev_b32 v%d, 7, v%d', vWA, vT1)
    A('v_xor_b32 v%d, s%d, v%d', vT0, sWV, vT0)
    A('v_lshl_add_u32 v%d, v%d, 6, v%d', vW1A, vT0, vW1A)
    A('v_bfe_u32 v%d, v%d, 4, 1', vT1, vL)
    A('v_lshlrev_b32 v%d, 5, v%d', vT1, vT1)
    A('v_and_b32 v%d, 3, v%d', vT0, vL)
    A('v_lshl_add_u32 v%d, v%d, 3, v%d', vT1, vT0, vT1)
    A('v_add_u32 v%d, v%d, v%d', vW1A, vW1A, vT1)
    A('v_add_u32 v%d, 0x8000, v%d', vW1A + 1, vW1A)
    A('v_add_u32 v%d, v%d, v%d', vWA, vWA, vT1)
    A('v_bfe_u32 v%d, v%d, 3, 1', vT1, vL)
    A('v_lshl_add_u32 v%d, v%d, 6, v%d', vWA, vT1, vWA)

    def w1_copy(c):
        wait_lp(A, ('w1', c))
        for q in range(4):
            for z in range(2):
                off = w1_slot(c) + (16 * q + 8 * z) * 256
                base = vW1A
                if off >= 0x8000:
                    off -= 0x8000
                    base += 1
                r = vXR + (4 * c + q) * 4 + 2 * z
                A('ds_read_b64_tr_b16 v[%d:%d], v%d offset:%d', r, r + 1, base, off)

    sCPD = sXB
    A('s_mov_b32 s%d, 0', sCPD)

    def try_copy(block):
        skip = A.label('NC')
        A('s_cmp_lg_u32 s%d, 0', sCPD)
        A('s_cbranch_scc1 %s', skip)
        if not block:
            ow = LP[('w1', 1)][0]
            if block is not None:
                A('ds_read_b32 v%d, v%d offset:%d', vPW + ow - 4, vMI, M_PW + 4 * ow)
                A('s_waitcnt lgkmcnt(0)')
            A('v_readfirstlane_b32 s%d, v%d', CACHE[ow], vPW + ow - 4)
            A('s_cmp_lt_u32 s%d, %d', CACHE[ow], LP[('w1', 1)][1])
            A('s_cbranch_scc1 %s', skip)
        w1_copy(0)
        w1_copy(1)
        A('s_mov_b32 s%d, 1', sCPD)
        A('v_mov_b32 v%d, 1', vT0)
        A('ds_write_b32 v%d, v%d offset:%d', vMY, vT0, M_CP)
        A('%s:', skip)
    A('s_lshl_b32 s%d, s%d, 2', sFL, sTB)
    A('s_add_u32 s%d, s%d, s%d', sFL, sFL, sWV)
    A('s_lshl_b32 s%d, s%d, 4', sFL, sFL)
    A('s_add_u32 s%d, s%d, s%d', sFL, sFL, sH)
    A('s_lshl_b32 s%d, s%d, 11', sB, sFL)
    A('s_add_u32 s%d, s%d, %d', sB, sB, WS_OB)
    if MAP == 0:
        A('s_lshl_b32 s%d, s%d, 2', sFL, sFL)
        A('s_add_u32 s%d, s%d, %d', sFL, sFL, F2)
    else:
        A('s_lshr_b32 s%d, s%d, 3', sFL, sFL)
        A('s_lshl_b32 s%d, s%d, 10', sFL, sFL)
        A('s_and_b32 s%d, s%d, 7', sT, sH)
        A('s_lshl_b32 s%d, s%d, 2', sT, sT)
        A('s_add_u32 s%d, s%d, s%d', sFL, sFL, sT)
        A('s_add_u32 s%d, s%d, %d', sFL, sFL, F2X)
    vEX = vXD + 1
    A('v_add_u32 v%d, %d, v%d', vEX, L_EX, vO)

    def ex_reads():
        for q in range(4):
            A('ds_read_b128 %s, v%d offset:%d', v(vWF + 4 * q, 4), vEX, q * 1024)
        return 4
    lo, done = A.label('W'), A.label('WD')
    A('%s:', lo)
    A('ds_read_b128 v[%d:%d], v%d offset:%d', vPW, vPW + 3, vMI, M_PW + 16)
    A('ds_read_b32 v%d, v%d offset:%d', vPK_, vMI, M_FAST)
    ex_reads()
    A('s_waitcnt lgkmcnt(4)')
    A('v_readfirstlane_b32 s%d, v%d', sFASTF, vPK_)
    A('v_min_u32 v%d, v%d, v%d', vPW + 1, vPW + 1, vPW + 2)
    A('v_readfirstlane_b32 s%d, v%d', sT, vPW + 1)
    spin_guard(A, done)
    A('s_cmp_ge_u32 s%d, 3', sT)
    A('s_cbranch_scc1 %s', done)
    try_copy(None)
    if E('CSLP', 0):
        A('s_sleep %d', E('CSLP', 0))
    A('s_branch %s', lo)
    A('%s:', done)
    stamp(A)
    for q in range(4):
        A('s_waitcnt lgkmcnt(%d)', 3 - q)
        mfma(A, vAC2, vWF + 4 * q, vQF[q], q == 0)
    A('v_cndmask_b32 v%d, v%d, v%d, s[%d:%d]', vT0, vAC2 + 12, vAC2, sODD, sODD + 1)
    A('v_mov_b32 v%d, v%d', vT1, vT0)
    A('v_permlane32_swap_b32 v%d, v%d', vT0, vT1)
    A('v_cndmask_b32 v%d, v%d, v%d, s[%d:%d]', vTT, vT1, vT0, sODD, sODD + 1)
    A('v_add_f32 v%d, 0x%x, v%d', vTT, 0x358637bd, vTT)
    A('v_rcp_f32 v%d, v%d', vTT, vTT)
    for r in range(0, 16, 2):
        A('v_pk_mul_f32 v[%d:%d], v[%d:%d], v[%d:%d] op_sel_hi:[1,0]', vAC2 + r, vAC2 + r + 1, vAC2 + r, vAC2 + r + 1,
          vTT, vTT + 1)
    cvt8(A, vPK, vAC2)
    for r in (0, 1):
        A('v_cndmask_b32 v%d, v%d, 0, s[%d:%d]', vPK + r, vPK + r, sZA, sZA + 1)
        A('v_cndmask_b32 v%d, v%d, 0, s[%d:%d]', vPK + 6 + r, vPK + 6 + r, sZB, sZB + 1)
    pub_stores(A, [st4(vPK + 4 * q, sB, q * 1024) for q in range(2)], MAP == 0 and not WTO)
    A('s_waitcnt vmcnt(2)')
    for q in range(2):
        A('v_permlane32_swap_b32 v%d, v%d', vRX + 4 * q, vRX + 4 * q + 2)
        A('v_permlane32_swap_b32 v%d, v%d', vRX + 4 * q + 1, vRX + 4 * q + 3)
    unpack_hp(vRX)
    A('s_lshl_b32 s%d, s%d, 6', sT, sKH)
    A('v_xor_b32 v%d, s%d, v%d', vWA, sT, vWA)
    A('v_xor_b32 v%d, 64, v%d', vWA + 1, vWA)
    A('s_mul_i32 s%d, s%d, %d', sT, sKH, 224 * 128)
    A('s_add_u32 s%d, s%d, %d', sT, sT, L_A)
    A('v_add_u32 v%d, s%d, v%d', vWA + 2, sT, vWA)
    A('v_add_u32 v%d, s%d, v%d', vWA + 3, sT, vWA + 1)
    vSW, vSR, vPP = vXA + 2, vXA + 3, vSM
    A('s_and_b32 s%d, s%d, 1', sC, sWV)
    A('s_lshl_b32 s%d, s%d, 12', sC, sC)
    A('v_add_u32 v%d, s%d, v%d', vSW, sC, vO)
    A('s_cmp_eq_u32 s%d, 0', sKH)
    A('s_cselect_b32 s%d, %d, %d', sT, L_SC0 >> 12, L_SC1 >> 12)
    A('s_cselect_b32 s%d, %d, %d', sT2, L_SC1 >> 12, L_SC0 >> 12)
    A('s_lshl_b32 s%d, s%d, 12', sT, sT)
    A('s_lshl_b32 s%d, s%d, 12', sT2, sT2)
    A('v_add_u32 v%d, s%d, v%d', vSR, sT2, vSW)
    A('v_add_u32 v%d, s%d, v%d', vSW, sT, vSW)
    A('v_xor_b32 v%d, 8, v%d', vPP, vMY)
    A('s_lshl_b32 s%d, s%d, 15', sB, sG)
    A('s_lshl_b32 s%d, s%d, 14', sT, sKH)
    A('s_add_u32 s%d, s%d, s%d', sB, sB, sT)
    A('s_add_u32 s%d, s%d, %d', sB, sB, WS_OB)
    if MAP == 0:
        A('s_lshl_b32 s%d, s%d, 6', sC, sG)
        A('s_lshl_b32 s%d, s%d, 5', sT, sKH)
        A('s_add_u32 s%d, s%d, s%d', sC, sC, sT)
        A('s_add_u32 s%d, s%d, %d', sC, sC, F2)
        pub_flag(A, sFL, True)
    else:
        A('s_lshl_b32 s%d, s%d, 11', sC, sG)
        A('s_lshl_b32 s%d, s%d, 10', sT, sKH)
        A('s_add_u32 s%d, s%d, s%d', sC, sC, sT)
        A('s_lshl_b32 s%d, s%d, 7', sT, sNB)
        A('s_add_u32 s%d, s%d, s%d', sC, sC, sT)
        A('s_add_u32 s%d, s%d, %d', sC, sC, F2X)
        A('v_lshlrev_b32 v%d, 7, v%d', vT1, vL)
        if not E('NODRAIN2', 0):
            A('s_waitcnt vmcnt(0)')
        A('s_mov_b64 exec, 0x7f')
        A('buffer_store_dword v%d, v%d, s[%d:%d], s%d offen sc1', vTAG, vT1, SWS, SWS + 3, sFL)
        A('s_mov_b64 exec, -1')
    set_stage(A, C0 + 5)
    stamp(A)
    fin = A.label('FIN')
    A('s_cmp_ge_u32 s%d, 28', sI)
    A('s_cbranch_scc1 %s', fin)

    vB2 = [40 + 4 * k for k in range(8)] + [224 + 4 * k for k in range(8)]
    vWF2 = 72
    sB3, sFL3 = sODD, sODD + 1
    sBL, sFL2, sPF, sBK, sBS, sHB, sEM = 4, 5, 6, 7, 8, 9, 10
    A('s_mul_i32 s%d, s%d, %d', sB3, sTB3, 4 * 112)
    A('s_lshl_b32 s%d, s%d, 3', sT, sFB)
    A('s_add_u32 s%d, s%d, s%d', sB3, sB3, sT)
    A('s_lshl_b32 s%d, s%d, 1', sT, sWV)
    A('s_add_u32 s%d, s%d, s%d', sB3, sB3, sT)
    A('s_lshl_b32 s%d, s%d, 10', sB3, sB3)
    A('s_add_u32 s%d, s%d, %d', sB3, sB3, WS_H1B)
    A('s_add_u32 s%d, s%d, %d', sBL, sB3, 2 * 112 * 1024)
    A('s_lshl_b32 s%d, s%d, 9', sFL3, sTB3)
    A('s_lshl_b32 s%d, s%d, 4', sT, sFB)
    A('s_add_u32 s%d, s%d, s%d', sFL3, sFL3, sT)
    A('s_lshl_b32 s%d, s%d, 2', sT, sWV)
    A('s_add_u32 s%d, s%d, s%d', sFL3, sFL3, sT)
    A('s_add_u32 s%d, s%d, %d', sFL3, sFL3, F4)
    A('s_add_u32 s%d, s%d, 256', sFL2, sFL3)
    A('s_bitcmp1_b32 s%d, 0', sFB)
    A('s_cselect_b32 s%d, s%d, s%d', sT, sBL, sB3)
    A('s_cselect_b32 s%d, s%d, s%d', sBL, sB3, sBL)
    A('s_mov_b32 s%d, s%d', sB3, sT)
    A('s_cselect_b32 s%d, s%d, s%d', sT, sFL2, sFL3)
    A('s_cselect_b32 s%d, s%d, s%d', sFL2, sFL3, sFL2)
    A('s_mov_b32 s%d, s%d', sFL3, sT)
    A('s_lshl_b32 s%d, s%d, 8', sPF, sTQ)
    A('s_mul_i32 s%d, s%d, 112', sT, sKH)
    A('s_add_u32 s%d, s%d, s%d', sPF, sPF, sT)
    A('s_add_u32 s%d, s%d, %d', sPF, sPF, F4)
    A('s_mul_i32 s%d, s%d, %d', sHB, sG, 112 * 1024)
    A('s_mul_i32 s%d, s%d, %d', sT, sKH, 56 * 1024)
    A('s_add_u32 s%d, s%d, s%d', sHB, sHB, sT)
    A('s_add_u32 s%d, s%d, %d', sHB, sHB, WS_H1B + (0x40000000 if E('ABL', 0) & 64 else 0))
    blk_init(A, sBK, sBS, 's%d' % sKH)
    A('s_bitcmp1_b32 s%d, 0', sBK)
    A('s_mov_b32 s%d, 0x0f0f0f0f', sEM)
    A('s_cselect_b32 s%d, 0x00f0f0f0, s%d', sEM, sEM)
    vL4, vPF = vNM, vRS
    A('s_mov_b32 s%d, 0', CACHE[5])
    A('s_lshl_b32 s%d, s%d, 2', sT, sKH)
    A('s_add_u32 s%d, s%d, %d', sT, sT, L_MISC + M_PW + 20)
    A('v_mov_b32 v%d, s%d', vCA, sT)
    A('v_lshlrev_b32 v%d, 2, v%d', vL4, vL)

    try_copy(False)
    wait_lp(A, 'wo')

    def wo_row(k):
        hh = k // 2
        return 28 * hh - 4 * (hh & 1) + 16 * (k & 1)

    Q = LdsQ(A)
    LAG = E('P2LAG', 5)

    def read_wo(k, nt):
        buf = vWF2 + 8 * nt + 4 * (k & 1)
        for z in range(2):
            Q.op(('w', k, nt), 'ds_read_b64_tr_b16 v[%d:%d], v%d offset:%d', buf + 2 * z, buf + 2 * z + 1,
                 vWA + 2 + nt, (wo_row(k) + 8 * z) * 128)

    read_wo(0, 1)
    read_wo(0, 0)
    if MAP == 3 and E('SPOLL', 1):
        poll_scalar(A, sC, 8)
    else:
        poll_global(A, sC, 8)
    stamp(A)
    stamp(A, 'p2')
    sOB = sM0
    A('s_mov_b32 s%d, s%d', sOB, sB)

    def ld_o(k):
        A('buffer_load_dwordx4 %s, v%d, s[%d:%d], s%d offen offset:%d sc1', v(vB2[k], 4), vO, SWS, SWS + 3, sOB,
          (k & 3) * 1024)
        if (k & 3) == 3:
            A('s_add_u32 s%d, s%d, 4096', sOB, sOB)
    P2I = E('P2INFL', 8)
    for k in range(P2I):
        ld_o(k)
    A('s_lshl_b32 s%d, s%d, 1', sT2, sNB)
    A('s_add_u32 s%d, s%d, s%d', sT2, sT2, sKH)
    A('s_lshl_b32 s%d, s%d, 15', sB, sG)
    A('s_add_u32 s%d, s%d, %d', sB, sB, WS_HB)
    A('s_lshl_b32 s%d, s%d, 8', sC, sT2)
    A('s_add_u32 s%d, s%d, s%d', sC, sC, sB)
    A('s_lshl_b32 s%d, s%d, 11', sT, sT2)
    A('s_add_u32 s%d, s%d, s%d', sB, sB, sT)
    A('s_add_u32 s%d, s%d, 4096', sB, sB)
    A('s_lshl_b32 s%d, s%d, 2', sFL, sT2)
    A('s_lshl_b32 s%d, s%d, 6', sT, sG)
    A('s_add_u32 s%d, s%d, s%d', sFL, sFL, sT)
    A('s_add_u32 s%d, s%d, %d', sFL, sFL, F3)
    for k in range(16 + LAG):
        if k < 16:
            if k < 15:
                read_wo(k + 1, 1)
            Q.wait(('w', k, 1), min(15, P2I + k - 1) - k)
            if k % 4 == 0:
                stamp(A, 'p2')
            mfma(A, vAC + 16, vWF2 + 8 + 4 * (k & 1), vB2[k], k == 0)
            if P2I + k < 16:
                ld_o(P2I + k)
            if P2I + k == E('LDSIG', 12):
                A('v_mov_b32 v%d, 1', vT0)
                Q.op('ld', 'ds_write_b32 v%d, v%d offset:%d', vMY, vT0, M_LD)
        j = k - LAG
        if j >= 0:
            if j < 15:
                read_wo(j + 1, 0)
            Q.wait(('w', j, 0))
            mfma(A, vAC, vWF2 + 4 * (j & 1), vB2[j])
        if k == 16 and LAG >= 2:
            for q in range(4):
                Q.op('x', 'ds_write_b128 v%d, %s offset:%d', vSW, v(vAC + 16 + 4 * q, 4), q * 1024)
            Q.stage(C0 + 6)
    stamp(A)

    def exchange(st, sent=False):
        if not sent:
            for q in range(4):
                A('ds_write_b128 v%d, %s offset:%d', vSW, v(vAC + 16 + 4 * q, 4), q * 1024)
            set_stage(A, st)
        lo, done = A.label('W'), A.label('WD')
        A('%s:', lo)
        A('ds_read_b32 v%d, v%d', vPW, vPP)
        for q in range(4):
            A('ds_read_b128 %s, v%d offset:%d', v(vWF2 + 4 * q, 4), vSR, q * 1024)
        A('s_waitcnt lgkmcnt(4)')
        A('v_readfirstlane_b32 s%d, v%d', sT, vPW)
        spin_guard(A, done)
        A('s_cmp_ge_u32 s%d, %d', sT, st)
        A('s_cbranch_scc0 %s', lo)
        A('%s:', done)
        for q in range(4):
            A('s_waitcnt lgkmcnt(%d)', 3 - q)
            for r in (0, 2):
                a0 = vAC + 4 * q + r
                A('v_pk_add_f32 v[%d:%d], v[%d:%d], v[%d:%d]', a0, a0 + 1, a0, a0 + 1, vWF2 + 4 * q + r,
                  vWF2 + 4 * q + r + 1)

    stamp(A, 'p2')
    exchange(C0 + 6, LAG >= 2)
    stamp(A, 'p2')
    set_stage(A, C0 + 7)
    cvt8(A, vHP, vAC)
    pub_stores(A, [st4(vHP + 4 * q, sB, q * 1024) for q in range(2)], not WTO)
    A('v_mov_b32 v%d, 0', vTT)
    A('v_mov_b32 v%d, 0', vTT + 1)
    for r in range(8):
        A('v_dot2c_f32_bf16 v%d, s%d, v%d', vTT, sONES, vHP + r)
        A('v_dot2c_f32_bf16 v%d, v%d, v%d', vTT + 1, vHP + r, vHP + r)
    A('v_lshlrev_b32 v%d, 2, v%d', vTT + 2, vL)
    A('v_permlane32_swap_b32 v%d, v%d', vTT, vTT + 1)
    A('v_add_f32 v%d, v%d, v%d', vTT, vTT, vTT + 1)
    pub_stores(A, ['buffer_store_dword v%d, v%d, s[%d:%d], s%d offen%%s' % (vTT, vTT + 2, SWS, SWS + 3, sC)], not WTO)
    stamp(A, 'p2')
    try_copy(True)
    for c in (2, 3):
        w1_copy(c)
    stamp(A, 'p2')
    pub_flag(A, sFL, True)
    stamp(A, 'p2')
    stamp(A)
    vCS = vSQ
    for c in (4, 5, 6):
        w1_copy(c)
    set_stage(A, C0 + 8)
    A('v_mov_b32 v%d, 0', vCS)
    A('v_mov_b32 v%d, 0', vCS + 1)
    for r in range(112):
        if r == 0:
            A('s_waitcnt lgkmcnt(15)')
        if r == 64:
            A('s_waitcnt lgkmcnt(0)')
        A('v_dot2c_f32_bf16 v%d, s%d, v%d', vCS + (r & 1), sONES, vXR + r)
    A('v_add_f32 v%d, v%d, v%d', vCS, vCS, vCS + 1)
    hilo_c(A, vCS, vCF, vT0)
    vBR = 40
    vE3 = 72
    vMF2, vSD = 128, 132
    A('s_mov_b32 s%d, s%d', sB, sB3)
    A('s_mov_b32 s%d, s%d', sFL, sFL3)

    def p3_epilogue(gi, packed=False):
        B = sub(A)
        acc = vAC + 16 * (gi & 1)
        e = vE3
        sd, c1 = vSD, vSD + 1
        if packed:
            pk = lambda r: 'v[%d:%d]' % (r, r + 1)
            for r in range(0, 16, 2):
                B('v_pk_mul_f32 %s, %s, %s op_sel:[0,1] op_sel_hi:[1,1]', pk(e + r), pk(acc + r), pk(sd))
            for r in range(16):
                B('v_exp_f32 v%d, v%d', e + r, e + r)
            for r in range(0, 16, 2):
                B('v_pk_fma_f32 %s, %s, %s, %s op_sel_hi:[1,0,0]', pk(e + r), pk(e + r), pk(sd), pk(sd))
            for r in range(16):
                B('v_rcp_f32 v%d, v%d', e + r, e + r)
            for r in range(0, 16, 2):
                B('v_pk_mul_f32 %s, %s, %s', pk(e + r), pk(e + r), pk(acc + r))
            cvt8(B, acc, e)
        else:
            silu8(B, acc, e, sd, c1, acc)
            silu8(B, acc + 8, e + 8, sd, c1, acc + 4)
        blocks = [[l] for l in B.lines]
        if E('ABL', 0) & 256 and not packed:
            blocks = blocks[-4:]
        B = sub(A)
        so = sB if gi < 2 else sBL
        pub_stores(B, [st4(acc + 4 * q, so, q * 1024) for q in range(2)], not WT1)
        if gi % 2 == 0:
            B('s_add_u32 s%d, s%d, %d', so, so, 112 * 1024)
        blocks.append(B.lines)
        return blocks

    def flag_load(B):
        B('s_mov_b64 exec, 0xfffffff')
        B('buffer_load_dword v%d, v%d, s[%d:%d], s%d offen sc1', vPF, vL4, SWS, SWS + 3, sPF)
        B('s_mov_b64 exec, -1')

    def flag_check(mask):
        def slow(B, back):
            lo = B.label('P')
            B('%s:', lo)
            flag_load(B)
            B('s_waitcnt vmcnt(0)')
            B('v_cmp_ne_u32 vcc, s%d, v%d', sTAG, vPF)
            spin_guard(B, back)
            B('s_and_b32 s%d, vcc_lo, %s', sT, mask)
            B('s_cbranch_scc1 %s', lo)
        ent, back = cold_block(A, slow)
        A('v_cmp_ne_u32 vcc, s%d, v%d', sTAG, vPF)
        A('s_and_b32 s%d, vcc_lo, %s', sT, mask)
        A('s_cbranch_scc1 %s', ent)
        A('%s:', back)

    PRE = E('P3PRE', 6)
    vHB = vXD + 2
    A('v_add_u32 v%d, %d, v%d', vHB, L_A, vO)
    A('v_add_u32 v%d, %d, v%d', vHB + 1, 65536, vO)
    Q = LdsQ(A)

    def chk(n):
        gi, k = divmod(n, 28)
        if gi == 0:
            return k // 4 if k % 4 == 0 else None
        return {0: 1, 8: 3, 16: 6}.get(k)

    def rd(n):
        gi, k = divmod(n, 28)
        if n + 1 < 112 and chk(n + 1) is not None:
            Q.take(7)
        if chk(n) is not None:
            wait_lp(Q.A, ('h', gi, chk(n)))
        Q.op(('b', n), 'ds_read_b128 %s, v%d offset:%d', v(vBR + 4 * (n % 8), 4), (vHB, vHB, vO, vHB + 1)[gi],
             (28672 if gi == 1 else 0) + k * 1024)
        if k == 27:
            Q.stage(C0 + 9 + gi)
        nn = n + (PRE + 2 if n >= 20 else 4)
        if nn < 112 and chk(nn) is not None and not Q.peeked and (n < 20 or nn >= 28):
            Q.peek(7)

    stamp(A, 'p2')
    nrd = [0]

    def rd_upto(n):
        while nrd[0] <= min(n, 111):
            rd(nrd[0])
            nrd[0] += 1
    rd_upto(2)
    for gi in range(4):
        acc = vAC + 16 * (gi & 1)
        M = sub(A)
        Q.A = M
        for k in range(28):
            n = 28 * gi + k
            rd_upto(n + (3 if n < 22 else min(PRE, 3 + (n - 21))))
            if k == 16:
                Q.op('s6', 'ds_read_b128 v[%d:%d], v%d offset:%d', vTT, vTT + 3, vMI, M_PW + 16)
                Q.op('sf', 'ds_read_b128 %s, v%d offset:%d', v(vMF2, 4), vEX, gi * 1024)
            if k == 24:
                Q.wait('sf')
                M('v_readfirstlane_b32 s%d, v%d', sPROG, vTT)
                M('v_readfirstlane_b32 s%d, v%d', sC, vTT + 1)

                def st_slow(B, back):
                    def st_read():
                        B('ds_read_b128 %s, v%d offset:%d', v(vMF2, 4), vEX, gi * 1024)
                        return 0
                    wait_word(B, 5, LP[('st', gi)][1], body=st_read)
                ent, back = cold_block(M, st_slow)
            if k == 25:
                M('s_cmp_ge_u32 s%d, %d', sC, LP[('st', gi)][1])
                M('s_cbranch_scc0 %s', ent)
                M('%s:', back)
                M('v_mov_b32 v%d, v%d', vMF, vMF2)
                M('v_mov_b32 v%d, v%d', vMF + 1, vMF2 + 1)
            if k % 2 == 0:
                Q.wait(('b', n + 1))
            if k in (0, 12):
                stamp(M, 'p3')
            if gi == E('P33', 3) and k % 2 == 0 and k:
                stamp(M, 'p33')
            if gi == 3 and k == E('P3FLAGK', 11):
                pub_flag(M, sFL, True)
            if gi == 3 and k == 25:
                flag_load(M)
            mfma(M, acc, vXR + 4 * k, vBR + 4 * (n % 8), k == 0)
        mfma(M, acc, vCF, vMF)
        M('v_mov_b32 v%d, v%d', vSD, vMF2 + 2)
        M('v_mov_b32 v%d, v%d', vSD + 1, vMF2 + 3)
        A.lines += merge(M.lines, p3_epilogue(gi - 1) if gi > 0 else [], 1, E('P3STOP2', 27) if gi == 2 else 27)
        if gi == 0:
            stamp(A)
        stamp(A, 'p3')
    stamp(A)
    NB = 16
    vWF4 = 40
    vAP = vXR + 48

    def w2_base(c):
        A('s_cmp_eq_u32 s%d, 0', sKH)
        A('s_cselect_b32 s%d, %d, %d', sT, w2_slot(2 * c) >> 12, w2_slot(2 * c + 1) >> 12)
        A('s_lshl_b32 s%d, s%d, 12', sT, sT)
        A('v_add_u32 v%d, s%d, v%d', vWA + 2, sT, vWA)
        A('v_add_u32 v%d, s%d, v%d', vWA + 3, sT, vWA + 1)

    Q = LdsQ(A)

    def abuf(k):
        return vWF4 + 8 * (k & 3)

    def read_w2(k):
        if k % 4 == 3 and k < 52:
            Q.take(LP[('w2', 2 * (k // 4) + 3)][0])
        if k % 4 == 0:
            wait_lp(A, ('w2', 2 * (k // 4) + 1))
            w2_base(k // 4)
        buf = abuf(k)
        for nt in range(2):
            for z in range(2):
                Q.op(('w', k), 'ds_read_b64_tr_b16 v[%d:%d], v%d offset:%d', buf + 4 * nt + 2 * z,
                     buf + 4 * nt + 2 * z + 1, vWA + 2 + nt, ((k % 4) * 16 + 8 * z) * 128)
        if k % 4 == 0 and k < 52:
            Q.peek(LP[('w2', 2 * (k // 4) + 3)][0])
        if k % 4 == 3 and (k // 4) <= 5:
            Q.stage(C0 + 13 + k // 4)

    vq = []

    def vm_need(tag):
        i = max(j for j, x in enumerate(vq) if x == tag)
        return len(vq) - 1 - i

    def issue_b(k):
        if k % 8 == 0:
            A('s_lshl_b32 s%d, s%d, 13', sM0, sBK)
            A('s_add_u32 s%d, s%d, s%d', sM0, sM0, sHB)
            blk_next(A, sBK, sBS)
        A('buffer_load_dwordx4 %s, v%d, s[%d:%d], s%d offen offset:%d%s', v(vXR + 4 * (k % NB), 4), vO, SWS, SWS + 3,
          sM0, (k & 3) * 1024, LDB)
        vq.append(('b', k))
        if k % 8 == 3:
            A('s_add_u32 s%d, s%d, 4096', sM0, sM0)

    INFL = E('P4INFL', 10)
    assert INFL < NB
    A('s_waitcnt vmcnt(2)')
    flag_check('s%d' % sEM)
    stamp(A)
    issued = E('P4PRE', 8)
    for k in range(issued):
        issue_b(k)
    for b in p3_epilogue(3, True):
        A.lines += b
    vq += ['st', 'st']
    read_w2(0)
    read_w2(1)
    while issued < INFL:
        issue_b(issued)
        issued += 1
    unpack_hp()
    stamp(A)
    KF, KL, KC = E('P4KF', 3), E('P4KL', 9), E('P4KC', 14)
    pend = False
    for k in range(56):
        if k + 2 < 56:
            read_w2(k + 2)
        need = vm_need(('b', k))
        if k == KF:
            need = min(need, vm_need('st'))
        if k == KC:
            need = min(need, vm_need('pf'))
        Q.wait(('w', k), need)
        if k % 4 == 0 and k:
            stamp(A, 'p4')
        buf = abuf(k)
        mfma(A, vAC + 16, buf + 4, vXR + 4 * (k % NB), k == 0)
        if k == KF:
            pub_flag(A, sFL2, True, False)
            vq.append('fl')
        if k == KL:
            flag_load(A)
            vq.append('pf')
        if k == KC:
            flag_check('0xfffffff')
            pend = True
        for _ in range(2):
            if issued < min(56, k + 1 + INFL) and (issued < 24 or pend):
                issue_b(issued)
                issued += 1
        mfma(A, vAC, buf, vXR + 4 * (k % NB))
    stamp(A)
    exchange(C0 + 27)
    cvt8(A, vHP, vAC)
    for q in range(2):
        A('v_permlane32_swap_b32 v%d, v%d', vHP + 4 * q, vHP + 4 * q + 2)
        A('v_permlane32_swap_b32 v%d, v%d', vHP + 4 * q + 1, vHP + 4 * q + 3)
    for q in range(2):
        A('buffer_store_dwordx4 %s, v%d, s[%d:%d], 0 offen offset:%d', v(vHP + 4 * q, 4), vRO, SOUT, SOUT + 3, q * 32)
    A('s_or_b32 s%d, s2, s%d', sT, sWV)
    A('s_cmp_lg_u32 s%d, 0', sT)
    A('s_cbranch_scc1 %s', fin)
    A('s_mov_b32 s%d, %d', sT, FEP)
    A('s_mov_b64 exec, 1')
    A('buffer_store_dword v%d, v%d, s[%d:%d], s%d offen', vTAG, vO, SWS, SWS + 3, sT)
    A('s_mov_b64 exec, -1')
    A('%s:', fin)
    if E('PADTO', 0):
        lo = A.label('PAD')
        A('s_waitcnt vmcnt(0) lgkmcnt(0)')
        A('s_mov_b32 s6, %d', E('PADTO', 0))
        if PROBE >= 0:
            A('s_sub_u32 s7, s56, s84')
            A('s_lshl_b32 s7, s7, 2')
            A('s_cmp_ge_u32 s%d, 28', sI)
            A('s_cselect_b32 s7, 0, s7')
            A('s_add_u32 s6, s6, s7')
        A('%s:', lo)
        A('s_memrealtime s[4:5]')
        A('s_waitcnt lgkmcnt(0)')
        A('s_sub_u32 s4, s4, s84')
        A('s_cmp_lt_u32 s4, s6')
        A('s_cbranch_scc1 %s', lo)
    stamp_flush(A)


def gen():
    A = Asm()
    name = NAME + '_kernel'
    A.lines += ['.p2align 8', '.globl %s' % name, '.type %s,@function' % name, '%s:' % name]
    end = A.label('END')
    if E('PADTO', 0):
        A('s_memrealtime s[84:85]')
    A('s_load_dwordx16 s[64:79], s[0:1], 0')
    A('s_load_dwordx2 s[80:81], s[0:1], 72')
    A('s_getpc_b64 s[%d:%d]', sPC, sPC + 1)
    A('s_cmp_ge_u32 s2, 256')
    A('s_cbranch_scc1 %s', end)
    assert MAP == 0
    A('s_and_b32 s%d, s2, 7', sXCD)
    A('s_lshr_b32 s%d, s2, 3', sI)
    A('v_lshrrev_b32 v%d, 6, v0', vMY)
    A('v_and_b32 v%d, 63, v0', vL)
    A('s_and_b32 s%d, s%d, 1', sTB, sI)
    A('s_lshl1_add_u32 s%d, s%d, s%d', sTB, sXCD, sTB)
    A('v_readfirstlane_b32 s%d, v%d', sWV, vMY)
    A('s_add_u32 s%d, s%d, s%d', sC0, sXCD, sI)
    A('s_mul_i32 s%d, s%d, 37', sT, sC0)
    A('s_lshr_b32 s%d, s%d, 8', sT, sT)
    A('s_mul_i32 s%d, s%d, 7', sT, sT)
    A('s_sub_u32 s%d, s%d, s%d', sC0, sC0, sT)
    x_offsets(A)
    A('s_mul_i32 s%d, s%d, %d', sT2, sWV, 32 * 896)
    A('s_lshl_b32 s%d, s%d, 7', sT, sC0)
    A('s_add_u32 s%d, s%d, s%d', sT, sT, sXB)
    A('s_add_u32 s%d, s%d, s%d', sT, sT, sT2)
    A('s_lshl_b32 m0, s%d, 12', sWV)
    A('s_mov_b32 s%d, 0x%x', SX + 2, 0 if E('ABL', 0) & 16 else S * D * 2)
    A('s_mov_b32 s%d, 0x20000', SX + 3)
    nok = A.label('NOK')
    A('s_cmp_ge_u32 s%d, 4', sWV)
    A('s_waitcnt lgkmcnt(0)')
    A('s_mov_b32 s%d, s64', SX)
    A('s_mov_b32 s%d, s65', SX + 1)
    A('s_cbranch_scc1 %s', nok)
    for u in range(4):
        A('buffer_load_dwordx4 v%d, s[%d:%d], s%d offen offset:%d lds', vXD + u, SX, SX + 3, sT, u * 1024)
    A('%s:', nok)
    perm = [2, 4, 6, 9, 11, 13, 0, 1, 3, 5, 7, 8, 10, 12, 14, 15]
    lo = sum(perm[i] << (4 * i) for i in range(8))
    hi = sum(perm[8 + i] << (4 * i) for i in range(8))
    A('s_mov_b32 s%d, 0x%x', sHI, lo)
    A('s_mov_b32 s%d, 0x%x', sHI + 1, hi)
    A('s_lshr_b32 s%d, s%d, 1', sT, sI)
    A('s_lshl_b32 s%d, s%d, 2', sT, sT)
    A('s_lshr_b64 s[%d:%d], s[%d:%d], s%d', sHI, sHI + 1, sHI, sHI + 1, sT)
    A('s_and_b32 s%d, s%d, 15', sH, sHI)
    A('v_lshlrev_b32 v%d, 2, v%d', vMY, vMY)
    A('v_add_u32 v%d, %d, v%d', vMY, L_MISC, vMY)
    A('v_mov_b32 v%d, 0', vT0)
    A('ds_write2st64_b32 v%d, v%d, v%d offset0:0 offset1:1', vMY, vT0, vT0)
    A('ds_write2_b32 v%d, v%d, v%d offset0:%d offset1:%d', vMY, vT0, vT0, M_FAST // 4, M_CP // 4)
    w_offsets(A)
    srd(A, SW, 66, 0 if E('ABL', 0) & 8 else D * 3 * D * 2)
    A('v_mov_b32 v%d, %d', vMI, L_MISC)
    A('s_mov_b32 s%d, 0x400000', sSPIN)
    A('s_mov_b32 s%d, 0', sPROG)
    A('s_mov_b32 s%d, 0', sPROG1)
    A('s_waitcnt lgkmcnt(0)')
    A('s_barrier')
    _st['n'] = 0
    stamp(A, 'all')
    if STAMPS:
        A('s_memrealtime s[86:87]')
    for i in range(7):
        LP[('x', i)] = (7, 1 + i)
    for gi in range(4):
        us = 3 if gi == 0 else 0
        LP[('hs', gi)] = (7, 10 + W7ST + 8 * gi + us + 1)
        LP[('st', gi)] = (5, 4 + gi)
        for q in range(7):
            LP[('h', gi, q)] = (7, 10 + W7ST + 8 * gi + q + (1 if q > us else 0))
    for pi in range(3):
        for i in range(7):
            LP[('W', pi, i)] = (4, 7 * pi + i + 1)
    l0, l1, l2, lw, lc = A.label('H0'), A.label('H1'), A.label('H23'), A.label('EW'), A.label('EC')
    A('s_cmp_eq_u32 s%d, 4', sWV)
    A('s_cbranch_scc1 %s', lw)
    A('s_cmp_lg_u32 s%d, 7', sWV)
    A('s_cbranch_scc1 %s', lc)
    HELP['on'] = True
    nst = {}
    prio(A, 1)
    _st['n'] = 1
    early_x(A)
    nst[l1] = _st['n']
    A('s_branch %s', l1)
    A('%s:', lw)
    prio(A, 1)
    _st['n'] = 1
    early_w(A)
    nst[l0] = _st['n']
    nst[l2] = 1
    A('s_branch %s', l0)
    refresh_routines(A)
    A('%s:', lc)
    A('s_cmp_ge_u32 s%d, 5', sWV)
    A('s_cbranch_scc1 %s', l2)
    parts = {}
    for lab, fn in ((l0, gen_h0), (l1, gen_h1), (l2, gen_h23)):
        B = sub(A)
        B('%s:', lab)
        B('s_nop 4')
        HELP['on'] = True
        prio(B, 1)
        _st['n'] = nst[lab]
        fn(B)
        HELP['on'] = False
        parts[lab] = B.lines
    _st['n'] = 1
    gen_compute(A)
    A('%s:', end)
    A('s_endpgm')
    for lab in (l0, l1, l2):
        A.lines += parts[lab]
    A.lines += COLD
    return A, name


def main():
    out = sys.argv[1] if len(sys.argv) > 1 else 'cdna_kernels/%s.s' % NAME
    A, name = gen()
    lines, nn = fix_hazards(A.lines)
    hdr = ['; generated by gen/gen12.py (hand-written generator script)',
           '; @launch grid=(256,1,1) block=(512,1,1) lds=%d' % LDS_SIZE,
           '.amdgcn_target "amdgcn-amd-amdhsa--gfx950"', '.text']
    tail = ['.p2align 8', '.fill 2048, 4, 0xbf800000', '.section .rodata,"a"', '.p2align 6', '''.amdhsa_kernel %s
  .amdhsa_next_free_vgpr 256
  .amdhsa_next_free_sgpr 102
  .amdhsa_accum_offset 256
  .amdhsa_group_segment_fixed_size 0
  .amdhsa_kernarg_size 80
  .amdhsa_user_sgpr_count 2
  .amdhsa_user_sgpr_kernarg_segment_ptr 1
  .amdhsa_system_sgpr_workgroup_id_x 1
  .amdhsa_float_denorm_mode_32 3
  .amdhsa_float_denorm_mode_16_64 3
.end_amdhsa_kernel''' % name]
    open(out, 'w').write('\n'.join(hdr + lines + tail) + '\n')
    print('wrote', out, 'lines', len(lines), 'nops', nn)


if __name__ == '__main__':
    main()
```

```python
import sys
import os
sys.path.insert(0, os.path.dirname(os.path.abspath(__file__)))
from asmlib import Asm, fix_hazards, v

NAME = 'sequential_preLN__linear_kernel_hedgehog__dense_activation_silu__prompt'
S, D, H, DH, F = 2048, 448, 16, 28, 1792
MB = 1 << 20
E = lambda k, d: int(os.environ.get(k, d))
STAMPS = E('STAMPS', 0)
MAP = E('MAP', 0)
FAST = E('FAST', 1)
CODEPF = E('CODEPF', 1)
WARM = E('WARM', 0)
WT1 = E('WT1', 0)
WTO = E('WTO', 0)
TOUCHAT = E('TOUCHAT', 2)
LDB = (' sc1', '', ' nt')[E('LDB', 0)]
HLATE = E('HLATE', 1)
WS_KVP = 0
WS_OB = 2 * MB
WS_HB = 4 * MB
WS_H1B = 8 * MB
WS_FLG = 16 * MB
F1, F2, F3, F4, FREG, FEP = WS_FLG + 0x10000, WS_FLG + 0x1000, WS_FLG + 0x3000, WS_FLG + 0x70000, WS_FLG + 0x9000, WS_FLG + 0xA000
F2X = WS_FLG + 0x40000
WS_STAMP = 17 * MB
WS_SIZE = 18 * MB
LOG2E = 0x3fb8aa3b
ONES = 0x3f803f80
MFMA = 'v_mfma_f32_32x32x16_bf16'
L_X = 0
L_WP = (114688, 0, 32768)
L_KVA, L_KVV = 65536, 81920
L_A = 98304
L_SC0, L_SC1 = 49152, 57344
L_XRES = L_SC0
B16 = (0, 16384, 65536, 81920, 32768)
L_PHI, L_EX, L_CF, L_MISC = 159744 - 2048 + 2048 + 1536, 155648, 159744, 163328
LDS_SIZE = 163840
M_PW, M_FAST, M_CP, M_LD = 0, 64, 96, 256
L_RSTD = L_EX

SX, SW, SP, SWS, SWO, SW1, SW2, SOUT = 12, 16, 20, 24, 28, 32, 36, 40
sTB, sH, sWV, sC0, sPROG, sT, sT2, sONES, sC, sTAG, sFASTF, sI, sXCD = 44, 45, 46, 47, 48, 49, 50, 51, 52, 53, 54, 55, 3
sHI, sPADL, sZA, sZB, sODD, sPC = 4, 6, 8, 10, 92, 94
sTQ, sNB, sTB3, sFB, sG, sKH, sB, sXB, sM0, sSPIN = 96, 97, 98, 99, 100, 101, 88, 89, 91, 90
sPROG1, sFL = 0, 1
vL, vMI, vT0, vT1, vO = 1, 2, 3, 4, 5
vTAG, vMY = 6, 7
vTT = 8
vXA = 12
vWA = 16
vSM, vSQ = 20, 22
vNM, vRS, vSC, vRA = 24, 25, 26, 27
vXD = 28
vPW = 32
vCA = 36
vXR = 144
vPK_ = 37
CACHE = {4: sPROG, 7: sPROG1, 5: sC0}

_st = {'n': 0}
C0 = 4
HELP = {'on': False}


def prio(A, hi):
    if HELP['on'] and E('HPRIO', 2) and not HELP.get('hot'):
        A('s_setprio %d', E('HPRIO', 2) if hi else 0)
LP = {}


STSET = os.environ.get('STSET', 'main')


DBGT = E('DBGT', 0)


PROBE = E('PROBE', -1)


def stamp(A, tag='main'):
    if PROBE >= 0:
        if not HELP['on'] and tag in ('main', 'all'):
            if _st['n'] == PROBE:
                A('s_memrealtime s[56:57]')
            _st['n'] += 1
        return
    if DBGT and not HELP['on'] and tag in ('main', 'all'):
        A('s_memrealtime s[%d:%d]', 56 + 2 * _st['n'], 57 + 2 * _st['n'])
        _st['n'] += 1
        return
    if STAMPS and STSET == 'clk' and tag == 'main' and not HELP['on']:
        _st['m'] = _st.get('m', 0) + 1
        if _st['m'] in (1, 2, 4, 8, 10, 13):
            A('s_memtime s[%d:%d]', 56 + 2 * _st['n'], 57 + 2 * _st['n'])
            A('s_memrealtime s[%d:%d]', 58 + 2 * _st['n'], 59 + 2 * _st['n'])
            _st['n'] += 2
        return
    if STAMPS and (tag == STSET or tag == 'all' or (HELP['on'] and tag == 'main')):
        assert _st['n'] < 15, 'too many stamps'
        A('s_memtime s[%d:%d]', 56 + 2 * _st['n'], 57 + 2 * _st['n'])
        _st['n'] += 1


def stamp_flush(A):
    if DBGT and not HELP['on']:
        A('s_waitcnt vmcnt(0)')
        stamp(A, 'all')
        skip = A.label('DS')
        A('s_waitcnt vmcnt(0) lgkmcnt(0)')
        A('s_cmp_ge_u32 s%d, 28', sI)
        A('s_cbranch_scc1 %s', skip)
        A('s_mov_b64 exec, 1')
        A('v_mov_b32 v1, 0')
        A('s_not_b32 s4, s56')
        A('v_mov_b32 v2, s4')
        A('global_atomic_umax v1, v2, s[86:87] offset:60')
        for i in range(_st['n']):
            A('v_mov_b32 v%d, s%d', 8 + i, 56 + 2 * i)
            A('global_atomic_umax v1, v%d, s[86:87] offset:%d', 8 + i, 4 * i)
        A('%s:', skip)
        return
    if STAMPS:
        A('s_waitcnt vmcnt(0)')
        stamp(A, 'all')
        A('s_memrealtime s[4:5]')
        A('s_waitcnt vmcnt(0) lgkmcnt(0)')
        A('s_sub_u32 s4, s4, s86')
        A('s_lshl_b32 s4, s4, 20')
        A('s_and_b32 s86, s86, 0xfffff')
        A('s_or_b32 s86, s86, s4')
        A('s_lshl_b32 s%d, s2, 3', sT)
        A('s_add_u32 s%d, s%d, s%d', sT, sT, sWV)
        A('s_lshl_b32 s%d, s%d, 6', sT, sT)
        A('s_add_u32 s%d, s%d, %d', sT, sT, WS_STAMP)
        A('s_mov_b64 exec, 1')
        A('v_mov_b32 v1, 0')
        for i in range(16):
            if i < _st['n']:
                A('v_mov_b32 v2, s%d', 56 + 2 * i)
            elif i == 15:
                A('v_mov_b32 v2, s86')
            else:
                A('v_mov_b32 v2, 0')
            A('buffer_store_dword v2, v1, s[%d:%d], s%d offen offset:%d', SWS, SWS + 3, sT, 4 * i)
            A('s_nop 1')


def srd(A, d, ptr, size):
    A('s_mov_b32 s%d, s%d', d, ptr)
    A('s_and_b32 s%d, s%d, 0xffff', d + 1, ptr + 1)
    A('s_mov_b32 s%d, 0x%x', d + 2, size)
    A('s_mov_b32 s%d, 0x20000', d + 3)


COLD = []


def cold_block(A, fn):
    ent, back = A.label('CE'), A.label('CB')
    B = sub(A)
    B('%s:', ent)
    B('s_nop 15')
    fn(B, back)
    B('s_nop 7')
    B('s_branch %s', back)
    COLD.extend(B.lines)
    return ent, back


def again(A, br, lo, sleep=0):
    slp = max(sleep * E('SLPMUL', 1), E('HSLP', 0) if HELP['on'] else E('CSLP', 0))
    if slp:
        st = A.label('ZZ')
        COLD.extend(['%s:' % st, '  s_sleep %d' % slp, '  s_branch %s' % lo])
        lo = st
    A('%s %s', br, lo)


def spin_guard(A, done):
    A('s_sub_u32 s%d, s%d, 1', sSPIN, sSPIN)
    A('s_cbranch_scc1 %s', done)


def wait_word(A, w, n, cache=None, sleep=0, body=None):
    sd = sT if cache is None else cache

    def loop(B, done, body=None):
        lo = B.label('W')
        prio(B, 0)
        B('%s:', lo)
        B('ds_read_b32 v%d, v%d offset:%d', vPW, vMI, M_PW + 4 * w)
        k = body() if body else 0
        B('s_waitcnt lgkmcnt(%d)', k)
        B('v_readfirstlane_b32 s%d, v%d', sd, vPW)
        spin_guard(B, done)
        B('s_cmp_ge_u32 s%d, %d', sd, n)
        again(B, 's_cbranch_scc0', lo, sleep)
        prio(B, 1)
    if cache is not None and body is None and not HELP['on']:
        A('s_getpc_b64 s[%d:%d]', sPC, sPC + 1)
        A('s_cmp_ge_u32 s%d, %d', sd, n)
        A('s_cbranch_scc0 REFRESH_%d', w)
        return
    done = A.label('WD')
    if cache is not None and body is None:
        A('s_cmp_ge_u32 s%d, %d', sd, n)
        A('s_cbranch_scc1 %s', done)
    loop(A, done, body)
    A('%s:', done)


def wait_lp(A, name, sleep=0):
    w, n = LP[name]
    wait_word(A, w, n, CACHE[w], sleep)


def set_stage(A, n):
    A('v_mov_b32 v%d, %d', vT0, n)
    A('ds_write_b32 v%d, v%d', vMY, vT0)


def wait_stage(A, n, which=(0, 1, 2, 3), body=None, sleep=0, base=M_PW):
    lo, done = A.label('W'), A.label('WD')
    prio(A, 0)
    A('%s:', lo)
    A('ds_read_b128 v[%d:%d], v%d offset:%d', vPW, vPW + 3, vMI, base + 16 * (which[0] // 4))
    k = body() if body else 0
    A('s_waitcnt lgkmcnt(%d)', k)
    w = [x % 4 for x in which]
    if len(w) == 4:
        A('v_min3_u32 v%d, v%d, v%d, v%d', vPW, vPW, vPW + 1, vPW + 2)
        A('v_min_u32 v%d, v%d, v%d', vPW, vPW, vPW + 3)
        r = vPW
    else:
        A('v_min_u32 v%d, v%d, v%d', vPW + w[0], vPW + w[0], vPW + w[1])
        r = vPW + w[0]
    A('v_readfirstlane_b32 s%d, v%d', sT, r)
    spin_guard(A, done)
    A('s_cmp_ge_u32 s%d, %d', sT, n)
    again(A, 's_cbranch_scc0', lo, sleep)
    A('%s:', done)
    prio(A, 1)


def poll_global(A, soff, nlanes):
    lo, done = A.label('P'), A.label('PD')
    A('v_lshlrev_b32 v%d, 2, v%d', vT1, vL)
    if nlanes <= 32:
        A('s_mov_b64 exec, 0x%x', (1 << nlanes) - 1)
    else:
        A('s_mov_b32 exec_lo, 0x%x', nlanes & 0xffffffff)
        A('s_mov_b32 exec_hi, 0x%x', nlanes >> 32)
    A('%s:', lo)
    A('buffer_load_dword v%d, v%d, s[%d:%d], s%d offen sc1', vT0, vT1, SWS, SWS + 3, soff)
    A('s_waitcnt vmcnt(0)')
    A('v_cmp_ne_u32 vcc, s%d, v%d', sTAG, vT0)
    spin_guard(A, done)
    A('s_cbranch_vccnz %s', lo)
    A('%s:', done)
    A('s_mov_b64 exec, -1')


def poll_scalar(A, soff, n):
    lo, done = A.label('P'), A.label('PD')
    A('s_add_u32 s%d, s%d, s%d', sPC, SWS, soff)
    A('s_addc_u32 s%d, s%d, 0', sPC + 1, SWS + 1)
    base = 76
    assert n == 8
    A('%s:', lo)
    if E('PSLEEP', 0):
        A('s_sleep %d', E('PSLEEP', 0))
    A('s_load_dwordx%d s[%d:%d], s[%d:%d], 0 glc', n, base, base + n - 1, sPC, sPC + 1)
    A('s_waitcnt lgkmcnt(0)')
    A('s_and_b64 s[%d:%d], s[%d:%d], s[%d:%d]', sHI, sHI + 1, base, base + 1, base + 2, base + 3)
    A('s_or_b64 s[%d:%d], s[%d:%d], s[%d:%d]', sPADL, sPADL + 1, base, base + 1, base + 2, base + 3)
    for k in range(4, n, 2):
        A('s_and_b64 s[%d:%d], s[%d:%d], s[%d:%d]', sHI, sHI + 1, sHI, sHI + 1, base + k, base + k + 1)
        A('s_or_b64 s[%d:%d], s[%d:%d], s[%d:%d]', sPADL, sPADL + 1, sPADL, sPADL + 1, base + k, base + k + 1)
    A('s_and_b32 s%d, s%d, s%d', sHI, sHI, sHI + 1)
    A('s_or_b32 s%d, s%d, s%d', sPADL, sPADL, sPADL + 1)
    A('s_xor_b32 s%d, s%d, s%d', sHI, sHI, sTAG)
    A('s_xor_b32 s%d, s%d, s%d', sPADL, sPADL, sTAG)
    spin_guard(A, done)
    A('s_or_b32 s%d, s%d, s%d', sHI, sHI, sPADL)
    A('s_cbranch_scc1 %s', lo)
    A('%s:', done)


def two_ways(A, fn, local):
    if local and FAST:
        ent, back = cold_block(A, lambda B, back: fn(B, ' sc1'))
        A('s_cmp_eq_u32 s%d, 0', sFASTF)
        A('s_cbranch_scc1 %s', ent)
        fn(A, '')
        A('%s:', back)
    else:
        fn(A, ' sc1')


def pub_stores(A, stores, local):
    def fn(B, bits):
        for st in stores:
            B(st % bits)
    two_ways(A, fn, local)


def pub_flag(A, sflag, local, drain=True):
    if drain:
        A('s_waitcnt vmcnt(0)')
    A('s_mov_b64 exec, 1')
    two_ways(A, lambda B, bits: B('buffer_store_dword v%d, v%d, s[%d:%d], s%d offen%s', vTAG, vO, SWS, SWS + 3, sflag,
                                  bits), local)
    A('s_mov_b64 exec, -1')


def pub_flag4(A):
    A('v_lshlrev_b32 v%d, 9, v%d', vT1, vL)
    A('s_waitcnt vmcnt(0)')
    A('s_mov_b64 exec, 15')
    two_ways(A, lambda B, bits: B('buffer_store_dword v%d, v%d, s[%d:%d], s%d offen%s', vTAG, vT1, SWS, SWS + 3, sFL,
                                  bits), True)
    A('s_mov_b64 exec, -1')


def st4(reg, soff, off):
    return 'buffer_store_dwordx4 %s, v%d, s[%d:%d], s%d offen offset:%d%%s' % (v(reg, 4), vO, SWS, SWS + 3, soff, off)


def hilo_c(A, src, f, tmp):
    A('v_cvt_pk_bf16_f32 v%d, v%d, v%d', f, src, src)
    A('v_and_b32 v%d, 0xffff0000, v%d', tmp, f)
    A('v_sub_f32 v%d, v%d, v%d', tmp, src, tmp)
    A('v_cvt_pk_bf16_f32 v%d, v%d, 0', f + 1, tmp)


def hilo_m(A, src, f, tmp):
    A('v_cvt_pk_bf16_f32 v%d, v%d, 0', f + 1, src)
    A('v_lshlrev_b32 v%d, 16, v%d', tmp, f + 1)
    A('v_sub_f32 v%d, v%d, v%d', tmp, src, tmp)
    A('v_cvt_pk_bf16_f32 v%d, v%d, v%d', f, src, tmp)


def ln_finish(A, t0, t1, negmean, rstd):
    A('v_mul_f32 v%d, 0x%x, v%d', t0, 0x3b124925, t0)
    A('v_mov_b32 v%d, v%d', t1, t0)
    A('v_permlane32_swap_b32 v%d, v%d', t0, t1)
    A('v_fma_f32 v%d, -v%d, v%d, v%d', t1, t0, t0, t1)
    A('v_max_f32 v%d, 0, v%d', t1, t1)
    A('v_add_f32 v%d, 0x%x, v%d', t1, 0x3727c5ac, t1)
    A('v_rsq_f32 v%d, v%d', rstd, t1)
    A('v_sub_f32 v%d, 0, v%d', negmean, t0)


def softmax_pm(A, p, sc, e, t):
    A('v_cndmask_b32 v%d, v%d, v%d, s[%d:%d]', p + 12, p + 12, p + 14, sHI, sHI + 1)
    A('v_cndmask_b32 v%d, v%d, v%d, s[%d:%d]', p + 13, p + 13, p + 15, sHI, sHI + 1)
    mx, mn = t, t + 1
    A('v_max3_f32 v%d, v%d, v%d, v%d', mx, p, p + 1, p + 2)
    A('v_min3_f32 v%d, v%d, v%d, v%d', mn, p, p + 1, p + 2)
    for i in range(3, 13, 2):
        A('v_max3_f32 v%d, v%d, v%d, v%d', mx, mx, p + i, p + i + 1)
        A('v_min3_f32 v%d, v%d, v%d, v%d', mn, mn, p + i, p + i + 1)
    A('v_max_f32 v%d, v%d, v%d', mx, mx, p + 13)
    A('v_min_f32 v%d, v%d, v%d', mn, mn, p + 13)
    A('v_sub_f32 v%d, 0, v%d', mn, mn)
    A('v_permlane32_swap_b32 v%d, v%d', mx, mn)
    A('v_max_f32 v%d, v%d, v%d', mx, mx, mn)
    A('v_mul_f32 v%d, v%d, v%d', mx, mx, sc)
    A('v_mov_b32 v%d, v%d', mn, mx)
    A('v_permlane32_swap_b32 v%d, v%d', mx, mn)
    assert sc % 2 == 0 and mx % 2 == 0
    for i in range(0, 14, 2):
        A('v_pk_fma_f32 v[%d:%d], v[%d:%d], v[%d:%d], v[%d:%d] op_sel:[0,0,1] op_sel_hi:[1,0,1] neg_lo:[1,0,1] '
          'neg_hi:[1,0,1]', e + i, e + i + 1, p + i, p + i + 1, sc, sc + 1, mx, mx + 1)
        A('v_pk_fma_f32 v[%d:%d], v[%d:%d], v[%d:%d], v[%d:%d] op_sel_hi:[1,0,0] neg_lo:[0,0,1] neg_hi:[0,0,1]',
          p + i, p + i + 1, p + i, p + i + 1, sc, sc + 1, mx, mx + 1)
    for i in range(14):
        A('v_exp_f32 v%d, v%d', e + i, e + i)
        A('v_exp_f32 v%d, v%d', p + i, p + i)
    if PKSM:
        for base in (p, e):
            A('v_pk_add_f32 v[%d:%d], v[%d:%d], v[%d:%d]', base + 14, base + 15, base, base + 1, base + 2, base + 3)
        for i in range(4, 14, 2):
            for base in (p, e):
                A('v_pk_add_f32 v[%d:%d], v[%d:%d], v[%d:%d]', base + 14, base + 15, base + 14, base + 15, base + i,
                  base + i + 1)
    else:
        for base in (p, e):
            A('v_add_f32 v%d, v%d, v%d', base + 14, base, base + 2)
            A('v_add_f32 v%d, v%d, v%d', base + 15, base + 1, base + 3)
        for i in range(4, 14):
            for base in (p, e):
                A('v_add_f32 v%d, v%d, v%d', base + 14 + (i & 1), base + 14 + (i & 1), base + i)
    sp, sn = t + 2, t
    A('v_add_f32 v%d, v%d, v%d', sp, p + 14, p + 15)
    A('v_add_f32 v%d, v%d, v%d', sn, e + 14, e + 15)
    A('v_permlane32_swap_b32 v%d, v%d', sp, sn)
    A('v_add_f32 v%d, v%d, v%d', sp, sp, sn)
    A('v_rcp_f32 v%d, v%d', sp, sp)
    A('v_mov_b32 v%d, v%d', sn, sp)
    A('v_permlane32_swap_b32 v%d, v%d', sp, sn)
    for i in range(0, 14, 2):
        for base, r in ((p, sp), (e, sn)):
            if PKSM:
                A('v_pk_mul_f32 v[%d:%d], v[%d:%d], v[%d:%d] op_sel_hi:[1,0]', base + i, base + i + 1, base + i,
                  base + i + 1, r, r + 1)
            else:
                A('v_mul_f32 v%d, v%d, v%d', base + i, base + i, r)
                A('v_mul_f32 v%d, v%d, v%d', base + i + 1, base + i + 1, r)
    for i, (a0, a1) in enumerate(((0, 1), (2, 3), (4, 5), (6, None), (7, 8), (9, 10), (11, 12), (13, None))):
        for base in (p, e):
            A('v_cvt_pk_bf16_f32 v%d, v%d, %s', base + i, base + a0, '0' if a1 is None else 'v%d' % (base + a1))


PKSM = E('PKSM', 1)


def silu8(B, acc, e, sd, c1, out):
    for r in range(8):
        B('v_mul_f32 v%d, v%d, v%d', e + r, acc + r, c1)
        if r >= 1:
            B('v_exp_f32 v%d, v%d', e + r - 1, e + r - 1)
    B('v_exp_f32 v%d, v%d', e + 7, e + 7)
    for r in range(8):
        B('v_fma_f32 v%d, v%d, v%d, v%d', e + r, e + r, sd, sd)
        if r >= 1:
            B('v_rcp_f32 v%d, v%d', e + r - 1, e + r - 1)
    B('v_rcp_f32 v%d, v%d', e + 7, e + 7)
    for r in range(8):
        B('v_mul_f32 v%d, v%d, v%d', e + r, e + r, acc + r)
    cvt8(B, out, e, 4)


def cvt8(A, dst, src, n=8):
    for i in range(n):
        A('v_cvt_pk_bf16_f32 v%d, v%d, v%d', dst + i, src + 2 * i, src + 2 * i + 1)


def mfma(A, d, a_, b_, first=False):
    A('%s %s, %s, %s, %s', MFMA, v(d, 16), v(a_, 4), v(b_, 4), '0' if first else v(d, 16))


def merge(main, blocks, start, stop):
    idx = [i for i, l in enumerate(main) if l.strip().startswith('v_mfma')][start:stop]
    out, k = [], 0
    n = len(idx)
    pos = {i: j for j, i in enumerate(idx)}
    for i, l in enumerate(main):
        out.append(l)
        if i in pos:
            upto = (len(blocks) * (pos[i] + 1) + n - 1) // n
            for b in blocks[k:upto]:
                out += b
            k = max(k, upto)
    assert k >= len(blocks)
    return out


def sub(A):
    return Asm()


L_H = (L_A, L_A + 28672, 0, 65536)
W2S = [32768, 40960] + [L_A + k * 8192 for k in range(2)] + [L_SC0, L_SC1] + [L_A + k * 8192 for k in range(2, 7)] + [
    k * 8192 for k in range(4)] + [65536 + k * 8192 for k in range(4)]
W2GATE = {2: 9, 7: 10, 11: 11, 15: 12}
W2RE = dict(zip(range(19, 28), (0, 1, 2, 3, 6, 7, 8, 9, 10)))


def w2_slot(n):
    return W2S[W2RE.get(n, n)]


def w1_slot(c):
    return B16[c % 5]


class LdsQ:
    def __init__(self, A):
        self.A, self.q = A, []
        self.peeked = False

    def op(self, tag, fmt, *a):
        self.A(fmt, *a)
        self.q.append(tag)

    def need(self, tag):
        idx = [i for i, x in enumerate(self.q) if x == tag]
        if not idx:
            return None
        n = len(self.q) - 1 - idx[-1]
        self.q = self.q[idx[-1] + 1:]
        return min(n, 15)

    def wait(self, tag, vm=None):
        n = self.need(tag)
        if n is None and vm is None:
            return
        self.A('s_waitcnt' + ('' if vm is None else ' vmcnt(%d)' % vm) + ('' if n is None else ' lgkmcnt(%d)' % n))

    def stage(self, n):
        set_stage(self.A, n)
        self.q.append('st')

    def peek(self, w):
        if w == 5:
            self.op('pk', 'ds_read_b32 v%d, v%d', vPK_, vCA)
        else:
            self.op('pk', 'ds_read_b32 v%d, v%d offset:%d', vPK_, vMI, M_PW + 4 * w)
        self.peeked = True

    def take(self, w):
        if not self.peeked:
            return
        self.peeked = False
        self.wait('pk')
        self.A('v_readfirstlane_b32 s%d, v%d', CACHE[w], vPK_)


def tag_compute(A, t16=None):
    A('s_waitcnt lgkmcnt(0)')
    if t16 is not None:
        A('s_lshr_b32 s%d, s%d, 16', sT2, sTAG)
    A('s_mul_i32 s%d, s%d, 0x%x', sTAG, sTAG, 1664525)
    A('s_add_u32 s%d, s%d, 0x%x', sTAG, sTAG, 1013904223)
    A('v_mov_b32 v%d, s%d', vTAG, sTAG)
    if t16 is not None:
        A('s_and_b32 s%d, s%d, 0x3fff', t16, sTAG)
        A('s_and_b32 s%d, s%d, 0x4000', sT, sTAG)
        A('s_lshl_b32 s%d, s%d, 1', sT, sT)
        A('s_or_b32 s%d, s%d, s%d', t16, t16, sT)
        A('s_cmp_eq_u32 s%d, s%d', t16, sT2)
        A('s_cselect_b32 s%d, 1, 0', sT)
        A('s_xor_b32 s%d, s%d, s%d', t16, t16, sT)
        A('s_lshl_b32 s%d, s%d, 16', t16, t16)


def fast_check(A):
    A('s_getreg_b32 s%d, hwreg(HW_REG_XCC_ID)', sC)
    A('s_and_b32 s%d, s%d, 15', sC, sC)
    A('s_add_u32 s%d, s%d, s%d', sC, sC, sTAG)
    A('s_lshl_b32 s%d, s%d, 7', sT, sXCD)
    A('s_add_u32 s%d, s%d, %d', sT, sT, FREG)
    A('v_and_b32 v%d, 31, v%d', vT1, vL)
    A('v_lshlrev_b32 v%d, 2, v%d', vT1, vT1)
    A('buffer_load_dword v%d, v%d, s[%d:%d], s%d offen sc1', vT0, vT1, SWS, SWS + 3, sT)
    A('s_waitcnt vmcnt(0)')
    A('v_cmp_ne_u32 vcc, s%d, v%d', sC, vT0)
    A('s_cmp_eq_u64 vcc, 0')
    A('s_cselect_b32 s%d, 1, 0', sFASTF)


class Stream:
    def __init__(self, A, wave, depth, first=0):
        self.A, self.wave, self.depth = A, wave, depth
        self.items = []
        self.issued = 0
        self.known = 0
        self.n = first

    def wait_to(self, left):
        if self.issued - left <= self.known:
            return
        self.A('s_waitcnt vmcnt(%d)', left)
        self.known = self.issued - left
        last = None
        while self.items and self.items[0][1] <= self.known:
            last = self.items.pop(0)[0]
        if last is not None:
            set_stage(self.A, last)

    def room(self, k):
        self.wait_to(max(self.depth - k, 0))
        self.issued += k

    def done(self, name, cnt=None):
        self.n += 1
        assert LP.setdefault(name, (self.wave, self.n)) == (self.wave, self.n), name
        self.items.append((self.n, self.issued))

    def drain(self):
        self.drain_to(0)

    def drain_to(self, keep):
        while len(self.items) > keep:
            self.wait_to(self.issued - self.items[0][1])

    def save(self):
        return (list(self.items), self.issued, self.known)

    def restore(self, s):
        self.items, self.issued, self.known = list(s[0]), s[1], s[2]

    def dma4(self, lds, voffs, srd_, step=None, bits=''):
        A = self.A
        if isinstance(lds, tuple):
            A('s_add_u32 m0, s%d, %d', lds[0], lds[1])
        else:
            A('s_mov_b32 m0, %d', lds)
        self.room(4)
        for u in range(4):
            A('buffer_load_dwordx4 v%d, s[%d:%d], s%d offen offset:%d%s lds', voffs[u], srd_, srd_ + 3, sT, u * 1024,
              bits)
        if step:
            A('s_add_u32 s%d, s%d, %d', sT, sT, step)


def reg4(St, regs, voffs, srd_, step=None):
    St.room(4)
    for u in range(4):
        St.A('buffer_load_dwordx4 %s, v%d, s[%d:%d], s%d offen offset:%d', v(regs[u], 4), voffs[u], srd_, srd_ + 3, sT,
             u * 1024)
    if step:
        St.A('s_add_u32 s%d, s%d, %d', sT, sT, step)


def spill(St, name, regs, lds):
    A = St.A
    assert not St.items
    A('v_add_u32 v%d, %d, v%d', vT1, lds, vO)
    A('s_setprio %d', E('SPRIO', 0))
    for j, r in enumerate(regs):
        A('ds_write_b128 v%d, %s offset:%d', vT1, v(r, 4), j * 1024)
    St.n += 1
    assert LP.setdefault(name, (St.wave, St.n)) == (St.wave, St.n), name
    set_stage(A, St.n)


def off128(A, vW128, vXo=None):
    A('v_lshrrev_b32 v%d, 3, v%d', vW128, vL)
    A('v_mul_u32_u24 v%d, 896, v%d', vW128, vW128)
    A('v_and_b32 v%d, 7, v%d', vT1, vL)
    if vXo is not None:
        A('v_lshl_add_u32 v%d, v%d, 4, v%d', vXo, vT1, vW128)
        spread4(A, vXo, 8 * 896)
    A('v_lshrrev_b32 v%d, 2, v%d', vT0, vL)
    A('v_and_b32 v%d, 4, v%d', vT0, vT0)
    A('v_xor_b32 v%d, v%d, v%d', vT1, vT1, vT0)
    A('v_lshl_add_u32 v%d, v%d, 4, v%d', vW128, vT1, vW128)
    spread4(A, vW128, 8 * 896)


def off256(A, vW256):
    A('v_lshrrev_b32 v%d, 4, v%d', vW256, vL)
    A('v_mul_u32_u24 v%d, 3584, v%d', vW256, vW256)
    A('v_and_b32 v%d, 15, v%d', vT1, vL)
    A('v_lshrrev_b32 v%d, 2, v%d', vT0, vL)
    A('v_and_b32 v%d, 12, v%d', vT0, vT0)
    A('v_xor_b32 v%d, v%d, v%d', vT1, vT1, vT0)
    A('v_lshl_add_u32 v%d, v%d, 4, v%d', vW256, vT1, vW256)
    spread4(A, vW256, 4 * 3584)


def h_stream(A, first):
    wave = 7
    St = Stream(A, wave, E('HDEPTH', 24), first)
    if wave == 7:
        A('s_lshl_b32 s%d, s%d, 17', sB, sTB3)
        A('s_add_u32 s%d, s%d, %d', sB, sB, WS_HB + (0x40000000 if E('ABL', 0) & 128 else 0))
        rot_calc(A, sG, 'w1')
        for u in range(7):
            rot_idx(A, 4 + u, sG, u, 7)
            A('s_lshl_b32 s%d, s%d, 12', 4 + u, 4 + u)
            A('s_add_u32 s%d, s%d, s%d', 4 + u, 4 + u, sB)
            A('s_add_u32 s%d, s%d, 4096', 4 + u, 4 + u)
        A('s_lshl_b32 s%d, s%d, 8', sT2, sTB3)
        A('s_add_u32 s%d, s%d, %d', sT2, sT2, F3)
        A('v_lshlrev_b32 v%d, 2, v%d', vT1, vL)
        A('s_and_b32 s%d, s%d, 1', sC, sFB)
        A('s_lshl_b32 s%d, s%d, 16', sC, sC)
        wait_stage(A, C0 + 7, sleep=1)
        stamp(A)
        lo, done = A.label('P'), A.label('PD')
        A('s_mov_b32 exec_lo, 0x3fff3fff')
        A('s_mov_b32 exec_hi, 0x3fff3fff')
        A('%s:', lo)
        A('buffer_load_dword v%d, v%d, s[%d:%d], s%d offen sc1', vT0, vT1, SWS, SWS + 3, sT2)
        A('s_waitcnt vmcnt(0)')
        A('v_cmp_ne_u32 vcc, s%d, v%d', sTAG, vT0)
        spin_guard(A, done)
        A('s_cbranch_vccnz %s', lo)
        A('%s:', done)
        A('s_mov_b64 exec, -1')
        stamp(A)
        for gi in range(4):
            if gi == 2:
                wait_stage(A, C0 + 8)
            if gi:
                A('s_xor_b32 s%d, s%d, %d', sC, sC, (gi ^ (gi - 1)) << 15)
            St.depth = E('HDEPTH0', 24) if gi == 0 else E('HDEPTH', 24)
            for u in range(7):
                A('s_add_u32 s%d, s%d, s%d', sT, 4 + u, sC)
                St.dma4(L_H[gi] + u * 4096, [vO] * 4, SWS, None, LDB)
                St.done(('h', gi, u))
                if u == (E('HSPOS', 3) if gi == 0 else 0):
                    A('s_add_u32 s%d, s%d, s%d', sT, sB, sC)
                    St.dma4(L_SC0 + gi * 4096, [vO] * 4, SWS, None, ' sc1')
                    St.done(('hs', gi))
        St.drain()
    stamp(A)


def spread4(A, base, step):
    for u in range(1, 4):
        A('v_add_u32 v%d, %d, v%d', base + u, u * (step - 1024), base)


def wtr_base(A):
    A('v_lshrrev_b32 v%d, 5, v%d', vT1, vL)
    A('v_bfe_u32 v%d, v%d, 2, 2', vT0, vL)
    A('v_lshl_add_u32 v%d, v%d, 3, v%d', vT0, vT1, vT0)
    A('v_lshlrev_b32 v%d, 6, v%d', vT0, vT0)
    A('v_bfe_u32 v%d, v%d, 4, 1', vTT, vL)
    A('v_lshl_add_u32 v%d, v%d, 5, v%d', vT0, vTT, vT0)
    A('v_and_b32 v%d, 3, v%d', vTT, vL)
    A('v_lshl_add_u32 v%d, v%d, 3, v%d', vT0, vTT, vT0)
    for pi in range(3):
        A('v_add_u32 v%d, %d, v%d', vWA + pi, L_WP[pi], vT0)
    A('v_lshlrev_b32 v%d, 3, v%d', vCA, vL)
    A('v_add_u32 v%d, %d, v%d', vCA, L_CF, vCA)


def sel_frags(A, vID):
    A('v_lshrrev_b32 v%d, 5, v%d', vT1, vL)
    A('v_and_b32 v%d, 31, v%d', vT0, vL)
    A('v_lshlrev_b32 v%d, 2, v%d', vTT, vT1)
    A('v_sub_u32 v%d, v%d, v%d', vT0, vT0, vTT)
    A('v_mov_b32 v%d, 0x3f80', vTT)
    A('v_mov_b32 v%d, 0x3f800000', vTT + 1)
    for sidx in range(2):
        for rr in range(4):
            m = 16 * sidx + 8 * (rr >> 1) + 2 * (rr & 1)
            A('v_cmp_eq_u32 vcc, %d, v%d', m, vT0)
            A('v_cndmask_b32 v%d, 0, v%d, vcc', vID + 4 * sidx + rr, vTT)
            A('v_cmp_eq_u32 vcc, %d, v%d', m + 1, vT0)
            A('v_cndmask_b32 v%d, v%d, v%d, vcc', vID + 4 * sidx + rr, vID + 4 * sidx + rr, vTT + 1)


def read_w(A, pi, i, buf, sleep=0):
    wait_lp(A, ('W', pi, i), sleep)
    for q in range(4):
        for z in range(2):
            A('ds_read_b64_tr_b16 v[%d:%d], v%d offset:%d', buf + 4 * q + 2 * z, buf + 4 * q + 2 * z + 1,
              vWA + pi, i * 4096 + q * 1024 + z * 256)


def colsum(A, spi):
    vCS, vB_, buf = 40, 44, 48
    A('v_mov_b32 v%d, 0', vCS)
    A('v_mov_b32 v%d, 0', vCS + 1)
    A('s_cmp_eq_u32 s%d, 1', spi)
    A('s_cselect_b32 s%d, 0, %d', sT, L_WP[2])
    A('s_cmp_eq_u32 s%d, 0', spi)
    A('s_cselect_b32 s%d, %d, s%d', sT, L_WP[0], sT)
    assert L_WP[1] == 0
    A('v_add_u32 v%d, s%d, v%d', vB_, sT, vWA + 1)
    A('s_mul_i32 s%d, s%d, 7', sC, spi)
    A('s_add_u32 s%d, s%d, 7', sT2, sC)
    top, lo, ok = A.label('CS'), A.label('W'), A.label('WD')
    A('%s:', top)
    A('s_cmp_gt_u32 s%d, s%d', sPROG, sC)
    A('s_cbranch_scc1 %s', ok)
    prio(A, 0)
    A('%s:', lo)
    A('ds_read_b32 v%d, v%d offset:%d', vPW, vMI, M_PW + 16)
    A('s_waitcnt lgkmcnt(0)')
    A('v_readfirstlane_b32 s%d, v%d', sPROG, vPW)
    spin_guard(A, ok)
    A('s_cmp_gt_u32 s%d, s%d', sPROG, sC)
    again(A, 's_cbranch_scc0', lo)
    prio(A, 1)
    A('%s:', ok)
    for q in range(4):
        for z in range(2):
            A('ds_read_b64_tr_b16 v[%d:%d], v%d offset:%d', buf + 4 * q + 2 * z, buf + 4 * q + 2 * z + 1, vB_,
              q * 1024 + z * 256)
    A('v_add_u32 v%d, 4096, v%d', vB_, vB_)
    A('s_add_u32 s%d, s%d, 1', sC, sC)
    for q in range(4):
        A('s_waitcnt lgkmcnt(%d)', 6 - 2 * q)
        for r in range(4):
            A('v_dot2c_f32_bf16 v%d, s%d, v%d', vCS + (r & 1), sONES, buf + 4 * q + r)
    A('s_cmp_lt_u32 s%d, s%d', sC, sT2)
    A('s_cbranch_scc1 %s', top)
    A('v_add_f32 v%d, v%d, v%d', vCS, vCS, vCS + 1)
    hilo_c(A, vCS, vCS + 2, vT0)
    A('s_lshl_b32 s%d, s%d, 9', sT, spi)
    A('v_add_u32 v%d, s%d, v%d', vB_, sT, vCA)
    A('ds_write_b64 v%d, v[%d:%d]', vB_, vCS + 2, vCS + 3)


ROT = E('ROT', 1)
W7ST = 0
LATE = E('LATE', 0)
W2R = E('W2R', 0)


def rot_calc(A, dst, kind):
    if not ROT:
        A('s_mov_b32 s%d, 0', dst)
        return
    if kind == 'w1':
        A('s_and_b32 s%d, s%d, 1', dst, sTB3)
        A('s_mul_i32 s%d, s%d, %d', dst, dst, 4 if LATE else 3)
        mod = 7
    elif kind == 'wo':
        A('s_and_b32 s%d, s%d, 3', dst, sTQ)
        A('s_lshl_b32 s%d, s%d, 1', dst, dst)
        mod = 7
    else:
        A('s_and_b32 s%d, s%d, 3', dst, sTQ)
        A('s_mul_i32 s%d, s%d, 7', dst, dst)
        A('s_lshr_b32 s%d, s%d, 1', dst, dst)
        mod = 14
    A('s_add_u32 s%d, s%d, s%d', dst, dst, sXCD)
    if kind == 'w1' and E('ROTFB', 1):
        A('s_lshr_b32 s%d, s%d, 1', sT, sFB)
        A('s_add_u32 s%d, s%d, s%d', dst, dst, sT)
        A('s_mul_i32 s%d, s%d, 37', sT, dst)
        A('s_lshr_b32 s%d, s%d, 8', sT, sT)
        A('s_mul_i32 s%d, s%d, 7', sT, sT)
        A('s_sub_u32 s%d, s%d, s%d', dst, dst, sT)
        return
    A('s_cmp_ge_u32 s%d, %d', dst, mod)
    A('s_cselect_b32 s%d, %d, 0', sT, mod)
    A('s_sub_u32 s%d, s%d, s%d', dst, dst, sT)


def rot_idx(A, dst, rot, j, mod):
    A('s_add_u32 s%d, s%d, %d', dst, rot, j)
    A('s_cmp_ge_u32 s%d, %d', dst, mod)
    A('s_cselect_b32 s%d, %d, 0', sT2, mod)
    A('s_sub_u32 s%d, s%d, s%d', dst, dst, sT2)


def blk_init(A, sb, sst, kh):
    A('s_and_b32 s%d, s%d, 1', sb, sTQ)
    if isinstance(kh, str):
        A('s_xor_b32 s%d, s%d, %s', sb, sb, kh)
    elif kh:
        A('s_xor_b32 s%d, s%d, 1', sb, sb)
    A('s_lshr_b32 s%d, s%d, 1', sT, sTQ)
    A('s_xor_b32 s%d, s%d, s%d', sT, sT, sXCD)
    A('s_sub_u32 s%d, 6, s%d', sT2, sb)
    A('s_bitcmp1_b32 s%d, 0', sT)
    A('s_cselect_b32 s%d, s%d, s%d', sb, sT2, sb)
    A('s_cselect_b32 s%d, 5, 2', sst)


def blk_next(A, sb, sst):
    A('s_add_u32 s%d, s%d, s%d', sb, sb, sst)
    A('s_cmp_ge_u32 s%d, 7', sb)
    A('s_cselect_b32 s%d, 7, 0', sT2)
    A('s_sub_u32 s%d, s%d, s%d', sb, sb, sT2)


def rest_srds(A):
    A('s_add_u32 s82, s80, %d', FEP)
    A('s_addc_u32 s83, s81, 0')
    A('s_load_dword s%d, s[82:83], 0', sTAG)
    srd(A, SP, 68, H * DH * DH * 2)
    A('s_mul_i32 s%d, s%d, 37', sTQ, sI)
    A('s_lshr_b32 s%d, s%d, 8', sTQ, sTQ)
    A('s_mul_i32 s%d, s%d, 7', sNB, sTQ)
    A('s_sub_u32 s%d, s%d, s%d', sNB, sI, sNB)
    A('s_lshr_b32 s%d, s%d, 1', sTB3, sTQ)
    A('s_mul_i32 s%d, s%d, 14', sFB, sTB3)
    A('s_sub_u32 s%d, s%d, s%d', sFB, sI, sFB)
    A('s_lshl2_add_u32 s%d, s%d, s%d', sTQ, sXCD, sTQ)
    A('s_lshl1_add_u32 s%d, s%d, s%d', sTB3, sXCD, sTB3)
    A('v_lshlrev_b32 v%d, 4, v%d', vO, vL)
    A('s_mov_b32 s%d, 0', sFASTF)
    A('s_mov_b32 s%d, 0x%x', sONES, ONES)
    ABL = E('ABL', 0)
    srd(A, SWO, 70, 0 if ABL & 1 else D * D * 2)
    srd(A, SW1, 74, 0 if ABL & 2 else D * F * 2)
    srd(A, SW2, 76, 0 if ABL & 4 else D * F * 2)
    srd(A, SOUT, 78, S * D * 2)
    srd(A, SWS, 80, WS_SIZE)


def rot_next(A):
    A('s_add_u32 s%d, s%d, 1', sC, sC)
    A('s_cmp_eq_u32 s%d, 7', sC)
    A('s_cselect_b32 s%d, 0, s%d', sC, sC)


def sig_dyn(A, sval):
    A('v_mov_b32 v%d, s%d', vT0, sval)
    A('ds_write_b32 v%d, v%d', vMY, vT0)


def x_offsets(A):
    A('v_lshrrev_b32 v%d, 3, v%d', vT0, vL)
    A('v_mul_u32_u24 v%d, 896, v%d', vT0, vT0)
    A('v_lshrrev_b32 v%d, 4, v%d', vT1, vL)
    A('v_and_b32 v%d, 7, v%d', vXD, vL)
    A('v_xor_b32 v%d, v%d, v%d', vXD, vXD, vT1)
    A('v_xor_b32 v%d, 4, v%d', vXD + 1, vXD)
    A('v_lshl_add_u32 v%d, v%d, 4, v%d', vXD, vXD, vT0)
    A('v_lshl_add_u32 v%d, v%d, 4, v%d', vXD + 1, vXD + 1, vT0)
    A('v_add_u32 v%d, %d, v%d', vXD + 1, 8 * 896 - 1024, vXD + 1)
    A('v_add_u32 v%d, %d, v%d', vXD + 2, 2 * (8 * 896 - 1024), vXD)
    A('v_add_u32 v%d, %d, v%d', vXD + 3, 2 * (8 * 896 - 1024), vXD + 1)
    A('s_mul_i32 s%d, s%d, %d', sXB, sTB, 128 * 896)


def w_offsets(A):
    vW = 40
    A('v_lshrrev_b32 v%d, 2, v%d', vW, vL)
    A('v_mul_u32_u24 v%d, 2688, v%d', vW, vW)
    A('v_and_b32 v%d, 3, v%d', vT1, vL)
    A('v_lshl_add_u32 v%d, v%d, 4, v%d', vW, vT1, vW)
    A('s_mul_i32 s%d, s%d, 56', sT, sH)
    A('s_and_b32 s%d, s%d, 0xfffffff0', sT, sT)
    A('v_add_u32 v%d, s%d, v%d', vW, sT, vW)
    spread4(A, vW, 16 * 2688)


def early_x(A):
    depth = E('XDEPTH', 16)
    wsig = ((depth - 4) // 4) % 4
    lag = (depth - 4 - 4 * wsig) // 16
    A('s_mov_b32 s%d, %d', sG, 1 - lag)
    A('s_mov_b32 m0, %d', L_X + 16384)
    A('s_mov_b32 s%d, s%d', sC, sC0)
    rot_next(A)
    top = A.label('XL')
    A('%s:', top)
    A('s_lshl_b32 s%d, s%d, 7', sT, sC)
    A('s_add_u32 s%d, s%d, s%d', sT, sT, sXB)
    for w in range(4):
        A('s_waitcnt vmcnt(%d)', depth - 4)
        if w == wsig:
            A('s_max_i32 s%d, s%d, 0', sT2, sG)
            sig_dyn(A, sT2)
        for u in range(4):
            A('buffer_load_dwordx4 v%d, s[%d:%d], s%d offen offset:%d lds', vXD + u, SX, SX + 3, sT, u * 1024)
        A('s_add_u32 m0, m0, 4096')
        if w < 3:
            A('s_add_u32 s%d, s%d, %d', sT, sT, 32 * 896)
    rot_next(A)
    A('s_add_u32 s%d, s%d, 1', sG, sG)
    A('s_cmp_lt_i32 s%d, %d', sG, 7 - lag)
    A('s_cbranch_scc1 %s', top)
    stamp(A)
    for n in range(7 - lag, 8):
        A('s_waitcnt vmcnt(%d)', 16 * (7 - n))
        set_stage(A, n)


def early_w(A):
    vW = 40

    def part_loop(pi, depth, floor):
        lag = (depth - 4) // 4
        stamp(A)
        A('s_mov_b32 s%d, s%d', sC, sC0)
        A('s_mov_b32 s%d, %d', sG, 7 * pi - lag)
        A('s_mov_b32 m0, %d', L_WP[pi])
        top = A.label('WL')
        A('%s:', top)
        A('s_mul_i32 s%d, s%d, %d', sT, sC, 64 * 2688)
        A('s_add_u32 s%d, s%d, %d', sT, sT, (1, 2, 0)[pi] * 896)
        A('s_max_i32 s%d, s%d, %d', sT2, sG, floor)
        A('s_waitcnt vmcnt(%d)', depth - 4)
        sig_dyn(A, sT2)
        for u in range(4):
            A('buffer_load_dwordx4 v%d, s[%d:%d], s%d offen offset:%d lds', vW + u, SW, SW + 3, sT, u * 1024)
        A('s_add_u32 m0, m0, 4096')
        rot_next(A)
        A('s_add_u32 s%d, s%d, 1', sG, sG)
        A('s_cmp_lt_i32 s%d, %d', sG, 7 * pi + 7 - lag)
        A('s_cbranch_scc1 %s', top)
        return lag
    if E('WTWAIT', 1):
        A('s_waitcnt vmcnt(0)')
    lag = part_loop(0, E('WDEPTH', 8), 0)
    for n in range(7 - lag, 8):
        A('s_waitcnt vmcnt(%d)', 4 * (7 - n))
        set_stage(A, n)
    wait_stage(A, 1)
    if E('XG2', 4) >= 0:
        wait_lp(A, ('x', E('XG2', 4)))
    part_loop(1, E('WDEPTH2', 24), 7)


def gen_h0(A):
    St = Stream(A, 4, E('WDEPTH2', 24), 14)
    St.issued = 56
    St.known = 56 - St.depth
    St.items = [(n + 1, 4 * n + 4) for n in range(14) if 4 * n + 4 > St.known]
    vW, vW128, vXo, vW256 = 36, 12, 16, 20
    q4 = lambda b: [b, b + 1, b + 2, b + 3]
    for u in range(4):
        A('v_mov_b32 v%d, v%d', vW + u, 40 + u)
    rest_srds(A)

    def wq():
        wait_stage(A, 2)
        stamp(A)
        for i in range(7):
            rot_idx(A, sT, sC0, i, 7)
            A('s_mul_i32 s%d, s%d, %d', sT, sT, 64 * 2688)
            St.dma4(L_WP[2] + i * 4096, q4(vW), SW)
            St.done(('W', 2, i))
    lend = A.label('LEND')
    act = A.label('ACT')
    A('s_cmp_lt_u32 s%d, 28', sI)
    A('s_cbranch_scc1 %s', act)
    keep, n0 = St.save(), _st['n']
    wq()
    St.drain()
    St.restore(keep)
    St.n = 14
    if E('TOUCH', 1):
        def touch(srd_, base, per_xcd, n):
            A('s_mul_i32 s%d, s%d, %d', sT, sXCD, per_xcd)
            A('s_sub_u32 s%d, s%d, 28', sT2, sI)
            A('s_mul_i32 s%d, s%d, %d', sT2, sT2, n * 8192)
            A('s_add_u32 s%d, s%d, s%d', sT, sT, sT2)
            A('s_add_u32 s%d, s%d, %d', sT, sT, base)
            A('s_mov_b32 s%d, %d', sC, n)
            lo = A.label('T')
            A('%s:', lo)
            A('buffer_load_dword v%d, v%d, s[%d:%d], s%d offen', vW + 1, vW, srd_, srd_ + 3, sT)
            A('s_add_u32 s%d, s%d, 8192', sT, sT)
            A('s_waitcnt vmcnt(%d)', E('TDEPTH', 6))
            A('s_sub_u32 s%d, s%d, 1', sC, sC)
            A('s_cmp_lg_u32 s%d, 0', sC)
            A('s_cbranch_scc1 %s', lo)
        A('v_lshlrev_b32 v%d, 7, v%d', vW, vL)
        if E('W2M', 1) == 2:
            touch(SW2, 0, 4 * 7 * 8192, 7)
        if E('TEARLY', 0):
            wait_stage(A, 3, (5, 6), sleep=2)
        else:
            wait_stage(A, C0 + 5, sleep=2)
        stamp(A)
        if HLATE and not WTO:
            touch(SWS, WS_HB, 262144, 8)
        if E('W2M', 1) == 1:
            touch(SW2, 0, 4 * 7 * 8192, 7)
        stamp(A)
        if not WT1:
            touch(SWS, WS_H1B, 8 * 112 * 1024, 28)
        stamp(A)
        if E('W2WARM', 0):
            touch(SW2, 0, 0, 49)
        stamp(A)
        if E('WBL2', 0):
            tag_compute(A)
            skipw = A.label('NW')
            if E('WBL2', 0) == 1:
                A('s_cmp_lg_u32 s%d, 28', sI)
                A('s_cbranch_scc1 %s', skipw)
            A('s_lshl_b32 s%d, s%d, 2', sC, sXCD)
            A('s_add_u32 s%d, s%d, s%d', sC, sC, sI)
            A('s_sub_u32 s%d, s%d, 28', sC, sC)
            A('s_lshl_b32 s%d, s%d, 8', sC, sC)
            A('s_add_u32 s%d, s%d, %d', sC, sC, F4)
            poll_global(A, sC, (1 << 56) - 1)
            A('buffer_wbl2 sc1')
            A('s_waitcnt vmcnt(0)')
            A('%s:', skipw)
    _st['n'] = n0
    A('s_branch %s', lend)
    A('%s:', act)
    off128(A, vW128)
    off256(A, vW256)
    A('s_lshl_b32 s%d, s%d, 7', sB, sNB)

    sR1, sRO, sR2 = sG, sKH, sXB
    rot_calc(A, sR1, 'w1')
    rot_calc(A, sRO, 'wo')
    sBK, sBS = [8, 9], 10
    blk_init(A, sBK[0], sBS, 0)
    blk_init(A, sBK[1], sBS, 1)

    def w1_off(c):
        rot_idx(A, sT, sR1, c, 7)
        A('s_mul_i32 s%d, s%d, %d', sT, sT, 64 * 3584)
        A('s_lshl_b32 s%d, s%d, 8', sT2, sFB)
        A('s_add_u32 s%d, s%d, s%d', sT, sT, sT2)

    def w1_chunk(c):
        w1_off(c)
        for u in range(4):
            St.dma4(w1_slot(c) + u * 4096, q4(vW256), SW1, 16 * 3584 if u < 3 else None)
        St.done(('w1', c), 16)

    def w2_item(n):
        c, kh = n >> 1, n & 1
        A('s_mul_i32 s%d, s%d, %d', sT, sBK[kh], 128 * 896)
        A('s_add_u32 s%d, s%d, s%d', sT, sT, sB)
        if kh or (c & 1):
            A('s_add_u32 s%d, s%d, %d', sT, sT, (kh * 896 + (c & 1) * 64) * 896)
        if c & 1:
            blk_next(A, sBK[kh], sBS)
        for u in range(2):
            St.dma4(w2_slot(n) + u * 4096, q4(vW128), SW2, 32 * 896 if u < 1 else None)
        St.done(('w2', n), 8)

    SR = [24, 28] + list(range(40, 256, 4))

    def staged():
        for u in range(12):
            if u % 4 == 0:
                w1_off((0 if LATE else 4) + u // 4)
            reg4(St, SR[8 + 4 * u:12 + 4 * u], q4(vW256), SW1, 16 * 3584)
            if u == 5:
                St.depth = E('LDEPTH', 32)

    def wo():
        St.drain_to(3)
        wait_stage(A, 3)
        wait_word(A, 5, 1)
        stamp(A)
        for c in range(7):
            rot_idx(A, sC, sRO, c, 7)
            A('s_mul_i32 s%d, s%d, %d', sT, sC, 64 * 896)
            A('s_add_u32 s%d, s%d, s%d', sT, sT, sB)
            A('s_lshl_b32 s%d, s%d, 13', sC, sC)
            for u in range(2):
                St.dma4((sC, L_A + u * 4096), q4(vW128), SWO, 32 * 896 if u < 1 else None)
            if c == 2:
                St.depth = E('LDEPTH', 32)
        St.done('wo')
    def quiet():
        St.drain()
        if E('QLONG', 0):
            wait_stage(A, C0 + 5, sleep=1)
        else:
            wait_stage(A, 3, (5, 6), sleep=1)
    if E('ORDER', 1) == 0:
        wq(), wo(), staged()
    elif E('ORDER', 1) == 3:
        wq(), quiet(), wo(), staged()
    elif E('ORDER', 1) == 4:
        wq(), wo(), quiet(), staged()
    elif E('ORDER', 1) == 5:
        staged()
        St.depth = E('WDEPTH2', 24)
        wq(), wo(), quiet()
    else:
        if E('ORDER', 1) == 2:
            St.drain_to(2)
        staged()
        St.depth = E('WDEPTH2', 24)
        wq(), wo()
    stamp(A)
    wait_stage(A, 2, (5, 6))
    stamp(A)
    if LATE:
        n3 = St.n
        St.n += 3
        w1_chunk(3)
        St.items, it3 = St.items[:-1], St.items[-1]
        St.drain()
        St.wait_to(16)
        St.n = n3
        for c in range(3):
            spill(St, ('w1', c), SR[8 + 16 * c:24 + 16 * c], w1_slot(c))
        St.n += 1
        St.items = [it3]
        St.drain()
        stamp(A)
        wait_stage(A, C0 + 3)
        wait_word(A, 7, 9)
        wait_stage(A, 1, base=M_CP)
        if LATE == 1:
            wait_stage(A, 1, base=M_LD)
        elif LATE == 2:
            wait_stage(A, 3, (5, 6))
        St.depth = E('LATEDEPTH', 20)
        for c in (4, 5, 6):
            w1_chunk(c)
        St.drain()
    else:
        for c in range(4):
            w1_chunk(c)
        St.drain()
        St.wait_to(0)
        stamp(A)
        wait_stage(A, C0 + 3)
        wait_word(A, 7, 9)
        spill(St, ('w1', 4), SR[8:24], w1_slot(4))
        wait_stage(A, 1, base=M_CP)
        spill(St, ('w1', 5), SR[24:40], w1_slot(5))
        spill(St, ('w1', 6), SR[40:56], w1_slot(6))
    stamp(A)
    wait_stage(A, C0 + 8, sleep=2)
    wait_lp(A, ('h', E('W2AFTER', 2), E('W2AFTERQ', 1)), 1)
    stamp(A)
    St.depth = E('W2DEPTH', 24)
    for n in range(28):
        if n in W2GATE:
            wait_stage(A, C0 + W2GATE[n])
        if n == 4:
            wait_word(A, 5, 7)
        if n == 19:
            stamp(A)
            St.depth = E('W2DEPTH3', 32)
        if n >= 19:
            m = W2RE[n]
            wait_stage(A, C0 + 13 + (m >> 1), (0, 1) if (m & 1) == 0 else (2, 3))
        w2_item(n)
    St.drain()
    stamp(A)
    A('%s:', lend)
    A('s_waitcnt lgkmcnt(0)')
    stamp_flush(A)
    A('s_endpgm')


def gen_h1(A):
    stamp(A)
    rest_srds(A)
    wtr_base(A)
    tag_compute(A)
    def extras():
        if WARM:
            for srd_, size in ((SWO, D * D * 2), (SW1, D * F * 2), (SW2, D * F * 2)):
                A('s_mul_i32 s%d, s2, %d', sT, size // 256)
                A('v_lshlrev_b32 v%d, 7, v%d', vT1, vL)
                A('s_mov_b64 exec, 0x%x', (1 << ((size // 256 + 127) // 128)) - 1) if size // 256 < 4096 else None
                if size // 256 >= 4096:
                    A('s_mov_b32 exec_hi, 0x%x', (1 << ((size // 256 + 127) // 128 - 32)) - 1)
                A('buffer_load_dword v63, v%d, s[%d:%d], s%d offen', vT1, srd_, srd_ + 3, sT)
                A('s_mov_b64 exec, -1')
        if E('TOUCH', 1) and not WTO:
            A('s_lshl_b32 s%d, s%d, 18', sT, sXCD)
            A('s_lshl_b32 s%d, s%d, 13', sT2, sI)
            A('s_add_u32 s%d, s%d, s%d', sT, sT, sT2)
            A('v_lshlrev_b32 v%d, 7, v%d', vT1, vL)
            for base in ([WS_OB] if MAP == 0 else []) + ([] if HLATE else [WS_HB]):
                A('s_add_u32 s%d, s%d, %d', sT2, sT, base)
                A('buffer_load_dword v63, v%d, s[%d:%d], s%d offen', vT1, SWS, SWS + 3, sT2)

    if TOUCHAT == 0:
        extras()
    A('s_mov_b32 s%d, 1', sG)
    off256(A, 20)
    rot_calc(A, sXB, 'w1')
    cs, cs2 = A.label('CSL'), A.label('CSM')
    St = Stream(A, 7, E('W7DEPTH', 16), 9)

    def stage7():
        for u in range(4 * W7ST):
            if u % 4 == 0:
                rot_idx(A, sT, sXB, u // 4, 7)
                A('s_mul_i32 s%d, s%d, %d', sT, sT, 64 * 3584)
                A('s_lshl_b32 s%d, s%d, 8', sT2, sFB)
                A('s_add_u32 s%d, s%d, s%d', sT, sT, sT2)
            reg4(St, [64 + 16 * u + 4 * k for k in range(4)], [20, 21, 22, 23], SW1, 16 * 3584)
    A('%s:', cs)
    colsum(A, sG)
    A('s_add_u32 s%d, s%d, 7', sT, sG)
    sig_dyn(A, sT)
    A('s_add_u32 s%d, s%d, 1', sG, sG)
    A('s_cmp_eq_u32 s%d, 3', sG)
    A('s_cbranch_scc1 %s', cs2)
    A('s_cmp_ge_u32 s%d, 28', sI)
    A('s_cbranch_scc1 %s', cs)
    stage7()
    A('s_branch %s', cs)
    A('%s:', cs2)
    if TOUCHAT == 2:
        extras()
    stamp(A)
    lend = A.label('LEND')
    A('s_cmp_ge_u32 s%d, 28', sI)
    A('s_cbranch_scc1 %s', lend)
    if W7ST:
        A('s_waitcnt vmcnt(%d)', 1 if TOUCHAT == 2 and not WARM else 0)
        wait_stage(A, 2, (5, 6))
        for c in range(W7ST):
            spill(St, ('w1', c), [64 + 64 * c + 4 * k for k in range(16)], w1_slot(c))
        stamp(A)
    h_stream(A, 9 + W7ST)
    A('%s:', lend)
    A('s_waitcnt lgkmcnt(0)')
    stamp_flush(A)
    A('s_endpgm')


def gen_h23(A):
    vID, vAF, vVF, vAC, vG = 64, 72, 104, 136, 72
    rest_srds(A)
    sTL = sKH
    A('s_sub_u32 s%d, s%d, 5', sTL, sWV)
    skip = A.label('NOST')
    A('s_cmp_eq_u32 s%d, 1', sTL)
    A('s_cbranch_scc1 %s', skip)
    A('s_mul_i32 s%d, s%d, 1568', sT, sH)
    A('s_mov_b32 m0, %d', L_PHI)
    A('buffer_load_dwordx4 v%d, s[%d:%d], s%d offen lds', vO, SP, SP + 3, sT)
    A('buffer_load_dwordx4 v%d, s[%d:%d], s%d offen offset:1024 lds', vO, SP, SP + 3, sT)
    if CODEPF:
        A('s_mul_i32 s%d, s%d, %d', sT, sI, 1280)
        A('v_lshlrev_b32 v%d, 7, v%d', vT1, vL)
        A('v_add_u32 v%d, s%d, v%d', vT1, sT, vT1)
        A('s_mov_b64 exec, 0x3ff')
        A('global_load_dword v72, v%d, s[%d:%d]', vT1, sPC, sPC + 1)
        A('s_mov_b64 exec, -1')
    A('%s:', skip)
    if E('TLB', 0):
        A('v_lshlrev_b32 v%d, 20, v%d', vT1, vL)
        A('s_lshl_b32 s%d, s%d, 7', sT, sI)
        for srd_ in (SWS, SOUT, SWO, SW1, SW2):
            A('buffer_load_dword v73, v%d, s[%d:%d], s%d offen', vT1, srd_, srd_ + 3, sT)
    wtr_base(A)
    sel_frags(A, vID)
    sT16 = sZA
    tag_compute(A, sT16)
    if FAST:
        skip = A.label('NORG')
        A('s_cmp_eq_u32 s%d, 0', sTL)
        A('s_cbranch_scc1 %s', skip)
        A('s_getreg_b32 s%d, hwreg(HW_REG_XCC_ID)', sT2)
        A('s_and_b32 s%d, s%d, 15', sT2, sT2)
        A('s_add_u32 s%d, s%d, s%d', sT2, sT2, sTAG)
        A('v_mov_b32 v%d, s%d', vT0, sT2)
        A('s_lshl_b32 s%d, s%d, 7', sT, sXCD)
        A('s_lshl_b32 s%d, s%d, 2', sT2, sI)
        A('s_add_u32 s%d, s%d, s%d', sT, sT, sT2)
        A('s_add_u32 s%d, s%d, %d', sT, sT, FREG)
        A('s_mov_b64 exec, 1')
        A('buffer_store_dword v%d, v%d, s[%d:%d], s%d offen sc1', vT0, vO, SWS, SWS + 3, sT)
        A('s_mov_b64 exec, -1')
        A('%s:', skip)
    six, both = A.label('SIX'), A.label('BOTH')
    A('s_cmp_eq_u32 s%d, 1', sTL)
    A('s_cbranch_scc1 %s', six)
    colsum(A, sTL)
    A('s_waitcnt vmcnt(0)')
    A('s_branch %s', both)
    A('%s:', six)
    if FAST:
        wait_lp(A, ('x', 6), 2)
        fast_check(A)
        A('v_mov_b32 v%d, s%d', vT0, sFASTF)
        A('ds_write_b32 v%d, v%d offset:%d', vMI, vT0, M_FAST)
    A('%s:', both)
    set_stage(A, 1)
    stamp(A)
    A('s_lshl_b32 s%d, s%d, 11', sT2, sTL)
    A('v_add_u32 v%d, s%d, v%d', vTT, sT2, vO)
    A('v_add_u32 v%d, %d, v%d', vTT + 1, L_KVA, vTT)
    A('v_add_u32 v%d, %d, v%d', vTT + 2, L_KVV, vO)
    A('s_lshl_b32 s%d, s%d, 16', sXB, sH)
    A('s_add_u32 s%d, s%d, s%d', sXB, sXB, sT2)
    A('s_add_u32 s%d, s%d, %d', sXB, sXB, WS_KVP)
    A('s_lshl_b32 s%d, s%d, 12', sB, sTB)
    A('s_add_u32 s%d, s%d, s%d', sB, sB, sXB)
    A('s_lshl_b32 s%d, s%d, 1', sM0, sH)
    A('s_add_u32 s%d, s%d, s%d', sM0, sM0, sTL)
    FSH = E('F1SH', 8)
    A('s_lshl_b32 s%d, s%d, %d', sM0, sM0, 4 + FSH)
    A('s_add_u32 s%d, s%d, %d', sM0, sM0, F1)
    A('s_lshl_b32 s%d, s%d, 2', sFL, sTB)
    A('s_add_u32 s%d, s%d, s%d', sFL, sFL, sM0)
    A('s_lshl_b32 s%d, s%d, %d', sT, sTB, FSH)
    A('s_add_u32 s%d, s%d, s%d', sM0, sM0, sT)
    A('s_add_u32 s%d, s%d, s%d', sPC, SWS, sM0)
    A('s_addc_u32 s%d, s%d, 0', sPC + 1, SWS + 1)
    A('v_lshlrev_b32 v%d, %d, v%d', vXA, FSH, vL)
    A('v_lshlrev_b32 v%d, 2, v%d', vXA + 1, vL)
    vTA = 152
    wait_stage(A, C0)
    for k in range(8):
        A('ds_read_b128 %s, v%d offset:%d', v(vVF + 4 * k, 4), vTT + 1, (k >> 1) * 4096 + (k & 1) * 1024)
    for k in range(8):
        A('s_waitcnt lgkmcnt(%d)', 7 - k)
        mfma(A, vTA + 16 * (k >> 1), vVF + 4 * k, vID + 4 * (k & 1), (k & 1) == 0)
    for w in range(4):
        cvt8(A, vAF + 8 * w, vTA + 16 * w)

    def v_reads():
        for k in range(8):
            A('ds_read_b128 %s, v%d offset:%d', v(vVF + 4 * k, 4), vTT + 2, (k >> 1) * 4096 + (k & 1) * 1024)
        return 8
    wait_stage(A, C0 + 1, body=v_reads)
    stamp(A)
    for k in range(8):
        A('s_waitcnt lgkmcnt(%d)', 7 - k)
        mfma(A, vAC, vAF + 4 * k, vVF + 4 * k, k == 0)
    set_stage(A, 2)
    cvt8(A, vAF, vAC)
    TAGS = E('TAGS', 1)
    if TAGS:
        for q in range(2):
            A('v_and_b32 v%d, 0xffff, v%d', vAF + 4 * q + 3, vAF + 4 * q + 3)
            A('v_or_b32 v%d, s%d, v%d', vAF + 4 * q + 3, sT16, vAF + 4 * q + 3)
    pub_stores(A, [st4(vAF + 4 * q, sB, q * 1024) for q in range(2)], MAP == 3)
    if not TAGS:
        A('s_waitcnt vmcnt(0)')
    A('s_mov_b64 exec, 0xffff')
    two_ways(A, lambda B, bits: B('buffer_store_dword v%d, v%d, s[%d:%d], s%d offen%s', vTAG, vXA, SWS, SWS + 3, sFL,
                                  bits), MAP == 3)
    A('s_mov_b64 exec, -1')
    stamp(A)
    sRDY, sPND, sRET = sHI, sHI + 1, sPADL
    base = 68 if STAMPS else 72
    pol = A.label('POLL')
    B = sub(A)
    lo, out = B.label('P'), B.label('PD')
    B('%s:', pol)
    B('%s:', lo)
    if E('PSLEEP', 0):
        B('s_sleep %d', E('PSLEEP', 0))
    if E('SPOLL', 1) and MAP == 0:
        B('s_load_dwordx16 s[%d:%d], s[%d:%d], 0 glc', base, base + 15, sPC, sPC + 1)
        B('s_mov_b32 s%d, 0', sRDY)
        B('s_waitcnt lgkmcnt(%d)', E('PPIPE', 8))
        for p_ in range(15, -1, -1):
            B('s_cmp_eq_u32 s%d, s%d', base + p_, sTAG)
            B('s_addc_u32 s%d, s%d, s%d', sRDY, sRDY, sRDY)
    else:
        B('s_mov_b64 exec, 0xffff')
        B('buffer_load_dword v%d, v%d, s[%d:%d], s%d offen sc1', vT0, vXA + 1, SWS, SWS + 3, sM0)
        B('s_waitcnt vmcnt(0)')
        B('v_cmp_eq_u32 vcc, s%d, v%d', sTAG, vT0)
        B('s_mov_b64 exec, -1')
        B('s_mov_b32 s%d, vcc_lo', sRDY)
    B('s_sub_u32 s%d, s%d, 1', sSPIN, sSPIN)
    B('s_cselect_b32 s%d, -1, s%d', sRDY, sRDY)
    B('s_and_b32 s%d, s%d, s%d', sRDY, sRDY, sPND)
    B('s_cbranch_scc0 %s', lo)
    B('s_setpc_b64 s[%d:%d]', sRET, sRET + 1)
    over = A.label('OV')
    A('s_not_b32 s%d, s%d', base, sTAG)
    A('s_mov_b32 s%d, s%d', base + 1, base)
    for k in range(2, 16, 2):
        A('s_mov_b64 s[%d:%d], s[%d:%d]', base + k, base + k + 1, base, base + 1)
    A('s_branch %s', over)
    A.lines += B.lines
    A('%s:', over)
    A('s_mov_b32 s%d, 0', sRDY)
    A('s_mov_b32 s%d, 0xffff', sPND)
    vCK = vXA + 2
    A('v_mov_b32 v%d, 0', vCK)
    A('s_nop 1')
    vG = [72 + 4 * k for k in range(16)] + [152 + 4 * k for k in range(16)]
    GD = E('GLAG', 8)

    def gmm(k, issued):
        for q in range(2):
            A('s_waitcnt vmcnt(%d)', 2 * issued - (2 * k + q) - 1)
            mfma(A, vAC, vID + 4 * q, vG[2 * k + q], k == 0 and q == 0)
            if TAGS:
                A('v_xor_b32 v%d, s%d, v%d', vCK + 1, sT16, vG[2 * k + q] + 3)
                A('v_or_b32 v%d, v%d, v%d', vCK, vCK, vCK + 1)
    for k in range(16):
        A('s_getpc_b64 s[%d:%d]', sRET, sRET + 1)
        A('s_cmp_eq_u32 s%d, 0', sRDY)
        A('s_cbranch_scc1 %s', pol)
        A('s_ff1_i32_b32 s%d, s%d', sT, sRDY)
        A('s_bitset0_b32 s%d, s%d', sRDY, sT)
        A('s_bitset0_b32 s%d, s%d', sPND, sT)
        A('s_lshl_b32 s%d, s%d, 12', sT, sT)
        A('s_add_u32 s%d, s%d, s%d', sT, sT, sXB)
        if E('ABL', 0) & 32:
            A('s_mov_b32 s%d, s%d', sT, sB)
        for q in range(2):
            A('buffer_load_dwordx4 %s, v%d, s[%d:%d], s%d offen offset:%d sc1', v(vG[2 * k + q], 4), vO, SWS, SWS + 3,
              sT, q * 1024)
        if k == E('GST', 15):
            stamp(A)
        if k >= GD:
            gmm(k - GD, k + 1)
    for k in range(16 - GD, 16):
        gmm(k, 16)
    if TAGS:
        ok = A.label('TOK')
        A('v_cmp_lt_u32 vcc, 0xffff, v%d', vCK)
        spin_guard(A, ok)
        A('s_nop 15')
        A('s_cbranch_vccnz %s', over)
        A('%s:', ok)
    A('v_add_u32 v%d, %d, v%d', vTT, L_EX, vTT)
    cvt8(A, 72, vAC)
    for q in range(2):
        A('ds_write_b128 v%d, %s offset:%d', vTT, v(72 + 4 * q, 4), q * 1024)
    set_stage(A, 3)
    stamp(A)
    lend = A.label('LEND')
    A('s_cmp_ge_u32 s%d, 28', sI)
    A('s_cbranch_scc1 %s', lend)
    A('s_cmp_eq_u32 s%d, 1', sTL)
    A('s_cbranch_scc1 %s', lend)
    A('v_lshlrev_b32 v%d, 2, v%d', vCA, vL)
    A('v_add_u32 v%d, %d, v%d', vTT + 2, L_EX, vO)
    wait_stage(A, C0 + 7, sleep=2)
    HELP['hot'] = bool(E('STHOT', 0))
    for gi in range(4):
        wait_lp(A, ('hs', gi), 1)
        if E('STPRIO', 2) != 2:
            A('s_setprio %d', E('STPRIO', 2))
        base = L_SC0 + gi * 4096
        for q in range(7):
            A('ds_read2st64_b32 v[%d:%d], v%d offset0:%d offset1:%d', 72 + 2 * q, 73 + 2 * q, vCA,
              base // 256 + 2 * q, base // 256 + 2 * q + 1)
        A('s_waitcnt lgkmcnt(0)')
        for q in range(2, 14):
            A('v_add_f32 v%d, v%d, v%d', 72 + (q & 1), 72 + (q & 1), 72 + q)
        A('v_add_f32 v%d, v72, v73', vTT)
        ln_finish(A, vTT, vTT + 1, vNM, vRS)
        hilo_m(A, vNM, 88, vT0)
        A('v_mul_f32 v90, v%d, v%d', vTT + 1, vRS)
        A('v_mul_f32 v91, 0x%x, v%d', LOG2E ^ 0x80000000, vRS)
        A('ds_write_b128 v%d, v[88:91] offset:%d', vTT + 2, gi * 1024)
        set_stage(A, 4 + gi)
    HELP['hot'] = False
    A('%s:', lend)
    A('s_waitcnt lgkmcnt(0)')
    stamp_flush(A)
    A('s_endpgm')


def refresh_routines(A):
    for w in (7, 4):
        A('REFRESH_%d:', w)
        if w == 5:
            A('ds_read_b32 v%d, v%d', vPW, vCA)
        else:
            A('ds_read_b32 v%d, v%d offset:%d', vPW, vMI, M_PW + 4 * w)
        if E('CSLP', 0):
            A('s_mov_b32 vcc_hi, s%d', CACHE[w])
        A('s_waitcnt lgkmcnt(0)')
        A('v_readfirstlane_b32 s%d, v%d', CACHE[w], vPW)
        if E('CSLP', 0):
            A('s_cmp_lg_u32 vcc_hi, s%d', CACHE[w])
            A('s_cbranch_scc1 REFD_%d', w)
            A('s_sleep %d', E('CSLP', 0))
            A('REFD_%d:', w)
        A('s_sub_u32 s%d, s%d, 1', sSPIN, sSPIN)
        A('s_cselect_b32 s%d, -1, s%d', CACHE[w], CACHE[w])
        A('s_setpc_b64 s[%d:%d]', sPC, sPC + 1)


def gen_compute(A):
    vPH, vID, vWF, vAC, vPK = 40, 48, 56, 88, 120
    vMF, vCF = 136, 140
    vE = vWF
    vAC2 = vAC + 16
    vX = vXR
    A('s_setprio %d', E('CPRIO', 1))
    rest_srds(A)
    A('s_lshl_b32 s%d, s%d, 12', sM0, sWV)
    A('v_and_b32 v%d, 31, v%d', vT0, vL)
    A('v_lshlrev_b32 v%d, 7, v%d', vTT, vT0)
    A('v_add_u32 v%d, s%d, v%d', vTT, sM0, vTT)
    A('v_bfe_u32 v%d, v%d, 1, 3', vT0, vL)
    A('v_lshrrev_b32 v%d, 5, v%d', vT1, vL)
    A('v_xor_b32 v%d, v%d, v%d', vT0, vT0, vT1)
    for q in range(4):
        A('v_xor_b32 v%d, %d, v%d', vXA + q, 2 * q, vT0)
        A('v_lshl_add_u32 v%d, v%d, 4, v%d', vXA + q, vXA + q, vTT)
    wtr_base(A)
    for r in (vSM, vSM + 1, vSQ, vSQ + 1, vMF + 2, vMF + 3, vCF + 2, vCF + 3):
        A('v_mov_b32 v%d, 0', r)
    A('s_mov_b32 s%d, 0', sHI)
    A('s_mov_b32 s%d, -1', sHI + 1)
    A('s_bitcmp1_b32 s%d, 0', sH)
    A('s_cselect_b32 s%d, 0xf, 0xf0000000', sPADL)
    A('s_mov_b32 s%d, s%d', sPADL + 1, sPADL)
    A('s_cselect_b32 s%d, -1, 0', sZA)
    A('s_mov_b32 s%d, 0', sZA + 1)
    A('s_mov_b32 s%d, 0', sZB)
    A('s_cselect_b32 s%d, 0, -1', sZB + 1)
    A('s_cselect_b64 s[%d:%d], -1, 0', sODD, sODD + 1)
    vPA = vRA
    A('v_bfe_u32 v%d, v%d, 2, 2', vT0, vL)
    A('v_lshrrev_b32 v%d, 5, v%d', vT1, vL)
    A('v_lshl_add_u32 v%d, v%d, 2, v%d', vT0, vT1, vT0)
    A('v_mul_u32_u24 v%d, 56, v%d', vT0, vT0)
    A('v_and_b32 v%d, 3, v%d', vT1, vL)
    A('v_bfe_u32 v%d, v%d, 4, 1', vTT, vL)
    A('v_lshl_add_u32 v%d, v%d, 2, v%d', vT1, vTT, vT1)
    A('v_min_u32 v%d, 6, v%d', vT1, vT1)
    A('v_lshl_add_u32 v%d, v%d, 3, v%d', vT0, vT1, vT0)
    A('s_and_b32 s%d, s%d, 1', sT, sH)
    A('s_mul_i32 s%d, s%d, 224', sT, sT)
    A('s_sub_u32 s%d, %d, s%d', sT, L_PHI, sT)
    A('v_add_u32 v%d, s%d, v%d', vPA, sT, vT0)
    tag_compute(A)

    def mm1(B, acc, i, q, swap):
        buf = vWF + 16 * (i & 1)
        xf, wf = vX + (4 * i + q) * 4, buf + 4 * q
        if swap:
            mfma(B, acc, xf, wf, i == 0 and q == 0)
        else:
            mfma(B, acc, wf, xf, i == 0 and q == 0)

    def rw2(Q, pi, i, q):
        buf = vWF + 16 * (i & 1)
        for z in range(2):
            Q.op(('w', i, q), 'ds_read_b64_tr_b16 v[%d:%d], v%d offset:%d', buf + 4 * q + 2 * z, buf + 4 * q + 2 * z + 1,
                 vWA + pi, i * 4096 + q * 1024 + z * 256)

    vXH = vXD
    for q in range(4):
        A('v_add_u32 v%d, 0x10000, v%d', vXH + q, vXA + q)
    Q = LdsQ(A)
    for i in range(7):
        if i:
            stamp(A, 'k')
        if i == 0:
            A('s_waitcnt vmcnt(0)')
        else:
            wait_lp(A, ('x', i))
        stamp(A, 'k')
        for q in range(4):
            Q.op(('x', i), 'ds_read_b128 %s, v%d offset:%d', v(vX + (4 * i + q) * 4, 4), (vXA if i < 4 else vXH) + q,
                 (i & 3) * 16384)
        if i in (1, 3):
            Q.stage((i + 1) // 2)
        wait_lp(A, ('W', 0, i))
        for q in range(4):
            if i > 0:
                Q.wait(('w', i - 1, q))
                mm1(A, vAC, i - 1, q, False)
            rw2(Q, 0, i, q)
        if i < 6:
            Q.op('pk2', 'ds_read_b128 v[%d:%d], v%d offset:%d', vTT, vTT + 3, vMI, M_PW + 16)
        Q.wait(('x', i))
        for r in range(16):
            x = vX + 16 * i + r
            A('v_dot2c_f32_bf16 v%d, s%d, v%d', vSM + (r & 1), sONES, x)
            A('v_dot2c_f32_bf16 v%d, v%d, v%d', vSQ + (r & 1), x, x)
        if i < 6:
            Q.wait('pk2')
            A('v_readfirstlane_b32 s%d, v%d', sPROG, vTT)
            A('v_readfirstlane_b32 s%d, v%d', sPROG1, vTT + 3)
    Q.stage(3)
    B = sub(A)
    B('v_add_f32 v%d, v%d, v%d', vSM, vSM, vSM + 1)
    B('v_add_f32 v%d, v%d, v%d', vSQ, vSQ, vSQ + 1)
    B('v_permlane32_swap_b32 v%d, v%d', vSM, vSQ)
    B('v_add_f32 v%d, v%d, v%d', vT0, vSM, vSQ)
    ln_finish(B, vT0, vT1, vNM, vRS)
    hilo_m(B, vNM, vMF, vT0)
    B('v_mul_f32 v%d, 0x%x, v%d', vSC, LOG2E, vRS)
    M = sub(A)
    Q.A = M
    for q in range(4):
        Q.wait(('w', 6, q))
        mm1(M, vAC, 6, q, False)
    A.lines += merge(M.lines, [[l] for l in B.lines], 0, 4)

    def cf_phi_reads():
        A('ds_read_b64 v[%d:%d], v%d', vCF, vCF + 1, vCA)
        for sidx in range(2):
            for z in range(2):
                A('ds_read_b64_tr_b16 v[%d:%d], v%d offset:%d', vPH + 4 * sidx + 2 * z, vPH + 4 * sidx + 2 * z + 1,
                  vPA, (16 * sidx + 8 * z) * 56)
        return 5
    stamp(A, 'v')
    wait_word(A, 5, 1, body=cf_phi_reads)
    stamp(A)
    stamp(A, 'v')
    A('s_waitcnt lgkmcnt(4)')

    def project(mid=None):
        mfma(A, vAC, vCF, vMF)
        if mid:
            mid()
        cvt8(A, vPK, vAC)
        mfma(A, vAC, vPH, vPK, True)
        mfma(A, vAC, vPH + 4, vPK + 4)

    def mid_k():
        A('v_and_b32 v%d, 31, v%d', vT0, vL)
        A('s_lshl_b32 s%d, s%d, 7', sT, sWV)
        A('s_add_u32 s%d, s%d, %d', sT, sT, L_RSTD)
        A('v_lshl_add_u32 v%d, v%d, 2, s%d', vT0, vT0, sT)
        A('s_waitcnt lgkmcnt(0)')
        A('ds_write_b32 v%d, v%d', vT0, vRS)
        A('v_lshrrev_b32 v%d, 5, v%d', vRA, vL)
        A('v_lshl_add_u32 v%d, v%d, 4, s%d', vRA, vRA, sT)
        for r in (0, 1):
            A('v_cndmask_b32 v%d, v%d, 0, s[%d:%d]', vPH + r, vPH + r, sZA, sZA + 1)
            A('v_cndmask_b32 v%d, v%d, 0, s[%d:%d]', vPH + 6 + r, vPH + 6 + r, sZB, sZB + 1)

    def gemm_head(B, pi):
        Q = LdsQ(B)
        wait_lp(B, ('W', pi, 0))
        for q in range(4):
            rw2(Q, pi, 0, q)
        return Q

    def gemm_part(B, acc, pi, swap, last_stage=None, Q=None):
        if Q is None:
            Q = gemm_head(B, pi)
        for i in range(7):
            if i == 6 and last_stage:
                Q.stage(last_stage)
            if pi == 1 and i in (0, 2, 4, 6):
                stamp(B, 'v')
            for q in range(4):
                Q.wait(('w', i, q))
                if q == 0:
                    Q.take(4)
                mm1(B, acc, i, q, swap)
                if i < 6:
                    if q == 0:
                        wait_lp(B, ('W', pi, i + 1))
                        if i < 5:
                            Q.peek(4)
                    rw2(Q, pi, i + 1, q)

    vOW = vXD
    A('v_add_u32 v%d, s%d, v%d', vOW, sM0, vO)
    A('v_add_u32 v%d, %d, v%d', vOW, L_KVA, vOW)
    project(mid_k)
    stamp(A, 'v')
    B = sub(A)
    softmax_pm(B, vAC, vSC, vPK, vTT)
    A.lines += B.lines[:-30]
    Q = gemm_head(A, 1)
    A.lines += B.lines[-30:]
    for q, src in enumerate((vAC, vAC + 4, vPK, vPK + 4)):
        Q.op('pw', 'ds_write_b128 v%d, %s offset:%d', vOW, v(src, 4), q * 1024)
    Q.stage(C0)
    for q in range(4):
        Q.op('rs', 'ds_read_b128 %s, v%d offset:%d', v(vAC + 4 * q, 4), vRA, q * 32)
    stamp(A, 'v')
    gemm_part(A, vAC2, 1, True, None, Q)
    stamp(A, 'v')

    def cfv_reads():
        A('ds_read_b64 v[%d:%d], v%d offset:%d', vCF, vCF + 1, vCA, 512)
        return 1
    wait_word(A, 7, 8, body=cfv_reads)
    stamp(A, 'v')
    A('s_waitcnt lgkmcnt(0)')
    mfma(A, vAC2, vMF, vCF)
    A('v_mov_b32 v%d, 0x%x', vT1, ONES)
    for r in range(0, 16, 2):
        A('v_pk_mul_f32 v[%d:%d], v[%d:%d], v[%d:%d]', vAC2 + r, vAC2 + r + 1, vAC2 + r, vAC2 + r + 1, vAC + r,
          vAC + r + 1)
    cvt8(A, vPK, vAC2)
    for r in range(8):
        A('v_cndmask_b32 v%d, v%d, v%d, s[%d:%d]', vPK + r, vPK + r, vT1, sPADL, sPADL + 1)
    for q in range(2):
        A('ds_write_b128 v%d, %s offset:%d', vOW, v(vPK + 4 * q, 4), L_KVV - L_KVA + q * 1024)
    set_stage(A, C0 + 1)
    stamp(A)
    stamp(A, 'v')
    gemm_part(A, vAC, 2, False, C0 + 3)
    vHP, vRX, vRO = 120, 48, vSM + 1

    def unpack_hp(src=120):
        for r in range(8):
            A('v_lshlrev_b32 v%d, 16, v%d', vAC + 2 * r, src + r)
            A('v_and_b32 v%d, 0xffff0000, v%d', vAC + 2 * r + 1, src + r)
    A('s_and_b32 s%d, s%d, 1', sG, sWV)
    A('s_lshr_b32 s%d, s%d, 1', sKH, sWV)
    A('s_lshl_b32 s%d, s%d, 1', sT, sTQ)
    A('s_add_u32 s%d, s%d, s%d', sG, sG, sT)
    A('v_and_b32 v%d, 31, v%d', vRO, vL)
    A('v_mul_u32_u24 v%d, 896, v%d', vRO, vRO)
    A('v_lshrrev_b32 v%d, 5, v%d', vT1, vL)
    A('v_lshl_add_u32 v%d, v%d, 4, v%d', vRO, vT1, vRO)
    A('s_mul_i32 s%d, s%d, %d', sT, sG, 32 * 896)
    A('s_lshl_b32 s%d, s%d, 7', sT2, sNB)
    A('s_add_u32 s%d, s%d, s%d', sT, sT, sT2)
    A('s_lshl_b32 s%d, s%d, 6', sT2, sKH)
    A('s_add_u32 s%d, s%d, s%d', sT, sT, sT2)
    A('v_add_u32 v%d, s%d, v%d', vRO, sT, vRO)
    for q in range(2):
        A('buffer_load_dwordx4 %s, v%d, s[%d:%d], 0 offen offset:%d', v(vRX + 4 * q, 4), vRO, SX, SX + 3, q * 32)

    def cfq_reads():
        A('ds_read_b64 v[%d:%d], v%d offset:%d', vCF, vCF + 1, vCA, 2 * 512)
        return 1
    wait_word(A, 7, 9, body=cfq_reads)
    A('s_waitcnt lgkmcnt(0)')
    project()
    softmax_pm(A, vAC, vSC, vPK, vTT)
    vQF = [vAC, vAC + 4, vPK, vPK + 4]
    stamp(A)
    vW1A = vXA
    A('v_bfe_u32 v%d, v%d, 2, 2', vT0, vL)
    A('v_lshrrev_b32 v%d, 5, v%d', vT1, vL)
    A('v_lshl_add_u32 v%d, v%d, 2, v%d', vT1, vT1, vT0)
    A('v_lshlrev_b32 v%d, 8, v%d', vW1A, vT1)
    A('v_lshlrev_b32 v%d, 7, v%d', vWA, vT1)
    A('v_xor_b32 v%d, s%d, v%d', vT0, sWV, vT0)
    A('v_lshl_add_u32 v%d, v%d, 6, v%d', vW1A, vT0, vW1A)
    A('v_bfe_u32 v%d, v%d, 4, 1', vT1, vL)
    A('v_lshlrev_b32 v%d, 5, v%d', vT1, vT1)
    A('v_and_b32 v%d, 3, v%d', vT0, vL)
    A('v_lshl_add_u32 v%d, v%d, 3, v%d', vT1, vT0, vT1)
    A('v_add_u32 v%d, v%d, v%d', vW1A, vW1A, vT1)
    A('v_add_u32 v%d, 0x8000, v%d', vW1A + 1, vW1A)
    A('v_add_u32 v%d, v%d, v%d', vWA, vWA, vT1)
    A('v_bfe_u32 v%d, v%d, 3, 1', vT1, vL)
    A('v_lshl_add_u32 v%d, v%d, 6, v%d', vWA, vT1, vWA)

    def w1_copy(c):
        wait_lp(A, ('w1', c))
        for q in range(4):
            for z in range(2):
                off = w1_slot(c) + (16 * q + 8 * z) * 256
                base = vW1A
                if off >= 0x8000:
                    off -= 0x8000
                    base += 1
                r = vXR + (4 * c + q) * 4 + 2 * z
                A('ds_read_b64_tr_b16 v[%d:%d], v%d offset:%d', r, r + 1, base, off)

    sCPD = sXB
    A('s_mov_b32 s%d, 0', sCPD)

    def try_copy(block):
        skip = A.label('NC')
        A('s_cmp_lg_u32 s%d, 0', sCPD)
        A('s_cbranch_scc1 %s', skip)
        if not block:
            ow = LP[('w1', 1)][0]
            if block is not None:
                A('ds_read_b32 v%d, v%d offset:%d', vPW + ow - 4, vMI, M_PW + 4 * ow)
                A('s_waitcnt lgkmcnt(0)')
            A('v_readfirstlane_b32 s%d, v%d', CACHE[ow], vPW + ow - 4)
            A('s_cmp_lt_u32 s%d, %d', CACHE[ow], LP[('w1', 1)][1])
            A('s_cbranch_scc1 %s', skip)
        w1_copy(0)
        w1_copy(1)
        A('s_mov_b32 s%d, 1', sCPD)
        A('v_mov_b32 v%d, 1', vT0)
        A('ds_write_b32 v%d, v%d offset:%d', vMY, vT0, M_CP)
        A('%s:', skip)
    vCS = vSQ
    NE = 4 if LATE else 5

    def try_copy2(block):
        skip = A.label('NC')
        A('s_cmp_lg_u32 s%d, 1', sCPD)
        A('s_cbranch_scc1 %s', skip)
        if not block:
            A('ds_read_b32 v%d, v%d offset:%d', vPW, vMI, M_PW + 16)
            A('s_waitcnt lgkmcnt(0)')
            A('v_readfirstlane_b32 s%d, v%d', sPROG, vPW)
            A('s_cmp_lt_u32 s%d, %d', sPROG, LP[('w1', NE - 1)][1])
            A('s_cbranch_scc1 %s', skip)
        for c in range(2, NE):
            w1_copy(c)
        A('s_mov_b32 s%d, 2', sCPD)
        A('v_mov_b32 v%d, 0', vCS)
        A('v_mov_b32 v%d, 0', vCS + 1)
        for r in range(16 * NE):
            if r == 0:
                A('s_waitcnt lgkmcnt(15)')
            if r == 32:
                A('s_waitcnt lgkmcnt(0)')
            A('v_dot2c_f32_bf16 v%d, s%d, v%d', vCS + (r & 1), sONES, vXR + r)
        A('%s:', skip)
    A('s_lshl_b32 s%d, s%d, 2', sFL, sTB)
    A('s_add_u32 s%d, s%d, s%d', sFL, sFL, sWV)
    A('s_lshl_b32 s%d, s%d, 4', sFL, sFL)
    A('s_add_u32 s%d, s%d, s%d', sFL, sFL, sH)
    A('s_lshl_b32 s%d, s%d, 11', sB, sFL)
    A('s_add_u32 s%d, s%d, %d', sB, sB, WS_OB)
    if MAP == 0:
        A('s_lshl_b32 s%d, s%d, 2', sFL, sFL)
        A('s_add_u32 s%d, s%d, %d', sFL, sFL, F2)
    else:
        A('s_lshr_b32 s%d, s%d, 3', sFL, sFL)
        A('s_lshl_b32 s%d, s%d, 10', sFL, sFL)
        A('s_and_b32 s%d, s%d, 7', sT, sH)
        A('s_lshl_b32 s%d, s%d, 2', sT, sT)
        A('s_add_u32 s%d, s%d, s%d', sFL, sFL, sT)
        A('s_add_u32 s%d, s%d, %d', sFL, sFL, F2X)
    vEX = vXD + 1
    A('v_add_u32 v%d, %d, v%d', vEX, L_EX, vO)

    def ex_reads():
        for q in range(4):
            A('ds_read_b128 %s, v%d offset:%d', v(vWF + 4 * q, 4), vEX, q * 1024)
        return 4
    lo, done = A.label('W'), A.label('WD')
    A('%s:', lo)
    A('ds_read_b128 v[%d:%d], v%d offset:%d', vPW, vPW + 3, vMI, M_PW + 16)
    A('ds_read_b32 v%d, v%d offset:%d', vPK_, vMI, M_FAST)
    ex_reads()
    A('s_waitcnt lgkmcnt(4)')
    A('v_readfirstlane_b32 s%d, v%d', sFASTF, vPK_)
    A('v_min_u32 v%d, v%d, v%d', vPW + 1, vPW + 1, vPW + 2)
    A('v_readfirstlane_b32 s%d, v%d', sT, vPW + 1)
    spin_guard(A, done)
    A('s_cmp_ge_u32 s%d, 3', sT)
    A('s_cbranch_scc1 %s', done)
    try_copy(None)
    if E('CSLP', 0):
        A('s_sleep %d', E('CSLP', 0))
    A('s_branch %s', lo)
    A('%s:', done)
    stamp(A)
    for q in range(4):
        A('s_waitcnt lgkmcnt(%d)', 3 - q)
        mfma(A, vAC2, vWF + 4 * q, vQF[q], q == 0)
    A('v_cndmask_b32 v%d, v%d, v%d, s[%d:%d]', vT0, vAC2 + 12, vAC2, sODD, sODD + 1)
    A('v_mov_b32 v%d, v%d', vT1, vT0)
    A('v_permlane32_swap_b32 v%d, v%d', vT0, vT1)
    A('v_cndmask_b32 v%d, v%d, v%d, s[%d:%d]', vTT, vT1, vT0, sODD, sODD + 1)
    A('v_add_f32 v%d, 0x%x, v%d', vTT, 0x358637bd, vTT)
    A('v_rcp_f32 v%d, v%d', vTT, vTT)
    for r in range(0, 16, 2):
        A('v_pk_mul_f32 v[%d:%d], v[%d:%d], v[%d:%d] op_sel_hi:[1,0]', vAC2 + r, vAC2 + r + 1, vAC2 + r, vAC2 + r + 1,
          vTT, vTT + 1)
    cvt8(A, vPK, vAC2)
    for r in (0, 1):
        A('v_cndmask_b32 v%d, v%d, 0, s[%d:%d]', vPK + r, vPK + r, sZA, sZA + 1)
        A('v_cndmask_b32 v%d, v%d, 0, s[%d:%d]', vPK + 6 + r, vPK + 6 + r, sZB, sZB + 1)
    pub_stores(A, [st4(vPK + 4 * q, sB, q * 1024) for q in range(2)], MAP == 0 and not WTO)
    A('s_waitcnt vmcnt(2)')
    for q in range(2):
        A('v_permlane32_swap_b32 v%d, v%d', vRX + 4 * q, vRX + 4 * q + 2)
        A('v_permlane32_swap_b32 v%d, v%d', vRX + 4 * q + 1, vRX + 4 * q + 3)
    unpack_hp(vRX)
    A('s_lshl_b32 s%d, s%d, 6', sT, sKH)
    A('v_xor_b32 v%d, s%d, v%d', vWA, sT, vWA)
    A('v_xor_b32 v%d, 64, v%d', vWA + 1, vWA)
    A('s_mul_i32 s%d, s%d, %d', sT, sKH, 224 * 128)
    A('s_add_u32 s%d, s%d, %d', sT, sT, L_A)
    A('v_add_u32 v%d, s%d, v%d', vWA + 2, sT, vWA)
    A('v_add_u32 v%d, s%d, v%d', vWA + 3, sT, vWA + 1)
    vSW, vSR, vPP = vXA + 2, vXA + 3, vSM
    A('s_and_b32 s%d, s%d, 1', sC, sWV)
    A('s_lshl_b32 s%d, s%d, 12', sC, sC)
    A('v_add_u32 v%d, s%d, v%d', vSW, sC, vO)
    A('s_cmp_eq_u32 s%d, 0', sKH)
    A('s_cselect_b32 s%d, %d, %d', sT, L_SC0 >> 12, L_SC1 >> 12)
    A('s_cselect_b32 s%d, %d, %d', sT2, L_SC1 >> 12, L_SC0 >> 12)
    A('s_lshl_b32 s%d, s%d, 12', sT, sT)
    A('s_lshl_b32 s%d, s%d, 12', sT2, sT2)
    A('v_add_u32 v%d, s%d, v%d', vSR, sT2, vSW)
    A('v_add_u32 v%d, s%d, v%d', vSW, sT, vSW)
    A('v_xor_b32 v%d, 8, v%d', vPP, vMY)
    A('s_lshl_b32 s%d, s%d, 15', sB, sG)
    A('s_lshl_b32 s%d, s%d, 14', sT, sKH)
    A('s_add_u32 s%d, s%d, s%d', sB, sB, sT)
    A('s_add_u32 s%d, s%d, %d', sB, sB, WS_OB)
    if MAP == 0:
        A('s_lshl_b32 s%d, s%d, 6', sC, sG)
        A('s_lshl_b32 s%d, s%d, 5', sT, sKH)
        A('s_add_u32 s%d, s%d, s%d', sC, sC, sT)
        A('s_add_u32 s%d, s%d, %d', sC, sC, F2)
        pub_flag(A, sFL, True)
    else:
        A('s_lshl_b32 s%d, s%d, 11', sC, sG)
        A('s_lshl_b32 s%d, s%d, 10', sT, sKH)
        A('s_add_u32 s%d, s%d, s%d', sC, sC, sT)
        A('s_lshl_b32 s%d, s%d, 7', sT, sNB)
        A('s_add_u32 s%d, s%d, s%d', sC, sC, sT)
        A('s_add_u32 s%d, s%d, %d', sC, sC, F2X)
        A('v_lshlrev_b32 v%d, 7, v%d', vT1, vL)
        if not E('NODRAIN2', 0):
            A('s_waitcnt vmcnt(0)')
        A('s_mov_b64 exec, 0x7f')
        A('buffer_store_dword v%d, v%d, s[%d:%d], s%d offen sc1', vTAG, vT1, SWS, SWS + 3, sFL)
        A('s_mov_b64 exec, -1')
    set_stage(A, C0 + 5)
    stamp(A)
    fin = A.label('FIN')
    A('s_cmp_ge_u32 s%d, 28', sI)
    A('s_cbranch_scc1 %s', fin)

    vB2 = [40 + 4 * k for k in range(8)] + [224 + 4 * k for k in range(8)]
    vWF2 = 72
    sB3, sFL3 = sODD, sODD + 1
    sBL, sFL2, sPF, sBK, sBS, sHB, sEM = 4, 5, 6, 7, 8, 9, 10
    A('s_mul_i32 s%d, s%d, %d', sB3, sTB3, 4 * 112)
    A('s_lshl_b32 s%d, s%d, 3', sT, sFB)
    A('s_add_u32 s%d, s%d, s%d', sB3, sB3, sT)
    A('s_lshl_b32 s%d, s%d, 1', sT, sWV)
    A('s_add_u32 s%d, s%d, s%d', sB3, sB3, sT)
    A('s_lshl_b32 s%d, s%d, 10', sB3, sB3)
    A('s_add_u32 s%d, s%d, %d', sB3, sB3, WS_H1B)
    A('s_add_u32 s%d, s%d, %d', sBL, sB3, 2 * 112 * 1024)
    A('s_lshl_b32 s%d, s%d, 9', sFL3, sTB3)
    A('s_lshl_b32 s%d, s%d, 4', sT, sFB)
    A('s_add_u32 s%d, s%d, s%d', sFL3, sFL3, sT)
    A('s_lshl_b32 s%d, s%d, 2', sT, sWV)
    A('s_add_u32 s%d, s%d, s%d', sFL3, sFL3, sT)
    A('s_add_u32 s%d, s%d, %d', sFL3, sFL3, F4)
    A('s_add_u32 s%d, s%d, 256', sFL2, sFL3)
    A('s_bitcmp1_b32 s%d, 0', sFB)
    A('s_cselect_b32 s%d, s%d, s%d', sT, sBL, sB3)
    A('s_cselect_b32 s%d, s%d, s%d', sBL, sB3, sBL)
    A('s_mov_b32 s%d, s%d', sB3, sT)
    A('s_cselect_b32 s%d, s%d, s%d', sT, sFL2, sFL3)
    A('s_cselect_b32 s%d, s%d, s%d', sFL2, sFL3, sFL2)
    A('s_mov_b32 s%d, s%d', sFL3, sT)
    A('s_lshl_b32 s%d, s%d, 8', sPF, sTQ)
    A('s_mul_i32 s%d, s%d, 112', sT, sKH)
    A('s_add_u32 s%d, s%d, s%d', sPF, sPF, sT)
    A('s_add_u32 s%d, s%d, %d', sPF, sPF, F4)
    A('s_mul_i32 s%d, s%d, %d', sHB, sG, 112 * 1024)
    A('s_mul_i32 s%d, s%d, %d', sT, sKH, 56 * 1024)
    A('s_add_u32 s%d, s%d, s%d', sHB, sHB, sT)
    A('s_add_u32 s%d, s%d, %d', sHB, sHB, WS_H1B + (0x40000000 if E('ABL', 0) & 64 else 0))
    blk_init(A, sBK, sBS, 's%d' % sKH)
    A('s_bitcmp1_b32 s%d, 0', sBK)
    A('s_mov_b32 s%d, 0x0f0f0f0f', sEM)
    A('s_cselect_b32 s%d, 0x00f0f0f0, s%d', sEM, sEM)
    vL4, vPF = vNM, vRS
    A('s_mov_b32 s%d, 0', CACHE[5])
    A('s_lshl_b32 s%d, s%d, 2', sT, sKH)
    A('s_add_u32 s%d, s%d, %d', sT, sT, L_MISC + M_PW + 20)
    A('v_mov_b32 v%d, s%d', vCA, sT)
    A('v_lshlrev_b32 v%d, 2, v%d', vL4, vL)

    try_copy(False)
    if E('CP2', 1):
        try_copy2(False)
    wait_lp(A, 'wo')

    def wo_row(k):
        hh = k // 2
        return 28 * hh - 4 * (hh & 1) + 16 * (k & 1)

    Q = LdsQ(A)
    LAG = E('P2LAG', 5)

    def read_wo(k, nt):
        buf = vWF2 + 8 * nt + 4 * (k & 1)
        for z in range(2):
            Q.op(('w', k, nt), 'ds_read_b64_tr_b16 v[%d:%d], v%d offset:%d', buf + 2 * z, buf + 2 * z + 1,
                 vWA + 2 + nt, (wo_row(k) + 8 * z) * 128)

    read_wo(0, 1)
    read_wo(0, 0)
    if MAP == 3 and E('SPOLL', 1):
        poll_scalar(A, sC, 8)
    else:
        poll_global(A, sC, 8)
    stamp(A)
    stamp(A, 'p2')
    sOB = sM0
    A('s_mov_b32 s%d, s%d', sOB, sB)

    def ld_o(k):
        A('buffer_load_dwordx4 %s, v%d, s[%d:%d], s%d offen offset:%d sc1', v(vB2[k], 4), vO, SWS, SWS + 3, sOB,
          (k & 3) * 1024)
        if (k & 3) == 3:
            A('s_add_u32 s%d, s%d, 4096', sOB, sOB)
    P2I = E('P2INFL', 8)
    for k in range(P2I):
        ld_o(k)
    A('s_lshl_b32 s%d, s%d, 1', sT2, sNB)
    A('s_add_u32 s%d, s%d, s%d', sT2, sT2, sKH)
    A('s_lshl_b32 s%d, s%d, 15', sB, sG)
    A('s_add_u32 s%d, s%d, %d', sB, sB, WS_HB)
    A('s_lshl_b32 s%d, s%d, 8', sC, sT2)
    A('s_add_u32 s%d, s%d, s%d', sC, sC, sB)
    A('s_lshl_b32 s%d, s%d, 11', sT, sT2)
    A('s_add_u32 s%d, s%d, s%d', sB, sB, sT)
    A('s_add_u32 s%d, s%d, 4096', sB, sB)
    A('s_lshl_b32 s%d, s%d, 2', sFL, sT2)
    A('s_lshl_b32 s%d, s%d, 6', sT, sG)
    A('s_add_u32 s%d, s%d, s%d', sFL, sFL, sT)
    A('s_add_u32 s%d, s%d, %d', sFL, sFL, F3)
    for k in range(16 + LAG):
        if k < 16:
            if k < 15:
                read_wo(k + 1, 1)
            Q.wait(('w', k, 1), min(15, P2I + k - 1) - k)
            if k % 4 == 0:
                stamp(A, 'p2')
            mfma(A, vAC + 16, vWF2 + 8 + 4 * (k & 1), vB2[k], k == 0)
            if P2I + k < 16:
                ld_o(P2I + k)
            if P2I + k == E('LDSIG', 12):
                A('v_mov_b32 v%d, 1', vT0)
                Q.op('ld', 'ds_write_b32 v%d, v%d offset:%d', vMY, vT0, M_LD)
        j = k - LAG
        if j >= 0:
            if j < 15:
                read_wo(j + 1, 0)
            Q.wait(('w', j, 0))
            mfma(A, vAC, vWF2 + 4 * (j & 1), vB2[j])
        if k == 16 and LAG >= 2:
            for q in range(4):
                Q.op('x', 'ds_write_b128 v%d, %s offset:%d', vSW, v(vAC + 16 + 4 * q, 4), q * 1024)
            Q.stage(C0 + 6)
    stamp(A)

    def exchange(st, sent=False):
        if not sent:
            for q in range(4):
                A('ds_write_b128 v%d, %s offset:%d', vSW, v(vAC + 16 + 4 * q, 4), q * 1024)
            set_stage(A, st)
        lo, done = A.label('W'), A.label('WD')
        A('%s:', lo)
        A('ds_read_b32 v%d, v%d', vPW, vPP)
        for q in range(4):
            A('ds_read_b128 %s, v%d offset:%d', v(vWF2 + 4 * q, 4), vSR, q * 1024)
        A('s_waitcnt lgkmcnt(4)')
        A('v_readfirstlane_b32 s%d, v%d', sT, vPW)
        spin_guard(A, done)
        A('s_cmp_ge_u32 s%d, %d', sT, st)
        A('s_cbranch_scc0 %s', lo)
        A('%s:', done)
        for q in range(4):
            A('s_waitcnt lgkmcnt(%d)', 3 - q)
            for r in (0, 2):
                a0 = vAC + 4 * q + r
                A('v_pk_add_f32 v[%d:%d], v[%d:%d], v[%d:%d]', a0, a0 + 1, a0, a0 + 1, vWF2 + 4 * q + r,
                  vWF2 + 4 * q + r + 1)

    stamp(A, 'p2')
    exchange(C0 + 6, LAG >= 2)
    stamp(A, 'p2')
    set_stage(A, C0 + 7)
    cvt8(A, vHP, vAC)
    pub_stores(A, [st4(vHP + 4 * q, sB, q * 1024) for q in range(2)], not WTO)
    A('v_mov_b32 v%d, 0', vTT)
    A('v_mov_b32 v%d, 0', vTT + 1)
    for r in range(8):
        A('v_dot2c_f32_bf16 v%d, s%d, v%d', vTT, sONES, vHP + r)
        A('v_dot2c_f32_bf16 v%d, v%d, v%d', vTT + 1, vHP + r, vHP + r)
    A('v_lshlrev_b32 v%d, 2, v%d', vTT + 2, vL)
    A('v_permlane32_swap_b32 v%d, v%d', vTT, vTT + 1)
    A('v_add_f32 v%d, v%d, v%d', vTT, vTT, vTT + 1)
    pub_stores(A, ['buffer_store_dword v%d, v%d, s[%d:%d], s%d offen%%s' % (vTT, vTT + 2, SWS, SWS + 3, sC)], not WTO)
    stamp(A, 'p2')
    try_copy(True)
    if not LATE:
        for c in (5, 6):
            w1_copy(c)
    stamp(A, 'p2')
    pub_flag(A, sFL, True)
    stamp(A, 'p2')
    try_copy2(True)
    stamp(A)
    if LATE:
        for c in (4, 5, 6):
            w1_copy(c)
    set_stage(A, C0 + 8)
    A('s_waitcnt lgkmcnt(0)')
    for r in range(16 * NE, 112):
        A('v_dot2c_f32_bf16 v%d, s%d, v%d', vCS + (r & 1), sONES, vXR + r)
    A('v_add_f32 v%d, v%d, v%d', vCS, vCS, vCS + 1)
    hilo_c(A, vCS, vCF, vT0)
    vBR = 40
    vE3 = 72
    vMF2, vSD = 128, 132
    A('s_mov_b32 s%d, s%d', sB, sB3)
    A('s_mov_b32 s%d, s%d', sFL, sFL3)

    def p3_epilogue(gi, packed=False):
        B = sub(A)
        acc = vAC + 16 * (gi & 1)
        e = vE3
        sd, c1 = vSD, vSD + 1
        if packed:
            pk = lambda r: 'v[%d:%d]' % (r, r + 1)
            for r in range(0, 16, 2):
                B('v_pk_mul_f32 %s, %s, %s op_sel:[0,1] op_sel_hi:[1,1]', pk(e + r), pk(acc + r), pk(sd))
            for r in range(16):
                B('v_exp_f32 v%d, v%d', e + r, e + r)
            for r in range(0, 16, 2):
                B('v_pk_fma_f32 %s, %s, %s, %s op_sel_hi:[1,0,0]', pk(e + r), pk(e + r), pk(sd), pk(sd))
            for r in range(16):
                B('v_rcp_f32 v%d, v%d', e + r, e + r)
            for r in range(0, 16, 2):
                B('v_pk_mul_f32 %s, %s, %s', pk(e + r), pk(e + r), pk(acc + r))
            cvt8(B, acc, e)
        else:
            silu8(B, acc, e, sd, c1, acc)
            silu8(B, acc + 8, e + 8, sd, c1, acc + 4)
        blocks = [[l] for l in B.lines]
        if E('ABL', 0) & 256 and not packed:
            blocks = blocks[-4:]
        B = sub(A)
        so = sB if gi < 2 else sBL
        pub_stores(B, [st4(acc + 4 * q, so, q * 1024) for q in range(2)], not WT1)
        if gi % 2 == 0:
            B('s_add_u32 s%d, s%d, %d', so, so, 112 * 1024)
        blocks.append(B.lines)
        return blocks

    def flag_load(B):
        B('s_mov_b64 exec, 0xfffffff')
        B('buffer_load_dword v%d, v%d, s[%d:%d], s%d offen sc1', vPF, vL4, SWS, SWS + 3, sPF)
        B('s_mov_b64 exec, -1')

    def flag_check(mask):
        def slow(B, back):
            lo = B.label('P')
            B('%s:', lo)
            flag_load(B)
            B('s_waitcnt vmcnt(0)')
            B('v_cmp_ne_u32 vcc, s%d, v%d', sTAG, vPF)
            spin_guard(B, back)
            B('s_and_b32 s%d, vcc_lo, %s', sT, mask)
            B('s_cbranch_scc1 %s', lo)
        ent, back = cold_block(A, slow)
        A('v_cmp_ne_u32 vcc, s%d, v%d', sTAG, vPF)
        A('s_and_b32 s%d, vcc_lo, %s', sT, mask)
        A('s_cbranch_scc1 %s', ent)
        A('%s:', back)

    PRE = E('P3PRE', 6)
    vHB = vXD + 2
    A('v_add_u32 v%d, %d, v%d', vHB, L_A, vO)
    A('v_add_u32 v%d, %d, v%d', vHB + 1, 65536, vO)
    Q = LdsQ(A)

    def chk(n):
        gi, k = divmod(n, 28)
        if gi == 0 and E('P3RAMP', 0):
            return k // 4 if k % 4 == 0 else None
        if gi == 0:
            return {0: 1, 8: 3, 16: 5, 24: 6}.get(k)
        return {0: 1, 8: 3, 16: 6}.get(k)

    def rd(n):
        gi, k = divmod(n, 28)
        if n + 1 < 112 and chk(n + 1) is not None:
            Q.take(7)
        if chk(n) is not None:
            wait_lp(Q.A, ('h', gi, chk(n)))
        Q.op(('b', n), 'ds_read_b128 %s, v%d offset:%d', v(vBR + 4 * (n % 8), 4), (vHB, vHB, vO, vHB + 1)[gi],
             (28672 if gi == 1 else 0) + k * 1024)
        if k == 27:
            Q.stage(C0 + 9 + gi)
        ramp = E('P3RAMP', 0) and n < 20
        nn = n + (4 if ramp else E('P3PK', PRE + 2))
        if nn < 112 and chk(nn) is not None and not Q.peeked and (ramp or nn >= 28 or not E('P3RAMP', 0)):
            Q.peek(7)

    stamp(A, 'p2')
    nrd = [0]

    def rd_upto(n):
        while nrd[0] <= min(n, 111):
            rd(nrd[0])
            nrd[0] += 1
    rd_upto(2)
    for gi in range(4):
        acc = vAC + 16 * (gi & 1)
        M = sub(A)
        Q.A = M
        for k in range(28):
            n = 28 * gi + k
            rd_upto(n + (PRE if not E('P3RAMP', 0) else 3 if n < 22 else min(PRE, 3 + (n - 21))))
            if k == 16:
                Q.op('s6', 'ds_read_b128 v[%d:%d], v%d offset:%d', vTT, vTT + 3, vMI, M_PW + 16)
                Q.op('sf', 'ds_read_b128 %s, v%d offset:%d', v(vMF2, 4), vEX, gi * 1024)
            if k == 24:
                Q.wait('sf')
                M('v_readfirstlane_b32 s%d, v%d', sPROG, vTT)
                M('v_readfirstlane_b32 s%d, v%d', sC, vTT + 1)

                def st_slow(B, back):
                    def st_read():
                        B('ds_read_b128 %s, v%d offset:%d', v(vMF2, 4), vEX, gi * 1024)
                        return 0
                    wait_word(B, 5, LP[('st', gi)][1], body=st_read)
                ent, back = cold_block(M, st_slow)
            if k == 25:
                M('s_cmp_ge_u32 s%d, %d', sC, LP[('st', gi)][1])
                M('s_cbranch_scc0 %s', ent)
                M('%s:', back)
                M('v_mov_b32 v%d, v%d', vMF, vMF2)
                M('v_mov_b32 v%d, v%d', vMF + 1, vMF2 + 1)
            if k % 2 == 0:
                Q.wait(('b', n + 1))
            if k in (0, 12):
                stamp(M, 'p3')
            if gi == E('P33', 3) and k % 2 == 0 and k:
                stamp(M, 'p33')
            if gi == 3 and k == E('P3FLAGK', 11):
                pub_flag(M, sFL, True)
            if gi == 3 and k == 25:
                flag_load(M)
            mfma(M, acc, vXR + 4 * k, vBR + 4 * (n % 8), k == 0)
        mfma(M, acc, vCF, vMF)
        M('v_mov_b32 v%d, v%d', vSD, vMF2 + 2)
        M('v_mov_b32 v%d, v%d', vSD + 1, vMF2 + 3)
        A.lines += merge(M.lines, p3_epilogue(gi - 1) if gi > 0 else [], 1, E('P3STOP2', 27) if gi == 2 else 27)
        if gi == 0:
            stamp(A)
        stamp(A, 'p3')
    stamp(A)
    NB = 16
    vWF4 = 40
    vAP = vXR + 48

    def w2_base(c):
        A('s_cmp_eq_u32 s%d, 0', sKH)
        A('s_cselect_b32 s%d, %d, %d', sT, w2_slot(2 * c) >> 12, w2_slot(2 * c + 1) >> 12)
        A('s_lshl_b32 s%d, s%d, 12', sT, sT)
        A('v_add_u32 v%d, s%d, v%d', vWA + 2, sT, vWA)
        A('v_add_u32 v%d, s%d, v%d', vWA + 3, sT, vWA + 1)

    Q = LdsQ(A)

    def abuf(k):
        return vWF4 + 8 * (k & 3)

    def read_w2(k):
        if k % 4 == 3 and k < 52:
            Q.take(LP[('w2', 2 * (k // 4) + 3)][0])
        if k % 4 == 0:
            wait_lp(A, ('w2', 2 * (k // 4) + 1))
            w2_base(k // 4)
        buf = abuf(k)
        for nt in range(2):
            for z in range(2):
                Q.op(('w', k), 'ds_read_b64_tr_b16 v[%d:%d], v%d offset:%d', buf + 4 * nt + 2 * z,
                     buf + 4 * nt + 2 * z + 1, vWA + 2 + nt, ((k % 4) * 16 + 8 * z) * 128)
        if k % 4 == 0 and k < 52:
            Q.peek(LP[('w2', 2 * (k // 4) + 3)][0])
        if k % 4 == 3 and (k // 4) <= 5:
            Q.stage(C0 + 13 + k // 4)

    vq = []

    def vm_need(tag):
        i = max(j for j, x in enumerate(vq) if x == tag)
        return len(vq) - 1 - i

    def issue_b(k):
        if k % 8 == 0:
            A('s_lshl_b32 s%d, s%d, 13', sM0, sBK)
            A('s_add_u32 s%d, s%d, s%d', sM0, sM0, sHB)
            blk_next(A, sBK, sBS)
        A('buffer_load_dwordx4 %s, v%d, s[%d:%d], s%d offen offset:%d%s', v(vXR + 4 * (k % NB), 4), vO, SWS, SWS + 3,
          sM0, (k & 3) * 1024, LDB)
        vq.append(('b', k))
        if k % 8 == 3:
            A('s_add_u32 s%d, s%d, 4096', sM0, sM0)

    INFL = E('P4INFL', 10)
    assert INFL < NB
    A('s_waitcnt vmcnt(2)')
    flag_check('s%d' % sEM)
    stamp(A)
    issued = E('P4PRE', 8)
    for k in range(issued):
        issue_b(k)
    for b in p3_epilogue(3, True):
        A.lines += b
    vq += ['st', 'st']
    read_w2(0)
    read_w2(1)
    while issued < INFL:
        issue_b(issued)
        issued += 1
    unpack_hp()
    stamp(A)
    KF, KL, KC = E('P4KF', 3), E('P4KL', 9), E('P4KC', 14)
    pend = False
    for k in range(56):
        if k + 2 < 56:
            read_w2(k + 2)
        need = vm_need(('b', k))
        if k == KF:
            need = min(need, vm_need('st'))
        if k == KC:
            need = min(need, vm_need('pf'))
        Q.wait(('w', k), need)
        if k % 4 == 0 and k:
            stamp(A, 'p4')
        buf = abuf(k)
        mfma(A, vAC + 16, buf + 4, vXR + 4 * (k % NB), k == 0)
        if k == KF:
            pub_flag(A, sFL2, True, False)
            vq.append('fl')
        if k == KL:
            flag_load(A)
            vq.append('pf')
        if k == KC:
            flag_check('0xfffffff')
            pend = True
        for _ in range(2):
            if issued < min(56, k + 1 + INFL) and (issued < 24 or pend):
                issue_b(issued)
                issued += 1
        mfma(A, vAC, buf, vXR + 4 * (k % NB))
    stamp(A)
    exchange(C0 + 27)
    cvt8(A, vHP, vAC)
    for q in range(2):
        A('v_permlane32_swap_b32 v%d, v%d', vHP + 4 * q, vHP + 4 * q + 2)
        A('v_permlane32_swap_b32 v%d, v%d', vHP + 4 * q + 1, vHP + 4 * q + 3)
    for q in range(2):
        A('buffer_store_dwordx4 %s, v%d, s[%d:%d], 0 offen offset:%d', v(vHP + 4 * q, 4), vRO, SOUT, SOUT + 3, q * 32)
    A('s_or_b32 s%d, s2, s%d', sT, sWV)
    A('s_cmp_lg_u32 s%d, 0', sT)
    A('s_cbranch_scc1 %s', fin)
    A('s_mov_b32 s%d, %d', sT, FEP)
    A('s_mov_b64 exec, 1')
    A('buffer_store_dword v%d, v%d, s[%d:%d], s%d offen', vTAG, vO, SWS, SWS + 3, sT)
    A('s_mov_b64 exec, -1')
    A('%s:', fin)
    if E('PADTO', 0):
        lo = A.label('PAD')
        A('s_waitcnt vmcnt(0) lgkmcnt(0)')
        A('s_mov_b32 s6, %d', E('PADTO', 0))
        if PROBE >= 0:
            A('s_sub_u32 s7, s56, s84')
            A('s_lshl_b32 s7, s7, 2')
            A('s_cmp_ge_u32 s%d, 28', sI)
            A('s_cselect_b32 s7, 0, s7')
            A('s_add_u32 s6, s6, s7')
        A('%s:', lo)
        A('s_memrealtime s[4:5]')
        A('s_waitcnt lgkmcnt(0)')
        A('s_sub_u32 s4, s4, s84')
        A('s_cmp_lt_u32 s4, s6')
        A('s_cbranch_scc1 %s', lo)
    stamp_flush(A)


def gen():
    A = Asm()
    name = NAME + '_kernel'
    A.lines += ['.p2align 8', '.globl %s' % name, '.type %s,@function' % name, '%s:' % name]
    end = A.label('END')
    if E('PADTO', 0):
        A('s_memrealtime s[84:85]')
    A('s_load_dwordx16 s[64:79], s[0:1], 0')
    A('s_load_dwordx2 s[80:81], s[0:1], 72')
    A('s_getpc_b64 s[%d:%d]', sPC, sPC + 1)
    A('s_cmp_ge_u32 s2, 256')
    A('s_cbranch_scc1 %s', end)
    assert MAP == 0
    A('s_and_b32 s%d, s2, 7', sXCD)
    A('s_lshr_b32 s%d, s2, 3', sI)
    A('v_lshrrev_b32 v%d, 6, v0', vMY)
    A('v_and_b32 v%d, 63, v0', vL)
    A('s_and_b32 s%d, s%d, 1', sTB, sI)
    A('s_lshl1_add_u32 s%d, s%d, s%d', sTB, sXCD, sTB)
    A('v_readfirstlane_b32 s%d, v%d', sWV, vMY)
    A('s_add_u32 s%d, s%d, s%d', sC0, sXCD, sI)
    A('s_mul_i32 s%d, s%d, 37', sT, sC0)
    A('s_lshr_b32 s%d, s%d, 8', sT, sT)
    A('s_mul_i32 s%d, s%d, 7', sT, sT)
    A('s_sub_u32 s%d, s%d, s%d', sC0, sC0, sT)
    x_offsets(A)
    A('s_mul_i32 s%d, s%d, %d', sT2, sWV, 32 * 896)
    A('s_lshl_b32 s%d, s%d, 7', sT, sC0)
    A('s_add_u32 s%d, s%d, s%d', sT, sT, sXB)
    A('s_add_u32 s%d, s%d, s%d', sT, sT, sT2)
    A('s_lshl_b32 m0, s%d, 12', sWV)
    A('s_mov_b32 s%d, 0x%x', SX + 2, 0 if E('ABL', 0) & 16 else S * D * 2)
    A('s_mov_b32 s%d, 0x20000', SX + 3)
    nok = A.label('NOK')
    A('s_cmp_ge_u32 s%d, 4', sWV)
    A('s_waitcnt lgkmcnt(0)')
    A('s_mov_b32 s%d, s64', SX)
    A('s_mov_b32 s%d, s65', SX + 1)
    A('s_cbranch_scc1 %s', nok)
    for u in range(4):
        A('buffer_load_dwordx4 v%d, s[%d:%d], s%d offen offset:%d lds', vXD + u, SX, SX + 3, sT, u * 1024)
    A('%s:', nok)
    srd(A, SW, 66, 0 if E('ABL', 0) & 8 else D * 3 * D * 2)
    WT = E('WT', 0)
    if WT:
        now = A.label('NOW')
        A('s_sub_u32 s%d, s%d, 4', sT, sWV)
        A('s_cmp_ge_u32 s%d, %d', sT, WT)
        A('s_cbranch_scc1 %s', now)
        A('s_add_u32 s%d, s%d, 1', sT, sT)
        A('s_cmp_eq_u32 s%d, 3', sT)
        A('s_cselect_b32 s%d, 0, s%d', sT, sT)
        A('s_mul_i32 s%d, s%d, 896', sT, sT)
        A('s_mul_i32 s%d, s%d, %d', sT2, sI, 14 * 2688)
        A('s_add_u32 s%d, s%d, s%d', sT, sT, sT2)
        A('s_add_u32 s%d, s%d, %d', sT2, sT, 7 * 2688)
        A('v_lshrrev_b32 v%d, 3, v%d', vT0, vL)
        A('v_mul_u32_u24 v%d, 2688, v%d', vT0, vT0)
        A('v_and_b32 v%d, 7, v%d', vT1, vL)
        A('v_lshl_add_u32 v%d, v%d, 7, v%d', vT0, vT1, vT0)
        A('s_mov_b32 exec_lo, 0x7f7f7f7f')
        A('s_mov_b32 exec_hi, 0x007f7f7f')
        A('buffer_load_dword v38, v%d, s[%d:%d], s%d offen', vT0, SW, SW + 3, sT)
        A('buffer_load_dword v39, v%d, s[%d:%d], s%d offen', vT0, SW, SW + 3, sT2)
        A('s_mov_b64 exec, -1')
        A('%s:', now)
    perm = [2, 4, 6, 9, 11, 13, 0, 1, 3, 5, 7, 8, 10, 12, 14, 15]
    lo = sum(perm[i] << (4 * i) for i in range(8))
    hi = sum(perm[8 + i] << (4 * i) for i in range(8))
    A('s_mov_b32 s%d, 0x%x', sHI, lo)
    A('s_mov_b32 s%d, 0x%x', sHI + 1, hi)
    A('s_lshr_b32 s%d, s%d, 1', sT, sI)
    A('s_lshl_b32 s%d, s%d, 2', sT, sT)
    A('s_lshr_b64 s[%d:%d], s[%d:%d], s%d', sHI, sHI + 1, sHI, sHI + 1, sT)
    A('s_and_b32 s%d, s%d, 15', sH, sHI)
    A('v_lshlrev_b32 v%d, 2, v%d', vMY, vMY)
    A('v_add_u32 v%d, %d, v%d', vMY, L_MISC, vMY)
    A('v_mov_b32 v%d, 0', vT0)
    A('ds_write2st64_b32 v%d, v%d, v%d offset0:0 offset1:1', vMY, vT0, vT0)
    A('ds_write2_b32 v%d, v%d, v%d offset0:%d offset1:%d', vMY, vT0, vT0, M_FAST // 4, M_CP // 4)
    w_offsets(A)
    A('v_mov_b32 v%d, %d', vMI, L_MISC)
    A('s_mov_b32 s%d, 0x400000', sSPIN)
    A('s_mov_b32 s%d, 0', sPROG)
    A('s_mov_b32 s%d, 0', sPROG1)
    A('s_waitcnt lgkmcnt(0)')
    A('s_barrier')
    _st['n'] = 0
    stamp(A, 'all')
    if STAMPS:
        A('s_memrealtime s[86:87]')
    for i in range(7):
        LP[('x', i)] = (7, 1 + i)
    for gi in range(4):
        us = E('HSPOS', 3) if gi == 0 else 0
        LP[('hs', gi)] = (7, 10 + W7ST + 8 * gi + us + 1)
        LP[('st', gi)] = (5, 4 + gi)
        for q in range(7):
            LP[('h', gi, q)] = (7, 10 + W7ST + 8 * gi + q + (1 if q > us else 0))
    for pi in range(3):
        for i in range(7):
            LP[('W', pi, i)] = (4, 7 * pi + i + 1)
    l0, l1, l2, lw, lc = A.label('H0'), A.label('H1'), A.label('H23'), A.label('EW'), A.label('EC')
    A('s_cmp_eq_u32 s%d, 4', sWV)
    A('s_cbranch_scc1 %s', lw)
    A('s_cmp_lg_u32 s%d, 7', sWV)
    A('s_cbranch_scc1 %s', lc)
    HELP['on'] = True
    nst = {}
    prio(A, 1)
    _st['n'] = 1
    early_x(A)
    nst[l1] = _st['n']
    A('s_branch %s', l1)
    A('%s:', lw)
    prio(A, 1)
    _st['n'] = 1
    early_w(A)
    nst[l0] = _st['n']
    nst[l2] = 1
    A('s_branch %s', l0)
    refresh_routines(A)
    A('%s:', lc)
    A('s_cmp_ge_u32 s%d, 5', sWV)
    A('s_cbranch_scc1 %s', l2)
    parts = {}
    for lab, fn in ((l0, gen_h0), (l1, gen_h1), (l2, gen_h23)):
        B = sub(A)
        B('%s:', lab)
        B('s_nop 4')
        HELP['on'] = True
        prio(B, 1)
        _st['n'] = nst[lab]
        fn(B)
        HELP['on'] = False
        parts[lab] = B.lines
    _st['n'] = 1
    gen_compute(A)
    A('%s:', end)
    A('s_endpgm')
    for lab in (l0, l1, l2):
        A.lines += parts[lab]
    A.lines += COLD
    return A, name


def main():
    out = sys.argv[1] if len(sys.argv) > 1 else 'cdna_kernels/%s.s' % NAME
    A, name = gen()
    lines, nn = fix_hazards(A.lines)
    hdr = ['; generated by gen/gen12.py (hand-written generator script)',
           '; @launch grid=(256,1,1) block=(512,1,1) lds=%d' % LDS_SIZE,
           '.amdgcn_target "amdgcn-amd-amdhsa--gfx950"', '.text']
    tail = ['.p2align 8', '.fill 2048, 4, 0xbf800000', '.section .rodata,"a"', '.p2align 6', '''.amdhsa_kernel %s
  .amdhsa_next_free_vgpr 256
  .amdhsa_next_free_sgpr 102
  .amdhsa_accum_offset 256
  .amdhsa_group_segment_fixed_size 0
  .amdhsa_kernarg_size 80
  .amdhsa_user_sgpr_count 2
  .amdhsa_user_sgpr_kernarg_segment_ptr 1
  .amdhsa_system_sgpr_workgroup_id_x 1
  .amdhsa_float_denorm_mode_32 3
  .amdhsa_float_denorm_mode_16_64 3
.end_amdhsa_kernel''' % name]
    open(out, 'w').write('\n'.join(hdr + lines + tail) + '\n')
    print('wrote', out, 'lines', len(lines), 'nops', nn)


if __name__ == '__main__':
    main()
```

```python
import sys
import os
sys.path.insert(0, os.path.dirname(os.path.abspath(__file__)))
from asmlib import Asm, fix_hazards, v

NAME = 'sequential_preLN__linear_kernel_hedgehog__dense_activation_silu__prompt'
S, D, H, DH, F = 2048, 448, 16, 28, 1792
MB = 1 << 20
E = lambda k, d: int(os.environ.get(k, d))
STAMPS = E('STAMPS', 0)
MAP = E('MAP', 0)
FAST = E('FAST', 1)
CODEPF = E('CODEPF', 1)
WARM = E('WARM', 0)
WT1 = E('WT1', 0)
WTO = E('WTO', 0)
TOUCHAT = E('TOUCHAT', 2)
LDB = (' sc1', '', ' nt')[E('LDB', 0)]
HLATE = E('HLATE', 1)
WS_KVP = 0
WS_OB = 2 * MB
WS_HB = 4 * MB
WS_H1B = 8 * MB
WS_FLG = 16 * MB
F1, F2, F3, F4, FREG, FEP = WS_FLG + 0x10000, WS_FLG + 0x1000, WS_FLG + 0x3000, WS_FLG + 0x70000, WS_FLG + 0x9000, WS_FLG + 0xA000
F2X = WS_FLG + 0x40000
WS_STAMP = 17 * MB
WS_SIZE = 18 * MB
LOG2E = 0x3fb8aa3b
ONES = 0x3f803f80
MFMA = 'v_mfma_f32_32x32x16_bf16'
L_X = 0
L_WP = (114688, 0, 32768)
L_KVA, L_KVV = 65536, 81920
L_A = 98304
L_SC0, L_SC1 = 49152, 57344
L_XRES = L_SC0
B16 = (0, 16384, 65536, 81920, 32768)
L_PHI, L_EX, L_CF, L_MISC = 159744 - 2048 + 2048 + 1536, 155648, 159744, 163328
LDS_SIZE = 163840
M_PW, M_FAST, M_CP, M_LD = 0, 64, 96, 256
L_RSTD = L_EX

SX, SW, SP, SWS, SWO, SW1, SW2, SOUT = 12, 16, 20, 24, 28, 32, 36, 40
sTB, sH, sWV, sC0, sPROG, sT, sT2, sONES, sC, sTAG, sFASTF, sI, sXCD = 44, 45, 46, 47, 48, 49, 50, 51, 52, 53, 54, 55, 3
sHI, sPADL, sZA, sZB, sODD, sPC = 4, 6, 8, 10, 92, 94
sTQ, sNB, sTB3, sFB, sG, sKH, sB, sXB, sM0, sSPIN = 96, 97, 98, 99, 100, 101, 88, 89, 91, 90
sPROG1, sFL = 0, 1
vL, vMI, vT0, vT1, vO = 1, 2, 3, 4, 5
vTAG, vMY = 6, 7
vTT = 8
vXA = 12
vWA = 16
vSM, vSQ = 20, 22
vNM, vRS, vSC, vRA = 24, 25, 26, 27
vXD = 28
vPW = 32
vCA = 36
vXR = 144
vPK_ = 37
CACHE = {4: sPROG, 7: sPROG1, 5: sC0}

_st = {'n': 0}
C0 = 4
HELP = {'on': False}


def prio(A, hi):
    if HELP['on'] and E('HPRIO', 2) and not HELP.get('hot'):
        A('s_setprio %d', E('HPRIO', 2) if hi else 0)
LP = {}


STSET = os.environ.get('STSET', 'main')


DBGT = E('DBGT', 0)


PROBE = E('PROBE', -1)


def stamp(A, tag='main'):
    if PROBE >= 0:
        if not HELP['on'] and tag in ('main', 'all'):
            if _st['n'] == PROBE:
                A('s_memrealtime s[56:57]')
            _st['n'] += 1
        return
    if DBGT and not HELP['on'] and tag in ('main', 'all'):
        A('s_memrealtime s[%d:%d]', 56 + 2 * _st['n'], 57 + 2 * _st['n'])
        _st['n'] += 1
        return
    if STAMPS and STSET == 'clk' and tag == 'main' and not HELP['on']:
        _st['m'] = _st.get('m', 0) + 1
        if _st['m'] in (1, 2, 4, 8, 10, 13):
            A('s_memtime s[%d:%d]', 56 + 2 * _st['n'], 57 + 2 * _st['n'])
            A('s_memrealtime s[%d:%d]', 58 + 2 * _st['n'], 59 + 2 * _st['n'])
            _st['n'] += 2
        return
    if STAMPS and (tag == STSET or tag == 'all' or (HELP['on'] and tag == 'main')):
        assert _st['n'] < 15, 'too many stamps'
        A('s_memtime s[%d:%d]', 56 + 2 * _st['n'], 57 + 2 * _st['n'])
        _st['n'] += 1


def stamp_flush(A):
    if DBGT and not HELP['on']:
        A('s_waitcnt vmcnt(0)')
        stamp(A, 'all')
        skip = A.label('DS')
        A('s_waitcnt vmcnt(0) lgkmcnt(0)')
        A('s_cmp_ge_u32 s%d, 28', sI)
        A('s_cbranch_scc1 %s', skip)
        A('s_mov_b64 exec, 1')
        A('v_mov_b32 v1, 0')
        A('s_not_b32 s4, s56')
        A('v_mov_b32 v2, s4')
        A('global_atomic_umax v1, v2, s[86:87] offset:60')
        for i in range(_st['n']):
            A('v_mov_b32 v%d, s%d', 8 + i, 56 + 2 * i)
            A('global_atomic_umax v1, v%d, s[86:87] offset:%d', 8 + i, 4 * i)
        A('%s:', skip)
        return
    if STAMPS:
        A('s_waitcnt vmcnt(0)')
        stamp(A, 'all')
        A('s_memrealtime s[4:5]')
        A('s_waitcnt vmcnt(0) lgkmcnt(0)')
        A('s_sub_u32 s4, s4, s86')
        A('s_lshl_b32 s4, s4, 20')
        A('s_and_b32 s86, s86, 0xfffff')
        A('s_or_b32 s86, s86, s4')
        A('s_lshl_b32 s%d, s2, 3', sT)
        A('s_add_u32 s%d, s%d, s%d', sT, sT, sWV)
        A('s_lshl_b32 s%d, s%d, 6', sT, sT)
        A('s_add_u32 s%d, s%d, %d', sT, sT, WS_STAMP)
        A('s_mov_b64 exec, 1')
        A('v_mov_b32 v1, 0')
        for i in range(16):
            if i < _st['n']:
                A('v_mov_b32 v2, s%d', 56 + 2 * i)
            elif i == 15:
                A('v_mov_b32 v2, s86')
            else:
                A('v_mov_b32 v2, 0')
            A('buffer_store_dword v2, v1, s[%d:%d], s%d offen offset:%d', SWS, SWS + 3, sT, 4 * i)
            A('s_nop 1')


def srd(A, d, ptr, size):
    A('s_mov_b32 s%d, s%d', d, ptr)
    A('s_and_b32 s%d, s%d, 0xffff', d + 1, ptr + 1)
    A('s_mov_b32 s%d, 0x%x', d + 2, size)
    A('s_mov_b32 s%d, 0x20000', d + 3)


COLD = []


def cold_block(A, fn):
    ent, back = A.label('CE'), A.label('CB')
    B = sub(A)
    B('%s:', ent)
    B('s_nop 15')
    fn(B, back)
    B('s_nop 7')
    B('s_branch %s', back)
    COLD.extend(B.lines)
    return ent, back


def again(A, br, lo, sleep=0):
    slp = max(sleep * E('SLPMUL', 1), E('HSLP', 0) if HELP['on'] else E('CSLP', 0))
    if slp:
        st = A.label('ZZ')
        COLD.extend(['%s:' % st, '  s_sleep %d' % slp, '  s_branch %s' % lo])
        lo = st
    A('%s %s', br, lo)


def spin_guard(A, done):
    A('s_sub_u32 s%d, s%d, 1', sSPIN, sSPIN)
    A('s_cbranch_scc1 %s', done)


def wait_word(A, w, n, cache=None, sleep=0, body=None):
    sd = sT if cache is None else cache

    def loop(B, done, body=None):
        lo = B.label('W')
        prio(B, 0)
        B('%s:', lo)
        B('ds_read_b32 v%d, v%d offset:%d', vPW, vMI, M_PW + 4 * w)
        k = body() if body else 0
        B('s_waitcnt lgkmcnt(%d)', k)
        B('v_readfirstlane_b32 s%d, v%d', sd, vPW)
        spin_guard(B, done)
        B('s_cmp_ge_u32 s%d, %d', sd, n)
        again(B, 's_cbranch_scc0', lo, sleep)
        prio(B, 1)
    if cache is not None and body is None and not HELP['on']:
        A('s_getpc_b64 s[%d:%d]', sPC, sPC + 1)
        A('s_cmp_ge_u32 s%d, %d', sd, n)
        A('s_cbranch_scc0 REFRESH_%d', w)
        return
    done = A.label('WD')
    if cache is not None and body is None:
        A('s_cmp_ge_u32 s%d, %d', sd, n)
        A('s_cbranch_scc1 %s', done)
    loop(A, done, body)
    A('%s:', done)


def wait_lp(A, name, sleep=0):
    w, n = LP[name]
    wait_word(A, w, n, CACHE[w], sleep)


def set_stage(A, n):
    A('v_mov_b32 v%d, %d', vT0, n)
    A('ds_write_b32 v%d, v%d', vMY, vT0)


def wait_stage(A, n, which=(0, 1, 2, 3), body=None, sleep=0, base=M_PW):
    lo, done = A.label('W'), A.label('WD')
    prio(A, 0)
    A('%s:', lo)
    A('ds_read_b128 v[%d:%d], v%d offset:%d', vPW, vPW + 3, vMI, base + 16 * (which[0] // 4))
    k = body() if body else 0
    A('s_waitcnt lgkmcnt(%d)', k)
    w = [x % 4 for x in which]
    if len(w) == 4:
        A('v_min3_u32 v%d, v%d, v%d, v%d', vPW, vPW, vPW + 1, vPW + 2)
        A('v_min_u32 v%d, v%d, v%d', vPW, vPW, vPW + 3)
        r = vPW
    else:
        A('v_min_u32 v%d, v%d, v%d', vPW + w[0], vPW + w[0], vPW + w[1])
        r = vPW + w[0]
    A('v_readfirstlane_b32 s%d, v%d', sT, r)
    spin_guard(A, done)
    A('s_cmp_ge_u32 s%d, %d', sT, n)
    again(A, 's_cbranch_scc0', lo, sleep)
    A('%s:', done)
    prio(A, 1)


def poll_global(A, soff, nlanes):
    lo, done = A.label('P'), A.label('PD')
    A('v_lshlrev_b32 v%d, 2, v%d', vT1, vL)
    if nlanes <= 32:
        A('s_mov_b64 exec, 0x%x', (1 << nlanes) - 1)
    else:
        A('s_mov_b32 exec_lo, 0x%x', nlanes & 0xffffffff)
        A('s_mov_b32 exec_hi, 0x%x', nlanes >> 32)
    A('%s:', lo)
    A('buffer_load_dword v%d, v%d, s[%d:%d], s%d offen sc1', vT0, vT1, SWS, SWS + 3, soff)
    A('s_waitcnt vmcnt(0)')
    A('v_cmp_ne_u32 vcc, s%d, v%d', sTAG, vT0)
    spin_guard(A, done)
    A('s_cbranch_vccnz %s', lo)
    A('%s:', done)
    A('s_mov_b64 exec, -1')


def poll_scalar(A, soff, n):
    lo, done = A.label('P'), A.label('PD')
    A('s_add_u32 s%d, s%d, s%d', sPC, SWS, soff)
    A('s_addc_u32 s%d, s%d, 0', sPC + 1, SWS + 1)
    base = 76
    assert n == 8
    A('%s:', lo)
    if E('PSLEEP', 0):
        A('s_sleep %d', E('PSLEEP', 0))
    A('s_load_dwordx%d s[%d:%d], s[%d:%d], 0 glc', n, base, base + n - 1, sPC, sPC + 1)
    A('s_waitcnt lgkmcnt(0)')
    A('s_and_b64 s[%d:%d], s[%d:%d], s[%d:%d]', sHI, sHI + 1, base, base + 1, base + 2, base + 3)
    A('s_or_b64 s[%d:%d], s[%d:%d], s[%d:%d]', sPADL, sPADL + 1, base, base + 1, base + 2, base + 3)
    for k in range(4, n, 2):
        A('s_and_b64 s[%d:%d], s[%d:%d], s[%d:%d]', sHI, sHI + 1, sHI, sHI + 1, base + k, base + k + 1)
        A('s_or_b64 s[%d:%d], s[%d:%d], s[%d:%d]', sPADL, sPADL + 1, sPADL, sPADL + 1, base + k, base + k + 1)
    A('s_and_b32 s%d, s%d, s%d', sHI, sHI, sHI + 1)
    A('s_or_b32 s%d, s%d, s%d', sPADL, sPADL, sPADL + 1)
    A('s_xor_b32 s%d, s%d, s%d', sHI, sHI, sTAG)
    A('s_xor_b32 s%d, s%d, s%d', sPADL, sPADL, sTAG)
    spin_guard(A, done)
    A('s_or_b32 s%d, s%d, s%d', sHI, sHI, sPADL)
    A('s_cbranch_scc1 %s', lo)
    A('%s:', done)


def two_ways(A, fn, local):
    if local and FAST:
        ent, back = cold_block(A, lambda B, back: fn(B, ' sc1'))
        A('s_cmp_eq_u32 s%d, 0', sFASTF)
        A('s_cbranch_scc1 %s', ent)
        fn(A, '')
        A('%s:', back)
    else:
        fn(A, ' sc1')


def pub_stores(A, stores, local):
    def fn(B, bits):
        for st in stores:
            B(st % bits)
    two_ways(A, fn, local)


def pub_flag(A, sflag, local, drain=True):
    if drain:
        A('s_waitcnt vmcnt(0)')
    A('s_mov_b64 exec, 1')
    two_ways(A, lambda B, bits: B('buffer_store_dword v%d, v%d, s[%d:%d], s%d offen%s', vTAG, vO, SWS, SWS + 3, sflag,
                                  bits), local)
    A('s_mov_b64 exec, -1')


def pub_flag4(A):
    A('v_lshlrev_b32 v%d, 9, v%d', vT1, vL)
    A('s_waitcnt vmcnt(0)')
    A('s_mov_b64 exec, 15')
    two_ways(A, lambda B, bits: B('buffer_store_dword v%d, v%d, s[%d:%d], s%d offen%s', vTAG, vT1, SWS, SWS + 3, sFL,
                                  bits), True)
    A('s_mov_b64 exec, -1')


def st4(reg, soff, off):
    return 'buffer_store_dwordx4 %s, v%d, s[%d:%d], s%d offen offset:%d%%s' % (v(reg, 4), vO, SWS, SWS + 3, soff, off)


def hilo_c(A, src, f, tmp):
    A('v_cvt_pk_bf16_f32 v%d, v%d, v%d', f, src, src)
    A('v_and_b32 v%d, 0xffff0000, v%d', tmp, f)
    A('v_sub_f32 v%d, v%d, v%d', tmp, src, tmp)
    A('v_cvt_pk_bf16_f32 v%d, v%d, 0', f + 1, tmp)


def hilo_m(A, src, f, tmp):
    A('v_cvt_pk_bf16_f32 v%d, v%d, 0', f + 1, src)
    A('v_lshlrev_b32 v%d, 16, v%d', tmp, f + 1)
    A('v_sub_f32 v%d, v%d, v%d', tmp, src, tmp)
    A('v_cvt_pk_bf16_f32 v%d, v%d, v%d', f, src, tmp)


def ln_finish(A, t0, t1, negmean, rstd):
    A('v_mul_f32 v%d, 0x%x, v%d', t0, 0x3b124925, t0)
    A('v_mov_b32 v%d, v%d', t1, t0)
    A('v_permlane32_swap_b32 v%d, v%d', t0, t1)
    A('v_fma_f32 v%d, -v%d, v%d, v%d', t1, t0, t0, t1)
    A('v_max_f32 v%d, 0, v%d', t1, t1)
    A('v_add_f32 v%d, 0x%x, v%d', t1, 0x3727c5ac, t1)
    A('v_rsq_f32 v%d, v%d', rstd, t1)
    A('v_sub_f32 v%d, 0, v%d', negmean, t0)


def softmax_pm(A, p, sc, e, t):
    A('v_cndmask_b32 v%d, v%d, v%d, s[%d:%d]', p + 12, p + 12, p + 14, sHI, sHI + 1)
    A('v_cndmask_b32 v%d, v%d, v%d, s[%d:%d]', p + 13, p + 13, p + 15, sHI, sHI + 1)
    mx, mn = t, t + 1
    A('v_max3_f32 v%d, v%d, v%d, v%d', mx, p, p + 1, p + 2)
    A('v_min3_f32 v%d, v%d, v%d, v%d', mn, p, p + 1, p + 2)
    for i in range(3, 13, 2):
        A('v_max3_f32 v%d, v%d, v%d, v%d', mx, mx, p + i, p + i + 1)
        A('v_min3_f32 v%d, v%d, v%d, v%d', mn, mn, p + i, p + i + 1)
    A('v_max_f32 v%d, v%d, v%d', mx, mx, p + 13)
    A('v_min_f32 v%d, v%d, v%d', mn, mn, p + 13)
    A('v_sub_f32 v%d, 0, v%d', mn, mn)
    A('v_permlane32_swap_b32 v%d, v%d', mx, mn)
    A('v_max_f32 v%d, v%d, v%d', mx, mx, mn)
    A('v_mul_f32 v%d, v%d, v%d', mx, mx, sc)
    A('v_mov_b32 v%d, v%d', mn, mx)
    A('v_permlane32_swap_b32 v%d, v%d', mx, mn)
    assert sc % 2 == 0 and mx % 2 == 0
    for i in range(0, 14, 2):
        A('v_pk_fma_f32 v[%d:%d], v[%d:%d], v[%d:%d], v[%d:%d] op_sel:[0,0,1] op_sel_hi:[1,0,1] neg_lo:[1,0,1] '
          'neg_hi:[1,0,1]', e + i, e + i + 1, p + i, p + i + 1, sc, sc + 1, mx, mx + 1)
        A('v_pk_fma_f32 v[%d:%d], v[%d:%d], v[%d:%d], v[%d:%d] op_sel_hi:[1,0,0] neg_lo:[0,0,1] neg_hi:[0,0,1]',
          p + i, p + i + 1, p + i, p + i + 1, sc, sc + 1, mx, mx + 1)
    for i in range(14):
        A('v_exp_f32 v%d, v%d', e + i, e + i)
        A('v_exp_f32 v%d, v%d', p + i, p + i)
    if PKSM:
        for base in (p, e):
            A('v_pk_add_f32 v[%d:%d], v[%d:%d], v[%d:%d]', base + 14, base + 15, base, base + 1, base + 2, base + 3)
        for i in range(4, 14, 2):
            for base in (p, e):
                A('v_pk_add_f32 v[%d:%d], v[%d:%d], v[%d:%d]', base + 14, base + 15, base + 14, base + 15, base + i,
                  base + i + 1)
    else:
        for base in (p, e):
            A('v_add_f32 v%d, v%d, v%d', base + 14, base, base + 2)
            A('v_add_f32 v%d, v%d, v%d', base + 15, base + 1, base + 3)
        for i in range(4, 14):
            for base in (p, e):
                A('v_add_f32 v%d, v%d, v%d', base + 14 + (i & 1), base + 14 + (i & 1), base + i)
    sp, sn = t + 2, t
    A('v_add_f32 v%d, v%d, v%d', sp, p + 14, p + 15)
    A('v_add_f32 v%d, v%d, v%d', sn, e + 14, e + 15)
    A('v_permlane32_swap_b32 v%d, v%d', sp, sn)
    A('v_add_f32 v%d, v%d, v%d', sp, sp, sn)
    A('v_rcp_f32 v%d, v%d', sp, sp)
    A('v_mov_b32 v%d, v%d', sn, sp)
    A('v_permlane32_swap_b32 v%d, v%d', sp, sn)
    for i in range(0, 14, 2):
        for base, r in ((p, sp), (e, sn)):
            if PKSM:
                A('v_pk_mul_f32 v[%d:%d], v[%d:%d], v[%d:%d] op_sel_hi:[1,0]', base + i, base + i + 1, base + i,
                  base + i + 1, r, r + 1)
            else:
                A('v_mul_f32 v%d, v%d, v%d', base + i, base + i, r)
                A('v_mul_f32 v%d, v%d, v%d', base + i + 1, base + i + 1, r)
    for i, (a0, a1) in enumerate(((0, 1), (2, 3), (4, 5), (6, None), (7, 8), (9, 10), (11, 12), (13, None))):
        for base in (p, e):
            A('v_cvt_pk_bf16_f32 v%d, v%d, %s', base + i, base + a0, '0' if a1 is None else 'v%d' % (base + a1))


PKSM = E('PKSM', 1)


def silu8(B, acc, e, sd, c1, out):
    for r in range(8):
        B('v_mul_f32 v%d, v%d, v%d', e + r, acc + r, c1)
        if r >= 1:
            B('v_exp_f32 v%d, v%d', e + r - 1, e + r - 1)
    B('v_exp_f32 v%d, v%d', e + 7, e + 7)
    for r in range(8):
        B('v_fma_f32 v%d, v%d, v%d, v%d', e + r, e + r, sd, sd)
        if r >= 1:
            B('v_rcp_f32 v%d, v%d', e + r - 1, e + r - 1)
    B('v_rcp_f32 v%d, v%d', e + 7, e + 7)
    for r in range(8):
        B('v_mul_f32 v%d, v%d, v%d', e + r, e + r, acc + r)
    cvt8(B, out, e, 4)


def cvt8(A, dst, src, n=8):
    for i in range(n):
        A('v_cvt_pk_bf16_f32 v%d, v%d, v%d', dst + i, src + 2 * i, src + 2 * i + 1)


def mfma(A, d, a_, b_, first=False):
    A('%s %s, %s, %s, %s', MFMA, v(d, 16), v(a_, 4), v(b_, 4), '0' if first else v(d, 16))


def merge(main, blocks, start, stop):
    idx = [i for i, l in enumerate(main) if l.strip().startswith('v_mfma')][start:stop]
    out, k = [], 0
    n = len(idx)
    pos = {i: j for j, i in enumerate(idx)}
    for i, l in enumerate(main):
        out.append(l)
        if i in pos:
            upto = (len(blocks) * (pos[i] + 1) + n - 1) // n
            for b in blocks[k:upto]:
                out += b
            k = max(k, upto)
    assert k >= len(blocks)
    return out


def sub(A):
    return Asm()


L_H = (L_A, L_A + 28672, 0, 65536)
W2S = [32768, 40960] + [L_A + k * 8192 for k in range(2)] + [L_SC0, L_SC1] + [L_A + k * 8192 for k in range(2, 7)] + [
    k * 8192 for k in range(4)] + [65536 + k * 8192 for k in range(4)]
W2GATE = {2: 9, 7: 10, 11: 11, 15: 12}
W2RE = dict(zip(range(19, 28), (0, 1, 2, 3, 6, 7, 8, 9, 10)))


def w2_slot(n):
    return W2S[W2RE.get(n, n)]


def w1_slot(c):
    return B16[c % 5]


class LdsQ:
    def __init__(self, A):
        self.A, self.q = A, []
        self.peeked = False

    def op(self, tag, fmt, *a):
        self.A(fmt, *a)
        self.q.append(tag)

    def need(self, tag):
        idx = [i for i, x in enumerate(self.q) if x == tag]
        if not idx:
            return None
        n = len(self.q) - 1 - idx[-1]
        self.q = self.q[idx[-1] + 1:]
        return min(n, 15)

    def wait(self, tag, vm=None):
        n = self.need(tag)
        if n is None and vm is None:
            return
        self.A('s_waitcnt' + ('' if vm is None else ' vmcnt(%d)' % vm) + ('' if n is None else ' lgkmcnt(%d)' % n))

    def stage(self, n):
        set_stage(self.A, n)
        self.q.append('st')

    def peek(self, w):
        if w == 5:
            self.op('pk', 'ds_read_b32 v%d, v%d', vPK_, vCA)
        else:
            self.op('pk', 'ds_read_b32 v%d, v%d offset:%d', vPK_, vMI, M_PW + 4 * w)
        self.peeked = True

    def take(self, w):
        if not self.peeked:
            return
        self.peeked = False
        self.wait('pk')
        self.A('v_readfirstlane_b32 s%d, v%d', CACHE[w], vPK_)


def tag_compute(A, t16=None):
    A('s_waitcnt lgkmcnt(0)')
    if t16 is not None:
        A('s_lshr_b32 s%d, s%d, 16', sT2, sTAG)
    A('s_mul_i32 s%d, s%d, 0x%x', sTAG, sTAG, 1664525)
    A('s_add_u32 s%d, s%d, 0x%x', sTAG, sTAG, 1013904223)
    A('v_mov_b32 v%d, s%d', vTAG, sTAG)
    if t16 is not None:
        A('s_and_b32 s%d, s%d, 0x3fff', t16, sTAG)
        A('s_and_b32 s%d, s%d, 0x4000', sT, sTAG)
        A('s_lshl_b32 s%d, s%d, 1', sT, sT)
        A('s_or_b32 s%d, s%d, s%d', t16, t16, sT)
        A('s_cmp_eq_u32 s%d, s%d', t16, sT2)
        A('s_cselect_b32 s%d, 1, 0', sT)
        A('s_xor_b32 s%d, s%d, s%d', t16, t16, sT)
        A('s_lshl_b32 s%d, s%d, 16', t16, t16)


def fast_check(A):
    A('s_getreg_b32 s%d, hwreg(HW_REG_XCC_ID)', sC)
    A('s_and_b32 s%d, s%d, 15', sC, sC)
    A('s_add_u32 s%d, s%d, s%d', sC, sC, sTAG)
    A('s_lshl_b32 s%d, s%d, 7', sT, sXCD)
    A('s_add_u32 s%d, s%d, %d', sT, sT, FREG)
    A('v_and_b32 v%d, 31, v%d', vT1, vL)
    A('v_lshlrev_b32 v%d, 2, v%d', vT1, vT1)
    A('buffer_load_dword v%d, v%d, s[%d:%d], s%d offen sc1', vT0, vT1, SWS, SWS + 3, sT)
    A('s_waitcnt vmcnt(0)')
    A('v_cmp_ne_u32 vcc, s%d, v%d', sC, vT0)
    A('s_cmp_eq_u64 vcc, 0')
    A('s_cselect_b32 s%d, 1, 0', sFASTF)


class Stream:
    def __init__(self, A, wave, depth, first=0):
        self.A, self.wave, self.depth = A, wave, depth
        self.items = []
        self.issued = 0
        self.known = 0
        self.n = first

    def wait_to(self, left):
        if self.issued - left <= self.known:
            return
        self.A('s_waitcnt vmcnt(%d)', left)
        self.known = self.issued - left
        last = None
        while self.items and self.items[0][1] <= self.known:
            last = self.items.pop(0)[0]
        if last is not None:
            set_stage(self.A, last)

    def room(self, k):
        self.wait_to(max(self.depth - k, 0))
        self.issued += k

    def done(self, name, cnt=None):
        self.n += 1
        assert LP.setdefault(name, (self.wave, self.n)) == (self.wave, self.n), name
        self.items.append((self.n, self.issued))

    def drain(self):
        self.drain_to(0)

    def drain_to(self, keep):
        while len(self.items) > keep:
            self.wait_to(self.issued - self.items[0][1])

    def save(self):
        return (list(self.items), self.issued, self.known)

    def restore(self, s):
        self.items, self.issued, self.known = list(s[0]), s[1], s[2]

    def dma4(self, lds, voffs, srd_, step=None, bits=''):
        A = self.A
        if isinstance(lds, tuple):
            A('s_add_u32 m0, s%d, %d', lds[0], lds[1])
        else:
            A('s_mov_b32 m0, %d', lds)
        self.room(4)
        for u in range(4):
            A('buffer_load_dwordx4 v%d, s[%d:%d], s%d offen offset:%d%s lds', voffs[u], srd_, srd_ + 3, sT, u * 1024,
              bits)
        if step:
            A('s_add_u32 s%d, s%d, %d', sT, sT, step)


def reg4(St, regs, voffs, srd_, step=None):
    St.room(4)
    for u in range(4):
        St.A('buffer_load_dwordx4 %s, v%d, s[%d:%d], s%d offen offset:%d', v(regs[u], 4), voffs[u], srd_, srd_ + 3, sT,
             u * 1024)
    if step:
        St.A('s_add_u32 s%d, s%d, %d', sT, sT, step)


def spill(St, name, regs, lds):
    A = St.A
    assert not St.items
    A('v_add_u32 v%d, %d, v%d', vT1, lds, vO)
    A('s_setprio %d', E('SPRIO', 0))
    for j, r in enumerate(regs):
        A('ds_write_b128 v%d, %s offset:%d', vT1, v(r, 4), j * 1024)
    St.n += 1
    assert LP.setdefault(name, (St.wave, St.n)) == (St.wave, St.n), name
    set_stage(A, St.n)


def off128(A, vW128, vXo=None):
    A('v_lshrrev_b32 v%d, 3, v%d', vW128, vL)
    A('v_mul_u32_u24 v%d, 896, v%d', vW128, vW128)
    A('v_and_b32 v%d, 7, v%d', vT1, vL)
    if vXo is not None:
        A('v_lshl_add_u32 v%d, v%d, 4, v%d', vXo, vT1, vW128)
        spread4(A, vXo, 8 * 896)
    A('v_lshrrev_b32 v%d, 2, v%d', vT0, vL)
    A('v_and_b32 v%d, 4, v%d', vT0, vT0)
    A('v_xor_b32 v%d, v%d, v%d', vT1, vT1, vT0)
    A('v_lshl_add_u32 v%d, v%d, 4, v%d', vW128, vT1, vW128)
    spread4(A, vW128, 8 * 896)


def off256(A, vW256):
    A('v_lshrrev_b32 v%d, 4, v%d', vW256, vL)
    A('v_mul_u32_u24 v%d, 3584, v%d', vW256, vW256)
    A('v_and_b32 v%d, 15, v%d', vT1, vL)
    A('v_lshrrev_b32 v%d, 2, v%d', vT0, vL)
    A('v_and_b32 v%d, 12, v%d', vT0, vT0)
    A('v_xor_b32 v%d, v%d, v%d', vT1, vT1, vT0)
    A('v_lshl_add_u32 v%d, v%d, 4, v%d', vW256, vT1, vW256)
    spread4(A, vW256, 4 * 3584)


def h_stream(A, first):
    wave = 7
    St = Stream(A, wave, E('HDEPTH', 24), first)
    if wave == 7:
        A('s_lshl_b32 s%d, s%d, 17', sB, sTB3)
        A('s_add_u32 s%d, s%d, %d', sB, sB, WS_HB + (0x40000000 if E('ABL', 0) & 128 else 0))
        rot_calc(A, sG, 'w1')
        for u in range(7):
            rot_idx(A, 4 + u, sG, u, 7)
            A('s_lshl_b32 s%d, s%d, 12', 4 + u, 4 + u)
            A('s_add_u32 s%d, s%d, s%d', 4 + u, 4 + u, sB)
            A('s_add_u32 s%d, s%d, 4096', 4 + u, 4 + u)
        A('s_lshl_b32 s%d, s%d, 8', sT2, sTB3)
        A('s_add_u32 s%d, s%d, %d', sT2, sT2, F3)
        A('v_lshlrev_b32 v%d, 2, v%d', vT1, vL)
        A('s_and_b32 s%d, s%d, 1', sC, sFB)
        A('s_lshl_b32 s%d, s%d, 16', sC, sC)
        wait_stage(A, C0 + 7, sleep=1)
        stamp(A)
        lo, done = A.label('P'), A.label('PD')
        A('s_mov_b32 exec_lo, 0x3fff3fff')
        A('s_mov_b32 exec_hi, 0x3fff3fff')
        A('%s:', lo)
        A('buffer_load_dword v%d, v%d, s[%d:%d], s%d offen sc1', vT0, vT1, SWS, SWS + 3, sT2)
        A('s_waitcnt vmcnt(0)')
        A('v_cmp_ne_u32 vcc, s%d, v%d', sTAG, vT0)
        spin_guard(A, done)
        A('s_cbranch_vccnz %s', lo)
        A('%s:', done)
        A('s_mov_b64 exec, -1')
        stamp(A)
        for gi in range(4):
            if gi == 2:
                wait_stage(A, C0 + 8)
            if gi:
                A('s_xor_b32 s%d, s%d, %d', sC, sC, (gi ^ (gi - 1)) << 15)
            St.depth = E('HDEPTH0', 24) if gi == 0 else E('HDEPTH', 24)
            for u in range(7):
                A('s_add_u32 s%d, s%d, s%d', sT, 4 + u, sC)
                St.dma4(L_H[gi] + u * 4096, [vO] * 4, SWS, None, LDB)
                if u in HITEMS[gi > 0]:
                    St.done(('h', gi, u))
                if u == (E('HSPOS', 3) if gi == 0 else 0):
                    A('s_add_u32 s%d, s%d, s%d', sT, sB, sC)
                    St.dma4(L_SC0 + gi * 4096, [vO] * 4, SWS, None, ' sc1')
                    St.done(('hs', gi))
        St.drain()
    stamp(A)


def spread4(A, base, step):
    for u in range(1, 4):
        A('v_add_u32 v%d, %d, v%d', base + u, u * (step - 1024), base)


def wtr_base(A):
    A('v_lshrrev_b32 v%d, 5, v%d', vT1, vL)
    A('v_bfe_u32 v%d, v%d, 2, 2', vT0, vL)
    A('v_lshl_add_u32 v%d, v%d, 3, v%d', vT0, vT1, vT0)
    A('v_lshlrev_b32 v%d, 6, v%d', vT0, vT0)
    A('v_bfe_u32 v%d, v%d, 4, 1', vTT, vL)
    A('v_lshl_add_u32 v%d, v%d, 5, v%d', vT0, vTT, vT0)
    A('v_and_b32 v%d, 3, v%d', vTT, vL)
    A('v_lshl_add_u32 v%d, v%d, 3, v%d', vT0, vTT, vT0)
    for pi in range(3):
        A('v_add_u32 v%d, %d, v%d', vWA + pi, L_WP[pi], vT0)
    A('v_lshlrev_b32 v%d, 3, v%d', vCA, vL)
    A('v_add_u32 v%d, %d, v%d', vCA, L_CF, vCA)


def sel_frags(A, vID):
    A('v_lshrrev_b32 v%d, 5, v%d', vT1, vL)
    A('v_and_b32 v%d, 31, v%d', vT0, vL)
    A('v_lshlrev_b32 v%d, 2, v%d', vTT, vT1)
    A('v_sub_u32 v%d, v%d, v%d', vT0, vT0, vTT)
    A('v_mov_b32 v%d, 0x3f80', vTT)
    A('v_mov_b32 v%d, 0x3f800000', vTT + 1)
    for sidx in range(2):
        for rr in range(4):
            m = 16 * sidx + 8 * (rr >> 1) + 2 * (rr & 1)
            A('v_cmp_eq_u32 vcc, %d, v%d', m, vT0)
            A('v_cndmask_b32 v%d, 0, v%d, vcc', vID + 4 * sidx + rr, vTT)
            A('v_cmp_eq_u32 vcc, %d, v%d', m + 1, vT0)
            A('v_cndmask_b32 v%d, v%d, v%d, vcc', vID + 4 * sidx + rr, vID + 4 * sidx + rr, vTT + 1)


def read_w(A, pi, i, buf, sleep=0):
    wait_lp(A, ('W', pi, i), sleep)
    for q in range(4):
        for z in range(2):
            A('ds_read_b64_tr_b16 v[%d:%d], v%d offset:%d', buf + 4 * q + 2 * z, buf + 4 * q + 2 * z + 1,
              vWA + pi, i * 4096 + q * 1024 + z * 256)


def colsum(A, spi):
    vCS, vB_, buf = 40, 44, 48
    A('v_mov_b32 v%d, 0', vCS)
    A('v_mov_b32 v%d, 0', vCS + 1)
    A('s_cmp_eq_u32 s%d, 1', spi)
    A('s_cselect_b32 s%d, 0, %d', sT, L_WP[2])
    A('s_cmp_eq_u32 s%d, 0', spi)
    A('s_cselect_b32 s%d, %d, s%d', sT, L_WP[0], sT)
    assert L_WP[1] == 0
    A('v_add_u32 v%d, s%d, v%d', vB_, sT, vWA + 1)
    A('s_mul_i32 s%d, s%d, 7', sC, spi)
    A('s_add_u32 s%d, s%d, 7', sT2, sC)
    top, lo, ok = A.label('CS'), A.label('W'), A.label('WD')
    A('%s:', top)
    A('s_cmp_gt_u32 s%d, s%d', sPROG, sC)
    A('s_cbranch_scc1 %s', ok)
    prio(A, 0)
    A('%s:', lo)
    A('ds_read_b32 v%d, v%d offset:%d', vPW, vMI, M_PW + 16)
    A('s_waitcnt lgkmcnt(0)')
    A('v_readfirstlane_b32 s%d, v%d', sPROG, vPW)
    spin_guard(A, ok)
    A('s_cmp_gt_u32 s%d, s%d', sPROG, sC)
    again(A, 's_cbranch_scc0', lo)
    prio(A, 1)
    A('%s:', ok)
    for q in range(4):
        for z in range(2):
            A('ds_read_b64_tr_b16 v[%d:%d], v%d offset:%d', buf + 4 * q + 2 * z, buf + 4 * q + 2 * z + 1, vB_,
              q * 1024 + z * 256)
    A('v_add_u32 v%d, 4096, v%d', vB_, vB_)
    A('s_add_u32 s%d, s%d, 1', sC, sC)
    for q in range(4):
        A('s_waitcnt lgkmcnt(%d)', 6 - 2 * q)
        for r in range(4):
            A('v_dot2c_f32_bf16 v%d, s%d, v%d', vCS + (r & 1), sONES, buf + 4 * q + r)
    A('s_cmp_lt_u32 s%d, s%d', sC, sT2)
    A('s_cbranch_scc1 %s', top)
    A('v_add_f32 v%d, v%d, v%d', vCS, vCS, vCS + 1)
    hilo_c(A, vCS, vCS + 2, vT0)
    A('s_lshl_b32 s%d, s%d, 9', sT, spi)
    A('v_add_u32 v%d, s%d, v%d', vB_, sT, vCA)
    A('ds_write_b64 v%d, v[%d:%d]', vB_, vCS + 2, vCS + 3)


ROT = E('ROT', 1)
HITEMS = ((1, 3, 5, 6), (1, 3, 6))
W7ST = 0
LATE = E('LATE', 1)
W2R = E('W2R', 0)


def rot_calc(A, dst, kind):
    if not ROT:
        A('s_mov_b32 s%d, 0', dst)
        return
    if kind == 'w1':
        A('s_and_b32 s%d, s%d, 1', dst, sTB3)
        A('s_mul_i32 s%d, s%d, %d', dst, dst, 4 if LATE else 3)
        mod = 7
    elif kind == 'wo':
        A('s_and_b32 s%d, s%d, 3', dst, sTQ)
        A('s_lshl_b32 s%d, s%d, 1', dst, dst)
        mod = 7
    else:
        A('s_and_b32 s%d, s%d, 3', dst, sTQ)
        A('s_mul_i32 s%d, s%d, 7', dst, dst)
        A('s_lshr_b32 s%d, s%d, 1', dst, dst)
        mod = 14
    A('s_add_u32 s%d, s%d, s%d', dst, dst, sXCD)
    if kind == 'w1' and E('ROTFB', 1):
        A('s_lshr_b32 s%d, s%d, 1', sT, sFB)
        A('s_add_u32 s%d, s%d, s%d', dst, dst, sT)
        A('s_mul_i32 s%d, s%d, 37', sT, dst)
        A('s_lshr_b32 s%d, s%d, 8', sT, sT)
        A('s_mul_i32 s%d, s%d, 7', sT, sT)
        A('s_sub_u32 s%d, s%d, s%d', dst, dst, sT)
        return
    A('s_cmp_ge_u32 s%d, %d', dst, mod)
    A('s_cselect_b32 s%d, %d, 0', sT, mod)
    A('s_sub_u32 s%d, s%d, s%d', dst, dst, sT)


def rot_idx(A, dst, rot, j, mod):
    A('s_add_u32 s%d, s%d, %d', dst, rot, j)
    A('s_cmp_ge_u32 s%d, %d', dst, mod)
    A('s_cselect_b32 s%d, %d, 0', sT2, mod)
    A('s_sub_u32 s%d, s%d, s%d', dst, dst, sT2)


def blk_init(A, sb, sst, kh):
    A('s_and_b32 s%d, s%d, 1', sb, sTQ)
    if isinstance(kh, str):
        A('s_xor_b32 s%d, s%d, %s', sb, sb, kh)
    elif kh:
        A('s_xor_b32 s%d, s%d, 1', sb, sb)
    A('s_lshr_b32 s%d, s%d, 1', sT, sTQ)
    A('s_xor_b32 s%d, s%d, s%d', sT, sT, sXCD)
    A('s_sub_u32 s%d, 6, s%d', sT2, sb)
    A('s_bitcmp1_b32 s%d, 0', sT)
    A('s_cselect_b32 s%d, s%d, s%d', sb, sT2, sb)
    A('s_cselect_b32 s%d, 5, 2', sst)


def blk_next(A, sb, sst):
    A('s_add_u32 s%d, s%d, s%d', sb, sb, sst)
    A('s_cmp_ge_u32 s%d, 7', sb)
    A('s_cselect_b32 s%d, 7, 0', sT2)
    A('s_sub_u32 s%d, s%d, s%d', sb, sb, sT2)


def rest_srds(A):
    A('s_add_u32 s82, s80, %d', FEP)
    A('s_addc_u32 s83, s81, 0')
    A('s_load_dword s%d, s[82:83], 0', sTAG)
    srd(A, SP, 68, H * DH * DH * 2)
    A('s_mul_i32 s%d, s%d, 37', sTQ, sI)
    A('s_lshr_b32 s%d, s%d, 8', sTQ, sTQ)
    A('s_mul_i32 s%d, s%d, 7', sNB, sTQ)
    A('s_sub_u32 s%d, s%d, s%d', sNB, sI, sNB)
    A('s_lshr_b32 s%d, s%d, 1', sTB3, sTQ)
    A('s_mul_i32 s%d, s%d, 14', sFB, sTB3)
    A('s_sub_u32 s%d, s%d, s%d', sFB, sI, sFB)
    A('s_lshl2_add_u32 s%d, s%d, s%d', sTQ, sXCD, sTQ)
    A('s_lshl1_add_u32 s%d, s%d, s%d', sTB3, sXCD, sTB3)
    A('v_lshlrev_b32 v%d, 4, v%d', vO, vL)
    A('s_mov_b32 s%d, 0', sFASTF)
    A('s_mov_b32 s%d, 0x%x', sONES, ONES)
    ABL = E('ABL', 0)
    srd(A, SWO, 70, 0 if ABL & 1 else D * D * 2)
    srd(A, SW1, 74, 0 if ABL & 2 else D * F * 2)
    srd(A, SW2, 76, 0 if ABL & 4 else D * F * 2)
    srd(A, SOUT, 78, S * D * 2)
    srd(A, SWS, 80, WS_SIZE)


def rot_next(A):
    A('s_add_u32 s%d, s%d, 1', sC, sC)
    A('s_cmp_eq_u32 s%d, 7', sC)
    A('s_cselect_b32 s%d, 0, s%d', sC, sC)


def sig_dyn(A, sval):
    A('v_mov_b32 v%d, s%d', vT0, sval)
    A('ds_write_b32 v%d, v%d', vMY, vT0)


def x_offsets(A):
    A('v_lshrrev_b32 v%d, 3, v%d', vT0, vL)
    A('v_mul_u32_u24 v%d, 896, v%d', vT0, vT0)
    A('v_lshrrev_b32 v%d, 4, v%d', vT1, vL)
    A('v_and_b32 v%d, 7, v%d', vXD, vL)
    A('v_xor_b32 v%d, v%d, v%d', vXD, vXD, vT1)
    A('v_xor_b32 v%d, 4, v%d', vXD + 1, vXD)
    A('v_lshl_add_u32 v%d, v%d, 4, v%d', vXD, vXD, vT0)
    A('v_lshl_add_u32 v%d, v%d, 4, v%d', vXD + 1, vXD + 1, vT0)
    A('v_add_u32 v%d, %d, v%d', vXD + 1, 8 * 896 - 1024, vXD + 1)
    A('v_add_u32 v%d, %d, v%d', vXD + 2, 2 * (8 * 896 - 1024), vXD)
    A('v_add_u32 v%d, %d, v%d', vXD + 3, 2 * (8 * 896 - 1024), vXD + 1)
    A('s_mul_i32 s%d, s%d, %d', sXB, sTB, 128 * 896)


def w_offsets(A):
    vW = 40
    A('v_lshrrev_b32 v%d, 2, v%d', vW, vL)
    A('v_mul_u32_u24 v%d, 2688, v%d', vW, vW)
    A('v_and_b32 v%d, 3, v%d', vT1, vL)
    A('v_lshl_add_u32 v%d, v%d, 4, v%d', vW, vT1, vW)
    A('s_mul_i32 s%d, s%d, 56', sT, sH)
    A('s_and_b32 s%d, s%d, 0xfffffff0', sT, sT)
    A('v_add_u32 v%d, s%d, v%d', vW, sT, vW)
    spread4(A, vW, 16 * 2688)


def early_x(A):
    depth = E('XDEPTH', 16)
    wsig = ((depth - 4) // 4) % 4
    lag = (depth - 4 - 4 * wsig) // 16
    A('s_mov_b32 s%d, %d', sG, 1 - lag)
    A('s_mov_b32 m0, %d', L_X + 16384)
    A('s_mov_b32 s%d, s%d', sC, sC0)
    rot_next(A)
    top = A.label('XL')
    A('%s:', top)
    A('s_lshl_b32 s%d, s%d, 7', sT, sC)
    A('s_add_u32 s%d, s%d, s%d', sT, sT, sXB)
    for w in range(4):
        A('s_waitcnt vmcnt(%d)', depth - 4)
        if w == wsig:
            A('s_max_i32 s%d, s%d, 0', sT2, sG)
            sig_dyn(A, sT2)
        for u in range(4):
            A('buffer_load_dwordx4 v%d, s[%d:%d], s%d offen offset:%d lds', vXD + u, SX, SX + 3, sT, u * 1024)
        A('s_add_u32 m0, m0, 4096')
        if w < 3:
            A('s_add_u32 s%d, s%d, %d', sT, sT, 32 * 896)
    rot_next(A)
    A('s_add_u32 s%d, s%d, 1', sG, sG)
    A('s_cmp_lt_i32 s%d, %d', sG, 7 - lag)
    A('s_cbranch_scc1 %s', top)
    stamp(A)
    for n in range(7 - lag, 8):
        A('s_waitcnt vmcnt(%d)', 16 * (7 - n))
        set_stage(A, n)


def early_w(A):
    vW = 40

    def part_loop(pi, depth, floor):
        lag = (depth - 4) // 4
        stamp(A)
        A('s_mov_b32 s%d, s%d', sC, sC0)
        A('s_mov_b32 s%d, %d', sG, 7 * pi - lag)
        A('s_mov_b32 m0, %d', L_WP[pi])
        top = A.label('WL')
        A('%s:', top)
        A('s_mul_i32 s%d, s%d, %d', sT, sC, 64 * 2688)
        A('s_add_u32 s%d, s%d, %d', sT, sT, (1, 2, 0)[pi] * 896)
        A('s_max_i32 s%d, s%d, %d', sT2, sG, floor)
        A('s_waitcnt vmcnt(%d)', depth - 4)
        sig_dyn(A, sT2)
        for u in range(4):
            A('buffer_load_dwordx4 v%d, s[%d:%d], s%d offen offset:%d lds', vW + u, SW, SW + 3, sT, u * 1024)
        A('s_add_u32 m0, m0, 4096')
        rot_next(A)
        A('s_add_u32 s%d, s%d, 1', sG, sG)
        A('s_cmp_lt_i32 s%d, %d', sG, 7 * pi + 7 - lag)
        A('s_cbranch_scc1 %s', top)
        return lag
    if E('WTWAIT', 1):
        A('s_waitcnt vmcnt(0)')
    lag = part_loop(0, E('WDEPTH', 8), 0)
    for n in range(7 - lag, 8):
        A('s_waitcnt vmcnt(%d)', 4 * (7 - n))
        set_stage(A, n)
    wait_stage(A, 1)
    if E('XG2', 4) >= 0:
        wait_lp(A, ('x', E('XG2', 4)))
    part_loop(1, E('WDEPTH2', 24), 7)


def gen_h0(A):
    St = Stream(A, 4, E('WDEPTH2', 24), 14)
    St.issued = 56
    St.known = 56 - St.depth
    St.items = [(n + 1, 4 * n + 4) for n in range(14) if 4 * n + 4 > St.known]
    vW, vW128, vXo, vW256 = 36, 12, 16, 20
    q4 = lambda b: [b, b + 1, b + 2, b + 3]
    for u in range(4):
        A('v_mov_b32 v%d, v%d', vW + u, 40 + u)
    rest_srds(A)

    def wq():
        wait_stage(A, 2)
        stamp(A)
        for i in range(7):
            rot_idx(A, sT, sC0, i, 7)
            A('s_mul_i32 s%d, s%d, %d', sT, sT, 64 * 2688)
            St.dma4(L_WP[2] + i * 4096, q4(vW), SW)
            St.done(('W', 2, i))
    lend = A.label('LEND')
    act = A.label('ACT')
    A('s_cmp_lt_u32 s%d, 28', sI)
    A('s_cbranch_scc1 %s', act)
    keep, n0 = St.save(), _st['n']
    wq()
    St.drain()
    St.restore(keep)
    St.n = 14
    if E('TOUCH', 1):
        def touch(srd_, base, per_xcd, n):
            A('s_mul_i32 s%d, s%d, %d', sT, sXCD, per_xcd)
            A('s_sub_u32 s%d, s%d, 28', sT2, sI)
            A('s_mul_i32 s%d, s%d, %d', sT2, sT2, n * 8192)
            A('s_add_u32 s%d, s%d, s%d', sT, sT, sT2)
            A('s_add_u32 s%d, s%d, %d', sT, sT, base)
            A('s_mov_b32 s%d, %d', sC, n)
            lo = A.label('T')
            A('%s:', lo)
            A('buffer_load_dword v%d, v%d, s[%d:%d], s%d offen', vW + 1, vW, srd_, srd_ + 3, sT)
            A('s_add_u32 s%d, s%d, 8192', sT, sT)
            A('s_waitcnt vmcnt(%d)', E('TDEPTH', 6))
            A('s_sub_u32 s%d, s%d, 1', sC, sC)
            A('s_cmp_lg_u32 s%d, 0', sC)
            A('s_cbranch_scc1 %s', lo)
        A('v_lshlrev_b32 v%d, 7, v%d', vW, vL)
        if E('W2M', 1) == 2:
            touch(SW2, 0, 4 * 7 * 8192, 7)
        if E('TEARLY', 0):
            wait_stage(A, 3, (5, 6), sleep=2)
        else:
            wait_stage(A, C0 + 5, sleep=2)
        stamp(A)
        if HLATE and not WTO:
            touch(SWS, WS_HB, 262144, 8)
        if E('W2M', 1) == 1:
            touch(SW2, 0, 4 * 7 * 8192, 7)
        stamp(A)
        if not WT1:
            touch(SWS, WS_H1B, 8 * 112 * 1024, 28)
        stamp(A)
        if E('W2WARM', 0):
            touch(SW2, 0, 0, 49)
        stamp(A)
        if E('WBL2', 0):
            tag_compute(A)
            skipw = A.label('NW')
            if E('WBL2', 0) == 1:
                A('s_cmp_lg_u32 s%d, 28', sI)
                A('s_cbranch_scc1 %s', skipw)
            A('s_lshl_b32 s%d, s%d, 2', sC, sXCD)
            A('s_add_u32 s%d, s%d, s%d', sC, sC, sI)
            A('s_sub_u32 s%d, s%d, 28', sC, sC)
            A('s_lshl_b32 s%d, s%d, 8', sC, sC)
            A('s_add_u32 s%d, s%d, %d', sC, sC, F4)
            poll_global(A, sC, (1 << 56) - 1)
            A('buffer_wbl2 sc1')
            A('s_waitcnt vmcnt(0)')
            A('%s:', skipw)
    _st['n'] = n0
    A('s_branch %s', lend)
    A('%s:', act)
    off128(A, vW128)
    off256(A, vW256)
    A('s_lshl_b32 s%d, s%d, 7', sB, sNB)

    sR1, sRO, sR2 = sG, sKH, sXB
    rot_calc(A, sR1, 'w1')
    rot_calc(A, sRO, 'wo')
    sBK, sBS = [8, 9], 10
    blk_init(A, sBK[0], sBS, 0)
    blk_init(A, sBK[1], sBS, 1)

    def w1_off(c):
        rot_idx(A, sT, sR1, c, 7)
        A('s_mul_i32 s%d, s%d, %d', sT, sT, 64 * 3584)
        A('s_lshl_b32 s%d, s%d, 8', sT2, sFB)
        A('s_add_u32 s%d, s%d, s%d', sT, sT, sT2)

    def w1_chunk(c):
        w1_off(c)
        for u in range(4):
            St.dma4(w1_slot(c) + u * 4096, q4(vW256), SW1, 16 * 3584 if u < 3 else None)
        St.done(('w1', c), 16)

    def w2_item(n):
        c, kh = n >> 1, n & 1
        A('s_mul_i32 s%d, s%d, %d', sT, sBK[kh], 128 * 896)
        A('s_add_u32 s%d, s%d, s%d', sT, sT, sB)
        if kh or (c & 1):
            A('s_add_u32 s%d, s%d, %d', sT, sT, (kh * 896 + (c & 1) * 64) * 896)
        if c & 1:
            blk_next(A, sBK[kh], sBS)
        for u in range(2):
            St.dma4(w2_slot(n) + u * 4096, q4(vW128), SW2, 32 * 896 if u < 1 else None)
        St.done(('w2', n), 8)

    SR = [24, 28] + list(range(40, 256, 4))

    def staged(c0=0, c1=3):
        for u in range(4 * c0, 4 * c1):
            if u % 4 == 0:
                w1_off((0 if LATE else 4) + u // 4)
            reg4(St, SR[8 + 4 * u:12 + 4 * u], q4(vW256), SW1, 16 * 3584)

    def wo():
        St.drain_to(3)
        wait_stage(A, 3)
        wait_word(A, 5, 1)
        stamp(A)
        for c in range(7):
            rot_idx(A, sC, sRO, c, 7)
            A('s_mul_i32 s%d, s%d, %d', sT, sC, 64 * 896)
            A('s_add_u32 s%d, s%d, s%d', sT, sT, sB)
            A('s_lshl_b32 s%d, s%d, 13', sC, sC)
            for u in range(2):
                St.dma4((sC, L_A + u * 4096), q4(vW128), SWO, 32 * 896 if u < 1 else None)
            if c == 2:
                St.depth = E('LDEPTH', 32)
        St.done('wo')
    staged(0, E('NSQ', 2))
    wq()
    staged(E('NSQ', 2), 3)
    wo()
    stamp(A)
    wait_stage(A, 2, (5, 6))
    stamp(A)
    if LATE:
        n3 = St.n
        St.n += 3
        w1_chunk(3)
        St.items, it3 = St.items[:-1], St.items[-1]
        St.drain()
        St.wait_to(16)
        St.n = n3
        for c in range(3):
            spill(St, ('w1', c), SR[8 + 16 * c:24 + 16 * c], w1_slot(c))
        St.n += 1
        St.items = [it3]
        St.drain()
        stamp(A)
        wait_stage(A, C0 + 3)
        wait_word(A, 7, 9)
        wait_stage(A, 1, base=M_CP)
        if LATE == 1:
            wait_stage(A, 1, base=M_LD)
        elif LATE == 2:
            wait_stage(A, 3, (5, 6))
        St.depth = E('LATEDEPTH', 20)
        for c in (4, 5, 6):
            w1_chunk(c)
        St.drain()
    else:
        for c in range(4):
            w1_chunk(c)
        St.drain()
        St.wait_to(0)
        stamp(A)
        wait_stage(A, C0 + 3)
        wait_word(A, 7, 9)
        spill(St, ('w1', 4), SR[8:24], w1_slot(4))
        wait_stage(A, 1, base=M_CP)
        spill(St, ('w1', 5), SR[24:40], w1_slot(5))
        spill(St, ('w1', 6), SR[40:56], w1_slot(6))
    stamp(A)
    wait_stage(A, C0 + 8, sleep=2)
    wait_lp(A, ('h', E('W2AFTER', 2), E('W2AFTERQ', 1)), 1)
    stamp(A)
    St.depth = E('W2DEPTH', 24)
    for n in range(28):
        if n in W2GATE:
            wait_stage(A, C0 + W2GATE[n])
        if n == 4:
            wait_stage(A, 5, (5, 6))
        if n == 19:
            stamp(A)
            St.depth = E('W2DEPTH3', 32)
        if n >= 19:
            m = W2RE[n]
            wait_stage(A, C0 + 13 + (m >> 1), (0, 1) if (m & 1) == 0 else (2, 3))
        w2_item(n)
    St.drain()
    stamp(A)
    A('%s:', lend)
    A('s_waitcnt lgkmcnt(0)')
    stamp_flush(A)
    A('s_endpgm')


def gen_h1(A):
    stamp(A)
    rest_srds(A)
    wtr_base(A)
    tag_compute(A)
    def extras():
        if WARM:
            for srd_, size in ((SWO, D * D * 2), (SW1, D * F * 2), (SW2, D * F * 2)):
                A('s_mul_i32 s%d, s2, %d', sT, size // 256)
                A('v_lshlrev_b32 v%d, 7, v%d', vT1, vL)
                A('s_mov_b64 exec, 0x%x', (1 << ((size // 256 + 127) // 128)) - 1) if size // 256 < 4096 else None
                if size // 256 >= 4096:
                    A('s_mov_b32 exec_hi, 0x%x', (1 << ((size // 256 + 127) // 128 - 32)) - 1)
                A('buffer_load_dword v63, v%d, s[%d:%d], s%d offen', vT1, srd_, srd_ + 3, sT)
                A('s_mov_b64 exec, -1')
        if E('TOUCH', 1) and not WTO:
            A('s_lshl_b32 s%d, s%d, 18', sT, sXCD)
            A('s_lshl_b32 s%d, s%d, 13', sT2, sI)
            A('s_add_u32 s%d, s%d, s%d', sT, sT, sT2)
            A('v_lshlrev_b32 v%d, 7, v%d', vT1, vL)
            for base in ([WS_OB] if MAP == 0 else []) + ([] if HLATE else [WS_HB]):
                A('s_add_u32 s%d, s%d, %d', sT2, sT, base)
                A('buffer_load_dword v63, v%d, s[%d:%d], s%d offen', vT1, SWS, SWS + 3, sT2)

    if TOUCHAT == 0:
        extras()
    A('s_mov_b32 s%d, 1', sG)
    off256(A, 20)
    rot_calc(A, sXB, 'w1')
    cs, cs2 = A.label('CSL'), A.label('CSM')
    St = Stream(A, 7, E('W7DEPTH', 16), 9)

    def stage7():
        for u in range(4 * W7ST):
            if u % 4 == 0:
                rot_idx(A, sT, sXB, u // 4, 7)
                A('s_mul_i32 s%d, s%d, %d', sT, sT, 64 * 3584)
                A('s_lshl_b32 s%d, s%d, 8', sT2, sFB)
                A('s_add_u32 s%d, s%d, s%d', sT, sT, sT2)
            reg4(St, [64 + 16 * u + 4 * k for k in range(4)], [20, 21, 22, 23], SW1, 16 * 3584)
    A('%s:', cs)
    colsum(A, sG)
    A('s_add_u32 s%d, s%d, 7', sT, sG)
    sig_dyn(A, sT)
    A('s_add_u32 s%d, s%d, 1', sG, sG)
    A('s_cmp_eq_u32 s%d, 3', sG)
    A('s_cbranch_scc1 %s', cs2)
    A('s_cmp_ge_u32 s%d, 28', sI)
    A('s_cbranch_scc1 %s', cs)
    stage7()
    A('s_branch %s', cs)
    A('%s:', cs2)
    if TOUCHAT == 2:
        extras()
    stamp(A)
    lend = A.label('LEND')
    A('s_cmp_ge_u32 s%d, 28', sI)
    A('s_cbranch_scc1 %s', lend)
    if W7ST:
        A('s_waitcnt vmcnt(%d)', 1 if TOUCHAT == 2 and not WARM else 0)
        wait_stage(A, 2, (5, 6))
        for c in range(W7ST):
            spill(St, ('w1', c), [64 + 64 * c + 4 * k for k in range(16)], w1_slot(c))
        stamp(A)
    h_stream(A, 9 + W7ST)
    A('%s:', lend)
    A('s_waitcnt lgkmcnt(0)')
    stamp_flush(A)
    A('s_endpgm')


def gen_h23(A):
    vID, vAF, vVF, vAC, vG = 64, 72, 104, 136, 72
    rest_srds(A)
    sTL = sKH
    A('s_sub_u32 s%d, s%d, 5', sTL, sWV)
    skip = A.label('NOST')
    A('s_cmp_eq_u32 s%d, 1', sTL)
    A('s_cbranch_scc1 %s', skip)
    A('s_mul_i32 s%d, s%d, 1568', sT, sH)
    A('s_mov_b32 m0, %d', L_PHI)
    A('buffer_load_dwordx4 v%d, s[%d:%d], s%d offen lds', vO, SP, SP + 3, sT)
    A('buffer_load_dwordx4 v%d, s[%d:%d], s%d offen offset:1024 lds', vO, SP, SP + 3, sT)
    if CODEPF:
        A('s_mul_i32 s%d, s%d, %d', sT, sI, 1280)
        A('v_lshlrev_b32 v%d, 7, v%d', vT1, vL)
        A('v_add_u32 v%d, s%d, v%d', vT1, sT, vT1)
        A('s_mov_b64 exec, 0x3ff')
        A('global_load_dword v72, v%d, s[%d:%d]', vT1, sPC, sPC + 1)
        A('s_mov_b64 exec, -1')
    A('%s:', skip)
    if E('TLB', 0):
        A('v_lshlrev_b32 v%d, 20, v%d', vT1, vL)
        A('s_lshl_b32 s%d, s%d, 7', sT, sI)
        for srd_ in (SWS, SOUT, SWO, SW1, SW2):
            A('buffer_load_dword v73, v%d, s[%d:%d], s%d offen', vT1, srd_, srd_ + 3, sT)
    wtr_base(A)
    sel_frags(A, vID)
    sT16 = sZA
    tag_compute(A, sT16)
    if FAST:
        skip = A.label('NORG')
        A('s_cmp_eq_u32 s%d, 0', sTL)
        A('s_cbranch_scc1 %s', skip)
        A('s_getreg_b32 s%d, hwreg(HW_REG_XCC_ID)', sT2)
        A('s_and_b32 s%d, s%d, 15', sT2, sT2)
        A('s_add_u32 s%d, s%d, s%d', sT2, sT2, sTAG)
        A('v_mov_b32 v%d, s%d', vT0, sT2)
        A('s_lshl_b32 s%d, s%d, 7', sT, sXCD)
        A('s_lshl_b32 s%d, s%d, 2', sT2, sI)
        A('s_add_u32 s%d, s%d, s%d', sT, sT, sT2)
        A('s_add_u32 s%d, s%d, %d', sT, sT, FREG)
        A('s_mov_b64 exec, 1')
        A('buffer_store_dword v%d, v%d, s[%d:%d], s%d offen sc1', vT0, vO, SWS, SWS + 3, sT)
        A('s_mov_b64 exec, -1')
        A('%s:', skip)
    six, both = A.label('SIX'), A.label('BOTH')
    A('s_cmp_eq_u32 s%d, 1', sTL)
    A('s_cbranch_scc1 %s', six)
    colsum(A, sTL)
    A('s_waitcnt vmcnt(0)')
    A('s_branch %s', both)
    A('%s:', six)
    if FAST:
        wait_lp(A, ('x', 6), 2)
        fast_check(A)
        A('v_mov_b32 v%d, s%d', vT0, sFASTF)
        A('ds_write_b32 v%d, v%d offset:%d', vMI, vT0, M_FAST)
    A('%s:', both)
    set_stage(A, 1)
    stamp(A)
    A('s_lshl_b32 s%d, s%d, 11', sT2, sTL)
    A('v_add_u32 v%d, s%d, v%d', vTT, sT2, vO)
    A('v_add_u32 v%d, %d, v%d', vTT + 1, L_KVA, vTT)
    A('v_add_u32 v%d, %d, v%d', vTT + 2, L_KVV, vO)
    A('s_lshl_b32 s%d, s%d, 16', sXB, sH)
    A('s_add_u32 s%d, s%d, s%d', sXB, sXB, sT2)
    A('s_add_u32 s%d, s%d, %d', sXB, sXB, WS_KVP)
    A('s_lshl_b32 s%d, s%d, 12', sB, sTB)
    A('s_add_u32 s%d, s%d, s%d', sB, sB, sXB)
    A('s_lshl_b32 s%d, s%d, 1', sM0, sH)
    A('s_add_u32 s%d, s%d, s%d', sM0, sM0, sTL)
    FSH = E('F1SH', 8)
    A('s_lshl_b32 s%d, s%d, %d', sM0, sM0, 4 + FSH)
    A('s_add_u32 s%d, s%d, %d', sM0, sM0, F1)
    A('s_lshl_b32 s%d, s%d, 2', sFL, sTB)
    A('s_add_u32 s%d, s%d, s%d', sFL, sFL, sM0)
    A('s_lshl_b32 s%d, s%d, %d', sT, sTB, FSH)
    A('s_add_u32 s%d, s%d, s%d', sM0, sM0, sT)
    A('s_add_u32 s%d, s%d, s%d', sPC, SWS, sM0)
    A('s_addc_u32 s%d, s%d, 0', sPC + 1, SWS + 1)
    A('v_lshlrev_b32 v%d, %d, v%d', vXA, FSH, vL)
    A('v_lshlrev_b32 v%d, 2, v%d', vXA + 1, vL)
    vTA = 152
    wait_stage(A, C0)
    for k in range(8):
        A('ds_read_b128 %s, v%d offset:%d', v(vVF + 4 * k, 4), vTT + 1, (k >> 1) * 4096 + (k & 1) * 1024)
    for k in range(8):
        A('s_waitcnt lgkmcnt(%d)', 7 - k)
        mfma(A, vTA + 16 * (k >> 1), vVF + 4 * k, vID + 4 * (k & 1), (k & 1) == 0)
    for w in range(4):
        cvt8(A, vAF + 8 * w, vTA + 16 * w)

    def v_reads():
        for k in range(8):
            A('ds_read_b128 %s, v%d offset:%d', v(vVF + 4 * k, 4), vTT + 2, (k >> 1) * 4096 + (k & 1) * 1024)
        return 8
    wait_stage(A, C0 + 1, body=v_reads)
    stamp(A)
    for k in range(8):
        A('s_waitcnt lgkmcnt(%d)', 7 - k)
        mfma(A, vAC, vAF + 4 * k, vVF + 4 * k, k == 0)
    set_stage(A, 2)
    cvt8(A, vAF, vAC)
    TAGS = E('TAGS', 1)
    if TAGS:
        for q in range(2):
            A('v_and_b32 v%d, 0xffff, v%d', vAF + 4 * q + 3, vAF + 4 * q + 3)
            A('v_or_b32 v%d, s%d, v%d', vAF + 4 * q + 3, sT16, vAF + 4 * q + 3)
    pub_stores(A, [st4(vAF + 4 * q, sB, q * 1024) for q in range(2)], MAP == 3)
    if not TAGS:
        A('s_waitcnt vmcnt(0)')
    A('s_mov_b64 exec, 0xffff')
    two_ways(A, lambda B, bits: B('buffer_store_dword v%d, v%d, s[%d:%d], s%d offen%s', vTAG, vXA, SWS, SWS + 3, sFL,
                                  bits), MAP == 3)
    A('s_mov_b64 exec, -1')
    stamp(A)
    sRDY, sPND, sRET = sHI, sHI + 1, sPADL
    base = 68 if STAMPS else 72
    pol = A.label('POLL')
    B = sub(A)
    lo, out = B.label('P'), B.label('PD')
    B('%s:', pol)
    B('%s:', lo)
    if E('PSLEEP', 0):
        B('s_sleep %d', E('PSLEEP', 0))
    if E('SPOLL', 1) and MAP == 0:
        B('s_load_dwordx16 s[%d:%d], s[%d:%d], 0 glc', base, base + 15, sPC, sPC + 1)
        B('s_mov_b32 s%d, 0', sRDY)
        B('s_waitcnt lgkmcnt(%d)', E('PPIPE', 8))
        for p_ in range(15, -1, -1):
            B('s_cmp_eq_u32 s%d, s%d', base + p_, sTAG)
            B('s_addc_u32 s%d, s%d, s%d', sRDY, sRDY, sRDY)
    else:
        B('s_mov_b64 exec, 0xffff')
        B('buffer_load_dword v%d, v%d, s[%d:%d], s%d offen sc1', vT0, vXA + 1, SWS, SWS + 3, sM0)
        B('s_waitcnt vmcnt(0)')
        B('v_cmp_eq_u32 vcc, s%d, v%d', sTAG, vT0)
        B('s_mov_b64 exec, -1')
        B('s_mov_b32 s%d, vcc_lo', sRDY)
    B('s_sub_u32 s%d, s%d, 1', sSPIN, sSPIN)
    B('s_cselect_b32 s%d, -1, s%d', sRDY, sRDY)
    B('s_and_b32 s%d, s%d, s%d', sRDY, sRDY, sPND)
    B('s_cbranch_scc0 %s', lo)
    B('s_setpc_b64 s[%d:%d]', sRET, sRET + 1)
    over = A.label('OV')
    A('s_not_b32 s%d, s%d', base, sTAG)
    A('s_mov_b32 s%d, s%d', base + 1, base)
    for k in range(2, 16, 2):
        A('s_mov_b64 s[%d:%d], s[%d:%d]', base + k, base + k + 1, base, base + 1)
    A('s_branch %s', over)
    A.lines += B.lines
    A('%s:', over)
    A('s_mov_b32 s%d, 0', sRDY)
    A('s_mov_b32 s%d, 0xffff', sPND)
    vCK = vXA + 2
    A('v_mov_b32 v%d, 0', vCK)
    A('s_nop 1')
    vG = [72 + 4 * k for k in range(16)] + [152 + 4 * k for k in range(16)]
    GD = E('GLAG', 8)

    def gmm(k, issued):
        for q in range(2):
            A('s_waitcnt vmcnt(%d)', 2 * issued - (2 * k + q) - 1)
            mfma(A, vAC, vID + 4 * q, vG[2 * k + q], k == 0 and q == 0)
            if TAGS:
                A('v_xor_b32 v%d, s%d, v%d', vCK + 1, sT16, vG[2 * k + q] + 3)
                A('v_or_b32 v%d, v%d, v%d', vCK, vCK, vCK + 1)
    for k in range(16):
        A('s_getpc_b64 s[%d:%d]', sRET, sRET + 1)
        A('s_cmp_eq_u32 s%d, 0', sRDY)
        A('s_cbranch_scc1 %s', pol)
        A('s_ff1_i32_b32 s%d, s%d', sT, sRDY)
        A('s_bitset0_b32 s%d, s%d', sRDY, sT)
        A('s_bitset0_b32 s%d, s%d', sPND, sT)
        A('s_lshl_b32 s%d, s%d, 12', sT, sT)
        A('s_add_u32 s%d, s%d, s%d', sT, sT, sXB)
        if E('ABL', 0) & 32:
            A('s_mov_b32 s%d, s%d', sT, sB)
        for q in range(2):
            A('buffer_load_dwordx4 %s, v%d, s[%d:%d], s%d offen offset:%d sc1', v(vG[2 * k + q], 4), vO, SWS, SWS + 3,
              sT, q * 1024)
        if k == E('GST', 15):
            stamp(A)
        if k >= GD:
            gmm(k - GD, k + 1)
    for k in range(16 - GD, 16):
        gmm(k, 16)
    if TAGS:
        ok = A.label('TOK')
        A('v_cmp_lt_u32 vcc, 0xffff, v%d', vCK)
        spin_guard(A, ok)
        A('s_nop 15')
        A('s_cbranch_vccnz %s', over)
        A('%s:', ok)
    A('v_add_u32 v%d, %d, v%d', vTT, L_EX, vTT)
    cvt8(A, 72, vAC)
    for q in range(2):
        A('ds_write_b128 v%d, %s offset:%d', vTT, v(72 + 4 * q, 4), q * 1024)
    set_stage(A, 3)
    stamp(A)
    lend = A.label('LEND')
    A('s_cmp_ge_u32 s%d, 28', sI)
    A('s_cbranch_scc1 %s', lend)
    A('v_lshlrev_b32 v%d, 2, v%d', vCA, vL)
    A('v_add_u32 v%d, %d, v%d', vTT + 2, L_EX, vO)
    wait_stage(A, C0 + 7, sleep=2)
    HELP['hot'] = bool(E('STHOT', 0))
    l5 = A.label('S5')
    A('s_cmp_eq_u32 s%d, 0', sTL)
    A('s_cbranch_scc1 %s', l5)
    for gi in (0, 2, 1, 3):
        if gi == 1:
            A('s_branch %s', lend)
            A('%s:', l5)
        wait_lp(A, ('hs', gi), 1)
        if E('STPRIO', 2) != 2:
            A('s_setprio %d', E('STPRIO', 2))
        base = L_SC0 + gi * 4096
        for q in range(7):
            A('ds_read2st64_b32 v[%d:%d], v%d offset0:%d offset1:%d', 72 + 2 * q, 73 + 2 * q, vCA,
              base // 256 + 2 * q, base // 256 + 2 * q + 1)
        A('s_waitcnt lgkmcnt(0)')
        for q in range(2, 14):
            A('v_add_f32 v%d, v%d, v%d', 72 + (q & 1), 72 + (q & 1), 72 + q)
        A('v_add_f32 v%d, v72, v73', vTT)
        ln_finish(A, vTT, vTT + 1, vNM, vRS)
        hilo_m(A, vNM, 88, vT0)
        A('v_mul_f32 v90, v%d, v%d', vTT + 1, vRS)
        A('v_mul_f32 v91, 0x%x, v%d', LOG2E ^ 0x80000000, vRS)
        A('ds_write_b128 v%d, v[88:91] offset:%d', vTT + 2, gi * 1024)
        set_stage(A, 4 + gi // 2)
    HELP['hot'] = False
    A('%s:', lend)
    A('s_waitcnt lgkmcnt(0)')
    stamp_flush(A)
    A('s_endpgm')


def refresh_routines(A):
    for w in (7, 4):
        A('REFRESH_%d:', w)
        if w == 5:
            A('ds_read_b32 v%d, v%d', vPW, vCA)
        else:
            A('ds_read_b32 v%d, v%d offset:%d', vPW, vMI, M_PW + 4 * w)
        if E('CSLP', 0):
            A('s_mov_b32 vcc_hi, s%d', CACHE[w])
        A('s_waitcnt lgkmcnt(0)')
        A('v_readfirstlane_b32 s%d, v%d', CACHE[w], vPW)
        if E('CSLP', 0):
            A('s_cmp_lg_u32 vcc_hi, s%d', CACHE[w])
            A('s_cbranch_scc1 REFD_%d', w)
            A('s_sleep %d', E('CSLP', 0))
            A('REFD_%d:', w)
        A('s_sub_u32 s%d, s%d, 1', sSPIN, sSPIN)
        A('s_cselect_b32 s%d, -1, s%d', CACHE[w], CACHE[w])
        A('s_setpc_b64 s[%d:%d]', sPC, sPC + 1)


def gen_compute(A):
    vPH, vID, vWF, vAC, vPK = 40, 48, 56, 88, 120
    vMF, vCF = 136, 140
    vE = vWF
    vAC2 = vAC + 16
    vX = vXR
    A('s_setprio %d', E('CPRIO', 1))
    rest_srds(A)
    A('s_lshl_b32 s%d, s%d, 12', sM0, sWV)
    A('v_and_b32 v%d, 31, v%d', vT0, vL)
    A('v_lshlrev_b32 v%d, 7, v%d', vTT, vT0)
    A('v_add_u32 v%d, s%d, v%d', vTT, sM0, vTT)
    A('v_bfe_u32 v%d, v%d, 1, 3', vT0, vL)
    A('v_lshrrev_b32 v%d, 5, v%d', vT1, vL)
    A('v_xor_b32 v%d, v%d, v%d', vT0, vT0, vT1)
    for q in range(4):
        A('v_xor_b32 v%d, %d, v%d', vXA + q, 2 * q, vT0)
        A('v_lshl_add_u32 v%d, v%d, 4, v%d', vXA + q, vXA + q, vTT)
    wtr_base(A)
    for r in (vSM, vSM + 1, vSQ, vSQ + 1, vMF + 2, vMF + 3, vCF + 2, vCF + 3):
        A('v_mov_b32 v%d, 0', r)
    A('s_mov_b32 s%d, 0', sHI)
    A('s_mov_b32 s%d, -1', sHI + 1)
    A('s_bitcmp1_b32 s%d, 0', sH)
    A('s_cselect_b32 s%d, 0xf, 0xf0000000', sPADL)
    A('s_mov_b32 s%d, s%d', sPADL + 1, sPADL)
    A('s_cselect_b32 s%d, -1, 0', sZA)
    A('s_mov_b32 s%d, 0', sZA + 1)
    A('s_mov_b32 s%d, 0', sZB)
    A('s_cselect_b32 s%d, 0, -1', sZB + 1)
    A('s_cselect_b64 s[%d:%d], -1, 0', sODD, sODD + 1)
    vPA = vRA
    A('v_bfe_u32 v%d, v%d, 2, 2', vT0, vL)
    A('v_lshrrev_b32 v%d, 5, v%d', vT1, vL)
    A('v_lshl_add_u32 v%d, v%d, 2, v%d', vT0, vT1, vT0)
    A('v_mul_u32_u24 v%d, 56, v%d', vT0, vT0)
    A('v_and_b32 v%d, 3, v%d', vT1, vL)
    A('v_bfe_u32 v%d, v%d, 4, 1', vTT, vL)
    A('v_lshl_add_u32 v%d, v%d, 2, v%d', vT1, vTT, vT1)
    A('v_min_u32 v%d, 6, v%d', vT1, vT1)
    A('v_lshl_add_u32 v%d, v%d, 3, v%d', vT0, vT1, vT0)
    A('s_and_b32 s%d, s%d, 1', sT, sH)
    A('s_mul_i32 s%d, s%d, 224', sT, sT)
    A('s_sub_u32 s%d, %d, s%d', sT, L_PHI, sT)
    A('v_add_u32 v%d, s%d, v%d', vPA, sT, vT0)
    tag_compute(A)

    def mm1(B, acc, i, q, swap):
        buf = vWF + 16 * (i & 1)
        xf, wf = vX + (4 * i + q) * 4, buf + 4 * q
        if swap:
            mfma(B, acc, xf, wf, i == 0 and q == 0)
        else:
            mfma(B, acc, wf, xf, i == 0 and q == 0)

    def rw2(Q, pi, i, q):
        buf = vWF + 16 * (i & 1)
        for z in range(2):
            Q.op(('w', i, q), 'ds_read_b64_tr_b16 v[%d:%d], v%d offset:%d', buf + 4 * q + 2 * z, buf + 4 * q + 2 * z + 1,
                 vWA + pi, i * 4096 + q * 1024 + z * 256)

    vXH = vXD
    for q in range(4):
        A('v_add_u32 v%d, 0x10000, v%d', vXH + q, vXA + q)
    Q = LdsQ(A)
    for i in range(7):
        if i:
            stamp(A, 'k')
        if i == 0:
            A('s_waitcnt vmcnt(0)')
        else:
            wait_lp(A, ('x', i))
        stamp(A, 'k')
        for q in range(4):
            Q.op(('x', i), 'ds_read_b128 %s, v%d offset:%d', v(vX + (4 * i + q) * 4, 4), (vXA if i < 4 else vXH) + q,
                 (i & 3) * 16384)
        if i in (1, 3):
            Q.stage((i + 1) // 2)
        wait_lp(A, ('W', 0, i))
        for q in range(4):
            if i > 0:
                Q.wait(('w', i - 1, q))
                mm1(A, vAC, i - 1, q, False)
            rw2(Q, 0, i, q)
        if i < 6:
            Q.op('pk2', 'ds_read_b128 v[%d:%d], v%d offset:%d', vTT, vTT + 3, vMI, M_PW + 16)
        Q.wait(('x', i))
        for r in range(16):
            x = vX + 16 * i + r
            A('v_dot2c_f32_bf16 v%d, s%d, v%d', vSM + (r & 1), sONES, x)
            A('v_dot2c_f32_bf16 v%d, v%d, v%d', vSQ + (r & 1), x, x)
        if i < 6:
            Q.wait('pk2')
            A('v_readfirstlane_b32 s%d, v%d', sPROG, vTT)
            A('v_readfirstlane_b32 s%d, v%d', sPROG1, vTT + 3)
    Q.stage(3)
    B = sub(A)
    B('v_add_f32 v%d, v%d, v%d', vSM, vSM, vSM + 1)
    B('v_add_f32 v%d, v%d, v%d', vSQ, vSQ, vSQ + 1)
    B('v_permlane32_swap_b32 v%d, v%d', vSM, vSQ)
    B('v_add_f32 v%d, v%d, v%d', vT0, vSM, vSQ)
    ln_finish(B, vT0, vT1, vNM, vRS)
    hilo_m(B, vNM, vMF, vT0)
    B('v_mul_f32 v%d, 0x%x, v%d', vSC, LOG2E, vRS)
    M = sub(A)
    Q.A = M
    for q in range(4):
        Q.wait(('w', 6, q))
        mm1(M, vAC, 6, q, False)
    A.lines += merge(M.lines, [[l] for l in B.lines], 0, 4)

    def cf_phi_reads():
        A('ds_read_b64 v[%d:%d], v%d', vCF, vCF + 1, vCA)
        for sidx in range(2):
            for z in range(2):
                A('ds_read_b64_tr_b16 v[%d:%d], v%d offset:%d', vPH + 4 * sidx + 2 * z, vPH + 4 * sidx + 2 * z + 1,
                  vPA, (16 * sidx + 8 * z) * 56)
        return 5
    stamp(A, 'v')
    wait_word(A, 5, 1, body=cf_phi_reads)
    stamp(A)
    stamp(A, 'v')
    A('s_waitcnt lgkmcnt(4)')

    def project(mid=None):
        mfma(A, vAC, vCF, vMF)
        if mid:
            mid()
        cvt8(A, vPK, vAC)
        mfma(A, vAC, vPH, vPK, True)
        mfma(A, vAC, vPH + 4, vPK + 4)

    def mid_k():
        A('v_and_b32 v%d, 31, v%d', vT0, vL)
        A('s_lshl_b32 s%d, s%d, 7', sT, sWV)
        A('s_add_u32 s%d, s%d, %d', sT, sT, L_RSTD)
        A('v_lshl_add_u32 v%d, v%d, 2, s%d', vT0, vT0, sT)
        A('s_waitcnt lgkmcnt(0)')
        A('ds_write_b32 v%d, v%d', vT0, vRS)
        A('v_lshrrev_b32 v%d, 5, v%d', vRA, vL)
        A('v_lshl_add_u32 v%d, v%d, 4, s%d', vRA, vRA, sT)
        for r in (0, 1):
            A('v_cndmask_b32 v%d, v%d, 0, s[%d:%d]', vPH + r, vPH + r, sZA, sZA + 1)
            A('v_cndmask_b32 v%d, v%d, 0, s[%d:%d]', vPH + 6 + r, vPH + 6 + r, sZB, sZB + 1)

    def gemm_head(B, pi):
        Q = LdsQ(B)
        wait_lp(B, ('W', pi, 0))
        for q in range(4):
            rw2(Q, pi, 0, q)
        return Q

    def gemm_part(B, acc, pi, swap, last_stage=None, Q=None):
        if Q is None:
            Q = gemm_head(B, pi)
        for i in range(7):
            if i == 6 and last_stage:
                Q.stage(last_stage)
            if pi == 1 and i in (0, 2, 4, 6):
                stamp(B, 'v')
            for q in range(4):
                Q.wait(('w', i, q))
                if q == 0:
                    Q.take(4)
                mm1(B, acc, i, q, swap)
                if i < 6:
                    if q == 0:
                        wait_lp(B, ('W', pi, i + 1))
                        if i < 5:
                            Q.peek(4)
                    rw2(Q, pi, i + 1, q)

    vOW = vXD
    A('v_add_u32 v%d, s%d, v%d', vOW, sM0, vO)
    A('v_add_u32 v%d, %d, v%d', vOW, L_KVA, vOW)
    project(mid_k)
    stamp(A, 'v')
    B = sub(A)
    softmax_pm(B, vAC, vSC, vPK, vTT)
    A.lines += B.lines[:-30]
    Q = gemm_head(A, 1)
    A.lines += B.lines[-30:]
    for q, src in enumerate((vAC, vAC + 4, vPK, vPK + 4)):
        Q.op('pw', 'ds_write_b128 v%d, %s offset:%d', vOW, v(src, 4), q * 1024)
    Q.stage(C0)
    for q in range(4):
        Q.op('rs', 'ds_read_b128 %s, v%d offset:%d', v(vAC + 4 * q, 4), vRA, q * 32)
    stamp(A, 'v')
    gemm_part(A, vAC2, 1, True, None, Q)
    stamp(A, 'v')

    def cfv_reads():
        A('ds_read_b64 v[%d:%d], v%d offset:%d', vCF, vCF + 1, vCA, 512)
        return 1
    wait_word(A, 7, 8, body=cfv_reads)
    stamp(A, 'v')
    A('s_waitcnt lgkmcnt(0)')
    mfma(A, vAC2, vMF, vCF)
    A('v_mov_b32 v%d, 0x%x', vT1, ONES)
    for r in range(0, 16, 2):
        A('v_pk_mul_f32 v[%d:%d], v[%d:%d], v[%d:%d]', vAC2 + r, vAC2 + r + 1, vAC2 + r, vAC2 + r + 1, vAC + r,
          vAC + r + 1)
    cvt8(A, vPK, vAC2)
    for r in range(8):
        A('v_cndmask_b32 v%d, v%d, v%d, s[%d:%d]', vPK + r, vPK + r, vT1, sPADL, sPADL + 1)
    for q in range(2):
        A('ds_write_b128 v%d, %s offset:%d', vOW, v(vPK + 4 * q, 4), L_KVV - L_KVA + q * 1024)
    set_stage(A, C0 + 1)
    stamp(A)
    stamp(A, 'v')
    gemm_part(A, vAC, 2, False, C0 + 3)
    vHP, vRX, vRO = 120, 48, vSM + 1

    def unpack_hp(src=120):
        for r in range(8):
            A('v_lshlrev_b32 v%d, 16, v%d', vAC + 2 * r, src + r)
            A('v_and_b32 v%d, 0xffff0000, v%d', vAC + 2 * r + 1, src + r)
    A('s_and_b32 s%d, s%d, 1', sG, sWV)
    A('s_lshr_b32 s%d, s%d, 1', sKH, sWV)
    A('s_lshl_b32 s%d, s%d, 1', sT, sTQ)
    A('s_add_u32 s%d, s%d, s%d', sG, sG, sT)
    A('v_and_b32 v%d, 31, v%d', vRO, vL)
    A('v_mul_u32_u24 v%d, 896, v%d', vRO, vRO)
    A('v_lshrrev_b32 v%d, 5, v%d', vT1, vL)
    A('v_lshl_add_u32 v%d, v%d, 4, v%d', vRO, vT1, vRO)
    A('s_mul_i32 s%d, s%d, %d', sT, sG, 32 * 896)
    A('s_lshl_b32 s%d, s%d, 7', sT2, sNB)
    A('s_add_u32 s%d, s%d, s%d', sT, sT, sT2)
    A('s_lshl_b32 s%d, s%d, 6', sT2, sKH)
    A('s_add_u32 s%d, s%d, s%d', sT, sT, sT2)
    A('v_add_u32 v%d, s%d, v%d', vRO, sT, vRO)
    for q in range(2):
        A('buffer_load_dwordx4 %s, v%d, s[%d:%d], 0 offen offset:%d', v(vRX + 4 * q, 4), vRO, SX, SX + 3, q * 32)

    def cfq_reads():
        A('ds_read_b64 v[%d:%d], v%d offset:%d', vCF, vCF + 1, vCA, 2 * 512)
        return 1
    wait_word(A, 7, 9, body=cfq_reads)
    A('s_waitcnt lgkmcnt(0)')
    project()
    softmax_pm(A, vAC, vSC, vPK, vTT)
    vQF = [vAC, vAC + 4, vPK, vPK + 4]
    stamp(A)
    vW1A = vXA
    A('v_bfe_u32 v%d, v%d, 2, 2', vT0, vL)
    A('v_lshrrev_b32 v%d, 5, v%d', vT1, vL)
    A('v_lshl_add_u32 v%d, v%d, 2, v%d', vT1, vT1, vT0)
    A('v_lshlrev_b32 v%d, 8, v%d', vW1A, vT1)
    A('v_lshlrev_b32 v%d, 7, v%d', vWA, vT1)
    A('v_xor_b32 v%d, s%d, v%d', vT0, sWV, vT0)
    A('v_lshl_add_u32 v%d, v%d, 6, v%d', vW1A, vT0, vW1A)
    A('v_bfe_u32 v%d, v%d, 4, 1', vT1, vL)
    A('v_lshlrev_b32 v%d, 5, v%d', vT1, vT1)
    A('v_and_b32 v%d, 3, v%d', vT0, vL)
    A('v_lshl_add_u32 v%d, v%d, 3, v%d', vT1, vT0, vT1)
    A('v_add_u32 v%d, v%d, v%d', vW1A, vW1A, vT1)
    A('v_add_u32 v%d, 0x8000, v%d', vW1A + 1, vW1A)
    A('v_add_u32 v%d, v%d, v%d', vWA, vWA, vT1)
    A('v_bfe_u32 v%d, v%d, 3, 1', vT1, vL)
    A('v_lshl_add_u32 v%d, v%d, 6, v%d', vWA, vT1, vWA)

    def w1_copy(c):
        wait_lp(A, ('w1', c))
        for q in range(4):
            for z in range(2):
                off = w1_slot(c) + (16 * q + 8 * z) * 256
                base = vW1A
                if off >= 0x8000:
                    off -= 0x8000
                    base += 1
                r = vXR + (4 * c + q) * 4 + 2 * z
                A('ds_read_b64_tr_b16 v[%d:%d], v%d offset:%d', r, r + 1, base, off)

    sCPD = sXB
    A('s_mov_b32 s%d, 0', sCPD)

    def try_copy(block):
        skip = A.label('NC')
        A('s_cmp_lg_u32 s%d, 0', sCPD)
        A('s_cbranch_scc1 %s', skip)
        if not block:
            ow = LP[('w1', 1)][0]
            if block is not None:
                A('ds_read_b32 v%d, v%d offset:%d', vPW + ow - 4, vMI, M_PW + 4 * ow)
                A('s_waitcnt lgkmcnt(0)')
            A('v_readfirstlane_b32 s%d, v%d', CACHE[ow], vPW + ow - 4)
            A('s_cmp_lt_u32 s%d, %d', CACHE[ow], LP[('w1', 1)][1])
            A('s_cbranch_scc1 %s', skip)
        w1_copy(0)
        w1_copy(1)
        A('s_mov_b32 s%d, 1', sCPD)
        A('v_mov_b32 v%d, 1', vT0)
        A('ds_write_b32 v%d, v%d offset:%d', vMY, vT0, M_CP)
        A('%s:', skip)
    vCS = vSQ
    NE = 4 if LATE else 5

    def try_copy2(block):
        skip = A.label('NC')
        A('s_cmp_lg_u32 s%d, 1', sCPD)
        A('s_cbranch_scc1 %s', skip)
        if not block:
            A('ds_read_b32 v%d, v%d offset:%d', vPW, vMI, M_PW + 16)
            A('s_waitcnt lgkmcnt(0)')
            A('v_readfirstlane_b32 s%d, v%d', sPROG, vPW)
            A('s_cmp_lt_u32 s%d, %d', sPROG, LP[('w1', NE - 1)][1])
            A('s_cbranch_scc1 %s', skip)
        for c in range(2, NE):
            w1_copy(c)
        A('s_mov_b32 s%d, 2', sCPD)
        A('v_mov_b32 v%d, 0', vCS)
        A('v_mov_b32 v%d, 0', vCS + 1)
        for r in range(16 * NE):
            if r == 0:
                A('s_waitcnt lgkmcnt(15)')
            if r == 32:
                A('s_waitcnt lgkmcnt(0)')
            A('v_dot2c_f32_bf16 v%d, s%d, v%d', vCS + (r & 1), sONES, vXR + r)
        A('%s:', skip)
    A('s_lshl_b32 s%d, s%d, 2', sFL, sTB)
    A('s_add_u32 s%d, s%d, s%d', sFL, sFL, sWV)
    A('s_lshl_b32 s%d, s%d, 4', sFL, sFL)
    A('s_add_u32 s%d, s%d, s%d', sFL, sFL, sH)
    A('s_lshl_b32 s%d, s%d, 11', sB, sFL)
    A('s_add_u32 s%d, s%d, %d', sB, sB, WS_OB)
    if MAP == 0:
        A('s_lshl_b32 s%d, s%d, 2', sFL, sFL)
        A('s_add_u32 s%d, s%d, %d', sFL, sFL, F2)
    else:
        A('s_lshr_b32 s%d, s%d, 3', sFL, sFL)
        A('s_lshl_b32 s%d, s%d, 10', sFL, sFL)
        A('s_and_b32 s%d, s%d, 7', sT, sH)
        A('s_lshl_b32 s%d, s%d, 2', sT, sT)
        A('s_add_u32 s%d, s%d, s%d', sFL, sFL, sT)
        A('s_add_u32 s%d, s%d, %d', sFL, sFL, F2X)
    vEX = vXD + 1
    A('v_add_u32 v%d, %d, v%d', vEX, L_EX, vO)

    def ex_reads():
        for q in range(4):
            A('ds_read_b128 %s, v%d offset:%d', v(vWF + 4 * q, 4), vEX, q * 1024)
        return 4
    lo, done = A.label('W'), A.label('WD')
    A('%s:', lo)
    A('ds_read_b128 v[%d:%d], v%d offset:%d', vPW, vPW + 3, vMI, M_PW + 16)
    A('ds_read_b32 v%d, v%d offset:%d', vPK_, vMI, M_FAST)
    ex_reads()
    A('s_waitcnt lgkmcnt(4)')
    A('v_readfirstlane_b32 s%d, v%d', sFASTF, vPK_)
    A('v_min_u32 v%d, v%d, v%d', vPW + 1, vPW + 1, vPW + 2)
    A('v_readfirstlane_b32 s%d, v%d', sT, vPW + 1)
    spin_guard(A, done)
    A('s_cmp_ge_u32 s%d, 3', sT)
    A('s_cbranch_scc1 %s', done)
    try_copy(None)
    if E('CSLP', 0):
        A('s_sleep %d', E('CSLP', 0))
    A('s_branch %s', lo)
    A('%s:', done)
    stamp(A)
    for q in range(4):
        A('s_waitcnt lgkmcnt(%d)', 3 - q)
        mfma(A, vAC2, vWF + 4 * q, vQF[q], q == 0)
    A('v_cndmask_b32 v%d, v%d, v%d, s[%d:%d]', vT0, vAC2 + 12, vAC2, sODD, sODD + 1)
    A('v_mov_b32 v%d, v%d', vT1, vT0)
    A('v_permlane32_swap_b32 v%d, v%d', vT0, vT1)
    A('v_cndmask_b32 v%d, v%d, v%d, s[%d:%d]', vTT, vT1, vT0, sODD, sODD + 1)
    A('v_add_f32 v%d, 0x%x, v%d', vTT, 0x358637bd, vTT)
    A('v_rcp_f32 v%d, v%d', vTT, vTT)
    for r in range(0, 16, 2):
        A('v_pk_mul_f32 v[%d:%d], v[%d:%d], v[%d:%d] op_sel_hi:[1,0]', vAC2 + r, vAC2 + r + 1, vAC2 + r, vAC2 + r + 1,
          vTT, vTT + 1)
    cvt8(A, vPK, vAC2)
    for r in (0, 1):
        A('v_cndmask_b32 v%d, v%d, 0, s[%d:%d]', vPK + r, vPK + r, sZA, sZA + 1)
        A('v_cndmask_b32 v%d, v%d, 0, s[%d:%d]', vPK + 6 + r, vPK + 6 + r, sZB, sZB + 1)
    pub_stores(A, [st4(vPK + 4 * q, sB, q * 1024) for q in range(2)], MAP == 0 and not WTO)
    A('s_waitcnt vmcnt(2)')
    for q in range(2):
        A('v_permlane32_swap_b32 v%d, v%d', vRX + 4 * q, vRX + 4 * q + 2)
        A('v_permlane32_swap_b32 v%d, v%d', vRX + 4 * q + 1, vRX + 4 * q + 3)
    unpack_hp(vRX)
    A('s_lshl_b32 s%d, s%d, 6', sT, sKH)
    A('v_xor_b32 v%d, s%d, v%d', vWA, sT, vWA)
    A('v_xor_b32 v%d, 64, v%d', vWA + 1, vWA)
    A('s_mul_i32 s%d, s%d, %d', sT, sKH, 224 * 128)
    A('s_add_u32 s%d, s%d, %d', sT, sT, L_A)
    A('v_add_u32 v%d, s%d, v%d', vWA + 2, sT, vWA)
    A('v_add_u32 v%d, s%d, v%d', vWA + 3, sT, vWA + 1)
    vSW, vSR, vPP = vXA + 2, vXA + 3, vSM
    A('s_and_b32 s%d, s%d, 1', sC, sWV)
    A('s_lshl_b32 s%d, s%d, 12', sC, sC)
    A('v_add_u32 v%d, s%d, v%d', vSW, sC, vO)
    A('s_cmp_eq_u32 s%d, 0', sKH)
    A('s_cselect_b32 s%d, %d, %d', sT, L_SC0 >> 12, L_SC1 >> 12)
    A('s_cselect_b32 s%d, %d, %d', sT2, L_SC1 >> 12, L_SC0 >> 12)
    A('s_lshl_b32 s%d, s%d, 12', sT, sT)
    A('s_lshl_b32 s%d, s%d, 12', sT2, sT2)
    A('v_add_u32 v%d, s%d, v%d', vSR, sT2, vSW)
    A('v_add_u32 v%d, s%d, v%d', vSW, sT, vSW)
    A('v_xor_b32 v%d, 8, v%d', vPP, vMY)
    A('s_lshl_b32 s%d, s%d, 15', sB, sG)
    A('s_lshl_b32 s%d, s%d, 14', sT, sKH)
    A('s_add_u32 s%d, s%d, s%d', sB, sB, sT)
    A('s_add_u32 s%d, s%d, %d', sB, sB, WS_OB)
    if MAP == 0:
        A('s_lshl_b32 s%d, s%d, 6', sC, sG)
        A('s_lshl_b32 s%d, s%d, 5', sT, sKH)
        A('s_add_u32 s%d, s%d, s%d', sC, sC, sT)
        A('s_add_u32 s%d, s%d, %d', sC, sC, F2)
        pub_flag(A, sFL, True)
    else:
        A('s_lshl_b32 s%d, s%d, 11', sC, sG)
        A('s_lshl_b32 s%d, s%d, 10', sT, sKH)
        A('s_add_u32 s%d, s%d, s%d', sC, sC, sT)
        A('s_lshl_b32 s%d, s%d, 7', sT, sNB)
        A('s_add_u32 s%d, s%d, s%d', sC, sC, sT)
        A('s_add_u32 s%d, s%d, %d', sC, sC, F2X)
        A('v_lshlrev_b32 v%d, 7, v%d', vT1, vL)
        if not E('NODRAIN2', 0):
            A('s_waitcnt vmcnt(0)')
        A('s_mov_b64 exec, 0x7f')
        A('buffer_store_dword v%d, v%d, s[%d:%d], s%d offen sc1', vTAG, vT1, SWS, SWS + 3, sFL)
        A('s_mov_b64 exec, -1')
    set_stage(A, C0 + 5)
    stamp(A)
    fin = A.label('FIN')
    A('s_cmp_ge_u32 s%d, 28', sI)
    A('s_cbranch_scc1 %s', fin)

    vB2 = [40 + 4 * k for k in range(8)] + [224 + 4 * k for k in range(8)]
    vWF2 = 72
    sB3, sFL3 = sODD, sODD + 1
    sBL, sFL2, sPF, sBK, sBS, sHB, sEM = 4, 5, 6, 7, 8, 9, 10
    A('s_mul_i32 s%d, s%d, %d', sB3, sTB3, 4 * 112)
    A('s_lshl_b32 s%d, s%d, 3', sT, sFB)
    A('s_add_u32 s%d, s%d, s%d', sB3, sB3, sT)
    A('s_lshl_b32 s%d, s%d, 1', sT, sWV)
    A('s_add_u32 s%d, s%d, s%d', sB3, sB3, sT)
    A('s_lshl_b32 s%d, s%d, 10', sB3, sB3)
    A('s_add_u32 s%d, s%d, %d', sB3, sB3, WS_H1B)
    A('s_add_u32 s%d, s%d, %d', sBL, sB3, 2 * 112 * 1024)
    A('s_lshl_b32 s%d, s%d, 9', sFL3, sTB3)
    A('s_lshl_b32 s%d, s%d, 4', sT, sFB)
    A('s_add_u32 s%d, s%d, s%d', sFL3, sFL3, sT)
    A('s_lshl_b32 s%d, s%d, 2', sT, sWV)
    A('s_add_u32 s%d, s%d, s%d', sFL3, sFL3, sT)
    A('s_add_u32 s%d, s%d, %d', sFL3, sFL3, F4)
    A('s_add_u32 s%d, s%d, 256', sFL2, sFL3)
    A('s_bitcmp1_b32 s%d, 0', sFB)
    A('s_cselect_b32 s%d, s%d, s%d', sT, sBL, sB3)
    A('s_cselect_b32 s%d, s%d, s%d', sBL, sB3, sBL)
    A('s_mov_b32 s%d, s%d', sB3, sT)
    A('s_cselect_b32 s%d, s%d, s%d', sT, sFL2, sFL3)
    A('s_cselect_b32 s%d, s%d, s%d', sFL2, sFL3, sFL2)
    A('s_mov_b32 s%d, s%d', sFL3, sT)
    A('s_lshl_b32 s%d, s%d, 8', sPF, sTQ)
    A('s_mul_i32 s%d, s%d, 112', sT, sKH)
    A('s_add_u32 s%d, s%d, s%d', sPF, sPF, sT)
    A('s_add_u32 s%d, s%d, %d', sPF, sPF, F4)
    A('s_mul_i32 s%d, s%d, %d', sHB, sG, 112 * 1024)
    A('s_mul_i32 s%d, s%d, %d', sT, sKH, 56 * 1024)
    A('s_add_u32 s%d, s%d, s%d', sHB, sHB, sT)
    A('s_add_u32 s%d, s%d, %d', sHB, sHB, WS_H1B + (0x40000000 if E('ABL', 0) & 64 else 0))
    blk_init(A, sBK, sBS, 's%d' % sKH)
    A('s_bitcmp1_b32 s%d, 0', sBK)
    A('s_mov_b32 s%d, 0x0f0f0f0f', sEM)
    A('s_cselect_b32 s%d, 0x00f0f0f0, s%d', sEM, sEM)
    vL4, vPF = vNM, vRS
    A('s_mov_b32 s%d, 0', CACHE[5])
    A('s_lshl_b32 s%d, s%d, 2', sT, sKH)
    A('s_add_u32 s%d, s%d, %d', sT, sT, L_MISC + M_PW + 20)
    A('v_mov_b32 v%d, s%d', vCA, sT)
    A('v_lshlrev_b32 v%d, 2, v%d', vL4, vL)

    try_copy(False)
    if E('CP2', 1):
        try_copy2(False)
    wait_lp(A, 'wo')

    def wo_row(k):
        hh = k // 2
        return 28 * hh - 4 * (hh & 1) + 16 * (k & 1)

    Q = LdsQ(A)
    LAG = E('P2LAG', 5)

    def read_wo(k, nt):
        buf = vWF2 + 8 * nt + 4 * (k & 1)
        for z in range(2):
            Q.op(('w', k, nt), 'ds_read_b64_tr_b16 v[%d:%d], v%d offset:%d', buf + 2 * z, buf + 2 * z + 1,
                 vWA + 2 + nt, (wo_row(k) + 8 * z) * 128)

    read_wo(0, 1)
    read_wo(0, 0)
    if MAP == 3 and E('SPOLL', 1):
        poll_scalar(A, sC, 8)
    else:
        poll_global(A, sC, 8)
    stamp(A)
    stamp(A, 'p2')
    sOB = sM0
    A('s_mov_b32 s%d, s%d', sOB, sB)

    def ld_o(k):
        A('buffer_load_dwordx4 %s, v%d, s[%d:%d], s%d offen offset:%d sc1', v(vB2[k], 4), vO, SWS, SWS + 3, sOB,
          (k & 3) * 1024)
        if (k & 3) == 3:
            A('s_add_u32 s%d, s%d, 4096', sOB, sOB)
    P2I = E('P2INFL', 8)
    for k in range(P2I):
        ld_o(k)
    A('s_lshl_b32 s%d, s%d, 1', sT2, sNB)
    A('s_add_u32 s%d, s%d, s%d', sT2, sT2, sKH)
    A('s_lshl_b32 s%d, s%d, 15', sB, sG)
    A('s_add_u32 s%d, s%d, %d', sB, sB, WS_HB)
    A('s_lshl_b32 s%d, s%d, 8', sC, sT2)
    A('s_add_u32 s%d, s%d, s%d', sC, sC, sB)
    A('s_lshl_b32 s%d, s%d, 11', sT, sT2)
    A('s_add_u32 s%d, s%d, s%d', sB, sB, sT)
    A('s_add_u32 s%d, s%d, 4096', sB, sB)
    A('s_lshl_b32 s%d, s%d, 2', sFL, sT2)
    A('s_lshl_b32 s%d, s%d, 6', sT, sG)
    A('s_add_u32 s%d, s%d, s%d', sFL, sFL, sT)
    A('s_add_u32 s%d, s%d, %d', sFL, sFL, F3)
    for k in range(16 + LAG):
        if k < 16:
            if k < 15:
                read_wo(k + 1, 1)
            Q.wait(('w', k, 1), min(15, P2I + k - 1) - k)
            if k % 4 == 0:
                stamp(A, 'p2')
            mfma(A, vAC + 16, vWF2 + 8 + 4 * (k & 1), vB2[k], k == 0)
            if P2I + k < 16:
                ld_o(P2I + k)
            if P2I + k == E('LDSIG', 12):
                A('v_mov_b32 v%d, 1', vT0)
                Q.op('ld', 'ds_write_b32 v%d, v%d offset:%d', vMY, vT0, M_LD)
        j = k - LAG
        if j >= 0:
            if j < 15:
                read_wo(j + 1, 0)
            Q.wait(('w', j, 0))
            mfma(A, vAC, vWF2 + 4 * (j & 1), vB2[j])
        if k == 16 and LAG >= 2:
            for q in range(4):
                Q.op('x', 'ds_write_b128 v%d, %s offset:%d', vSW, v(vAC + 16 + 4 * q, 4), q * 1024)
            Q.stage(C0 + 6)
    stamp(A)

    def exchange(st, sent=False):
        if not sent:
            for q in range(4):
                A('ds_write_b128 v%d, %s offset:%d', vSW, v(vAC + 16 + 4 * q, 4), q * 1024)
            set_stage(A, st)
        lo, done = A.label('W'), A.label('WD')
        A('%s:', lo)
        A('ds_read_b32 v%d, v%d', vPW, vPP)
        for q in range(4):
            A('ds_read_b128 %s, v%d offset:%d', v(vWF2 + 4 * q, 4), vSR, q * 1024)
        A('s_waitcnt lgkmcnt(4)')
        A('v_readfirstlane_b32 s%d, v%d', sT, vPW)
        spin_guard(A, done)
        A('s_cmp_ge_u32 s%d, %d', sT, st)
        A('s_cbranch_scc0 %s', lo)
        A('%s:', done)
        for q in range(4):
            A('s_waitcnt lgkmcnt(%d)', 3 - q)
            for r in (0, 2):
                a0 = vAC + 4 * q + r
                A('v_pk_add_f32 v[%d:%d], v[%d:%d], v[%d:%d]', a0, a0 + 1, a0, a0 + 1, vWF2 + 4 * q + r,
                  vWF2 + 4 * q + r + 1)

    stamp(A, 'p2')
    exchange(C0 + 6, LAG >= 2)
    stamp(A, 'p2')
    set_stage(A, C0 + 7)
    cvt8(A, vHP, vAC)
    pub_stores(A, [st4(vHP + 4 * q, sB, q * 1024) for q in range(2)], not WTO)
    A('v_mov_b32 v%d, 0', vTT)
    A('v_mov_b32 v%d, 0', vTT + 1)
    for r in range(8):
        A('v_dot2c_f32_bf16 v%d, s%d, v%d', vTT, sONES, vHP + r)
        A('v_dot2c_f32_bf16 v%d, v%d, v%d', vTT + 1, vHP + r, vHP + r)
    A('v_lshlrev_b32 v%d, 2, v%d', vTT + 2, vL)
    A('v_permlane32_swap_b32 v%d, v%d', vTT, vTT + 1)
    A('v_add_f32 v%d, v%d, v%d', vTT, vTT, vTT + 1)
    pub_stores(A, ['buffer_store_dword v%d, v%d, s[%d:%d], s%d offen%%s' % (vTT, vTT + 2, SWS, SWS + 3, sC)], not WTO)
    stamp(A, 'p2')
    try_copy(True)
    if not LATE:
        for c in (5, 6):
            w1_copy(c)
    stamp(A, 'p2')
    pub_flag(A, sFL, True)
    stamp(A, 'p2')
    try_copy2(True)
    stamp(A)
    if LATE:
        for c in (4, 5, 6):
            w1_copy(c)
    set_stage(A, C0 + 8)
    A('s_waitcnt lgkmcnt(0)')
    for r in range(16 * NE, 112):
        A('v_dot2c_f32_bf16 v%d, s%d, v%d', vCS + (r & 1), sONES, vXR + r)
    A('v_add_f32 v%d, v%d, v%d', vCS, vCS, vCS + 1)
    hilo_c(A, vCS, vCF, vT0)
    vBR = 40
    vE3 = 72
    vMF2, vSD = 128, 132
    A('s_mov_b32 s%d, s%d', sB, sB3)
    A('s_mov_b32 s%d, s%d', sFL, sFL3)

    def p3_epilogue(gi, packed=False):
        B = sub(A)
        acc = vAC + 16 * (gi & 1)
        e = vE3
        sd, c1 = vSD, vSD + 1
        if packed:
            pk = lambda r: 'v[%d:%d]' % (r, r + 1)
            for r in range(0, 16, 2):
                B('v_pk_mul_f32 %s, %s, %s op_sel:[0,1] op_sel_hi:[1,1]', pk(e + r), pk(acc + r), pk(sd))
            for r in range(16):
                B('v_exp_f32 v%d, v%d', e + r, e + r)
            for r in range(0, 16, 2):
                B('v_pk_fma_f32 %s, %s, %s, %s op_sel_hi:[1,0,0]', pk(e + r), pk(e + r), pk(sd), pk(sd))
            for r in range(16):
                B('v_rcp_f32 v%d, v%d', e + r, e + r)
            for r in range(0, 16, 2):
                B('v_pk_mul_f32 %s, %s, %s', pk(e + r), pk(e + r), pk(acc + r))
            cvt8(B, acc, e)
        else:
            silu8(B, acc, e, sd, c1, acc)
            silu8(B, acc + 8, e + 8, sd, c1, acc + 4)
        blocks = [[l] for l in B.lines]
        if E('ABL', 0) & 256 and not packed:
            blocks = blocks[-4:]
        B = sub(A)
        so = sB if gi < 2 else sBL
        pub_stores(B, [st4(acc + 4 * q, so, q * 1024) for q in range(2)], not WT1)
        if gi % 2 == 0:
            B('s_add_u32 s%d, s%d, %d', so, so, 112 * 1024)
        blocks.append(B.lines)
        return blocks

    def flag_load(B):
        B('s_mov_b64 exec, 0xfffffff')
        B('buffer_load_dword v%d, v%d, s[%d:%d], s%d offen sc1', vPF, vL4, SWS, SWS + 3, sPF)
        B('s_mov_b64 exec, -1')

    def flag_check(mask):
        def slow(B, back):
            lo = B.label('P')
            B('%s:', lo)
            flag_load(B)
            B('s_waitcnt vmcnt(0)')
            B('v_cmp_ne_u32 vcc, s%d, v%d', sTAG, vPF)
            spin_guard(B, back)
            B('s_and_b32 s%d, vcc_lo, %s', sT, mask)
            B('s_cbranch_scc1 %s', lo)
        ent, back = cold_block(A, slow)
        A('v_cmp_ne_u32 vcc, s%d, v%d', sTAG, vPF)
        A('s_and_b32 s%d, vcc_lo, %s', sT, mask)
        A('s_cbranch_scc1 %s', ent)
        A('%s:', back)

    PRE = E('P3PRE', 6)
    vHB = vXD + 2
    A('v_add_u32 v%d, %d, v%d', vHB, L_A, vO)
    A('v_add_u32 v%d, %d, v%d', vHB + 1, 65536, vO)
    Q = LdsQ(A)

    def chk(n):
        gi, k = divmod(n, 28)
        if gi == 0 and E('P3RAMP', 0):
            return k // 4 if k % 4 == 0 else None
        if gi == 0:
            return {0: 1, 8: 3, 16: 5, 24: 6}.get(k)
        return {0: 1, 8: 3, 16: 6}.get(k)

    def rd(n):
        gi, k = divmod(n, 28)
        if n + 1 < 112 and chk(n + 1) is not None:
            Q.take(7)
        if chk(n) is not None:
            wait_lp(Q.A, ('h', gi, chk(n)))
        Q.op(('b', n), 'ds_read_b128 %s, v%d offset:%d', v(vBR + 4 * (n % 8), 4), (vHB, vHB, vO, vHB + 1)[gi],
             (28672 if gi == 1 else 0) + k * 1024)
        if k == 27:
            Q.stage(C0 + 9 + gi)
        ramp = E('P3RAMP', 0) and n < 20
        nn = n + (4 if ramp else E('P3PK', PRE + 2))
        if nn < 112 and chk(nn) is not None and not Q.peeked and (ramp or nn >= 28 or not E('P3RAMP', 0)):
            Q.peek(7)

    stamp(A, 'p2')
    nrd = [0]

    def rd_upto(n):
        while nrd[0] <= min(n, 111):
            rd(nrd[0])
            nrd[0] += 1
    rd_upto(2)
    for gi in range(4):
        acc = vAC + 16 * (gi & 1)
        M = sub(A)
        Q.A = M
        for k in range(28):
            n = 28 * gi + k
            rd_upto(n + (PRE if not E('P3RAMP', 0) else 3 if n < 22 else min(PRE, 3 + (n - 21))))
            if k == 16:
                Q.op('s6', 'ds_read_b128 v[%d:%d], v%d offset:%d', vTT, vTT + 3, vMI, M_PW + 16)
                Q.op('sf', 'ds_read_b128 %s, v%d offset:%d', v(vMF2, 4), vEX, gi * 1024)
            if k == 24:
                Q.wait('sf')
                M('v_readfirstlane_b32 s%d, v%d', sPROG, vTT)
                M('v_readfirstlane_b32 s%d, v%d', sC, vTT + LP[('st', gi)][0] - 4)

                def st_slow(B, back):
                    def st_read():
                        B('ds_read_b128 %s, v%d offset:%d', v(vMF2, 4), vEX, gi * 1024)
                        return 0
                    wait_word(B, LP[('st', gi)][0], LP[('st', gi)][1], body=st_read)
                ent, back = cold_block(M, st_slow)
            if k == 25:
                M('s_cmp_ge_u32 s%d, %d', sC, LP[('st', gi)][1])
                M('s_cbranch_scc0 %s', ent)
                M('%s:', back)
                M('v_mov_b32 v%d, v%d', vMF, vMF2)
                M('v_mov_b32 v%d, v%d', vMF + 1, vMF2 + 1)
            if k % 2 == 0:
                Q.wait(('b', n + 1))
            if k in (0, 12):
                stamp(M, 'p3')
            if gi == E('P33', 3) and k % 2 == 0 and k:
                stamp(M, 'p33')
            if gi == 3 and k == E('P3FLAGK', 11):
                pub_flag(M, sFL, True)
            if gi == 3 and k == 25:
                flag_load(M)
            mfma(M, acc, vXR + 4 * k, vBR + 4 * (n % 8), k == 0)
        mfma(M, acc, vCF, vMF)
        M('v_mov_b32 v%d, v%d', vSD, vMF2 + 2)
        M('v_mov_b32 v%d, v%d', vSD + 1, vMF2 + 3)
        A.lines += merge(M.lines, p3_epilogue(gi - 1) if gi > 0 else [], 1, E('P3STOP2', 27) if gi == 2 else 27)
        if gi == 0:
            stamp(A)
        stamp(A, 'p3')
    stamp(A)
    NB = 16
    vWF4 = 40
    vAP = vXR + 48

    def w2_base(c):
        A('s_cmp_eq_u32 s%d, 0', sKH)
        A('s_cselect_b32 s%d, %d, %d', sT, w2_slot(2 * c) >> 12, w2_slot(2 * c + 1) >> 12)
        A('s_lshl_b32 s%d, s%d, 12', sT, sT)
        A('v_add_u32 v%d, s%d, v%d', vWA + 2, sT, vWA)
        A('v_add_u32 v%d, s%d, v%d', vWA + 3, sT, vWA + 1)

    Q = LdsQ(A)

    def abuf(k):
        return vWF4 + 8 * (k & 3)

    def read_w2(k):
        if k % 4 == 3 and k < 52:
            Q.take(LP[('w2', 2 * (k // 4) + 3)][0])
        if k % 4 == 0:
            wait_lp(A, ('w2', 2 * (k // 4) + 1))
            w2_base(k // 4)
        buf = abuf(k)
        for nt in range(2):
            for z in range(2):
                Q.op(('w', k), 'ds_read_b64_tr_b16 v[%d:%d], v%d offset:%d', buf + 4 * nt + 2 * z,
                     buf + 4 * nt + 2 * z + 1, vWA + 2 + nt, ((k % 4) * 16 + 8 * z) * 128)
        if k % 4 == 0 and k < 52:
            Q.peek(LP[('w2', 2 * (k // 4) + 3)][0])
        if k % 4 == 3 and (k // 4) <= 5:
            Q.stage(C0 + 13 + k // 4)

    vq = []

    def vm_need(tag):
        i = max(j for j, x in enumerate(vq) if x == tag)
        return len(vq) - 1 - i

    def issue_b(k):
        if k % 8 == 0:
            A('s_lshl_b32 s%d, s%d, 13', sM0, sBK)
            A('s_add_u32 s%d, s%d, s%d', sM0, sM0, sHB)
            blk_next(A, sBK, sBS)
        A('buffer_load_dwordx4 %s, v%d, s[%d:%d], s%d offen offset:%d%s', v(vXR + 4 * (k % NB), 4), vO, SWS, SWS + 3,
          sM0, (k & 3) * 1024, LDB)
        vq.append(('b', k))
        if k % 8 == 3:
            A('s_add_u32 s%d, s%d, 4096', sM0, sM0)

    INFL = E('P4INFL', 10)
    assert INFL < NB
    A('s_waitcnt vmcnt(2)')
    flag_check('s%d' % sEM)
    stamp(A)
    issued = E('P4PRE', 8)
    for k in range(issued):
        issue_b(k)
    for b in p3_epilogue(3, True):
        A.lines += b
    vq += ['st', 'st']
    read_w2(0)
    read_w2(1)
    while issued < INFL:
        issue_b(issued)
        issued += 1
    unpack_hp()
    stamp(A)
    KF, KL, KC = E('P4KF', 3), E('P4KL', 9), E('P4KC', 14)
    pend = False
    for k in range(56):
        if k + 2 < 56:
            read_w2(k + 2)
        need = vm_need(('b', k))
        if k == KF:
            need = min(need, vm_need('st'))
        if k == KC:
            need = min(need, vm_need('pf'))
        Q.wait(('w', k), need)
        if k % 4 == 0 and k:
            stamp(A, 'p4')
        buf = abuf(k)
        mfma(A, vAC + 16, buf + 4, vXR + 4 * (k % NB), k == 0)
        if k == KF:
            pub_flag(A, sFL2, True, False)
            vq.append('fl')
        if k == KL:
            flag_load(A)
            vq.append('pf')
        if k == KC:
            flag_check('0xfffffff')
            pend = True
        for _ in range(2):
            if issued < min(56, k + 1 + INFL) and (issued < 24 or pend):
                issue_b(issued)
                issued += 1
        mfma(A, vAC, buf, vXR + 4 * (k % NB))
    stamp(A)
    exchange(C0 + 27)
    cvt8(A, vHP, vAC)
    for q in range(2):
        A('v_permlane32_swap_b32 v%d, v%d', vHP + 4 * q, vHP + 4 * q + 2)
        A('v_permlane32_swap_b32 v%d, v%d', vHP + 4 * q + 1, vHP + 4 * q + 3)
    for q in range(2):
        A('buffer_store_dwordx4 %s, v%d, s[%d:%d], 0 offen offset:%d', v(vHP + 4 * q, 4), vRO, SOUT, SOUT + 3, q * 32)
    A('s_or_b32 s%d, s2, s%d', sT, sWV)
    A('s_cmp_lg_u32 s%d, 0', sT)
    A('s_cbranch_scc1 %s', fin)
    A('s_mov_b32 s%d, %d', sT, FEP)
    A('s_mov_b64 exec, 1')
    A('buffer_store_dword v%d, v%d, s[%d:%d], s%d offen', vTAG, vO, SWS, SWS + 3, sT)
    A('s_mov_b64 exec, -1')
    A('%s:', fin)
    if E('PADTO', 0):
        lo = A.label('PAD')
        A('s_waitcnt vmcnt(0) lgkmcnt(0)')
        A('s_mov_b32 s6, %d', E('PADTO', 0))
        if PROBE >= 0:
            A('s_sub_u32 s7, s56, s84')
            A('s_lshl_b32 s7, s7, 2')
            A('s_cmp_ge_u32 s%d, 28', sI)
            A('s_cselect_b32 s7, 0, s7')
            A('s_add_u32 s6, s6, s7')
        A('%s:', lo)
        A('s_memrealtime s[4:5]')
        A('s_waitcnt lgkmcnt(0)')
        A('s_sub_u32 s4, s4, s84')
        A('s_cmp_lt_u32 s4, s6')
        A('s_cbranch_scc1 %s', lo)
    stamp_flush(A)


def gen():
    A = Asm()
    name = NAME + '_kernel'
    A.lines += ['.p2align 8', '.globl %s' % name, '.type %s,@function' % name, '%s:' % name]
    end = A.label('END')
    if E('PADTO', 0):
        A('s_memrealtime s[84:85]')
    A('s_load_dwordx16 s[64:79], s[0:1], 0')
    A('s_load_dwordx2 s[80:81], s[0:1], 72')
    A('s_getpc_b64 s[%d:%d]', sPC, sPC + 1)
    A('s_cmp_ge_u32 s2, 256')
    A('s_cbranch_scc1 %s', end)
    assert MAP == 0
    A('s_and_b32 s%d, s2, 7', sXCD)
    A('s_lshr_b32 s%d, s2, 3', sI)
    A('v_lshrrev_b32 v%d, 6, v0', vMY)
    A('v_and_b32 v%d, 63, v0', vL)
    A('s_and_b32 s%d, s%d, 1', sTB, sI)
    A('s_lshl1_add_u32 s%d, s%d, s%d', sTB, sXCD, sTB)
    A('v_readfirstlane_b32 s%d, v%d', sWV, vMY)
    A('s_add_u32 s%d, s%d, s%d', sC0, sXCD, sI)
    A('s_mul_i32 s%d, s%d, 37', sT, sC0)
    A('s_lshr_b32 s%d, s%d, 8', sT, sT)
    A('s_mul_i32 s%d, s%d, 7', sT, sT)
    A('s_sub_u32 s%d, s%d, s%d', sC0, sC0, sT)
    x_offsets(A)
    A('s_mul_i32 s%d, s%d, %d', sT2, sWV, 32 * 896)
    A('s_lshl_b32 s%d, s%d, 7', sT, sC0)
    A('s_add_u32 s%d, s%d, s%d', sT, sT, sXB)
    A('s_add_u32 s%d, s%d, s%d', sT, sT, sT2)
    A('s_lshl_b32 m0, s%d, 12', sWV)
    A('s_mov_b32 s%d, 0x%x', SX + 2, 0 if E('ABL', 0) & 16 else S * D * 2)
    A('s_mov_b32 s%d, 0x20000', SX + 3)
    nok = A.label('NOK')
    A('s_cmp_ge_u32 s%d, 4', sWV)
    A('s_waitcnt lgkmcnt(0)')
    A('s_mov_b32 s%d, s64', SX)
    A('s_mov_b32 s%d, s65', SX + 1)
    A('s_cbranch_scc1 %s', nok)
    for u in range(4):
        A('buffer_load_dwordx4 v%d, s[%d:%d], s%d offen offset:%d lds', vXD + u, SX, SX + 3, sT, u * 1024)
    A('%s:', nok)
    srd(A, SW, 66, 0 if E('ABL', 0) & 8 else D * 3 * D * 2)
    WT = E('WT', 0)
    if WT:
        now = A.label('NOW')
        A('s_sub_u32 s%d, s%d, 4', sT, sWV)
        A('s_cmp_ge_u32 s%d, %d', sT, WT)
        A('s_cbranch_scc1 %s', now)
        A('s_add_u32 s%d, s%d, 1', sT, sT)
        A('s_cmp_eq_u32 s%d, 3', sT)
        A('s_cselect_b32 s%d, 0, s%d', sT, sT)
        A('s_mul_i32 s%d, s%d, 896', sT, sT)
        A('s_mul_i32 s%d, s%d, %d', sT2, sI, 14 * 2688)
        A('s_add_u32 s%d, s%d, s%d', sT, sT, sT2)
        A('s_add_u32 s%d, s%d, %d', sT2, sT, 7 * 2688)
        A('v_lshrrev_b32 v%d, 3, v%d', vT0, vL)
        A('v_mul_u32_u24 v%d, 2688, v%d', vT0, vT0)
        A('v_and_b32 v%d, 7, v%d', vT1, vL)
        A('v_lshl_add_u32 v%d, v%d, 7, v%d', vT0, vT1, vT0)
        A('s_mov_b32 exec_lo, 0x7f7f7f7f')
        A('s_mov_b32 exec_hi, 0x007f7f7f')
        A('buffer_load_dword v38, v%d, s[%d:%d], s%d offen', vT0, SW, SW + 3, sT)
        A('buffer_load_dword v39, v%d, s[%d:%d], s%d offen', vT0, SW, SW + 3, sT2)
        A('s_mov_b64 exec, -1')
        A('%s:', now)
    perm = [2, 4, 6, 9, 11, 13, 0, 1, 3, 5, 7, 8, 10, 12, 14, 15]
    lo = sum(perm[i] << (4 * i) for i in range(8))
    hi = sum(perm[8 + i] << (4 * i) for i in range(8))
    A('s_mov_b32 s%d, 0x%x', sHI, lo)
    A('s_mov_b32 s%d, 0x%x', sHI + 1, hi)
    A('s_lshr_b32 s%d, s%d, 1', sT, sI)
    A('s_lshl_b32 s%d, s%d, 2', sT, sT)
    A('s_lshr_b64 s[%d:%d], s[%d:%d], s%d', sHI, sHI + 1, sHI, sHI + 1, sT)
    A('s_and_b32 s%d, s%d, 15', sH, sHI)
    A('v_lshlrev_b32 v%d, 2, v%d', vMY, vMY)
    A('v_add_u32 v%d, %d, v%d', vMY, L_MISC, vMY)
    A('v_mov_b32 v%d, 0', vT0)
    A('ds_write2st64_b32 v%d, v%d, v%d offset0:0 offset1:1', vMY, vT0, vT0)
    A('ds_write2_b32 v%d, v%d, v%d offset0:%d offset1:%d', vMY, vT0, vT0, M_FAST // 4, M_CP // 4)
    w_offsets(A)
    A('v_mov_b32 v%d, %d', vMI, L_MISC)
    A('s_mov_b32 s%d, 0x400000', sSPIN)
    A('s_mov_b32 s%d, 0', sPROG)
    A('s_mov_b32 s%d, 0', sPROG1)
    A('s_waitcnt lgkmcnt(0)')
    A('s_barrier')
    _st['n'] = 0
    stamp(A, 'all')
    if STAMPS:
        A('s_memrealtime s[86:87]')
    for i in range(7):
        LP[('x', i)] = (7, 1 + i)
    hn = [9]
    for gi in range(4):
        us = E('HSPOS', 3) if gi == 0 else 0
        LP[('st', gi)] = (6 - (gi & 1), 4 + gi // 2)
        for q in range(7):
            if q in HITEMS[gi > 0]:
                hn[0] += 1
                LP[('h', gi, q)] = (7, hn[0])
            if q == us:
                hn[0] += 1
                LP[('hs', gi)] = (7, hn[0])
    for pi in range(3):
        for i in range(7):
            LP[('W', pi, i)] = (4, 7 * pi + i + 1)
    l0, l1, l2, lw, lc = A.label('H0'), A.label('H1'), A.label('H23'), A.label('EW'), A.label('EC')
    A('s_cmp_eq_u32 s%d, 4', sWV)
    A('s_cbranch_scc1 %s', lw)
    A('s_cmp_lg_u32 s%d, 7', sWV)
    A('s_cbranch_scc1 %s', lc)
    HELP['on'] = True
    nst = {}
    prio(A, 1)
    _st['n'] = 1
    early_x(A)
    nst[l1] = _st['n']
    A('s_branch %s', l1)
    A('%s:', lw)
    prio(A, 1)
    _st['n'] = 1
    early_w(A)
    nst[l0] = _st['n']
    nst[l2] = 1
    A('s_branch %s', l0)
    refresh_routines(A)
    A('%s:', lc)
    A('s_cmp_ge_u32 s%d, 5', sWV)
    A('s_cbranch_scc1 %s', l2)
    parts = {}
    for lab, fn in ((l0, gen_h0), (l1, gen_h1), (l2, gen_h23)):
        B = sub(A)
        B('%s:', lab)
        B('s_nop 4')
        HELP['on'] = True
        prio(B, 1)
        _st['n'] = nst[lab]
        fn(B)
        HELP['on'] = False
        parts[lab] = B.lines
    _st['n'] = 1
    gen_compute(A)
    A('%s:', end)
    A('s_endpgm')
    for lab in (l0, l1, l2):
        A.lines += parts[lab]
    A.lines += COLD
    return A, name


def main():
    out = sys.argv[1] if len(sys.argv) > 1 else 'cdna_kernels/%s.s' % NAME
    A, name = gen()
    lines, nn = fix_hazards(A.lines)
    hdr = ['; generated by gen/gen14.py (hand-written generator script)',
           '; @launch grid=(256,1,1) block=(512,1,1) lds=%d' % LDS_SIZE,
           '.amdgcn_target "amdgcn-amd-amdhsa--gfx950"', '.text']
    tail = ['.p2align 8', '.fill 2048, 4, 0xbf800000', '.section .rodata,"a"', '.p2align 6', '''.amdhsa_kernel %s
  .amdhsa_next_free_vgpr 256
  .amdhsa_next_free_sgpr 102
  .amdhsa_accum_offset 256
  .amdhsa_group_segment_fixed_size 0
  .amdhsa_kernarg_size 80
  .amdhsa_user_sgpr_count 2
  .amdhsa_user_sgpr_kernarg_segment_ptr 1
  .amdhsa_system_sgpr_workgroup_id_x 1
  .amdhsa_float_denorm_mode_32 3
  .amdhsa_float_denorm_mode_16_64 3
.end_amdhsa_kernel''' % name]
    open(out, 'w').write('\n'.join(hdr + lines + tail) + '\n')
    print('wrote', out, 'lines', len(lines), 'nops', nn)


if __name__ == '__main__':
    main()
```

```python
import sys
import os
sys.path.insert(0, os.path.dirname(os.path.abspath(__file__)))
from asmlib import Asm, fix_hazards, v

NAME = 'sequential_preLN__linear_kernel_hedgehog__dense_activation_silu__prompt'
S, D, H, DH, F = 2048, 448, 16, 28, 1792
MB = 1 << 20
E = lambda k, d: int(os.environ.get(k, d))
STAMPS = E('STAMPS', 0)
MAP = E('MAP', 0)
FAST = E('FAST', 1)
CODEPF = E('CODEPF', 1)
WARM = E('WARM', 0)
WT1 = E('WT1', 0)
WTO = E('WTO', 0)
TOUCHAT = E('TOUCHAT', 2)
LDB = (' sc1', '', ' nt')[E('LDB', 0)]
HLATE = E('HLATE', 1)
WS_KVP = 0
WS_OB = 2 * MB
WS_HB = 4 * MB
WS_H1B = 8 * MB
WS_FLG = 16 * MB
F1, F2, F3, F4, FREG, FEP = WS_FLG + 0x10000, WS_FLG + 0x1000, WS_FLG + 0x3000, WS_FLG + 0x70000, WS_FLG + 0x9000, WS_FLG + 0xA000
F2X = WS_FLG + 0x40000
WS_STAMP = 17 * MB
WS_SIZE = 18 * MB
LOG2E = 0x3fb8aa3b
ONES = 0x3f803f80
MFMA = 'v_mfma_f32_32x32x16_bf16'
L_X = 0
L_WP = (114688, 0, 32768)
L_KVA, L_KVV = 65536, 81920
L_A = 98304
L_SC0, L_SC1 = 49152, 57344
L_XRES = L_SC0
B16 = (0, 16384, 65536, 81920, 32768)
L_PHI, L_EX, L_CF, L_MISC = 159744 - 2048 + 2048 + 1536, 155648, 159744, 163328
LDS_SIZE = 163840
M_PW, M_FAST, M_CP, M_LD = 0, 64, 96, 256
L_RSTD = L_EX

SX, SW, SP, SWS, SWO, SW1, SW2, SOUT = 12, 16, 20, 24, 28, 32, 36, 40
sTB, sH, sWV, sC0, sPROG, sT, sT2, sONES, sC, sTAG, sFASTF, sI, sXCD = 44, 45, 46, 47, 48, 49, 50, 51, 52, 53, 54, 55, 3
sHI, sPADL, sZA, sZB, sODD, sPC = 4, 6, 8, 10, 92, 94
sTQ, sNB, sTB3, sFB, sG, sKH, sB, sXB, sM0, sSPIN = 96, 97, 98, 99, 100, 101, 88, 89, 91, 90
sPROG1, sFL = 0, 1
vL, vMI, vT0, vT1, vO = 1, 2, 3, 4, 5
vTAG, vMY = 6, 7
vTT = 8
vXA = 12
vWA = 16
vSM, vSQ = 20, 22
vNM, vRS, vSC, vRA = 24, 25, 26, 27
vXD = 28
vPW = 32
vCA = 36
vXR = 144
vPK_ = 37
CACHE = {4: sPROG, 7: sPROG1, 5: sC0}

_st = {'n': 0}
C0 = 4
HELP = {'on': False}


def prio(A, hi):
    if HELP['on'] and E('HPRIO', 2) and not HELP.get('hot'):
        A('s_setprio %d', E('HPRIO', 2) if hi else 0)
LP = {}


STSET = os.environ.get('STSET', 'main')


DBGT = E('DBGT', 0)


PROBE = E('PROBE', -1)


def stamp(A, tag='main'):
    if PROBE >= 0:
        if not HELP['on'] and tag in ('main', 'all'):
            if _st['n'] == PROBE:
                A('s_memrealtime s[56:57]')
            _st['n'] += 1
        return
    if DBGT and not HELP['on'] and tag in ('main', 'all'):
        A('s_memrealtime s[%d:%d]', 56 + 2 * _st['n'], 57 + 2 * _st['n'])
        _st['n'] += 1
        return
    if STAMPS and STSET == 'clk' and tag == 'main' and not HELP['on']:
        _st['m'] = _st.get('m', 0) + 1
        if _st['m'] in (1, 2, 4, 8, 10, 13):
            A('s_memtime s[%d:%d]', 56 + 2 * _st['n'], 57 + 2 * _st['n'])
            A('s_memrealtime s[%d:%d]', 58 + 2 * _st['n'], 59 + 2 * _st['n'])
            _st['n'] += 2
        return
    if STAMPS and (tag == STSET or tag == 'all' or (HELP['on'] and tag == 'main')):
        assert _st['n'] < 15, 'too many stamps'
        A('s_memtime s[%d:%d]', 56 + 2 * _st['n'], 57 + 2 * _st['n'])
        _st['n'] += 1


def stamp_flush(A):
    if DBGT and not HELP['on']:
        A('s_waitcnt vmcnt(0)')
        stamp(A, 'all')
        skip = A.label('DS')
        A('s_waitcnt vmcnt(0) lgkmcnt(0)')
        A('s_cmp_ge_u32 s%d, 28', sI)
        A('s_cbranch_scc1 %s', skip)
        A('s_mov_b64 exec, 1')
        A('v_mov_b32 v1, 0')
        A('s_not_b32 s4, s56')
        A('v_mov_b32 v2, s4')
        A('global_atomic_umax v1, v2, s[86:87] offset:60')
        for i in range(_st['n']):
            A('v_mov_b32 v%d, s%d', 8 + i, 56 + 2 * i)
            A('global_atomic_umax v1, v%d, s[86:87] offset:%d', 8 + i, 4 * i)
        A('%s:', skip)
        return
    if STAMPS:
        A('s_waitcnt vmcnt(0)')
        stamp(A, 'all')
        A('s_memrealtime s[4:5]')
        A('s_waitcnt vmcnt(0) lgkmcnt(0)')
        A('s_sub_u32 s4, s4, s86')
        A('s_lshl_b32 s4, s4, 20')
        A('s_and_b32 s86, s86, 0xfffff')
        A('s_or_b32 s86, s86, s4')
        A('s_lshl_b32 s%d, s2, 3', sT)
        A('s_add_u32 s%d, s%d, s%d', sT, sT, sWV)
        A('s_lshl_b32 s%d, s%d, 6', sT, sT)
        A('s_add_u32 s%d, s%d, %d', sT, sT, WS_STAMP)
        A('s_mov_b64 exec, 1')
        A('v_mov_b32 v1, 0')
        for i in range(16):
            if i < _st['n']:
                A('v_mov_b32 v2, s%d', 56 + 2 * i)
            elif i == 15:
                A('v_mov_b32 v2, s86')
            else:
                A('v_mov_b32 v2, 0')
            A('buffer_store_dword v2, v1, s[%d:%d], s%d offen offset:%d', SWS, SWS + 3, sT, 4 * i)
            A('s_nop 1')


def srd(A, d, ptr, size):
    A('s_mov_b32 s%d, s%d', d, ptr)
    A('s_and_b32 s%d, s%d, 0xffff', d + 1, ptr + 1)
    A('s_mov_b32 s%d, 0x%x', d + 2, size)
    A('s_mov_b32 s%d, 0x20000', d + 3)


COLD = []


def cold_block(A, fn):
    ent, back = A.label('CE'), A.label('CB')
    B = sub(A)
    B('%s:', ent)
    B('s_nop 15')
    fn(B, back)
    B('s_nop 7')
    B('s_branch %s', back)
    COLD.extend(B.lines)
    return ent, back


def again(A, br, lo, sleep=0):
    slp = max(sleep * E('SLPMUL', 1), E('HSLP', 0) if HELP['on'] else E('CSLP', 0))
    if slp:
        st = A.label('ZZ')
        COLD.extend(['%s:' % st, '  s_sleep %d' % slp, '  s_branch %s' % lo])
        lo = st
    A('%s %s', br, lo)


def spin_guard(A, done):
    A('s_sub_u32 s%d, s%d, 1', sSPIN, sSPIN)
    A('s_cbranch_scc1 %s', done)


def wait_word(A, w, n, cache=None, sleep=0, body=None):
    sd = sT if cache is None else cache

    def loop(B, done, body=None):
        lo = B.label('W')
        prio(B, 0)
        B('%s:', lo)
        B('ds_read_b32 v%d, v%d offset:%d', vPW, vMI, M_PW + 4 * w)
        k = body() if body else 0
        B('s_waitcnt lgkmcnt(%d)', k)
        B('v_readfirstlane_b32 s%d, v%d', sd, vPW)
        spin_guard(B, done)
        B('s_cmp_ge_u32 s%d, %d', sd, n)
        again(B, 's_cbranch_scc0', lo, sleep)
        prio(B, 1)
    if cache is not None and body is None and not HELP['on']:
        A('s_getpc_b64 s[%d:%d]', sPC, sPC + 1)
        A('s_cmp_ge_u32 s%d, %d', sd, n)
        A('s_cbranch_scc0 REFRESH_%d', w)
        return
    done = A.label('WD')
    if cache is not None and body is None:
        A('s_cmp_ge_u32 s%d, %d', sd, n)
        A('s_cbranch_scc1 %s', done)
    loop(A, done, body)
    A('%s:', done)


def wait_lp(A, name, sleep=0):
    w, n = LP[name]
    wait_word(A, w, n, CACHE[w], sleep)


def set_stage(A, n):
    A('v_mov_b32 v%d, %d', vT0, n)
    A('ds_write_b32 v%d, v%d', vMY, vT0)


def wait_stage(A, n, which=(0, 1, 2, 3), body=None, sleep=0, base=M_PW):
    lo, done = A.label('W'), A.label('WD')
    prio(A, 0)
    A('%s:', lo)
    A('ds_read_b128 v[%d:%d], v%d offset:%d', vPW, vPW + 3, vMI, base + 16 * (which[0] // 4))
    k = body() if body else 0
    A('s_waitcnt lgkmcnt(%d)', k)
    w = [x % 4 for x in which]
    if len(w) == 4:
        A('v_min3_u32 v%d, v%d, v%d, v%d', vPW, vPW, vPW + 1, vPW + 2)
        A('v_min_u32 v%d, v%d, v%d', vPW, vPW, vPW + 3)
        r = vPW
    else:
        A('v_min_u32 v%d, v%d, v%d', vPW + w[0], vPW + w[0], vPW + w[1])
        r = vPW + w[0]
    A('v_readfirstlane_b32 s%d, v%d', sT, r)
    spin_guard(A, done)
    A('s_cmp_ge_u32 s%d, %d', sT, n)
    again(A, 's_cbranch_scc0', lo, sleep)
    A('%s:', done)
    prio(A, 1)


def poll_global(A, soff, nlanes):
    lo, done = A.label('P'), A.label('PD')
    A('v_lshlrev_b32 v%d, 2, v%d', vT1, vL)
    if nlanes <= 32:
        A('s_mov_b64 exec, 0x%x', (1 << nlanes) - 1)
    else:
        A('s_mov_b32 exec_lo, 0x%x', nlanes & 0xffffffff)
        A('s_mov_b32 exec_hi, 0x%x', nlanes >> 32)
    A('%s:', lo)
    A('buffer_load_dword v%d, v%d, s[%d:%d], s%d offen sc1', vT0, vT1, SWS, SWS + 3, soff)
    A('s_waitcnt vmcnt(0)')
    A('v_cmp_ne_u32 vcc, s%d, v%d', sTAG, vT0)
    spin_guard(A, done)
    A('s_cbranch_vccnz %s', lo)
    A('%s:', done)
    A('s_mov_b64 exec, -1')


def poll_scalar(A, soff, n):
    lo, done = A.label('P'), A.label('PD')
    A('s_add_u32 s%d, s%d, s%d', sPC, SWS, soff)
    A('s_addc_u32 s%d, s%d, 0', sPC + 1, SWS + 1)
    base = 76
    assert n == 8
    A('%s:', lo)
    if E('PSLEEP', 0):
        A('s_sleep %d', E('PSLEEP', 0))
    A('s_load_dwordx%d s[%d:%d], s[%d:%d], 0 glc', n, base, base + n - 1, sPC, sPC + 1)
    A('s_waitcnt lgkmcnt(0)')
    A('s_and_b64 s[%d:%d], s[%d:%d], s[%d:%d]', sHI, sHI + 1, base, base + 1, base + 2, base + 3)
    A('s_or_b64 s[%d:%d], s[%d:%d], s[%d:%d]', sPADL, sPADL + 1, base, base + 1, base + 2, base + 3)
    for k in range(4, n, 2):
        A('s_and_b64 s[%d:%d], s[%d:%d], s[%d:%d]', sHI, sHI + 1, sHI, sHI + 1, base + k, base + k + 1)
        A('s_or_b64 s[%d:%d], s[%d:%d], s[%d:%d]', sPADL, sPADL + 1, sPADL, sPADL + 1, base + k, base + k + 1)
    A('s_and_b32 s%d, s%d, s%d', sHI, sHI, sHI + 1)
    A('s_or_b32 s%d, s%d, s%d', sPADL, sPADL, sPADL + 1)
    A('s_xor_b32 s%d, s%d, s%d', sHI, sHI, sTAG)
    A('s_xor_b32 s%d, s%d, s%d', sPADL, sPADL, sTAG)
    spin_guard(A, done)
    A('s_or_b32 s%d, s%d, s%d', sHI, sHI, sPADL)
    A('s_cbranch_scc1 %s', lo)
    A('%s:', done)


def two_ways(A, fn, local):
    if local and FAST:
        ent, back = cold_block(A, lambda B, back: fn(B, ' sc1'))
        A('s_cmp_eq_u32 s%d, 0', sFASTF)
        A('s_cbranch_scc1 %s', ent)
        fn(A, '')
        A('%s:', back)
    else:
        fn(A, ' sc1')


def pub_stores(A, stores, local):
    def fn(B, bits):
        for st in stores:
            B(st % bits)
    two_ways(A, fn, local)


def pub_flag(A, sflag, local, drain=True):
    if drain:
        A('s_waitcnt vmcnt(0)')
    A('s_mov_b64 exec, 1')
    two_ways(A, lambda B, bits: B('buffer_store_dword v%d, v%d, s[%d:%d], s%d offen%s', vTAG, vO, SWS, SWS + 3, sflag,
                                  bits), local)
    A('s_mov_b64 exec, -1')


def pub_flag4(A):
    A('v_lshlrev_b32 v%d, 9, v%d', vT1, vL)
    A('s_waitcnt vmcnt(0)')
    A('s_mov_b64 exec, 15')
    two_ways(A, lambda B, bits: B('buffer_store_dword v%d, v%d, s[%d:%d], s%d offen%s', vTAG, vT1, SWS, SWS + 3, sFL,
                                  bits), True)
    A('s_mov_b64 exec, -1')


def st4(reg, soff, off):
    return 'buffer_store_dwordx4 %s, v%d, s[%d:%d], s%d offen offset:%d%%s' % (v(reg, 4), vO, SWS, SWS + 3, soff, off)


def hilo_c(A, src, f, tmp):
    A('v_cvt_pk_bf16_f32 v%d, v%d, v%d', f, src, src)
    A('v_and_b32 v%d, 0xffff0000, v%d', tmp, f)
    A('v_sub_f32 v%d, v%d, v%d', tmp, src, tmp)
    A('v_cvt_pk_bf16_f32 v%d, v%d, 0', f + 1, tmp)


def hilo_m(A, src, f, tmp):
    A('v_cvt_pk_bf16_f32 v%d, v%d, 0', f + 1, src)
    A('v_lshlrev_b32 v%d, 16, v%d', tmp, f + 1)
    A('v_sub_f32 v%d, v%d, v%d', tmp, src, tmp)
    A('v_cvt_pk_bf16_f32 v%d, v%d, v%d', f, src, tmp)


def ln_finish(A, t0, t1, negmean, rstd):
    A('v_mul_f32 v%d, 0x%x, v%d', t0, 0x3b124925, t0)
    A('v_mov_b32 v%d, v%d', t1, t0)
    A('v_permlane32_swap_b32 v%d, v%d', t0, t1)
    A('v_fma_f32 v%d, -v%d, v%d, v%d', t1, t0, t0, t1)
    A('v_max_f32 v%d, 0, v%d', t1, t1)
    A('v_add_f32 v%d, 0x%x, v%d', t1, 0x3727c5ac, t1)
    A('v_rsq_f32 v%d, v%d', rstd, t1)
    A('v_sub_f32 v%d, 0, v%d', negmean, t0)


def softmax_pm(A, p, sc, e, t):
    A('v_cndmask_b32 v%d, v%d, v%d, s[%d:%d]', p + 12, p + 12, p + 14, sHI, sHI + 1)
    A('v_cndmask_b32 v%d, v%d, v%d, s[%d:%d]', p + 13, p + 13, p + 15, sHI, sHI + 1)
    mx, mn = t, t + 1
    A('v_max3_f32 v%d, v%d, v%d, v%d', mx, p, p + 1, p + 2)
    A('v_min3_f32 v%d, v%d, v%d, v%d', mn, p, p + 1, p + 2)
    for i in range(3, 13, 2):
        A('v_max3_f32 v%d, v%d, v%d, v%d', mx, mx, p + i, p + i + 1)
        A('v_min3_f32 v%d, v%d, v%d, v%d', mn, mn, p + i, p + i + 1)
    A('v_max_f32 v%d, v%d, v%d', mx, mx, p + 13)
    A('v_min_f32 v%d, v%d, v%d', mn, mn, p + 13)
    A('v_sub_f32 v%d, 0, v%d', mn, mn)
    A('v_permlane32_swap_b32 v%d, v%d', mx, mn)
    A('v_max_f32 v%d, v%d, v%d', mx, mx, mn)
    A('v_mul_f32 v%d, v%d, v%d', mx, mx, sc)
    A('v_mov_b32 v%d, v%d', mn, mx)
    A('v_permlane32_swap_b32 v%d, v%d', mx, mn)
    assert sc % 2 == 0 and mx % 2 == 0
    for i in range(0, 14, 2):
        A('v_pk_fma_f32 v[%d:%d], v[%d:%d], v[%d:%d], v[%d:%d] op_sel:[0,0,1] op_sel_hi:[1,0,1] neg_lo:[1,0,1] '
          'neg_hi:[1,0,1]', e + i, e + i + 1, p + i, p + i + 1, sc, sc + 1, mx, mx + 1)
        A('v_pk_fma_f32 v[%d:%d], v[%d:%d], v[%d:%d], v[%d:%d] op_sel_hi:[1,0,0] neg_lo:[0,0,1] neg_hi:[0,0,1]',
          p + i, p + i + 1, p + i, p + i + 1, sc, sc + 1, mx, mx + 1)
    for i in range(14):
        A('v_exp_f32 v%d, v%d', e + i, e + i)
        A('v_exp_f32 v%d, v%d', p + i, p + i)
    if PKSM:
        for base in (p, e):
            A('v_pk_add_f32 v[%d:%d], v[%d:%d], v[%d:%d]', base + 14, base + 15, base, base + 1, base + 2, base + 3)
        for i in range(4, 14, 2):
            for base in (p, e):
                A('v_pk_add_f32 v[%d:%d], v[%d:%d], v[%d:%d]', base + 14, base + 15, base + 14, base + 15, base + i,
                  base + i + 1)
    else:
        for base in (p, e):
            A('v_add_f32 v%d, v%d, v%d', base + 14, base, base + 2)
            A('v_add_f32 v%d, v%d, v%d', base + 15, base + 1, base + 3)
        for i in range(4, 14):
            for base in (p, e):
                A('v_add_f32 v%d, v%d, v%d', base + 14 + (i & 1), base + 14 + (i & 1), base + i)
    sp, sn = t + 2, t
    A('v_add_f32 v%d, v%d, v%d', sp, p + 14, p + 15)
    A('v_add_f32 v%d, v%d, v%d', sn, e + 14, e + 15)
    A('v_permlane32_swap_b32 v%d, v%d', sp, sn)
    A('v_add_f32 v%d, v%d, v%d', sp, sp, sn)
    A('v_rcp_f32 v%d, v%d', sp, sp)
    A('v_mov_b32 v%d, v%d', sn, sp)
    A('v_permlane32_swap_b32 v%d, v%d', sp, sn)
    for i in range(0, 14, 2):
        for base, r in ((p, sp), (e, sn)):
            if PKSM:
                A('v_pk_mul_f32 v[%d:%d], v[%d:%d], v[%d:%d] op_sel_hi:[1,0]', base + i, base + i + 1, base + i,
                  base + i + 1, r, r + 1)
            else:
                A('v_mul_f32 v%d, v%d, v%d', base + i, base + i, r)
                A('v_mul_f32 v%d, v%d, v%d', base + i + 1, base + i + 1, r)
    for i, (a0, a1) in enumerate(((0, 1), (2, 3), (4, 5), (6, None), (7, 8), (9, 10), (11, 12), (13, None))):
        for base in (p, e):
            A('v_cvt_pk_bf16_f32 v%d, v%d, %s', base + i, base + a0, '0' if a1 is None else 'v%d' % (base + a1))


PKSM = E('PKSM', 1)


def silu8(B, acc, e, sd, c1, out):
    for r in range(8):
        B('v_mul_f32 v%d, v%d, v%d', e + r, acc + r, c1)
        if r >= 1:
            B('v_exp_f32 v%d, v%d', e + r - 1, e + r - 1)
    B('v_exp_f32 v%d, v%d', e + 7, e + 7)
    for r in range(8):
        B('v_fma_f32 v%d, v%d, v%d, v%d', e + r, e + r, sd, sd)
        if r >= 1:
            B('v_rcp_f32 v%d, v%d', e + r - 1, e + r - 1)
    B('v_rcp_f32 v%d, v%d', e + 7, e + 7)
    for r in range(8):
        B('v_mul_f32 v%d, v%d, v%d', e + r, e + r, acc + r)
    cvt8(B, out, e, 4)


def cvt8(A, dst, src, n=8):
    for i in range(n):
        A('v_cvt_pk_bf16_f32 v%d, v%d, v%d', dst + i, src + 2 * i, src + 2 * i + 1)


def mfma(A, d, a_, b_, first=False):
    A('%s %s, %s, %s, %s', MFMA, v(d, 16), v(a_, 4), v(b_, 4), '0' if first else v(d, 16))


def merge(main, blocks, start, stop):
    idx = [i for i, l in enumerate(main) if l.strip().startswith('v_mfma')][start:stop]
    out, k = [], 0
    n = len(idx)
    pos = {i: j for j, i in enumerate(idx)}
    for i, l in enumerate(main):
        out.append(l)
        if i in pos:
            upto = (len(blocks) * (pos[i] + 1) + n - 1) // n
            for b in blocks[k:upto]:
                out += b
            k = max(k, upto)
    assert k >= len(blocks)
    return out


def sub(A):
    return Asm()


L_H = (L_A, L_A + 28672, 0, 65536)
W2S = [32768, 40960] + [L_A + k * 8192 for k in range(2)] + [L_SC0, L_SC1] + [L_A + k * 8192 for k in range(2, 7)] + [
    k * 8192 for k in range(4)] + [65536 + k * 8192 for k in range(4)]
W2GATE = {2: 9, 7: 10, 11: 11, 15: 12}
W2RE = dict(zip(range(19, 28), (0, 1, 2, 3, 6, 7, 8, 9, 10)))


def w2_slot(n):
    return W2S[W2RE.get(n, n)]


def w1_slot(c):
    return B16[c % 5]


class LdsQ:
    def __init__(self, A):
        self.A, self.q = A, []
        self.peeked = False

    def op(self, tag, fmt, *a):
        self.A(fmt, *a)
        self.q.append(tag)

    def need(self, tag):
        idx = [i for i, x in enumerate(self.q) if x == tag]
        if not idx:
            return None
        n = len(self.q) - 1 - idx[-1]
        self.q = self.q[idx[-1] + 1:]
        return min(n, 15)

    def wait(self, tag, vm=None):
        n = self.need(tag)
        if n is None and vm is None:
            return
        self.A('s_waitcnt' + ('' if vm is None else ' vmcnt(%d)' % vm) + ('' if n is None else ' lgkmcnt(%d)' % n))

    def stage(self, n):
        set_stage(self.A, n)
        self.q.append('st')

    def peek(self, w):
        if w == 5:
            self.op('pk', 'ds_read_b32 v%d, v%d', vPK_, vCA)
        else:
            self.op('pk', 'ds_read_b32 v%d, v%d offset:%d', vPK_, vMI, M_PW + 4 * w)
        self.peeked = True

    def take(self, w):
        if not self.peeked:
            return
        self.peeked = False
        self.wait('pk')
        self.A('v_readfirstlane_b32 s%d, v%d', CACHE[w], vPK_)


def tag_compute(A, t16=None):
    A('s_waitcnt lgkmcnt(0)')
    if t16 is not None:
        A('s_lshr_b32 s%d, s%d, 16', sT2, sTAG)
    A('s_mul_i32 s%d, s%d, 0x%x', sTAG, sTAG, 1664525)
    A('s_add_u32 s%d, s%d, 0x%x', sTAG, sTAG, 1013904223)
    A('v_mov_b32 v%d, s%d', vTAG, sTAG)
    if t16 is not None:
        A('s_and_b32 s%d, s%d, 0x3fff', t16, sTAG)
        A('s_and_b32 s%d, s%d, 0x4000', sT, sTAG)
        A('s_lshl_b32 s%d, s%d, 1', sT, sT)
        A('s_or_b32 s%d, s%d, s%d', t16, t16, sT)
        A('s_cmp_eq_u32 s%d, s%d', t16, sT2)
        A('s_cselect_b32 s%d, 1, 0', sT)
        A('s_xor_b32 s%d, s%d, s%d', t16, t16, sT)
        A('s_lshl_b32 s%d, s%d, 16', t16, t16)


def fast_check(A):
    A('s_getreg_b32 s%d, hwreg(HW_REG_XCC_ID)', sC)
    A('s_and_b32 s%d, s%d, 15', sC, sC)
    A('s_add_u32 s%d, s%d, s%d', sC, sC, sTAG)
    A('s_lshl_b32 s%d, s%d, 7', sT, sXCD)
    A('s_add_u32 s%d, s%d, %d', sT, sT, FREG)
    A('v_and_b32 v%d, 31, v%d', vT1, vL)
    A('v_lshlrev_b32 v%d, 2, v%d', vT1, vT1)
    A('buffer_load_dword v%d, v%d, s[%d:%d], s%d offen sc1', vT0, vT1, SWS, SWS + 3, sT)
    A('s_waitcnt vmcnt(0)')
    A('v_cmp_ne_u32 vcc, s%d, v%d', sC, vT0)
    A('s_cmp_eq_u64 vcc, 0')
    A('s_cselect_b32 s%d, 1, 0', sFASTF)


class Stream:
    def __init__(self, A, wave, depth, first=0):
        self.A, self.wave, self.depth = A, wave, depth
        self.items = []
        self.issued = 0
        self.known = 0
        self.n = first

    def wait_to(self, left):
        if self.issued - left <= self.known:
            return
        self.A('s_waitcnt vmcnt(%d)', left)
        self.known = self.issued - left
        last = None
        while self.items and self.items[0][1] <= self.known:
            last = self.items.pop(0)[0]
        if last is not None:
            set_stage(self.A, last)

    def room(self, k):
        self.wait_to(max(self.depth - k, 0))
        self.issued += k

    def done(self, name, cnt=None):
        self.n += 1
        assert LP.setdefault(name, (self.wave, self.n)) == (self.wave, self.n), name
        self.items.append((self.n, self.issued))

    def drain(self):
        self.drain_to(0)

    def drain_to(self, keep):
        while len(self.items) > keep:
            self.wait_to(self.issued - self.items[0][1])

    def save(self):
        return (list(self.items), self.issued, self.known)

    def restore(self, s):
        self.items, self.issued, self.known = list(s[0]), s[1], s[2]

    def dma4(self, lds, voffs, srd_, step=None, bits=''):
        A = self.A
        if isinstance(lds, tuple):
            A('s_add_u32 m0, s%d, %d', lds[0], lds[1])
        else:
            A('s_mov_b32 m0, %d', lds)
        self.room(4)
        for u in range(4):
            A('buffer_load_dwordx4 v%d, s[%d:%d], s%d offen offset:%d%s lds', voffs[u], srd_, srd_ + 3, sT, u * 1024,
              bits)
        if step:
            A('s_add_u32 s%d, s%d, %d', sT, sT, step)


def reg4(St, regs, voffs, srd_, step=None):
    St.room(4)
    for u in range(4):
        St.A('buffer_load_dwordx4 %s, v%d, s[%d:%d], s%d offen offset:%d', v(regs[u], 4), voffs[u], srd_, srd_ + 3, sT,
             u * 1024)
    if step:
        St.A('s_add_u32 s%d, s%d, %d', sT, sT, step)


def spill(St, name, regs, lds):
    A = St.A
    assert not St.items
    A('v_add_u32 v%d, %d, v%d', vT1, lds, vO)
    A('s_setprio %d', E('SPRIO', 0))
    for j, r in enumerate(regs):
        A('ds_write_b128 v%d, %s offset:%d', vT1, v(r, 4), j * 1024)
    St.n += 1
    assert LP.setdefault(name, (St.wave, St.n)) == (St.wave, St.n), name
    set_stage(A, St.n)


def off128(A, vW128, vXo=None):
    A('v_lshrrev_b32 v%d, 3, v%d', vW128, vL)
    A('v_mul_u32_u24 v%d, 896, v%d', vW128, vW128)
    A('v_and_b32 v%d, 7, v%d', vT1, vL)
    if vXo is not None:
        A('v_lshl_add_u32 v%d, v%d, 4, v%d', vXo, vT1, vW128)
        spread4(A, vXo, 8 * 896)
    A('v_lshrrev_b32 v%d, 2, v%d', vT0, vL)
    A('v_and_b32 v%d, 4, v%d', vT0, vT0)
    A('v_xor_b32 v%d, v%d, v%d', vT1, vT1, vT0)
    A('v_lshl_add_u32 v%d, v%d, 4, v%d', vW128, vT1, vW128)
    spread4(A, vW128, 8 * 896)


def off256(A, vW256):
    A('v_lshrrev_b32 v%d, 4, v%d', vW256, vL)
    A('v_mul_u32_u24 v%d, 3584, v%d', vW256, vW256)
    A('v_and_b32 v%d, 15, v%d', vT1, vL)
    A('v_lshrrev_b32 v%d, 2, v%d', vT0, vL)
    A('v_and_b32 v%d, 12, v%d', vT0, vT0)
    A('v_xor_b32 v%d, v%d, v%d', vT1, vT1, vT0)
    A('v_lshl_add_u32 v%d, v%d, 4, v%d', vW256, vT1, vW256)
    spread4(A, vW256, 4 * 3584)


def h_stream(A, first):
    wave = 7
    St = Stream(A, wave, E('HDEPTH', 24), first)
    if wave == 7:
        A('s_lshl_b32 s%d, s%d, 17', sB, sTB3)
        A('s_add_u32 s%d, s%d, %d', sB, sB, WS_HB + (0x40000000 if E('ABL', 0) & 128 else 0))
        rot_calc(A, sG, 'w1')
        for u in range(7):
            rot_idx(A, 4 + u, sG, u, 7)
            A('s_lshl_b32 s%d, s%d, 12', 4 + u, 4 + u)
            A('s_add_u32 s%d, s%d, s%d', 4 + u, 4 + u, sB)
            A('s_add_u32 s%d, s%d, 4096', 4 + u, 4 + u)
        A('s_lshl_b32 s%d, s%d, 8', sT2, sTB3)
        A('s_add_u32 s%d, s%d, %d', sT2, sT2, F3)
        A('v_lshlrev_b32 v%d, 2, v%d', vT1, vL)
        A('s_and_b32 s%d, s%d, 1', sC, sFB)
        A('s_lshl_b32 s%d, s%d, 16', sC, sC)
        wait_stage(A, C0 + 7, sleep=1)
        stamp(A)
        lo, done = A.label('P'), A.label('PD')
        A('s_mov_b32 exec_lo, 0x3fff3fff')
        A('s_mov_b32 exec_hi, 0x3fff3fff')
        A('%s:', lo)
        A('buffer_load_dword v%d, v%d, s[%d:%d], s%d offen sc1', vT0, vT1, SWS, SWS + 3, sT2)
        A('s_waitcnt vmcnt(0)')
        A('v_cmp_ne_u32 vcc, s%d, v%d', sTAG, vT0)
        spin_guard(A, done)
        A('s_cbranch_vccnz %s', lo)
        A('%s:', done)
        A('s_mov_b64 exec, -1')
        stamp(A)
        for gi in range(4):
            if gi == 2:
                wait_stage(A, C0 + 8)
            if gi:
                A('s_xor_b32 s%d, s%d, %d', sC, sC, (gi ^ (gi - 1)) << 15)
            St.depth = E('HDEPTH0', 24) if gi == 0 else E('HDEPTH', 24)
            for u in range(7):
                A('s_add_u32 s%d, s%d, s%d', sT, 4 + u, sC)
                St.dma4(L_H[gi] + u * 4096, [vO] * 4, SWS, None, LDB)
                if u in HITEMS[gi > 0]:
                    St.done(('h', gi, u))
                if u == (E('HSPOS', 3) if gi == 0 else 0):
                    A('s_add_u32 s%d, s%d, s%d', sT, sB, sC)
                    St.dma4(L_SC0 + gi * 4096, [vO] * 4, SWS, None, ' sc1')
                    St.done(('hs', gi))
        St.drain()
    stamp(A)


def spread4(A, base, step):
    for u in range(1, 4):
        A('v_add_u32 v%d, %d, v%d', base + u, u * (step - 1024), base)


def wtr_base(A):
    A('v_lshrrev_b32 v%d, 5, v%d', vT1, vL)
    A('v_bfe_u32 v%d, v%d, 2, 2', vT0, vL)
    A('v_lshl_add_u32 v%d, v%d, 3, v%d', vT0, vT1, vT0)
    A('v_lshlrev_b32 v%d, 6, v%d', vT0, vT0)
    A('v_bfe_u32 v%d, v%d, 4, 1', vTT, vL)
    A('v_lshl_add_u32 v%d, v%d, 5, v%d', vT0, vTT, vT0)
    A('v_and_b32 v%d, 3, v%d', vTT, vL)
    A('v_lshl_add_u32 v%d, v%d, 3, v%d', vT0, vTT, vT0)
    for pi in range(3):
        A('v_add_u32 v%d, %d, v%d', vWA + pi, L_WP[pi], vT0)
    A('v_lshlrev_b32 v%d, 3, v%d', vCA, vL)
    A('v_add_u32 v%d, %d, v%d', vCA, L_CF, vCA)


def sel_frags(A, vID):
    A('v_lshrrev_b32 v%d, 5, v%d', vT1, vL)
    A('v_and_b32 v%d, 31, v%d', vT0, vL)
    A('v_lshlrev_b32 v%d, 2, v%d', vTT, vT1)
    A('v_sub_u32 v%d, v%d, v%d', vT0, vT0, vTT)
    A('v_mov_b32 v%d, 0x3f80', vTT)
    A('v_mov_b32 v%d, 0x3f800000', vTT + 1)
    for sidx in range(2):
        for rr in range(4):
            m = 16 * sidx + 8 * (rr >> 1) + 2 * (rr & 1)
            A('v_cmp_eq_u32 vcc, %d, v%d', m, vT0)
            A('v_cndmask_b32 v%d, 0, v%d, vcc', vID + 4 * sidx + rr, vTT)
            A('v_cmp_eq_u32 vcc, %d, v%d', m + 1, vT0)
            A('v_cndmask_b32 v%d, v%d, v%d, vcc', vID + 4 * sidx + rr, vID + 4 * sidx + rr, vTT + 1)


def read_w(A, pi, i, buf, sleep=0):
    wait_lp(A, ('W', pi, i), sleep)
    for q in range(4):
        for z in range(2):
            A('ds_read_b64_tr_b16 v[%d:%d], v%d offset:%d', buf + 4 * q + 2 * z, buf + 4 * q + 2 * z + 1,
              vWA + pi, i * 4096 + q * 1024 + z * 256)


def colsum(A, spi):
    vCS, vB_, buf = 40, 44, 48
    A('v_mov_b32 v%d, 0', vCS)
    A('v_mov_b32 v%d, 0', vCS + 1)
    A('s_cmp_eq_u32 s%d, 1', spi)
    A('s_cselect_b32 s%d, 0, %d', sT, L_WP[2])
    A('s_cmp_eq_u32 s%d, 0', spi)
    A('s_cselect_b32 s%d, %d, s%d', sT, L_WP[0], sT)
    assert L_WP[1] == 0
    A('v_add_u32 v%d, s%d, v%d', vB_, sT, vWA + 1)
    A('s_mul_i32 s%d, s%d, 7', sC, spi)
    A('s_add_u32 s%d, s%d, 7', sT2, sC)
    top, lo, ok = A.label('CS'), A.label('W'), A.label('WD')
    A('%s:', top)
    A('s_cmp_gt_u32 s%d, s%d', sPROG, sC)
    A('s_cbranch_scc1 %s', ok)
    prio(A, 0)
    A('%s:', lo)
    A('ds_read_b32 v%d, v%d offset:%d', vPW, vMI, M_PW + 16)
    A('s_waitcnt lgkmcnt(0)')
    A('v_readfirstlane_b32 s%d, v%d', sPROG, vPW)
    spin_guard(A, ok)
    A('s_cmp_gt_u32 s%d, s%d', sPROG, sC)
    again(A, 's_cbranch_scc0', lo)
    prio(A, 1)
    A('%s:', ok)
    for q in range(4):
        for z in range(2):
            A('ds_read_b64_tr_b16 v[%d:%d], v%d offset:%d', buf + 4 * q + 2 * z, buf + 4 * q + 2 * z + 1, vB_,
              q * 1024 + z * 256)
    A('v_add_u32 v%d, 4096, v%d', vB_, vB_)
    A('s_add_u32 s%d, s%d, 1', sC, sC)
    for q in range(4):
        A('s_waitcnt lgkmcnt(%d)', 6 - 2 * q)
        for r in range(4):
            A('v_dot2c_f32_bf16 v%d, s%d, v%d', vCS + (r & 1), sONES, buf + 4 * q + r)
    A('s_cmp_lt_u32 s%d, s%d', sC, sT2)
    A('s_cbranch_scc1 %s', top)
    A('v_add_f32 v%d, v%d, v%d', vCS, vCS, vCS + 1)
    hilo_c(A, vCS, vCS + 2, vT0)
    A('s_lshl_b32 s%d, s%d, 9', sT, spi)
    A('v_add_u32 v%d, s%d, v%d', vB_, sT, vCA)
    A('ds_write_b64 v%d, v[%d:%d]', vB_, vCS + 2, vCS + 3)


ROT = E('ROT', 1)
HITEMS = ((1, 3, 5, 6), (1, 3, 6))
W7ST = 0
LATE = E('LATE', 1)
W2R = E('W2R', 0)


def rot_calc(A, dst, kind):
    if not ROT:
        A('s_mov_b32 s%d, 0', dst)
        return
    if kind == 'w1':
        A('s_and_b32 s%d, s%d, 1', dst, sTB3)
        A('s_mul_i32 s%d, s%d, %d', dst, dst, 4 if LATE else 3)
        mod = 7
    elif kind == 'wo':
        A('s_and_b32 s%d, s%d, 3', dst, sTQ)
        A('s_lshl_b32 s%d, s%d, 1', dst, dst)
        mod = 7
    else:
        A('s_and_b32 s%d, s%d, 3', dst, sTQ)
        A('s_mul_i32 s%d, s%d, 7', dst, dst)
        A('s_lshr_b32 s%d, s%d, 1', dst, dst)
        mod = 14
    A('s_add_u32 s%d, s%d, s%d', dst, dst, sXCD)
    if kind == 'w1' and E('ROTFB', 1):
        A('s_lshr_b32 s%d, s%d, 1', sT, sFB)
        A('s_add_u32 s%d, s%d, s%d', dst, dst, sT)
        A('s_mul_i32 s%d, s%d, 37', sT, dst)
        A('s_lshr_b32 s%d, s%d, 8', sT, sT)
        A('s_mul_i32 s%d, s%d, 7', sT, sT)
        A('s_sub_u32 s%d, s%d, s%d', dst, dst, sT)
        return
    A('s_cmp_ge_u32 s%d, %d', dst, mod)
    A('s_cselect_b32 s%d, %d, 0', sT, mod)
    A('s_sub_u32 s%d, s%d, s%d', dst, dst, sT)


def rot_idx(A, dst, rot, j, mod):
    A('s_add_u32 s%d, s%d, %d', dst, rot, j)
    A('s_cmp_ge_u32 s%d, %d', dst, mod)
    A('s_cselect_b32 s%d, %d, 0', sT2, mod)
    A('s_sub_u32 s%d, s%d, s%d', dst, dst, sT2)


def blk_init(A, sb, sst, kh):
    A('s_and_b32 s%d, s%d, 1', sb, sTQ)
    if isinstance(kh, str):
        A('s_xor_b32 s%d, s%d, %s', sb, sb, kh)
    elif kh:
        A('s_xor_b32 s%d, s%d, 1', sb, sb)
    A('s_lshr_b32 s%d, s%d, 1', sT, sTQ)
    A('s_xor_b32 s%d, s%d, s%d', sT, sT, sXCD)
    A('s_sub_u32 s%d, 6, s%d', sT2, sb)
    A('s_bitcmp1_b32 s%d, 0', sT)
    A('s_cselect_b32 s%d, s%d, s%d', sb, sT2, sb)
    A('s_cselect_b32 s%d, 5, 2', sst)


def blk_next(A, sb, sst):
    A('s_add_u32 s%d, s%d, s%d', sb, sb, sst)
    A('s_cmp_ge_u32 s%d, 7', sb)
    A('s_cselect_b32 s%d, 7, 0', sT2)
    A('s_sub_u32 s%d, s%d, s%d', sb, sb, sT2)


def rest_srds(A):
    A('s_add_u32 s82, s80, %d', FEP)
    A('s_addc_u32 s83, s81, 0')
    A('s_load_dword s%d, s[82:83], 0', sTAG)
    srd(A, SP, 68, H * DH * DH * 2)
    A('s_mul_i32 s%d, s%d, 37', sTQ, sI)
    A('s_lshr_b32 s%d, s%d, 8', sTQ, sTQ)
    A('s_mul_i32 s%d, s%d, 7', sNB, sTQ)
    A('s_sub_u32 s%d, s%d, s%d', sNB, sI, sNB)
    A('s_lshr_b32 s%d, s%d, 1', sTB3, sTQ)
    A('s_mul_i32 s%d, s%d, 14', sFB, sTB3)
    A('s_sub_u32 s%d, s%d, s%d', sFB, sI, sFB)
    A('s_lshl2_add_u32 s%d, s%d, s%d', sTQ, sXCD, sTQ)
    A('s_lshl1_add_u32 s%d, s%d, s%d', sTB3, sXCD, sTB3)
    A('v_lshlrev_b32 v%d, 4, v%d', vO, vL)
    A('s_mov_b32 s%d, 0', sFASTF)
    A('s_mov_b32 s%d, 0x%x', sONES, ONES)
    ABL = E('ABL', 0)
    srd(A, SWO, 70, 0 if ABL & 1 else D * D * 2)
    srd(A, SW1, 74, 0 if ABL & 2 else D * F * 2)
    srd(A, SW2, 76, 0 if ABL & 4 else D * F * 2)
    srd(A, SOUT, 78, S * D * 2)
    srd(A, SWS, 80, WS_SIZE)


def rot_next(A):
    A('s_add_u32 s%d, s%d, 1', sC, sC)
    A('s_cmp_eq_u32 s%d, 7', sC)
    A('s_cselect_b32 s%d, 0, s%d', sC, sC)


def sig_dyn(A, sval):
    A('v_mov_b32 v%d, s%d', vT0, sval)
    A('ds_write_b32 v%d, v%d', vMY, vT0)


def x_offsets(A):
    A('v_lshrrev_b32 v%d, 3, v%d', vT0, vL)
    A('v_mul_u32_u24 v%d, 896, v%d', vT0, vT0)
    A('v_lshrrev_b32 v%d, 4, v%d', vT1, vL)
    A('v_and_b32 v%d, 7, v%d', vXD, vL)
    A('v_xor_b32 v%d, v%d, v%d', vXD, vXD, vT1)
    A('v_xor_b32 v%d, 4, v%d', vXD + 1, vXD)
    A('v_lshl_add_u32 v%d, v%d, 4, v%d', vXD, vXD, vT0)
    A('v_lshl_add_u32 v%d, v%d, 4, v%d', vXD + 1, vXD + 1, vT0)
    A('v_add_u32 v%d, %d, v%d', vXD + 1, 8 * 896 - 1024, vXD + 1)
    A('v_add_u32 v%d, %d, v%d', vXD + 2, 2 * (8 * 896 - 1024), vXD)
    A('v_add_u32 v%d, %d, v%d', vXD + 3, 2 * (8 * 896 - 1024), vXD + 1)
    A('s_mul_i32 s%d, s%d, %d', sXB, sTB, 0 if E('AB2', 0) & 16 else 128 * 896)


def w_offsets(A):
    vW = 40
    A('v_lshrrev_b32 v%d, 2, v%d', vW, vL)
    A('v_mul_u32_u24 v%d, 2688, v%d', vW, vW)
    A('v_and_b32 v%d, 3, v%d', vT1, vL)
    A('v_lshl_add_u32 v%d, v%d, 4, v%d', vW, vT1, vW)
    A('s_mul_i32 s%d, s%d, %d', sT, sH, 0 if E('AB2', 0) & 8 else 56)
    A('s_and_b32 s%d, s%d, 0xfffffff0', sT, sT)
    A('v_add_u32 v%d, s%d, v%d', vW, sT, vW)
    spread4(A, vW, 16 * 2688)


def early_x(A):
    depth = E('XDEPTH', 16)
    wsig = ((depth - 4) // 4) % 4
    lag = (depth - 4 - 4 * wsig) // 16
    A('s_mov_b32 s%d, %d', sG, 1 - lag)
    A('s_mov_b32 m0, %d', L_X + 16384)
    A('s_mov_b32 s%d, s%d', sC, sC0)
    rot_next(A)
    top = A.label('XL')
    A('%s:', top)
    A('s_lshl_b32 s%d, s%d, 7', sT, sC)
    A('s_add_u32 s%d, s%d, s%d', sT, sT, sXB)
    for w in range(4):
        A('s_waitcnt vmcnt(%d)', depth - 4)
        if w == wsig:
            A('s_max_i32 s%d, s%d, 0', sT2, sG)
            sig_dyn(A, sT2)
        for u in range(4):
            A('buffer_load_dwordx4 v%d, s[%d:%d], s%d offen offset:%d lds', vXD + u, SX, SX + 3, sT, u * 1024)
        A('s_add_u32 m0, m0, 4096')
        if w < 3:
            A('s_add_u32 s%d, s%d, %d', sT, sT, 32 * 896)
    rot_next(A)
    A('s_add_u32 s%d, s%d, 1', sG, sG)
    A('s_cmp_lt_i32 s%d, %d', sG, 7 - lag)
    A('s_cbranch_scc1 %s', top)
    stamp(A)
    for n in range(7 - lag, 8):
        A('s_waitcnt vmcnt(%d)', 16 * (7 - n))
        set_stage(A, n)


def early_w(A):
    vW = 40

    def part_loop(pi, depth, floor):
        lag = (depth - 4) // 4
        stamp(A)
        A('s_mov_b32 s%d, s%d', sC, sC0)
        A('s_mov_b32 s%d, %d', sG, 7 * pi - lag)
        A('s_mov_b32 m0, %d', L_WP[pi])
        top = A.label('WL')
        A('%s:', top)
        A('s_mul_i32 s%d, s%d, %d', sT, sC, 64 * 2688)
        A('s_add_u32 s%d, s%d, %d', sT, sT, (1, 2, 0)[pi] * 896)
        A('s_max_i32 s%d, s%d, %d', sT2, sG, floor)
        A('s_waitcnt vmcnt(%d)', depth - 4)
        sig_dyn(A, sT2)
        for u in range(4):
            A('buffer_load_dwordx4 v%d, s[%d:%d], s%d offen offset:%d lds', vW + u, SW, SW + 3, sT, u * 1024)
        A('s_add_u32 m0, m0, 4096')
        rot_next(A)
        A('s_add_u32 s%d, s%d, 1', sG, sG)
        A('s_cmp_lt_i32 s%d, %d', sG, 7 * pi + 7 - lag)
        A('s_cbranch_scc1 %s', top)
        return lag
    if E('WTWAIT', 1):
        A('s_waitcnt vmcnt(0)')
    lag = part_loop(0, E('WDEPTH', 8), 0)
    for n in range(7 - lag, 8):
        A('s_waitcnt vmcnt(%d)', 4 * (7 - n))
        set_stage(A, n)
    wait_stage(A, 1)
    if E('XG2', 4) >= 0:
        wait_lp(A, ('x', E('XG2', 4)))
    part_loop(1, E('WDEPTH2', 24), 7)


def gen_h0(A):
    St = Stream(A, 4, E('WDEPTH2', 24), 14)
    St.issued = 56
    St.known = 56 - St.depth
    St.items = [(n + 1, 4 * n + 4) for n in range(14) if 4 * n + 4 > St.known]
    vW, vW128, vXo, vW256 = 36, 12, 16, 20
    q4 = lambda b: [b, b + 1, b + 2, b + 3]
    for u in range(4):
        A('v_mov_b32 v%d, v%d', vW + u, 40 + u)
    rest_srds(A)

    def wq():
        wait_stage(A, 2)
        stamp(A)
        for i in range(7):
            rot_idx(A, sT, sC0, i, 7)
            A('s_mul_i32 s%d, s%d, %d', sT, sT, 64 * 2688)
            St.dma4(L_WP[2] + i * 4096, q4(vW), SW)
            St.done(('W', 2, i))
    lend = A.label('LEND')
    act = A.label('ACT')
    A('s_cmp_lt_u32 s%d, 28', sI)
    A('s_cbranch_scc1 %s', act)
    keep, n0 = St.save(), _st['n']
    wq()
    St.drain()
    St.restore(keep)
    St.n = 14
    if E('TOUCH', 1):
        def touch(srd_, base, per_xcd, n):
            A('s_mul_i32 s%d, s%d, %d', sT, sXCD, per_xcd)
            A('s_sub_u32 s%d, s%d, 28', sT2, sI)
            A('s_mul_i32 s%d, s%d, %d', sT2, sT2, n * 8192)
            A('s_add_u32 s%d, s%d, s%d', sT, sT, sT2)
            A('s_add_u32 s%d, s%d, %d', sT, sT, base)
            A('s_mov_b32 s%d, %d', sC, n)
            lo = A.label('T')
            A('%s:', lo)
            A('buffer_load_dword v%d, v%d, s[%d:%d], s%d offen', vW + 1, vW, srd_, srd_ + 3, sT)
            A('s_add_u32 s%d, s%d, 8192', sT, sT)
            A('s_waitcnt vmcnt(%d)', E('TDEPTH', 6))
            A('s_sub_u32 s%d, s%d, 1', sC, sC)
            A('s_cmp_lg_u32 s%d, 0', sC)
            A('s_cbranch_scc1 %s', lo)
        A('v_lshlrev_b32 v%d, 7, v%d', vW, vL)
        if E('W2M', 1) == 2:
            touch(SW2, 0, 4 * 7 * 8192, 7)
        if E('TEARLY', 0):
            wait_stage(A, 3, (5, 6), sleep=2)
        else:
            wait_stage(A, C0 + 5, sleep=2)
        stamp(A)
        if HLATE and not WTO:
            touch(SWS, WS_HB, 262144, 8)
        if E('W2M', 1) == 1:
            touch(SW2, 0, 4 * 7 * 8192, 7)
        stamp(A)
        if not WT1:
            touch(SWS, WS_H1B, 8 * 112 * 1024, 28)
        stamp(A)
        if E('W2WARM', 0):
            touch(SW2, 0, 0, 49)
        stamp(A)
        if E('WBL2', 0):
            tag_compute(A)
            skipw = A.label('NW')
            if E('WBL2', 0) == 1:
                A('s_cmp_lg_u32 s%d, 28', sI)
                A('s_cbranch_scc1 %s', skipw)
            A('s_lshl_b32 s%d, s%d, 2', sC, sXCD)
            A('s_add_u32 s%d, s%d, s%d', sC, sC, sI)
            A('s_sub_u32 s%d, s%d, 28', sC, sC)
            A('s_lshl_b32 s%d, s%d, 8', sC, sC)
            A('s_add_u32 s%d, s%d, %d', sC, sC, F4)
            poll_global(A, sC, (1 << 56) - 1)
            A('buffer_wbl2 sc1')
            A('s_waitcnt vmcnt(0)')
            A('%s:', skipw)
    _st['n'] = n0
    A('s_branch %s', lend)
    A('%s:', act)
    off128(A, vW128)
    off256(A, vW256)
    A('s_lshl_b32 s%d, s%d, 7', sB, sNB)

    sR1, sRO, sR2 = sG, sKH, sXB
    rot_calc(A, sR1, 'w1')
    rot_calc(A, sRO, 'wo')
    sBK, sBS = [8, 9], 10
    blk_init(A, sBK[0], sBS, 0)
    blk_init(A, sBK[1], sBS, 1)

    def w1_off(c):
        rot_idx(A, sT, sR1, c, 7)
        A('s_mul_i32 s%d, s%d, %d', sT, sT, 64 * 3584)
        if not E('AB2', 0) & 2:
            A('s_lshl_b32 s%d, s%d, 8', sT2, sFB)
            A('s_add_u32 s%d, s%d, s%d', sT, sT, sT2)

    def w1_chunk(c):
        w1_off(c)
        for u in range(4):
            St.dma4(w1_slot(c) + u * 4096, q4(vW256), SW1, 16 * 3584 if u < 3 else None)
        St.done(('w1', c), 16)

    def w2_item(n):
        c, kh = n >> 1, n & 1
        A('s_mul_i32 s%d, s%d, %d', sT, sBK[kh], 128 * 896)
        if not E('AB2', 0) & 4:
            A('s_add_u32 s%d, s%d, s%d', sT, sT, sB)
        if kh or (c & 1):
            A('s_add_u32 s%d, s%d, %d', sT, sT, (kh * 896 + (c & 1) * 64) * 896)
        if c & 1:
            blk_next(A, sBK[kh], sBS)
        for u in range(2):
            St.dma4(w2_slot(n) + u * 4096, q4(vW128), SW2, 32 * 896 if u < 1 else None)
        St.done(('w2', n), 8)

    SR = [24, 28] + list(range(40, 256, 4))

    def staged(c0=0, c1=3):
        for u in range(4 * c0, 4 * c1):
            if u % 4 == 0:
                w1_off((0 if LATE else 4) + u // 4)
            reg4(St, SR[8 + 4 * u:12 + 4 * u], q4(vW256), SW1, 16 * 3584)

    def wo():
        St.drain_to(3)
        wait_stage(A, 3)
        wait_word(A, 5, 1)
        stamp(A)
        for c in range(7):
            rot_idx(A, sC, sRO, c, 7)
            A('s_mul_i32 s%d, s%d, %d', sT, sC, 64 * 896)
            if not E('AB2', 0) & 1:
                A('s_add_u32 s%d, s%d, s%d', sT, sT, sB)
            A('s_lshl_b32 s%d, s%d, 13', sC, sC)
            for u in range(2):
                St.dma4((sC, L_A + u * 4096), q4(vW128), SWO, 32 * 896 if u < 1 else None)
            if c == 2:
                St.depth = E('LDEPTH', 32)
        St.done('wo')
    staged(0, E('NSQ', 2))
    wq()
    staged(E('NSQ', 2), 3)
    wo()
    stamp(A)
    wait_stage(A, 2, (5, 6))
    stamp(A)
    if LATE:
        n3 = St.n
        St.n += 3
        w1_chunk(3)
        St.items, it3 = St.items[:-1], St.items[-1]
        St.drain()
        St.wait_to(16)
        St.n = n3
        for c in range(3):
            spill(St, ('w1', c), SR[8 + 16 * c:24 + 16 * c], w1_slot(c))
        St.n += 1
        St.items = [it3]
        St.drain()
        stamp(A)
        wait_stage(A, C0 + 3)
        wait_word(A, 7, 9)
        wait_stage(A, 1, base=M_CP)
        if LATE == 1:
            wait_stage(A, 1, base=M_LD)
        elif LATE == 2:
            wait_stage(A, 3, (5, 6))
        St.depth = E('LATEDEPTH', 20)
        for c in (4, 5, 6):
            w1_chunk(c)
        St.drain()
    else:
        for c in range(4):
            w1_chunk(c)
        St.drain()
        St.wait_to(0)
        stamp(A)
        wait_stage(A, C0 + 3)
        wait_word(A, 7, 9)
        spill(St, ('w1', 4), SR[8:24], w1_slot(4))
        wait_stage(A, 1, base=M_CP)
        spill(St, ('w1', 5), SR[24:40], w1_slot(5))
        spill(St, ('w1', 6), SR[40:56], w1_slot(6))
    stamp(A)
    wait_stage(A, C0 + 8, sleep=2)
    wait_lp(A, ('h', E('W2AFTER', 2), E('W2AFTERQ', 1)), 1)
    stamp(A)
    St.depth = E('W2DEPTH', 32)
    for n in range(28):
        if n in W2GATE:
            wait_stage(A, C0 + W2GATE[n])
        if n == 4:
            wait_stage(A, 5, (5, 6))
        if n == 19:
            stamp(A)
            St.depth = E('W2DEPTH3', 32)
        if n >= 19:
            m = W2RE[n]
            wait_stage(A, C0 + 13 + (m >> 1), (0, 1) if (m & 1) == 0 else (2, 3))
        w2_item(n)
    St.drain()
    stamp(A)
    A('%s:', lend)
    A('s_waitcnt lgkmcnt(0)')
    stamp_flush(A)
    A('s_endpgm')


def gen_h1(A):
    stamp(A)
    rest_srds(A)
    wtr_base(A)
    tag_compute(A)
    def extras():
        if WARM:
            for srd_, size in ((SWO, D * D * 2), (SW1, D * F * 2), (SW2, D * F * 2)):
                A('s_mul_i32 s%d, s2, %d', sT, size // 256)
                A('v_lshlrev_b32 v%d, 7, v%d', vT1, vL)
                A('s_mov_b64 exec, 0x%x', (1 << ((size // 256 + 127) // 128)) - 1) if size // 256 < 4096 else None
                if size // 256 >= 4096:
                    A('s_mov_b32 exec_hi, 0x%x', (1 << ((size // 256 + 127) // 128 - 32)) - 1)
                A('buffer_load_dword v63, v%d, s[%d:%d], s%d offen', vT1, srd_, srd_ + 3, sT)
                A('s_mov_b64 exec, -1')
        if E('FT', 3) & 2:
            nf = A.label('NF')
            A('s_cmp_lt_u32 s%d, 28', sI)
            A('s_cbranch_scc1 %s', nf)
            A('v_lshlrev_b32 v%d, 7, v%d', vT1, vL)
            A('s_mov_b64 exec, 0xf')
            for base, sh in ((F2, 9), (F3, 9), (F4, 10)):
                A('s_lshl_b32 s%d, s%d, %d', sT, sXCD, sh)
                A('s_add_u32 s%d, s%d, %d', sT, sT, base)
                A('buffer_load_dword v63, v%d, s[%d:%d], s%d offen', vT1, SWS, SWS + 3, sT)
                A('s_mov_b64 exec, 0x%x', 0xf if base == F2 else 0xff)
            A('s_mov_b64 exec, -1')
            A('%s:', nf)
        if E('TOUCH', 1) and not WTO:
            A('s_lshl_b32 s%d, s%d, 18', sT, sXCD)
            A('s_lshl_b32 s%d, s%d, 13', sT2, sI)
            A('s_add_u32 s%d, s%d, s%d', sT, sT, sT2)
            A('v_lshlrev_b32 v%d, 7, v%d', vT1, vL)
            for base in ([WS_OB] if MAP == 0 else []) + ([] if HLATE else [WS_HB]):
                A('s_add_u32 s%d, s%d, %d', sT2, sT, base)
                A('buffer_load_dword v63, v%d, s[%d:%d], s%d offen', vT1, SWS, SWS + 3, sT2)

    if TOUCHAT == 0:
        extras()
    A('s_mov_b32 s%d, 1', sG)
    off256(A, 20)
    rot_calc(A, sXB, 'w1')
    cs, cs2 = A.label('CSL'), A.label('CSM')
    St = Stream(A, 7, E('W7DEPTH', 16), 9)

    def stage7():
        for u in range(4 * W7ST):
            if u % 4 == 0:
                rot_idx(A, sT, sXB, u // 4, 7)
                A('s_mul_i32 s%d, s%d, %d', sT, sT, 64 * 3584)
                A('s_lshl_b32 s%d, s%d, 8', sT2, sFB)
                A('s_add_u32 s%d, s%d, s%d', sT, sT, sT2)
            reg4(St, [64 + 16 * u + 4 * k for k in range(4)], [20, 21, 22, 23], SW1, 16 * 3584)
    A('%s:', cs)
    colsum(A, sG)
    A('s_add_u32 s%d, s%d, 7', sT, sG)
    sig_dyn(A, sT)
    A('s_add_u32 s%d, s%d, 1', sG, sG)
    A('s_cmp_eq_u32 s%d, 3', sG)
    A('s_cbranch_scc1 %s', cs2)
    A('s_cmp_ge_u32 s%d, 28', sI)
    A('s_cbranch_scc1 %s', cs)
    stage7()
    A('s_branch %s', cs)
    A('%s:', cs2)
    if TOUCHAT == 2:
        extras()
    stamp(A)
    lend = A.label('LEND')
    A('s_cmp_ge_u32 s%d, 28', sI)
    A('s_cbranch_scc1 %s', lend)
    if W7ST:
        A('s_waitcnt vmcnt(%d)', 1 if TOUCHAT == 2 and not WARM else 0)
        wait_stage(A, 2, (5, 6))
        for c in range(W7ST):
            spill(St, ('w1', c), [64 + 64 * c + 4 * k for k in range(16)], w1_slot(c))
        stamp(A)
    h_stream(A, 9 + W7ST)
    A('%s:', lend)
    A('s_waitcnt lgkmcnt(0)')
    stamp_flush(A)
    A('s_endpgm')


def gen_h23(A):
    vID, vAF, vVF, vAC, vG = 64, 72, 104, 136, 72
    rest_srds(A)
    sTL = sKH
    A('s_sub_u32 s%d, s%d, 5', sTL, sWV)
    skip = A.label('NOST')
    A('s_cmp_eq_u32 s%d, 1', sTL)
    A('s_cbranch_scc1 %s', skip)
    A('s_mul_i32 s%d, s%d, 1568', sT, sH)
    A('s_mov_b32 m0, %d', L_PHI)
    A('buffer_load_dwordx4 v%d, s[%d:%d], s%d offen lds', vO, SP, SP + 3, sT)
    A('buffer_load_dwordx4 v%d, s[%d:%d], s%d offen offset:1024 lds', vO, SP, SP + 3, sT)
    if CODEPF:
        A('s_mul_i32 s%d, s%d, %d', sT, sI, 1280)
        A('v_lshlrev_b32 v%d, 7, v%d', vT1, vL)
        A('v_add_u32 v%d, s%d, v%d', vT1, sT, vT1)
        A('s_mov_b64 exec, 0x3ff')
        A('global_load_dword v72, v%d, s[%d:%d]', vT1, sPC, sPC + 1)
        A('s_mov_b64 exec, -1')
    A('%s:', skip)
    if E('TLB', 0):
        A('v_lshlrev_b32 v%d, 20, v%d', vT1, vL)
        A('s_lshl_b32 s%d, s%d, 7', sT, sI)
        for srd_ in (SWS, SOUT, SWO, SW1, SW2):
            A('buffer_load_dword v73, v%d, s[%d:%d], s%d offen', vT1, srd_, srd_ + 3, sT)
    wtr_base(A)
    sel_frags(A, vID)
    sT16 = sZA
    tag_compute(A, sT16)
    if FAST:
        skip = A.label('NORG')
        A('s_cmp_eq_u32 s%d, 0', sTL)
        A('s_cbranch_scc1 %s', skip)
        A('s_getreg_b32 s%d, hwreg(HW_REG_XCC_ID)', sT2)
        A('s_and_b32 s%d, s%d, 15', sT2, sT2)
        A('s_add_u32 s%d, s%d, s%d', sT2, sT2, sTAG)
        A('v_mov_b32 v%d, s%d', vT0, sT2)
        A('s_lshl_b32 s%d, s%d, 7', sT, sXCD)
        A('s_lshl_b32 s%d, s%d, 2', sT2, sI)
        A('s_add_u32 s%d, s%d, s%d', sT, sT, sT2)
        A('s_add_u32 s%d, s%d, %d', sT, sT, FREG)
        A('s_mov_b64 exec, 1')
        A('buffer_store_dword v%d, v%d, s[%d:%d], s%d offen sc1', vT0, vO, SWS, SWS + 3, sT)
        A('s_mov_b64 exec, -1')
        A('%s:', skip)
    six, both = A.label('SIX'), A.label('BOTH')
    A('s_cmp_eq_u32 s%d, 1', sTL)
    A('s_cbranch_scc1 %s', six)
    colsum(A, sTL)
    A('s_waitcnt vmcnt(0)')
    A('s_branch %s', both)
    A('%s:', six)
    if FAST:
        wait_lp(A, ('x', 6), 2)
        fast_check(A)
        A('v_mov_b32 v%d, s%d', vT0, sFASTF)
        A('ds_write_b32 v%d, v%d offset:%d', vMI, vT0, M_FAST)
    A('%s:', both)
    set_stage(A, 1)
    stamp(A)
    A('s_lshl_b32 s%d, s%d, 11', sT2, sTL)
    A('v_add_u32 v%d, s%d, v%d', vTT, sT2, vO)
    A('v_add_u32 v%d, %d, v%d', vTT + 1, L_KVA, vTT)
    A('v_add_u32 v%d, %d, v%d', vTT + 2, L_KVV, vO)
    A('s_lshl_b32 s%d, s%d, 16', sXB, sH)
    A('s_add_u32 s%d, s%d, s%d', sXB, sXB, sT2)
    A('s_add_u32 s%d, s%d, %d', sXB, sXB, WS_KVP)
    A('s_lshl_b32 s%d, s%d, 12', sB, sTB)
    A('s_add_u32 s%d, s%d, s%d', sB, sB, sXB)
    A('s_lshl_b32 s%d, s%d, 1', sM0, sH)
    A('s_add_u32 s%d, s%d, s%d', sM0, sM0, sTL)
    FSH = E('F1SH', 8)
    A('s_lshl_b32 s%d, s%d, %d', sM0, sM0, 4 + FSH)
    A('s_add_u32 s%d, s%d, %d', sM0, sM0, F1)
    A('s_lshl_b32 s%d, s%d, 2', sFL, sTB)
    A('s_add_u32 s%d, s%d, s%d', sFL, sFL, sM0)
    A('s_lshl_b32 s%d, s%d, %d', sT, sTB, FSH)
    A('s_add_u32 s%d, s%d, s%d', sM0, sM0, sT)
    A('s_add_u32 s%d, s%d, s%d', sPC, SWS, sM0)
    A('s_addc_u32 s%d, s%d, 0', sPC + 1, SWS + 1)
    if E('FT', 3) & 1:
        A('s_load_dword s%d, s[%d:%d], 0 glc', sZB, sPC, sPC + 1)
    A('v_lshlrev_b32 v%d, %d, v%d', vXA, FSH, vL)
    A('v_lshlrev_b32 v%d, 2, v%d', vXA + 1, vL)
    vTA = 152
    wait_stage(A, C0)
    for k in range(8):
        A('ds_read_b128 %s, v%d offset:%d', v(vVF + 4 * k, 4), vTT + 1, (k >> 1) * 4096 + (k & 1) * 1024)
    for k in range(8):
        A('s_waitcnt lgkmcnt(%d)', 7 - k)
        mfma(A, vTA + 16 * (k >> 1), vVF + 4 * k, vID + 4 * (k & 1), (k & 1) == 0)
    for w in range(4):
        cvt8(A, vAF + 8 * w, vTA + 16 * w)

    def v_reads():
        for k in range(8):
            A('ds_read_b128 %s, v%d offset:%d', v(vVF + 4 * k, 4), vTT + 2, (k >> 1) * 4096 + (k & 1) * 1024)
        return 8
    wait_stage(A, C0 + 1, body=v_reads)
    stamp(A)
    for k in range(8):
        A('s_waitcnt lgkmcnt(%d)', 7 - k)
        mfma(A, vAC, vAF + 4 * k, vVF + 4 * k, k == 0)
    set_stage(A, 2)
    cvt8(A, vAF, vAC)
    TAGS = E('TAGS', 1)
    if TAGS:
        for q in range(2):
            A('v_and_b32 v%d, 0xffff, v%d', vAF + 4 * q + 3, vAF + 4 * q + 3)
            A('v_or_b32 v%d, s%d, v%d', vAF + 4 * q + 3, sT16, vAF + 4 * q + 3)
    pub_stores(A, [st4(vAF + 4 * q, sB, q * 1024) for q in range(2)], MAP == 3)
    if not TAGS:
        A('s_waitcnt vmcnt(0)')
    A('s_mov_b64 exec, 0xffff')
    two_ways(A, lambda B, bits: B('buffer_store_dword v%d, v%d, s[%d:%d], s%d offen%s', vTAG, vXA, SWS, SWS + 3, sFL,
                                  bits), MAP == 3)
    A('s_mov_b64 exec, -1')
    stamp(A)
    sRDY, sPND, sRET = sHI, sHI + 1, sPADL
    base = 68 if STAMPS else 72
    pol = A.label('POLL')
    B = sub(A)
    lo, out = B.label('P'), B.label('PD')
    B('%s:', pol)
    B('%s:', lo)
    if E('PSLEEP', 0):
        B('s_sleep %d', E('PSLEEP', 0))
    if E('SPOLL', 1) and MAP == 0:
        B('s_load_dwordx16 s[%d:%d], s[%d:%d], 0 glc', base, base + 15, sPC, sPC + 1)
        B('s_mov_b32 s%d, 0', sRDY)
        B('s_waitcnt lgkmcnt(%d)', E('PPIPE', 8))
        for p_ in range(15, -1, -1):
            B('s_cmp_eq_u32 s%d, s%d', base + p_, sTAG)
            B('s_addc_u32 s%d, s%d, s%d', sRDY, sRDY, sRDY)
    else:
        B('s_mov_b64 exec, 0xffff')
        B('buffer_load_dword v%d, v%d, s[%d:%d], s%d offen sc1', vT0, vXA + 1, SWS, SWS + 3, sM0)
        B('s_waitcnt vmcnt(0)')
        B('v_cmp_eq_u32 vcc, s%d, v%d', sTAG, vT0)
        B('s_mov_b64 exec, -1')
        B('s_mov_b32 s%d, vcc_lo', sRDY)
    B('s_sub_u32 s%d, s%d, 1', sSPIN, sSPIN)
    B('s_cselect_b32 s%d, -1, s%d', sRDY, sRDY)
    B('s_and_b32 s%d, s%d, s%d', sRDY, sRDY, sPND)
    B('s_cbranch_scc0 %s', lo)
    B('s_setpc_b64 s[%d:%d]', sRET, sRET + 1)
    over = A.label('OV')
    A('s_not_b32 s%d, s%d', base, sTAG)
    A('s_mov_b32 s%d, s%d', base + 1, base)
    for k in range(2, 16, 2):
        A('s_mov_b64 s[%d:%d], s[%d:%d]', base + k, base + k + 1, base, base + 1)
    A('s_branch %s', over)
    A.lines += B.lines
    A('%s:', over)
    A('s_mov_b32 s%d, 0', sRDY)
    A('s_mov_b32 s%d, 0xffff', sPND)
    vCK = vXA + 2
    A('v_mov_b32 v%d, 0', vCK)
    A('s_nop 1')
    vG = [72 + 4 * k for k in range(16)] + [152 + 4 * k for k in range(16)]
    GD = E('GLAG', 8)

    def gmm(k, issued):
        for q in range(2):
            A('s_waitcnt vmcnt(%d)', 2 * issued - (2 * k + q) - 1)
            mfma(A, vAC, vID + 4 * q, vG[2 * k + q], k == 0 and q == 0)
            if TAGS:
                A('v_xor_b32 v%d, s%d, v%d', vCK + 1, sT16, vG[2 * k + q] + 3)
                A('v_or_b32 v%d, v%d, v%d', vCK, vCK, vCK + 1)
    for k in range(16):
        A('s_getpc_b64 s[%d:%d]', sRET, sRET + 1)
        A('s_cmp_eq_u32 s%d, 0', sRDY)
        A('s_cbranch_scc1 %s', pol)
        A('s_ff1_i32_b32 s%d, s%d', sT, sRDY)
        A('s_bitset0_b32 s%d, s%d', sRDY, sT)
        A('s_bitset0_b32 s%d, s%d', sPND, sT)
        A('s_lshl_b32 s%d, s%d, 12', sT, sT)
        A('s_add_u32 s%d, s%d, s%d', sT, sT, sXB)
        if E('ABL', 0) & 32:
            A('s_mov_b32 s%d, s%d', sT, sB)
        for q in range(2):
            A('buffer_load_dwordx4 %s, v%d, s[%d:%d], s%d offen offset:%d sc1', v(vG[2 * k + q], 4), vO, SWS, SWS + 3,
              sT, q * 1024)
        if k == E('GST', 15):
            stamp(A)
        if k >= GD:
            gmm(k - GD, k + 1)
    for k in range(16 - GD, 16):
        gmm(k, 16)
    if TAGS:
        ok = A.label('TOK')
        A('v_cmp_lt_u32 vcc, 0xffff, v%d', vCK)
        spin_guard(A, ok)
        A('s_nop 15')
        A('s_cbranch_vccnz %s', over)
        A('%s:', ok)
    A('v_add_u32 v%d, %d, v%d', vTT, L_EX, vTT)
    cvt8(A, 72, vAC)
    for q in range(2):
        A('ds_write_b128 v%d, %s offset:%d', vTT, v(72 + 4 * q, 4), q * 1024)
    set_stage(A, 3)
    stamp(A)
    lend = A.label('LEND')
    A('s_cmp_ge_u32 s%d, 28', sI)
    A('s_cbranch_scc1 %s', lend)
    A('v_lshlrev_b32 v%d, 2, v%d', vCA, vL)
    A('v_add_u32 v%d, %d, v%d', vTT + 2, L_EX, vO)
    wait_stage(A, C0 + 7, sleep=2)
    HELP['hot'] = bool(E('STHOT', 0))
    l5 = A.label('S5')
    A('s_cmp_eq_u32 s%d, 0', sTL)
    A('s_cbranch_scc1 %s', l5)
    for gi in (0, 2, 1, 3):
        if gi == 1:
            A('s_branch %s', lend)
            A('%s:', l5)
        wait_lp(A, ('hs', gi), 1)
        if E('STPRIO', 2) != 2:
            A('s_setprio %d', E('STPRIO', 2))
        base = L_SC0 + gi * 4096
        for q in range(7):
            A('ds_read2st64_b32 v[%d:%d], v%d offset0:%d offset1:%d', 72 + 2 * q, 73 + 2 * q, vCA,
              base // 256 + 2 * q, base // 256 + 2 * q + 1)
        A('s_waitcnt lgkmcnt(0)')
        for q in range(2, 14):
            A('v_add_f32 v%d, v%d, v%d', 72 + (q & 1), 72 + (q & 1), 72 + q)
        A('v_add_f32 v%d, v72, v73', vTT)
        ln_finish(A, vTT, vTT + 1, vNM, vRS)
        hilo_m(A, vNM, 88, vT0)
        A('v_mul_f32 v90, v%d, v%d', vTT + 1, vRS)
        A('v_mul_f32 v91, 0x%x, v%d', LOG2E ^ 0x80000000, vRS)
        A('ds_write_b128 v%d, v[88:91] offset:%d', vTT + 2, gi * 1024)
        set_stage(A, 4 + gi // 2)
    HELP['hot'] = False
    A('%s:', lend)
    A('s_waitcnt lgkmcnt(0)')
    stamp_flush(A)
    A('s_endpgm')


def refresh_routines(A):
    for w in (7, 4):
        A('REFRESH_%d:', w)
        if w == 5:
            A('ds_read_b32 v%d, v%d', vPW, vCA)
        else:
            A('ds_read_b32 v%d, v%d offset:%d', vPW, vMI, M_PW + 4 * w)
        if E('CSLP', 0):
            A('s_mov_b32 vcc_hi, s%d', CACHE[w])
        A('s_waitcnt lgkmcnt(0)')
        A('v_readfirstlane_b32 s%d, v%d', CACHE[w], vPW)
        if E('CSLP', 0):
            A('s_cmp_lg_u32 vcc_hi, s%d', CACHE[w])
            A('s_cbranch_scc1 REFD_%d', w)
            A('s_sleep %d', E('CSLP', 0))
            A('REFD_%d:', w)
        A('s_sub_u32 s%d, s%d, 1', sSPIN, sSPIN)
        A('s_cselect_b32 s%d, -1, s%d', CACHE[w], CACHE[w])
        A('s_setpc_b64 s[%d:%d]', sPC, sPC + 1)


def gen_compute(A):
    vPH, vID, vWF, vAC, vPK = 40, 48, 56, 88, 120
    vMF, vCF = 136, 140
    vE = vWF
    vAC2 = vAC + 16
    vX = vXR
    A('s_setprio %d', E('CPRIO', 1))
    rest_srds(A)
    A('s_lshl_b32 s%d, s%d, 12', sM0, sWV)
    A('v_and_b32 v%d, 31, v%d', vT0, vL)
    A('v_lshlrev_b32 v%d, 7, v%d', vTT, vT0)
    A('v_add_u32 v%d, s%d, v%d', vTT, sM0, vTT)
    A('v_bfe_u32 v%d, v%d, 1, 3', vT0, vL)
    A('v_lshrrev_b32 v%d, 5, v%d', vT1, vL)
    A('v_xor_b32 v%d, v%d, v%d', vT0, vT0, vT1)
    for q in range(4):
        A('v_xor_b32 v%d, %d, v%d', vXA + q, 2 * q, vT0)
        A('v_lshl_add_u32 v%d, v%d, 4, v%d', vXA + q, vXA + q, vTT)
    wtr_base(A)
    for r in (vSM, vSM + 1, vSQ, vSQ + 1, vMF + 2, vMF + 3, vCF + 2, vCF + 3):
        A('v_mov_b32 v%d, 0', r)
    A('s_mov_b32 s%d, 0', sHI)
    A('s_mov_b32 s%d, -1', sHI + 1)
    A('s_bitcmp1_b32 s%d, 0', sH)
    A('s_cselect_b32 s%d, 0xf, 0xf0000000', sPADL)
    A('s_mov_b32 s%d, s%d', sPADL + 1, sPADL)
    A('s_cselect_b32 s%d, -1, 0', sZA)
    A('s_mov_b32 s%d, 0', sZA + 1)
    A('s_mov_b32 s%d, 0', sZB)
    A('s_cselect_b32 s%d, 0, -1', sZB + 1)
    A('s_cselect_b64 s[%d:%d], -1, 0', sODD, sODD + 1)
    vPA = vRA
    A('v_bfe_u32 v%d, v%d, 2, 2', vT0, vL)
    A('v_lshrrev_b32 v%d, 5, v%d', vT1, vL)
    A('v_lshl_add_u32 v%d, v%d, 2, v%d', vT0, vT1, vT0)
    A('v_mul_u32_u24 v%d, 56, v%d', vT0, vT0)
    A('v_and_b32 v%d, 3, v%d', vT1, vL)
    A('v_bfe_u32 v%d, v%d, 4, 1', vTT, vL)
    A('v_lshl_add_u32 v%d, v%d, 2, v%d', vT1, vTT, vT1)
    A('v_min_u32 v%d, 6, v%d', vT1, vT1)
    A('v_lshl_add_u32 v%d, v%d, 3, v%d', vT0, vT1, vT0)
    A('s_and_b32 s%d, s%d, 1', sT, sH)
    A('s_mul_i32 s%d, s%d, 224', sT, sT)
    A('s_sub_u32 s%d, %d, s%d', sT, L_PHI, sT)
    A('v_add_u32 v%d, s%d, v%d', vPA, sT, vT0)
    tag_compute(A)

    def mm1(B, acc, i, q, swap):
        buf = vWF + 16 * (i & 1)
        xf, wf = vX + (4 * i + q) * 4, buf + 4 * q
        if swap:
            mfma(B, acc, xf, wf, i == 0 and q == 0)
        else:
            mfma(B, acc, wf, xf, i == 0 and q == 0)

    def rw2(Q, pi, i, q):
        buf = vWF + 16 * (i & 1)
        for z in range(2):
            Q.op(('w', i, q), 'ds_read_b64_tr_b16 v[%d:%d], v%d offset:%d', buf + 4 * q + 2 * z, buf + 4 * q + 2 * z + 1,
                 vWA + pi, i * 4096 + q * 1024 + z * 256)

    vXH = vXD
    for q in range(4):
        A('v_add_u32 v%d, 0x10000, v%d', vXH + q, vXA + q)
    Q = LdsQ(A)
    for i in range(7):
        if i:
            stamp(A, 'k')
        if i == 0:
            A('s_waitcnt vmcnt(0)')
        else:
            wait_lp(A, ('x', i))
        stamp(A, 'k')
        for q in range(4):
            Q.op(('x', i), 'ds_read_b128 %s, v%d offset:%d', v(vX + (4 * i + q) * 4, 4), (vXA if i < 4 else vXH) + q,
                 (i & 3) * 16384)
        if i in (1, 3):
            Q.stage((i + 1) // 2)
        wait_lp(A, ('W', 0, i))
        for q in range(4):
            if i > 0:
                Q.wait(('w', i - 1, q))
                mm1(A, vAC, i - 1, q, False)
            rw2(Q, 0, i, q)
        if i < 6:
            Q.op('pk2', 'ds_read_b128 v[%d:%d], v%d offset:%d', vTT, vTT + 3, vMI, M_PW + 16)
        Q.wait(('x', i))
        for r in range(16):
            x = vX + 16 * i + r
            A('v_dot2c_f32_bf16 v%d, s%d, v%d', vSM + (r & 1), sONES, x)
            A('v_dot2c_f32_bf16 v%d, v%d, v%d', vSQ + (r & 1), x, x)
        if i < 6:
            Q.wait('pk2')
            A('v_readfirstlane_b32 s%d, v%d', sPROG, vTT)
            A('v_readfirstlane_b32 s%d, v%d', sPROG1, vTT + 3)
    Q.stage(3)
    B = sub(A)
    B('v_add_f32 v%d, v%d, v%d', vSM, vSM, vSM + 1)
    B('v_add_f32 v%d, v%d, v%d', vSQ, vSQ, vSQ + 1)
    B('v_permlane32_swap_b32 v%d, v%d', vSM, vSQ)
    B('v_add_f32 v%d, v%d, v%d', vT0, vSM, vSQ)
    ln_finish(B, vT0, vT1, vNM, vRS)
    hilo_m(B, vNM, vMF, vT0)
    B('v_mul_f32 v%d, 0x%x, v%d', vSC, LOG2E, vRS)
    M = sub(A)
    Q.A = M
    for q in range(4):
        Q.wait(('w', 6, q))
        mm1(M, vAC, 6, q, False)
    A.lines += merge(M.lines, [[l] for l in B.lines], 0, 4)

    def cf_phi_reads():
        A('ds_read_b64 v[%d:%d], v%d', vCF, vCF + 1, vCA)
        for sidx in range(2):
            for z in range(2):
                A('ds_read_b64_tr_b16 v[%d:%d], v%d offset:%d', vPH + 4 * sidx + 2 * z, vPH + 4 * sidx + 2 * z + 1,
                  vPA, (16 * sidx + 8 * z) * 56)
        return 5
    stamp(A, 'v')
    wait_word(A, 5, 1, body=cf_phi_reads)
    stamp(A)
    stamp(A, 'v')
    A('s_waitcnt lgkmcnt(4)')

    def project(mid=None):
        mfma(A, vAC, vCF, vMF)
        if mid:
            mid()
        cvt8(A, vPK, vAC)
        mfma(A, vAC, vPH, vPK, True)
        mfma(A, vAC, vPH + 4, vPK + 4)

    def mid_k():
        A('v_and_b32 v%d, 31, v%d', vT0, vL)
        A('s_lshl_b32 s%d, s%d, 7', sT, sWV)
        A('s_add_u32 s%d, s%d, %d', sT, sT, L_RSTD)
        A('v_lshl_add_u32 v%d, v%d, 2, s%d', vT0, vT0, sT)
        A('s_waitcnt lgkmcnt(0)')
        A('ds_write_b32 v%d, v%d', vT0, vRS)
        A('v_lshrrev_b32 v%d, 5, v%d', vRA, vL)
        A('v_lshl_add_u32 v%d, v%d, 4, s%d', vRA, vRA, sT)
        for r in (0, 1):
            A('v_cndmask_b32 v%d, v%d, 0, s[%d:%d]', vPH + r, vPH + r, sZA, sZA + 1)
            A('v_cndmask_b32 v%d, v%d, 0, s[%d:%d]', vPH + 6 + r, vPH + 6 + r, sZB, sZB + 1)

    def gemm_head(B, pi):
        Q = LdsQ(B)
        wait_lp(B, ('W', pi, 0))
        for q in range(4):
            rw2(Q, pi, 0, q)
        return Q

    def gemm_part(B, acc, pi, swap, last_stage=None, Q=None):
        if Q is None:
            Q = gemm_head(B, pi)
        for i in range(7):
            if i == 6 and last_stage:
                Q.stage(last_stage)
            if pi == 1 and i in (0, 2, 4, 6):
                stamp(B, 'v')
            for q in range(4):
                Q.wait(('w', i, q))
                if q == 0:
                    Q.take(4)
                mm1(B, acc, i, q, swap)
                if i < 6:
                    if q == 0:
                        wait_lp(B, ('W', pi, i + 1))
                        if i < 5:
                            Q.peek(4)
                    rw2(Q, pi, i + 1, q)

    vOW = vXD
    A('v_add_u32 v%d, s%d, v%d', vOW, sM0, vO)
    A('v_add_u32 v%d, %d, v%d', vOW, L_KVA, vOW)
    project(mid_k)
    stamp(A, 'v')
    B = sub(A)
    softmax_pm(B, vAC, vSC, vPK, vTT)
    A.lines += B.lines[:-30]
    Q = gemm_head(A, 1)
    A.lines += B.lines[-30:]
    for q, src in enumerate((vAC, vAC + 4, vPK, vPK + 4)):
        Q.op('pw', 'ds_write_b128 v%d, %s offset:%d', vOW, v(src, 4), q * 1024)
    Q.stage(C0)
    for q in range(4):
        Q.op('rs', 'ds_read_b128 %s, v%d offset:%d', v(vAC + 4 * q, 4), vRA, q * 32)
    stamp(A, 'v')
    gemm_part(A, vAC2, 1, True, None, Q)
    stamp(A, 'v')

    def cfv_reads():
        A('ds_read_b64 v[%d:%d], v%d offset:%d', vCF, vCF + 1, vCA, 512)
        return 1
    wait_word(A, 7, 8, body=cfv_reads)
    stamp(A, 'v')
    A('s_waitcnt lgkmcnt(0)')
    mfma(A, vAC2, vMF, vCF)
    A('v_mov_b32 v%d, 0x%x', vT1, ONES)
    for r in range(0, 16, 2):
        A('v_pk_mul_f32 v[%d:%d], v[%d:%d], v[%d:%d]', vAC2 + r, vAC2 + r + 1, vAC2 + r, vAC2 + r + 1, vAC + r,
          vAC + r + 1)
    cvt8(A, vPK, vAC2)
    for r in range(8):
        A('v_cndmask_b32 v%d, v%d, v%d, s[%d:%d]', vPK + r, vPK + r, vT1, sPADL, sPADL + 1)
    for q in range(2):
        A('ds_write_b128 v%d, %s offset:%d', vOW, v(vPK + 4 * q, 4), L_KVV - L_KVA + q * 1024)
    set_stage(A, C0 + 1)
    stamp(A)
    stamp(A, 'v')
    gemm_part(A, vAC, 2, False, C0 + 3)
    vHP, vRX, vRO = 120, 48, vSM + 1

    def unpack_hp(src=120):
        for r in range(8):
            A('v_lshlrev_b32 v%d, 16, v%d', vAC + 2 * r, src + r)
            A('v_and_b32 v%d, 0xffff0000, v%d', vAC + 2 * r + 1, src + r)
    A('s_and_b32 s%d, s%d, 1', sG, sWV)
    A('s_lshr_b32 s%d, s%d, 1', sKH, sWV)
    A('s_lshl_b32 s%d, s%d, 1', sT, sTQ)
    A('s_add_u32 s%d, s%d, s%d', sG, sG, sT)
    A('v_and_b32 v%d, 31, v%d', vRO, vL)
    A('v_mul_u32_u24 v%d, 896, v%d', vRO, vRO)
    A('v_lshrrev_b32 v%d, 5, v%d', vT1, vL)
    A('v_lshl_add_u32 v%d, v%d, 4, v%d', vRO, vT1, vRO)
    A('s_mul_i32 s%d, s%d, %d', sT, sG, 32 * 896)
    A('s_lshl_b32 s%d, s%d, 7', sT2, sNB)
    A('s_add_u32 s%d, s%d, s%d', sT, sT, sT2)
    A('s_lshl_b32 s%d, s%d, 6', sT2, sKH)
    A('s_add_u32 s%d, s%d, s%d', sT, sT, sT2)
    A('v_add_u32 v%d, s%d, v%d', vRO, sT, vRO)
    for q in range(2):
        A('buffer_load_dwordx4 %s, v%d, s[%d:%d], 0 offen offset:%d', v(vRX + 4 * q, 4), vRO, SX, SX + 3, q * 32)

    def cfq_reads():
        A('ds_read_b64 v[%d:%d], v%d offset:%d', vCF, vCF + 1, vCA, 2 * 512)
        return 1
    wait_word(A, 7, 9, body=cfq_reads)
    A('s_waitcnt lgkmcnt(0)')
    project()
    softmax_pm(A, vAC, vSC, vPK, vTT)
    vQF = [vAC, vAC + 4, vPK, vPK + 4]
    stamp(A)
    vW1A = vXA
    A('v_bfe_u32 v%d, v%d, 2, 2', vT0, vL)
    A('v_lshrrev_b32 v%d, 5, v%d', vT1, vL)
    A('v_lshl_add_u32 v%d, v%d, 2, v%d', vT1, vT1, vT0)
    A('v_lshlrev_b32 v%d, 8, v%d', vW1A, vT1)
    A('v_lshlrev_b32 v%d, 7, v%d', vWA, vT1)
    A('v_xor_b32 v%d, s%d, v%d', vT0, sWV, vT0)
    A('v_lshl_add_u32 v%d, v%d, 6, v%d', vW1A, vT0, vW1A)
    A('v_bfe_u32 v%d, v%d, 4, 1', vT1, vL)
    A('v_lshlrev_b32 v%d, 5, v%d', vT1, vT1)
    A('v_and_b32 v%d, 3, v%d', vT0, vL)
    A('v_lshl_add_u32 v%d, v%d, 3, v%d', vT1, vT0, vT1)
    A('v_add_u32 v%d, v%d, v%d', vW1A, vW1A, vT1)
    A('v_add_u32 v%d, 0x8000, v%d', vW1A + 1, vW1A)
    A('v_add_u32 v%d, v%d, v%d', vWA, vWA, vT1)
    A('v_bfe_u32 v%d, v%d, 3, 1', vT1, vL)
    A('v_lshl_add_u32 v%d, v%d, 6, v%d', vWA, vT1, vWA)

    def w1_copy(c):
        wait_lp(A, ('w1', c))
        for q in range(4):
            for z in range(2):
                off = w1_slot(c) + (16 * q + 8 * z) * 256
                base = vW1A
                if off >= 0x8000:
                    off -= 0x8000
                    base += 1
                r = vXR + (4 * c + q) * 4 + 2 * z
                A('ds_read_b64_tr_b16 v[%d:%d], v%d offset:%d', r, r + 1, base, off)

    sCPD = sXB
    A('s_mov_b32 s%d, 0', sCPD)

    def try_copy(block):
        skip = A.label('NC')
        A('s_cmp_lg_u32 s%d, 0', sCPD)
        A('s_cbranch_scc1 %s', skip)
        if not block:
            ow = LP[('w1', 1)][0]
            if block is not None:
                A('ds_read_b32 v%d, v%d offset:%d', vPW + ow - 4, vMI, M_PW + 4 * ow)
                A('s_waitcnt lgkmcnt(0)')
            A('v_readfirstlane_b32 s%d, v%d', CACHE[ow], vPW + ow - 4)
            A('s_cmp_lt_u32 s%d, %d', CACHE[ow], LP[('w1', 1)][1])
            A('s_cbranch_scc1 %s', skip)
        w1_copy(0)
        w1_copy(1)
        A('s_mov_b32 s%d, 1', sCPD)
        A('v_mov_b32 v%d, 1', vT0)
        A('ds_write_b32 v%d, v%d offset:%d', vMY, vT0, M_CP)
        A('%s:', skip)
    vCS = vSQ
    NE = 4 if LATE else 5

    def try_copy2(block):
        skip = A.label('NC')
        A('s_cmp_lg_u32 s%d, 1', sCPD)
        A('s_cbranch_scc1 %s', skip)
        if not block:
            A('ds_read_b32 v%d, v%d offset:%d', vPW, vMI, M_PW + 16)
            A('s_waitcnt lgkmcnt(0)')
            A('v_readfirstlane_b32 s%d, v%d', sPROG, vPW)
            A('s_cmp_lt_u32 s%d, %d', sPROG, LP[('w1', NE - 1)][1])
            A('s_cbranch_scc1 %s', skip)
        for c in range(2, NE):
            w1_copy(c)
        A('s_mov_b32 s%d, 2', sCPD)
        A('v_mov_b32 v%d, 0', vCS)
        A('v_mov_b32 v%d, 0', vCS + 1)
        for r in range(16 * NE):
            if r == 0:
                A('s_waitcnt lgkmcnt(15)')
            if r == 32:
                A('s_waitcnt lgkmcnt(0)')
            A('v_dot2c_f32_bf16 v%d, s%d, v%d', vCS + (r & 1), sONES, vXR + r)
        A('%s:', skip)
    A('s_lshl_b32 s%d, s%d, 2', sFL, sTB)
    A('s_add_u32 s%d, s%d, s%d', sFL, sFL, sWV)
    A('s_lshl_b32 s%d, s%d, 4', sFL, sFL)
    A('s_add_u32 s%d, s%d, s%d', sFL, sFL, sH)
    A('s_lshl_b32 s%d, s%d, 11', sB, sFL)
    A('s_add_u32 s%d, s%d, %d', sB, sB, WS_OB)
    if MAP == 0:
        A('s_lshl_b32 s%d, s%d, 2', sFL, sFL)
        A('s_add_u32 s%d, s%d, %d', sFL, sFL, F2)
    else:
        A('s_lshr_b32 s%d, s%d, 3', sFL, sFL)
        A('s_lshl_b32 s%d, s%d, 10', sFL, sFL)
        A('s_and_b32 s%d, s%d, 7', sT, sH)
        A('s_lshl_b32 s%d, s%d, 2', sT, sT)
        A('s_add_u32 s%d, s%d, s%d', sFL, sFL, sT)
        A('s_add_u32 s%d, s%d, %d', sFL, sFL, F2X)
    vEX = vXD + 1
    A('v_add_u32 v%d, %d, v%d', vEX, L_EX, vO)

    def ex_reads():
        for q in range(4):
            A('ds_read_b128 %s, v%d offset:%d', v(vWF + 4 * q, 4), vEX, q * 1024)
        return 4
    lo, done = A.label('W'), A.label('WD')
    A('%s:', lo)
    A('ds_read_b128 v[%d:%d], v%d offset:%d', vPW, vPW + 3, vMI, M_PW + 16)
    A('ds_read_b32 v%d, v%d offset:%d', vPK_, vMI, M_FAST)
    ex_reads()
    A('s_waitcnt lgkmcnt(4)')
    A('v_readfirstlane_b32 s%d, v%d', sFASTF, vPK_)
    A('v_min_u32 v%d, v%d, v%d', vPW + 1, vPW + 1, vPW + 2)
    A('v_readfirstlane_b32 s%d, v%d', sT, vPW + 1)
    spin_guard(A, done)
    A('s_cmp_ge_u32 s%d, 3', sT)
    A('s_cbranch_scc1 %s', done)
    try_copy(None)
    if E('CSLP', 0):
        A('s_sleep %d', E('CSLP', 0))
    A('s_branch %s', lo)
    A('%s:', done)
    stamp(A)
    for q in range(4):
        A('s_waitcnt lgkmcnt(%d)', 3 - q)
        mfma(A, vAC2, vWF + 4 * q, vQF[q], q == 0)
    A('v_cndmask_b32 v%d, v%d, v%d, s[%d:%d]', vT0, vAC2 + 12, vAC2, sODD, sODD + 1)
    A('v_mov_b32 v%d, v%d', vT1, vT0)
    A('v_permlane32_swap_b32 v%d, v%d', vT0, vT1)
    A('v_cndmask_b32 v%d, v%d, v%d, s[%d:%d]', vTT, vT1, vT0, sODD, sODD + 1)
    A('v_add_f32 v%d, 0x%x, v%d', vTT, 0x358637bd, vTT)
    A('v_rcp_f32 v%d, v%d', vTT, vTT)
    for r in range(0, 16, 2):
        A('v_pk_mul_f32 v[%d:%d], v[%d:%d], v[%d:%d] op_sel_hi:[1,0]', vAC2 + r, vAC2 + r + 1, vAC2 + r, vAC2 + r + 1,
          vTT, vTT + 1)
    cvt8(A, vPK, vAC2)
    for r in (0, 1):
        A('v_cndmask_b32 v%d, v%d, 0, s[%d:%d]', vPK + r, vPK + r, sZA, sZA + 1)
        A('v_cndmask_b32 v%d, v%d, 0, s[%d:%d]', vPK + 6 + r, vPK + 6 + r, sZB, sZB + 1)
    pub_stores(A, [st4(vPK + 4 * q, sB, q * 1024) for q in range(2)], MAP == 0 and not WTO)
    A('s_waitcnt vmcnt(2)')
    for q in range(2):
        A('v_permlane32_swap_b32 v%d, v%d', vRX + 4 * q, vRX + 4 * q + 2)
        A('v_permlane32_swap_b32 v%d, v%d', vRX + 4 * q + 1, vRX + 4 * q + 3)
    unpack_hp(vRX)
    A('s_lshl_b32 s%d, s%d, 6', sT, sKH)
    A('v_xor_b32 v%d, s%d, v%d', vWA, sT, vWA)
    A('v_xor_b32 v%d, 64, v%d', vWA + 1, vWA)
    A('s_mul_i32 s%d, s%d, %d', sT, sKH, 224 * 128)
    A('s_add_u32 s%d, s%d, %d', sT, sT, L_A)
    A('v_add_u32 v%d, s%d, v%d', vWA + 2, sT, vWA)
    A('v_add_u32 v%d, s%d, v%d', vWA + 3, sT, vWA + 1)
    vSW, vSR, vPP = vXA + 2, vXA + 3, vSM
    A('s_and_b32 s%d, s%d, 1', sC, sWV)
    A('s_lshl_b32 s%d, s%d, 12', sC, sC)
    A('v_add_u32 v%d, s%d, v%d', vSW, sC, vO)
    A('s_cmp_eq_u32 s%d, 0', sKH)
    A('s_cselect_b32 s%d, %d, %d', sT, L_SC0 >> 12, L_SC1 >> 12)
    A('s_cselect_b32 s%d, %d, %d', sT2, L_SC1 >> 12, L_SC0 >> 12)
    A('s_lshl_b32 s%d, s%d, 12', sT, sT)
    A('s_lshl_b32 s%d, s%d, 12', sT2, sT2)
    A('v_add_u32 v%d, s%d, v%d', vSR, sT2, vSW)
    A('v_add_u32 v%d, s%d, v%d', vSW, sT, vSW)
    A('v_xor_b32 v%d, 8, v%d', vPP, vMY)
    A('s_lshl_b32 s%d, s%d, 15', sB, sG)
    A('s_lshl_b32 s%d, s%d, 14', sT, sKH)
    A('s_add_u32 s%d, s%d, s%d', sB, sB, sT)
    A('s_add_u32 s%d, s%d, %d', sB, sB, WS_OB)
    if MAP == 0:
        A('s_lshl_b32 s%d, s%d, 6', sC, sG)
        A('s_lshl_b32 s%d, s%d, 5', sT, sKH)
        A('s_add_u32 s%d, s%d, s%d', sC, sC, sT)
        A('s_add_u32 s%d, s%d, %d', sC, sC, F2)
        pub_flag(A, sFL, True)
    else:
        A('s_lshl_b32 s%d, s%d, 11', sC, sG)
        A('s_lshl_b32 s%d, s%d, 10', sT, sKH)
        A('s_add_u32 s%d, s%d, s%d', sC, sC, sT)
        A('s_lshl_b32 s%d, s%d, 7', sT, sNB)
        A('s_add_u32 s%d, s%d, s%d', sC, sC, sT)
        A('s_add_u32 s%d, s%d, %d', sC, sC, F2X)
        A('v_lshlrev_b32 v%d, 7, v%d', vT1, vL)
        if not E('NODRAIN2', 0):
            A('s_waitcnt vmcnt(0)')
        A('s_mov_b64 exec, 0x7f')
        A('buffer_store_dword v%d, v%d, s[%d:%d], s%d offen sc1', vTAG, vT1, SWS, SWS + 3, sFL)
        A('s_mov_b64 exec, -1')
    set_stage(A, C0 + 5)
    stamp(A)
    fin = A.label('FIN')
    A('s_cmp_ge_u32 s%d, 28', sI)
    A('s_cbranch_scc1 %s', fin)

    vB2 = [40 + 4 * k for k in range(8)] + [224 + 4 * k for k in range(8)]
    vWF2 = 72
    sB3, sFL3 = sODD, sODD + 1
    sBL, sFL2, sPF, sBK, sBS, sHB, sEM = 4, 5, 6, 7, 8, 9, 10
    A('s_mul_i32 s%d, s%d, %d', sB3, sTB3, 4 * 112)
    A('s_lshl_b32 s%d, s%d, 3', sT, sFB)
    A('s_add_u32 s%d, s%d, s%d', sB3, sB3, sT)
    A('s_lshl_b32 s%d, s%d, 1', sT, sWV)
    A('s_add_u32 s%d, s%d, s%d', sB3, sB3, sT)
    A('s_lshl_b32 s%d, s%d, 10', sB3, sB3)
    A('s_add_u32 s%d, s%d, %d', sB3, sB3, WS_H1B)
    A('s_add_u32 s%d, s%d, %d', sBL, sB3, 2 * 112 * 1024)
    A('s_lshl_b32 s%d, s%d, 9', sFL3, sTB3)
    A('s_lshl_b32 s%d, s%d, 4', sT, sFB)
    A('s_add_u32 s%d, s%d, s%d', sFL3, sFL3, sT)
    A('s_lshl_b32 s%d, s%d, 2', sT, sWV)
    A('s_add_u32 s%d, s%d, s%d', sFL3, sFL3, sT)
    A('s_add_u32 s%d, s%d, %d', sFL3, sFL3, F4)
    A('s_add_u32 s%d, s%d, 256', sFL2, sFL3)
    A('s_bitcmp1_b32 s%d, 0', sFB)
    A('s_cselect_b32 s%d, s%d, s%d', sT, sBL, sB3)
    A('s_cselect_b32 s%d, s%d, s%d', sBL, sB3, sBL)
    A('s_mov_b32 s%d, s%d', sB3, sT)
    A('s_cselect_b32 s%d, s%d, s%d', sT, sFL2, sFL3)
    A('s_cselect_b32 s%d, s%d, s%d', sFL2, sFL3, sFL2)
    A('s_mov_b32 s%d, s%d', sFL3, sT)
    A('s_lshl_b32 s%d, s%d, 8', sPF, sTQ)
    A('s_mul_i32 s%d, s%d, 112', sT, sKH)
    A('s_add_u32 s%d, s%d, s%d', sPF, sPF, sT)
    A('s_add_u32 s%d, s%d, %d', sPF, sPF, F4)
    A('s_mul_i32 s%d, s%d, %d', sHB, sG, 112 * 1024)
    A('s_mul_i32 s%d, s%d, %d', sT, sKH, 56 * 1024)
    A('s_add_u32 s%d, s%d, s%d', sHB, sHB, sT)
    A('s_add_u32 s%d, s%d, %d', sHB, sHB, WS_H1B + (0x40000000 if E('ABL', 0) & 64 else 0))
    blk_init(A, sBK, sBS, 's%d' % sKH)
    A('s_bitcmp1_b32 s%d, 0', sBK)
    A('s_mov_b32 s%d, 0x0f0f0f0f', sEM)
    A('s_cselect_b32 s%d, 0x00f0f0f0, s%d', sEM, sEM)
    vL4, vPF = vNM, vRS
    A('s_mov_b32 s%d, 0', CACHE[5])
    A('s_lshl_b32 s%d, s%d, 2', sT, sKH)
    A('s_add_u32 s%d, s%d, %d', sT, sT, L_MISC + M_PW + 20)
    A('v_mov_b32 v%d, s%d', vCA, sT)
    A('v_lshlrev_b32 v%d, 2, v%d', vL4, vL)

    try_copy(False)
    if E('CP2', 1):
        try_copy2(False)
    wait_lp(A, 'wo')

    def wo_row(k):
        hh = k // 2
        return 28 * hh - 4 * (hh & 1) + 16 * (k & 1)

    Q = LdsQ(A)
    LAG = E('P2LAG', 5)

    def read_wo(k, nt):
        buf = vWF2 + 8 * nt + 4 * (k & 1)
        for z in range(2):
            Q.op(('w', k, nt), 'ds_read_b64_tr_b16 v[%d:%d], v%d offset:%d', buf + 2 * z, buf + 2 * z + 1,
                 vWA + 2 + nt, (wo_row(k) + 8 * z) * 128)

    read_wo(0, 1)
    read_wo(0, 0)
    if MAP == 3 and E('SPOLL', 1):
        poll_scalar(A, sC, 8)
    else:
        poll_global(A, sC, 8)
    stamp(A)
    stamp(A, 'p2')
    sOB = sM0
    A('s_mov_b32 s%d, s%d', sOB, sB)

    def ld_o(k):
        A('buffer_load_dwordx4 %s, v%d, s[%d:%d], s%d offen offset:%d sc1', v(vB2[k], 4), vO, SWS, SWS + 3, sOB,
          (k & 3) * 1024)
        if (k & 3) == 3:
            A('s_add_u32 s%d, s%d, 4096', sOB, sOB)
    P2I = E('P2INFL', 8)
    for k in range(P2I):
        ld_o(k)
    A('s_lshl_b32 s%d, s%d, 1', sT2, sNB)
    A('s_add_u32 s%d, s%d, s%d', sT2, sT2, sKH)
    A('s_lshl_b32 s%d, s%d, 15', sB, sG)
    A('s_add_u32 s%d, s%d, %d', sB, sB, WS_HB)
    A('s_lshl_b32 s%d, s%d, 8', sC, sT2)
    A('s_add_u32 s%d, s%d, s%d', sC, sC, sB)
    A('s_lshl_b32 s%d, s%d, 11', sT, sT2)
    A('s_add_u32 s%d, s%d, s%d', sB, sB, sT)
    A('s_add_u32 s%d, s%d, 4096', sB, sB)
    A('s_lshl_b32 s%d, s%d, 2', sFL, sT2)
    A('s_lshl_b32 s%d, s%d, 6', sT, sG)
    A('s_add_u32 s%d, s%d, s%d', sFL, sFL, sT)
    A('s_add_u32 s%d, s%d, %d', sFL, sFL, F3)
    for k in range(16 + LAG):
        if k < 16:
            if k < 15:
                read_wo(k + 1, 1)
            Q.wait(('w', k, 1), min(15, P2I + k - 1) - k)
            if k % 4 == 0:
                stamp(A, 'p2')
            mfma(A, vAC + 16, vWF2 + 8 + 4 * (k & 1), vB2[k], k == 0)
            if P2I + k < 16:
                ld_o(P2I + k)
            if P2I + k == E('LDSIG', 12):
                A('v_mov_b32 v%d, 1', vT0)
                Q.op('ld', 'ds_write_b32 v%d, v%d offset:%d', vMY, vT0, M_LD)
        j = k - LAG
        if j >= 0:
            if j < 15:
                read_wo(j + 1, 0)
            Q.wait(('w', j, 0))
            mfma(A, vAC, vWF2 + 4 * (j & 1), vB2[j])
        if k == 16 and LAG >= 2:
            for q in range(4):
                Q.op('x', 'ds_write_b128 v%d, %s offset:%d', vSW, v(vAC + 16 + 4 * q, 4), q * 1024)
            Q.stage(C0 + 6)
    stamp(A)

    def exchange(st, sent=False):
        if not sent:
            for q in range(4):
                A('ds_write_b128 v%d, %s offset:%d', vSW, v(vAC + 16 + 4 * q, 4), q * 1024)
            set_stage(A, st)
        lo, done = A.label('W'), A.label('WD')
        A('%s:', lo)
        A('ds_read_b32 v%d, v%d', vPW, vPP)
        for q in range(4):
            A('ds_read_b128 %s, v%d offset:%d', v(vWF2 + 4 * q, 4), vSR, q * 1024)
        A('s_waitcnt lgkmcnt(4)')
        A('v_readfirstlane_b32 s%d, v%d', sT, vPW)
        spin_guard(A, done)
        A('s_cmp_ge_u32 s%d, %d', sT, st)
        A('s_cbranch_scc0 %s', lo)
        A('%s:', done)
        for q in range(4):
            A('s_waitcnt lgkmcnt(%d)', 3 - q)
            for r in (0, 2):
                a0 = vAC + 4 * q + r
                A('v_pk_add_f32 v[%d:%d], v[%d:%d], v[%d:%d]', a0, a0 + 1, a0, a0 + 1, vWF2 + 4 * q + r,
                  vWF2 + 4 * q + r + 1)

    stamp(A, 'p2')
    exchange(C0 + 6, LAG >= 2)
    stamp(A, 'p2')
    set_stage(A, C0 + 7)
    cvt8(A, vHP, vAC)
    pub_stores(A, [st4(vHP + 4 * q, sB, q * 1024) for q in range(2)], not WTO)
    A('v_mov_b32 v%d, 0', vTT)
    A('v_mov_b32 v%d, 0', vTT + 1)
    for r in range(8):
        A('v_dot2c_f32_bf16 v%d, s%d, v%d', vTT, sONES, vHP + r)
        A('v_dot2c_f32_bf16 v%d, v%d, v%d', vTT + 1, vHP + r, vHP + r)
    A('v_lshlrev_b32 v%d, 2, v%d', vTT + 2, vL)
    A('v_permlane32_swap_b32 v%d, v%d', vTT, vTT + 1)
    A('v_add_f32 v%d, v%d, v%d', vTT, vTT, vTT + 1)
    pub_stores(A, ['buffer_store_dword v%d, v%d, s[%d:%d], s%d offen%%s' % (vTT, vTT + 2, SWS, SWS + 3, sC)], not WTO)
    stamp(A, 'p2')
    try_copy(True)
    if not LATE:
        for c in (5, 6):
            w1_copy(c)
    stamp(A, 'p2')
    pub_flag(A, sFL, True)
    stamp(A, 'p2')
    try_copy2(True)
    stamp(A)
    if LATE:
        for c in (4, 5, 6):
            w1_copy(c)
    set_stage(A, C0 + 8)
    A('s_waitcnt lgkmcnt(0)')
    for r in range(16 * NE, 112):
        A('v_dot2c_f32_bf16 v%d, s%d, v%d', vCS + (r & 1), sONES, vXR + r)
    A('v_add_f32 v%d, v%d, v%d', vCS, vCS, vCS + 1)
    hilo_c(A, vCS, vCF, vT0)
    vBR = 40
    vE3 = 72
    vMF2, vSD = 128, 132
    A('s_mov_b32 s%d, s%d', sB, sB3)
    A('s_mov_b32 s%d, s%d', sFL, sFL3)

    def p3_epilogue(gi, packed=False):
        B = sub(A)
        acc = vAC + 16 * (gi & 1)
        e = vE3
        sd, c1 = vSD, vSD + 1
        if packed:
            pk = lambda r: 'v[%d:%d]' % (r, r + 1)
            for r in range(0, 16, 2):
                B('v_pk_mul_f32 %s, %s, %s op_sel:[0,1] op_sel_hi:[1,1]', pk(e + r), pk(acc + r), pk(sd))
            for r in range(16):
                B('v_exp_f32 v%d, v%d', e + r, e + r)
            for r in range(0, 16, 2):
                B('v_pk_fma_f32 %s, %s, %s, %s op_sel_hi:[1,0,0]', pk(e + r), pk(e + r), pk(sd), pk(sd))
            for r in range(16):
                B('v_rcp_f32 v%d, v%d', e + r, e + r)
            for r in range(0, 16, 2):
                B('v_pk_mul_f32 %s, %s, %s', pk(e + r), pk(e + r), pk(acc + r))
            cvt8(B, acc, e)
        else:
            silu8(B, acc, e, sd, c1, acc)
            silu8(B, acc + 8, e + 8, sd, c1, acc + 4)
        blocks = [[l] for l in B.lines]
        if E('ABL', 0) & 256 and not packed:
            blocks = blocks[-4:]
        B = sub(A)
        so = sB if gi < 2 else sBL
        pub_stores(B, [st4(acc + 4 * q, so, q * 1024) for q in range(2)], not WT1)
        if gi % 2 == 0:
            B('s_add_u32 s%d, s%d, %d', so, so, 112 * 1024)
        blocks.append(B.lines)
        return blocks

    def flag_load(B):
        B('s_mov_b64 exec, 0xfffffff')
        B('buffer_load_dword v%d, v%d, s[%d:%d], s%d offen sc1', vPF, vL4, SWS, SWS + 3, sPF)
        B('s_mov_b64 exec, -1')

    def flag_check(mask):
        def slow(B, back):
            lo = B.label('P')
            B('%s:', lo)
            flag_load(B)
            B('s_waitcnt vmcnt(0)')
            B('v_cmp_ne_u32 vcc, s%d, v%d', sTAG, vPF)
            spin_guard(B, back)
            B('s_and_b32 s%d, vcc_lo, %s', sT, mask)
            B('s_cbranch_scc1 %s', lo)
        ent, back = cold_block(A, slow)
        A('v_cmp_ne_u32 vcc, s%d, v%d', sTAG, vPF)
        A('s_and_b32 s%d, vcc_lo, %s', sT, mask)
        A('s_cbranch_scc1 %s', ent)
        A('%s:', back)

    PRE = E('P3PRE', 6)
    vHB = vXD + 2
    A('v_add_u32 v%d, %d, v%d', vHB, L_A, vO)
    A('v_add_u32 v%d, %d, v%d', vHB + 1, 65536, vO)
    Q = LdsQ(A)

    def chk(n):
        gi, k = divmod(n, 28)
        if gi == 0 and E('P3RAMP', 0):
            return k // 4 if k % 4 == 0 else None
        if gi == 0:
            return {0: 1, 8: 3, 16: 5, 24: 6}.get(k)
        return {0: 1, 8: 3, 16: 6}.get(k)

    def rd(n):
        gi, k = divmod(n, 28)
        if n + 1 < 112 and chk(n + 1) is not None:
            Q.take(7)
        if chk(n) is not None:
            wait_lp(Q.A, ('h', gi, chk(n)))
        Q.op(('b', n), 'ds_read_b128 %s, v%d offset:%d', v(vBR + 4 * (n % 8), 4), (vHB, vHB, vO, vHB + 1)[gi],
             (28672 if gi == 1 else 0) + k * 1024)
        if k == 27:
            Q.stage(C0 + 9 + gi)
        ramp = E('P3RAMP', 0) and n < 20
        nn = n + (4 if ramp else E('P3PK', PRE + 2))
        if nn < 112 and chk(nn) is not None and not Q.peeked and (ramp or nn >= 28 or not E('P3RAMP', 0)):
            Q.peek(7)

    stamp(A, 'p2')
    nrd = [0]

    def rd_upto(n):
        while nrd[0] <= min(n, 111):
            rd(nrd[0])
            nrd[0] += 1
    rd_upto(2)
    for gi in range(4):
        acc = vAC + 16 * (gi & 1)
        M = sub(A)
        Q.A = M
        for k in range(28):
            n = 28 * gi + k
            rd_upto(n + (PRE if not E('P3RAMP', 0) else 3 if n < 22 else min(PRE, 3 + (n - 21))))
            if k == 16:
                Q.op('s6', 'ds_read_b128 v[%d:%d], v%d offset:%d', vTT, vTT + 3, vMI, M_PW + 16)
                Q.op('sf', 'ds_read_b128 %s, v%d offset:%d', v(vMF2, 4), vEX, gi * 1024)
            if k == 24:
                Q.wait('sf')
                M('v_readfirstlane_b32 s%d, v%d', sPROG, vTT)
                M('v_readfirstlane_b32 s%d, v%d', sC, vTT + LP[('st', gi)][0] - 4)

                def st_slow(B, back):
                    def st_read():
                        B('ds_read_b128 %s, v%d offset:%d', v(vMF2, 4), vEX, gi * 1024)
                        return 0
                    wait_word(B, LP[('st', gi)][0], LP[('st', gi)][1], body=st_read)
                ent, back = cold_block(M, st_slow)
            if k == 25:
                M('s_cmp_ge_u32 s%d, %d', sC, LP[('st', gi)][1])
                M('s_cbranch_scc0 %s', ent)
                M('%s:', back)
                M('v_mov_b32 v%d, v%d', vMF, vMF2)
                M('v_mov_b32 v%d, v%d', vMF + 1, vMF2 + 1)
            if k % 2 == 0:
                Q.wait(('b', n + 1))
            if k in (0, 12):
                stamp(M, 'p3')
            if gi == E('P33', 3) and k % 2 == 0 and k:
                stamp(M, 'p33')
            if gi == 3 and k == E('P3FLAGK', 11):
                pub_flag(M, sFL, True)
            if gi == 3 and k == 25:
                flag_load(M)
            mfma(M, acc, vXR + 4 * k, vBR + 4 * (n % 8), k == 0)
        mfma(M, acc, vCF, vMF)
        M('v_mov_b32 v%d, v%d', vSD, vMF2 + 2)
        M('v_mov_b32 v%d, v%d', vSD + 1, vMF2 + 3)
        A.lines += merge(M.lines, p3_epilogue(gi - 1) if gi > 0 else [], 1, E('P3STOP2', 27) if gi == 2 else 27)
        if gi == 0:
            stamp(A)
        stamp(A, 'p3')
    stamp(A)
    NB = 16
    vWF4 = 40
    vAP = vXR + 48

    def w2_base(c):
        A('s_cmp_eq_u32 s%d, 0', sKH)
        A('s_cselect_b32 s%d, %d, %d', sT, w2_slot(2 * c) >> 12, w2_slot(2 * c + 1) >> 12)
        A('s_lshl_b32 s%d, s%d, 12', sT, sT)
        A('v_add_u32 v%d, s%d, v%d', vWA + 2, sT, vWA)
        A('v_add_u32 v%d, s%d, v%d', vWA + 3, sT, vWA + 1)

    Q = LdsQ(A)

    def abuf(k):
        return vWF4 + 8 * (k & 3)

    def read_w2(k):
        if k % 4 == 3 and k < 52:
            Q.take(LP[('w2', 2 * (k // 4) + 3)][0])
        if k % 4 == 0:
            wait_lp(A, ('w2', 2 * (k // 4) + 1))
            w2_base(k // 4)
        buf = abuf(k)
        for nt in range(2):
            for z in range(2):
                Q.op(('w', k), 'ds_read_b64_tr_b16 v[%d:%d], v%d offset:%d', buf + 4 * nt + 2 * z,
                     buf + 4 * nt + 2 * z + 1, vWA + 2 + nt, ((k % 4) * 16 + 8 * z) * 128)
        if k % 4 == 0 and k < 52:
            Q.peek(LP[('w2', 2 * (k // 4) + 3)][0])
        if k % 4 == 3 and (k // 4) <= 5:
            Q.stage(C0 + 13 + k // 4)

    vq = []

    def vm_need(tag):
        i = max(j for j, x in enumerate(vq) if x == tag)
        return len(vq) - 1 - i

    def issue_b(k):
        if k % 8 == 0:
            A('s_lshl_b32 s%d, s%d, 13', sM0, sBK)
            A('s_add_u32 s%d, s%d, s%d', sM0, sM0, sHB)
            blk_next(A, sBK, sBS)
        A('buffer_load_dwordx4 %s, v%d, s[%d:%d], s%d offen offset:%d%s', v(vXR + 4 * (k % NB), 4), vO, SWS, SWS + 3,
          sM0, (k & 3) * 1024, LDB)
        vq.append(('b', k))
        if k % 8 == 3:
            A('s_add_u32 s%d, s%d, 4096', sM0, sM0)

    INFL = E('P4INFL', 10)
    assert INFL < NB
    A('s_waitcnt vmcnt(2)')
    flag_check('s%d' % sEM)
    stamp(A)
    issued = E('P4PRE', 8)
    for k in range(issued):
        issue_b(k)
    for b in p3_epilogue(3, True):
        A.lines += b
    vq += ['st', 'st']
    read_w2(0)
    read_w2(1)
    while issued < INFL:
        issue_b(issued)
        issued += 1
    unpack_hp()
    stamp(A)
    KF, KL, KC = E('P4KF', 3), E('P4KL', 9), E('P4KC', 14)
    pend = False
    for k in range(56):
        if k + 2 < 56:
            read_w2(k + 2)
        need = vm_need(('b', k))
        if k == KF:
            need = min(need, vm_need('st'))
        if k == KC:
            need = min(need, vm_need('pf'))
        Q.wait(('w', k), need)
        if k % 4 == 0 and k:
            stamp(A, 'p4')
        buf = abuf(k)
        mfma(A, vAC + 16, buf + 4, vXR + 4 * (k % NB), k == 0)
        if k == KF:
            pub_flag(A, sFL2, True, False)
            vq.append('fl')
        if k == KL:
            flag_load(A)
            vq.append('pf')
        if k == KC:
            flag_check('0xfffffff')
            pend = True
        for _ in range(2):
            if issued < min(56, k + 1 + INFL) and (issued < 24 or pend):
                issue_b(issued)
                issued += 1
        mfma(A, vAC, buf, vXR + 4 * (k % NB))
    stamp(A)
    if E('OUTT', 0):
        A('v_readfirstlane_b32 s%d, v%d', sC, vSR)
        A('v_readfirstlane_b32 s%d, v%d', sT2, vRO)
        A('v_and_b32 v%d, 31, v%d', vTT, vL)
        A('v_mul_u32_u24 v%d, 80, v%d', vTT, vTT)
        A('v_lshrrev_b32 v%d, 5, v%d', vT1, vL)
        A('v_lshl_add_u32 v%d, v%d, 3, v%d', vTT, vT1, vTT)
        A('v_add_u32 v%d, s%d, v%d', vTT, sC, vTT)
        A('v_lshrrev_b32 v%d, 2, v%d', vT1, vL)
        A('v_and_b32 v%d, 3, v%d', vTT + 3, vL)
        A('v_lshlrev_b32 v%d, 4, v%d', vTT + 3, vTT + 3)
        A('v_mad_u32_u24 v%d, v%d, 0x50, v%d' .replace('0x50', 's%d' % sM0), vTT + 1, vT1, vTT + 3) if False else None
        A('v_mul_u32_u24 v%d, 80, v%d', vTT + 1, vT1)
        A('v_add3_u32 v%d, v%d, v%d, s%d', vTT + 1, vTT + 1, vTT + 3, sC)
        A('v_mul_u32_u24 v%d, 896, v%d', vTT + 2, vT1)
        A('v_add_u32 v%d, v%d, v%d', vTT + 2, vTT + 2, vTT + 3)
        A('s_add_u32 s%d, s%d, %d', sC, sT2, 16 * 896)
    exchange(C0 + 27)
    cvt8(A, vHP, vAC)
    OB = ('', ' sc1', ' nt', ' sc0 sc1')[E('OUTB', 0)]
    if E('OUTT', 0):
        for q in range(4):
            A('ds_write_b64 v%d, v[%d:%d] offset:%d', vTT, vHP + 2 * q, vHP + 2 * q + 1, q * 16)
        for q in range(2):
            A('ds_read_b128 %s, v%d offset:%d', v(vHP + 4 * q, 4), vTT + 1, q * 16 * 80)
        for q in range(2):
            A('s_waitcnt lgkmcnt(%d)', 1 - q)
            A('buffer_store_dwordx4 %s, v%d, s[%d:%d], s%d offen%s', v(vHP + 4 * q, 4), vTT + 2, SOUT, SOUT + 3,
              (sT2, sC)[q], OB)
    else:
        for q in range(2):
            A('v_permlane32_swap_b32 v%d, v%d', vHP + 4 * q, vHP + 4 * q + 2)
            A('v_permlane32_swap_b32 v%d, v%d', vHP + 4 * q + 1, vHP + 4 * q + 3)
        for q in range(2):
            A('buffer_store_dwordx4 %s, v%d, s[%d:%d], 0 offen offset:%d%s', v(vHP + 4 * q, 4), vRO, SOUT, SOUT + 3,
              q * 32, OB)
    A('s_or_b32 s%d, s2, s%d', sT, sWV)
    A('s_cmp_lg_u32 s%d, 0', sT)
    A('s_cbranch_scc1 %s', fin)
    A('s_mov_b32 s%d, %d', sT, FEP)
    A('s_mov_b64 exec, 1')
    A('buffer_store_dword v%d, v%d, s[%d:%d], s%d offen', vTAG, vO, SWS, SWS + 3, sT)
    A('s_mov_b64 exec, -1')
    A('%s:', fin)
    if E('PADTO', 0):
        lo = A.label('PAD')
        A('s_waitcnt vmcnt(0) lgkmcnt(0)')
        A('s_mov_b32 s6, %d', E('PADTO', 0))
        if PROBE >= 0:
            A('s_sub_u32 s7, s56, s84')
            A('s_lshl_b32 s7, s7, 2')
            A('s_cmp_ge_u32 s%d, 28', sI)
            A('s_cselect_b32 s7, 0, s7')
            A('s_add_u32 s6, s6, s7')
        A('%s:', lo)
        A('s_memrealtime s[4:5]')
        A('s_waitcnt lgkmcnt(0)')
        A('s_sub_u32 s4, s4, s84')
        A('s_cmp_lt_u32 s4, s6')
        A('s_cbranch_scc1 %s', lo)
    stamp_flush(A)


def gen():
    A = Asm()
    name = NAME + '_kernel'
    A.lines += ['.p2align 8', '.globl %s' % name, '.type %s,@function' % name, '%s:' % name]
    end = A.label('END')
    if E('PADTO', 0):
        A('s_memrealtime s[84:85]')
    A('s_load_dwordx16 s[64:79], s[0:1], 0')
    A('s_load_dwordx2 s[80:81], s[0:1], 72')
    A('s_getpc_b64 s[%d:%d]', sPC, sPC + 1)
    A('s_cmp_ge_u32 s2, 256')
    A('s_cbranch_scc1 %s', end)
    assert MAP == 0
    A('s_and_b32 s%d, s2, 7', sXCD)
    A('s_lshr_b32 s%d, s2, 3', sI)
    A('v_lshrrev_b32 v%d, 6, v0', vMY)
    A('v_and_b32 v%d, 63, v0', vL)
    A('s_and_b32 s%d, s%d, 1', sTB, sI)
    A('s_lshl1_add_u32 s%d, s%d, s%d', sTB, sXCD, sTB)
    A('v_readfirstlane_b32 s%d, v%d', sWV, vMY)
    A('s_add_u32 s%d, s%d, s%d', sC0, sXCD, sI)
    A('s_mul_i32 s%d, s%d, 37', sT, sC0)
    A('s_lshr_b32 s%d, s%d, 8', sT, sT)
    A('s_mul_i32 s%d, s%d, 7', sT, sT)
    A('s_sub_u32 s%d, s%d, s%d', sC0, sC0, sT)
    x_offsets(A)
    A('s_mul_i32 s%d, s%d, %d', sT2, sWV, 32 * 896)
    A('s_lshl_b32 s%d, s%d, 7', sT, sC0)
    A('s_add_u32 s%d, s%d, s%d', sT, sT, sXB)
    A('s_add_u32 s%d, s%d, s%d', sT, sT, sT2)
    A('s_lshl_b32 m0, s%d, 12', sWV)
    A('s_mov_b32 s%d, 0x%x', SX + 2, 0 if E('ABL', 0) & 16 else S * D * 2)
    A('s_mov_b32 s%d, 0x20000', SX + 3)
    nok = A.label('NOK')
    A('s_cmp_ge_u32 s%d, 4', sWV)
    A('s_waitcnt lgkmcnt(0)')
    A('s_mov_b32 s%d, s64', SX)
    A('s_mov_b32 s%d, s65', SX + 1)
    A('s_cbranch_scc1 %s', nok)
    for u in range(4):
        A('buffer_load_dwordx4 v%d, s[%d:%d], s%d offen offset:%d lds', vXD + u, SX, SX + 3, sT, u * 1024)
    A('%s:', nok)
    srd(A, SW, 66, 0 if E('ABL', 0) & 8 else D * 3 * D * 2)
    WT = E('WT', 0)
    if WT:
        now = A.label('NOW')
        A('s_sub_u32 s%d, s%d, 4', sT, sWV)
        A('s_cmp_ge_u32 s%d, %d', sT, WT)
        A('s_cbranch_scc1 %s', now)
        A('s_add_u32 s%d, s%d, 1', sT, sT)
        A('s_cmp_eq_u32 s%d, 3', sT)
        A('s_cselect_b32 s%d, 0, s%d', sT, sT)
        A('s_mul_i32 s%d, s%d, 896', sT, sT)
        A('s_mul_i32 s%d, s%d, %d', sT2, sI, 14 * 2688)
        A('s_add_u32 s%d, s%d, s%d', sT, sT, sT2)
        A('s_add_u32 s%d, s%d, %d', sT2, sT, 7 * 2688)
        A('v_lshrrev_b32 v%d, 3, v%d', vT0, vL)
        A('v_mul_u32_u24 v%d, 2688, v%d', vT0, vT0)
        A('v_and_b32 v%d, 7, v%d', vT1, vL)
        A('v_lshl_add_u32 v%d, v%d, 7, v%d', vT0, vT1, vT0)
        A('s_mov_b32 exec_lo, 0x7f7f7f7f')
        A('s_mov_b32 exec_hi, 0x007f7f7f')
        A('buffer_load_dword v38, v%d, s[%d:%d], s%d offen', vT0, SW, SW + 3, sT)
        A('buffer_load_dword v39, v%d, s[%d:%d], s%d offen', vT0, SW, SW + 3, sT2)
        A('s_mov_b64 exec, -1')
        A('%s:', now)
    perm = [2, 4, 6, 9, 11, 13, 0, 1, 3, 5, 7, 8, 10, 12, 14, 15]
    lo = sum(perm[i] << (4 * i) for i in range(8))
    hi = sum(perm[8 + i] << (4 * i) for i in range(8))
    A('s_mov_b32 s%d, 0x%x', sHI, lo)
    A('s_mov_b32 s%d, 0x%x', sHI + 1, hi)
    A('s_lshr_b32 s%d, s%d, 1', sT, sI)
    A('s_lshl_b32 s%d, s%d, 2', sT, sT)
    A('s_lshr_b64 s[%d:%d], s[%d:%d], s%d', sHI, sHI + 1, sHI, sHI + 1, sT)
    A('s_and_b32 s%d, s%d, 15', sH, sHI)
    A('v_lshlrev_b32 v%d, 2, v%d', vMY, vMY)
    A('v_add_u32 v%d, %d, v%d', vMY, L_MISC, vMY)
    A('v_mov_b32 v%d, 0', vT0)
    A('ds_write2st64_b32 v%d, v%d, v%d offset0:0 offset1:1', vMY, vT0, vT0)
    A('ds_write2_b32 v%d, v%d, v%d offset0:%d offset1:%d', vMY, vT0, vT0, M_FAST // 4, M_CP // 4)
    w_offsets(A)
    A('v_mov_b32 v%d, %d', vMI, L_MISC)
    A('s_mov_b32 s%d, 0x400000', sSPIN)
    A('s_mov_b32 s%d, 0', sPROG)
    A('s_mov_b32 s%d, 0', sPROG1)
    A('s_waitcnt lgkmcnt(0)')
    A('s_barrier')
    _st['n'] = 0
    stamp(A, 'all')
    if STAMPS:
        A('s_memrealtime s[86:87]')
    for i in range(7):
        LP[('x', i)] = (7, 1 + i)
    hn = [9]
    for gi in range(4):
        us = E('HSPOS', 3) if gi == 0 else 0
        LP[('st', gi)] = (6 - (gi & 1), 4 + gi // 2)
        for q in range(7):
            if q in HITEMS[gi > 0]:
                hn[0] += 1
                LP[('h', gi, q)] = (7, hn[0])
            if q == us:
                hn[0] += 1
                LP[('hs', gi)] = (7, hn[0])
    for pi in range(3):
        for i in range(7):
            LP[('W', pi, i)] = (4, 7 * pi + i + 1)
    l0, l1, l2, lw, lc = A.label('H0'), A.label('H1'), A.label('H23'), A.label('EW'), A.label('EC')
    A('s_cmp_eq_u32 s%d, 4', sWV)
    A('s_cbranch_scc1 %s', lw)
    A('s_cmp_lg_u32 s%d, 7', sWV)
    A('s_cbranch_scc1 %s', lc)
    HELP['on'] = True
    nst = {}
    prio(A, 1)
    _st['n'] = 1
    early_x(A)
    nst[l1] = _st['n']
    A('s_branch %s', l1)
    A('%s:', lw)
    prio(A, 1)
    _st['n'] = 1
    early_w(A)
    nst[l0] = _st['n']
    nst[l2] = 1
    A('s_branch %s', l0)
    refresh_routines(A)
    A('%s:', lc)
    A('s_cmp_ge_u32 s%d, 5', sWV)
    A('s_cbranch_scc1 %s', l2)
    parts = {}
    for lab, fn in ((l0, gen_h0), (l1, gen_h1), (l2, gen_h23)):
        B = sub(A)
        B('%s:', lab)
        B('s_nop 4')
        HELP['on'] = True
        prio(B, 1)
        _st['n'] = nst[lab]
        fn(B)
        HELP['on'] = False
        parts[lab] = B.lines
    _st['n'] = 1
    gen_compute(A)
    A('%s:', end)
    A('s_endpgm')
    for lab in (l0, l1, l2):
        A.lines += parts[lab]
    A.lines += COLD
    return A, name


def main():
    out = sys.argv[1] if len(sys.argv) > 1 else 'cdna_kernels/%s.s' % NAME
    A, name = gen()
    lines, nn = fix_hazards(A.lines)
    hdr = ['; generated by gen/gen14.py (hand-written generator script)',
           '; @launch grid=(256,1,1) block=(512,1,1) lds=%d' % LDS_SIZE,
           '.amdgcn_target "amdgcn-amd-amdhsa--gfx950"', '.text']
    tail = ['.p2align 8', '.fill 2048, 4, 0xbf800000', '.section .rodata,"a"', '.p2align 6', '''.amdhsa_kernel %s
  .amdhsa_next_free_vgpr 256
  .amdhsa_next_free_sgpr 102
  .amdhsa_accum_offset 256
  .amdhsa_group_segment_fixed_size 0
  .amdhsa_kernarg_size 80
  .amdhsa_user_sgpr_count 2
  .amdhsa_user_sgpr_kernarg_segment_ptr 1
  .amdhsa_system_sgpr_workgroup_id_x 1
  .amdhsa_float_denorm_mode_32 3
  .amdhsa_float_denorm_mode_16_64 3
.end_amdhsa_kernel''' % name]
    open(out, 'w').write('\n'.join(hdr + lines + tail) + '\n')
    print('wrote', out, 'lines', len(lines), 'nops', nn)


if __name__ == '__main__':
    main()
```

```python
import sys
import os
sys.path.insert(0, os.path.dirname(os.path.abspath(__file__)))
from asmlib import Asm, fix_hazards, v

NAME = 'sequential_preLN__linear_kernel_hedgehog__dense_activation_silu__prompt'
S, D, H, DH, F = 2048, 448, 16, 28, 1792
MB = 1 << 20
E = lambda k, d: int(os.environ.get(k, d))
STAMPS = E('STAMPS', 0)
MAP = E('MAP', 0)
FAST = E('FAST', 1)
CODEPF = E('CODEPF', 1)
WARM = E('WARM', 0)
WT1 = E('WT1', 1)
WTO = E('WTO', 0)
TOUCHAT = E('TOUCHAT', 2)
LDB = (' sc1', '', ' nt')[E('LDB', 0)]
HLATE = E('HLATE', 1)
WS_KVP = 0
WS_OB = 2 * MB
WS_HB = 4 * MB
WS_H1B = 8 * MB
WS_FLG = 16 * MB
F1, F2, F3, F4, FREG, FEP = WS_FLG + 0x10000, WS_FLG + 0x1000, WS_FLG + 0x3000, WS_FLG + 0x70000, WS_FLG + 0x9000, WS_FLG + 0xA000
F2X = WS_FLG + 0x40000
WS_STAMP = 17 * MB
WS_SIZE = 18 * MB
LOG2E = 0x3fb8aa3b
ONES = 0x3f803f80
MFMA = 'v_mfma_f32_32x32x16_bf16'
L_X = 0
L_WP = (114688, 0, 32768)
L_KVA, L_KVV = 65536, 81920
L_A = 98304
L_SC0, L_SC1 = 49152, 57344
L_XRES = L_SC0
B16 = (0, 16384, 65536, 81920, 32768)
L_PHI, L_EX, L_CF, L_MISC = 159744 - 2048 + 2048 + 1536, 155648, 159744, 163328
LDS_SIZE = 163840
M_PW, M_FAST, M_CP, M_LD = 0, 64, 96, 256
L_RSTD = L_EX

SX, SW, SP, SWS, SWO, SW1, SW2, SOUT = 12, 16, 20, 24, 28, 32, 36, 40
sTB, sH, sWV, sC0, sPROG, sT, sT2, sONES, sC, sTAG, sFASTF, sI, sXCD = 44, 45, 46, 47, 48, 49, 50, 51, 52, 53, 54, 55, 3
sHI, sPADL, sZA, sZB, sODD, sPC = 4, 6, 8, 10, 92, 94
sTQ, sNB, sTB3, sFB, sG, sKH, sB, sXB, sM0, sSPIN = 96, 97, 98, 99, 100, 101, 88, 89, 91, 90
sPROG1, sFL = 0, 1
vL, vMI, vT0, vT1, vO = 1, 2, 3, 4, 5
vTAG, vMY = 6, 7
vTT = 8
vXA = 12
vWA = 16
vSM, vSQ = 20, 22
vNM, vRS, vSC, vRA = 24, 25, 26, 27
vXD = 28
vPW = 32
vCA = 36
vXR = 144
vPK_ = 37
CACHE = {4: sPROG, 7: sPROG1, 5: sC0}

_st = {'n': 0}
C0 = 4
HELP = {'on': False}


def prio(A, hi):
    if HELP['on'] and E('HPRIO', 2) and not HELP.get('hot'):
        A('s_setprio %d', E('HPRIO', 2) if hi else 0)
LP = {}


STSET = os.environ.get('STSET', 'main')


DBGT = E('DBGT', 0)


PROBE = E('PROBE', -1)


def stamp(A, tag='main'):
    if PROBE >= 0:
        if not HELP['on'] and tag in ('main', 'all'):
            if _st['n'] == PROBE:
                A('s_memrealtime s[56:57]')
            _st['n'] += 1
        return
    if DBGT and not HELP['on'] and tag in ('main', 'all'):
        A('s_memrealtime s[%d:%d]', 56 + 2 * _st['n'], 57 + 2 * _st['n'])
        _st['n'] += 1
        return
    if STAMPS and STSET == 'clk' and tag == 'main' and not HELP['on']:
        _st['m'] = _st.get('m', 0) + 1
        if _st['m'] in (1, 2, 4, 8, 10, 13):
            A('s_memtime s[%d:%d]', 56 + 2 * _st['n'], 57 + 2 * _st['n'])
            A('s_memrealtime s[%d:%d]', 58 + 2 * _st['n'], 59 + 2 * _st['n'])
            _st['n'] += 2
        return
    if STAMPS and (tag == STSET or tag == 'all' or (HELP['on'] and tag == 'main')):
        assert _st['n'] < 15, 'too many stamps'
        A('s_memtime s[%d:%d]', 56 + 2 * _st['n'], 57 + 2 * _st['n'])
        _st['n'] += 1


def stamp_flush(A):
    if DBGT and not HELP['on']:
        A('s_waitcnt vmcnt(0)')
        stamp(A, 'all')
        skip = A.label('DS')
        A('s_waitcnt vmcnt(0) lgkmcnt(0)')
        A('s_cmp_ge_u32 s%d, 28', sI)
        A('s_cbranch_scc1 %s', skip)
        A('s_mov_b64 exec, 1')
        A('v_mov_b32 v1, 0')
        A('s_not_b32 s4, s56')
        A('v_mov_b32 v2, s4')
        A('global_atomic_umax v1, v2, s[86:87] offset:60')
        for i in range(_st['n']):
            A('v_mov_b32 v%d, s%d', 8 + i, 56 + 2 * i)
            A('global_atomic_umax v1, v%d, s[86:87] offset:%d', 8 + i, 4 * i)
        A('%s:', skip)
        return
    if STAMPS:
        A('s_waitcnt vmcnt(0)')
        stamp(A, 'all')
        A('s_memrealtime s[4:5]')
        A('s_waitcnt vmcnt(0) lgkmcnt(0)')
        A('s_sub_u32 s4, s4, s86')
        A('s_lshl_b32 s4, s4, 20')
        A('s_and_b32 s86, s86, 0xfffff')
        A('s_or_b32 s86, s86, s4')
        A('s_lshl_b32 s%d, s2, 3', sT)
        A('s_add_u32 s%d, s%d, s%d', sT, sT, sWV)
        A('s_lshl_b32 s%d, s%d, 6', sT, sT)
        A('s_add_u32 s%d, s%d, %d', sT, sT, WS_STAMP)
        A('s_mov_b64 exec, 1')
        A('v_mov_b32 v1, 0')
        for i in range(16):
            if i < _st['n']:
                A('v_mov_b32 v2, s%d', 56 + 2 * i)
            elif i == 15:
                A('v_mov_b32 v2, s86')
            else:
                A('v_mov_b32 v2, 0')
            A('buffer_store_dword v2, v1, s[%d:%d], s%d offen offset:%d', SWS, SWS + 3, sT, 4 * i)
            A('s_nop 1')


def srd(A, d, ptr, size):
    A('s_mov_b32 s%d, s%d', d, ptr)
    A('s_and_b32 s%d, s%d, 0xffff', d + 1, ptr + 1)
    A('s_mov_b32 s%d, 0x%x', d + 2, size)
    A('s_mov_b32 s%d, 0x20000', d + 3)


COLD = []


def cold_block(A, fn):
    ent, back = A.label('CE'), A.label('CB')
    B = sub(A)
    B('%s:', ent)
    B('s_nop 15')
    fn(B, back)
    B('s_nop 7')
    B('s_branch %s', back)
    COLD.extend(B.lines)
    return ent, back


def again(A, br, lo, sleep=0):
    slp = max(sleep * E('SLPMUL', 1), E('HSLP', 0) if HELP['on'] else E('CSLP', 0))
    if slp:
        st = A.label('ZZ')
        COLD.extend(['%s:' % st, '  s_sleep %d' % slp, '  s_branch %s' % lo])
        lo = st
    A('%s %s', br, lo)


def spin_guard(A, done):
    A('s_sub_u32 s%d, s%d, 1', sSPIN, sSPIN)
    A('s_cbranch_scc1 %s', done)


def wait_word(A, w, n, cache=None, sleep=0, body=None):
    sd = sT if cache is None else cache

    def loop(B, done, body=None):
        lo = B.label('W')
        prio(B, 0)
        B('%s:', lo)
        B('ds_read_b32 v%d, v%d offset:%d', vPW, vMI, M_PW + 4 * w)
        k = body() if body else 0
        B('s_waitcnt lgkmcnt(%d)', k)
        B('v_readfirstlane_b32 s%d, v%d', sd, vPW)
        spin_guard(B, done)
        B('s_cmp_ge_u32 s%d, %d', sd, n)
        again(B, 's_cbranch_scc0', lo, sleep)
        prio(B, 1)
    if cache is not None and body is None and not HELP['on']:
        A('s_getpc_b64 s[%d:%d]', sPC, sPC + 1)
        A('s_cmp_ge_u32 s%d, %d', sd, n)
        A('s_cbranch_scc0 REFRESH_%d', w)
        return
    done = A.label('WD')
    if cache is not None and body is None:
        A('s_cmp_ge_u32 s%d, %d', sd, n)
        A('s_cbranch_scc1 %s', done)
    loop(A, done, body)
    A('%s:', done)


def wait_lp(A, name, sleep=0):
    w, n = LP[name]
    wait_word(A, w, n, CACHE[w], sleep)


def set_stage(A, n):
    A('v_mov_b32 v%d, %d', vT0, n)
    A('ds_write_b32 v%d, v%d', vMY, vT0)


def wait_stage(A, n, which=(0, 1, 2, 3), body=None, sleep=0, base=M_PW):
    lo, done = A.label('W'), A.label('WD')
    prio(A, 0)
    A('%s:', lo)
    A('ds_read_b128 v[%d:%d], v%d offset:%d', vPW, vPW + 3, vMI, base + 16 * (which[0] // 4))
    k = body() if body else 0
    A('s_waitcnt lgkmcnt(%d)', k)
    w = [x % 4 for x in which]
    if len(w) == 4:
        A('v_min3_u32 v%d, v%d, v%d, v%d', vPW, vPW, vPW + 1, vPW + 2)
        A('v_min_u32 v%d, v%d, v%d', vPW, vPW, vPW + 3)
        r = vPW
    else:
        A('v_min_u32 v%d, v%d, v%d', vPW + w[0], vPW + w[0], vPW + w[1])
        r = vPW + w[0]
    A('v_readfirstlane_b32 s%d, v%d', sT, r)
    spin_guard(A, done)
    A('s_cmp_ge_u32 s%d, %d', sT, n)
    again(A, 's_cbranch_scc0', lo, sleep)
    A('%s:', done)
    prio(A, 1)


def poll_global(A, soff, nlanes):
    lo, done = A.label('P'), A.label('PD')
    A('v_lshlrev_b32 v%d, 2, v%d', vT1, vL)
    if nlanes <= 32:
        A('s_mov_b64 exec, 0x%x', (1 << nlanes) - 1)
    else:
        A('s_mov_b32 exec_lo, 0x%x', nlanes & 0xffffffff)
        A('s_mov_b32 exec_hi, 0x%x', nlanes >> 32)
    A('%s:', lo)
    A('buffer_load_dword v%d, v%d, s[%d:%d], s%d offen sc1', vT0, vT1, SWS, SWS + 3, soff)
    A('s_waitcnt vmcnt(0)')
    A('v_cmp_ne_u32 vcc, s%d, v%d', sTAG, vT0)
    spin_guard(A, done)
    A('s_cbranch_vccnz %s', lo)
    A('%s:', done)
    A('s_mov_b64 exec, -1')


def poll_scalar(A, soff, n):
    lo, done = A.label('P'), A.label('PD')
    A('s_add_u32 s%d, s%d, s%d', sPC, SWS, soff)
    A('s_addc_u32 s%d, s%d, 0', sPC + 1, SWS + 1)
    base = 76
    assert n == 8
    A('%s:', lo)
    if E('PSLEEP', 0):
        A('s_sleep %d', E('PSLEEP', 0))
    A('s_load_dwordx%d s[%d:%d], s[%d:%d], 0 glc', n, base, base + n - 1, sPC, sPC + 1)
    A('s_waitcnt lgkmcnt(0)')
    A('s_and_b64 s[%d:%d], s[%d:%d], s[%d:%d]', sHI, sHI + 1, base, base + 1, base + 2, base + 3)
    A('s_or_b64 s[%d:%d], s[%d:%d], s[%d:%d]', sPADL, sPADL + 1, base, base + 1, base + 2, base + 3)
    for k in range(4, n, 2):
        A('s_and_b64 s[%d:%d], s[%d:%d], s[%d:%d]', sHI, sHI + 1, sHI, sHI + 1, base + k, base + k + 1)
        A('s_or_b64 s[%d:%d], s[%d:%d], s[%d:%d]', sPADL, sPADL + 1, sPADL, sPADL + 1, base + k, base + k + 1)
    A('s_and_b32 s%d, s%d, s%d', sHI, sHI, sHI + 1)
    A('s_or_b32 s%d, s%d, s%d', sPADL, sPADL, sPADL + 1)
    A('s_xor_b32 s%d, s%d, s%d', sHI, sHI, sTAG)
    A('s_xor_b32 s%d, s%d, s%d', sPADL, sPADL, sTAG)
    spin_guard(A, done)
    A('s_or_b32 s%d, s%d, s%d', sHI, sHI, sPADL)
    A('s_cbranch_scc1 %s', lo)
    A('%s:', done)


def two_ways(A, fn, local):
    if local and FAST:
        ent, back = cold_block(A, lambda B, back: fn(B, ' sc1'))
        A('s_cmp_eq_u32 s%d, 0', sFASTF)
        A('s_cbranch_scc1 %s', ent)
        fn(A, '')
        A('%s:', back)
    else:
        fn(A, ' sc1')


def pub_stores(A, stores, local):
    def fn(B, bits):
        for st in stores:
            B(st % bits)
    two_ways(A, fn, local)


def pub_flag(A, sflag, local, drain=True):
    if drain:
        A('s_waitcnt vmcnt(0)')
    A('s_mov_b64 exec, 1')
    two_ways(A, lambda B, bits: B('buffer_store_dword v%d, v%d, s[%d:%d], s%d offen%s', vTAG, vO, SWS, SWS + 3, sflag,
                                  bits), local)
    A('s_mov_b64 exec, -1')


def pub_flag4(A):
    A('v_lshlrev_b32 v%d, 9, v%d', vT1, vL)
    A('s_waitcnt vmcnt(0)')
    A('s_mov_b64 exec, 15')
    two_ways(A, lambda B, bits: B('buffer_store_dword v%d, v%d, s[%d:%d], s%d offen%s', vTAG, vT1, SWS, SWS + 3, sFL,
                                  bits), True)
    A('s_mov_b64 exec, -1')


def st4(reg, soff, off):
    return 'buffer_store_dwordx4 %s, v%d, s[%d:%d], s%d offen offset:%d%%s' % (v(reg, 4), vO, SWS, SWS + 3, soff, off)


def hilo_c(A, src, f, tmp):
    A('v_cvt_pk_bf16_f32 v%d, v%d, v%d', f, src, src)
    A('v_and_b32 v%d, 0xffff0000, v%d', tmp, f)
    A('v_sub_f32 v%d, v%d, v%d', tmp, src, tmp)
    A('v_cvt_pk_bf16_f32 v%d, v%d, 0', f + 1, tmp)


def hilo_m(A, src, f, tmp):
    A('v_cvt_pk_bf16_f32 v%d, v%d, 0', f + 1, src)
    A('v_lshlrev_b32 v%d, 16, v%d', tmp, f + 1)
    A('v_sub_f32 v%d, v%d, v%d', tmp, src, tmp)
    A('v_cvt_pk_bf16_f32 v%d, v%d, v%d', f, src, tmp)


def ln_finish(A, t0, t1, negmean, rstd):
    A('v_mul_f32 v%d, 0x%x, v%d', t0, 0x3b124925, t0)
    A('v_mov_b32 v%d, v%d', t1, t0)
    A('v_permlane32_swap_b32 v%d, v%d', t0, t1)
    A('v_fma_f32 v%d, -v%d, v%d, v%d', t1, t0, t0, t1)
    A('v_max_f32 v%d, 0, v%d', t1, t1)
    A('v_add_f32 v%d, 0x%x, v%d', t1, 0x3727c5ac, t1)
    A('v_rsq_f32 v%d, v%d', rstd, t1)
    A('v_sub_f32 v%d, 0, v%d', negmean, t0)


def softmax_pm(A, p, sc, e, t):
    A('v_cndmask_b32 v%d, v%d, v%d, s[%d:%d]', p + 12, p + 12, p + 14, sHI, sHI + 1)
    A('v_cndmask_b32 v%d, v%d, v%d, s[%d:%d]', p + 13, p + 13, p + 15, sHI, sHI + 1)
    mx, mn = t, t + 1
    A('v_max3_f32 v%d, v%d, v%d, v%d', mx, p, p + 1, p + 2)
    A('v_min3_f32 v%d, v%d, v%d, v%d', mn, p, p + 1, p + 2)
    for i in range(3, 13, 2):
        A('v_max3_f32 v%d, v%d, v%d, v%d', mx, mx, p + i, p + i + 1)
        A('v_min3_f32 v%d, v%d, v%d, v%d', mn, mn, p + i, p + i + 1)
    A('v_max_f32 v%d, v%d, v%d', mx, mx, p + 13)
    A('v_min_f32 v%d, v%d, v%d', mn, mn, p + 13)
    A('v_sub_f32 v%d, 0, v%d', mn, mn)
    A('v_permlane32_swap_b32 v%d, v%d', mx, mn)
    A('v_max_f32 v%d, v%d, v%d', mx, mx, mn)
    A('v_mul_f32 v%d, v%d, v%d', mx, mx, sc)
    A('v_mov_b32 v%d, v%d', mn, mx)
    A('v_permlane32_swap_b32 v%d, v%d', mx, mn)
    assert sc % 2 == 0 and mx % 2 == 0
    for i in range(0, 14, 2):
        A('v_pk_fma_f32 v[%d:%d], v[%d:%d], v[%d:%d], v[%d:%d] op_sel:[0,0,1] op_sel_hi:[1,0,1] neg_lo:[1,0,1] '
          'neg_hi:[1,0,1]', e + i, e + i + 1, p + i, p + i + 1, sc, sc + 1, mx, mx + 1)
        A('v_pk_fma_f32 v[%d:%d], v[%d:%d], v[%d:%d], v[%d:%d] op_sel_hi:[1,0,0] neg_lo:[0,0,1] neg_hi:[0,0,1]',
          p + i, p + i + 1, p + i, p + i + 1, sc, sc + 1, mx, mx + 1)
    for i in range(14):
        A('v_exp_f32 v%d, v%d', e + i, e + i)
        A('v_exp_f32 v%d, v%d', p + i, p + i)
    if PKSM:
        for base in (p, e):
            A('v_pk_add_f32 v[%d:%d], v[%d:%d], v[%d:%d]', base + 14, base + 15, base, base + 1, base + 2, base + 3)
        for i in range(4, 14, 2):
            for base in (p, e):
                A('v_pk_add_f32 v[%d:%d], v[%d:%d], v[%d:%d]', base + 14, base + 15, base + 14, base + 15, base + i,
                  base + i + 1)
    else:
        for base in (p, e):
            A('v_add_f32 v%d, v%d, v%d', base + 14, base, base + 2)
            A('v_add_f32 v%d, v%d, v%d', base + 15, base + 1, base + 3)
        for i in range(4, 14):
            for base in (p, e):
                A('v_add_f32 v%d, v%d, v%d', base + 14 + (i & 1), base + 14 + (i & 1), base + i)
    sp, sn = t + 2, t
    A('v_add_f32 v%d, v%d, v%d', sp, p + 14, p + 15)
    A('v_add_f32 v%d, v%d, v%d', sn, e + 14, e + 15)
    A('v_permlane32_swap_b32 v%d, v%d', sp, sn)
    A('v_add_f32 v%d, v%d, v%d', sp, sp, sn)
    A('v_rcp_f32 v%d, v%d', sp, sp)
    A('v_mov_b32 v%d, v%d', sn, sp)
    A('v_permlane32_swap_b32 v%d, v%d', sp, sn)
    for i in range(0, 14, 2):
        for base, r in ((p, sp), (e, sn)):
            if PKSM:
                A('v_pk_mul_f32 v[%d:%d], v[%d:%d], v[%d:%d] op_sel_hi:[1,0]', base + i, base + i + 1, base + i,
                  base + i + 1, r, r + 1)
            else:
                A('v_mul_f32 v%d, v%d, v%d', base + i, base + i, r)
                A('v_mul_f32 v%d, v%d, v%d', base + i + 1, base + i + 1, r)
    for i, (a0, a1) in enumerate(((0, 1), (2, 3), (4, 5), (6, None), (7, 8), (9, 10), (11, 12), (13, None))):
        for base in (p, e):
            A('v_cvt_pk_bf16_f32 v%d, v%d, %s', base + i, base + a0, '0' if a1 is None else 'v%d' % (base + a1))


PKSM = E('PKSM', 1)


def silu8(B, acc, e, sd, c1, out):
    for r in range(8):
        B('v_mul_f32 v%d, v%d, v%d', e + r, acc + r, c1)
        if r >= 1:
            B('v_exp_f32 v%d, v%d', e + r - 1, e + r - 1)
    B('v_exp_f32 v%d, v%d', e + 7, e + 7)
    for r in range(8):
        B('v_fma_f32 v%d, v%d, v%d, v%d', e + r, e + r, sd, sd)
        if r >= 1:
            B('v_rcp_f32 v%d, v%d', e + r - 1, e + r - 1)
    B('v_rcp_f32 v%d, v%d', e + 7, e + 7)
    for r in range(8):
        B('v_mul_f32 v%d, v%d, v%d', e + r, e + r, acc + r)
    cvt8(B, out, e, 4)


def cvt8(A, dst, src, n=8):
    for i in range(n):
        A('v_cvt_pk_bf16_f32 v%d, v%d, v%d', dst + i, src + 2 * i, src + 2 * i + 1)


def mfma(A, d, a_, b_, first=False):
    A('%s %s, %s, %s, %s', MFMA, v(d, 16), v(a_, 4), v(b_, 4), '0' if first else v(d, 16))


def merge(main, blocks, start, stop):
    idx = [i for i, l in enumerate(main) if l.strip().startswith('v_mfma')][start:stop]
    out, k = [], 0
    n = len(idx)
    pos = {i: j for j, i in enumerate(idx)}
    for i, l in enumerate(main):
        out.append(l)
        if i in pos:
            upto = (len(blocks) * (pos[i] + 1) + n - 1) // n
            for b in blocks[k:upto]:
                out += b
            k = max(k, upto)
    assert k >= len(blocks)
    return out


def sub(A):
    return Asm()


L_H = (L_A, L_A + 28672, 0, 65536)
W2S = [32768, 40960] + [L_A + k * 8192 for k in range(2)] + [L_SC0, L_SC1] + [L_A + k * 8192 for k in range(2, 7)] + [
    k * 8192 for k in range(4)] + [65536 + k * 8192 for k in range(4)]
W2GATE = {2: 9, 7: 10, 11: 11, 15: 12}
W2RE = dict(zip(range(19, 28), (0, 1, 2, 3, 6, 7, 8, 9, 10)))


def w2_slot(n):
    return W2S[W2RE.get(n, n)]


def w1_slot(c):
    return B16[c % 5]


class LdsQ:
    def __init__(self, A):
        self.A, self.q = A, []
        self.peeked = False

    def op(self, tag, fmt, *a):
        self.A(fmt, *a)
        self.q.append(tag)

    def need(self, tag):
        idx = [i for i, x in enumerate(self.q) if x == tag]
        if not idx:
            return None
        n = len(self.q) - 1 - idx[-1]
        self.q = self.q[idx[-1] + 1:]
        return min(n, 15)

    def wait(self, tag, vm=None):
        n = self.need(tag)
        if n is None and vm is None:
            return
        self.A('s_waitcnt' + ('' if vm is None else ' vmcnt(%d)' % vm) + ('' if n is None else ' lgkmcnt(%d)' % n))

    def stage(self, n):
        set_stage(self.A, n)
        self.q.append('st')

    def peek(self, w):
        if w == 5:
            self.op('pk', 'ds_read_b32 v%d, v%d', vPK_, vCA)
        else:
            self.op('pk', 'ds_read_b32 v%d, v%d offset:%d', vPK_, vMI, M_PW + 4 * w)
        self.peeked = True

    def take(self, w):
        if not self.peeked:
            return
        self.peeked = False
        self.wait('pk')
        self.A('v_readfirstlane_b32 s%d, v%d', CACHE[w], vPK_)


def tag_compute(A, t16=None):
    A('s_waitcnt lgkmcnt(0)')
    if t16 is not None:
        A('s_lshr_b32 s%d, s%d, 16', sT2, sTAG)
    A('s_mul_i32 s%d, s%d, 0x%x', sTAG, sTAG, 1664525)
    A('s_add_u32 s%d, s%d, 0x%x', sTAG, sTAG, 1013904223)
    A('v_mov_b32 v%d, s%d', vTAG, sTAG)
    if t16 is not None:
        A('s_and_b32 s%d, s%d, 0x3fff', t16, sTAG)
        A('s_and_b32 s%d, s%d, 0x4000', sT, sTAG)
        A('s_lshl_b32 s%d, s%d, 1', sT, sT)
        A('s_or_b32 s%d, s%d, s%d', t16, t16, sT)
        A('s_cmp_eq_u32 s%d, s%d', t16, sT2)
        A('s_cselect_b32 s%d, 1, 0', sT)
        A('s_xor_b32 s%d, s%d, s%d', t16, t16, sT)
        A('s_lshl_b32 s%d, s%d, 16', t16, t16)


def fast_check(A):
    A('s_getreg_b32 s%d, hwreg(HW_REG_XCC_ID)', sC)
    A('s_and_b32 s%d, s%d, 15', sC, sC)
    A('s_add_u32 s%d, s%d, s%d', sC, sC, sTAG)
    A('s_lshl_b32 s%d, s%d, 7', sT, sXCD)
    A('s_add_u32 s%d, s%d, %d', sT, sT, FREG)
    A('v_and_b32 v%d, 31, v%d', vT1, vL)
    A('v_lshlrev_b32 v%d, 2, v%d', vT1, vT1)
    A('buffer_load_dword v%d, v%d, s[%d:%d], s%d offen sc1', vT0, vT1, SWS, SWS + 3, sT)
    A('s_waitcnt vmcnt(0)')
    A('v_cmp_ne_u32 vcc, s%d, v%d', sC, vT0)
    A('s_cmp_eq_u64 vcc, 0')
    A('s_cselect_b32 s%d, 1, 0', sFASTF)


class Stream:
    def __init__(self, A, wave, depth, first=0):
        self.A, self.wave, self.depth = A, wave, depth
        self.items = []
        self.issued = 0
        self.known = 0
        self.n = first

    def wait_to(self, left):
        if self.issued - left <= self.known:
            return
        self.A('s_waitcnt vmcnt(%d)', left)
        self.known = self.issued - left
        last = None
        while self.items and self.items[0][1] <= self.known:
            last = self.items.pop(0)[0]
        if last is not None:
            set_stage(self.A, last)

    def room(self, k):
        self.wait_to(max(self.depth - k, 0))
        self.issued += k

    def done(self, name, cnt=None):
        self.n += 1
        assert LP.setdefault(name, (self.wave, self.n)) == (self.wave, self.n), name
        self.items.append((self.n, self.issued))

    def drain(self):
        self.drain_to(0)

    def drain_to(self, keep):
        while len(self.items) > keep:
            self.wait_to(self.issued - self.items[0][1])

    def save(self):
        return (list(self.items), self.issued, self.known)

    def restore(self, s):
        self.items, self.issued, self.known = list(s[0]), s[1], s[2]

    def dma4(self, lds, voffs, srd_, step=None, bits=''):
        A = self.A
        if isinstance(lds, tuple):
            A('s_add_u32 m0, s%d, %d', lds[0], lds[1])
        else:
            A('s_mov_b32 m0, %d', lds)
        self.room(4)
        for u in range(4):
            A('buffer_load_dwordx4 v%d, s[%d:%d], s%d offen offset:%d%s lds', voffs[u], srd_, srd_ + 3, sT, u * 1024,
              bits)
        if step:
            A('s_add_u32 s%d, s%d, %d', sT, sT, step)


def reg4(St, regs, voffs, srd_, step=None):
    St.room(4)
    for u in range(4):
        St.A('buffer_load_dwordx4 %s, v%d, s[%d:%d], s%d offen offset:%d', v(regs[u], 4), voffs[u], srd_, srd_ + 3, sT,
             u * 1024)
    if step:
        St.A('s_add_u32 s%d, s%d, %d', sT, sT, step)


def spill(St, name, regs, lds):
    A = St.A
    assert not St.items
    A('v_add_u32 v%d, %d, v%d', vT1, lds, vO)
    A('s_setprio %d', E('SPRIO', 0))
    for j, r in enumerate(regs):
        A('ds_write_b128 v%d, %s offset:%d', vT1, v(r, 4), j * 1024)
    St.n += 1
    assert LP.setdefault(name, (St.wave, St.n)) == (St.wave, St.n), name
    set_stage(A, St.n)


def off128(A, vW128, vXo=None):
    A('v_lshrrev_b32 v%d, 3, v%d', vW128, vL)
    A('v_mul_u32_u24 v%d, 896, v%d', vW128, vW128)
    A('v_and_b32 v%d, 7, v%d', vT1, vL)
    if vXo is not None:
        A('v_lshl_add_u32 v%d, v%d, 4, v%d', vXo, vT1, vW128)
        spread4(A, vXo, 8 * 896)
    A('v_lshrrev_b32 v%d, 2, v%d', vT0, vL)
    A('v_and_b32 v%d, 4, v%d', vT0, vT0)
    A('v_xor_b32 v%d, v%d, v%d', vT1, vT1, vT0)
    A('v_lshl_add_u32 v%d, v%d, 4, v%d', vW128, vT1, vW128)
    spread4(A, vW128, 8 * 896)


def off256(A, vW256):
    A('v_lshrrev_b32 v%d, 4, v%d', vW256, vL)
    A('v_mul_u32_u24 v%d, 3584, v%d', vW256, vW256)
    A('v_and_b32 v%d, 15, v%d', vT1, vL)
    A('v_lshrrev_b32 v%d, 2, v%d', vT0, vL)
    A('v_and_b32 v%d, 12, v%d', vT0, vT0)
    A('v_xor_b32 v%d, v%d, v%d', vT1, vT1, vT0)
    A('v_lshl_add_u32 v%d, v%d, 4, v%d', vW256, vT1, vW256)
    spread4(A, vW256, 4 * 3584)


def h_stream(A, first):
    wave = 7
    St = Stream(A, wave, E('HDEPTH', 24), first)
    if wave == 7:
        A('s_lshl_b32 s%d, s%d, 17', sB, sTB3)
        A('s_add_u32 s%d, s%d, %d', sB, sB, WS_HB + (0x40000000 if E('ABL', 0) & 128 else 0))
        rot_calc(A, sG, 'w1')
        for u in range(7):
            rot_idx(A, 4 + u, sG, u, 7)
            A('s_lshl_b32 s%d, s%d, 12', 4 + u, 4 + u)
            A('s_add_u32 s%d, s%d, s%d', 4 + u, 4 + u, sB)
            A('s_add_u32 s%d, s%d, 4096', 4 + u, 4 + u)
        A('s_lshl_b32 s%d, s%d, 8', sT2, sTB3)
        A('s_add_u32 s%d, s%d, %d', sT2, sT2, F3)
        A('v_lshlrev_b32 v%d, 2, v%d', vT1, vL)
        A('s_and_b32 s%d, s%d, 1', sC, sFB)
        A('s_lshl_b32 s%d, s%d, 16', sC, sC)
        wait_stage(A, C0 + 7, sleep=1)
        stamp(A)
        lo, done = A.label('P'), A.label('PD')
        A('s_mov_b32 exec_lo, 0x3fff3fff')
        A('s_mov_b32 exec_hi, 0x3fff3fff')
        A('%s:', lo)
        A('buffer_load_dword v%d, v%d, s[%d:%d], s%d offen sc1', vT0, vT1, SWS, SWS + 3, sT2)
        A('s_waitcnt vmcnt(0)')
        A('v_cmp_ne_u32 vcc, s%d, v%d', sTAG, vT0)
        spin_guard(A, done)
        A('s_cbranch_vccnz %s', lo)
        A('%s:', done)
        A('s_mov_b64 exec, -1')
        stamp(A)
        for gi in range(4):
            if gi == 2:
                wait_stage(A, C0 + 8)
            if gi:
                A('s_xor_b32 s%d, s%d, %d', sC, sC, (gi ^ (gi - 1)) << 15)
            St.depth = E('HDEPTH0', 24) if gi == 0 else E('HDEPTH', 24)
            for u in range(7):
                A('s_add_u32 s%d, s%d, s%d', sT, 4 + u, sC)
                St.dma4(L_H[gi] + u * 4096, [vO] * 4, SWS, None, LDB)
                if u in HITEMS[gi > 0]:
                    St.done(('h', gi, u))
                if u == (E('HSPOS', 3) if gi == 0 else 0):
                    A('s_add_u32 s%d, s%d, s%d', sT, sB, sC)
                    St.dma4(L_SC0 + gi * 4096, [vO] * 4, SWS, None, ' sc1')
                    St.done(('hs', gi))
        St.drain()
    stamp(A)


def spread4(A, base, step):
    for u in range(1, 4):
        A('v_add_u32 v%d, %d, v%d', base + u, u * (step - 1024), base)


def wtr_base(A):
    A('v_lshrrev_b32 v%d, 5, v%d', vT1, vL)
    A('v_bfe_u32 v%d, v%d, 2, 2', vT0, vL)
    A('v_lshl_add_u32 v%d, v%d, 3, v%d', vT0, vT1, vT0)
    A('v_lshlrev_b32 v%d, 6, v%d', vT0, vT0)
    A('v_bfe_u32 v%d, v%d, 4, 1', vTT, vL)
    A('v_lshl_add_u32 v%d, v%d, 5, v%d', vT0, vTT, vT0)
    A('v_and_b32 v%d, 3, v%d', vTT, vL)
    A('v_lshl_add_u32 v%d, v%d, 3, v%d', vT0, vTT, vT0)
    for pi in range(3):
        A('v_add_u32 v%d, %d, v%d', vWA + pi, L_WP[pi], vT0)
    A('v_lshlrev_b32 v%d, 3, v%d', vCA, vL)
    A('v_add_u32 v%d, %d, v%d', vCA, L_CF, vCA)


def sel_frags(A, vID):
    A('v_lshrrev_b32 v%d, 5, v%d', vT1, vL)
    A('v_and_b32 v%d, 31, v%d', vT0, vL)
    A('v_lshlrev_b32 v%d, 2, v%d', vTT, vT1)
    A('v_sub_u32 v%d, v%d, v%d', vT0, vT0, vTT)
    A('v_mov_b32 v%d, 0x3f80', vTT)
    A('v_mov_b32 v%d, 0x3f800000', vTT + 1)
    for sidx in range(2):
        for rr in range(4):
            m = 16 * sidx + 8 * (rr >> 1) + 2 * (rr & 1)
            A('v_cmp_eq_u32 vcc, %d, v%d', m, vT0)
            A('v_cndmask_b32 v%d, 0, v%d, vcc', vID + 4 * sidx + rr, vTT)
            A('v_cmp_eq_u32 vcc, %d, v%d', m + 1, vT0)
            A('v_cndmask_b32 v%d, v%d, v%d, vcc', vID + 4 * sidx + rr, vID + 4 * sidx + rr, vTT + 1)


def read_w(A, pi, i, buf, sleep=0):
    wait_lp(A, ('W', pi, i), sleep)
    for q in range(4):
        for z in range(2):
            A('ds_read_b64_tr_b16 v[%d:%d], v%d offset:%d', buf + 4 * q + 2 * z, buf + 4 * q + 2 * z + 1,
              vWA + pi, i * 4096 + q * 1024 + z * 256)


def colsum(A, spi):
    vCS, vB_, buf = 40, 44, 48
    A('v_mov_b32 v%d, 0', vCS)
    A('v_mov_b32 v%d, 0', vCS + 1)
    A('s_cmp_eq_u32 s%d, 1', spi)
    A('s_cselect_b32 s%d, 0, %d', sT, L_WP[2])
    A('s_cmp_eq_u32 s%d, 0', spi)
    A('s_cselect_b32 s%d, %d, s%d', sT, L_WP[0], sT)
    assert L_WP[1] == 0
    A('v_add_u32 v%d, s%d, v%d', vB_, sT, vWA + 1)
    A('s_mul_i32 s%d, s%d, 7', sC, spi)
    A('s_add_u32 s%d, s%d, 7', sT2, sC)
    top, lo, ok = A.label('CS'), A.label('W'), A.label('WD')
    A('%s:', top)
    A('s_cmp_gt_u32 s%d, s%d', sPROG, sC)
    A('s_cbranch_scc1 %s', ok)
    prio(A, 0)
    A('%s:', lo)
    A('ds_read_b32 v%d, v%d offset:%d', vPW, vMI, M_PW + 16)
    A('s_waitcnt lgkmcnt(0)')
    A('v_readfirstlane_b32 s%d, v%d', sPROG, vPW)
    spin_guard(A, ok)
    A('s_cmp_gt_u32 s%d, s%d', sPROG, sC)
    again(A, 's_cbranch_scc0', lo)
    prio(A, 1)
    A('%s:', ok)
    for q in range(4):
        for z in range(2):
            A('ds_read_b64_tr_b16 v[%d:%d], v%d offset:%d', buf + 4 * q + 2 * z, buf + 4 * q + 2 * z + 1, vB_,
              q * 1024 + z * 256)
    A('ds_read_b32 v%d, v%d offset:%d', vPW, vMI, M_PW + 16)
    A('v_add_u32 v%d, 4096, v%d', vB_, vB_)
    A('s_add_u32 s%d, s%d, 1', sC, sC)
    for q in range(4):
        A('s_waitcnt lgkmcnt(%d)', 7 - 2 * q)
        for r in range(4):
            A('v_dot2c_f32_bf16 v%d, s%d, v%d', vCS + (r & 1), sONES, buf + 4 * q + r)
    A('s_waitcnt lgkmcnt(0)')
    A('v_readfirstlane_b32 s%d, v%d', sPROG, vPW)
    A('s_cmp_lt_u32 s%d, s%d', sC, sT2)
    A('s_cbranch_scc1 %s', top)
    A('v_add_f32 v%d, v%d, v%d', vCS, vCS, vCS + 1)
    hilo_c(A, vCS, vCS + 2, vT0)
    A('s_lshl_b32 s%d, s%d, 9', sT, spi)
    A('v_add_u32 v%d, s%d, v%d', vB_, sT, vCA)
    A('ds_write_b64 v%d, v[%d:%d]', vB_, vCS + 2, vCS + 3)


ROT = E('ROT', 1)
HITEMS = ((1, 3, 5, 6), (1, 3, 6))
W7ST = 0
LATE = E('LATE', 1)
W2R = E('W2R', 0)


def rot_calc(A, dst, kind):
    if not ROT:
        A('s_mov_b32 s%d, 0', dst)
        return
    if kind == 'w1':
        A('s_and_b32 s%d, s%d, 1', dst, sTB3)
        A('s_mul_i32 s%d, s%d, %d', dst, dst, 4 if LATE else 3)
        mod = 7
    elif kind == 'wo':
        A('s_and_b32 s%d, s%d, 3', dst, sTQ)
        A('s_lshl_b32 s%d, s%d, 1', dst, dst)
        mod = 7
    else:
        A('s_and_b32 s%d, s%d, 3', dst, sTQ)
        A('s_mul_i32 s%d, s%d, 7', dst, dst)
        A('s_lshr_b32 s%d, s%d, 1', dst, dst)
        mod = 14
    A('s_add_u32 s%d, s%d, s%d', dst, dst, sXCD)
    if kind == 'w1' and E('ROTFB', 1):
        A('s_lshr_b32 s%d, s%d, 1', sT, sFB)
        A('s_add_u32 s%d, s%d, s%d', dst, dst, sT)
        A('s_mul_i32 s%d, s%d, 37', sT, dst)
        A('s_lshr_b32 s%d, s%d, 8', sT, sT)
        A('s_mul_i32 s%d, s%d, 7', sT, sT)
        A('s_sub_u32 s%d, s%d, s%d', dst, dst, sT)
        return
    A('s_cmp_ge_u32 s%d, %d', dst, mod)
    A('s_cselect_b32 s%d, %d, 0', sT, mod)
    A('s_sub_u32 s%d, s%d, s%d', dst, dst, sT)


def rot_idx(A, dst, rot, j, mod):
    A('s_add_u32 s%d, s%d, %d', dst, rot, j)
    A('s_cmp_ge_u32 s%d, %d', dst, mod)
    A('s_cselect_b32 s%d, %d, 0', sT2, mod)
    A('s_sub_u32 s%d, s%d, s%d', dst, dst, sT2)


def blk_init(A, sb, sst, kh):
    A('s_and_b32 s%d, s%d, 1', sb, sTQ)
    if isinstance(kh, str):
        A('s_xor_b32 s%d, s%d, %s', sb, sb, kh)
    elif kh:
        A('s_xor_b32 s%d, s%d, 1', sb, sb)
    A('s_lshr_b32 s%d, s%d, 1', sT, sTQ)
    A('s_xor_b32 s%d, s%d, s%d', sT, sT, sXCD)
    A('s_sub_u32 s%d, 6, s%d', sT2, sb)
    A('s_bitcmp1_b32 s%d, 0', sT)
    A('s_cselect_b32 s%d, s%d, s%d', sb, sT2, sb)
    A('s_cselect_b32 s%d, 5, 2', sst)


def blk_next(A, sb, sst):
    A('s_add_u32 s%d, s%d, s%d', sb, sb, sst)
    A('s_cmp_ge_u32 s%d, 7', sb)
    A('s_cselect_b32 s%d, 7, 0', sT2)
    A('s_sub_u32 s%d, s%d, s%d', sb, sb, sT2)


def rest_srds(A):
    A('s_add_u32 s82, s80, %d', FEP)
    A('s_addc_u32 s83, s81, 0')
    A('s_load_dword s%d, s[82:83], 0', sTAG)
    srd(A, SP, 68, H * DH * DH * 2)
    A('s_mul_i32 s%d, s%d, 37', sTQ, sI)
    A('s_lshr_b32 s%d, s%d, 8', sTQ, sTQ)
    A('s_mul_i32 s%d, s%d, 7', sNB, sTQ)
    A('s_sub_u32 s%d, s%d, s%d', sNB, sI, sNB)
    A('s_lshr_b32 s%d, s%d, 1', sTB3, sTQ)
    A('s_mul_i32 s%d, s%d, 14', sFB, sTB3)
    A('s_sub_u32 s%d, s%d, s%d', sFB, sI, sFB)
    A('s_lshl2_add_u32 s%d, s%d, s%d', sTQ, sXCD, sTQ)
    A('s_lshl1_add_u32 s%d, s%d, s%d', sTB3, sXCD, sTB3)
    A('v_lshlrev_b32 v%d, 4, v%d', vO, vL)
    A('s_mov_b32 s%d, 0', sFASTF)
    A('s_mov_b32 s%d, 0x%x', sONES, ONES)
    ABL = E('ABL', 0)
    srd(A, SWO, 70, 0 if ABL & 1 else D * D * 2)
    srd(A, SW1, 74, 0 if ABL & 2 else D * F * 2)
    srd(A, SW2, 76, 0 if ABL & 4 else D * F * 2)
    srd(A, SOUT, 78, S * D * 2)
    srd(A, SWS, 80, WS_SIZE)


def rot_next(A):
    A('s_add_u32 s%d, s%d, 1', sC, sC)
    A('s_cmp_eq_u32 s%d, 7', sC)
    A('s_cselect_b32 s%d, 0, s%d', sC, sC)


def sig_dyn(A, sval):
    A('v_mov_b32 v%d, s%d', vT0, sval)
    A('ds_write_b32 v%d, v%d', vMY, vT0)


def x_offsets(A):
    A('v_lshrrev_b32 v%d, 3, v%d', vT0, vL)
    A('v_mul_u32_u24 v%d, 896, v%d', vT0, vT0)
    A('v_lshrrev_b32 v%d, 4, v%d', vT1, vL)
    A('v_and_b32 v%d, 7, v%d', vXD, vL)
    A('v_xor_b32 v%d, v%d, v%d', vXD, vXD, vT1)
    A('v_xor_b32 v%d, 4, v%d', vXD + 1, vXD)
    A('v_lshl_add_u32 v%d, v%d, 4, v%d', vXD, vXD, vT0)
    A('v_lshl_add_u32 v%d, v%d, 4, v%d', vXD + 1, vXD + 1, vT0)
    A('v_add_u32 v%d, %d, v%d', vXD + 1, 8 * 896 - 1024, vXD + 1)
    A('v_add_u32 v%d, %d, v%d', vXD + 2, 2 * (8 * 896 - 1024), vXD)
    A('v_add_u32 v%d, %d, v%d', vXD + 3, 2 * (8 * 896 - 1024), vXD + 1)
    A('s_mul_i32 s%d, s%d, %d', sXB, sTB, 0 if E('AB2', 0) & 16 else 128 * 896)


def w_offsets(A):
    vW = 40
    A('v_lshrrev_b32 v%d, 2, v%d', vW, vL)
    A('v_mul_u32_u24 v%d, 2688, v%d', vW, vW)
    A('v_and_b32 v%d, 3, v%d', vT1, vL)
    A('v_lshl_add_u32 v%d, v%d, 4, v%d', vW, vT1, vW)
    A('s_mul_i32 s%d, s%d, %d', sT, sH, 0 if E('AB2', 0) & 8 else 56)
    A('s_and_b32 s%d, s%d, 0xfffffff0', sT, sT)
    A('v_add_u32 v%d, s%d, v%d', vW, sT, vW)
    spread4(A, vW, 16 * 2688)


def early_x(A):
    depth = E('XDEPTH', 20)
    wsig = ((depth - 4) // 4) % 4
    lag = (depth - 4 - 4 * wsig) // 16
    A('s_mov_b32 s%d, %d', sG, 1 - lag)
    A('s_mov_b32 m0, %d', L_X + 16384)
    A('s_mov_b32 s%d, s%d', sC, sC0)
    rot_next(A)
    top = A.label('XL')
    A('%s:', top)
    A('s_lshl_b32 s%d, s%d, 7', sT, sC)
    A('s_add_u32 s%d, s%d, s%d', sT, sT, sXB)
    for w in range(4):
        A('s_waitcnt vmcnt(%d)', depth - 4)
        if w == wsig:
            A('s_max_i32 s%d, s%d, 0', sT2, sG)
            sig_dyn(A, sT2)
        for u in range(4):
            A('buffer_load_dwordx4 v%d, s[%d:%d], s%d offen offset:%d lds', vXD + u, SX, SX + 3, sT, u * 1024)
        A('s_add_u32 m0, m0, 4096')
        if w < 3:
            A('s_add_u32 s%d, s%d, %d', sT, sT, 32 * 896)
    rot_next(A)
    A('s_add_u32 s%d, s%d, 1', sG, sG)
    A('s_cmp_lt_i32 s%d, %d', sG, 7 - lag)
    A('s_cbranch_scc1 %s', top)
    stamp(A)
    for n in range(7 - lag, 8):
        A('s_waitcnt vmcnt(%d)', 16 * (7 - n))
        set_stage(A, n)


def early_w(A):
    vW = 40

    def part_loop(pi, depth, floor):
        lag = (depth - 4) // 4
        stamp(A)
        A('s_mov_b32 s%d, s%d', sC, sC0)
        A('s_mov_b32 s%d, %d', sG, 7 * pi - lag)
        A('s_mov_b32 m0, %d', L_WP[pi])
        top = A.label('WL')
        A('%s:', top)
        A('s_mul_i32 s%d, s%d, %d', sT, sC, 64 * 2688)
        A('s_add_u32 s%d, s%d, %d', sT, sT, (1, 2, 0)[pi] * 896)
        A('s_max_i32 s%d, s%d, %d', sT2, sG, floor)
        A('s_waitcnt vmcnt(%d)', depth - 4)
        sig_dyn(A, sT2)
        for u in range(4):
            A('buffer_load_dwordx4 v%d, s[%d:%d], s%d offen offset:%d lds', vW + u, SW, SW + 3, sT, u * 1024)
        A('s_add_u32 m0, m0, 4096')
        rot_next(A)
        A('s_add_u32 s%d, s%d, 1', sG, sG)
        A('s_cmp_lt_i32 s%d, %d', sG, 7 * pi + 7 - lag)
        A('s_cbranch_scc1 %s', top)
        return lag
    if E('WTWAIT', 1):
        A('s_waitcnt vmcnt(0)')
    lag = part_loop(0, E('WDEPTH', 12), 0)
    for n in range(7 - lag, 8):
        A('s_waitcnt vmcnt(%d)', 4 * (7 - n))
        set_stage(A, n)


def gen_h0(A):
    St = Stream(A, 4, E('WDEPTH2', 24), 7)
    vW, vW128, vXo, vW256 = 36, 12, 16, 20
    q4 = lambda b: [b, b + 1, b + 2, b + 3]
    for u in range(4):
        A('v_mov_b32 v%d, v%d', vW + u, 40 + u)
    rest_srds(A)
    off128(A, vW128)
    off256(A, vW256)
    A('s_lshl_b32 s%d, s%d, 7', sB, sNB)
    sR1, sRO = sG, sKH
    rot_calc(A, sR1, 'w1')
    rot_calc(A, sRO, 'wo')
    sBK, sBS = [8, 9], 10
    blk_init(A, sBK[0], sBS, 0)
    blk_init(A, sBK[1], sBS, 1)

    def wpart(pi):
        wait_stage(A, pi)
        if pi == 1 and E('XG2', 4) >= 0:
            wait_lp(A, ('x', E('XG2', 4)))
        stamp(A)
        for i in range(7):
            rot_idx(A, sT, sC0, i, 7)
            A('s_mul_i32 s%d, s%d, %d', sT, sT, 64 * 2688)
            if pi == 1:
                A('s_add_u32 s%d, s%d, %d', sT, sT, 2 * 896)
            St.dma4(L_WP[pi] + i * 4096, q4(vW), SW)
            St.done(('W', pi, i))

    def wq():
        wpart(2)
    wpart(1)
    St.drain_to(E('WVKEEP', 7))
    lend = A.label('LEND')
    act = A.label('ACT')
    A('s_cmp_lt_u32 s%d, 28', sI)
    A('s_cbranch_scc1 %s', act)
    keep, n0 = St.save(), _st['n']
    wq()
    St.drain()
    St.restore(keep)
    St.n = 14
    if E('TOUCH', 1):
        def touch(srd_, base, per_xcd, n):
            A('s_mul_i32 s%d, s%d, %d', sT, sXCD, per_xcd)
            A('s_sub_u32 s%d, s%d, 28', sT2, sI)
            A('s_mul_i32 s%d, s%d, %d', sT2, sT2, n * 8192)
            A('s_add_u32 s%d, s%d, s%d', sT, sT, sT2)
            A('s_add_u32 s%d, s%d, %d', sT, sT, base)
            A('s_mov_b32 s%d, %d', sC, n)
            lo = A.label('T')
            A('%s:', lo)
            A('buffer_load_dword v%d, v%d, s[%d:%d], s%d offen', vW + 1, vW, srd_, srd_ + 3, sT)
            A('s_add_u32 s%d, s%d, 8192', sT, sT)
            A('s_waitcnt vmcnt(%d)', E('TDEPTH', 6))
            A('s_sub_u32 s%d, s%d, 1', sC, sC)
            A('s_cmp_lg_u32 s%d, 0', sC)
            A('s_cbranch_scc1 %s', lo)
        A('v_lshlrev_b32 v%d, 7, v%d', vW, vL)
        if E('W2M', 1) == 2:
            touch(SW2, 0, 4 * 7 * 8192, 7)
        if E('TEARLY', 0):
            wait_stage(A, 3, (5, 6), sleep=2)
        else:
            wait_stage(A, C0 + 5, sleep=2)
        stamp(A)
        if HLATE and not WTO:
            touch(SWS, WS_HB, 262144, 8)
        if E('W2M', 1) == 1:
            touch(SW2, 0, 4 * 7 * 8192, 7)
        stamp(A)
        if not WT1:
            touch(SWS, WS_H1B, 8 * 112 * 1024, 28)
        stamp(A)
        if E('W2WARM', 0):
            touch(SW2, 0, 0, 49)
        stamp(A)
        if E('WBL2', 0):
            tag_compute(A)
            skipw = A.label('NW')
            if E('WBL2', 0) == 1:
                A('s_cmp_lg_u32 s%d, 28', sI)
                A('s_cbranch_scc1 %s', skipw)
            A('s_lshl_b32 s%d, s%d, 2', sC, sXCD)
            A('s_add_u32 s%d, s%d, s%d', sC, sC, sI)
            A('s_sub_u32 s%d, s%d, 28', sC, sC)
            A('s_lshl_b32 s%d, s%d, 8', sC, sC)
            A('s_add_u32 s%d, s%d, %d', sC, sC, F4)
            poll_global(A, sC, (1 << 56) - 1)
            A('buffer_wbl2 sc1')
            A('s_waitcnt vmcnt(0)')
            A('%s:', skipw)
    _st['n'] = n0
    A('s_branch %s', lend)
    A('%s:', act)

    def w1_off(c):
        rot_idx(A, sT, sR1, c, 7)
        A('s_mul_i32 s%d, s%d, %d', sT, sT, 64 * 3584)
        if not E('AB2', 0) & 2:
            A('s_lshl_b32 s%d, s%d, 8', sT2, sFB)
            A('s_add_u32 s%d, s%d, s%d', sT, sT, sT2)

    def w1_chunk(c):
        w1_off(c)
        for u in range(4):
            St.dma4(w1_slot(c) + u * 4096, q4(vW256), SW1, 16 * 3584 if u < 3 else None)
        St.done(('w1', c), 16)

    def w2_item(n):
        c, kh = n >> 1, n & 1
        A('s_mul_i32 s%d, s%d, %d', sT, sBK[kh], 128 * 896)
        if not E('AB2', 0) & 4:
            A('s_add_u32 s%d, s%d, s%d', sT, sT, sB)
        if kh or (c & 1):
            A('s_add_u32 s%d, s%d, %d', sT, sT, (kh * 896 + (c & 1) * 64) * 896)
        if c & 1:
            blk_next(A, sBK[kh], sBS)
        for u in range(2):
            St.dma4(w2_slot(n) + u * 4096, q4(vW128), SW2, 32 * 896 if u < 1 else None)
        St.done(('w2', n), 8)

    SR = [24, 28] + list(range(40, 256, 4))

    def staged(c0=0, c1=3):
        for u in range(4 * c0, 4 * c1):
            if u % 4 == 0:
                w1_off((0 if LATE else 4) + u // 4)
            reg4(St, SR[8 + 4 * u:12 + 4 * u], q4(vW256), SW1, 16 * 3584)

    def wo():
        St.drain_to(3)
        wait_stage(A, 3)
        wait_word(A, 5, 1)
        stamp(A)
        for c in range(7):
            rot_idx(A, sC, sRO, c, 7)
            A('s_mul_i32 s%d, s%d, %d', sT, sC, 64 * 896)
            if not E('AB2', 0) & 1:
                A('s_add_u32 s%d, s%d, s%d', sT, sT, sB)
            A('s_lshl_b32 s%d, s%d, 13', sC, sC)
            for u in range(2):
                St.dma4((sC, L_A + u * 4096), q4(vW128), SWO, 32 * 896 if u < 1 else None)
            if c == 2:
                St.depth = E('LDEPTH', 32)
        St.done('wo')
    staged(0, E('NSQ', 2))
    wq()
    staged(E('NSQ', 2), 3)
    wo()
    stamp(A)
    wait_stage(A, 2, (5, 6))
    stamp(A)
    if LATE:
        n3 = St.n
        St.n += 3
        w1_chunk(3)
        St.items, it3 = St.items[:-1], St.items[-1]
        St.drain()
        St.wait_to(16)
        St.n = n3
        for c in range(3):
            spill(St, ('w1', c), SR[8 + 16 * c:24 + 16 * c], w1_slot(c))
        St.n += 1
        St.items = [it3]
        St.drain()
        stamp(A)
        wait_stage(A, C0 + 3)
        wait_word(A, 7, 9)
        wait_stage(A, 1, base=M_CP)
        if LATE == 1:
            wait_stage(A, 1, base=M_LD)
        elif LATE == 2:
            wait_stage(A, 3, (5, 6))
        St.depth = E('LATEDEPTH', 20)
        for c in (4, 5, 6):
            w1_chunk(c)
        St.drain()
    else:
        for c in range(4):
            w1_chunk(c)
        St.drain()
        St.wait_to(0)
        stamp(A)
        wait_stage(A, C0 + 3)
        wait_word(A, 7, 9)
        spill(St, ('w1', 4), SR[8:24], w1_slot(4))
        wait_stage(A, 1, base=M_CP)
        spill(St, ('w1', 5), SR[24:40], w1_slot(5))
        spill(St, ('w1', 6), SR[40:56], w1_slot(6))
    stamp(A)
    wait_stage(A, C0 + 8, sleep=2)
    wait_lp(A, ('h', E('W2AFTER', 2), E('W2AFTERQ', 1)), 1)
    stamp(A)
    St.depth = E('W2DEPTH', 32)
    for n in range(28):
        if n in W2GATE:
            wait_stage(A, C0 + W2GATE[n])
        if n == 4:
            wait_stage(A, 5, (5, 6))
        if n == 19:
            stamp(A)
            St.depth = E('W2DEPTH3', 32)
        if n >= 19:
            m = W2RE[n]
            wait_stage(A, C0 + 13 + (m >> 1), (0, 1) if (m & 1) == 0 else (2, 3))
        w2_item(n)
    St.drain()
    stamp(A)
    A('%s:', lend)
    A('s_waitcnt lgkmcnt(0)')
    stamp_flush(A)
    A('s_endpgm')


def gen_h1(A):
    stamp(A)
    rest_srds(A)
    wtr_base(A)
    tag_compute(A)
    def extras():
        if WARM:
            for srd_, size in ((SWO, D * D * 2), (SW1, D * F * 2), (SW2, D * F * 2)):
                A('s_mul_i32 s%d, s2, %d', sT, size // 256)
                A('v_lshlrev_b32 v%d, 7, v%d', vT1, vL)
                A('s_mov_b64 exec, 0x%x', (1 << ((size // 256 + 127) // 128)) - 1) if size // 256 < 4096 else None
                if size // 256 >= 4096:
                    A('s_mov_b32 exec_hi, 0x%x', (1 << ((size // 256 + 127) // 128 - 32)) - 1)
                A('buffer_load_dword v63, v%d, s[%d:%d], s%d offen', vT1, srd_, srd_ + 3, sT)
                A('s_mov_b64 exec, -1')
        if E('FT', 3) & 2:
            nf = A.label('NF')
            A('s_cmp_lt_u32 s%d, 28', sI)
            A('s_cbranch_scc1 %s', nf)
            A('v_lshlrev_b32 v%d, 7, v%d', vT1, vL)
            A('s_mov_b64 exec, 0xf')
            for base, sh in ((F2, 9), (F3, 9), (F4, 10)):
                A('s_lshl_b32 s%d, s%d, %d', sT, sXCD, sh)
                A('s_add_u32 s%d, s%d, %d', sT, sT, base)
                A('buffer_load_dword v63, v%d, s[%d:%d], s%d offen', vT1, SWS, SWS + 3, sT)
                A('s_mov_b64 exec, 0x%x', 0xf if base == F2 else 0xff)
            A('s_mov_b64 exec, -1')
            A('%s:', nf)
        if E('TOUCH', 1) and not WTO:
            A('s_lshl_b32 s%d, s%d, 18', sT, sXCD)
            A('s_lshl_b32 s%d, s%d, 13', sT2, sI)
            A('s_add_u32 s%d, s%d, s%d', sT, sT, sT2)
            A('v_lshlrev_b32 v%d, 7, v%d', vT1, vL)
            for base in ([WS_OB] if MAP == 0 else []) + ([] if HLATE else [WS_HB]):
                A('s_add_u32 s%d, s%d, %d', sT2, sT, base)
                A('buffer_load_dword v63, v%d, s[%d:%d], s%d offen', vT1, SWS, SWS + 3, sT2)

    if TOUCHAT == 0:
        extras()
    A('s_mov_b32 s%d, 1', sG)
    off256(A, 20)
    rot_calc(A, sXB, 'w1')
    cs, cs2 = A.label('CSL'), A.label('CSM')
    St = Stream(A, 7, E('W7DEPTH', 16), 9)

    def stage7():
        for u in range(4 * W7ST):
            if u % 4 == 0:
                rot_idx(A, sT, sXB, u // 4, 7)
                A('s_mul_i32 s%d, s%d, %d', sT, sT, 64 * 3584)
                A('s_lshl_b32 s%d, s%d, 8', sT2, sFB)
                A('s_add_u32 s%d, s%d, s%d', sT, sT, sT2)
            reg4(St, [64 + 16 * u + 4 * k for k in range(4)], [20, 21, 22, 23], SW1, 16 * 3584)
    A('%s:', cs)
    colsum(A, sG)
    A('s_add_u32 s%d, s%d, 7', sT, sG)
    sig_dyn(A, sT)
    A('s_add_u32 s%d, s%d, 1', sG, sG)
    A('s_cmp_eq_u32 s%d, 3', sG)
    A('s_cbranch_scc1 %s', cs2)
    stamp(A)
    A('s_cmp_ge_u32 s%d, 28', sI)
    A('s_cbranch_scc1 %s', cs)
    stage7()
    A('s_branch %s', cs)
    A('%s:', cs2)
    if TOUCHAT == 2:
        extras()
    stamp(A)
    lend = A.label('LEND')
    A('s_cmp_ge_u32 s%d, 28', sI)
    A('s_cbranch_scc1 %s', lend)
    if W7ST:
        A('s_waitcnt vmcnt(%d)', 1 if TOUCHAT == 2 and not WARM else 0)
        wait_stage(A, 2, (5, 6))
        for c in range(W7ST):
            spill(St, ('w1', c), [64 + 64 * c + 4 * k for k in range(16)], w1_slot(c))
        stamp(A)
    h_stream(A, 9 + W7ST)
    A('%s:', lend)
    A('s_waitcnt lgkmcnt(0)')
    stamp_flush(A)
    A('s_endpgm')


def gen_h23(A):
    vID, vAF, vVF, vAC, vG = 64, 72, 104, 136, 72
    rest_srds(A)
    sTL = sKH
    A('s_sub_u32 s%d, s%d, 5', sTL, sWV)
    skip = A.label('NOST')
    A('s_cmp_eq_u32 s%d, 1', sTL)
    A('s_cbranch_scc1 %s', skip)
    A('s_mul_i32 s%d, s%d, 1568', sT, sH)
    A('s_mov_b32 m0, %d', L_PHI)
    A('buffer_load_dwordx4 v%d, s[%d:%d], s%d offen lds', vO, SP, SP + 3, sT)
    A('buffer_load_dwordx4 v%d, s[%d:%d], s%d offen offset:1024 lds', vO, SP, SP + 3, sT)
    if CODEPF:
        A('s_mul_i32 s%d, s%d, %d', sT, sI, 1280)
        A('v_lshlrev_b32 v%d, 7, v%d', vT1, vL)
        A('v_add_u32 v%d, s%d, v%d', vT1, sT, vT1)
        A('s_mov_b64 exec, 0x3ff')
        A('global_load_dword v72, v%d, s[%d:%d]', vT1, sPC, sPC + 1)
        A('s_mov_b64 exec, -1')
    A('%s:', skip)
    if E('TLB', 0):
        A('v_lshlrev_b32 v%d, 20, v%d', vT1, vL)
        A('s_lshl_b32 s%d, s%d, 7', sT, sI)
        for srd_ in (SWS, SOUT, SWO, SW1, SW2):
            A('buffer_load_dword v73, v%d, s[%d:%d], s%d offen', vT1, srd_, srd_ + 3, sT)
    wtr_base(A)
    sel_frags(A, vID)
    sT16 = sZA
    tag_compute(A, sT16)
    if FAST:
        skip = A.label('NORG')
        A('s_cmp_eq_u32 s%d, 0', sTL)
        A('s_cbranch_scc1 %s', skip)
        A('s_getreg_b32 s%d, hwreg(HW_REG_XCC_ID)', sT2)
        A('s_and_b32 s%d, s%d, 15', sT2, sT2)
        A('s_add_u32 s%d, s%d, s%d', sT2, sT2, sTAG)
        A('v_mov_b32 v%d, s%d', vT0, sT2)
        A('s_lshl_b32 s%d, s%d, 7', sT, sXCD)
        A('s_lshl_b32 s%d, s%d, 2', sT2, sI)
        A('s_add_u32 s%d, s%d, s%d', sT, sT, sT2)
        A('s_add_u32 s%d, s%d, %d', sT, sT, FREG)
        A('s_mov_b64 exec, 1')
        A('buffer_store_dword v%d, v%d, s[%d:%d], s%d offen sc1', vT0, vO, SWS, SWS + 3, sT)
        A('s_mov_b64 exec, -1')
        A('%s:', skip)
    six, both = A.label('SIX'), A.label('BOTH')
    A('s_cmp_eq_u32 s%d, 1', sTL)
    A('s_cbranch_scc1 %s', six)
    colsum(A, sTL)
    A('s_waitcnt vmcnt(0)')
    A('s_branch %s', both)
    A('%s:', six)
    if FAST:
        wait_lp(A, ('x', 6), 2)
        fast_check(A)
        A('v_mov_b32 v%d, s%d', vT0, sFASTF)
        A('ds_write_b32 v%d, v%d offset:%d', vMI, vT0, M_FAST)
    A('%s:', both)
    set_stage(A, 1)
    stamp(A)
    A('s_lshl_b32 s%d, s%d, 11', sT2, sTL)
    A('v_add_u32 v%d, s%d, v%d', vTT, sT2, vO)
    A('v_add_u32 v%d, %d, v%d', vTT + 1, L_KVA, vTT)
    A('v_add_u32 v%d, %d, v%d', vTT + 2, L_KVV, vO)
    A('s_lshl_b32 s%d, s%d, 16', sXB, sH)
    A('s_add_u32 s%d, s%d, s%d', sXB, sXB, sT2)
    A('s_add_u32 s%d, s%d, %d', sXB, sXB, WS_KVP)
    A('s_lshl_b32 s%d, s%d, 12', sB, sTB)
    A('s_add_u32 s%d, s%d, s%d', sB, sB, sXB)
    A('s_lshl_b32 s%d, s%d, 1', sM0, sH)
    A('s_add_u32 s%d, s%d, s%d', sM0, sM0, sTL)
    FSH = E('F1SH', 8)
    A('s_lshl_b32 s%d, s%d, %d', sM0, sM0, 4 + FSH)
    A('s_add_u32 s%d, s%d, %d', sM0, sM0, F1)
    A('s_lshl_b32 s%d, s%d, 2', sFL, sTB)
    A('s_add_u32 s%d, s%d, s%d', sFL, sFL, sM0)
    A('s_lshl_b32 s%d, s%d, %d', sT, sTB, FSH)
    A('s_add_u32 s%d, s%d, s%d', sM0, sM0, sT)
    A('s_add_u32 s%d, s%d, s%d', sPC, SWS, sM0)
    A('s_addc_u32 s%d, s%d, 0', sPC + 1, SWS + 1)
    if E('FT', 3) & 1:
        A('s_load_dword s%d, s[%d:%d], 0 glc', sZB, sPC, sPC + 1)
    A('v_lshlrev_b32 v%d, %d, v%d', vXA, FSH, vL)
    A('v_lshlrev_b32 v%d, 2, v%d', vXA + 1, vL)
    vTA = 152
    wait_stage(A, C0)
    for k in range(8):
        A('ds_read_b128 %s, v%d offset:%d', v(vVF + 4 * k, 4), vTT + 1, (k >> 1) * 4096 + (k & 1) * 1024)
    for k in range(8):
        A('s_waitcnt lgkmcnt(%d)', 7 - k)
        mfma(A, vTA + 16 * (k >> 1), vVF + 4 * k, vID + 4 * (k & 1), (k & 1) == 0)
    for w in range(4):
        cvt8(A, vAF + 8 * w, vTA + 16 * w)

    if E('KVP', 0):
        HELP['hot'] = True
        for j, w in enumerate((0, 2, 1, 3)):
            def v_reads():
                for q in range(2):
                    A('ds_read_b128 %s, v%d offset:%d', v(vVF + 8 * w + 4 * q, 4), vTT + 2, w * 4096 + q * 1024)
                return 2
            wait_word(A, w, C0 + 1, body=v_reads, sleep=1 if j == 0 else 0)
            if j == 3:
                stamp(A)
            for q in range(2):
                A('s_waitcnt lgkmcnt(%d)', 1 - q)
                mfma(A, vAC, vAF + 8 * w + 4 * q, vVF + 8 * w + 4 * q, j == 0 and q == 0)
        HELP['hot'] = False
    else:
        def v_reads():
            for k in range(8):
                A('ds_read_b128 %s, v%d offset:%d', v(vVF + 4 * k, 4), vTT + 2, (k >> 1) * 4096 + (k & 1) * 1024)
            return 8
        wait_stage(A, C0 + 1, body=v_reads)
        stamp(A)
        for k in range(8):
            A('s_waitcnt lgkmcnt(%d)', 7 - k)
            mfma(A, vAC, vAF + 4 * k, vVF + 4 * k, k == 0)
    set_stage(A, 2)
    cvt8(A, vAF, vAC)
    TAGS = E('TAGS', 1)
    if TAGS:
        for q in range(2):
            A('v_and_b32 v%d, 0xffff, v%d', vAF + 4 * q + 3, vAF + 4 * q + 3)
            A('v_or_b32 v%d, s%d, v%d', vAF + 4 * q + 3, sT16, vAF + 4 * q + 3)
    pub_stores(A, [st4(vAF + 4 * q, sB, q * 1024) for q in range(2)], MAP == 3)
    if not TAGS:
        A('s_waitcnt vmcnt(0)')
    A('s_mov_b64 exec, 0xffff')
    two_ways(A, lambda B, bits: B('buffer_store_dword v%d, v%d, s[%d:%d], s%d offen%s', vTAG, vXA, SWS, SWS + 3, sFL,
                                  bits), MAP == 3)
    A('s_mov_b64 exec, -1')
    stamp(A)
    sRDY, sPND, sRET = sHI, sHI + 1, sPADL
    base = 68 if STAMPS else 72
    pol = A.label('POLL')
    B = sub(A)
    lo, out = B.label('P'), B.label('PD')
    B('%s:', pol)
    B('%s:', lo)
    if E('PSLEEP', 0):
        B('s_sleep %d', E('PSLEEP', 0))
    if E('SPOLL', 1) and MAP == 0:
        B('s_load_dwordx16 s[%d:%d], s[%d:%d], 0 glc', base, base + 15, sPC, sPC + 1)
        B('s_mov_b32 s%d, 0', sRDY)
        B('s_waitcnt lgkmcnt(%d)', E('PPIPE', 8))
        for p_ in range(15, -1, -1):
            B('s_cmp_eq_u32 s%d, s%d', base + p_, sTAG)
            B('s_addc_u32 s%d, s%d, s%d', sRDY, sRDY, sRDY)
    else:
        B('s_mov_b64 exec, 0xffff')
        B('buffer_load_dword v%d, v%d, s[%d:%d], s%d offen sc1', vT0, vXA + 1, SWS, SWS + 3, sM0)
        B('s_waitcnt vmcnt(0)')
        B('v_cmp_eq_u32 vcc, s%d, v%d', sTAG, vT0)
        B('s_mov_b64 exec, -1')
        B('s_mov_b32 s%d, vcc_lo', sRDY)
    B('s_sub_u32 s%d, s%d, 1', sSPIN, sSPIN)
    B('s_cselect_b32 s%d, -1, s%d', sRDY, sRDY)
    B('s_and_b32 s%d, s%d, s%d', sRDY, sRDY, sPND)
    B('s_cbranch_scc0 %s', lo)
    B('s_setpc_b64 s[%d:%d]', sRET, sRET + 1)
    over = A.label('OV')
    A('s_not_b32 s%d, s%d', base, sTAG)
    A('s_mov_b32 s%d, s%d', base + 1, base)
    for k in range(2, 16, 2):
        A('s_mov_b64 s[%d:%d], s[%d:%d]', base + k, base + k + 1, base, base + 1)
    A('s_branch %s', over)
    A.lines += B.lines
    A('%s:', over)
    A('s_mov_b32 s%d, 0', sRDY)
    A('s_mov_b32 s%d, 0xffff', sPND)
    vCK = vXA + 2
    A('v_mov_b32 v%d, 0', vCK)
    A('s_nop 1')
    vG = [72 + 4 * k for k in range(16)] + [152 + 4 * k for k in range(16)]
    GD = E('GLAG', 8)

    def gmm(k, issued):
        for q in range(2):
            A('s_waitcnt vmcnt(%d)', 2 * issued - (2 * k + q) - 1)
            mfma(A, vAC, vID + 4 * q, vG[2 * k + q], k == 0 and q == 0)
            if TAGS:
                A('v_xor_b32 v%d, s%d, v%d', vCK + 1, sT16, vG[2 * k + q] + 3)
                A('v_or_b32 v%d, v%d, v%d', vCK, vCK, vCK + 1)
    for k in range(16):
        A('s_getpc_b64 s[%d:%d]', sRET, sRET + 1)
        A('s_cmp_eq_u32 s%d, 0', sRDY)
        A('s_cbranch_scc1 %s', pol)
        A('s_ff1_i32_b32 s%d, s%d', sT, sRDY)
        A('s_bitset0_b32 s%d, s%d', sRDY, sT)
        A('s_bitset0_b32 s%d, s%d', sPND, sT)
        A('s_lshl_b32 s%d, s%d, 12', sT, sT)
        A('s_add_u32 s%d, s%d, s%d', sT, sT, sXB)
        if E('ABL', 0) & 32:
            A('s_mov_b32 s%d, s%d', sT, sB)
        for q in range(2):
            A('buffer_load_dwordx4 %s, v%d, s[%d:%d], s%d offen offset:%d sc1', v(vG[2 * k + q], 4), vO, SWS, SWS + 3,
              sT, q * 1024)
        if k == E('GST', 15):
            stamp(A)
        if k >= GD:
            gmm(k - GD, k + 1)
    for k in range(16 - GD, 16):
        gmm(k, 16)
    if TAGS:
        ok = A.label('TOK')
        A('v_cmp_lt_u32 vcc, 0xffff, v%d', vCK)
        spin_guard(A, ok)
        A('s_nop 15')
        A('s_cbranch_vccnz %s', over)
        A('%s:', ok)
    A('v_add_u32 v%d, %d, v%d', vTT, L_EX, vTT)
    cvt8(A, 72, vAC)
    for q in range(2):
        A('ds_write_b128 v%d, %s offset:%d', vTT, v(72 + 4 * q, 4), q * 1024)
    set_stage(A, 3)
    stamp(A)
    lend = A.label('LEND')
    A('s_cmp_ge_u32 s%d, 28', sI)
    A('s_cbranch_scc1 %s', lend)
    A('v_lshlrev_b32 v%d, 2, v%d', vCA, vL)
    A('v_add_u32 v%d, %d, v%d', vTT + 2, L_EX, vO)
    wait_stage(A, C0 + 7, sleep=2)
    HELP['hot'] = bool(E('STHOT', 0))
    l5 = A.label('S5')
    A('s_cmp_eq_u32 s%d, 0', sTL)
    A('s_cbranch_scc1 %s', l5)
    for gi in (0, 2, 1, 3):
        if gi == 1:
            A('s_branch %s', lend)
            A('%s:', l5)
        wait_lp(A, ('hs', gi), 1)
        if E('STPRIO', 2) != 2:
            A('s_setprio %d', E('STPRIO', 2))
        base = L_SC0 + gi * 4096
        for q in range(7):
            A('ds_read2st64_b32 v[%d:%d], v%d offset0:%d offset1:%d', 72 + 2 * q, 73 + 2 * q, vCA,
              base // 256 + 2 * q, base // 256 + 2 * q + 1)
        A('s_waitcnt lgkmcnt(0)')
        for q in range(2, 14):
            A('v_add_f32 v%d, v%d, v%d', 72 + (q & 1), 72 + (q & 1), 72 + q)
        A('v_add_f32 v%d, v72, v73', vTT)
        ln_finish(A, vTT, vTT + 1, vNM, vRS)
        hilo_m(A, vNM, 88, vT0)
        A('v_mul_f32 v90, v%d, v%d', vTT + 1, vRS)
        A('v_mul_f32 v91, 0x%x, v%d', LOG2E ^ 0x80000000, vRS)
        A('ds_write_b128 v%d, v[88:91] offset:%d', vTT + 2, gi * 1024)
        set_stage(A, 4 + gi // 2)
    HELP['hot'] = False
    A('%s:', lend)
    A('s_waitcnt lgkmcnt(0)')
    stamp_flush(A)
    A('s_endpgm')


def refresh_routines(A):
    for w in (7, 4):
        A('REFRESH_%d:', w)
        if w == 5:
            A('ds_read_b32 v%d, v%d', vPW, vCA)
        else:
            A('ds_read_b32 v%d, v%d offset:%d', vPW, vMI, M_PW + 4 * w)
        if E('CSLP', 0):
            A('s_mov_b32 vcc_hi, s%d', CACHE[w])
        A('s_waitcnt lgkmcnt(0)')
        A('v_readfirstlane_b32 s%d, v%d', CACHE[w], vPW)
        if E('CSLP', 0):
            A('s_cmp_lg_u32 vcc_hi, s%d', CACHE[w])
            A('s_cbranch_scc1 REFD_%d', w)
            A('s_sleep %d', E('CSLP', 0))
            A('REFD_%d:', w)
        A('s_sub_u32 s%d, s%d, 1', sSPIN, sSPIN)
        A('s_cselect_b32 s%d, -1, s%d', CACHE[w], CACHE[w])
        A('s_setpc_b64 s[%d:%d]', sPC, sPC + 1)


def gen_compute(A):
    vPH, vID, vWF, vAC, vPK = 40, 48, 56, 88, 120
    vMF, vCF = 136, 140
    vE = vWF
    vAC2 = vAC + 16
    vX = vXR
    A('s_setprio %d', E('CPRIO', 1))
    rest_srds(A)
    A('s_lshl_b32 s%d, s%d, 12', sM0, sWV)
    A('v_and_b32 v%d, 31, v%d', vT0, vL)
    A('v_lshlrev_b32 v%d, 7, v%d', vTT, vT0)
    A('v_add_u32 v%d, s%d, v%d', vTT, sM0, vTT)
    A('v_bfe_u32 v%d, v%d, 1, 3', vT0, vL)
    A('v_lshrrev_b32 v%d, 5, v%d', vT1, vL)
    A('v_xor_b32 v%d, v%d, v%d', vT0, vT0, vT1)
    for q in range(4):
        A('v_xor_b32 v%d, %d, v%d', vXA + q, 2 * q, vT0)
        A('v_lshl_add_u32 v%d, v%d, 4, v%d', vXA + q, vXA + q, vTT)
    wtr_base(A)
    for r in (vSM, vSM + 1, vSQ, vSQ + 1, vMF + 2, vMF + 3, vCF + 2, vCF + 3):
        A('v_mov_b32 v%d, 0', r)
    A('s_mov_b32 s%d, 0', sHI)
    A('s_mov_b32 s%d, -1', sHI + 1)
    A('s_bitcmp1_b32 s%d, 0', sH)
    A('s_cselect_b32 s%d, 0xf, 0xf0000000', sPADL)
    A('s_mov_b32 s%d, s%d', sPADL + 1, sPADL)
    A('s_cselect_b32 s%d, -1, 0', sZA)
    A('s_mov_b32 s%d, 0', sZA + 1)
    A('s_mov_b32 s%d, 0', sZB)
    A('s_cselect_b32 s%d, 0, -1', sZB + 1)
    A('s_cselect_b64 s[%d:%d], -1, 0', sODD, sODD + 1)
    vPA = vRA
    A('v_bfe_u32 v%d, v%d, 2, 2', vT0, vL)
    A('v_lshrrev_b32 v%d, 5, v%d', vT1, vL)
    A('v_lshl_add_u32 v%d, v%d, 2, v%d', vT0, vT1, vT0)
    A('v_mul_u32_u24 v%d, 56, v%d', vT0, vT0)
    A('v_and_b32 v%d, 3, v%d', vT1, vL)
    A('v_bfe_u32 v%d, v%d, 4, 1', vTT, vL)
    A('v_lshl_add_u32 v%d, v%d, 2, v%d', vT1, vTT, vT1)
    A('v_min_u32 v%d, 6, v%d', vT1, vT1)
    A('v_lshl_add_u32 v%d, v%d, 3, v%d', vT0, vT1, vT0)
    A('s_and_b32 s%d, s%d, 1', sT, sH)
    A('s_mul_i32 s%d, s%d, 224', sT, sT)
    A('s_sub_u32 s%d, %d, s%d', sT, L_PHI, sT)
    A('v_add_u32 v%d, s%d, v%d', vPA, sT, vT0)
    tag_compute(A)

    def mm1(B, acc, i, q, swap):
        buf = vWF + 16 * (i & 1)
        xf, wf = vX + (4 * i + q) * 4, buf + 4 * q
        if swap:
            mfma(B, acc, xf, wf, i == 0 and q == 0)
        else:
            mfma(B, acc, wf, xf, i == 0 and q == 0)

    def rw2(Q, pi, i, q):
        buf = vWF + 16 * (i & 1)
        for z in range(2):
            Q.op(('w', i, q), 'ds_read_b64_tr_b16 v[%d:%d], v%d offset:%d', buf + 4 * q + 2 * z, buf + 4 * q + 2 * z + 1,
                 vWA + pi, i * 4096 + q * 1024 + z * 256)

    def early(Q, w, reads):
        Q.op('ce', 'ds_read_b32 v%d, v%d offset:%d', vPK_ + 1, vMI, M_PW + 4 * w)
        for r in reads:
            Q.op('ce', r)

    def late(Q, w, n, reads):
        def slow(B, back):
            def body():
                for r in reads:
                    B(r)
                return 0
            wait_word(B, w, n, body=body)
        Q.A = A
        Q.wait('ce')
        A('v_readfirstlane_b32 s%d, v%d', sT, vPK_ + 1)
        A('s_cmp_ge_u32 s%d, %d', sT, n)
        if w == 5:
            ent, back = cold_block(A, slow)
            A('s_cbranch_scc0 %s', ent)
        else:
            back = A.label('LT')
            A('s_cbranch_scc1 %s', back)
            slow(A, back)
        A('%s:', back)

    def cf_rd(pi):
        return 'ds_read_b64 v[%d:%d], v%d offset:%d' % (vCF, vCF + 1, vCA, pi * 512)
    kreads = [cf_rd(0)] + ['ds_read_b64_tr_b16 v[%d:%d], v%d offset:%d' % (
        vPH + 4 * sidx + 2 * z, vPH + 4 * sidx + 2 * z + 1, vPA, (16 * sidx + 8 * z) * 56)
        for sidx in range(2) for z in range(2)]

    vXH = vXD
    for q in range(4):
        A('v_add_u32 v%d, 0x10000, v%d', vXH + q, vXA + q)
    Q = LdsQ(A)
    for i in range(7):
        if i:
            stamp(A, 'k')
        if i == 0:
            A('s_waitcnt vmcnt(0)')
        else:
            wait_lp(A, ('x', i))
        stamp(A, 'k')
        for q in range(4):
            Q.op(('x', i), 'ds_read_b128 %s, v%d offset:%d', v(vX + (4 * i + q) * 4, 4), (vXA if i < 4 else vXH) + q,
                 (i & 3) * 16384)
        if i in (1, 3):
            Q.stage((i + 1) // 2)
        wait_lp(A, ('W', 0, i))
        for q in range(4):
            if i > 0:
                Q.wait(('w', i - 1, q))
                mm1(A, vAC, i - 1, q, False)
            rw2(Q, 0, i, q)
        if i < 6:
            Q.op('pk2', 'ds_read_b128 v[%d:%d], v%d offset:%d', vTT, vTT + 3, vMI, M_PW + 16)
        Q.wait(('x', i))
        for r in range(16):
            x = vX + 16 * i + r
            A('v_dot2c_f32_bf16 v%d, s%d, v%d', vSM + (r & 1), sONES, x)
            A('v_dot2c_f32_bf16 v%d, v%d, v%d', vSQ + (r & 1), x, x)
        if i < 6:
            Q.wait('pk2')
            A('v_readfirstlane_b32 s%d, v%d', sPROG, vTT)
            A('v_readfirstlane_b32 s%d, v%d', sPROG1, vTT + 3)
    Q.stage(3)
    early(Q, 5, kreads)
    B = sub(A)
    B('v_add_f32 v%d, v%d, v%d', vSM, vSM, vSM + 1)
    B('v_add_f32 v%d, v%d, v%d', vSQ, vSQ, vSQ + 1)
    B('v_permlane32_swap_b32 v%d, v%d', vSM, vSQ)
    B('v_add_f32 v%d, v%d, v%d', vT0, vSM, vSQ)
    ln_finish(B, vT0, vT1, vNM, vRS)
    hilo_m(B, vNM, vMF, vT0)
    B('v_mul_f32 v%d, 0x%x, v%d', vSC, LOG2E, vRS)
    M = sub(A)
    Q.A = M
    for q in range(4):
        Q.wait(('w', 6, q))
        mm1(M, vAC, 6, q, False)
    A.lines += merge(M.lines, [[l] for l in B.lines], 0, 4)

    stamp(A, 'v')
    late(Q, 5, 1, kreads)
    stamp(A)
    stamp(A, 'v')

    def project(mid=None):
        mfma(A, vAC, vCF, vMF)
        if mid:
            mid()
        cvt8(A, vPK, vAC)
        mfma(A, vAC, vPH, vPK, True)
        mfma(A, vAC, vPH + 4, vPK + 4)

    def mid_k():
        A('v_and_b32 v%d, 31, v%d', vT0, vL)
        A('s_lshl_b32 s%d, s%d, 7', sT, sWV)
        A('s_add_u32 s%d, s%d, %d', sT, sT, L_RSTD)
        A('v_lshl_add_u32 v%d, v%d, 2, s%d', vT0, vT0, sT)
        A('s_waitcnt lgkmcnt(0)')
        A('ds_write_b32 v%d, v%d', vT0, vRS)
        A('v_lshrrev_b32 v%d, 5, v%d', vRA, vL)
        A('v_lshl_add_u32 v%d, v%d, 4, s%d', vRA, vRA, sT)
        for r in (0, 1):
            A('v_cndmask_b32 v%d, v%d, 0, s[%d:%d]', vPH + r, vPH + r, sZA, sZA + 1)
            A('v_cndmask_b32 v%d, v%d, 0, s[%d:%d]', vPH + 6 + r, vPH + 6 + r, sZB, sZB + 1)

    def gemm_head(B, pi):
        Q = LdsQ(B)
        wait_lp(B, ('W', pi, 0))
        for q in range(4):
            rw2(Q, pi, 0, q)
        return Q

    def gemm_part(B, acc, pi, swap, last_stage=None, Q=None):
        if Q is None:
            Q = gemm_head(B, pi)
        for i in range(7):
            if i == 6 and last_stage:
                Q.stage(last_stage)
            if i == 6:
                early(Q, 7, [cf_rd(pi)])
            if pi == 1 and i in (0, 2, 4, 6):
                stamp(B, 'v')
            for q in range(4):
                Q.wait(('w', i, q))
                if q == 0:
                    Q.take(4)
                mm1(B, acc, i, q, swap)
                if i < 6:
                    if q == 0:
                        wait_lp(B, ('W', pi, i + 1))
                        if i < 5:
                            Q.peek(4)
                    rw2(Q, pi, i + 1, q)
        late(Q, 7, 7 + pi, [cf_rd(pi)])

    vOW = vXD
    A('v_add_u32 v%d, s%d, v%d', vOW, sM0, vO)
    A('v_add_u32 v%d, %d, v%d', vOW, L_KVA, vOW)
    project(mid_k)
    stamp(A, 'v')
    B = sub(A)
    softmax_pm(B, vAC, vSC, vPK, vTT)
    A.lines += B.lines[:-30]
    Q = gemm_head(A, 1)
    A.lines += B.lines[-30:]
    for q, src in enumerate((vAC, vAC + 4, vPK, vPK + 4)):
        Q.op('pw', 'ds_write_b128 v%d, %s offset:%d', vOW, v(src, 4), q * 1024)
    Q.stage(C0)
    for q in range(4):
        Q.op('rs', 'ds_read_b128 %s, v%d offset:%d', v(vAC + 4 * q, 4), vRA, q * 32)
    stamp(A, 'v')
    gemm_part(A, vAC2, 1, True, None, Q)
    stamp(A, 'v')

    mfma(A, vAC2, vMF, vCF)
    A('v_mov_b32 v%d, 0x%x', vT1, ONES)
    for r in range(0, 16, 2):
        A('v_pk_mul_f32 v[%d:%d], v[%d:%d], v[%d:%d]', vAC2 + r, vAC2 + r + 1, vAC2 + r, vAC2 + r + 1, vAC + r,
          vAC + r + 1)
    cvt8(A, vPK, vAC2)
    for r in range(8):
        A('v_cndmask_b32 v%d, v%d, v%d, s[%d:%d]', vPK + r, vPK + r, vT1, sPADL, sPADL + 1)
    for q in range(2):
        A('ds_write_b128 v%d, %s offset:%d', vOW, v(vPK + 4 * q, 4), L_KVV - L_KVA + q * 1024)
    set_stage(A, C0 + 1)
    stamp(A)
    stamp(A, 'v')
    gemm_part(A, vAC, 2, False, C0 + 3)
    vHP, vRX, vRO = 120, 48, vSM + 1

    def unpack_hp(src=120):
        for r in range(8):
            A('v_lshlrev_b32 v%d, 16, v%d', vAC + 2 * r, src + r)
            A('v_and_b32 v%d, 0xffff0000, v%d', vAC + 2 * r + 1, src + r)
    A('s_and_b32 s%d, s%d, 1', sG, sWV)
    A('s_lshr_b32 s%d, s%d, 1', sKH, sWV)
    A('s_lshl_b32 s%d, s%d, 1', sT, sTQ)
    A('s_add_u32 s%d, s%d, s%d', sG, sG, sT)
    A('v_and_b32 v%d, 31, v%d', vRO, vL)
    A('v_mul_u32_u24 v%d, 896, v%d', vRO, vRO)
    A('v_lshrrev_b32 v%d, 5, v%d', vT1, vL)
    A('v_lshl_add_u32 v%d, v%d, 4, v%d', vRO, vT1, vRO)
    A('s_mul_i32 s%d, s%d, %d', sT, sG, 32 * 896)
    A('s_lshl_b32 s%d, s%d, 7', sT2, sNB)
    A('s_add_u32 s%d, s%d, s%d', sT, sT, sT2)
    A('s_lshl_b32 s%d, s%d, 6', sT2, sKH)
    A('s_add_u32 s%d, s%d, s%d', sT, sT, sT2)
    A('v_add_u32 v%d, s%d, v%d', vRO, sT, vRO)
    for q in range(2):
        A('buffer_load_dwordx4 %s, v%d, s[%d:%d], 0 offen offset:%d', v(vRX + 4 * q, 4), vRO, SX, SX + 3, q * 32)

    project()
    softmax_pm(A, vAC, vSC, vPK, vTT)
    vQF = [vAC, vAC + 4, vPK, vPK + 4]
    stamp(A)
    vW1A = vXA
    A('v_bfe_u32 v%d, v%d, 2, 2', vT0, vL)
    A('v_lshrrev_b32 v%d, 5, v%d', vT1, vL)
    A('v_lshl_add_u32 v%d, v%d, 2, v%d', vT1, vT1, vT0)
    A('v_lshlrev_b32 v%d, 8, v%d', vW1A, vT1)
    A('v_lshlrev_b32 v%d, 7, v%d', vWA, vT1)
    A('v_xor_b32 v%d, s%d, v%d', vT0, sWV, vT0)
    A('v_lshl_add_u32 v%d, v%d, 6, v%d', vW1A, vT0, vW1A)
    A('v_bfe_u32 v%d, v%d, 4, 1', vT1, vL)
    A('v_lshlrev_b32 v%d, 5, v%d', vT1, vT1)
    A('v_and_b32 v%d, 3, v%d', vT0, vL)
    A('v_lshl_add_u32 v%d, v%d, 3, v%d', vT1, vT0, vT1)
    A('v_add_u32 v%d, v%d, v%d', vW1A, vW1A, vT1)
    A('v_add_u32 v%d, 0x8000, v%d', vW1A + 1, vW1A)
    A('v_add_u32 v%d, v%d, v%d', vWA, vWA, vT1)
    A('v_bfe_u32 v%d, v%d, 3, 1', vT1, vL)
    A('v_lshl_add_u32 v%d, v%d, 6, v%d', vWA, vT1, vWA)

    def w1_copy(c):
        wait_lp(A, ('w1', c))
        for q in range(4):
            for z in range(2):
                off = w1_slot(c) + (16 * q + 8 * z) * 256
                base = vW1A
                if off >= 0x8000:
                    off -= 0x8000
                    base += 1
                r = vXR + (4 * c + q) * 4 + 2 * z
                A('ds_read_b64_tr_b16 v[%d:%d], v%d offset:%d', r, r + 1, base, off)

    sCPD = sXB
    A('s_mov_b32 s%d, 0', sCPD)

    def try_copy(block):
        skip = A.label('NC')
        A('s_cmp_lg_u32 s%d, 0', sCPD)
        A('s_cbranch_scc1 %s', skip)
        if not block:
            ow = LP[('w1', 1)][0]
            if block is not None:
                A('ds_read_b32 v%d, v%d offset:%d', vPW + ow - 4, vMI, M_PW + 4 * ow)
                A('s_waitcnt lgkmcnt(0)')
            A('v_readfirstlane_b32 s%d, v%d', CACHE[ow], vPW + ow - 4)
            A('s_cmp_lt_u32 s%d, %d', CACHE[ow], LP[('w1', 1)][1])
            A('s_cbranch_scc1 %s', skip)
        w1_copy(0)
        w1_copy(1)
        A('s_mov_b32 s%d, 1', sCPD)
        A('v_mov_b32 v%d, 1', vT0)
        A('ds_write_b32 v%d, v%d offset:%d', vMY, vT0, M_CP)
        A('%s:', skip)
    vCS = vSQ
    NE = 4 if LATE else 5

    def try_copy2(block):
        skip = A.label('NC')
        A('s_cmp_lg_u32 s%d, 1', sCPD)
        A('s_cbranch_scc1 %s', skip)
        if not block:
            A('ds_read_b32 v%d, v%d offset:%d', vPW, vMI, M_PW + 16)
            A('s_waitcnt lgkmcnt(0)')
            A('v_readfirstlane_b32 s%d, v%d', sPROG, vPW)
            A('s_cmp_lt_u32 s%d, %d', sPROG, LP[('w1', NE - 1)][1])
            A('s_cbranch_scc1 %s', skip)
        for c in range(2, NE):
            w1_copy(c)
        A('s_mov_b32 s%d, 2', sCPD)
        A('v_mov_b32 v%d, 0', vCS)
        A('v_mov_b32 v%d, 0', vCS + 1)
        for r in range(16 * NE):
            if r == 0:
                A('s_waitcnt lgkmcnt(15)')
            if r == 32:
                A('s_waitcnt lgkmcnt(0)')
            A('v_dot2c_f32_bf16 v%d, s%d, v%d', vCS + (r & 1), sONES, vXR + r)
        A('%s:', skip)
    A('s_lshl_b32 s%d, s%d, 2', sFL, sTB)
    A('s_add_u32 s%d, s%d, s%d', sFL, sFL, sWV)
    A('s_lshl_b32 s%d, s%d, 4', sFL, sFL)
    A('s_add_u32 s%d, s%d, s%d', sFL, sFL, sH)
    A('s_lshl_b32 s%d, s%d, 11', sB, sFL)
    A('s_add_u32 s%d, s%d, %d', sB, sB, WS_OB)
    if MAP == 0:
        A('s_lshl_b32 s%d, s%d, 2', sFL, sFL)
        A('s_add_u32 s%d, s%d, %d', sFL, sFL, F2)
    else:
        A('s_lshr_b32 s%d, s%d, 3', sFL, sFL)
        A('s_lshl_b32 s%d, s%d, 10', sFL, sFL)
        A('s_and_b32 s%d, s%d, 7', sT, sH)
        A('s_lshl_b32 s%d, s%d, 2', sT, sT)
        A('s_add_u32 s%d, s%d, s%d', sFL, sFL, sT)
        A('s_add_u32 s%d, s%d, %d', sFL, sFL, F2X)
    vEX = vXD + 1
    A('v_add_u32 v%d, %d, v%d', vEX, L_EX, vO)

    def ex_reads():
        for q in range(4):
            A('ds_read_b128 %s, v%d offset:%d', v(vWF + 4 * q, 4), vEX, q * 1024)
        return 4
    lo, done = A.label('W'), A.label('WD')
    A('%s:', lo)
    A('ds_read_b128 v[%d:%d], v%d offset:%d', vPW, vPW + 3, vMI, M_PW + 16)
    A('ds_read_b32 v%d, v%d offset:%d', vPK_, vMI, M_FAST)
    ex_reads()
    A('s_waitcnt lgkmcnt(4)')
    A('v_readfirstlane_b32 s%d, v%d', sFASTF, vPK_)
    A('v_min_u32 v%d, v%d, v%d', vPW + 1, vPW + 1, vPW + 2)
    A('v_readfirstlane_b32 s%d, v%d', sT, vPW + 1)
    spin_guard(A, done)
    A('s_cmp_ge_u32 s%d, 3', sT)
    A('s_cbranch_scc1 %s', done)
    try_copy(None)
    if E('CSLP', 0):
        A('s_sleep %d', E('CSLP', 0))
    A('s_branch %s', lo)
    A('%s:', done)
    stamp(A)
    for q in range(4):
        A('s_waitcnt lgkmcnt(%d)', 3 - q)
        mfma(A, vAC2, vWF + 4 * q, vQF[q], q == 0)
    A('v_cndmask_b32 v%d, v%d, v%d, s[%d:%d]', vT0, vAC2 + 12, vAC2, sODD, sODD + 1)
    A('v_mov_b32 v%d, v%d', vT1, vT0)
    A('v_permlane32_swap_b32 v%d, v%d', vT0, vT1)
    A('v_cndmask_b32 v%d, v%d, v%d, s[%d:%d]', vTT, vT1, vT0, sODD, sODD + 1)
    A('v_add_f32 v%d, 0x%x, v%d', vTT, 0x358637bd, vTT)
    A('v_rcp_f32 v%d, v%d', vTT, vTT)
    for r in range(0, 16, 2):
        A('v_pk_mul_f32 v[%d:%d], v[%d:%d], v[%d:%d] op_sel_hi:[1,0]', vAC2 + r, vAC2 + r + 1, vAC2 + r, vAC2 + r + 1,
          vTT, vTT + 1)
    cvt8(A, vPK, vAC2)
    for r in (0, 1):
        A('v_cndmask_b32 v%d, v%d, 0, s[%d:%d]', vPK + r, vPK + r, sZA, sZA + 1)
        A('v_cndmask_b32 v%d, v%d, 0, s[%d:%d]', vPK + 6 + r, vPK + 6 + r, sZB, sZB + 1)
    pub_stores(A, [st4(vPK + 4 * q, sB, q * 1024) for q in range(2)], MAP == 0 and not WTO)
    A('s_waitcnt vmcnt(2)')
    for q in range(2):
        A('v_permlane32_swap_b32 v%d, v%d', vRX + 4 * q, vRX + 4 * q + 2)
        A('v_permlane32_swap_b32 v%d, v%d', vRX + 4 * q + 1, vRX + 4 * q + 3)
    unpack_hp(vRX)
    A('s_lshl_b32 s%d, s%d, 6', sT, sKH)
    A('v_xor_b32 v%d, s%d, v%d', vWA, sT, vWA)
    A('v_xor_b32 v%d, 64, v%d', vWA + 1, vWA)
    A('s_mul_i32 s%d, s%d, %d', sT, sKH, 224 * 128)
    A('s_add_u32 s%d, s%d, %d', sT, sT, L_A)
    A('v_add_u32 v%d, s%d, v%d', vWA + 2, sT, vWA)
    A('v_add_u32 v%d, s%d, v%d', vWA + 3, sT, vWA + 1)
    vSW, vSR, vPP = vXA + 2, vXA + 3, vSM
    A('s_and_b32 s%d, s%d, 1', sC, sWV)
    A('s_lshl_b32 s%d, s%d, 12', sC, sC)
    A('v_add_u32 v%d, s%d, v%d', vSW, sC, vO)
    A('s_cmp_eq_u32 s%d, 0', sKH)
    A('s_cselect_b32 s%d, %d, %d', sT, L_SC0 >> 12, L_SC1 >> 12)
    A('s_cselect_b32 s%d, %d, %d', sT2, L_SC1 >> 12, L_SC0 >> 12)
    A('s_lshl_b32 s%d, s%d, 12', sT, sT)
    A('s_lshl_b32 s%d, s%d, 12', sT2, sT2)
    A('v_add_u32 v%d, s%d, v%d', vSR, sT2, vSW)
    A('v_add_u32 v%d, s%d, v%d', vSW, sT, vSW)
    A('v_xor_b32 v%d, 8, v%d', vPP, vMY)
    A('s_lshl_b32 s%d, s%d, 15', sB, sG)
    A('s_lshl_b32 s%d, s%d, 14', sT, sKH)
    A('s_add_u32 s%d, s%d, s%d', sB, sB, sT)
    A('s_add_u32 s%d, s%d, %d', sB, sB, WS_OB)
    if MAP == 0:
        A('s_lshl_b32 s%d, s%d, 6', sC, sG)
        A('s_lshl_b32 s%d, s%d, 5', sT, sKH)
        A('s_add_u32 s%d, s%d, s%d', sC, sC, sT)
        A('s_add_u32 s%d, s%d, %d', sC, sC, F2)
        pub_flag(A, sFL, True)
    else:
        A('s_lshl_b32 s%d, s%d, 11', sC, sG)
        A('s_lshl_b32 s%d, s%d, 10', sT, sKH)
        A('s_add_u32 s%d, s%d, s%d', sC, sC, sT)
        A('s_lshl_b32 s%d, s%d, 7', sT, sNB)
        A('s_add_u32 s%d, s%d, s%d', sC, sC, sT)
        A('s_add_u32 s%d, s%d, %d', sC, sC, F2X)
        A('v_lshlrev_b32 v%d, 7, v%d', vT1, vL)
        if not E('NODRAIN2', 0):
            A('s_waitcnt vmcnt(0)')
        A('s_mov_b64 exec, 0x7f')
        A('buffer_store_dword v%d, v%d, s[%d:%d], s%d offen sc1', vTAG, vT1, SWS, SWS + 3, sFL)
        A('s_mov_b64 exec, -1')
    set_stage(A, C0 + 5)
    stamp(A)
    fin = A.label('FIN')
    A('s_cmp_ge_u32 s%d, 28', sI)
    A('s_cbranch_scc1 %s', fin)

    vB2 = [40 + 4 * k for k in range(8)] + [224 + 4 * k for k in range(8)]
    vWF2 = 72
    sB3, sFL3 = sODD, sODD + 1
    sBL, sFL2, sPF, sBK, sBS, sHB, sEM = 4, 5, 6, 7, 8, 9, 10
    A('s_mul_i32 s%d, s%d, %d', sB3, sTB3, 4 * 112)
    A('s_lshl_b32 s%d, s%d, 3', sT, sFB)
    A('s_add_u32 s%d, s%d, s%d', sB3, sB3, sT)
    A('s_lshl_b32 s%d, s%d, 1', sT, sWV)
    A('s_add_u32 s%d, s%d, s%d', sB3, sB3, sT)
    A('s_lshl_b32 s%d, s%d, 10', sB3, sB3)
    A('s_add_u32 s%d, s%d, %d', sB3, sB3, WS_H1B)
    A('s_add_u32 s%d, s%d, %d', sBL, sB3, 2 * 112 * 1024)
    A('s_lshl_b32 s%d, s%d, 9', sFL3, sTB3)
    A('s_lshl_b32 s%d, s%d, 4', sT, sFB)
    A('s_add_u32 s%d, s%d, s%d', sFL3, sFL3, sT)
    A('s_lshl_b32 s%d, s%d, 2', sT, sWV)
    A('s_add_u32 s%d, s%d, s%d', sFL3, sFL3, sT)
    A('s_add_u32 s%d, s%d, %d', sFL3, sFL3, F4)
    A('s_add_u32 s%d, s%d, 256', sFL2, sFL3)
    A('s_bitcmp1_b32 s%d, 0', sFB)
    A('s_cselect_b32 s%d, s%d, s%d', sT, sBL, sB3)
    A('s_cselect_b32 s%d, s%d, s%d', sBL, sB3, sBL)
    A('s_mov_b32 s%d, s%d', sB3, sT)
    A('s_cselect_b32 s%d, s%d, s%d', sT, sFL2, sFL3)
    A('s_cselect_b32 s%d, s%d, s%d', sFL2, sFL3, sFL2)
    A('s_mov_b32 s%d, s%d', sFL3, sT)
    A('s_lshl_b32 s%d, s%d, 8', sPF, sTQ)
    A('s_mul_i32 s%d, s%d, 112', sT, sKH)
    A('s_add_u32 s%d, s%d, s%d', sPF, sPF, sT)
    A('s_add_u32 s%d, s%d, %d', sPF, sPF, F4)
    A('s_mul_i32 s%d, s%d, %d', sHB, sG, 112 * 1024)
    A('s_mul_i32 s%d, s%d, %d', sT, sKH, 56 * 1024)
    A('s_add_u32 s%d, s%d, s%d', sHB, sHB, sT)
    A('s_add_u32 s%d, s%d, %d', sHB, sHB, WS_H1B + (0x40000000 if E('ABL', 0) & 64 else 0))
    blk_init(A, sBK, sBS, 's%d' % sKH)
    A('s_bitcmp1_b32 s%d, 0', sBK)
    A('s_mov_b32 s%d, 0x0f0f0f0f', sEM)
    A('s_cselect_b32 s%d, 0x00f0f0f0, s%d', sEM, sEM)
    vL4, vPF = vNM, vRS
    A('s_mov_b32 s%d, 0', CACHE[5])
    A('s_lshl_b32 s%d, s%d, 2', sT, sKH)
    A('s_add_u32 s%d, s%d, %d', sT, sT, L_MISC + M_PW + 20)
    A('v_mov_b32 v%d, s%d', vCA, sT)
    A('v_lshlrev_b32 v%d, 2, v%d', vL4, vL)

    try_copy(False)
    if E('CP2', 1):
        try_copy2(False)
    wait_lp(A, 'wo')

    def wo_row(k):
        hh = k // 2
        return 28 * hh - 4 * (hh & 1) + 16 * (k & 1)

    Q = LdsQ(A)
    LAG = E('P2LAG', 5)

    def read_wo(k, nt):
        buf = vWF2 + 8 * nt + 4 * (k & 1)
        for z in range(2):
            Q.op(('w', k, nt), 'ds_read_b64_tr_b16 v[%d:%d], v%d offset:%d', buf + 2 * z, buf + 2 * z + 1,
                 vWA + 2 + nt, (wo_row(k) + 8 * z) * 128)

    read_wo(0, 1)
    read_wo(0, 0)
    if MAP == 3 and E('SPOLL', 1):
        poll_scalar(A, sC, 8)
    else:
        poll_global(A, sC, 8)
    stamp(A)
    stamp(A, 'p2')
    sOB = sM0
    A('s_mov_b32 s%d, s%d', sOB, sB)

    def ld_o(k):
        A('buffer_load_dwordx4 %s, v%d, s[%d:%d], s%d offen offset:%d sc1', v(vB2[k], 4), vO, SWS, SWS + 3, sOB,
          (k & 3) * 1024)
        if (k & 3) == 3:
            A('s_add_u32 s%d, s%d, 4096', sOB, sOB)
    P2I = E('P2INFL', 8)
    for k in range(P2I):
        ld_o(k)
    A('s_lshl_b32 s%d, s%d, 1', sT2, sNB)
    A('s_add_u32 s%d, s%d, s%d', sT2, sT2, sKH)
    A('s_lshl_b32 s%d, s%d, 15', sB, sG)
    A('s_add_u32 s%d, s%d, %d', sB, sB, WS_HB)
    A('s_lshl_b32 s%d, s%d, 8', sC, sT2)
    A('s_add_u32 s%d, s%d, s%d', sC, sC, sB)
    A('s_lshl_b32 s%d, s%d, 11', sT, sT2)
    A('s_add_u32 s%d, s%d, s%d', sB, sB, sT)
    A('s_add_u32 s%d, s%d, 4096', sB, sB)
    A('s_lshl_b32 s%d, s%d, 2', sFL, sT2)
    A('s_lshl_b32 s%d, s%d, 6', sT, sG)
    A('s_add_u32 s%d, s%d, s%d', sFL, sFL, sT)
    A('s_add_u32 s%d, s%d, %d', sFL, sFL, F3)
    for k in range(16 + LAG):
        if k < 16:
            if k < 15:
                read_wo(k + 1, 1)
            Q.wait(('w', k, 1), min(15, P2I + k - 1) - k)
            if k % 4 == 0:
                stamp(A, 'p2')
            mfma(A, vAC + 16, vWF2 + 8 + 4 * (k & 1), vB2[k], k == 0)
            if P2I + k < 16:
                ld_o(P2I + k)
            if P2I + k == E('LDSIG', 12):
                A('v_mov_b32 v%d, 1', vT0)
                Q.op('ld', 'ds_write_b32 v%d, v%d offset:%d', vMY, vT0, M_LD)
        j = k - LAG
        if j >= 0:
            if j < 15:
                read_wo(j + 1, 0)
            Q.wait(('w', j, 0))
            mfma(A, vAC, vWF2 + 4 * (j & 1), vB2[j])
        if k == 16 and LAG >= 2:
            for q in range(4):
                Q.op('x', 'ds_write_b128 v%d, %s offset:%d', vSW, v(vAC + 16 + 4 * q, 4), q * 1024)
            Q.stage(C0 + 6)
    stamp(A)

    def exchange(st, sent=False):
        if not sent:
            for q in range(4):
                A('ds_write_b128 v%d, %s offset:%d', vSW, v(vAC + 16 + 4 * q, 4), q * 1024)
            set_stage(A, st)
        lo, done = A.label('W'), A.label('WD')
        A('%s:', lo)
        A('ds_read_b32 v%d, v%d', vPW, vPP)
        for q in range(4):
            A('ds_read_b128 %s, v%d offset:%d', v(vWF2 + 4 * q, 4), vSR, q * 1024)
        A('s_waitcnt lgkmcnt(4)')
        A('v_readfirstlane_b32 s%d, v%d', sT, vPW)
        spin_guard(A, done)
        A('s_cmp_ge_u32 s%d, %d', sT, st)
        A('s_cbranch_scc0 %s', lo)
        A('%s:', done)
        for q in range(4):
            A('s_waitcnt lgkmcnt(%d)', 3 - q)
            for r in (0, 2):
                a0 = vAC + 4 * q + r
                A('v_pk_add_f32 v[%d:%d], v[%d:%d], v[%d:%d]', a0, a0 + 1, a0, a0 + 1, vWF2 + 4 * q + r,
                  vWF2 + 4 * q + r + 1)

    stamp(A, 'p2')
    exchange(C0 + 6, LAG >= 2)
    stamp(A, 'p2')
    set_stage(A, C0 + 7)
    cvt8(A, vHP, vAC)
    pub_stores(A, [st4(vHP + 4 * q, sB, q * 1024) for q in range(2)], not WTO)
    A('v_mov_b32 v%d, 0', vTT)
    A('v_mov_b32 v%d, 0', vTT + 1)
    for r in range(8):
        A('v_dot2c_f32_bf16 v%d, s%d, v%d', vTT, sONES, vHP + r)
        A('v_dot2c_f32_bf16 v%d, v%d, v%d', vTT + 1, vHP + r, vHP + r)
    A('v_lshlrev_b32 v%d, 2, v%d', vTT + 2, vL)
    A('v_permlane32_swap_b32 v%d, v%d', vTT, vTT + 1)
    A('v_add_f32 v%d, v%d, v%d', vTT, vTT, vTT + 1)
    pub_stores(A, ['buffer_store_dword v%d, v%d, s[%d:%d], s%d offen%%s' % (vTT, vTT + 2, SWS, SWS + 3, sC)], not WTO)
    stamp(A, 'p2')
    try_copy(True)
    if not LATE:
        for c in (5, 6):
            w1_copy(c)
    stamp(A, 'p2')
    pub_flag(A, sFL, True)
    stamp(A, 'p2')
    try_copy2(True)
    stamp(A)
    if LATE:
        for c in (4, 5, 6):
            w1_copy(c)
    set_stage(A, C0 + 8)
    A('s_waitcnt lgkmcnt(0)')
    for r in range(16 * NE, 112):
        A('v_dot2c_f32_bf16 v%d, s%d, v%d', vCS + (r & 1), sONES, vXR + r)
    A('v_add_f32 v%d, v%d, v%d', vCS, vCS, vCS + 1)
    hilo_c(A, vCS, vCF, vT0)
    vBR = 40
    vE3 = 72
    vMF2, vSD = 128, 132
    A('s_mov_b32 s%d, s%d', sB, sB3)
    A('s_mov_b32 s%d, s%d', sFL, sFL3)

    def p3_epilogue(gi, packed=False):
        B = sub(A)
        acc = vAC + 16 * (gi & 1)
        e = vE3
        sd, c1 = vSD, vSD + 1
        if packed:
            pk = lambda r: 'v[%d:%d]' % (r, r + 1)
            for r in range(0, 16, 2):
                B('v_pk_mul_f32 %s, %s, %s op_sel:[0,1] op_sel_hi:[1,1]', pk(e + r), pk(acc + r), pk(sd))
            for r in range(16):
                B('v_exp_f32 v%d, v%d', e + r, e + r)
            for r in range(0, 16, 2):
                B('v_pk_fma_f32 %s, %s, %s, %s op_sel_hi:[1,0,0]', pk(e + r), pk(e + r), pk(sd), pk(sd))
            for r in range(16):
                B('v_rcp_f32 v%d, v%d', e + r, e + r)
            for r in range(0, 16, 2):
                B('v_pk_mul_f32 %s, %s, %s', pk(e + r), pk(e + r), pk(acc + r))
            cvt8(B, acc, e)
        else:
            silu8(B, acc, e, sd, c1, acc)
            silu8(B, acc + 8, e + 8, sd, c1, acc + 4)
        blocks = [[l] for l in B.lines]
        if E('ABL', 0) & 256 and not packed:
            blocks = blocks[-4:]
        B = sub(A)
        so = sB if gi < 2 else sBL
        pub_stores(B, [st4(acc + 4 * q, so, q * 1024) for q in range(2)], not WT1)
        if gi % 2 == 0:
            B('s_add_u32 s%d, s%d, %d', so, so, 112 * 1024)
        blocks.append(B.lines)
        return blocks

    def flag_load(B):
        B('s_mov_b64 exec, 0xfffffff')
        B('buffer_load_dword v%d, v%d, s[%d:%d], s%d offen sc1', vPF, vL4, SWS, SWS + 3, sPF)
        B('s_mov_b64 exec, -1')

    def flag_check(mask):
        def slow(B, back):
            lo = B.label('P')
            B('%s:', lo)
            flag_load(B)
            B('s_waitcnt vmcnt(0)')
            B('v_cmp_ne_u32 vcc, s%d, v%d', sTAG, vPF)
            spin_guard(B, back)
            B('s_and_b32 s%d, vcc_lo, %s', sT, mask)
            B('s_cbranch_scc1 %s', lo)
        ent, back = cold_block(A, slow)
        A('v_cmp_ne_u32 vcc, s%d, v%d', sTAG, vPF)
        A('s_and_b32 s%d, vcc_lo, %s', sT, mask)
        A('s_cbranch_scc1 %s', ent)
        A('%s:', back)

    PRE = E('P3PRE', 6)
    vHB = vXD + 2
    A('v_add_u32 v%d, %d, v%d', vHB, L_A, vO)
    A('v_add_u32 v%d, %d, v%d', vHB + 1, 65536, vO)
    Q = LdsQ(A)

    def chk(n):
        gi, k = divmod(n, 28)
        if gi == 0 and E('P3RAMP', 0):
            return k // 4 if k % 4 == 0 else None
        if gi == 0:
            return {0: 1, 8: 3, 16: 5, 24: 6}.get(k)
        return {0: 1, 8: 3, 16: 6}.get(k)

    def rd(n):
        gi, k = divmod(n, 28)
        if n + 1 < 112 and chk(n + 1) is not None:
            Q.take(7)
        if chk(n) is not None:
            wait_lp(Q.A, ('h', gi, chk(n)))
        Q.op(('b', n), 'ds_read_b128 %s, v%d offset:%d', v(vBR + 4 * (n % 8), 4), (vHB, vHB, vO, vHB + 1)[gi],
             (28672 if gi == 1 else 0) + k * 1024)
        if k == 27:
            Q.stage(C0 + 9 + gi)
        ramp = E('P3RAMP', 0) and n < 20
        nn = n + (4 if ramp else E('P3PK', PRE + 2))
        if nn < 112 and chk(nn) is not None and not Q.peeked and (ramp or nn >= 28 or not E('P3RAMP', 0)):
            Q.peek(7)

    stamp(A, 'p2')
    nrd = [0]

    def rd_upto(n):
        while nrd[0] <= min(n, 111):
            rd(nrd[0])
            nrd[0] += 1
    rd_upto(2)
    for gi in range(4):
        acc = vAC + 16 * (gi & 1)
        M = sub(A)
        Q.A = M
        for k in range(28):
            n = 28 * gi + k
            rd_upto(n + (PRE if not E('P3RAMP', 0) else 3 if n < 22 else min(PRE, 3 + (n - 21))))
            if k == 16:
                Q.op('s6', 'ds_read_b128 v[%d:%d], v%d offset:%d', vTT, vTT + 3, vMI, M_PW + 16)
                Q.op('sf', 'ds_read_b128 %s, v%d offset:%d', v(vMF2, 4), vEX, gi * 1024)
            if k == 24:
                Q.wait('sf')
                M('v_readfirstlane_b32 s%d, v%d', sPROG, vTT)
                M('v_readfirstlane_b32 s%d, v%d', sC, vTT + LP[('st', gi)][0] - 4)

                def st_slow(B, back):
                    def st_read():
                        B('ds_read_b128 %s, v%d offset:%d', v(vMF2, 4), vEX, gi * 1024)
                        return 0
                    wait_word(B, LP[('st', gi)][0], LP[('st', gi)][1], body=st_read)
                ent, back = cold_block(M, st_slow)
            if k == 25:
                M('s_cmp_ge_u32 s%d, %d', sC, LP[('st', gi)][1])
                M('s_cbranch_scc0 %s', ent)
                M('%s:', back)
                M('v_mov_b32 v%d, v%d', vMF, vMF2)
                M('v_mov_b32 v%d, v%d', vMF + 1, vMF2 + 1)
            if k % 2 == 0:
                Q.wait(('b', n + 1))
            if k in (0, 12):
                stamp(M, 'p3')
            if gi == E('P33', 3) and k % 2 == 0 and k:
                stamp(M, 'p33')
            if gi == 3 and k == E('P3FLAGK', 11):
                pub_flag(M, sFL, True)
            if gi == 3 and k == 25:
                flag_load(M)
            mfma(M, acc, vXR + 4 * k, vBR + 4 * (n % 8), k == 0)
        mfma(M, acc, vCF, vMF)
        M('v_mov_b32 v%d, v%d', vSD, vMF2 + 2)
        M('v_mov_b32 v%d, v%d', vSD + 1, vMF2 + 3)
        A.lines += merge(M.lines, p3_epilogue(gi - 1) if gi > 0 else [], 1, E('P3STOP2', 27) if gi == 2 else 27)
        if gi == 0:
            stamp(A)
        stamp(A, 'p3')
    stamp(A)
    NB = 16
    vWF4 = 40
    vAP = vXR + 48

    def w2_base(c):
        A('s_cmp_eq_u32 s%d, 0', sKH)
        A('s_cselect_b32 s%d, %d, %d', sT, w2_slot(2 * c) >> 12, w2_slot(2 * c + 1) >> 12)
        A('s_lshl_b32 s%d, s%d, 12', sT, sT)
        A('v_add_u32 v%d, s%d, v%d', vWA + 2, sT, vWA)
        A('v_add_u32 v%d, s%d, v%d', vWA + 3, sT, vWA + 1)

    Q = LdsQ(A)

    def abuf(k):
        return vWF4 + 8 * (k & 3)

    def read_w2(k):
        if k % 4 == 3 and k < 52:
            Q.take(LP[('w2', 2 * (k // 4) + 3)][0])
        if k % 4 == 0:
            wait_lp(A, ('w2', 2 * (k // 4) + 1))
            w2_base(k // 4)
        buf = abuf(k)
        for nt in range(2):
            for z in range(2):
                Q.op(('w', k), 'ds_read_b64_tr_b16 v[%d:%d], v%d offset:%d', buf + 4 * nt + 2 * z,
                     buf + 4 * nt + 2 * z + 1, vWA + 2 + nt, ((k % 4) * 16 + 8 * z) * 128)
        if k % 4 == 0 and k < 52:
            Q.peek(LP[('w2', 2 * (k // 4) + 3)][0])
        if k % 4 == 3 and (k // 4) <= 5:
            Q.stage(C0 + 13 + k // 4)

    vq = []

    def vm_need(tag):
        i = max(j for j, x in enumerate(vq) if x == tag)
        return len(vq) - 1 - i

    def issue_b(k):
        if k % 8 == 0:
            A('s_lshl_b32 s%d, s%d, 13', sM0, sBK)
            A('s_add_u32 s%d, s%d, s%d', sM0, sM0, sHB)
            blk_next(A, sBK, sBS)
        A('buffer_load_dwordx4 %s, v%d, s[%d:%d], s%d offen offset:%d%s', v(vXR + 4 * (k % NB), 4), vO, SWS, SWS + 3,
          sM0, (k & 3) * 1024, LDB)
        vq.append(('b', k))
        if k % 8 == 3:
            A('s_add_u32 s%d, s%d, 4096', sM0, sM0)

    INFL = E('P4INFL', 10)
    assert INFL < NB
    A('s_waitcnt vmcnt(2)')
    flag_check('s%d' % sEM)
    stamp(A)
    issued = E('P4PRE', 8)
    for k in range(issued):
        issue_b(k)
    for b in p3_epilogue(3, True):
        A.lines += b
    vq += ['st', 'st']
    read_w2(0)
    read_w2(1)
    while issued < INFL:
        issue_b(issued)
        issued += 1
    unpack_hp()
    stamp(A)
    KF, KL, KC = E('P4KF', 3), E('P4KL', 9), E('P4KC', 14)
    pend = False
    for k in range(56):
        if k + 2 < 56:
            read_w2(k + 2)
        need = vm_need(('b', k))
        if k == KF:
            need = min(need, vm_need('st'))
        if k == KC:
            need = min(need, vm_need('pf'))
        Q.wait(('w', k), need)
        if k % 4 == 0 and k:
            stamp(A, 'p4')
        buf = abuf(k)
        mfma(A, vAC + 16, buf + 4, vXR + 4 * (k % NB), k == 0)
        if k == KF:
            pub_flag(A, sFL2, True, False)
            vq.append('fl')
        if k == KL:
            flag_load(A)
            vq.append('pf')
        if k == KC:
            flag_check('0xfffffff')
            pend = True
        for _ in range(2):
            if issued < min(56, k + 1 + INFL) and (issued < 24 or pend):
                issue_b(issued)
                issued += 1
        mfma(A, vAC, buf, vXR + 4 * (k % NB))
    stamp(A)
    if E('OUTT', 1):
        A('v_readfirstlane_b32 s%d, v%d', sC, vSR)
        A('v_readfirstlane_b32 s%d, v%d', sT2, vRO)
        A('v_and_b32 v%d, 31, v%d', vTT, vL)
        A('v_mul_u32_u24 v%d, 80, v%d', vTT, vTT)
        A('v_lshrrev_b32 v%d, 5, v%d', vT1, vL)
        A('v_lshl_add_u32 v%d, v%d, 3, v%d', vTT, vT1, vTT)
        A('v_add_u32 v%d, s%d, v%d', vTT, sC, vTT)
        A('v_lshrrev_b32 v%d, 2, v%d', vT1, vL)
        A('v_and_b32 v%d, 3, v%d', vTT + 3, vL)
        A('v_lshlrev_b32 v%d, 4, v%d', vTT + 3, vTT + 3)
        A('v_mul_u32_u24 v%d, 80, v%d', vTT + 1, vT1)
        A('v_add3_u32 v%d, v%d, v%d, s%d', vTT + 1, vTT + 1, vTT + 3, sC)
        A('v_mul_u32_u24 v%d, 896, v%d', vTT + 2, vT1)
        A('v_add_u32 v%d, v%d, v%d', vTT + 2, vTT + 2, vTT + 3)
        A('s_add_u32 s%d, s%d, %d', sC, sT2, 16 * 896)
    exchange(C0 + 27)
    cvt8(A, vHP, vAC)
    OB = ('', ' sc1', ' nt', ' sc0 sc1')[E('OUTB', 2)]
    if E('OUTT', 1):
        for q in range(4):
            A('ds_write_b64 v%d, v[%d:%d] offset:%d', vTT, vHP + 2 * q, vHP + 2 * q + 1, q * 16)
        for q in range(2):
            A('ds_read_b128 %s, v%d offset:%d', v(vHP + 4 * q, 4), vTT + 1, q * 16 * 80)
        for q in range(2):
            A('s_waitcnt lgkmcnt(%d)', 1 - q)
            A('buffer_store_dwordx4 %s, v%d, s[%d:%d], s%d offen%s', v(vHP + 4 * q, 4), vTT + 2, SOUT, SOUT + 3,
              (sT2, sC)[q], OB)
    else:
        for q in range(2):
            A('v_permlane32_swap_b32 v%d, v%d', vHP + 4 * q, vHP + 4 * q + 2)
            A('v_permlane32_swap_b32 v%d, v%d', vHP + 4 * q + 1, vHP + 4 * q + 3)
        for q in range(2):
            A('buffer_store_dwordx4 %s, v%d, s[%d:%d], 0 offen offset:%d%s', v(vHP + 4 * q, 4), vRO, SOUT, SOUT + 3,
              q * 32, OB)
    A('s_or_b32 s%d, s2, s%d', sT, sWV)
    A('s_cmp_lg_u32 s%d, 0', sT)
    A('s_cbranch_scc1 %s', fin)
    A('s_mov_b32 s%d, %d', sT, FEP)
    A('s_mov_b64 exec, 1')
    A('buffer_store_dword v%d, v%d, s[%d:%d], s%d offen', vTAG, vO, SWS, SWS + 3, sT)
    A('s_mov_b64 exec, -1')
    A('%s:', fin)
    if E('PADTO', 0):
        lo = A.label('PAD')
        A('s_waitcnt vmcnt(0) lgkmcnt(0)')
        A('s_mov_b32 s6, %d', E('PADTO', 0))
        if PROBE >= 0:
            A('s_sub_u32 s7, s56, s84')
            A('s_lshl_b32 s7, s7, 2')
            A('s_cmp_ge_u32 s%d, 28', sI)
            A('s_cselect_b32 s7, 0, s7')
            A('s_add_u32 s6, s6, s7')
        A('%s:', lo)
        A('s_memrealtime s[4:5]')
        A('s_waitcnt lgkmcnt(0)')
        A('s_sub_u32 s4, s4, s84')
        A('s_cmp_lt_u32 s4, s6')
        A('s_cbranch_scc1 %s', lo)
    stamp_flush(A)


def gen():
    A = Asm()
    name = NAME + '_kernel'
    A.lines += ['.p2align 8', '.globl %s' % name, '.type %s,@function' % name, '%s:' % name]
    end = A.label('END')
    if E('PADTO', 0):
        A('s_memrealtime s[84:85]')
    A('s_load_dwordx16 s[64:79], s[0:1], 0')
    A('s_load_dwordx2 s[80:81], s[0:1], 72')
    A('s_getpc_b64 s[%d:%d]', sPC, sPC + 1)
    A('s_cmp_ge_u32 s2, 256')
    A('s_cbranch_scc1 %s', end)
    assert MAP == 0
    A('s_and_b32 s%d, s2, 7', sXCD)
    A('s_lshr_b32 s%d, s2, 3', sI)
    A('v_lshrrev_b32 v%d, 6, v0', vMY)
    A('v_and_b32 v%d, 63, v0', vL)
    A('s_and_b32 s%d, s%d, 1', sTB, sI)
    A('s_lshl1_add_u32 s%d, s%d, s%d', sTB, sXCD, sTB)
    A('v_readfirstlane_b32 s%d, v%d', sWV, vMY)
    A('s_add_u32 s%d, s%d, s%d', sC0, sXCD, sI)
    A('s_mul_i32 s%d, s%d, 37', sT, sC0)
    A('s_lshr_b32 s%d, s%d, 8', sT, sT)
    A('s_mul_i32 s%d, s%d, 7', sT, sT)
    A('s_sub_u32 s%d, s%d, s%d', sC0, sC0, sT)
    x_offsets(A)
    A('s_mul_i32 s%d, s%d, %d', sT2, sWV, 32 * 896)
    A('s_lshl_b32 s%d, s%d, 7', sT, sC0)
    A('s_add_u32 s%d, s%d, s%d', sT, sT, sXB)
    A('s_add_u32 s%d, s%d, s%d', sT, sT, sT2)
    A('s_lshl_b32 m0, s%d, 12', sWV)
    A('s_mov_b32 s%d, 0x%x', SX + 2, 0 if E('ABL', 0) & 16 else S * D * 2)
    A('s_mov_b32 s%d, 0x20000', SX + 3)
    nok = A.label('NOK')
    A('s_cmp_ge_u32 s%d, 4', sWV)
    A('s_waitcnt lgkmcnt(0)')
    A('s_mov_b32 s%d, s64', SX)
    A('s_mov_b32 s%d, s65', SX + 1)
    A('s_cbranch_scc1 %s', nok)
    for u in range(4):
        A('buffer_load_dwordx4 v%d, s[%d:%d], s%d offen offset:%d lds', vXD + u, SX, SX + 3, sT, u * 1024)
    A('%s:', nok)
    srd(A, SW, 66, 0 if E('ABL', 0) & 8 else D * 3 * D * 2)
    WT = E('WT', 0)
    if WT:
        now = A.label('NOW')
        A('s_sub_u32 s%d, s%d, 4', sT, sWV)
        A('s_cmp_ge_u32 s%d, %d', sT, WT)
        A('s_cbranch_scc1 %s', now)
        A('s_add_u32 s%d, s%d, 1', sT, sT)
        A('s_cmp_eq_u32 s%d, 3', sT)
        A('s_cselect_b32 s%d, 0, s%d', sT, sT)
        A('s_mul_i32 s%d, s%d, 896', sT, sT)
        A('s_mul_i32 s%d, s%d, %d', sT2, sI, 14 * 2688)
        A('s_add_u32 s%d, s%d, s%d', sT, sT, sT2)
        A('s_add_u32 s%d, s%d, %d', sT2, sT, 7 * 2688)
        A('v_lshrrev_b32 v%d, 3, v%d', vT0, vL)
        A('v_mul_u32_u24 v%d, 2688, v%d', vT0, vT0)
        A('v_and_b32 v%d, 7, v%d', vT1, vL)
        A('v_lshl_add_u32 v%d, v%d, 7, v%d', vT0, vT1, vT0)
        A('s_mov_b32 exec_lo, 0x7f7f7f7f')
        A('s_mov_b32 exec_hi, 0x007f7f7f')
        A('buffer_load_dword v38, v%d, s[%d:%d], s%d offen', vT0, SW, SW + 3, sT)
        A('buffer_load_dword v39, v%d, s[%d:%d], s%d offen', vT0, SW, SW + 3, sT2)
        A('s_mov_b64 exec, -1')
        A('%s:', now)
    perm = [2, 4, 6, 9, 11, 13, 0, 1, 3, 5, 7, 8, 10, 12, 14, 15]
    lo = sum(perm[i] << (4 * i) for i in range(8))
    hi = sum(perm[8 + i] << (4 * i) for i in range(8))
    A('s_mov_b32 s%d, 0x%x', sHI, lo)
    A('s_mov_b32 s%d, 0x%x', sHI + 1, hi)
    A('s_lshr_b32 s%d, s%d, 1', sT, sI)
    A('s_lshl_b32 s%d, s%d, 2', sT, sT)
    A('s_lshr_b64 s[%d:%d], s[%d:%d], s%d', sHI, sHI + 1, sHI, sHI + 1, sT)
    A('s_and_b32 s%d, s%d, 15', sH, sHI)
    A('v_lshlrev_b32 v%d, 2, v%d', vMY, vMY)
    A('v_add_u32 v%d, %d, v%d', vMY, L_MISC, vMY)
    A('v_mov_b32 v%d, 0', vT0)
    A('ds_write2st64_b32 v%d, v%d, v%d offset0:0 offset1:1', vMY, vT0, vT0)
    A('ds_write2_b32 v%d, v%d, v%d offset0:%d offset1:%d', vMY, vT0, vT0, M_FAST // 4, M_CP // 4)
    w_offsets(A)
    A('v_mov_b32 v%d, %d', vMI, L_MISC)
    A('s_mov_b32 s%d, 0x400000', sSPIN)
    A('s_mov_b32 s%d, 0', sPROG)
    A('s_mov_b32 s%d, 0', sPROG1)
    A('s_waitcnt lgkmcnt(0)')
    A('s_barrier')
    _st['n'] = 0
    stamp(A, 'all')
    if STAMPS:
        A('s_memrealtime s[86:87]')
    for i in range(7):
        LP[('x', i)] = (7, 1 + i)
    hn = [9]
    for gi in range(4):
        us = E('HSPOS', 3) if gi == 0 else 0
        LP[('st', gi)] = (6 - (gi & 1), 4 + gi // 2)
        for q in range(7):
            if q in HITEMS[gi > 0]:
                hn[0] += 1
                LP[('h', gi, q)] = (7, hn[0])
            if q == us:
                hn[0] += 1
                LP[('hs', gi)] = (7, hn[0])
    for pi in range(3):
        for i in range(7):
            LP[('W', pi, i)] = (4, 7 * pi + i + 1)
    l0, l1, l2, lw, lc = A.label('H0'), A.label('H1'), A.label('H23'), A.label('EW'), A.label('EC')
    A('s_cmp_eq_u32 s%d, 4', sWV)
    A('s_cbranch_scc1 %s', lw)
    A('s_cmp_lg_u32 s%d, 7', sWV)
    A('s_cbranch_scc1 %s', lc)
    HELP['on'] = True
    nst = {}
    prio(A, 1)
    _st['n'] = 1
    early_x(A)
    nst[l1] = _st['n']
    A('s_branch %s', l1)
    A('%s:', lw)
    prio(A, 1)
    _st['n'] = 1
    early_w(A)
    nst[l0] = _st['n']
    nst[l2] = 1
    A('s_branch %s', l0)
    refresh_routines(A)
    A('%s:', lc)
    A('s_cmp_ge_u32 s%d, 5', sWV)
    A('s_cbranch_scc1 %s', l2)
    parts = {}
    for lab, fn in ((l0, gen_h0), (l1, gen_h1), (l2, gen_h23)):
        B = sub(A)
        B('%s:', lab)
        B('s_nop 4')
        HELP['on'] = True
        prio(B, 1)
        _st['n'] = nst[lab]
        fn(B)
        HELP['on'] = False
        parts[lab] = B.lines
    _st['n'] = 1
    gen_compute(A)
    A('%s:', end)
    A('s_endpgm')
    for lab in (l0, l1, l2):
        A.lines += parts[lab]
    A.lines += COLD
    return A, name


def main():
    out = sys.argv[1] if len(sys.argv) > 1 else 'cdna_kernels/%s.s' % NAME
    A, name = gen()
    lines, nn = fix_hazards(A.lines)
    hdr = ['; generated by gen/gen14.py (hand-written generator script)',
           '; @launch grid=(256,1,1) block=(512,1,1) lds=%d' % LDS_SIZE,
           '.amdgcn_target "amdgcn-amd-amdhsa--gfx950"', '.text']
    tail = ['.p2align 8', '.fill 2048, 4, 0xbf800000', '.section .rodata,"a"', '.p2align 6', '''.amdhsa_kernel %s
  .amdhsa_next_free_vgpr 256
  .amdhsa_next_free_sgpr 102
  .amdhsa_accum_offset 256
  .amdhsa_group_segment_fixed_size 0
  .amdhsa_kernarg_size 80
  .amdhsa_user_sgpr_count 2
  .amdhsa_user_sgpr_kernarg_segment_ptr 1
  .amdhsa_system_sgpr_workgroup_id_x 1
  .amdhsa_float_denorm_mode_32 3
  .amdhsa_float_denorm_mode_16_64 3
.end_amdhsa_kernel''' % name]
    open(out, 'w').write('\n'.join(hdr + lines + tail) + '\n')
    print('wrote', out, 'lines', len(lines), 'nops', nn)


if __name__ == '__main__':
    main()
```

```python
import sys
import os
sys.path.insert(0, os.path.dirname(os.path.abspath(__file__)))
from asmlib import Asm, fix_hazards, v

NAME = 'sequential_preLN__linear_kernel_hedgehog__dense_activation_silu__prompt'
S, D, H, DH, F = 2048, 448, 16, 28, 1792
MB = 1 << 20
E = lambda k, d: int(os.environ.get(k, d))
STAMPS = E('STAMPS', 0)
MAP = E('MAP', 0)
FAST = E('FAST', 1)
CODEPF = E('CODEPF', 1)
WARM = E('WARM', 0)
WT1 = E('WT1', 1)
WTO = E('WTO', 0)
TOUCHAT = E('TOUCHAT', 2)
LDB = (' sc1', '', ' nt')[E('LDB', 0)]
HLATE = E('HLATE', 1)
WS_KVP = 0
WS_OB = 2 * MB
WS_HB = 4 * MB
WS_H1B = 8 * MB
WS_FLG = 16 * MB
F1, F2, F3, F4, FREG, FEP = WS_FLG + 0x10000, WS_FLG + 0x1000, WS_FLG + 0x3000, WS_FLG + 0x70000, WS_FLG + 0x9000, WS_FLG + 0xA000
F2X = WS_FLG + 0x40000
WS_STAMP = 17 * MB
WS_SIZE = 18 * MB
LOG2E = 0x3fb8aa3b
ONES = 0x3f803f80
MFMA = 'v_mfma_f32_32x32x16_bf16'
L_X = 0
L_WP = (114688, 0, 32768)
L_KVA, L_KVV = 65536, 81920
L_A = 98304
L_SC0, L_SC1 = 49152, 57344
L_XRES = L_SC0
B16 = (0, 16384, 65536, 81920, 32768)
L_PHI, L_EX, L_CF, L_MISC = 159744 - 2048 + 2048 + 1536, 155648, 159744, 163328
LDS_SIZE = 163840
M_PW, M_FAST, M_CP, M_LD = 0, 64, 96, 256
L_RSTD = L_EX

SX, SW, SP, SWS, SWO, SW1, SW2, SOUT = 12, 16, 20, 24, 28, 32, 36, 40
sTB, sH, sWV, sC0, sPROG, sT, sT2, sONES, sC, sTAG, sFASTF, sI, sXCD = 44, 45, 46, 47, 48, 49, 50, 51, 52, 53, 54, 55, 3
sHI, sPADL, sZA, sZB, sODD, sPC = 4, 6, 8, 10, 92, 94
sTQ, sNB, sTB3, sFB, sG, sKH, sB, sXB, sM0, sSPIN = 96, 97, 98, 99, 100, 101, 88, 89, 91, 90
sPROG1, sFL = 0, 1
vL, vMI, vT0, vT1, vO = 1, 2, 3, 4, 5
vTAG, vMY = 6, 7
vTT = 8
vXA = 12
vWA = 16
vSM, vSQ = 20, 22
vNM, vRS, vSC, vRA = 24, 25, 26, 27
vXD = 28
vPW = 32
vCA = 36
vXR = 144
vPK_ = 37
CACHE = {4: sPROG, 7: sPROG1, 5: sC0}

_st = {'n': 0}
C0 = 4
HELP = {'on': False}


def prio(A, hi):
    if HELP['on'] and E('HPRIO', 2) and not HELP.get('hot'):
        A('s_setprio %d', E('HPRIO', 2) if hi else 0)
LP = {}


STSET = os.environ.get('STSET', 'main')


DBGT = E('DBGT', 0)


PROBE = E('PROBE', -1)


def stamp(A, tag='main'):
    if PROBE >= 0:
        if not HELP['on'] and tag in ('main', 'all'):
            if _st['n'] == PROBE:
                A('s_memrealtime s[56:57]')
            _st['n'] += 1
        return
    if DBGT and not HELP['on'] and tag in ('main', 'all'):
        A('s_memrealtime s[%d:%d]', 56 + 2 * _st['n'], 57 + 2 * _st['n'])
        _st['n'] += 1
        return
    if STAMPS and STSET == 'clk' and tag == 'main' and not HELP['on']:
        _st['m'] = _st.get('m', 0) + 1
        if _st['m'] in (1, 2, 4, 8, 10, 13):
            A('s_memtime s[%d:%d]', 56 + 2 * _st['n'], 57 + 2 * _st['n'])
            A('s_memrealtime s[%d:%d]', 58 + 2 * _st['n'], 59 + 2 * _st['n'])
            _st['n'] += 2
        return
    if STAMPS and (tag == STSET or tag == 'all' or (HELP['on'] and tag == 'main')):
        assert _st['n'] < 15, 'too many stamps'
        A('s_memtime s[%d:%d]', 56 + 2 * _st['n'], 57 + 2 * _st['n'])
        _st['n'] += 1


def stamp_flush(A):
    if DBGT and not HELP['on']:
        A('s_waitcnt vmcnt(0)')
        stamp(A, 'all')
        skip = A.label('DS')
        A('s_waitcnt vmcnt(0) lgkmcnt(0)')
        A('s_cmp_ge_u32 s%d, 28', sI)
        A('s_cbranch_scc1 %s', skip)
        A('s_mov_b64 exec, 1')
        A('v_mov_b32 v1, 0')
        A('s_not_b32 s4, s56')
        A('v_mov_b32 v2, s4')
        A('global_atomic_umax v1, v2, s[86:87] offset:60')
        for i in range(_st['n']):
            A('v_mov_b32 v%d, s%d', 8 + i, 56 + 2 * i)
            A('global_atomic_umax v1, v%d, s[86:87] offset:%d', 8 + i, 4 * i)
        A('%s:', skip)
        return
    if STAMPS:
        A('s_waitcnt vmcnt(0)')
        stamp(A, 'all')
        A('s_memrealtime s[4:5]')
        A('s_waitcnt vmcnt(0) lgkmcnt(0)')
        A('s_sub_u32 s4, s4, s86')
        A('s_lshl_b32 s4, s4, 20')
        A('s_and_b32 s86, s86, 0xfffff')
        A('s_or_b32 s86, s86, s4')
        A('s_lshl_b32 s%d, s2, 3', sT)
        A('s_add_u32 s%d, s%d, s%d', sT, sT, sWV)
        A('s_lshl_b32 s%d, s%d, 6', sT, sT)
        A('s_add_u32 s%d, s%d, %d', sT, sT, WS_STAMP)
        A('s_mov_b64 exec, 1')
        A('v_mov_b32 v1, 0')
        for i in range(16):
            if i < _st['n']:
                A('v_mov_b32 v2, s%d', 56 + 2 * i)
            elif i == 15:
                A('v_mov_b32 v2, s86')
            else:
                A('v_mov_b32 v2, 0')
            A('buffer_store_dword v2, v1, s[%d:%d], s%d offen offset:%d', SWS, SWS + 3, sT, 4 * i)
            A('s_nop 1')


def srd(A, d, ptr, size):
    A('s_mov_b32 s%d, s%d', d, ptr)
    A('s_and_b32 s%d, s%d, 0xffff', d + 1, ptr + 1)
    A('s_mov_b32 s%d, 0x%x', d + 2, size)
    A('s_mov_b32 s%d, 0x20000', d + 3)


COLD = []


def cold_block(A, fn):
    ent, back = A.label('CE'), A.label('CB')
    B = sub(A)
    B('%s:', ent)
    B('s_nop 15')
    fn(B, back)
    B('s_nop 7')
    B('s_branch %s', back)
    COLD.extend(B.lines)
    return ent, back


def again(A, br, lo, sleep=0):
    slp = max(sleep * E('SLPMUL', 1), E('HSLP', 0) if HELP['on'] else E('CSLP', 0))
    if slp:
        st = A.label('ZZ')
        COLD.extend(['%s:' % st, '  s_sleep %d' % slp, '  s_branch %s' % lo])
        lo = st
    A('%s %s', br, lo)


def spin_guard(A, done):
    A('s_sub_u32 s%d, s%d, 1', sSPIN, sSPIN)
    A('s_cbranch_scc1 %s', done)


def wait_word(A, w, n, cache=None, sleep=0, body=None):
    sd = sT if cache is None else cache

    def loop(B, done, body=None):
        lo = B.label('W')
        prio(B, 0)
        B('%s:', lo)
        B('ds_read_b32 v%d, v%d offset:%d', vPW, vMI, M_PW + 4 * w)
        k = body() if body else 0
        B('s_waitcnt lgkmcnt(%d)', k)
        B('v_readfirstlane_b32 s%d, v%d', sd, vPW)
        spin_guard(B, done)
        B('s_cmp_ge_u32 s%d, %d', sd, n)
        again(B, 's_cbranch_scc0', lo, sleep)
        prio(B, 1)
    if cache is not None and body is None and not HELP['on']:
        A('s_getpc_b64 s[%d:%d]', sPC, sPC + 1)
        A('s_cmp_ge_u32 s%d, %d', sd, n)
        A('s_cbranch_scc0 REFRESH_%d', w)
        return
    done = A.label('WD')
    if cache is not None and body is None:
        A('s_cmp_ge_u32 s%d, %d', sd, n)
        A('s_cbranch_scc1 %s', done)
    loop(A, done, body)
    A('%s:', done)


def wait_lp(A, name, sleep=0):
    w, n = LP[name]
    wait_word(A, w, n, CACHE[w], sleep)


def set_stage(A, n):
    A('v_mov_b32 v%d, %d', vT0, n)
    A('ds_write_b32 v%d, v%d', vMY, vT0)


def wait_stage(A, n, which=(0, 1, 2, 3), body=None, sleep=0, base=M_PW):
    lo, done = A.label('W'), A.label('WD')
    prio(A, 0)
    A('%s:', lo)
    A('ds_read_b128 v[%d:%d], v%d offset:%d', vPW, vPW + 3, vMI, base + 16 * (which[0] // 4))
    k = body() if body else 0
    A('s_waitcnt lgkmcnt(%d)', k)
    w = [x % 4 for x in which]
    if len(w) == 4:
        A('v_min3_u32 v%d, v%d, v%d, v%d', vPW, vPW, vPW + 1, vPW + 2)
        A('v_min_u32 v%d, v%d, v%d', vPW, vPW, vPW + 3)
        r = vPW
    else:
        A('v_min_u32 v%d, v%d, v%d', vPW + w[0], vPW + w[0], vPW + w[1])
        r = vPW + w[0]
    A('v_readfirstlane_b32 s%d, v%d', sT, r)
    spin_guard(A, done)
    A('s_cmp_ge_u32 s%d, %d', sT, n)
    again(A, 's_cbranch_scc0', lo, sleep)
    A('%s:', done)
    prio(A, 1)


def poll_global(A, soff, nlanes):
    lo, done = A.label('P'), A.label('PD')
    A('v_lshlrev_b32 v%d, 2, v%d', vT1, vL)
    if nlanes <= 32:
        A('s_mov_b64 exec, 0x%x', (1 << nlanes) - 1)
    else:
        A('s_mov_b32 exec_lo, 0x%x', nlanes & 0xffffffff)
        A('s_mov_b32 exec_hi, 0x%x', nlanes >> 32)
    A('%s:', lo)
    A('buffer_load_dword v%d, v%d, s[%d:%d], s%d offen sc1', vT0, vT1, SWS, SWS + 3, soff)
    A('s_waitcnt vmcnt(0)')
    A('v_cmp_ne_u32 vcc, s%d, v%d', sTAG, vT0)
    spin_guard(A, done)
    A('s_cbranch_vccnz %s', lo)
    A('%s:', done)
    A('s_mov_b64 exec, -1')


def poll_scalar(A, soff, n):
    lo, done = A.label('P'), A.label('PD')
    A('s_add_u32 s%d, s%d, s%d', sPC, SWS, soff)
    A('s_addc_u32 s%d, s%d, 0', sPC + 1, SWS + 1)
    base = 76
    assert n == 8
    A('%s:', lo)
    if E('PSLEEP', 0):
        A('s_sleep %d', E('PSLEEP', 0))
    A('s_load_dwordx%d s[%d:%d], s[%d:%d], 0 glc', n, base, base + n - 1, sPC, sPC + 1)
    A('s_waitcnt lgkmcnt(0)')
    A('s_and_b64 s[%d:%d], s[%d:%d], s[%d:%d]', sHI, sHI + 1, base, base + 1, base + 2, base + 3)
    A('s_or_b64 s[%d:%d], s[%d:%d], s[%d:%d]', sPADL, sPADL + 1, base, base + 1, base + 2, base + 3)
    for k in range(4, n, 2):
        A('s_and_b64 s[%d:%d], s[%d:%d], s[%d:%d]', sHI, sHI + 1, sHI, sHI + 1, base + k, base + k + 1)
        A('s_or_b64 s[%d:%d], s[%d:%d], s[%d:%d]', sPADL, sPADL + 1, sPADL, sPADL + 1, base + k, base + k + 1)
    A('s_and_b32 s%d, s%d, s%d', sHI, sHI, sHI + 1)
    A('s_or_b32 s%d, s%d, s%d', sPADL, sPADL, sPADL + 1)
    A('s_xor_b32 s%d, s%d, s%d', sHI, sHI, sTAG)
    A('s_xor_b32 s%d, s%d, s%d', sPADL, sPADL, sTAG)
    spin_guard(A, done)
    A('s_or_b32 s%d, s%d, s%d', sHI, sHI, sPADL)
    A('s_cbranch_scc1 %s', lo)
    A('%s:', done)


def two_ways(A, fn, local):
    if local and FAST:
        ent, back = cold_block(A, lambda B, back: fn(B, ' sc1'))
        A('s_cmp_eq_u32 s%d, 0', sFASTF)
        A('s_cbranch_scc1 %s', ent)
        fn(A, '')
        A('%s:', back)
    else:
        fn(A, ' sc1')


def pub_stores(A, stores, local):
    def fn(B, bits):
        for st in stores:
            B(st % bits)
    two_ways(A, fn, local)


def pub_flag(A, sflag, local, drain=True):
    if drain:
        A('s_waitcnt vmcnt(0)')
    A('s_mov_b64 exec, 1')
    two_ways(A, lambda B, bits: B('buffer_store_dword v%d, v%d, s[%d:%d], s%d offen%s', vTAG, vO, SWS, SWS + 3, sflag,
                                  bits), local)
    A('s_mov_b64 exec, -1')


def pub_flag4(A):
    A('v_lshlrev_b32 v%d, 9, v%d', vT1, vL)
    A('s_waitcnt vmcnt(0)')
    A('s_mov_b64 exec, 15')
    two_ways(A, lambda B, bits: B('buffer_store_dword v%d, v%d, s[%d:%d], s%d offen%s', vTAG, vT1, SWS, SWS + 3, sFL,
                                  bits), True)
    A('s_mov_b64 exec, -1')


def st4(reg, soff, off):
    return 'buffer_store_dwordx4 %s, v%d, s[%d:%d], s%d offen offset:%d%%s' % (v(reg, 4), vO, SWS, SWS + 3, soff, off)


def hilo_c(A, src, f, tmp):
    A('v_cvt_pk_bf16_f32 v%d, v%d, v%d', f, src, src)
    A('v_and_b32 v%d, 0xffff0000, v%d', tmp, f)
    A('v_sub_f32 v%d, v%d, v%d', tmp, src, tmp)
    A('v_cvt_pk_bf16_f32 v%d, v%d, 0', f + 1, tmp)


def hilo_m(A, src, f, tmp):
    A('v_cvt_pk_bf16_f32 v%d, v%d, 0', f + 1, src)
    A('v_lshlrev_b32 v%d, 16, v%d', tmp, f + 1)
    A('v_sub_f32 v%d, v%d, v%d', tmp, src, tmp)
    A('v_cvt_pk_bf16_f32 v%d, v%d, v%d', f, src, tmp)


def ln_finish(A, t0, t1, negmean, rstd):
    A('v_mul_f32 v%d, 0x%x, v%d', t0, 0x3b124925, t0)
    A('v_mov_b32 v%d, v%d', t1, t0)
    A('v_permlane32_swap_b32 v%d, v%d', t0, t1)
    A('v_fma_f32 v%d, -v%d, v%d, v%d', t1, t0, t0, t1)
    A('v_max_f32 v%d, 0, v%d', t1, t1)
    A('v_add_f32 v%d, 0x%x, v%d', t1, 0x3727c5ac, t1)
    A('v_rsq_f32 v%d, v%d', rstd, t1)
    A('v_sub_f32 v%d, 0, v%d', negmean, t0)


def softmax_pm(A, p, sc, e, t):
    A('v_cndmask_b32 v%d, v%d, v%d, s[%d:%d]', p + 12, p + 12, p + 14, sHI, sHI + 1)
    A('v_cndmask_b32 v%d, v%d, v%d, s[%d:%d]', p + 13, p + 13, p + 15, sHI, sHI + 1)
    mx, mn = t, t + 1
    A('v_max3_f32 v%d, v%d, v%d, v%d', mx, p, p + 1, p + 2)
    A('v_min3_f32 v%d, v%d, v%d, v%d', mn, p, p + 1, p + 2)
    for i in range(3, 13, 2):
        A('v_max3_f32 v%d, v%d, v%d, v%d', mx, mx, p + i, p + i + 1)
        A('v_min3_f32 v%d, v%d, v%d, v%d', mn, mn, p + i, p + i + 1)
    A('v_max_f32 v%d, v%d, v%d', mx, mx, p + 13)
    A('v_min_f32 v%d, v%d, v%d', mn, mn, p + 13)
    A('v_sub_f32 v%d, 0, v%d', mn, mn)
    A('v_permlane32_swap_b32 v%d, v%d', mx, mn)
    A('v_max_f32 v%d, v%d, v%d', mx, mx, mn)
    A('v_mul_f32 v%d, v%d, v%d', mx, mx, sc)
    A('v_mov_b32 v%d, v%d', mn, mx)
    A('v_permlane32_swap_b32 v%d, v%d', mx, mn)
    assert sc % 2 == 0 and mx % 2 == 0
    for i in range(0, 14, 2):
        A('v_pk_fma_f32 v[%d:%d], v[%d:%d], v[%d:%d], v[%d:%d] op_sel:[0,0,1] op_sel_hi:[1,0,1] neg_lo:[1,0,1] '
          'neg_hi:[1,0,1]', e + i, e + i + 1, p + i, p + i + 1, sc, sc + 1, mx, mx + 1)
        A('v_pk_fma_f32 v[%d:%d], v[%d:%d], v[%d:%d], v[%d:%d] op_sel_hi:[1,0,0] neg_lo:[0,0,1] neg_hi:[0,0,1]',
          p + i, p + i + 1, p + i, p + i + 1, sc, sc + 1, mx, mx + 1)
    for i in range(14):
        A('v_exp_f32 v%d, v%d', e + i, e + i)
        A('v_exp_f32 v%d, v%d', p + i, p + i)
    if PKSM:
        for base in (p, e):
            A('v_pk_add_f32 v[%d:%d], v[%d:%d], v[%d:%d]', base + 14, base + 15, base, base + 1, base + 2, base + 3)
        for i in range(4, 14, 2):
            for base in (p, e):
                A('v_pk_add_f32 v[%d:%d], v[%d:%d], v[%d:%d]', base + 14, base + 15, base + 14, base + 15, base + i,
                  base + i + 1)
    else:
        for base in (p, e):
            A('v_add_f32 v%d, v%d, v%d', base + 14, base, base + 2)
            A('v_add_f32 v%d, v%d, v%d', base + 15, base + 1, base + 3)
        for i in range(4, 14):
            for base in (p, e):
                A('v_add_f32 v%d, v%d, v%d', base + 14 + (i & 1), base + 14 + (i & 1), base + i)
    sp, sn = t + 2, t
    A('v_add_f32 v%d, v%d, v%d', sp, p + 14, p + 15)
    A('v_add_f32 v%d, v%d, v%d', sn, e + 14, e + 15)
    A('v_permlane32_swap_b32 v%d, v%d', sp, sn)
    A('v_add_f32 v%d, v%d, v%d', sp, sp, sn)
    A('v_rcp_f32 v%d, v%d', sp, sp)
    A('v_mov_b32 v%d, v%d', sn, sp)
    A('v_permlane32_swap_b32 v%d, v%d', sp, sn)
    for i in range(0, 14, 2):
        for base, r in ((p, sp), (e, sn)):
            if PKSM:
                A('v_pk_mul_f32 v[%d:%d], v[%d:%d], v[%d:%d] op_sel_hi:[1,0]', base + i, base + i + 1, base + i,
                  base + i + 1, r, r + 1)
            else:
                A('v_mul_f32 v%d, v%d, v%d', base + i, base + i, r)
                A('v_mul_f32 v%d, v%d, v%d', base + i + 1, base + i + 1, r)
    for i, (a0, a1) in enumerate(((0, 1), (2, 3), (4, 5), (6, None), (7, 8), (9, 10), (11, 12), (13, None))):
        for base in (p, e):
            A('v_cvt_pk_bf16_f32 v%d, v%d, %s', base + i, base + a0, '0' if a1 is None else 'v%d' % (base + a1))


PKSM = E('PKSM', 1)


def silu8(B, acc, e, sd, c1, out):
    for r in range(8):
        B('v_mul_f32 v%d, v%d, v%d', e + r, acc + r, c1)
        if r >= 1:
            B('v_exp_f32 v%d, v%d', e + r - 1, e + r - 1)
    B('v_exp_f32 v%d, v%d', e + 7, e + 7)
    for r in range(8):
        B('v_fma_f32 v%d, v%d, v%d, v%d', e + r, e + r, sd, sd)
        if r >= 1:
            B('v_rcp_f32 v%d, v%d', e + r - 1, e + r - 1)
    B('v_rcp_f32 v%d, v%d', e + 7, e + 7)
    for r in range(8):
        B('v_mul_f32 v%d, v%d, v%d', e + r, e + r, acc + r)
    cvt8(B, out, e, 4)


def cvt8(A, dst, src, n=8):
    for i in range(n):
        A('v_cvt_pk_bf16_f32 v%d, v%d, v%d', dst + i, src + 2 * i, src + 2 * i + 1)


def mfma(A, d, a_, b_, first=False):
    A('%s %s, %s, %s, %s', MFMA, v(d, 16), v(a_, 4), v(b_, 4), '0' if first else v(d, 16))


def merge(main, blocks, start, stop):
    idx = [i for i, l in enumerate(main) if l.strip().startswith('v_mfma')][start:stop]
    out, k = [], 0
    n = len(idx)
    pos = {i: j for j, i in enumerate(idx)}
    for i, l in enumerate(main):
        out.append(l)
        if i in pos:
            upto = (len(blocks) * (pos[i] + 1) + n - 1) // n
            for b in blocks[k:upto]:
                out += b
            k = max(k, upto)
    assert k >= len(blocks)
    return out


def sub(A):
    return Asm()


L_H = (L_A, L_A + 28672, 0, 65536)
W2S = [32768, 40960] + [L_A + k * 8192 for k in range(2)] + [L_SC0, L_SC1] + [L_A + k * 8192 for k in range(2, 7)] + [
    k * 8192 for k in range(4)] + [65536 + k * 8192 for k in range(4)]
W2GATE = {2: 9, 7: 10, 11: 11, 15: 12}
W2RE = dict(zip(range(19, 28), (0, 1, 2, 3, 6, 7, 8, 9, 10)))


def w2_slot(n):
    return W2S[W2RE.get(n, n)]


def w1_slot(c):
    return B16[c % 5]


class LdsQ:
    def __init__(self, A):
        self.A, self.q = A, []
        self.peeked = False

    def op(self, tag, fmt, *a):
        self.A(fmt, *a)
        self.q.append(tag)

    def need(self, tag):
        idx = [i for i, x in enumerate(self.q) if x == tag]
        if not idx:
            return None
        n = len(self.q) - 1 - idx[-1]
        self.q = self.q[idx[-1] + 1:]
        return min(n, 15)

    def wait(self, tag, vm=None):
        n = self.need(tag)
        if n is None and vm is None:
            return
        self.A('s_waitcnt' + ('' if vm is None else ' vmcnt(%d)' % vm) + ('' if n is None else ' lgkmcnt(%d)' % n))

    def stage(self, n):
        set_stage(self.A, n)
        self.q.append('st')

    def peek(self, w):
        if w == 5:
            self.op('pk', 'ds_read_b32 v%d, v%d', vPK_, vCA)
        else:
            self.op('pk', 'ds_read_b32 v%d, v%d offset:%d', vPK_, vMI, M_PW + 4 * w)
        self.peeked = True

    def take(self, w):
        if not self.peeked:
            return
        self.peeked = False
        self.wait('pk')
        self.A('v_readfirstlane_b32 s%d, v%d', CACHE[w], vPK_)


def tag_compute(A, t16=None):
    A('s_waitcnt lgkmcnt(0)')
    if t16 is not None:
        A('s_lshr_b32 s%d, s%d, 16', sT2, sTAG)
    A('s_mul_i32 s%d, s%d, 0x%x', sTAG, sTAG, 1664525)
    A('s_add_u32 s%d, s%d, 0x%x', sTAG, sTAG, 1013904223)
    A('v_mov_b32 v%d, s%d', vTAG, sTAG)
    if t16 is not None:
        A('s_and_b32 s%d, s%d, 0x3fff', t16, sTAG)
        A('s_and_b32 s%d, s%d, 0x4000', sT, sTAG)
        A('s_lshl_b32 s%d, s%d, 1', sT, sT)
        A('s_or_b32 s%d, s%d, s%d', t16, t16, sT)
        A('s_cmp_eq_u32 s%d, s%d', t16, sT2)
        A('s_cselect_b32 s%d, 1, 0', sT)
        A('s_xor_b32 s%d, s%d, s%d', t16, t16, sT)
        A('s_lshl_b32 s%d, s%d, 16', t16, t16)


def fast_check(A):
    A('s_getreg_b32 s%d, hwreg(HW_REG_XCC_ID)', sC)
    A('s_and_b32 s%d, s%d, 15', sC, sC)
    A('s_add_u32 s%d, s%d, s%d', sC, sC, sTAG)
    A('s_lshl_b32 s%d, s%d, 7', sT, sXCD)
    A('s_add_u32 s%d, s%d, %d', sT, sT, FREG)
    A('v_and_b32 v%d, 31, v%d', vT1, vL)
    A('v_lshlrev_b32 v%d, 2, v%d', vT1, vT1)
    A('buffer_load_dword v%d, v%d, s[%d:%d], s%d offen sc1', vT0, vT1, SWS, SWS + 3, sT)
    A('s_waitcnt vmcnt(0)')
    A('v_cmp_ne_u32 vcc, s%d, v%d', sC, vT0)
    A('s_cmp_eq_u64 vcc, 0')
    A('s_cselect_b32 s%d, 1, 0', sFASTF)


class Stream:
    def __init__(self, A, wave, depth, first=0):
        self.A, self.wave, self.depth = A, wave, depth
        self.items = []
        self.issued = 0
        self.known = 0
        self.n = first

    def wait_to(self, left):
        if self.issued - left <= self.known:
            return
        self.A('s_waitcnt vmcnt(%d)', left)
        self.known = self.issued - left
        last = None
        while self.items and self.items[0][1] <= self.known:
            last = self.items.pop(0)[0]
        if last is not None:
            set_stage(self.A, last)

    def room(self, k):
        self.wait_to(max(self.depth - k, 0))
        self.issued += k

    def done(self, name, cnt=None):
        self.n += 1
        assert LP.setdefault(name, (self.wave, self.n)) == (self.wave, self.n), name
        self.items.append((self.n, self.issued))

    def drain(self):
        self.drain_to(0)

    def drain_to(self, keep):
        while len(self.items) > keep:
            self.wait_to(self.issued - self.items[0][1])

    def save(self):
        return (list(self.items), self.issued, self.known)

    def restore(self, s):
        self.items, self.issued, self.known = list(s[0]), s[1], s[2]

    def dma4(self, lds, voffs, srd_, step=None, bits=''):
        A = self.A
        if isinstance(lds, tuple):
            A('s_add_u32 m0, s%d, %d', lds[0], lds[1])
        else:
            A('s_mov_b32 m0, %d', lds)
        self.room(4)
        for u in range(4):
            A('buffer_load_dwordx4 v%d, s[%d:%d], s%d offen offset:%d%s lds', voffs[u], srd_, srd_ + 3, sT, u * 1024,
              bits)
        if step:
            A('s_add_u32 s%d, s%d, %d', sT, sT, step)


def reg4(St, regs, voffs, srd_, step=None):
    St.room(4)
    for u in range(4):
        St.A('buffer_load_dwordx4 %s, v%d, s[%d:%d], s%d offen offset:%d', v(regs[u], 4), voffs[u], srd_, srd_ + 3, sT,
             u * 1024)
    if step:
        St.A('s_add_u32 s%d, s%d, %d', sT, sT, step)


def spill(St, name, regs, lds):
    A = St.A
    assert not St.items
    A('v_add_u32 v%d, %d, v%d', vT1, lds, vO)
    A('s_setprio %d', E('SPRIO', 0))
    for j, r in enumerate(regs):
        A('ds_write_b128 v%d, %s offset:%d', vT1, v(r, 4), j * 1024)
    St.n += 1
    assert LP.setdefault(name, (St.wave, St.n)) == (St.wave, St.n), name
    set_stage(A, St.n)


def off128(A, vW128, vXo=None):
    A('v_lshrrev_b32 v%d, 3, v%d', vW128, vL)
    A('v_mul_u32_u24 v%d, 896, v%d', vW128, vW128)
    A('v_and_b32 v%d, 7, v%d', vT1, vL)
    if vXo is not None:
        A('v_lshl_add_u32 v%d, v%d, 4, v%d', vXo, vT1, vW128)
        spread4(A, vXo, 8 * 896)
    A('v_lshrrev_b32 v%d, 2, v%d', vT0, vL)
    A('v_and_b32 v%d, 4, v%d', vT0, vT0)
    A('v_xor_b32 v%d, v%d, v%d', vT1, vT1, vT0)
    A('v_lshl_add_u32 v%d, v%d, 4, v%d', vW128, vT1, vW128)
    spread4(A, vW128, 8 * 896)


def off256(A, vW256):
    A('v_lshrrev_b32 v%d, 4, v%d', vW256, vL)
    A('v_mul_u32_u24 v%d, 3584, v%d', vW256, vW256)
    A('v_and_b32 v%d, 15, v%d', vT1, vL)
    A('v_lshrrev_b32 v%d, 2, v%d', vT0, vL)
    A('v_and_b32 v%d, 12, v%d', vT0, vT0)
    A('v_xor_b32 v%d, v%d, v%d', vT1, vT1, vT0)
    A('v_lshl_add_u32 v%d, v%d, 4, v%d', vW256, vT1, vW256)
    spread4(A, vW256, 4 * 3584)


def h_stream(A, first):
    wave = 7
    St = Stream(A, wave, E('HDEPTH', 24), first)
    if wave == 7:
        A('s_lshl_b32 s%d, s%d, 17', sB, sTB3)
        A('s_add_u32 s%d, s%d, %d', sB, sB, WS_HB + (0x40000000 if E('ABL', 0) & 128 else 0))
        rot_calc(A, sG, 'w1')
        for u in range(7):
            rot_idx(A, 4 + u, sG, u, 7)
            A('s_lshl_b32 s%d, s%d, 12', 4 + u, 4 + u)
            A('s_add_u32 s%d, s%d, s%d', 4 + u, 4 + u, sB)
            A('s_add_u32 s%d, s%d, 4096', 4 + u, 4 + u)
        A('s_lshl_b32 s%d, s%d, 8', sT2, sTB3)
        A('s_add_u32 s%d, s%d, %d', sT2, sT2, F3)
        A('v_lshlrev_b32 v%d, 2, v%d', vT1, vL)
        A('s_and_b32 s%d, s%d, 1', sC, sFB)
        A('s_lshl_b32 s%d, s%d, 16', sC, sC)
        HALF = E('HHALF', 1)
        sMK = sODD
        A('s_bitcmp1_b32 s%d, 0', sFB)
        A('s_cselect_b32 s%d, %s, 0x3fff3fff', sMK, '0' if HALF else '0x3fff3fff')
        A('s_cselect_b32 s%d, 0x3fff3fff, %s', sMK + 1, '0' if HALF else '0x3fff3fff')
        A('v_mov_b32 v41, v%d', vT1)

        def poll(B, done):
            lo = B.label('P')
            B('%s:', lo)
            B('buffer_load_dword v42, v41, s[%d:%d], s%d offen sc1', SWS, SWS + 3, sM0)
            B('s_waitcnt vmcnt(0)')
            B('v_cmp_ne_u32 vcc, s%d, v42', sTAG)
            spin_guard(B, done)
            B('s_and_b64 vcc, vcc, s[%d:%d]', sMK, sMK + 1)
            B('s_cbranch_scc1 %s', lo)
        A('s_mov_b32 s%d, s%d', sM0, sT2)
        wait_stage(A, C0 + 7, sleep=1)
        stamp(A)
        done = A.label('PD')
        poll(A, done)
        A('%s:', done)
        stamp(A)
        for gi in range(4):
            if gi == 1 and HALF:
                St.room(1)
                A('buffer_load_dword v42, v41, s[%d:%d], s%d offen sc1', SWS, SWS + 3, sM0)
                mark = St.issued
                A('s_mov_b32 s%d, 0x3fff3fff', sMK)
                A('s_mov_b32 s%d, 0x3fff3fff', sMK + 1)
            if gi == 2:
                wait_stage(A, C0 + 8)
                if HALF:
                    St.wait_to(St.issued - mark)
                    ent, back = cold_block(A, poll)
                    A('v_cmp_ne_u32 vcc, s%d, v42', sTAG)
                    A('s_and_b64 vcc, vcc, s[%d:%d]', sMK, sMK + 1)
                    A('s_cbranch_scc1 %s', ent)
                    A('%s:', back)
            if gi:
                A('s_xor_b32 s%d, s%d, %d', sC, sC, (gi ^ (gi - 1)) << 15)
            St.depth = E('HDEPTH0', 24) if gi == 0 else E('HDEPTH', 24)
            for u in range(7):
                A('s_add_u32 s%d, s%d, s%d', sT, 4 + u, sC)
                St.dma4(L_H[gi] + u * 4096, [vO] * 4, SWS, None, LDB)
                if u in HITEMS[gi > 0]:
                    St.done(('h', gi, u))
                if u == (E('HSPOS', 3) if gi == 0 else 0):
                    A('s_add_u32 s%d, s%d, s%d', sT, sB, sC)
                    St.dma4(L_SC0 + gi * 4096, [vO] * 4, SWS, None, ' sc1')
                    St.done(('hs', gi))
        St.drain()
    stamp(A)


def spread4(A, base, step):
    for u in range(1, 4):
        A('v_add_u32 v%d, %d, v%d', base + u, u * (step - 1024), base)


def wtr_base(A):
    A('v_lshrrev_b32 v%d, 5, v%d', vT1, vL)
    A('v_bfe_u32 v%d, v%d, 2, 2', vT0, vL)
    A('v_lshl_add_u32 v%d, v%d, 3, v%d', vT0, vT1, vT0)
    A('v_lshlrev_b32 v%d, 6, v%d', vT0, vT0)
    A('v_bfe_u32 v%d, v%d, 4, 1', vTT, vL)
    A('v_lshl_add_u32 v%d, v%d, 5, v%d', vT0, vTT, vT0)
    A('v_and_b32 v%d, 3, v%d', vTT, vL)
    A('v_lshl_add_u32 v%d, v%d, 3, v%d', vT0, vTT, vT0)
    for pi in range(3):
        A('v_add_u32 v%d, %d, v%d', vWA + pi, L_WP[pi], vT0)
    A('v_lshlrev_b32 v%d, 3, v%d', vCA, vL)
    A('v_add_u32 v%d, %d, v%d', vCA, L_CF, vCA)


def sel_frags(A, vID):
    A('v_lshrrev_b32 v%d, 5, v%d', vT1, vL)
    A('v_and_b32 v%d, 31, v%d', vT0, vL)
    A('v_lshlrev_b32 v%d, 2, v%d', vTT, vT1)
    A('v_sub_u32 v%d, v%d, v%d', vT0, vT0, vTT)
    A('v_mov_b32 v%d, 0x3f80', vTT)
    A('v_mov_b32 v%d, 0x3f800000', vTT + 1)
    for sidx in range(2):
        for rr in range(4):
            m = 16 * sidx + 8 * (rr >> 1) + 2 * (rr & 1)
            A('v_cmp_eq_u32 vcc, %d, v%d', m, vT0)
            A('v_cndmask_b32 v%d, 0, v%d, vcc', vID + 4 * sidx + rr, vTT)
            A('v_cmp_eq_u32 vcc, %d, v%d', m + 1, vT0)
            A('v_cndmask_b32 v%d, v%d, v%d, vcc', vID + 4 * sidx + rr, vID + 4 * sidx + rr, vTT + 1)


def read_w(A, pi, i, buf, sleep=0):
    wait_lp(A, ('W', pi, i), sleep)
    for q in range(4):
        for z in range(2):
            A('ds_read_b64_tr_b16 v[%d:%d], v%d offset:%d', buf + 4 * q + 2 * z, buf + 4 * q + 2 * z + 1,
              vWA + pi, i * 4096 + q * 1024 + z * 256)


def colsum(A, spi):
    vCS, vB_, buf = 40, 44, 48
    A('v_mov_b32 v%d, 0', vCS)
    A('v_mov_b32 v%d, 0', vCS + 1)
    A('s_cmp_eq_u32 s%d, 1', spi)
    A('s_cselect_b32 s%d, 0, %d', sT, L_WP[2])
    A('s_cmp_eq_u32 s%d, 0', spi)
    A('s_cselect_b32 s%d, %d, s%d', sT, L_WP[0], sT)
    assert L_WP[1] == 0
    A('v_add_u32 v%d, s%d, v%d', vB_, sT, vWA + 1)
    A('s_mul_i32 s%d, s%d, 7', sC, spi)
    A('s_add_u32 s%d, s%d, 7', sT2, sC)
    top, lo, ok = A.label('CS'), A.label('W'), A.label('WD')
    A('%s:', top)
    A('s_cmp_gt_u32 s%d, s%d', sPROG, sC)
    A('s_cbranch_scc1 %s', ok)
    prio(A, 0)
    A('%s:', lo)
    A('ds_read_b32 v%d, v%d offset:%d', vPW, vMI, M_PW + 16)
    A('s_waitcnt lgkmcnt(0)')
    A('v_readfirstlane_b32 s%d, v%d', sPROG, vPW)
    spin_guard(A, ok)
    A('s_cmp_gt_u32 s%d, s%d', sPROG, sC)
    again(A, 's_cbranch_scc0', lo)
    prio(A, 1)
    A('%s:', ok)
    for q in range(4):
        for z in range(2):
            A('ds_read_b64_tr_b16 v[%d:%d], v%d offset:%d', buf + 4 * q + 2 * z, buf + 4 * q + 2 * z + 1, vB_,
              q * 1024 + z * 256)
    A('ds_read_b32 v%d, v%d offset:%d', vPW, vMI, M_PW + 16)
    A('v_add_u32 v%d, 4096, v%d', vB_, vB_)
    A('s_add_u32 s%d, s%d, 1', sC, sC)
    for q in range(4):
        A('s_waitcnt lgkmcnt(%d)', 7 - 2 * q)
        for r in range(4):
            A('v_dot2c_f32_bf16 v%d, s%d, v%d', vCS + (r & 1), sONES, buf + 4 * q + r)
    A('s_waitcnt lgkmcnt(0)')
    A('v_readfirstlane_b32 s%d, v%d', sPROG, vPW)
    A('s_cmp_lt_u32 s%d, s%d', sC, sT2)
    A('s_cbranch_scc1 %s', top)
    A('v_add_f32 v%d, v%d, v%d', vCS, vCS, vCS + 1)
    hilo_c(A, vCS, vCS + 2, vT0)
    A('s_lshl_b32 s%d, s%d, 9', sT, spi)
    A('v_add_u32 v%d, s%d, v%d', vB_, sT, vCA)
    A('ds_write_b64 v%d, v[%d:%d]', vB_, vCS + 2, vCS + 3)


ROT = E('ROT', 1)
HITEMS = ((1, 3, 5, 6), (1, 3, 6))
W7ST = 0
LATE = E('LATE', 1)
W2R = E('W2R', 0)


def rot_calc(A, dst, kind):
    if not ROT:
        A('s_mov_b32 s%d, 0', dst)
        return
    if kind == 'w1':
        A('s_and_b32 s%d, s%d, 1', dst, sTB3)
        A('s_mul_i32 s%d, s%d, %d', dst, dst, 4 if LATE else 3)
        mod = 7
    elif kind == 'wo':
        A('s_and_b32 s%d, s%d, 3', dst, sTQ)
        A('s_lshl_b32 s%d, s%d, 1', dst, dst)
        mod = 7
    else:
        A('s_and_b32 s%d, s%d, 3', dst, sTQ)
        A('s_mul_i32 s%d, s%d, 7', dst, dst)
        A('s_lshr_b32 s%d, s%d, 1', dst, dst)
        mod = 14
    A('s_add_u32 s%d, s%d, s%d', dst, dst, sXCD)
    if kind == 'w1' and E('ROTFB', 1):
        A('s_lshr_b32 s%d, s%d, 1', sT, sFB)
        A('s_add_u32 s%d, s%d, s%d', dst, dst, sT)
        A('s_mul_i32 s%d, s%d, 37', sT, dst)
        A('s_lshr_b32 s%d, s%d, 8', sT, sT)
        A('s_mul_i32 s%d, s%d, 7', sT, sT)
        A('s_sub_u32 s%d, s%d, s%d', dst, dst, sT)
        return
    A('s_cmp_ge_u32 s%d, %d', dst, mod)
    A('s_cselect_b32 s%d, %d, 0', sT, mod)
    A('s_sub_u32 s%d, s%d, s%d', dst, dst, sT)


def rot_idx(A, dst, rot, j, mod):
    A('s_add_u32 s%d, s%d, %d', dst, rot, j)
    A('s_cmp_ge_u32 s%d, %d', dst, mod)
    A('s_cselect_b32 s%d, %d, 0', sT2, mod)
    A('s_sub_u32 s%d, s%d, s%d', dst, dst, sT2)


def blk_init(A, sb, sst, kh):
    A('s_and_b32 s%d, s%d, 1', sb, sTQ)
    if isinstance(kh, str):
        A('s_xor_b32 s%d, s%d, %s', sb, sb, kh)
    elif kh:
        A('s_xor_b32 s%d, s%d, 1', sb, sb)
    A('s_lshr_b32 s%d, s%d, 1', sT, sTQ)
    A('s_xor_b32 s%d, s%d, s%d', sT, sT, sXCD)
    A('s_sub_u32 s%d, 6, s%d', sT2, sb)
    A('s_bitcmp1_b32 s%d, 0', sT)
    A('s_cselect_b32 s%d, s%d, s%d', sb, sT2, sb)
    A('s_cselect_b32 s%d, 5, 2', sst)


def blk_next(A, sb, sst):
    A('s_add_u32 s%d, s%d, s%d', sb, sb, sst)
    A('s_cmp_ge_u32 s%d, 7', sb)
    A('s_cselect_b32 s%d, 7, 0', sT2)
    A('s_sub_u32 s%d, s%d, s%d', sb, sb, sT2)


def rest_srds(A):
    A('s_add_u32 s82, s80, %d', FEP)
    A('s_addc_u32 s83, s81, 0')
    A('s_load_dword s%d, s[82:83], 0', sTAG)
    srd(A, SP, 68, H * DH * DH * 2)
    A('s_mul_i32 s%d, s%d, 37', sTQ, sI)
    A('s_lshr_b32 s%d, s%d, 8', sTQ, sTQ)
    A('s_mul_i32 s%d, s%d, 7', sNB, sTQ)
    A('s_sub_u32 s%d, s%d, s%d', sNB, sI, sNB)
    A('s_lshr_b32 s%d, s%d, 1', sTB3, sTQ)
    A('s_mul_i32 s%d, s%d, 14', sFB, sTB3)
    A('s_sub_u32 s%d, s%d, s%d', sFB, sI, sFB)
    A('s_lshl2_add_u32 s%d, s%d, s%d', sTQ, sXCD, sTQ)
    A('s_lshl1_add_u32 s%d, s%d, s%d', sTB3, sXCD, sTB3)
    A('v_lshlrev_b32 v%d, 4, v%d', vO, vL)
    A('s_mov_b32 s%d, 0', sFASTF)
    A('s_mov_b32 s%d, 0x%x', sONES, ONES)
    ABL = E('ABL', 0)
    srd(A, SWO, 70, 0 if ABL & 1 else D * D * 2)
    srd(A, SW1, 74, 0 if ABL & 2 else D * F * 2)
    srd(A, SW2, 76, 0 if ABL & 4 else D * F * 2)
    srd(A, SOUT, 78, S * D * 2)
    srd(A, SWS, 80, WS_SIZE)


def rot_next(A):
    A('s_add_u32 s%d, s%d, 1', sC, sC)
    A('s_cmp_eq_u32 s%d, 7', sC)
    A('s_cselect_b32 s%d, 0, s%d', sC, sC)


def sig_dyn(A, sval):
    A('v_mov_b32 v%d, s%d', vT0, sval)
    A('ds_write_b32 v%d, v%d', vMY, vT0)


def x_offsets(A):
    A('v_lshrrev_b32 v%d, 3, v%d', vT0, vL)
    A('v_mul_u32_u24 v%d, 896, v%d', vT0, vT0)
    A('v_lshrrev_b32 v%d, 4, v%d', vT1, vL)
    A('v_and_b32 v%d, 7, v%d', vXD, vL)
    A('v_xor_b32 v%d, v%d, v%d', vXD, vXD, vT1)
    A('v_xor_b32 v%d, 4, v%d', vXD + 1, vXD)
    A('v_lshl_add_u32 v%d, v%d, 4, v%d', vXD, vXD, vT0)
    A('v_lshl_add_u32 v%d, v%d, 4, v%d', vXD + 1, vXD + 1, vT0)
    A('v_add_u32 v%d, %d, v%d', vXD + 1, 8 * 896 - 1024, vXD + 1)
    A('v_add_u32 v%d, %d, v%d', vXD + 2, 2 * (8 * 896 - 1024), vXD)
    A('v_add_u32 v%d, %d, v%d', vXD + 3, 2 * (8 * 896 - 1024), vXD + 1)
    A('s_mul_i32 s%d, s%d, %d', sXB, sTB, 0 if E('AB2', 0) & 16 else 128 * 896)


def w_offsets(A):
    vW = 40
    A('v_lshrrev_b32 v%d, 2, v%d', vW, vL)
    A('v_mul_u32_u24 v%d, 2688, v%d', vW, vW)
    A('v_and_b32 v%d, 3, v%d', vT1, vL)
    A('v_lshl_add_u32 v%d, v%d, 4, v%d', vW, vT1, vW)
    A('s_mul_i32 s%d, s%d, %d', sT, sH, 0 if E('AB2', 0) & 8 else 56)
    A('s_and_b32 s%d, s%d, 0xfffffff0', sT, sT)
    A('v_add_u32 v%d, s%d, v%d', vW, sT, vW)
    spread4(A, vW, 16 * 2688)


def early_x(A):
    depth = E('XDEPTH', 20)
    wsig = ((depth - 4) // 4) % 4
    lag = (depth - 4 - 4 * wsig) // 16
    A('s_mov_b32 s%d, %d', sG, 1 - lag)
    A('s_mov_b32 m0, %d', L_X + 16384)
    A('s_mov_b32 s%d, s%d', sC, sC0)
    rot_next(A)
    top = A.label('XL')
    A('%s:', top)
    A('s_lshl_b32 s%d, s%d, 7', sT, sC)
    A('s_add_u32 s%d, s%d, s%d', sT, sT, sXB)
    for w in range(4):
        A('s_waitcnt vmcnt(%d)', depth - 4)
        if w == wsig:
            A('s_max_i32 s%d, s%d, 0', sT2, sG)
            sig_dyn(A, sT2)
        for u in range(4):
            A('buffer_load_dwordx4 v%d, s[%d:%d], s%d offen offset:%d lds', vXD + u, SX, SX + 3, sT, u * 1024)
        A('s_add_u32 m0, m0, 4096')
        if w < 3:
            A('s_add_u32 s%d, s%d, %d', sT, sT, 32 * 896)
    rot_next(A)
    A('s_add_u32 s%d, s%d, 1', sG, sG)
    A('s_cmp_lt_i32 s%d, %d', sG, 7 - lag)
    A('s_cbranch_scc1 %s', top)
    stamp(A)
    for n in range(7 - lag, 8):
        A('s_waitcnt vmcnt(%d)', 16 * (7 - n))
        set_stage(A, n)


def early_w(A):
    vW = 40

    def part_loop(pi, depth, floor):
        lag = (depth - 4) // 4
        stamp(A)
        A('s_mov_b32 s%d, s%d', sC, sC0)
        A('s_mov_b32 s%d, %d', sG, 7 * pi - lag)
        A('s_mov_b32 m0, %d', L_WP[pi])
        top = A.label('WL')
        A('%s:', top)
        A('s_mul_i32 s%d, s%d, %d', sT, sC, 64 * 2688)
        A('s_add_u32 s%d, s%d, %d', sT, sT, (1, 2, 0)[pi] * 896)
        A('s_max_i32 s%d, s%d, %d', sT2, sG, floor)
        A('s_waitcnt vmcnt(%d)', depth - 4)
        sig_dyn(A, sT2)
        for u in range(4):
            A('buffer_load_dwordx4 v%d, s[%d:%d], s%d offen offset:%d lds', vW + u, SW, SW + 3, sT, u * 1024)
        A('s_add_u32 m0, m0, 4096')
        rot_next(A)
        A('s_add_u32 s%d, s%d, 1', sG, sG)
        A('s_cmp_lt_i32 s%d, %d', sG, 7 * pi + 7 - lag)
        A('s_cbranch_scc1 %s', top)
        return lag
    if E('WTWAIT', 1):
        A('s_waitcnt vmcnt(0)')
    lag = part_loop(0, E('WDEPTH', 12), 0)
    for n in range(7 - lag, 8):
        A('s_waitcnt vmcnt(%d)', 4 * (7 - n))
        set_stage(A, n)


def gen_h0(A):
    St = Stream(A, 4, E('WDEPTH2', 24), 7)
    vW, vW128, vXo, vW256 = 36, 12, 16, 20
    q4 = lambda b: [b, b + 1, b + 2, b + 3]
    for u in range(4):
        A('v_mov_b32 v%d, v%d', vW + u, 40 + u)
    rest_srds(A)
    off128(A, vW128)
    off256(A, vW256)
    A('s_lshl_b32 s%d, s%d, 7', sB, sNB)
    sR1, sRO = sG, sKH
    rot_calc(A, sR1, 'w1')
    rot_calc(A, sRO, 'wo')
    sBK, sBS = [8, 9], 10
    blk_init(A, sBK[0], sBS, 0)
    blk_init(A, sBK[1], sBS, 1)

    def wpart(pi):
        wait_stage(A, pi)
        if pi == 1 and E('XG2', 4) >= 0:
            wait_lp(A, ('x', E('XG2', 4)))
        stamp(A)
        for i in range(7):
            rot_idx(A, sT, sC0, i, 7)
            A('s_mul_i32 s%d, s%d, %d', sT, sT, 64 * 2688)
            if pi == 1:
                A('s_add_u32 s%d, s%d, %d', sT, sT, 2 * 896)
            St.dma4(L_WP[pi] + i * 4096, q4(vW), SW)
            St.done(('W', pi, i))

    def wq():
        wpart(2)
    wpart(1)
    St.drain_to(E('WVKEEP', 7))
    lend = A.label('LEND')
    act = A.label('ACT')
    A('s_cmp_lt_u32 s%d, 28', sI)
    A('s_cbranch_scc1 %s', act)
    keep, n0 = St.save(), _st['n']
    wq()
    St.drain()
    St.restore(keep)
    St.n = 14
    if E('TOUCH', 1):
        def touch(srd_, base, per_xcd, n):
            A('s_mul_i32 s%d, s%d, %d', sT, sXCD, per_xcd)
            A('s_sub_u32 s%d, s%d, 28', sT2, sI)
            A('s_mul_i32 s%d, s%d, %d', sT2, sT2, n * 8192)
            A('s_add_u32 s%d, s%d, s%d', sT, sT, sT2)
            A('s_add_u32 s%d, s%d, %d', sT, sT, base)
            A('s_mov_b32 s%d, %d', sC, n)
            lo = A.label('T')
            A('%s:', lo)
            A('buffer_load_dword v%d, v%d, s[%d:%d], s%d offen', vW + 1, vW, srd_, srd_ + 3, sT)
            A('s_add_u32 s%d, s%d, 8192', sT, sT)
            A('s_waitcnt vmcnt(%d)', E('TDEPTH', 6))
            A('s_sub_u32 s%d, s%d, 1', sC, sC)
            A('s_cmp_lg_u32 s%d, 0', sC)
            A('s_cbranch_scc1 %s', lo)
        A('v_lshlrev_b32 v%d, 7, v%d', vW, vL)
        if E('W2M', 1) == 2:
            touch(SW2, 0, 4 * 7 * 8192, 7)
        if E('TEARLY', 0):
            wait_stage(A, 3, (5, 6), sleep=2)
        else:
            wait_stage(A, C0 + 5, sleep=2)
        stamp(A)
        if HLATE and not WTO:
            touch(SWS, WS_HB, 262144, 8)
        if E('W2M', 1) == 1:
            touch(SW2, 0, 4 * 7 * 8192, 7)
        stamp(A)
        if not WT1:
            touch(SWS, WS_H1B, 8 * 112 * 1024, 28)
        stamp(A)
        if E('W2WARM', 0):
            touch(SW2, 0, 0, 49)
        stamp(A)
        if E('H1PF', 0) and WT1:
            tag_compute(A)
            A('s_lshl2_add_u32 s%d, s%d, s%d', sG, sXCD, sI)
            A('s_sub_u32 s%d, s%d, 28', sG, sG)
            A('s_lshl_b32 s%d, s%d, 8', sM0, sG)
            A('s_add_u32 s%d, s%d, %d', sM0, sM0, F4)
            A('v_lshlrev_b32 v%d, 2, v%d', vW + 2, vL)
            A('s_bitcmp1_b32 s%d, 0', sG)
            A('s_mov_b32 s8, 0x0f0f0f0f')
            A('s_mov_b32 s9, 0x000f0f0f')
            A('s_cselect_b32 s8, 0xf0f0f0f0, s8')
            A('s_cselect_b32 s9, 0x00f0f0f0, s9')
            for ph in range(E('H1PF', 0)):
                lo, done = A.label('P'), A.label('PD')
                if ph == 0:
                    A('s_mov_b64 exec, s[8:9]')
                else:
                    A('s_mov_b32 exec_hi, 0xffffff')
                A('%s:', lo)
                A('buffer_load_dword v%d, v%d, s[%d:%d], s%d offen sc1', vT1, vW + 2, SWS, SWS + 3, sM0)
                A('s_waitcnt vmcnt(0)')
                A('v_cmp_ne_u32 vcc, s%d, v%d', sTAG, vT1)
                spin_guard(A, done)
                again(A, 's_cbranch_vccnz', lo, 2)
                A('%s:', done)
                A('s_mov_b64 exec, -1')
                A('s_and_b32 s%d, s%d, 1', sT, sG)
                if ph:
                    A('s_xor_b32 s%d, s%d, 1', sT, sT)
                A('s_lshl_b32 s%d, s%d, 13', sT, sT)
                A('s_mul_i32 s%d, s%d, %d', sT2, sG, 224 * 1024)
                A('s_add_u32 s%d, s%d, s%d', sT, sT, sT2)
                A('s_add_u32 s%d, s%d, %d', sT, sT, WS_H1B)
                for b in (1, 5, 2, 4, 0, 6, 3):
                    for g_ in range(2):
                        A('s_add_u32 s%d, s%d, %d', sT2, sT, b * 16384 + g_ * 112 * 1024)
                        A('buffer_load_dword v%d, v%d, s[%d:%d], s%d offen sc1', vW + 1, vW, SWS, SWS + 3, sT2)
    _st['n'] = n0
    A('s_branch %s', lend)
    A('%s:', act)

    def w1_off(c):
        rot_idx(A, sT, sR1, c, 7)
        A('s_mul_i32 s%d, s%d, %d', sT, sT, 64 * 3584)
        if not E('AB2', 0) & 2:
            A('s_lshl_b32 s%d, s%d, 8', sT2, sFB)
            A('s_add_u32 s%d, s%d, s%d', sT, sT, sT2)

    def w1_chunk(c):
        w1_off(c)
        for u in range(4):
            St.dma4(w1_slot(c) + u * 4096, q4(vW256), SW1, 16 * 3584 if u < 3 else None)
        St.done(('w1', c), 16)

    def w2_item(n):
        c, kh = n >> 1, n & 1
        A('s_mul_i32 s%d, s%d, %d', sT, sBK[kh], 128 * 896)
        if not E('AB2', 0) & 4:
            A('s_add_u32 s%d, s%d, s%d', sT, sT, sB)
        if kh or (c & 1):
            A('s_add_u32 s%d, s%d, %d', sT, sT, (kh * 896 + (c & 1) * 64) * 896)
        if c & 1:
            blk_next(A, sBK[kh], sBS)
        for u in range(2):
            St.dma4(w2_slot(n) + u * 4096, q4(vW128), SW2, 32 * 896 if u < 1 else None)
        St.done(('w2', n), 8)

    SR = [24, 28] + list(range(40, 256, 4))

    def staged(c0=0, c1=3):
        for u in range(4 * c0, 4 * c1):
            if u % 4 == 0:
                w1_off((0 if LATE else 4) + u // 4)
            reg4(St, SR[8 + 4 * u:12 + 4 * u], q4(vW256), SW1, 16 * 3584)

    def wo():
        St.drain_to(3)
        wait_stage(A, 3)
        wait_word(A, 5, 1)
        stamp(A)
        for c in range(7):
            rot_idx(A, sC, sRO, c, 7)
            A('s_mul_i32 s%d, s%d, %d', sT, sC, 64 * 896)
            if not E('AB2', 0) & 1:
                A('s_add_u32 s%d, s%d, s%d', sT, sT, sB)
            A('s_lshl_b32 s%d, s%d, 13', sC, sC)
            for u in range(2):
                St.dma4((sC, L_A + u * 4096), q4(vW128), SWO, 32 * 896 if u < 1 else None)
            if c == 2:
                St.depth = E('LDEPTH', 32)
        St.done('wo')
    staged(0, E('NSQ', 2))
    wq()
    staged(E('NSQ', 2), 3)
    wo()
    stamp(A)
    wait_stage(A, 2, (5, 6))
    stamp(A)
    if LATE:
        n3 = St.n
        St.n += 3
        w1_chunk(3)
        St.items, it3 = St.items[:-1], St.items[-1]
        St.drain()
        St.wait_to(16)
        St.n = n3
        for c in range(3):
            spill(St, ('w1', c), SR[8 + 16 * c:24 + 16 * c], w1_slot(c))
        St.n += 1
        St.items = [it3]
        St.drain()
        stamp(A)
        wait_stage(A, C0 + 3)
        wait_word(A, 7, 9)
        wait_stage(A, 1, base=M_CP)
        if LATE == 1:
            wait_stage(A, 1, base=M_LD)
        elif LATE == 2:
            wait_stage(A, 3, (5, 6))
        St.depth = E('LATEDEPTH', 20)
        for c in (4, 5, 6):
            w1_chunk(c)
        St.drain()
    else:
        for c in range(4):
            w1_chunk(c)
        St.drain()
        St.wait_to(0)
        stamp(A)
        wait_stage(A, C0 + 3)
        wait_word(A, 7, 9)
        spill(St, ('w1', 4), SR[8:24], w1_slot(4))
        wait_stage(A, 1, base=M_CP)
        spill(St, ('w1', 5), SR[24:40], w1_slot(5))
        spill(St, ('w1', 6), SR[40:56], w1_slot(6))
    stamp(A)
    wait_stage(A, C0 + 8, sleep=2)
    wait_lp(A, ('h', E('W2AFTER', 2), E('W2AFTERQ', 1)), 1)
    stamp(A)
    St.depth = E('W2DEPTH', 32)
    for n in range(28):
        if n in W2GATE:
            wait_stage(A, C0 + W2GATE[n])
        if n == 4:
            wait_stage(A, 5, (5, 6))
        if n == 19:
            stamp(A)
            St.depth = E('W2DEPTH3', 32)
        if n >= 19:
            m = W2RE[n]
            wait_stage(A, C0 + 13 + (m >> 1), (0, 1) if (m & 1) == 0 else (2, 3))
        w2_item(n)
    St.drain()
    stamp(A)
    A('%s:', lend)
    A('s_waitcnt lgkmcnt(0)')
    stamp_flush(A)
    A('s_endpgm')


def gen_h1(A):
    stamp(A)
    rest_srds(A)
    wtr_base(A)
    tag_compute(A)
    def extras():
        if WARM:
            for srd_, size in ((SWO, D * D * 2), (SW1, D * F * 2), (SW2, D * F * 2)):
                A('s_mul_i32 s%d, s2, %d', sT, size // 256)
                A('v_lshlrev_b32 v%d, 7, v%d', vT1, vL)
                A('s_mov_b64 exec, 0x%x', (1 << ((size // 256 + 127) // 128)) - 1) if size // 256 < 4096 else None
                if size // 256 >= 4096:
                    A('s_mov_b32 exec_hi, 0x%x', (1 << ((size // 256 + 127) // 128 - 32)) - 1)
                A('buffer_load_dword v63, v%d, s[%d:%d], s%d offen', vT1, srd_, srd_ + 3, sT)
                A('s_mov_b64 exec, -1')
        if E('FT', 3) & 2:
            nf = A.label('NF')
            A('s_cmp_lt_u32 s%d, 28', sI)
            A('s_cbranch_scc1 %s', nf)
            A('v_lshlrev_b32 v%d, 7, v%d', vT1, vL)
            A('s_mov_b64 exec, 0xf')
            for base, sh in ((F2, 9), (F3, 9), (F4, 10)):
                A('s_lshl_b32 s%d, s%d, %d', sT, sXCD, sh)
                A('s_add_u32 s%d, s%d, %d', sT, sT, base)
                A('buffer_load_dword v63, v%d, s[%d:%d], s%d offen', vT1, SWS, SWS + 3, sT)
                A('s_mov_b64 exec, 0x%x', 0xf if base == F2 else 0xff)
            A('s_mov_b64 exec, -1')
            A('%s:', nf)
        if E('TOUCH', 1) and not WTO:
            A('s_lshl_b32 s%d, s%d, 18', sT, sXCD)
            A('s_lshl_b32 s%d, s%d, 13', sT2, sI)
            A('s_add_u32 s%d, s%d, s%d', sT, sT, sT2)
            A('v_lshlrev_b32 v%d, 7, v%d', vT1, vL)
            for base in ([WS_OB] if MAP == 0 else []) + ([] if HLATE else [WS_HB]):
                A('s_add_u32 s%d, s%d, %d', sT2, sT, base)
                A('buffer_load_dword v63, v%d, s[%d:%d], s%d offen', vT1, SWS, SWS + 3, sT2)

    if TOUCHAT == 0:
        extras()
    A('s_mov_b32 s%d, 1', sG)
    off256(A, 20)
    rot_calc(A, sXB, 'w1')
    cs, cs2 = A.label('CSL'), A.label('CSM')
    St = Stream(A, 7, E('W7DEPTH', 16), 9)

    def stage7():
        for u in range(4 * W7ST):
            if u % 4 == 0:
                rot_idx(A, sT, sXB, u // 4, 7)
                A('s_mul_i32 s%d, s%d, %d', sT, sT, 64 * 3584)
                A('s_lshl_b32 s%d, s%d, 8', sT2, sFB)
                A('s_add_u32 s%d, s%d, s%d', sT, sT, sT2)
            reg4(St, [64 + 16 * u + 4 * k for k in range(4)], [20, 21, 22, 23], SW1, 16 * 3584)
    A('%s:', cs)
    colsum(A, sG)
    A('s_add_u32 s%d, s%d, 7', sT, sG)
    sig_dyn(A, sT)
    A('s_add_u32 s%d, s%d, 1', sG, sG)
    A('s_cmp_eq_u32 s%d, 3', sG)
    A('s_cbranch_scc1 %s', cs2)
    stamp(A)
    A('s_cmp_ge_u32 s%d, 28', sI)
    A('s_cbranch_scc1 %s', cs)
    stage7()
    A('s_branch %s', cs)
    A('%s:', cs2)
    if TOUCHAT == 2:
        extras()
    stamp(A)
    lend = A.label('LEND')
    A('s_cmp_ge_u32 s%d, 28', sI)
    A('s_cbranch_scc1 %s', lend)
    if W7ST:
        A('s_waitcnt vmcnt(%d)', 1 if TOUCHAT == 2 and not WARM else 0)
        wait_stage(A, 2, (5, 6))
        for c in range(W7ST):
            spill(St, ('w1', c), [64 + 64 * c + 4 * k for k in range(16)], w1_slot(c))
        stamp(A)
    h_stream(A, 9 + W7ST)
    A('%s:', lend)
    A('s_waitcnt lgkmcnt(0)')
    stamp_flush(A)
    A('s_endpgm')


def gen_h23(A):
    vID, vAF, vVF, vAC, vG = 64, 72, 104, 136, 72
    rest_srds(A)
    sTL = sKH
    A('s_sub_u32 s%d, s%d, 5', sTL, sWV)
    skip = A.label('NOST')
    A('s_cmp_eq_u32 s%d, 1', sTL)
    A('s_cbranch_scc1 %s', skip)
    A('s_mul_i32 s%d, s%d, 1568', sT, sH)
    A('s_mov_b32 m0, %d', L_PHI)
    A('buffer_load_dwordx4 v%d, s[%d:%d], s%d offen lds', vO, SP, SP + 3, sT)
    A('buffer_load_dwordx4 v%d, s[%d:%d], s%d offen offset:1024 lds', vO, SP, SP + 3, sT)
    if CODEPF:
        A('s_mul_i32 s%d, s%d, %d', sT, sI, 1280)
        A('v_lshlrev_b32 v%d, 7, v%d', vT1, vL)
        A('v_add_u32 v%d, s%d, v%d', vT1, sT, vT1)
        A('s_mov_b64 exec, 0x3ff')
        A('global_load_dword v72, v%d, s[%d:%d]', vT1, sPC, sPC + 1)
        A('s_mov_b64 exec, -1')
    A('%s:', skip)
    if E('TLB', 0):
        A('v_lshlrev_b32 v%d, 20, v%d', vT1, vL)
        A('s_lshl_b32 s%d, s%d, 7', sT, sI)
        for srd_ in (SWS, SOUT, SWO, SW1, SW2):
            A('buffer_load_dword v73, v%d, s[%d:%d], s%d offen', vT1, srd_, srd_ + 3, sT)
    wtr_base(A)
    sel_frags(A, vID)
    sT16 = sZA
    tag_compute(A, sT16)
    if FAST:
        skip = A.label('NORG')
        A('s_cmp_eq_u32 s%d, 0', sTL)
        A('s_cbranch_scc1 %s', skip)
        A('s_getreg_b32 s%d, hwreg(HW_REG_XCC_ID)', sT2)
        A('s_and_b32 s%d, s%d, 15', sT2, sT2)
        A('s_add_u32 s%d, s%d, s%d', sT2, sT2, sTAG)
        A('v_mov_b32 v%d, s%d', vT0, sT2)
        A('s_lshl_b32 s%d, s%d, 7', sT, sXCD)
        A('s_lshl_b32 s%d, s%d, 2', sT2, sI)
        A('s_add_u32 s%d, s%d, s%d', sT, sT, sT2)
        A('s_add_u32 s%d, s%d, %d', sT, sT, FREG)
        A('s_mov_b64 exec, 1')
        A('buffer_store_dword v%d, v%d, s[%d:%d], s%d offen sc1', vT0, vO, SWS, SWS + 3, sT)
        A('s_mov_b64 exec, -1')
        A('%s:', skip)
    six, both = A.label('SIX'), A.label('BOTH')
    A('s_cmp_eq_u32 s%d, 1', sTL)
    A('s_cbranch_scc1 %s', six)
    colsum(A, sTL)
    A('s_waitcnt vmcnt(0)')
    A('s_branch %s', both)
    A('%s:', six)
    if FAST:
        wait_lp(A, ('x', 6), 2)
        fast_check(A)
        A('v_mov_b32 v%d, s%d', vT0, sFASTF)
        A('ds_write_b32 v%d, v%d offset:%d', vMI, vT0, M_FAST)
    A('%s:', both)
    set_stage(A, 1)
    stamp(A)
    A('s_lshl_b32 s%d, s%d, 11', sT2, sTL)
    A('v_add_u32 v%d, s%d, v%d', vTT, sT2, vO)
    A('v_add_u32 v%d, %d, v%d', vTT + 1, L_KVA, vTT)
    A('v_add_u32 v%d, %d, v%d', vTT + 2, L_KVV, vO)
    A('s_lshl_b32 s%d, s%d, 16', sXB, sH)
    A('s_add_u32 s%d, s%d, s%d', sXB, sXB, sT2)
    A('s_add_u32 s%d, s%d, %d', sXB, sXB, WS_KVP)
    A('s_lshl_b32 s%d, s%d, 12', sB, sTB)
    A('s_add_u32 s%d, s%d, s%d', sB, sB, sXB)
    A('s_lshl_b32 s%d, s%d, 1', sM0, sH)
    A('s_add_u32 s%d, s%d, s%d', sM0, sM0, sTL)
    FSH = E('F1SH', 8)
    A('s_lshl_b32 s%d, s%d, %d', sM0, sM0, 4 + FSH)
    A('s_add_u32 s%d, s%d, %d', sM0, sM0, F1)
    A('s_lshl_b32 s%d, s%d, 2', sFL, sTB)
    A('s_add_u32 s%d, s%d, s%d', sFL, sFL, sM0)
    A('s_lshl_b32 s%d, s%d, %d', sT, sTB, FSH)
    A('s_add_u32 s%d, s%d, s%d', sM0, sM0, sT)
    A('s_add_u32 s%d, s%d, s%d', sPC, SWS, sM0)
    A('s_addc_u32 s%d, s%d, 0', sPC + 1, SWS + 1)
    if E('FT', 3) & 1:
        A('s_load_dword s%d, s[%d:%d], 0 glc', sZB, sPC, sPC + 1)
    A('v_lshlrev_b32 v%d, %d, v%d', vXA, FSH, vL)
    A('v_lshlrev_b32 v%d, 2, v%d', vXA + 1, vL)
    vTA = 152
    wait_stage(A, C0)
    for k in range(8):
        A('ds_read_b128 %s, v%d offset:%d', v(vVF + 4 * k, 4), vTT + 1, (k >> 1) * 4096 + (k & 1) * 1024)
    for k in range(8):
        A('s_waitcnt lgkmcnt(%d)', 7 - k)
        mfma(A, vTA + 16 * (k >> 1), vVF + 4 * k, vID + 4 * (k & 1), (k & 1) == 0)
    for w in range(4):
        cvt8(A, vAF + 8 * w, vTA + 16 * w)

    if E('KVP', 0):
        HELP['hot'] = True
        for j, w in enumerate((0, 2, 1, 3)):
            def v_reads():
                for q in range(2):
                    A('ds_read_b128 %s, v%d offset:%d', v(vVF + 8 * w + 4 * q, 4), vTT + 2, w * 4096 + q * 1024)
                return 2
            wait_word(A, w, C0 + 1, body=v_reads, sleep=1 if j == 0 else 0)
            if j == 3:
                stamp(A)
            for q in range(2):
                A('s_waitcnt lgkmcnt(%d)', 1 - q)
                mfma(A, vAC, vAF + 8 * w + 4 * q, vVF + 8 * w + 4 * q, j == 0 and q == 0)
        HELP['hot'] = False
    else:
        def v_reads():
            for k in range(8):
                A('ds_read_b128 %s, v%d offset:%d', v(vVF + 4 * k, 4), vTT + 2, (k >> 1) * 4096 + (k & 1) * 1024)
            return 8
        wait_stage(A, C0 + 1, body=v_reads)
        stamp(A)
        for k in range(8):
            A('s_waitcnt lgkmcnt(%d)', 7 - k)
            mfma(A, vAC, vAF + 4 * k, vVF + 4 * k, k == 0)
    set_stage(A, 2)
    cvt8(A, vAF, vAC)
    TAGS = E('TAGS', 1)
    if TAGS:
        for q in range(2):
            A('v_and_b32 v%d, 0xffff, v%d', vAF + 4 * q + 3, vAF + 4 * q + 3)
            A('v_or_b32 v%d, s%d, v%d', vAF + 4 * q + 3, sT16, vAF + 4 * q + 3)
    pub_stores(A, [st4(vAF + 4 * q, sB, q * 1024) for q in range(2)], MAP == 3)
    if not TAGS:
        A('s_waitcnt vmcnt(0)')
    A('s_mov_b64 exec, 0xffff')
    two_ways(A, lambda B, bits: B('buffer_store_dword v%d, v%d, s[%d:%d], s%d offen%s', vTAG, vXA, SWS, SWS + 3, sFL,
                                  bits), MAP == 3)
    A('s_mov_b64 exec, -1')
    stamp(A)
    sRDY, sPND, sRET = sHI, sHI + 1, sPADL
    base = 68 if STAMPS else 72
    pol = A.label('POLL')
    B = sub(A)
    lo, out = B.label('P'), B.label('PD')
    B('%s:', pol)
    B('%s:', lo)
    if E('PSLEEP', 0):
        B('s_sleep %d', E('PSLEEP', 0))
    if E('SPOLL', 1) and MAP == 0:
        B('s_load_dwordx16 s[%d:%d], s[%d:%d], 0 glc', base, base + 15, sPC, sPC + 1)
        B('s_mov_b32 s%d, 0', sRDY)
        B('s_waitcnt lgkmcnt(%d)', E('PPIPE', 8))
        for p_ in range(15, -1, -1):
            B('s_cmp_eq_u32 s%d, s%d', base + p_, sTAG)
            B('s_addc_u32 s%d, s%d, s%d', sRDY, sRDY, sRDY)
    else:
        B('s_mov_b64 exec, 0xffff')
        B('buffer_load_dword v%d, v%d, s[%d:%d], s%d offen sc1', vT0, vXA + 1, SWS, SWS + 3, sM0)
        B('s_waitcnt vmcnt(0)')
        B('v_cmp_eq_u32 vcc, s%d, v%d', sTAG, vT0)
        B('s_mov_b64 exec, -1')
        B('s_mov_b32 s%d, vcc_lo', sRDY)
    B('s_sub_u32 s%d, s%d, 1', sSPIN, sSPIN)
    B('s_cselect_b32 s%d, -1, s%d', sRDY, sRDY)
    B('s_and_b32 s%d, s%d, s%d', sRDY, sRDY, sPND)
    B('s_cbranch_scc0 %s', lo)
    B('s_setpc_b64 s[%d:%d]', sRET, sRET + 1)
    over = A.label('OV')
    A('s_not_b32 s%d, s%d', base, sTAG)
    A('s_mov_b32 s%d, s%d', base + 1, base)
    for k in range(2, 16, 2):
        A('s_mov_b64 s[%d:%d], s[%d:%d]', base + k, base + k + 1, base, base + 1)
    A('s_branch %s', over)
    A.lines += B.lines
    A('%s:', over)
    A('s_mov_b32 s%d, 0', sRDY)
    A('s_mov_b32 s%d, 0xffff', sPND)
    vCK = vXA + 2
    A('v_mov_b32 v%d, 0', vCK)
    A('s_nop 1')
    vG = [72 + 4 * k for k in range(16)] + [152 + 4 * k for k in range(16)]
    GD = E('GLAG', 8)

    def gmm(k, issued):
        for q in range(2):
            A('s_waitcnt vmcnt(%d)', 2 * issued - (2 * k + q) - 1)
            mfma(A, vAC, vID + 4 * q, vG[2 * k + q], k == 0 and q == 0)
            if TAGS:
                A('v_xor_b32 v%d, s%d, v%d', vCK + 1, sT16, vG[2 * k + q] + 3)
                A('v_or_b32 v%d, v%d, v%d', vCK, vCK, vCK + 1)
    for k in range(16):
        A('s_getpc_b64 s[%d:%d]', sRET, sRET + 1)
        A('s_cmp_eq_u32 s%d, 0', sRDY)
        A('s_cbranch_scc1 %s', pol)
        A('s_ff1_i32_b32 s%d, s%d', sT, sRDY)
        A('s_bitset0_b32 s%d, s%d', sRDY, sT)
        A('s_bitset0_b32 s%d, s%d', sPND, sT)
        A('s_lshl_b32 s%d, s%d, 12', sT, sT)
        A('s_add_u32 s%d, s%d, s%d', sT, sT, sXB)
        if E('ABL', 0) & 32:
            A('s_mov_b32 s%d, s%d', sT, sB)
        for q in range(2):
            A('buffer_load_dwordx4 %s, v%d, s[%d:%d], s%d offen offset:%d sc1', v(vG[2 * k + q], 4), vO, SWS, SWS + 3,
              sT, q * 1024)
        if k == E('GST', 15):
            stamp(A)
        if k >= GD:
            gmm(k - GD, k + 1)
    for k in range(16 - GD, 16):
        gmm(k, 16)
    if TAGS:
        ok = A.label('TOK')
        A('v_cmp_lt_u32 vcc, 0xffff, v%d', vCK)
        spin_guard(A, ok)
        A('s_nop 15')
        A('s_cbranch_vccnz %s', over)
        A('%s:', ok)
    A('v_add_u32 v%d, %d, v%d', vTT, L_EX, vTT)
    cvt8(A, 72, vAC)
    for q in range(2):
        A('ds_write_b128 v%d, %s offset:%d', vTT, v(72 + 4 * q, 4), q * 1024)
    set_stage(A, 3)
    stamp(A)
    lend = A.label('LEND')
    A('s_cmp_ge_u32 s%d, 28', sI)
    A('s_cbranch_scc1 %s', lend)
    A('v_lshlrev_b32 v%d, 2, v%d', vCA, vL)
    A('v_add_u32 v%d, %d, v%d', vTT + 2, L_EX, vO)
    wait_stage(A, C0 + 7, sleep=2)
    HELP['hot'] = bool(E('STHOT', 0))
    l5 = A.label('S5')
    A('s_cmp_eq_u32 s%d, 0', sTL)
    A('s_cbranch_scc1 %s', l5)
    for gi in (0, 2, 1, 3):
        if gi == 1:
            A('s_branch %s', lend)
            A('%s:', l5)
        wait_lp(A, ('hs', gi), 1)
        if E('STPRIO', 2) != 2:
            A('s_setprio %d', E('STPRIO', 2))
        base = L_SC0 + gi * 4096
        for q in range(7):
            A('ds_read2st64_b32 v[%d:%d], v%d offset0:%d offset1:%d', 72 + 2 * q, 73 + 2 * q, vCA,
              base // 256 + 2 * q, base // 256 + 2 * q + 1)
        A('s_waitcnt lgkmcnt(0)')
        for q in range(2, 14):
            A('v_add_f32 v%d, v%d, v%d', 72 + (q & 1), 72 + (q & 1), 72 + q)
        A('v_add_f32 v%d, v72, v73', vTT)
        ln_finish(A, vTT, vTT + 1, vNM, vRS)
        hilo_m(A, vNM, 88, vT0)
        A('v_mul_f32 v90, v%d, v%d', vTT + 1, vRS)
        A('v_mul_f32 v91, 0x%x, v%d', LOG2E ^ 0x80000000, vRS)
        A('ds_write_b128 v%d, v[88:91] offset:%d', vTT + 2, gi * 1024)
        set_stage(A, 4 + gi // 2)
    HELP['hot'] = False
    A('%s:', lend)
    A('s_waitcnt lgkmcnt(0)')
    stamp_flush(A)
    A('s_endpgm')


def refresh_routines(A):
    for w in (7, 4):
        A('REFRESH_%d:', w)
        if w == 5:
            A('ds_read_b32 v%d, v%d', vPW, vCA)
        else:
            A('ds_read_b32 v%d, v%d offset:%d', vPW, vMI, M_PW + 4 * w)
        if E('CSLP', 0):
            A('s_mov_b32 vcc_hi, s%d', CACHE[w])
        A('s_waitcnt lgkmcnt(0)')
        A('v_readfirstlane_b32 s%d, v%d', CACHE[w], vPW)
        if E('CSLP', 0):
            A('s_cmp_lg_u32 vcc_hi, s%d', CACHE[w])
            A('s_cbranch_scc1 REFD_%d', w)
            A('s_sleep %d', E('CSLP', 0))
            A('REFD_%d:', w)
        A('s_sub_u32 s%d, s%d, 1', sSPIN, sSPIN)
        A('s_cselect_b32 s%d, -1, s%d', CACHE[w], CACHE[w])
        A('s_setpc_b64 s[%d:%d]', sPC, sPC + 1)


def gen_compute(A):
    vPH, vID, vWF, vAC, vPK = 40, 48, 56, 88, 120
    vMF, vCF = 136, 140
    vE = vWF
    vAC2 = vAC + 16
    vX = vXR
    A('s_setprio %d', E('CPRIO', 1))
    rest_srds(A)
    A('s_lshl_b32 s%d, s%d, 12', sM0, sWV)
    A('v_and_b32 v%d, 31, v%d', vT0, vL)
    A('v_lshlrev_b32 v%d, 7, v%d', vTT, vT0)
    A('v_add_u32 v%d, s%d, v%d', vTT, sM0, vTT)
    A('v_bfe_u32 v%d, v%d, 1, 3', vT0, vL)
    A('v_lshrrev_b32 v%d, 5, v%d', vT1, vL)
    A('v_xor_b32 v%d, v%d, v%d', vT0, vT0, vT1)
    for q in range(4):
        A('v_xor_b32 v%d, %d, v%d', vXA + q, 2 * q, vT0)
        A('v_lshl_add_u32 v%d, v%d, 4, v%d', vXA + q, vXA + q, vTT)
    wtr_base(A)
    for r in (vSM, vSM + 1, vSQ, vSQ + 1, vMF + 2, vMF + 3, vCF + 2, vCF + 3):
        A('v_mov_b32 v%d, 0', r)
    A('s_mov_b32 s%d, 0', sHI)
    A('s_mov_b32 s%d, -1', sHI + 1)
    A('s_bitcmp1_b32 s%d, 0', sH)
    A('s_cselect_b32 s%d, 0xf, 0xf0000000', sPADL)
    A('s_mov_b32 s%d, s%d', sPADL + 1, sPADL)
    A('s_cselect_b32 s%d, -1, 0', sZA)
    A('s_mov_b32 s%d, 0', sZA + 1)
    A('s_mov_b32 s%d, 0', sZB)
    A('s_cselect_b32 s%d, 0, -1', sZB + 1)
    A('s_cselect_b64 s[%d:%d], -1, 0', sODD, sODD + 1)
    vPA = vRA
    A('v_bfe_u32 v%d, v%d, 2, 2', vT0, vL)
    A('v_lshrrev_b32 v%d, 5, v%d', vT1, vL)
    A('v_lshl_add_u32 v%d, v%d, 2, v%d', vT0, vT1, vT0)
    A('v_mul_u32_u24 v%d, 56, v%d', vT0, vT0)
    A('v_and_b32 v%d, 3, v%d', vT1, vL)
    A('v_bfe_u32 v%d, v%d, 4, 1', vTT, vL)
    A('v_lshl_add_u32 v%d, v%d, 2, v%d', vT1, vTT, vT1)
    A('v_min_u32 v%d, 6, v%d', vT1, vT1)
    A('v_lshl_add_u32 v%d, v%d, 3, v%d', vT0, vT1, vT0)
    A('s_and_b32 s%d, s%d, 1', sT, sH)
    A('s_mul_i32 s%d, s%d, 224', sT, sT)
    A('s_sub_u32 s%d, %d, s%d', sT, L_PHI, sT)
    A('v_add_u32 v%d, s%d, v%d', vPA, sT, vT0)
    tag_compute(A)

    def mm1(B, acc, i, q, swap):
        buf = vWF + 16 * (i & 1)
        xf, wf = vX + (4 * i + q) * 4, buf + 4 * q
        if swap:
            mfma(B, acc, xf, wf, i == 0 and q == 0)
        else:
            mfma(B, acc, wf, xf, i == 0 and q == 0)

    def rw2(Q, pi, i, q):
        buf = vWF + 16 * (i & 1)
        for z in range(2):
            Q.op(('w', i, q), 'ds_read_b64_tr_b16 v[%d:%d], v%d offset:%d', buf + 4 * q + 2 * z, buf + 4 * q + 2 * z + 1,
                 vWA + pi, i * 4096 + q * 1024 + z * 256)

    def early(Q, w, reads):
        Q.op('ce', 'ds_read_b32 v%d, v%d offset:%d', vPK_ + 1, vMI, M_PW + 4 * w)
        for r in reads:
            Q.op('ce', r)

    def late(Q, w, n, reads):
        def slow(B, back):
            def body():
                for r in reads:
                    B(r)
                return 0
            wait_word(B, w, n, body=body)
        Q.A = A
        Q.wait('ce')
        A('v_readfirstlane_b32 s%d, v%d', sT, vPK_ + 1)
        A('s_cmp_ge_u32 s%d, %d', sT, n)
        if w == 5:
            ent, back = cold_block(A, slow)
            A('s_cbranch_scc0 %s', ent)
        else:
            back = A.label('LT')
            A('s_cbranch_scc1 %s', back)
            slow(A, back)
        A('%s:', back)

    def cf_rd(pi):
        return 'ds_read_b64 v[%d:%d], v%d offset:%d' % (vCF, vCF + 1, vCA, pi * 512)
    kreads = [cf_rd(0)] + ['ds_read_b64_tr_b16 v[%d:%d], v%d offset:%d' % (
        vPH + 4 * sidx + 2 * z, vPH + 4 * sidx + 2 * z + 1, vPA, (16 * sidx + 8 * z) * 56)
        for sidx in range(2) for z in range(2)]

    vXH = vXD
    for q in range(4):
        A('v_add_u32 v%d, 0x10000, v%d', vXH + q, vXA + q)
    Q = LdsQ(A)
    for i in range(7):
        if i:
            stamp(A, 'k')
        if i == 0:
            A('s_waitcnt vmcnt(0)')
        else:
            wait_lp(A, ('x', i))
        stamp(A, 'k')
        for q in range(4):
            Q.op(('x', i), 'ds_read_b128 %s, v%d offset:%d', v(vX + (4 * i + q) * 4, 4), (vXA if i < 4 else vXH) + q,
                 (i & 3) * 16384)
        if i in (1, 3):
            Q.stage((i + 1) // 2)
        wait_lp(A, ('W', 0, i))
        for q in range(4):
            if i > 0:
                Q.wait(('w', i - 1, q))
                mm1(A, vAC, i - 1, q, False)
            rw2(Q, 0, i, q)
        if i < 6:
            Q.op('pk2', 'ds_read_b128 v[%d:%d], v%d offset:%d', vTT, vTT + 3, vMI, M_PW + 16)
        Q.wait(('x', i))
        for r in range(16):
            x = vX + 16 * i + r
            A('v_dot2c_f32_bf16 v%d, s%d, v%d', vSM + (r & 1), sONES, x)
            A('v_dot2c_f32_bf16 v%d, v%d, v%d', vSQ + (r & 1), x, x)
        if i < 6:
            Q.wait('pk2')
            A('v_readfirstlane_b32 s%d, v%d', sPROG, vTT)
            A('v_readfirstlane_b32 s%d, v%d', sPROG1, vTT + 3)
    Q.stage(3)
    early(Q, 5, kreads)
    B = sub(A)
    B('v_add_f32 v%d, v%d, v%d', vSM, vSM, vSM + 1)
    B('v_add_f32 v%d, v%d, v%d', vSQ, vSQ, vSQ + 1)
    B('v_permlane32_swap_b32 v%d, v%d', vSM, vSQ)
    B('v_add_f32 v%d, v%d, v%d', vT0, vSM, vSQ)
    ln_finish(B, vT0, vT1, vNM, vRS)
    hilo_m(B, vNM, vMF, vT0)
    B('v_mul_f32 v%d, 0x%x, v%d', vSC, LOG2E, vRS)
    M = sub(A)
    Q.A = M
    for q in range(4):
        Q.wait(('w', 6, q))
        mm1(M, vAC, 6, q, False)
    A.lines += merge(M.lines, [[l] for l in B.lines], 0, 4)

    stamp(A, 'v')
    late(Q, 5, 1, kreads)
    stamp(A)
    stamp(A, 'v')

    def project(mid=None):
        mfma(A, vAC, vCF, vMF)
        if mid:
            mid()
        cvt8(A, vPK, vAC)
        mfma(A, vAC, vPH, vPK, True)
        mfma(A, vAC, vPH + 4, vPK + 4)

    def mid_k():
        A('v_and_b32 v%d, 31, v%d', vT0, vL)
        A('s_lshl_b32 s%d, s%d, 7', sT, sWV)
        A('s_add_u32 s%d, s%d, %d', sT, sT, L_RSTD)
        A('v_lshl_add_u32 v%d, v%d, 2, s%d', vT0, vT0, sT)
        A('s_waitcnt lgkmcnt(0)')
        A('ds_write_b32 v%d, v%d', vT0, vRS)
        A('v_lshrrev_b32 v%d, 5, v%d', vRA, vL)
        A('v_lshl_add_u32 v%d, v%d, 4, s%d', vRA, vRA, sT)
        for r in (0, 1):
            A('v_cndmask_b32 v%d, v%d, 0, s[%d:%d]', vPH + r, vPH + r, sZA, sZA + 1)
            A('v_cndmask_b32 v%d, v%d, 0, s[%d:%d]', vPH + 6 + r, vPH + 6 + r, sZB, sZB + 1)

    def gemm_head(B, pi):
        Q = LdsQ(B)
        wait_lp(B, ('W', pi, 0))
        for q in range(4):
            rw2(Q, pi, 0, q)
        return Q

    def gemm_part(B, acc, pi, swap, last_stage=None, Q=None):
        if Q is None:
            Q = gemm_head(B, pi)
        for i in range(7):
            if i == 6 and last_stage:
                Q.stage(last_stage)
            if i == 6:
                early(Q, 7, [cf_rd(pi)])
            if pi == 1 and i in (0, 2, 4, 6):
                stamp(B, 'v')
            for q in range(4):
                Q.wait(('w', i, q))
                if q == 0:
                    Q.take(4)
                mm1(B, acc, i, q, swap)
                if i < 6:
                    if q == 0:
                        wait_lp(B, ('W', pi, i + 1))
                        if i < 5:
                            Q.peek(4)
                    rw2(Q, pi, i + 1, q)
        late(Q, 7, 7 + pi, [cf_rd(pi)])

    vOW = vXD
    A('v_add_u32 v%d, s%d, v%d', vOW, sM0, vO)
    A('v_add_u32 v%d, %d, v%d', vOW, L_KVA, vOW)
    project(mid_k)
    stamp(A, 'v')
    B = sub(A)
    softmax_pm(B, vAC, vSC, vPK, vTT)
    A.lines += B.lines[:-30]
    Q = gemm_head(A, 1)
    A.lines += B.lines[-30:]
    for q, src in enumerate((vAC, vAC + 4, vPK, vPK + 4)):
        Q.op('pw', 'ds_write_b128 v%d, %s offset:%d', vOW, v(src, 4), q * 1024)
    Q.stage(C0)
    for q in range(4):
        Q.op('rs', 'ds_read_b128 %s, v%d offset:%d', v(vAC + 4 * q, 4), vRA, q * 32)
    stamp(A, 'v')
    gemm_part(A, vAC2, 1, True, None, Q)
    stamp(A, 'v')

    mfma(A, vAC2, vMF, vCF)
    A('v_mov_b32 v%d, 0x%x', vT1, ONES)
    for r in range(0, 16, 2):
        A('v_pk_mul_f32 v[%d:%d], v[%d:%d], v[%d:%d]', vAC2 + r, vAC2 + r + 1, vAC2 + r, vAC2 + r + 1, vAC + r,
          vAC + r + 1)
    cvt8(A, vPK, vAC2)
    for r in range(8):
        A('v_cndmask_b32 v%d, v%d, v%d, s[%d:%d]', vPK + r, vPK + r, vT1, sPADL, sPADL + 1)
    for q in range(2):
        A('ds_write_b128 v%d, %s offset:%d', vOW, v(vPK + 4 * q, 4), L_KVV - L_KVA + q * 1024)
    set_stage(A, C0 + 1)
    stamp(A)
    stamp(A, 'v')
    gemm_part(A, vAC, 2, False, C0 + 3)
    vHP, vRX, vRO = 120, 48, vSM + 1

    def unpack_hp(src=120):
        for r in range(8):
            A('v_lshlrev_b32 v%d, 16, v%d', vAC + 2 * r, src + r)
            A('v_and_b32 v%d, 0xffff0000, v%d', vAC + 2 * r + 1, src + r)
    A('s_and_b32 s%d, s%d, 1', sG, sWV)
    A('s_lshr_b32 s%d, s%d, 1', sKH, sWV)
    A('s_lshl_b32 s%d, s%d, 1', sT, sTQ)
    A('s_add_u32 s%d, s%d, s%d', sG, sG, sT)
    A('v_and_b32 v%d, 31, v%d', vRO, vL)
    A('v_mul_u32_u24 v%d, 896, v%d', vRO, vRO)
    A('v_lshrrev_b32 v%d, 5, v%d', vT1, vL)
    A('v_lshl_add_u32 v%d, v%d, 4, v%d', vRO, vT1, vRO)
    A('s_mul_i32 s%d, s%d, %d', sT, sG, 32 * 896)
    A('s_lshl_b32 s%d, s%d, 7', sT2, sNB)
    A('s_add_u32 s%d, s%d, s%d', sT, sT, sT2)
    A('s_lshl_b32 s%d, s%d, 6', sT2, sKH)
    A('s_add_u32 s%d, s%d, s%d', sT, sT, sT2)
    A('v_add_u32 v%d, s%d, v%d', vRO, sT, vRO)
    for q in range(2):
        A('buffer_load_dwordx4 %s, v%d, s[%d:%d], 0 offen offset:%d', v(vRX + 4 * q, 4), vRO, SX, SX + 3, q * 32)

    project()
    softmax_pm(A, vAC, vSC, vPK, vTT)
    vQF = [vAC, vAC + 4, vPK, vPK + 4]
    stamp(A)
    vW1A = vXA
    A('v_bfe_u32 v%d, v%d, 2, 2', vT0, vL)
    A('v_lshrrev_b32 v%d, 5, v%d', vT1, vL)
    A('v_lshl_add_u32 v%d, v%d, 2, v%d', vT1, vT1, vT0)
    A('v_lshlrev_b32 v%d, 8, v%d', vW1A, vT1)
    A('v_lshlrev_b32 v%d, 7, v%d', vWA, vT1)
    A('v_xor_b32 v%d, s%d, v%d', vT0, sWV, vT0)
    A('v_lshl_add_u32 v%d, v%d, 6, v%d', vW1A, vT0, vW1A)
    A('v_bfe_u32 v%d, v%d, 4, 1', vT1, vL)
    A('v_lshlrev_b32 v%d, 5, v%d', vT1, vT1)
    A('v_and_b32 v%d, 3, v%d', vT0, vL)
    A('v_lshl_add_u32 v%d, v%d, 3, v%d', vT1, vT0, vT1)
    A('v_add_u32 v%d, v%d, v%d', vW1A, vW1A, vT1)
    A('v_add_u32 v%d, 0x8000, v%d', vW1A + 1, vW1A)
    A('v_add_u32 v%d, v%d, v%d', vWA, vWA, vT1)
    A('v_bfe_u32 v%d, v%d, 3, 1', vT1, vL)
    A('v_lshl_add_u32 v%d, v%d, 6, v%d', vWA, vT1, vWA)

    def w1_copy(c):
        wait_lp(A, ('w1', c))
        for q in range(4):
            for z in range(2):
                off = w1_slot(c) + (16 * q + 8 * z) * 256
                base = vW1A
                if off >= 0x8000:
                    off -= 0x8000
                    base += 1
                r = vXR + (4 * c + q) * 4 + 2 * z
                A('ds_read_b64_tr_b16 v[%d:%d], v%d offset:%d', r, r + 1, base, off)

    sCPD = sXB
    A('s_mov_b32 s%d, 0', sCPD)

    def try_copy(block):
        skip = A.label('NC')
        A('s_cmp_lg_u32 s%d, 0', sCPD)
        A('s_cbranch_scc1 %s', skip)
        if not block:
            ow = LP[('w1', 1)][0]
            if block is not None:
                A('ds_read_b32 v%d, v%d offset:%d', vPW + ow - 4, vMI, M_PW + 4 * ow)
                A('s_waitcnt lgkmcnt(0)')
            A('v_readfirstlane_b32 s%d, v%d', CACHE[ow], vPW + ow - 4)
            A('s_cmp_lt_u32 s%d, %d', CACHE[ow], LP[('w1', 1)][1])
            A('s_cbranch_scc1 %s', skip)
        w1_copy(0)
        w1_copy(1)
        A('s_mov_b32 s%d, 1', sCPD)
        A('v_mov_b32 v%d, 1', vT0)
        A('ds_write_b32 v%d, v%d offset:%d', vMY, vT0, M_CP)
        A('%s:', skip)
    vCS = vSQ

    A('s_lshl_b32 s%d, s%d, 2', sFL, sTB)
    A('s_add_u32 s%d, s%d, s%d', sFL, sFL, sWV)
    A('s_lshl_b32 s%d, s%d, 4', sFL, sFL)
    A('s_add_u32 s%d, s%d, s%d', sFL, sFL, sH)
    A('s_lshl_b32 s%d, s%d, 11', sB, sFL)
    A('s_add_u32 s%d, s%d, %d', sB, sB, WS_OB)
    if MAP == 0:
        A('s_lshl_b32 s%d, s%d, 2', sFL, sFL)
        A('s_add_u32 s%d, s%d, %d', sFL, sFL, F2)
    else:
        A('s_lshr_b32 s%d, s%d, 3', sFL, sFL)
        A('s_lshl_b32 s%d, s%d, 10', sFL, sFL)
        A('s_and_b32 s%d, s%d, 7', sT, sH)
        A('s_lshl_b32 s%d, s%d, 2', sT, sT)
        A('s_add_u32 s%d, s%d, s%d', sFL, sFL, sT)
        A('s_add_u32 s%d, s%d, %d', sFL, sFL, F2X)
    vEX = vXD + 1
    A('v_add_u32 v%d, %d, v%d', vEX, L_EX, vO)

    def ex_reads():
        for q in range(4):
            A('ds_read_b128 %s, v%d offset:%d', v(vWF + 4 * q, 4), vEX, q * 1024)
        return 4
    lo, done = A.label('W'), A.label('WD')
    A('%s:', lo)
    A('ds_read_b128 v[%d:%d], v%d offset:%d', vPW, vPW + 3, vMI, M_PW + 16)
    A('ds_read_b32 v%d, v%d offset:%d', vPK_, vMI, M_FAST)
    ex_reads()
    A('s_waitcnt lgkmcnt(4)')
    A('v_readfirstlane_b32 s%d, v%d', sFASTF, vPK_)
    A('v_min_u32 v%d, v%d, v%d', vPW + 1, vPW + 1, vPW + 2)
    A('v_readfirstlane_b32 s%d, v%d', sT, vPW + 1)
    spin_guard(A, done)
    A('s_cmp_ge_u32 s%d, 3', sT)
    A('s_cbranch_scc1 %s', done)
    try_copy(None)
    if E('CSLP', 0):
        A('s_sleep %d', E('CSLP', 0))
    A('s_branch %s', lo)
    A('%s:', done)
    stamp(A)
    for q in range(4):
        A('s_waitcnt lgkmcnt(%d)', 3 - q)
        mfma(A, vAC2, vWF + 4 * q, vQF[q], q == 0)
    A('v_cndmask_b32 v%d, v%d, v%d, s[%d:%d]', vT0, vAC2 + 12, vAC2, sODD, sODD + 1)
    A('v_mov_b32 v%d, v%d', vT1, vT0)
    A('v_permlane32_swap_b32 v%d, v%d', vT0, vT1)
    A('v_cndmask_b32 v%d, v%d, v%d, s[%d:%d]', vTT, vT1, vT0, sODD, sODD + 1)
    A('v_add_f32 v%d, 0x%x, v%d', vTT, 0x358637bd, vTT)
    A('v_rcp_f32 v%d, v%d', vTT, vTT)
    for r in range(0, 16, 2):
        A('v_pk_mul_f32 v[%d:%d], v[%d:%d], v[%d:%d] op_sel_hi:[1,0]', vAC2 + r, vAC2 + r + 1, vAC2 + r, vAC2 + r + 1,
          vTT, vTT + 1)
    cvt8(A, vPK, vAC2)
    for r in (0, 1):
        A('v_cndmask_b32 v%d, v%d, 0, s[%d:%d]', vPK + r, vPK + r, sZA, sZA + 1)
        A('v_cndmask_b32 v%d, v%d, 0, s[%d:%d]', vPK + 6 + r, vPK + 6 + r, sZB, sZB + 1)
    pub_stores(A, [st4(vPK + 4 * q, sB, q * 1024) for q in range(2)], MAP == 0 and not WTO)
    A('s_waitcnt vmcnt(2)')
    for q in range(2):
        A('v_permlane32_swap_b32 v%d, v%d', vRX + 4 * q, vRX + 4 * q + 2)
        A('v_permlane32_swap_b32 v%d, v%d', vRX + 4 * q + 1, vRX + 4 * q + 3)
    unpack_hp(vRX)
    A('s_lshl_b32 s%d, s%d, 6', sT, sKH)
    A('v_xor_b32 v%d, s%d, v%d', vWA, sT, vWA)
    A('v_xor_b32 v%d, 64, v%d', vWA + 1, vWA)
    A('s_mul_i32 s%d, s%d, %d', sT, sKH, 224 * 128)
    A('s_add_u32 s%d, s%d, %d', sT, sT, L_A)
    A('v_add_u32 v%d, s%d, v%d', vWA + 2, sT, vWA)
    A('v_add_u32 v%d, s%d, v%d', vWA + 3, sT, vWA + 1)
    vSW, vSR, vPP = vXA + 2, vXA + 3, vSM
    A('s_and_b32 s%d, s%d, 1', sC, sWV)
    A('s_lshl_b32 s%d, s%d, 12', sC, sC)
    A('v_add_u32 v%d, s%d, v%d', vSW, sC, vO)
    A('s_cmp_eq_u32 s%d, 0', sKH)
    A('s_cselect_b32 s%d, %d, %d', sT, L_SC0 >> 12, L_SC1 >> 12)
    A('s_cselect_b32 s%d, %d, %d', sT2, L_SC1 >> 12, L_SC0 >> 12)
    A('s_lshl_b32 s%d, s%d, 12', sT, sT)
    A('s_lshl_b32 s%d, s%d, 12', sT2, sT2)
    A('v_add_u32 v%d, s%d, v%d', vSR, sT2, vSW)
    A('v_add_u32 v%d, s%d, v%d', vSW, sT, vSW)
    A('v_xor_b32 v%d, 8, v%d', vPP, vMY)
    A('s_lshl_b32 s%d, s%d, 15', sB, sG)
    A('s_lshl_b32 s%d, s%d, 14', sT, sKH)
    A('s_add_u32 s%d, s%d, s%d', sB, sB, sT)
    A('s_add_u32 s%d, s%d, %d', sB, sB, WS_OB)
    if MAP == 0:
        A('s_lshl_b32 s%d, s%d, 6', sC, sG)
        A('s_lshl_b32 s%d, s%d, 5', sT, sKH)
        A('s_add_u32 s%d, s%d, s%d', sC, sC, sT)
        A('s_add_u32 s%d, s%d, %d', sC, sC, F2)
        pub_flag(A, sFL, True)
    else:
        A('s_lshl_b32 s%d, s%d, 11', sC, sG)
        A('s_lshl_b32 s%d, s%d, 10', sT, sKH)
        A('s_add_u32 s%d, s%d, s%d', sC, sC, sT)
        A('s_lshl_b32 s%d, s%d, 7', sT, sNB)
        A('s_add_u32 s%d, s%d, s%d', sC, sC, sT)
        A('s_add_u32 s%d, s%d, %d', sC, sC, F2X)
        A('v_lshlrev_b32 v%d, 7, v%d', vT1, vL)
        if not E('NODRAIN2', 0):
            A('s_waitcnt vmcnt(0)')
        A('s_mov_b64 exec, 0x7f')
        A('buffer_store_dword v%d, v%d, s[%d:%d], s%d offen sc1', vTAG, vT1, SWS, SWS + 3, sFL)
        A('s_mov_b64 exec, -1')
    set_stage(A, C0 + 5)
    stamp(A)
    fin = A.label('FIN')
    A('s_cmp_ge_u32 s%d, 28', sI)
    A('s_cbranch_scc1 %s', fin)

    vB2 = [40 + 4 * k for k in range(8)] + [224 + 4 * k for k in range(8)]
    vWF2 = 72
    vL4, vPF = vNM, vRS
    A('v_lshlrev_b32 v%d, 2, v%d', vL4, vL)

    def f2_load():
        A('s_mov_b64 exec, 0xff')
        A('buffer_load_dword v%d, v%d, s[%d:%d], s%d offen sc1', vPF, vL4, SWS, SWS + 3, sC)
        A('s_mov_b64 exec, -1')
    f2_load()
    sB3, sFL3 = sODD, sODD + 1
    sBL, sFL2, sPF, sBK, sBS, sHB, sEM = 4, 5, 6, 7, 8, 9, 10
    A('s_mul_i32 s%d, s%d, %d', sB3, sTB3, 4 * 112)
    A('s_lshl_b32 s%d, s%d, 3', sT, sFB)
    A('s_add_u32 s%d, s%d, s%d', sB3, sB3, sT)
    A('s_lshl_b32 s%d, s%d, 1', sT, sWV)
    A('s_add_u32 s%d, s%d, s%d', sB3, sB3, sT)
    A('s_lshl_b32 s%d, s%d, 10', sB3, sB3)
    A('s_add_u32 s%d, s%d, %d', sB3, sB3, WS_H1B)
    A('s_add_u32 s%d, s%d, %d', sBL, sB3, 2 * 112 * 1024)
    A('s_lshl_b32 s%d, s%d, 9', sFL3, sTB3)
    A('s_lshl_b32 s%d, s%d, 4', sT, sFB)
    A('s_add_u32 s%d, s%d, s%d', sFL3, sFL3, sT)
    A('s_lshl_b32 s%d, s%d, 2', sT, sWV)
    A('s_add_u32 s%d, s%d, s%d', sFL3, sFL3, sT)
    A('s_add_u32 s%d, s%d, %d', sFL3, sFL3, F4)
    A('s_add_u32 s%d, s%d, 256', sFL2, sFL3)
    A('s_bitcmp1_b32 s%d, 0', sFB)
    A('s_cselect_b32 s%d, s%d, s%d', sT, sBL, sB3)
    A('s_cselect_b32 s%d, s%d, s%d', sBL, sB3, sBL)
    A('s_mov_b32 s%d, s%d', sB3, sT)
    A('s_cselect_b32 s%d, s%d, s%d', sT, sFL2, sFL3)
    A('s_cselect_b32 s%d, s%d, s%d', sFL2, sFL3, sFL2)
    A('s_mov_b32 s%d, s%d', sFL3, sT)
    A('s_lshl_b32 s%d, s%d, 8', sPF, sTQ)
    A('s_mul_i32 s%d, s%d, 112', sT, sKH)
    A('s_add_u32 s%d, s%d, s%d', sPF, sPF, sT)
    A('s_add_u32 s%d, s%d, %d', sPF, sPF, F4)
    A('s_mul_i32 s%d, s%d, %d', sHB, sG, 112 * 1024)
    A('s_mul_i32 s%d, s%d, %d', sT, sKH, 56 * 1024)
    A('s_add_u32 s%d, s%d, s%d', sHB, sHB, sT)
    A('s_add_u32 s%d, s%d, %d', sHB, sHB, WS_H1B + (0x40000000 if E('ABL', 0) & 64 else 0))
    blk_init(A, sBK, sBS, 's%d' % sKH)
    A('s_bitcmp1_b32 s%d, 0', sBK)
    A('s_mov_b32 s%d, 0x0f0f0f0f', sEM)
    A('s_cselect_b32 s%d, 0x00f0f0f0, s%d', sEM, sEM)
    wait_lp(A, 'wo')

    def wo_row(k):
        hh = k // 2
        return 28 * hh - 4 * (hh & 1) + 16 * (k & 1)

    Q = LdsQ(A)
    LAG = E('P2LAG', 5)

    def read_wo(k, nt):
        buf = vWF2 + 8 * nt + 4 * (k & 1)
        for z in range(2):
            Q.op(('w', k, nt), 'ds_read_b64_tr_b16 v[%d:%d], v%d offset:%d', buf + 2 * z, buf + 2 * z + 1,
                 vWA + 2 + nt, (wo_row(k) + 8 * z) * 128)

    read_wo(0, 1)
    read_wo(0, 0)
    lo, chk2, done = A.label('P'), A.label('PC'), A.label('PD')
    A('s_branch %s', chk2)
    A('%s:', lo)
    f2_load()
    try_copy(False)
    A('%s:', chk2)
    A('s_waitcnt vmcnt(0)')
    A('v_cmp_ne_u32 vcc, s%d, v%d', sTAG, vPF)
    spin_guard(A, done)
    A('s_and_b32 s%d, vcc_lo, 0xff', sT)
    A('s_cbranch_scc1 %s', lo)
    A('%s:', done)
    stamp(A)
    stamp(A, 'p2')
    sOB = sM0
    A('s_mov_b32 s%d, s%d', sOB, sB)

    def ld_o(k):
        A('buffer_load_dwordx4 %s, v%d, s[%d:%d], s%d offen offset:%d sc1', v(vB2[k], 4), vO, SWS, SWS + 3, sOB,
          (k & 3) * 1024)
        if (k & 3) == 3:
            A('s_add_u32 s%d, s%d, 4096', sOB, sOB)
    P2I = E('P2INFL', 8)
    for k in range(P2I):
        ld_o(k)
    A('s_lshl_b32 s%d, s%d, 1', sT2, sNB)
    A('s_add_u32 s%d, s%d, s%d', sT2, sT2, sKH)
    A('s_lshl_b32 s%d, s%d, 15', sB, sG)
    A('s_add_u32 s%d, s%d, %d', sB, sB, WS_HB)
    A('s_lshl_b32 s%d, s%d, 8', sC, sT2)
    A('s_add_u32 s%d, s%d, s%d', sC, sC, sB)
    A('s_lshl_b32 s%d, s%d, 11', sT, sT2)
    A('s_add_u32 s%d, s%d, s%d', sB, sB, sT)
    A('s_add_u32 s%d, s%d, 4096', sB, sB)
    A('s_lshl_b32 s%d, s%d, 2', sFL, sT2)
    A('s_lshl_b32 s%d, s%d, 6', sT, sG)
    A('s_add_u32 s%d, s%d, s%d', sFL, sFL, sT)
    A('s_add_u32 s%d, s%d, %d', sFL, sFL, F3)
    for k in range(16 + LAG):
        if k < 16:
            if k < 15:
                read_wo(k + 1, 1)
            Q.wait(('w', k, 1), min(15, P2I + k - 1) - k)
            if k % 4 == 0:
                stamp(A, 'p2')
            mfma(A, vAC + 16, vWF2 + 8 + 4 * (k & 1), vB2[k], k == 0)
            if P2I + k < 16:
                ld_o(P2I + k)
            if P2I + k == E('LDSIG', 12):
                A('v_mov_b32 v%d, 1', vT0)
                Q.op('ld', 'ds_write_b32 v%d, v%d offset:%d', vMY, vT0, M_LD)
        j = k - LAG
        if j >= 0:
            if j < 15:
                read_wo(j + 1, 0)
            Q.wait(('w', j, 0))
            mfma(A, vAC, vWF2 + 4 * (j & 1), vB2[j])
        if k == 16 and LAG >= 2:
            for q in range(4):
                Q.op('x', 'ds_write_b128 v%d, %s offset:%d', vSW, v(vAC + 16 + 4 * q, 4), q * 1024)
            Q.stage(C0 + 6)
    stamp(A)

    def exchange(st, sent=False):
        if not sent:
            for q in range(4):
                A('ds_write_b128 v%d, %s offset:%d', vSW, v(vAC + 16 + 4 * q, 4), q * 1024)
            set_stage(A, st)
        lo, done = A.label('W'), A.label('WD')
        A('%s:', lo)
        A('ds_read_b32 v%d, v%d', vPW, vPP)
        for q in range(4):
            A('ds_read_b128 %s, v%d offset:%d', v(vWF2 + 4 * q, 4), vSR, q * 1024)
        A('s_waitcnt lgkmcnt(4)')
        A('v_readfirstlane_b32 s%d, v%d', sT, vPW)
        spin_guard(A, done)
        A('s_cmp_ge_u32 s%d, %d', sT, st)
        A('s_cbranch_scc0 %s', lo)
        A('%s:', done)
        for q in range(4):
            A('s_waitcnt lgkmcnt(%d)', 3 - q)
            for r in (0, 2):
                a0 = vAC + 4 * q + r
                A('v_pk_add_f32 v[%d:%d], v[%d:%d], v[%d:%d]', a0, a0 + 1, a0, a0 + 1, vWF2 + 4 * q + r,
                  vWF2 + 4 * q + r + 1)

    stamp(A, 'p2')
    exchange(C0 + 6, LAG >= 2)
    stamp(A, 'p2')
    set_stage(A, C0 + 7)
    cvt8(A, vHP, vAC)
    pub_stores(A, [st4(vHP + 4 * q, sB, q * 1024) for q in range(2)], not WTO)
    A('v_mov_b32 v%d, 0', vTT)
    A('v_mov_b32 v%d, 0', vTT + 1)
    for r in range(8):
        A('v_dot2c_f32_bf16 v%d, s%d, v%d', vTT, sONES, vHP + r)
        A('v_dot2c_f32_bf16 v%d, v%d, v%d', vTT + 1, vHP + r, vHP + r)
    A('v_lshlrev_b32 v%d, 2, v%d', vTT + 2, vL)
    A('v_permlane32_swap_b32 v%d, v%d', vTT, vTT + 1)
    A('v_add_f32 v%d, v%d, v%d', vTT, vTT, vTT + 1)
    pub_stores(A, ['buffer_store_dword v%d, v%d, s[%d:%d], s%d offen%%s' % (vTT, vTT + 2, SWS, SWS + 3, sC)], not WTO)
    stamp(A, 'p2')
    try_copy(True)
    NPRE = E('CPRE', 2)
    for c in range(2, 2 + NPRE):
        w1_copy(c)
    stamp(A, 'p2')
    pub_flag(A, sFL, True)
    stamp(A, 'p2')
    stamp(A)
    for c in range(2 + NPRE, 4):
        w1_copy(c)
    A('v_mov_b32 v%d, 0', vCS)
    A('v_mov_b32 v%d, 0', vCS + 1)
    A('s_waitcnt lgkmcnt(0)')
    for r in range(112):
        if r in (16, 32, 48):
            w1_copy(3 + r // 16)
        if r == 48:
            set_stage(A, C0 + 8)
        if r in (64, 80, 96):
            A('s_waitcnt lgkmcnt(%d)', min(15, 1 + 8 * ((96 - r) // 16)))
        A('v_dot2c_f32_bf16 v%d, s%d, v%d', vCS + (r & 1), sONES, vXR + r)
    A('v_add_f32 v%d, v%d, v%d', vCS, vCS, vCS + 1)
    hilo_c(A, vCS, vCF, vT0)
    vBR = 40
    vE3 = 72
    vMF2, vSD = 128, 132
    A('s_mov_b32 s%d, s%d', sB, sB3)
    A('s_mov_b32 s%d, s%d', sFL, sFL3)

    def p3_epilogue(gi, packed=False):
        B = sub(A)
        acc = vAC + 16 * (gi & 1)
        e = vE3
        sd, c1 = vSD, vSD + 1
        if packed:
            pk = lambda r: 'v[%d:%d]' % (r, r + 1)
            for r in range(0, 16, 2):
                B('v_pk_mul_f32 %s, %s, %s op_sel:[0,1] op_sel_hi:[1,1]', pk(e + r), pk(acc + r), pk(sd))
            for r in range(16):
                B('v_exp_f32 v%d, v%d', e + r, e + r)
            for r in range(0, 16, 2):
                B('v_pk_fma_f32 %s, %s, %s, %s op_sel_hi:[1,0,0]', pk(e + r), pk(e + r), pk(sd), pk(sd))
            for r in range(16):
                B('v_rcp_f32 v%d, v%d', e + r, e + r)
            for r in range(0, 16, 2):
                B('v_pk_mul_f32 %s, %s, %s', pk(e + r), pk(e + r), pk(acc + r))
            cvt8(B, acc, e)
        else:
            silu8(B, acc, e, sd, c1, acc)
            silu8(B, acc + 8, e + 8, sd, c1, acc + 4)
        blocks = [[l] for l in B.lines]
        if E('ABL', 0) & 256 and not packed:
            blocks = blocks[-4:]
        B = sub(A)
        so = sB if gi < 2 else sBL
        pub_stores(B, [st4(acc + 4 * q, so, q * 1024) for q in range(2)], not WT1)
        if gi % 2 == 0:
            B('s_add_u32 s%d, s%d, %d', so, so, 112 * 1024)
        blocks.append(B.lines)
        return blocks

    def flag_load(B):
        B('s_mov_b64 exec, 0xfffffff')
        B('buffer_load_dword v%d, v%d, s[%d:%d], s%d offen sc1', vPF, vL4, SWS, SWS + 3, sPF)
        B('s_mov_b64 exec, -1')

    def flag_check(mask):
        def slow(B, back):
            lo = B.label('P')
            B('%s:', lo)
            flag_load(B)
            B('s_waitcnt vmcnt(0)')
            B('v_cmp_ne_u32 vcc, s%d, v%d', sTAG, vPF)
            spin_guard(B, back)
            B('s_and_b32 s%d, vcc_lo, %s', sT, mask)
            B('s_cbranch_scc1 %s', lo)
        ent, back = cold_block(A, slow)
        A('v_cmp_ne_u32 vcc, s%d, v%d', sTAG, vPF)
        A('s_and_b32 s%d, vcc_lo, %s', sT, mask)
        A('s_cbranch_scc1 %s', ent)
        A('%s:', back)

    PRE = E('P3PRE', 6)
    vHB = vXD + 2
    A('v_add_u32 v%d, %d, v%d', vHB, L_A, vO)
    A('v_add_u32 v%d, %d, v%d', vHB + 1, 65536, vO)
    Q = LdsQ(A)

    def chk(n):
        gi, k = divmod(n, 28)
        if gi == 0 and E('P3RAMP', 0):
            return k // 4 if k % 4 == 0 else None
        if gi == 0:
            return {0: 1, 8: 3, 16: 5, 24: 6}.get(k)
        return {0: 1, 8: 3, 16: 6}.get(k)

    def rd(n):
        gi, k = divmod(n, 28)
        if n + 1 < 112 and chk(n + 1) is not None:
            Q.take(7)
        if chk(n) is not None:
            wait_lp(Q.A, ('h', gi, chk(n)))
        Q.op(('b', n), 'ds_read_b128 %s, v%d offset:%d', v(vBR + 4 * (n % 8), 4), (vHB, vHB, vO, vHB + 1)[gi],
             (28672 if gi == 1 else 0) + k * 1024)
        if k == 27:
            Q.stage(C0 + 9 + gi)
        ramp = E('P3RAMP', 0) and n < 20
        nn = n + (4 if ramp else E('P3PK', PRE + 2))
        if nn < 112 and chk(nn) is not None and not Q.peeked and (ramp or nn >= 28 or not E('P3RAMP', 0)):
            Q.peek(7)

    stamp(A, 'p2')
    nrd = [0]

    def rd_upto(n):
        while nrd[0] <= min(n, 111):
            rd(nrd[0])
            nrd[0] += 1
    rd_upto(2)
    for gi in range(4):
        acc = vAC + 16 * (gi & 1)
        M = sub(A)
        Q.A = M
        for k in range(28):
            n = 28 * gi + k
            rd_upto(n + (PRE if not E('P3RAMP', 0) else 3 if n < 22 else min(PRE, 3 + (n - 21))))
            if k == 16:
                Q.op('s6', 'ds_read_b128 v[%d:%d], v%d offset:%d', vTT, vTT + 3, vMI, M_PW + 16)
                Q.op('sf', 'ds_read_b128 %s, v%d offset:%d', v(vMF2, 4), vEX, gi * 1024)
            if k == 24:
                Q.wait('sf')
                M('v_readfirstlane_b32 s%d, v%d', sPROG, vTT)
                M('v_readfirstlane_b32 s%d, v%d', sC, vTT + LP[('st', gi)][0] - 4)

                def st_slow(B, back):
                    def st_read():
                        B('ds_read_b128 %s, v%d offset:%d', v(vMF2, 4), vEX, gi * 1024)
                        return 0
                    wait_word(B, LP[('st', gi)][0], LP[('st', gi)][1], body=st_read)
                ent, back = cold_block(M, st_slow)
            if k == 25:
                M('s_cmp_ge_u32 s%d, %d', sC, LP[('st', gi)][1])
                M('s_cbranch_scc0 %s', ent)
                M('%s:', back)
                M('v_mov_b32 v%d, v%d', vMF, vMF2)
                M('v_mov_b32 v%d, v%d', vMF + 1, vMF2 + 1)
            if k % 2 == 0:
                Q.wait(('b', n + 1))
            if k in (0, 12):
                stamp(M, 'p3')
            if gi == E('P33', 3) and k % 2 == 0 and k:
                stamp(M, 'p33')
            if gi == 3 and k == E('P3FLAGK', 11):
                pub_flag(M, sFL, True)
            if gi == 3 and k == 25:
                flag_load(M)
            mfma(M, acc, vXR + 4 * k, vBR + 4 * (n % 8), k == 0)
        mfma(M, acc, vCF, vMF)
        M('v_mov_b32 v%d, v%d', vSD, vMF2 + 2)
        M('v_mov_b32 v%d, v%d', vSD + 1, vMF2 + 3)
        A.lines += merge(M.lines, p3_epilogue(gi - 1) if gi > 0 else [], 1, E('P3STOP2', 27) if gi == 2 else 27)
        if gi == 0:
            stamp(A)
        stamp(A, 'p3')
    stamp(A)
    NB = 16
    vWF4 = 40
    vAP = vXR + 48

    def w2_base(c):
        A('s_cmp_eq_u32 s%d, 0', sKH)
        A('s_cselect_b32 s%d, %d, %d', sT, w2_slot(2 * c) >> 12, w2_slot(2 * c + 1) >> 12)
        A('s_lshl_b32 s%d, s%d, 12', sT, sT)
        A('v_add_u32 v%d, s%d, v%d', vWA + 2, sT, vWA)
        A('v_add_u32 v%d, s%d, v%d', vWA + 3, sT, vWA + 1)

    Q = LdsQ(A)

    def abuf(k):
        return vWF4 + 8 * (k & 3)

    def read_w2(k):
        if k % 4 == 3 and k < 52:
            Q.take(LP[('w2', 2 * (k // 4) + 3)][0])
        if k % 4 == 0:
            wait_lp(A, ('w2', 2 * (k // 4) + 1))
            w2_base(k // 4)
        buf = abuf(k)
        for nt in range(2):
            for z in range(2):
                Q.op(('w', k), 'ds_read_b64_tr_b16 v[%d:%d], v%d offset:%d', buf + 4 * nt + 2 * z,
                     buf + 4 * nt + 2 * z + 1, vWA + 2 + nt, ((k % 4) * 16 + 8 * z) * 128)
        if k % 4 == 0 and k < 52:
            Q.peek(LP[('w2', 2 * (k // 4) + 3)][0])
        if k % 4 == 3 and (k // 4) <= 5:
            Q.stage(C0 + 13 + k // 4)

    vq = []

    def vm_need(tag):
        i = max(j for j, x in enumerate(vq) if x == tag)
        return len(vq) - 1 - i

    def issue_b(k):
        if k % 8 == 0:
            A('s_lshl_b32 s%d, s%d, 13', sM0, sBK)
            A('s_add_u32 s%d, s%d, s%d', sM0, sM0, sHB)
            blk_next(A, sBK, sBS)
        A('buffer_load_dwordx4 %s, v%d, s[%d:%d], s%d offen offset:%d%s', v(vXR + 4 * (k % NB), 4), vO, SWS, SWS + 3,
          sM0, (k & 3) * 1024, LDB)
        vq.append(('b', k))
        if k % 8 == 3:
            A('s_add_u32 s%d, s%d, 4096', sM0, sM0)

    INFL = E('P4INFL', 10)
    assert INFL < NB
    A('s_waitcnt vmcnt(2)')
    flag_check('s%d' % sEM)
    stamp(A)
    issued = E('P4PRE', 8)
    for k in range(issued):
        issue_b(k)
    for b in p3_epilogue(3, True):
        A.lines += b
    vq += ['st', 'st']
    read_w2(0)
    read_w2(1)
    while issued < INFL:
        issue_b(issued)
        issued += 1
    unpack_hp()
    stamp(A)
    KF, KL, KC = E('P4KF', 3), E('P4KL', 9), E('P4KC', 14)
    pend = False
    for k in range(56):
        if k + 2 < 56:
            read_w2(k + 2)
        need = vm_need(('b', k))
        if k == KF:
            need = min(need, vm_need('st'))
        if k == KC:
            need = min(need, vm_need('pf'))
        Q.wait(('w', k), need)
        if k % 4 == 0 and k:
            stamp(A, 'p4')
        buf = abuf(k)
        mfma(A, vAC + 16, buf + 4, vXR + 4 * (k % NB), k == 0)
        if k == KF:
            pub_flag(A, sFL2, True, False)
            vq.append('fl')
        if k == KL:
            flag_load(A)
            vq.append('pf')
        if k == KC:
            flag_check('0xfffffff')
            pend = True
        for _ in range(2):
            if issued < min(56, k + 1 + INFL) and (issued < 24 or pend):
                issue_b(issued)
                issued += 1
        mfma(A, vAC, buf, vXR + 4 * (k % NB))
    stamp(A)
    if E('OUTT', 1):
        A('v_readfirstlane_b32 s%d, v%d', sC, vSR)
        A('v_readfirstlane_b32 s%d, v%d', sT2, vRO)
        A('v_and_b32 v%d, 31, v%d', vTT, vL)
        A('v_mul_u32_u24 v%d, 80, v%d', vTT, vTT)
        A('v_lshrrev_b32 v%d, 5, v%d', vT1, vL)
        A('v_lshl_add_u32 v%d, v%d, 3, v%d', vTT, vT1, vTT)
        A('v_add_u32 v%d, s%d, v%d', vTT, sC, vTT)
        A('v_lshrrev_b32 v%d, 2, v%d', vT1, vL)
        A('v_and_b32 v%d, 3, v%d', vTT + 3, vL)
        A('v_lshlrev_b32 v%d, 4, v%d', vTT + 3, vTT + 3)
        A('v_mul_u32_u24 v%d, 80, v%d', vTT + 1, vT1)
        A('v_add3_u32 v%d, v%d, v%d, s%d', vTT + 1, vTT + 1, vTT + 3, sC)
        A('v_mul_u32_u24 v%d, 896, v%d', vTT + 2, vT1)
        A('v_add_u32 v%d, v%d, v%d', vTT + 2, vTT + 2, vTT + 3)
        A('s_add_u32 s%d, s%d, %d', sC, sT2, 16 * 896)
    exchange(C0 + 27)
    cvt8(A, vHP, vAC)
    OB = ('', ' sc1', ' nt', ' sc0 sc1')[E('OUTB', 2)]
    if E('OUTT', 1):
        for q in range(4):
            A('ds_write_b64 v%d, v[%d:%d] offset:%d', vTT, vHP + 2 * q, vHP + 2 * q + 1, q * 16)
        for q in range(2):
            A('ds_read_b128 %s, v%d offset:%d', v(vHP + 4 * q, 4), vTT + 1, q * 16 * 80)
        for q in range(2):
            A('s_waitcnt lgkmcnt(%d)', 1 - q)
            A('buffer_store_dwordx4 %s, v%d, s[%d:%d], s%d offen%s', v(vHP + 4 * q, 4), vTT + 2, SOUT, SOUT + 3,
              (sT2, sC)[q], OB)
    else:
        for q in range(2):
            A('v_permlane32_swap_b32 v%d, v%d', vHP + 4 * q, vHP + 4 * q + 2)
            A('v_permlane32_swap_b32 v%d, v%d', vHP + 4 * q + 1, vHP + 4 * q + 3)
        for q in range(2):
            A('buffer_store_dwordx4 %s, v%d, s[%d:%d], 0 offen offset:%d%s', v(vHP + 4 * q, 4), vRO, SOUT, SOUT + 3,
              q * 32, OB)
    A('s_or_b32 s%d, s%d, s%d', sT, sI, sWV)
    A('s_or_b32 s%d, s%d, s%d', sT, sT, sXCD)
    A('s_cmp_lg_u32 s%d, 0', sT)
    A('s_cbranch_scc1 %s', fin)
    A('s_mov_b32 s%d, %d', sT, FEP)
    A('s_mov_b64 exec, 1')
    A('buffer_store_dword v%d, v%d, s[%d:%d], s%d offen', vTAG, vO, SWS, SWS + 3, sT)
    A('s_mov_b64 exec, -1')
    A('%s:', fin)
    if E('PADTO', 0):
        lo = A.label('PAD')
        A('s_waitcnt vmcnt(0) lgkmcnt(0)')
        A('s_mov_b32 s6, %d', E('PADTO', 0))
        if PROBE >= 0:
            A('s_sub_u32 s7, s56, s84')
            A('s_lshl_b32 s7, s7, 2')
            A('s_cmp_ge_u32 s%d, 28', sI)
            A('s_cselect_b32 s7, 0, s7')
            A('s_add_u32 s6, s6, s7')
        A('%s:', lo)
        A('s_memrealtime s[4:5]')
        A('s_waitcnt lgkmcnt(0)')
        A('s_sub_u32 s4, s4, s84')
        A('s_cmp_lt_u32 s4, s6')
        A('s_cbranch_scc1 %s', lo)
    stamp_flush(A)


def gen():
    A = Asm()
    name = NAME + '_kernel'
    A.lines += ['.p2align 8', '.globl %s' % name, '.type %s,@function' % name, '%s:' % name]
    end = A.label('END')
    if E('PADTO', 0):
        A('s_memrealtime s[84:85]')
    A('s_load_dwordx16 s[64:79], s[0:1], 0')
    A('s_load_dwordx2 s[80:81], s[0:1], 72')
    A('s_getpc_b64 s[%d:%d]', sPC, sPC + 1)
    A('s_cmp_ge_u32 s2, 256')
    A('s_cbranch_scc1 %s', end)
    assert MAP == 0
    A('s_and_b32 s%d, s2, 7', sXCD)
    A('s_lshr_b32 s%d, s2, 3', sI)
    A('v_lshrrev_b32 v%d, 6, v0', vMY)
    A('v_and_b32 v%d, 63, v0', vL)
    A('s_and_b32 s%d, s%d, 1', sTB, sI)
    A('s_lshl1_add_u32 s%d, s%d, s%d', sTB, sXCD, sTB)
    A('v_readfirstlane_b32 s%d, v%d', sWV, vMY)
    A('s_add_u32 s%d, s%d, s%d', sC0, sXCD, sI)
    A('s_mul_i32 s%d, s%d, 37', sT, sC0)
    A('s_lshr_b32 s%d, s%d, 8', sT, sT)
    A('s_mul_i32 s%d, s%d, 7', sT, sT)
    A('s_sub_u32 s%d, s%d, s%d', sC0, sC0, sT)
    x_offsets(A)
    A('s_mul_i32 s%d, s%d, %d', sT2, sWV, 32 * 896)
    A('s_lshl_b32 s%d, s%d, 7', sT, sC0)
    A('s_add_u32 s%d, s%d, s%d', sT, sT, sXB)
    A('s_add_u32 s%d, s%d, s%d', sT, sT, sT2)
    A('s_lshl_b32 m0, s%d, 12', sWV)
    A('s_mov_b32 s%d, 0x%x', SX + 2, 0 if E('ABL', 0) & 16 else S * D * 2)
    A('s_mov_b32 s%d, 0x20000', SX + 3)
    nok = A.label('NOK')
    A('s_cmp_ge_u32 s%d, 4', sWV)
    A('s_waitcnt lgkmcnt(0)')
    A('s_mov_b32 s%d, s64', SX)
    A('s_mov_b32 s%d, s65', SX + 1)
    A('s_cbranch_scc1 %s', nok)
    for u in range(4):
        A('buffer_load_dwordx4 v%d, s[%d:%d], s%d offen offset:%d lds', vXD + u, SX, SX + 3, sT, u * 1024)
    A('%s:', nok)
    srd(A, SW, 66, 0 if E('ABL', 0) & 8 else D * 3 * D * 2)
    WT = E('WT', 0)
    if WT:
        now = A.label('NOW')
        A('s_sub_u32 s%d, s%d, 4', sT, sWV)
        A('s_cmp_ge_u32 s%d, %d', sT, WT)
        A('s_cbranch_scc1 %s', now)
        A('s_add_u32 s%d, s%d, 1', sT, sT)
        A('s_cmp_eq_u32 s%d, 3', sT)
        A('s_cselect_b32 s%d, 0, s%d', sT, sT)
        A('s_mul_i32 s%d, s%d, 896', sT, sT)
        A('s_mul_i32 s%d, s%d, %d', sT2, sI, 14 * 2688)
        A('s_add_u32 s%d, s%d, s%d', sT, sT, sT2)
        A('s_add_u32 s%d, s%d, %d', sT2, sT, 7 * 2688)
        A('v_lshrrev_b32 v%d, 3, v%d', vT0, vL)
        A('v_mul_u32_u24 v%d, 2688, v%d', vT0, vT0)
        A('v_and_b32 v%d, 7, v%d', vT1, vL)
        A('v_lshl_add_u32 v%d, v%d, 7, v%d', vT0, vT1, vT0)
        A('s_mov_b32 exec_lo, 0x7f7f7f7f')
        A('s_mov_b32 exec_hi, 0x007f7f7f')
        A('buffer_load_dword v38, v%d, s[%d:%d], s%d offen', vT0, SW, SW + 3, sT)
        A('buffer_load_dword v39, v%d, s[%d:%d], s%d offen', vT0, SW, SW + 3, sT2)
        A('s_mov_b64 exec, -1')
        A('%s:', now)
    perm = [2, 4, 6, 9, 11, 13, 0, 1, 3, 5, 7, 8, 10, 12, 14, 15]
    lo = sum(perm[i] << (4 * i) for i in range(8))
    hi = sum(perm[8 + i] << (4 * i) for i in range(8))
    A('s_mov_b32 s%d, 0x%x', sHI, lo)
    A('s_mov_b32 s%d, 0x%x', sHI + 1, hi)
    A('s_lshr_b32 s%d, s%d, 1', sT, sI)
    A('s_lshl_b32 s%d, s%d, 2', sT, sT)
    A('s_lshr_b64 s[%d:%d], s[%d:%d], s%d', sHI, sHI + 1, sHI, sHI + 1, sT)
    A('s_and_b32 s%d, s%d, 15', sH, sHI)
    RM = E('RMAP', 0)
    if RM == 1:
        A('s_add_u32 s%d, s%d, 28', sI, sI)
        A('s_and_b32 s%d, s%d, 31', sI, sI)
    if RM == 2:
        A('s_add_u32 s%d, s%d, 28', sI, sI)
        A('s_and_b32 s%d, s%d, 31', sI, sI)
        A('s_and_b32 s%d, s%d, 1', sT, sI)
        A('s_mul_i32 s%d, s%d, 14', sT, sT)
        A('s_lshr_b32 s%d, s%d, 1', sT2, sI)
        A('s_add_u32 s%d, s%d, s%d', sT, sT, sT2)
        A('s_cmp_lt_u32 s%d, 28', sI)
        A('s_cselect_b32 s%d, s%d, s%d', sI, sT, sI)
    A('v_lshlrev_b32 v%d, 2, v%d', vMY, vMY)
    A('v_add_u32 v%d, %d, v%d', vMY, L_MISC, vMY)
    A('v_mov_b32 v%d, 0', vT0)
    A('ds_write2st64_b32 v%d, v%d, v%d offset0:0 offset1:1', vMY, vT0, vT0)
    A('ds_write2_b32 v%d, v%d, v%d offset0:%d offset1:%d', vMY, vT0, vT0, M_FAST // 4, M_CP // 4)
    w_offsets(A)
    A('v_mov_b32 v%d, %d', vMI, L_MISC)
    A('s_mov_b32 s%d, 0x400000', sSPIN)
    A('s_mov_b32 s%d, 0', sPROG)
    A('s_mov_b32 s%d, 0', sPROG1)
    A('s_waitcnt lgkmcnt(0)')
    A('s_barrier')
    _st['n'] = 0
    stamp(A, 'all')
    if STAMPS:
        A('s_memrealtime s[86:87]')
    for i in range(7):
        LP[('x', i)] = (7, 1 + i)
    hn = [9]
    for gi in range(4):
        us = E('HSPOS', 3) if gi == 0 else 0
        LP[('st', gi)] = (6 - (gi & 1), 4 + gi // 2)
        for q in range(7):
            if q in HITEMS[gi > 0]:
                hn[0] += 1
                LP[('h', gi, q)] = (7, hn[0])
            if q == us:
                hn[0] += 1
                LP[('hs', gi)] = (7, hn[0])
    for pi in range(3):
        for i in range(7):
            LP[('W', pi, i)] = (4, 7 * pi + i + 1)
    l0, l1, l2, lw, lc = A.label('H0'), A.label('H1'), A.label('H23'), A.label('EW'), A.label('EC')
    A('s_cmp_eq_u32 s%d, 4', sWV)
    A('s_cbranch_scc1 %s', lw)
    A('s_cmp_lg_u32 s%d, 7', sWV)
    A('s_cbranch_scc1 %s', lc)
    HELP['on'] = True
    nst = {}
    prio(A, 1)
    _st['n'] = 1
    early_x(A)
    nst[l1] = _st['n']
    A('s_branch %s', l1)
    A('%s:', lw)
    prio(A, 1)
    _st['n'] = 1
    early_w(A)
    nst[l0] = _st['n']
    nst[l2] = 1
    A('s_branch %s', l0)
    refresh_routines(A)
    A('%s:', lc)
    A('s_cmp_ge_u32 s%d, 5', sWV)
    A('s_cbranch_scc1 %s', l2)
    parts = {}
    for lab, fn in ((l0, gen_h0), (l1, gen_h1), (l2, gen_h23)):
        B = sub(A)
        B('%s:', lab)
        B('s_nop 4')
        HELP['on'] = True
        prio(B, 1)
        _st['n'] = nst[lab]
        fn(B)
        HELP['on'] = False
        parts[lab] = B.lines
    _st['n'] = 1
    gen_compute(A)
    A('%s:', end)
    A('s_endpgm')
    for lab in (l0, l1, l2):
        A.lines += parts[lab]
    A.lines += COLD
    return A, name


def main():
    out = sys.argv[1] if len(sys.argv) > 1 else 'cdna_kernels/%s.s' % NAME
    A, name = gen()
    lines, nn = fix_hazards(A.lines)
    hdr = ['; generated by gen/gen14.py (hand-written generator script)',
           '; @launch grid=(256,1,1) block=(512,1,1) lds=%d' % LDS_SIZE,
           '.amdgcn_target "amdgcn-amd-amdhsa--gfx950"', '.text']
    tail = ['.p2align 8', '.fill 2048, 4, 0xbf800000', '.section .rodata,"a"', '.p2align 6', '''.amdhsa_kernel %s
  .amdhsa_next_free_vgpr 256
  .amdhsa_next_free_sgpr 102
  .amdhsa_accum_offset 256
  .amdhsa_group_segment_fixed_size 0
  .amdhsa_kernarg_size 80
  .amdhsa_user_sgpr_count 2
  .amdhsa_user_sgpr_kernarg_segment_ptr 1
  .amdhsa_system_sgpr_workgroup_id_x 1
  .amdhsa_float_denorm_mode_32 3
  .amdhsa_float_denorm_mode_16_64 3
.end_amdhsa_kernel''' % name]
    open(out, 'w').write('\n'.join(hdr + lines + tail) + '\n')
    print('wrote', out, 'lines', len(lines), 'nops', nn)


if __name__ == '__main__':
    main()
```

```python
import re

REG_RE = re.compile(r'(?<![\w.])([vas])(\d+)(?![\w\[])|(?<![\w.])([vas])\[(\d+):(\d+)\]')
TRANS = ('v_exp_f32', 'v_log_f32', 'v_rcp_f32', 'v_rsq_f32', 'v_sqrt_f32', 'v_sin_f32', 'v_cos_f32')


def regs_of(tok):
    out = []
    for m in REG_RE.finditer(tok):
        if m.group(1):
            out.append((m.group(1), int(m.group(2))))
        else:
            for i in range(int(m.group(4)), int(m.group(5)) + 1):
                out.append((m.group(3), i))
    t = tok.strip()
    if re.search(r'\bvcc\b', t):
        out += [('s', 106), ('s', 107)]
    if re.search(r'\bvcc_lo\b', t):
        out += [('s', 106)]
    if re.search(r'\bvcc_hi\b', t):
        out += [('s', 107)]
    if re.search(r'\bexec\b', t):
        out += [('s', 126), ('s', 127)]
    if re.search(r'\bm0\b', t):
        out += [('s', 124)]
    return out


def split_ops(rest):
    ops, depth, cur = [], 0, ''
    for ch in rest:
        if ch in '[(':
            depth += 1
        if ch in '])':
            depth -= 1
        if ch == ',' and depth == 0:
            ops.append(cur.strip())
            cur = ''
        else:
            cur += ch
    if cur.strip():
        ops.append(cur.strip())
    return ops


class Ins:
    def __init__(self, text):
        self.text = text
        code = text.split(';')[0].strip()
        self.is_label = code.endswith(':')
        self.is_dir = code.startswith('.') and not self.is_label
        self.empty = (code == '')
        self.op = ''
        self.w = set()
        self.r = set()
        self.kind = 'none'
        self.srcc = set()
        self.ab = set()
        self.passes = 0
        self.states = 1
        self.widestore = set()
        self.ldsdma = False
        if self.is_label or self.is_dir or self.empty:
            self.states = 0
            return
        parts = code.split(None, 1)
        op = parts[0]
        for suf in ('_e32', '_e64'):
            if op.endswith(suf):
                op = op[:-4]
        self.op = op
        ops = split_ops(parts[1]) if len(parts) > 1 else []
        R = [regs_of(o) for o in ops]
        flat = lambda l: set(x for y in l for x in y)
        if op == 's_nop':
            self.kind = 'salu'
            self.states = int(ops[0], 0) + 1
        elif op.startswith('v_mfma'):
            self.kind = 'mfma'
            self.w = set(R[0])
            self.ab = flat(R[1:3])
            self.srcc = set(R[3])
            self.r = self.ab | self.srcc
            self.passes = 8 if '32x32x16' in op else 4
            assert '32x32x16' in op or '16x16x32' in op, op
        elif op.startswith('ds_'):
            self.kind = 'ds'
            if op.startswith('ds_read') or '_rtn' in op or 'permute' in op or 'swizzle' in op:
                self.w = set(R[0])
                self.r = flat(R[1:])
            else:
                self.r = flat(R)
        elif op.startswith('buffer_') or op.startswith('global_'):
            self.kind = 'vmem'
            islds = bool(re.search(r'\blds\b', code)) or 'load_lds' in op
            if op in ('buffer_wbl2', 'buffer_inv'):
                pass
            elif islds:
                self.r = flat(R) | {('s', 124)}
                self.ldsdma = True
            elif '_load' in op:
                self.w = set(R[0])
                self.r = flat(R[1:])
                if 'd16' in op:
                    self.r |= set(R[0])
            elif 'atomic' in op:
                self.r = flat(R)
                if re.search(r'\bsc0\b', code):
                    self.w = set(R[0])
            else:
                self.r = flat(R)
                if op.endswith('x4') or op.endswith('x3'):
                    self.widestore = set(R[0]) if op.startswith('buffer_') else set(R[1])
        elif op.startswith('s_'):
            self.kind = 'salu'
            if op.startswith('s_cmp') or op.startswith('s_cbranch') or op in (
                    's_branch', 's_waitcnt', 's_barrier', 's_endpgm', 's_sleep', 's_setprio', 's_bitcmp0_b32',
                    's_bitcmp1_b32', 's_setpc_b64'):
                self.r = flat(R)
            else:
                self.w = set(R[0]) if R else set()
                self.r = flat(R[1:])
                if 'saveexec' in op:
                    self.w |= {('s', 126), ('s', 127)}
        elif op.startswith('v_'):
            self.kind = 'valu'
            self.w = set(R[0])
            self.r = flat(R[1:])
            if op.startswith('v_permlane') and 'swap' in op:
                self.w = flat(R[:2])
                self.r = flat(R[:2])
            if op in ('v_fmac_f32', 'v_dot2c_f32_bf16', 'v_writelane_b32'):
                self.r |= set(R[0])
            if op.startswith('v_add_co') or op.startswith('v_sub_co') or op.startswith('v_addc_co'):
                self.w = flat(R[:2])
                self.r = flat(R[2:])
            if op.startswith('v_cmpx'):
                self.w |= {('s', 126), ('s', 127)}
        else:
            raise ValueError('unknown instruction: ' + text)
        self.dpp = ('_dpp' in op) or (' quad_perm' in code) or (' row_' in code)
        self.trans = op in TRANS
        self.dot = op.startswith('v_dot')


def need(p, c):
    n = 0
    vw = {x for x in p.w if x[0] in 'va'}
    sw = {x for x in p.w if x[0] == 's'}
    if p.kind == 'valu':
        if c.kind == 'mfma' and (vw & c.r):
            n = max(n, 3 if p.dot else 2)
        if c.kind == 'valu':
            if p.trans and not c.trans and (vw & c.r):
                n = max(n, 1)
            if c.op.startswith('v_permlane') and (vw & c.r):
                n = max(n, 2)
            if c.op in ('v_readfirstlane_b32', 'v_readlane_b32') and (vw & c.r):
                n = max(n, 1)
            if c.dpp and (vw & c.r):
                n = max(n, 2)
            if sw & c.r:
                n = max(n, 4 if c.op in ('v_readlane_b32', 'v_writelane_b32') else 2)
            if 'sdwa' in p.op and (vw & (c.r | c.w)):
                n = max(n, 1)
            if p.dot and (vw & (c.r | c.w)):
                if c.op == p.op and p.op == 'v_dot2c_f32_bf16' and c.w == p.w:
                    pass
                else:
                    n = max(n, 3)
        if c.kind in ('vmem', 'ds') and p.dot and (vw & c.r):
            n = max(n, 3)
        if c.kind == 'vmem' and (sw & c.r):
            n = max(n, 5)
        if ('s', 126) in p.w:
            if c.kind == 'mfma':
                n = max(n, 4)
            if c.kind == 'valu' and (c.dpp):
                n = max(n, 5)
            if c.kind == 'valu' and (c.op.startswith('v_permlane') or c.op.startswith('v_read') or c.op.startswith('v_writelane')):
                n = max(n, 4)
    if p.kind == 'mfma':
        big = {8: 12, 4: 8}[p.passes]
        if c.kind == 'mfma':
            if p.w & c.ab:
                n = max(n, big)
            if p.w & c.srcc:
                if not (p.w == c.srcc and p.passes == c.passes):
                    n = max(n, {8: 10, 4: 6}[p.passes])
            elif p.w & c.w:
                n = max(n, big)
        elif c.kind in ('valu', 'vmem', 'ds'):
            if p.w & (c.r | c.w):
                n = max(n, big)
            if c.kind == 'valu' and (p.srcc & c.w):
                n = max(n, {8: 7, 4: 3}[p.passes])
    if p.kind == 'salu' and ('s', 124) in p.w and c.ldsdma:
        n = max(n, 1)
    if p.widestore and (p.widestore & c.w):
        n = max(n, 2 if c.kind == 'valu' else 1)
    return n


def fix_hazards(lines, window=40):
    out = []
    hist = []
    nins = 0
    open_regions = []
    seen = set()
    for t in lines:
        c = Ins(t)
        if c.states == 0:
            if c.is_label:
                lab = t.split(';')[0].strip()[:-1]
                seen.add(lab)
                open_regions = [r for r in open_regions if r != lab]
            out.append(t)
            continue
        c.regions = frozenset(open_regions)
        req = 0
        dist = 0
        for p in reversed(hist):
            k = need(p, c) - dist
            if k > req:
                req = k
            if p.regions <= c.regions:
                dist += p.states
            if dist >= 20:
                break
        while req > 0:
            k = min(req, 16)
            nop = 's_nop %d' % (k - 1)
            out.append('  ' + nop)
            n = Ins(nop)
            n.regions = c.regions
            hist.append(n)
            nins += 1
            req -= k
        out.append(t)
        hist.append(c)
        if c.op.startswith('s_cbranch') or c.op == 's_branch':
            tgt = t.split(';')[0].split()[-1]
            if tgt not in seen:
                open_regions.append(tgt)
        if c.op in ('s_endpgm',):
            hist = []
            open_regions = []
    return out, nins


class Asm:
    def __init__(self):
        self.lines = []
        self._lab = 0

    def __call__(self, fmt, *a):
        s = fmt % a if a else fmt
        for l in s.split('\n'):
            l = l.strip()
            if l:
                self.lines.append(l if l.endswith(':') else '  ' + l)

    _n = [0]

    def label(self, base='L'):
        Asm._n[0] += 1
        return '%s_%d' % (base, Asm._n[0])

    def comment(self, s):
        self.lines.append('  ; ' + s)


def v(i, n=1):
    return 'v%d' % i if n == 1 else 'v[%d:%d]' % (i, i + n - 1)


def a(i, n=1):
    return 'a%d' % i if n == 1 else 'a[%d:%d]' % (i, i + n - 1)


def s(i, n=1):
    return 's%d' % i if n == 1 else 's[%d:%d]' % (i, i + n - 1)


def interleave(main, fill, per):
    out = []
    k = 0
    for l in main:
        out.append(l)
        if l.strip().startswith('v_mfma'):
            out += fill[k:k + per]
            k += per
    out += fill[k:]
    return out


def align8(lines):
    import subprocess, tempfile, os
    d = tempfile.mkdtemp()
    src = os.path.join(d, 'a.s')
    open(src, 'w').write('.amdgcn_target "amdgcn-amd-amdhsa--gfx950"\n.text\n' + '\n'.join(lines) + '\n')
    subprocess.run(['clang', '-x', 'assembler', '-target', 'amdgcn-amd-amdhsa', '-mcpu=gfx950', '-c',
                    src, '-o', src + '.o'], check=True)
    dis = subprocess.run(['llvm-objdump', '-d', '--mcpu=gfx950', src + '.o'], capture_output=True,
                         text=True, check=True).stdout
    sizes = [4 * len(l.split('//')[1].split(':')[1].split('<')[0].split()) for l in dis.splitlines() if '//' in l]
    idx = [i for i, t in enumerate(lines) if Ins(t).states]
    assert len(idx) == len(sizes), (len(idx), len(sizes))
    ok = ('v_mul_f32', 'v_add_f32', 'v_sub_f32', 'v_max_f32', 'v_min_f32', 'v_exp_f32', 'v_rcp_f32', 'v_rsq_f32',
          'v_mov_b32', 'v_lshlrev_b32', 'v_lshrrev_b32', 'v_and_b32', 'v_or_b32', 'v_xor_b32', 'v_add_u32', 'v_min_u32')
    out = list(lines)
    off, cand, n = 0, None, 0
    for i, sz in zip(idx, sizes):
        if sz >= 8:
            if off % 8 == 4 and cand is not None:
                op = out[cand].split()[0]
                out[cand] = out[cand].replace(op, op + '_e64', 1)
                off += 4
                n += 1
            cand = None
        elif lines[i].split()[0] in ok:
            cand = i
        off += sz
    return out, n
```

```python
import sys
import os
sys.path.insert(0, os.path.dirname(os.path.abspath(__file__)))
from asmlib import Asm, fix_hazards, align8, v

NAME = 'sequential_preLN__linear_kernel_hedgehog__dense_activation_silu__prompt'
S, D, H, DH, F = 2048, 448, 16, 28, 1792
MB = 1 << 20
E = lambda k, d: int(os.environ.get(k, d))
STAMPS = E('STAMPS', 0)
MAP = E('MAP', 0)
FAST = E('FAST', 1)
CODEPF = E('CODEPF', 1)
WARM = E('WARM', 0)
WT1 = E('WT1', 1)
WTO = E('WTO', 0)
TOUCHAT = E('TOUCHAT', 2)
LDB = (' sc1', '', ' nt')[E('LDB', 0)]
HLATE = E('HLATE', 1)
WS_KVP = 0
WS_OB = 2 * MB
WS_HB = 4 * MB
WS_H1B = 8 * MB
WS_FLG = 16 * MB
F1, F2, F3, F4, FREG, FEP = WS_FLG + 0x10000, WS_FLG + 0x1000, WS_FLG + 0x3000, WS_FLG + 0x70000, WS_FLG + 0x9000, WS_FLG + 0xA000
F2X = WS_FLG + 0x40000
WS_STAMP = 17 * MB
WS_SIZE = 18 * MB
LOG2E = 0x3fb8aa3b
ONES = 0x3f803f80
MFMA = 'v_mfma_f32_32x32x16_bf16'
L_X = 0
L_WP = (114688, 0, 32768)
L_KVA, L_KVV = 65536, 81920
L_A = 98304
L_SC0, L_SC1 = 49152, 57344
L_XRES = L_SC0
B16 = (0, 16384, 65536, 81920, 32768)
L_PHI, L_EX, L_CF, L_MISC = 159744 - 2048 + 2048 + 1536, 155648, 159744, 163328
LDS_SIZE = 163840
M_PW, M_FAST, M_CP, M_LD = 0, 64, 96, 256
L_RSTD = L_EX

SX, SW, SP, SWS, SWO, SW1, SW2, SOUT = 12, 16, 20, 24, 28, 32, 36, 40
sTB, sH, sWV, sC0, sPROG, sT, sT2, sONES, sC, sTAG, sFASTF, sI, sXCD = 44, 45, 46, 47, 48, 49, 50, 51, 52, 53, 54, 55, 3
sHI, sPADL, sZA, sZB, sODD, sPC = 4, 6, 8, 10, 92, 94
sTQ, sNB, sTB3, sFB, sG, sKH, sB, sXB, sM0, sSPIN = 96, 97, 98, 99, 100, 101, 88, 89, 91, 90
sPROG1, sFL = 0, 1
vL, vMI, vT0, vT1, vO = 1, 2, 3, 4, 5
vTAG, vMY = 6, 7
vTT = 8
vXA = 12
vWA = 16
vSM, vSQ = 20, 22
vNM, vRS, vSC, vRA = 24, 25, 26, 27
vXD = 28
vPW = 32
vCA = 36
vXR = 144
vPK_ = 37
CACHE = {4: sPROG, 7: sPROG1, 5: sC0}

_st = {'n': 0}
C0 = 4
HELP = {'on': False}


def prio(A, hi):
    if HELP['on'] and E('HPRIO', 2) and not HELP.get('hot'):
        A('s_setprio %d', E('HPRIO', 2) if hi else 0)
LP = {}


STSET = os.environ.get('STSET', 'main')


DBGT = E('DBGT', 0)


PROBE = E('PROBE', -1)


DLY = os.environ.get('DLY', '')


def stamp(A, tag='main'):
    if DLY:
        if tag in ('main', 'all'):
            if '%s:%d' % (HELP.get('role', 'c'), _st['n']) == DLY:
                A('s_sleep 16')
            _st['n'] += 1
        return
    if PROBE >= 0:
        if not HELP['on'] and tag in ('main', 'all'):
            if _st['n'] == PROBE:
                A('s_memrealtime s[56:57]')
            _st['n'] += 1
        return
    if DBGT and not HELP['on'] and tag in ('main', 'all'):
        A('s_memrealtime s[%d:%d]', 56 + 2 * _st['n'], 57 + 2 * _st['n'])
        _st['n'] += 1
        return
    if STAMPS and STSET == 'clk' and tag == 'main' and not HELP['on']:
        _st['m'] = _st.get('m', 0) + 1
        if _st['m'] in (1, 2, 4, 8, 10, 13):
            A('s_memtime s[%d:%d]', 56 + 2 * _st['n'], 57 + 2 * _st['n'])
            A('s_memrealtime s[%d:%d]', 58 + 2 * _st['n'], 59 + 2 * _st['n'])
            _st['n'] += 2
        return
    if STAMPS and (tag == STSET or tag == 'all' or (HELP['on'] and tag == 'main')):
        assert _st['n'] < 15, 'too many stamps'
        A('s_memtime s[%d:%d]', 56 + 2 * _st['n'], 57 + 2 * _st['n'])
        _st['n'] += 1


def stamp_flush(A):
    if DBGT and not HELP['on']:
        A('s_waitcnt vmcnt(0)')
        stamp(A, 'all')
        skip = A.label('DS')
        A('s_waitcnt vmcnt(0) lgkmcnt(0)')
        A('s_cmp_ge_u32 s%d, 28', sI)
        A('s_cbranch_scc1 %s', skip)
        A('s_mov_b64 exec, 1')
        A('v_mov_b32 v1, 0')
        A('s_not_b32 s4, s56')
        A('v_mov_b32 v2, s4')
        A('global_atomic_umax v1, v2, s[86:87] offset:60')
        for i in range(_st['n']):
            A('v_mov_b32 v%d, s%d', 8 + i, 56 + 2 * i)
            A('global_atomic_umax v1, v%d, s[86:87] offset:%d', 8 + i, 4 * i)
        A('%s:', skip)
        return
    if STAMPS:
        A('s_waitcnt vmcnt(0)')
        stamp(A, 'all')
        A('s_memrealtime s[4:5]')
        A('s_waitcnt vmcnt(0) lgkmcnt(0)')
        A('s_sub_u32 s4, s4, s86')
        A('s_lshl_b32 s4, s4, 20')
        A('s_and_b32 s86, s86, 0xfffff')
        A('s_or_b32 s86, s86, s4')
        A('s_lshl_b32 s%d, s2, 3', sT)
        A('s_add_u32 s%d, s%d, s%d', sT, sT, sWV)
        A('s_lshl_b32 s%d, s%d, 6', sT, sT)
        A('s_add_u32 s%d, s%d, %d', sT, sT, WS_STAMP)
        A('s_mov_b64 exec, 1')
        A('v_mov_b32 v1, 0')
        for i in range(16):
            if i < _st['n']:
                A('v_mov_b32 v2, s%d', 56 + 2 * i)
            elif i == 15:
                A('v_mov_b32 v2, s86')
            else:
                A('v_mov_b32 v2, 0')
            A('buffer_store_dword v2, v1, s[%d:%d], s%d offen offset:%d', SWS, SWS + 3, sT, 4 * i)
            A('s_nop 1')


def srd(A, d, ptr, size):
    A('s_mov_b32 s%d, s%d', d, ptr)
    A('s_and_b32 s%d, s%d, 0xffff', d + 1, ptr + 1)
    A('s_mov_b32 s%d, 0x%x', d + 2, size)
    A('s_mov_b32 s%d, 0x20000', d + 3)


COLD = []


def cold_block(A, fn):
    ent, back = A.label('CE'), A.label('CB')
    B = sub(A)
    B('%s:', ent)
    B('s_nop 15')
    fn(B, back)
    B('s_nop 7')
    B('s_branch %s', back)
    COLD.extend(B.lines)
    return ent, back


def again(A, br, lo, sleep=0):
    slp = max(sleep * E('SLPMUL', 1), E('HSLP', 0) if HELP['on'] else E('CSLP', 0))
    if slp:
        st = A.label('ZZ')
        COLD.extend(['%s:' % st, '  s_sleep %d' % slp, '  s_branch %s' % lo])
        lo = st
    A('%s %s', br, lo)


def spin_guard(A, done):
    A('s_sub_u32 s%d, s%d, 1', sSPIN, sSPIN)
    A('s_cbranch_scc1 %s', done)


def wait_word(A, w, n, cache=None, sleep=0, body=None):
    sd = sT if cache is None else cache

    def loop(B, done, body=None):
        lo = B.label('W')
        prio(B, 0)
        B('%s:', lo)
        B('ds_read_b32 v%d, v%d offset:%d', vPW, vMI, M_PW + 4 * w)
        k = body() if body else 0
        B('s_waitcnt lgkmcnt(%d)', k)
        B('v_readfirstlane_b32 s%d, v%d', sd, vPW)
        spin_guard(B, done)
        B('s_cmp_ge_u32 s%d, %d', sd, n)
        again(B, 's_cbranch_scc0', lo, sleep)
        prio(B, 1)
    if cache is not None and body is None and not HELP['on']:
        A('s_getpc_b64 s[%d:%d]', sPC, sPC + 1)
        A('s_cmp_ge_u32 s%d, %d', sd, n)
        A('s_cbranch_scc0 REFRESH_%d', w)
        return
    done = A.label('WD')
    if cache is not None and body is None:
        A('s_cmp_ge_u32 s%d, %d', sd, n)
        A('s_cbranch_scc1 %s', done)
    loop(A, done, body)
    A('%s:', done)


def wait_lp(A, name, sleep=0):
    w, n = LP[name]
    wait_word(A, w, n, CACHE[w], sleep)


def set_stage(A, n):
    A('v_mov_b32 v%d, %d', vT0, n)
    A('ds_write_b32 v%d, v%d', vMY, vT0)


def wait_stage(A, n, which=(0, 1, 2, 3), body=None, sleep=0, base=M_PW):
    lo, done = A.label('W'), A.label('WD')
    prio(A, 0)
    A('%s:', lo)
    A('ds_read_b128 v[%d:%d], v%d offset:%d', vPW, vPW + 3, vMI, base + 16 * (which[0] // 4))
    k = body() if body else 0
    A('s_waitcnt lgkmcnt(%d)', k)
    w = [x % 4 for x in which]
    if len(w) == 4:
        A('v_min3_u32 v%d, v%d, v%d, v%d', vPW, vPW, vPW + 1, vPW + 2)
        A('v_min_u32 v%d, v%d, v%d', vPW, vPW, vPW + 3)
        r = vPW
    else:
        A('v_min_u32 v%d, v%d, v%d', vPW + w[0], vPW + w[0], vPW + w[1])
        r = vPW + w[0]
    A('v_readfirstlane_b32 s%d, v%d', sT, r)
    spin_guard(A, done)
    A('s_cmp_ge_u32 s%d, %d', sT, n)
    again(A, 's_cbranch_scc0', lo, sleep)
    A('%s:', done)
    prio(A, 1)


def poll_global(A, soff, nlanes):
    lo, done = A.label('P'), A.label('PD')
    A('v_lshlrev_b32 v%d, 2, v%d', vT1, vL)
    if nlanes <= 32:
        A('s_mov_b64 exec, 0x%x', (1 << nlanes) - 1)
    else:
        A('s_mov_b32 exec_lo, 0x%x', nlanes & 0xffffffff)
        A('s_mov_b32 exec_hi, 0x%x', nlanes >> 32)
    A('%s:', lo)
    A('buffer_load_dword v%d, v%d, s[%d:%d], s%d offen sc1', vT0, vT1, SWS, SWS + 3, soff)
    A('s_waitcnt vmcnt(0)')
    A('v_cmp_ne_u32 vcc, s%d, v%d', sTAG, vT0)
    spin_guard(A, done)
    A('s_cbranch_vccnz %s', lo)
    A('%s:', done)
    A('s_mov_b64 exec, -1')


def poll_scalar(A, soff, n):
    lo, done = A.label('P'), A.label('PD')
    A('s_add_u32 s%d, s%d, s%d', sPC, SWS, soff)
    A('s_addc_u32 s%d, s%d, 0', sPC + 1, SWS + 1)
    base = 76
    assert n == 8
    A('%s:', lo)
    if E('PSLEEP', 0):
        A('s_sleep %d', E('PSLEEP', 0))
    A('s_load_dwordx%d s[%d:%d], s[%d:%d], 0 glc', n, base, base + n - 1, sPC, sPC + 1)
    A('s_waitcnt lgkmcnt(0)')
    A('s_and_b64 s[%d:%d], s[%d:%d], s[%d:%d]', sHI, sHI + 1, base, base + 1, base + 2, base + 3)
    A('s_or_b64 s[%d:%d], s[%d:%d], s[%d:%d]', sPADL, sPADL + 1, base, base + 1, base + 2, base + 3)
    for k in range(4, n, 2):
        A('s_and_b64 s[%d:%d], s[%d:%d], s[%d:%d]', sHI, sHI + 1, sHI, sHI + 1, base + k, base + k + 1)
        A('s_or_b64 s[%d:%d], s[%d:%d], s[%d:%d]', sPADL, sPADL + 1, sPADL, sPADL + 1, base + k, base + k + 1)
    A('s_and_b32 s%d, s%d, s%d', sHI, sHI, sHI + 1)
    A('s_or_b32 s%d, s%d, s%d', sPADL, sPADL, sPADL + 1)
    A('s_xor_b32 s%d, s%d, s%d', sHI, sHI, sTAG)
    A('s_xor_b32 s%d, s%d, s%d', sPADL, sPADL, sTAG)
    spin_guard(A, done)
    A('s_or_b32 s%d, s%d, s%d', sHI, sHI, sPADL)
    A('s_cbranch_scc1 %s', lo)
    A('%s:', done)


def two_ways(A, fn, local):
    if local and FAST:
        ent, back = cold_block(A, lambda B, back: fn(B, ' sc1'))
        A('s_cmp_eq_u32 s%d, 0', sFASTF)
        A('s_cbranch_scc1 %s', ent)
        fn(A, '')
        A('%s:', back)
    else:
        fn(A, ' sc1')


def pub_stores(A, stores, local):
    def fn(B, bits):
        for st in stores:
            B(st % bits)
    two_ways(A, fn, local)


def pub_flag(A, sflag, local, drain=True):
    if drain:
        A('s_waitcnt vmcnt(0)')
    A('s_mov_b64 exec, 1')
    two_ways(A, lambda B, bits: B('buffer_store_dword v%d, v%d, s[%d:%d], s%d offen%s', vTAG, vO, SWS, SWS + 3, sflag,
                                  bits), local)
    A('s_mov_b64 exec, -1')


def pub_flag4(A):
    A('v_lshlrev_b32 v%d, 9, v%d', vT1, vL)
    A('s_waitcnt vmcnt(0)')
    A('s_mov_b64 exec, 15')
    two_ways(A, lambda B, bits: B('buffer_store_dword v%d, v%d, s[%d:%d], s%d offen%s', vTAG, vT1, SWS, SWS + 3, sFL,
                                  bits), True)
    A('s_mov_b64 exec, -1')


def st4(reg, soff, off):
    return 'buffer_store_dwordx4 %s, v%d, s[%d:%d], s%d offen offset:%d%%s' % (v(reg, 4), vO, SWS, SWS + 3, soff, off)


def hilo_c(A, src, f, tmp):
    A('v_cvt_pk_bf16_f32 v%d, v%d, v%d', f, src, src)
    A('v_and_b32 v%d, 0xffff0000, v%d', tmp, f)
    A('v_sub_f32 v%d, v%d, v%d', tmp, src, tmp)
    A('v_cvt_pk_bf16_f32 v%d, v%d, 0', f + 1, tmp)


def hilo_m(A, src, f, tmp):
    A('v_cvt_pk_bf16_f32 v%d, v%d, 0', f + 1, src)
    A('v_lshlrev_b32 v%d, 16, v%d', tmp, f + 1)
    A('v_sub_f32 v%d, v%d, v%d', tmp, src, tmp)
    A('v_cvt_pk_bf16_f32 v%d, v%d, v%d', f, src, tmp)


def ln_finish(A, t0, t1, negmean, rstd):
    A('v_mul_f32 v%d, 0x%x, v%d', t0, 0x3b124925, t0)
    A('v_mov_b32 v%d, v%d', t1, t0)
    A('v_permlane32_swap_b32 v%d, v%d', t0, t1)
    A('v_fma_f32 v%d, -v%d, v%d, v%d', t1, t0, t0, t1)
    A('v_max_f32 v%d, 0, v%d', t1, t1)
    A('v_add_f32 v%d, 0x%x, v%d', t1, 0x3727c5ac, t1)
    A('v_rsq_f32 v%d, v%d', rstd, t1)
    A('v_sub_f32 v%d, 0, v%d', negmean, t0)


def softmax_pm(A, p, sc, e, t):
    A('v_cndmask_b32 v%d, v%d, v%d, s[%d:%d]', p + 12, p + 12, p + 14, sHI, sHI + 1)
    A('v_cndmask_b32 v%d, v%d, v%d, s[%d:%d]', p + 13, p + 13, p + 15, sHI, sHI + 1)
    mx, mn = t, t + 1
    A('v_max3_f32 v%d, v%d, v%d, v%d', mx, p, p + 1, p + 2)
    A('v_min3_f32 v%d, v%d, v%d, v%d', mn, p, p + 1, p + 2)
    for i in range(3, 13, 2):
        A('v_max3_f32 v%d, v%d, v%d, v%d', mx, mx, p + i, p + i + 1)
        A('v_min3_f32 v%d, v%d, v%d, v%d', mn, mn, p + i, p + i + 1)
    A('v_max_f32 v%d, v%d, v%d', mx, mx, p + 13)
    A('v_min_f32 v%d, v%d, v%d', mn, mn, p + 13)
    A('v_sub_f32 v%d, 0, v%d', mn, mn)
    A('v_permlane32_swap_b32 v%d, v%d', mx, mn)
    A('v_max_f32 v%d, v%d, v%d', mx, mx, mn)
    A('v_mul_f32 v%d, v%d, v%d', mx, mx, sc)
    A('v_mov_b32 v%d, v%d', mn, mx)
    A('v_permlane32_swap_b32 v%d, v%d', mx, mn)
    assert sc % 2 == 0 and mx % 2 == 0
    for i in range(0, 14, 2):
        A('v_pk_fma_f32 v[%d:%d], v[%d:%d], v[%d:%d], v[%d:%d] op_sel:[0,0,1] op_sel_hi:[1,0,1] neg_lo:[1,0,1] '
          'neg_hi:[1,0,1]', e + i, e + i + 1, p + i, p + i + 1, sc, sc + 1, mx, mx + 1)
        A('v_pk_fma_f32 v[%d:%d], v[%d:%d], v[%d:%d], v[%d:%d] op_sel_hi:[1,0,0] neg_lo:[0,0,1] neg_hi:[0,0,1]',
          p + i, p + i + 1, p + i, p + i + 1, sc, sc + 1, mx, mx + 1)
    for i in range(14):
        A('v_exp_f32 v%d, v%d', e + i, e + i)
        A('v_exp_f32 v%d, v%d', p + i, p + i)
    if PKSM:
        for base in (p, e):
            A('v_pk_add_f32 v[%d:%d], v[%d:%d], v[%d:%d]', base + 14, base + 15, base, base + 1, base + 2, base + 3)
        for i in range(4, 14, 2):
            for base in (p, e):
                A('v_pk_add_f32 v[%d:%d], v[%d:%d], v[%d:%d]', base + 14, base + 15, base + 14, base + 15, base + i,
                  base + i + 1)
    else:
        for base in (p, e):
            A('v_add_f32 v%d, v%d, v%d', base + 14, base, base + 2)
            A('v_add_f32 v%d, v%d, v%d', base + 15, base + 1, base + 3)
        for i in range(4, 14):
            for base in (p, e):
                A('v_add_f32 v%d, v%d, v%d', base + 14 + (i & 1), base + 14 + (i & 1), base + i)
    sp, sn = t + 2, t
    A('v_add_f32 v%d, v%d, v%d', sp, p + 14, p + 15)
    A('v_add_f32 v%d, v%d, v%d', sn, e + 14, e + 15)
    A('v_permlane32_swap_b32 v%d, v%d', sp, sn)
    A('v_add_f32 v%d, v%d, v%d', sp, sp, sn)
    A('v_rcp_f32 v%d, v%d', sp, sp)
    A('v_mov_b32 v%d, v%d', sn, sp)
    A('v_permlane32_swap_b32 v%d, v%d', sp, sn)
    for i in range(0, 14, 2):
        for base, r in ((p, sp), (e, sn)):
            if PKSM:
                A('v_pk_mul_f32 v[%d:%d], v[%d:%d], v[%d:%d] op_sel_hi:[1,0]', base + i, base + i + 1, base + i,
                  base + i + 1, r, r + 1)
            else:
                A('v_mul_f32 v%d, v%d, v%d', base + i, base + i, r)
                A('v_mul_f32 v%d, v%d, v%d', base + i + 1, base + i + 1, r)
    for i, (a0, a1) in enumerate(((0, 1), (2, 3), (4, 5), (6, None), (7, 8), (9, 10), (11, 12), (13, None))):
        for base in (p, e):
            A('v_cvt_pk_bf16_f32 v%d, v%d, %s', base + i, base + a0, '0' if a1 is None else 'v%d' % (base + a1))


PKSM = E('PKSM', 1)


def silu8(B, acc, e, sd, c1, out):
    for r in range(8):
        B('v_mul_f32 v%d, v%d, v%d', e + r, acc + r, c1)
        if r >= 1:
            B('v_exp_f32 v%d, v%d', e + r - 1, e + r - 1)
    B('v_exp_f32 v%d, v%d', e + 7, e + 7)
    for r in range(8):
        B('v_fma_f32 v%d, v%d, v%d, v%d', e + r, e + r, sd, sd)
        if r >= 1:
            B('v_rcp_f32 v%d, v%d', e + r - 1, e + r - 1)
    B('v_rcp_f32 v%d, v%d', e + 7, e + 7)
    for r in range(8):
        B('v_mul_f32 v%d, v%d, v%d', e + r, e + r, acc + r)
    cvt8(B, out, e, 4)


def cvt8(A, dst, src, n=8):
    for i in range(n):
        A('v_cvt_pk_bf16_f32 v%d, v%d, v%d', dst + i, src + 2 * i, src + 2 * i + 1)


def mfma(A, d, a_, b_, first=False):
    A('%s %s, %s, %s, %s', MFMA, v(d, 16), v(a_, 4), v(b_, 4), '0' if first else v(d, 16))


def merge(main, blocks, start, stop):
    idx = [i for i, l in enumerate(main) if l.strip().startswith('v_mfma')][start:stop]
    out, k = [], 0
    n = len(idx)
    pos = {i: j for j, i in enumerate(idx)}
    for i, l in enumerate(main):
        out.append(l)
        if i in pos:
            upto = (len(blocks) * (pos[i] + 1) + n - 1) // n
            for b in blocks[k:upto]:
                out += b
            k = max(k, upto)
    assert k >= len(blocks)
    return out


def sub(A):
    return Asm()


L_H = (L_A, L_A + 28672, 0, 65536)
W2S = [32768, 40960] + [L_A + k * 8192 for k in range(2)] + [L_SC0, L_SC1] + [L_A + k * 8192 for k in range(2, 7)] + [
    k * 8192 for k in range(4)] + [65536 + k * 8192 for k in range(4)]
W2GATE = {2: 9, 7: 10, 11: 11, 15: 12}
W2RE = dict(zip(range(19, 28), (0, 1, 2, 3, 6, 7, 8, 9, 10)))


def w2_slot(n):
    return W2S[W2RE.get(n, n)]


def w1_slot(c):
    return B16[c % 5]


class LdsQ:
    def __init__(self, A):
        self.A, self.q = A, []
        self.peeked = False

    def op(self, tag, fmt, *a):
        self.A(fmt, *a)
        self.q.append(tag)

    def need(self, tag):
        idx = [i for i, x in enumerate(self.q) if x == tag]
        if not idx:
            return None
        n = len(self.q) - 1 - idx[-1]
        self.q = self.q[idx[-1] + 1:]
        return min(n, 15)

    def wait(self, tag, vm=None):
        n = self.need(tag)
        if n is None and vm is None:
            return
        self.A('s_waitcnt' + ('' if vm is None else ' vmcnt(%d)' % vm) + ('' if n is None else ' lgkmcnt(%d)' % n))

    def stage(self, n):
        set_stage(self.A, n)
        self.q.append('st')

    def peek(self, w):
        if w == 5:
            self.op('pk', 'ds_read_b32 v%d, v%d', vPK_, vCA)
        else:
            self.op('pk', 'ds_read_b32 v%d, v%d offset:%d', vPK_, vMI, M_PW + 4 * w)
        self.peeked = True

    def take(self, w):
        if not self.peeked:
            return
        self.peeked = False
        self.wait('pk')
        self.A('v_readfirstlane_b32 s%d, v%d', CACHE[w], vPK_)


def tag_compute(A, t16=None):
    A('s_waitcnt lgkmcnt(0)')
    if t16 is not None:
        A('s_lshr_b32 s%d, s%d, 16', sT2, sTAG)
    A('s_mul_i32 s%d, s%d, 0x%x', sTAG, sTAG, 1664525)
    A('s_add_u32 s%d, s%d, 0x%x', sTAG, sTAG, 1013904223)
    A('v_mov_b32 v%d, s%d', vTAG, sTAG)
    if t16 is not None:
        A('s_and_b32 s%d, s%d, 0x3fff', t16, sTAG)
        A('s_and_b32 s%d, s%d, 0x4000', sT, sTAG)
        A('s_lshl_b32 s%d, s%d, 1', sT, sT)
        A('s_or_b32 s%d, s%d, s%d', t16, t16, sT)
        A('s_cmp_eq_u32 s%d, s%d', t16, sT2)
        A('s_cselect_b32 s%d, 1, 0', sT)
        A('s_xor_b32 s%d, s%d, s%d', t16, t16, sT)
        A('s_lshl_b32 s%d, s%d, 16', t16, t16)


def fast_check(A):
    A('s_getreg_b32 s%d, hwreg(HW_REG_XCC_ID)', sC)
    A('s_and_b32 s%d, s%d, 15', sC, sC)
    A('s_add_u32 s%d, s%d, s%d', sC, sC, sTAG)
    A('s_lshl_b32 s%d, s%d, 7', sT, sXCD)
    A('s_add_u32 s%d, s%d, %d', sT, sT, FREG)
    A('v_and_b32 v%d, 31, v%d', vT1, vL)
    A('v_lshlrev_b32 v%d, 2, v%d', vT1, vT1)
    A('buffer_load_dword v%d, v%d, s[%d:%d], s%d offen sc1', vT0, vT1, SWS, SWS + 3, sT)
    A('s_waitcnt vmcnt(0)')
    A('v_cmp_ne_u32 vcc, s%d, v%d', sC, vT0)
    A('s_cmp_eq_u64 vcc, 0')
    A('s_cselect_b32 s%d, 1, 0', sFASTF)


class Stream:
    def __init__(self, A, wave, depth, first=0):
        self.A, self.wave, self.depth = A, wave, depth
        self.items = []
        self.issued = 0
        self.known = 0
        self.n = first

    def wait_to(self, left):
        if self.issued - left <= self.known:
            return
        self.A('s_waitcnt vmcnt(%d)', left)
        self.known = self.issued - left
        last = None
        while self.items and self.items[0][1] <= self.known:
            last = self.items.pop(0)[0]
        if last is not None:
            set_stage(self.A, last)

    def room(self, k):
        self.wait_to(max(self.depth - k, 0))
        self.issued += k

    def done(self, name, cnt=None):
        self.n += 1
        assert LP.setdefault(name, (self.wave, self.n)) == (self.wave, self.n), name
        self.items.append((self.n, self.issued))

    def drain(self):
        self.drain_to(0)

    def drain_to(self, keep):
        while len(self.items) > keep:
            self.wait_to(self.issued - self.items[0][1])

    def save(self):
        return (list(self.items), self.issued, self.known)

    def restore(self, s):
        self.items, self.issued, self.known = list(s[0]), s[1], s[2]

    def dma4(self, lds, voffs, srd_, step=None, bits=''):
        A = self.A
        if isinstance(lds, tuple):
            A('s_add_u32 m0, s%d, %d', lds[0], lds[1])
        else:
            A('s_mov_b32 m0, %d', lds)
        self.room(4)
        for u in range(4):
            A('buffer_load_dwordx4 v%d, s[%d:%d], s%d offen offset:%d%s lds', voffs[u], srd_, srd_ + 3, sT, u * 1024,
              bits)
        if step:
            A('s_add_u32 s%d, s%d, %d', sT, sT, step)


def reg4(St, regs, voffs, srd_, step=None):
    St.room(4)
    for u in range(4):
        St.A('buffer_load_dwordx4 %s, v%d, s[%d:%d], s%d offen offset:%d', v(regs[u], 4), voffs[u], srd_, srd_ + 3, sT,
             u * 1024)
    if step:
        St.A('s_add_u32 s%d, s%d, %d', sT, sT, step)


def spill(St, name, regs, lds):
    A = St.A
    assert not St.items
    A('v_add_u32 v%d, %d, v%d', vT1, lds, vO)
    A('s_setprio %d', E('SPRIO', 0))
    for j, r in enumerate(regs):
        A('ds_write_b128 v%d, %s offset:%d', vT1, v(r, 4), j * 1024)
    St.n += 1
    assert LP.setdefault(name, (St.wave, St.n)) == (St.wave, St.n), name
    set_stage(A, St.n)


def off128(A, vW128, vXo=None):
    A('v_lshrrev_b32 v%d, 3, v%d', vW128, vL)
    A('v_mul_u32_u24 v%d, 896, v%d', vW128, vW128)
    A('v_and_b32 v%d, 7, v%d', vT1, vL)
    if vXo is not None:
        A('v_lshl_add_u32 v%d, v%d, 4, v%d', vXo, vT1, vW128)
        spread4(A, vXo, 8 * 896)
    A('v_lshrrev_b32 v%d, 2, v%d', vT0, vL)
    A('v_and_b32 v%d, 4, v%d', vT0, vT0)
    A('v_xor_b32 v%d, v%d, v%d', vT1, vT1, vT0)
    A('v_lshl_add_u32 v%d, v%d, 4, v%d', vW128, vT1, vW128)
    spread4(A, vW128, 8 * 896)


def off256(A, vW256):
    A('v_lshrrev_b32 v%d, 4, v%d', vW256, vL)
    A('v_mul_u32_u24 v%d, 3584, v%d', vW256, vW256)
    A('v_and_b32 v%d, 15, v%d', vT1, vL)
    A('v_lshrrev_b32 v%d, 2, v%d', vT0, vL)
    A('v_and_b32 v%d, 12, v%d', vT0, vT0)
    A('v_xor_b32 v%d, v%d, v%d', vT1, vT1, vT0)
    A('v_lshl_add_u32 v%d, v%d, 4, v%d', vW256, vT1, vW256)
    spread4(A, vW256, 4 * 3584)


def h_stream(A, first):
    wave = 7
    St = Stream(A, wave, E('HDEPTH', 24), first)
    if wave == 7:
        A('s_lshl_b32 s%d, s%d, 17', sB, sTB3)
        A('s_add_u32 s%d, s%d, %d', sB, sB, WS_HB + (0x40000000 if E('ABL', 0) & 128 else 0))
        rot_calc(A, sG, 'w1')
        for u in range(7):
            rot_idx(A, 4 + u, sG, u, 7)
            A('s_lshl_b32 s%d, s%d, 12', 4 + u, 4 + u)
            A('s_add_u32 s%d, s%d, s%d', 4 + u, 4 + u, sB)
            A('s_add_u32 s%d, s%d, 4096', 4 + u, 4 + u)
        A('s_lshl_b32 s%d, s%d, 8', sT2, sTB3)
        A('s_add_u32 s%d, s%d, %d', sT2, sT2, F3)
        A('v_lshlrev_b32 v%d, 2, v%d', vT1, vL)
        A('s_and_b32 s%d, s%d, 1', sC, sFB)
        A('s_lshl_b32 s%d, s%d, 16', sC, sC)
        HALF = E('HHALF', 1)
        sMK = sODD
        A('s_bitcmp1_b32 s%d, 0', sFB)
        A('s_cselect_b32 s%d, %s, 0x3fff3fff', sMK, '0' if HALF else '0x3fff3fff')
        A('s_cselect_b32 s%d, 0x3fff3fff, %s', sMK + 1, '0' if HALF else '0x3fff3fff')
        A('v_mov_b32 v41, v%d', vT1)

        def poll(B, done):
            lo = B.label('P')
            B('%s:', lo)
            B('buffer_load_dword v42, v41, s[%d:%d], s%d offen sc1', SWS, SWS + 3, sM0)
            B('s_waitcnt vmcnt(0)')
            B('v_cmp_ne_u32 vcc, s%d, v42', sTAG)
            spin_guard(B, done)
            B('s_and_b64 vcc, vcc, s[%d:%d]', sMK, sMK + 1)
            B('s_cbranch_scc1 %s', lo)
        A('s_mov_b32 s%d, s%d', sM0, sT2)
        wait_stage(A, C0 + 7, sleep=1)
        stamp(A)
        done = A.label('PD')
        poll(A, done)
        A('%s:', done)
        stamp(A)
        for gi in range(4):
            if gi == 1 and HALF:
                St.room(1)
                A('buffer_load_dword v42, v41, s[%d:%d], s%d offen sc1', SWS, SWS + 3, sM0)
                mark = St.issued
                A('s_mov_b32 s%d, 0x3fff3fff', sMK)
                A('s_mov_b32 s%d, 0x3fff3fff', sMK + 1)
            if gi == 2:
                wait_stage(A, C0 + 8)
                if HALF:
                    St.wait_to(St.issued - mark)
                    ent, back = cold_block(A, poll)
                    A('v_cmp_ne_u32 vcc, s%d, v42', sTAG)
                    A('s_and_b64 vcc, vcc, s[%d:%d]', sMK, sMK + 1)
                    A('s_cbranch_scc1 %s', ent)
                    A('%s:', back)
            if gi:
                A('s_xor_b32 s%d, s%d, %d', sC, sC, (gi ^ (gi - 1)) << 15)
            St.depth = E('HDEPTH0', 24) if gi == 0 else E('HDEPTH', 24)
            for u in range(7):
                A('s_add_u32 s%d, s%d, s%d', sT, 4 + u, sC)
                St.dma4(L_H[gi] + u * 4096, [vO] * 4, SWS, None, LDB)
                if u in HITEMS[gi > 0]:
                    St.done(('h', gi, u))
                if u == (E('HSPOS', 3) if gi == 0 else 0):
                    A('s_add_u32 s%d, s%d, s%d', sT, sB, sC)
                    St.dma4(L_SC0 + gi * 4096, [vO] * 4, SWS, None, ' sc1')
                    St.done(('hs', gi))
        St.drain()
    stamp(A)


def spread4(A, base, step):
    for u in range(1, 4):
        A('v_add_u32 v%d, %d, v%d', base + u, u * (step - 1024), base)


def wtr_base(A):
    A('v_lshrrev_b32 v%d, 5, v%d', vT1, vL)
    A('v_bfe_u32 v%d, v%d, 2, 2', vT0, vL)
    A('v_lshl_add_u32 v%d, v%d, 3, v%d', vT0, vT1, vT0)
    A('v_lshlrev_b32 v%d, 6, v%d', vT0, vT0)
    A('v_bfe_u32 v%d, v%d, 4, 1', vTT, vL)
    A('v_lshl_add_u32 v%d, v%d, 5, v%d', vT0, vTT, vT0)
    A('v_and_b32 v%d, 3, v%d', vTT, vL)
    A('v_lshl_add_u32 v%d, v%d, 3, v%d', vT0, vTT, vT0)
    for pi in range(3):
        A('v_add_u32 v%d, %d, v%d', vWA + pi, L_WP[pi], vT0)
    A('v_lshlrev_b32 v%d, 3, v%d', vCA, vL)
    A('v_add_u32 v%d, %d, v%d', vCA, L_CF, vCA)


def sel_frags(A, vID):
    A('v_lshrrev_b32 v%d, 5, v%d', vT1, vL)
    A('v_and_b32 v%d, 31, v%d', vT0, vL)
    A('v_lshlrev_b32 v%d, 2, v%d', vTT, vT1)
    A('v_sub_u32 v%d, v%d, v%d', vT0, vT0, vTT)
    A('v_mov_b32 v%d, 0x3f80', vTT)
    A('v_mov_b32 v%d, 0x3f800000', vTT + 1)
    for sidx in range(2):
        for rr in range(4):
            m = 16 * sidx + 8 * (rr >> 1) + 2 * (rr & 1)
            A('v_cmp_eq_u32 vcc, %d, v%d', m, vT0)
            A('v_cndmask_b32 v%d, 0, v%d, vcc', vID + 4 * sidx + rr, vTT)
            A('v_cmp_eq_u32 vcc, %d, v%d', m + 1, vT0)
            A('v_cndmask_b32 v%d, v%d, v%d, vcc', vID + 4 * sidx + rr, vID + 4 * sidx + rr, vTT + 1)


def read_w(A, pi, i, buf, sleep=0):
    wait_lp(A, ('W', pi, i), sleep)
    for q in range(4):
        for z in range(2):
            A('ds_read_b64_tr_b16 v[%d:%d], v%d offset:%d', buf + 4 * q + 2 * z, buf + 4 * q + 2 * z + 1,
              vWA + pi, i * 4096 + q * 1024 + z * 256)


def colsum(A, spi):
    vCS, vB_, buf = 40, 44, 48
    A('v_mov_b32 v%d, 0', vCS)
    A('v_mov_b32 v%d, 0', vCS + 1)
    A('s_cmp_eq_u32 s%d, 1', spi)
    A('s_cselect_b32 s%d, 0, %d', sT, L_WP[2])
    A('s_cmp_eq_u32 s%d, 0', spi)
    A('s_cselect_b32 s%d, %d, s%d', sT, L_WP[0], sT)
    assert L_WP[1] == 0
    A('v_add_u32 v%d, s%d, v%d', vB_, sT, vWA + 1)
    A('s_mul_i32 s%d, s%d, 7', sC, spi)
    A('s_add_u32 s%d, s%d, 7', sT2, sC)
    top, lo, ok = A.label('CS'), A.label('W'), A.label('WD')
    A('%s:', top)
    A('s_cmp_gt_u32 s%d, s%d', sPROG, sC)
    A('s_cbranch_scc1 %s', ok)
    prio(A, 0)
    A('%s:', lo)
    A('ds_read_b32 v%d, v%d offset:%d', vPW, vMI, M_PW + 16)
    A('s_waitcnt lgkmcnt(0)')
    A('v_readfirstlane_b32 s%d, v%d', sPROG, vPW)
    spin_guard(A, ok)
    A('s_cmp_gt_u32 s%d, s%d', sPROG, sC)
    again(A, 's_cbranch_scc0', lo)
    prio(A, 1)
    A('%s:', ok)
    for q in range(4):
        for z in range(2):
            A('ds_read_b64_tr_b16 v[%d:%d], v%d offset:%d', buf + 4 * q + 2 * z, buf + 4 * q + 2 * z + 1, vB_,
              q * 1024 + z * 256)
    A('ds_read_b32 v%d, v%d offset:%d', vPW, vMI, M_PW + 16)
    A('v_add_u32 v%d, 4096, v%d', vB_, vB_)
    A('s_add_u32 s%d, s%d, 1', sC, sC)
    for q in range(4):
        A('s_waitcnt lgkmcnt(%d)', 7 - 2 * q)
        for r in range(4):
            A('v_dot2c_f32_bf16 v%d, s%d, v%d', vCS + (r & 1), sONES, buf + 4 * q + r)
    A('s_waitcnt lgkmcnt(0)')
    A('v_readfirstlane_b32 s%d, v%d', sPROG, vPW)
    A('s_cmp_lt_u32 s%d, s%d', sC, sT2)
    A('s_cbranch_scc1 %s', top)
    A('v_add_f32 v%d, v%d, v%d', vCS, vCS, vCS + 1)
    hilo_c(A, vCS, vCS + 2, vT0)
    A('s_lshl_b32 s%d, s%d, 9', sT, spi)
    A('v_add_u32 v%d, s%d, v%d', vB_, sT, vCA)
    A('ds_write_b64 v%d, v[%d:%d]', vB_, vCS + 2, vCS + 3)


ROT = E('ROT', 1)
HITEMS = ((1, 3, 5, 6), (1, 3, 6))
W7ST = 0
LATE = E('LATE', 0)
W2R = E('W2R', 0)


def rot_calc(A, dst, kind):
    if not ROT:
        A('s_mov_b32 s%d, 0', dst)
        return
    if kind == 'w1':
        A('s_and_b32 s%d, s%d, 1', dst, sTB3)
        A('s_mul_i32 s%d, s%d, %d', dst, dst, 4 if LATE else 3)
        mod = 7
    elif kind == 'wo':
        A('s_and_b32 s%d, s%d, 3', dst, sTQ)
        A('s_lshl_b32 s%d, s%d, 1', dst, dst)
        mod = 7
    else:
        A('s_and_b32 s%d, s%d, 3', dst, sTQ)
        A('s_mul_i32 s%d, s%d, 7', dst, dst)
        A('s_lshr_b32 s%d, s%d, 1', dst, dst)
        mod = 14
    A('s_add_u32 s%d, s%d, s%d', dst, dst, sXCD)
    if kind == 'w1' and E('ROTFB', 1):
        A('s_lshr_b32 s%d, s%d, 1', sT, sFB)
        A('s_add_u32 s%d, s%d, s%d', dst, dst, sT)
        A('s_mul_i32 s%d, s%d, 37', sT, dst)
        A('s_lshr_b32 s%d, s%d, 8', sT, sT)
        A('s_mul_i32 s%d, s%d, 7', sT, sT)
        A('s_sub_u32 s%d, s%d, s%d', dst, dst, sT)
        return
    A('s_cmp_ge_u32 s%d, %d', dst, mod)
    A('s_cselect_b32 s%d, %d, 0', sT, mod)
    A('s_sub_u32 s%d, s%d, s%d', dst, dst, sT)


def rot_idx(A, dst, rot, j, mod):
    A('s_add_u32 s%d, s%d, %d', dst, rot, j)
    A('s_cmp_ge_u32 s%d, %d', dst, mod)
    A('s_cselect_b32 s%d, %d, 0', sT2, mod)
    A('s_sub_u32 s%d, s%d, s%d', dst, dst, sT2)


def blk_init(A, sb, sst, kh):
    A('s_and_b32 s%d, s%d, 1', sb, sTQ)
    if isinstance(kh, str):
        A('s_xor_b32 s%d, s%d, %s', sb, sb, kh)
    elif kh:
        A('s_xor_b32 s%d, s%d, 1', sb, sb)
    A('s_lshr_b32 s%d, s%d, 1', sT, sTQ)
    A('s_xor_b32 s%d, s%d, s%d', sT, sT, sXCD)
    A('s_sub_u32 s%d, 6, s%d', sT2, sb)
    A('s_bitcmp1_b32 s%d, 0', sT)
    A('s_cselect_b32 s%d, s%d, s%d', sb, sT2, sb)
    A('s_cselect_b32 s%d, 5, 2', sst)


def blk_next(A, sb, sst):
    A('s_add_u32 s%d, s%d, s%d', sb, sb, sst)
    A('s_cmp_ge_u32 s%d, 7', sb)
    A('s_cselect_b32 s%d, 7, 0', sT2)
    A('s_sub_u32 s%d, s%d, s%d', sb, sb, sT2)


def rest_srds(A):
    A('s_add_u32 s82, s80, %d', FEP)
    A('s_addc_u32 s83, s81, 0')
    A('s_load_dword s%d, s[82:83], 0', sTAG)
    srd(A, SP, 68, H * DH * DH * 2)
    A('s_mul_i32 s%d, s%d, 37', sTQ, sI)
    A('s_lshr_b32 s%d, s%d, 8', sTQ, sTQ)
    A('s_mul_i32 s%d, s%d, 7', sNB, sTQ)
    A('s_sub_u32 s%d, s%d, s%d', sNB, sI, sNB)
    A('s_lshr_b32 s%d, s%d, 1', sTB3, sTQ)
    A('s_mul_i32 s%d, s%d, 14', sFB, sTB3)
    A('s_sub_u32 s%d, s%d, s%d', sFB, sI, sFB)
    A('s_lshl2_add_u32 s%d, s%d, s%d', sTQ, sXCD, sTQ)
    A('s_lshl1_add_u32 s%d, s%d, s%d', sTB3, sXCD, sTB3)
    A('v_lshlrev_b32 v%d, 4, v%d', vO, vL)
    A('s_mov_b32 s%d, 0', sFASTF)
    A('s_mov_b32 s%d, 0x%x', sONES, ONES)
    ABL = E('ABL', 0)
    srd(A, SWO, 70, 0 if ABL & 1 else D * D * 2)
    srd(A, SW1, 74, 0 if ABL & 2 else D * F * 2)
    srd(A, SW2, 76, 0 if ABL & 4 else D * F * 2)
    srd(A, SOUT, 78, S * D * 2)
    srd(A, SWS, 80, WS_SIZE)


def rot_next(A):
    A('s_add_u32 s%d, s%d, 1', sC, sC)
    A('s_cmp_eq_u32 s%d, 7', sC)
    A('s_cselect_b32 s%d, 0, s%d', sC, sC)


def sig_dyn(A, sval):
    A('v_mov_b32 v%d, s%d', vT0, sval)
    A('ds_write_b32 v%d, v%d', vMY, vT0)


def x_offsets(A):
    A('v_lshrrev_b32 v%d, 3, v%d', vT0, vL)
    A('v_mul_u32_u24 v%d, 896, v%d', vT0, vT0)
    A('v_lshrrev_b32 v%d, 4, v%d', vT1, vL)
    A('v_and_b32 v%d, 7, v%d', vXD, vL)
    A('v_xor_b32 v%d, v%d, v%d', vXD, vXD, vT1)
    A('v_xor_b32 v%d, 4, v%d', vXD + 1, vXD)
    A('v_lshl_add_u32 v%d, v%d, 4, v%d', vXD, vXD, vT0)
    A('v_lshl_add_u32 v%d, v%d, 4, v%d', vXD + 1, vXD + 1, vT0)
    A('v_add_u32 v%d, %d, v%d', vXD + 1, 8 * 896 - 1024, vXD + 1)
    A('v_add_u32 v%d, %d, v%d', vXD + 2, 2 * (8 * 896 - 1024), vXD)
    A('v_add_u32 v%d, %d, v%d', vXD + 3, 2 * (8 * 896 - 1024), vXD + 1)
    A('s_mul_i32 s%d, s%d, %d', sXB, sTB, 0 if E('AB2', 0) & 16 else 128 * 896)


def w_offsets(A):
    vW = 40
    A('v_lshrrev_b32 v%d, 2, v%d', vW, vL)
    A('v_mul_u32_u24 v%d, 2688, v%d', vW, vW)
    A('v_and_b32 v%d, 3, v%d', vT1, vL)
    A('v_lshl_add_u32 v%d, v%d, 4, v%d', vW, vT1, vW)
    A('s_mul_i32 s%d, s%d, %d', sT, sH, 0 if E('AB2', 0) & 8 else 56)
    A('s_and_b32 s%d, s%d, 0xfffffff0', sT, sT)
    A('v_add_u32 v%d, s%d, v%d', vW, sT, vW)
    spread4(A, vW, 16 * 2688)


def early_x(A):
    depth = E('XDEPTH', 20)
    wsig = ((depth - 4) // 4) % 4
    lag = (depth - 4 - 4 * wsig) // 16
    A('s_mov_b32 s%d, %d', sG, 1 - lag)
    A('s_mov_b32 m0, %d', L_X + 16384)
    A('s_mov_b32 s%d, s%d', sC, sC0)
    rot_next(A)
    top = A.label('XL')
    A('%s:', top)
    A('s_lshl_b32 s%d, s%d, 7', sT, sC)
    A('s_add_u32 s%d, s%d, s%d', sT, sT, sXB)
    for w in range(4):
        A('s_waitcnt vmcnt(%d)', depth - 4)
        if w == wsig:
            A('s_max_i32 s%d, s%d, 0', sT2, sG)
            sig_dyn(A, sT2)
        for u in range(4):
            A('buffer_load_dwordx4 v%d, s[%d:%d], s%d offen offset:%d lds', vXD + u, SX, SX + 3, sT, u * 1024)
        A('s_add_u32 m0, m0, 4096')
        if w < 3:
            A('s_add_u32 s%d, s%d, %d', sT, sT, 32 * 896)
    rot_next(A)
    A('s_add_u32 s%d, s%d, 1', sG, sG)
    A('s_cmp_lt_i32 s%d, %d', sG, 7 - lag)
    A('s_cbranch_scc1 %s', top)
    stamp(A)
    for n in range(7 - lag, 8):
        A('s_waitcnt vmcnt(%d)', 16 * (7 - n))
        set_stage(A, n)


def early_w(A):
    vW = 40

    def part_loop(pi, depth, floor):
        lag = (depth - 4) // 4
        stamp(A)
        A('s_mov_b32 s%d, s%d', sC, sC0)
        A('s_mov_b32 s%d, %d', sG, 7 * pi - lag)
        A('s_mov_b32 m0, %d', L_WP[pi])
        top = A.label('WL')
        A('%s:', top)
        A('s_mul_i32 s%d, s%d, %d', sT, sC, 64 * 2688)
        A('s_add_u32 s%d, s%d, %d', sT, sT, (1, 2, 0)[pi] * 896)
        A('s_max_i32 s%d, s%d, %d', sT2, sG, floor)
        A('s_waitcnt vmcnt(%d)', depth - 4)
        sig_dyn(A, sT2)
        for u in range(4):
            A('buffer_load_dwordx4 v%d, s[%d:%d], s%d offen offset:%d lds', vW + u, SW, SW + 3, sT, u * 1024)
        A('s_add_u32 m0, m0, 4096')
        rot_next(A)
        A('s_add_u32 s%d, s%d, 1', sG, sG)
        A('s_cmp_lt_i32 s%d, %d', sG, 7 * pi + 7 - lag)
        A('s_cbranch_scc1 %s', top)
        return lag
    if E('WTWAIT', 1):
        A('s_waitcnt vmcnt(0)')
    lag = part_loop(0, E('WDEPTH', 12), 0)
    for n in range(7 - lag, 8):
        A('s_waitcnt vmcnt(%d)', 4 * (7 - n))
        set_stage(A, n)


def gen_h0(A):
    St = Stream(A, 4, E('WDEPTH2', 24), 7)
    vW, vW128, vXo, vW256 = 36, 12, 16, 20
    q4 = lambda b: [b, b + 1, b + 2, b + 3]
    for u in range(4):
        A('v_mov_b32 v%d, v%d', vW + u, 40 + u)
    rest_srds(A)
    off128(A, vW128)
    off256(A, vW256)
    A('s_lshl_b32 s%d, s%d, 7', sB, sNB)
    sR1, sRO = sG, sKH
    rot_calc(A, sR1, 'w1')
    rot_calc(A, sRO, 'wo')
    sBK, sBS = [8, 9], 10
    blk_init(A, sBK[0], sBS, 0)
    blk_init(A, sBK[1], sBS, 1)

    def wpart(pi):
        wait_stage(A, pi)
        if pi == 1 and E('XG2', 4) >= 0:
            wait_lp(A, ('x', E('XG2', 4)))
        stamp(A)
        for i in range(7):
            rot_idx(A, sT, sC0, i, 7)
            A('s_mul_i32 s%d, s%d, %d', sT, sT, 64 * 2688)
            if pi == 1:
                A('s_add_u32 s%d, s%d, %d', sT, sT, 2 * 896)
            St.dma4(L_WP[pi] + i * 4096, q4(vW), SW)
            St.done(('W', pi, i))

    def wq():
        wpart(2)
    wpart(1)
    St.drain_to(E('WVKEEP', 7))
    lend = A.label('LEND')
    act = A.label('ACT')
    A('s_cmp_lt_u32 s%d, 28', sI)
    A('s_cbranch_scc1 %s', act)
    keep, n0 = St.save(), _st['n']
    wq()
    St.drain()
    St.restore(keep)
    St.n = 14
    if E('TOUCH', 1):
        def touch(srd_, base, per_xcd, n):
            A('s_mul_i32 s%d, s%d, %d', sT, sXCD, per_xcd)
            A('s_sub_u32 s%d, s%d, 28', sT2, sI)
            A('s_mul_i32 s%d, s%d, %d', sT2, sT2, n * 8192)
            A('s_add_u32 s%d, s%d, s%d', sT, sT, sT2)
            A('s_add_u32 s%d, s%d, %d', sT, sT, base)
            A('s_mov_b32 s%d, %d', sC, n)
            lo = A.label('T')
            A('%s:', lo)
            A('buffer_load_dword v%d, v%d, s[%d:%d], s%d offen sc1', vW + 1, vW, srd_, srd_ + 3, sT)
            A('s_add_u32 s%d, s%d, 8192', sT, sT)
            A('s_waitcnt vmcnt(%d)', E('TDEPTH', 6))
            A('s_sub_u32 s%d, s%d, 1', sC, sC)
            A('s_cmp_lg_u32 s%d, 0', sC)
            A('s_cbranch_scc1 %s', lo)
        A('v_lshlrev_b32 v%d, 7, v%d', vW, vL)
        if E('W2M', 1) == 2:
            touch(SW2, 0, 4 * 7 * 8192, 7)
        if E('TEARLY', 0):
            wait_stage(A, 3, (5, 6), sleep=2)
        else:
            wait_stage(A, C0 + 5, sleep=2)
        stamp(A)
        if HLATE and not WTO:
            touch(SWS, WS_HB, 262144, 8)
        if E('W2M', 1) == 1:
            touch(SW2, 0, 4 * 7 * 8192, 7)
        stamp(A)
        if not WT1:
            touch(SWS, WS_H1B, 8 * 112 * 1024, 28)
        stamp(A)
        if E('W2WARM', 0):
            touch(SW2, 0, 0, 49)
        stamp(A)
        if E('H1PF', 0) and WT1:
            tag_compute(A)
            A('s_lshl2_add_u32 s%d, s%d, s%d', sG, sXCD, sI)
            A('s_sub_u32 s%d, s%d, 28', sG, sG)
            A('s_lshl_b32 s%d, s%d, 8', sM0, sG)
            A('s_add_u32 s%d, s%d, %d', sM0, sM0, F4)
            A('v_lshlrev_b32 v%d, 2, v%d', vW + 2, vL)
            A('s_bitcmp1_b32 s%d, 0', sG)
            A('s_mov_b32 s8, 0x0f0f0f0f')
            A('s_mov_b32 s9, 0x000f0f0f')
            A('s_cselect_b32 s8, 0xf0f0f0f0, s8')
            A('s_cselect_b32 s9, 0x00f0f0f0, s9')
            for ph in range(E('H1PF', 0)):
                lo, done = A.label('P'), A.label('PD')
                if ph == 0:
                    A('s_mov_b64 exec, s[8:9]')
                else:
                    A('s_mov_b32 exec_hi, 0xffffff')
                A('%s:', lo)
                A('buffer_load_dword v%d, v%d, s[%d:%d], s%d offen sc1', vT1, vW + 2, SWS, SWS + 3, sM0)
                A('s_waitcnt vmcnt(0)')
                A('v_cmp_ne_u32 vcc, s%d, v%d', sTAG, vT1)
                spin_guard(A, done)
                again(A, 's_cbranch_vccnz', lo, 2)
                A('%s:', done)
                A('s_mov_b64 exec, -1')
                A('s_and_b32 s%d, s%d, 1', sT, sG)
                if ph:
                    A('s_xor_b32 s%d, s%d, 1', sT, sT)
                A('s_lshl_b32 s%d, s%d, 13', sT, sT)
                A('s_mul_i32 s%d, s%d, %d', sT2, sG, 224 * 1024)
                A('s_add_u32 s%d, s%d, s%d', sT, sT, sT2)
                A('s_add_u32 s%d, s%d, %d', sT, sT, WS_H1B)
                for b in (1, 5, 2, 4, 0, 6, 3):
                    for g_ in range(2):
                        A('s_add_u32 s%d, s%d, %d', sT2, sT, b * 16384 + g_ * 112 * 1024)
                        A('buffer_load_dword v%d, v%d, s[%d:%d], s%d offen sc1', vW + 1, vW, SWS, SWS + 3, sT2)
    _st['n'] = n0
    A('s_branch %s', lend)
    A('%s:', act)

    def w1_off(c):
        rot_idx(A, sT, sR1, c, 7)
        A('s_mul_i32 s%d, s%d, %d', sT, sT, 64 * 3584)
        if not E('AB2', 0) & 2:
            A('s_lshl_b32 s%d, s%d, 8', sT2, sFB)
            A('s_add_u32 s%d, s%d, s%d', sT, sT, sT2)

    def w1_chunk(c):
        w1_off(c)
        for u in range(4):
            St.dma4(w1_slot(c) + u * 4096, q4(vW256), SW1, 16 * 3584 if u < 3 else None)
        St.done(('w1', c), 16)

    def w2_item(n):
        c, kh = n >> 1, n & 1
        A('s_mul_i32 s%d, s%d, %d', sT, sBK[kh], 128 * 896)
        if not E('AB2', 0) & 4:
            A('s_add_u32 s%d, s%d, s%d', sT, sT, sB)
        if kh or (c & 1):
            A('s_add_u32 s%d, s%d, %d', sT, sT, (kh * 896 + (c & 1) * 64) * 896)
        if c & 1:
            blk_next(A, sBK[kh], sBS)
        for u in range(2):
            St.dma4(w2_slot(n) + u * 4096, q4(vW128), SW2, 32 * 896 if u < 1 else None)
        St.done(('w2', n), 8)

    SR = [24, 28] + list(range(40, 256, 4))

    def staged(c0=0, c1=3):
        for u in range(4 * c0, 4 * c1):
            if u % 4 == 0:
                w1_off((0 if LATE else 4) + u // 4)
            reg4(St, SR[8 + 4 * u:12 + 4 * u], q4(vW256), SW1, 16 * 3584)

    def wo():
        St.drain_to(3)
        wait_stage(A, 3)
        wait_word(A, 5, 1)
        stamp(A)
        for c in range(7):
            rot_idx(A, sC, sRO, c, 7)
            A('s_mul_i32 s%d, s%d, %d', sT, sC, 64 * 896)
            if not E('AB2', 0) & 1:
                A('s_add_u32 s%d, s%d, s%d', sT, sT, sB)
            A('s_lshl_b32 s%d, s%d, 13', sC, sC)
            for u in range(2):
                St.dma4((sC, L_A + u * 4096), q4(vW128), SWO, 32 * 896 if u < 1 else None)
            if c == 2:
                St.depth = E('LDEPTH', 32)
        St.done('wo')
    staged(0, E('NSQ', 2))
    wq()
    staged(E('NSQ', 2), 3)
    wo()
    stamp(A)
    wait_stage(A, 2, (5, 6))
    stamp(A)
    if LATE:
        n3 = St.n
        St.n += 3
        w1_chunk(3)
        St.items, it3 = St.items[:-1], St.items[-1]
        St.drain()
        St.wait_to(16)
        St.n = n3
        for c in range(3):
            spill(St, ('w1', c), SR[8 + 16 * c:24 + 16 * c], w1_slot(c))
        St.n += 1
        St.items = [it3]
        St.drain()
        stamp(A)
        wait_stage(A, C0 + 3)
        wait_word(A, 7, 9)
        wait_stage(A, 1, base=M_CP)
        if LATE == 1:
            wait_stage(A, 1, base=M_LD)
        elif LATE == 2:
            wait_stage(A, 3, (5, 6))
        St.depth = E('LATEDEPTH', 20)
        for c in (4, 5, 6):
            w1_chunk(c)
        St.drain()
    else:
        for c in range(4):
            w1_chunk(c)
        St.drain()
        St.wait_to(0)
        stamp(A)
        wait_stage(A, C0 + 3)
        wait_word(A, 7, 9)
        spill(St, ('w1', 4), SR[8:24], w1_slot(4))
        wait_stage(A, 1, base=M_CP)
        spill(St, ('w1', 5), SR[24:40], w1_slot(5))
        spill(St, ('w1', 6), SR[40:56], w1_slot(6))
    stamp(A)
    wait_stage(A, C0 + 8, sleep=2)
    wait_lp(A, ('h', E('W2AFTER', 2), E('W2AFTERQ', 1)), 1)
    stamp(A)
    St.depth = E('W2DEPTH', 32)
    for n in range(28):
        if n in W2GATE:
            wait_stage(A, C0 + W2GATE[n])
        if n == 4:
            wait_stage(A, 5, (5, 6))
        if n == 19:
            stamp(A)
            St.depth = E('W2DEPTH3', 32)
        if n >= 19:
            m = W2RE[n]
            wait_stage(A, C0 + 13 + (m >> 1), (0, 1) if (m & 1) == 0 else (2, 3))
        w2_item(n)
    St.drain()
    stamp(A)
    A('%s:', lend)
    A('s_waitcnt lgkmcnt(0)')
    stamp_flush(A)
    A('s_endpgm')


def gen_h1(A):
    stamp(A)
    rest_srds(A)
    wtr_base(A)
    tag_compute(A)
    def extras():
        if WARM:
            for srd_, size in ((SWO, D * D * 2), (SW1, D * F * 2), (SW2, D * F * 2)):
                A('s_mul_i32 s%d, s2, %d', sT, size // 256)
                A('v_lshlrev_b32 v%d, 7, v%d', vT1, vL)
                A('s_mov_b64 exec, 0x%x', (1 << ((size // 256 + 127) // 128)) - 1) if size // 256 < 4096 else None
                if size // 256 >= 4096:
                    A('s_mov_b32 exec_hi, 0x%x', (1 << ((size // 256 + 127) // 128 - 32)) - 1)
                A('buffer_load_dword v63, v%d, s[%d:%d], s%d offen', vT1, srd_, srd_ + 3, sT)
                A('s_mov_b64 exec, -1')
        if E('FT', 3) & 2:
            nf = A.label('NF')
            A('s_cmp_lt_u32 s%d, 28', sI)
            A('s_cbranch_scc1 %s', nf)
            A('v_lshlrev_b32 v%d, 7, v%d', vT1, vL)
            A('s_mov_b64 exec, 0xf')
            for base, sh in ((F2, 9), (F3, 9), (F4, 10)):
                A('s_lshl_b32 s%d, s%d, %d', sT, sXCD, sh)
                A('s_add_u32 s%d, s%d, %d', sT, sT, base)
                A('buffer_load_dword v63, v%d, s[%d:%d], s%d offen sc1', vT1, SWS, SWS + 3, sT)
                A('s_mov_b64 exec, 0x%x', 0xf if base == F2 else 0xff)
            A('s_mov_b64 exec, -1')
            A('%s:', nf)
        if E('TOUCH', 1) and not WTO:
            A('s_lshl_b32 s%d, s%d, 18', sT, sXCD)
            A('s_lshl_b32 s%d, s%d, 13', sT2, sI)
            A('s_add_u32 s%d, s%d, s%d', sT, sT, sT2)
            A('v_lshlrev_b32 v%d, 7, v%d', vT1, vL)
            for base in ([WS_OB] if MAP == 0 else []) + ([] if HLATE else [WS_HB]):
                A('s_add_u32 s%d, s%d, %d', sT2, sT, base)
                A('buffer_load_dword v63, v%d, s[%d:%d], s%d offen sc1', vT1, SWS, SWS + 3, sT2)

    if TOUCHAT == 0:
        extras()
    A('s_mov_b32 s%d, 1', sG)
    off256(A, 20)
    rot_calc(A, sXB, 'w1')
    cs, cs2 = A.label('CSL'), A.label('CSM')
    St = Stream(A, 7, E('W7DEPTH', 16), 9)

    def stage7():
        for u in range(4 * W7ST):
            if u % 4 == 0:
                rot_idx(A, sT, sXB, u // 4, 7)
                A('s_mul_i32 s%d, s%d, %d', sT, sT, 64 * 3584)
                A('s_lshl_b32 s%d, s%d, 8', sT2, sFB)
                A('s_add_u32 s%d, s%d, s%d', sT, sT, sT2)
            reg4(St, [64 + 16 * u + 4 * k for k in range(4)], [20, 21, 22, 23], SW1, 16 * 3584)
    A('%s:', cs)
    colsum(A, sG)
    A('s_add_u32 s%d, s%d, 7', sT, sG)
    sig_dyn(A, sT)
    A('s_add_u32 s%d, s%d, 1', sG, sG)
    A('s_cmp_eq_u32 s%d, 3', sG)
    A('s_cbranch_scc1 %s', cs2)
    stamp(A)
    A('s_cmp_ge_u32 s%d, 28', sI)
    A('s_cbranch_scc1 %s', cs)
    stage7()
    A('s_branch %s', cs)
    A('%s:', cs2)
    if TOUCHAT == 2:
        extras()
    stamp(A)
    lend = A.label('LEND')
    A('s_cmp_ge_u32 s%d, 28', sI)
    A('s_cbranch_scc1 %s', lend)
    if W7ST:
        A('s_waitcnt vmcnt(%d)', 1 if TOUCHAT == 2 and not WARM else 0)
        wait_stage(A, 2, (5, 6))
        for c in range(W7ST):
            spill(St, ('w1', c), [64 + 64 * c + 4 * k for k in range(16)], w1_slot(c))
        stamp(A)
    h_stream(A, 9 + W7ST)
    A('%s:', lend)
    A('s_waitcnt lgkmcnt(0)')
    stamp_flush(A)
    A('s_endpgm')


def gen_h23(A):
    vID, vAF, vVF, vAC, vG = 64, 72, 104, 136, 72
    rest_srds(A)
    sTL = sKH
    A('s_sub_u32 s%d, s%d, 5', sTL, sWV)
    skip = A.label('NOST')
    A('s_cmp_eq_u32 s%d, 1', sTL)
    A('s_cbranch_scc1 %s', skip)
    A('s_mul_i32 s%d, s%d, 1568', sT, sH)
    A('s_mov_b32 m0, %d', L_PHI)
    A('buffer_load_dwordx4 v%d, s[%d:%d], s%d offen lds', vO, SP, SP + 3, sT)
    A('buffer_load_dwordx4 v%d, s[%d:%d], s%d offen offset:1024 lds', vO, SP, SP + 3, sT)
    if CODEPF:
        A('s_mul_i32 s%d, s%d, %d', sT, sI, 1280)
        A('v_lshlrev_b32 v%d, 7, v%d', vT1, vL)
        A('v_add_u32 v%d, s%d, v%d', vT1, sT, vT1)
        A('s_mov_b64 exec, 0x3ff')
        A('global_load_dword v72, v%d, s[%d:%d]', vT1, sPC, sPC + 1)
        A('s_mov_b64 exec, -1')
    A('%s:', skip)
    if E('TLB', 0):
        A('v_lshlrev_b32 v%d, 20, v%d', vT1, vL)
        A('s_lshl_b32 s%d, s%d, 7', sT, sI)
        for srd_ in (SWS, SOUT, SWO, SW1, SW2):
            A('buffer_load_dword v73, v%d, s[%d:%d], s%d offen', vT1, srd_, srd_ + 3, sT)
    wtr_base(A)
    sel_frags(A, vID)
    sT16 = sZA
    tag_compute(A, sT16)
    if FAST:
        skip = A.label('NORG')
        A('s_cmp_eq_u32 s%d, 0', sTL)
        A('s_cbranch_scc1 %s', skip)
        A('s_getreg_b32 s%d, hwreg(HW_REG_XCC_ID)', sT2)
        A('s_and_b32 s%d, s%d, 15', sT2, sT2)
        A('s_add_u32 s%d, s%d, s%d', sT2, sT2, sTAG)
        A('v_mov_b32 v%d, s%d', vT0, sT2)
        A('s_lshl_b32 s%d, s%d, 7', sT, sXCD)
        A('s_lshl_b32 s%d, s%d, 2', sT2, sI)
        A('s_add_u32 s%d, s%d, s%d', sT, sT, sT2)
        A('s_add_u32 s%d, s%d, %d', sT, sT, FREG)
        A('s_mov_b64 exec, 1')
        A('buffer_store_dword v%d, v%d, s[%d:%d], s%d offen sc1', vT0, vO, SWS, SWS + 3, sT)
        A('s_mov_b64 exec, -1')
        A('%s:', skip)
    six, both = A.label('SIX'), A.label('BOTH')
    A('s_cmp_eq_u32 s%d, 1', sTL)
    A('s_cbranch_scc1 %s', six)
    colsum(A, sTL)
    A('s_waitcnt vmcnt(0)')
    A('s_branch %s', both)
    A('%s:', six)
    if E('IW', 6):
        ni = A.label('NI')
        A('s_cmp_lt_u32 s%d, 28', sI)
        A('s_cbranch_scc1 %s', ni)
        if E('IWAT', -1) >= 1:
            wait_lp(A, ('x', E('IWAT', -1)), 1)
        A('s_lshl2_add_u32 s%d, s%d, s%d', sC, sXCD, sI)
        A('s_sub_u32 s%d, s%d, 28', sC, sC)
        A('v_lshlrev_b32 v%d, 7, v%d', vT1, vL)
        for bit, srd_, n in ((4, SW, 5), (1, SW1, 7), (2, SWO, 2)):
            if E('IW', 6) & bit:
                A('s_mul_i32 s%d, s%d, %d', sT, sC, n * 8192)
                for u in range(n):
                    A('buffer_load_dword v73, v%d, s[%d:%d], s%d offen', vT1, srd_, srd_ + 3, sT)
                    A('s_add_u32 s%d, s%d, 8192', sT, sT)
        A('%s:', ni)
    if FAST:
        wait_lp(A, ('x', 6), 2)
        fast_check(A)
        A('v_mov_b32 v%d, s%d', vT0, sFASTF)
        A('ds_write_b32 v%d, v%d offset:%d', vMI, vT0, M_FAST)
    A('%s:', both)
    set_stage(A, 1)
    stamp(A)
    A('s_lshl_b32 s%d, s%d, 11', sT2, sTL)
    A('v_add_u32 v%d, s%d, v%d', vTT, sT2, vO)
    A('v_add_u32 v%d, %d, v%d', vTT + 1, L_KVA, vTT)
    A('v_add_u32 v%d, %d, v%d', vTT + 2, L_KVV, vO)
    A('s_lshl_b32 s%d, s%d, 16', sXB, sH)
    A('s_add_u32 s%d, s%d, s%d', sXB, sXB, sT2)
    A('s_add_u32 s%d, s%d, %d', sXB, sXB, WS_KVP)
    A('s_lshl_b32 s%d, s%d, 12', sB, sTB)
    A('s_add_u32 s%d, s%d, s%d', sB, sB, sXB)
    A('s_lshl_b32 s%d, s%d, 1', sM0, sH)
    A('s_add_u32 s%d, s%d, s%d', sM0, sM0, sTL)
    FSH = E('F1SH', 8)
    A('s_lshl_b32 s%d, s%d, %d', sM0, sM0, 4 + FSH)
    A('s_add_u32 s%d, s%d, %d', sM0, sM0, F1)
    A('s_lshl_b32 s%d, s%d, 2', sFL, sTB)
    A('s_add_u32 s%d, s%d, s%d', sFL, sFL, sM0)
    A('s_lshl_b32 s%d, s%d, %d', sT, sTB, FSH)
    A('s_add_u32 s%d, s%d, s%d', sM0, sM0, sT)
    A('s_add_u32 s%d, s%d, s%d', sPC, SWS, sM0)
    A('s_addc_u32 s%d, s%d, 0', sPC + 1, SWS + 1)
    if E('FT', 3) & 1:
        A('s_load_dword s%d, s[%d:%d], 0 glc', sZB, sPC, sPC + 1)
    A('v_lshlrev_b32 v%d, %d, v%d', vXA, FSH, vL)
    A('v_lshlrev_b32 v%d, 2, v%d', vXA + 1, vL)
    vTA = 152
    wait_stage(A, C0)
    for k in range(8):
        A('ds_read_b128 %s, v%d offset:%d', v(vVF + 4 * k, 4), vTT + 1, (k >> 1) * 4096 + (k & 1) * 1024)
    for k in range(8):
        A('s_waitcnt lgkmcnt(%d)', 7 - k)
        mfma(A, vTA + 16 * (k >> 1), vVF + 4 * k, vID + 4 * (k & 1), (k & 1) == 0)
    for w in range(4):
        cvt8(A, vAF + 8 * w, vTA + 16 * w)

    if E('KVP', 0):
        HELP['hot'] = True
        for j, w in enumerate((0, 2, 1, 3)):
            def v_reads():
                for q in range(2):
                    A('ds_read_b128 %s, v%d offset:%d', v(vVF + 8 * w + 4 * q, 4), vTT + 2, w * 4096 + q * 1024)
                return 2
            wait_word(A, w, C0 + 1, body=v_reads, sleep=1 if j == 0 else 0)
            if j == 3:
                stamp(A)
            for q in range(2):
                A('s_waitcnt lgkmcnt(%d)', 1 - q)
                mfma(A, vAC, vAF + 8 * w + 4 * q, vVF + 8 * w + 4 * q, j == 0 and q == 0)
        HELP['hot'] = False
    else:
        def v_reads():
            for k in range(8):
                A('ds_read_b128 %s, v%d offset:%d', v(vVF + 4 * k, 4), vTT + 2, (k >> 1) * 4096 + (k & 1) * 1024)
            return 8
        wait_stage(A, C0 + 1, body=v_reads)
        stamp(A)
        for k in range(8):
            A('s_waitcnt lgkmcnt(%d)', 7 - k)
            mfma(A, vAC, vAF + 4 * k, vVF + 4 * k, k == 0)
    set_stage(A, 2)
    cvt8(A, vAF, vAC)
    TAGS = E('TAGS', 1)
    if TAGS:
        for q in range(2):
            A('v_and_b32 v%d, 0xffff, v%d', vAF + 4 * q + 3, vAF + 4 * q + 3)
            A('v_or_b32 v%d, s%d, v%d', vAF + 4 * q + 3, sT16, vAF + 4 * q + 3)
    pub_stores(A, [st4(vAF + 4 * q, sB, q * 1024) for q in range(2)], MAP == 3)
    if not TAGS:
        A('s_waitcnt vmcnt(0)')
    A('s_mov_b64 exec, 0xffff')
    two_ways(A, lambda B, bits: B('buffer_store_dword v%d, v%d, s[%d:%d], s%d offen%s', vTAG, vXA, SWS, SWS + 3, sFL,
                                  bits), MAP == 3)
    A('s_mov_b64 exec, -1')
    stamp(A)
    sRDY, sPND, sRET = sHI, sHI + 1, sPADL
    base = 68 if STAMPS else 72
    pol = A.label('POLL')
    B = sub(A)
    lo, out = B.label('P'), B.label('PD')
    B('%s:', pol)
    B('%s:', lo)
    if E('PSLEEP', 0):
        B('s_sleep %d', E('PSLEEP', 0))
    if E('SPOLL', 1) and MAP == 0:
        B('s_load_dwordx16 s[%d:%d], s[%d:%d], 0 glc', base, base + 15, sPC, sPC + 1)
        B('s_mov_b32 s%d, 0', sRDY)
        B('s_waitcnt lgkmcnt(%d)', E('PPIPE', 8))
        for p_ in range(15, -1, -1):
            B('s_cmp_eq_u32 s%d, s%d', base + p_, sTAG)
            B('s_addc_u32 s%d, s%d, s%d', sRDY, sRDY, sRDY)
    else:
        B('s_mov_b64 exec, 0xffff')
        B('buffer_load_dword v%d, v%d, s[%d:%d], s%d offen sc1', vT0, vXA + 1, SWS, SWS + 3, sM0)
        B('s_waitcnt vmcnt(0)')
        B('v_cmp_eq_u32 vcc, s%d, v%d', sTAG, vT0)
        B('s_mov_b64 exec, -1')
        B('s_mov_b32 s%d, vcc_lo', sRDY)
    B('s_sub_u32 s%d, s%d, 1', sSPIN, sSPIN)
    B('s_cselect_b32 s%d, -1, s%d', sRDY, sRDY)
    B('s_and_b32 s%d, s%d, s%d', sRDY, sRDY, sPND)
    B('s_cbranch_scc0 %s', lo)
    B('s_setpc_b64 s[%d:%d]', sRET, sRET + 1)
    over = A.label('OV')
    A('s_not_b32 s%d, s%d', base, sTAG)
    A('s_mov_b32 s%d, s%d', base + 1, base)
    for k in range(2, 16, 2):
        A('s_mov_b64 s[%d:%d], s[%d:%d]', base + k, base + k + 1, base, base + 1)
    A('s_branch %s', over)
    A.lines += B.lines
    A('%s:', over)
    A('s_mov_b32 s%d, 0', sRDY)
    A('s_mov_b32 s%d, 0xffff', sPND)
    vCK = vXA + 2
    A('v_mov_b32 v%d, 0', vCK)
    A('s_nop 1')
    vG = [72 + 4 * k for k in range(16)] + [152 + 4 * k for k in range(16)]
    GD = E('GLAG', 8)

    def gmm(k, issued):
        for q in range(2):
            A('s_waitcnt vmcnt(%d)', 2 * issued - (2 * k + q) - 1)
            mfma(A, vAC, vID + 4 * q, vG[2 * k + q], k == 0 and q == 0)
            if TAGS:
                A('v_xor_b32 v%d, s%d, v%d', vCK + 1, sT16, vG[2 * k + q] + 3)
                A('v_or_b32 v%d, v%d, v%d', vCK, vCK, vCK + 1)
    for k in range(16):
        A('s_getpc_b64 s[%d:%d]', sRET, sRET + 1)
        A('s_cmp_eq_u32 s%d, 0', sRDY)
        A('s_cbranch_scc1 %s', pol)
        A('s_ff1_i32_b32 s%d, s%d', sT, sRDY)
        A('s_bitset0_b32 s%d, s%d', sRDY, sT)
        A('s_bitset0_b32 s%d, s%d', sPND, sT)
        A('s_lshl_b32 s%d, s%d, 12', sT, sT)
        A('s_add_u32 s%d, s%d, s%d', sT, sT, sXB)
        if E('ABL', 0) & 32:
            A('s_mov_b32 s%d, s%d', sT, sB)
        for q in range(2):
            A('buffer_load_dwordx4 %s, v%d, s[%d:%d], s%d offen offset:%d sc1', v(vG[2 * k + q], 4), vO, SWS, SWS + 3,
              sT, q * 1024)
        if k == E('GST', 15):
            stamp(A)
        if k >= GD:
            gmm(k - GD, k + 1)
    for k in range(16 - GD, 16):
        gmm(k, 16)
    if TAGS:
        ok = A.label('TOK')
        A('v_cmp_lt_u32 vcc, 0xffff, v%d', vCK)
        spin_guard(A, ok)
        A('s_nop 15')
        A('s_cbranch_vccnz %s', over)
        A('%s:', ok)
    A('v_add_u32 v%d, %d, v%d', vTT, L_EX, vTT)
    cvt8(A, 72, vAC)
    for q in range(2):
        A('ds_write_b128 v%d, %s offset:%d', vTT, v(72 + 4 * q, 4), q * 1024)
    set_stage(A, 3)
    stamp(A)
    lend = A.label('LEND')
    A('s_cmp_ge_u32 s%d, 28', sI)
    A('s_cbranch_scc1 %s', lend)
    A('v_lshlrev_b32 v%d, 2, v%d', vCA, vL)
    A('v_add_u32 v%d, %d, v%d', vTT + 2, L_EX, vO)
    wait_stage(A, C0 + 7, sleep=2)
    HELP['hot'] = bool(E('STHOT', 0))
    l5 = A.label('S5')
    A('s_cmp_eq_u32 s%d, 0', sTL)
    A('s_cbranch_scc1 %s', l5)
    for gi in (0, 2, 1, 3):
        if gi == 1:
            A('s_branch %s', lend)
            A('%s:', l5)
        wait_lp(A, ('hs', gi), 1)
        if E('STPRIO', 2) != 2:
            A('s_setprio %d', E('STPRIO', 2))
        base = L_SC0 + gi * 4096
        for q in range(7):
            A('ds_read2st64_b32 v[%d:%d], v%d offset0:%d offset1:%d', 72 + 2 * q, 73 + 2 * q, vCA,
              base // 256 + 2 * q, base // 256 + 2 * q + 1)
        A('s_waitcnt lgkmcnt(0)')
        for q in range(2, 14):
            A('v_add_f32 v%d, v%d, v%d', 72 + (q & 1), 72 + (q & 1), 72 + q)
        A('v_add_f32 v%d, v72, v73', vTT)
        ln_finish(A, vTT, vTT + 1, vNM, vRS)
        hilo_m(A, vNM, 88, vT0)
        A('v_mul_f32 v90, v%d, v%d', vTT + 1, vRS)
        A('v_mul_f32 v91, 0x%x, v%d', LOG2E ^ 0x80000000, vRS)
        A('ds_write_b128 v%d, v[88:91] offset:%d', vTT + 2, gi * 1024)
        set_stage(A, 4 + gi // 2)
    HELP['hot'] = False
    A('%s:', lend)
    A('s_waitcnt lgkmcnt(0)')
    stamp_flush(A)
    A('s_endpgm')


def refresh_routines(A):
    for w in (7, 4):
        A('REFRESH_%d:', w)
        if w == 5:
            A('ds_read_b32 v%d, v%d', vPW, vCA)
        else:
            A('ds_read_b32 v%d, v%d offset:%d', vPW, vMI, M_PW + 4 * w)
        if E('CSLP', 0):
            A('s_mov_b32 vcc_hi, s%d', CACHE[w])
        A('s_waitcnt lgkmcnt(0)')
        A('v_readfirstlane_b32 s%d, v%d', CACHE[w], vPW)
        if E('CSLP', 0):
            A('s_cmp_lg_u32 vcc_hi, s%d', CACHE[w])
            A('s_cbranch_scc1 REFD_%d', w)
            A('s_sleep %d', E('CSLP', 0))
            A('REFD_%d:', w)
        A('s_sub_u32 s%d, s%d, 1', sSPIN, sSPIN)
        A('s_cselect_b32 s%d, -1, s%d', CACHE[w], CACHE[w])
        A('s_setpc_b64 s[%d:%d]', sPC, sPC + 1)


def gen_compute(A):
    vPH, vID, vWF, vAC, vPK = 40, 48, 56, 88, 120
    vMF, vCF = 136, 140
    vE = vWF
    vAC2 = vAC + 16
    vX = vXR
    A('s_setprio %d', E('CPRIO', 1))
    rest_srds(A)
    A('s_lshl_b32 s%d, s%d, 12', sM0, sWV)
    A('v_and_b32 v%d, 31, v%d', vT0, vL)
    A('v_lshlrev_b32 v%d, 7, v%d', vTT, vT0)
    A('v_add_u32 v%d, s%d, v%d', vTT, sM0, vTT)
    A('v_bfe_u32 v%d, v%d, 1, 3', vT0, vL)
    A('v_lshrrev_b32 v%d, 5, v%d', vT1, vL)
    A('v_xor_b32 v%d, v%d, v%d', vT0, vT0, vT1)
    for q in range(4):
        A('v_xor_b32 v%d, %d, v%d', vXA + q, 2 * q, vT0)
        A('v_lshl_add_u32 v%d, v%d, 4, v%d', vXA + q, vXA + q, vTT)
    wtr_base(A)
    for r in (vSM, vSM + 1, vSQ, vSQ + 1, vMF + 2, vMF + 3, vCF + 2, vCF + 3):
        A('v_mov_b32 v%d, 0', r)
    A('s_mov_b32 s%d, 0', sHI)
    A('s_mov_b32 s%d, -1', sHI + 1)
    A('s_bitcmp1_b32 s%d, 0', sH)
    A('s_cselect_b32 s%d, 0xf, 0xf0000000', sPADL)
    A('s_mov_b32 s%d, s%d', sPADL + 1, sPADL)
    A('s_cselect_b32 s%d, -1, 0', sZA)
    A('s_mov_b32 s%d, 0', sZA + 1)
    A('s_mov_b32 s%d, 0', sZB)
    A('s_cselect_b32 s%d, 0, -1', sZB + 1)
    A('s_cselect_b64 s[%d:%d], -1, 0', sODD, sODD + 1)
    vPA = vRA
    A('v_bfe_u32 v%d, v%d, 2, 2', vT0, vL)
    A('v_lshrrev_b32 v%d, 5, v%d', vT1, vL)
    A('v_lshl_add_u32 v%d, v%d, 2, v%d', vT0, vT1, vT0)
    A('v_mul_u32_u24 v%d, 56, v%d', vT0, vT0)
    A('v_and_b32 v%d, 3, v%d', vT1, vL)
    A('v_bfe_u32 v%d, v%d, 4, 1', vTT, vL)
    A('v_lshl_add_u32 v%d, v%d, 2, v%d', vT1, vTT, vT1)
    A('v_min_u32 v%d, 6, v%d', vT1, vT1)
    A('v_lshl_add_u32 v%d, v%d, 3, v%d', vT0, vT1, vT0)
    A('s_and_b32 s%d, s%d, 1', sT, sH)
    A('s_mul_i32 s%d, s%d, 224', sT, sT)
    A('s_sub_u32 s%d, %d, s%d', sT, L_PHI, sT)
    A('v_add_u32 v%d, s%d, v%d', vPA, sT, vT0)
    tag_compute(A)

    def mm1(B, acc, i, q, swap):
        buf = vWF + 16 * (i & 1)
        xf, wf = vX + (4 * i + q) * 4, buf + 4 * q
        if swap:
            mfma(B, acc, xf, wf, i == 0 and q == 0)
        else:
            mfma(B, acc, wf, xf, i == 0 and q == 0)

    def rw2(Q, pi, i, q):
        buf = vWF + 16 * (i & 1)
        for z in range(2):
            Q.op(('w', i, q), 'ds_read_b64_tr_b16 v[%d:%d], v%d offset:%d', buf + 4 * q + 2 * z, buf + 4 * q + 2 * z + 1,
                 vWA + pi, i * 4096 + q * 1024 + z * 256)

    def early(Q, w, reads):
        Q.op('ce', 'ds_read_b32 v%d, v%d offset:%d', vPK_ + 1, vMI, M_PW + 4 * w)
        for r in reads:
            Q.op('ce', r)

    def late(Q, w, n, reads):
        def slow(B, back):
            def body():
                for r in reads:
                    B(r)
                return 0
            wait_word(B, w, n, body=body)
        Q.A = A
        Q.wait('ce')
        A('v_readfirstlane_b32 s%d, v%d', sT, vPK_ + 1)
        A('s_cmp_ge_u32 s%d, %d', sT, n)
        if w == 5:
            ent, back = cold_block(A, slow)
            A('s_cbranch_scc0 %s', ent)
        else:
            back = A.label('LT')
            A('s_cbranch_scc1 %s', back)
            slow(A, back)
        A('%s:', back)

    def cf_rd(pi):
        return 'ds_read_b64 v[%d:%d], v%d offset:%d' % (vCF, vCF + 1, vCA, pi * 512)
    kreads = [cf_rd(0)] + ['ds_read_b64_tr_b16 v[%d:%d], v%d offset:%d' % (
        vPH + 4 * sidx + 2 * z, vPH + 4 * sidx + 2 * z + 1, vPA, (16 * sidx + 8 * z) * 56)
        for sidx in range(2) for z in range(2)]

    vXH = vXD
    for q in range(4):
        A('v_add_u32 v%d, 0x10000, v%d', vXH + q, vXA + q)
    Q = LdsQ(A)
    for i in range(7):
        if i:
            stamp(A, 'k')
        if i == 0:
            A('s_waitcnt vmcnt(0)')
        else:
            wait_lp(A, ('x', i))
        stamp(A, 'k')
        for q in range(4):
            Q.op(('x', i), 'ds_read_b128 %s, v%d offset:%d', v(vX + (4 * i + q) * 4, 4), (vXA if i < 4 else vXH) + q,
                 (i & 3) * 16384)
        if i in (1, 3):
            Q.stage((i + 1) // 2)
        wait_lp(A, ('W', 0, i))
        for q in range(4):
            if i > 0:
                Q.wait(('w', i - 1, q))
                mm1(A, vAC, i - 1, q, False)
            rw2(Q, 0, i, q)
        if i < 6:
            Q.op('pk2', 'ds_read_b128 v[%d:%d], v%d offset:%d', vTT, vTT + 3, vMI, M_PW + 16)
        Q.wait(('x', i))
        for r in range(16):
            x = vX + 16 * i + r
            A('v_dot2c_f32_bf16 v%d, s%d, v%d', vSM + (r & 1), sONES, x)
            A('v_dot2c_f32_bf16 v%d, v%d, v%d', vSQ + (r & 1), x, x)
        if i < 6:
            Q.wait('pk2')
            A('v_readfirstlane_b32 s%d, v%d', sPROG, vTT)
            A('v_readfirstlane_b32 s%d, v%d', sPROG1, vTT + 3)
    Q.stage(3)
    early(Q, 5, kreads)
    B = sub(A)
    B('v_add_f32 v%d, v%d, v%d', vSM, vSM, vSM + 1)
    B('v_add_f32 v%d, v%d, v%d', vSQ, vSQ, vSQ + 1)
    B('v_permlane32_swap_b32 v%d, v%d', vSM, vSQ)
    B('v_add_f32 v%d, v%d, v%d', vT0, vSM, vSQ)
    ln_finish(B, vT0, vT1, vNM, vRS)
    hilo_m(B, vNM, vMF, vT0)
    B('v_mul_f32 v%d, 0x%x, v%d', vSC, LOG2E, vRS)
    M = sub(A)
    Q.A = M
    for q in range(4):
        Q.wait(('w', 6, q))
        mm1(M, vAC, 6, q, False)
    A.lines += merge(M.lines, [[l] for l in B.lines], 0, 4)

    stamp(A, 'v')
    late(Q, 5, 1, kreads)
    stamp(A)
    stamp(A, 'v')

    def project(mid=None):
        mfma(A, vAC, vCF, vMF)
        if mid:
            mid()
        cvt8(A, vPK, vAC)
        mfma(A, vAC, vPH, vPK, True)
        mfma(A, vAC, vPH + 4, vPK + 4)

    def mid_k():
        A('v_and_b32 v%d, 31, v%d', vT0, vL)
        A('s_lshl_b32 s%d, s%d, 7', sT, sWV)
        A('s_add_u32 s%d, s%d, %d', sT, sT, L_RSTD)
        A('v_lshl_add_u32 v%d, v%d, 2, s%d', vT0, vT0, sT)
        A('s_waitcnt lgkmcnt(0)')
        A('ds_write_b32 v%d, v%d', vT0, vRS)
        A('v_lshrrev_b32 v%d, 5, v%d', vRA, vL)
        A('v_lshl_add_u32 v%d, v%d, 4, s%d', vRA, vRA, sT)
        for r in (0, 1):
            A('v_cndmask_b32 v%d, v%d, 0, s[%d:%d]', vPH + r, vPH + r, sZA, sZA + 1)
            A('v_cndmask_b32 v%d, v%d, 0, s[%d:%d]', vPH + 6 + r, vPH + 6 + r, sZB, sZB + 1)

    def gemm_head(B, pi):
        Q = LdsQ(B)
        wait_lp(B, ('W', pi, 0))
        for q in range(4):
            rw2(Q, pi, 0, q)
        return Q

    def gemm_part(B, acc, pi, swap, last_stage=None, Q=None):
        if Q is None:
            Q = gemm_head(B, pi)
        for i in range(7):
            if i == 6 and last_stage:
                Q.stage(last_stage)
            if i == 6:
                early(Q, 7, [cf_rd(pi)])
            if pi == 1 and i in (0, 2, 4, 6):
                stamp(B, 'v')
            for q in range(4):
                Q.wait(('w', i, q))
                if q == 0:
                    Q.take(4)
                mm1(B, acc, i, q, swap)
                if i < 6:
                    if q == 0:
                        wait_lp(B, ('W', pi, i + 1))
                        if i < 5:
                            Q.peek(4)
                    rw2(Q, pi, i + 1, q)
        late(Q, 7, 7 + pi, [cf_rd(pi)])

    vOW = vXD
    A('v_add_u32 v%d, s%d, v%d', vOW, sM0, vO)
    A('v_add_u32 v%d, %d, v%d', vOW, L_KVA, vOW)
    project(mid_k)
    stamp(A, 'v')
    B = sub(A)
    softmax_pm(B, vAC, vSC, vPK, vTT)
    A.lines += B.lines[:-30]
    Q = gemm_head(A, 1)
    A.lines += B.lines[-30:]
    for q, src in enumerate((vAC, vAC + 4, vPK, vPK + 4)):
        Q.op('pw', 'ds_write_b128 v%d, %s offset:%d', vOW, v(src, 4), q * 1024)
    Q.stage(C0)
    for q in range(4):
        Q.op('rs', 'ds_read_b128 %s, v%d offset:%d', v(vAC + 4 * q, 4), vRA, q * 32)
    stamp(A, 'v')
    gemm_part(A, vAC2, 1, True, None, Q)
    stamp(A, 'v')

    mfma(A, vAC2, vMF, vCF)
    A('v_mov_b32 v%d, 0x%x', vT1, ONES)
    for r in range(0, 16, 2):
        A('v_pk_mul_f32 v[%d:%d], v[%d:%d], v[%d:%d]', vAC2 + r, vAC2 + r + 1, vAC2 + r, vAC2 + r + 1, vAC + r,
          vAC + r + 1)
    cvt8(A, vPK, vAC2)
    for r in range(8):
        A('v_cndmask_b32 v%d, v%d, v%d, s[%d:%d]', vPK + r, vPK + r, vT1, sPADL, sPADL + 1)
    for q in range(2):
        A('ds_write_b128 v%d, %s offset:%d', vOW, v(vPK + 4 * q, 4), L_KVV - L_KVA + q * 1024)
    set_stage(A, C0 + 1)
    stamp(A)
    stamp(A, 'v')
    gemm_part(A, vAC, 2, False, C0 + 3)
    vHP, vRX, vRO = 120, 48, vSM + 1

    def unpack_hp(src=120):
        for r in range(8):
            A('v_lshlrev_b32 v%d, 16, v%d', vAC + 2 * r, src + r)
            A('v_and_b32 v%d, 0xffff0000, v%d', vAC + 2 * r + 1, src + r)
    A('s_and_b32 s%d, s%d, 1', sG, sWV)
    A('s_lshr_b32 s%d, s%d, 1', sKH, sWV)
    A('s_lshl_b32 s%d, s%d, 1', sT, sTQ)
    A('s_add_u32 s%d, s%d, s%d', sG, sG, sT)
    A('v_and_b32 v%d, 31, v%d', vRO, vL)
    A('v_mul_u32_u24 v%d, 896, v%d', vRO, vRO)
    A('v_lshrrev_b32 v%d, 5, v%d', vT1, vL)
    A('v_lshl_add_u32 v%d, v%d, 4, v%d', vRO, vT1, vRO)
    A('s_mul_i32 s%d, s%d, %d', sT, sG, 32 * 896)
    A('s_lshl_b32 s%d, s%d, 7', sT2, sNB)
    A('s_add_u32 s%d, s%d, s%d', sT, sT, sT2)
    A('s_lshl_b32 s%d, s%d, 6', sT2, sKH)
    A('s_add_u32 s%d, s%d, s%d', sT, sT, sT2)
    A('v_add_u32 v%d, s%d, v%d', vRO, sT, vRO)
    for q in range(2):
        A('buffer_load_dwordx4 %s, v%d, s[%d:%d], 0 offen offset:%d', v(vRX + 4 * q, 4), vRO, SX, SX + 3, q * 32)

    project()
    softmax_pm(A, vAC, vSC, vPK, vTT)
    vQF = [vAC, vAC + 4, vPK, vPK + 4]
    stamp(A)
    vW1A = vXA
    A('v_bfe_u32 v%d, v%d, 2, 2', vT0, vL)
    A('v_lshrrev_b32 v%d, 5, v%d', vT1, vL)
    A('v_lshl_add_u32 v%d, v%d, 2, v%d', vT1, vT1, vT0)
    A('v_lshlrev_b32 v%d, 8, v%d', vW1A, vT1)
    A('v_lshlrev_b32 v%d, 7, v%d', vWA, vT1)
    A('v_xor_b32 v%d, s%d, v%d', vT0, sWV, vT0)
    A('v_lshl_add_u32 v%d, v%d, 6, v%d', vW1A, vT0, vW1A)
    A('v_bfe_u32 v%d, v%d, 4, 1', vT1, vL)
    A('v_lshlrev_b32 v%d, 5, v%d', vT1, vT1)
    A('v_and_b32 v%d, 3, v%d', vT0, vL)
    A('v_lshl_add_u32 v%d, v%d, 3, v%d', vT1, vT0, vT1)
    A('v_add_u32 v%d, v%d, v%d', vW1A, vW1A, vT1)
    A('v_add_u32 v%d, 0x8000, v%d', vW1A + 1, vW1A)
    A('v_add_u32 v%d, v%d, v%d', vWA, vWA, vT1)
    A('v_bfe_u32 v%d, v%d, 3, 1', vT1, vL)
    A('v_lshl_add_u32 v%d, v%d, 6, v%d', vWA, vT1, vWA)

    def w1_copy(c):
        wait_lp(A, ('w1', c))
        for q in range(4):
            for z in range(2):
                off = w1_slot(c) + (16 * q + 8 * z) * 256
                base = vW1A
                if off >= 0x8000:
                    off -= 0x8000
                    base += 1
                r = vXR + (4 * c + q) * 4 + 2 * z
                A('ds_read_b64_tr_b16 v[%d:%d], v%d offset:%d', r, r + 1, base, off)

    sCPD = sXB
    A('s_mov_b32 s%d, 0', sCPD)

    def try_copy(block):
        skip = A.label('NC')
        A('s_cmp_lg_u32 s%d, 0', sCPD)
        A('s_cbranch_scc1 %s', skip)
        if not block:
            ow = LP[('w1', 1)][0]
            if block is not None:
                A('ds_read_b32 v%d, v%d offset:%d', vPW + ow - 4, vMI, M_PW + 4 * ow)
                A('s_waitcnt lgkmcnt(0)')
            A('v_readfirstlane_b32 s%d, v%d', CACHE[ow], vPW + ow - 4)
            A('s_cmp_lt_u32 s%d, %d', CACHE[ow], LP[('w1', 1)][1])
            A('s_cbranch_scc1 %s', skip)
        w1_copy(0)
        w1_copy(1)
        A('s_mov_b32 s%d, 1', sCPD)
        A('v_mov_b32 v%d, 1', vT0)
        A('ds_write_b32 v%d, v%d offset:%d', vMY, vT0, M_CP)
        A('%s:', skip)
    vCS = vSQ

    A('s_lshl_b32 s%d, s%d, 2', sFL, sTB)
    A('s_add_u32 s%d, s%d, s%d', sFL, sFL, sWV)
    A('s_lshl_b32 s%d, s%d, 4', sFL, sFL)
    A('s_add_u32 s%d, s%d, s%d', sFL, sFL, sH)
    A('s_lshl_b32 s%d, s%d, 11', sB, sFL)
    A('s_add_u32 s%d, s%d, %d', sB, sB, WS_OB)
    if MAP == 0:
        A('s_lshl_b32 s%d, s%d, 2', sFL, sFL)
        A('s_add_u32 s%d, s%d, %d', sFL, sFL, F2)
    else:
        A('s_lshr_b32 s%d, s%d, 3', sFL, sFL)
        A('s_lshl_b32 s%d, s%d, 10', sFL, sFL)
        A('s_and_b32 s%d, s%d, 7', sT, sH)
        A('s_lshl_b32 s%d, s%d, 2', sT, sT)
        A('s_add_u32 s%d, s%d, s%d', sFL, sFL, sT)
        A('s_add_u32 s%d, s%d, %d', sFL, sFL, F2X)
    vEX = vXD + 1
    A('v_add_u32 v%d, %d, v%d', vEX, L_EX, vO)

    def ex_reads():
        for q in range(4):
            A('ds_read_b128 %s, v%d offset:%d', v(vWF + 4 * q, 4), vEX, q * 1024)
        return 4
    lo, done = A.label('W'), A.label('WD')
    A('%s:', lo)
    A('ds_read_b128 v[%d:%d], v%d offset:%d', vPW, vPW + 3, vMI, M_PW + 16)
    A('ds_read_b32 v%d, v%d offset:%d', vPK_, vMI, M_FAST)
    ex_reads()
    A('s_waitcnt lgkmcnt(4)')
    A('v_readfirstlane_b32 s%d, v%d', sFASTF, vPK_)
    A('v_min_u32 v%d, v%d, v%d', vPW + 1, vPW + 1, vPW + 2)
    A('v_readfirstlane_b32 s%d, v%d', sT, vPW + 1)
    spin_guard(A, done)
    A('s_cmp_ge_u32 s%d, 3', sT)
    A('s_cbranch_scc1 %s', done)
    try_copy(None)
    if E('CSLP', 0):
        A('s_sleep %d', E('CSLP', 0))
    A('s_branch %s', lo)
    A('%s:', done)
    stamp(A)
    for q in range(4):
        A('s_waitcnt lgkmcnt(%d)', 3 - q)
        mfma(A, vAC2, vWF + 4 * q, vQF[q], q == 0)
    A('v_cndmask_b32 v%d, v%d, v%d, s[%d:%d]', vT0, vAC2 + 12, vAC2, sODD, sODD + 1)
    A('v_mov_b32 v%d, v%d', vT1, vT0)
    A('v_permlane32_swap_b32 v%d, v%d', vT0, vT1)
    A('v_cndmask_b32 v%d, v%d, v%d, s[%d:%d]', vTT, vT1, vT0, sODD, sODD + 1)
    A('v_add_f32 v%d, 0x%x, v%d', vTT, 0x358637bd, vTT)
    A('v_rcp_f32 v%d, v%d', vTT, vTT)
    for r in range(0, 16, 2):
        A('v_pk_mul_f32 v[%d:%d], v[%d:%d], v[%d:%d] op_sel_hi:[1,0]', vAC2 + r, vAC2 + r + 1, vAC2 + r, vAC2 + r + 1,
          vTT, vTT + 1)
    cvt8(A, vPK, vAC2)
    for r in (0, 1):
        A('v_cndmask_b32 v%d, v%d, 0, s[%d:%d]', vPK + r, vPK + r, sZA, sZA + 1)
        A('v_cndmask_b32 v%d, v%d, 0, s[%d:%d]', vPK + 6 + r, vPK + 6 + r, sZB, sZB + 1)
    pub_stores(A, [st4(vPK + 4 * q, sB, q * 1024) for q in range(2)], MAP == 0 and not WTO)
    A('s_waitcnt vmcnt(2)')
    for q in range(2):
        A('v_permlane32_swap_b32 v%d, v%d', vRX + 4 * q, vRX + 4 * q + 2)
        A('v_permlane32_swap_b32 v%d, v%d', vRX + 4 * q + 1, vRX + 4 * q + 3)
    unpack_hp(vRX)
    A('s_lshl_b32 s%d, s%d, 6', sT, sKH)
    A('v_xor_b32 v%d, s%d, v%d', vWA, sT, vWA)
    A('v_xor_b32 v%d, 64, v%d', vWA + 1, vWA)
    A('s_mul_i32 s%d, s%d, %d', sT, sKH, 224 * 128)
    A('s_add_u32 s%d, s%d, %d', sT, sT, L_A)
    A('v_add_u32 v%d, s%d, v%d', vWA + 2, sT, vWA)
    A('v_add_u32 v%d, s%d, v%d', vWA + 3, sT, vWA + 1)
    vSW, vSR, vPP = vXA + 2, vXA + 3, vSM
    A('s_and_b32 s%d, s%d, 1', sC, sWV)
    A('s_lshl_b32 s%d, s%d, 12', sC, sC)
    A('v_add_u32 v%d, s%d, v%d', vSW, sC, vO)
    A('s_cmp_eq_u32 s%d, 0', sKH)
    A('s_cselect_b32 s%d, %d, %d', sT, L_SC0 >> 12, L_SC1 >> 12)
    A('s_cselect_b32 s%d, %d, %d', sT2, L_SC1 >> 12, L_SC0 >> 12)
    A('s_lshl_b32 s%d, s%d, 12', sT, sT)
    A('s_lshl_b32 s%d, s%d, 12', sT2, sT2)
    A('v_add_u32 v%d, s%d, v%d', vSR, sT2, vSW)
    A('v_add_u32 v%d, s%d, v%d', vSW, sT, vSW)
    A('v_xor_b32 v%d, 8, v%d', vPP, vMY)
    A('s_lshl_b32 s%d, s%d, 15', sB, sG)
    A('s_lshl_b32 s%d, s%d, 14', sT, sKH)
    A('s_add_u32 s%d, s%d, s%d', sB, sB, sT)
    A('s_add_u32 s%d, s%d, %d', sB, sB, WS_OB)
    if MAP == 0:
        A('s_lshl_b32 s%d, s%d, 6', sC, sG)
        A('s_lshl_b32 s%d, s%d, 5', sT, sKH)
        A('s_add_u32 s%d, s%d, s%d', sC, sC, sT)
        A('s_add_u32 s%d, s%d, %d', sC, sC, F2)
        pub_flag(A, sFL, True)
    else:
        A('s_lshl_b32 s%d, s%d, 11', sC, sG)
        A('s_lshl_b32 s%d, s%d, 10', sT, sKH)
        A('s_add_u32 s%d, s%d, s%d', sC, sC, sT)
        A('s_lshl_b32 s%d, s%d, 7', sT, sNB)
        A('s_add_u32 s%d, s%d, s%d', sC, sC, sT)
        A('s_add_u32 s%d, s%d, %d', sC, sC, F2X)
        A('v_lshlrev_b32 v%d, 7, v%d', vT1, vL)
        if not E('NODRAIN2', 0):
            A('s_waitcnt vmcnt(0)')
        A('s_mov_b64 exec, 0x7f')
        A('buffer_store_dword v%d, v%d, s[%d:%d], s%d offen sc1', vTAG, vT1, SWS, SWS + 3, sFL)
        A('s_mov_b64 exec, -1')
    set_stage(A, C0 + 5)
    stamp(A)
    fin = A.label('FIN')
    A('s_cmp_ge_u32 s%d, 28', sI)
    A('s_cbranch_scc1 %s', fin)

    vB2 = [40 + 4 * k for k in range(8)] + [224 + 4 * k for k in range(8)]
    vWF2 = 72
    vL4, vPF = vNM, vRS
    A('v_lshlrev_b32 v%d, 2, v%d', vL4, vL)

    def f2_load():
        A('s_mov_b64 exec, 0xff')
        A('buffer_load_dword v%d, v%d, s[%d:%d], s%d offen sc1', vPF, vL4, SWS, SWS + 3, sC)
        A('s_mov_b64 exec, -1')
    f2_load()
    sB3, sFL3 = sODD, sODD + 1
    sBL, sFL2, sPF, sBK, sBS, sHB, sEM = 4, 5, 6, 7, 8, 9, 10
    A('s_mul_i32 s%d, s%d, %d', sB3, sTB3, 4 * 112)
    A('s_lshl_b32 s%d, s%d, 3', sT, sFB)
    A('s_add_u32 s%d, s%d, s%d', sB3, sB3, sT)
    A('s_lshl_b32 s%d, s%d, 1', sT, sWV)
    A('s_add_u32 s%d, s%d, s%d', sB3, sB3, sT)
    A('s_lshl_b32 s%d, s%d, 10', sB3, sB3)
    A('s_add_u32 s%d, s%d, %d', sB3, sB3, WS_H1B)
    A('s_add_u32 s%d, s%d, %d', sBL, sB3, 2 * 112 * 1024)
    A('s_lshl_b32 s%d, s%d, 9', sFL3, sTB3)
    A('s_lshl_b32 s%d, s%d, 4', sT, sFB)
    A('s_add_u32 s%d, s%d, s%d', sFL3, sFL3, sT)
    A('s_lshl_b32 s%d, s%d, 2', sT, sWV)
    A('s_add_u32 s%d, s%d, s%d', sFL3, sFL3, sT)
    A('s_add_u32 s%d, s%d, %d', sFL3, sFL3, F4)
    A('s_add_u32 s%d, s%d, 256', sFL2, sFL3)
    A('s_bitcmp1_b32 s%d, 0', sFB)
    A('s_cselect_b32 s%d, s%d, s%d', sT, sBL, sB3)
    A('s_cselect_b32 s%d, s%d, s%d', sBL, sB3, sBL)
    A('s_mov_b32 s%d, s%d', sB3, sT)
    A('s_cselect_b32 s%d, s%d, s%d', sT, sFL2, sFL3)
    A('s_cselect_b32 s%d, s%d, s%d', sFL2, sFL3, sFL2)
    A('s_mov_b32 s%d, s%d', sFL3, sT)
    A('s_lshl_b32 s%d, s%d, 8', sPF, sTQ)
    A('s_mul_i32 s%d, s%d, 112', sT, sKH)
    A('s_add_u32 s%d, s%d, s%d', sPF, sPF, sT)
    A('s_add_u32 s%d, s%d, %d', sPF, sPF, F4)
    A('s_mul_i32 s%d, s%d, %d', sHB, sG, 112 * 1024)
    A('s_mul_i32 s%d, s%d, %d', sT, sKH, 56 * 1024)
    A('s_add_u32 s%d, s%d, s%d', sHB, sHB, sT)
    A('s_add_u32 s%d, s%d, %d', sHB, sHB, WS_H1B + (0x40000000 if E('ABL', 0) & 64 else 0))
    blk_init(A, sBK, sBS, 's%d' % sKH)
    A('s_bitcmp1_b32 s%d, 0', sBK)
    A('s_mov_b32 s%d, 0x0f0f0f0f', sEM)
    A('s_cselect_b32 s%d, 0x00f0f0f0, s%d', sEM, sEM)
    wait_lp(A, 'wo')

    def wo_row(k):
        hh = k // 2
        return 28 * hh - 4 * (hh & 1) + 16 * (k & 1)

    Q = LdsQ(A)
    LAG = E('P2LAG', 5)

    def read_wo(k, nt):
        buf = vWF2 + 8 * nt + 4 * (k & 1)
        for z in range(2):
            Q.op(('w', k, nt), 'ds_read_b64_tr_b16 v[%d:%d], v%d offset:%d', buf + 2 * z, buf + 2 * z + 1,
                 vWA + 2 + nt, (wo_row(k) + 8 * z) * 128)

    read_wo(0, 1)
    read_wo(0, 0)
    lo, chk2, done = A.label('P'), A.label('PC'), A.label('PD')
    A('s_branch %s', chk2)
    A('%s:', lo)
    f2_load()
    try_copy(False)
    A('%s:', chk2)
    A('s_waitcnt vmcnt(0)')
    A('v_cmp_ne_u32 vcc, s%d, v%d', sTAG, vPF)
    spin_guard(A, done)
    A('s_and_b32 s%d, vcc_lo, 0xff', sT)
    A('s_cbranch_scc1 %s', lo)
    A('%s:', done)
    stamp(A)
    stamp(A, 'p2')
    sOB = sM0
    A('s_mov_b32 s%d, s%d', sOB, sB)

    def ld_o(k):
        A('buffer_load_dwordx4 %s, v%d, s[%d:%d], s%d offen offset:%d sc1', v(vB2[k], 4), vO, SWS, SWS + 3, sOB,
          (k & 3) * 1024)
        if (k & 3) == 3:
            A('s_add_u32 s%d, s%d, 4096', sOB, sOB)
    P2I = E('P2INFL', 8)
    for k in range(P2I):
        ld_o(k)
    A('s_lshl_b32 s%d, s%d, 1', sT2, sNB)
    A('s_add_u32 s%d, s%d, s%d', sT2, sT2, sKH)
    A('s_lshl_b32 s%d, s%d, 15', sB, sG)
    A('s_add_u32 s%d, s%d, %d', sB, sB, WS_HB)
    A('s_lshl_b32 s%d, s%d, 8', sC, sT2)
    A('s_add_u32 s%d, s%d, s%d', sC, sC, sB)
    A('s_lshl_b32 s%d, s%d, 11', sT, sT2)
    A('s_add_u32 s%d, s%d, s%d', sB, sB, sT)
    A('s_add_u32 s%d, s%d, 4096', sB, sB)
    A('s_lshl_b32 s%d, s%d, 2', sFL, sT2)
    A('s_lshl_b32 s%d, s%d, 6', sT, sG)
    A('s_add_u32 s%d, s%d, s%d', sFL, sFL, sT)
    A('s_add_u32 s%d, s%d, %d', sFL, sFL, F3)
    for k in range(16 + LAG):
        if k < 16:
            if k < 15:
                read_wo(k + 1, 1)
            Q.wait(('w', k, 1), min(15, P2I + k - 1) - k)
            if k % 4 == 0:
                stamp(A, 'p2')
            mfma(A, vAC + 16, vWF2 + 8 + 4 * (k & 1), vB2[k], k == 0)
            if P2I + k < 16:
                ld_o(P2I + k)
            if P2I + k == E('LDSIG', 12):
                A('v_mov_b32 v%d, 1', vT0)
                Q.op('ld', 'ds_write_b32 v%d, v%d offset:%d', vMY, vT0, M_LD)
        j = k - LAG
        if j >= 0:
            if j < 15:
                read_wo(j + 1, 0)
            Q.wait(('w', j, 0))
            mfma(A, vAC, vWF2 + 4 * (j & 1), vB2[j])
        if k == 16 and LAG >= 2:
            for q in range(4):
                Q.op('x', 'ds_write_b128 v%d, %s offset:%d', vSW, v(vAC + 16 + 4 * q, 4), q * 1024)
            Q.stage(C0 + 6)
    stamp(A)

    def exchange(st, sent=False):
        if not sent:
            for q in range(4):
                A('ds_write_b128 v%d, %s offset:%d', vSW, v(vAC + 16 + 4 * q, 4), q * 1024)
            set_stage(A, st)
        lo, done = A.label('W'), A.label('WD')
        A('%s:', lo)
        A('ds_read_b32 v%d, v%d', vPW, vPP)
        for q in range(4):
            A('ds_read_b128 %s, v%d offset:%d', v(vWF2 + 4 * q, 4), vSR, q * 1024)
        A('s_waitcnt lgkmcnt(4)')
        A('v_readfirstlane_b32 s%d, v%d', sT, vPW)
        spin_guard(A, done)
        A('s_cmp_ge_u32 s%d, %d', sT, st)
        A('s_cbranch_scc0 %s', lo)
        A('%s:', done)
        for q in range(4):
            A('s_waitcnt lgkmcnt(%d)', 3 - q)
            for r in (0, 2):
                a0 = vAC + 4 * q + r
                A('v_pk_add_f32 v[%d:%d], v[%d:%d], v[%d:%d]', a0, a0 + 1, a0, a0 + 1, vWF2 + 4 * q + r,
                  vWF2 + 4 * q + r + 1)

    stamp(A, 'p2')
    exchange(C0 + 6, LAG >= 2)
    stamp(A, 'p2')
    set_stage(A, C0 + 7)
    cvt8(A, vHP, vAC)
    pub_stores(A, [st4(vHP + 4 * q, sB, q * 1024) for q in range(2)], not WTO)
    A('v_mov_b32 v%d, 0', vTT)
    A('v_mov_b32 v%d, 0', vTT + 1)
    for r in range(8):
        A('v_dot2c_f32_bf16 v%d, s%d, v%d', vTT, sONES, vHP + r)
        A('v_dot2c_f32_bf16 v%d, v%d, v%d', vTT + 1, vHP + r, vHP + r)
    A('v_lshlrev_b32 v%d, 2, v%d', vTT + 2, vL)
    A('v_permlane32_swap_b32 v%d, v%d', vTT, vTT + 1)
    A('v_add_f32 v%d, v%d, v%d', vTT, vTT, vTT + 1)
    pub_stores(A, ['buffer_store_dword v%d, v%d, s[%d:%d], s%d offen%%s' % (vTT, vTT + 2, SWS, SWS + 3, sC)], not WTO)
    stamp(A, 'p2')
    try_copy(True)
    NPRE = E('CPRE', 2)
    for c in range(2, 2 + NPRE):
        w1_copy(c)
    stamp(A, 'p2')
    pub_flag(A, sFL, True)
    stamp(A, 'p2')
    stamp(A)
    for c in range(2 + NPRE, 4):
        w1_copy(c)
    A('v_mov_b32 v%d, 0', vCS)
    A('v_mov_b32 v%d, 0', vCS + 1)
    A('s_waitcnt lgkmcnt(0)')
    for r in range(112):
        if r in (16, 32, 48):
            w1_copy(3 + r // 16)
        if r == 48:
            set_stage(A, C0 + 8)
        if r in (64, 80, 96):
            A('s_waitcnt lgkmcnt(%d)', min(15, 1 + 8 * ((96 - r) // 16)))
        A('v_dot2c_f32_bf16 v%d, s%d, v%d', vCS + (r & 1), sONES, vXR + r)
    A('v_add_f32 v%d, v%d, v%d', vCS, vCS, vCS + 1)
    hilo_c(A, vCS, vCF, vT0)
    vBR = 40
    vE3 = 72
    vMF2, vSD = 128, 132
    A('s_mov_b32 s%d, s%d', sB, sB3)
    A('s_mov_b32 s%d, s%d', sFL, sFL3)

    def p3_epilogue(gi, packed=False):
        B = sub(A)
        acc = vAC + 16 * (gi & 1)
        e = vE3
        sd, c1 = vSD, vSD + 1
        if packed:
            pk = lambda r: 'v[%d:%d]' % (r, r + 1)
            for r in range(0, 16, 2):
                B('v_pk_mul_f32 %s, %s, %s op_sel:[0,1] op_sel_hi:[1,1]', pk(e + r), pk(acc + r), pk(sd))
            for r in range(16):
                B('v_exp_f32 v%d, v%d', e + r, e + r)
            for r in range(0, 16, 2):
                B('v_pk_fma_f32 %s, %s, %s, %s op_sel_hi:[1,0,0]', pk(e + r), pk(e + r), pk(sd), pk(sd))
            for r in range(16):
                B('v_rcp_f32 v%d, v%d', e + r, e + r)
            for r in range(0, 16, 2):
                B('v_pk_mul_f32 %s, %s, %s', pk(e + r), pk(e + r), pk(acc + r))
            cvt8(B, acc, e)
        else:
            silu8(B, acc, e, sd, c1, acc)
            silu8(B, acc + 8, e + 8, sd, c1, acc + 4)
        blocks = [[l] for l in B.lines]
        if E('ABL', 0) & 256 and not packed:
            blocks = blocks[-4:]
        B = sub(A)
        so = sB if gi < 2 else sBL
        pub_stores(B, [st4(acc + 4 * q, so, q * 1024) for q in range(2)], not WT1)
        if gi % 2 == 0:
            B('s_add_u32 s%d, s%d, %d', so, so, 112 * 1024)
        blocks.append(B.lines)
        return blocks

    def flag_load(B):
        B('s_mov_b64 exec, 0xfffffff')
        B('buffer_load_dword v%d, v%d, s[%d:%d], s%d offen sc1', vPF, vL4, SWS, SWS + 3, sPF)
        B('s_mov_b64 exec, -1')

    def flag_check(mask):
        def slow(B, back):
            lo = B.label('P')
            B('%s:', lo)
            flag_load(B)
            B('s_waitcnt vmcnt(0)')
            B('v_cmp_ne_u32 vcc, s%d, v%d', sTAG, vPF)
            spin_guard(B, back)
            B('s_and_b32 s%d, vcc_lo, %s', sT, mask)
            B('s_cbranch_scc1 %s', lo)
        ent, back = cold_block(A, slow)
        A('v_cmp_ne_u32 vcc, s%d, v%d', sTAG, vPF)
        A('s_and_b32 s%d, vcc_lo, %s', sT, mask)
        A('s_cbranch_scc1 %s', ent)
        A('%s:', back)

    PRE = E('P3PRE', 6)
    vHB = vXD + 2
    A('v_add_u32 v%d, %d, v%d', vHB, L_A, vO)
    A('v_add_u32 v%d, %d, v%d', vHB + 1, 65536, vO)
    Q = LdsQ(A)

    def chk(n):
        gi, k = divmod(n, 28)
        if gi == 0 and E('P3RAMP', 0):
            return k // 4 if k % 4 == 0 else None
        if gi == 0:
            return {0: 1, 8: 3, 16: 5, 24: 6}.get(k)
        return {0: 1, 8: 3, 16: 6}.get(k)

    def rd(n):
        gi, k = divmod(n, 28)
        if n + 1 < 112 and chk(n + 1) is not None:
            Q.take(7)
        if chk(n) is not None:
            wait_lp(Q.A, ('h', gi, chk(n)))
        Q.op(('b', n), 'ds_read_b128 %s, v%d offset:%d', v(vBR + 4 * (n % 8), 4), (vHB, vHB, vO, vHB + 1)[gi],
             (28672 if gi == 1 else 0) + k * 1024)
        if k == 27:
            Q.stage(C0 + 9 + gi)
        ramp = E('P3RAMP', 0) and n < 20
        nn = n + (4 if ramp else E('P3PK', PRE + 2))
        if nn < 112 and chk(nn) is not None and not Q.peeked and (ramp or nn >= 28 or not E('P3RAMP', 0)):
            Q.peek(7)

    stamp(A, 'p2')
    nrd = [0]

    def rd_upto(n):
        while nrd[0] <= min(n, 111):
            rd(nrd[0])
            nrd[0] += 1
    rd_upto(2)
    for gi in range(4):
        acc = vAC + 16 * (gi & 1)
        M = sub(A)
        Q.A = M
        for k in range(28):
            n = 28 * gi + k
            rd_upto(n + (PRE if not E('P3RAMP', 0) else 3 if n < 22 else min(PRE, 3 + (n - 21))))
            if k == 16:
                Q.op('s6', 'ds_read_b128 v[%d:%d], v%d offset:%d', vTT, vTT + 3, vMI, M_PW + 16)
                Q.op('sf', 'ds_read_b128 %s, v%d offset:%d', v(vMF2, 4), vEX, gi * 1024)
            if k == 24:
                Q.wait('sf')
                M('v_readfirstlane_b32 s%d, v%d', sPROG, vTT)
                M('v_readfirstlane_b32 s%d, v%d', sC, vTT + LP[('st', gi)][0] - 4)

                def st_slow(B, back):
                    def st_read():
                        B('ds_read_b128 %s, v%d offset:%d', v(vMF2, 4), vEX, gi * 1024)
                        return 0
                    wait_word(B, LP[('st', gi)][0], LP[('st', gi)][1], body=st_read)
                ent, back = cold_block(M, st_slow)
            if k == 25:
                M('s_cmp_ge_u32 s%d, %d', sC, LP[('st', gi)][1])
                M('s_cbranch_scc0 %s', ent)
                M('%s:', back)
                M('v_mov_b32 v%d, v%d', vMF, vMF2)
                M('v_mov_b32 v%d, v%d', vMF + 1, vMF2 + 1)
            if k % 2 == 0:
                Q.wait(('b', n + 1))
            if k in (0, 12):
                stamp(M, 'p3')
            if gi == E('P33', 3) and k % 2 == 0 and k:
                stamp(M, 'p33')
            if gi == 3 and k == E('P3FLAGK', 11):
                pub_flag(M, sFL, True)
            if gi == 3 and k == 25:
                flag_load(M)
            mfma(M, acc, vXR + 4 * k, vBR + 4 * (n % 8), k == 0)
        mfma(M, acc, vCF, vMF)
        M('v_mov_b32 v%d, v%d', vSD, vMF2 + 2)
        M('v_mov_b32 v%d, v%d', vSD + 1, vMF2 + 3)
        A.lines += merge(M.lines, p3_epilogue(gi - 1) if gi > 0 else [], 1, E('P3STOP2', 27) if gi == 2 else 27)
        if gi == 0:
            stamp(A)
        stamp(A, 'p3')
    stamp(A)
    NB = 16
    vWF4 = 40
    vAP = vXR + 48

    def w2_base(c):
        A('s_cmp_eq_u32 s%d, 0', sKH)
        A('s_cselect_b32 s%d, %d, %d', sT, w2_slot(2 * c) >> 12, w2_slot(2 * c + 1) >> 12)
        A('s_lshl_b32 s%d, s%d, 12', sT, sT)
        A('v_add_u32 v%d, s%d, v%d', vWA + 2, sT, vWA)
        A('v_add_u32 v%d, s%d, v%d', vWA + 3, sT, vWA + 1)

    Q = LdsQ(A)

    def abuf(k):
        return vWF4 + 8 * (k & 3)

    def read_w2(k):
        if k % 4 == 3 and k < 52:
            Q.take(LP[('w2', 2 * (k // 4) + 3)][0])
        if k % 4 == 0:
            wait_lp(A, ('w2', 2 * (k // 4) + 1))
            w2_base(k // 4)
        buf = abuf(k)
        for nt in range(2):
            for z in range(2):
                Q.op(('w', k), 'ds_read_b64_tr_b16 v[%d:%d], v%d offset:%d', buf + 4 * nt + 2 * z,
                     buf + 4 * nt + 2 * z + 1, vWA + 2 + nt, ((k % 4) * 16 + 8 * z) * 128)
        if k % 4 == 0 and k < 52:
            Q.peek(LP[('w2', 2 * (k // 4) + 3)][0])
        if k % 4 == 3 and (k // 4) <= 5:
            Q.stage(C0 + 13 + k // 4)

    vq = []

    def vm_need(tag):
        i = max(j for j, x in enumerate(vq) if x == tag)
        return len(vq) - 1 - i

    def issue_b(k):
        if k % 8 == 0:
            A('s_lshl_b32 s%d, s%d, 13', sM0, sBK)
            A('s_add_u32 s%d, s%d, s%d', sM0, sM0, sHB)
            blk_next(A, sBK, sBS)
        A('buffer_load_dwordx4 %s, v%d, s[%d:%d], s%d offen offset:%d%s', v(vXR + 4 * (k % NB), 4), vO, SWS, SWS + 3,
          sM0, (k & 3) * 1024, LDB)
        vq.append(('b', k))
        if k % 8 == 3:
            A('s_add_u32 s%d, s%d, 4096', sM0, sM0)

    INFL = E('P4INFL', 10)
    assert INFL < NB
    A('s_waitcnt vmcnt(2)')
    flag_check('s%d' % sEM)
    stamp(A)
    issued = E('P4PRE', 8)
    for k in range(issued):
        issue_b(k)
    for b in p3_epilogue(3, True):
        A.lines += b
    vq += ['st', 'st']
    read_w2(0)
    read_w2(1)
    while issued < INFL:
        issue_b(issued)
        issued += 1
    unpack_hp()
    stamp(A)
    KF, KL, KC = E('P4KF', 3), E('P4KL', 9), E('P4KC', 14)
    pend = False
    for k in range(56):
        if k + 2 < 56:
            read_w2(k + 2)
        need = vm_need(('b', k))
        if k == KF:
            need = min(need, vm_need('st'))
        if k == KC:
            need = min(need, vm_need('pf'))
        Q.wait(('w', k), need)
        if k % 4 == 0 and k:
            stamp(A, 'p4')
        buf = abuf(k)
        mfma(A, vAC + 16, buf + 4, vXR + 4 * (k % NB), k == 0)
        if k == KF:
            pub_flag(A, sFL2, True, False)
            vq.append('fl')
        if k == KL:
            flag_load(A)
            vq.append('pf')
        if k == KC:
            flag_check('0xfffffff')
            pend = True
        for _ in range(2):
            if issued < min(56, k + 1 + INFL) and (issued < 24 or pend):
                issue_b(issued)
                issued += 1
        mfma(A, vAC, buf, vXR + 4 * (k % NB))
    stamp(A)
    if E('OUTT', 1):
        A('v_readfirstlane_b32 s%d, v%d', sC, vSR)
        A('v_readfirstlane_b32 s%d, v%d', sT2, vRO)
        A('v_and_b32 v%d, 31, v%d', vTT, vL)
        A('v_mul_u32_u24 v%d, 80, v%d', vTT, vTT)
        A('v_lshrrev_b32 v%d, 5, v%d', vT1, vL)
        A('v_lshl_add_u32 v%d, v%d, 3, v%d', vTT, vT1, vTT)
        A('v_add_u32 v%d, s%d, v%d', vTT, sC, vTT)
        A('v_lshrrev_b32 v%d, 2, v%d', vT1, vL)
        A('v_and_b32 v%d, 3, v%d', vTT + 3, vL)
        A('v_lshlrev_b32 v%d, 4, v%d', vTT + 3, vTT + 3)
        A('v_mul_u32_u24 v%d, 80, v%d', vTT + 1, vT1)
        A('v_add3_u32 v%d, v%d, v%d, s%d', vTT + 1, vTT + 1, vTT + 3, sC)
        A('v_mul_u32_u24 v%d, 896, v%d', vTT + 2, vT1)
        A('v_add_u32 v%d, v%d, v%d', vTT + 2, vTT + 2, vTT + 3)
        A('s_add_u32 s%d, s%d, %d', sC, sT2, 16 * 896)
    exchange(C0 + 27)
    cvt8(A, vHP, vAC)
    OB = ('', ' sc1', ' nt', ' sc0 sc1')[E('OUTB', 2)]
    if E('OUTT', 1):
        for q in range(4):
            A('ds_write_b64 v%d, v[%d:%d] offset:%d', vTT, vHP + 2 * q, vHP + 2 * q + 1, q * 16)
        for q in range(2):
            A('ds_read_b128 %s, v%d offset:%d', v(vHP + 4 * q, 4), vTT + 1, q * 16 * 80)
        for q in range(2):
            A('s_waitcnt lgkmcnt(%d)', 1 - q)
            A('buffer_store_dwordx4 %s, v%d, s[%d:%d], s%d offen%s', v(vHP + 4 * q, 4), vTT + 2, SOUT, SOUT + 3,
              (sT2, sC)[q], OB)
    else:
        for q in range(2):
            A('v_permlane32_swap_b32 v%d, v%d', vHP + 4 * q, vHP + 4 * q + 2)
            A('v_permlane32_swap_b32 v%d, v%d', vHP + 4 * q + 1, vHP + 4 * q + 3)
        for q in range(2):
            A('buffer_store_dwordx4 %s, v%d, s[%d:%d], 0 offen offset:%d%s', v(vHP + 4 * q, 4), vRO, SOUT, SOUT + 3,
              q * 32, OB)
    A('s_or_b32 s%d, s%d, s%d', sT, sI, sWV)
    A('s_or_b32 s%d, s%d, s%d', sT, sT, sXCD)
    A('s_cmp_lg_u32 s%d, 0', sT)
    A('s_cbranch_scc1 %s', fin)
    A('s_mov_b32 s%d, %d', sT, FEP)
    A('s_mov_b64 exec, 1')
    A('buffer_store_dword v%d, v%d, s[%d:%d], s%d offen', vTAG, vO, SWS, SWS + 3, sT)
    A('s_mov_b64 exec, -1')
    A('%s:', fin)
    if E('PADTO', 0):
        lo = A.label('PAD')
        A('s_waitcnt vmcnt(0) lgkmcnt(0)')
        A('s_mov_b32 s6, %d', E('PADTO', 0))
        if PROBE >= 0:
            A('s_sub_u32 s7, s56, s84')
            A('s_lshl_b32 s7, s7, 2')
            A('s_cmp_ge_u32 s%d, 28', sI)
            A('s_cselect_b32 s7, 0, s7')
            A('s_add_u32 s6, s6, s7')
        A('%s:', lo)
        A('s_memrealtime s[4:5]')
        A('s_waitcnt lgkmcnt(0)')
        A('s_sub_u32 s4, s4, s84')
        A('s_cmp_lt_u32 s4, s6')
        A('s_cbranch_scc1 %s', lo)
    stamp_flush(A)


def gen():
    A = Asm()
    name = NAME + '_kernel'
    A.lines += ['.p2align 8', '.globl %s' % name, '.type %s,@function' % name, '%s:' % name]
    end = A.label('END')
    if E('PADTO', 0):
        A('s_memrealtime s[84:85]')
    A('s_load_dwordx16 s[64:79], s[0:1], 0')
    A('s_load_dwordx2 s[80:81], s[0:1], 72')
    A('s_getpc_b64 s[%d:%d]', sPC, sPC + 1)
    A('s_cmp_ge_u32 s2, 256')
    A('s_cbranch_scc1 %s', end)
    assert MAP == 0
    A('s_and_b32 s%d, s2, 7', sXCD)
    A('s_lshr_b32 s%d, s2, 3', sI)
    A('v_lshrrev_b32 v%d, 6, v0', vMY)
    A('v_and_b32 v%d, 63, v0', vL)
    A('s_and_b32 s%d, s%d, 1', sTB, sI)
    A('s_lshl1_add_u32 s%d, s%d, s%d', sTB, sXCD, sTB)
    A('v_readfirstlane_b32 s%d, v%d', sWV, vMY)
    A('s_add_u32 s%d, s%d, s%d', sC0, sXCD, sI)
    A('s_mul_i32 s%d, s%d, 37', sT, sC0)
    A('s_lshr_b32 s%d, s%d, 8', sT, sT)
    A('s_mul_i32 s%d, s%d, 7', sT, sT)
    A('s_sub_u32 s%d, s%d, s%d', sC0, sC0, sT)
    x_offsets(A)
    A('s_mul_i32 s%d, s%d, %d', sT2, sWV, 32 * 896)
    A('s_lshl_b32 s%d, s%d, 7', sT, sC0)
    A('s_add_u32 s%d, s%d, s%d', sT, sT, sXB)
    A('s_add_u32 s%d, s%d, s%d', sT, sT, sT2)
    A('s_lshl_b32 m0, s%d, 12', sWV)
    A('s_mov_b32 s%d, 0x%x', SX + 2, 0 if E('ABL', 0) & 16 else S * D * 2)
    A('s_mov_b32 s%d, 0x20000', SX + 3)
    nok = A.label('NOK')
    A('s_cmp_ge_u32 s%d, 4', sWV)
    A('s_waitcnt lgkmcnt(0)')
    A('s_mov_b32 s%d, s64', SX)
    A('s_mov_b32 s%d, s65', SX + 1)
    A('s_cbranch_scc1 %s', nok)
    for u in range(4):
        A('buffer_load_dwordx4 v%d, s[%d:%d], s%d offen offset:%d lds', vXD + u, SX, SX + 3, sT, u * 1024)
    A('%s:', nok)
    srd(A, SW, 66, 0 if E('ABL', 0) & 8 else D * 3 * D * 2)
    WT = E('WT', 0)
    if WT:
        now = A.label('NOW')
        A('s_sub_u32 s%d, s%d, 4', sT, sWV)
        A('s_cmp_ge_u32 s%d, %d', sT, WT)
        A('s_cbranch_scc1 %s', now)
        A('s_add_u32 s%d, s%d, 1', sT, sT)
        A('s_cmp_eq_u32 s%d, 3', sT)
        A('s_cselect_b32 s%d, 0, s%d', sT, sT)
        A('s_mul_i32 s%d, s%d, 896', sT, sT)
        A('s_mul_i32 s%d, s%d, %d', sT2, sI, 14 * 2688)
        A('s_add_u32 s%d, s%d, s%d', sT, sT, sT2)
        A('s_add_u32 s%d, s%d, %d', sT2, sT, 7 * 2688)
        A('v_lshrrev_b32 v%d, 3, v%d', vT0, vL)
        A('v_mul_u32_u24 v%d, 2688, v%d', vT0, vT0)
        A('v_and_b32 v%d, 7, v%d', vT1, vL)
        A('v_lshl_add_u32 v%d, v%d, 7, v%d', vT0, vT1, vT0)
        A('s_mov_b32 exec_lo, 0x7f7f7f7f')
        A('s_mov_b32 exec_hi, 0x007f7f7f')
        A('buffer_load_dword v38, v%d, s[%d:%d], s%d offen', vT0, SW, SW + 3, sT)
        A('buffer_load_dword v39, v%d, s[%d:%d], s%d offen', vT0, SW, SW + 3, sT2)
        A('s_mov_b64 exec, -1')
        A('%s:', now)
    perm = [2, 4, 6, 9, 11, 13, 0, 1, 3, 5, 7, 8, 10, 12, 14, 15]
    lo = sum(perm[i] << (4 * i) for i in range(8))
    hi = sum(perm[8 + i] << (4 * i) for i in range(8))
    A('s_mov_b32 s%d, 0x%x', sHI, lo)
    A('s_mov_b32 s%d, 0x%x', sHI + 1, hi)
    A('s_lshr_b32 s%d, s%d, 1', sT, sI)
    A('s_lshl_b32 s%d, s%d, 2', sT, sT)
    A('s_lshr_b64 s[%d:%d], s[%d:%d], s%d', sHI, sHI + 1, sHI, sHI + 1, sT)
    A('s_and_b32 s%d, s%d, 15', sH, sHI)
    RM = E('RMAP', 0)
    if RM == 1:
        A('s_add_u32 s%d, s%d, 28', sI, sI)
        A('s_and_b32 s%d, s%d, 31', sI, sI)
    if RM == 2:
        A('s_add_u32 s%d, s%d, 28', sI, sI)
        A('s_and_b32 s%d, s%d, 31', sI, sI)
        A('s_and_b32 s%d, s%d, 1', sT, sI)
        A('s_mul_i32 s%d, s%d, 14', sT, sT)
        A('s_lshr_b32 s%d, s%d, 1', sT2, sI)
        A('s_add_u32 s%d, s%d, s%d', sT, sT, sT2)
        A('s_cmp_lt_u32 s%d, 28', sI)
        A('s_cselect_b32 s%d, s%d, s%d', sI, sT, sI)
    A('v_lshlrev_b32 v%d, 2, v%d', vMY, vMY)
    A('v_add_u32 v%d, %d, v%d', vMY, L_MISC, vMY)
    A('v_mov_b32 v%d, 0', vT0)
    A('ds_write2st64_b32 v%d, v%d, v%d offset0:0 offset1:1', vMY, vT0, vT0)
    A('ds_write2_b32 v%d, v%d, v%d offset0:%d offset1:%d', vMY, vT0, vT0, M_FAST // 4, M_CP // 4)
    w_offsets(A)
    A('v_mov_b32 v%d, %d', vMI, L_MISC)
    A('s_mov_b32 s%d, 0x400000', sSPIN)
    A('s_mov_b32 s%d, 0', sPROG)
    A('s_mov_b32 s%d, 0', sPROG1)
    A('s_waitcnt lgkmcnt(0)')
    A('s_barrier')
    _st['n'] = 0
    stamp(A, 'all')
    if STAMPS:
        A('s_memrealtime s[86:87]')
    for i in range(7):
        LP[('x', i)] = (7, 1 + i)
    hn = [9]
    for gi in range(4):
        us = E('HSPOS', 3) if gi == 0 else 0
        LP[('st', gi)] = (6 - (gi & 1), 4 + gi // 2)
        for q in range(7):
            if q in HITEMS[gi > 0]:
                hn[0] += 1
                LP[('h', gi, q)] = (7, hn[0])
            if q == us:
                hn[0] += 1
                LP[('hs', gi)] = (7, hn[0])
    for pi in range(3):
        for i in range(7):
            LP[('W', pi, i)] = (4, 7 * pi + i + 1)
    l0, l1, l2, lw, lc = A.label('H0'), A.label('H1'), A.label('H23'), A.label('EW'), A.label('EC')
    A('s_cmp_eq_u32 s%d, 4', sWV)
    A('s_cbranch_scc1 %s', lw)
    A('s_cmp_lg_u32 s%d, 7', sWV)
    A('s_cbranch_scc1 %s', lc)
    HELP['on'] = True
    nst = {}
    prio(A, 1)
    _st['n'] = 1
    HELP['role'] = '7'
    early_x(A)
    nst[l1] = _st['n']
    A('s_branch %s', l1)
    A('%s:', lw)
    prio(A, 1)
    _st['n'] = 1
    HELP['role'] = '4'
    early_w(A)
    nst[l0] = _st['n']
    nst[l2] = 1
    A('s_branch %s', l0)
    refresh_routines(A)
    A('%s:', lc)
    A('s_cmp_ge_u32 s%d, 5', sWV)
    A('s_cbranch_scc1 %s', l2)
    parts = {}
    for lab, fn in ((l0, gen_h0), (l1, gen_h1), (l2, gen_h23)):
        B = sub(A)
        B('%s:', lab)
        B('s_nop 4')
        HELP['on'] = True
        prio(B, 1)
        _st['n'] = nst[lab]
        HELP['role'] = {l0: '4', l1: '7', l2: 'h'}[lab]
        fn(B)
        HELP['role'] = 'c'
        HELP['on'] = False
        parts[lab] = B.lines
    _st['n'] = 1
    gen_compute(A)
    A('%s:', end)
    A('s_endpgm')
    for lab in (l0, l1, l2):
        A.lines += parts[lab]
    A.lines += COLD
    return A, name


def main():
    out = sys.argv[1] if len(sys.argv) > 1 else 'cdna_kernels/%s.s' % NAME
    A, name = gen()
    lines, nn = fix_hazards(A.lines)
    if E('ALIGN', 0):
        lines, na = align8(lines)
        print('re-encoded', na)
    hdr = ['; generated by gen/gen14.py (hand-written generator script)',
           '; @launch grid=(256,1,1) block=(512,1,1) lds=%d' % LDS_SIZE,
           '.amdgcn_target "amdgcn-amd-amdhsa--gfx950"', '.text']
    tail = ['.p2align 8', '.fill 2048, 4, 0xbf800000', '.section .rodata,"a"', '.p2align 6', '''.amdhsa_kernel %s
  .amdhsa_next_free_vgpr 256
  .amdhsa_next_free_sgpr 102
  .amdhsa_accum_offset 256
  .amdhsa_group_segment_fixed_size 0
  .amdhsa_kernarg_size 80
  .amdhsa_user_sgpr_count 2
  .amdhsa_user_sgpr_kernarg_segment_ptr 1
  .amdhsa_system_sgpr_workgroup_id_x 1
  .amdhsa_float_denorm_mode_32 3
  .amdhsa_float_denorm_mode_16_64 3
.end_amdhsa_kernel''' % name]
    open(out, 'w').write('\n'.join(hdr + lines + tail) + '\n')
    print('wrote', out, 'lines', len(lines), 'nops', nn)


if __name__ == '__main__':
    main()
```

```python
import sys
import os
sys.path.insert(0, os.path.dirname(os.path.abspath(__file__)))
from asmlib import Asm, fix_hazards, align8, v

NAME = 'sequential_preLN__linear_kernel_hedgehog__dense_activation_silu__prompt'
S, D, H, DH, F = 2048, 448, 16, 28, 1792
MB = 1 << 20
E = lambda k, d: int(os.environ.get(k, d))
STAMPS = E('STAMPS', 0)
MAP = E('MAP', 0)
FAST = E('FAST', 1)
CODEPF = E('CODEPF', 1)
WARM = E('WARM', 0)
WT1 = E('WT1', 1)
WTO = E('WTO', 0)
TOUCHAT = E('TOUCHAT', 2)
LDB = (' sc1', '', ' nt')[E('LDB', 0)]
HLATE = E('HLATE', 1)
WS_KVP = 0
WS_OB = 2 * MB
WS_HB = 4 * MB
WS_H1B = 8 * MB
WS_FLG = 16 * MB
F1, F2, F3, F4, FREG, FEP = WS_FLG + 0x10000, WS_FLG + 0x1000, WS_FLG + 0x3000, WS_FLG + 0x70000, WS_FLG + 0x9000, WS_FLG + 0xA000
F2X = WS_FLG + 0x40000
WS_STAMP = 17 * MB
WS_SIZE = 18 * MB
LOG2E = 0x3fb8aa3b
ONES = 0x3f803f80
MFMA = 'v_mfma_f32_32x32x16_bf16'
L_X = 0
L_WP = (114688, 0, 32768)
L_KVA, L_KVV = 65536, 81920
L_A = 98304
L_SC0, L_SC1 = 49152, 57344
L_XRES = L_SC0
B16 = (0, 16384, 65536, 81920, 32768)
L_PHI, L_EX, L_CF, L_MISC = 159744 - 2048 + 2048 + 1536, 155648, 159744, 163328
LDS_SIZE = 163840
M_PW, M_FAST, M_CP, M_LD = 0, 64, 96, 256
L_RSTD = L_EX

SX, SW, SP, SWS, SWO, SW1, SW2, SOUT = 12, 16, 20, 24, 28, 32, 36, 40
sTB, sH, sWV, sC0, sPROG, sT, sT2, sONES, sC, sTAG, sFASTF, sI, sXCD = 44, 45, 46, 47, 48, 49, 50, 51, 52, 53, 54, 55, 3
sHI, sPADL, sZA, sZB, sODD, sPC = 4, 6, 8, 10, 92, 94
sTQ, sNB, sTB3, sFB, sG, sKH, sB, sXB, sM0, sSPIN = 96, 97, 98, 99, 100, 101, 88, 89, 91, 90
sPROG1, sFL = 0, 1
vL, vMI, vT0, vT1, vO = 1, 2, 3, 4, 5
vTAG, vMY = 6, 7
vTT = 8
vXA = 12
vWA = 16
vSM, vSQ = 20, 22
vNM, vRS, vSC, vRA = 24, 25, 26, 27
vXD = 28
vPW = 32
vCA = 36
vXR = 144
vPK_ = 37
CACHE = {4: sPROG, 7: sPROG1, 5: sC0}

_st = {'n': 0}
C0 = 4
HELP = {'on': False}


def prio(A, hi):
    if HELP['on'] and E('HPRIO', 2) and not HELP.get('hot'):
        A('s_setprio %d', E('HPRIO', 2) if hi else 0)
LP = {}


STSET = os.environ.get('STSET', 'main')


DBGT = E('DBGT', 0)


PROBE = E('PROBE', -1)


DLY = os.environ.get('DLY', '')


def stamp(A, tag='main'):
    if DLY:
        if tag in ('main', 'all'):
            if '%s:%d' % (HELP.get('role', 'c'), _st['n']) == DLY:
                A('s_sleep 16')
            _st['n'] += 1
        return
    if PROBE >= 0:
        if not HELP['on'] and tag in ('main', 'all'):
            if _st['n'] == PROBE:
                A('s_memrealtime s[56:57]')
            _st['n'] += 1
        return
    if DBGT and not HELP['on'] and tag in ('main', 'all'):
        A('s_memrealtime s[%d:%d]', 56 + 2 * _st['n'], 57 + 2 * _st['n'])
        _st['n'] += 1
        return
    if STAMPS and STSET == 'clk' and tag == 'main' and not HELP['on']:
        _st['m'] = _st.get('m', 0) + 1
        if _st['m'] in (1, 2, 4, 8, 10, 13):
            A('s_memtime s[%d:%d]', 56 + 2 * _st['n'], 57 + 2 * _st['n'])
            A('s_memrealtime s[%d:%d]', 58 + 2 * _st['n'], 59 + 2 * _st['n'])
            _st['n'] += 2
        return
    if STAMPS and (tag == STSET or tag == 'all' or (HELP['on'] and tag == 'main')):
        assert _st['n'] < 15, 'too many stamps'
        A('s_memtime s[%d:%d]', 56 + 2 * _st['n'], 57 + 2 * _st['n'])
        _st['n'] += 1


def stamp_flush(A):
    if DBGT and not HELP['on']:
        A('s_waitcnt vmcnt(0)')
        stamp(A, 'all')
        skip = A.label('DS')
        A('s_waitcnt vmcnt(0) lgkmcnt(0)')
        A('s_cmp_ge_u32 s%d, 28', sI)
        A('s_cbranch_scc1 %s', skip)
        A('s_mov_b64 exec, 1')
        A('v_mov_b32 v1, 0')
        A('s_not_b32 s4, s56')
        A('v_mov_b32 v2, s4')
        A('global_atomic_umax v1, v2, s[86:87] offset:60')
        for i in range(_st['n']):
            A('v_mov_b32 v%d, s%d', 8 + i, 56 + 2 * i)
            A('global_atomic_umax v1, v%d, s[86:87] offset:%d', 8 + i, 4 * i)
        A('%s:', skip)
        return
    if STAMPS:
        A('s_waitcnt vmcnt(0)')
        stamp(A, 'all')
        A('s_memrealtime s[4:5]')
        A('s_waitcnt vmcnt(0) lgkmcnt(0)')
        A('s_sub_u32 s4, s4, s86')
        A('s_lshl_b32 s4, s4, 20')
        A('s_and_b32 s86, s86, 0xfffff')
        A('s_or_b32 s86, s86, s4')
        A('s_lshl_b32 s%d, s2, 3', sT)
        A('s_add_u32 s%d, s%d, s%d', sT, sT, sWV)
        A('s_lshl_b32 s%d, s%d, 6', sT, sT)
        A('s_add_u32 s%d, s%d, %d', sT, sT, WS_STAMP)
        A('s_mov_b64 exec, 1')
        A('v_mov_b32 v1, 0')
        for i in range(16):
            if i < _st['n']:
                A('v_mov_b32 v2, s%d', 56 + 2 * i)
            elif i == 15:
                A('v_mov_b32 v2, s86')
            else:
                A('v_mov_b32 v2, 0')
            A('buffer_store_dword v2, v1, s[%d:%d], s%d offen offset:%d', SWS, SWS + 3, sT, 4 * i)
            A('s_nop 1')


def srd(A, d, ptr, size):
    A('s_mov_b32 s%d, s%d', d, ptr)
    A('s_and_b32 s%d, s%d, 0xffff', d + 1, ptr + 1)
    A('s_mov_b32 s%d, 0x%x', d + 2, size)
    A('s_mov_b32 s%d, 0x20000', d + 3)


COLD = []


def cold_block(A, fn):
    ent, back = A.label('CE'), A.label('CB')
    B = sub(A)
    B('%s:', ent)
    B('s_nop 15')
    fn(B, back)
    B('s_nop 7')
    B('s_branch %s', back)
    COLD.extend(B.lines)
    return ent, back


def again(A, br, lo, sleep=0):
    slp = max(sleep * E('SLPMUL', 1), E('HSLP', 0) if HELP['on'] else E('CSLP', 0))
    if slp:
        st = A.label('ZZ')
        COLD.extend(['%s:' % st, '  s_sleep %d' % slp, '  s_branch %s' % lo])
        lo = st
    A('%s %s', br, lo)


def spin_guard(A, done):
    A('s_sub_u32 s%d, s%d, 1', sSPIN, sSPIN)
    A('s_cbranch_scc1 %s', done)


def wait_word(A, w, n, cache=None, sleep=0, body=None):
    sd = sT if cache is None else cache

    def loop(B, done, body=None):
        lo = B.label('W')
        prio(B, 0)
        B('%s:', lo)
        B('ds_read_b32 v%d, v%d offset:%d', vPW, vMI, M_PW + 4 * w)
        k = body() if body else 0
        B('s_waitcnt lgkmcnt(%d)', k)
        B('v_readfirstlane_b32 s%d, v%d', sd, vPW)
        spin_guard(B, done)
        B('s_cmp_ge_u32 s%d, %d', sd, n)
        again(B, 's_cbranch_scc0', lo, sleep)
        prio(B, 1)
    if cache is not None and body is None and not HELP['on']:
        A('s_getpc_b64 s[%d:%d]', sPC, sPC + 1)
        A('s_cmp_ge_u32 s%d, %d', sd, n)
        A('s_cbranch_scc0 REFRESH_%d', w)
        return
    done = A.label('WD')
    if cache is not None and body is None:
        A('s_cmp_ge_u32 s%d, %d', sd, n)
        A('s_cbranch_scc1 %s', done)
    loop(A, done, body)
    A('%s:', done)


def wait_lp(A, name, sleep=0):
    w, n = LP[name]
    wait_word(A, w, n, CACHE[w], sleep)


def set_stage(A, n):
    A('v_mov_b32 v%d, %d', vT0, n)
    A('ds_write_b32 v%d, v%d', vMY, vT0)


def wait_stage(A, n, which=(0, 1, 2, 3), body=None, sleep=0, base=M_PW, cache=None):
    lo, done = A.label('W'), A.label('WD')
    sT = globals()['sT'] if cache is None else cache
    if cache is not None:
        A('s_cmp_ge_u32 s%d, %d', sT, n)
        A('s_cbranch_scc1 %s', done)
    prio(A, 0)
    A('%s:', lo)
    A('ds_read_b128 v[%d:%d], v%d offset:%d', vPW, vPW + 3, vMI, base + 16 * (which[0] // 4))
    k = body() if body else 0
    A('s_waitcnt lgkmcnt(%d)', k)
    w = [x % 4 for x in which]
    if len(w) == 4:
        A('v_min3_u32 v%d, v%d, v%d, v%d', vPW, vPW, vPW + 1, vPW + 2)
        A('v_min_u32 v%d, v%d, v%d', vPW, vPW, vPW + 3)
        r = vPW
    else:
        A('v_min_u32 v%d, v%d, v%d', vPW + w[0], vPW + w[0], vPW + w[1])
        r = vPW + w[0]
    A('v_readfirstlane_b32 s%d, v%d', sT, r)
    spin_guard(A, done)
    A('s_cmp_ge_u32 s%d, %d', sT, n)
    again(A, 's_cbranch_scc0', lo, sleep)
    A('%s:', done)
    prio(A, 1)


def poll_global(A, soff, nlanes):
    lo, done = A.label('P'), A.label('PD')
    A('v_lshlrev_b32 v%d, 2, v%d', vT1, vL)
    if nlanes <= 32:
        A('s_mov_b64 exec, 0x%x', (1 << nlanes) - 1)
    else:
        A('s_mov_b32 exec_lo, 0x%x', nlanes & 0xffffffff)
        A('s_mov_b32 exec_hi, 0x%x', nlanes >> 32)
    A('%s:', lo)
    A('buffer_load_dword v%d, v%d, s[%d:%d], s%d offen sc1', vT0, vT1, SWS, SWS + 3, soff)
    A('s_waitcnt vmcnt(0)')
    A('v_cmp_ne_u32 vcc, s%d, v%d', sTAG, vT0)
    spin_guard(A, done)
    A('s_cbranch_vccnz %s', lo)
    A('%s:', done)
    A('s_mov_b64 exec, -1')


def poll_scalar(A, soff, n):
    lo, done = A.label('P'), A.label('PD')
    A('s_add_u32 s%d, s%d, s%d', sPC, SWS, soff)
    A('s_addc_u32 s%d, s%d, 0', sPC + 1, SWS + 1)
    base = 76
    assert n == 8
    A('%s:', lo)
    if E('PSLEEP', 0):
        A('s_sleep %d', E('PSLEEP', 0))
    A('s_load_dwordx%d s[%d:%d], s[%d:%d], 0 glc', n, base, base + n - 1, sPC, sPC + 1)
    A('s_waitcnt lgkmcnt(0)')
    A('s_and_b64 s[%d:%d], s[%d:%d], s[%d:%d]', sHI, sHI + 1, base, base + 1, base + 2, base + 3)
    A('s_or_b64 s[%d:%d], s[%d:%d], s[%d:%d]', sPADL, sPADL + 1, base, base + 1, base + 2, base + 3)
    for k in range(4, n, 2):
        A('s_and_b64 s[%d:%d], s[%d:%d], s[%d:%d]', sHI, sHI + 1, sHI, sHI + 1, base + k, base + k + 1)
        A('s_or_b64 s[%d:%d], s[%d:%d], s[%d:%d]', sPADL, sPADL + 1, sPADL, sPADL + 1, base + k, base + k + 1)
    A('s_and_b32 s%d, s%d, s%d', sHI, sHI, sHI + 1)
    A('s_or_b32 s%d, s%d, s%d', sPADL, sPADL, sPADL + 1)
    A('s_xor_b32 s%d, s%d, s%d', sHI, sHI, sTAG)
    A('s_xor_b32 s%d, s%d, s%d', sPADL, sPADL, sTAG)
    spin_guard(A, done)
    A('s_or_b32 s%d, s%d, s%d', sHI, sHI, sPADL)
    A('s_cbranch_scc1 %s', lo)
    A('%s:', done)


def two_ways(A, fn, local):
    if local and FAST:
        ent, back = cold_block(A, lambda B, back: fn(B, ' sc1'))
        A('s_cmp_eq_u32 s%d, 0', sFASTF)
        A('s_cbranch_scc1 %s', ent)
        fn(A, '')
        A('%s:', back)
    else:
        fn(A, ' sc1')


def pub_stores(A, stores, local):
    def fn(B, bits):
        for st in stores:
            B(st % bits)
    two_ways(A, fn, local)


def pub_flag(A, sflag, local, drain=True):
    if drain:
        A('s_waitcnt vmcnt(0)')
    A('s_mov_b64 exec, 1')
    two_ways(A, lambda B, bits: B('buffer_store_dword v%d, v%d, s[%d:%d], s%d offen%s', vTAG, vO, SWS, SWS + 3, sflag,
                                  bits), local)
    A('s_mov_b64 exec, -1')


def pub_flag4(A):
    A('v_lshlrev_b32 v%d, 9, v%d', vT1, vL)
    A('s_waitcnt vmcnt(0)')
    A('s_mov_b64 exec, 15')
    two_ways(A, lambda B, bits: B('buffer_store_dword v%d, v%d, s[%d:%d], s%d offen%s', vTAG, vT1, SWS, SWS + 3, sFL,
                                  bits), True)
    A('s_mov_b64 exec, -1')


def st4(reg, soff, off):
    return 'buffer_store_dwordx4 %s, v%d, s[%d:%d], s%d offen offset:%d%%s' % (v(reg, 4), vO, SWS, SWS + 3, soff, off)


def hilo_c(A, src, f, tmp):
    A('v_cvt_pk_bf16_f32 v%d, v%d, v%d', f, src, src)
    A('v_and_b32 v%d, 0xffff0000, v%d', tmp, f)
    A('v_sub_f32 v%d, v%d, v%d', tmp, src, tmp)
    A('v_cvt_pk_bf16_f32 v%d, v%d, 0', f + 1, tmp)


def hilo_m(A, src, f, tmp):
    A('v_cvt_pk_bf16_f32 v%d, v%d, 0', f + 1, src)
    A('v_lshlrev_b32 v%d, 16, v%d', tmp, f + 1)
    A('v_sub_f32 v%d, v%d, v%d', tmp, src, tmp)
    A('v_cvt_pk_bf16_f32 v%d, v%d, v%d', f, src, tmp)


def ln_finish(A, t0, t1, negmean, rstd):
    A('v_mul_f32 v%d, 0x%x, v%d', t0, 0x3b124925, t0)
    A('v_mov_b32 v%d, v%d', t1, t0)
    A('v_permlane32_swap_b32 v%d, v%d', t0, t1)
    A('v_fma_f32 v%d, -v%d, v%d, v%d', t1, t0, t0, t1)
    A('v_max_f32 v%d, 0, v%d', t1, t1)
    A('v_add_f32 v%d, 0x%x, v%d', t1, 0x3727c5ac, t1)
    A('v_rsq_f32 v%d, v%d', rstd, t1)
    A('v_sub_f32 v%d, 0, v%d', negmean, t0)


def softmax_pm(A, p, sc, e, t):
    A('v_cndmask_b32 v%d, v%d, v%d, s[%d:%d]', p + 12, p + 12, p + 14, sHI, sHI + 1)
    A('v_cndmask_b32 v%d, v%d, v%d, s[%d:%d]', p + 13, p + 13, p + 15, sHI, sHI + 1)
    mx, mn = t, t + 1
    A('v_max3_f32 v%d, v%d, v%d, v%d', mx, p, p + 1, p + 2)
    A('v_min3_f32 v%d, v%d, v%d, v%d', mn, p, p + 1, p + 2)
    for i in range(3, 13, 2):
        A('v_max3_f32 v%d, v%d, v%d, v%d', mx, mx, p + i, p + i + 1)
        A('v_min3_f32 v%d, v%d, v%d, v%d', mn, mn, p + i, p + i + 1)
    A('v_max_f32 v%d, v%d, v%d', mx, mx, p + 13)
    A('v_min_f32 v%d, v%d, v%d', mn, mn, p + 13)
    A('v_sub_f32 v%d, 0, v%d', mn, mn)
    A('v_permlane32_swap_b32 v%d, v%d', mx, mn)
    A('v_max_f32 v%d, v%d, v%d', mx, mx, mn)
    A('v_mul_f32 v%d, v%d, v%d', mx, mx, sc)
    A('v_mov_b32 v%d, v%d', mn, mx)
    A('v_permlane32_swap_b32 v%d, v%d', mx, mn)
    assert sc % 2 == 0 and mx % 2 == 0
    for i in range(0, 14, 2):
        A('v_pk_fma_f32 v[%d:%d], v[%d:%d], v[%d:%d], v[%d:%d] op_sel:[0,0,1] op_sel_hi:[1,0,1] neg_lo:[1,0,1] '
          'neg_hi:[1,0,1]', e + i, e + i + 1, p + i, p + i + 1, sc, sc + 1, mx, mx + 1)
        A('v_pk_fma_f32 v[%d:%d], v[%d:%d], v[%d:%d], v[%d:%d] op_sel_hi:[1,0,0] neg_lo:[0,0,1] neg_hi:[0,0,1]',
          p + i, p + i + 1, p + i, p + i + 1, sc, sc + 1, mx, mx + 1)
    for i in range(14):
        A('v_exp_f32 v%d, v%d', e + i, e + i)
        A('v_exp_f32 v%d, v%d', p + i, p + i)
    if PKSM:
        for base in (p, e):
            A('v_pk_add_f32 v[%d:%d], v[%d:%d], v[%d:%d]', base + 14, base + 15, base, base + 1, base + 2, base + 3)
        for i in range(4, 14, 2):
            for base in (p, e):
                A('v_pk_add_f32 v[%d:%d], v[%d:%d], v[%d:%d]', base + 14, base + 15, base + 14, base + 15, base + i,
                  base + i + 1)
    else:
        for base in (p, e):
            A('v_add_f32 v%d, v%d, v%d', base + 14, base, base + 2)
            A('v_add_f32 v%d, v%d, v%d', base + 15, base + 1, base + 3)
        for i in range(4, 14):
            for base in (p, e):
                A('v_add_f32 v%d, v%d, v%d', base + 14 + (i & 1), base + 14 + (i & 1), base + i)
    sp, sn = t + 2, t
    A('v_add_f32 v%d, v%d, v%d', sp, p + 14, p + 15)
    A('v_add_f32 v%d, v%d, v%d', sn, e + 14, e + 15)
    A('v_permlane32_swap_b32 v%d, v%d', sp, sn)
    A('v_add_f32 v%d, v%d, v%d', sp, sp, sn)
    A('v_rcp_f32 v%d, v%d', sp, sp)
    A('v_mov_b32 v%d, v%d', sn, sp)
    A('v_permlane32_swap_b32 v%d, v%d', sp, sn)
    for i in range(0, 14, 2):
        for base, r in ((p, sp), (e, sn)):
            if PKSM:
                A('v_pk_mul_f32 v[%d:%d], v[%d:%d], v[%d:%d] op_sel_hi:[1,0]', base + i, base + i + 1, base + i,
                  base + i + 1, r, r + 1)
            else:
                A('v_mul_f32 v%d, v%d, v%d', base + i, base + i, r)
                A('v_mul_f32 v%d, v%d, v%d', base + i + 1, base + i + 1, r)
    for i, (a0, a1) in enumerate(((0, 1), (2, 3), (4, 5), (6, None), (7, 8), (9, 10), (11, 12), (13, None))):
        for base in (p, e):
            A('v_cvt_pk_bf16_f32 v%d, v%d, %s', base + i, base + a0, '0' if a1 is None else 'v%d' % (base + a1))


PKSM = E('PKSM', 1)


def silu8(B, acc, e, sd, c1, out):
    for r in range(8):
        B('v_mul_f32 v%d, v%d, v%d', e + r, acc + r, c1)
        if r >= 1:
            B('v_exp_f32 v%d, v%d', e + r - 1, e + r - 1)
    B('v_exp_f32 v%d, v%d', e + 7, e + 7)
    for r in range(8):
        B('v_fma_f32 v%d, v%d, v%d, v%d', e + r, e + r, sd, sd)
        if r >= 1:
            B('v_rcp_f32 v%d, v%d', e + r - 1, e + r - 1)
    B('v_rcp_f32 v%d, v%d', e + 7, e + 7)
    for r in range(8):
        B('v_mul_f32 v%d, v%d, v%d', e + r, e + r, acc + r)
    cvt8(B, out, e, 4)


def cvt8(A, dst, src, n=8):
    for i in range(n):
        A('v_cvt_pk_bf16_f32 v%d, v%d, v%d', dst + i, src + 2 * i, src + 2 * i + 1)


def mfma(A, d, a_, b_, first=False):
    A('%s %s, %s, %s, %s', MFMA, v(d, 16), v(a_, 4), v(b_, 4), '0' if first else v(d, 16))


def merge(main, blocks, start, stop):
    idx = [i for i, l in enumerate(main) if l.strip().startswith('v_mfma')][start:stop]
    out, k = [], 0
    n = len(idx)
    pos = {i: j for j, i in enumerate(idx)}
    for i, l in enumerate(main):
        out.append(l)
        if i in pos:
            upto = (len(blocks) * (pos[i] + 1) + n - 1) // n
            for b in blocks[k:upto]:
                out += b
            k = max(k, upto)
    assert k >= len(blocks)
    return out


def sub(A):
    return Asm()


L_H = (L_A, L_A + 28672, 0, 65536)
W2S = [32768, 40960] + [L_A + k * 8192 for k in range(2)] + [L_SC0, L_SC1] + [L_A + k * 8192 for k in range(2, 7)] + [
    k * 8192 for k in range(4)] + [65536 + k * 8192 for k in range(4)]
FINE = E('FINE', 1)
W2GATE = {2: 8, 3: 16, 6: 24, 7: 32, 8: 40, 9: 48, 10: 56, 11: 64, 12: 72, 13: 80, 14: 84, 15: 92, 16: 100, 17: 108,
          18: 112} if FINE else {2: 28, 7: 56, 11: 84, 15: 112}
W2RE = dict(zip(range(19, 28), (0, 1, 2, 3, 6, 7, 8, 9, 10)))


def w2_slot(n):
    return W2S[W2RE.get(n, n)]


def w1_slot(c):
    return B16[c % 5]


class LdsQ:
    def __init__(self, A):
        self.A, self.q = A, []
        self.peeked = False

    def op(self, tag, fmt, *a):
        self.A(fmt, *a)
        self.q.append(tag)

    def need(self, tag):
        idx = [i for i, x in enumerate(self.q) if x == tag]
        if not idx:
            return None
        n = len(self.q) - 1 - idx[-1]
        self.q = self.q[idx[-1] + 1:]
        return min(n, 15)

    def wait(self, tag, vm=None):
        n = self.need(tag)
        if n is None and vm is None:
            return
        self.A('s_waitcnt' + ('' if vm is None else ' vmcnt(%d)' % vm) + ('' if n is None else ' lgkmcnt(%d)' % n))

    def stage(self, n):
        set_stage(self.A, n)
        self.q.append('st')

    def peek(self, w):
        if w == 5:
            self.op('pk', 'ds_read_b32 v%d, v%d', vPK_, vCA)
        else:
            self.op('pk', 'ds_read_b32 v%d, v%d offset:%d', vPK_, vMI, M_PW + 4 * w)
        self.peeked = True

    def take(self, w):
        if not self.peeked:
            return
        self.peeked = False
        self.wait('pk')
        self.A('v_readfirstlane_b32 s%d, v%d', CACHE[w], vPK_)


def tag_compute(A, t16=None):
    A('s_waitcnt lgkmcnt(0)')
    if t16 is not None:
        A('s_lshr_b32 s%d, s%d, 16', sT2, sTAG)
    A('s_mul_i32 s%d, s%d, 0x%x', sTAG, sTAG, 1664525)
    A('s_add_u32 s%d, s%d, 0x%x', sTAG, sTAG, 1013904223)
    A('v_mov_b32 v%d, s%d', vTAG, sTAG)
    if t16 is not None:
        A('s_and_b32 s%d, s%d, 0x3fff', t16, sTAG)
        A('s_and_b32 s%d, s%d, 0x4000', sT, sTAG)
        A('s_lshl_b32 s%d, s%d, 1', sT, sT)
        A('s_or_b32 s%d, s%d, s%d', t16, t16, sT)
        A('s_cmp_eq_u32 s%d, s%d', t16, sT2)
        A('s_cselect_b32 s%d, 1, 0', sT)
        A('s_xor_b32 s%d, s%d, s%d', t16, t16, sT)
        A('s_lshl_b32 s%d, s%d, 16', t16, t16)


def fast_check(A):
    A('s_getreg_b32 s%d, hwreg(HW_REG_XCC_ID)', sC)
    A('s_and_b32 s%d, s%d, 15', sC, sC)
    A('s_add_u32 s%d, s%d, s%d', sC, sC, sTAG)
    A('s_lshl_b32 s%d, s%d, 7', sT, sXCD)
    A('s_add_u32 s%d, s%d, %d', sT, sT, FREG)
    A('v_and_b32 v%d, 31, v%d', vT1, vL)
    A('v_lshlrev_b32 v%d, 2, v%d', vT1, vT1)
    A('buffer_load_dword v%d, v%d, s[%d:%d], s%d offen sc1', vT0, vT1, SWS, SWS + 3, sT)
    A('s_waitcnt vmcnt(0)')
    A('v_cmp_ne_u32 vcc, s%d, v%d', sC, vT0)
    A('s_cmp_eq_u64 vcc, 0')
    A('s_cselect_b32 s%d, 1, 0', sFASTF)


class Stream:
    def __init__(self, A, wave, depth, first=0):
        self.A, self.wave, self.depth = A, wave, depth
        self.items = []
        self.issued = 0
        self.known = 0
        self.n = first

    def wait_to(self, left):
        if self.issued - left <= self.known:
            return
        self.A('s_waitcnt vmcnt(%d)', left)
        self.known = self.issued - left
        last = None
        while self.items and self.items[0][1] <= self.known:
            last = self.items.pop(0)[0]
        if last is not None:
            set_stage(self.A, last)

    def room(self, k):
        self.wait_to(max(self.depth - k, 0))
        self.issued += k

    def done(self, name, cnt=None):
        self.n += 1
        assert LP.setdefault(name, (self.wave, self.n)) == (self.wave, self.n), name
        self.items.append((self.n, self.issued))

    def drain(self):
        self.drain_to(0)

    def drain_to(self, keep):
        while len(self.items) > keep:
            self.wait_to(self.issued - self.items[0][1])

    def save(self):
        return (list(self.items), self.issued, self.known)

    def restore(self, s):
        self.items, self.issued, self.known = list(s[0]), s[1], s[2]

    def dma4(self, lds, voffs, srd_, step=None, bits=''):
        A = self.A
        if isinstance(lds, tuple):
            A('s_add_u32 m0, s%d, %d', lds[0], lds[1])
        else:
            A('s_mov_b32 m0, %d', lds)
        self.room(4)
        for u in range(4):
            A('buffer_load_dwordx4 v%d, s[%d:%d], s%d offen offset:%d%s lds', voffs[u], srd_, srd_ + 3, sT, u * 1024,
              bits)
        if step:
            A('s_add_u32 s%d, s%d, %d', sT, sT, step)


def reg4(St, regs, voffs, srd_, step=None):
    St.room(4)
    for u in range(4):
        St.A('buffer_load_dwordx4 %s, v%d, s[%d:%d], s%d offen offset:%d', v(regs[u], 4), voffs[u], srd_, srd_ + 3, sT,
             u * 1024)
    if step:
        St.A('s_add_u32 s%d, s%d, %d', sT, sT, step)


def spill(St, name, regs, lds):
    A = St.A
    assert not St.items
    A('v_add_u32 v%d, %d, v%d', vT1, lds, vO)
    A('s_setprio %d', E('SPRIO', 0))
    for j, r in enumerate(regs):
        A('ds_write_b128 v%d, %s offset:%d', vT1, v(r, 4), j * 1024)
    St.n += 1
    assert LP.setdefault(name, (St.wave, St.n)) == (St.wave, St.n), name
    set_stage(A, St.n)


def off128(A, vW128, vXo=None):
    A('v_lshrrev_b32 v%d, 3, v%d', vW128, vL)
    A('v_mul_u32_u24 v%d, 896, v%d', vW128, vW128)
    A('v_and_b32 v%d, 7, v%d', vT1, vL)
    if vXo is not None:
        A('v_lshl_add_u32 v%d, v%d, 4, v%d', vXo, vT1, vW128)
        spread4(A, vXo, 8 * 896)
    A('v_lshrrev_b32 v%d, 2, v%d', vT0, vL)
    A('v_and_b32 v%d, 4, v%d', vT0, vT0)
    A('v_xor_b32 v%d, v%d, v%d', vT1, vT1, vT0)
    A('v_lshl_add_u32 v%d, v%d, 4, v%d', vW128, vT1, vW128)
    spread4(A, vW128, 8 * 896)


def off256(A, vW256):
    A('v_lshrrev_b32 v%d, 4, v%d', vW256, vL)
    A('v_mul_u32_u24 v%d, 3584, v%d', vW256, vW256)
    A('v_and_b32 v%d, 15, v%d', vT1, vL)
    A('v_lshrrev_b32 v%d, 2, v%d', vT0, vL)
    A('v_and_b32 v%d, 12, v%d', vT0, vT0)
    A('v_xor_b32 v%d, v%d, v%d', vT1, vT1, vT0)
    A('v_lshl_add_u32 v%d, v%d, 4, v%d', vW256, vT1, vW256)
    spread4(A, vW256, 4 * 3584)


def h_stream(A, first):
    wave = 7
    St = Stream(A, wave, E('HDEPTH', 24), first)
    if wave == 7:
        A('s_lshl_b32 s%d, s%d, 17', sB, sTB3)
        A('s_add_u32 s%d, s%d, %d', sB, sB, WS_HB + (0x40000000 if E('ABL', 0) & 128 else 0))
        rot_calc(A, sG, 'w1')
        for u in range(7):
            rot_idx(A, 4 + u, sG, u, 7)
            A('s_lshl_b32 s%d, s%d, 12', 4 + u, 4 + u)
            A('s_add_u32 s%d, s%d, s%d', 4 + u, 4 + u, sB)
            A('s_add_u32 s%d, s%d, 4096', 4 + u, 4 + u)
        A('s_lshl_b32 s%d, s%d, 8', sT2, sTB3)
        A('s_add_u32 s%d, s%d, %d', sT2, sT2, F3)
        A('v_lshlrev_b32 v%d, 2, v%d', vT1, vL)
        A('s_and_b32 s%d, s%d, 1', sC, sFB)
        A('s_lshl_b32 s%d, s%d, 16', sC, sC)
        HALF = E('HHALF', 1)
        sMK = sODD
        A('s_bitcmp1_b32 s%d, 0', sFB)
        A('s_cselect_b32 s%d, %s, 0x3fff3fff', sMK, '0' if HALF else '0x3fff3fff')
        A('s_cselect_b32 s%d, 0x3fff3fff, %s', sMK + 1, '0' if HALF else '0x3fff3fff')
        A('v_mov_b32 v41, v%d', vT1)

        def poll(B, done):
            lo = B.label('P')
            B('%s:', lo)
            B('buffer_load_dword v42, v41, s[%d:%d], s%d offen sc1', SWS, SWS + 3, sM0)
            B('s_waitcnt vmcnt(0)')
            B('v_cmp_ne_u32 vcc, s%d, v42', sTAG)
            spin_guard(B, done)
            B('s_and_b64 vcc, vcc, s[%d:%d]', sMK, sMK + 1)
            B('s_cbranch_scc1 %s', lo)
        A('s_mov_b32 s%d, s%d', sM0, sT2)
        wait_stage(A, C0 + 7, sleep=1)
        stamp(A)
        done = A.label('PD')
        poll(A, done)
        A('%s:', done)
        stamp(A)
        for gi in range(4):
            if gi == 1 and HALF:
                St.room(1)
                A('buffer_load_dword v42, v41, s[%d:%d], s%d offen sc1', SWS, SWS + 3, sM0)
                mark = St.issued
                A('s_mov_b32 s%d, 0x3fff3fff', sMK)
                A('s_mov_b32 s%d, 0x3fff3fff', sMK + 1)
            if gi == 2:
                wait_stage(A, C0 + 8)
                if HALF:
                    St.wait_to(St.issued - mark)
                    ent, back = cold_block(A, poll)
                    A('v_cmp_ne_u32 vcc, s%d, v42', sTAG)
                    A('s_and_b64 vcc, vcc, s[%d:%d]', sMK, sMK + 1)
                    A('s_cbranch_scc1 %s', ent)
                    A('%s:', back)
            if gi:
                A('s_xor_b32 s%d, s%d, %d', sC, sC, (gi ^ (gi - 1)) << 15)
            St.depth = E('HDEPTH0', 24) if gi == 0 else E('HDEPTH', 24)
            for u in range(7):
                A('s_add_u32 s%d, s%d, s%d', sT, 4 + u, sC)
                St.dma4(L_H[gi] + u * 4096, [vO] * 4, SWS, None, LDB)
                if u in HITEMS[gi > 0]:
                    St.done(('h', gi, u))
                if u == (E('HSPOS', 3) if gi == 0 else 0):
                    A('s_add_u32 s%d, s%d, s%d', sT, sB, sC)
                    St.dma4(L_SC0 + gi * 4096, [vO] * 4, SWS, None, ' sc1')
                    St.done(('hs', gi))
        St.drain()
    stamp(A)


def spread4(A, base, step):
    for u in range(1, 4):
        A('v_add_u32 v%d, %d, v%d', base + u, u * (step - 1024), base)


def wtr_base(A):
    A('v_lshrrev_b32 v%d, 5, v%d', vT1, vL)
    A('v_bfe_u32 v%d, v%d, 2, 2', vT0, vL)
    A('v_lshl_add_u32 v%d, v%d, 3, v%d', vT0, vT1, vT0)
    A('v_lshlrev_b32 v%d, 6, v%d', vT0, vT0)
    A('v_bfe_u32 v%d, v%d, 4, 1', vTT, vL)
    A('v_lshl_add_u32 v%d, v%d, 5, v%d', vT0, vTT, vT0)
    A('v_and_b32 v%d, 3, v%d', vTT, vL)
    A('v_lshl_add_u32 v%d, v%d, 3, v%d', vT0, vTT, vT0)
    for pi in range(3):
        A('v_add_u32 v%d, %d, v%d', vWA + pi, L_WP[pi], vT0)
    A('v_lshlrev_b32 v%d, 3, v%d', vCA, vL)
    A('v_add_u32 v%d, %d, v%d', vCA, L_CF, vCA)


def sel_frags(A, vID):
    A('v_lshrrev_b32 v%d, 5, v%d', vT1, vL)
    A('v_and_b32 v%d, 31, v%d', vT0, vL)
    A('v_lshlrev_b32 v%d, 2, v%d', vTT, vT1)
    A('v_sub_u32 v%d, v%d, v%d', vT0, vT0, vTT)
    A('v_mov_b32 v%d, 0x3f80', vTT)
    A('v_mov_b32 v%d, 0x3f800000', vTT + 1)
    for sidx in range(2):
        for rr in range(4):
            m = 16 * sidx + 8 * (rr >> 1) + 2 * (rr & 1)
            A('v_cmp_eq_u32 vcc, %d, v%d', m, vT0)
            A('v_cndmask_b32 v%d, 0, v%d, vcc', vID + 4 * sidx + rr, vTT)
            A('v_cmp_eq_u32 vcc, %d, v%d', m + 1, vT0)
            A('v_cndmask_b32 v%d, v%d, v%d, vcc', vID + 4 * sidx + rr, vID + 4 * sidx + rr, vTT + 1)


def read_w(A, pi, i, buf, sleep=0):
    wait_lp(A, ('W', pi, i), sleep)
    for q in range(4):
        for z in range(2):
            A('ds_read_b64_tr_b16 v[%d:%d], v%d offset:%d', buf + 4 * q + 2 * z, buf + 4 * q + 2 * z + 1,
              vWA + pi, i * 4096 + q * 1024 + z * 256)


def colsum(A, spi):
    vCS, vB_, buf = 40, 44, 48
    A('v_mov_b32 v%d, 0', vCS)
    A('v_mov_b32 v%d, 0', vCS + 1)
    A('s_cmp_eq_u32 s%d, 1', spi)
    A('s_cselect_b32 s%d, 0, %d', sT, L_WP[2])
    A('s_cmp_eq_u32 s%d, 0', spi)
    A('s_cselect_b32 s%d, %d, s%d', sT, L_WP[0], sT)
    assert L_WP[1] == 0
    A('v_add_u32 v%d, s%d, v%d', vB_, sT, vWA + 1)
    A('s_mul_i32 s%d, s%d, 7', sC, spi)
    A('s_add_u32 s%d, s%d, 7', sT2, sC)
    top, lo, ok = A.label('CS'), A.label('W'), A.label('WD')
    A('%s:', top)
    A('s_cmp_gt_u32 s%d, s%d', sPROG, sC)
    A('s_cbranch_scc1 %s', ok)
    prio(A, 0)
    A('%s:', lo)
    A('ds_read_b32 v%d, v%d offset:%d', vPW, vMI, M_PW + 16)
    A('s_waitcnt lgkmcnt(0)')
    A('v_readfirstlane_b32 s%d, v%d', sPROG, vPW)
    spin_guard(A, ok)
    A('s_cmp_gt_u32 s%d, s%d', sPROG, sC)
    again(A, 's_cbranch_scc0', lo)
    prio(A, 1)
    A('%s:', ok)
    for q in range(4):
        for z in range(2):
            A('ds_read_b64_tr_b16 v[%d:%d], v%d offset:%d', buf + 4 * q + 2 * z, buf + 4 * q + 2 * z + 1, vB_,
              q * 1024 + z * 256)
    A('ds_read_b32 v%d, v%d offset:%d', vPW, vMI, M_PW + 16)
    A('v_add_u32 v%d, 4096, v%d', vB_, vB_)
    A('s_add_u32 s%d, s%d, 1', sC, sC)
    for q in range(4):
        A('s_waitcnt lgkmcnt(%d)', 7 - 2 * q)
        for r in range(4):
            A('v_dot2c_f32_bf16 v%d, s%d, v%d', vCS + (r & 1), sONES, buf + 4 * q + r)
    A('s_waitcnt lgkmcnt(0)')
    A('v_readfirstlane_b32 s%d, v%d', sPROG, vPW)
    A('s_cmp_lt_u32 s%d, s%d', sC, sT2)
    A('s_cbranch_scc1 %s', top)
    A('v_add_f32 v%d, v%d, v%d', vCS, vCS, vCS + 1)
    hilo_c(A, vCS, vCS + 2, vT0)
    A('s_lshl_b32 s%d, s%d, 9', sT, spi)
    A('v_add_u32 v%d, s%d, v%d', vB_, sT, vCA)
    A('ds_write_b64 v%d, v[%d:%d]', vB_, vCS + 2, vCS + 3)


ROT = E('ROT', 1)
HITEMS = ((1, 3, 5, 6), (1, 3, 6))
W7ST = 0
LATE = E('LATE', 0)
W2R = E('W2R', 0)


def rot_calc(A, dst, kind):
    if not ROT:
        A('s_mov_b32 s%d, 0', dst)
        return
    if kind == 'w1':
        A('s_and_b32 s%d, s%d, 1', dst, sTB3)
        A('s_mul_i32 s%d, s%d, %d', dst, dst, 4 if LATE else 3)
        mod = 7
    elif kind == 'wo':
        A('s_and_b32 s%d, s%d, 3', dst, sTQ)
        A('s_lshl_b32 s%d, s%d, 1', dst, dst)
        mod = 7
    else:
        A('s_and_b32 s%d, s%d, 3', dst, sTQ)
        A('s_mul_i32 s%d, s%d, 7', dst, dst)
        A('s_lshr_b32 s%d, s%d, 1', dst, dst)
        mod = 14
    A('s_add_u32 s%d, s%d, s%d', dst, dst, sXCD)
    if kind == 'w1' and E('ROTFB', 1):
        A('s_lshr_b32 s%d, s%d, 1', sT, sFB)
        A('s_add_u32 s%d, s%d, s%d', dst, dst, sT)
        A('s_mul_i32 s%d, s%d, 37', sT, dst)
        A('s_lshr_b32 s%d, s%d, 8', sT, sT)
        A('s_mul_i32 s%d, s%d, 7', sT, sT)
        A('s_sub_u32 s%d, s%d, s%d', dst, dst, sT)
        return
    A('s_cmp_ge_u32 s%d, %d', dst, mod)
    A('s_cselect_b32 s%d, %d, 0', sT, mod)
    A('s_sub_u32 s%d, s%d, s%d', dst, dst, sT)


def rot_idx(A, dst, rot, j, mod):
    A('s_add_u32 s%d, s%d, %d', dst, rot, j)
    A('s_cmp_ge_u32 s%d, %d', dst, mod)
    A('s_cselect_b32 s%d, %d, 0', sT2, mod)
    A('s_sub_u32 s%d, s%d, s%d', dst, dst, sT2)


def blk_init(A, sb, sst, kh):
    A('s_and_b32 s%d, s%d, 1', sb, sTQ)
    if isinstance(kh, str):
        A('s_xor_b32 s%d, s%d, %s', sb, sb, kh)
    elif kh:
        A('s_xor_b32 s%d, s%d, 1', sb, sb)
    A('s_lshr_b32 s%d, s%d, 1', sT, sTQ)
    A('s_xor_b32 s%d, s%d, s%d', sT, sT, sXCD)
    A('s_sub_u32 s%d, 6, s%d', sT2, sb)
    A('s_bitcmp1_b32 s%d, 0', sT)
    A('s_cselect_b32 s%d, s%d, s%d', sb, sT2, sb)
    A('s_cselect_b32 s%d, 5, 2', sst)


def blk_next(A, sb, sst):
    A('s_add_u32 s%d, s%d, s%d', sb, sb, sst)
    A('s_cmp_ge_u32 s%d, 7', sb)
    A('s_cselect_b32 s%d, 7, 0', sT2)
    A('s_sub_u32 s%d, s%d, s%d', sb, sb, sT2)


def rest_srds(A):
    A('s_add_u32 s82, s80, %d', FEP)
    A('s_addc_u32 s83, s81, 0')
    A('s_load_dword s%d, s[82:83], 0', sTAG)
    srd(A, SP, 68, H * DH * DH * 2)
    A('s_mul_i32 s%d, s%d, 37', sTQ, sI)
    A('s_lshr_b32 s%d, s%d, 8', sTQ, sTQ)
    A('s_mul_i32 s%d, s%d, 7', sNB, sTQ)
    A('s_sub_u32 s%d, s%d, s%d', sNB, sI, sNB)
    A('s_lshr_b32 s%d, s%d, 1', sTB3, sTQ)
    A('s_mul_i32 s%d, s%d, 14', sFB, sTB3)
    A('s_sub_u32 s%d, s%d, s%d', sFB, sI, sFB)
    A('s_lshl2_add_u32 s%d, s%d, s%d', sTQ, sXCD, sTQ)
    A('s_lshl1_add_u32 s%d, s%d, s%d', sTB3, sXCD, sTB3)
    A('v_lshlrev_b32 v%d, 4, v%d', vO, vL)
    A('s_mov_b32 s%d, 0', sFASTF)
    A('s_mov_b32 s%d, 0x%x', sONES, ONES)
    ABL = E('ABL', 0)
    srd(A, SWO, 70, 0 if ABL & 1 else D * D * 2)
    srd(A, SW1, 74, 0 if ABL & 2 else D * F * 2)
    srd(A, SW2, 76, 0 if ABL & 4 else D * F * 2)
    srd(A, SOUT, 78, S * D * 2)
    srd(A, SWS, 80, WS_SIZE)


def rot_next(A):
    A('s_add_u32 s%d, s%d, 1', sC, sC)
    A('s_cmp_eq_u32 s%d, 7', sC)
    A('s_cselect_b32 s%d, 0, s%d', sC, sC)


def sig_dyn(A, sval):
    A('v_mov_b32 v%d, s%d', vT0, sval)
    A('ds_write_b32 v%d, v%d', vMY, vT0)


def x_offsets(A):
    A('v_lshrrev_b32 v%d, 3, v%d', vT0, vL)
    A('v_mul_u32_u24 v%d, 896, v%d', vT0, vT0)
    A('v_lshrrev_b32 v%d, 4, v%d', vT1, vL)
    A('v_and_b32 v%d, 7, v%d', vXD, vL)
    A('v_xor_b32 v%d, v%d, v%d', vXD, vXD, vT1)
    A('v_xor_b32 v%d, 4, v%d', vXD + 1, vXD)
    A('v_lshl_add_u32 v%d, v%d, 4, v%d', vXD, vXD, vT0)
    A('v_lshl_add_u32 v%d, v%d, 4, v%d', vXD + 1, vXD + 1, vT0)
    A('v_add_u32 v%d, %d, v%d', vXD + 1, 8 * 896 - 1024, vXD + 1)
    A('v_add_u32 v%d, %d, v%d', vXD + 2, 2 * (8 * 896 - 1024), vXD)
    A('v_add_u32 v%d, %d, v%d', vXD + 3, 2 * (8 * 896 - 1024), vXD + 1)
    A('s_mul_i32 s%d, s%d, %d', sXB, sTB, 0 if E('AB2', 0) & 16 else 128 * 896)


def w_offsets(A):
    vW = 40
    A('v_lshrrev_b32 v%d, 2, v%d', vW, vL)
    A('v_mul_u32_u24 v%d, 2688, v%d', vW, vW)
    A('v_and_b32 v%d, 3, v%d', vT1, vL)
    A('v_lshl_add_u32 v%d, v%d, 4, v%d', vW, vT1, vW)
    A('s_mul_i32 s%d, s%d, %d', sT, sH, 0 if E('AB2', 0) & 8 else 56)
    A('s_and_b32 s%d, s%d, 0xfffffff0', sT, sT)
    A('v_add_u32 v%d, s%d, v%d', vW, sT, vW)
    spread4(A, vW, 16 * 2688)


def early_x(A):
    depth = E('XDEPTH', 20)
    wsig = ((depth - 4) // 4) % 4
    lag = (depth - 4 - 4 * wsig) // 16
    A('s_mov_b32 s%d, %d', sG, 1 - lag)
    A('s_mov_b32 m0, %d', L_X + 16384)
    A('s_mov_b32 s%d, s%d', sC, sC0)
    rot_next(A)
    top = A.label('XL')
    A('%s:', top)
    A('s_lshl_b32 s%d, s%d, 7', sT, sC)
    A('s_add_u32 s%d, s%d, s%d', sT, sT, sXB)
    for w in range(4):
        A('s_waitcnt vmcnt(%d)', depth - 4)
        if w == wsig:
            A('s_max_i32 s%d, s%d, 0', sT2, sG)
            sig_dyn(A, sT2)
        for u in range(4):
            A('buffer_load_dwordx4 v%d, s[%d:%d], s%d offen offset:%d lds', vXD + u, SX, SX + 3, sT, u * 1024)
        A('s_add_u32 m0, m0, 4096')
        if w < 3:
            A('s_add_u32 s%d, s%d, %d', sT, sT, 32 * 896)
    rot_next(A)
    A('s_add_u32 s%d, s%d, 1', sG, sG)
    A('s_cmp_lt_i32 s%d, %d', sG, 7 - lag)
    A('s_cbranch_scc1 %s', top)
    stamp(A)
    for n in range(7 - lag, 8):
        A('s_waitcnt vmcnt(%d)', 16 * (7 - n))
        set_stage(A, n)


def early_w(A):
    vW = 40

    def part_loop(pi, depth, floor):
        lag = (depth - 4) // 4
        stamp(A)
        A('s_mov_b32 s%d, s%d', sC, sC0)
        A('s_mov_b32 s%d, %d', sG, 7 * pi - lag)
        A('s_mov_b32 m0, %d', L_WP[pi])
        top = A.label('WL')
        A('%s:', top)
        A('s_mul_i32 s%d, s%d, %d', sT, sC, 64 * 2688)
        A('s_add_u32 s%d, s%d, %d', sT, sT, (1, 2, 0)[pi] * 896)
        A('s_max_i32 s%d, s%d, %d', sT2, sG, floor)
        A('s_waitcnt vmcnt(%d)', depth - 4)
        sig_dyn(A, sT2)
        for u in range(4):
            A('buffer_load_dwordx4 v%d, s[%d:%d], s%d offen offset:%d lds', vW + u, SW, SW + 3, sT, u * 1024)
        A('s_add_u32 m0, m0, 4096')
        rot_next(A)
        A('s_add_u32 s%d, s%d, 1', sG, sG)
        A('s_cmp_lt_i32 s%d, %d', sG, 7 * pi + 7 - lag)
        A('s_cbranch_scc1 %s', top)
        return lag
    if E('WTWAIT', 1):
        A('s_waitcnt vmcnt(0)')
    lag = part_loop(0, E('WDEPTH', 12), 0)
    for n in range(7 - lag, 8):
        A('s_waitcnt vmcnt(%d)', 4 * (7 - n))
        set_stage(A, n)


def gen_h0(A):
    St = Stream(A, 4, E('WDEPTH2', 24), 7)
    vW, vW128, vXo, vW256 = 36, 12, 16, 20
    q4 = lambda b: [b, b + 1, b + 2, b + 3]
    for u in range(4):
        A('v_mov_b32 v%d, v%d', vW + u, 40 + u)
    rest_srds(A)
    off128(A, vW128)
    off256(A, vW256)
    A('s_lshl_b32 s%d, s%d, 7', sB, sNB)
    sR1, sRO = sG, sKH
    rot_calc(A, sR1, 'w1')
    rot_calc(A, sRO, 'wo')
    sBK, sBS = [8, 9], 10
    blk_init(A, sBK[0], sBS, 0)
    blk_init(A, sBK[1], sBS, 1)

    def wpart(pi):
        wait_stage(A, pi)
        if pi == 1 and E('XG2', 4) >= 0:
            wait_lp(A, ('x', E('XG2', 4)))
        stamp(A)
        for i in range(7):
            rot_idx(A, sT, sC0, i, 7)
            A('s_mul_i32 s%d, s%d, %d', sT, sT, 64 * 2688)
            if pi == 1:
                A('s_add_u32 s%d, s%d, %d', sT, sT, 2 * 896)
            St.dma4(L_WP[pi] + i * 4096, q4(vW), SW)
            St.done(('W', pi, i))

    def wq():
        wpart(2)
    wpart(1)
    St.drain_to(E('WVKEEP', 7))
    lend = A.label('LEND')
    act = A.label('ACT')
    A('s_cmp_lt_u32 s%d, 28', sI)
    A('s_cbranch_scc1 %s', act)
    keep, n0 = St.save(), _st['n']
    wq()
    St.drain()
    St.restore(keep)
    St.n = 14
    if E('TOUCH', 1):
        def touch(srd_, base, per_xcd, n):
            A('s_mul_i32 s%d, s%d, %d', sT, sXCD, per_xcd)
            A('s_sub_u32 s%d, s%d, 28', sT2, sI)
            A('s_mul_i32 s%d, s%d, %d', sT2, sT2, n * 8192)
            A('s_add_u32 s%d, s%d, s%d', sT, sT, sT2)
            A('s_add_u32 s%d, s%d, %d', sT, sT, base)
            A('s_mov_b32 s%d, %d', sC, n)
            lo = A.label('T')
            A('%s:', lo)
            A('buffer_load_dword v%d, v%d, s[%d:%d], s%d offen sc1', vW + 1, vW, srd_, srd_ + 3, sT)
            A('s_add_u32 s%d, s%d, 8192', sT, sT)
            A('s_waitcnt vmcnt(%d)', E('TDEPTH', 6))
            A('s_sub_u32 s%d, s%d, 1', sC, sC)
            A('s_cmp_lg_u32 s%d, 0', sC)
            A('s_cbranch_scc1 %s', lo)
        A('v_lshlrev_b32 v%d, 7, v%d', vW, vL)
        if E('W2M', 1) == 2:
            touch(SW2, 0, 4 * 7 * 8192, 7)
        if E('TEARLY', 0):
            wait_stage(A, 3, (5, 6), sleep=2)
        else:
            wait_stage(A, C0 + 5, sleep=2)
        stamp(A)
        if HLATE and not WTO:
            touch(SWS, WS_HB, 262144, 8)
        if E('W2M', 1) == 1:
            touch(SW2, 0, 4 * 7 * 8192, 7)
        stamp(A)
        if not WT1:
            touch(SWS, WS_H1B, 8 * 112 * 1024, 28)
        if WT1 == 2:
            A('s_lshl2_add_u32 s%d, s%d, s%d', sG, sXCD, sI)
            A('s_sub_u32 s%d, s%d, 28', sG, sG)
            A('s_and_b32 s%d, s%d, 1', sT, sG)
            A('s_xor_b32 s%d, s%d, 1', sT, sT)
            A('s_lshl_b32 s%d, s%d, 13', sT, sT)
            A('s_mul_i32 s%d, s%d, %d', sT2, sG, 224 * 1024)
            A('s_add_u32 s%d, s%d, s%d', sT, sT, sT2)
            A('s_add_u32 s%d, s%d, %d', sT, sT, WS_H1B)
            for b in range(14):
                A('buffer_load_dword v%d, v%d, s[%d:%d], s%d offen sc1', vW + 1, vW, SWS, SWS + 3, sT)
                A('s_add_u32 s%d, s%d, 16384', sT, sT)
                A('s_waitcnt vmcnt(%d)', E('TDEPTH', 6))
        stamp(A)
        if E('W2WARM', 0):
            touch(SW2, 0, 0, 49)
        stamp(A)
        if E('WB3', 0):
            tag_compute(A)
            skipw = A.label('NW')
            A('s_cmp_lg_u32 s%d, 28', sI)
            A('s_cbranch_scc1 %s', skipw)
            A('s_lshl_b32 s%d, s%d, 9', sC, sXCD)
            A('s_add_u32 s%d, s%d, %d', sC, sC, F3)
            poll_global(A, sC, 0x3fff3fff3fff3fff)
            A('s_add_u32 s%d, s%d, 256', sC, sC)
            poll_global(A, sC, 0x3fff3fff3fff3fff)
            if E('WB3SLP', 0):
                A('s_sleep %d', E('WB3SLP', 0))
            A('buffer_wbl2 sc1')
            A('s_waitcnt vmcnt(0)')
            A('%s:', skipw)
        if E('H1PF', 0) and WT1:
            tag_compute(A)
            A('s_lshl2_add_u32 s%d, s%d, s%d', sG, sXCD, sI)
            A('s_sub_u32 s%d, s%d, 28', sG, sG)
            A('s_lshl_b32 s%d, s%d, 8', sM0, sG)
            A('s_add_u32 s%d, s%d, %d', sM0, sM0, F4)
            A('v_lshlrev_b32 v%d, 2, v%d', vW + 2, vL)
            A('s_bitcmp1_b32 s%d, 0', sG)
            A('s_mov_b32 s8, 0x0f0f0f0f')
            A('s_mov_b32 s9, 0x000f0f0f')
            A('s_cselect_b32 s8, 0xf0f0f0f0, s8')
            A('s_cselect_b32 s9, 0x00f0f0f0, s9')
            for ph in range(E('H1PF', 0)):
                lo, done = A.label('P'), A.label('PD')
                if ph == 0:
                    A('s_mov_b64 exec, s[8:9]')
                else:
                    A('s_mov_b32 exec_hi, 0xffffff')
                A('%s:', lo)
                A('buffer_load_dword v%d, v%d, s[%d:%d], s%d offen sc1', vT1, vW + 2, SWS, SWS + 3, sM0)
                A('s_waitcnt vmcnt(0)')
                A('v_cmp_ne_u32 vcc, s%d, v%d', sTAG, vT1)
                spin_guard(A, done)
                again(A, 's_cbranch_vccnz', lo, 2)
                A('%s:', done)
                A('s_mov_b64 exec, -1')
                A('s_and_b32 s%d, s%d, 1', sT, sG)
                if ph:
                    A('s_xor_b32 s%d, s%d, 1', sT, sT)
                A('s_lshl_b32 s%d, s%d, 13', sT, sT)
                A('s_mul_i32 s%d, s%d, %d', sT2, sG, 224 * 1024)
                A('s_add_u32 s%d, s%d, s%d', sT, sT, sT2)
                A('s_add_u32 s%d, s%d, %d', sT, sT, WS_H1B)
                for b in (1, 5, 2, 4, 0, 6, 3):
                    for g_ in range(2):
                        A('s_add_u32 s%d, s%d, %d', sT2, sT, b * 16384 + g_ * 112 * 1024)
                        A('buffer_load_dword v%d, v%d, s[%d:%d], s%d offen sc1', vW + 1, vW, SWS, SWS + 3, sT2)
    _st['n'] = n0
    A('s_branch %s', lend)
    A('%s:', act)

    def w1_off(c):
        rot_idx(A, sT, sR1, c, 7)
        A('s_mul_i32 s%d, s%d, %d', sT, sT, 64 * 3584)
        if not E('AB2', 0) & 2:
            A('s_lshl_b32 s%d, s%d, 8', sT2, sFB)
            A('s_add_u32 s%d, s%d, s%d', sT, sT, sT2)

    def w1_chunk(c):
        w1_off(c)
        for u in range(4):
            St.dma4(w1_slot(c) + u * 4096, q4(vW256), SW1, 16 * 3584 if u < 3 else None)
        St.done(('w1', c), 16)

    def w2_item(n):
        c, kh = n >> 1, n & 1
        A('s_mul_i32 s%d, s%d, %d', sT, sBK[kh], 128 * 896)
        if not E('AB2', 0) & 4:
            A('s_add_u32 s%d, s%d, s%d', sT, sT, sB)
        if kh or (c & 1):
            A('s_add_u32 s%d, s%d, %d', sT, sT, (kh * 896 + (c & 1) * 64) * 896)
        if c & 1:
            blk_next(A, sBK[kh], sBS)
        for u in range(2):
            St.dma4(w2_slot(n) + u * 4096, q4(vW128), SW2, 32 * 896 if u < 1 else None)
        St.done(('w2', n), 8)

    SR = [24, 28] + list(range(40, 256, 4))

    def staged(c0=0, c1=3):
        for u in range(4 * c0, 4 * c1):
            if u % 4 == 0:
                w1_off((0 if LATE else 4) + u // 4)
            reg4(St, SR[8 + 4 * u:12 + 4 * u], q4(vW256), SW1, 16 * 3584)

    def wo():
        St.drain_to(3)
        wait_stage(A, 3)
        wait_word(A, 5, 1)
        stamp(A)
        for c in range(7):
            rot_idx(A, sC, sRO, c, 7)
            A('s_mul_i32 s%d, s%d, %d', sT, sC, 64 * 896)
            if not E('AB2', 0) & 1:
                A('s_add_u32 s%d, s%d, s%d', sT, sT, sB)
            A('s_lshl_b32 s%d, s%d, 13', sC, sC)
            for u in range(2):
                St.dma4((sC, L_A + u * 4096), q4(vW128), SWO, 32 * 896 if u < 1 else None)
            if c == 2:
                St.depth = E('LDEPTH', 32)
        St.done('wo')
    staged(0, E('NSQ', 2))
    wq()
    staged(E('NSQ', 2), 3)
    wo()
    stamp(A)
    wait_stage(A, 2, (5, 6))
    stamp(A)
    if LATE:
        n3 = St.n
        St.n += 3
        w1_chunk(3)
        St.items, it3 = St.items[:-1], St.items[-1]
        St.drain()
        St.wait_to(16)
        St.n = n3
        for c in range(3):
            spill(St, ('w1', c), SR[8 + 16 * c:24 + 16 * c], w1_slot(c))
        St.n += 1
        St.items = [it3]
        St.drain()
        stamp(A)
        wait_stage(A, C0 + 3)
        wait_word(A, 7, 9)
        wait_stage(A, 1, base=M_CP)
        if LATE == 1:
            wait_stage(A, 1, base=M_LD)
        elif LATE == 2:
            wait_stage(A, 3, (5, 6))
        St.depth = E('LATEDEPTH', 20)
        for c in (4, 5, 6):
            w1_chunk(c)
        St.drain()
    else:
        for c in range(4):
            w1_chunk(c)
        St.drain()
        St.wait_to(0)
        stamp(A)
        wait_stage(A, C0 + 3)
        wait_word(A, 7, 9)
        spill(St, ('w1', 4), SR[8:24], w1_slot(4))
        wait_stage(A, 1, base=M_CP)
        spill(St, ('w1', 5), SR[24:40], w1_slot(5))
        spill(St, ('w1', 6), SR[40:56], w1_slot(6))
    stamp(A)
    wait_stage(A, C0 + 8, sleep=2)
    wait_lp(A, ('h', E('W2AFTER', 2), E('W2AFTERQ', 1)), 1)
    stamp(A)
    St.depth = E('W2DEPTH', 32)
    A('s_mov_b32 s%d, 0', sXB)
    for n in range(28):
        if n in W2GATE:
            wait_stage(A, W2GATE[n] // 2, base=M_LD, cache=sXB)
        if n == 4:
            wait_stage(A, 5, (5, 6))
        if n == 19:
            stamp(A)
            St.depth = E('W2DEPTH3', 32)
        if n >= 19:
            m = W2RE[n]
            wait_stage(A, C0 + 13 + (m >> 1), (0, 1) if (m & 1) == 0 else (2, 3))
        w2_item(n)
    St.drain()
    stamp(A)
    A('%s:', lend)
    A('s_waitcnt lgkmcnt(0)')
    stamp_flush(A)
    A('s_endpgm')


def gen_h1(A):
    stamp(A)
    rest_srds(A)
    wtr_base(A)
    tag_compute(A)
    def extras():
        if WARM:
            for srd_, size in ((SWO, D * D * 2), (SW1, D * F * 2), (SW2, D * F * 2)):
                A('s_mul_i32 s%d, s2, %d', sT, size // 256)
                A('v_lshlrev_b32 v%d, 7, v%d', vT1, vL)
                A('s_mov_b64 exec, 0x%x', (1 << ((size // 256 + 127) // 128)) - 1) if size // 256 < 4096 else None
                if size // 256 >= 4096:
                    A('s_mov_b32 exec_hi, 0x%x', (1 << ((size // 256 + 127) // 128 - 32)) - 1)
                A('buffer_load_dword v63, v%d, s[%d:%d], s%d offen', vT1, srd_, srd_ + 3, sT)
                A('s_mov_b64 exec, -1')
        if E('FT', 3) & 2:
            nf = A.label('NF')
            A('s_cmp_lt_u32 s%d, 28', sI)
            A('s_cbranch_scc1 %s', nf)
            A('v_lshlrev_b32 v%d, 7, v%d', vT1, vL)
            A('s_mov_b64 exec, 0xf')
            for base, sh in ((F2, 9), (F3, 9), (F4, 10)):
                A('s_lshl_b32 s%d, s%d, %d', sT, sXCD, sh)
                A('s_add_u32 s%d, s%d, %d', sT, sT, base)
                A('buffer_load_dword v63, v%d, s[%d:%d], s%d offen sc1', vT1, SWS, SWS + 3, sT)
                A('s_mov_b64 exec, 0x%x', 0xf if base == F2 else 0xff)
            A('s_mov_b64 exec, -1')
            A('%s:', nf)
        if E('TOUCH', 1) and not WTO:
            A('s_lshl_b32 s%d, s%d, 18', sT, sXCD)
            A('s_lshl_b32 s%d, s%d, 13', sT2, sI)
            A('s_add_u32 s%d, s%d, s%d', sT, sT, sT2)
            A('v_lshlrev_b32 v%d, 7, v%d', vT1, vL)
            for base in ([WS_OB] if MAP == 0 else []) + ([] if HLATE else [WS_HB]):
                A('s_add_u32 s%d, s%d, %d', sT2, sT, base)
                A('buffer_load_dword v63, v%d, s[%d:%d], s%d offen sc1', vT1, SWS, SWS + 3, sT2)

    if TOUCHAT == 0:
        extras()
    A('s_mov_b32 s%d, 1', sG)
    off256(A, 20)
    rot_calc(A, sXB, 'w1')
    cs, cs2 = A.label('CSL'), A.label('CSM')
    St = Stream(A, 7, E('W7DEPTH', 16), 9)

    def stage7():
        for u in range(4 * W7ST):
            if u % 4 == 0:
                rot_idx(A, sT, sXB, u // 4, 7)
                A('s_mul_i32 s%d, s%d, %d', sT, sT, 64 * 3584)
                A('s_lshl_b32 s%d, s%d, 8', sT2, sFB)
                A('s_add_u32 s%d, s%d, s%d', sT, sT, sT2)
            reg4(St, [64 + 16 * u + 4 * k for k in range(4)], [20, 21, 22, 23], SW1, 16 * 3584)
    A('%s:', cs)
    colsum(A, sG)
    A('s_add_u32 s%d, s%d, 7', sT, sG)
    sig_dyn(A, sT)
    A('s_add_u32 s%d, s%d, 1', sG, sG)
    A('s_cmp_eq_u32 s%d, 3', sG)
    A('s_cbranch_scc1 %s', cs2)
    stamp(A)
    A('s_cmp_ge_u32 s%d, 28', sI)
    A('s_cbranch_scc1 %s', cs)
    stage7()
    A('s_branch %s', cs)
    A('%s:', cs2)
    if TOUCHAT == 2:
        extras()
    stamp(A)
    lend = A.label('LEND')
    A('s_cmp_ge_u32 s%d, 28', sI)
    A('s_cbranch_scc1 %s', lend)
    if W7ST:
        A('s_waitcnt vmcnt(%d)', 1 if TOUCHAT == 2 and not WARM else 0)
        wait_stage(A, 2, (5, 6))
        for c in range(W7ST):
            spill(St, ('w1', c), [64 + 64 * c + 4 * k for k in range(16)], w1_slot(c))
        stamp(A)
    h_stream(A, 9 + W7ST)
    A('%s:', lend)
    A('s_waitcnt lgkmcnt(0)')
    stamp_flush(A)
    A('s_endpgm')


def gen_h23(A):
    vID, vAF, vVF, vAC, vG = 64, 72, 104, 136, 72
    rest_srds(A)
    sTL = sKH
    A('s_sub_u32 s%d, s%d, 5', sTL, sWV)
    skip = A.label('NOST')
    A('s_cmp_eq_u32 s%d, 1', sTL)
    A('s_cbranch_scc1 %s', skip)
    A('s_mul_i32 s%d, s%d, 1568', sT, sH)
    A('s_mov_b32 m0, %d', L_PHI)
    A('buffer_load_dwordx4 v%d, s[%d:%d], s%d offen lds', vO, SP, SP + 3, sT)
    A('buffer_load_dwordx4 v%d, s[%d:%d], s%d offen offset:1024 lds', vO, SP, SP + 3, sT)
    if CODEPF:
        A('s_mul_i32 s%d, s%d, %d', sT, sI, 1280)
        A('v_lshlrev_b32 v%d, 7, v%d', vT1, vL)
        A('v_add_u32 v%d, s%d, v%d', vT1, sT, vT1)
        A('s_mov_b64 exec, 0x3ff')
        A('global_load_dword v72, v%d, s[%d:%d]', vT1, sPC, sPC + 1)
        A('s_mov_b64 exec, -1')
    A('%s:', skip)
    if E('TLB', 0):
        A('v_lshlrev_b32 v%d, 20, v%d', vT1, vL)
        A('s_lshl_b32 s%d, s%d, 7', sT, sI)
        for srd_ in (SWS, SOUT, SWO, SW1, SW2):
            A('buffer_load_dword v73, v%d, s[%d:%d], s%d offen', vT1, srd_, srd_ + 3, sT)
    wtr_base(A)
    sel_frags(A, vID)
    sT16 = sZA
    tag_compute(A, sT16)
    if FAST:
        skip = A.label('NORG')
        A('s_cmp_eq_u32 s%d, 0', sTL)
        A('s_cbranch_scc1 %s', skip)
        A('s_getreg_b32 s%d, hwreg(HW_REG_XCC_ID)', sT2)
        A('s_and_b32 s%d, s%d, 15', sT2, sT2)
        A('s_add_u32 s%d, s%d, s%d', sT2, sT2, sTAG)
        A('v_mov_b32 v%d, s%d', vT0, sT2)
        A('s_lshl_b32 s%d, s%d, 7', sT, sXCD)
        A('s_lshl_b32 s%d, s%d, 2', sT2, sI)
        A('s_add_u32 s%d, s%d, s%d', sT, sT, sT2)
        A('s_add_u32 s%d, s%d, %d', sT, sT, FREG)
        A('s_mov_b64 exec, 1')
        A('buffer_store_dword v%d, v%d, s[%d:%d], s%d offen sc1', vT0, vO, SWS, SWS + 3, sT)
        A('s_mov_b64 exec, -1')
        A('%s:', skip)
    six, both = A.label('SIX'), A.label('BOTH')
    A('s_cmp_eq_u32 s%d, 1', sTL)
    A('s_cbranch_scc1 %s', six)
    colsum(A, sTL)
    A('s_waitcnt vmcnt(0)')
    A('s_branch %s', both)
    A('%s:', six)
    if E('IW', 6):
        ni = A.label('NI')
        A('s_cmp_lt_u32 s%d, 28', sI)
        A('s_cbranch_scc1 %s', ni)
        if E('IWAT', -1) >= 1:
            wait_lp(A, ('x', E('IWAT', -1)), 1)
        A('s_lshl2_add_u32 s%d, s%d, s%d', sC, sXCD, sI)
        A('s_sub_u32 s%d, s%d, 28', sC, sC)
        A('v_lshlrev_b32 v%d, 7, v%d', vT1, vL)
        for bit, srd_, n in ((4, SW, 5), (1, SW1, 7), (2, SWO, 2)):
            if E('IW', 6) & bit:
                A('s_mul_i32 s%d, s%d, %d', sT, sC, n * 8192)
                for u in range(n):
                    A('buffer_load_dword v73, v%d, s[%d:%d], s%d offen', vT1, srd_, srd_ + 3, sT)
                    A('s_add_u32 s%d, s%d, 8192', sT, sT)
        A('%s:', ni)
    if FAST:
        wait_lp(A, ('x', 6), 2)
        fast_check(A)
        A('v_mov_b32 v%d, s%d', vT0, sFASTF)
        A('ds_write_b32 v%d, v%d offset:%d', vMI, vT0, M_FAST)
    A('%s:', both)
    set_stage(A, 1)
    stamp(A)
    A('s_lshl_b32 s%d, s%d, 11', sT2, sTL)
    A('v_add_u32 v%d, s%d, v%d', vTT, sT2, vO)
    A('v_add_u32 v%d, %d, v%d', vTT + 1, L_KVA, vTT)
    A('v_add_u32 v%d, %d, v%d', vTT + 2, L_KVV, vO)
    A('s_lshl_b32 s%d, s%d, 16', sXB, sH)
    A('s_add_u32 s%d, s%d, s%d', sXB, sXB, sT2)
    A('s_add_u32 s%d, s%d, %d', sXB, sXB, WS_KVP)
    A('s_lshl_b32 s%d, s%d, 12', sB, sTB)
    A('s_add_u32 s%d, s%d, s%d', sB, sB, sXB)
    A('s_lshl_b32 s%d, s%d, 1', sM0, sH)
    A('s_add_u32 s%d, s%d, s%d', sM0, sM0, sTL)
    FSH = E('F1SH', 8)
    A('s_lshl_b32 s%d, s%d, %d', sM0, sM0, 4 + FSH)
    A('s_add_u32 s%d, s%d, %d', sM0, sM0, F1)
    A('s_lshl_b32 s%d, s%d, 2', sFL, sTB)
    A('s_add_u32 s%d, s%d, s%d', sFL, sFL, sM0)
    A('s_lshl_b32 s%d, s%d, %d', sT, sTB, FSH)
    A('s_add_u32 s%d, s%d, s%d', sM0, sM0, sT)
    A('s_add_u32 s%d, s%d, s%d', sPC, SWS, sM0)
    A('s_addc_u32 s%d, s%d, 0', sPC + 1, SWS + 1)
    if E('FT', 3) & 1:
        A('s_load_dword s%d, s[%d:%d], 0 glc', sZB, sPC, sPC + 1)
    A('v_lshlrev_b32 v%d, %d, v%d', vXA, FSH, vL)
    A('v_lshlrev_b32 v%d, 2, v%d', vXA + 1, vL)
    vTA = 152
    wait_stage(A, C0)
    for k in range(8):
        A('ds_read_b128 %s, v%d offset:%d', v(vVF + 4 * k, 4), vTT + 1, (k >> 1) * 4096 + (k & 1) * 1024)
    for k in range(8):
        A('s_waitcnt lgkmcnt(%d)', 7 - k)
        mfma(A, vTA + 16 * (k >> 1), vVF + 4 * k, vID + 4 * (k & 1), (k & 1) == 0)
    for w in range(4):
        cvt8(A, vAF + 8 * w, vTA + 16 * w)

    if E('KVP', 0):
        HELP['hot'] = True
        for j, w in enumerate((0, 2, 1, 3)):
            def v_reads():
                for q in range(2):
                    A('ds_read_b128 %s, v%d offset:%d', v(vVF + 8 * w + 4 * q, 4), vTT + 2, w * 4096 + q * 1024)
                return 2
            wait_word(A, w, C0 + 1, body=v_reads, sleep=1 if j == 0 else 0)
            if j == 3:
                stamp(A)
            for q in range(2):
                A('s_waitcnt lgkmcnt(%d)', 1 - q)
                mfma(A, vAC, vAF + 8 * w + 4 * q, vVF + 8 * w + 4 * q, j == 0 and q == 0)
        HELP['hot'] = False
    else:
        def v_reads():
            for k in range(8):
                A('ds_read_b128 %s, v%d offset:%d', v(vVF + 4 * k, 4), vTT + 2, (k >> 1) * 4096 + (k & 1) * 1024)
            return 8
        wait_stage(A, C0 + 1, body=v_reads)
        stamp(A)
        for k in range(8):
            A('s_waitcnt lgkmcnt(%d)', 7 - k)
            mfma(A, vAC, vAF + 4 * k, vVF + 4 * k, k == 0)
    set_stage(A, 2)
    cvt8(A, vAF, vAC)
    TAGS = E('TAGS', 1)
    if TAGS:
        for q in range(2):
            A('v_and_b32 v%d, 0xffff, v%d', vAF + 4 * q + 3, vAF + 4 * q + 3)
            A('v_or_b32 v%d, s%d, v%d', vAF + 4 * q + 3, sT16, vAF + 4 * q + 3)
    pub_stores(A, [st4(vAF + 4 * q, sB, q * 1024) for q in range(2)], MAP == 3)
    if not TAGS:
        A('s_waitcnt vmcnt(0)')
    A('s_mov_b64 exec, 0xffff')
    two_ways(A, lambda B, bits: B('buffer_store_dword v%d, v%d, s[%d:%d], s%d offen%s', vTAG, vXA, SWS, SWS + 3, sFL,
                                  bits), MAP == 3)
    A('s_mov_b64 exec, -1')
    stamp(A)
    sRDY, sPND, sRET = sHI, sHI + 1, sPADL
    base = 68 if STAMPS else 72
    pol = A.label('POLL')
    B = sub(A)
    lo, out = B.label('P'), B.label('PD')
    B('%s:', pol)
    B('%s:', lo)
    if E('PSLEEP', 0):
        B('s_sleep %d', E('PSLEEP', 0))
    if E('SPOLL', 1) and MAP == 0:
        B('s_load_dwordx16 s[%d:%d], s[%d:%d], 0 glc', base, base + 15, sPC, sPC + 1)
        B('s_mov_b32 s%d, 0', sRDY)
        B('s_waitcnt lgkmcnt(%d)', E('PPIPE', 8))
        for p_ in range(15, -1, -1):
            B('s_cmp_eq_u32 s%d, s%d', base + p_, sTAG)
            B('s_addc_u32 s%d, s%d, s%d', sRDY, sRDY, sRDY)
    else:
        B('s_mov_b64 exec, 0xffff')
        B('buffer_load_dword v%d, v%d, s[%d:%d], s%d offen sc1', vT0, vXA + 1, SWS, SWS + 3, sM0)
        B('s_waitcnt vmcnt(0)')
        B('v_cmp_eq_u32 vcc, s%d, v%d', sTAG, vT0)
        B('s_mov_b64 exec, -1')
        B('s_mov_b32 s%d, vcc_lo', sRDY)
    B('s_sub_u32 s%d, s%d, 1', sSPIN, sSPIN)
    B('s_cselect_b32 s%d, -1, s%d', sRDY, sRDY)
    B('s_and_b32 s%d, s%d, s%d', sRDY, sRDY, sPND)
    B('s_cbranch_scc0 %s', lo)
    B('s_setpc_b64 s[%d:%d]', sRET, sRET + 1)
    over = A.label('OV')
    A('s_not_b32 s%d, s%d', base, sTAG)
    A('s_mov_b32 s%d, s%d', base + 1, base)
    for k in range(2, 16, 2):
        A('s_mov_b64 s[%d:%d], s[%d:%d]', base + k, base + k + 1, base, base + 1)
    A('s_branch %s', over)
    A.lines += B.lines
    A('%s:', over)
    A('s_mov_b32 s%d, 0', sRDY)
    A('s_mov_b32 s%d, 0xffff', sPND)
    vCK = vXA + 2
    A('v_mov_b32 v%d, 0', vCK)
    A('s_nop 1')
    vG = [72 + 4 * k for k in range(16)] + [152 + 4 * k for k in range(16)]
    GD = E('GLAG', 8)

    def gmm(k, issued):
        for q in range(2):
            A('s_waitcnt vmcnt(%d)', 2 * issued - (2 * k + q) - 1)
            mfma(A, vAC, vID + 4 * q, vG[2 * k + q], k == 0 and q == 0)
            if TAGS:
                A('v_xor_b32 v%d, s%d, v%d', vCK + 1, sT16, vG[2 * k + q] + 3)
                A('v_or_b32 v%d, v%d, v%d', vCK, vCK, vCK + 1)
    for k in range(16):
        A('s_getpc_b64 s[%d:%d]', sRET, sRET + 1)
        A('s_cmp_eq_u32 s%d, 0', sRDY)
        A('s_cbranch_scc1 %s', pol)
        A('s_ff1_i32_b32 s%d, s%d', sT, sRDY)
        A('s_bitset0_b32 s%d, s%d', sRDY, sT)
        A('s_bitset0_b32 s%d, s%d', sPND, sT)
        A('s_lshl_b32 s%d, s%d, 12', sT, sT)
        A('s_add_u32 s%d, s%d, s%d', sT, sT, sXB)
        if E('ABL', 0) & 32:
            A('s_mov_b32 s%d, s%d', sT, sB)
        for q in range(2):
            A('buffer_load_dwordx4 %s, v%d, s[%d:%d], s%d offen offset:%d sc1', v(vG[2 * k + q], 4), vO, SWS, SWS + 3,
              sT, q * 1024)
        if k == E('GST', 15):
            stamp(A)
        if k >= GD:
            gmm(k - GD, k + 1)
    for k in range(16 - GD, 16):
        gmm(k, 16)
    if TAGS:
        ok = A.label('TOK')
        A('v_cmp_lt_u32 vcc, 0xffff, v%d', vCK)
        spin_guard(A, ok)
        A('s_nop 15')
        A('s_cbranch_vccnz %s', over)
        A('%s:', ok)
    A('v_add_u32 v%d, %d, v%d', vTT, L_EX, vTT)
    cvt8(A, 72, vAC)
    for q in range(2):
        A('ds_write_b128 v%d, %s offset:%d', vTT, v(72 + 4 * q, 4), q * 1024)
    set_stage(A, 3)
    stamp(A)
    lend = A.label('LEND')
    A('s_cmp_ge_u32 s%d, 28', sI)
    A('s_cbranch_scc1 %s', lend)
    A('v_lshlrev_b32 v%d, 2, v%d', vCA, vL)
    A('v_add_u32 v%d, %d, v%d', vTT + 2, L_EX, vO)
    wait_stage(A, C0 + 7, sleep=2)
    HELP['hot'] = bool(E('STHOT', 0))
    l5 = A.label('S5')
    A('s_cmp_eq_u32 s%d, 0', sTL)
    A('s_cbranch_scc1 %s', l5)
    for gi in (0, 2, 1, 3):
        if gi == 1:
            A('s_branch %s', lend)
            A('%s:', l5)
        wait_lp(A, ('hs', gi), 1)
        if E('STPRIO', 2) != 2:
            A('s_setprio %d', E('STPRIO', 2))
        base = L_SC0 + gi * 4096
        for q in range(7):
            A('ds_read2st64_b32 v[%d:%d], v%d offset0:%d offset1:%d', 72 + 2 * q, 73 + 2 * q, vCA,
              base // 256 + 2 * q, base // 256 + 2 * q + 1)
        A('s_waitcnt lgkmcnt(0)')
        for q in range(2, 14):
            A('v_add_f32 v%d, v%d, v%d', 72 + (q & 1), 72 + (q & 1), 72 + q)
        A('v_add_f32 v%d, v72, v73', vTT)
        ln_finish(A, vTT, vTT + 1, vNM, vRS)
        hilo_m(A, vNM, 88, vT0)
        A('v_mul_f32 v90, v%d, v%d', vTT + 1, vRS)
        A('v_mul_f32 v91, 0x%x, v%d', LOG2E ^ 0x80000000, vRS)
        A('ds_write_b128 v%d, v[88:91] offset:%d', vTT + 2, gi * 1024)
        set_stage(A, 4 + gi // 2)
    HELP['hot'] = False
    A('%s:', lend)
    A('s_waitcnt lgkmcnt(0)')
    stamp_flush(A)
    A('s_endpgm')


def refresh_routines(A):
    for w in (7, 4):
        A('REFRESH_%d:', w)
        if w == 5:
            A('ds_read_b32 v%d, v%d', vPW, vCA)
        else:
            A('ds_read_b32 v%d, v%d offset:%d', vPW, vMI, M_PW + 4 * w)
        if E('CSLP', 0):
            A('s_mov_b32 vcc_hi, s%d', CACHE[w])
        A('s_waitcnt lgkmcnt(0)')
        A('v_readfirstlane_b32 s%d, v%d', CACHE[w], vPW)
        if E('CSLP', 0):
            A('s_cmp_lg_u32 vcc_hi, s%d', CACHE[w])
            A('s_cbranch_scc1 REFD_%d', w)
            A('s_sleep %d', E('CSLP', 0))
            A('REFD_%d:', w)
        A('s_sub_u32 s%d, s%d, 1', sSPIN, sSPIN)
        A('s_cselect_b32 s%d, -1, s%d', CACHE[w], CACHE[w])
        A('s_setpc_b64 s[%d:%d]', sPC, sPC + 1)


def gen_compute(A):
    vPH, vID, vWF, vAC, vPK = 40, 48, 56, 88, 120
    vMF, vCF = 136, 140
    vE = vWF
    vAC2 = vAC + 16
    vX = vXR
    A('s_setprio %d', E('CPRIO', 1))
    rest_srds(A)
    A('s_lshl_b32 s%d, s%d, 12', sM0, sWV)
    A('v_and_b32 v%d, 31, v%d', vT0, vL)
    A('v_lshlrev_b32 v%d, 7, v%d', vTT, vT0)
    A('v_add_u32 v%d, s%d, v%d', vTT, sM0, vTT)
    A('v_bfe_u32 v%d, v%d, 1, 3', vT0, vL)
    A('v_lshrrev_b32 v%d, 5, v%d', vT1, vL)
    A('v_xor_b32 v%d, v%d, v%d', vT0, vT0, vT1)
    for q in range(4):
        A('v_xor_b32 v%d, %d, v%d', vXA + q, 2 * q, vT0)
        A('v_lshl_add_u32 v%d, v%d, 4, v%d', vXA + q, vXA + q, vTT)
    wtr_base(A)
    for r in (vSM, vSM + 1, vSQ, vSQ + 1, vMF + 2, vMF + 3, vCF + 2, vCF + 3):
        A('v_mov_b32 v%d, 0', r)
    A('s_mov_b32 s%d, 0', sHI)
    A('s_mov_b32 s%d, -1', sHI + 1)
    A('s_bitcmp1_b32 s%d, 0', sH)
    A('s_cselect_b32 s%d, 0xf, 0xf0000000', sPADL)
    A('s_mov_b32 s%d, s%d', sPADL + 1, sPADL)
    A('s_cselect_b32 s%d, -1, 0', sZA)
    A('s_mov_b32 s%d, 0', sZA + 1)
    A('s_mov_b32 s%d, 0', sZB)
    A('s_cselect_b32 s%d, 0, -1', sZB + 1)
    A('s_cselect_b64 s[%d:%d], -1, 0', sODD, sODD + 1)
    vPA = vRA
    A('v_bfe_u32 v%d, v%d, 2, 2', vT0, vL)
    A('v_lshrrev_b32 v%d, 5, v%d', vT1, vL)
    A('v_lshl_add_u32 v%d, v%d, 2, v%d', vT0, vT1, vT0)
    A('v_mul_u32_u24 v%d, 56, v%d', vT0, vT0)
    A('v_and_b32 v%d, 3, v%d', vT1, vL)
    A('v_bfe_u32 v%d, v%d, 4, 1', vTT, vL)
    A('v_lshl_add_u32 v%d, v%d, 2, v%d', vT1, vTT, vT1)
    A('v_min_u32 v%d, 6, v%d', vT1, vT1)
    A('v_lshl_add_u32 v%d, v%d, 3, v%d', vT0, vT1, vT0)
    A('s_and_b32 s%d, s%d, 1', sT, sH)
    A('s_mul_i32 s%d, s%d, 224', sT, sT)
    A('s_sub_u32 s%d, %d, s%d', sT, L_PHI, sT)
    A('v_add_u32 v%d, s%d, v%d', vPA, sT, vT0)
    tag_compute(A)

    def mm1(B, acc, i, q, swap):
        buf = vWF + 16 * (i & 1)
        xf, wf = vX + (4 * i + q) * 4, buf + 4 * q
        if swap:
            mfma(B, acc, xf, wf, i == 0 and q == 0)
        else:
            mfma(B, acc, wf, xf, i == 0 and q == 0)

    def rw2(Q, pi, i, q):
        buf = vWF + 16 * (i & 1)
        for z in range(2):
            Q.op(('w', i, q), 'ds_read_b64_tr_b16 v[%d:%d], v%d offset:%d', buf + 4 * q + 2 * z, buf + 4 * q + 2 * z + 1,
                 vWA + pi, i * 4096 + q * 1024 + z * 256)

    def early(Q, w, reads):
        Q.op('ce', 'ds_read_b32 v%d, v%d offset:%d', vPK_ + 1, vMI, M_PW + 4 * w)
        for r in reads:
            Q.op('ce', r)

    def late(Q, w, n, reads):
        def slow(B, back):
            def body():
                for r in reads:
                    B(r)
                return 0
            wait_word(B, w, n, body=body)
        Q.A = A
        Q.wait('ce')
        A('v_readfirstlane_b32 s%d, v%d', sT, vPK_ + 1)
        A('s_cmp_ge_u32 s%d, %d', sT, n)
        if w == 5:
            ent, back = cold_block(A, slow)
            A('s_cbranch_scc0 %s', ent)
        else:
            back = A.label('LT')
            A('s_cbranch_scc1 %s', back)
            slow(A, back)
        A('%s:', back)

    def cf_rd(pi):
        return 'ds_read_b64 v[%d:%d], v%d offset:%d' % (vCF, vCF + 1, vCA, pi * 512)
    kreads = [cf_rd(0)] + ['ds_read_b64_tr_b16 v[%d:%d], v%d offset:%d' % (
        vPH + 4 * sidx + 2 * z, vPH + 4 * sidx + 2 * z + 1, vPA, (16 * sidx + 8 * z) * 56)
        for sidx in range(2) for z in range(2)]

    vXH = vXD
    for q in range(4):
        A('v_add_u32 v%d, 0x10000, v%d', vXH + q, vXA + q)
    Q = LdsQ(A)
    for i in range(7):
        if i:
            stamp(A, 'k')
        if i == 0:
            A('s_waitcnt vmcnt(0)')
        else:
            wait_lp(A, ('x', i))
        stamp(A, 'k')
        for q in range(4):
            Q.op(('x', i), 'ds_read_b128 %s, v%d offset:%d', v(vX + (4 * i + q) * 4, 4), (vXA if i < 4 else vXH) + q,
                 (i & 3) * 16384)
        if i in (1, 3):
            Q.stage((i + 1) // 2)
        wait_lp(A, ('W', 0, i))
        for q in range(4):
            if i > 0:
                Q.wait(('w', i - 1, q))
                mm1(A, vAC, i - 1, q, False)
            rw2(Q, 0, i, q)
        if i < 6:
            Q.op('pk2', 'ds_read_b128 v[%d:%d], v%d offset:%d', vTT, vTT + 3, vMI, M_PW + 16)
        Q.wait(('x', i))
        for r in range(16):
            x = vX + 16 * i + r
            A('v_dot2c_f32_bf16 v%d, s%d, v%d', vSM + (r & 1), sONES, x)
            A('v_dot2c_f32_bf16 v%d, v%d, v%d', vSQ + (r & 1), x, x)
        if i < 6:
            Q.wait('pk2')
            A('v_readfirstlane_b32 s%d, v%d', sPROG, vTT)
            A('v_readfirstlane_b32 s%d, v%d', sPROG1, vTT + 3)
    Q.stage(3)
    early(Q, 5, kreads)
    B = sub(A)
    B('v_add_f32 v%d, v%d, v%d', vSM, vSM, vSM + 1)
    B('v_add_f32 v%d, v%d, v%d', vSQ, vSQ, vSQ + 1)
    B('v_permlane32_swap_b32 v%d, v%d', vSM, vSQ)
    B('v_add_f32 v%d, v%d, v%d', vT0, vSM, vSQ)
    ln_finish(B, vT0, vT1, vNM, vRS)
    hilo_m(B, vNM, vMF, vT0)
    B('v_mul_f32 v%d, 0x%x, v%d', vSC, LOG2E, vRS)
    M = sub(A)
    Q.A = M
    for q in range(4):
        Q.wait(('w', 6, q))
        mm1(M, vAC, 6, q, False)
    A.lines += merge(M.lines, [[l] for l in B.lines], 0, 4)

    stamp(A, 'v')
    late(Q, 5, 1, kreads)
    stamp(A)
    stamp(A, 'v')

    def project(mid=None):
        mfma(A, vAC, vCF, vMF)
        if mid:
            mid()
        cvt8(A, vPK, vAC)
        mfma(A, vAC, vPH, vPK, True)
        mfma(A, vAC, vPH + 4, vPK + 4)

    def mid_k():
        A('v_and_b32 v%d, 31, v%d', vT0, vL)
        A('s_lshl_b32 s%d, s%d, 7', sT, sWV)
        A('s_add_u32 s%d, s%d, %d', sT, sT, L_RSTD)
        A('v_lshl_add_u32 v%d, v%d, 2, s%d', vT0, vT0, sT)
        A('s_waitcnt lgkmcnt(0)')
        A('ds_write_b32 v%d, v%d', vT0, vRS)
        A('v_lshrrev_b32 v%d, 5, v%d', vRA, vL)
        A('v_lshl_add_u32 v%d, v%d, 4, s%d', vRA, vRA, sT)
        for r in (0, 1):
            A('v_cndmask_b32 v%d, v%d, 0, s[%d:%d]', vPH + r, vPH + r, sZA, sZA + 1)
            A('v_cndmask_b32 v%d, v%d, 0, s[%d:%d]', vPH + 6 + r, vPH + 6 + r, sZB, sZB + 1)

    def gemm_head(B, pi):
        Q = LdsQ(B)
        wait_lp(B, ('W', pi, 0))
        for q in range(4):
            rw2(Q, pi, 0, q)
        return Q

    def gemm_part(B, acc, pi, swap, last_stage=None, Q=None):
        if Q is None:
            Q = gemm_head(B, pi)
        for i in range(7):
            if i == 6 and last_stage:
                Q.stage(last_stage)
            if i == 6:
                early(Q, 7, [cf_rd(pi)])
            if pi == 1 and i in (0, 2, 4, 6):
                stamp(B, 'v')
            for q in range(4):
                Q.wait(('w', i, q))
                if q == 0:
                    Q.take(4)
                mm1(B, acc, i, q, swap)
                if i < 6:
                    if q == 0:
                        wait_lp(B, ('W', pi, i + 1))
                        if i < 5:
                            Q.peek(4)
                    rw2(Q, pi, i + 1, q)
        late(Q, 7, 7 + pi, [cf_rd(pi)])

    vOW = vXD
    A('v_add_u32 v%d, s%d, v%d', vOW, sM0, vO)
    A('v_add_u32 v%d, %d, v%d', vOW, L_KVA, vOW)
    project(mid_k)
    stamp(A, 'v')
    B = sub(A)
    softmax_pm(B, vAC, vSC, vPK, vTT)
    A.lines += B.lines[:-30]
    Q = gemm_head(A, 1)
    A.lines += B.lines[-30:]
    for q, src in enumerate((vAC, vAC + 4, vPK, vPK + 4)):
        Q.op('pw', 'ds_write_b128 v%d, %s offset:%d', vOW, v(src, 4), q * 1024)
    Q.stage(C0)
    for q in range(4):
        Q.op('rs', 'ds_read_b128 %s, v%d offset:%d', v(vAC + 4 * q, 4), vRA, q * 32)
    stamp(A, 'v')
    gemm_part(A, vAC2, 1, True, None, Q)
    stamp(A, 'v')

    mfma(A, vAC2, vMF, vCF)
    A('v_mov_b32 v%d, 0x%x', vT1, ONES)
    for r in range(0, 16, 2):
        A('v_pk_mul_f32 v[%d:%d], v[%d:%d], v[%d:%d]', vAC2 + r, vAC2 + r + 1, vAC2 + r, vAC2 + r + 1, vAC + r,
          vAC + r + 1)
    cvt8(A, vPK, vAC2)
    for r in range(8):
        A('v_cndmask_b32 v%d, v%d, v%d, s[%d:%d]', vPK + r, vPK + r, vT1, sPADL, sPADL + 1)
    for q in range(2):
        A('ds_write_b128 v%d, %s offset:%d', vOW, v(vPK + 4 * q, 4), L_KVV - L_KVA + q * 1024)
    set_stage(A, C0 + 1)
    stamp(A)
    stamp(A, 'v')
    gemm_part(A, vAC, 2, False, C0 + 3)
    vHP, vRX, vRO = 120, 48, vSM + 1

    def unpack_hp(src=120):
        for r in range(8):
            A('v_lshlrev_b32 v%d, 16, v%d', vAC + 2 * r, src + r)
            A('v_and_b32 v%d, 0xffff0000, v%d', vAC + 2 * r + 1, src + r)
    A('s_and_b32 s%d, s%d, 1', sG, sWV)
    A('s_lshr_b32 s%d, s%d, 1', sKH, sWV)
    A('s_lshl_b32 s%d, s%d, 1', sT, sTQ)
    A('s_add_u32 s%d, s%d, s%d', sG, sG, sT)
    A('v_and_b32 v%d, 31, v%d', vRO, vL)
    A('v_mul_u32_u24 v%d, 896, v%d', vRO, vRO)
    A('v_lshrrev_b32 v%d, 5, v%d', vT1, vL)
    A('v_lshl_add_u32 v%d, v%d, 4, v%d', vRO, vT1, vRO)
    A('s_mul_i32 s%d, s%d, %d', sT, sG, 32 * 896)
    A('s_lshl_b32 s%d, s%d, 7', sT2, sNB)
    A('s_add_u32 s%d, s%d, s%d', sT, sT, sT2)
    A('s_lshl_b32 s%d, s%d, 6', sT2, sKH)
    A('s_add_u32 s%d, s%d, s%d', sT, sT, sT2)
    A('v_add_u32 v%d, s%d, v%d', vRO, sT, vRO)
    for q in range(2):
        A('buffer_load_dwordx4 %s, v%d, s[%d:%d], 0 offen offset:%d', v(vRX + 4 * q, 4), vRO, SX, SX + 3, q * 32)

    project()
    softmax_pm(A, vAC, vSC, vPK, vTT)
    vQF = [vAC, vAC + 4, vPK, vPK + 4]
    stamp(A)
    vW1A = vXA
    A('v_bfe_u32 v%d, v%d, 2, 2', vT0, vL)
    A('v_lshrrev_b32 v%d, 5, v%d', vT1, vL)
    A('v_lshl_add_u32 v%d, v%d, 2, v%d', vT1, vT1, vT0)
    A('v_lshlrev_b32 v%d, 8, v%d', vW1A, vT1)
    A('v_lshlrev_b32 v%d, 7, v%d', vWA, vT1)
    A('v_xor_b32 v%d, s%d, v%d', vT0, sWV, vT0)
    A('v_lshl_add_u32 v%d, v%d, 6, v%d', vW1A, vT0, vW1A)
    A('v_bfe_u32 v%d, v%d, 4, 1', vT1, vL)
    A('v_lshlrev_b32 v%d, 5, v%d', vT1, vT1)
    A('v_and_b32 v%d, 3, v%d', vT0, vL)
    A('v_lshl_add_u32 v%d, v%d, 3, v%d', vT1, vT0, vT1)
    A('v_add_u32 v%d, v%d, v%d', vW1A, vW1A, vT1)
    A('v_add_u32 v%d, 0x8000, v%d', vW1A + 1, vW1A)
    A('v_add_u32 v%d, v%d, v%d', vWA, vWA, vT1)
    A('v_bfe_u32 v%d, v%d, 3, 1', vT1, vL)
    A('v_lshl_add_u32 v%d, v%d, 6, v%d', vWA, vT1, vWA)

    def w1_copy(c):
        wait_lp(A, ('w1', c))
        for q in range(4):
            for z in range(2):
                off = w1_slot(c) + (16 * q + 8 * z) * 256
                base = vW1A
                if off >= 0x8000:
                    off -= 0x8000
                    base += 1
                r = vXR + (4 * c + q) * 4 + 2 * z
                A('ds_read_b64_tr_b16 v[%d:%d], v%d offset:%d', r, r + 1, base, off)

    sCPD = sXB
    A('s_mov_b32 s%d, 0', sCPD)

    def try_copy(block):
        skip = A.label('NC')
        A('s_cmp_lg_u32 s%d, 0', sCPD)
        A('s_cbranch_scc1 %s', skip)
        if not block:
            ow = LP[('w1', 1)][0]
            if block is not None:
                A('ds_read_b32 v%d, v%d offset:%d', vPW + ow - 4, vMI, M_PW + 4 * ow)
                A('s_waitcnt lgkmcnt(0)')
            A('v_readfirstlane_b32 s%d, v%d', CACHE[ow], vPW + ow - 4)
            A('s_cmp_lt_u32 s%d, %d', CACHE[ow], LP[('w1', 1)][1])
            A('s_cbranch_scc1 %s', skip)
        w1_copy(0)
        w1_copy(1)
        A('s_mov_b32 s%d, 1', sCPD)
        A('v_mov_b32 v%d, 1', vT0)
        A('ds_write_b32 v%d, v%d offset:%d', vMY, vT0, M_CP)
        A('%s:', skip)
    vCS = vSQ

    A('s_lshl_b32 s%d, s%d, 2', sFL, sTB)
    A('s_add_u32 s%d, s%d, s%d', sFL, sFL, sWV)
    A('s_lshl_b32 s%d, s%d, 4', sFL, sFL)
    A('s_add_u32 s%d, s%d, s%d', sFL, sFL, sH)
    A('s_lshl_b32 s%d, s%d, 11', sB, sFL)
    A('s_add_u32 s%d, s%d, %d', sB, sB, WS_OB)
    if MAP == 0:
        A('s_lshl_b32 s%d, s%d, 2', sFL, sFL)
        A('s_add_u32 s%d, s%d, %d', sFL, sFL, F2)
    else:
        A('s_lshr_b32 s%d, s%d, 3', sFL, sFL)
        A('s_lshl_b32 s%d, s%d, 10', sFL, sFL)
        A('s_and_b32 s%d, s%d, 7', sT, sH)
        A('s_lshl_b32 s%d, s%d, 2', sT, sT)
        A('s_add_u32 s%d, s%d, s%d', sFL, sFL, sT)
        A('s_add_u32 s%d, s%d, %d', sFL, sFL, F2X)
    vEX = vXD + 1
    A('v_add_u32 v%d, %d, v%d', vEX, L_EX, vO)

    def ex_reads():
        for q in range(4):
            A('ds_read_b128 %s, v%d offset:%d', v(vWF + 4 * q, 4), vEX, q * 1024)
        return 4
    lo, done = A.label('W'), A.label('WD')
    A('%s:', lo)
    A('ds_read_b128 v[%d:%d], v%d offset:%d', vPW, vPW + 3, vMI, M_PW + 16)
    A('ds_read_b32 v%d, v%d offset:%d', vPK_, vMI, M_FAST)
    ex_reads()
    A('s_waitcnt lgkmcnt(4)')
    A('v_readfirstlane_b32 s%d, v%d', sFASTF, vPK_)
    A('v_min_u32 v%d, v%d, v%d', vPW + 1, vPW + 1, vPW + 2)
    A('v_readfirstlane_b32 s%d, v%d', sT, vPW + 1)
    spin_guard(A, done)
    A('s_cmp_ge_u32 s%d, 3', sT)
    A('s_cbranch_scc1 %s', done)
    try_copy(None)
    if E('CSLP', 0):
        A('s_sleep %d', E('CSLP', 0))
    A('s_branch %s', lo)
    A('%s:', done)
    stamp(A)
    for q in range(4):
        A('s_waitcnt lgkmcnt(%d)', 3 - q)
        mfma(A, vAC2, vWF + 4 * q, vQF[q], q == 0)
    A('v_cndmask_b32 v%d, v%d, v%d, s[%d:%d]', vT0, vAC2 + 12, vAC2, sODD, sODD + 1)
    A('v_mov_b32 v%d, v%d', vT1, vT0)
    A('v_permlane32_swap_b32 v%d, v%d', vT0, vT1)
    A('v_cndmask_b32 v%d, v%d, v%d, s[%d:%d]', vTT, vT1, vT0, sODD, sODD + 1)
    A('v_add_f32 v%d, 0x%x, v%d', vTT, 0x358637bd, vTT)
    A('v_rcp_f32 v%d, v%d', vTT, vTT)
    for r in range(0, 16, 2):
        A('v_pk_mul_f32 v[%d:%d], v[%d:%d], v[%d:%d] op_sel_hi:[1,0]', vAC2 + r, vAC2 + r + 1, vAC2 + r, vAC2 + r + 1,
          vTT, vTT + 1)
    cvt8(A, vPK, vAC2)
    for r in (0, 1):
        A('v_cndmask_b32 v%d, v%d, 0, s[%d:%d]', vPK + r, vPK + r, sZA, sZA + 1)
        A('v_cndmask_b32 v%d, v%d, 0, s[%d:%d]', vPK + 6 + r, vPK + 6 + r, sZB, sZB + 1)
    pub_stores(A, [st4(vPK + 4 * q, sB, q * 1024) for q in range(2)], MAP == 0 and not WTO)
    A('s_waitcnt vmcnt(2)')
    for q in range(2):
        A('v_permlane32_swap_b32 v%d, v%d', vRX + 4 * q, vRX + 4 * q + 2)
        A('v_permlane32_swap_b32 v%d, v%d', vRX + 4 * q + 1, vRX + 4 * q + 3)
    unpack_hp(vRX)
    A('s_lshl_b32 s%d, s%d, 6', sT, sKH)
    A('v_xor_b32 v%d, s%d, v%d', vWA, sT, vWA)
    A('v_xor_b32 v%d, 64, v%d', vWA + 1, vWA)
    A('s_mul_i32 s%d, s%d, %d', sT, sKH, 224 * 128)
    A('s_add_u32 s%d, s%d, %d', sT, sT, L_A)
    A('v_add_u32 v%d, s%d, v%d', vWA + 2, sT, vWA)
    A('v_add_u32 v%d, s%d, v%d', vWA + 3, sT, vWA + 1)
    vSW, vSR, vPP = vXA + 2, vXA + 3, vSM
    A('s_and_b32 s%d, s%d, 1', sC, sWV)
    A('s_lshl_b32 s%d, s%d, 12', sC, sC)
    A('v_add_u32 v%d, s%d, v%d', vSW, sC, vO)
    A('s_cmp_eq_u32 s%d, 0', sKH)
    A('s_cselect_b32 s%d, %d, %d', sT, L_SC0 >> 12, L_SC1 >> 12)
    A('s_cselect_b32 s%d, %d, %d', sT2, L_SC1 >> 12, L_SC0 >> 12)
    A('s_lshl_b32 s%d, s%d, 12', sT, sT)
    A('s_lshl_b32 s%d, s%d, 12', sT2, sT2)
    A('v_add_u32 v%d, s%d, v%d', vSR, sT2, vSW)
    A('v_add_u32 v%d, s%d, v%d', vSW, sT, vSW)
    A('v_xor_b32 v%d, 8, v%d', vPP, vMY)
    A('s_lshl_b32 s%d, s%d, 15', sB, sG)
    A('s_lshl_b32 s%d, s%d, 14', sT, sKH)
    A('s_add_u32 s%d, s%d, s%d', sB, sB, sT)
    A('s_add_u32 s%d, s%d, %d', sB, sB, WS_OB)
    if MAP == 0:
        A('s_lshl_b32 s%d, s%d, 6', sC, sG)
        A('s_lshl_b32 s%d, s%d, 5', sT, sKH)
        A('s_add_u32 s%d, s%d, s%d', sC, sC, sT)
        A('s_add_u32 s%d, s%d, %d', sC, sC, F2)
        pub_flag(A, sFL, True)
    else:
        A('s_lshl_b32 s%d, s%d, 11', sC, sG)
        A('s_lshl_b32 s%d, s%d, 10', sT, sKH)
        A('s_add_u32 s%d, s%d, s%d', sC, sC, sT)
        A('s_lshl_b32 s%d, s%d, 7', sT, sNB)
        A('s_add_u32 s%d, s%d, s%d', sC, sC, sT)
        A('s_add_u32 s%d, s%d, %d', sC, sC, F2X)
        A('v_lshlrev_b32 v%d, 7, v%d', vT1, vL)
        if not E('NODRAIN2', 0):
            A('s_waitcnt vmcnt(0)')
        A('s_mov_b64 exec, 0x7f')
        A('buffer_store_dword v%d, v%d, s[%d:%d], s%d offen sc1', vTAG, vT1, SWS, SWS + 3, sFL)
        A('s_mov_b64 exec, -1')
    set_stage(A, C0 + 5)
    stamp(A)
    fin = A.label('FIN')
    A('s_cmp_ge_u32 s%d, 28', sI)
    A('s_cbranch_scc1 %s', fin)

    vB2 = [40 + 4 * k for k in range(8)] + [224 + 4 * k for k in range(8)]
    vWF2 = 72
    vL4, vPF = vNM, vRS
    A('v_lshlrev_b32 v%d, 2, v%d', vL4, vL)

    def f2_load():
        A('s_mov_b64 exec, 0xff')
        A('buffer_load_dword v%d, v%d, s[%d:%d], s%d offen sc1', vPF, vL4, SWS, SWS + 3, sC)
        A('s_mov_b64 exec, -1')
    f2_load()
    sB3, sFL3 = sODD, sODD + 1
    sBL, sFL2, sPF, sBK, sBS, sHB, sEM = 4, 5, 6, 7, 8, 9, 10
    A('s_mul_i32 s%d, s%d, %d', sB3, sTB3, 4 * 112)
    A('s_lshl_b32 s%d, s%d, 3', sT, sFB)
    A('s_add_u32 s%d, s%d, s%d', sB3, sB3, sT)
    A('s_lshl_b32 s%d, s%d, 1', sT, sWV)
    A('s_add_u32 s%d, s%d, s%d', sB3, sB3, sT)
    A('s_lshl_b32 s%d, s%d, 10', sB3, sB3)
    A('s_add_u32 s%d, s%d, %d', sB3, sB3, WS_H1B)
    A('s_add_u32 s%d, s%d, %d', sBL, sB3, 2 * 112 * 1024)
    A('s_lshl_b32 s%d, s%d, 9', sFL3, sTB3)
    A('s_lshl_b32 s%d, s%d, 4', sT, sFB)
    A('s_add_u32 s%d, s%d, s%d', sFL3, sFL3, sT)
    A('s_lshl_b32 s%d, s%d, 2', sT, sWV)
    A('s_add_u32 s%d, s%d, s%d', sFL3, sFL3, sT)
    A('s_add_u32 s%d, s%d, %d', sFL3, sFL3, F4)
    A('s_add_u32 s%d, s%d, 256', sFL2, sFL3)
    A('s_bitcmp1_b32 s%d, 0', sFB)
    A('s_cselect_b32 s%d, s%d, s%d', sT, sBL, sB3)
    A('s_cselect_b32 s%d, s%d, s%d', sBL, sB3, sBL)
    A('s_mov_b32 s%d, s%d', sB3, sT)
    A('s_cselect_b32 s%d, s%d, s%d', sT, sFL2, sFL3)
    A('s_cselect_b32 s%d, s%d, s%d', sFL2, sFL3, sFL2)
    A('s_mov_b32 s%d, s%d', sFL3, sT)
    A('s_lshl_b32 s%d, s%d, 8', sPF, sTQ)
    A('s_mul_i32 s%d, s%d, 112', sT, sKH)
    A('s_add_u32 s%d, s%d, s%d', sPF, sPF, sT)
    A('s_add_u32 s%d, s%d, %d', sPF, sPF, F4)
    A('s_mul_i32 s%d, s%d, %d', sHB, sG, 112 * 1024)
    A('s_mul_i32 s%d, s%d, %d', sT, sKH, 56 * 1024)
    A('s_add_u32 s%d, s%d, s%d', sHB, sHB, sT)
    A('s_add_u32 s%d, s%d, %d', sHB, sHB, WS_H1B + (0x40000000 if E('ABL', 0) & 64 else 0))
    blk_init(A, sBK, sBS, 's%d' % sKH)
    A('s_bitcmp1_b32 s%d, 0', sBK)
    A('s_mov_b32 s%d, 0x0f0f0f0f', sEM)
    A('s_cselect_b32 s%d, 0x00f0f0f0, s%d', sEM, sEM)
    wait_lp(A, 'wo')

    def wo_row(k):
        hh = k // 2
        return 28 * hh - 4 * (hh & 1) + 16 * (k & 1)

    Q = LdsQ(A)
    LAG = E('P2LAG', 5)

    def read_wo(k, nt):
        buf = vWF2 + 8 * nt + 4 * (k & 1)
        for z in range(2):
            Q.op(('w', k, nt), 'ds_read_b64_tr_b16 v[%d:%d], v%d offset:%d', buf + 2 * z, buf + 2 * z + 1,
                 vWA + 2 + nt, (wo_row(k) + 8 * z) * 128)

    read_wo(0, 1)
    read_wo(0, 0)
    lo, chk2, done = A.label('P'), A.label('PC'), A.label('PD')
    A('s_branch %s', chk2)
    A('%s:', lo)
    f2_load()
    try_copy(False)
    A('%s:', chk2)
    A('s_waitcnt vmcnt(0)')
    A('v_cmp_ne_u32 vcc, s%d, v%d', sTAG, vPF)
    spin_guard(A, done)
    A('s_and_b32 s%d, vcc_lo, 0xff', sT)
    A('s_cbranch_scc1 %s', lo)
    A('%s:', done)
    stamp(A)
    stamp(A, 'p2')
    sOB = sM0
    A('s_mov_b32 s%d, s%d', sOB, sB)

    def ld_o(k):
        A('buffer_load_dwordx4 %s, v%d, s[%d:%d], s%d offen offset:%d sc1', v(vB2[k], 4), vO, SWS, SWS + 3, sOB,
          (k & 3) * 1024)
        if (k & 3) == 3:
            A('s_add_u32 s%d, s%d, 4096', sOB, sOB)
    P2I = E('P2INFL', 8)
    for k in range(P2I):
        ld_o(k)
    A('s_lshl_b32 s%d, s%d, 1', sT2, sNB)
    A('s_add_u32 s%d, s%d, s%d', sT2, sT2, sKH)
    A('s_lshl_b32 s%d, s%d, 15', sB, sG)
    A('s_add_u32 s%d, s%d, %d', sB, sB, WS_HB)
    A('s_lshl_b32 s%d, s%d, 8', sC, sT2)
    A('s_add_u32 s%d, s%d, s%d', sC, sC, sB)
    A('s_lshl_b32 s%d, s%d, 11', sT, sT2)
    A('s_add_u32 s%d, s%d, s%d', sB, sB, sT)
    A('s_add_u32 s%d, s%d, 4096', sB, sB)
    A('s_lshl_b32 s%d, s%d, 2', sFL, sT2)
    A('s_lshl_b32 s%d, s%d, 6', sT, sG)
    A('s_add_u32 s%d, s%d, s%d', sFL, sFL, sT)
    A('s_add_u32 s%d, s%d, %d', sFL, sFL, F3)
    for k in range(16 + LAG):
        if k < 16:
            if k < 15:
                read_wo(k + 1, 1)
            Q.wait(('w', k, 1), min(15, P2I + k - 1) - k)
            if k % 4 == 0:
                stamp(A, 'p2')
            mfma(A, vAC + 16, vWF2 + 8 + 4 * (k & 1), vB2[k], k == 0)
            if P2I + k < 16:
                ld_o(P2I + k)
            if P2I + k == E('LDSIG', 12):
                A('v_mov_b32 v%d, 1', vT0)
                Q.op('ld', 'ds_write_b32 v%d, v%d offset:%d', vMY, vT0, M_LD)
        j = k - LAG
        if j >= 0:
            if j < 15:
                read_wo(j + 1, 0)
            Q.wait(('w', j, 0))
            mfma(A, vAC, vWF2 + 4 * (j & 1), vB2[j])
        if k == 16 and LAG >= 2:
            for q in range(4):
                Q.op('x', 'ds_write_b128 v%d, %s offset:%d', vSW, v(vAC + 16 + 4 * q, 4), q * 1024)
            Q.stage(C0 + 6)
    stamp(A)

    def exchange(st, sent=False):
        if not sent:
            for q in range(4):
                A('ds_write_b128 v%d, %s offset:%d', vSW, v(vAC + 16 + 4 * q, 4), q * 1024)
            set_stage(A, st)
        lo, done = A.label('W'), A.label('WD')
        A('%s:', lo)
        A('ds_read_b32 v%d, v%d', vPW, vPP)
        for q in range(4):
            A('ds_read_b128 %s, v%d offset:%d', v(vWF2 + 4 * q, 4), vSR, q * 1024)
        A('s_waitcnt lgkmcnt(4)')
        A('v_readfirstlane_b32 s%d, v%d', sT, vPW)
        spin_guard(A, done)
        A('s_cmp_ge_u32 s%d, %d', sT, st)
        A('s_cbranch_scc0 %s', lo)
        A('%s:', done)
        for q in range(4):
            A('s_waitcnt lgkmcnt(%d)', 3 - q)
            for r in (0, 2):
                a0 = vAC + 4 * q + r
                A('v_pk_add_f32 v[%d:%d], v[%d:%d], v[%d:%d]', a0, a0 + 1, a0, a0 + 1, vWF2 + 4 * q + r,
                  vWF2 + 4 * q + r + 1)

    stamp(A, 'p2')
    exchange(C0 + 6, LAG >= 2)
    stamp(A, 'p2')
    set_stage(A, C0 + 7)
    cvt8(A, vHP, vAC)
    pub_stores(A, [st4(vHP + 4 * q, sB, q * 1024) for q in range(2)], not WTO)
    A('v_mov_b32 v%d, 0', vTT)
    A('v_mov_b32 v%d, 0', vTT + 1)
    for r in range(8):
        A('v_dot2c_f32_bf16 v%d, s%d, v%d', vTT, sONES, vHP + r)
        A('v_dot2c_f32_bf16 v%d, v%d, v%d', vTT + 1, vHP + r, vHP + r)
    A('v_lshlrev_b32 v%d, 2, v%d', vTT + 2, vL)
    A('v_permlane32_swap_b32 v%d, v%d', vTT, vTT + 1)
    A('v_add_f32 v%d, v%d, v%d', vTT, vTT, vTT + 1)
    pub_stores(A, ['buffer_store_dword v%d, v%d, s[%d:%d], s%d offen%%s' % (vTT, vTT + 2, SWS, SWS + 3, sC)], not WTO)
    stamp(A, 'p2')
    try_copy(True)
    NPRE = E('CPRE', 2)
    for c in range(2, 2 + NPRE):
        w1_copy(c)
    stamp(A, 'p2')
    pub_flag(A, sFL, True)
    stamp(A, 'p2')
    stamp(A)
    for c in range(2 + NPRE, 4):
        w1_copy(c)
    A('v_mov_b32 v%d, 0', vCS)
    A('v_mov_b32 v%d, 0', vCS + 1)
    A('s_waitcnt lgkmcnt(0)')
    for r in range(112):
        if r in (16, 32, 48):
            w1_copy(3 + r // 16)
        if r == 48:
            set_stage(A, C0 + 8)
        if r in (64, 80, 96):
            A('s_waitcnt lgkmcnt(%d)', min(15, 1 + 8 * ((96 - r) // 16)))
        A('v_dot2c_f32_bf16 v%d, s%d, v%d', vCS + (r & 1), sONES, vXR + r)
    A('v_add_f32 v%d, v%d, v%d', vCS, vCS, vCS + 1)
    hilo_c(A, vCS, vCF, vT0)
    vBR = 40
    vE3 = 72
    vMF2, vSD = 128, 132
    A('s_mov_b32 s11, s%d', sB)
    A('s_mov_b32 s%d, s%d', sB, sB3)
    A('s_mov_b32 s%d, s%d', sFL, sFL3)

    def p3_epilogue(gi, packed=False):
        B = sub(A)
        acc = vAC + 16 * (gi & 1)
        e = vE3
        sd, c1 = vSD, vSD + 1
        if packed:
            pk = lambda r: 'v[%d:%d]' % (r, r + 1)
            for r in range(0, 16, 2):
                B('v_pk_mul_f32 %s, %s, %s op_sel:[0,1] op_sel_hi:[1,1]', pk(e + r), pk(acc + r), pk(sd))
            for r in range(16):
                B('v_exp_f32 v%d, v%d', e + r, e + r)
            for r in range(0, 16, 2):
                B('v_pk_fma_f32 %s, %s, %s, %s op_sel_hi:[1,0,0]', pk(e + r), pk(e + r), pk(sd), pk(sd))
            for r in range(16):
                B('v_rcp_f32 v%d, v%d', e + r, e + r)
            for r in range(0, 16, 2):
                B('v_pk_mul_f32 %s, %s, %s', pk(e + r), pk(e + r), pk(acc + r))
            cvt8(B, acc, e)
        else:
            silu8(B, acc, e, sd, c1, acc)
            silu8(B, acc + 8, e + 8, sd, c1, acc + 4)
        blocks = [[l] for l in B.lines]
        if E('ABL', 0) & 256 and not packed:
            blocks = blocks[-4:]
        B = sub(A)
        so = sB if gi < 2 else sBL
        pub_stores(B, [st4(acc + 4 * q, so, q * 1024) for q in range(2)], WT1 == 0 or (WT1 == 2 and gi >= 2))
        if gi % 2 == 0:
            B('s_add_u32 s%d, s%d, %d', so, so, 112 * 1024)
        blocks.append(B.lines)
        return blocks

    def flag_load(B):
        B('s_mov_b64 exec, 0xfffffff')
        B('buffer_load_dword v%d, v%d, s[%d:%d], s%d offen sc1', vPF, vL4, SWS, SWS + 3, sPF)
        B('s_mov_b64 exec, -1')

    def flag_check(mask):
        def slow(B, back):
            lo = B.label('P')
            B('%s:', lo)
            flag_load(B)
            B('s_waitcnt vmcnt(0)')
            B('v_cmp_ne_u32 vcc, s%d, v%d', sTAG, vPF)
            spin_guard(B, back)
            B('s_and_b32 s%d, vcc_lo, %s', sT, mask)
            B('s_cbranch_scc1 %s', lo)
        ent, back = cold_block(A, slow)
        A('v_cmp_ne_u32 vcc, s%d, v%d', sTAG, vPF)
        A('s_and_b32 s%d, vcc_lo, %s', sT, mask)
        A('s_cbranch_scc1 %s', ent)
        A('%s:', back)

    PRE = E('P3PRE', 6)
    vHB = vXD + 2
    A('v_add_u32 v%d, %d, v%d', vHB, L_A, vO)
    A('v_add_u32 v%d, %d, v%d', vHB + 1, 65536, vO)
    Q = LdsQ(A)

    def chk(n):
        gi, k = divmod(n, 28)
        if gi == 0 and E('P3RAMP', 0):
            return k // 4 if k % 4 == 0 else None
        if gi == 0:
            return {0: 1, 8: 3, 16: 5, 24: 6}.get(k)
        return {0: 1, 8: 3, 16: 6}.get(k)

    def rd(n):
        gi, k = divmod(n, 28)
        if n + 1 < 112 and chk(n + 1) is not None:
            Q.take(7)
        if chk(n) is not None:
            wait_lp(Q.A, ('h', gi, chk(n)))
        Q.op(('b', n), 'ds_read_b128 %s, v%d offset:%d', v(vBR + 4 * (n % 8), 4), (vHB, vHB, vO, vHB + 1)[gi],
             (28672 if gi == 1 else 0) + k * 1024)
        if n + 1 in W2GATE.values() and n + 1 >= E('FINE0', 24):
            Q.A('v_mov_b32 v%d, %d', vT0, (n + 1) // 2)
            Q.op('st', 'ds_write_b32 v%d, v%d offset:%d', vMY, vT0, M_LD)
        ramp = E('P3RAMP', 0) and n < 20
        nn = n + (4 if ramp else E('P3PK', PRE + 2))
        if nn < 112 and chk(nn) is not None and not Q.peeked and (ramp or nn >= 28 or not E('P3RAMP', 0)):
            Q.peek(7)

    stamp(A, 'p2')
    nrd = [0]

    def rd_upto(n):
        while nrd[0] <= min(n, 111):
            rd(nrd[0])
            nrd[0] += 1
    rd_upto(2)
    for gi in range(4):
        acc = vAC + 16 * (gi & 1)
        M = sub(A)
        Q.A = M
        for k in range(28):
            n = 28 * gi + k
            rd_upto(n + (PRE if not E('P3RAMP', 0) else 3 if n < 22 else min(PRE, 3 + (n - 21))))
            if k == 16:
                Q.op('s6', 'ds_read_b128 v[%d:%d], v%d offset:%d', vTT, vTT + 3, vMI, M_PW + 16)
                Q.op('sf', 'ds_read_b128 %s, v%d offset:%d', v(vMF2, 4), vEX, gi * 1024)
            if k == 24:
                Q.wait('sf')
                M('v_readfirstlane_b32 s%d, v%d', sPROG, vTT)
                M('v_readfirstlane_b32 s%d, v%d', sC, vTT + LP[('st', gi)][0] - 4)

                def st_slow(B, back):
                    def st_read():
                        B('ds_read_b128 %s, v%d offset:%d', v(vMF2, 4), vEX, gi * 1024)
                        return 0
                    wait_word(B, LP[('st', gi)][0], LP[('st', gi)][1], body=st_read)
                ent, back = cold_block(M, st_slow)
            if k == 25:
                M('s_cmp_ge_u32 s%d, %d', sC, LP[('st', gi)][1])
                M('s_cbranch_scc0 %s', ent)
                M('%s:', back)
                M('v_mov_b32 v%d, v%d', vMF, vMF2)
                M('v_mov_b32 v%d, v%d', vMF + 1, vMF2 + 1)
            if k % 2 == 0:
                Q.wait(('b', n + 1))
            if k in (0, 12):
                stamp(M, 'p3')
            if gi == E('P33', 3) and k % 2 == 0 and k:
                stamp(M, 'p33')
            if gi == 3 and k == E('P3FLAGK', 11):
                pub_flag(M, sFL, True)
            if gi == 3 and k == 25:
                flag_load(M)
            mfma(M, acc, vXR + 4 * k, vBR + 4 * (n % 8), k == 0)
        mfma(M, acc, vCF, vMF)
        M('v_mov_b32 v%d, v%d', vSD, vMF2 + 2)
        M('v_mov_b32 v%d, v%d', vSD + 1, vMF2 + 3)
        A.lines += merge(M.lines, p3_epilogue(gi - 1) if gi > 0 else [], 1, E('P3STOP2', 27) if gi == 2 else 27)
        if gi == 0:
            stamp(A)
        stamp(A, 'p3')
    stamp(A)
    NB = 28
    vWF4 = 40
    vAP = vXR + 48

    def w2_base(c):
        A('s_cmp_eq_u32 s%d, 0', sKH)
        A('s_cselect_b32 s%d, %d, %d', sT, w2_slot(2 * c) >> 12, w2_slot(2 * c + 1) >> 12)
        A('s_lshl_b32 s%d, s%d, 12', sT, sT)
        A('v_add_u32 v%d, s%d, v%d', vWA + 2, sT, vWA)
        A('v_add_u32 v%d, s%d, v%d', vWA + 3, sT, vWA + 1)

    Q = LdsQ(A)

    def abuf(k):
        return vWF4 + 8 * (k & 3)

    def read_w2(k):
        if k % 4 == 3 and k < 52:
            Q.take(LP[('w2', 2 * (k // 4) + 3)][0])
        if k % 4 == 0:
            wait_lp(A, ('w2', 2 * (k // 4) + 1))
            w2_base(k // 4)
        buf = abuf(k)
        for nt in range(2):
            for z in range(2):
                Q.op(('w', k), 'ds_read_b64_tr_b16 v[%d:%d], v%d offset:%d', buf + 4 * nt + 2 * z,
                     buf + 4 * nt + 2 * z + 1, vWA + 2 + nt, ((k % 4) * 16 + 8 * z) * 128)
        if k % 4 == 0 and k < 52:
            Q.peek(LP[('w2', 2 * (k // 4) + 3)][0])
        if k % 4 == 3 and (k // 4) <= 5:
            Q.stage(C0 + 13 + k // 4)

    vq = []

    def vm_need(tag):
        i = max(j for j, x in enumerate(vq) if x == tag)
        return len(vq) - 1 - i

    def issue_b(k):
        if k % 8 == 0:
            A('s_lshl_b32 s%d, s%d, 13', sM0, sBK)
            A('s_add_u32 s%d, s%d, s%d', sM0, sM0, sHB)
            blk_next(A, sBK, sBS)
        A('buffer_load_dwordx4 %s, v%d, s[%d:%d], s%d offen offset:%d%s', v(vXR + 4 * (k % NB), 4), vO, SWS, SWS + 3,
          sM0, (k & 3) * 1024, LDB)
        vq.append(('b', k))
        if k % 8 == 3:
            A('s_add_u32 s%d, s%d, 4096', sM0, sM0)

    INFL = E('P4INFL', 10)
    assert INFL < NB
    A('s_waitcnt vmcnt(2)')
    flag_check('s%d' % sEM)
    stamp(A)
    issued = E('P4PRE', 8)
    for k in range(issued):
        issue_b(k)
    NI = E('P4INT', 0)
    blocks = p3_epilogue(3, True)
    for j, b in enumerate(blocks):
        if j < len(blocks) - 1 and issued < E('P4PRE', 8) + (NI * (j + 1)) // (len(blocks) - 1):
            issue_b(issued)
            issued += 1
        A.lines += b
    vq += ['st', 'st']
    read_w2(0)
    read_w2(1)
    while issued < INFL:
        issue_b(issued)
        issued += 1
    unpack_hp()
    stamp(A)
    KF, KL, KC = E('P4KF', 3), E('P4KL', 9), E('P4KC', 14)
    pend = False
    for k in range(56):
        if k + 2 < 56:
            read_w2(k + 2)
        need = vm_need(('b', k))
        if k == KF:
            need = min(need, vm_need('st'))
        if k == KC:
            need = min(need, vm_need('pf'))
        Q.wait(('w', k), need)
        if k % 4 == 0 and k:
            stamp(A, 'p4')
        buf = abuf(k)
        mfma(A, vAC + 16, buf + 4, vXR + 4 * (k % NB), k == 0)
        if k == KF:
            pub_flag(A, sFL2, True, False)
            vq.append('fl')
        if k == E('HCL', -1):
            for q in range(2):
                A(st4(vHP + 4 * q, 11, q * 1024) % ' sc1')
                vq.append('hc')
        if k == KL:
            flag_load(A)
            vq.append('pf')
        if k == KC:
            flag_check('0xfffffff')
            pend = True
        for _ in range(E('P4CU', 2)):
            if issued < min(56, k + 1 + INFL) and (issued < 24 or pend):
                issue_b(issued)
                issued += 1
        mfma(A, vAC, buf, vXR + 4 * (k % NB))
    stamp(A)
    if E('OUTT', 1):
        A('v_readfirstlane_b32 s%d, v%d', sC, vSR)
        A('v_readfirstlane_b32 s%d, v%d', sT2, vRO)
        A('v_and_b32 v%d, 31, v%d', vTT, vL)
        A('v_mul_u32_u24 v%d, 80, v%d', vTT, vTT)
        A('v_lshrrev_b32 v%d, 5, v%d', vT1, vL)
        A('v_lshl_add_u32 v%d, v%d, 3, v%d', vTT, vT1, vTT)
        A('v_add_u32 v%d, s%d, v%d', vTT, sC, vTT)
        A('v_lshrrev_b32 v%d, 2, v%d', vT1, vL)
        A('v_and_b32 v%d, 3, v%d', vTT + 3, vL)
        A('v_lshlrev_b32 v%d, 4, v%d', vTT + 3, vTT + 3)
        A('v_mul_u32_u24 v%d, 80, v%d', vTT + 1, vT1)
        A('v_add3_u32 v%d, v%d, v%d, s%d', vTT + 1, vTT + 1, vTT + 3, sC)
        A('v_mul_u32_u24 v%d, 896, v%d', vTT + 2, vT1)
        A('v_add_u32 v%d, v%d, v%d', vTT + 2, vTT + 2, vTT + 3)
        A('s_add_u32 s%d, s%d, %d', sC, sT2, 16 * 896)
    exchange(C0 + 27)
    cvt8(A, vHP, vAC)
    OB = ('', ' sc1', ' nt', ' sc0 sc1')[E('OUTB', 2)]
    if E('OUTT', 1):
        for q in range(4):
            A('ds_write_b64 v%d, v[%d:%d] offset:%d', vTT, vHP + 2 * q, vHP + 2 * q + 1, q * 16)
        for q in range(2):
            A('ds_read_b128 %s, v%d offset:%d', v(vHP + 4 * q, 4), vTT + 1, q * 16 * 80)
        for q in range(2):
            A('s_waitcnt lgkmcnt(%d)', 1 - q)
            A('buffer_store_dwordx4 %s, v%d, s[%d:%d], s%d offen%s', v(vHP + 4 * q, 4), vTT + 2, SOUT, SOUT + 3,
              (sT2, sC)[q], OB)
    else:
        for q in range(2):
            A('v_permlane32_swap_b32 v%d, v%d', vHP + 4 * q, vHP + 4 * q + 2)
            A('v_permlane32_swap_b32 v%d, v%d', vHP + 4 * q + 1, vHP + 4 * q + 3)
        for q in range(2):
            A('buffer_store_dwordx4 %s, v%d, s[%d:%d], 0 offen offset:%d%s', v(vHP + 4 * q, 4), vRO, SOUT, SOUT + 3,
              q * 32, OB)
    A('s_or_b32 s%d, s%d, s%d', sT, sI, sWV)
    A('s_or_b32 s%d, s%d, s%d', sT, sT, sXCD)
    A('s_cmp_lg_u32 s%d, 0', sT)
    A('s_cbranch_scc1 %s', fin)
    A('s_mov_b32 s%d, %d', sT, FEP)
    A('s_mov_b64 exec, 1')
    A('buffer_store_dword v%d, v%d, s[%d:%d], s%d offen', vTAG, vO, SWS, SWS + 3, sT)
    A('s_mov_b64 exec, -1')
    A('%s:', fin)
    if E('PADTO', 0):
        lo = A.label('PAD')
        A('s_waitcnt vmcnt(0) lgkmcnt(0)')
        A('s_mov_b32 s6, %d', E('PADTO', 0))
        if PROBE >= 0:
            A('s_sub_u32 s7, s56, s84')
            A('s_lshl_b32 s7, s7, 2')
            A('s_cmp_ge_u32 s%d, 28', sI)
            A('s_cselect_b32 s7, 0, s7')
            A('s_add_u32 s6, s6, s7')
        A('%s:', lo)
        A('s_memrealtime s[4:5]')
        A('s_waitcnt lgkmcnt(0)')
        A('s_sub_u32 s4, s4, s84')
        A('s_cmp_lt_u32 s4, s6')
        A('s_cbranch_scc1 %s', lo)
    stamp_flush(A)


def gen():
    A = Asm()
    name = NAME + '_kernel'
    A.lines += ['.p2align 8', '.globl %s' % name, '.type %s,@function' % name, '%s:' % name]
    end = A.label('END')
    if E('PADTO', 0):
        A('s_memrealtime s[84:85]')
    A('s_load_dwordx16 s[64:79], s[0:1], 0')
    A('s_load_dwordx2 s[80:81], s[0:1], 72')
    A('s_getpc_b64 s[%d:%d]', sPC, sPC + 1)
    A('s_cmp_ge_u32 s2, 256')
    A('s_cbranch_scc1 %s', end)
    assert MAP == 0
    A('s_and_b32 s%d, s2, 7', sXCD)
    A('s_lshr_b32 s%d, s2, 3', sI)
    A('v_lshrrev_b32 v%d, 6, v0', vMY)
    A('v_and_b32 v%d, 63, v0', vL)
    A('s_and_b32 s%d, s%d, 1', sTB, sI)
    A('s_lshl1_add_u32 s%d, s%d, s%d', sTB, sXCD, sTB)
    A('v_readfirstlane_b32 s%d, v%d', sWV, vMY)
    A('s_add_u32 s%d, s%d, s%d', sC0, sXCD, sI)
    A('s_mul_i32 s%d, s%d, 37', sT, sC0)
    A('s_lshr_b32 s%d, s%d, 8', sT, sT)
    A('s_mul_i32 s%d, s%d, 7', sT, sT)
    A('s_sub_u32 s%d, s%d, s%d', sC0, sC0, sT)
    x_offsets(A)
    A('s_mul_i32 s%d, s%d, %d', sT2, sWV, 32 * 896)
    A('s_lshl_b32 s%d, s%d, 7', sT, sC0)
    A('s_add_u32 s%d, s%d, s%d', sT, sT, sXB)
    A('s_add_u32 s%d, s%d, s%d', sT, sT, sT2)
    A('s_lshl_b32 m0, s%d, 12', sWV)
    A('s_mov_b32 s%d, 0x%x', SX + 2, 0 if E('ABL', 0) & 16 else S * D * 2)
    A('s_mov_b32 s%d, 0x20000', SX + 3)
    nok = A.label('NOK')
    A('s_cmp_ge_u32 s%d, 4', sWV)
    A('s_waitcnt lgkmcnt(0)')
    A('s_mov_b32 s%d, s64', SX)
    A('s_mov_b32 s%d, s65', SX + 1)
    A('s_cbranch_scc1 %s', nok)
    for u in range(4):
        A('buffer_load_dwordx4 v%d, s[%d:%d], s%d offen offset:%d lds', vXD + u, SX, SX + 3, sT, u * 1024)
    A('%s:', nok)
    srd(A, SW, 66, 0 if E('ABL', 0) & 8 else D * 3 * D * 2)
    WT = E('WT', 0)
    if WT:
        now = A.label('NOW')
        A('s_sub_u32 s%d, s%d, 4', sT, sWV)
        A('s_cmp_ge_u32 s%d, %d', sT, WT)
        A('s_cbranch_scc1 %s', now)
        A('s_add_u32 s%d, s%d, 1', sT, sT)
        A('s_cmp_eq_u32 s%d, 3', sT)
        A('s_cselect_b32 s%d, 0, s%d', sT, sT)
        A('s_mul_i32 s%d, s%d, 896', sT, sT)
        A('s_mul_i32 s%d, s%d, %d', sT2, sI, 14 * 2688)
        A('s_add_u32 s%d, s%d, s%d', sT, sT, sT2)
        A('s_add_u32 s%d, s%d, %d', sT2, sT, 7 * 2688)
        A('v_lshrrev_b32 v%d, 3, v%d', vT0, vL)
        A('v_mul_u32_u24 v%d, 2688, v%d', vT0, vT0)
        A('v_and_b32 v%d, 7, v%d', vT1, vL)
        A('v_lshl_add_u32 v%d, v%d, 7, v%d', vT0, vT1, vT0)
        A('s_mov_b32 exec_lo, 0x7f7f7f7f')
        A('s_mov_b32 exec_hi, 0x007f7f7f')
        A('buffer_load_dword v38, v%d, s[%d:%d], s%d offen', vT0, SW, SW + 3, sT)
        A('buffer_load_dword v39, v%d, s[%d:%d], s%d offen', vT0, SW, SW + 3, sT2)
        A('s_mov_b64 exec, -1')
        A('%s:', now)
    perm = [2, 4, 6, 9, 11, 13, 0, 1, 3, 5, 7, 8, 10, 12, 14, 15]
    lo = sum(perm[i] << (4 * i) for i in range(8))
    hi = sum(perm[8 + i] << (4 * i) for i in range(8))
    A('s_mov_b32 s%d, 0x%x', sHI, lo)
    A('s_mov_b32 s%d, 0x%x', sHI + 1, hi)
    A('s_lshr_b32 s%d, s%d, 1', sT, sI)
    A('s_lshl_b32 s%d, s%d, 2', sT, sT)
    A('s_lshr_b64 s[%d:%d], s[%d:%d], s%d', sHI, sHI + 1, sHI, sHI + 1, sT)
    A('s_and_b32 s%d, s%d, 15', sH, sHI)
    RM = E('RMAP', 0)
    if RM == 1:
        A('s_add_u32 s%d, s%d, 28', sI, sI)
        A('s_and_b32 s%d, s%d, 31', sI, sI)
    if RM == 2:
        A('s_add_u32 s%d, s%d, 28', sI, sI)
        A('s_and_b32 s%d, s%d, 31', sI, sI)
        A('s_and_b32 s%d, s%d, 1', sT, sI)
        A('s_mul_i32 s%d, s%d, 14', sT, sT)
        A('s_lshr_b32 s%d, s%d, 1', sT2, sI)
        A('s_add_u32 s%d, s%d, s%d', sT, sT, sT2)
        A('s_cmp_lt_u32 s%d, 28', sI)
        A('s_cselect_b32 s%d, s%d, s%d', sI, sT, sI)
    A('v_lshlrev_b32 v%d, 2, v%d', vMY, vMY)
    A('v_add_u32 v%d, %d, v%d', vMY, L_MISC, vMY)
    A('v_mov_b32 v%d, 0', vT0)
    A('ds_write2st64_b32 v%d, v%d, v%d offset0:0 offset1:1', vMY, vT0, vT0)
    A('ds_write2_b32 v%d, v%d, v%d offset0:%d offset1:%d', vMY, vT0, vT0, M_FAST // 4, M_CP // 4)
    w_offsets(A)
    A('v_mov_b32 v%d, %d', vMI, L_MISC)
    A('s_mov_b32 s%d, 0x400000', sSPIN)
    A('s_mov_b32 s%d, 0', sPROG)
    A('s_mov_b32 s%d, 0', sPROG1)
    A('s_waitcnt lgkmcnt(0)')
    A('s_barrier')
    _st['n'] = 0
    stamp(A, 'all')
    if STAMPS:
        A('s_memrealtime s[86:87]')
    for i in range(7):
        LP[('x', i)] = (7, 1 + i)
    hn = [9]
    for gi in range(4):
        us = E('HSPOS', 3) if gi == 0 else 0
        LP[('st', gi)] = (6 - (gi & 1), 4 + gi // 2)
        for q in range(7):
            if q in HITEMS[gi > 0]:
                hn[0] += 1
                LP[('h', gi, q)] = (7, hn[0])
            if q == us:
                hn[0] += 1
                LP[('hs', gi)] = (7, hn[0])
    for pi in range(3):
        for i in range(7):
            LP[('W', pi, i)] = (4, 7 * pi + i + 1)
    l0, l1, l2, lw, lc = A.label('H0'), A.label('H1'), A.label('H23'), A.label('EW'), A.label('EC')
    A('s_cmp_eq_u32 s%d, 4', sWV)
    A('s_cbranch_scc1 %s', lw)
    A('s_cmp_lg_u32 s%d, 7', sWV)
    A('s_cbranch_scc1 %s', lc)
    HELP['on'] = True
    nst = {}
    prio(A, 1)
    _st['n'] = 1
    HELP['role'] = '7'
    early_x(A)
    nst[l1] = _st['n']
    A('s_branch %s', l1)
    A('%s:', lw)
    prio(A, 1)
    _st['n'] = 1
    HELP['role'] = '4'
    early_w(A)
    nst[l0] = _st['n']
    nst[l2] = 1
    A('s_branch %s', l0)
    refresh_routines(A)
    A('%s:', lc)
    A('s_cmp_ge_u32 s%d, 5', sWV)
    A('s_cbranch_scc1 %s', l2)
    parts = {}
    for lab, fn in ((l0, gen_h0), (l1, gen_h1), (l2, gen_h23)):
        B = sub(A)
        B('%s:', lab)
        B('s_nop 4')
        HELP['on'] = True
        prio(B, 1)
        _st['n'] = nst[lab]
        HELP['role'] = {l0: '4', l1: '7', l2: 'h'}[lab]
        fn(B)
        HELP['role'] = 'c'
        HELP['on'] = False
        parts[lab] = B.lines
    _st['n'] = 1
    gen_compute(A)
    A('%s:', end)
    A('s_endpgm')
    for lab in (l0, l1, l2):
        A.lines += parts[lab]
    A.lines += COLD
    return A, name


def main():
    out = sys.argv[1] if len(sys.argv) > 1 else 'cdna_kernels/%s.s' % NAME
    A, name = gen()
    lines, nn = fix_hazards(A.lines)
    if E('ALIGN', 0):
        lines, na = align8(lines)
        print('re-encoded', na)
    hdr = ['; generated by gen/gen16.py (hand-written generator script)',
           '; @launch grid=(256,1,1) block=(512,1,1) lds=%d' % LDS_SIZE,
           '.amdgcn_target "amdgcn-amd-amdhsa--gfx950"', '.text']
    tail = ['.p2align 8', '.fill 2048, 4, 0xbf800000', '.section .rodata,"a"', '.p2align 6', '''.amdhsa_kernel %s
  .amdhsa_next_free_vgpr 256
  .amdhsa_next_free_sgpr 102
  .amdhsa_accum_offset 256
  .amdhsa_group_segment_fixed_size 0
  .amdhsa_kernarg_size 80
  .amdhsa_user_sgpr_count 2
  .amdhsa_user_sgpr_kernarg_segment_ptr 1
  .amdhsa_system_sgpr_workgroup_id_x 1
  .amdhsa_float_denorm_mode_32 3
  .amdhsa_float_denorm_mode_16_64 3
.end_amdhsa_kernel''' % name]
    open(out, 'w').write('\n'.join(hdr + lines + tail) + '\n')
    print('wrote', out, 'lines', len(lines), 'nops', nn)


if __name__ == '__main__':
    main()
```

```python
import re

REG_RE = re.compile(r'(?<![\w.])([vas])(\d+)(?![\w\[])|(?<![\w.])([vas])\[(\d+):(\d+)\]')
TRANS = ('v_exp_f32', 'v_log_f32', 'v_rcp_f32', 'v_rsq_f32', 'v_sqrt_f32', 'v_sin_f32', 'v_cos_f32')


def regs_of(tok):
    out = []
    for m in REG_RE.finditer(tok):
        if m.group(1):
            out.append((m.group(1), int(m.group(2))))
        else:
            for i in range(int(m.group(4)), int(m.group(5)) + 1):
                out.append((m.group(3), i))
    t = tok.strip()
    if re.search(r'\bvcc\b', t):
        out += [('s', 106), ('s', 107)]
    if re.search(r'\bvcc_lo\b', t):
        out += [('s', 106)]
    if re.search(r'\bvcc_hi\b', t):
        out += [('s', 107)]
    if re.search(r'\bexec\b', t):
        out += [('s', 126), ('s', 127)]
    if re.search(r'\bm0\b', t):
        out += [('s', 124)]
    return out


def split_ops(rest):
    ops, depth, cur = [], 0, ''
    for ch in rest:
        if ch in '[(':
            depth += 1
        if ch in '])':
            depth -= 1
        if ch == ',' and depth == 0:
            ops.append(cur.strip())
            cur = ''
        else:
            cur += ch
    if cur.strip():
        ops.append(cur.strip())
    return ops


class Ins:
    def __init__(self, text):
        self.text = text
        code = text.split(';')[0].strip()
        self.is_label = code.endswith(':')
        self.is_dir = code.startswith('.') and not self.is_label
        self.empty = (code == '')
        self.op = ''
        self.w = set()
        self.r = set()
        self.kind = 'none'
        self.srcc = set()
        self.ab = set()
        self.passes = 0
        self.states = 1
        self.widestore = set()
        self.ldsdma = False
        if self.is_label or self.is_dir or self.empty:
            self.states = 0
            return
        parts = code.split(None, 1)
        op = parts[0]
        for suf in ('_e32', '_e64'):
            if op.endswith(suf):
                op = op[:-4]
        self.op = op
        ops = split_ops(parts[1]) if len(parts) > 1 else []
        R = [regs_of(o) for o in ops]
        flat = lambda l: set(x for y in l for x in y)
        if op == 's_nop':
            self.kind = 'salu'
            self.states = int(ops[0], 0) + 1
        elif op.startswith('v_mfma'):
            self.kind = 'mfma'
            self.w = set(R[0])
            self.ab = flat(R[1:3])
            self.srcc = set(R[3])
            self.r = self.ab | self.srcc
            self.passes = 8 if '32x32x16' in op else 4
            assert '32x32x16' in op or '16x16x32' in op, op
        elif op.startswith('ds_'):
            self.kind = 'ds'
            if op.startswith('ds_read') or '_rtn' in op or 'permute' in op or 'swizzle' in op:
                self.w = set(R[0])
                self.r = flat(R[1:])
            else:
                self.r = flat(R)
        elif op.startswith('buffer_') or op.startswith('global_'):
            self.kind = 'vmem'
            islds = bool(re.search(r'\blds\b', code)) or 'load_lds' in op
            if op in ('buffer_wbl2', 'buffer_inv'):
                pass
            elif islds:
                self.r = flat(R) | {('s', 124)}
                self.ldsdma = True
            elif '_load' in op:
                self.w = set(R[0])
                self.r = flat(R[1:])
                if 'd16' in op:
                    self.r |= set(R[0])
            elif 'atomic' in op:
                self.r = flat(R)
                if re.search(r'\bsc0\b', code):
                    self.w = set(R[0])
            else:
                self.r = flat(R)
                if op.endswith('x4') or op.endswith('x3'):
                    self.widestore = set(R[0]) if op.startswith('buffer_') else set(R[1])
        elif op.startswith('s_'):
            self.kind = 'salu'
            if op.startswith('s_cmp') or op.startswith('s_cbranch') or op in (
                    's_branch', 's_waitcnt', 's_barrier', 's_endpgm', 's_sleep', 's_setprio', 's_bitcmp0_b32',
                    's_bitcmp1_b32', 's_setpc_b64'):
                self.r = flat(R)
            else:
                self.w = set(R[0]) if R else set()
                self.r = flat(R[1:])
                if 'saveexec' in op:
                    self.w |= {('s', 126), ('s', 127)}
        elif op.startswith('v_'):
            self.kind = 'valu'
            self.w = set(R[0])
            self.r = flat(R[1:])
            if op.startswith('v_permlane') and 'swap' in op:
                self.w = flat(R[:2])
                self.r = flat(R[:2])
            if op in ('v_fmac_f32', 'v_dot2c_f32_bf16', 'v_writelane_b32'):
                self.r |= set(R[0])
            if op.startswith('v_add_co') or op.startswith('v_sub_co') or op.startswith('v_addc_co'):
                self.w = flat(R[:2])
                self.r = flat(R[2:])
            if op.startswith('v_cmpx'):
                self.w |= {('s', 126), ('s', 127)}
        else:
            raise ValueError('unknown instruction: ' + text)
        self.dpp = ('_dpp' in op) or (' quad_perm' in code) or (' row_' in code)
        self.trans = op in TRANS
        self.dot = op.startswith('v_dot')


def need(p, c):
    n = 0
    vw = {x for x in p.w if x[0] in 'va'}
    sw = {x for x in p.w if x[0] == 's'}
    if p.kind == 'valu':
        if c.kind == 'mfma' and (vw & c.r):
            n = max(n, 3 if p.dot else 2)
        if c.kind == 'valu':
            if p.trans and not c.trans and (vw & c.r):
                n = max(n, 1)
            if c.op.startswith('v_permlane') and (vw & c.r):
                n = max(n, 2)
            if c.op in ('v_readfirstlane_b32', 'v_readlane_b32') and (vw & c.r):
                n = max(n, 1)
            if c.dpp and (vw & c.r):
                n = max(n, 2)
            if sw & c.r:
                n = max(n, 4 if c.op in ('v_readlane_b32', 'v_writelane_b32') else 2)
            if 'sdwa' in p.op and (vw & (c.r | c.w)):
                n = max(n, 1)
            if p.dot and (vw & (c.r | c.w)):
                if c.op == p.op and p.op == 'v_dot2c_f32_bf16' and c.w == p.w:
                    pass
                else:
                    n = max(n, 3)
        if c.kind in ('vmem', 'ds') and p.dot and (vw & c.r):
            n = max(n, 3)
        if c.kind == 'vmem' and (sw & c.r):
            n = max(n, 5)
        if ('s', 126) in p.w:
            if c.kind == 'mfma':
                n = max(n, 4)
            if c.kind == 'valu' and (c.dpp):
                n = max(n, 5)
            if c.kind == 'valu' and (c.op.startswith('v_permlane') or c.op.startswith('v_read') or c.op.startswith('v_writelane')):
                n = max(n, 4)
    if p.kind == 'mfma':
        big = {8: 12, 4: 8}[p.passes]
        if c.kind == 'mfma':
            if p.w & c.ab:
                n = max(n, big)
            if p.w & c.srcc:
                if not (p.w == c.srcc and p.passes == c.passes):
                    n = max(n, {8: 10, 4: 6}[p.passes])
            elif p.w & c.w:
                n = max(n, big)
        elif c.kind in ('valu', 'vmem', 'ds'):
            if p.w & (c.r | c.w):
                n = max(n, big)
            if c.kind == 'valu' and (p.srcc & c.w):
                n = max(n, {8: 7, 4: 3}[p.passes])
    if p.kind == 'salu' and ('s', 124) in p.w and c.ldsdma:
        n = max(n, 1)
    if p.widestore and (p.widestore & c.w):
        n = max(n, 2 if c.kind == 'valu' else 1)
    return n


def fix_hazards(lines, window=40):
    out = []
    hist = []
    nins = 0
    open_regions = []
    seen = set()
    for t in lines:
        c = Ins(t)
        if c.states == 0:
            if c.is_label:
                lab = t.split(';')[0].strip()[:-1]
                seen.add(lab)
                open_regions = [r for r in open_regions if r != lab]
            out.append(t)
            continue
        c.regions = frozenset(open_regions)
        req = 0
        dist = 0
        for p in reversed(hist):
            k = need(p, c) - dist
            if k > req:
                req = k
            if p.regions <= c.regions:
                dist += p.states
            if dist >= 20:
                break
        while req > 0:
            k = min(req, 16)
            nop = 's_nop %d' % (k - 1)
            out.append('  ' + nop)
            n = Ins(nop)
            n.regions = c.regions
            hist.append(n)
            nins += 1
            req -= k
        out.append(t)
        hist.append(c)
        if c.op.startswith('s_cbranch') or c.op == 's_branch':
            tgt = t.split(';')[0].split()[-1]
            if tgt not in seen:
                open_regions.append(tgt)
        if c.op in ('s_endpgm',):
            hist = []
            open_regions = []
    return out, nins


class Asm:
    def __init__(self):
        self.lines = []
        self._lab = 0

    def __call__(self, fmt, *a):
        s = fmt % a if a else fmt
        for l in s.split('\n'):
            l = l.strip()
            if l:
                self.lines.append(l if l.endswith(':') else '  ' + l)

    _n = [0]

    def label(self, base='L'):
        Asm._n[0] += 1
        return '%s_%d' % (base, Asm._n[0])

    def comment(self, s):
        self.lines.append('  ; ' + s)


def v(i, n=1):
    return 'v%d' % i if n == 1 else 'v[%d:%d]' % (i, i + n - 1)


def a(i, n=1):
    return 'a%d' % i if n == 1 else 'a[%d:%d]' % (i, i + n - 1)


def s(i, n=1):
    return 's%d' % i if n == 1 else 's[%d:%d]' % (i, i + n - 1)


def interleave(main, fill, per):
    out = []
    k = 0
    for l in main:
        out.append(l)
        if l.strip().startswith('v_mfma'):
            out += fill[k:k + per]
            k += per
    out += fill[k:]
    return out


def align8(lines):
    import subprocess, tempfile, os
    d = tempfile.mkdtemp()
    src = os.path.join(d, 'a.s')
    open(src, 'w').write('.amdgcn_target "amdgcn-amd-amdhsa--gfx950"\n.text\n' + '\n'.join(lines) + '\n')
    subprocess.run(['clang', '-x', 'assembler', '-target', 'amdgcn-amd-amdhsa', '-mcpu=gfx950', '-c',
                    src, '-o', src + '.o'], check=True)
    dis = subprocess.run(['llvm-objdump', '-d', '--mcpu=gfx950', src + '.o'], capture_output=True,
                         text=True, check=True).stdout
    sizes = [4 * len(l.split('//')[1].split(':')[1].split('<')[0].split()) for l in dis.splitlines() if '//' in l]
    idx = [i for i, t in enumerate(lines) if Ins(t).states]
    assert len(idx) == len(sizes), (len(idx), len(sizes))
    ok = ('v_mul_f32', 'v_add_f32', 'v_sub_f32', 'v_max_f32', 'v_min_f32', 'v_exp_f32', 'v_rcp_f32', 'v_rsq_f32',
          'v_mov_b32', 'v_lshlrev_b32', 'v_lshrrev_b32', 'v_and_b32', 'v_or_b32', 'v_xor_b32', 'v_add_u32', 'v_min_u32')
    out = list(lines)
    off, cand, n = 0, None, 0
    for i, sz in zip(idx, sizes):
        if sz >= 8:
            if off % 8 == 4 and cand is not None:
                op = out[cand].split()[0]
                out[cand] = out[cand].replace(op, op + '_e64', 1)
                off += 4
                n += 1
            cand = None
        elif lines[i].split()[0] in ok:
            cand = i
        off += sz
    return out, n


def sizes_of(lines):
    import subprocess, tempfile, os
    d = tempfile.mkdtemp()
    src = os.path.join(d, 'a.s')
    open(src, 'w').write('.amdgcn_target "amdgcn-amd-amdhsa--gfx950"\n.text\n' + '\n'.join(lines) + '\n')
    subprocess.run(['clang', '-x', 'assembler', '-target', 'amdgcn-amd-amdhsa', '-mcpu=gfx950', '-c',
                    src, '-o', src + '.o'], check=True)
    dis = subprocess.run(['llvm-objdump', '-d', '--mcpu=gfx950', src + '.o'], capture_output=True,
                         text=True, check=True).stdout
    sizes = [4 * len(l.split('//')[1].split(':')[1].split('<')[0].split()) for l in dis.splitlines() if '//' in l]
    idx = [i for i, t in enumerate(lines) if Ins(t).states]
    assert len(idx) == len(sizes)
    return dict(zip(idx, sizes))
```

```python
import sys
import os
sys.path.insert(0, os.path.dirname(os.path.abspath(__file__)))
from asmlib import Asm, fix_hazards, align8, sizes_of, v

NAME = 'sequential_preLN__linear_kernel_hedgehog__dense_activation_silu__prompt'
S, D, H, DH, F = 2048, 448, 16, 28, 1792
MB = 1 << 20
E = lambda k, d: int(os.environ.get(k, d))
STAMPS = E('STAMPS', 0)
MAP = E('MAP', 0)
FAST = E('FAST', 1)
CODEPF = E('CODEPF', 10)
WARM = E('WARM', 0)
WT1 = E('WT1', 1)
WTO = E('WTO', 0)
TOUCHAT = E('TOUCHAT', 2)
LDB = (' sc1', '', ' nt')[E('LDB', 0)]
HLATE = E('HLATE', 1)
WS_KVP = 0
WS_OB = 2 * MB
WS_HB = 4 * MB
WS_H1B = 8 * MB
WS_FLG = 16 * MB
F1, F2, F3, F4, FREG, FEP = WS_FLG + 0x10000, WS_FLG + 0x1000, WS_FLG + 0x3000, WS_FLG + 0x70000, WS_FLG + 0x9000, WS_FLG + 0xA000
F2X = WS_FLG + 0x40000
FLN = WS_FLG + 0x80000
SHST = E('SHST', 0)
WS_STAMP = 17 * MB
WS_SIZE = 18 * MB
LOG2E = 0x3fb8aa3b
ONES = 0x3f803f80
MFMA = 'v_mfma_f32_32x32x16_bf16'
L_X = 0
L_WP = (114688, 0, 32768)
L_KVA, L_KVV = 65536, 81920
L_A = 98304
L_SC0, L_SC1 = 49152, 57344
L_XRES = L_SC0
B16 = (0, 16384, 65536, 81920, 32768)
L_PHI, L_EX, L_CF, L_MISC = 159744 - 2048 + 2048 + 1536, 155648, 159744, 163328
LDS_SIZE = 163840
M_PW, M_FAST, M_CP, M_LD = 0, 64, 96, 256
L_RSTD = L_EX

SX, SW, SP, SWS, SWO, SW1, SW2, SOUT = 12, 16, 20, 24, 28, 32, 36, 40
sTB, sH, sWV, sC0, sPROG, sT, sT2, sONES, sC, sTAG, sFASTF, sI, sXCD = 44, 45, 46, 47, 48, 49, 50, 51, 52, 53, 54, 55, 3
sHI, sPADL, sZA, sZB, sODD, sPC = 4, 6, 8, 10, 92, 94
sTQ, sNB, sTB3, sFB, sG, sKH, sB, sXB, sM0, sSPIN = 96, 97, 98, 99, 100, 101, 88, 89, 91, 90
sPROG1, sFL = 0, 1
vL, vMI, vT0, vT1, vO = 1, 2, 3, 4, 5
vTAG, vMY = 6, 7
vTT = 8
vXA = 12
vWA = 16
vSM, vSQ = 20, 22
vNM, vRS, vSC, vRA = 24, 25, 26, 27
vXD = 28
vPW = 32
vCA = 36
vXR = 144
vPK_ = 37
CACHE = {4: sPROG, 7: sPROG1, 5: sC0}

_st = {'n': 0}
C0 = 4
HELP = {'on': False}


def prio(A, hi):
    if HELP['on'] and E('HPRIO', 2) and not HELP.get('hot'):
        A('s_setprio %d', E('HPRIO', 2) if hi else 0)
LP = {}


STSET = os.environ.get('STSET', 'main')


DBGT = E('DBGT', 0)


PROBE = E('PROBE', -1)


DLY = os.environ.get('DLY', '')


def stamp(A, tag='main'):
    if DLY:
        if tag in ('main', 'all'):
            if '%s:%d' % (HELP.get('role', 'c'), _st['n']) == DLY:
                A('s_sleep 16')
            _st['n'] += 1
        return
    if PROBE >= 0:
        if not HELP['on'] and tag in ('main', 'all'):
            if _st['n'] == PROBE:
                A('s_memrealtime s[56:57]')
            _st['n'] += 1
        return
    if DBGT and not HELP['on'] and tag in ('main', 'all'):
        A('s_memrealtime s[%d:%d]', 56 + 2 * _st['n'], 57 + 2 * _st['n'])
        _st['n'] += 1
        return
    if STAMPS and STSET == 'clk' and tag == 'main' and not HELP['on']:
        _st['m'] = _st.get('m', 0) + 1
        if _st['m'] in (1, 2, 4, 8, 10, 13):
            A('s_memtime s[%d:%d]', 56 + 2 * _st['n'], 57 + 2 * _st['n'])
            A('s_memrealtime s[%d:%d]', 58 + 2 * _st['n'], 59 + 2 * _st['n'])
            _st['n'] += 2
        return
    if STAMPS and (tag == STSET or tag == 'all' or (HELP['on'] and tag == 'main')):
        assert _st['n'] < 15, 'too many stamps'
        A('s_memtime s[%d:%d]', 56 + 2 * _st['n'], 57 + 2 * _st['n'])
        _st['n'] += 1


def stamp_flush(A):
    if DBGT and not HELP['on']:
        A('s_waitcnt vmcnt(0)')
        stamp(A, 'all')
        skip = A.label('DS')
        A('s_waitcnt vmcnt(0) lgkmcnt(0)')
        A('s_cmp_ge_u32 s%d, 28', sI)
        A('s_cbranch_scc1 %s', skip)
        A('s_mov_b64 exec, 1')
        A('v_mov_b32 v1, 0')
        A('s_not_b32 s4, s56')
        A('v_mov_b32 v2, s4')
        A('global_atomic_umax v1, v2, s[86:87] offset:60')
        for i in range(_st['n']):
            A('v_mov_b32 v%d, s%d', 8 + i, 56 + 2 * i)
            A('global_atomic_umax v1, v%d, s[86:87] offset:%d', 8 + i, 4 * i)
        A('%s:', skip)
        return
    if STAMPS:
        A('s_waitcnt vmcnt(0)')
        stamp(A, 'all')
        A('s_memrealtime s[4:5]')
        A('s_waitcnt vmcnt(0) lgkmcnt(0)')
        A('s_sub_u32 s4, s4, s86')
        A('s_lshl_b32 s4, s4, 20')
        A('s_and_b32 s86, s86, 0xfffff')
        A('s_or_b32 s86, s86, s4')
        A('s_lshl_b32 s%d, s2, 3', sT)
        A('s_add_u32 s%d, s%d, s%d', sT, sT, sWV)
        A('s_lshl_b32 s%d, s%d, 6', sT, sT)
        A('s_add_u32 s%d, s%d, %d', sT, sT, WS_STAMP)
        A('s_mov_b64 exec, 1')
        A('v_mov_b32 v1, 0')
        for i in range(16):
            if i < _st['n']:
                A('v_mov_b32 v2, s%d', 56 + 2 * i)
            elif i == 15:
                A('v_mov_b32 v2, s86')
            else:
                A('v_mov_b32 v2, 0')
            A('buffer_store_dword v2, v1, s[%d:%d], s%d offen offset:%d', SWS, SWS + 3, sT, 4 * i)
            A('s_nop 1')


def srd(A, d, ptr, size):
    A('s_mov_b32 s%d, s%d', d, ptr)
    A('s_and_b32 s%d, s%d, 0xffff', d + 1, ptr + 1)
    A('s_mov_b32 s%d, 0x%x', d + 2, size)
    A('s_mov_b32 s%d, 0x20000', d + 3)


COLD = []


def cold_block(A, fn):
    ent, back = A.label('CE'), A.label('CB')
    B = sub(A)
    B('%s:', ent)
    B('s_nop 15')
    fn(B, back)
    B('s_nop 7')
    B('s_branch %s', back)
    COLD.extend(B.lines)
    return ent, back


def again(A, br, lo, sleep=0):
    slp = max(sleep * E('SLPMUL', 1), E('HSLP', 0) if HELP['on'] else E('CSLP', 0))
    if slp:
        st = A.label('ZZ')
        COLD.extend(['%s:' % st, '  s_sleep %d' % slp, '  s_branch %s' % lo])
        lo = st
    A('%s %s', br, lo)


def spin_guard(A, done):
    A('s_sub_u32 s%d, s%d, 1', sSPIN, sSPIN)
    A('s_cbranch_scc1 %s', done)


def wait_word(A, w, n, cache=None, sleep=0, body=None):
    sd = sT if cache is None else cache

    def loop(B, done, body=None):
        lo = B.label('W')
        prio(B, 0)
        B('%s:', lo)
        B('ds_read_b32 v%d, v%d offset:%d', vPW, vMI, M_PW + 4 * w)
        k = body() if body else 0
        B('s_waitcnt lgkmcnt(%d)', k)
        B('v_readfirstlane_b32 s%d, v%d', sd, vPW)
        spin_guard(B, done)
        B('s_cmp_ge_u32 s%d, %d', sd, n)
        again(B, 's_cbranch_scc0', lo, sleep)
        prio(B, 1)
    if cache is not None and body is None and not HELP['on']:
        A('s_getpc_b64 s[%d:%d]', sPC, sPC + 1)
        A('s_cmp_ge_u32 s%d, %d', sd, n)
        A('s_cbranch_scc0 REFRESH_%d', w)
        return
    done = A.label('WD')
    if cache is not None and body is None:
        A('s_cmp_ge_u32 s%d, %d', sd, n)
        A('s_cbranch_scc1 %s', done)
    loop(A, done, body)
    A('%s:', done)


def wait_lp(A, name, sleep=0):
    w, n = LP[name]
    wait_word(A, w, n, CACHE[w], sleep)


def set_stage(A, n):
    A('v_mov_b32 v%d, %d', vT0, n)
    A('ds_write_b32 v%d, v%d', vMY, vT0)


def wait_stage(A, n, which=(0, 1, 2, 3), body=None, sleep=0, base=M_PW, cache=None):
    lo, done = A.label('W'), A.label('WD')
    sT = globals()['sT'] if cache is None else cache
    if cache is not None:
        A('s_cmp_ge_u32 s%d, %d', sT, n)
        A('s_cbranch_scc1 %s', done)
    prio(A, 0)
    A('%s:', lo)
    A('ds_read_b128 v[%d:%d], v%d offset:%d', vPW, vPW + 3, vMI, base + 16 * (which[0] // 4))
    k = body() if body else 0
    A('s_waitcnt lgkmcnt(%d)', k)
    w = [x % 4 for x in which]
    if len(w) == 4:
        A('v_min3_u32 v%d, v%d, v%d, v%d', vPW, vPW, vPW + 1, vPW + 2)
        A('v_min_u32 v%d, v%d, v%d', vPW, vPW, vPW + 3)
        r = vPW
    else:
        A('v_min_u32 v%d, v%d, v%d', vPW + w[0], vPW + w[0], vPW + w[1])
        r = vPW + w[0]
    A('v_readfirstlane_b32 s%d, v%d', sT, r)
    spin_guard(A, done)
    A('s_cmp_ge_u32 s%d, %d', sT, n)
    again(A, 's_cbranch_scc0', lo, sleep)
    A('%s:', done)
    prio(A, 1)


def poll_global(A, soff, nlanes):
    lo, done = A.label('P'), A.label('PD')
    A('v_lshlrev_b32 v%d, 2, v%d', vT1, vL)
    if nlanes <= 32:
        A('s_mov_b64 exec, 0x%x', (1 << nlanes) - 1)
    else:
        A('s_mov_b32 exec_lo, 0x%x', nlanes & 0xffffffff)
        A('s_mov_b32 exec_hi, 0x%x', nlanes >> 32)
    A('%s:', lo)
    A('buffer_load_dword v%d, v%d, s[%d:%d], s%d offen sc1', vT0, vT1, SWS, SWS + 3, soff)
    A('s_waitcnt vmcnt(0)')
    A('v_cmp_ne_u32 vcc, s%d, v%d', sTAG, vT0)
    spin_guard(A, done)
    A('s_cbranch_vccnz %s', lo)
    A('%s:', done)
    A('s_mov_b64 exec, -1')


def poll_scalar(A, soff, n):
    lo, done = A.label('P'), A.label('PD')
    A('s_add_u32 s%d, s%d, s%d', sPC, SWS, soff)
    A('s_addc_u32 s%d, s%d, 0', sPC + 1, SWS + 1)
    base = 76
    assert n == 8
    A('%s:', lo)
    if E('PSLEEP', 0):
        A('s_sleep %d', E('PSLEEP', 0))
    A('s_load_dwordx%d s[%d:%d], s[%d:%d], 0 glc', n, base, base + n - 1, sPC, sPC + 1)
    A('s_waitcnt lgkmcnt(0)')
    A('s_and_b64 s[%d:%d], s[%d:%d], s[%d:%d]', sHI, sHI + 1, base, base + 1, base + 2, base + 3)
    A('s_or_b64 s[%d:%d], s[%d:%d], s[%d:%d]', sPADL, sPADL + 1, base, base + 1, base + 2, base + 3)
    for k in range(4, n, 2):
        A('s_and_b64 s[%d:%d], s[%d:%d], s[%d:%d]', sHI, sHI + 1, sHI, sHI + 1, base + k, base + k + 1)
        A('s_or_b64 s[%d:%d], s[%d:%d], s[%d:%d]', sPADL, sPADL + 1, sPADL, sPADL + 1, base + k, base + k + 1)
    A('s_and_b32 s%d, s%d, s%d', sHI, sHI, sHI + 1)
    A('s_or_b32 s%d, s%d, s%d', sPADL, sPADL, sPADL + 1)
    A('s_xor_b32 s%d, s%d, s%d', sHI, sHI, sTAG)
    A('s_xor_b32 s%d, s%d, s%d', sPADL, sPADL, sTAG)
    spin_guard(A, done)
    A('s_or_b32 s%d, s%d, s%d', sHI, sHI, sPADL)
    A('s_cbranch_scc1 %s', lo)
    A('%s:', done)


def two_ways(A, fn, local):
    if local and FAST:
        ent, back = cold_block(A, lambda B, back: fn(B, ' sc1'))
        A('s_cmp_eq_u32 s%d, 0', sFASTF)
        A('s_cbranch_scc1 %s', ent)
        fn(A, '')
        A('%s:', back)
    else:
        fn(A, ' sc1')


def pub_stores(A, stores, local):
    def fn(B, bits):
        for st in stores:
            B(st % bits)
    two_ways(A, fn, local)


def pub_flag(A, sflag, local, drain=True):
    if drain:
        A('s_waitcnt vmcnt(0)')
    A('s_mov_b64 exec, 1')
    two_ways(A, lambda B, bits: B('buffer_store_dword v%d, v%d, s[%d:%d], s%d offen%s', vTAG, vO, SWS, SWS + 3, sflag,
                                  bits), local)
    A('s_mov_b64 exec, -1')


def pub_flag4(A):
    A('v_lshlrev_b32 v%d, 9, v%d', vT1, vL)
    A('s_waitcnt vmcnt(0)')
    A('s_mov_b64 exec, 15')
    two_ways(A, lambda B, bits: B('buffer_store_dword v%d, v%d, s[%d:%d], s%d offen%s', vTAG, vT1, SWS, SWS + 3, sFL,
                                  bits), True)
    A('s_mov_b64 exec, -1')


def st4(reg, soff, off):
    return 'buffer_store_dwordx4 %s, v%d, s[%d:%d], s%d offen offset:%d%%s' % (v(reg, 4), vO, SWS, SWS + 3, soff, off)


def hilo_c(A, src, f, tmp):
    A('v_cvt_pk_bf16_f32 v%d, v%d, v%d', f, src, src)
    A('v_and_b32 v%d, 0xffff0000, v%d', tmp, f)
    A('v_sub_f32 v%d, v%d, v%d', tmp, src, tmp)
    A('v_cvt_pk_bf16_f32 v%d, v%d, 0', f + 1, tmp)


def hilo_m(A, src, f, tmp):
    A('v_cvt_pk_bf16_f32 v%d, v%d, 0', f + 1, src)
    A('v_lshlrev_b32 v%d, 16, v%d', tmp, f + 1)
    A('v_sub_f32 v%d, v%d, v%d', tmp, src, tmp)
    A('v_cvt_pk_bf16_f32 v%d, v%d, v%d', f, src, tmp)


def ln_finish(A, t0, t1, negmean, rstd):
    A('v_mul_f32 v%d, 0x%x, v%d', t0, 0x3b124925, t0)
    A('v_mov_b32 v%d, v%d', t1, t0)
    A('v_permlane32_swap_b32 v%d, v%d', t0, t1)
    A('v_fma_f32 v%d, -v%d, v%d, v%d', t1, t0, t0, t1)
    A('v_max_f32 v%d, 0, v%d', t1, t1)
    A('v_add_f32 v%d, 0x%x, v%d', t1, 0x3727c5ac, t1)
    A('v_rsq_f32 v%d, v%d', rstd, t1)
    A('v_sub_f32 v%d, 0, v%d', negmean, t0)


def softmax_pm(A, p, sc, e, t):
    A('v_cndmask_b32 v%d, v%d, v%d, s[%d:%d]', p + 12, p + 12, p + 14, sHI, sHI + 1)
    A('v_cndmask_b32 v%d, v%d, v%d, s[%d:%d]', p + 13, p + 13, p + 15, sHI, sHI + 1)
    mx, mn = t, t + 1
    A('v_max3_f32 v%d, v%d, v%d, v%d', mx, p, p + 1, p + 2)
    A('v_min3_f32 v%d, v%d, v%d, v%d', mn, p, p + 1, p + 2)
    for i in range(3, 13, 2):
        A('v_max3_f32 v%d, v%d, v%d, v%d', mx, mx, p + i, p + i + 1)
        A('v_min3_f32 v%d, v%d, v%d, v%d', mn, mn, p + i, p + i + 1)
    A('v_max_f32 v%d, v%d, v%d', mx, mx, p + 13)
    A('v_min_f32 v%d, v%d, v%d', mn, mn, p + 13)
    A('v_sub_f32 v%d, 0, v%d', mn, mn)
    A('v_permlane32_swap_b32 v%d, v%d', mx, mn)
    A('v_max_f32 v%d, v%d, v%d', mx, mx, mn)
    A('v_mul_f32 v%d, v%d, v%d', mx, mx, sc)
    A('v_mov_b32 v%d, v%d', mn, mx)
    A('v_permlane32_swap_b32 v%d, v%d', mx, mn)
    assert sc % 2 == 0 and mx % 2 == 0
    for i in range(0, 14, 2):
        A('v_pk_fma_f32 v[%d:%d], v[%d:%d], v[%d:%d], v[%d:%d] op_sel:[0,0,1] op_sel_hi:[1,0,1] neg_lo:[1,0,1] '
          'neg_hi:[1,0,1]', e + i, e + i + 1, p + i, p + i + 1, sc, sc + 1, mx, mx + 1)
        A('v_pk_fma_f32 v[%d:%d], v[%d:%d], v[%d:%d], v[%d:%d] op_sel_hi:[1,0,0] neg_lo:[0,0,1] neg_hi:[0,0,1]',
          p + i, p + i + 1, p + i, p + i + 1, sc, sc + 1, mx, mx + 1)
    for i in range(14):
        A('v_exp_f32 v%d, v%d', e + i, e + i)
        A('v_exp_f32 v%d, v%d', p + i, p + i)
    if PKSM:
        for base in (p, e):
            A('v_pk_add_f32 v[%d:%d], v[%d:%d], v[%d:%d]', base + 14, base + 15, base, base + 1, base + 2, base + 3)
        for i in range(4, 14, 2):
            for base in (p, e):
                A('v_pk_add_f32 v[%d:%d], v[%d:%d], v[%d:%d]', base + 14, base + 15, base + 14, base + 15, base + i,
                  base + i + 1)
    else:
        for base in (p, e):
            A('v_add_f32 v%d, v%d, v%d', base + 14, base, base + 2)
            A('v_add_f32 v%d, v%d, v%d', base + 15, base + 1, base + 3)
        for i in range(4, 14):
            for base in (p, e):
                A('v_add_f32 v%d, v%d, v%d', base + 14 + (i & 1), base + 14 + (i & 1), base + i)
    sp, sn = t + 2, t
    A('v_add_f32 v%d, v%d, v%d', sp, p + 14, p + 15)
    A('v_add_f32 v%d, v%d, v%d', sn, e + 14, e + 15)
    A('v_permlane32_swap_b32 v%d, v%d', sp, sn)
    A('v_add_f32 v%d, v%d, v%d', sp, sp, sn)
    A('v_rcp_f32 v%d, v%d', sp, sp)
    A('v_mov_b32 v%d, v%d', sn, sp)
    A('v_permlane32_swap_b32 v%d, v%d', sp, sn)
    for i in range(0, 14, 2):
        for base, r in ((p, sp), (e, sn)):
            if PKSM:
                A('v_pk_mul_f32 v[%d:%d], v[%d:%d], v[%d:%d] op_sel_hi:[1,0]', base + i, base + i + 1, base + i,
                  base + i + 1, r, r + 1)
            else:
                A('v_mul_f32 v%d, v%d, v%d', base + i, base + i, r)
                A('v_mul_f32 v%d, v%d, v%d', base + i + 1, base + i + 1, r)
    for i, (a0, a1) in enumerate(((0, 1), (2, 3), (4, 5), (6, None), (7, 8), (9, 10), (11, 12), (13, None))):
        for base in (p, e):
            A('v_cvt_pk_bf16_f32 v%d, v%d, %s', base + i, base + a0, '0' if a1 is None else 'v%d' % (base + a1))


PKSM = E('PKSM', 1)


def silu8(B, acc, e, sd, c1, out):
    for r in range(8):
        B('v_mul_f32 v%d, v%d, v%d', e + r, acc + r, c1)
        if r >= 1:
            B('v_exp_f32 v%d, v%d', e + r - 1, e + r - 1)
    B('v_exp_f32 v%d, v%d', e + 7, e + 7)
    for r in range(8):
        B('v_fma_f32 v%d, v%d, v%d, v%d', e + r, e + r, sd, sd)
        if r >= 1:
            B('v_rcp_f32 v%d, v%d', e + r - 1, e + r - 1)
    B('v_rcp_f32 v%d, v%d', e + 7, e + 7)
    for r in range(8):
        B('v_mul_f32 v%d, v%d, v%d', e + r, e + r, acc + r)
    cvt8(B, out, e, 4)


def cvt8(A, dst, src, n=8):
    for i in range(n):
        A('v_cvt_pk_bf16_f32 v%d, v%d, v%d', dst + i, src + 2 * i, src + 2 * i + 1)


def mfma(A, d, a_, b_, first=False):
    A('%s %s, %s, %s, %s', MFMA, v(d, 16), v(a_, 4), v(b_, 4), '0' if first else v(d, 16))


def merge(main, blocks, start, stop):
    idx = [i for i, l in enumerate(main) if l.strip().startswith('v_mfma')][start:stop]
    out, k = [], 0
    n = len(idx)
    pos = {i: j for j, i in enumerate(idx)}
    for i, l in enumerate(main):
        out.append(l)
        if i in pos:
            upto = (len(blocks) * (pos[i] + 1) + n - 1) // n
            for b in blocks[k:upto]:
                out += b
            k = max(k, upto)
    assert k >= len(blocks)
    return out


def sub(A):
    return Asm()


L_H = (L_A, L_A + 28672, 0, 65536)
W2S = [32768, 40960] + [L_A + k * 8192 for k in range(2)] + [L_SC0, L_SC1] + [L_A + k * 8192 for k in range(2, 7)] + [
    k * 8192 for k in range(4)] + [65536 + k * 8192 for k in range(4)]
FINE = E('FINE', 1)
W2GATE = {2: 8, 3: 16, 6: 24, 7: 32, 8: 40, 9: 48, 10: 56, 11: 64, 12: 72, 13: 80, 14: 84, 15: 92, 16: 100, 17: 108,
          18: 112} if FINE else {2: 28, 7: 56, 11: 84, 15: 112}
W2RE = dict(zip(range(19, 28), (0, 1, 2, 3, 6, 7, 8, 9, 10)))


def w2_slot(n):
    return W2S[W2RE.get(n, n)]


def w1_slot(c):
    return B16[c % 5]


class LdsQ:
    def __init__(self, A):
        self.A, self.q = A, []
        self.peeked = False

    def op(self, tag, fmt, *a):
        self.A(fmt, *a)
        self.q.append(tag)

    def need(self, tag):
        idx = [i for i, x in enumerate(self.q) if x == tag]
        if not idx:
            return None
        n = len(self.q) - 1 - idx[-1]
        self.q = self.q[idx[-1] + 1:]
        return min(n, 15)

    def wait(self, tag, vm=None):
        n = self.need(tag)
        if n is None and vm is None:
            return
        self.A('s_waitcnt' + ('' if vm is None else ' vmcnt(%d)' % vm) + ('' if n is None else ' lgkmcnt(%d)' % n))

    def stage(self, n):
        set_stage(self.A, n)
        self.q.append('st')

    def peek(self, w):
        if w == 5:
            self.op('pk', 'ds_read_b32 v%d, v%d', vPK_, vCA)
        else:
            self.op('pk', 'ds_read_b32 v%d, v%d offset:%d', vPK_, vMI, M_PW + 4 * w)
        self.peeked = True

    def take(self, w):
        if not self.peeked:
            return
        self.peeked = False
        self.wait('pk')
        self.A('v_readfirstlane_b32 s%d, v%d', CACHE[w], vPK_)


def tag_compute(A, t16=None):
    A('s_waitcnt lgkmcnt(0)')
    if t16 is not None:
        A('s_lshr_b32 s%d, s%d, 16', sT2, sTAG)
    A('s_mul_i32 s%d, s%d, 0x%x', sTAG, sTAG, 1664525)
    A('s_add_u32 s%d, s%d, 0x%x', sTAG, sTAG, 1013904223)
    A('v_mov_b32 v%d, s%d', vTAG, sTAG)
    if t16 is not None:
        A('s_and_b32 s%d, s%d, 0x3fff', t16, sTAG)
        A('s_and_b32 s%d, s%d, 0x4000', sT, sTAG)
        A('s_lshl_b32 s%d, s%d, 1', sT, sT)
        A('s_or_b32 s%d, s%d, s%d', t16, t16, sT)
        A('s_cmp_eq_u32 s%d, s%d', t16, sT2)
        A('s_cselect_b32 s%d, 1, 0', sT)
        A('s_xor_b32 s%d, s%d, s%d', t16, t16, sT)
        A('s_lshl_b32 s%d, s%d, 16', t16, t16)


def fast_check(A):
    A('s_getreg_b32 s%d, hwreg(HW_REG_XCC_ID)', sC)
    A('s_and_b32 s%d, s%d, 15', sC, sC)
    A('s_add_u32 s%d, s%d, s%d', sC, sC, sTAG)
    A('s_lshl_b32 s%d, s%d, 7', sT, sXCD)
    A('s_add_u32 s%d, s%d, %d', sT, sT, FREG)
    A('v_and_b32 v%d, 31, v%d', vT1, vL)
    A('v_lshlrev_b32 v%d, 2, v%d', vT1, vT1)
    A('buffer_load_dword v%d, v%d, s[%d:%d], s%d offen sc1', vT0, vT1, SWS, SWS + 3, sT)
    A('s_waitcnt vmcnt(0)')
    A('v_cmp_ne_u32 vcc, s%d, v%d', sC, vT0)
    A('s_cmp_eq_u64 vcc, 0')
    A('s_cselect_b32 s%d, 1, 0', sFASTF)


class Stream:
    def __init__(self, A, wave, depth, first=0):
        self.A, self.wave, self.depth = A, wave, depth
        self.items = []
        self.issued = 0
        self.known = 0
        self.n = first

    def wait_to(self, left):
        if self.issued - left <= self.known:
            return
        self.A('s_waitcnt vmcnt(%d)', left)
        self.known = self.issued - left
        last = None
        while self.items and self.items[0][1] <= self.known:
            last = self.items.pop(0)[0]
        if last is not None:
            set_stage(self.A, last)

    def room(self, k):
        self.wait_to(max(self.depth - k, 0))
        self.issued += k

    def done(self, name, cnt=None):
        self.n += 1
        assert LP.setdefault(name, (self.wave, self.n)) == (self.wave, self.n), name
        self.items.append((self.n, self.issued))

    def drain(self):
        self.drain_to(0)

    def drain_to(self, keep):
        while len(self.items) > keep:
            self.wait_to(self.issued - self.items[0][1])

    def save(self):
        return (list(self.items), self.issued, self.known)

    def restore(self, s):
        self.items, self.issued, self.known = list(s[0]), s[1], s[2]

    def dma4(self, lds, voffs, srd_, step=None, bits=''):
        A = self.A
        if isinstance(lds, tuple):
            A('s_add_u32 m0, s%d, %d', lds[0], lds[1])
        else:
            A('s_mov_b32 m0, %d', lds)
        self.room(4)
        for u in range(4):
            A('buffer_load_dwordx4 v%d, s[%d:%d], s%d offen offset:%d%s lds', voffs[u], srd_, srd_ + 3, sT, u * 1024,
              bits)
        if step:
            A('s_add_u32 s%d, s%d, %d', sT, sT, step)


def reg4(St, regs, voffs, srd_, step=None):
    St.room(4)
    for u in range(4):
        St.A('buffer_load_dwordx4 %s, v%d, s[%d:%d], s%d offen offset:%d', v(regs[u], 4), voffs[u], srd_, srd_ + 3, sT,
             u * 1024)
    if step:
        St.A('s_add_u32 s%d, s%d, %d', sT, sT, step)


def spill(St, name, regs, lds):
    A = St.A
    assert not St.items
    A('v_add_u32 v%d, %d, v%d', vT1, lds, vO)
    A('s_setprio %d', E('SPRIO', 0))
    for j, r in enumerate(regs):
        A('ds_write_b128 v%d, %s offset:%d', vT1, v(r, 4), j * 1024)
    St.n += 1
    assert LP.setdefault(name, (St.wave, St.n)) == (St.wave, St.n), name
    set_stage(A, St.n)


def off128(A, vW128, vXo=None):
    A('v_lshrrev_b32 v%d, 3, v%d', vW128, vL)
    A('v_mul_u32_u24 v%d, 896, v%d', vW128, vW128)
    A('v_and_b32 v%d, 7, v%d', vT1, vL)
    if vXo is not None:
        A('v_lshl_add_u32 v%d, v%d, 4, v%d', vXo, vT1, vW128)
        spread4(A, vXo, 8 * 896)
    A('v_lshrrev_b32 v%d, 2, v%d', vT0, vL)
    A('v_and_b32 v%d, 4, v%d', vT0, vT0)
    A('v_xor_b32 v%d, v%d, v%d', vT1, vT1, vT0)
    A('v_lshl_add_u32 v%d, v%d, 4, v%d', vW128, vT1, vW128)
    spread4(A, vW128, 8 * 896)


def off256(A, vW256):
    A('v_lshrrev_b32 v%d, 4, v%d', vW256, vL)
    A('v_mul_u32_u24 v%d, 3584, v%d', vW256, vW256)
    A('v_and_b32 v%d, 15, v%d', vT1, vL)
    A('v_lshrrev_b32 v%d, 2, v%d', vT0, vL)
    A('v_and_b32 v%d, 12, v%d', vT0, vT0)
    A('v_xor_b32 v%d, v%d, v%d', vT1, vT1, vT0)
    A('v_lshl_add_u32 v%d, v%d, 4, v%d', vW256, vT1, vW256)
    spread4(A, vW256, 4 * 3584)


def code_touch(A, dst):
    A('s_mul_i32 s%d, s%d, %d', sT, sI, 11 * 128)
    A('v_lshlrev_b32 v%d, 7, v%d', vT0, vL)
    A('v_add_u32 v%d, s%d, v%d', vT0, sT, vT0)
    A('s_mov_b64 exec, 0x7ff')
    A('global_load_dword v%d, v%d, s[%d:%d]', dst, vT0, sPC, sPC + 1)
    A('s_mov_b64 exec, -1')


def h_stream(A, first):
    wave = 7
    St = Stream(A, wave, E('HDEPTH', 24), first)
    if wave == 7:
        A('s_lshl_b32 s%d, s%d, 17', sB, sTB3)
        A('s_add_u32 s%d, s%d, %d', sB, sB, WS_HB + (0x40000000 if E('ABL', 0) & 128 else 0))
        rot_calc(A, sG, 'w1')
        for u in range(7):
            rot_idx(A, 4 + u, sG, u, 7)
            A('s_lshl_b32 s%d, s%d, 12', 4 + u, 4 + u)
            A('s_add_u32 s%d, s%d, s%d', 4 + u, 4 + u, sB)
            A('s_add_u32 s%d, s%d, 4096', 4 + u, 4 + u)
        A('s_lshl_b32 s%d, s%d, 8', sT2, sTB3)
        A('s_add_u32 s%d, s%d, %d', sT2, sT2, F3)
        A('v_lshlrev_b32 v%d, 2, v%d', vT1, vL)
        A('s_and_b32 s%d, s%d, 1', sC, sFB)
        A('s_lshl_b32 s%d, s%d, 16', sC, sC)
        HALF = E('HHALF', 1)
        sMK = sODD
        A('s_bitcmp1_b32 s%d, 0', sFB)
        A('s_cselect_b32 s%d, %s, 0x3fff3fff', sMK, '0' if HALF else '0x3fff3fff')
        A('s_cselect_b32 s%d, 0x3fff3fff, %s', sMK + 1, '0' if HALF else '0x3fff3fff')
        A('v_mov_b32 v41, v%d', vT1)

        def poll(B, done):
            lo = B.label('P')
            B('%s:', lo)
            B('buffer_load_dword v42, v41, s[%d:%d], s%d offen sc1', SWS, SWS + 3, sM0)
            B('s_waitcnt vmcnt(0)')
            B('v_cmp_ne_u32 vcc, s%d, v42', sTAG)
            spin_guard(B, done)
            B('s_and_b64 vcc, vcc, s[%d:%d]', sMK, sMK + 1)
            B('s_cbranch_scc1 %s', lo)
        A('s_mov_b32 s%d, s%d', sM0, sT2)
        if CODEPF & 4:
            wait_stage(A, 1, base=M_LD, sleep=1)
            code_touch(A, 63)
        wait_stage(A, C0 + 7, sleep=1)
        stamp(A)
        done = A.label('PD')
        poll(A, done)
        A('%s:', done)
        stamp(A)
        for gi in range(4):
            if gi == 1 and HALF:
                St.room(1)
                A('buffer_load_dword v42, v41, s[%d:%d], s%d offen sc1', SWS, SWS + 3, sM0)
                mark = St.issued
                A('s_mov_b32 s%d, 0x3fff3fff', sMK)
                A('s_mov_b32 s%d, 0x3fff3fff', sMK + 1)
            if gi == 2:
                wait_stage(A, C0 + 8)
                if HALF:
                    St.wait_to(St.issued - mark)
                    ent, back = cold_block(A, poll)
                    A('v_cmp_ne_u32 vcc, s%d, v42', sTAG)
                    A('s_and_b64 vcc, vcc, s[%d:%d]', sMK, sMK + 1)
                    A('s_cbranch_scc1 %s', ent)
                    A('%s:', back)
            if gi:
                A('s_xor_b32 s%d, s%d, %d', sC, sC, (gi ^ (gi - 1)) << 15)
            St.depth = E('HDEPTH0', 24) if gi == 0 else E('HDEPTH', 24)
            for u in range(7):
                A('s_add_u32 s%d, s%d, s%d', sT, 4 + u, sC)
                St.dma4(L_H[gi] + u * 4096, [vO] * 4, SWS, None, LDB)
                if u in HITEMS[gi > 0]:
                    St.done(('h', gi, u))
                if u == (E('HSPOS', 3) if gi == 0 else 0):
                    A('s_add_u32 s%d, s%d, s%d', sT, sB, sC)
                    St.dma4(L_SC0 + gi * 4096, [vO] * 4, SWS, None, ' sc1')
                    St.done(('hs', gi))
        St.drain()
    stamp(A)


def spread4(A, base, step):
    for u in range(1, 4):
        A('v_add_u32 v%d, %d, v%d', base + u, u * (step - 1024), base)


def wtr_base(A):
    A('v_lshrrev_b32 v%d, 5, v%d', vT1, vL)
    A('v_bfe_u32 v%d, v%d, 2, 2', vT0, vL)
    A('v_lshl_add_u32 v%d, v%d, 3, v%d', vT0, vT1, vT0)
    A('v_lshlrev_b32 v%d, 6, v%d', vT0, vT0)
    A('v_bfe_u32 v%d, v%d, 4, 1', vTT, vL)
    A('v_lshl_add_u32 v%d, v%d, 5, v%d', vT0, vTT, vT0)
    A('v_and_b32 v%d, 3, v%d', vTT, vL)
    A('v_lshl_add_u32 v%d, v%d, 3, v%d', vT0, vTT, vT0)
    for pi in range(3):
        A('v_add_u32 v%d, %d, v%d', vWA + pi, L_WP[pi], vT0)
    A('v_lshlrev_b32 v%d, 3, v%d', vCA, vL)
    A('v_add_u32 v%d, %d, v%d', vCA, L_CF, vCA)


def sel_frags(A, vID):
    A('v_lshrrev_b32 v%d, 5, v%d', vT1, vL)
    A('v_and_b32 v%d, 31, v%d', vT0, vL)
    A('v_lshlrev_b32 v%d, 2, v%d', vTT, vT1)
    A('v_sub_u32 v%d, v%d, v%d', vT0, vT0, vTT)
    A('v_mov_b32 v%d, 0x3f80', vTT)
    A('v_mov_b32 v%d, 0x3f800000', vTT + 1)
    for sidx in range(2):
        for rr in range(4):
            m = 16 * sidx + 8 * (rr >> 1) + 2 * (rr & 1)
            A('v_cmp_eq_u32 vcc, %d, v%d', m, vT0)
            A('v_cndmask_b32 v%d, 0, v%d, vcc', vID + 4 * sidx + rr, vTT)
            A('v_cmp_eq_u32 vcc, %d, v%d', m + 1, vT0)
            A('v_cndmask_b32 v%d, v%d, v%d, vcc', vID + 4 * sidx + rr, vID + 4 * sidx + rr, vTT + 1)


def read_w(A, pi, i, buf, sleep=0):
    wait_lp(A, ('W', pi, i), sleep)
    for q in range(4):
        for z in range(2):
            A('ds_read_b64_tr_b16 v[%d:%d], v%d offset:%d', buf + 4 * q + 2 * z, buf + 4 * q + 2 * z + 1,
              vWA + pi, i * 4096 + q * 1024 + z * 256)


def colsum(A, spi):
    vCS, vB_, buf = 40, 44, 48
    A('v_mov_b32 v%d, 0', vCS)
    A('v_mov_b32 v%d, 0', vCS + 1)
    A('s_cmp_eq_u32 s%d, 1', spi)
    A('s_cselect_b32 s%d, 0, %d', sT, L_WP[2])
    A('s_cmp_eq_u32 s%d, 0', spi)
    A('s_cselect_b32 s%d, %d, s%d', sT, L_WP[0], sT)
    assert L_WP[1] == 0
    A('v_add_u32 v%d, s%d, v%d', vB_, sT, vWA + 1)
    A('s_mul_i32 s%d, s%d, 7', sC, spi)
    A('s_add_u32 s%d, s%d, 7', sT2, sC)
    top, lo, ok = A.label('CS'), A.label('W'), A.label('WD')
    A('%s:', top)
    A('s_cmp_gt_u32 s%d, s%d', sPROG, sC)
    A('s_cbranch_scc1 %s', ok)
    prio(A, 0)
    A('%s:', lo)
    A('ds_read_b32 v%d, v%d offset:%d', vPW, vMI, M_PW + 16)
    A('s_waitcnt lgkmcnt(0)')
    A('v_readfirstlane_b32 s%d, v%d', sPROG, vPW)
    spin_guard(A, ok)
    A('s_cmp_gt_u32 s%d, s%d', sPROG, sC)
    again(A, 's_cbranch_scc0', lo)
    prio(A, 1)
    A('%s:', ok)
    for q in range(4):
        for z in range(2):
            A('ds_read_b64_tr_b16 v[%d:%d], v%d offset:%d', buf + 4 * q + 2 * z, buf + 4 * q + 2 * z + 1, vB_,
              q * 1024 + z * 256)
    A('ds_read_b32 v%d, v%d offset:%d', vPW, vMI, M_PW + 16)
    A('v_add_u32 v%d, 4096, v%d', vB_, vB_)
    A('s_add_u32 s%d, s%d, 1', sC, sC)
    for q in range(4):
        A('s_waitcnt lgkmcnt(%d)', 7 - 2 * q)
        for r in range(4):
            A('v_dot2c_f32_bf16 v%d, s%d, v%d', vCS + (r & 1), sONES, buf + 4 * q + r)
    A('s_waitcnt lgkmcnt(0)')
    A('v_readfirstlane_b32 s%d, v%d', sPROG, vPW)
    A('s_cmp_lt_u32 s%d, s%d', sC, sT2)
    A('s_cbranch_scc1 %s', top)
    A('v_add_f32 v%d, v%d, v%d', vCS, vCS, vCS + 1)
    hilo_c(A, vCS, vCS + 2, vT0)
    A('s_lshl_b32 s%d, s%d, 9', sT, spi)
    A('v_add_u32 v%d, s%d, v%d', vB_, sT, vCA)
    A('ds_write_b64 v%d, v[%d:%d]', vB_, vCS + 2, vCS + 3)


ROT = E('ROT', 1)
HITEMS = ((1, 3, 5, 6), (1, 3, 6))
W7ST = 0
LATE = E('LATE', 0)
W2R = E('W2R', 0)


def rot_calc(A, dst, kind):
    if not ROT:
        A('s_mov_b32 s%d, 0', dst)
        return
    if kind == 'w1':
        A('s_and_b32 s%d, s%d, 1', dst, sTB3)
        A('s_mul_i32 s%d, s%d, %d', dst, dst, 4 if LATE else 3)
        mod = 7
    elif kind == 'wo':
        A('s_and_b32 s%d, s%d, 3', dst, sTQ)
        A('s_lshl_b32 s%d, s%d, 1', dst, dst)
        mod = 7
    else:
        A('s_and_b32 s%d, s%d, 3', dst, sTQ)
        A('s_mul_i32 s%d, s%d, 7', dst, dst)
        A('s_lshr_b32 s%d, s%d, 1', dst, dst)
        mod = 14
    A('s_add_u32 s%d, s%d, s%d', dst, dst, sXCD)
    if kind == 'w1' and E('ROTFB', 1):
        A('s_lshr_b32 s%d, s%d, 1', sT, sFB)
        A('s_add_u32 s%d, s%d, s%d', dst, dst, sT)
        A('s_mul_i32 s%d, s%d, 37', sT, dst)
        A('s_lshr_b32 s%d, s%d, 8', sT, sT)
        A('s_mul_i32 s%d, s%d, 7', sT, sT)
        A('s_sub_u32 s%d, s%d, s%d', dst, dst, sT)
        return
    A('s_cmp_ge_u32 s%d, %d', dst, mod)
    A('s_cselect_b32 s%d, %d, 0', sT, mod)
    A('s_sub_u32 s%d, s%d, s%d', dst, dst, sT)


def rot_idx(A, dst, rot, j, mod):
    A('s_add_u32 s%d, s%d, %d', dst, rot, j)
    A('s_cmp_ge_u32 s%d, %d', dst, mod)
    A('s_cselect_b32 s%d, %d, 0', sT2, mod)
    A('s_sub_u32 s%d, s%d, s%d', dst, dst, sT2)


def blk_init(A, sb, sst, kh):
    A('s_and_b32 s%d, s%d, 1', sb, sTQ)
    if isinstance(kh, str):
        A('s_xor_b32 s%d, s%d, %s', sb, sb, kh)
    elif kh:
        A('s_xor_b32 s%d, s%d, 1', sb, sb)
    A('s_lshr_b32 s%d, s%d, 1', sT, sTQ)
    A('s_xor_b32 s%d, s%d, s%d', sT, sT, sXCD)
    A('s_sub_u32 s%d, 6, s%d', sT2, sb)
    A('s_bitcmp1_b32 s%d, 0', sT)
    A('s_cselect_b32 s%d, s%d, s%d', sb, sT2, sb)
    A('s_cselect_b32 s%d, 5, 2', sst)


def blk_next(A, sb, sst):
    A('s_add_u32 s%d, s%d, s%d', sb, sb, sst)
    A('s_cmp_ge_u32 s%d, 7', sb)
    A('s_cselect_b32 s%d, 7, 0', sT2)
    A('s_sub_u32 s%d, s%d, s%d', sb, sb, sT2)


def rest_srds(A):
    A('s_add_u32 s82, s80, %d', FEP)
    A('s_addc_u32 s83, s81, 0')
    A('s_load_dword s%d, s[82:83], 0', sTAG)
    srd(A, SP, 68, H * DH * DH * 2)
    A('s_mul_i32 s%d, s%d, 37', sTQ, sI)
    A('s_lshr_b32 s%d, s%d, 8', sTQ, sTQ)
    A('s_mul_i32 s%d, s%d, 7', sNB, sTQ)
    A('s_sub_u32 s%d, s%d, s%d', sNB, sI, sNB)
    A('s_lshr_b32 s%d, s%d, 1', sTB3, sTQ)
    A('s_mul_i32 s%d, s%d, 14', sFB, sTB3)
    A('s_sub_u32 s%d, s%d, s%d', sFB, sI, sFB)
    A('s_lshl2_add_u32 s%d, s%d, s%d', sTQ, sXCD, sTQ)
    A('s_lshl1_add_u32 s%d, s%d, s%d', sTB3, sXCD, sTB3)
    A('v_lshlrev_b32 v%d, 4, v%d', vO, vL)
    A('s_mov_b32 s%d, 0', sFASTF)
    A('s_mov_b32 s%d, 0x%x', sONES, ONES)
    ABL = E('ABL', 0)
    srd(A, SWO, 70, 0 if ABL & 1 else D * D * 2)
    srd(A, SW1, 74, 0 if ABL & 2 else D * F * 2)
    srd(A, SW2, 76, 0 if ABL & 4 else D * F * 2)
    srd(A, SOUT, 78, S * D * 2)
    srd(A, SWS, 80, WS_SIZE)


def rot_next(A):
    A('s_add_u32 s%d, s%d, 1', sC, sC)
    A('s_cmp_eq_u32 s%d, 7', sC)
    A('s_cselect_b32 s%d, 0, s%d', sC, sC)


def sig_dyn(A, sval):
    A('v_mov_b32 v%d, s%d', vT0, sval)
    A('ds_write_b32 v%d, v%d', vMY, vT0)


def x_offsets(A):
    A('v_lshrrev_b32 v%d, 3, v%d', vT0, vL)
    A('v_mul_u32_u24 v%d, 896, v%d', vT0, vT0)
    A('v_lshrrev_b32 v%d, 4, v%d', vT1, vL)
    A('v_and_b32 v%d, 7, v%d', vXD, vL)
    A('v_xor_b32 v%d, v%d, v%d', vXD, vXD, vT1)
    A('v_xor_b32 v%d, 4, v%d', vXD + 1, vXD)
    A('v_lshl_add_u32 v%d, v%d, 4, v%d', vXD, vXD, vT0)
    A('v_lshl_add_u32 v%d, v%d, 4, v%d', vXD + 1, vXD + 1, vT0)
    A('v_add_u32 v%d, %d, v%d', vXD + 1, 8 * 896 - 1024, vXD + 1)
    A('v_add_u32 v%d, %d, v%d', vXD + 2, 2 * (8 * 896 - 1024), vXD)
    A('v_add_u32 v%d, %d, v%d', vXD + 3, 2 * (8 * 896 - 1024), vXD + 1)
    A('s_mul_i32 s%d, s%d, %d', sXB, sTB, 0 if E('AB2', 0) & 16 else 128 * 896)


def w_offsets(A):
    vW = 40
    A('v_lshrrev_b32 v%d, 2, v%d', vW, vL)
    A('v_mul_u32_u24 v%d, 2688, v%d', vW, vW)
    A('v_and_b32 v%d, 3, v%d', vT1, vL)
    A('v_lshl_add_u32 v%d, v%d, 4, v%d', vW, vT1, vW)
    A('s_mul_i32 s%d, s%d, %d', sT, sH, 0 if E('AB2', 0) & 8 else 56)
    A('s_and_b32 s%d, s%d, 0xfffffff0', sT, sT)
    A('v_add_u32 v%d, s%d, v%d', vW, sT, vW)
    spread4(A, vW, 16 * 2688)


def early_x(A):
    depth = E('XDEPTH', 20)
    wsig = ((depth - 4) // 4) % 4
    lag = (depth - 4 - 4 * wsig) // 16
    A('s_mov_b32 s%d, %d', sG, 1 - lag)
    A('s_mov_b32 m0, %d', L_X + 16384)
    A('s_mov_b32 s%d, s%d', sC, sC0)
    rot_next(A)
    top = A.label('XL')
    A('%s:', top)
    A('s_lshl_b32 s%d, s%d, 7', sT, sC)
    A('s_add_u32 s%d, s%d, s%d', sT, sT, sXB)
    for w in range(4):
        A('s_waitcnt vmcnt(%d)', depth - 4)
        if w == wsig:
            A('s_max_i32 s%d, s%d, 0', sT2, sG)
            sig_dyn(A, sT2)
        for u in range(4):
            A('buffer_load_dwordx4 v%d, s[%d:%d], s%d offen offset:%d lds', vXD + u, SX, SX + 3, sT, u * 1024)
        A('s_add_u32 m0, m0, 4096')
        if w < 3:
            A('s_add_u32 s%d, s%d, %d', sT, sT, 32 * 896)
    nb = A.label('NB')
    A('s_cmp_lg_u32 s%d, %d', sG, 1 - lag)
    A('s_cbranch_scc1 %s', nb)
    A('s_barrier')
    A('%s:', nb)
    rot_next(A)
    A('s_add_u32 s%d, s%d, 1', sG, sG)
    A('s_cmp_lt_i32 s%d, %d', sG, 7 - lag)
    A('s_cbranch_scc1 %s', top)
    stamp(A)
    for n in range(7 - lag, 8):
        A('s_waitcnt vmcnt(%d)', 16 * (7 - n))
        set_stage(A, n)


def early_w(A):
    vW = 40

    def part_loop(pi, depth, floor):
        lag = (depth - 4) // 4
        stamp(A)
        A('s_mov_b32 s%d, s%d', sC, sC0)
        A('s_mov_b32 s%d, %d', sG, 7 * pi - lag)
        A('s_mov_b32 m0, %d', L_WP[pi])
        top = A.label('WL')
        A('%s:', top)
        A('s_mul_i32 s%d, s%d, %d', sT, sC, 64 * 2688)
        A('s_add_u32 s%d, s%d, %d', sT, sT, (1, 2, 0)[pi] * 896)
        A('s_max_i32 s%d, s%d, %d', sT2, sG, floor)
        A('s_waitcnt vmcnt(%d)', depth - 4)
        sig_dyn(A, sT2)
        for u in range(4):
            A('buffer_load_dwordx4 v%d, s[%d:%d], s%d offen offset:%d lds', vW + u, SW, SW + 3, sT, u * 1024)
        A('s_add_u32 m0, m0, 4096')
        nb = A.label('NB')
        A('s_cmp_lg_u32 s%d, 0', sG)
        A('s_cbranch_scc1 %s', nb)
        A('s_barrier')
        A('%s:', nb)
        rot_next(A)
        A('s_add_u32 s%d, s%d, 1', sG, sG)
        A('s_cmp_lt_i32 s%d, %d', sG, 7 * pi + 7 - lag)
        A('s_cbranch_scc1 %s', top)
        return lag
    lag = part_loop(0, E('WDEPTH', 12), 0)
    for n in range(7 - lag, 8):
        A('s_waitcnt vmcnt(%d)', 4 * (7 - n))
        set_stage(A, n)


def gen_h0(A):
    St = Stream(A, 4, E('WDEPTH2', 24), 7)
    vW, vW128, vXo, vW256 = 36, 12, 16, 20
    q4 = lambda b: [b, b + 1, b + 2, b + 3]
    for u in range(4):
        A('v_mov_b32 v%d, v%d', vW + u, 40 + u)
    rest_srds(A)
    off128(A, vW128)
    off256(A, vW256)
    A('s_lshl_b32 s%d, s%d, 7', sB, sNB)
    sR1, sRO = sG, sKH
    rot_calc(A, sR1, 'w1')
    rot_calc(A, sRO, 'wo')
    sBK, sBS = [8, 9], 10
    blk_init(A, sBK[0], sBS, 0)
    blk_init(A, sBK[1], sBS, 1)

    def wpart(pi):
        wait_stage(A, pi)
        if pi == 1 and E('XG2', 4) >= 0:
            wait_lp(A, ('x', E('XG2', 4)))
        stamp(A)
        if E('W4PRIO', -1) >= 0:
            A('s_setprio %d', E('W4PRIO', -1))
        for i in range(7):
            St.depth = E('WVDEPTH', 24) if (pi == 1 or i >= 3) else E('WDEPTH2', 24)
            rot_idx(A, sT, sC0, i, 7)
            A('s_mul_i32 s%d, s%d, %d', sT, sT, 64 * 2688)
            if pi == 1:
                A('s_add_u32 s%d, s%d, %d', sT, sT, 2 * 896)
            St.dma4(L_WP[pi] + i * 4096, q4(vW), SW)
            St.done(('W', pi, i))

    def wq():
        wpart(2)
    wpart(1)
    St.drain_to(E('WVKEEP', 7))
    lend = A.label('LEND')
    act = A.label('ACT')
    A('s_cmp_lt_u32 s%d, 28', sI)
    A('s_cbranch_scc1 %s', act)
    keep, n0 = St.save(), _st['n']
    wq()
    St.drain()
    St.restore(keep)
    St.n = 14
    if E('TOUCH', 1):
        def touch(srd_, base, per_xcd, n):
            A('s_mul_i32 s%d, s%d, %d', sT, sXCD, per_xcd)
            A('s_sub_u32 s%d, s%d, 28', sT2, sI)
            A('s_mul_i32 s%d, s%d, %d', sT2, sT2, n * 8192)
            A('s_add_u32 s%d, s%d, s%d', sT, sT, sT2)
            A('s_add_u32 s%d, s%d, %d', sT, sT, base)
            A('s_mov_b32 s%d, %d', sC, n)
            lo = A.label('T')
            A('%s:', lo)
            A('buffer_load_dword v%d, v%d, s[%d:%d], s%d offen sc1', vW + 1, vW, srd_, srd_ + 3, sT)
            A('s_add_u32 s%d, s%d, 8192', sT, sT)
            A('s_waitcnt vmcnt(%d)', E('TDEPTH', 6))
            A('s_sub_u32 s%d, s%d, 1', sC, sC)
            A('s_cmp_lg_u32 s%d, 0', sC)
            A('s_cbranch_scc1 %s', lo)
        A('v_lshlrev_b32 v%d, 7, v%d', vW, vL)
        if E('W2M', 1) == 2:
            touch(SW2, 0, 4 * 7 * 8192, 7)
        if E('TEARLY', 0):
            wait_stage(A, 3, (5, 6), sleep=2)
        else:
            wait_stage(A, C0 + 5, sleep=2)
        stamp(A)
        if HLATE and not WTO:
            touch(SWS, WS_HB, 262144, 8)
        if E('W2M', 1) == 1:
            touch(SW2, 0, 4 * 7 * 8192, 7)
        stamp(A)
        if not WT1:
            touch(SWS, WS_H1B, 8 * 112 * 1024, 28)
        if WT1 == 2:
            A('s_lshl2_add_u32 s%d, s%d, s%d', sG, sXCD, sI)
            A('s_sub_u32 s%d, s%d, 28', sG, sG)
            A('s_and_b32 s%d, s%d, 1', sT, sG)
            A('s_xor_b32 s%d, s%d, 1', sT, sT)
            A('s_lshl_b32 s%d, s%d, 13', sT, sT)
            A('s_mul_i32 s%d, s%d, %d', sT2, sG, 224 * 1024)
            A('s_add_u32 s%d, s%d, s%d', sT, sT, sT2)
            A('s_add_u32 s%d, s%d, %d', sT, sT, WS_H1B)
            for b in range(14):
                A('buffer_load_dword v%d, v%d, s[%d:%d], s%d offen sc1', vW + 1, vW, SWS, SWS + 3, sT)
                A('s_add_u32 s%d, s%d, 16384', sT, sT)
                A('s_waitcnt vmcnt(%d)', E('TDEPTH', 6))
        stamp(A)
        if E('W2WARM', 0):
            touch(SW2, 0, 0, 49)
        stamp(A)
        if E('WB3', 0):
            tag_compute(A)
            skipw = A.label('NW')
            A('s_cmp_lg_u32 s%d, 28', sI)
            A('s_cbranch_scc1 %s', skipw)
            A('s_lshl_b32 s%d, s%d, 9', sC, sXCD)
            A('s_add_u32 s%d, s%d, %d', sC, sC, F3)
            poll_global(A, sC, 0x3fff3fff3fff3fff)
            A('s_add_u32 s%d, s%d, 256', sC, sC)
            poll_global(A, sC, 0x3fff3fff3fff3fff)
            if E('WB3SLP', 0):
                A('s_sleep %d', E('WB3SLP', 0))
            A('buffer_wbl2 sc1')
            A('s_waitcnt vmcnt(0)')
            A('%s:', skipw)
        if E('H1PF', 0) and WT1:
            tag_compute(A)
            A('s_lshl2_add_u32 s%d, s%d, s%d', sG, sXCD, sI)
            A('s_sub_u32 s%d, s%d, 28', sG, sG)
            A('s_lshl_b32 s%d, s%d, 8', sM0, sG)
            A('s_add_u32 s%d, s%d, %d', sM0, sM0, F4)
            A('v_lshlrev_b32 v%d, 2, v%d', vW + 2, vL)
            A('s_bitcmp1_b32 s%d, 0', sG)
            A('s_mov_b32 s8, 0x0f0f0f0f')
            A('s_mov_b32 s9, 0x000f0f0f')
            A('s_cselect_b32 s8, 0xf0f0f0f0, s8')
            A('s_cselect_b32 s9, 0x00f0f0f0, s9')
            for ph in range(E('H1PF', 0)):
                lo, done = A.label('P'), A.label('PD')
                if ph == 0:
                    A('s_mov_b64 exec, s[8:9]')
                else:
                    A('s_mov_b32 exec_hi, 0xffffff')
                A('%s:', lo)
                A('buffer_load_dword v%d, v%d, s[%d:%d], s%d offen sc1', vT1, vW + 2, SWS, SWS + 3, sM0)
                A('s_waitcnt vmcnt(0)')
                A('v_cmp_ne_u32 vcc, s%d, v%d', sTAG, vT1)
                spin_guard(A, done)
                again(A, 's_cbranch_vccnz', lo, 2)
                A('%s:', done)
                A('s_mov_b64 exec, -1')
                A('s_and_b32 s%d, s%d, 1', sT, sG)
                if ph:
                    A('s_xor_b32 s%d, s%d, 1', sT, sT)
                A('s_lshl_b32 s%d, s%d, 13', sT, sT)
                A('s_mul_i32 s%d, s%d, %d', sT2, sG, 224 * 1024)
                A('s_add_u32 s%d, s%d, s%d', sT, sT, sT2)
                A('s_add_u32 s%d, s%d, %d', sT, sT, WS_H1B)
                for b in (1, 5, 2, 4, 0, 6, 3):
                    for g_ in range(2):
                        A('s_add_u32 s%d, s%d, %d', sT2, sT, b * 16384 + g_ * 112 * 1024)
                        A('buffer_load_dword v%d, v%d, s[%d:%d], s%d offen sc1', vW + 1, vW, SWS, SWS + 3, sT2)
    _st['n'] = n0
    A('s_branch %s', lend)
    A('%s:', act)

    def w1_off(c):
        rot_idx(A, sT, sR1, c, 7)
        A('s_mul_i32 s%d, s%d, %d', sT, sT, 64 * 3584)
        if not E('AB2', 0) & 2:
            A('s_lshl_b32 s%d, s%d, 8', sT2, sFB)
            A('s_add_u32 s%d, s%d, s%d', sT, sT, sT2)

    def w1_chunk(c):
        w1_off(c)
        for u in range(4):
            St.dma4(w1_slot(c) + u * 4096, q4(vW256), SW1, 16 * 3584 if u < 3 else None)
        St.done(('w1', c), 16)

    def w2_item(n):
        c, kh = n >> 1, n & 1
        A('s_mul_i32 s%d, s%d, %d', sT, sBK[kh], 128 * 896)
        if not E('AB2', 0) & 4:
            A('s_add_u32 s%d, s%d, s%d', sT, sT, sB)
        if kh or (c & 1):
            A('s_add_u32 s%d, s%d, %d', sT, sT, (kh * 896 + (c & 1) * 64) * 896)
        if c & 1:
            blk_next(A, sBK[kh], sBS)
        for u in range(2):
            St.dma4(w2_slot(n) + u * 4096, q4(vW128), SW2, 32 * 896 if u < 1 else None)
        St.done(('w2', n), 8)

    SR = [24, 28] + list(range(40, 256, 4))

    def staged(c0=0, c1=3):
        for u in range(4 * c0, 4 * c1):
            St.depth = min(E('WDEPTH2', 24), E('WVDEPTH', 24) + 4 * (u + 1 - 4 * c0))
            if u % 4 == 0:
                w1_off((0 if LATE else 4) + u // 4)
            reg4(St, SR[8 + 4 * u:12 + 4 * u], q4(vW256), SW1, 16 * 3584)

    def wo():
        St.drain_to(3)
        wait_stage(A, 3)
        wait_word(A, 5, 1)
        stamp(A)
        for c in range(7):
            rot_idx(A, sC, sRO, c, 7)
            A('s_mul_i32 s%d, s%d, %d', sT, sC, 64 * 896)
            if not E('AB2', 0) & 1:
                A('s_add_u32 s%d, s%d, s%d', sT, sT, sB)
            A('s_lshl_b32 s%d, s%d, 13', sC, sC)
            for u in range(2):
                St.dma4((sC, L_A + u * 4096), q4(vW128), SWO, 32 * 896 if u < 1 else None)
            if c == 2:
                St.depth = E('LDEPTH', 32)
        St.done('wo')
    staged(0, E('NSQ', 2))
    wq()
    staged(E('NSQ', 2), 3)
    wo()
    stamp(A)
    wait_stage(A, 2, (5, 6))
    stamp(A)
    if LATE:
        n3 = St.n
        St.n += 3
        w1_chunk(3)
        St.items, it3 = St.items[:-1], St.items[-1]
        St.drain()
        St.wait_to(16)
        St.n = n3
        for c in range(3):
            spill(St, ('w1', c), SR[8 + 16 * c:24 + 16 * c], w1_slot(c))
        St.n += 1
        St.items = [it3]
        St.drain()
        stamp(A)
        wait_stage(A, C0 + 3)
        wait_word(A, 7, 9)
        wait_stage(A, 1, base=M_CP)
        if LATE == 1:
            wait_stage(A, 1, base=M_LD)
        elif LATE == 2:
            wait_stage(A, 3, (5, 6))
        St.depth = E('LATEDEPTH', 20)
        for c in (4, 5, 6):
            w1_chunk(c)
        St.drain()
    else:
        for c in range(4):
            w1_chunk(c)
        St.drain()
        St.wait_to(0)
        stamp(A)
        wait_stage(A, C0 + 3)
        wait_word(A, 7, 9)
        spill(St, ('w1', 4), SR[8:24], w1_slot(4))
        wait_stage(A, 1, base=M_CP)
        spill(St, ('w1', 5), SR[24:40], w1_slot(5))
        spill(St, ('w1', 6), SR[40:56], w1_slot(6))
    stamp(A)
    wait_stage(A, C0 + 8, sleep=2)
    wait_lp(A, ('h', E('W2AFTER', 2), E('W2AFTERQ', 1)), 1)
    stamp(A)
    St.depth = E('W2DEPTH', 32)
    A('s_mov_b32 s%d, 0', sXB)
    for n in range(28):
        if n in W2GATE:
            wait_stage(A, W2GATE[n] // 2, base=M_LD, cache=sXB)
        if n == 4:
            wait_stage(A, 5, (5, 6))
        if n == 19:
            stamp(A)
            St.depth = E('W2DEPTH3', 32)
        if n >= 19:
            m = W2RE[n]
            wait_stage(A, C0 + 13 + (m >> 1), (0, 1) if (m & 1) == 0 else (2, 3))
        w2_item(n)
    St.drain()
    stamp(A)
    A('%s:', lend)
    A('s_waitcnt lgkmcnt(0)')
    stamp_flush(A)
    A('s_endpgm')


def gen_h1(A):
    stamp(A)
    rest_srds(A)
    wtr_base(A)
    tag_compute(A)
    def extras():
        if CODEPF & 2:
            code_touch(A, 63)
        if WARM:
            for srd_, size in ((SWO, D * D * 2), (SW1, D * F * 2), (SW2, D * F * 2)):
                A('s_mul_i32 s%d, s2, %d', sT, size // 256)
                A('v_lshlrev_b32 v%d, 7, v%d', vT1, vL)
                A('s_mov_b64 exec, 0x%x', (1 << ((size // 256 + 127) // 128)) - 1) if size // 256 < 4096 else None
                if size // 256 >= 4096:
                    A('s_mov_b32 exec_hi, 0x%x', (1 << ((size // 256 + 127) // 128 - 32)) - 1)
                A('buffer_load_dword v63, v%d, s[%d:%d], s%d offen', vT1, srd_, srd_ + 3, sT)
                A('s_mov_b64 exec, -1')
        if E('FT', 3) & 2:
            nf = A.label('NF')
            A('s_cmp_lt_u32 s%d, 28', sI)
            A('s_cbranch_scc1 %s', nf)
            A('v_lshlrev_b32 v%d, 7, v%d', vT1, vL)
            A('s_mov_b64 exec, 0xf')
            for base, sh in ((F2, 9), (F3, 9), (F4, 10)):
                A('s_lshl_b32 s%d, s%d, %d', sT, sXCD, sh)
                A('s_add_u32 s%d, s%d, %d', sT, sT, base)
                A('buffer_load_dword v63, v%d, s[%d:%d], s%d offen sc1', vT1, SWS, SWS + 3, sT)
                A('s_mov_b64 exec, 0x%x', 0xf if base == F2 else 0xff)
            A('s_mov_b64 exec, -1')
            A('%s:', nf)
        if E('TOUCH', 1) and not WTO:
            A('s_lshl_b32 s%d, s%d, 18', sT, sXCD)
            A('s_lshl_b32 s%d, s%d, 13', sT2, sI)
            A('s_add_u32 s%d, s%d, s%d', sT, sT, sT2)
            A('v_lshlrev_b32 v%d, 7, v%d', vT1, vL)
            for base in ([WS_OB] if MAP == 0 else []) + ([] if HLATE else [WS_HB]):
                A('s_add_u32 s%d, s%d, %d', sT2, sT, base)
                A('buffer_load_dword v63, v%d, s[%d:%d], s%d offen sc1', vT1, SWS, SWS + 3, sT2)

    if TOUCHAT == 0:
        extras()
    A('s_mov_b32 s%d, 1', sG)
    off256(A, 20)
    rot_calc(A, sXB, 'w1')
    cs, cs2 = A.label('CSL'), A.label('CSM')
    St = Stream(A, 7, E('W7DEPTH', 16), 9)

    def stage7():
        for u in range(4 * W7ST):
            if u % 4 == 0:
                rot_idx(A, sT, sXB, u // 4, 7)
                A('s_mul_i32 s%d, s%d, %d', sT, sT, 64 * 3584)
                A('s_lshl_b32 s%d, s%d, 8', sT2, sFB)
                A('s_add_u32 s%d, s%d, s%d', sT, sT, sT2)
            reg4(St, [64 + 16 * u + 4 * k for k in range(4)], [20, 21, 22, 23], SW1, 16 * 3584)
    A('%s:', cs)
    colsum(A, sG)
    A('s_add_u32 s%d, s%d, 7', sT, sG)
    sig_dyn(A, sT)
    A('s_add_u32 s%d, s%d, 1', sG, sG)
    A('s_cmp_eq_u32 s%d, 3', sG)
    A('s_cbranch_scc1 %s', cs2)
    stamp(A)
    A('s_cmp_ge_u32 s%d, 28', sI)
    A('s_cbranch_scc1 %s', cs)
    stage7()
    A('s_branch %s', cs)
    A('%s:', cs2)
    if TOUCHAT == 2:
        extras()
    stamp(A)
    lend = A.label('LEND')
    A('s_cmp_ge_u32 s%d, 28', sI)
    A('s_cbranch_scc1 %s', lend)
    if W7ST:
        A('s_waitcnt vmcnt(%d)', 1 if TOUCHAT == 2 and not WARM else 0)
        wait_stage(A, 2, (5, 6))
        for c in range(W7ST):
            spill(St, ('w1', c), [64 + 64 * c + 4 * k for k in range(16)], w1_slot(c))
        stamp(A)
    h_stream(A, 9 + W7ST)
    A('%s:', lend)
    A('s_waitcnt lgkmcnt(0)')
    stamp_flush(A)
    A('s_endpgm')


def gen_h23(A):
    vID, vAF, vVF, vAC, vG = 64, 72, 104, 136, 72
    rest_srds(A)
    if SHST:
        a_, b_ = 104, 105
        n6 = A.label('N6')
        A('s_cmp_lg_u32 s%d, 6', sWV)
        A('s_cbranch_scc1 %s', n6)
        A('v_mov_b32 v%d, 0', a_)
        A('v_mov_b32 v%d, 0', b_)
        A('s_lshl_b32 s%d, s%d, 11', sT, sTB)
        A('s_lshl_b32 s%d, s%d, 7', sT2, sH)
        A('s_add_u32 s%d, s%d, s%d', sT, sT, sT2)
        A('s_add_u32 s%d, s%d, %d', sT, sT, FLN)
        A('v_lshlrev_b32 v106, 1, v%d', vL)
        A('s_waitcnt vmcnt(0)')
        for r in range(28):
            A('v_dot2c_f32_bf16 v%d, s%d, v%d', a_, sONES, 76 + r)
            A('v_dot2c_f32_bf16 v%d, v%d, v%d', b_, 76 + r, 76 + r)
        for mod in ('quad_perm:[1,0,3,2]', 'quad_perm:[2,3,0,1]', 'row_half_mirror'):
            for r in (a_, b_):
                A('v_add_f32_dpp v%d, v%d, v%d %s row_mask:0xf bank_mask:0xf', r, r, r, mod)
        A('v_mul_f32 v%d, 0x%x, v%d', a_, 0x3b124925, a_)
        A('v_mul_f32 v%d, 0x%x, v%d', b_, 0x3b124925, b_)
        A('v_fma_f32 v%d, -v%d, v%d, v%d', b_, a_, a_, b_)
        A('v_max_f32 v%d, 0, v%d', b_, b_)
        A('v_add_f32 v%d, 0x%x, v%d', b_, 0x3727c5ac, b_)
        A('v_rsq_f32 v109, v%d', b_)
        A('v_sub_f32 v108, 0, v%d', a_)
        A('s_waitcnt lgkmcnt(0)')
        A('s_mul_i32 s%d, s%d, 0x%x', sT2, sTAG, 1664525)
        A('s_add_u32 s%d, s%d, 0x%x', sT2, sT2, 1013904223)
        A('v_mov_b32 v110, s%d', sT2)
        A('v_mov_b32 v111, s%d', sT2)
        A('s_mov_b32 exec_lo, 0x01010101')
        A('s_mov_b32 exec_hi, 0x01010101')
        A('buffer_store_dwordx4 v[108:111], v106, s[%d:%d], s%d offen sc1', SWS, SWS + 3, sT)
        A('s_mov_b64 exec, -1')
        stamp(A, 'ln')
        A('%s:', n6)
    sTL = sKH
    A('s_sub_u32 s%d, s%d, 5', sTL, sWV)
    skip = A.label('NOST')
    A('s_cmp_eq_u32 s%d, 1', sTL)
    A('s_cbranch_scc1 %s', skip)
    A('s_mul_i32 s%d, s%d, 1568', sT, sH)
    A('s_mov_b32 m0, %d', L_PHI)
    A('buffer_load_dwordx4 v%d, s[%d:%d], s%d offen lds', vO, SP, SP + 3, sT)
    A('buffer_load_dwordx4 v%d, s[%d:%d], s%d offen offset:1024 lds', vO, SP, SP + 3, sT)
    if CODEPF & 1:
        code_touch(A, 72)
    A('%s:', skip)
    if E('TLB', 0):
        A('v_lshlrev_b32 v%d, 20, v%d', vT1, vL)
        A('s_lshl_b32 s%d, s%d, 7', sT, sI)
        for srd_ in (SWS, SOUT, SWO, SW1, SW2):
            A('buffer_load_dword v73, v%d, s[%d:%d], s%d offen', vT1, srd_, srd_ + 3, sT)
    wtr_base(A)
    sel_frags(A, vID)
    sT16 = sZA
    tag_compute(A, sT16)
    if FAST:
        skip = A.label('NORG')
        A('s_cmp_eq_u32 s%d, 0', sTL)
        A('s_cbranch_scc1 %s', skip)
        A('s_getreg_b32 s%d, hwreg(HW_REG_XCC_ID)', sT2)
        A('s_and_b32 s%d, s%d, 15', sT2, sT2)
        A('s_add_u32 s%d, s%d, s%d', sT2, sT2, sTAG)
        A('v_mov_b32 v%d, s%d', vT0, sT2)
        A('s_lshl_b32 s%d, s%d, 7', sT, sXCD)
        A('s_lshl_b32 s%d, s%d, 2', sT2, sI)
        A('s_add_u32 s%d, s%d, s%d', sT, sT, sT2)
        A('s_add_u32 s%d, s%d, %d', sT, sT, FREG)
        A('s_mov_b64 exec, 1')
        A('buffer_store_dword v%d, v%d, s[%d:%d], s%d offen sc1', vT0, vO, SWS, SWS + 3, sT)
        A('s_mov_b64 exec, -1')
        A('%s:', skip)
    six, both = A.label('SIX'), A.label('BOTH')
    A('s_cmp_eq_u32 s%d, 1', sTL)
    A('s_cbranch_scc1 %s', six)
    colsum(A, sTL)
    A('s_waitcnt vmcnt(0)')
    A('s_branch %s', both)
    A('%s:', six)
    A.lines.append(';ITOUCH')
    if SHST:
        A('s_lshl_b32 s%d, s%d, 11', sC, sTB)
        A('s_add_u32 s%d, s%d, %d', sC, sC, FLN)
        A('v_lshlrev_b32 v84, 3, v%d', vL)
        A('v_add_u32 v84, %d, v84', L_EX + 1024)
        A('v_lshlrev_b32 v85, 2, v%d', vL)
        A('v_add_u32 v85, %d, v85', L_RSTD)
        lo, done = A.label('P'), A.label('PD')
        A('%s:', lo)
        for u in range(2):
            A('buffer_load_dwordx4 %s, v%d, s[%d:%d], s%d offen offset:%d sc1', v(76 + 4 * u, 4), vO, SWS, SWS + 3, sC,
              u * 1024)
        A('s_waitcnt vmcnt(0)')
        A('v_cmp_ne_u32 vcc, s%d, v78', sTAG)
        A('v_cmp_ne_u32 s[4:5], s%d, v82', sTAG)
        spin_guard(A, done)
        A('s_or_b64 vcc, vcc, s[4:5]')
        again(A, 's_cbranch_scc1', lo, E('LNSLP', 2))
        A('%s:', done)
        for u in range(2):
            A('ds_write_b64 v84, v[%d:%d] offset:%d', 76 + 4 * u, 77 + 4 * u, u * 512)
            A('ds_write_b32 v85, v%d offset:%d', 77 + 4 * u, u * 256)
        set_stage(A, 1)
        stamp(A, 'ln')
    if E('IW', 6):
        ni = A.label('NI')
        A('s_cmp_lt_u32 s%d, 28', sI)
        A('s_cbranch_scc1 %s', ni)
        if E('IWAT', -1) >= 1:
            wait_lp(A, ('x', E('IWAT', -1)), 1)
        A('s_lshl2_add_u32 s%d, s%d, s%d', sC, sXCD, sI)
        A('s_sub_u32 s%d, s%d, 28', sC, sC)
        A('v_lshlrev_b32 v%d, 7, v%d', vT1, vL)
        for bit, srd_, n in ((4, SW, 5), (1, SW1, 7), (2, SWO, 2)):
            if E('IW', 6) & bit:
                A('s_mul_i32 s%d, s%d, %d', sT, sC, n * 8192)
                for u in range(n):
                    A('buffer_load_dword v73, v%d, s[%d:%d], s%d offen', vT1, srd_, srd_ + 3, sT)
                    A('s_add_u32 s%d, s%d, 8192', sT, sT)
        A('%s:', ni)
    if FAST:
        wait_lp(A, ('x', 6), 2)
        fast_check(A)
        A('v_mov_b32 v%d, s%d', vT0, sFASTF)
        A('ds_write_b32 v%d, v%d offset:%d', vMI, vT0, M_FAST)
    A('%s:', both)
    set_stage(A, 1)
    stamp(A)
    A('s_lshl_b32 s%d, s%d, 11', sT2, sTL)
    A('v_add_u32 v%d, s%d, v%d', vTT, sT2, vO)
    A('v_add_u32 v%d, %d, v%d', vTT + 1, L_KVA, vTT)
    A('v_add_u32 v%d, %d, v%d', vTT + 2, L_KVV, vO)
    A('s_lshl_b32 s%d, s%d, 16', sXB, sH)
    A('s_add_u32 s%d, s%d, s%d', sXB, sXB, sT2)
    A('s_add_u32 s%d, s%d, %d', sXB, sXB, WS_KVP)
    A('s_lshl_b32 s%d, s%d, 12', sB, sTB)
    A('s_add_u32 s%d, s%d, s%d', sB, sB, sXB)
    A('s_lshl_b32 s%d, s%d, 1', sM0, sH)
    A('s_add_u32 s%d, s%d, s%d', sM0, sM0, sTL)
    FSH = E('F1SH', 8)
    A('s_lshl_b32 s%d, s%d, %d', sM0, sM0, 4 + FSH)
    A('s_add_u32 s%d, s%d, %d', sM0, sM0, F1)
    A('s_lshl_b32 s%d, s%d, 2', sFL, sTB)
    A('s_add_u32 s%d, s%d, s%d', sFL, sFL, sM0)
    A('s_lshl_b32 s%d, s%d, %d', sT, sTB, FSH)
    A('s_add_u32 s%d, s%d, s%d', sM0, sM0, sT)
    A('s_add_u32 s%d, s%d, s%d', sPC, SWS, sM0)
    A('s_addc_u32 s%d, s%d, 0', sPC + 1, SWS + 1)
    if E('FT', 3) & 1:
        A('s_load_dword s%d, s[%d:%d], 0 glc', sZB, sPC, sPC + 1)
    A('v_lshlrev_b32 v%d, %d, v%d', vXA, FSH, vL)
    A('v_lshlrev_b32 v%d, 2, v%d', vXA + 1, vL)
    vTA = 152
    wait_stage(A, C0)
    for k in range(8):
        A('ds_read_b128 %s, v%d offset:%d', v(vVF + 4 * k, 4), vTT + 1, (k >> 1) * 4096 + (k & 1) * 1024)
    for k in range(8):
        A('s_waitcnt lgkmcnt(%d)', 7 - k)
        mfma(A, vTA + 16 * (k >> 1), vVF + 4 * k, vID + 4 * (k & 1), (k & 1) == 0)
    for w in range(4):
        cvt8(A, vAF + 8 * w, vTA + 16 * w)

    if E('KVP', 0):
        HELP['hot'] = True
        for j, w in enumerate((0, 2, 1, 3)):
            def v_reads():
                for q in range(2):
                    A('ds_read_b128 %s, v%d offset:%d', v(vVF + 8 * w + 4 * q, 4), vTT + 2, w * 4096 + q * 1024)
                return 2
            wait_word(A, w, C0 + 1, body=v_reads, sleep=1 if j == 0 else 0)
            if j == 3:
                stamp(A)
            for q in range(2):
                A('s_waitcnt lgkmcnt(%d)', 1 - q)
                mfma(A, vAC, vAF + 8 * w + 4 * q, vVF + 8 * w + 4 * q, j == 0 and q == 0)
        HELP['hot'] = False
    else:
        def v_reads():
            for k in range(8):
                A('ds_read_b128 %s, v%d offset:%d', v(vVF + 4 * k, 4), vTT + 2, (k >> 1) * 4096 + (k & 1) * 1024)
            return 8
        wait_stage(A, C0 + 1, body=v_reads)
        stamp(A)
        for k in range(8):
            A('s_waitcnt lgkmcnt(%d)', 7 - k)
            mfma(A, vAC, vAF + 4 * k, vVF + 4 * k, k == 0)
    set_stage(A, 2)
    cvt8(A, vAF, vAC)
    TAGS = E('TAGS', 1)
    if TAGS:
        for q in range(2):
            A('v_and_b32 v%d, 0xffff, v%d', vAF + 4 * q + 3, vAF + 4 * q + 3)
            A('v_or_b32 v%d, s%d, v%d', vAF + 4 * q + 3, sT16, vAF + 4 * q + 3)
    pub_stores(A, [st4(vAF + 4 * q, sB, q * 1024) for q in range(2)], MAP == 3)
    if not TAGS:
        A('s_waitcnt vmcnt(0)')
    A('s_mov_b64 exec, 0xffff')
    two_ways(A, lambda B, bits: B('buffer_store_dword v%d, v%d, s[%d:%d], s%d offen%s', vTAG, vXA, SWS, SWS + 3, sFL,
                                  bits), MAP == 3)
    A('s_mov_b64 exec, -1')
    stamp(A)
    sRDY, sPND, sRET = sHI, sHI + 1, sPADL
    base = 68 if STAMPS else 72
    pol = A.label('POLL')
    B = sub(A)
    lo, out = B.label('P'), B.label('PD')
    B('%s:', pol)
    B('%s:', lo)
    if E('PSLEEP', 0):
        B('s_sleep %d', E('PSLEEP', 0))
    if E('SPOLL', 1) and MAP == 0:
        B('s_load_dwordx16 s[%d:%d], s[%d:%d], 0 glc', base, base + 15, sPC, sPC + 1)
        B('s_mov_b32 s%d, 0', sRDY)
        B('s_waitcnt lgkmcnt(%d)', E('PPIPE', 8))
        for p_ in range(15, -1, -1):
            B('s_cmp_eq_u32 s%d, s%d', base + p_, sTAG)
            B('s_addc_u32 s%d, s%d, s%d', sRDY, sRDY, sRDY)
    else:
        B('s_mov_b64 exec, 0xffff')
        B('buffer_load_dword v%d, v%d, s[%d:%d], s%d offen sc1', vT0, vXA + 1, SWS, SWS + 3, sM0)
        B('s_waitcnt vmcnt(0)')
        B('v_cmp_eq_u32 vcc, s%d, v%d', sTAG, vT0)
        B('s_mov_b64 exec, -1')
        B('s_mov_b32 s%d, vcc_lo', sRDY)
    B('s_sub_u32 s%d, s%d, 1', sSPIN, sSPIN)
    B('s_cselect_b32 s%d, -1, s%d', sRDY, sRDY)
    B('s_and_b32 s%d, s%d, s%d', sRDY, sRDY, sPND)
    B('s_cbranch_scc0 %s', lo)
    B('s_setpc_b64 s[%d:%d]', sRET, sRET + 1)
    over = A.label('OV')
    A('s_not_b32 s%d, s%d', base, sTAG)
    A('s_mov_b32 s%d, s%d', base + 1, base)
    for k in range(2, 16, 2):
        A('s_mov_b64 s[%d:%d], s[%d:%d]', base + k, base + k + 1, base, base + 1)
    A('s_branch %s', over)
    A.lines += B.lines
    A('%s:', over)
    A('s_mov_b32 s%d, 0', sRDY)
    A('s_mov_b32 s%d, 0xffff', sPND)
    vCK = vXA + 2
    A('v_mov_b32 v%d, 0', vCK)
    A('s_nop 1')
    vG = [72 + 4 * k for k in range(16)] + [152 + 4 * k for k in range(16)]
    GD = E('GLAG', 8)

    def gmm(k, issued):
        for q in range(2):
            A('s_waitcnt vmcnt(%d)', 2 * issued - (2 * k + q) - 1)
            mfma(A, vAC, vID + 4 * q, vG[2 * k + q], k == 0 and q == 0)
            if TAGS:
                A('v_xor_b32 v%d, s%d, v%d', vCK + 1, sT16, vG[2 * k + q] + 3)
                A('v_or_b32 v%d, v%d, v%d', vCK, vCK, vCK + 1)
    for k in range(16):
        A('s_getpc_b64 s[%d:%d]', sRET, sRET + 1)
        A('s_cmp_eq_u32 s%d, 0', sRDY)
        A('s_cbranch_scc1 %s', pol)
        A('s_ff1_i32_b32 s%d, s%d', sT, sRDY)
        A('s_bitset0_b32 s%d, s%d', sRDY, sT)
        A('s_bitset0_b32 s%d, s%d', sPND, sT)
        A('s_lshl_b32 s%d, s%d, 12', sT, sT)
        A('s_add_u32 s%d, s%d, s%d', sT, sT, sXB)
        if E('ABL', 0) & 32:
            A('s_mov_b32 s%d, s%d', sT, sB)
        for q in range(2):
            A('buffer_load_dwordx4 %s, v%d, s[%d:%d], s%d offen offset:%d sc1', v(vG[2 * k + q], 4), vO, SWS, SWS + 3,
              sT, q * 1024)
        if k == E('GST', 15):
            stamp(A)
        if k >= GD:
            gmm(k - GD, k + 1)
    for k in range(16 - GD, 16):
        gmm(k, 16)
    if TAGS:
        ok = A.label('TOK')
        A('v_cmp_lt_u32 vcc, 0xffff, v%d', vCK)
        spin_guard(A, ok)
        A('s_nop 15')
        A('s_cbranch_vccnz %s', over)
        A('%s:', ok)
    A('v_add_u32 v%d, %d, v%d', vTT, L_EX, vTT)
    cvt8(A, 72, vAC)
    for q in range(2):
        A('ds_write_b128 v%d, %s offset:%d', vTT, v(72 + 4 * q, 4), q * 1024)
    set_stage(A, 3)
    stamp(A)
    lend = A.label('LEND')
    A('s_cmp_ge_u32 s%d, 28', sI)
    A('s_cbranch_scc1 %s', lend)
    A('v_lshlrev_b32 v%d, 2, v%d', vCA, vL)
    A('v_add_u32 v%d, %d, v%d', vTT + 2, L_EX, vO)
    wait_stage(A, C0 + 7, sleep=2)
    HELP['hot'] = bool(E('STHOT', 0))
    l5 = A.label('S5')
    A('s_cmp_eq_u32 s%d, 0', sTL)
    A('s_cbranch_scc1 %s', l5)
    for gi in (0, 2, 1, 3):
        if gi == 1:
            A('s_branch %s', lend)
            A('%s:', l5)
        wait_lp(A, ('hs', gi), 1)
        if E('STPRIO', 2) != 2:
            A('s_setprio %d', E('STPRIO', 2))
        base = L_SC0 + gi * 4096
        for q in range(7):
            A('ds_read2st64_b32 v[%d:%d], v%d offset0:%d offset1:%d', 72 + 2 * q, 73 + 2 * q, vCA,
              base // 256 + 2 * q, base // 256 + 2 * q + 1)
        A('s_waitcnt lgkmcnt(0)')
        for q in range(2, 14):
            A('v_add_f32 v%d, v%d, v%d', 72 + (q & 1), 72 + (q & 1), 72 + q)
        A('v_add_f32 v%d, v72, v73', vTT)
        ln_finish(A, vTT, vTT + 1, vNM, vRS)
        hilo_m(A, vNM, 88, vT0)
        A('v_mul_f32 v90, v%d, v%d', vTT + 1, vRS)
        A('v_mul_f32 v91, 0x%x, v%d', LOG2E ^ 0x80000000, vRS)
        A('ds_write_b128 v%d, v[88:91] offset:%d', vTT + 2, gi * 1024)
        set_stage(A, 4 + gi // 2)
    HELP['hot'] = False
    A('%s:', lend)
    A('s_waitcnt lgkmcnt(0)')
    stamp_flush(A)
    A('s_endpgm')


def refresh_routines(A):
    for w in (7, 4):
        A('REFRESH_%d:', w)
        if w == 5:
            A('ds_read_b32 v%d, v%d', vPW, vCA)
        else:
            A('ds_read_b32 v%d, v%d offset:%d', vPW, vMI, M_PW + 4 * w)
        if E('CSLP', 0):
            A('s_mov_b32 vcc_hi, s%d', CACHE[w])
        A('s_waitcnt lgkmcnt(0)')
        A('v_readfirstlane_b32 s%d, v%d', CACHE[w], vPW)
        if E('CSLP', 0):
            A('s_cmp_lg_u32 vcc_hi, s%d', CACHE[w])
            A('s_cbranch_scc1 REFD_%d', w)
            A('s_sleep %d', E('CSLP', 0))
            A('REFD_%d:', w)
        A('s_sub_u32 s%d, s%d, 1', sSPIN, sSPIN)
        A('s_cselect_b32 s%d, -1, s%d', CACHE[w], CACHE[w])
        A('s_setpc_b64 s[%d:%d]', sPC, sPC + 1)


def gen_compute(A):
    vPH, vID, vWF, vAC, vPK = 40, 48, 56, 88, 120
    vMF, vCF = 136, 140
    vE = vWF
    vAC2 = vAC + 16
    vX = vXR
    A('s_setprio %d', E('CPRIO', 1))
    rest_srds(A)
    A('s_lshl_b32 s%d, s%d, 12', sM0, sWV)
    A('v_and_b32 v%d, 31, v%d', vT0, vL)
    A('v_lshlrev_b32 v%d, 7, v%d', vTT, vT0)
    A('v_add_u32 v%d, s%d, v%d', vTT, sM0, vTT)
    A('v_bfe_u32 v%d, v%d, 1, 3', vT0, vL)
    A('v_lshrrev_b32 v%d, 5, v%d', vT1, vL)
    A('v_xor_b32 v%d, v%d, v%d', vT0, vT0, vT1)
    for q in range(4):
        A('v_xor_b32 v%d, %d, v%d', vXA + q, 2 * q, vT0)
        A('v_lshl_add_u32 v%d, v%d, 4, v%d', vXA + q, vXA + q, vTT)
    wtr_base(A)
    for r in (vSM, vSM + 1, vSQ, vSQ + 1, vMF + 2, vMF + 3, vCF + 2, vCF + 3):
        A('v_mov_b32 v%d, 0', r)
    A('s_mov_b32 s%d, 0', sHI)
    A('s_mov_b32 s%d, -1', sHI + 1)
    A('s_bitcmp1_b32 s%d, 0', sH)
    A('s_cselect_b32 s%d, 0xf, 0xf0000000', sPADL)
    A('s_mov_b32 s%d, s%d', sPADL + 1, sPADL)
    A('s_cselect_b32 s%d, -1, 0', sZA)
    A('s_mov_b32 s%d, 0', sZA + 1)
    A('s_mov_b32 s%d, 0', sZB)
    A('s_cselect_b32 s%d, 0, -1', sZB + 1)
    A('s_cselect_b64 s[%d:%d], -1, 0', sODD, sODD + 1)
    vPA = vRA
    A('v_bfe_u32 v%d, v%d, 2, 2', vT0, vL)
    A('v_lshrrev_b32 v%d, 5, v%d', vT1, vL)
    A('v_lshl_add_u32 v%d, v%d, 2, v%d', vT0, vT1, vT0)
    A('v_mul_u32_u24 v%d, 56, v%d', vT0, vT0)
    A('v_and_b32 v%d, 3, v%d', vT1, vL)
    A('v_bfe_u32 v%d, v%d, 4, 1', vTT, vL)
    A('v_lshl_add_u32 v%d, v%d, 2, v%d', vT1, vTT, vT1)
    A('v_min_u32 v%d, 6, v%d', vT1, vT1)
    A('v_lshl_add_u32 v%d, v%d, 3, v%d', vT0, vT1, vT0)
    A('s_and_b32 s%d, s%d, 1', sT, sH)
    A('s_mul_i32 s%d, s%d, 224', sT, sT)
    A('s_sub_u32 s%d, %d, s%d', sT, L_PHI, sT)
    A('v_add_u32 v%d, s%d, v%d', vPA, sT, vT0)
    tag_compute(A)

    def mm1(B, acc, i, q, swap):
        buf = vWF + 16 * (i & 1)
        xf, wf = vX + (4 * i + q) * 4, buf + 4 * q
        if swap:
            mfma(B, acc, xf, wf, i == 0 and q == 0)
        else:
            mfma(B, acc, wf, xf, i == 0 and q == 0)

    def rw2(Q, pi, i, q):
        buf = vWF + 16 * (i & 1)
        for z in range(2):
            Q.op(('w', i, q), 'ds_read_b64_tr_b16 v[%d:%d], v%d offset:%d', buf + 4 * q + 2 * z, buf + 4 * q + 2 * z + 1,
                 vWA + pi, i * 4096 + q * 1024 + z * 256)

    def early(Q, w, reads):
        Q.op('ce', 'ds_read_b32 v%d, v%d offset:%d', vPK_ + 1, vMI, M_PW + 4 * w)
        for r in reads:
            Q.op('ce', r)

    def late(Q, w, n, reads):
        def slow(B, back):
            def body():
                for r in reads:
                    B(r)
                return 0
            wait_word(B, w, n, body=body)
        Q.A = A
        Q.wait('ce')
        A('v_readfirstlane_b32 s%d, v%d', sT, vPK_ + 1)
        A('s_cmp_ge_u32 s%d, %d', sT, n)
        if w == 6:
            ent, back = cold_block(A, slow)
            A('s_cbranch_scc0 %s', ent)
        else:
            back = A.label('LT')
            A('s_cbranch_scc1 %s', back)
            slow(A, back)
        A('%s:', back)

    def cf_rd(pi):
        return 'ds_read_b64 v[%d:%d], v%d offset:%d' % (vCF, vCF + 1, vCA, pi * 512)
    kreads = [cf_rd(0)] + ['ds_read_b64_tr_b16 v[%d:%d], v%d offset:%d' % (
        vPH + 4 * sidx + 2 * z, vPH + 4 * sidx + 2 * z + 1, vPA, (16 * sidx + 8 * z) * 56)
        for sidx in range(2) for z in range(2)]

    vXH = vXD
    for q in range(4):
        A('v_add_u32 v%d, 0x10000, v%d', vXH + q, vXA + q)
    Q = LdsQ(A)
    A('v_and_b32 v%d, 31, v%d', vSC, vL)
    A('s_lshl_b32 s%d, s%d, 8', sT, sWV)
    A('s_add_u32 s%d, s%d, %d', sT, sT, L_EX + 1024)
    A('v_lshl_add_u32 v%d, v%d, 3, s%d', vSC, vSC, sT)
    lnread = ['ds_read_b64 v[%d:%d], v%d' % (vNM, vRS, vSC)]
    for i in range(7):
        if i:
            stamp(A, 'k')
        if i == 0:
            A('s_waitcnt vmcnt(0)')
        else:
            wait_lp(A, ('x', i))
        stamp(A, 'k')
        for q in range(4):
            Q.op(('x', i), 'ds_read_b128 %s, v%d offset:%d', v(vX + (4 * i + q) * 4, 4), (vXA if i < 4 else vXH) + q,
                 (i & 3) * 16384)
        if i in (1, 3):
            Q.stage((i + 1) // 2)
        wait_lp(A, ('W', 0, i))
        if SHST and i == 6:
            early(Q, 6, lnread)
        if SHST and i < 6:
            Q.op('pk2', 'ds_read_b128 v[%d:%d], v%d offset:%d', vTT, vTT + 3, vMI, M_PW + 16)
        for q in range(4):
            if i > 0:
                Q.wait(('w', i - 1, q))
                mm1(A, vAC, i - 1, q, False)
            rw2(Q, 0, i, q)
        if i < 6 and not SHST:
            Q.op('pk2', 'ds_read_b128 v[%d:%d], v%d offset:%d', vTT, vTT + 3, vMI, M_PW + 16)
        if not SHST:
            Q.wait(('x', i))
            for r in range(16):
                x = vX + 16 * i + r
                A('v_dot2c_f32_bf16 v%d, s%d, v%d', vSM + (r & 1), sONES, x)
                A('v_dot2c_f32_bf16 v%d, v%d, v%d', vSQ + (r & 1), x, x)
        if i < 6:
            Q.wait('pk2')
            A('v_readfirstlane_b32 s%d, v%d', sPROG, vTT)
            A('v_readfirstlane_b32 s%d, v%d', sPROG1, vTT + 3)
    Q.stage(3)
    if SHST:
        late(Q, 6, 1, lnread)
    early(Q, 5, kreads)
    B = sub(A)
    if SHST:
        pass
    else:
        B('v_add_f32 v%d, v%d, v%d', vSM, vSM, vSM + 1)
        B('v_add_f32 v%d, v%d, v%d', vSQ, vSQ, vSQ + 1)
        B('v_permlane32_swap_b32 v%d, v%d', vSM, vSQ)
        B('v_add_f32 v%d, v%d, v%d', vT0, vSM, vSQ)
        ln_finish(B, vT0, vT1, vNM, vRS)
    hilo_m(B, vNM, vMF, vT0)
    B('v_mul_f32 v%d, 0x%x, v%d', vSC, LOG2E, vRS)
    M = sub(A)
    Q.A = M
    for q in range(4):
        Q.wait(('w', 6, q))
        mm1(M, vAC, 6, q, False)
    A.lines += merge(M.lines, [[l] for l in B.lines], 0, 4)

    stamp(A, 'v')
    late(Q, 5, 1, kreads)
    stamp(A)
    stamp(A, 'v')

    def project(mid=None):
        mfma(A, vAC, vCF, vMF)
        if mid:
            mid()
        cvt8(A, vPK, vAC)
        mfma(A, vAC, vPH, vPK, True)
        mfma(A, vAC, vPH + 4, vPK + 4)

    def mid_k():
        A('v_and_b32 v%d, 31, v%d', vT0, vL)
        A('s_lshl_b32 s%d, s%d, 7', sT, sWV)
        A('s_add_u32 s%d, s%d, %d', sT, sT, L_RSTD)
        if not SHST:
            A('v_lshl_add_u32 v%d, v%d, 2, s%d', vT0, vT0, sT)
            A('ds_write_b32 v%d, v%d', vT0, vRS)
        A('v_lshrrev_b32 v%d, 5, v%d', vRA, vL)
        A('v_lshl_add_u32 v%d, v%d, 4, s%d', vRA, vRA, sT)
        for r in (0, 1):
            A('v_cndmask_b32 v%d, v%d, 0, s[%d:%d]', vPH + r, vPH + r, sZA, sZA + 1)
            A('v_cndmask_b32 v%d, v%d, 0, s[%d:%d]', vPH + 6 + r, vPH + 6 + r, sZB, sZB + 1)

    def gemm_head(B, pi):
        Q = LdsQ(B)
        wait_lp(B, ('W', pi, 0))
        for q in range(4):
            rw2(Q, pi, 0, q)
        return Q

    def gemm_part(B, acc, pi, swap, last_stage=None, Q=None):
        if Q is None:
            Q = gemm_head(B, pi)
        for i in range(7):
            if i == 6 and last_stage:
                Q.stage(last_stage)
            if i == 6:
                early(Q, 7, [cf_rd(pi)])
            if pi == 1 and i in (0, 2, 4, 6):
                stamp(B, 'v')
            for q in range(4):
                Q.wait(('w', i, q))
                if q == 0:
                    Q.take(4)
                mm1(B, acc, i, q, swap)
                if i < 6:
                    if q == 0:
                        wait_lp(B, ('W', pi, i + 1))
                        if i < 5:
                            Q.peek(4)
                    rw2(Q, pi, i + 1, q)
        late(Q, 7, 7 + pi, [cf_rd(pi)])

    vOW = vXD
    A('v_add_u32 v%d, s%d, v%d', vOW, sM0, vO)
    A('v_add_u32 v%d, %d, v%d', vOW, L_KVA, vOW)
    project(mid_k)
    stamp(A, 'v')
    B = sub(A)
    softmax_pm(B, vAC, vSC, vPK, vTT)
    A.lines += B.lines[:-30]
    Q = gemm_head(A, 1)
    A.lines += B.lines[-30:]
    for q, src in enumerate((vAC, vAC + 4, vPK, vPK + 4)):
        Q.op('pw', 'ds_write_b128 v%d, %s offset:%d', vOW, v(src, 4), q * 1024)
    Q.stage(C0)
    for q in range(4):
        Q.op('rs', 'ds_read_b128 %s, v%d offset:%d', v(vAC + 4 * q, 4), vRA, q * 32)
    stamp(A, 'v')
    gemm_part(A, vAC2, 1, True, None, Q)
    stamp(A, 'v')

    mfma(A, vAC2, vMF, vCF)
    A('v_mov_b32 v%d, 0x%x', vT1, ONES)
    for r in range(0, 16, 2):
        A('v_pk_mul_f32 v[%d:%d], v[%d:%d], v[%d:%d]', vAC2 + r, vAC2 + r + 1, vAC2 + r, vAC2 + r + 1, vAC + r,
          vAC + r + 1)
    cvt8(A, vPK, vAC2)
    for r in range(8):
        A('v_cndmask_b32 v%d, v%d, v%d, s[%d:%d]', vPK + r, vPK + r, vT1, sPADL, sPADL + 1)
    for q in range(2):
        A('ds_write_b128 v%d, %s offset:%d', vOW, v(vPK + 4 * q, 4), L_KVV - L_KVA + q * 1024)
    set_stage(A, C0 + 1)
    stamp(A)
    stamp(A, 'v')
    gemm_part(A, vAC, 2, False, C0 + 3)
    vHP, vRX, vRO = 120, 48, vSM + 1

    def unpack_hp(src=120):
        for r in range(8):
            A('v_lshlrev_b32 v%d, 16, v%d', vAC + 2 * r, src + r)
            A('v_and_b32 v%d, 0xffff0000, v%d', vAC + 2 * r + 1, src + r)
    A('s_and_b32 s%d, s%d, 1', sG, sWV)
    A('s_lshr_b32 s%d, s%d, 1', sKH, sWV)
    A('s_lshl_b32 s%d, s%d, 1', sT, sTQ)
    A('s_add_u32 s%d, s%d, s%d', sG, sG, sT)
    A('v_and_b32 v%d, 31, v%d', vRO, vL)
    A('v_mul_u32_u24 v%d, 896, v%d', vRO, vRO)
    A('v_lshrrev_b32 v%d, 5, v%d', vT1, vL)
    A('v_lshl_add_u32 v%d, v%d, 4, v%d', vRO, vT1, vRO)
    A('s_mul_i32 s%d, s%d, %d', sT, sG, 32 * 896)
    A('s_lshl_b32 s%d, s%d, 7', sT2, sNB)
    A('s_add_u32 s%d, s%d, s%d', sT, sT, sT2)
    A('s_lshl_b32 s%d, s%d, 6', sT2, sKH)
    A('s_add_u32 s%d, s%d, s%d', sT, sT, sT2)
    A('v_add_u32 v%d, s%d, v%d', vRO, sT, vRO)
    for q in range(2):
        A('buffer_load_dwordx4 %s, v%d, s[%d:%d], 0 offen offset:%d', v(vRX + 4 * q, 4), vRO, SX, SX + 3, q * 32)

    project()
    softmax_pm(A, vAC, vSC, vPK, vTT)
    vQF = [vAC, vAC + 4, vPK, vPK + 4]
    stamp(A)
    vW1A = vXA
    A('v_bfe_u32 v%d, v%d, 2, 2', vT0, vL)
    A('v_lshrrev_b32 v%d, 5, v%d', vT1, vL)
    A('v_lshl_add_u32 v%d, v%d, 2, v%d', vT1, vT1, vT0)
    A('v_lshlrev_b32 v%d, 8, v%d', vW1A, vT1)
    A('v_lshlrev_b32 v%d, 7, v%d', vWA, vT1)
    A('v_xor_b32 v%d, s%d, v%d', vT0, sWV, vT0)
    A('v_lshl_add_u32 v%d, v%d, 6, v%d', vW1A, vT0, vW1A)
    A('v_bfe_u32 v%d, v%d, 4, 1', vT1, vL)
    A('v_lshlrev_b32 v%d, 5, v%d', vT1, vT1)
    A('v_and_b32 v%d, 3, v%d', vT0, vL)
    A('v_lshl_add_u32 v%d, v%d, 3, v%d', vT1, vT0, vT1)
    A('v_add_u32 v%d, v%d, v%d', vW1A, vW1A, vT1)
    A('v_add_u32 v%d, 0x8000, v%d', vW1A + 1, vW1A)
    A('v_add_u32 v%d, v%d, v%d', vWA, vWA, vT1)
    A('v_bfe_u32 v%d, v%d, 3, 1', vT1, vL)
    A('v_lshl_add_u32 v%d, v%d, 6, v%d', vWA, vT1, vWA)

    def w1_copy(c):
        wait_lp(A, ('w1', c))
        for q in range(4):
            for z in range(2):
                off = w1_slot(c) + (16 * q + 8 * z) * 256
                base = vW1A
                if off >= 0x8000:
                    off -= 0x8000
                    base += 1
                r = vXR + (4 * c + q) * 4 + 2 * z
                A('ds_read_b64_tr_b16 v[%d:%d], v%d offset:%d', r, r + 1, base, off)

    sCPD = sXB
    A('s_mov_b32 s%d, 0', sCPD)

    def try_copy(block):
        skip = A.label('NC')
        A('s_cmp_lg_u32 s%d, 0', sCPD)
        A('s_cbranch_scc1 %s', skip)
        if not block:
            ow = LP[('w1', 1)][0]
            if block is not None:
                A('ds_read_b32 v%d, v%d offset:%d', vPW + ow - 4, vMI, M_PW + 4 * ow)
                A('s_waitcnt lgkmcnt(0)')
            A('v_readfirstlane_b32 s%d, v%d', CACHE[ow], vPW + ow - 4)
            A('s_cmp_lt_u32 s%d, %d', CACHE[ow], LP[('w1', 1)][1])
            A('s_cbranch_scc1 %s', skip)
        w1_copy(0)
        w1_copy(1)
        A('s_mov_b32 s%d, 1', sCPD)
        A('v_mov_b32 v%d, 1', vT0)
        A('ds_write_b32 v%d, v%d offset:%d', vMY, vT0, M_CP)
        A('%s:', skip)
    vCS = vSQ

    A('s_lshl_b32 s%d, s%d, 2', sFL, sTB)
    A('s_add_u32 s%d, s%d, s%d', sFL, sFL, sWV)
    A('s_lshl_b32 s%d, s%d, 4', sFL, sFL)
    A('s_add_u32 s%d, s%d, s%d', sFL, sFL, sH)
    A('s_lshl_b32 s%d, s%d, 11', sB, sFL)
    A('s_add_u32 s%d, s%d, %d', sB, sB, WS_OB)
    if MAP == 0:
        A('s_lshl_b32 s%d, s%d, 2', sFL, sFL)
        A('s_add_u32 s%d, s%d, %d', sFL, sFL, F2)
    else:
        A('s_lshr_b32 s%d, s%d, 3', sFL, sFL)
        A('s_lshl_b32 s%d, s%d, 10', sFL, sFL)
        A('s_and_b32 s%d, s%d, 7', sT, sH)
        A('s_lshl_b32 s%d, s%d, 2', sT, sT)
        A('s_add_u32 s%d, s%d, s%d', sFL, sFL, sT)
        A('s_add_u32 s%d, s%d, %d', sFL, sFL, F2X)
    vEX = vXD + 1
    A('v_add_u32 v%d, %d, v%d', vEX, L_EX, vO)

    def ex_reads():
        for q in range(4):
            A('ds_read_b128 %s, v%d offset:%d', v(vWF + 4 * q, 4), vEX, q * 1024)
        return 4
    lo, done = A.label('W'), A.label('WD')
    A('%s:', lo)
    A('ds_read_b128 v[%d:%d], v%d offset:%d', vPW, vPW + 3, vMI, M_PW + 16)
    A('ds_read_b32 v%d, v%d offset:%d', vPK_, vMI, M_FAST)
    ex_reads()
    A('s_waitcnt lgkmcnt(4)')
    A('v_readfirstlane_b32 s%d, v%d', sFASTF, vPK_)
    A('v_min_u32 v%d, v%d, v%d', vPW + 1, vPW + 1, vPW + 2)
    A('v_readfirstlane_b32 s%d, v%d', sT, vPW + 1)
    spin_guard(A, done)
    A('s_cmp_ge_u32 s%d, 3', sT)
    A('s_cbranch_scc1 %s', done)
    try_copy(None)
    if E('CSLP', 0):
        A('s_sleep %d', E('CSLP', 0))
    A('s_branch %s', lo)
    A('%s:', done)
    stamp(A)
    for q in range(4):
        A('s_waitcnt lgkmcnt(%d)', 3 - q)
        mfma(A, vAC2, vWF + 4 * q, vQF[q], q == 0)
    A('v_cndmask_b32 v%d, v%d, v%d, s[%d:%d]', vT0, vAC2 + 12, vAC2, sODD, sODD + 1)
    A('v_mov_b32 v%d, v%d', vT1, vT0)
    A('v_permlane32_swap_b32 v%d, v%d', vT0, vT1)
    A('v_cndmask_b32 v%d, v%d, v%d, s[%d:%d]', vTT, vT1, vT0, sODD, sODD + 1)
    A('v_add_f32 v%d, 0x%x, v%d', vTT, 0x358637bd, vTT)
    A('v_rcp_f32 v%d, v%d', vTT, vTT)
    for r in range(0, 16, 2):
        A('v_pk_mul_f32 v[%d:%d], v[%d:%d], v[%d:%d] op_sel_hi:[1,0]', vAC2 + r, vAC2 + r + 1, vAC2 + r, vAC2 + r + 1,
          vTT, vTT + 1)
    cvt8(A, vPK, vAC2)
    for r in (0, 1):
        A('v_cndmask_b32 v%d, v%d, 0, s[%d:%d]', vPK + r, vPK + r, sZA, sZA + 1)
        A('v_cndmask_b32 v%d, v%d, 0, s[%d:%d]', vPK + 6 + r, vPK + 6 + r, sZB, sZB + 1)
    pub_stores(A, [st4(vPK + 4 * q, sB, q * 1024) for q in range(2)], MAP == 0 and not WTO)
    A('s_waitcnt vmcnt(2)')
    for q in range(2):
        A('v_permlane32_swap_b32 v%d, v%d', vRX + 4 * q, vRX + 4 * q + 2)
        A('v_permlane32_swap_b32 v%d, v%d', vRX + 4 * q + 1, vRX + 4 * q + 3)
    unpack_hp(vRX)
    A('s_lshl_b32 s%d, s%d, 6', sT, sKH)
    A('v_xor_b32 v%d, s%d, v%d', vWA, sT, vWA)
    A('v_xor_b32 v%d, 64, v%d', vWA + 1, vWA)
    A('s_mul_i32 s%d, s%d, %d', sT, sKH, 224 * 128)
    A('s_add_u32 s%d, s%d, %d', sT, sT, L_A)
    A('v_add_u32 v%d, s%d, v%d', vWA + 2, sT, vWA)
    A('v_add_u32 v%d, s%d, v%d', vWA + 3, sT, vWA + 1)
    vSW, vSR, vPP = vXA + 2, vXA + 3, vSM
    A('s_and_b32 s%d, s%d, 1', sC, sWV)
    A('s_lshl_b32 s%d, s%d, 12', sC, sC)
    A('v_add_u32 v%d, s%d, v%d', vSW, sC, vO)
    A('s_cmp_eq_u32 s%d, 0', sKH)
    A('s_cselect_b32 s%d, %d, %d', sT, L_SC0 >> 12, L_SC1 >> 12)
    A('s_cselect_b32 s%d, %d, %d', sT2, L_SC1 >> 12, L_SC0 >> 12)
    A('s_lshl_b32 s%d, s%d, 12', sT, sT)
    A('s_lshl_b32 s%d, s%d, 12', sT2, sT2)
    A('v_add_u32 v%d, s%d, v%d', vSR, sT2, vSW)
    A('v_add_u32 v%d, s%d, v%d', vSW, sT, vSW)
    A('v_xor_b32 v%d, 8, v%d', vPP, vMY)
    A('s_lshl_b32 s%d, s%d, 15', sB, sG)
    A('s_lshl_b32 s%d, s%d, 14', sT, sKH)
    A('s_add_u32 s%d, s%d, s%d', sB, sB, sT)
    A('s_add_u32 s%d, s%d, %d', sB, sB, WS_OB)
    if MAP == 0:
        A('s_lshl_b32 s%d, s%d, 6', sC, sG)
        A('s_lshl_b32 s%d, s%d, 5', sT, sKH)
        A('s_add_u32 s%d, s%d, s%d', sC, sC, sT)
        A('s_add_u32 s%d, s%d, %d', sC, sC, F2)
        pub_flag(A, sFL, True)
    else:
        A('s_lshl_b32 s%d, s%d, 11', sC, sG)
        A('s_lshl_b32 s%d, s%d, 10', sT, sKH)
        A('s_add_u32 s%d, s%d, s%d', sC, sC, sT)
        A('s_lshl_b32 s%d, s%d, 7', sT, sNB)
        A('s_add_u32 s%d, s%d, s%d', sC, sC, sT)
        A('s_add_u32 s%d, s%d, %d', sC, sC, F2X)
        A('v_lshlrev_b32 v%d, 7, v%d', vT1, vL)
        if not E('NODRAIN2', 0):
            A('s_waitcnt vmcnt(0)')
        A('s_mov_b64 exec, 0x7f')
        A('buffer_store_dword v%d, v%d, s[%d:%d], s%d offen sc1', vTAG, vT1, SWS, SWS + 3, sFL)
        A('s_mov_b64 exec, -1')
    set_stage(A, C0 + 5)
    stamp(A)
    fin = A.label('FIN')
    A('s_cmp_ge_u32 s%d, 28', sI)
    A('s_cbranch_scc1 %s', fin)

    vB2 = [40 + 4 * k for k in range(8)] + [224 + 4 * k for k in range(8)]
    vWF2 = 72
    vL4, vPF = vNM, vRS
    A('v_lshlrev_b32 v%d, 2, v%d', vL4, vL)

    def f2_load():
        A('s_mov_b64 exec, 0xff')
        A('buffer_load_dword v%d, v%d, s[%d:%d], s%d offen sc1', vPF, vL4, SWS, SWS + 3, sC)
        A('s_mov_b64 exec, -1')
    f2_load()
    sB3, sFL3 = sODD, sODD + 1
    sBL, sFL2, sPF, sBK, sBS, sHB, sEM = 4, 5, 6, 7, 8, 9, 10
    A('s_mul_i32 s%d, s%d, %d', sB3, sTB3, 4 * 112)
    A('s_lshl_b32 s%d, s%d, 3', sT, sFB)
    A('s_add_u32 s%d, s%d, s%d', sB3, sB3, sT)
    A('s_lshl_b32 s%d, s%d, 1', sT, sWV)
    A('s_add_u32 s%d, s%d, s%d', sB3, sB3, sT)
    A('s_lshl_b32 s%d, s%d, 10', sB3, sB3)
    A('s_add_u32 s%d, s%d, %d', sB3, sB3, WS_H1B)
    A('s_add_u32 s%d, s%d, %d', sBL, sB3, 2 * 112 * 1024)
    A('s_lshl_b32 s%d, s%d, 9', sFL3, sTB3)
    A('s_lshl_b32 s%d, s%d, 4', sT, sFB)
    A('s_add_u32 s%d, s%d, s%d', sFL3, sFL3, sT)
    A('s_lshl_b32 s%d, s%d, 2', sT, sWV)
    A('s_add_u32 s%d, s%d, s%d', sFL3, sFL3, sT)
    A('s_add_u32 s%d, s%d, %d', sFL3, sFL3, F4)
    A('s_add_u32 s%d, s%d, 256', sFL2, sFL3)
    A('s_bitcmp1_b32 s%d, 0', sFB)
    A('s_cselect_b32 s%d, s%d, s%d', sT, sBL, sB3)
    A('s_cselect_b32 s%d, s%d, s%d', sBL, sB3, sBL)
    A('s_mov_b32 s%d, s%d', sB3, sT)
    A('s_cselect_b32 s%d, s%d, s%d', sT, sFL2, sFL3)
    A('s_cselect_b32 s%d, s%d, s%d', sFL2, sFL3, sFL2)
    A('s_mov_b32 s%d, s%d', sFL3, sT)
    A('s_lshl_b32 s%d, s%d, 8', sPF, sTQ)
    A('s_mul_i32 s%d, s%d, 112', sT, sKH)
    A('s_add_u32 s%d, s%d, s%d', sPF, sPF, sT)
    A('s_add_u32 s%d, s%d, %d', sPF, sPF, F4)
    A('s_mul_i32 s%d, s%d, %d', sHB, sG, 112 * 1024)
    A('s_mul_i32 s%d, s%d, %d', sT, sKH, 56 * 1024)
    A('s_add_u32 s%d, s%d, s%d', sHB, sHB, sT)
    A('s_add_u32 s%d, s%d, %d', sHB, sHB, WS_H1B + (0x40000000 if E('ABL', 0) & 64 else 0))
    blk_init(A, sBK, sBS, 's%d' % sKH)
    A('s_bitcmp1_b32 s%d, 0', sBK)
    A('s_mov_b32 s%d, 0x0f0f0f0f', sEM)
    A('s_cselect_b32 s%d, 0x00f0f0f0, s%d', sEM, sEM)
    wait_lp(A, 'wo')

    def wo_row(k):
        hh = k // 2
        return 28 * hh - 4 * (hh & 1) + 16 * (k & 1)

    Q = LdsQ(A)
    LAG = E('P2LAG', 5)

    def read_wo(k, nt):
        buf = vWF2 + 8 * nt + 4 * (k & 1)
        for z in range(2):
            Q.op(('w', k, nt), 'ds_read_b64_tr_b16 v[%d:%d], v%d offset:%d', buf + 2 * z, buf + 2 * z + 1,
                 vWA + 2 + nt, (wo_row(k) + 8 * z) * 128)

    read_wo(0, 1)
    read_wo(0, 0)
    lo, chk2, done = A.label('P'), A.label('PC'), A.label('PD')
    A('s_branch %s', chk2)
    A('%s:', lo)
    f2_load()
    try_copy(False)
    A('%s:', chk2)
    A('s_waitcnt vmcnt(0)')
    A('v_cmp_ne_u32 vcc, s%d, v%d', sTAG, vPF)
    spin_guard(A, done)
    A('s_and_b32 s%d, vcc_lo, 0xff', sT)
    A('s_cbranch_scc1 %s', lo)
    A('%s:', done)
    stamp(A)
    stamp(A, 'p2')
    sOB = sM0
    A('s_mov_b32 s%d, s%d', sOB, sB)

    def ld_o(k):
        A('buffer_load_dwordx4 %s, v%d, s[%d:%d], s%d offen offset:%d sc1', v(vB2[k], 4), vO, SWS, SWS + 3, sOB,
          (k & 3) * 1024)
        if (k & 3) == 3:
            A('s_add_u32 s%d, s%d, 4096', sOB, sOB)
    P2I = E('P2INFL', 8)
    for k in range(P2I):
        ld_o(k)
    A('s_lshl_b32 s%d, s%d, 1', sT2, sNB)
    A('s_add_u32 s%d, s%d, s%d', sT2, sT2, sKH)
    A('s_lshl_b32 s%d, s%d, 15', sB, sG)
    A('s_add_u32 s%d, s%d, %d', sB, sB, WS_HB)
    A('s_lshl_b32 s%d, s%d, 8', sC, sT2)
    A('s_add_u32 s%d, s%d, s%d', sC, sC, sB)
    A('s_lshl_b32 s%d, s%d, 11', sT, sT2)
    A('s_add_u32 s%d, s%d, s%d', sB, sB, sT)
    A('s_add_u32 s%d, s%d, 4096', sB, sB)
    A('s_lshl_b32 s%d, s%d, 2', sFL, sT2)
    A('s_lshl_b32 s%d, s%d, 6', sT, sG)
    A('s_add_u32 s%d, s%d, s%d', sFL, sFL, sT)
    A('s_add_u32 s%d, s%d, %d', sFL, sFL, F3)
    for k in range(16 + LAG):
        if k < 16:
            if k < 15:
                read_wo(k + 1, 1)
            Q.wait(('w', k, 1), min(15, P2I + k - 1) - k)
            if k % 4 == 0:
                stamp(A, 'p2')
            mfma(A, vAC + 16, vWF2 + 8 + 4 * (k & 1), vB2[k], k == 0)
            if P2I + k < 16:
                ld_o(P2I + k)
            if P2I + k == E('LDSIG', 12):
                A('v_mov_b32 v%d, 1', vT0)
                Q.op('ld', 'ds_write_b32 v%d, v%d offset:%d', vMY, vT0, M_LD)
        j = k - LAG
        if j >= 0:
            if j < 15:
                read_wo(j + 1, 0)
            Q.wait(('w', j, 0))
            mfma(A, vAC, vWF2 + 4 * (j & 1), vB2[j])
        if k == 16 and LAG >= 2:
            for q in range(4):
                Q.op('x', 'ds_write_b128 v%d, %s offset:%d', vSW, v(vAC + 16 + 4 * q, 4), q * 1024)
            Q.stage(C0 + 6)
    stamp(A)

    def exchange(st, sent=False):
        if not sent:
            for q in range(4):
                A('ds_write_b128 v%d, %s offset:%d', vSW, v(vAC + 16 + 4 * q, 4), q * 1024)
            set_stage(A, st)
        lo, done = A.label('W'), A.label('WD')
        A('%s:', lo)
        A('ds_read_b32 v%d, v%d', vPW, vPP)
        for q in range(4):
            A('ds_read_b128 %s, v%d offset:%d', v(vWF2 + 4 * q, 4), vSR, q * 1024)
        A('s_waitcnt lgkmcnt(4)')
        A('v_readfirstlane_b32 s%d, v%d', sT, vPW)
        spin_guard(A, done)
        A('s_cmp_ge_u32 s%d, %d', sT, st)
        A('s_cbranch_scc0 %s', lo)
        A('%s:', done)
        for q in range(4):
            A('s_waitcnt lgkmcnt(%d)', 3 - q)
            for r in (0, 2):
                a0 = vAC + 4 * q + r
                A('v_pk_add_f32 v[%d:%d], v[%d:%d], v[%d:%d]', a0, a0 + 1, a0, a0 + 1, vWF2 + 4 * q + r,
                  vWF2 + 4 * q + r + 1)

    stamp(A, 'p2')
    exchange(C0 + 6, LAG >= 2)
    stamp(A, 'p2')
    set_stage(A, C0 + 7)
    cvt8(A, vHP, vAC)
    pub_stores(A, [st4(vHP + 4 * q, sB, q * 1024) for q in range(2)], not WTO)
    A('v_mov_b32 v%d, 0', vTT)
    A('v_mov_b32 v%d, 0', vTT + 1)
    for r in range(8):
        A('v_dot2c_f32_bf16 v%d, s%d, v%d', vTT, sONES, vHP + r)
        A('v_dot2c_f32_bf16 v%d, v%d, v%d', vTT + 1, vHP + r, vHP + r)
    A('v_lshlrev_b32 v%d, 2, v%d', vTT + 2, vL)
    A('v_permlane32_swap_b32 v%d, v%d', vTT, vTT + 1)
    A('v_add_f32 v%d, v%d, v%d', vTT, vTT, vTT + 1)
    pub_stores(A, ['buffer_store_dword v%d, v%d, s[%d:%d], s%d offen%%s' % (vTT, vTT + 2, SWS, SWS + 3, sC)], not WTO)
    stamp(A, 'p2')
    try_copy(True)
    NPRE = E('CPRE', 2)
    for c in range(2, 2 + NPRE):
        w1_copy(c)
    stamp(A, 'p2')
    pub_flag(A, sFL, True)
    stamp(A, 'p2')
    stamp(A)
    for c in range(2 + NPRE, 4):
        w1_copy(c)
    A('v_mov_b32 v%d, 0', vCS)
    A('v_mov_b32 v%d, 0', vCS + 1)
    A('s_waitcnt lgkmcnt(0)')
    for r in range(112):
        if r in (16, 32, 48):
            w1_copy(3 + r // 16)
        if r == 48:
            set_stage(A, C0 + 8)
        if r in (64, 80, 96):
            A('s_waitcnt lgkmcnt(%d)', min(15, 1 + 8 * ((96 - r) // 16)))
        A('v_dot2c_f32_bf16 v%d, s%d, v%d', vCS + (r & 1), sONES, vXR + r)
    A('v_add_f32 v%d, v%d, v%d', vCS, vCS, vCS + 1)
    hilo_c(A, vCS, vCF, vT0)
    vBR = 40
    vE3 = 72
    vMF2, vSD = 128, 132
    A('s_mov_b32 s11, s%d', sB)
    A('s_mov_b32 s%d, s%d', sB, sB3)
    A('s_mov_b32 s%d, s%d', sFL, sFL3)

    def p3_epilogue(gi, packed=False):
        B = sub(A)
        acc = vAC + 16 * (gi & 1)
        e = vE3
        sd, c1 = vSD, vSD + 1
        if packed:
            pk = lambda r: 'v[%d:%d]' % (r, r + 1)
            for r in range(0, 16, 2):
                B('v_pk_mul_f32 %s, %s, %s op_sel:[0,1] op_sel_hi:[1,1]', pk(e + r), pk(acc + r), pk(sd))
            for r in range(16):
                B('v_exp_f32 v%d, v%d', e + r, e + r)
            for r in range(0, 16, 2):
                B('v_pk_fma_f32 %s, %s, %s, %s op_sel_hi:[1,0,0]', pk(e + r), pk(e + r), pk(sd), pk(sd))
            for r in range(16):
                B('v_rcp_f32 v%d, v%d', e + r, e + r)
            for r in range(0, 16, 2):
                B('v_pk_mul_f32 %s, %s, %s', pk(e + r), pk(e + r), pk(acc + r))
            cvt8(B, acc, e)
        else:
            silu8(B, acc, e, sd, c1, acc)
            silu8(B, acc + 8, e + 8, sd, c1, acc + 4)
        blocks = [[l] for l in B.lines]
        if E('ABL', 0) & 256 and not packed:
            blocks = blocks[-4:]
        B = sub(A)
        so = sB if gi < 2 else sBL
        pub_stores(B, [st4(acc + 4 * q, so, q * 1024) for q in range(2)], WT1 == 0 or (WT1 == 2 and gi >= 2))
        if gi % 2 == 0:
            B('s_add_u32 s%d, s%d, %d', so, so, 112 * 1024)
        blocks.append(B.lines)
        return blocks

    def flag_load(B):
        B('s_mov_b64 exec, 0xfffffff')
        B('buffer_load_dword v%d, v%d, s[%d:%d], s%d offen sc1', vPF, vL4, SWS, SWS + 3, sPF)
        B('s_mov_b64 exec, -1')

    def flag_check(mask):
        def slow(B, back):
            lo = B.label('P')
            B('%s:', lo)
            flag_load(B)
            B('s_waitcnt vmcnt(0)')
            B('v_cmp_ne_u32 vcc, s%d, v%d', sTAG, vPF)
            spin_guard(B, back)
            B('s_and_b32 s%d, vcc_lo, %s', sT, mask)
            B('s_cbranch_scc1 %s', lo)
        ent, back = cold_block(A, slow)
        A('v_cmp_ne_u32 vcc, s%d, v%d', sTAG, vPF)
        A('s_and_b32 s%d, vcc_lo, %s', sT, mask)
        A('s_cbranch_scc1 %s', ent)
        A('%s:', back)

    PRE = E('P3PRE', 6)
    vHB = vXD + 2
    A('v_add_u32 v%d, %d, v%d', vHB, L_A, vO)
    A('v_add_u32 v%d, %d, v%d', vHB + 1, 65536, vO)
    Q = LdsQ(A)

    def chk(n):
        gi, k = divmod(n, 28)
        if gi == 0 and E('P3RAMP', 0):
            return k // 4 if k % 4 == 0 else None
        if gi == 0:
            return {0: 1, 8: 3, 16: 5, 24: 6}.get(k)
        return {0: 1, 8: 3, 16: 6}.get(k)

    def rd(n):
        gi, k = divmod(n, 28)
        if n + 1 < 112 and chk(n + 1) is not None:
            Q.take(7)
        if chk(n) is not None:
            wait_lp(Q.A, ('h', gi, chk(n)))
        Q.op(('b', n), 'ds_read_b128 %s, v%d offset:%d', v(vBR + 4 * (n % 8), 4), (vHB, vHB, vO, vHB + 1)[gi],
             (28672 if gi == 1 else 0) + k * 1024)
        if n + 1 in W2GATE.values() and n + 1 >= E('FINE0', 24):
            Q.A('v_mov_b32 v%d, %d', vT0, (n + 1) // 2)
            Q.op('st', 'ds_write_b32 v%d, v%d offset:%d', vMY, vT0, M_LD)
        ramp = E('P3RAMP', 0) and n < 20
        nn = n + (4 if ramp else E('P3PK', PRE + 2))
        if nn < 112 and chk(nn) is not None and not Q.peeked and (ramp or nn >= 28 or not E('P3RAMP', 0)):
            Q.peek(7)

    stamp(A, 'p2')
    nrd = [0]

    def rd_upto(n):
        while nrd[0] <= min(n, 111):
            rd(nrd[0])
            nrd[0] += 1
    rd_upto(2)
    for gi in range(4):
        acc = vAC + 16 * (gi & 1)
        M = sub(A)
        Q.A = M
        for k in range(28):
            n = 28 * gi + k
            rd_upto(n + (PRE if not E('P3RAMP', 0) else 3 if n < 22 else min(PRE, 3 + (n - 21))))
            if k == 16:
                Q.op('s6', 'ds_read_b128 v[%d:%d], v%d offset:%d', vTT, vTT + 3, vMI, M_PW + 16)
                Q.op('sf', 'ds_read_b128 %s, v%d offset:%d', v(vMF2, 4), vEX, gi * 1024)
            if k == 24:
                Q.wait('sf')
                M('v_readfirstlane_b32 s%d, v%d', sPROG, vTT)
                M('v_readfirstlane_b32 s%d, v%d', sC, vTT + LP[('st', gi)][0] - 4)

                def st_slow(B, back):
                    def st_read():
                        B('ds_read_b128 %s, v%d offset:%d', v(vMF2, 4), vEX, gi * 1024)
                        return 0
                    wait_word(B, LP[('st', gi)][0], LP[('st', gi)][1], body=st_read)
                ent, back = cold_block(M, st_slow)
            if k == 25:
                M('s_cmp_ge_u32 s%d, %d', sC, LP[('st', gi)][1])
                M('s_cbranch_scc0 %s', ent)
                M('%s:', back)
                M('v_mov_b32 v%d, v%d', vMF, vMF2)
                M('v_mov_b32 v%d, v%d', vMF + 1, vMF2 + 1)
            if k % 2 == 0:
                Q.wait(('b', n + 1))
            if k in (0, 12):
                stamp(M, 'p3')
            if gi == E('P33', 3) and k % 2 == 0 and k:
                stamp(M, 'p33')
            if gi == 3 and k == E('P3FLAGK', 11):
                pub_flag(M, sFL, True)
            if gi == 3 and k == 25:
                flag_load(M)
            mfma(M, acc, vXR + 4 * k, vBR + 4 * (n % 8), k == 0)
        mfma(M, acc, vCF, vMF)
        M('v_mov_b32 v%d, v%d', vSD, vMF2 + 2)
        M('v_mov_b32 v%d, v%d', vSD + 1, vMF2 + 3)
        A.lines += merge(M.lines, p3_epilogue(gi - 1) if gi > 0 else [], 1, E('P3STOP2', 27) if gi == 2 else 27)
        if gi == 0:
            stamp(A)
        stamp(A, 'p3')
    stamp(A)
    NB = 28
    vWF4 = 40
    vAP = vXR + 48

    def w2_base(c):
        A('s_cmp_eq_u32 s%d, 0', sKH)
        A('s_cselect_b32 s%d, %d, %d', sT, w2_slot(2 * c) >> 12, w2_slot(2 * c + 1) >> 12)
        A('s_lshl_b32 s%d, s%d, 12', sT, sT)
        A('v_add_u32 v%d, s%d, v%d', vWA + 2, sT, vWA)
        A('v_add_u32 v%d, s%d, v%d', vWA + 3, sT, vWA + 1)

    Q = LdsQ(A)

    def abuf(k):
        return vWF4 + 8 * (k & 3)

    def read_w2(k):
        if k % 4 == 3 and k < 52:
            Q.take(LP[('w2', 2 * (k // 4) + 3)][0])
        if k % 4 == 0:
            wait_lp(A, ('w2', 2 * (k // 4) + 1))
            w2_base(k // 4)
        buf = abuf(k)
        for nt in range(2):
            for z in range(2):
                Q.op(('w', k), 'ds_read_b64_tr_b16 v[%d:%d], v%d offset:%d', buf + 4 * nt + 2 * z,
                     buf + 4 * nt + 2 * z + 1, vWA + 2 + nt, ((k % 4) * 16 + 8 * z) * 128)
        if k % 4 == 0 and k < 52:
            Q.peek(LP[('w2', 2 * (k // 4) + 3)][0])
        if k % 4 == 3 and (k // 4) <= 5:
            Q.stage(C0 + 13 + k // 4)

    vq = []

    def vm_need(tag):
        i = max(j for j, x in enumerate(vq) if x == tag)
        return len(vq) - 1 - i

    def issue_b(k):
        if k % 8 == 0:
            A('s_lshl_b32 s%d, s%d, 13', sM0, sBK)
            A('s_add_u32 s%d, s%d, s%d', sM0, sM0, sHB)
            blk_next(A, sBK, sBS)
        A('buffer_load_dwordx4 %s, v%d, s[%d:%d], s%d offen offset:%d%s', v(vXR + 4 * (k % NB), 4), vO, SWS, SWS + 3,
          sM0, (k & 3) * 1024, LDB)
        vq.append(('b', k))
        if k % 8 == 3:
            A('s_add_u32 s%d, s%d, 4096', sM0, sM0)

    INFL = E('P4INFL', 10)
    assert INFL < NB
    A('s_waitcnt vmcnt(2)')
    flag_check('s%d' % sEM)
    stamp(A)
    issued = E('P4PRE', 8)
    for k in range(issued):
        issue_b(k)
    NI = E('P4INT', 0)
    blocks = p3_epilogue(3, True)
    for j, b in enumerate(blocks):
        if j < len(blocks) - 1 and issued < E('P4PRE', 8) + (NI * (j + 1)) // (len(blocks) - 1):
            issue_b(issued)
            issued += 1
        A.lines += b
    vq += ['st', 'st']
    read_w2(0)
    read_w2(1)
    while issued < INFL:
        issue_b(issued)
        issued += 1
    unpack_hp()
    stamp(A)
    KF, KL, KC = E('P4KF', 3), E('P4KL', 9), E('P4KC', 14)
    pend = False
    for k in range(56):
        if k + 2 < 56:
            read_w2(k + 2)
        need = vm_need(('b', k))
        if k == KF:
            need = min(need, vm_need('st'))
        if k == KC:
            need = min(need, vm_need('pf'))
        Q.wait(('w', k), need)
        if k % 4 == 0 and k:
            stamp(A, 'p4')
        buf = abuf(k)
        mfma(A, vAC + 16, buf + 4, vXR + 4 * (k % NB), k == 0)
        if k == KF:
            pub_flag(A, sFL2, True, False)
            vq.append('fl')
        if k == E('HCL', -1):
            for q in range(2):
                A(st4(vHP + 4 * q, 11, q * 1024) % ' sc1')
                vq.append('hc')
        if k == KL:
            flag_load(A)
            vq.append('pf')
        if k == KC:
            flag_check('0xfffffff')
            pend = True
        for _ in range(E('P4CU', 2)):
            if issued < min(56, k + 1 + INFL) and (issued < 24 or pend):
                issue_b(issued)
                issued += 1
        mfma(A, vAC, buf, vXR + 4 * (k % NB))
    stamp(A)
    if E('OUTT', 1):
        A('v_readfirstlane_b32 s%d, v%d', sC, vSR)
        A('v_readfirstlane_b32 s%d, v%d', sT2, vRO)
        A('v_and_b32 v%d, 31, v%d', vTT, vL)
        A('v_mul_u32_u24 v%d, 80, v%d', vTT, vTT)
        A('v_lshrrev_b32 v%d, 5, v%d', vT1, vL)
        A('v_lshl_add_u32 v%d, v%d, 3, v%d', vTT, vT1, vTT)
        A('v_add_u32 v%d, s%d, v%d', vTT, sC, vTT)
        A('v_lshrrev_b32 v%d, 2, v%d', vT1, vL)
        A('v_and_b32 v%d, 3, v%d', vTT + 3, vL)
        A('v_lshlrev_b32 v%d, 4, v%d', vTT + 3, vTT + 3)
        A('v_mul_u32_u24 v%d, 80, v%d', vTT + 1, vT1)
        A('v_add3_u32 v%d, v%d, v%d, s%d', vTT + 1, vTT + 1, vTT + 3, sC)
        A('v_mul_u32_u24 v%d, 896, v%d', vTT + 2, vT1)
        A('v_add_u32 v%d, v%d, v%d', vTT + 2, vTT + 2, vTT + 3)
        A('s_add_u32 s%d, s%d, %d', sC, sT2, 16 * 896)
    exchange(C0 + 27)
    cvt8(A, vHP, vAC)
    OB = ('', ' sc1', ' nt', ' sc0 sc1')[E('OUTB', 2)]
    if E('OUTT', 1):
        for q in range(4):
            A('ds_write_b64 v%d, v[%d:%d] offset:%d', vTT, vHP + 2 * q, vHP + 2 * q + 1, q * 16)
        for q in range(2):
            A('ds_read_b128 %s, v%d offset:%d', v(vHP + 4 * q, 4), vTT + 1, q * 16 * 80)
        for q in range(2):
            A('s_waitcnt lgkmcnt(%d)', 1 - q)
            A('buffer_store_dwordx4 %s, v%d, s[%d:%d], s%d offen%s', v(vHP + 4 * q, 4), vTT + 2, SOUT, SOUT + 3,
              (sT2, sC)[q], OB)
    else:
        for q in range(2):
            A('v_permlane32_swap_b32 v%d, v%d', vHP + 4 * q, vHP + 4 * q + 2)
            A('v_permlane32_swap_b32 v%d, v%d', vHP + 4 * q + 1, vHP + 4 * q + 3)
        for q in range(2):
            A('buffer_store_dwordx4 %s, v%d, s[%d:%d], 0 offen offset:%d%s', v(vHP + 4 * q, 4), vRO, SOUT, SOUT + 3,
              q * 32, OB)
    A('s_or_b32 s%d, s%d, s%d', sT, sI, sWV)
    A('s_or_b32 s%d, s%d, s%d', sT, sT, sXCD)
    A('s_cmp_lg_u32 s%d, 0', sT)
    A('s_cbranch_scc1 %s', fin)
    A('s_mov_b32 s%d, %d', sT, FEP)
    A('s_mov_b64 exec, 1')
    A('buffer_store_dword v%d, v%d, s[%d:%d], s%d offen', vTAG, vO, SWS, SWS + 3, sT)
    A('s_mov_b64 exec, -1')
    A('%s:', fin)
    if E('PADTO', 0):
        lo = A.label('PAD')
        A('s_waitcnt vmcnt(0) lgkmcnt(0)')
        A('s_mov_b32 s6, %d', E('PADTO', 0))
        if PROBE >= 0:
            A('s_sub_u32 s7, s56, s84')
            A('s_lshl_b32 s7, s7, 2')
            A('s_cmp_ge_u32 s%d, 28', sI)
            A('s_cselect_b32 s7, 0, s7')
            A('s_add_u32 s6, s6, s7')
        A('%s:', lo)
        A('s_memrealtime s[4:5]')
        A('s_waitcnt lgkmcnt(0)')
        A('s_sub_u32 s4, s4, s84')
        A('s_cmp_lt_u32 s4, s6')
        A('s_cbranch_scc1 %s', lo)
    stamp_flush(A)


def gen():
    A = Asm()
    name = NAME + '_kernel'
    A.lines += ['.p2align 8', '.globl %s' % name, '.type %s,@function' % name, '%s:' % name]
    end = A.label('END')
    if E('PADTO', 0):
        A('s_memrealtime s[84:85]')
    A('s_load_dwordx16 s[64:79], s[0:1], 0')
    A('s_load_dwordx2 s[80:81], s[0:1], 72')
    A('s_getpc_b64 s[%d:%d]', sPC, sPC + 1)
    A('s_cmp_ge_u32 s2, 256')
    A('s_cbranch_scc1 %s', end)
    assert MAP == 0
    A('s_and_b32 s%d, s2, 7', sXCD)
    A('s_lshr_b32 s%d, s2, 3', sI)
    A('v_lshrrev_b32 v%d, 6, v0', vMY)
    A('v_and_b32 v%d, 63, v0', vL)
    A('s_and_b32 s%d, s%d, 1', sTB, sI)
    A('s_lshl1_add_u32 s%d, s%d, s%d', sTB, sXCD, sTB)
    A('v_readfirstlane_b32 s%d, v%d', sWV, vMY)
    A('s_add_u32 s%d, s%d, s%d', sC0, sXCD, sI)
    A('s_mul_i32 s%d, s%d, 37', sT, sC0)
    A('s_lshr_b32 s%d, s%d, 8', sT, sT)
    A('s_mul_i32 s%d, s%d, 7', sT, sT)
    A('s_sub_u32 s%d, s%d, s%d', sC0, sC0, sT)
    if CODEPF & 8:
        nc = A.label('NC')
        A('s_cmp_lg_u32 s%d, 5', sWV)
        A('s_cbranch_scc1 %s', nc)
        code_touch(A, 72)
        A('%s:', nc)
    x_offsets(A)
    perm = [2, 4, 6, 9, 11, 13, 0, 1, 3, 5, 7, 8, 10, 12, 14, 15]
    lo = sum(perm[i] << (4 * i) for i in range(8))
    hi = sum(perm[8 + i] << (4 * i) for i in range(8))
    A('s_mov_b32 s%d, 0x%x', sHI, lo)
    A('s_mov_b32 s%d, 0x%x', sHI + 1, hi)
    A('s_lshr_b32 s%d, s%d, 1', sT, sI)
    A('s_lshl_b32 s%d, s%d, 2', sT, sT)
    A('s_lshr_b64 s[%d:%d], s[%d:%d], s%d', sHI, sHI + 1, sHI, sHI + 1, sT)
    A('s_and_b32 s%d, s%d, 15', sH, sHI)
    A('v_lshlrev_b32 v%d, 2, v%d', vMY, vMY)
    A('v_add_u32 v%d, %d, v%d', vMY, L_MISC, vMY)
    A('v_mov_b32 v%d, 0', vT0)
    A('ds_write2st64_b32 v%d, v%d, v%d offset0:0 offset1:1', vMY, vT0, vT0)
    A('ds_write2_b32 v%d, v%d, v%d offset0:%d offset1:%d', vMY, vT0, vT0, M_FAST // 4, M_CP // 4)
    w_offsets(A)
    A('v_mov_b32 v%d, %d', vMI, L_MISC)
    A('s_mov_b32 s%d, 0x400000', sSPIN)
    A('s_mov_b32 s%d, 0', sPROG)
    A('s_mul_i32 s%d, s%d, %d', sT2, sWV, 32 * 896)
    A('s_lshl_b32 s%d, s%d, 7', sT, sC0)
    A('s_add_u32 s%d, s%d, s%d', sT, sT, sXB)
    A('s_add_u32 s%d, s%d, s%d', sT, sT, sT2)
    A('s_lshl_b32 m0, s%d, 12', sWV)
    A('s_mov_b32 s%d, 0x%x', SX + 2, 0 if E('ABL', 0) & 16 else S * D * 2)
    A('s_mov_b32 s%d, 0x20000', SX + 3)
    A('s_mov_b32 s%d, 0x%x', SW + 2, 0 if E('ABL', 0) & 8 else D * 3 * D * 2)
    A('s_mov_b32 s%d, 0x20000', SW + 3)
    A('s_waitcnt lgkmcnt(0)')
    A('s_mov_b64 s[%d:%d], s[64:65]', SX, SX + 1)
    A('s_mov_b64 s[%d:%d], s[66:67]', SW, SW + 1)
    A('s_mov_b32 s%d, 0', sPROG1)
    _st['n'] = 0
    stamp(A, 'all')
    if STAMPS:
        A('s_memrealtime s[86:87]')
    for i in range(7):
        LP[('x', i)] = (7, 1 + i)
    hn = [9]
    for gi in range(4):
        us = E('HSPOS', 3) if gi == 0 else 0
        LP[('st', gi)] = (6 - (gi & 1), 4 + gi // 2)
        for q in range(7):
            if q in HITEMS[gi > 0]:
                hn[0] += 1
                LP[('h', gi, q)] = (7, hn[0])
            if q == us:
                hn[0] += 1
                LP[('hs', gi)] = (7, hn[0])
    for pi in range(3):
        for i in range(7):
            LP[('W', pi, i)] = (4, 7 * pi + i + 1)
    l0, l1, l2, lw, lc = A.label('H0'), A.label('H1'), A.label('H23'), A.label('EW'), A.label('EC')
    l7 = A.label('E7')
    A('s_cmp_eq_u32 s%d, 4', sWV)
    A('s_cbranch_scc1 %s', lw)
    A('s_cmp_gt_u32 s%d, 4', sWV)
    A('s_cbranch_scc1 %s', l7)
    for u in range(4):
        A('buffer_load_dwordx4 v%d, s[%d:%d], s%d offen offset:%d lds', vXD + u, SX, SX + 3, sT, u * 1024)
    A('%s:', l7)
    if SHST:
        n6 = A.label('N6')
        A('s_cmp_lg_u32 s%d, 6', sWV)
        A('s_cbranch_scc1 %s', n6)
        A('s_mul_i32 s%d, s%d, %d', sT, sH, 8 * 896)
        A('s_add_u32 s%d, s%d, s%d', sT, sT, sXB)
        for u in range(7):
            A('buffer_load_dwordx4 %s, v%d, s[%d:%d], s%d offen offset:%d', v(76 + 4 * u, 4), vXD, SX, SX + 3, sT,
              u * 128)
        A('%s:', n6)
    A('s_cmp_lg_u32 s%d, 7', sWV)
    A('s_cbranch_scc1 %s', lc)
    HELP['on'] = True
    nst = {}
    prio(A, 1)
    _st['n'] = 1
    HELP['role'] = '7'
    early_x(A)
    nst[l1] = _st['n']
    A('s_branch %s', l1)
    A('%s:', lw)
    prio(A, 1)
    _st['n'] = 1
    HELP['role'] = '4'
    early_w(A)
    nst[l0] = _st['n']
    nst[l2] = 1
    A('s_branch %s', l0)
    refresh_routines(A)
    A('%s:', lc)
    A('s_barrier')
    A('s_cmp_ge_u32 s%d, 5', sWV)
    A('s_cbranch_scc1 %s', l2)
    parts = {}
    for lab, fn in ((l0, gen_h0), (l1, gen_h1), (l2, gen_h23)):
        B = sub(A)
        B('%s:', lab)
        B('s_nop 4')
        HELP['on'] = True
        prio(B, 1)
        _st['n'] = nst[lab]
        HELP['role'] = {l0: '4', l1: '7', l2: 'h'}[lab]
        fn(B)
        HELP['role'] = 'c'
        HELP['on'] = False
        parts[lab] = B.lines
    if E('H2F', 1):
        lcc = A.label('CC')
        A.lines[-2:] = ['  s_cmp_lt_u32 s%d, 5' % sWV, '  s_cbranch_scc1 %s' % lcc]
        A.lines += parts[l2]
        A('%s:', lcc)
    _st['n'] = 1
    gen_compute(A)
    A('%s:', end)
    A('s_endpgm')
    for lab in (l0, l1) if E('H2F', 1) else (l0, l1, l2):
        A.lines += parts[lab]
    A.lines += COLD
    return A, name


def main():
    out = sys.argv[1] if len(sys.argv) > 1 else 'cdna_kernels/%s.s' % NAME
    A, name = gen()
    lines, nn = fix_hazards(A.lines)
    IT = E('ITOUCH', 0)
    if IT:
        sz = sizes_of(lines)
        start = lines.index(';ITOUCH')
        ol, acc, n = [], 0, 0
        for i, l in enumerate(lines):
            if i > start and i in sz:
                prev = lines[i - 1].strip()
                if acc >= IT and not prev.startswith(('s_getpc', 's_endpgm', 's_branch', 's_setpc')):
                    ol += ['IT_%d:' % n, '  s_cbranch_execz IT_RET']
                    n += 1
                    acc = 4
                acc += sz[i]
            ol.append(l)
        calls = ['  s_mov_b64 exec, 0'] + ['  s_call_b64 s[4:5], IT_%d' % k for k in range(n)] + [
            '  s_mov_b64 exec, -1', '  s_branch IT_END', 'IT_RET:', '  s_setpc_b64 s[4:5]', 'IT_END:']
        k = ol.index(';ITOUCH')
        lines = ol[:k] + calls + ol[k + 1:]
        print('landing points', n)
    if E('ALIGN', 0):
        lines, na = align8(lines)
        print('re-encoded', na)
    hdr = ['; generated by gen/gen18.py (hand-written generator script)',
           '; @launch grid=(256,1,1) block=(512,1,1) lds=%d' % LDS_SIZE,
           '.amdgcn_target "amdgcn-amd-amdhsa--gfx950"', '.text']
    tail = ['.p2align 8', '.fill 2048, 4, 0xbf800000', '.section .rodata,"a"', '.p2align 6', '''.amdhsa_kernel %s
  .amdhsa_next_free_vgpr 256
  .amdhsa_next_free_sgpr 102
  .amdhsa_accum_offset 256
  .amdhsa_group_segment_fixed_size 0
  .amdhsa_kernarg_size 80
  .amdhsa_user_sgpr_count 2
  .amdhsa_user_sgpr_kernarg_segment_ptr 1
  .amdhsa_system_sgpr_workgroup_id_x 1
  .amdhsa_float_denorm_mode_32 3
  .amdhsa_float_denorm_mode_16_64 3
.end_amdhsa_kernel''' % name]
    open(out, 'w').write('\n'.join(hdr + lines + tail) + '\n')
    print('wrote', out, 'lines', len(lines), 'nops', nn)


if __name__ == '__main__':
    main()
```

```python
import sys
import os
sys.path.insert(0, os.path.dirname(os.path.abspath(__file__)))
from asmlib import Asm, fix_hazards, align8, sizes_of, v

NAME = 'sequential_preLN__linear_kernel_hedgehog__dense_activation_silu__prompt'
S, D, H, DH, F = 2048, 448, 16, 28, 1792
MB = 1 << 20
E = lambda k, d: int(os.environ.get(k, d))
STAMPS = E('STAMPS', 0)
MAP = E('MAP', 0)
FAST = E('FAST', 1)
CODEPF = E('CODEPF', 10)
WARM = E('WARM', 0)
WT1 = E('WT1', 1)
WTO = E('WTO', 0)
TOUCHAT = E('TOUCHAT', 2)
LDB = (' sc1', '', ' nt')[E('LDB', 0)]
HLATE = E('HLATE', 1)
WS_KVP = 0
WS_OB = 2 * MB
WS_HB = 4 * MB
WS_H1B = 8 * MB
WS_FLG = 16 * MB
F1, F2, F3, F4, FREG, FEP = WS_FLG + 0x10000, WS_FLG + 0x1000, WS_FLG + 0x3000, WS_FLG + 0x70000, WS_FLG + 0x9000, WS_FLG + 0xA000
F2X = WS_FLG + 0x40000
FLN = WS_FLG + 0x80000
SHST = E('SHST', 0)
WS_STAMP = 17 * MB
WS_SIZE = 18 * MB
LOG2E = 0x3fb8aa3b
ONES = 0x3f803f80
MFMA = 'v_mfma_f32_32x32x16_bf16'
L_X = 0
L_WP = (114688, 0, 32768)
L_KVA, L_KVV = 65536, 81920
L_A = 98304
L_SC0, L_SC1 = 49152, 57344
L_XRES = L_SC0
B16 = (0, 16384, 65536, 81920, 32768)
L_PHI, L_EX, L_CF, L_MISC = 159744 - 2048 + 2048 + 1536, 155648, 159744, 163328
LDS_SIZE = 163840
M_PW, M_FAST, M_CP, M_LD = 0, 64, 96, 256
L_RSTD = L_EX

SX, SW, SP, SWS, SWO, SW1, SW2, SOUT = 12, 16, 20, 24, 28, 32, 36, 40
sTB, sH, sWV, sC0, sPROG, sT, sT2, sONES, sC, sTAG, sFASTF, sI, sXCD = 44, 45, 46, 47, 48, 49, 50, 51, 52, 53, 54, 55, 3
sHI, sPADL, sZA, sZB, sODD, sPC = 4, 6, 8, 10, 92, 94
sTQ, sNB, sTB3, sFB, sG, sKH, sB, sXB, sM0, sSPIN = 96, 97, 98, 99, 100, 101, 88, 89, 91, 90
sPROG1, sFL = 0, 1
vL, vMI, vT0, vT1, vO = 1, 2, 3, 4, 5
vTAG, vMY = 6, 7
vTT = 8
vXA = 12
vWA = 16
vSM, vSQ = 20, 22
vNM, vRS, vSC, vRA = 24, 25, 26, 27
vXD = 28
vPW = 32
vCA = 36
vXR = 144
vPK_ = 37
CACHE = {4: sPROG, 7: sPROG1, 5: sC0}

_st = {'n': 0}
C0 = 4
HELP = {'on': False}


def prio(A, hi):
    if HELP['on'] and E('HPRIO', 2) and not HELP.get('hot'):
        A('s_setprio %d', E('HPRIO', 2) if hi else 0)
LP = {}


STSET = os.environ.get('STSET', 'main')


DBGT = E('DBGT', 0)


PROBE = E('PROBE', -1)


DLY = os.environ.get('DLY', '')


def stamp(A, tag='main'):
    if DLY:
        if tag in ('main', 'all'):
            if '%s:%d' % (HELP.get('role', 'c'), _st['n']) == DLY:
                A('s_sleep 16')
            _st['n'] += 1
        return
    if PROBE >= 0:
        if not HELP['on'] and tag in ('main', 'all'):
            if _st['n'] == PROBE:
                A('s_memrealtime s[56:57]')
            _st['n'] += 1
        return
    if DBGT and not HELP['on'] and tag in ('main', 'all'):
        A('s_memrealtime s[%d:%d]', 56 + 2 * _st['n'], 57 + 2 * _st['n'])
        _st['n'] += 1
        return
    if STAMPS and STSET == 'clk' and tag == 'main' and not HELP['on']:
        _st['m'] = _st.get('m', 0) + 1
        if _st['m'] in (1, 2, 4, 8, 10, 13):
            A('s_memtime s[%d:%d]', 56 + 2 * _st['n'], 57 + 2 * _st['n'])
            A('s_memrealtime s[%d:%d]', 58 + 2 * _st['n'], 59 + 2 * _st['n'])
            _st['n'] += 2
        return
    if STAMPS and (tag == STSET or tag == 'all' or (HELP['on'] and tag == 'main')):
        assert _st['n'] < 15, 'too many stamps'
        A('s_memtime s[%d:%d]', 56 + 2 * _st['n'], 57 + 2 * _st['n'])
        _st['n'] += 1


def stamp_flush(A):
    if DBGT and not HELP['on']:
        A('s_waitcnt vmcnt(0)')
        stamp(A, 'all')
        skip = A.label('DS')
        A('s_waitcnt vmcnt(0) lgkmcnt(0)')
        A('s_cmp_ge_u32 s%d, 28', sI)
        A('s_cbranch_scc1 %s', skip)
        A('s_mov_b64 exec, 1')
        A('v_mov_b32 v1, 0')
        A('s_not_b32 s4, s56')
        A('v_mov_b32 v2, s4')
        A('global_atomic_umax v1, v2, s[86:87] offset:60')
        for i in range(_st['n']):
            A('v_mov_b32 v%d, s%d', 8 + i, 56 + 2 * i)
            A('global_atomic_umax v1, v%d, s[86:87] offset:%d', 8 + i, 4 * i)
        A('%s:', skip)
        return
    if STAMPS:
        A('s_waitcnt vmcnt(0)')
        stamp(A, 'all')
        A('s_memrealtime s[4:5]')
        A('s_waitcnt vmcnt(0) lgkmcnt(0)')
        A('s_sub_u32 s4, s4, s86')
        A('s_lshl_b32 s4, s4, 20')
        A('s_and_b32 s86, s86, 0xfffff')
        A('s_or_b32 s86, s86, s4')
        A('s_lshl_b32 s%d, s2, 3', sT)
        A('s_add_u32 s%d, s%d, s%d', sT, sT, sWV)
        A('s_lshl_b32 s%d, s%d, 6', sT, sT)
        A('s_add_u32 s%d, s%d, %d', sT, sT, WS_STAMP)
        A('s_mov_b64 exec, 1')
        A('v_mov_b32 v1, 0')
        for i in range(16):
            if i < _st['n']:
                A('v_mov_b32 v2, s%d', 56 + 2 * i)
            elif i == 15:
                A('v_mov_b32 v2, s86')
            else:
                A('v_mov_b32 v2, 0')
            A('buffer_store_dword v2, v1, s[%d:%d], s%d offen offset:%d', SWS, SWS + 3, sT, 4 * i)
            A('s_nop 1')


def srd(A, d, ptr, size):
    A('s_mov_b32 s%d, s%d', d, ptr)
    A('s_and_b32 s%d, s%d, 0xffff', d + 1, ptr + 1)
    A('s_mov_b32 s%d, 0x%x', d + 2, size)
    A('s_mov_b32 s%d, 0x20000', d + 3)


COLD = []


def cold_block(A, fn):
    ent, back = A.label('CE'), A.label('CB')
    B = sub(A)
    B('%s:', ent)
    B('s_nop 15')
    fn(B, back)
    B('s_nop 7')
    B('s_branch %s', back)
    COLD.extend(B.lines)
    return ent, back


def again(A, br, lo, sleep=0):
    slp = max(sleep * E('SLPMUL', 1), E('HSLP', 0) if HELP['on'] else E('CSLP', 0))
    if slp:
        st = A.label('ZZ')
        COLD.extend(['%s:' % st, '  s_sleep %d' % slp, '  s_branch %s' % lo])
        lo = st
    A('%s %s', br, lo)


def spin_guard(A, done):
    A('s_sub_u32 s%d, s%d, 1', sSPIN, sSPIN)
    A('s_cbranch_scc1 %s', done)


def wait_word(A, w, n, cache=None, sleep=0, body=None):
    sd = sT if cache is None else cache

    def loop(B, done, body=None):
        lo = B.label('W')
        prio(B, 0)
        B('%s:', lo)
        B('ds_read_b32 v%d, v%d offset:%d', vPW, vMI, M_PW + 4 * w)
        k = body() if body else 0
        B('s_waitcnt lgkmcnt(%d)', k)
        B('v_readfirstlane_b32 s%d, v%d', sd, vPW)
        spin_guard(B, done)
        B('s_cmp_ge_u32 s%d, %d', sd, n)
        again(B, 's_cbranch_scc0', lo, sleep)
        prio(B, 1)
    if cache is not None and body is None and not HELP['on']:
        A('s_getpc_b64 s[%d:%d]', sPC, sPC + 1)
        A('s_cmp_ge_u32 s%d, %d', sd, n)
        A('s_cbranch_scc0 REFRESH_%d', w)
        return
    done = A.label('WD')
    if cache is not None and body is None:
        A('s_cmp_ge_u32 s%d, %d', sd, n)
        A('s_cbranch_scc1 %s', done)
    loop(A, done, body)
    A('%s:', done)


def wait_lp(A, name, sleep=0):
    w, n = LP[name]
    wait_word(A, w, n, CACHE[w], sleep)


def set_stage(A, n):
    A('v_mov_b32 v%d, %d', vT0, n)
    A('ds_write_b32 v%d, v%d', vMY, vT0)


def wait_stage(A, n, which=(0, 1, 2, 3), body=None, sleep=0, base=M_PW, cache=None):
    lo, done = A.label('W'), A.label('WD')
    sT = globals()['sT'] if cache is None else cache
    if cache is not None:
        A('s_cmp_ge_u32 s%d, %d', sT, n)
        A('s_cbranch_scc1 %s', done)
    prio(A, 0)
    A('%s:', lo)
    A('ds_read_b128 v[%d:%d], v%d offset:%d', vPW, vPW + 3, vMI, base + 16 * (which[0] // 4))
    k = body() if body else 0
    A('s_waitcnt lgkmcnt(%d)', k)
    w = [x % 4 for x in which]
    if len(w) == 4:
        A('v_min3_u32 v%d, v%d, v%d, v%d', vPW, vPW, vPW + 1, vPW + 2)
        A('v_min_u32 v%d, v%d, v%d', vPW, vPW, vPW + 3)
        r = vPW
    else:
        A('v_min_u32 v%d, v%d, v%d', vPW + w[0], vPW + w[0], vPW + w[1])
        r = vPW + w[0]
    A('v_readfirstlane_b32 s%d, v%d', sT, r)
    spin_guard(A, done)
    A('s_cmp_ge_u32 s%d, %d', sT, n)
    again(A, 's_cbranch_scc0', lo, sleep)
    A('%s:', done)
    prio(A, 1)


def poll_global(A, soff, nlanes):
    lo, done = A.label('P'), A.label('PD')
    A('v_lshlrev_b32 v%d, 2, v%d', vT1, vL)
    if nlanes <= 32:
        A('s_mov_b64 exec, 0x%x', (1 << nlanes) - 1)
    else:
        A('s_mov_b32 exec_lo, 0x%x', nlanes & 0xffffffff)
        A('s_mov_b32 exec_hi, 0x%x', nlanes >> 32)
    A('%s:', lo)
    A('buffer_load_dword v%d, v%d, s[%d:%d], s%d offen sc1', vT0, vT1, SWS, SWS + 3, soff)
    A('s_waitcnt vmcnt(0)')
    A('v_cmp_ne_u32 vcc, s%d, v%d', sTAG, vT0)
    spin_guard(A, done)
    A('s_cbranch_vccnz %s', lo)
    A('%s:', done)
    A('s_mov_b64 exec, -1')


def poll_scalar(A, soff, n):
    lo, done = A.label('P'), A.label('PD')
    A('s_add_u32 s%d, s%d, s%d', sPC, SWS, soff)
    A('s_addc_u32 s%d, s%d, 0', sPC + 1, SWS + 1)
    base = 76
    assert n == 8
    A('%s:', lo)
    if E('PSLEEP', 0):
        A('s_sleep %d', E('PSLEEP', 0))
    A('s_load_dwordx%d s[%d:%d], s[%d:%d], 0 glc', n, base, base + n - 1, sPC, sPC + 1)
    A('s_waitcnt lgkmcnt(0)')
    A('s_and_b64 s[%d:%d], s[%d:%d], s[%d:%d]', sHI, sHI + 1, base, base + 1, base + 2, base + 3)
    A('s_or_b64 s[%d:%d], s[%d:%d], s[%d:%d]', sPADL, sPADL + 1, base, base + 1, base + 2, base + 3)
    for k in range(4, n, 2):
        A('s_and_b64 s[%d:%d], s[%d:%d], s[%d:%d]', sHI, sHI + 1, sHI, sHI + 1, base + k, base + k + 1)
        A('s_or_b64 s[%d:%d], s[%d:%d], s[%d:%d]', sPADL, sPADL + 1, sPADL, sPADL + 1, base + k, base + k + 1)
    A('s_and_b32 s%d, s%d, s%d', sHI, sHI, sHI + 1)
    A('s_or_b32 s%d, s%d, s%d', sPADL, sPADL, sPADL + 1)
    A('s_xor_b32 s%d, s%d, s%d', sHI, sHI, sTAG)
    A('s_xor_b32 s%d, s%d, s%d', sPADL, sPADL, sTAG)
    spin_guard(A, done)
    A('s_or_b32 s%d, s%d, s%d', sHI, sHI, sPADL)
    A('s_cbranch_scc1 %s', lo)
    A('%s:', done)


def two_ways(A, fn, local):
    if local and FAST:
        ent, back = cold_block(A, lambda B, back: fn(B, ' sc1'))
        A('s_cmp_eq_u32 s%d, 0', sFASTF)
        A('s_cbranch_scc1 %s', ent)
        fn(A, '')
        A('%s:', back)
    else:
        fn(A, ' sc1')


def pub_stores(A, stores, local):
    def fn(B, bits):
        for st in stores:
            B(st % bits)
    two_ways(A, fn, local)


def pub_flag(A, sflag, local, drain=True):
    if drain:
        A('s_waitcnt vmcnt(0)')
    A('s_mov_b64 exec, 1')
    two_ways(A, lambda B, bits: B('buffer_store_dword v%d, v%d, s[%d:%d], s%d offen%s', vTAG, vO, SWS, SWS + 3, sflag,
                                  bits), local)
    A('s_mov_b64 exec, -1')


def pub_flag4(A):
    A('v_lshlrev_b32 v%d, 9, v%d', vT1, vL)
    A('s_waitcnt vmcnt(0)')
    A('s_mov_b64 exec, 15')
    two_ways(A, lambda B, bits: B('buffer_store_dword v%d, v%d, s[%d:%d], s%d offen%s', vTAG, vT1, SWS, SWS + 3, sFL,
                                  bits), True)
    A('s_mov_b64 exec, -1')


def st4(reg, soff, off):
    return 'buffer_store_dwordx4 %s, v%d, s[%d:%d], s%d offen offset:%d%%s' % (v(reg, 4), vO, SWS, SWS + 3, soff, off)


def hilo_c(A, src, f, tmp):
    A('v_cvt_pk_bf16_f32 v%d, v%d, v%d', f, src, src)
    A('v_and_b32 v%d, 0xffff0000, v%d', tmp, f)
    A('v_sub_f32 v%d, v%d, v%d', tmp, src, tmp)
    A('v_cvt_pk_bf16_f32 v%d, v%d, 0', f + 1, tmp)


def hilo_m(A, src, f, tmp):
    A('v_cvt_pk_bf16_f32 v%d, v%d, 0', f + 1, src)
    A('v_lshlrev_b32 v%d, 16, v%d', tmp, f + 1)
    A('v_sub_f32 v%d, v%d, v%d', tmp, src, tmp)
    A('v_cvt_pk_bf16_f32 v%d, v%d, v%d', f, src, tmp)


def ln_finish(A, t0, t1, negmean, rstd):
    A('v_mul_f32 v%d, 0x%x, v%d', t0, 0x3b124925, t0)
    A('v_mov_b32 v%d, v%d', t1, t0)
    A('v_permlane32_swap_b32 v%d, v%d', t0, t1)
    A('v_fma_f32 v%d, -v%d, v%d, v%d', t1, t0, t0, t1)
    A('v_max_f32 v%d, 0, v%d', t1, t1)
    A('v_add_f32 v%d, 0x%x, v%d', t1, 0x3727c5ac, t1)
    A('v_rsq_f32 v%d, v%d', rstd, t1)
    A('v_sub_f32 v%d, 0, v%d', negmean, t0)


def softmax_pm(A, p, sc, e, t):
    A('v_cndmask_b32 v%d, v%d, v%d, s[%d:%d]', p + 12, p + 12, p + 14, sHI, sHI + 1)
    A('v_cndmask_b32 v%d, v%d, v%d, s[%d:%d]', p + 13, p + 13, p + 15, sHI, sHI + 1)
    mx, mn = t, t + 1
    A('v_max3_f32 v%d, v%d, v%d, v%d', mx, p, p + 1, p + 2)
    A('v_min3_f32 v%d, v%d, v%d, v%d', mn, p, p + 1, p + 2)
    for i in range(3, 13, 2):
        A('v_max3_f32 v%d, v%d, v%d, v%d', mx, mx, p + i, p + i + 1)
        A('v_min3_f32 v%d, v%d, v%d, v%d', mn, mn, p + i, p + i + 1)
    A('v_max_f32 v%d, v%d, v%d', mx, mx, p + 13)
    A('v_min_f32 v%d, v%d, v%d', mn, mn, p + 13)
    A('v_sub_f32 v%d, 0, v%d', mn, mn)
    A('v_permlane32_swap_b32 v%d, v%d', mx, mn)
    A('v_max_f32 v%d, v%d, v%d', mx, mx, mn)
    A('v_mul_f32 v%d, v%d, v%d', mx, mx, sc)
    A('v_mov_b32 v%d, v%d', mn, mx)
    A('v_permlane32_swap_b32 v%d, v%d', mx, mn)
    assert sc % 2 == 0 and mx % 2 == 0
    for i in range(0, 14, 2):
        A('v_pk_fma_f32 v[%d:%d], v[%d:%d], v[%d:%d], v[%d:%d] op_sel:[0,0,1] op_sel_hi:[1,0,1] neg_lo:[1,0,1] '
          'neg_hi:[1,0,1]', e + i, e + i + 1, p + i, p + i + 1, sc, sc + 1, mx, mx + 1)
        A('v_pk_fma_f32 v[%d:%d], v[%d:%d], v[%d:%d], v[%d:%d] op_sel_hi:[1,0,0] neg_lo:[0,0,1] neg_hi:[0,0,1]',
          p + i, p + i + 1, p + i, p + i + 1, sc, sc + 1, mx, mx + 1)
    for i in range(14):
        A('v_exp_f32 v%d, v%d', e + i, e + i)
        A('v_exp_f32 v%d, v%d', p + i, p + i)
    if PKSM:
        for base in (p, e):
            A('v_pk_add_f32 v[%d:%d], v[%d:%d], v[%d:%d]', base + 14, base + 15, base, base + 1, base + 2, base + 3)
        for i in range(4, 14, 2):
            for base in (p, e):
                A('v_pk_add_f32 v[%d:%d], v[%d:%d], v[%d:%d]', base + 14, base + 15, base + 14, base + 15, base + i,
                  base + i + 1)
    else:
        for base in (p, e):
            A('v_add_f32 v%d, v%d, v%d', base + 14, base, base + 2)
            A('v_add_f32 v%d, v%d, v%d', base + 15, base + 1, base + 3)
        for i in range(4, 14):
            for base in (p, e):
                A('v_add_f32 v%d, v%d, v%d', base + 14 + (i & 1), base + 14 + (i & 1), base + i)
    sp, sn = t + 2, t
    A('v_add_f32 v%d, v%d, v%d', sp, p + 14, p + 15)
    A('v_add_f32 v%d, v%d, v%d', sn, e + 14, e + 15)
    A('v_permlane32_swap_b32 v%d, v%d', sp, sn)
    A('v_add_f32 v%d, v%d, v%d', sp, sp, sn)
    A('v_rcp_f32 v%d, v%d', sp, sp)
    A('v_mov_b32 v%d, v%d', sn, sp)
    A('v_permlane32_swap_b32 v%d, v%d', sp, sn)
    for i in range(0, 14, 2):
        for base, r in ((p, sp), (e, sn)):
            if PKSM:
                A('v_pk_mul_f32 v[%d:%d], v[%d:%d], v[%d:%d] op_sel_hi:[1,0]', base + i, base + i + 1, base + i,
                  base + i + 1, r, r + 1)
            else:
                A('v_mul_f32 v%d, v%d, v%d', base + i, base + i, r)
                A('v_mul_f32 v%d, v%d, v%d', base + i + 1, base + i + 1, r)
    for i, (a0, a1) in enumerate(((0, 1), (2, 3), (4, 5), (6, None), (7, 8), (9, 10), (11, 12), (13, None))):
        for base in (p, e):
            A('v_cvt_pk_bf16_f32 v%d, v%d, %s', base + i, base + a0, '0' if a1 is None else 'v%d' % (base + a1))


PKSM = E('PKSM', 1)


def silu8(B, acc, e, sd, c1, out):
    for r in range(8):
        B('v_mul_f32 v%d, v%d, v%d', e + r, acc + r, c1)
        if r >= 1:
            B('v_exp_f32 v%d, v%d', e + r - 1, e + r - 1)
    B('v_exp_f32 v%d, v%d', e + 7, e + 7)
    for r in range(8):
        B('v_fma_f32 v%d, v%d, v%d, v%d', e + r, e + r, sd, sd)
        if r >= 1:
            B('v_rcp_f32 v%d, v%d', e + r - 1, e + r - 1)
    B('v_rcp_f32 v%d, v%d', e + 7, e + 7)
    for r in range(8):
        B('v_mul_f32 v%d, v%d, v%d', e + r, e + r, acc + r)
    cvt8(B, out, e, 4)


def cvt8(A, dst, src, n=8):
    for i in range(n):
        A('v_cvt_pk_bf16_f32 v%d, v%d, v%d', dst + i, src + 2 * i, src + 2 * i + 1)


def mfma(A, d, a_, b_, first=False):
    A('%s %s, %s, %s, %s', MFMA, v(d, 16), v(a_, 4), v(b_, 4), '0' if first else v(d, 16))


def merge(main, blocks, start, stop):
    idx = [i for i, l in enumerate(main) if l.strip().startswith('v_mfma')][start:stop]
    out, k = [], 0
    n = len(idx)
    pos = {i: j for j, i in enumerate(idx)}
    for i, l in enumerate(main):
        out.append(l)
        if i in pos:
            upto = (len(blocks) * (pos[i] + 1) + n - 1) // n
            for b in blocks[k:upto]:
                out += b
            k = max(k, upto)
    assert k >= len(blocks)
    return out


def sub(A):
    return Asm()


L_H = (L_A, L_A + 28672, 0, 65536)
W2S = [32768, 40960] + [L_A + k * 8192 for k in range(2)] + [L_SC0, L_SC1] + [L_A + k * 8192 for k in range(2, 7)] + [
    k * 8192 for k in range(4)] + [65536 + k * 8192 for k in range(4)]
FINE = E('FINE', 1)
W2GATE = {2: 8, 3: 16, 6: 24, 7: 32, 8: 40, 9: 48, 10: 56, 11: 64, 12: 72, 13: 80, 14: 84, 15: 92, 16: 100, 17: 108,
          18: 112} if FINE else {2: 28, 7: 56, 11: 84, 15: 112}
W2RE = dict(zip(range(19, 28), (0, 1, 2, 3, 6, 7, 8, 9, 10)))


def w2_slot(n):
    return W2S[W2RE.get(n, n)]


def w1_slot(c):
    return B16[c % 5]


class LdsQ:
    def __init__(self, A):
        self.A, self.q = A, []
        self.peeked = False

    def op(self, tag, fmt, *a):
        self.A(fmt, *a)
        self.q.append(tag)

    def need(self, tag):
        idx = [i for i, x in enumerate(self.q) if x == tag]
        if not idx:
            return None
        n = len(self.q) - 1 - idx[-1]
        self.q = self.q[idx[-1] + 1:]
        return min(n, 15)

    def wait(self, tag, vm=None):
        n = self.need(tag)
        if n is None and vm is None:
            return
        self.A('s_waitcnt' + ('' if vm is None else ' vmcnt(%d)' % vm) + ('' if n is None else ' lgkmcnt(%d)' % n))

    def stage(self, n):
        set_stage(self.A, n)
        self.q.append('st')

    def peek(self, w):
        if w == 5:
            self.op('pk', 'ds_read_b32 v%d, v%d', vPK_, vCA)
        else:
            self.op('pk', 'ds_read_b32 v%d, v%d offset:%d', vPK_, vMI, M_PW + 4 * w)
        self.peeked = True

    def take(self, w):
        if not self.peeked:
            return
        self.peeked = False
        self.wait('pk')
        self.A('v_readfirstlane_b32 s%d, v%d', CACHE[w], vPK_)


def tag_compute(A, t16=None):
    A('s_waitcnt lgkmcnt(0)')
    if t16 is not None:
        A('s_lshr_b32 s%d, s%d, 16', sT2, sTAG)
    A('s_mul_i32 s%d, s%d, 0x%x', sTAG, sTAG, 1664525)
    A('s_add_u32 s%d, s%d, 0x%x', sTAG, sTAG, 1013904223)
    A('v_mov_b32 v%d, s%d', vTAG, sTAG)
    if t16 is not None:
        A('s_and_b32 s%d, s%d, 0x3fff', t16, sTAG)
        A('s_and_b32 s%d, s%d, 0x4000', sT, sTAG)
        A('s_lshl_b32 s%d, s%d, 1', sT, sT)
        A('s_or_b32 s%d, s%d, s%d', t16, t16, sT)
        A('s_cmp_eq_u32 s%d, s%d', t16, sT2)
        A('s_cselect_b32 s%d, 1, 0', sT)
        A('s_xor_b32 s%d, s%d, s%d', t16, t16, sT)
        A('s_lshl_b32 s%d, s%d, 16', t16, t16)


def fast_check(A):
    A('s_getreg_b32 s%d, hwreg(HW_REG_XCC_ID)', sC)
    A('s_and_b32 s%d, s%d, 15', sC, sC)
    A('s_add_u32 s%d, s%d, s%d', sC, sC, sTAG)
    A('s_lshl_b32 s%d, s%d, 7', sT, sXCD)
    A('s_add_u32 s%d, s%d, %d', sT, sT, FREG)
    A('v_and_b32 v%d, 31, v%d', vT1, vL)
    A('v_lshlrev_b32 v%d, 2, v%d', vT1, vT1)
    A('buffer_load_dword v%d, v%d, s[%d:%d], s%d offen sc1', vT0, vT1, SWS, SWS + 3, sT)
    A('s_waitcnt vmcnt(0)')
    A('v_cmp_ne_u32 vcc, s%d, v%d', sC, vT0)
    A('s_cmp_eq_u64 vcc, 0')
    A('s_cselect_b32 s%d, 1, 0', sFASTF)


class Stream:
    def __init__(self, A, wave, depth, first=0):
        self.A, self.wave, self.depth = A, wave, depth
        self.items = []
        self.issued = 0
        self.known = 0
        self.n = first

    def wait_to(self, left):
        if self.issued - left <= self.known:
            return
        self.A('s_waitcnt vmcnt(%d)', left)
        self.known = self.issued - left
        last = None
        while self.items and self.items[0][1] <= self.known:
            last = self.items.pop(0)[0]
        if last is not None:
            set_stage(self.A, last)

    def room(self, k):
        self.wait_to(max(self.depth - k, 0))
        self.issued += k

    def done(self, name, cnt=None):
        self.n += 1
        assert LP.setdefault(name, (self.wave, self.n)) == (self.wave, self.n), name
        self.items.append((self.n, self.issued))

    def drain(self):
        self.drain_to(0)

    def drain_to(self, keep):
        while len(self.items) > keep:
            self.wait_to(self.issued - self.items[0][1])

    def save(self):
        return (list(self.items), self.issued, self.known)

    def restore(self, s):
        self.items, self.issued, self.known = list(s[0]), s[1], s[2]

    def dma4(self, lds, voffs, srd_, step=None, bits=''):
        A = self.A
        if isinstance(lds, tuple):
            A('s_add_u32 m0, s%d, %d', lds[0], lds[1])
        else:
            A('s_mov_b32 m0, %d', lds)
        self.room(4)
        for u in range(4):
            A('buffer_load_dwordx4 v%d, s[%d:%d], s%d offen offset:%d%s lds', voffs[u], srd_, srd_ + 3, sT, u * 1024,
              bits)
        if step:
            A('s_add_u32 s%d, s%d, %d', sT, sT, step)


def reg4(St, regs, voffs, srd_, step=None):
    St.room(4)
    for u in range(4):
        St.A('buffer_load_dwordx4 %s, v%d, s[%d:%d], s%d offen offset:%d', v(regs[u], 4), voffs[u], srd_, srd_ + 3, sT,
             u * 1024)
    if step:
        St.A('s_add_u32 s%d, s%d, %d', sT, sT, step)


def spill(St, name, regs, lds):
    A = St.A
    assert not St.items
    A('v_add_u32 v%d, %d, v%d', vT1, lds, vO)
    A('s_setprio %d', E('SPRIO', 0))
    for j, r in enumerate(regs):
        A('ds_write_b128 v%d, %s offset:%d', vT1, v(r, 4), j * 1024)
    St.n += 1
    assert LP.setdefault(name, (St.wave, St.n)) == (St.wave, St.n), name
    set_stage(A, St.n)


def off128(A, vW128, vXo=None):
    A('v_lshrrev_b32 v%d, 3, v%d', vW128, vL)
    A('v_mul_u32_u24 v%d, 896, v%d', vW128, vW128)
    A('v_and_b32 v%d, 7, v%d', vT1, vL)
    if vXo is not None:
        A('v_lshl_add_u32 v%d, v%d, 4, v%d', vXo, vT1, vW128)
        spread4(A, vXo, 8 * 896)
    A('v_lshrrev_b32 v%d, 2, v%d', vT0, vL)
    A('v_and_b32 v%d, 4, v%d', vT0, vT0)
    A('v_xor_b32 v%d, v%d, v%d', vT1, vT1, vT0)
    A('v_lshl_add_u32 v%d, v%d, 4, v%d', vW128, vT1, vW128)
    spread4(A, vW128, 8 * 896)


def off256(A, vW256):
    A('v_lshrrev_b32 v%d, 4, v%d', vW256, vL)
    A('v_mul_u32_u24 v%d, 3584, v%d', vW256, vW256)
    A('v_and_b32 v%d, 15, v%d', vT1, vL)
    A('v_lshrrev_b32 v%d, 2, v%d', vT0, vL)
    A('v_and_b32 v%d, 12, v%d', vT0, vT0)
    A('v_xor_b32 v%d, v%d, v%d', vT1, vT1, vT0)
    A('v_lshl_add_u32 v%d, v%d, 4, v%d', vW256, vT1, vW256)
    spread4(A, vW256, 4 * 3584)


def code_touch(A, dst):
    A('s_mul_i32 s%d, s%d, %d', sT, sI, 11 * 128)
    A('v_lshlrev_b32 v%d, 7, v%d', vT0, vL)
    A('v_add_u32 v%d, s%d, v%d', vT0, sT, vT0)
    A('s_mov_b64 exec, 0x7ff')
    A('global_load_dword v%d, v%d, s[%d:%d]', dst, vT0, sPC, sPC + 1)
    A('s_mov_b64 exec, -1')


def h_stream(A, first):
    wave = 7
    St = Stream(A, wave, E('HDEPTH', 24), first)
    if wave == 7:
        A('s_lshl_b32 s%d, s%d, 17', sB, sTB3)
        A('s_add_u32 s%d, s%d, %d', sB, sB, WS_HB + (0x40000000 if E('ABL', 0) & 128 else 0))
        rot_calc(A, sG, 'w1')
        for u in range(7):
            rot_idx(A, 4 + u, sG, u, 7)
            A('s_lshl_b32 s%d, s%d, 12', 4 + u, 4 + u)
            A('s_add_u32 s%d, s%d, s%d', 4 + u, 4 + u, sB)
            A('s_add_u32 s%d, s%d, 4096', 4 + u, 4 + u)
        A('s_lshl_b32 s%d, s%d, 8', sT2, sTB3)
        A('s_add_u32 s%d, s%d, %d', sT2, sT2, F3)
        A('v_lshlrev_b32 v%d, 2, v%d', vT1, vL)
        A('s_and_b32 s%d, s%d, 1', sC, sFB)
        A('s_lshl_b32 s%d, s%d, 16', sC, sC)
        HALF = E('HHALF', 1)
        sMK = sODD
        A('s_bitcmp1_b32 s%d, 0', sFB)
        A('s_cselect_b32 s%d, %s, 0x3fff3fff', sMK, '0' if HALF else '0x3fff3fff')
        A('s_cselect_b32 s%d, 0x3fff3fff, %s', sMK + 1, '0' if HALF else '0x3fff3fff')
        A('v_mov_b32 v41, v%d', vT1)

        def poll(B, done):
            lo = B.label('P')
            B('%s:', lo)
            B('buffer_load_dword v42, v41, s[%d:%d], s%d offen sc1', SWS, SWS + 3, sM0)
            B('s_waitcnt vmcnt(0)')
            B('v_cmp_ne_u32 vcc, s%d, v42', sTAG)
            spin_guard(B, done)
            B('s_and_b64 vcc, vcc, s[%d:%d]', sMK, sMK + 1)
            B('s_cbranch_scc1 %s', lo)
        A('s_mov_b32 s%d, s%d', sM0, sT2)
        if CODEPF & 4:
            wait_stage(A, 1, base=M_LD, sleep=1)
            code_touch(A, 63)
        wait_stage(A, C0 + 7, sleep=1)
        stamp(A)
        done = A.label('PD')
        poll(A, done)
        A('%s:', done)
        stamp(A)
        for gi in range(4):
            if gi == 1 and HALF:
                St.room(1)
                A('buffer_load_dword v42, v41, s[%d:%d], s%d offen sc1', SWS, SWS + 3, sM0)
                mark = St.issued
                A('s_mov_b32 s%d, 0x3fff3fff', sMK)
                A('s_mov_b32 s%d, 0x3fff3fff', sMK + 1)
            if gi == 2:
                wait_stage(A, C0 + 8)
                if HALF:
                    St.wait_to(St.issued - mark)
                    ent, back = cold_block(A, poll)
                    A('v_cmp_ne_u32 vcc, s%d, v42', sTAG)
                    A('s_and_b64 vcc, vcc, s[%d:%d]', sMK, sMK + 1)
                    A('s_cbranch_scc1 %s', ent)
                    A('%s:', back)
            if gi:
                A('s_xor_b32 s%d, s%d, %d', sC, sC, (gi ^ (gi - 1)) << 15)
            St.depth = E('HDEPTH0', 24) if gi == 0 else E('HDEPTH', 24)
            for u in range(7):
                A('s_add_u32 s%d, s%d, s%d', sT, 4 + u, sC)
                St.dma4(L_H[gi] + u * 4096, [vO] * 4, SWS, None, LDB)
                if u in HITEMS[gi > 0]:
                    St.done(('h', gi, u))
                if u == (E('HSPOS', 3) if gi == 0 else 0):
                    A('s_add_u32 s%d, s%d, s%d', sT, sB, sC)
                    St.dma4(L_SC0 + gi * 4096, [vO] * 4, SWS, None, ' sc1')
                    St.done(('hs', gi))
        St.drain()
    stamp(A)


def spread4(A, base, step):
    for u in range(1, 4):
        A('v_add_u32 v%d, %d, v%d', base + u, u * (step - 1024), base)


def wtr_base(A):
    A('v_lshrrev_b32 v%d, 5, v%d', vT1, vL)
    A('v_bfe_u32 v%d, v%d, 2, 2', vT0, vL)
    A('v_lshl_add_u32 v%d, v%d, 3, v%d', vT0, vT1, vT0)
    A('v_lshlrev_b32 v%d, 6, v%d', vT0, vT0)
    A('v_bfe_u32 v%d, v%d, 4, 1', vTT, vL)
    A('v_lshl_add_u32 v%d, v%d, 5, v%d', vT0, vTT, vT0)
    A('v_and_b32 v%d, 3, v%d', vTT, vL)
    A('v_lshl_add_u32 v%d, v%d, 3, v%d', vT0, vTT, vT0)
    for pi in range(3):
        A('v_add_u32 v%d, %d, v%d', vWA + pi, L_WP[pi], vT0)
    A('v_lshlrev_b32 v%d, 3, v%d', vCA, vL)
    A('v_add_u32 v%d, %d, v%d', vCA, L_CF, vCA)


def sel_frags(A, vID):
    A('v_lshrrev_b32 v%d, 5, v%d', vT1, vL)
    A('v_and_b32 v%d, 31, v%d', vT0, vL)
    A('v_lshlrev_b32 v%d, 2, v%d', vTT, vT1)
    A('v_sub_u32 v%d, v%d, v%d', vT0, vT0, vTT)
    A('v_mov_b32 v%d, 0x3f80', vTT)
    A('v_mov_b32 v%d, 0x3f800000', vTT + 1)
    for sidx in range(2):
        for rr in range(4):
            m = 16 * sidx + 8 * (rr >> 1) + 2 * (rr & 1)
            A('v_cmp_eq_u32 vcc, %d, v%d', m, vT0)
            A('v_cndmask_b32 v%d, 0, v%d, vcc', vID + 4 * sidx + rr, vTT)
            A('v_cmp_eq_u32 vcc, %d, v%d', m + 1, vT0)
            A('v_cndmask_b32 v%d, v%d, v%d, vcc', vID + 4 * sidx + rr, vID + 4 * sidx + rr, vTT + 1)


def read_w(A, pi, i, buf, sleep=0):
    wait_lp(A, ('W', pi, i), sleep)
    for q in range(4):
        for z in range(2):
            A('ds_read_b64_tr_b16 v[%d:%d], v%d offset:%d', buf + 4 * q + 2 * z, buf + 4 * q + 2 * z + 1,
              vWA + pi, i * 4096 + q * 1024 + z * 256)


def colsum(A, spi):
    vCS, vB_, buf = 40, 44, 48
    A('v_mov_b32 v%d, 0', vCS)
    A('v_mov_b32 v%d, 0', vCS + 1)
    A('s_cmp_eq_u32 s%d, 1', spi)
    A('s_cselect_b32 s%d, 0, %d', sT, L_WP[2])
    A('s_cmp_eq_u32 s%d, 0', spi)
    A('s_cselect_b32 s%d, %d, s%d', sT, L_WP[0], sT)
    assert L_WP[1] == 0
    A('v_add_u32 v%d, s%d, v%d', vB_, sT, vWA + 1)
    A('s_mul_i32 s%d, s%d, 7', sC, spi)
    A('s_add_u32 s%d, s%d, 7', sT2, sC)
    top, lo, ok = A.label('CS'), A.label('W'), A.label('WD')
    A('%s:', top)
    A('s_cmp_gt_u32 s%d, s%d', sPROG, sC)
    A('s_cbranch_scc1 %s', ok)
    prio(A, 0)
    A('%s:', lo)
    A('ds_read_b32 v%d, v%d offset:%d', vPW, vMI, M_PW + 16)
    A('s_waitcnt lgkmcnt(0)')
    A('v_readfirstlane_b32 s%d, v%d', sPROG, vPW)
    spin_guard(A, ok)
    A('s_cmp_gt_u32 s%d, s%d', sPROG, sC)
    again(A, 's_cbranch_scc0', lo)
    prio(A, 1)
    A('%s:', ok)
    for q in range(4):
        for z in range(2):
            A('ds_read_b64_tr_b16 v[%d:%d], v%d offset:%d', buf + 4 * q + 2 * z, buf + 4 * q + 2 * z + 1, vB_,
              q * 1024 + z * 256)
    A('ds_read_b32 v%d, v%d offset:%d', vPW, vMI, M_PW + 16)
    A('v_add_u32 v%d, 4096, v%d', vB_, vB_)
    A('s_add_u32 s%d, s%d, 1', sC, sC)
    for q in range(4):
        A('s_waitcnt lgkmcnt(%d)', 7 - 2 * q)
        for r in range(4):
            A('v_dot2c_f32_bf16 v%d, s%d, v%d', vCS + (r & 1), sONES, buf + 4 * q + r)
    A('s_waitcnt lgkmcnt(0)')
    A('v_readfirstlane_b32 s%d, v%d', sPROG, vPW)
    A('s_cmp_lt_u32 s%d, s%d', sC, sT2)
    A('s_cbranch_scc1 %s', top)
    A('v_add_f32 v%d, v%d, v%d', vCS, vCS, vCS + 1)
    hilo_c(A, vCS, vCS + 2, vT0)
    A('s_lshl_b32 s%d, s%d, 9', sT, spi)
    A('v_add_u32 v%d, s%d, v%d', vB_, sT, vCA)
    A('ds_write_b64 v%d, v[%d:%d]', vB_, vCS + 2, vCS + 3)


ROT = E('ROT', 1)
HITEMS = ((1, 3, 5, 6), (1, 3, 6))
W7ST = 0
LATE = E('LATE', 0)
W2R = E('W2R', 0)


def rot_calc(A, dst, kind):
    if not ROT:
        A('s_mov_b32 s%d, 0', dst)
        return
    if kind == 'w1':
        A('s_and_b32 s%d, s%d, 1', dst, sTB3)
        A('s_mul_i32 s%d, s%d, %d', dst, dst, 4 if LATE else 3)
        mod = 7
    elif kind == 'wo':
        A('s_and_b32 s%d, s%d, 3', dst, sTQ)
        A('s_lshl_b32 s%d, s%d, 1', dst, dst)
        mod = 7
    else:
        A('s_and_b32 s%d, s%d, 3', dst, sTQ)
        A('s_mul_i32 s%d, s%d, 7', dst, dst)
        A('s_lshr_b32 s%d, s%d, 1', dst, dst)
        mod = 14
    A('s_add_u32 s%d, s%d, s%d', dst, dst, sXCD)
    if kind == 'w1' and E('ROTFB', 1):
        A('s_lshr_b32 s%d, s%d, 1', sT, sFB)
        A('s_add_u32 s%d, s%d, s%d', dst, dst, sT)
        A('s_mul_i32 s%d, s%d, 37', sT, dst)
        A('s_lshr_b32 s%d, s%d, 8', sT, sT)
        A('s_mul_i32 s%d, s%d, 7', sT, sT)
        A('s_sub_u32 s%d, s%d, s%d', dst, dst, sT)
        return
    A('s_cmp_ge_u32 s%d, %d', dst, mod)
    A('s_cselect_b32 s%d, %d, 0', sT, mod)
    A('s_sub_u32 s%d, s%d, s%d', dst, dst, sT)


def rot_idx(A, dst, rot, j, mod):
    A('s_add_u32 s%d, s%d, %d', dst, rot, j)
    A('s_cmp_ge_u32 s%d, %d', dst, mod)
    A('s_cselect_b32 s%d, %d, 0', sT2, mod)
    A('s_sub_u32 s%d, s%d, s%d', dst, dst, sT2)


def blk_init(A, sb, sst, kh):
    A('s_and_b32 s%d, s%d, 1', sb, sTQ)
    if isinstance(kh, str):
        A('s_xor_b32 s%d, s%d, %s', sb, sb, kh)
    elif kh:
        A('s_xor_b32 s%d, s%d, 1', sb, sb)
    A('s_lshr_b32 s%d, s%d, 1', sT, sTQ)
    A('s_xor_b32 s%d, s%d, s%d', sT, sT, sXCD)
    A('s_sub_u32 s%d, 6, s%d', sT2, sb)
    A('s_bitcmp1_b32 s%d, 0', sT)
    A('s_cselect_b32 s%d, s%d, s%d', sb, sT2, sb)
    A('s_cselect_b32 s%d, 5, 2', sst)


def blk_next(A, sb, sst):
    A('s_add_u32 s%d, s%d, s%d', sb, sb, sst)
    A('s_cmp_ge_u32 s%d, 7', sb)
    A('s_cselect_b32 s%d, 7, 0', sT2)
    A('s_sub_u32 s%d, s%d, s%d', sb, sb, sT2)


def rest_srds(A):
    A('s_add_u32 s82, s80, %d', FEP)
    A('s_addc_u32 s83, s81, 0')
    A('s_load_dword s%d, s[82:83], 0', sTAG)
    srd(A, SP, 68, H * DH * DH * 2)
    A('s_mul_i32 s%d, s%d, 37', sTQ, sI)
    A('s_lshr_b32 s%d, s%d, 8', sTQ, sTQ)
    A('s_mul_i32 s%d, s%d, 7', sNB, sTQ)
    A('s_sub_u32 s%d, s%d, s%d', sNB, sI, sNB)
    A('s_lshr_b32 s%d, s%d, 1', sTB3, sTQ)
    A('s_mul_i32 s%d, s%d, 14', sFB, sTB3)
    A('s_sub_u32 s%d, s%d, s%d', sFB, sI, sFB)
    A('s_lshl2_add_u32 s%d, s%d, s%d', sTQ, sXCD, sTQ)
    A('s_lshl1_add_u32 s%d, s%d, s%d', sTB3, sXCD, sTB3)
    A('v_lshlrev_b32 v%d, 4, v%d', vO, vL)
    A('s_mov_b32 s%d, 0', sFASTF)
    A('s_mov_b32 s%d, 0x%x', sONES, ONES)
    ABL = E('ABL', 0)
    srd(A, SWO, 70, 0 if ABL & 1 else D * D * 2)
    srd(A, SW1, 74, 0 if ABL & 2 else D * F * 2)
    srd(A, SW2, 76, 0 if ABL & 4 else D * F * 2)
    srd(A, SOUT, 78, S * D * 2)
    srd(A, SWS, 80, WS_SIZE)


def rot_next(A):
    A('s_add_u32 s%d, s%d, 1', sC, sC)
    A('s_cmp_eq_u32 s%d, 7', sC)
    A('s_cselect_b32 s%d, 0, s%d', sC, sC)


def sig_dyn(A, sval):
    A('v_mov_b32 v%d, s%d', vT0, sval)
    A('ds_write_b32 v%d, v%d', vMY, vT0)


def x_offsets(A):
    A('v_lshrrev_b32 v%d, 3, v%d', vT0, vL)
    A('v_mul_u32_u24 v%d, 896, v%d', vT0, vT0)
    A('v_lshrrev_b32 v%d, 4, v%d', vT1, vL)
    A('v_and_b32 v%d, 7, v%d', vXD, vL)
    A('v_xor_b32 v%d, v%d, v%d', vXD, vXD, vT1)
    A('v_xor_b32 v%d, 4, v%d', vXD + 1, vXD)
    A('v_lshl_add_u32 v%d, v%d, 4, v%d', vXD, vXD, vT0)
    A('v_lshl_add_u32 v%d, v%d, 4, v%d', vXD + 1, vXD + 1, vT0)
    A('v_add_u32 v%d, %d, v%d', vXD + 1, 8 * 896 - 1024, vXD + 1)
    A('v_add_u32 v%d, %d, v%d', vXD + 2, 2 * (8 * 896 - 1024), vXD)
    A('v_add_u32 v%d, %d, v%d', vXD + 3, 2 * (8 * 896 - 1024), vXD + 1)
    A('s_mul_i32 s%d, s%d, %d', sXB, sTB, 0 if E('AB2', 0) & 16 else 128 * 896)


def w_offsets(A):
    vW = 40
    A('v_lshrrev_b32 v%d, 2, v%d', vW, vL)
    A('v_mul_u32_u24 v%d, 2688, v%d', vW, vW)
    A('v_and_b32 v%d, 3, v%d', vT1, vL)
    A('v_lshl_add_u32 v%d, v%d, 4, v%d', vW, vT1, vW)
    A('s_mul_i32 s%d, s%d, %d', sT, sH, 0 if E('AB2', 0) & 8 else 56)
    A('s_and_b32 s%d, s%d, 0xfffffff0', sT, sT)
    A('v_add_u32 v%d, s%d, v%d', vW, sT, vW)
    spread4(A, vW, 16 * 2688)


def early_x(A):
    depth = E('XDEPTH', 20)
    wsig = ((depth - 4) // 4) % 4
    lag = (depth - 4 - 4 * wsig) // 16
    A('s_mov_b32 s%d, %d', sG, 1 - lag)
    A('s_mov_b32 m0, %d', L_X + 16384)
    A('s_mov_b32 s%d, s%d', sC, sC0)
    rot_next(A)
    top = A.label('XL')
    A('%s:', top)
    A('s_lshl_b32 s%d, s%d, 7', sT, sC)
    A('s_add_u32 s%d, s%d, s%d', sT, sT, sXB)
    for w in range(4):
        A('s_waitcnt vmcnt(%d)', depth - 4)
        if w == wsig:
            A('s_max_i32 s%d, s%d, 0', sT2, sG)
            sig_dyn(A, sT2)
        for u in range(4):
            A('buffer_load_dwordx4 v%d, s[%d:%d], s%d offen offset:%d lds', vXD + u, SX, SX + 3, sT, u * 1024)
        A('s_add_u32 m0, m0, 4096')
        if w < 3:
            A('s_add_u32 s%d, s%d, %d', sT, sT, 32 * 896)
    nb = A.label('NB')
    A('s_cmp_lg_u32 s%d, %d', sG, 1 - lag)
    A('s_cbranch_scc1 %s', nb)
    A('s_barrier')
    A('%s:', nb)
    rot_next(A)
    A('s_add_u32 s%d, s%d, 1', sG, sG)
    A('s_cmp_lt_i32 s%d, %d', sG, 7 - lag)
    A('s_cbranch_scc1 %s', top)
    stamp(A)
    for n in range(7 - lag, 8):
        A('s_waitcnt vmcnt(%d)', 16 * (7 - n))
        set_stage(A, n)


def early_w(A):
    vW = 40

    def part_loop(pi, depth, floor):
        lag = (depth - 4) // 4
        stamp(A)
        A('s_mov_b32 s%d, s%d', sC, sC0)
        A('s_mov_b32 s%d, %d', sG, 7 * pi - lag)
        A('s_mov_b32 m0, %d', L_WP[pi])
        top = A.label('WL')
        A('%s:', top)
        A('s_mul_i32 s%d, s%d, %d', sT, sC, 64 * 2688)
        A('s_add_u32 s%d, s%d, %d', sT, sT, (1, 2, 0)[pi] * 896)
        A('s_max_i32 s%d, s%d, %d', sT2, sG, floor)
        A('s_waitcnt vmcnt(%d)', depth - 4)
        sig_dyn(A, sT2)
        for u in range(4):
            A('buffer_load_dwordx4 v%d, s[%d:%d], s%d offen offset:%d lds', vW + u, SW, SW + 3, sT, u * 1024)
        A('s_add_u32 m0, m0, 4096')
        nb = A.label('NB')
        A('s_cmp_lg_u32 s%d, 0', sG)
        A('s_cbranch_scc1 %s', nb)
        A('s_barrier')
        A('%s:', nb)
        rot_next(A)
        A('s_add_u32 s%d, s%d, 1', sG, sG)
        A('s_cmp_lt_i32 s%d, %d', sG, 7 * pi + 7 - lag)
        A('s_cbranch_scc1 %s', top)
        return lag
    lag = part_loop(0, E('WDEPTH', 12), 0)
    for n in range(7 - lag, 8):
        A('s_waitcnt vmcnt(%d)', 4 * (7 - n))
        set_stage(A, n)


def gen_h0(A):
    St = Stream(A, 4, E('WDEPTH2', 24), 7)
    vW, vW128, vXo, vW256 = 36, 12, 16, 20
    q4 = lambda b: [b, b + 1, b + 2, b + 3]
    for u in range(4):
        A('v_mov_b32 v%d, v%d', vW + u, 40 + u)
    rest_srds(A)
    off128(A, vW128)
    off256(A, vW256)
    A('s_lshl_b32 s%d, s%d, 7', sB, sNB)
    sR1, sRO = sG, sKH
    rot_calc(A, sR1, 'w1')
    rot_calc(A, sRO, 'wo')
    sBK, sBS = [8, 9], 10
    blk_init(A, sBK[0], sBS, 0)
    blk_init(A, sBK[1], sBS, 1)

    def wpart(pi):
        wait_stage(A, pi)
        if pi == 1 and E('XG2', 4) >= 0:
            wait_lp(A, ('x', E('XG2', 4)))
        stamp(A)
        if E('W4PRIO', -1) >= 0:
            A('s_setprio %d', E('W4PRIO', -1))
        for i in range(7):
            St.depth = E('WVDEPTH', 24) if (pi == 1 or i >= 3) else E('WDEPTH2', 24)
            rot_idx(A, sT, sC0, i, 7)
            A('s_mul_i32 s%d, s%d, %d', sT, sT, 64 * 2688)
            if pi == 1:
                A('s_add_u32 s%d, s%d, %d', sT, sT, 2 * 896)
            St.dma4(L_WP[pi] + i * 4096, q4(vW), SW)
            St.done(('W', pi, i))

    def wq():
        wpart(2)
    wpart(1)
    St.drain_to(E('WVKEEP', 7))
    lend = A.label('LEND')
    act = A.label('ACT')
    A('s_cmp_lt_u32 s%d, 28', sI)
    A('s_cbranch_scc1 %s', act)
    keep, n0 = St.save(), _st['n']
    wq()
    St.drain()
    St.restore(keep)
    St.n = 14
    if E('TOUCH', 1):
        def touch(srd_, base, per_xcd, n):
            A('s_mul_i32 s%d, s%d, %d', sT, sXCD, per_xcd)
            A('s_sub_u32 s%d, s%d, 28', sT2, sI)
            A('s_mul_i32 s%d, s%d, %d', sT2, sT2, n * 8192)
            A('s_add_u32 s%d, s%d, s%d', sT, sT, sT2)
            A('s_add_u32 s%d, s%d, %d', sT, sT, base)
            A('s_mov_b32 s%d, %d', sC, n)
            lo = A.label('T')
            A('%s:', lo)
            A('buffer_load_dword v%d, v%d, s[%d:%d], s%d offen sc1', vW + 1, vW, srd_, srd_ + 3, sT)
            A('s_add_u32 s%d, s%d, 8192', sT, sT)
            A('s_waitcnt vmcnt(%d)', E('TDEPTH', 6))
            A('s_sub_u32 s%d, s%d, 1', sC, sC)
            A('s_cmp_lg_u32 s%d, 0', sC)
            A('s_cbranch_scc1 %s', lo)
        A('v_lshlrev_b32 v%d, 7, v%d', vW, vL)
        if E('W2M', 1) == 2:
            touch(SW2, 0, 4 * 7 * 8192, 7)
        if E('TEARLY', 0):
            wait_stage(A, 3, (5, 6), sleep=2)
        else:
            wait_stage(A, C0 + 5, sleep=2)
        stamp(A)
        if HLATE and not WTO:
            touch(SWS, WS_HB, 262144, 8)
        if E('W2M', 1) == 1:
            touch(SW2, 0, 4 * 7 * 8192, 7)
        stamp(A)
        if not WT1:
            touch(SWS, WS_H1B, 8 * 112 * 1024, 28)
        if WT1 == 2:
            A('s_lshl2_add_u32 s%d, s%d, s%d', sG, sXCD, sI)
            A('s_sub_u32 s%d, s%d, 28', sG, sG)
            A('s_and_b32 s%d, s%d, 1', sT, sG)
            A('s_xor_b32 s%d, s%d, 1', sT, sT)
            A('s_lshl_b32 s%d, s%d, 13', sT, sT)
            A('s_mul_i32 s%d, s%d, %d', sT2, sG, 224 * 1024)
            A('s_add_u32 s%d, s%d, s%d', sT, sT, sT2)
            A('s_add_u32 s%d, s%d, %d', sT, sT, WS_H1B)
            for b in range(14):
                A('buffer_load_dword v%d, v%d, s[%d:%d], s%d offen sc1', vW + 1, vW, SWS, SWS + 3, sT)
                A('s_add_u32 s%d, s%d, 16384', sT, sT)
                A('s_waitcnt vmcnt(%d)', E('TDEPTH', 6))
        stamp(A)
        if E('W2WARM', 0):
            touch(SW2, 0, 0, 49)
        stamp(A)
        if E('WB3', 0):
            tag_compute(A)
            skipw = A.label('NW')
            A('s_cmp_lg_u32 s%d, 28', sI)
            A('s_cbranch_scc1 %s', skipw)
            A('s_lshl_b32 s%d, s%d, 9', sC, sXCD)
            A('s_add_u32 s%d, s%d, %d', sC, sC, F3)
            poll_global(A, sC, 0x3fff3fff3fff3fff)
            A('s_add_u32 s%d, s%d, 256', sC, sC)
            poll_global(A, sC, 0x3fff3fff3fff3fff)
            if E('WB3SLP', 0):
                A('s_sleep %d', E('WB3SLP', 0))
            A('buffer_wbl2 sc1')
            A('s_waitcnt vmcnt(0)')
            A('%s:', skipw)
        if E('H1PF', 0) and WT1:
            tag_compute(A)
            A('s_lshl2_add_u32 s%d, s%d, s%d', sG, sXCD, sI)
            A('s_sub_u32 s%d, s%d, 28', sG, sG)
            A('s_lshl_b32 s%d, s%d, 8', sM0, sG)
            A('s_add_u32 s%d, s%d, %d', sM0, sM0, F4)
            A('v_lshlrev_b32 v%d, 2, v%d', vW + 2, vL)
            A('s_bitcmp1_b32 s%d, 0', sG)
            A('s_mov_b32 s8, 0x0f0f0f0f')
            A('s_mov_b32 s9, 0x000f0f0f')
            A('s_cselect_b32 s8, 0xf0f0f0f0, s8')
            A('s_cselect_b32 s9, 0x00f0f0f0, s9')
            for ph in range(E('H1PF', 0)):
                lo, done = A.label('P'), A.label('PD')
                if ph == 0:
                    A('s_mov_b64 exec, s[8:9]')
                else:
                    A('s_mov_b32 exec_hi, 0xffffff')
                A('%s:', lo)
                A('buffer_load_dword v%d, v%d, s[%d:%d], s%d offen sc1', vT1, vW + 2, SWS, SWS + 3, sM0)
                A('s_waitcnt vmcnt(0)')
                A('v_cmp_ne_u32 vcc, s%d, v%d', sTAG, vT1)
                spin_guard(A, done)
                again(A, 's_cbranch_vccnz', lo, 2)
                A('%s:', done)
                A('s_mov_b64 exec, -1')
                A('s_and_b32 s%d, s%d, 1', sT, sG)
                if ph:
                    A('s_xor_b32 s%d, s%d, 1', sT, sT)
                A('s_lshl_b32 s%d, s%d, 13', sT, sT)
                A('s_mul_i32 s%d, s%d, %d', sT2, sG, 224 * 1024)
                A('s_add_u32 s%d, s%d, s%d', sT, sT, sT2)
                A('s_add_u32 s%d, s%d, %d', sT, sT, WS_H1B)
                for b in (1, 5, 2, 4, 0, 6, 3):
                    for g_ in range(2):
                        A('s_add_u32 s%d, s%d, %d', sT2, sT, b * 16384 + g_ * 112 * 1024)
                        A('buffer_load_dword v%d, v%d, s[%d:%d], s%d offen sc1', vW + 1, vW, SWS, SWS + 3, sT2)
    _st['n'] = n0
    A('s_branch %s', lend)
    A('%s:', act)

    def w1_off(c):
        rot_idx(A, sT, sR1, c, 7)
        A('s_mul_i32 s%d, s%d, %d', sT, sT, 64 * 3584)
        if not E('AB2', 0) & 2:
            A('s_lshl_b32 s%d, s%d, 8', sT2, sFB)
            A('s_add_u32 s%d, s%d, s%d', sT, sT, sT2)

    def w1_chunk(c):
        w1_off(c)
        for u in range(4):
            St.dma4(w1_slot(c) + u * 4096, q4(vW256), SW1, 16 * 3584 if u < 3 else None)
        St.done(('w1', c), 16)

    def w2_item(n):
        c, kh = n >> 1, n & 1
        A('s_mul_i32 s%d, s%d, %d', sT, sBK[kh], 128 * 896)
        if not E('AB2', 0) & 4:
            A('s_add_u32 s%d, s%d, s%d', sT, sT, sB)
        if kh or (c & 1):
            A('s_add_u32 s%d, s%d, %d', sT, sT, (kh * 896 + (c & 1) * 64) * 896)
        if c & 1:
            blk_next(A, sBK[kh], sBS)
        for u in range(2):
            St.dma4(w2_slot(n) + u * 4096, q4(vW128), SW2, 32 * 896 if u < 1 else None)
        St.done(('w2', n), 8)

    SR = [24, 28] + list(range(40, 256, 4))

    def staged(c0=0, c1=3):
        for u in range(4 * c0, 4 * c1):
            St.depth = min(E('WDEPTH2', 24), E('WVDEPTH', 24) + 4 * (u + 1 - 4 * c0))
            if u % 4 == 0:
                w1_off((0 if LATE else 4) + u // 4)
            reg4(St, SR[8 + 4 * u:12 + 4 * u], q4(vW256), SW1, 16 * 3584)

    def wo():
        St.drain_to(3)
        wait_stage(A, 3)
        wait_word(A, 5, 1)
        stamp(A)
        for c in range(7):
            rot_idx(A, sC, sRO, c, 7)
            A('s_mul_i32 s%d, s%d, %d', sT, sC, 64 * 896)
            if not E('AB2', 0) & 1:
                A('s_add_u32 s%d, s%d, s%d', sT, sT, sB)
            A('s_lshl_b32 s%d, s%d, 13', sC, sC)
            for u in range(2):
                St.dma4((sC, L_A + u * 4096), q4(vW128), SWO, 32 * 896 if u < 1 else None)
            if c == 2:
                St.depth = E('LDEPTH', 32)
        St.done('wo')
    staged(0, E('NSQ', 2))
    wq()
    staged(E('NSQ', 2), 3)
    wo()
    stamp(A)
    wait_stage(A, 2, (5, 6))
    stamp(A)
    if LATE:
        n3 = St.n
        St.n += 3
        w1_chunk(3)
        St.items, it3 = St.items[:-1], St.items[-1]
        St.drain()
        St.wait_to(16)
        St.n = n3
        for c in range(3):
            spill(St, ('w1', c), SR[8 + 16 * c:24 + 16 * c], w1_slot(c))
        St.n += 1
        St.items = [it3]
        St.drain()
        stamp(A)
        wait_stage(A, C0 + 3)
        wait_word(A, 7, 9)
        wait_stage(A, 1, base=M_CP)
        if LATE == 1:
            wait_stage(A, 1, base=M_LD)
        elif LATE == 2:
            wait_stage(A, 3, (5, 6))
        St.depth = E('LATEDEPTH', 20)
        for c in (4, 5, 6):
            w1_chunk(c)
        St.drain()
    else:
        for c in range(4):
            w1_chunk(c)
        St.drain()
        St.wait_to(0)
        stamp(A)
        wait_stage(A, C0 + 3)
        wait_word(A, 7, 9)
        spill(St, ('w1', 4), SR[8:24], w1_slot(4))
        wait_stage(A, 1, base=M_CP)
        spill(St, ('w1', 5), SR[24:40], w1_slot(5))
        spill(St, ('w1', 6), SR[40:56], w1_slot(6))
    stamp(A)
    wait_stage(A, C0 + 8, sleep=2)
    wait_lp(A, ('h', E('W2AFTER', 2), E('W2AFTERQ', 1)), 1)
    stamp(A)
    St.depth = E('W2DEPTH', 32)
    A('s_mov_b32 s%d, 0', sXB)
    for n in range(28):
        if n in W2GATE:
            wait_stage(A, W2GATE[n] // 2, base=M_LD, cache=sXB)
        if n == 4:
            wait_stage(A, 5, (5, 6))
        if n == 19:
            stamp(A)
            St.depth = E('W2DEPTH3', 32)
        if n >= 19:
            m = W2RE[n]
            wait_stage(A, C0 + 13 + (m >> 1), (0, 1) if (m & 1) == 0 else (2, 3))
        w2_item(n)
    St.drain()
    stamp(A)
    A('%s:', lend)
    A('s_waitcnt lgkmcnt(0)')
    stamp_flush(A)
    A('s_endpgm')


def gen_h1(A):
    stamp(A)
    rest_srds(A)
    wtr_base(A)
    tag_compute(A)
    def extras():
        if CODEPF & 2:
            code_touch(A, 63)
        if WARM:
            for srd_, size in ((SWO, D * D * 2), (SW1, D * F * 2), (SW2, D * F * 2)):
                A('s_mul_i32 s%d, s2, %d', sT, size // 256)
                A('v_lshlrev_b32 v%d, 7, v%d', vT1, vL)
                A('s_mov_b64 exec, 0x%x', (1 << ((size // 256 + 127) // 128)) - 1) if size // 256 < 4096 else None
                if size // 256 >= 4096:
                    A('s_mov_b32 exec_hi, 0x%x', (1 << ((size // 256 + 127) // 128 - 32)) - 1)
                A('buffer_load_dword v63, v%d, s[%d:%d], s%d offen', vT1, srd_, srd_ + 3, sT)
                A('s_mov_b64 exec, -1')
        if E('FT', 3) & 2:
            nf = A.label('NF')
            A('s_cmp_lt_u32 s%d, 28', sI)
            A('s_cbranch_scc1 %s', nf)
            A('v_lshlrev_b32 v%d, 7, v%d', vT1, vL)
            A('s_mov_b64 exec, 0xf')
            for base, sh in ((F2, 9), (F3, 9), (F4, 10)):
                A('s_lshl_b32 s%d, s%d, %d', sT, sXCD, sh)
                A('s_add_u32 s%d, s%d, %d', sT, sT, base)
                A('buffer_load_dword v63, v%d, s[%d:%d], s%d offen sc1', vT1, SWS, SWS + 3, sT)
                A('s_mov_b64 exec, 0x%x', 0xf if base == F2 else 0xff)
            A('s_mov_b64 exec, -1')
            A('%s:', nf)
        if E('TOUCH', 1) and not WTO:
            A('s_lshl_b32 s%d, s%d, 18', sT, sXCD)
            A('s_lshl_b32 s%d, s%d, 13', sT2, sI)
            A('s_add_u32 s%d, s%d, s%d', sT, sT, sT2)
            A('v_lshlrev_b32 v%d, 7, v%d', vT1, vL)
            for base in ([WS_OB] if MAP == 0 else []) + ([] if HLATE else [WS_HB]):
                A('s_add_u32 s%d, s%d, %d', sT2, sT, base)
                A('buffer_load_dword v63, v%d, s[%d:%d], s%d offen sc1', vT1, SWS, SWS + 3, sT2)

    if TOUCHAT == 0:
        extras()
    A('s_mov_b32 s%d, 1', sG)
    off256(A, 20)
    rot_calc(A, sXB, 'w1')
    cs, cs2 = A.label('CSL'), A.label('CSM')
    St = Stream(A, 7, E('W7DEPTH', 16), 9)

    def stage7():
        for u in range(4 * W7ST):
            if u % 4 == 0:
                rot_idx(A, sT, sXB, u // 4, 7)
                A('s_mul_i32 s%d, s%d, %d', sT, sT, 64 * 3584)
                A('s_lshl_b32 s%d, s%d, 8', sT2, sFB)
                A('s_add_u32 s%d, s%d, s%d', sT, sT, sT2)
            reg4(St, [64 + 16 * u + 4 * k for k in range(4)], [20, 21, 22, 23], SW1, 16 * 3584)
    A('%s:', cs)
    colsum(A, sG)
    A('s_add_u32 s%d, s%d, 7', sT, sG)
    sig_dyn(A, sT)
    A('s_add_u32 s%d, s%d, 1', sG, sG)
    A('s_cmp_eq_u32 s%d, 3', sG)
    A('s_cbranch_scc1 %s', cs2)
    stamp(A)
    A('s_cmp_ge_u32 s%d, 28', sI)
    A('s_cbranch_scc1 %s', cs)
    stage7()
    A('s_branch %s', cs)
    A('%s:', cs2)
    if TOUCHAT == 2:
        extras()
    stamp(A)
    lend = A.label('LEND')
    A('s_cmp_ge_u32 s%d, 28', sI)
    A('s_cbranch_scc1 %s', lend)
    if W7ST:
        A('s_waitcnt vmcnt(%d)', 1 if TOUCHAT == 2 and not WARM else 0)
        wait_stage(A, 2, (5, 6))
        for c in range(W7ST):
            spill(St, ('w1', c), [64 + 64 * c + 4 * k for k in range(16)], w1_slot(c))
        stamp(A)
    h_stream(A, 9 + W7ST)
    A('%s:', lend)
    A('s_waitcnt lgkmcnt(0)')
    stamp_flush(A)
    A('s_endpgm')


def gen_h23(A):
    vID, vAF, vVF, vAC, vG = 64, 72, 104, 136, 72
    rest_srds(A)
    if SHST:
        a_, b_ = 104, 105
        n6 = A.label('N6')
        A('s_cmp_lg_u32 s%d, 6', sWV)
        A('s_cbranch_scc1 %s', n6)
        A('v_mov_b32 v%d, 0', a_)
        A('v_mov_b32 v%d, 0', b_)
        A('s_lshl_b32 s%d, s%d, 11', sT, sTB)
        A('s_lshl_b32 s%d, s%d, 7', sT2, sH)
        A('s_add_u32 s%d, s%d, s%d', sT, sT, sT2)
        A('s_add_u32 s%d, s%d, %d', sT, sT, FLN)
        A('v_lshlrev_b32 v106, 1, v%d', vL)
        A('s_waitcnt vmcnt(0)')
        for r in range(28):
            A('v_dot2c_f32_bf16 v%d, s%d, v%d', a_, sONES, 76 + r)
            A('v_dot2c_f32_bf16 v%d, v%d, v%d', b_, 76 + r, 76 + r)
        for mod in ('quad_perm:[1,0,3,2]', 'quad_perm:[2,3,0,1]', 'row_half_mirror'):
            for r in (a_, b_):
                A('v_add_f32_dpp v%d, v%d, v%d %s row_mask:0xf bank_mask:0xf', r, r, r, mod)
        A('v_mul_f32 v%d, 0x%x, v%d', a_, 0x3b124925, a_)
        A('v_mul_f32 v%d, 0x%x, v%d', b_, 0x3b124925, b_)
        A('v_fma_f32 v%d, -v%d, v%d, v%d', b_, a_, a_, b_)
        A('v_max_f32 v%d, 0, v%d', b_, b_)
        A('v_add_f32 v%d, 0x%x, v%d', b_, 0x3727c5ac, b_)
        A('v_rsq_f32 v109, v%d', b_)
        A('v_sub_f32 v108, 0, v%d', a_)
        A('s_waitcnt lgkmcnt(0)')
        A('s_mul_i32 s%d, s%d, 0x%x', sT2, sTAG, 1664525)
        A('s_add_u32 s%d, s%d, 0x%x', sT2, sT2, 1013904223)
        A('v_mov_b32 v110, s%d', sT2)
        A('v_mov_b32 v111, s%d', sT2)
        A('s_mov_b32 exec_lo, 0x01010101')
        A('s_mov_b32 exec_hi, 0x01010101')
        A('buffer_store_dwordx4 v[108:111], v106, s[%d:%d], s%d offen sc1', SWS, SWS + 3, sT)
        A('s_mov_b64 exec, -1')
        stamp(A, 'ln')
        A('%s:', n6)
    sTL = sKH
    A('s_sub_u32 s%d, s%d, 5', sTL, sWV)
    skip = A.label('NOST')
    A('s_cmp_eq_u32 s%d, 1', sTL)
    A('s_cbranch_scc1 %s', skip)
    A('s_mul_i32 s%d, s%d, 1568', sT, sH)
    A('s_mov_b32 m0, %d', L_PHI)
    A('buffer_load_dwordx4 v%d, s[%d:%d], s%d offen lds', vO, SP, SP + 3, sT)
    A('buffer_load_dwordx4 v%d, s[%d:%d], s%d offen offset:1024 lds', vO, SP, SP + 3, sT)
    if CODEPF & 1:
        code_touch(A, 72)
    A('%s:', skip)
    if E('TLB', 0):
        A('v_lshlrev_b32 v%d, 20, v%d', vT1, vL)
        A('s_lshl_b32 s%d, s%d, 7', sT, sI)
        for srd_ in (SWS, SOUT, SWO, SW1, SW2):
            A('buffer_load_dword v73, v%d, s[%d:%d], s%d offen', vT1, srd_, srd_ + 3, sT)
    wtr_base(A)
    sel_frags(A, vID)
    sT16 = sZA
    tag_compute(A, sT16)
    if FAST:
        skip = A.label('NORG')
        A('s_cmp_eq_u32 s%d, 0', sTL)
        A('s_cbranch_scc1 %s', skip)
        A('s_getreg_b32 s%d, hwreg(HW_REG_XCC_ID)', sT2)
        A('s_and_b32 s%d, s%d, 15', sT2, sT2)
        A('s_add_u32 s%d, s%d, s%d', sT2, sT2, sTAG)
        A('v_mov_b32 v%d, s%d', vT0, sT2)
        A('s_lshl_b32 s%d, s%d, 7', sT, sXCD)
        A('s_lshl_b32 s%d, s%d, 2', sT2, sI)
        A('s_add_u32 s%d, s%d, s%d', sT, sT, sT2)
        A('s_add_u32 s%d, s%d, %d', sT, sT, FREG)
        A('s_mov_b64 exec, 1')
        A('buffer_store_dword v%d, v%d, s[%d:%d], s%d offen sc1', vT0, vO, SWS, SWS + 3, sT)
        A('s_mov_b64 exec, -1')
        A('%s:', skip)
    six, both = A.label('SIX'), A.label('BOTH')
    A('s_cmp_eq_u32 s%d, 1', sTL)
    A('s_cbranch_scc1 %s', six)
    colsum(A, sTL)
    A('s_waitcnt vmcnt(0)')
    A('s_branch %s', both)
    A('%s:', six)
    if SHST:
        A('s_lshl_b32 s%d, s%d, 11', sC, sTB)
        A('s_add_u32 s%d, s%d, %d', sC, sC, FLN)
        A('v_lshlrev_b32 v84, 3, v%d', vL)
        A('v_add_u32 v84, %d, v84', L_EX + 1024)
        A('v_lshlrev_b32 v85, 2, v%d', vL)
        A('v_add_u32 v85, %d, v85', L_RSTD)
        lo, done = A.label('P'), A.label('PD')
        A('%s:', lo)
        for u in range(2):
            A('buffer_load_dwordx4 %s, v%d, s[%d:%d], s%d offen offset:%d sc1', v(76 + 4 * u, 4), vO, SWS, SWS + 3, sC,
              u * 1024)
        A('s_waitcnt vmcnt(0)')
        A('v_cmp_ne_u32 vcc, s%d, v78', sTAG)
        A('v_cmp_ne_u32 s[4:5], s%d, v82', sTAG)
        spin_guard(A, done)
        A('s_or_b64 vcc, vcc, s[4:5]')
        again(A, 's_cbranch_scc1', lo, E('LNSLP', 2))
        A('%s:', done)
        for u in range(2):
            A('ds_write_b64 v84, v[%d:%d] offset:%d', 76 + 4 * u, 77 + 4 * u, u * 512)
            A('ds_write_b32 v85, v%d offset:%d', 77 + 4 * u, u * 256)
        set_stage(A, 1)
        stamp(A, 'ln')
    if E('IW', 6):
        ni = A.label('NI')
        A('s_cmp_lt_u32 s%d, 28', sI)
        A('s_cbranch_scc1 %s', ni)
        if E('IWAT', -1) >= 1:
            wait_lp(A, ('x', E('IWAT', -1)), 1)
        A('s_lshl2_add_u32 s%d, s%d, s%d', sC, sXCD, sI)
        A('s_sub_u32 s%d, s%d, 28', sC, sC)
        A('v_lshlrev_b32 v%d, 7, v%d', vT1, vL)
        for bit, srd_, n in ((4, SW, 5), (1, SW1, 7), (2, SWO, 2)):
            if E('IW', 6) & bit:
                A('s_mul_i32 s%d, s%d, %d', sT, sC, n * 8192)
                for u in range(n):
                    A('buffer_load_dword v73, v%d, s[%d:%d], s%d offen', vT1, srd_, srd_ + 3, sT)
                    A('s_add_u32 s%d, s%d, 8192', sT, sT)
        A('%s:', ni)
    if FAST:
        wait_lp(A, ('x', 6), 2)
        fast_check(A)
        A('v_mov_b32 v%d, s%d', vT0, sFASTF)
        A('ds_write_b32 v%d, v%d offset:%d', vMI, vT0, M_FAST)
    A('%s:', both)
    set_stage(A, 1)
    stamp(A)
    A('s_lshl_b32 s%d, s%d, 11', sT2, sTL)
    A('v_add_u32 v%d, s%d, v%d', vTT, sT2, vO)
    A('v_add_u32 v%d, %d, v%d', vTT + 1, L_KVA, vTT)
    A('v_add_u32 v%d, %d, v%d', vTT + 2, L_KVV, vO)
    A('s_lshl_b32 s%d, s%d, 16', sXB, sH)
    A('s_add_u32 s%d, s%d, s%d', sXB, sXB, sT2)
    A('s_add_u32 s%d, s%d, %d', sXB, sXB, WS_KVP)
    A('s_lshl_b32 s%d, s%d, 12', sB, sTB)
    A('s_add_u32 s%d, s%d, s%d', sB, sB, sXB)
    A('s_lshl_b32 s%d, s%d, 1', sM0, sH)
    A('s_add_u32 s%d, s%d, s%d', sM0, sM0, sTL)
    FSH = E('F1SH', 8)
    A('s_lshl_b32 s%d, s%d, %d', sM0, sM0, 4 + FSH)
    A('s_add_u32 s%d, s%d, %d', sM0, sM0, F1)
    A('s_lshl_b32 s%d, s%d, 2', sFL, sTB)
    A('s_add_u32 s%d, s%d, s%d', sFL, sFL, sM0)
    A('s_lshl_b32 s%d, s%d, %d', sT, sTB, FSH)
    A('s_add_u32 s%d, s%d, s%d', sM0, sM0, sT)
    A('s_add_u32 s%d, s%d, s%d', sPC, SWS, sM0)
    A('s_addc_u32 s%d, s%d, 0', sPC + 1, SWS + 1)
    if E('FT', 3) & 1:
        A('s_load_dword s%d, s[%d:%d], 0 glc', sZB, sPC, sPC + 1)
    A('v_lshlrev_b32 v%d, %d, v%d', vXA, FSH, vL)
    A('v_lshlrev_b32 v%d, 2, v%d', vXA + 1, vL)
    vTA = 152
    wait_stage(A, C0)
    for k in range(8):
        A('ds_read_b128 %s, v%d offset:%d', v(vVF + 4 * k, 4), vTT + 1, (k >> 1) * 4096 + (k & 1) * 1024)
    for k in range(8):
        A('s_waitcnt lgkmcnt(%d)', 7 - k)
        mfma(A, vTA + 16 * (k >> 1), vVF + 4 * k, vID + 4 * (k & 1), (k & 1) == 0)
    for w in range(4):
        cvt8(A, vAF + 8 * w, vTA + 16 * w)

    if E('KVP', 0):
        HELP['hot'] = True
        for j, w in enumerate((0, 2, 1, 3)):
            def v_reads():
                for q in range(2):
                    A('ds_read_b128 %s, v%d offset:%d', v(vVF + 8 * w + 4 * q, 4), vTT + 2, w * 4096 + q * 1024)
                return 2
            wait_word(A, w, C0 + 1, body=v_reads, sleep=1 if j == 0 else 0)
            if j == 3:
                stamp(A)
            for q in range(2):
                A('s_waitcnt lgkmcnt(%d)', 1 - q)
                mfma(A, vAC, vAF + 8 * w + 4 * q, vVF + 8 * w + 4 * q, j == 0 and q == 0)
        HELP['hot'] = False
    else:
        def v_reads():
            for k in range(8):
                A('ds_read_b128 %s, v%d offset:%d', v(vVF + 4 * k, 4), vTT + 2, (k >> 1) * 4096 + (k & 1) * 1024)
            return 8
        wait_stage(A, C0 + 1, body=v_reads)
        stamp(A)
        for k in range(8):
            A('s_waitcnt lgkmcnt(%d)', 7 - k)
            mfma(A, vAC, vAF + 4 * k, vVF + 4 * k, k == 0)
    set_stage(A, 2)
    cvt8(A, vAF, vAC)
    TAGS = E('TAGS', 1)
    if TAGS:
        for q in range(2):
            A('v_and_b32 v%d, 0xffff, v%d', vAF + 4 * q + 3, vAF + 4 * q + 3)
            A('v_or_b32 v%d, s%d, v%d', vAF + 4 * q + 3, sT16, vAF + 4 * q + 3)
    pub_stores(A, [st4(vAF + 4 * q, sB, q * 1024) for q in range(2)], MAP == 3)
    if not TAGS:
        A('s_waitcnt vmcnt(0)')
    A('s_mov_b64 exec, 0xffff')
    two_ways(A, lambda B, bits: B('buffer_store_dword v%d, v%d, s[%d:%d], s%d offen%s', vTAG, vXA, SWS, SWS + 3, sFL,
                                  bits), MAP == 3)
    A('s_mov_b64 exec, -1')
    stamp(A)
    sRDY, sPND, sRET = sHI, sHI + 1, sPADL
    base = 68 if STAMPS else 72
    pol = A.label('POLL')
    B = sub(A)
    lo, out = B.label('P'), B.label('PD')
    B('%s:', pol)
    B('%s:', lo)
    if E('PSLEEP', 0):
        B('s_sleep %d', E('PSLEEP', 0))
    if E('SPOLL', 1) and MAP == 0:
        B('s_load_dwordx16 s[%d:%d], s[%d:%d], 0 glc', base, base + 15, sPC, sPC + 1)
        B('s_mov_b32 s%d, 0', sRDY)
        B('s_waitcnt lgkmcnt(%d)', E('PPIPE', 8))
        for p_ in range(15, -1, -1):
            B('s_cmp_eq_u32 s%d, s%d', base + p_, sTAG)
            B('s_addc_u32 s%d, s%d, s%d', sRDY, sRDY, sRDY)
    else:
        B('s_mov_b64 exec, 0xffff')
        B('buffer_load_dword v%d, v%d, s[%d:%d], s%d offen sc1', vT0, vXA + 1, SWS, SWS + 3, sM0)
        B('s_waitcnt vmcnt(0)')
        B('v_cmp_eq_u32 vcc, s%d, v%d', sTAG, vT0)
        B('s_mov_b64 exec, -1')
        B('s_mov_b32 s%d, vcc_lo', sRDY)
    B('s_sub_u32 s%d, s%d, 1', sSPIN, sSPIN)
    B('s_cselect_b32 s%d, -1, s%d', sRDY, sRDY)
    B('s_and_b32 s%d, s%d, s%d', sRDY, sRDY, sPND)
    B('s_cbranch_scc0 %s', lo)
    B('s_setpc_b64 s[%d:%d]', sRET, sRET + 1)
    over = A.label('OV')
    A('s_not_b32 s%d, s%d', base, sTAG)
    A('s_mov_b32 s%d, s%d', base + 1, base)
    for k in range(2, 16, 2):
        A('s_mov_b64 s[%d:%d], s[%d:%d]', base + k, base + k + 1, base, base + 1)
    A('s_branch %s', over)
    A.lines += B.lines
    A('%s:', over)
    A('s_mov_b32 s%d, 0', sRDY)
    A('s_mov_b32 s%d, 0xffff', sPND)
    vCK = vXA + 2
    A('v_mov_b32 v%d, 0', vCK)
    A('s_nop 1')
    vG = [72 + 4 * k for k in range(16)] + [152 + 4 * k for k in range(16)]
    GD = E('GLAG', 8)

    def gmm(k, issued):
        for q in range(2):
            A('s_waitcnt vmcnt(%d)', 2 * issued - (2 * k + q) - 1)
            mfma(A, vAC, vID + 4 * q, vG[2 * k + q], k == 0 and q == 0)
            if TAGS:
                A('v_xor_b32 v%d, s%d, v%d', vCK + 1, sT16, vG[2 * k + q] + 3)
                A('v_or_b32 v%d, v%d, v%d', vCK, vCK, vCK + 1)
    for k in range(16):
        A('s_getpc_b64 s[%d:%d]', sRET, sRET + 1)
        A('s_cmp_eq_u32 s%d, 0', sRDY)
        A('s_cbranch_scc1 %s', pol)
        A('s_ff1_i32_b32 s%d, s%d', sT, sRDY)
        A('s_bitset0_b32 s%d, s%d', sRDY, sT)
        A('s_bitset0_b32 s%d, s%d', sPND, sT)
        A('s_lshl_b32 s%d, s%d, 12', sT, sT)
        A('s_add_u32 s%d, s%d, s%d', sT, sT, sXB)
        if E('ABL', 0) & 32:
            A('s_mov_b32 s%d, s%d', sT, sB)
        for q in range(2):
            A('buffer_load_dwordx4 %s, v%d, s[%d:%d], s%d offen offset:%d sc1', v(vG[2 * k + q], 4), vO, SWS, SWS + 3,
              sT, q * 1024)
        if k == E('GST', 15):
            stamp(A)
        if k >= GD:
            gmm(k - GD, k + 1)
    for k in range(16 - GD, 16):
        gmm(k, 16)
    if TAGS:
        ok = A.label('TOK')
        A('v_cmp_lt_u32 vcc, 0xffff, v%d', vCK)
        spin_guard(A, ok)
        A('s_nop 15')
        A('s_cbranch_vccnz %s', over)
        A('%s:', ok)
    A('v_add_u32 v%d, %d, v%d', vTT, L_EX, vTT)
    cvt8(A, 72, vAC)
    for q in range(2):
        A('ds_write_b128 v%d, %s offset:%d', vTT, v(72 + 4 * q, 4), q * 1024)
    set_stage(A, 3)
    stamp(A)
    lend = A.label('LEND')
    A('s_cmp_ge_u32 s%d, 28', sI)
    A('s_cbranch_scc1 %s', lend)
    if E('ITOUCH', 0):
        A.lines.append(';ITOUCH')
    A('v_lshlrev_b32 v%d, 2, v%d', vCA, vL)
    A('v_add_u32 v%d, %d, v%d', vTT + 2, L_EX, vO)
    wait_stage(A, C0 + 7, sleep=2)
    HELP['hot'] = bool(E('STHOT', 0))
    l5 = A.label('S5')
    A('s_cmp_eq_u32 s%d, 0', sTL)
    A('s_cbranch_scc1 %s', l5)
    for gi in (0, 2, 1, 3):
        if gi == 1:
            A('s_branch %s', lend)
            A('%s:', l5)
        wait_lp(A, ('hs', gi), 1)
        if E('STPRIO', 2) != 2:
            A('s_setprio %d', E('STPRIO', 2))
        base = L_SC0 + gi * 4096
        for q in range(7):
            A('ds_read2st64_b32 v[%d:%d], v%d offset0:%d offset1:%d', 72 + 2 * q, 73 + 2 * q, vCA,
              base // 256 + 2 * q, base // 256 + 2 * q + 1)
        A('s_waitcnt lgkmcnt(0)')
        for q in range(2, 14):
            A('v_add_f32 v%d, v%d, v%d', 72 + (q & 1), 72 + (q & 1), 72 + q)
        A('v_add_f32 v%d, v72, v73', vTT)
        ln_finish(A, vTT, vTT + 1, vNM, vRS)
        hilo_m(A, vNM, 88, vT0)
        A('v_mul_f32 v90, v%d, v%d', vTT + 1, vRS)
        A('v_mul_f32 v91, 0x%x, v%d', LOG2E ^ 0x80000000, vRS)
        A('ds_write_b128 v%d, v[88:91] offset:%d', vTT + 2, gi * 1024)
        set_stage(A, 4 + gi // 2)
    HELP['hot'] = False
    A('%s:', lend)
    A('s_waitcnt lgkmcnt(0)')
    stamp_flush(A)
    A('s_endpgm')


def refresh_routines(A):
    for w in (7, 4):
        A('REFRESH_%d:', w)
        if w == 5:
            A('ds_read_b32 v%d, v%d', vPW, vCA)
        else:
            A('ds_read_b32 v%d, v%d offset:%d', vPW, vMI, M_PW + 4 * w)
        if E('CSLP', 0):
            A('s_mov_b32 vcc_hi, s%d', CACHE[w])
        A('s_waitcnt lgkmcnt(0)')
        A('v_readfirstlane_b32 s%d, v%d', CACHE[w], vPW)
        if E('CSLP', 0):
            A('s_cmp_lg_u32 vcc_hi, s%d', CACHE[w])
            A('s_cbranch_scc1 REFD_%d', w)
            A('s_sleep %d', E('CSLP', 0))
            A('REFD_%d:', w)
        A('s_sub_u32 s%d, s%d, 1', sSPIN, sSPIN)
        A('s_cselect_b32 s%d, -1, s%d', CACHE[w], CACHE[w])
        A('s_setpc_b64 s[%d:%d]', sPC, sPC + 1)


def gen_compute(A):
    vPH, vID, vWF, vAC, vPK = 40, 48, 56, 88, 120
    vMF, vCF = 136, 140
    vE = vWF
    vAC2 = vAC + 16
    vX = vXR
    A('s_setprio %d', E('CPRIO', 1))
    rest_srds(A)
    A('s_lshl_b32 s%d, s%d, 12', sM0, sWV)
    A('v_and_b32 v%d, 31, v%d', vT0, vL)
    A('v_lshlrev_b32 v%d, 7, v%d', vTT, vT0)
    A('v_add_u32 v%d, s%d, v%d', vTT, sM0, vTT)
    A('v_bfe_u32 v%d, v%d, 1, 3', vT0, vL)
    A('v_lshrrev_b32 v%d, 5, v%d', vT1, vL)
    A('v_xor_b32 v%d, v%d, v%d', vT0, vT0, vT1)
    for q in range(4):
        A('v_xor_b32 v%d, %d, v%d', vXA + q, 2 * q, vT0)
        A('v_lshl_add_u32 v%d, v%d, 4, v%d', vXA + q, vXA + q, vTT)
    wtr_base(A)
    for r in (vSM, vSM + 1, vSQ, vSQ + 1, vMF + 2, vMF + 3, vCF + 2, vCF + 3):
        A('v_mov_b32 v%d, 0', r)
    A('s_mov_b32 s%d, 0', sHI)
    A('s_mov_b32 s%d, -1', sHI + 1)
    A('s_bitcmp1_b32 s%d, 0', sH)
    A('s_cselect_b32 s%d, 0xf, 0xf0000000', sPADL)
    A('s_mov_b32 s%d, s%d', sPADL + 1, sPADL)
    A('s_cselect_b32 s%d, -1, 0', sZA)
    A('s_mov_b32 s%d, 0', sZA + 1)
    A('s_mov_b32 s%d, 0', sZB)
    A('s_cselect_b32 s%d, 0, -1', sZB + 1)
    A('s_cselect_b64 s[%d:%d], -1, 0', sODD, sODD + 1)
    vPA = vRA
    A('v_bfe_u32 v%d, v%d, 2, 2', vT0, vL)
    A('v_lshrrev_b32 v%d, 5, v%d', vT1, vL)
    A('v_lshl_add_u32 v%d, v%d, 2, v%d', vT0, vT1, vT0)
    A('v_mul_u32_u24 v%d, 56, v%d', vT0, vT0)
    A('v_and_b32 v%d, 3, v%d', vT1, vL)
    A('v_bfe_u32 v%d, v%d, 4, 1', vTT, vL)
    A('v_lshl_add_u32 v%d, v%d, 2, v%d', vT1, vTT, vT1)
    A('v_min_u32 v%d, 6, v%d', vT1, vT1)
    A('v_lshl_add_u32 v%d, v%d, 3, v%d', vT0, vT1, vT0)
    A('s_and_b32 s%d, s%d, 1', sT, sH)
    A('s_mul_i32 s%d, s%d, 224', sT, sT)
    A('s_sub_u32 s%d, %d, s%d', sT, L_PHI, sT)
    A('v_add_u32 v%d, s%d, v%d', vPA, sT, vT0)
    tag_compute(A)

    def mm1(B, acc, i, q, swap):
        buf = vWF + 16 * (i & 1)
        xf, wf = vX + (4 * i + q) * 4, buf + 4 * q
        if swap:
            mfma(B, acc, xf, wf, i == 0 and q == 0)
        else:
            mfma(B, acc, wf, xf, i == 0 and q == 0)

    def rw2(Q, pi, i, q):
        buf = vWF + 16 * (i & 1)
        for z in range(2):
            Q.op(('w', i, q), 'ds_read_b64_tr_b16 v[%d:%d], v%d offset:%d', buf + 4 * q + 2 * z, buf + 4 * q + 2 * z + 1,
                 vWA + pi, i * 4096 + q * 1024 + z * 256)

    def early(Q, w, reads):
        Q.op('ce', 'ds_read_b32 v%d, v%d offset:%d', vPK_ + 1, vMI, M_PW + 4 * w)
        for r in reads:
            Q.op('ce', r)

    def late(Q, w, n, reads):
        def slow(B, back):
            def body():
                for r in reads:
                    B(r)
                return 0
            wait_word(B, w, n, body=body)
        Q.A = A
        Q.wait('ce')
        A('v_readfirstlane_b32 s%d, v%d', sT, vPK_ + 1)
        A('s_cmp_ge_u32 s%d, %d', sT, n)
        if w == 6:
            ent, back = cold_block(A, slow)
            A('s_cbranch_scc0 %s', ent)
        else:
            back = A.label('LT')
            A('s_cbranch_scc1 %s', back)
            slow(A, back)
        A('%s:', back)

    def cf_rd(pi):
        return 'ds_read_b64 v[%d:%d], v%d offset:%d' % (vCF, vCF + 1, vCA, pi * 512)
    kreads = [cf_rd(0)] + ['ds_read_b64_tr_b16 v[%d:%d], v%d offset:%d' % (
        vPH + 4 * sidx + 2 * z, vPH + 4 * sidx + 2 * z + 1, vPA, (16 * sidx + 8 * z) * 56)
        for sidx in range(2) for z in range(2)]

    vXH = vXD
    for q in range(4):
        A('v_add_u32 v%d, 0x10000, v%d', vXH + q, vXA + q)
    Q = LdsQ(A)
    A('v_and_b32 v%d, 31, v%d', vSC, vL)
    A('s_lshl_b32 s%d, s%d, 8', sT, sWV)
    A('s_add_u32 s%d, s%d, %d', sT, sT, L_EX + 1024)
    A('v_lshl_add_u32 v%d, v%d, 3, s%d', vSC, vSC, sT)
    lnread = ['ds_read_b64 v[%d:%d], v%d' % (vNM, vRS, vSC)]
    for i in range(7):
        if i:
            stamp(A, 'k')
        if i == 0:
            A('s_waitcnt vmcnt(0)')
        else:
            wait_lp(A, ('x', i))
        stamp(A, 'k')
        if i >= 3:
            stamp(A, 'k2')
        for q in range(4):
            Q.op(('x', i), 'ds_read_b128 %s, v%d offset:%d', v(vX + (4 * i + q) * 4, 4), (vXA if i < 4 else vXH) + q,
                 (i & 3) * 16384)
        if i in (1, 3):
            Q.stage((i + 1) // 2)
        wait_lp(A, ('W', 0, i))
        if i >= 3:
            stamp(A, 'k2')
        if SHST and i == 6:
            early(Q, 6, lnread)
        if SHST and i < 6:
            Q.op('pk2', 'ds_read_b128 v[%d:%d], v%d offset:%d', vTT, vTT + 3, vMI, M_PW + 16)
        for q in range(4):
            if i > 0:
                Q.wait(('w', i - 1, q))
                mm1(A, vAC, i - 1, q, False)
            rw2(Q, 0, i, q)
        if i < 6 and not SHST:
            Q.op('pk2', 'ds_read_b128 v[%d:%d], v%d offset:%d', vTT, vTT + 3, vMI, M_PW + 16)
        if not SHST:
            Q.wait(('x', i))
            for r in range(16):
                x = vX + 16 * i + r
                A('v_dot2c_f32_bf16 v%d, s%d, v%d', vSM + (r & 1), sONES, x)
                A('v_dot2c_f32_bf16 v%d, v%d, v%d', vSQ + (r & 1), x, x)
        if i < 6:
            Q.wait('pk2')
            A('v_readfirstlane_b32 s%d, v%d', sPROG, vTT)
            A('v_readfirstlane_b32 s%d, v%d', sPROG1, vTT + 3)
    stamp(A, 'k2')
    Q.stage(3)
    if SHST:
        late(Q, 6, 1, lnread)
    stamp(A, 'k2')
    early(Q, 5, kreads)
    B = sub(A)
    if SHST:
        pass
    else:
        B('v_add_f32 v%d, v%d, v%d', vSM, vSM, vSM + 1)
        B('v_add_f32 v%d, v%d, v%d', vSQ, vSQ, vSQ + 1)
        B('v_permlane32_swap_b32 v%d, v%d', vSM, vSQ)
        B('v_add_f32 v%d, v%d, v%d', vT0, vSM, vSQ)
        ln_finish(B, vT0, vT1, vNM, vRS)
    hilo_m(B, vNM, vMF, vT0)
    B('v_mul_f32 v%d, 0x%x, v%d', vSC, LOG2E, vRS)
    M = sub(A)
    Q.A = M
    for q in range(4):
        Q.wait(('w', 6, q))
        mm1(M, vAC, 6, q, False)
    A.lines += merge(M.lines, [[l] for l in B.lines], 0, 4)

    stamp(A, 'v')
    stamp(A, 'k2')
    late(Q, 5, 1, kreads)
    stamp(A, 'k2')
    stamp(A)
    stamp(A, 'v')

    def project(mid=None):
        mfma(A, vAC, vCF, vMF)
        if mid:
            mid()
        cvt8(A, vPK, vAC)
        mfma(A, vAC, vPH, vPK, True)
        mfma(A, vAC, vPH + 4, vPK + 4)

    def mid_k():
        A('v_and_b32 v%d, 31, v%d', vT0, vL)
        A('s_lshl_b32 s%d, s%d, 7', sT, sWV)
        A('s_add_u32 s%d, s%d, %d', sT, sT, L_RSTD)
        if not SHST:
            A('v_lshl_add_u32 v%d, v%d, 2, s%d', vT0, vT0, sT)
            A('ds_write_b32 v%d, v%d', vT0, vRS)
        A('v_lshrrev_b32 v%d, 5, v%d', vRA, vL)
        A('v_lshl_add_u32 v%d, v%d, 4, s%d', vRA, vRA, sT)
        for r in (0, 1):
            A('v_cndmask_b32 v%d, v%d, 0, s[%d:%d]', vPH + r, vPH + r, sZA, sZA + 1)
            A('v_cndmask_b32 v%d, v%d, 0, s[%d:%d]', vPH + 6 + r, vPH + 6 + r, sZB, sZB + 1)

    def gemm_head(B, pi):
        Q = LdsQ(B)
        wait_lp(B, ('W', pi, 0))
        for q in range(4):
            rw2(Q, pi, 0, q)
        return Q

    def gemm_part(B, acc, pi, swap, last_stage=None, Q=None):
        if Q is None:
            Q = gemm_head(B, pi)
        for i in range(7):
            if i == 6 and last_stage:
                Q.stage(last_stage)
            if i == 6:
                early(Q, 7, [cf_rd(pi)])
            if pi == 1 and i in (0, 2, 4, 6):
                stamp(B, 'v')
            for q in range(4):
                Q.wait(('w', i, q))
                if q == 0:
                    Q.take(4)
                mm1(B, acc, i, q, swap)
                if i < 6:
                    if q == 0:
                        wait_lp(B, ('W', pi, i + 1))
                        if i < 5:
                            Q.peek(4)
                    rw2(Q, pi, i + 1, q)
        late(Q, 7, 7 + pi, [cf_rd(pi)])

    vOW = vXD
    A('v_add_u32 v%d, s%d, v%d', vOW, sM0, vO)
    A('v_add_u32 v%d, %d, v%d', vOW, L_KVA, vOW)
    project(mid_k)
    stamp(A, 'v')
    B = sub(A)
    softmax_pm(B, vAC, vSC, vPK, vTT)
    A.lines += B.lines[:-30]
    Q = gemm_head(A, 1)
    A.lines += B.lines[-30:]
    for q, src in enumerate((vAC, vAC + 4, vPK, vPK + 4)):
        Q.op('pw', 'ds_write_b128 v%d, %s offset:%d', vOW, v(src, 4), q * 1024)
    Q.stage(C0)
    for q in range(4):
        Q.op('rs', 'ds_read_b128 %s, v%d offset:%d', v(vAC + 4 * q, 4), vRA, q * 32)
    stamp(A, 'v')
    gemm_part(A, vAC2, 1, True, None, Q)
    stamp(A, 'v')

    mfma(A, vAC2, vMF, vCF)
    A('v_mov_b32 v%d, 0x%x', vT1, ONES)
    for r in range(0, 16, 2):
        A('v_pk_mul_f32 v[%d:%d], v[%d:%d], v[%d:%d]', vAC2 + r, vAC2 + r + 1, vAC2 + r, vAC2 + r + 1, vAC + r,
          vAC + r + 1)
    cvt8(A, vPK, vAC2)
    for r in range(8):
        A('v_cndmask_b32 v%d, v%d, v%d, s[%d:%d]', vPK + r, vPK + r, vT1, sPADL, sPADL + 1)
    for q in range(2):
        A('ds_write_b128 v%d, %s offset:%d', vOW, v(vPK + 4 * q, 4), L_KVV - L_KVA + q * 1024)
    set_stage(A, C0 + 1)
    stamp(A)
    stamp(A, 'v')
    gemm_part(A, vAC, 2, False, C0 + 3)
    vHP, vRX, vRO = 120, 48, vSM + 1

    def unpack_hp(src=120):
        for r in range(8):
            A('v_lshlrev_b32 v%d, 16, v%d', vAC + 2 * r, src + r)
            A('v_and_b32 v%d, 0xffff0000, v%d', vAC + 2 * r + 1, src + r)
    A('s_and_b32 s%d, s%d, 1', sG, sWV)
    A('s_lshr_b32 s%d, s%d, 1', sKH, sWV)
    A('s_lshl_b32 s%d, s%d, 1', sT, sTQ)
    A('s_add_u32 s%d, s%d, s%d', sG, sG, sT)
    A('v_and_b32 v%d, 31, v%d', vRO, vL)
    A('v_mul_u32_u24 v%d, 896, v%d', vRO, vRO)
    A('v_lshrrev_b32 v%d, 5, v%d', vT1, vL)
    A('v_lshl_add_u32 v%d, v%d, 4, v%d', vRO, vT1, vRO)
    A('s_mul_i32 s%d, s%d, %d', sT, sG, 32 * 896)
    A('s_lshl_b32 s%d, s%d, 7', sT2, sNB)
    A('s_add_u32 s%d, s%d, s%d', sT, sT, sT2)
    A('s_lshl_b32 s%d, s%d, 6', sT2, sKH)
    A('s_add_u32 s%d, s%d, s%d', sT, sT, sT2)
    A('v_add_u32 v%d, s%d, v%d', vRO, sT, vRO)
    for q in range(2):
        A('buffer_load_dwordx4 %s, v%d, s[%d:%d], 0 offen offset:%d', v(vRX + 4 * q, 4), vRO, SX, SX + 3, q * 32)

    project()
    softmax_pm(A, vAC, vSC, vPK, vTT)
    vQF = [vAC, vAC + 4, vPK, vPK + 4]
    stamp(A)
    vW1A = vXA
    A('v_bfe_u32 v%d, v%d, 2, 2', vT0, vL)
    A('v_lshrrev_b32 v%d, 5, v%d', vT1, vL)
    A('v_lshl_add_u32 v%d, v%d, 2, v%d', vT1, vT1, vT0)
    A('v_lshlrev_b32 v%d, 8, v%d', vW1A, vT1)
    A('v_lshlrev_b32 v%d, 7, v%d', vWA, vT1)
    A('v_xor_b32 v%d, s%d, v%d', vT0, sWV, vT0)
    A('v_lshl_add_u32 v%d, v%d, 6, v%d', vW1A, vT0, vW1A)
    A('v_bfe_u32 v%d, v%d, 4, 1', vT1, vL)
    A('v_lshlrev_b32 v%d, 5, v%d', vT1, vT1)
    A('v_and_b32 v%d, 3, v%d', vT0, vL)
    A('v_lshl_add_u32 v%d, v%d, 3, v%d', vT1, vT0, vT1)
    A('v_add_u32 v%d, v%d, v%d', vW1A, vW1A, vT1)
    A('v_add_u32 v%d, 0x8000, v%d', vW1A + 1, vW1A)
    A('v_add_u32 v%d, v%d, v%d', vWA, vWA, vT1)
    A('v_bfe_u32 v%d, v%d, 3, 1', vT1, vL)
    A('v_lshl_add_u32 v%d, v%d, 6, v%d', vWA, vT1, vWA)

    def w1_copy(c):
        wait_lp(A, ('w1', c))
        for q in range(4):
            for z in range(2):
                off = w1_slot(c) + (16 * q + 8 * z) * 256
                base = vW1A
                if off >= 0x8000:
                    off -= 0x8000
                    base += 1
                r = vXR + (4 * c + q) * 4 + 2 * z
                A('ds_read_b64_tr_b16 v[%d:%d], v%d offset:%d', r, r + 1, base, off)

    sCPD = sXB
    A('s_mov_b32 s%d, 0', sCPD)

    def try_copy(block):
        skip = A.label('NC')
        A('s_cmp_lg_u32 s%d, 0', sCPD)
        A('s_cbranch_scc1 %s', skip)
        if not block:
            ow = LP[('w1', 1)][0]
            if block is not None:
                A('ds_read_b32 v%d, v%d offset:%d', vPW + ow - 4, vMI, M_PW + 4 * ow)
                A('s_waitcnt lgkmcnt(0)')
            A('v_readfirstlane_b32 s%d, v%d', CACHE[ow], vPW + ow - 4)
            A('s_cmp_lt_u32 s%d, %d', CACHE[ow], LP[('w1', 1)][1])
            A('s_cbranch_scc1 %s', skip)
        w1_copy(0)
        w1_copy(1)
        A('s_mov_b32 s%d, 1', sCPD)
        A('v_mov_b32 v%d, 1', vT0)
        A('ds_write_b32 v%d, v%d offset:%d', vMY, vT0, M_CP)
        A('%s:', skip)
    vCS = vSQ

    A('s_lshl_b32 s%d, s%d, 2', sFL, sTB)
    A('s_add_u32 s%d, s%d, s%d', sFL, sFL, sWV)
    A('s_lshl_b32 s%d, s%d, 4', sFL, sFL)
    A('s_add_u32 s%d, s%d, s%d', sFL, sFL, sH)
    A('s_lshl_b32 s%d, s%d, 11', sB, sFL)
    A('s_add_u32 s%d, s%d, %d', sB, sB, WS_OB)
    if MAP == 0:
        A('s_lshl_b32 s%d, s%d, 2', sFL, sFL)
        A('s_add_u32 s%d, s%d, %d', sFL, sFL, F2)
    else:
        A('s_lshr_b32 s%d, s%d, 3', sFL, sFL)
        A('s_lshl_b32 s%d, s%d, 10', sFL, sFL)
        A('s_and_b32 s%d, s%d, 7', sT, sH)
        A('s_lshl_b32 s%d, s%d, 2', sT, sT)
        A('s_add_u32 s%d, s%d, s%d', sFL, sFL, sT)
        A('s_add_u32 s%d, s%d, %d', sFL, sFL, F2X)
    vEX = vXD + 1
    A('v_add_u32 v%d, %d, v%d', vEX, L_EX, vO)

    def ex_reads():
        for q in range(4):
            A('ds_read_b128 %s, v%d offset:%d', v(vWF + 4 * q, 4), vEX, q * 1024)
        return 4
    lo, done = A.label('W'), A.label('WD')
    A('%s:', lo)
    A('ds_read_b128 v[%d:%d], v%d offset:%d', vPW, vPW + 3, vMI, M_PW + 16)
    A('ds_read_b32 v%d, v%d offset:%d', vPK_, vMI, M_FAST)
    ex_reads()
    A('s_waitcnt lgkmcnt(4)')
    A('v_readfirstlane_b32 s%d, v%d', sFASTF, vPK_)
    A('v_min_u32 v%d, v%d, v%d', vPW + 1, vPW + 1, vPW + 2)
    A('v_readfirstlane_b32 s%d, v%d', sT, vPW + 1)
    spin_guard(A, done)
    A('s_cmp_ge_u32 s%d, 3', sT)
    A('s_cbranch_scc1 %s', done)
    try_copy(None)
    if E('CSLP', 0):
        A('s_sleep %d', E('CSLP', 0))
    A('s_branch %s', lo)
    A('%s:', done)
    stamp(A)
    for q in range(4):
        A('s_waitcnt lgkmcnt(%d)', 3 - q)
        mfma(A, vAC2, vWF + 4 * q, vQF[q], q == 0)
    A('v_cndmask_b32 v%d, v%d, v%d, s[%d:%d]', vT0, vAC2 + 12, vAC2, sODD, sODD + 1)
    A('v_mov_b32 v%d, v%d', vT1, vT0)
    A('v_permlane32_swap_b32 v%d, v%d', vT0, vT1)
    A('v_cndmask_b32 v%d, v%d, v%d, s[%d:%d]', vTT, vT1, vT0, sODD, sODD + 1)
    A('v_add_f32 v%d, 0x%x, v%d', vTT, 0x358637bd, vTT)
    A('v_rcp_f32 v%d, v%d', vTT, vTT)
    for r in range(0, 16, 2):
        A('v_pk_mul_f32 v[%d:%d], v[%d:%d], v[%d:%d] op_sel_hi:[1,0]', vAC2 + r, vAC2 + r + 1, vAC2 + r, vAC2 + r + 1,
          vTT, vTT + 1)
    cvt8(A, vPK, vAC2)
    for r in (0, 1):
        A('v_cndmask_b32 v%d, v%d, 0, s[%d:%d]', vPK + r, vPK + r, sZA, sZA + 1)
        A('v_cndmask_b32 v%d, v%d, 0, s[%d:%d]', vPK + 6 + r, vPK + 6 + r, sZB, sZB + 1)
    pub_stores(A, [st4(vPK + 4 * q, sB, q * 1024) for q in range(2)], MAP == 0 and not WTO)
    A('s_waitcnt vmcnt(2)')
    for q in range(2):
        A('v_permlane32_swap_b32 v%d, v%d', vRX + 4 * q, vRX + 4 * q + 2)
        A('v_permlane32_swap_b32 v%d, v%d', vRX + 4 * q + 1, vRX + 4 * q + 3)
    unpack_hp(vRX)
    A('s_lshl_b32 s%d, s%d, 6', sT, sKH)
    A('v_xor_b32 v%d, s%d, v%d', vWA, sT, vWA)
    A('v_xor_b32 v%d, 64, v%d', vWA + 1, vWA)
    A('s_mul_i32 s%d, s%d, %d', sT, sKH, 224 * 128)
    A('s_add_u32 s%d, s%d, %d', sT, sT, L_A)
    A('v_add_u32 v%d, s%d, v%d', vWA + 2, sT, vWA)
    A('v_add_u32 v%d, s%d, v%d', vWA + 3, sT, vWA + 1)
    vSW, vSR, vPP = vXA + 2, vXA + 3, vSM
    A('s_and_b32 s%d, s%d, 1', sC, sWV)
    A('s_lshl_b32 s%d, s%d, 12', sC, sC)
    A('v_add_u32 v%d, s%d, v%d', vSW, sC, vO)
    A('s_cmp_eq_u32 s%d, 0', sKH)
    A('s_cselect_b32 s%d, %d, %d', sT, L_SC0 >> 12, L_SC1 >> 12)
    A('s_cselect_b32 s%d, %d, %d', sT2, L_SC1 >> 12, L_SC0 >> 12)
    A('s_lshl_b32 s%d, s%d, 12', sT, sT)
    A('s_lshl_b32 s%d, s%d, 12', sT2, sT2)
    A('v_add_u32 v%d, s%d, v%d', vSR, sT2, vSW)
    A('v_add_u32 v%d, s%d, v%d', vSW, sT, vSW)
    A('v_xor_b32 v%d, 8, v%d', vPP, vMY)
    A('s_lshl_b32 s%d, s%d, 15', sB, sG)
    A('s_lshl_b32 s%d, s%d, 14', sT, sKH)
    A('s_add_u32 s%d, s%d, s%d', sB, sB, sT)
    A('s_add_u32 s%d, s%d, %d', sB, sB, WS_OB)
    if MAP == 0:
        A('s_lshl_b32 s%d, s%d, 6', sC, sG)
        A('s_lshl_b32 s%d, s%d, 5', sT, sKH)
        A('s_add_u32 s%d, s%d, s%d', sC, sC, sT)
        A('s_add_u32 s%d, s%d, %d', sC, sC, F2)
        pub_flag(A, sFL, True)
    else:
        A('s_lshl_b32 s%d, s%d, 11', sC, sG)
        A('s_lshl_b32 s%d, s%d, 10', sT, sKH)
        A('s_add_u32 s%d, s%d, s%d', sC, sC, sT)
        A('s_lshl_b32 s%d, s%d, 7', sT, sNB)
        A('s_add_u32 s%d, s%d, s%d', sC, sC, sT)
        A('s_add_u32 s%d, s%d, %d', sC, sC, F2X)
        A('v_lshlrev_b32 v%d, 7, v%d', vT1, vL)
        if not E('NODRAIN2', 0):
            A('s_waitcnt vmcnt(0)')
        A('s_mov_b64 exec, 0x7f')
        A('buffer_store_dword v%d, v%d, s[%d:%d], s%d offen sc1', vTAG, vT1, SWS, SWS + 3, sFL)
        A('s_mov_b64 exec, -1')
    set_stage(A, C0 + 5)
    stamp(A)
    fin = A.label('FIN')
    A('s_cmp_ge_u32 s%d, 28', sI)
    A('s_cbranch_scc1 %s', fin)

    vB2 = [40 + 4 * k for k in range(8)] + [224 + 4 * k for k in range(8)]
    vWF2 = 72
    vL4, vPF = vNM, vRS
    A('v_lshlrev_b32 v%d, 2, v%d', vL4, vL)

    def f2_load():
        A('s_mov_b64 exec, 0xff')
        A('buffer_load_dword v%d, v%d, s[%d:%d], s%d offen sc1', vPF, vL4, SWS, SWS + 3, sC)
        A('s_mov_b64 exec, -1')
    f2_load()
    sB3, sFL3 = sODD, sODD + 1
    sBL, sFL2, sPF, sBK, sBS, sHB, sEM = 4, 5, 6, 7, 8, 9, 10
    A('s_mul_i32 s%d, s%d, %d', sB3, sTB3, 4 * 112)
    A('s_lshl_b32 s%d, s%d, 3', sT, sFB)
    A('s_add_u32 s%d, s%d, s%d', sB3, sB3, sT)
    A('s_lshl_b32 s%d, s%d, 1', sT, sWV)
    A('s_add_u32 s%d, s%d, s%d', sB3, sB3, sT)
    A('s_lshl_b32 s%d, s%d, 10', sB3, sB3)
    A('s_add_u32 s%d, s%d, %d', sB3, sB3, WS_H1B)
    A('s_add_u32 s%d, s%d, %d', sBL, sB3, 2 * 112 * 1024)
    A('s_lshl_b32 s%d, s%d, 9', sFL3, sTB3)
    A('s_lshl_b32 s%d, s%d, 4', sT, sFB)
    A('s_add_u32 s%d, s%d, s%d', sFL3, sFL3, sT)
    A('s_lshl_b32 s%d, s%d, 2', sT, sWV)
    A('s_add_u32 s%d, s%d, s%d', sFL3, sFL3, sT)
    A('s_add_u32 s%d, s%d, %d', sFL3, sFL3, F4)
    A('s_add_u32 s%d, s%d, 256', sFL2, sFL3)
    A('s_bitcmp1_b32 s%d, 0', sFB)
    A('s_cselect_b32 s%d, s%d, s%d', sT, sBL, sB3)
    A('s_cselect_b32 s%d, s%d, s%d', sBL, sB3, sBL)
    A('s_mov_b32 s%d, s%d', sB3, sT)
    A('s_cselect_b32 s%d, s%d, s%d', sT, sFL2, sFL3)
    A('s_cselect_b32 s%d, s%d, s%d', sFL2, sFL3, sFL2)
    A('s_mov_b32 s%d, s%d', sFL3, sT)
    A('s_lshl_b32 s%d, s%d, 8', sPF, sTQ)
    A('s_mul_i32 s%d, s%d, 112', sT, sKH)
    A('s_add_u32 s%d, s%d, s%d', sPF, sPF, sT)
    A('s_add_u32 s%d, s%d, %d', sPF, sPF, F4)
    A('s_mul_i32 s%d, s%d, %d', sHB, sG, 112 * 1024)
    A('s_mul_i32 s%d, s%d, %d', sT, sKH, 56 * 1024)
    A('s_add_u32 s%d, s%d, s%d', sHB, sHB, sT)
    A('s_add_u32 s%d, s%d, %d', sHB, sHB, WS_H1B + (0x40000000 if E('ABL', 0) & 64 else 0))
    blk_init(A, sBK, sBS, 's%d' % sKH)
    A('s_bitcmp1_b32 s%d, 0', sBK)
    A('s_mov_b32 s%d, 0x0f0f0f0f', sEM)
    A('s_cselect_b32 s%d, 0x00f0f0f0, s%d', sEM, sEM)
    wait_lp(A, 'wo')

    def wo_row(k):
        hh = k // 2
        return 28 * hh - 4 * (hh & 1) + 16 * (k & 1)

    Q = LdsQ(A)
    LAG = E('P2LAG', 5)

    def read_wo(k, nt):
        buf = vWF2 + 8 * nt + 4 * (k & 1)
        for z in range(2):
            Q.op(('w', k, nt), 'ds_read_b64_tr_b16 v[%d:%d], v%d offset:%d', buf + 2 * z, buf + 2 * z + 1,
                 vWA + 2 + nt, (wo_row(k) + 8 * z) * 128)

    read_wo(0, 1)
    read_wo(0, 0)
    lo, chk2, done = A.label('P'), A.label('PC'), A.label('PD')
    A('s_branch %s', chk2)
    A('%s:', lo)
    f2_load()
    try_copy(False)
    A('%s:', chk2)
    A('s_waitcnt vmcnt(0)')
    A('v_cmp_ne_u32 vcc, s%d, v%d', sTAG, vPF)
    spin_guard(A, done)
    A('s_and_b32 s%d, vcc_lo, 0xff', sT)
    A('s_cbranch_scc1 %s', lo)
    A('%s:', done)
    stamp(A)
    stamp(A, 'p2')
    sOB = sM0
    A('s_mov_b32 s%d, s%d', sOB, sB)

    def ld_o(k):
        A('buffer_load_dwordx4 %s, v%d, s[%d:%d], s%d offen offset:%d sc1', v(vB2[k], 4), vO, SWS, SWS + 3, sOB,
          (k & 3) * 1024)
        if (k & 3) == 3:
            A('s_add_u32 s%d, s%d, 4096', sOB, sOB)
    P2I = E('P2INFL', 8)
    for k in range(P2I):
        ld_o(k)
    A('s_lshl_b32 s%d, s%d, 1', sT2, sNB)
    A('s_add_u32 s%d, s%d, s%d', sT2, sT2, sKH)
    A('s_lshl_b32 s%d, s%d, 15', sB, sG)
    A('s_add_u32 s%d, s%d, %d', sB, sB, WS_HB)
    A('s_lshl_b32 s%d, s%d, 8', sC, sT2)
    A('s_add_u32 s%d, s%d, s%d', sC, sC, sB)
    A('s_lshl_b32 s%d, s%d, 11', sT, sT2)
    A('s_add_u32 s%d, s%d, s%d', sB, sB, sT)
    A('s_add_u32 s%d, s%d, 4096', sB, sB)
    A('s_lshl_b32 s%d, s%d, 2', sFL, sT2)
    A('s_lshl_b32 s%d, s%d, 6', sT, sG)
    A('s_add_u32 s%d, s%d, s%d', sFL, sFL, sT)
    A('s_add_u32 s%d, s%d, %d', sFL, sFL, F3)
    for k in range(16 + LAG):
        if k < 16:
            if k < 15:
                read_wo(k + 1, 1)
            Q.wait(('w', k, 1), min(15, P2I + k - 1) - k)
            if k % 4 == 0:
                stamp(A, 'p2')
            mfma(A, vAC + 16, vWF2 + 8 + 4 * (k & 1), vB2[k], k == 0)
            if P2I + k < 16:
                ld_o(P2I + k)
            if P2I + k == E('LDSIG', 12):
                A('v_mov_b32 v%d, 1', vT0)
                Q.op('ld', 'ds_write_b32 v%d, v%d offset:%d', vMY, vT0, M_LD)
        j = k - LAG
        if j >= 0:
            if j < 15:
                read_wo(j + 1, 0)
            Q.wait(('w', j, 0))
            mfma(A, vAC, vWF2 + 4 * (j & 1), vB2[j])
        if k == 10:
            Q.peek(4)
        if k == 14:
            Q.take(4)
        if k == 15:
            assert not LATE
            wait_lp(A, ('w1', 4))
        if k == 16 and LAG >= 2:
            for q in range(4):
                Q.op('x', 'ds_write_b128 v%d, %s offset:%d', vSW, v(vAC + 16 + 4 * q, 4), q * 1024)
            Q.stage(C0 + 6)
    stamp(A)

    def exchange(st, sent=False):
        if not sent:
            for q in range(4):
                A('ds_write_b128 v%d, %s offset:%d', vSW, v(vAC + 16 + 4 * q, 4), q * 1024)
            set_stage(A, st)
        lo, done = A.label('W'), A.label('WD')
        A('%s:', lo)
        A('ds_read_b32 v%d, v%d', vPW, vPP)
        for q in range(4):
            A('ds_read_b128 %s, v%d offset:%d', v(vWF2 + 4 * q, 4), vSR, q * 1024)
        A('s_waitcnt lgkmcnt(4)')
        A('v_readfirstlane_b32 s%d, v%d', sT, vPW)
        spin_guard(A, done)
        A('s_cmp_ge_u32 s%d, %d', sT, st)
        A('s_cbranch_scc0 %s', lo)
        A('%s:', done)
        for q in range(4):
            A('s_waitcnt lgkmcnt(%d)', 3 - q)
            for r in (0, 2):
                a0 = vAC + 4 * q + r
                A('v_pk_add_f32 v[%d:%d], v[%d:%d], v[%d:%d]', a0, a0 + 1, a0, a0 + 1, vWF2 + 4 * q + r,
                  vWF2 + 4 * q + r + 1)

    stamp(A, 'p2')
    exchange(C0 + 6, LAG >= 2)
    stamp(A, 'p2')
    set_stage(A, C0 + 7)
    cvt8(A, vHP, vAC)
    pub_stores(A, [st4(vHP + 4 * q, sB, q * 1024) for q in range(2)], not WTO)
    A('v_mov_b32 v%d, 0', vTT)
    A('v_mov_b32 v%d, 0', vTT + 1)
    for r in range(8):
        A('v_dot2c_f32_bf16 v%d, s%d, v%d', vTT, sONES, vHP + r)
        A('v_dot2c_f32_bf16 v%d, v%d, v%d', vTT + 1, vHP + r, vHP + r)
    A('v_lshlrev_b32 v%d, 2, v%d', vTT + 2, vL)
    A('v_permlane32_swap_b32 v%d, v%d', vTT, vTT + 1)
    A('v_add_f32 v%d, v%d, v%d', vTT, vTT, vTT + 1)
    pub_stores(A, ['buffer_store_dword v%d, v%d, s[%d:%d], s%d offen%%s' % (vTT, vTT + 2, SWS, SWS + 3, sC)], not WTO)
    stamp(A, 'p2')
    try_copy(True)
    NPRE = E('CPRE', 2)
    for c in range(2, 2 + NPRE):
        w1_copy(c)
    stamp(A, 'p2')
    pub_flag(A, sFL, True)
    stamp(A, 'p2')
    stamp(A)
    if E('ITOUCH', 0):
        A.lines.append(';ITB')
    for c in range(2 + NPRE, 4):
        w1_copy(c)
    A('v_mov_b32 v%d, 0', vCS)
    A('v_mov_b32 v%d, 0', vCS + 1)
    A('s_waitcnt lgkmcnt(0)')
    for r in range(112):
        if r in (16, 32, 48):
            w1_copy(3 + r // 16)
        if r == 48:
            set_stage(A, C0 + 8)
        if r in (64, 80, 96):
            A('s_waitcnt lgkmcnt(%d)', min(15, 1 + 8 * ((96 - r) // 16)))
        A('v_dot2c_f32_bf16 v%d, s%d, v%d', vCS + (r & 1), sONES, vXR + r)
    A('v_add_f32 v%d, v%d, v%d', vCS, vCS, vCS + 1)
    hilo_c(A, vCS, vCF, vT0)
    vBR = 40
    vE3 = 72
    vMF2, vSD = 128, 132
    A('s_mov_b32 s11, s%d', sB)
    A('s_mov_b32 s%d, s%d', sB, sB3)
    A('s_mov_b32 s%d, s%d', sFL, sFL3)

    def p3_epilogue(gi, packed=False):
        B = sub(A)
        acc = vAC + 16 * (gi & 1)
        e = vE3
        sd, c1 = vSD, vSD + 1
        if packed:
            pk = lambda r: 'v[%d:%d]' % (r, r + 1)
            for r in range(0, 16, 2):
                B('v_pk_mul_f32 %s, %s, %s op_sel:[0,1] op_sel_hi:[1,1]', pk(e + r), pk(acc + r), pk(sd))
            for r in range(16):
                B('v_exp_f32 v%d, v%d', e + r, e + r)
            for r in range(0, 16, 2):
                B('v_pk_fma_f32 %s, %s, %s, %s op_sel_hi:[1,0,0]', pk(e + r), pk(e + r), pk(sd), pk(sd))
            for r in range(16):
                B('v_rcp_f32 v%d, v%d', e + r, e + r)
            for r in range(0, 16, 2):
                B('v_pk_mul_f32 %s, %s, %s', pk(e + r), pk(e + r), pk(acc + r))
            cvt8(B, acc, e)
        else:
            silu8(B, acc, e, sd, c1, acc)
            silu8(B, acc + 8, e + 8, sd, c1, acc + 4)
        blocks = [[l] for l in B.lines]
        if E('ABL', 0) & 256 and not packed:
            blocks = blocks[-4:]
        B = sub(A)
        so = sB if gi < 2 else sBL
        pub_stores(B, [st4(acc + 4 * q, so, q * 1024) for q in range(2)], WT1 == 0 or (WT1 == 2 and gi >= 2))
        if gi % 2 == 0:
            B('s_add_u32 s%d, s%d, %d', so, so, 112 * 1024)
        blocks.append(B.lines)
        return blocks

    def flag_load(B):
        B('s_mov_b64 exec, 0xfffffff')
        B('buffer_load_dword v%d, v%d, s[%d:%d], s%d offen sc1', vPF, vL4, SWS, SWS + 3, sPF)
        B('s_mov_b64 exec, -1')

    def flag_check(mask):
        def slow(B, back):
            lo = B.label('P')
            B('%s:', lo)
            flag_load(B)
            B('s_waitcnt vmcnt(0)')
            B('v_cmp_ne_u32 vcc, s%d, v%d', sTAG, vPF)
            spin_guard(B, back)
            B('s_and_b32 s%d, vcc_lo, %s', sT, mask)
            B('s_cbranch_scc1 %s', lo)
        ent, back = cold_block(A, slow)
        A('v_cmp_ne_u32 vcc, s%d, v%d', sTAG, vPF)
        A('s_and_b32 s%d, vcc_lo, %s', sT, mask)
        A('s_cbranch_scc1 %s', ent)
        A('%s:', back)

    PRE = E('P3PRE', 6)
    vHB = vXD + 2
    A('v_add_u32 v%d, %d, v%d', vHB, L_A, vO)
    A('v_add_u32 v%d, %d, v%d', vHB + 1, 65536, vO)
    Q = LdsQ(A)

    def chk(n):
        gi, k = divmod(n, 28)
        if gi == 0 and E('P3RAMP', 0):
            return k // 4 if k % 4 == 0 else None
        if gi == 0:
            return {0: 1, 8: 3, 16: 5, 24: 6}.get(k)
        return {0: 1, 8: 3, 16: 6}.get(k)

    def rd(n):
        gi, k = divmod(n, 28)
        if n + 1 < 112 and chk(n + 1) is not None:
            Q.take(7)
        if chk(n) is not None:
            wait_lp(Q.A, ('h', gi, chk(n)))
        Q.op(('b', n), 'ds_read_b128 %s, v%d offset:%d', v(vBR + 4 * (n % 8), 4), (vHB, vHB, vO, vHB + 1)[gi],
             (28672 if gi == 1 else 0) + k * 1024)
        if n + 1 in W2GATE.values() and n + 1 >= E('FINE0', 24):
            Q.A('v_mov_b32 v%d, %d', vT0, (n + 1) // 2)
            Q.op('st', 'ds_write_b32 v%d, v%d offset:%d', vMY, vT0, M_LD)
        ramp = E('P3RAMP', 0) and n < 20
        nn = n + (4 if ramp else E('P3PK', PRE + 2))
        if nn < 112 and chk(nn) is not None and not Q.peeked and (ramp or nn >= 28 or not E('P3RAMP', 0)):
            Q.peek(7)

    stamp(A, 'p2')
    nrd = [0]

    def rd_upto(n):
        while nrd[0] <= min(n, 111):
            rd(nrd[0])
            nrd[0] += 1
    rd_upto(2)
    for gi in range(4):
        acc = vAC + 16 * (gi & 1)
        M = sub(A)
        Q.A = M
        for k in range(28):
            n = 28 * gi + k
            rd_upto(n + (PRE if not E('P3RAMP', 0) else 3 if n < 22 else min(PRE, 3 + (n - 21))))
            if k == 16:
                Q.op('s6', 'ds_read_b128 v[%d:%d], v%d offset:%d', vTT, vTT + 3, vMI, M_PW + 16)
                Q.op('sf', 'ds_read_b128 %s, v%d offset:%d', v(vMF2, 4), vEX, gi * 1024)
            if k == 24:
                Q.wait('sf')
                M('v_readfirstlane_b32 s%d, v%d', sPROG, vTT)
                M('v_readfirstlane_b32 s%d, v%d', sC, vTT + LP[('st', gi)][0] - 4)

                def st_slow(B, back):
                    def st_read():
                        B('ds_read_b128 %s, v%d offset:%d', v(vMF2, 4), vEX, gi * 1024)
                        return 0
                    wait_word(B, LP[('st', gi)][0], LP[('st', gi)][1], body=st_read)
                ent, back = cold_block(M, st_slow)
            if k == 25:
                M('s_cmp_ge_u32 s%d, %d', sC, LP[('st', gi)][1])
                M('s_cbranch_scc0 %s', ent)
                M('%s:', back)
                M('v_mov_b32 v%d, v%d', vMF, vMF2)
                M('v_mov_b32 v%d, v%d', vMF + 1, vMF2 + 1)
            if k % 2 == 0:
                Q.wait(('b', n + 1))
            if k in (0, 12):
                stamp(M, 'p3')
            if gi == E('P33', 3) and k % 2 == 0 and k:
                stamp(M, 'p33')
            if gi == 3 and k == E('P3FLAGK', 11):
                pub_flag(M, sFL, True)
            if gi == 3 and k == 25:
                flag_load(M)
            mfma(M, acc, vXR + 4 * k, vBR + 4 * (n % 8), k == 0)
        mfma(M, acc, vCF, vMF)
        M('v_mov_b32 v%d, v%d', vSD, vMF2 + 2)
        M('v_mov_b32 v%d, v%d', vSD + 1, vMF2 + 3)
        A.lines += merge(M.lines, p3_epilogue(gi - 1) if gi > 0 else [], 1, E('P3STOP2', 27) if gi == 2 else 27)
        if gi == 0:
            stamp(A)
        stamp(A, 'p3')
    stamp(A)
    NB = 28
    vWF4 = 40
    vAP = vXR + 48

    def w2_base(c):
        A('s_cmp_eq_u32 s%d, 0', sKH)
        A('s_cselect_b32 s%d, %d, %d', sT, w2_slot(2 * c) >> 12, w2_slot(2 * c + 1) >> 12)
        A('s_lshl_b32 s%d, s%d, 12', sT, sT)
        A('v_add_u32 v%d, s%d, v%d', vWA + 2, sT, vWA)
        A('v_add_u32 v%d, s%d, v%d', vWA + 3, sT, vWA + 1)

    Q = LdsQ(A)

    def abuf(k):
        return vWF4 + 8 * (k & 3)

    def read_w2(k):
        if k % 4 == 3 and k < 52:
            Q.take(LP[('w2', 2 * (k // 4) + 3)][0])
        if k % 4 == 0:
            wait_lp(A, ('w2', 2 * (k // 4) + 1))
            w2_base(k // 4)
        buf = abuf(k)
        for nt in range(2):
            for z in range(2):
                Q.op(('w', k), 'ds_read_b64_tr_b16 v[%d:%d], v%d offset:%d', buf + 4 * nt + 2 * z,
                     buf + 4 * nt + 2 * z + 1, vWA + 2 + nt, ((k % 4) * 16 + 8 * z) * 128)
        if k % 4 == 0 and k < 52:
            Q.peek(LP[('w2', 2 * (k // 4) + 3)][0])
        if k % 4 == 3 and (k // 4) <= 5:
            Q.stage(C0 + 13 + k // 4)

    vq = []

    def vm_need(tag):
        i = max(j for j, x in enumerate(vq) if x == tag)
        return len(vq) - 1 - i

    def issue_b(k):
        if k % 8 == 0:
            A('s_lshl_b32 s%d, s%d, 13', sM0, sBK)
            A('s_add_u32 s%d, s%d, s%d', sM0, sM0, sHB)
            blk_next(A, sBK, sBS)
        A('buffer_load_dwordx4 %s, v%d, s[%d:%d], s%d offen offset:%d%s', v(vXR + 4 * (k % NB), 4), vO, SWS, SWS + 3,
          sM0, (k & 3) * 1024, LDB)
        vq.append(('b', k))
        if k % 8 == 3:
            A('s_add_u32 s%d, s%d, 4096', sM0, sM0)

    INFL = E('P4INFL', 10)
    assert INFL < NB
    A('s_waitcnt vmcnt(2)')
    flag_check('s%d' % sEM)
    stamp(A)
    issued = E('P4PRE', 8)
    for k in range(issued):
        issue_b(k)
    NI = E('P4INT', 0)
    blocks = p3_epilogue(3, True)
    for j, b in enumerate(blocks):
        if j < len(blocks) - 1 and issued < E('P4PRE', 8) + (NI * (j + 1)) // (len(blocks) - 1):
            issue_b(issued)
            issued += 1
        A.lines += b
    vq += ['st', 'st']
    read_w2(0)
    read_w2(1)
    while issued < INFL:
        issue_b(issued)
        issued += 1
    unpack_hp()
    stamp(A)
    KF, KL, KC = E('P4KF', 3), E('P4KL', 9), E('P4KC', 14)
    pend = False
    for k in range(56):
        if k + 2 < 56:
            read_w2(k + 2)
        need = vm_need(('b', k))
        if k == KF:
            need = min(need, vm_need('st'))
        if k == KC:
            need = min(need, vm_need('pf'))
        Q.wait(('w', k), need)
        if k % 4 == 0 and k:
            stamp(A, 'p4')
        buf = abuf(k)
        mfma(A, vAC + 16, buf + 4, vXR + 4 * (k % NB), k == 0)
        if k == KF:
            pub_flag(A, sFL2, True, False)
            vq.append('fl')
        if k == E('HCL', -1):
            for q in range(2):
                A(st4(vHP + 4 * q, 11, q * 1024) % ' sc1')
                vq.append('hc')
        if k == KL:
            flag_load(A)
            vq.append('pf')
        if k == KC:
            flag_check('0xfffffff')
            pend = True
        for _ in range(E('P4CU', 2)):
            if issued < min(56, k + 1 + INFL) and (issued < 24 or pend):
                issue_b(issued)
                issued += 1
        mfma(A, vAC, buf, vXR + 4 * (k % NB))
    stamp(A)
    if E('OUTT', 1):
        A('v_readfirstlane_b32 s%d, v%d', sC, vSR)
        A('v_readfirstlane_b32 s%d, v%d', sT2, vRO)
        A('v_and_b32 v%d, 31, v%d', vTT, vL)
        A('v_mul_u32_u24 v%d, 80, v%d', vTT, vTT)
        A('v_lshrrev_b32 v%d, 5, v%d', vT1, vL)
        A('v_lshl_add_u32 v%d, v%d, 3, v%d', vTT, vT1, vTT)
        A('v_add_u32 v%d, s%d, v%d', vTT, sC, vTT)
        A('v_lshrrev_b32 v%d, 2, v%d', vT1, vL)
        A('v_and_b32 v%d, 3, v%d', vTT + 3, vL)
        A('v_lshlrev_b32 v%d, 4, v%d', vTT + 3, vTT + 3)
        A('v_mul_u32_u24 v%d, 80, v%d', vTT + 1, vT1)
        A('v_add3_u32 v%d, v%d, v%d, s%d', vTT + 1, vTT + 1, vTT + 3, sC)
        A('v_mul_u32_u24 v%d, 896, v%d', vTT + 2, vT1)
        A('v_add_u32 v%d, v%d, v%d', vTT + 2, vTT + 2, vTT + 3)
        A('s_add_u32 s%d, s%d, %d', sC, sT2, 16 * 896)
    exchange(C0 + 27)
    cvt8(A, vHP, vAC)
    OB = ('', ' sc1', ' nt', ' sc0 sc1')[E('OUTB', 2)]
    if E('OUTT', 1):
        for q in range(4):
            A('ds_write_b64 v%d, v[%d:%d] offset:%d', vTT, vHP + 2 * q, vHP + 2 * q + 1, q * 16)
        for q in range(2):
            A('ds_read_b128 %s, v%d offset:%d', v(vHP + 4 * q, 4), vTT + 1, q * 16 * 80)
        for q in range(2):
            A('s_waitcnt lgkmcnt(%d)', 1 - q)
            A('buffer_store_dwordx4 %s, v%d, s[%d:%d], s%d offen%s', v(vHP + 4 * q, 4), vTT + 2, SOUT, SOUT + 3,
              (sT2, sC)[q], OB)
    else:
        for q in range(2):
            A('v_permlane32_swap_b32 v%d, v%d', vHP + 4 * q, vHP + 4 * q + 2)
            A('v_permlane32_swap_b32 v%d, v%d', vHP + 4 * q + 1, vHP + 4 * q + 3)
        for q in range(2):
            A('buffer_store_dwordx4 %s, v%d, s[%d:%d], 0 offen offset:%d%s', v(vHP + 4 * q, 4), vRO, SOUT, SOUT + 3,
              q * 32, OB)
    A('s_or_b32 s%d, s%d, s%d', sT, sI, sWV)
    A('s_or_b32 s%d, s%d, s%d', sT, sT, sXCD)
    A('s_cmp_lg_u32 s%d, 0', sT)
    A('s_cbranch_scc1 %s', fin)
    A('s_mov_b32 s%d, %d', sT, FEP)
    A('s_mov_b64 exec, 1')
    A('buffer_store_dword v%d, v%d, s[%d:%d], s%d offen', vTAG, vO, SWS, SWS + 3, sT)
    A('s_mov_b64 exec, -1')
    if E('ITOUCH', 0):
        A.lines.append(';ITE')
    A('%s:', fin)
    if E('PADTO', 0):
        lo = A.label('PAD')
        A('s_waitcnt vmcnt(0) lgkmcnt(0)')
        A('s_mov_b32 s6, %d', E('PADTO', 0))
        if PROBE >= 0:
            A('s_sub_u32 s7, s56, s84')
            A('s_lshl_b32 s7, s7, 2')
            A('s_cmp_ge_u32 s%d, 28', sI)
            A('s_cselect_b32 s7, 0, s7')
            A('s_add_u32 s6, s6, s7')
        A('%s:', lo)
        A('s_memrealtime s[4:5]')
        A('s_waitcnt lgkmcnt(0)')
        A('s_sub_u32 s4, s4, s84')
        A('s_cmp_lt_u32 s4, s6')
        A('s_cbranch_scc1 %s', lo)
    stamp_flush(A)


def gen():
    A = Asm()
    name = NAME + '_kernel'
    A.lines += ['.p2align 8', '.globl %s' % name, '.type %s,@function' % name, '%s:' % name]
    end = A.label('END')
    if E('PADTO', 0):
        A('s_memrealtime s[84:85]')
    A('s_load_dwordx16 s[64:79], s[0:1], 0')
    A('s_load_dwordx2 s[80:81], s[0:1], 72')
    A('s_getpc_b64 s[%d:%d]', sPC, sPC + 1)
    A('s_cmp_ge_u32 s2, 256')
    A('s_cbranch_scc1 %s', end)
    assert MAP == 0
    A('s_and_b32 s%d, s2, 7', sXCD)
    A('s_lshr_b32 s%d, s2, 3', sI)
    A('v_lshrrev_b32 v%d, 6, v0', vMY)
    A('v_and_b32 v%d, 63, v0', vL)
    A('s_and_b32 s%d, s%d, 1', sTB, sI)
    A('s_lshl1_add_u32 s%d, s%d, s%d', sTB, sXCD, sTB)
    A('v_readfirstlane_b32 s%d, v%d', sWV, vMY)
    A('s_add_u32 s%d, s%d, s%d', sC0, sXCD, sI)
    A('s_mul_i32 s%d, s%d, 37', sT, sC0)
    A('s_lshr_b32 s%d, s%d, 8', sT, sT)
    A('s_mul_i32 s%d, s%d, 7', sT, sT)
    A('s_sub_u32 s%d, s%d, s%d', sC0, sC0, sT)
    if CODEPF & 8:
        nc = A.label('NC')
        A('s_cmp_lg_u32 s%d, 5', sWV)
        A('s_cbranch_scc1 %s', nc)
        code_touch(A, 72)
        A('%s:', nc)
    x_offsets(A)
    perm = [2, 4, 6, 9, 11, 13, 0, 1, 3, 5, 7, 8, 10, 12, 14, 15]
    lo = sum(perm[i] << (4 * i) for i in range(8))
    hi = sum(perm[8 + i] << (4 * i) for i in range(8))
    A('s_mov_b32 s%d, 0x%x', sHI, lo)
    A('s_mov_b32 s%d, 0x%x', sHI + 1, hi)
    A('s_lshr_b32 s%d, s%d, 1', sT, sI)
    A('s_lshl_b32 s%d, s%d, 2', sT, sT)
    A('s_lshr_b64 s[%d:%d], s[%d:%d], s%d', sHI, sHI + 1, sHI, sHI + 1, sT)
    A('s_and_b32 s%d, s%d, 15', sH, sHI)
    A('v_lshlrev_b32 v%d, 2, v%d', vMY, vMY)
    A('v_add_u32 v%d, %d, v%d', vMY, L_MISC, vMY)
    A('v_mov_b32 v%d, 0', vT0)
    A('ds_write2st64_b32 v%d, v%d, v%d offset0:0 offset1:1', vMY, vT0, vT0)
    A('ds_write2_b32 v%d, v%d, v%d offset0:%d offset1:%d', vMY, vT0, vT0, M_FAST // 4, M_CP // 4)
    w_offsets(A)
    A('v_mov_b32 v%d, %d', vMI, L_MISC)
    A('s_mov_b32 s%d, 0x400000', sSPIN)
    A('s_mov_b32 s%d, 0', sPROG)
    A('s_mul_i32 s%d, s%d, %d', sT2, sWV, 32 * 896)
    A('s_lshl_b32 s%d, s%d, 7', sT, sC0)
    A('s_add_u32 s%d, s%d, s%d', sT, sT, sXB)
    A('s_add_u32 s%d, s%d, s%d', sT, sT, sT2)
    A('s_lshl_b32 m0, s%d, 12', sWV)
    A('s_mov_b32 s%d, 0x%x', SX + 2, 0 if E('ABL', 0) & 16 else S * D * 2)
    A('s_mov_b32 s%d, 0x20000', SX + 3)
    A('s_mov_b32 s%d, 0x%x', SW + 2, 0 if E('ABL', 0) & 8 else D * 3 * D * 2)
    A('s_mov_b32 s%d, 0x20000', SW + 3)
    A('s_waitcnt lgkmcnt(0)')
    A('s_mov_b64 s[%d:%d], s[64:65]', SX, SX + 1)
    A('s_mov_b64 s[%d:%d], s[66:67]', SW, SW + 1)
    A('s_mov_b32 s%d, 0', sPROG1)
    _st['n'] = 0
    stamp(A, 'all')
    if STAMPS:
        A('s_memrealtime s[86:87]')
    for i in range(7):
        LP[('x', i)] = (7, 1 + i)
    hn = [9]
    for gi in range(4):
        us = E('HSPOS', 3) if gi == 0 else 0
        LP[('st', gi)] = (6 - (gi & 1), 4 + gi // 2)
        for q in range(7):
            if q in HITEMS[gi > 0]:
                hn[0] += 1
                LP[('h', gi, q)] = (7, hn[0])
            if q == us:
                hn[0] += 1
                LP[('hs', gi)] = (7, hn[0])
    for pi in range(3):
        for i in range(7):
            LP[('W', pi, i)] = (4, 7 * pi + i + 1)
    l0, l1, l2, lw, lc = A.label('H0'), A.label('H1'), A.label('H23'), A.label('EW'), A.label('EC')
    l7 = A.label('E7')
    A('s_cmp_eq_u32 s%d, 4', sWV)
    A('s_cbranch_scc1 %s', lw)
    A('s_cmp_gt_u32 s%d, 4', sWV)
    A('s_cbranch_scc1 %s', l7)
    for u in range(4):
        A('buffer_load_dwordx4 v%d, s[%d:%d], s%d offen offset:%d lds', vXD + u, SX, SX + 3, sT, u * 1024)
    A('%s:', l7)
    if SHST:
        n6 = A.label('N6')
        A('s_cmp_lg_u32 s%d, 6', sWV)
        A('s_cbranch_scc1 %s', n6)
        A('s_mul_i32 s%d, s%d, %d', sT, sH, 8 * 896)
        A('s_add_u32 s%d, s%d, s%d', sT, sT, sXB)
        for u in range(7):
            A('buffer_load_dwordx4 %s, v%d, s[%d:%d], s%d offen offset:%d', v(76 + 4 * u, 4), vXD, SX, SX + 3, sT,
              u * 128)
        A('%s:', n6)
    A('s_cmp_lg_u32 s%d, 7', sWV)
    A('s_cbranch_scc1 %s', lc)
    HELP['on'] = True
    nst = {}
    prio(A, 1)
    _st['n'] = 1
    HELP['role'] = '7'
    early_x(A)
    nst[l1] = _st['n']
    A('s_branch %s', l1)
    A('%s:', lw)
    prio(A, 1)
    _st['n'] = 1
    HELP['role'] = '4'
    early_w(A)
    nst[l0] = _st['n']
    nst[l2] = 1
    A('s_branch %s', l0)
    refresh_routines(A)
    A('%s:', lc)
    A('s_barrier')
    A('s_cmp_ge_u32 s%d, 5', sWV)
    A('s_cbranch_scc1 %s', l2)
    parts = {}
    for lab, fn in ((l0, gen_h0), (l1, gen_h1), (l2, gen_h23)):
        B = sub(A)
        B('%s:', lab)
        B('s_nop 4')
        HELP['on'] = True
        prio(B, 1)
        _st['n'] = nst[lab]
        HELP['role'] = {l0: '4', l1: '7', l2: 'h'}[lab]
        fn(B)
        HELP['role'] = 'c'
        HELP['on'] = False
        parts[lab] = B.lines
    if E('H2F', 0):
        lcc = A.label('CC')
        A.lines[-2:] = ['  s_cmp_lt_u32 s%d, 5' % sWV, '  s_cbranch_scc1 %s' % lcc]
        A.lines += parts[l2]
        A('%s:', lcc)
    _st['n'] = 1
    gen_compute(A)
    A('%s:', end)
    A('s_endpgm')
    for lab in (l0, l1) if E('H2F', 0) else (l0, l1, l2):
        A.lines += parts[lab]
    A.lines += COLD
    return A, name


def main():
    out = sys.argv[1] if len(sys.argv) > 1 else 'cdna_kernels/%s.s' % NAME
    A, name = gen()
    lines, nn = fix_hazards(A.lines)
    IT = E('ITOUCH', 0)
    if IT:
        sz = sizes_of(lines)
        start, stop = lines.index(';ITB'), lines.index(';ITE')
        ol, acc, n = [], 0, 0
        for i, l in enumerate(lines):
            if start < i < stop and i in sz:
                prev = lines[i - 1].strip()
                if acc >= IT and not prev.startswith(('s_getpc', 's_endpgm', 's_branch', 's_setpc')):
                    ol += ['IT_%d:' % n, '  s_cbranch_execz IT_RET']
                    n += 1
                    acc = 4
                acc += sz[i]
            ol.append(l)
        cl_ = ['  s_call_b64 s[4:5], IT_%d' % k for k in range(n)]
        calls = ['  s_setprio 0', '  s_mov_b64 exec, 0', '  s_cmp_eq_u32 s%d, 5' % sWV, '  s_cbranch_scc1 IT_B'] + \
            cl_[0::2] + ['  s_branch IT_END', 'IT_RET:', '  s_setpc_b64 s[4:5]', 'IT_B:'] + cl_[1::2] + [
            'IT_END:', '  s_mov_b64 exec, -1']
        k = ol.index(';ITOUCH')
        lines = ol[:k] + calls + ol[k + 1:]
        print('landing points', n)
    if E('ALIGN', 0):
        lines, na = align8(lines)
        print('re-encoded', na)
    hdr = ['; generated by gen/gen18.py (hand-written generator script)',
           '; kernarg: +0 A_x +8 A_wqkv +16 A_w_phi +24 A_wo +32 B_x (unused) +40 B_w1 +48 B_w2 +56 out +64 debug +72 ws',
           '; one persistent launch: 256 workgroups x (4 matrix waves + 4 helper waves); phases',
           ';   P1 LN1+QKV+feature maps per (128 tokens, head) | kv all-gather | o | P2b h = x + o wo | P3 silu(LN2(h) w1) | P4 + w2',
           '; @launch grid=(256,1,1) block=(512,1,1) lds=%d' % LDS_SIZE,
           '.amdgcn_target "amdgcn-amd-amdhsa--gfx950"', '.text']
    tail = ['.p2align 8', '.fill 2048, 4, 0xbf800000', '.section .rodata,"a"', '.p2align 6', '''.amdhsa_kernel %s
  .amdhsa_next_free_vgpr 256
  .amdhsa_next_free_sgpr 102
  .amdhsa_accum_offset 256
  .amdhsa_group_segment_fixed_size 0
  .amdhsa_kernarg_size 80
  .amdhsa_user_sgpr_count 2
  .amdhsa_user_sgpr_kernarg_segment_ptr 1
  .amdhsa_system_sgpr_workgroup_id_x 1
  .amdhsa_float_denorm_mode_32 3
  .amdhsa_float_denorm_mode_16_64 3
.end_amdhsa_kernel''' % name]
    open(out, 'w').write('\n'.join(hdr + lines + tail) + '\n')
    print('wrote', out, 'lines', len(lines), 'nops', nn)


if __name__ == '__main__':
    main()
```

```python
import sys
import os
sys.path.insert(0, os.path.dirname(os.path.abspath(__file__)))
from asmlib import Asm, fix_hazards, align8, sizes_of, v

NAME = 'sequential_preLN__linear_kernel_hedgehog__dense_activation_silu__prompt'
S, D, H, DH, F = 2048, 448, 16, 28, 1792
MB = 1 << 20
E = lambda k, d: int(os.environ.get(k, d))
STAMPS = E('STAMPS', 0)
MAP = E('MAP', 0)
FAST = E('FAST', 1)
CODEPF = E('CODEPF', 10)
WARM = E('WARM', 0)
WT1 = E('WT1', 1)
WTO = E('WTO', 0)
TOUCHAT = E('TOUCHAT', 2)
LDB = (' sc1', '', ' nt')[E('LDB', 0)]
HLATE = E('HLATE', 1)
WS_KVP = 0
WS_OB = 2 * MB
WS_HB = 4 * MB
WS_H1B = 8 * MB
WS_FLG = 16 * MB
F1, F2, F3, F4, FREG, FEP = WS_FLG + 0x10000, WS_FLG + 0x1000, WS_FLG + 0x3000, WS_FLG + 0x70000, WS_FLG + 0x9000, WS_FLG + 0xA000
F2X = WS_FLG + 0x40000
FLN = WS_FLG + 0x80000
SHST = E('SHST', 0)
WS_STAMP = 17 * MB
WS_SIZE = 18 * MB
LOG2E = 0x3fb8aa3b
ONES = 0x3f803f80
MFMA = 'v_mfma_f32_32x32x16_bf16'
L_X = 0
L_WP = (114688, 0, 32768)
L_KVA, L_KVV = 65536, 81920
L_A = 98304
L_SC0, L_SC1 = 49152, 57344
L_XRES = L_SC0
B16 = (0, 16384, 65536, 81920, 32768)
L_PHI, L_EX, L_CF, L_MISC = 159744 - 2048 + 2048 + 1536, 155648, 159744, 163328
LDS_SIZE = 163840
M_PW, M_FAST, M_CP, M_LD = 0, 64, 96, 256
L_RSTD = L_EX

SX, SW, SP, SWS, SWO, SW1, SW2, SOUT = 12, 16, 20, 24, 28, 32, 36, 40
sTB, sH, sWV, sC0, sPROG, sT, sT2, sONES, sC, sTAG, sFASTF, sI, sXCD = 44, 45, 46, 47, 48, 49, 50, 51, 52, 53, 54, 55, 3
sHI, sPADL, sZA, sZB, sODD, sPC = 4, 6, 8, 10, 92, 94
sTQ, sNB, sTB3, sFB, sG, sKH, sB, sXB, sM0, sSPIN = 96, 97, 98, 99, 100, 101, 88, 89, 91, 90
sPROG1, sFL = 0, 1
vL, vMI, vT0, vT1, vO = 1, 2, 3, 4, 5
vTAG, vMY = 6, 7
vTT = 8
vXA = 12
vWA = 16
vSM, vSQ = 20, 22
vNM, vRS, vSC, vRA = 24, 25, 26, 27
vXD = 28
vPW = 32
vCA = 36
vXR = 144
vPK_ = 37
CACHE = {4: sPROG, 7: sPROG1, 5: sC0}

_st = {'n': 0}
C0 = 4
HELP = {'on': False}


def prio(A, hi):
    if HELP['on'] and E('HPRIO', 2) and not HELP.get('hot'):
        A('s_setprio %d', E('HPRIO', 2) if hi else 0)
LP = {}


STSET = os.environ.get('STSET', 'main')


DBGT = E('DBGT', 0)


PROBE = E('PROBE', -1)


DLY = os.environ.get('DLY', '')


def stamp(A, tag='main'):
    if DLY:
        if tag in ('main', 'all'):
            if '%s:%d' % (HELP.get('role', 'c'), _st['n']) == DLY:
                A('s_sleep 16')
            _st['n'] += 1
        return
    if PROBE >= 0:
        if not HELP['on'] and tag in ('main', 'all'):
            if _st['n'] == PROBE:
                A('s_memrealtime s[56:57]')
            _st['n'] += 1
        return
    if DBGT and not HELP['on'] and tag in ('main', 'all'):
        A('s_memrealtime s[%d:%d]', 56 + 2 * _st['n'], 57 + 2 * _st['n'])
        _st['n'] += 1
        return
    if STAMPS and STSET == 'clk' and tag == 'main' and not HELP['on']:
        _st['m'] = _st.get('m', 0) + 1
        if _st['m'] in (1, 2, 4, 8, 10, 13):
            A('s_memtime s[%d:%d]', 56 + 2 * _st['n'], 57 + 2 * _st['n'])
            A('s_memrealtime s[%d:%d]', 58 + 2 * _st['n'], 59 + 2 * _st['n'])
            _st['n'] += 2
        return
    if STAMPS and (tag == STSET or tag == 'all' or (HELP['on'] and tag == 'main')):
        assert _st['n'] < 15, 'too many stamps'
        A('s_memtime s[%d:%d]', 56 + 2 * _st['n'], 57 + 2 * _st['n'])
        _st['n'] += 1


def stamp_flush(A):
    if DBGT and not HELP['on']:
        A('s_waitcnt vmcnt(0)')
        stamp(A, 'all')
        skip = A.label('DS')
        A('s_waitcnt vmcnt(0) lgkmcnt(0)')
        A('s_cmp_ge_u32 s%d, 28', sI)
        A('s_cbranch_scc1 %s', skip)
        A('s_mov_b64 exec, 1')
        A('v_mov_b32 v1, 0')
        A('s_not_b32 s4, s56')
        A('v_mov_b32 v2, s4')
        A('global_atomic_umax v1, v2, s[86:87] offset:60')
        for i in range(_st['n']):
            A('v_mov_b32 v%d, s%d', 8 + i, 56 + 2 * i)
            A('global_atomic_umax v1, v%d, s[86:87] offset:%d', 8 + i, 4 * i)
        A('%s:', skip)
        return
    if STAMPS:
        A('s_waitcnt vmcnt(0)')
        stamp(A, 'all')
        A('s_memrealtime s[4:5]')
        A('s_waitcnt vmcnt(0) lgkmcnt(0)')
        A('s_sub_u32 s4, s4, s86')
        A('s_lshl_b32 s4, s4, 20')
        A('s_and_b32 s86, s86, 0xfffff')
        A('s_or_b32 s86, s86, s4')
        A('s_lshl_b32 s%d, s2, 3', sT)
        A('s_add_u32 s%d, s%d, s%d', sT, sT, sWV)
        A('s_lshl_b32 s%d, s%d, 6', sT, sT)
        A('s_add_u32 s%d, s%d, %d', sT, sT, WS_STAMP)
        A('s_mov_b64 exec, 1')
        A('v_mov_b32 v1, 0')
        for i in range(16):
            if i < _st['n']:
                A('v_mov_b32 v2, s%d', 56 + 2 * i)
            elif i == 15:
                A('v_mov_b32 v2, s86')
            else:
                A('v_mov_b32 v2, 0')
            A('buffer_store_dword v2, v1, s[%d:%d], s%d offen offset:%d', SWS, SWS + 3, sT, 4 * i)
            A('s_nop 1')


def srd(A, d, ptr, size):
    A('s_mov_b32 s%d, s%d', d, ptr)
    A('s_and_b32 s%d, s%d, 0xffff', d + 1, ptr + 1)
    A('s_mov_b32 s%d, 0x%x', d + 2, size)
    A('s_mov_b32 s%d, 0x20000', d + 3)


COLD = []


def cold_block(A, fn):
    ent, back = A.label('CE'), A.label('CB')
    B = sub(A)
    B('%s:', ent)
    B('s_nop 15')
    fn(B, back)
    B('s_nop 7')
    B('s_branch %s', back)
    COLD.extend(B.lines)
    return ent, back


def again(A, br, lo, sleep=0):
    slp = max(sleep * E('SLPMUL', 1), E('HSLP', 0) if HELP['on'] else E('CSLP', 0))
    if slp:
        st = A.label('ZZ')
        COLD.extend(['%s:' % st, '  s_sleep %d' % slp, '  s_branch %s' % lo])
        lo = st
    A('%s %s', br, lo)


def spin_guard(A, done):
    A('s_sub_u32 s%d, s%d, 1', sSPIN, sSPIN)
    A('s_cbranch_scc1 %s', done)


def wait_word(A, w, n, cache=None, sleep=0, body=None):
    sd = sT if cache is None else cache

    def loop(B, done, body=None):
        lo = B.label('W')
        prio(B, 0)
        B('%s:', lo)
        B('ds_read_b32 v%d, v%d offset:%d', vPW, vMI, M_PW + 4 * w)
        k = body() if body else 0
        B('s_waitcnt lgkmcnt(%d)', k)
        B('v_readfirstlane_b32 s%d, v%d', sd, vPW)
        spin_guard(B, done)
        B('s_cmp_ge_u32 s%d, %d', sd, n)
        again(B, 's_cbranch_scc0', lo, sleep)
        prio(B, 1)
    if cache is not None and body is None and not HELP['on']:
        A('s_getpc_b64 s[%d:%d]', sPC, sPC + 1)
        A('s_cmp_ge_u32 s%d, %d', sd, n)
        A('s_cbranch_scc0 REFRESH_%d', w)
        return
    done = A.label('WD')
    if cache is not None and body is None:
        A('s_cmp_ge_u32 s%d, %d', sd, n)
        A('s_cbranch_scc1 %s', done)
    loop(A, done, body)
    A('%s:', done)


def wait_lp(A, name, sleep=0):
    w, n = LP[name]
    wait_word(A, w, n, CACHE[w], sleep)


def set_stage(A, n):
    A('v_mov_b32 v%d, %d', vT0, n)
    A('ds_write_b32 v%d, v%d', vMY, vT0)


def wait_stage(A, n, which=(0, 1, 2, 3), body=None, sleep=0, base=M_PW, cache=None):
    lo, done = A.label('W'), A.label('WD')
    sT = globals()['sT'] if cache is None else cache
    if cache is not None:
        A('s_cmp_ge_u32 s%d, %d', sT, n)
        A('s_cbranch_scc1 %s', done)
    prio(A, 0)
    A('%s:', lo)
    A('ds_read_b128 v[%d:%d], v%d offset:%d', vPW, vPW + 3, vMI, base + 16 * (which[0] // 4))
    k = body() if body else 0
    A('s_waitcnt lgkmcnt(%d)', k)
    w = [x % 4 for x in which]
    if len(w) == 4:
        A('v_min3_u32 v%d, v%d, v%d, v%d', vPW, vPW, vPW + 1, vPW + 2)
        A('v_min_u32 v%d, v%d, v%d', vPW, vPW, vPW + 3)
        r = vPW
    else:
        A('v_min_u32 v%d, v%d, v%d', vPW + w[0], vPW + w[0], vPW + w[1])
        r = vPW + w[0]
    A('v_readfirstlane_b32 s%d, v%d', sT, r)
    spin_guard(A, done)
    A('s_cmp_ge_u32 s%d, %d', sT, n)
    again(A, 's_cbranch_scc0', lo, sleep)
    A('%s:', done)
    prio(A, 1)


def poll_global(A, soff, nlanes):
    lo, done = A.label('P'), A.label('PD')
    A('v_lshlrev_b32 v%d, 2, v%d', vT1, vL)
    if nlanes <= 32:
        A('s_mov_b64 exec, 0x%x', (1 << nlanes) - 1)
    else:
        A('s_mov_b32 exec_lo, 0x%x', nlanes & 0xffffffff)
        A('s_mov_b32 exec_hi, 0x%x', nlanes >> 32)
    A('%s:', lo)
    A('buffer_load_dword v%d, v%d, s[%d:%d], s%d offen sc1', vT0, vT1, SWS, SWS + 3, soff)
    A('s_waitcnt vmcnt(0)')
    A('v_cmp_ne_u32 vcc, s%d, v%d', sTAG, vT0)
    spin_guard(A, done)
    A('s_cbranch_vccnz %s', lo)
    A('%s:', done)
    A('s_mov_b64 exec, -1')


def poll_scalar(A, soff, n):
    lo, done = A.label('P'), A.label('PD')
    A('s_add_u32 s%d, s%d, s%d', sPC, SWS, soff)
    A('s_addc_u32 s%d, s%d, 0', sPC + 1, SWS + 1)
    base = 76
    assert n == 8
    A('%s:', lo)
    if E('PSLEEP', 0):
        A('s_sleep %d', E('PSLEEP', 0))
    A('s_load_dwordx%d s[%d:%d], s[%d:%d], 0 glc', n, base, base + n - 1, sPC, sPC + 1)
    A('s_waitcnt lgkmcnt(0)')
    A('s_and_b64 s[%d:%d], s[%d:%d], s[%d:%d]', sHI, sHI + 1, base, base + 1, base + 2, base + 3)
    A('s_or_b64 s[%d:%d], s[%d:%d], s[%d:%d]', sPADL, sPADL + 1, base, base + 1, base + 2, base + 3)
    for k in range(4, n, 2):
        A('s_and_b64 s[%d:%d], s[%d:%d], s[%d:%d]', sHI, sHI + 1, sHI, sHI + 1, base + k, base + k + 1)
        A('s_or_b64 s[%d:%d], s[%d:%d], s[%d:%d]', sPADL, sPADL + 1, sPADL, sPADL + 1, base + k, base + k + 1)
    A('s_and_b32 s%d, s%d, s%d', sHI, sHI, sHI + 1)
    A('s_or_b32 s%d, s%d, s%d', sPADL, sPADL, sPADL + 1)
    A('s_xor_b32 s%d, s%d, s%d', sHI, sHI, sTAG)
    A('s_xor_b32 s%d, s%d, s%d', sPADL, sPADL, sTAG)
    spin_guard(A, done)
    A('s_or_b32 s%d, s%d, s%d', sHI, sHI, sPADL)
    A('s_cbranch_scc1 %s', lo)
    A('%s:', done)


def two_ways(A, fn, local):
    if local and FAST:
        ent, back = cold_block(A, lambda B, back: fn(B, ' sc1'))
        A('s_cmp_eq_u32 s%d, 0', sFASTF)
        A('s_cbranch_scc1 %s', ent)
        fn(A, '')
        A('%s:', back)
    else:
        fn(A, ' sc1')


def pub_stores(A, stores, local):
    def fn(B, bits):
        for st in stores:
            B(st % bits)
    two_ways(A, fn, local)


def pub_flag(A, sflag, local, drain=True):
    if drain:
        A('s_waitcnt vmcnt(0)')
    A('s_mov_b64 exec, 1')
    two_ways(A, lambda B, bits: B('buffer_store_dword v%d, v%d, s[%d:%d], s%d offen%s', vTAG, vO, SWS, SWS + 3, sflag,
                                  bits), local)
    A('s_mov_b64 exec, -1')


def pub_flag4(A):
    A('v_lshlrev_b32 v%d, 9, v%d', vT1, vL)
    A('s_waitcnt vmcnt(0)')
    A('s_mov_b64 exec, 15')
    two_ways(A, lambda B, bits: B('buffer_store_dword v%d, v%d, s[%d:%d], s%d offen%s', vTAG, vT1, SWS, SWS + 3, sFL,
                                  bits), True)
    A('s_mov_b64 exec, -1')


def st4(reg, soff, off):
    return 'buffer_store_dwordx4 %s, v%d, s[%d:%d], s%d offen offset:%d%%s' % (v(reg, 4), vO, SWS, SWS + 3, soff, off)


def hilo_c(A, src, f, tmp):
    A('v_cvt_pk_bf16_f32 v%d, v%d, v%d', f, src, src)
    A('v_and_b32 v%d, 0xffff0000, v%d', tmp, f)
    A('v_sub_f32 v%d, v%d, v%d', tmp, src, tmp)
    A('v_cvt_pk_bf16_f32 v%d, v%d, 0', f + 1, tmp)


def hilo_m(A, src, f, tmp):
    A('v_cvt_pk_bf16_f32 v%d, v%d, 0', f + 1, src)
    A('v_lshlrev_b32 v%d, 16, v%d', tmp, f + 1)
    A('v_sub_f32 v%d, v%d, v%d', tmp, src, tmp)
    A('v_cvt_pk_bf16_f32 v%d, v%d, v%d', f, src, tmp)


def ln_finish(A, t0, t1, negmean, rstd):
    A('v_mul_f32 v%d, 0x%x, v%d', t0, 0x3b124925, t0)
    A('v_mov_b32 v%d, v%d', t1, t0)
    A('v_permlane32_swap_b32 v%d, v%d', t0, t1)
    A('v_fma_f32 v%d, -v%d, v%d, v%d', t1, t0, t0, t1)
    A('v_max_f32 v%d, 0, v%d', t1, t1)
    A('v_add_f32 v%d, 0x%x, v%d', t1, 0x3727c5ac, t1)
    A('v_rsq_f32 v%d, v%d', rstd, t1)
    A('v_sub_f32 v%d, 0, v%d', negmean, t0)


def softmax_pm(A, p, sc, e, t):
    A('v_cndmask_b32 v%d, v%d, v%d, s[%d:%d]', p + 12, p + 12, p + 14, sHI, sHI + 1)
    A('v_cndmask_b32 v%d, v%d, v%d, s[%d:%d]', p + 13, p + 13, p + 15, sHI, sHI + 1)
    mx, mn = t, t + 1
    A('v_max3_f32 v%d, v%d, v%d, v%d', mx, p, p + 1, p + 2)
    A('v_min3_f32 v%d, v%d, v%d, v%d', mn, p, p + 1, p + 2)
    for i in range(3, 13, 2):
        A('v_max3_f32 v%d, v%d, v%d, v%d', mx, mx, p + i, p + i + 1)
        A('v_min3_f32 v%d, v%d, v%d, v%d', mn, mn, p + i, p + i + 1)
    A('v_max_f32 v%d, v%d, v%d', mx, mx, p + 13)
    A('v_min_f32 v%d, v%d, v%d', mn, mn, p + 13)
    A('v_sub_f32 v%d, 0, v%d', mn, mn)
    A('v_permlane32_swap_b32 v%d, v%d', mx, mn)
    A('v_max_f32 v%d, v%d, v%d', mx, mx, mn)
    A('v_mul_f32 v%d, v%d, v%d', mx, mx, sc)
    A('v_mov_b32 v%d, v%d', mn, mx)
    A('v_permlane32_swap_b32 v%d, v%d', mx, mn)
    assert sc % 2 == 0 and mx % 2 == 0
    for i in range(0, 14, 2):
        A('v_pk_fma_f32 v[%d:%d], v[%d:%d], v[%d:%d], v[%d:%d] op_sel:[0,0,1] op_sel_hi:[1,0,1] neg_lo:[1,0,1] '
          'neg_hi:[1,0,1]', e + i, e + i + 1, p + i, p + i + 1, sc, sc + 1, mx, mx + 1)
        A('v_pk_fma_f32 v[%d:%d], v[%d:%d], v[%d:%d], v[%d:%d] op_sel_hi:[1,0,0] neg_lo:[0,0,1] neg_hi:[0,0,1]',
          p + i, p + i + 1, p + i, p + i + 1, sc, sc + 1, mx, mx + 1)
    for i in range(14):
        A('v_exp_f32 v%d, v%d', e + i, e + i)
        A('v_exp_f32 v%d, v%d', p + i, p + i)
    if PKSM:
        for base in (p, e):
            A('v_pk_add_f32 v[%d:%d], v[%d:%d], v[%d:%d]', base + 14, base + 15, base, base + 1, base + 2, base + 3)
        for i in range(4, 14, 2):
            for base in (p, e):
                A('v_pk_add_f32 v[%d:%d], v[%d:%d], v[%d:%d]', base + 14, base + 15, base + 14, base + 15, base + i,
                  base + i + 1)
    else:
        for base in (p, e):
            A('v_add_f32 v%d, v%d, v%d', base + 14, base, base + 2)
            A('v_add_f32 v%d, v%d, v%d', base + 15, base + 1, base + 3)
        for i in range(4, 14):
            for base in (p, e):
                A('v_add_f32 v%d, v%d, v%d', base + 14 + (i & 1), base + 14 + (i & 1), base + i)
    sp, sn = t + 2, t
    A('v_add_f32 v%d, v%d, v%d', sp, p + 14, p + 15)
    A('v_add_f32 v%d, v%d, v%d', sn, e + 14, e + 15)
    A('v_permlane32_swap_b32 v%d, v%d', sp, sn)
    A('v_add_f32 v%d, v%d, v%d', sp, sp, sn)
    A('v_rcp_f32 v%d, v%d', sp, sp)
    A('v_mov_b32 v%d, v%d', sn, sp)
    A('v_permlane32_swap_b32 v%d, v%d', sp, sn)
    for i in range(0, 14, 2):
        for base, r in ((p, sp), (e, sn)):
            if PKSM:
                A('v_pk_mul_f32 v[%d:%d], v[%d:%d], v[%d:%d] op_sel_hi:[1,0]', base + i, base + i + 1, base + i,
                  base + i + 1, r, r + 1)
            else:
                A('v_mul_f32 v%d, v%d, v%d', base + i, base + i, r)
                A('v_mul_f32 v%d, v%d, v%d', base + i + 1, base + i + 1, r)
    for i, (a0, a1) in enumerate(((0, 1), (2, 3), (4, 5), (6, None), (7, 8), (9, 10), (11, 12), (13, None))):
        for base in (p, e):
            A('v_cvt_pk_bf16_f32 v%d, v%d, %s', base + i, base + a0, '0' if a1 is None else 'v%d' % (base + a1))


PKSM = E('PKSM', 1)


def silu8(B, acc, e, sd, c1, out):
    for r in range(8):
        B('v_mul_f32 v%d, v%d, v%d', e + r, acc + r, c1)
        if r >= 1:
            B('v_exp_f32 v%d, v%d', e + r - 1, e + r - 1)
    B('v_exp_f32 v%d, v%d', e + 7, e + 7)
    for r in range(8):
        B('v_fma_f32 v%d, v%d, v%d, v%d', e + r, e + r, sd, sd)
        if r >= 1:
            B('v_rcp_f32 v%d, v%d', e + r - 1, e + r - 1)
    B('v_rcp_f32 v%d, v%d', e + 7, e + 7)
    for r in range(8):
        B('v_mul_f32 v%d, v%d, v%d', e + r, e + r, acc + r)
    cvt8(B, out, e, 4)


def cvt8(A, dst, src, n=8):
    for i in range(n):
        A('v_cvt_pk_bf16_f32 v%d, v%d, v%d', dst + i, src + 2 * i, src + 2 * i + 1)


def mfma(A, d, a_, b_, first=False):
    A('%s %s, %s, %s, %s', MFMA, v(d, 16), v(a_, 4), v(b_, 4), '0' if first else v(d, 16))


def merge(main, blocks, start, stop):
    idx = [i for i, l in enumerate(main) if l.strip().startswith('v_mfma')][start:stop]
    out, k = [], 0
    n = len(idx)
    pos = {i: j for j, i in enumerate(idx)}
    for i, l in enumerate(main):
        out.append(l)
        if i in pos:
            upto = (len(blocks) * (pos[i] + 1) + n - 1) // n
            for b in blocks[k:upto]:
                out += b
            k = max(k, upto)
    assert k >= len(blocks)
    return out


def sub(A):
    return Asm()


L_H = (L_A, L_A + 28672, 0, 65536)
W2S = [32768, 40960] + [L_A + k * 8192 for k in range(2)] + [L_SC0, L_SC1] + [L_A + k * 8192 for k in range(2, 7)] + [
    k * 8192 for k in range(4)] + [65536 + k * 8192 for k in range(4)]
FINE = E('FINE', 1)
W2GATE = {2: 8, 3: 16, 6: 24, 7: 32, 8: 40, 9: 48, 10: 56, 11: 64, 12: 72, 13: 80, 14: 84, 15: 92, 16: 100, 17: 108,
          18: 112} if FINE else {2: 28, 7: 56, 11: 84, 15: 112}
W2RE = dict(zip(range(19, 28), (0, 1, 2, 3, 6, 7, 8, 9, 10)))


def w2_slot(n):
    return W2S[W2RE.get(n, n)]


def w1_slot(c):
    return B16[c % 5]


class LdsQ:
    def __init__(self, A):
        self.A, self.q = A, []
        self.peeked = False

    def op(self, tag, fmt, *a):
        self.A(fmt, *a)
        self.q.append(tag)

    def need(self, tag):
        idx = [i for i, x in enumerate(self.q) if x == tag]
        if not idx:
            return None
        n = len(self.q) - 1 - idx[-1]
        self.q = self.q[idx[-1] + 1:]
        return min(n, 15)

    def wait(self, tag, vm=None):
        n = self.need(tag)
        if n is None and vm is None:
            return
        self.A('s_waitcnt' + ('' if vm is None else ' vmcnt(%d)' % vm) + ('' if n is None else ' lgkmcnt(%d)' % n))

    def stage(self, n):
        set_stage(self.A, n)
        self.q.append('st')

    def peek(self, w):
        if w == 5:
            self.op('pk', 'ds_read_b32 v%d, v%d', vPK_, vCA)
        else:
            self.op('pk', 'ds_read_b32 v%d, v%d offset:%d', vPK_, vMI, M_PW + 4 * w)
        self.peeked = True

    def take(self, w):
        if not self.peeked:
            return
        self.peeked = False
        self.wait('pk')
        self.A('v_readfirstlane_b32 s%d, v%d', CACHE[w], vPK_)


def tag_compute(A, t16=None):
    A('s_waitcnt lgkmcnt(0)')
    if t16 is not None:
        A('s_lshr_b32 s%d, s%d, 16', sT2, sTAG)
    A('s_mul_i32 s%d, s%d, 0x%x', sTAG, sTAG, 1664525)
    A('s_add_u32 s%d, s%d, 0x%x', sTAG, sTAG, 1013904223)
    A('v_mov_b32 v%d, s%d', vTAG, sTAG)
    if t16 is not None:
        A('s_and_b32 s%d, s%d, 0x3fff', t16, sTAG)
        A('s_and_b32 s%d, s%d, 0x4000', sT, sTAG)
        A('s_lshl_b32 s%d, s%d, 1', sT, sT)
        A('s_or_b32 s%d, s%d, s%d', t16, t16, sT)
        A('s_cmp_eq_u32 s%d, s%d', t16, sT2)
        A('s_cselect_b32 s%d, 1, 0', sT)
        A('s_xor_b32 s%d, s%d, s%d', t16, t16, sT)
        A('s_lshl_b32 s%d, s%d, 16', t16, t16)


def fast_check(A):
    A('s_getreg_b32 s%d, hwreg(HW_REG_XCC_ID)', sC)
    A('s_and_b32 s%d, s%d, 15', sC, sC)
    A('s_add_u32 s%d, s%d, s%d', sC, sC, sTAG)
    A('s_lshl_b32 s%d, s%d, 7', sT, sXCD)
    A('s_add_u32 s%d, s%d, %d', sT, sT, FREG)
    A('v_and_b32 v%d, 31, v%d', vT1, vL)
    A('v_lshlrev_b32 v%d, 2, v%d', vT1, vT1)
    A('buffer_load_dword v%d, v%d, s[%d:%d], s%d offen sc1', vT0, vT1, SWS, SWS + 3, sT)
    A('s_waitcnt vmcnt(0)')
    A('v_cmp_ne_u32 vcc, s%d, v%d', sC, vT0)
    A('s_cmp_eq_u64 vcc, 0')
    A('s_cselect_b32 s%d, 1, 0', sFASTF)


class Stream:
    def __init__(self, A, wave, depth, first=0):
        self.A, self.wave, self.depth = A, wave, depth
        self.items = []
        self.issued = 0
        self.known = 0
        self.n = first

    def wait_to(self, left):
        if self.issued - left <= self.known:
            return
        self.A('s_waitcnt vmcnt(%d)', left)
        self.known = self.issued - left
        last = None
        while self.items and self.items[0][1] <= self.known:
            last = self.items.pop(0)[0]
        if last is not None:
            set_stage(self.A, last)

    def room(self, k):
        self.wait_to(max(self.depth - k, 0))
        self.issued += k

    def done(self, name, cnt=None):
        self.n += 1
        assert LP.setdefault(name, (self.wave, self.n)) == (self.wave, self.n), name
        self.items.append((self.n, self.issued))

    def drain(self):
        self.drain_to(0)

    def drain_to(self, keep):
        while len(self.items) > keep:
            self.wait_to(self.issued - self.items[0][1])

    def save(self):
        return (list(self.items), self.issued, self.known)

    def restore(self, s):
        self.items, self.issued, self.known = list(s[0]), s[1], s[2]

    def dma4(self, lds, voffs, srd_, step=None, bits=''):
        A = self.A
        if isinstance(lds, tuple):
            A('s_add_u32 m0, s%d, %d', lds[0], lds[1])
        else:
            A('s_mov_b32 m0, %d', lds)
        self.room(4)
        for u in range(4):
            A('buffer_load_dwordx4 v%d, s[%d:%d], s%d offen offset:%d%s lds', voffs[u], srd_, srd_ + 3, sT, u * 1024,
              bits)
        if step:
            A('s_add_u32 s%d, s%d, %d', sT, sT, step)


def reg4(St, regs, voffs, srd_, step=None):
    St.room(4)
    for u in range(4):
        St.A('buffer_load_dwordx4 %s, v%d, s[%d:%d], s%d offen offset:%d', v(regs[u], 4), voffs[u], srd_, srd_ + 3, sT,
             u * 1024)
    if step:
        St.A('s_add_u32 s%d, s%d, %d', sT, sT, step)


def spill(St, name, regs, lds):
    A = St.A
    assert not St.items
    A('v_add_u32 v%d, %d, v%d', vT1, lds, vO)
    A('s_setprio %d', E('SPRIO', 0))
    for j, r in enumerate(regs):
        A('ds_write_b128 v%d, %s offset:%d', vT1, v(r, 4), j * 1024)
    St.n += 1
    assert LP.setdefault(name, (St.wave, St.n)) == (St.wave, St.n), name
    set_stage(A, St.n)


def off128(A, vW128, vXo=None):
    A('v_lshrrev_b32 v%d, 3, v%d', vW128, vL)
    A('v_mul_u32_u24 v%d, 896, v%d', vW128, vW128)
    A('v_and_b32 v%d, 7, v%d', vT1, vL)
    if vXo is not None:
        A('v_lshl_add_u32 v%d, v%d, 4, v%d', vXo, vT1, vW128)
        spread4(A, vXo, 8 * 896)
    A('v_lshrrev_b32 v%d, 2, v%d', vT0, vL)
    A('v_and_b32 v%d, 4, v%d', vT0, vT0)
    A('v_xor_b32 v%d, v%d, v%d', vT1, vT1, vT0)
    A('v_lshl_add_u32 v%d, v%d, 4, v%d', vW128, vT1, vW128)
    spread4(A, vW128, 8 * 896)


def off256(A, vW256):
    A('v_lshrrev_b32 v%d, 4, v%d', vW256, vL)
    A('v_mul_u32_u24 v%d, 3584, v%d', vW256, vW256)
    A('v_and_b32 v%d, 15, v%d', vT1, vL)
    A('v_lshrrev_b32 v%d, 2, v%d', vT0, vL)
    A('v_and_b32 v%d, 12, v%d', vT0, vT0)
    A('v_xor_b32 v%d, v%d, v%d', vT1, vT1, vT0)
    A('v_lshl_add_u32 v%d, v%d, 4, v%d', vW256, vT1, vW256)
    spread4(A, vW256, 4 * 3584)


def code_touch(A, dst):
    A('s_mul_i32 s%d, s%d, %d', sT, sI, 11 * 128)
    A('v_lshlrev_b32 v%d, 7, v%d', vT0, vL)
    A('v_add_u32 v%d, s%d, v%d', vT0, sT, vT0)
    A('s_mov_b64 exec, 0x7ff')
    A('global_load_dword v%d, v%d, s[%d:%d]', dst, vT0, sPC, sPC + 1)
    A('s_mov_b64 exec, -1')


def h_stream(A, first):
    wave = 7
    St = Stream(A, wave, E('HDEPTH', 24), first)
    if wave == 7:
        A('s_lshl_b32 s%d, s%d, 17', sB, sTB3)
        A('s_add_u32 s%d, s%d, %d', sB, sB, WS_HB + (0x40000000 if E('ABL', 0) & 128 else 0))
        rot_calc(A, sG, 'w1')
        for u in range(7):
            rot_idx(A, 4 + u, sG, u, 7)
            A('s_lshl_b32 s%d, s%d, 12', 4 + u, 4 + u)
            A('s_add_u32 s%d, s%d, s%d', 4 + u, 4 + u, sB)
            A('s_add_u32 s%d, s%d, 4096', 4 + u, 4 + u)
        A('s_lshl_b32 s%d, s%d, 8', sT2, sTB3)
        A('s_add_u32 s%d, s%d, %d', sT2, sT2, F3)
        A('v_lshlrev_b32 v%d, 2, v%d', vT1, vL)
        A('s_and_b32 s%d, s%d, 1', sC, sFB)
        A('s_lshl_b32 s%d, s%d, 16', sC, sC)
        HALF = E('HHALF', 1)
        sMK = sODD
        A('s_bitcmp1_b32 s%d, 0', sFB)
        A('s_cselect_b32 s%d, %s, 0x3fff3fff', sMK, '0' if HALF else '0x3fff3fff')
        A('s_cselect_b32 s%d, 0x3fff3fff, %s', sMK + 1, '0' if HALF else '0x3fff3fff')
        A('v_mov_b32 v41, v%d', vT1)

        def poll(B, done):
            lo = B.label('P')
            B('%s:', lo)
            B('buffer_load_dword v42, v41, s[%d:%d], s%d offen sc1', SWS, SWS + 3, sM0)
            B('s_waitcnt vmcnt(0)')
            B('v_cmp_ne_u32 vcc, s%d, v42', sTAG)
            spin_guard(B, done)
            B('s_and_b64 vcc, vcc, s[%d:%d]', sMK, sMK + 1)
            B('s_cbranch_scc1 %s', lo)
        A('s_mov_b32 s%d, s%d', sM0, sT2)
        if CODEPF & 4:
            wait_stage(A, 1, base=M_LD, sleep=1)
            code_touch(A, 63)
        wait_stage(A, C0 + 7, sleep=1)
        stamp(A)
        done = A.label('PD')
        poll(A, done)
        A('%s:', done)
        stamp(A)
        for gi in range(4):
            if gi == 1 and HALF:
                St.room(1)
                A('buffer_load_dword v42, v41, s[%d:%d], s%d offen sc1', SWS, SWS + 3, sM0)
                mark = St.issued
                A('s_mov_b32 s%d, 0x3fff3fff', sMK)
                A('s_mov_b32 s%d, 0x3fff3fff', sMK + 1)
            if gi == 2:
                wait_stage(A, C0 + 8)
                if HALF:
                    St.wait_to(St.issued - mark)
                    ent, back = cold_block(A, poll)
                    A('v_cmp_ne_u32 vcc, s%d, v42', sTAG)
                    A('s_and_b64 vcc, vcc, s[%d:%d]', sMK, sMK + 1)
                    A('s_cbranch_scc1 %s', ent)
                    A('%s:', back)
            if gi:
                A('s_xor_b32 s%d, s%d, %d', sC, sC, (gi ^ (gi - 1)) << 15)
            St.depth = E('HDEPTH0', 24) if gi == 0 else E('HDEPTH', 24)
            for u in range(7):
                A('s_add_u32 s%d, s%d, s%d', sT, 4 + u, sC)
                St.dma4(L_H[gi] + u * 4096, [vO] * 4, SWS, None, LDB)
                if u in HITEMS[gi > 0]:
                    St.done(('h', gi, u))
                if u == (E('HSPOS', 3) if gi == 0 else 0):
                    A('s_add_u32 s%d, s%d, s%d', sT, sB, sC)
                    St.dma4(L_SC0 + gi * 4096, [vO] * 4, SWS, None, ' sc1')
                    St.done(('hs', gi))
        St.drain()
    stamp(A)


def spread4(A, base, step):
    for u in range(1, 4):
        A('v_add_u32 v%d, %d, v%d', base + u, u * (step - 1024), base)


def wtr_base(A):
    A('v_lshrrev_b32 v%d, 5, v%d', vT1, vL)
    A('v_bfe_u32 v%d, v%d, 2, 2', vT0, vL)
    A('v_lshl_add_u32 v%d, v%d, 3, v%d', vT0, vT1, vT0)
    A('v_lshlrev_b32 v%d, 6, v%d', vT0, vT0)
    A('v_bfe_u32 v%d, v%d, 4, 1', vTT, vL)
    A('v_lshl_add_u32 v%d, v%d, 5, v%d', vT0, vTT, vT0)
    A('v_and_b32 v%d, 3, v%d', vTT, vL)
    A('v_lshl_add_u32 v%d, v%d, 3, v%d', vT0, vTT, vT0)
    for pi in range(3):
        A('v_add_u32 v%d, %d, v%d', vWA + pi, L_WP[pi], vT0)
    A('v_lshlrev_b32 v%d, 3, v%d', vCA, vL)
    A('v_add_u32 v%d, %d, v%d', vCA, L_CF, vCA)


def sel_frags(A, vID):
    A('v_lshrrev_b32 v%d, 5, v%d', vT1, vL)
    A('v_and_b32 v%d, 31, v%d', vT0, vL)
    A('v_lshlrev_b32 v%d, 2, v%d', vTT, vT1)
    A('v_sub_u32 v%d, v%d, v%d', vT0, vT0, vTT)
    A('v_mov_b32 v%d, 0x3f80', vTT)
    A('v_mov_b32 v%d, 0x3f800000', vTT + 1)
    for sidx in range(2):
        for rr in range(4):
            m = 16 * sidx + 8 * (rr >> 1) + 2 * (rr & 1)
            A('v_cmp_eq_u32 vcc, %d, v%d', m, vT0)
            A('v_cndmask_b32 v%d, 0, v%d, vcc', vID + 4 * sidx + rr, vTT)
            A('v_cmp_eq_u32 vcc, %d, v%d', m + 1, vT0)
            A('v_cndmask_b32 v%d, v%d, v%d, vcc', vID + 4 * sidx + rr, vID + 4 * sidx + rr, vTT + 1)


def read_w(A, pi, i, buf, sleep=0):
    wait_lp(A, ('W', pi, i), sleep)
    for q in range(4):
        for z in range(2):
            A('ds_read_b64_tr_b16 v[%d:%d], v%d offset:%d', buf + 4 * q + 2 * z, buf + 4 * q + 2 * z + 1,
              vWA + pi, i * 4096 + q * 1024 + z * 256)


def colsum(A, spi):
    vCS, vB_, buf = 40, 44, 48
    A('v_mov_b32 v%d, 0', vCS)
    A('v_mov_b32 v%d, 0', vCS + 1)
    A('s_cmp_eq_u32 s%d, 1', spi)
    A('s_cselect_b32 s%d, 0, %d', sT, L_WP[2])
    A('s_cmp_eq_u32 s%d, 0', spi)
    A('s_cselect_b32 s%d, %d, s%d', sT, L_WP[0], sT)
    assert L_WP[1] == 0
    A('v_add_u32 v%d, s%d, v%d', vB_, sT, vWA + 1)
    A('s_mul_i32 s%d, s%d, 7', sC, spi)
    A('s_add_u32 s%d, s%d, 7', sT2, sC)
    top, lo, ok = A.label('CS'), A.label('W'), A.label('WD')
    A('%s:', top)
    A('s_cmp_gt_u32 s%d, s%d', sPROG, sC)
    A('s_cbranch_scc1 %s', ok)
    prio(A, 0)
    A('%s:', lo)
    A('ds_read_b32 v%d, v%d offset:%d', vPW, vMI, M_PW + 16)
    A('s_waitcnt lgkmcnt(0)')
    A('v_readfirstlane_b32 s%d, v%d', sPROG, vPW)
    spin_guard(A, ok)
    A('s_cmp_gt_u32 s%d, s%d', sPROG, sC)
    again(A, 's_cbranch_scc0', lo)
    prio(A, 1)
    A('%s:', ok)
    for q in range(4):
        for z in range(2):
            A('ds_read_b64_tr_b16 v[%d:%d], v%d offset:%d', buf + 4 * q + 2 * z, buf + 4 * q + 2 * z + 1, vB_,
              q * 1024 + z * 256)
    A('ds_read_b32 v%d, v%d offset:%d', vPW, vMI, M_PW + 16)
    A('v_add_u32 v%d, 4096, v%d', vB_, vB_)
    A('s_add_u32 s%d, s%d, 1', sC, sC)
    for q in range(4):
        A('s_waitcnt lgkmcnt(%d)', 7 - 2 * q)
        for r in range(4):
            A('v_dot2c_f32_bf16 v%d, s%d, v%d', vCS + (r & 1), sONES, buf + 4 * q + r)
    A('s_waitcnt lgkmcnt(0)')
    A('v_readfirstlane_b32 s%d, v%d', sPROG, vPW)
    A('s_cmp_lt_u32 s%d, s%d', sC, sT2)
    A('s_cbranch_scc1 %s', top)
    A('v_add_f32 v%d, v%d, v%d', vCS, vCS, vCS + 1)
    hilo_c(A, vCS, vCS + 2, vT0)
    A('s_lshl_b32 s%d, s%d, 9', sT, spi)
    A('v_add_u32 v%d, s%d, v%d', vB_, sT, vCA)
    A('ds_write_b64 v%d, v[%d:%d]', vB_, vCS + 2, vCS + 3)


ROT = E('ROT', 1)
HITEMS = ((1, 3, 5, 6), (1, 3, 6))
W7ST = 0
LATE = E('LATE', 0)
W2R = E('W2R', 0)


def rot_calc(A, dst, kind):
    if not ROT:
        A('s_mov_b32 s%d, 0', dst)
        return
    if kind == 'w1':
        A('s_and_b32 s%d, s%d, 1', dst, sTB3)
        A('s_mul_i32 s%d, s%d, %d', dst, dst, 4 if LATE else 3)
        mod = 7
    elif kind == 'wo':
        A('s_and_b32 s%d, s%d, 3', dst, sTQ)
        A('s_lshl_b32 s%d, s%d, 1', dst, dst)
        mod = 7
    else:
        A('s_and_b32 s%d, s%d, 3', dst, sTQ)
        A('s_mul_i32 s%d, s%d, 7', dst, dst)
        A('s_lshr_b32 s%d, s%d, 1', dst, dst)
        mod = 14
    A('s_add_u32 s%d, s%d, s%d', dst, dst, sXCD)
    if kind == 'w1' and E('ROTFB', 1):
        A('s_lshr_b32 s%d, s%d, 1', sT, sFB)
        A('s_add_u32 s%d, s%d, s%d', dst, dst, sT)
        A('s_mul_i32 s%d, s%d, 37', sT, dst)
        A('s_lshr_b32 s%d, s%d, 8', sT, sT)
        A('s_mul_i32 s%d, s%d, 7', sT, sT)
        A('s_sub_u32 s%d, s%d, s%d', dst, dst, sT)
        return
    A('s_cmp_ge_u32 s%d, %d', dst, mod)
    A('s_cselect_b32 s%d, %d, 0', sT, mod)
    A('s_sub_u32 s%d, s%d, s%d', dst, dst, sT)


def rot_idx(A, dst, rot, j, mod):
    A('s_add_u32 s%d, s%d, %d', dst, rot, j)
    A('s_cmp_ge_u32 s%d, %d', dst, mod)
    A('s_cselect_b32 s%d, %d, 0', sT2, mod)
    A('s_sub_u32 s%d, s%d, s%d', dst, dst, sT2)


def blk_init(A, sb, sst, kh):
    A('s_and_b32 s%d, s%d, 1', sb, sTQ)
    if isinstance(kh, str):
        A('s_xor_b32 s%d, s%d, %s', sb, sb, kh)
    elif kh:
        A('s_xor_b32 s%d, s%d, 1', sb, sb)
    A('s_lshr_b32 s%d, s%d, 1', sT, sTQ)
    A('s_xor_b32 s%d, s%d, s%d', sT, sT, sXCD)
    A('s_sub_u32 s%d, 6, s%d', sT2, sb)
    A('s_bitcmp1_b32 s%d, 0', sT)
    A('s_cselect_b32 s%d, s%d, s%d', sb, sT2, sb)
    A('s_cselect_b32 s%d, 5, 2', sst)


def blk_next(A, sb, sst):
    A('s_add_u32 s%d, s%d, s%d', sb, sb, sst)
    A('s_cmp_ge_u32 s%d, 7', sb)
    A('s_cselect_b32 s%d, 7, 0', sT2)
    A('s_sub_u32 s%d, s%d, s%d', sb, sb, sT2)


def rest_srds(A):
    A('s_add_u32 s82, s80, %d', FEP)
    A('s_addc_u32 s83, s81, 0')
    A('s_load_dword s%d, s[82:83], 0', sTAG)
    srd(A, SP, 68, H * DH * DH * 2)
    A('s_mul_i32 s%d, s%d, 37', sTQ, sI)
    A('s_lshr_b32 s%d, s%d, 8', sTQ, sTQ)
    A('s_mul_i32 s%d, s%d, 7', sNB, sTQ)
    A('s_sub_u32 s%d, s%d, s%d', sNB, sI, sNB)
    A('s_lshr_b32 s%d, s%d, 1', sTB3, sTQ)
    A('s_mul_i32 s%d, s%d, 14', sFB, sTB3)
    A('s_sub_u32 s%d, s%d, s%d', sFB, sI, sFB)
    A('s_lshl2_add_u32 s%d, s%d, s%d', sTQ, sXCD, sTQ)
    A('s_lshl1_add_u32 s%d, s%d, s%d', sTB3, sXCD, sTB3)
    A('v_lshlrev_b32 v%d, 4, v%d', vO, vL)
    A('s_mov_b32 s%d, 0', sFASTF)
    A('s_mov_b32 s%d, 0x%x', sONES, ONES)
    ABL = E('ABL', 0)
    srd(A, SWO, 70, 0 if ABL & 1 else D * D * 2)
    srd(A, SW1, 74, 0 if ABL & 2 else D * F * 2)
    srd(A, SW2, 76, 0 if ABL & 4 else D * F * 2)
    srd(A, SOUT, 78, S * D * 2)
    srd(A, SWS, 80, WS_SIZE)


def rot_next(A):
    A('s_add_u32 s%d, s%d, 1', sC, sC)
    A('s_cmp_eq_u32 s%d, 7', sC)
    A('s_cselect_b32 s%d, 0, s%d', sC, sC)


def sig_dyn(A, sval):
    A('v_mov_b32 v%d, s%d', vT0, sval)
    A('ds_write_b32 v%d, v%d', vMY, vT0)


def x_offsets(A):
    A('v_lshrrev_b32 v%d, 3, v%d', vT0, vL)
    A('v_mul_u32_u24 v%d, 896, v%d', vT0, vT0)
    A('v_lshrrev_b32 v%d, 4, v%d', vT1, vL)
    A('v_and_b32 v%d, 7, v%d', vXD, vL)
    A('v_xor_b32 v%d, v%d, v%d', vXD, vXD, vT1)
    A('v_xor_b32 v%d, 4, v%d', vXD + 1, vXD)
    A('v_lshl_add_u32 v%d, v%d, 4, v%d', vXD, vXD, vT0)
    A('v_lshl_add_u32 v%d, v%d, 4, v%d', vXD + 1, vXD + 1, vT0)
    A('v_add_u32 v%d, %d, v%d', vXD + 1, 8 * 896 - 1024, vXD + 1)
    A('v_add_u32 v%d, %d, v%d', vXD + 2, 2 * (8 * 896 - 1024), vXD)
    A('v_add_u32 v%d, %d, v%d', vXD + 3, 2 * (8 * 896 - 1024), vXD + 1)
    A('s_mul_i32 s%d, s%d, %d', sXB, sTB, 0 if E('AB2', 0) & 16 else 128 * 896)


def w_offsets(A):
    vW = 40
    A('v_lshrrev_b32 v%d, 2, v%d', vW, vL)
    A('v_mul_u32_u24 v%d, 2688, v%d', vW, vW)
    A('v_and_b32 v%d, 3, v%d', vT1, vL)
    A('v_lshl_add_u32 v%d, v%d, 4, v%d', vW, vT1, vW)
    A('s_mul_i32 s%d, s%d, %d', sT, sH, 0 if E('AB2', 0) & 8 else 56)
    A('s_and_b32 s%d, s%d, 0xfffffff0', sT, sT)
    A('v_add_u32 v%d, s%d, v%d', vW, sT, vW)
    spread4(A, vW, 16 * 2688)


def early_x(A):
    depth = E('XDEPTH', 20)
    wsig = ((depth - 4) // 4) % 4
    lag = (depth - 4 - 4 * wsig) // 16
    A('s_mov_b32 s%d, %d', sG, 1 - lag)
    A('s_mov_b32 m0, %d', L_X + 16384)
    A('s_mov_b32 s%d, s%d', sC, sC0)
    rot_next(A)
    top = A.label('XL')
    A('%s:', top)
    A('s_lshl_b32 s%d, s%d, 7', sT, sC)
    A('s_add_u32 s%d, s%d, s%d', sT, sT, sXB)
    for w in range(4):
        A('s_waitcnt vmcnt(%d)', depth - 4)
        if w == wsig:
            A('s_max_i32 s%d, s%d, 0', sT2, sG)
            sig_dyn(A, sT2)
        for u in range(4):
            A('buffer_load_dwordx4 v%d, s[%d:%d], s%d offen offset:%d lds', vXD + u, SX, SX + 3, sT, u * 1024)
        A('s_add_u32 m0, m0, 4096')
        if w < 3:
            A('s_add_u32 s%d, s%d, %d', sT, sT, 32 * 896)
    nb = A.label('NB')
    A('s_cmp_lg_u32 s%d, %d', sG, 1 - lag)
    A('s_cbranch_scc1 %s', nb)
    A('s_barrier')
    A('%s:', nb)
    rot_next(A)
    A('s_add_u32 s%d, s%d, 1', sG, sG)
    A('s_cmp_lt_i32 s%d, %d', sG, 7 - lag)
    A('s_cbranch_scc1 %s', top)
    stamp(A)
    for n in range(7 - lag, 8):
        A('s_waitcnt vmcnt(%d)', 16 * (7 - n))
        set_stage(A, n)


def early_w(A):
    vW = 40

    def part_loop(pi, depth, floor):
        lag = (depth - 4) // 4
        stamp(A)
        A('s_mov_b32 s%d, s%d', sC, sC0)
        A('s_mov_b32 s%d, %d', sG, 7 * pi - lag)
        A('s_mov_b32 m0, %d', L_WP[pi])
        top = A.label('WL')
        A('%s:', top)
        A('s_mul_i32 s%d, s%d, %d', sT, sC, 64 * 2688)
        A('s_add_u32 s%d, s%d, %d', sT, sT, (1, 2, 0)[pi] * 896)
        A('s_max_i32 s%d, s%d, %d', sT2, sG, floor)
        A('s_waitcnt vmcnt(%d)', depth - 4)
        sig_dyn(A, sT2)
        for u in range(4):
            A('buffer_load_dwordx4 v%d, s[%d:%d], s%d offen offset:%d lds', vW + u, SW, SW + 3, sT, u * 1024)
        A('s_add_u32 m0, m0, 4096')
        nb = A.label('NB')
        A('s_cmp_lg_u32 s%d, 0', sG)
        A('s_cbranch_scc1 %s', nb)
        A('s_barrier')
        A('%s:', nb)
        rot_next(A)
        A('s_add_u32 s%d, s%d, 1', sG, sG)
        A('s_cmp_lt_i32 s%d, %d', sG, 7 * pi + 7 - lag)
        A('s_cbranch_scc1 %s', top)
        return lag
    lag = part_loop(0, E('WDEPTH', 12), 0)
    for n in range(7 - lag, 8):
        A('s_waitcnt vmcnt(%d)', 4 * (7 - n))
        set_stage(A, n)


def gen_h0(A):
    St = Stream(A, 4, E('WDEPTH2', 24), 7)
    vW, vW128, vXo, vW256 = 36, 12, 16, 20
    q4 = lambda b: [b, b + 1, b + 2, b + 3]
    for u in range(4):
        A('v_mov_b32 v%d, v%d', vW + u, 40 + u)
    rest_srds(A)
    off128(A, vW128)
    off256(A, vW256)
    A('s_lshl_b32 s%d, s%d, 7', sB, sNB)
    sR1, sRO = sG, sKH
    rot_calc(A, sR1, 'w1')
    rot_calc(A, sRO, 'wo')
    sBK, sBS = [8, 9], 10
    blk_init(A, sBK[0], sBS, 0)
    blk_init(A, sBK[1], sBS, 1)

    def wpart(pi):
        wait_stage(A, pi)
        if pi == 1 and E('XG2', 4) >= 0:
            wait_lp(A, ('x', E('XG2', 4)))
        stamp(A)
        if E('W4PRIO', -1) >= 0:
            A('s_setprio %d', E('W4PRIO', -1))
        for i in range(7):
            St.depth = E('WVDEPTH', 24) if (pi == 1 or i >= 3) else E('WDEPTH2', 24)
            rot_idx(A, sT, sC0, i, 7)
            A('s_mul_i32 s%d, s%d, %d', sT, sT, 64 * 2688)
            if pi == 1:
                A('s_add_u32 s%d, s%d, %d', sT, sT, 2 * 896)
            St.dma4(L_WP[pi] + i * 4096, q4(vW), SW)
            St.done(('W', pi, i))

    def wq():
        wpart(2)
    wpart(1)
    St.drain_to(E('WVKEEP', 7))
    lend = A.label('LEND')
    act = A.label('ACT')
    A('s_cmp_lt_u32 s%d, 28', sI)
    A('s_cbranch_scc1 %s', act)
    keep, n0 = St.save(), _st['n']
    wq()
    St.drain()
    St.restore(keep)
    St.n = 14
    if E('TOUCH', 1):
        def touch(srd_, base, per_xcd, n):
            A('s_mul_i32 s%d, s%d, %d', sT, sXCD, per_xcd)
            A('s_sub_u32 s%d, s%d, 28', sT2, sI)
            A('s_mul_i32 s%d, s%d, %d', sT2, sT2, n * 8192)
            A('s_add_u32 s%d, s%d, s%d', sT, sT, sT2)
            A('s_add_u32 s%d, s%d, %d', sT, sT, base)
            A('s_mov_b32 s%d, %d', sC, n)
            lo = A.label('T')
            A('%s:', lo)
            A('buffer_load_dword v%d, v%d, s[%d:%d], s%d offen sc1', vW + 1, vW, srd_, srd_ + 3, sT)
            A('s_add_u32 s%d, s%d, 8192', sT, sT)
            A('s_waitcnt vmcnt(%d)', E('TDEPTH', 6))
            A('s_sub_u32 s%d, s%d, 1', sC, sC)
            A('s_cmp_lg_u32 s%d, 0', sC)
            A('s_cbranch_scc1 %s', lo)
        A('v_lshlrev_b32 v%d, 7, v%d', vW, vL)
        if E('W2M', 1) == 2:
            touch(SW2, 0, 4 * 7 * 8192, 7)
        if E('TEARLY', 0):
            wait_stage(A, 3, (5, 6), sleep=2)
        else:
            wait_stage(A, C0 + 5, sleep=2)
        stamp(A)
        if HLATE and not WTO:
            touch(SWS, WS_HB, 262144, 8)
        if E('W2M', 1) == 1:
            touch(SW2, 0, 4 * 7 * 8192, 7)
        stamp(A)
        if not WT1:
            touch(SWS, WS_H1B, 8 * 112 * 1024, 28)
        if WT1 == 2:
            A('s_lshl2_add_u32 s%d, s%d, s%d', sG, sXCD, sI)
            A('s_sub_u32 s%d, s%d, 28', sG, sG)
            A('s_and_b32 s%d, s%d, 1', sT, sG)
            A('s_xor_b32 s%d, s%d, 1', sT, sT)
            A('s_lshl_b32 s%d, s%d, 13', sT, sT)
            A('s_mul_i32 s%d, s%d, %d', sT2, sG, 224 * 1024)
            A('s_add_u32 s%d, s%d, s%d', sT, sT, sT2)
            A('s_add_u32 s%d, s%d, %d', sT, sT, WS_H1B)
            for b in range(14):
                A('buffer_load_dword v%d, v%d, s[%d:%d], s%d offen sc1', vW + 1, vW, SWS, SWS + 3, sT)
                A('s_add_u32 s%d, s%d, 16384', sT, sT)
                A('s_waitcnt vmcnt(%d)', E('TDEPTH', 6))
        stamp(A)
        if E('W2WARM', 0):
            touch(SW2, 0, 0, 49)
        stamp(A)
        if E('WB3', 0):
            tag_compute(A)
            skipw = A.label('NW')
            A('s_cmp_lg_u32 s%d, 28', sI)
            A('s_cbranch_scc1 %s', skipw)
            A('s_lshl_b32 s%d, s%d, 9', sC, sXCD)
            A('s_add_u32 s%d, s%d, %d', sC, sC, F3)
            poll_global(A, sC, 0x3fff3fff3fff3fff)
            A('s_add_u32 s%d, s%d, 256', sC, sC)
            poll_global(A, sC, 0x3fff3fff3fff3fff)
            if E('WB3SLP', 0):
                A('s_sleep %d', E('WB3SLP', 0))
            A('buffer_wbl2 sc1')
            A('s_waitcnt vmcnt(0)')
            A('%s:', skipw)
        if E('H1PF', 0) and WT1:
            tag_compute(A)
            A('s_lshl2_add_u32 s%d, s%d, s%d', sG, sXCD, sI)
            A('s_sub_u32 s%d, s%d, 28', sG, sG)
            A('s_lshl_b32 s%d, s%d, 8', sM0, sG)
            A('s_add_u32 s%d, s%d, %d', sM0, sM0, F4)
            A('v_lshlrev_b32 v%d, 2, v%d', vW + 2, vL)
            A('s_bitcmp1_b32 s%d, 0', sG)
            A('s_mov_b32 s8, 0x0f0f0f0f')
            A('s_mov_b32 s9, 0x000f0f0f')
            A('s_cselect_b32 s8, 0xf0f0f0f0, s8')
            A('s_cselect_b32 s9, 0x00f0f0f0, s9')
            for ph in range(E('H1PF', 0)):
                lo, done = A.label('P'), A.label('PD')
                if ph == 0:
                    A('s_mov_b64 exec, s[8:9]')
                else:
                    A('s_mov_b32 exec_hi, 0xffffff')
                A('%s:', lo)
                A('buffer_load_dword v%d, v%d, s[%d:%d], s%d offen sc1', vT1, vW + 2, SWS, SWS + 3, sM0)
                A('s_waitcnt vmcnt(0)')
                A('v_cmp_ne_u32 vcc, s%d, v%d', sTAG, vT1)
                spin_guard(A, done)
                again(A, 's_cbranch_vccnz', lo, 2)
                A('%s:', done)
                A('s_mov_b64 exec, -1')
                A('s_and_b32 s%d, s%d, 1', sT, sG)
                if ph:
                    A('s_xor_b32 s%d, s%d, 1', sT, sT)
                A('s_lshl_b32 s%d, s%d, 13', sT, sT)
                A('s_mul_i32 s%d, s%d, %d', sT2, sG, 224 * 1024)
                A('s_add_u32 s%d, s%d, s%d', sT, sT, sT2)
                A('s_add_u32 s%d, s%d, %d', sT, sT, WS_H1B)
                for b in (1, 5, 2, 4, 0, 6, 3):
                    for g_ in range(2):
                        A('s_add_u32 s%d, s%d, %d', sT2, sT, b * 16384 + g_ * 112 * 1024)
                        A('buffer_load_dword v%d, v%d, s[%d:%d], s%d offen sc1', vW + 1, vW, SWS, SWS + 3, sT2)
    _st['n'] = n0
    A('s_branch %s', lend)
    A('%s:', act)

    def w1_off(c):
        rot_idx(A, sT, sR1, c, 7)
        A('s_mul_i32 s%d, s%d, %d', sT, sT, 64 * 3584)
        if not E('AB2', 0) & 2:
            A('s_lshl_b32 s%d, s%d, 8', sT2, sFB)
            A('s_add_u32 s%d, s%d, s%d', sT, sT, sT2)

    def w1_chunk(c):
        w1_off(c)
        for u in range(4):
            St.dma4(w1_slot(c) + u * 4096, q4(vW256), SW1, 16 * 3584 if u < 3 else None)
        St.done(('w1', c), 16)

    def w2_item(n):
        c, kh = n >> 1, n & 1
        A('s_mul_i32 s%d, s%d, %d', sT, sBK[kh], 128 * 896)
        if not E('AB2', 0) & 4:
            A('s_add_u32 s%d, s%d, s%d', sT, sT, sB)
        if kh or (c & 1):
            A('s_add_u32 s%d, s%d, %d', sT, sT, (kh * 896 + (c & 1) * 64) * 896)
        if c & 1:
            blk_next(A, sBK[kh], sBS)
        for u in range(2):
            St.dma4(w2_slot(n) + u * 4096, q4(vW128), SW2, 32 * 896 if u < 1 else None)
        St.done(('w2', n), 8)

    SR = [24, 28] + list(range(40, 256, 4))

    def staged(c0=0, c1=3):
        for u in range(4 * c0, 4 * c1):
            St.depth = min(E('WDEPTH2', 24), E('WVDEPTH', 24) + 4 * (u + 1 - 4 * c0))
            if u % 4 == 0:
                w1_off((0 if LATE else 4) + u // 4)
            reg4(St, SR[8 + 4 * u:12 + 4 * u], q4(vW256), SW1, 16 * 3584)

    def wo():
        St.drain_to(3)
        wait_stage(A, 3)
        wait_word(A, 5, 1)
        stamp(A)
        for c in range(7):
            rot_idx(A, sC, sRO, c, 7)
            A('s_mul_i32 s%d, s%d, %d', sT, sC, 64 * 896)
            if not E('AB2', 0) & 1:
                A('s_add_u32 s%d, s%d, s%d', sT, sT, sB)
            A('s_lshl_b32 s%d, s%d, 13', sC, sC)
            for u in range(2):
                St.dma4((sC, L_A + u * 4096), q4(vW128), SWO, 32 * 896 if u < 1 else None)
            if c == 2:
                St.depth = E('LDEPTH', 32)
        St.done('wo')
    staged(0, E('NSQ', 2))
    wq()
    staged(E('NSQ', 2), 3)
    wo()
    stamp(A)
    wait_stage(A, 2, (5, 6))
    stamp(A)
    if LATE:
        n3 = St.n
        St.n += 3
        w1_chunk(3)
        St.items, it3 = St.items[:-1], St.items[-1]
        St.drain()
        St.wait_to(16)
        St.n = n3
        for c in range(3):
            spill(St, ('w1', c), SR[8 + 16 * c:24 + 16 * c], w1_slot(c))
        St.n += 1
        St.items = [it3]
        St.drain()
        stamp(A)
        wait_stage(A, C0 + 3)
        wait_word(A, 7, 9)
        wait_stage(A, 1, base=M_CP)
        if LATE == 1:
            wait_stage(A, 1, base=M_LD)
        elif LATE == 2:
            wait_stage(A, 3, (5, 6))
        St.depth = E('LATEDEPTH', 20)
        for c in (4, 5, 6):
            w1_chunk(c)
        St.drain()
    else:
        for c in range(4):
            w1_chunk(c)
        St.drain()
        St.wait_to(0)
        stamp(A)
        wait_stage(A, C0 + 3)
        wait_word(A, 7, 9)
        spill(St, ('w1', 4), SR[8:24], w1_slot(4))
        wait_stage(A, 1, base=M_CP)
        spill(St, ('w1', 5), SR[24:40], w1_slot(5))
        spill(St, ('w1', 6), SR[40:56], w1_slot(6))
    stamp(A)
    wait_stage(A, C0 + 8, sleep=2)
    wait_lp(A, ('h', E('W2AFTER', 2), E('W2AFTERQ', 1)), 1)
    stamp(A)
    St.depth = E('W2DEPTH', 32)
    A('s_mov_b32 s%d, 0', sXB)
    for n in range(28):
        if n in W2GATE:
            wait_stage(A, W2GATE[n] // 2, base=M_LD, cache=sXB)
        if n == 4:
            wait_stage(A, 5, (5, 6))
        if n == 19:
            stamp(A)
            St.depth = E('W2DEPTH3', 32)
        if n >= 19:
            m = W2RE[n]
            wait_stage(A, C0 + 13 + (m >> 1), (0, 1) if (m & 1) == 0 else (2, 3))
        w2_item(n)
    St.drain()
    stamp(A)
    A('%s:', lend)
    A('s_waitcnt lgkmcnt(0)')
    stamp_flush(A)
    A('s_endpgm')


def gen_h1(A):
    stamp(A)
    rest_srds(A)
    wtr_base(A)
    tag_compute(A)
    def extras():
        if CODEPF & 2:
            code_touch(A, 63)
        if WARM:
            for srd_, size in ((SWO, D * D * 2), (SW1, D * F * 2), (SW2, D * F * 2)):
                A('s_mul_i32 s%d, s2, %d', sT, size // 256)
                A('v_lshlrev_b32 v%d, 7, v%d', vT1, vL)
                A('s_mov_b64 exec, 0x%x', (1 << ((size // 256 + 127) // 128)) - 1) if size // 256 < 4096 else None
                if size // 256 >= 4096:
                    A('s_mov_b32 exec_hi, 0x%x', (1 << ((size // 256 + 127) // 128 - 32)) - 1)
                A('buffer_load_dword v63, v%d, s[%d:%d], s%d offen', vT1, srd_, srd_ + 3, sT)
                A('s_mov_b64 exec, -1')
        if E('FT', 3) & 2:
            nf = A.label('NF')
            A('s_cmp_lt_u32 s%d, 28', sI)
            A('s_cbranch_scc1 %s', nf)
            A('v_lshlrev_b32 v%d, 7, v%d', vT1, vL)
            A('s_mov_b64 exec, 0xf')
            for base, sh in ((F2, 9), (F3, 9), (F4, 10)):
                A('s_lshl_b32 s%d, s%d, %d', sT, sXCD, sh)
                A('s_add_u32 s%d, s%d, %d', sT, sT, base)
                A('buffer_load_dword v63, v%d, s[%d:%d], s%d offen sc1', vT1, SWS, SWS + 3, sT)
                A('s_mov_b64 exec, 0x%x', 0xf if base == F2 else 0xff)
            A('s_mov_b64 exec, -1')
            A('%s:', nf)
        if E('TOUCH', 1) and not WTO:
            A('s_lshl_b32 s%d, s%d, 18', sT, sXCD)
            A('s_lshl_b32 s%d, s%d, 13', sT2, sI)
            A('s_add_u32 s%d, s%d, s%d', sT, sT, sT2)
            A('v_lshlrev_b32 v%d, 7, v%d', vT1, vL)
            for base in ([WS_OB] if MAP == 0 else []) + ([] if HLATE else [WS_HB]):
                A('s_add_u32 s%d, s%d, %d', sT2, sT, base)
                A('buffer_load_dword v63, v%d, s[%d:%d], s%d offen sc1', vT1, SWS, SWS + 3, sT2)

    if TOUCHAT == 0:
        extras()
    A('s_mov_b32 s%d, 1', sG)
    off256(A, 20)
    rot_calc(A, sXB, 'w1')
    cs, cs2 = A.label('CSL'), A.label('CSM')
    St = Stream(A, 7, E('W7DEPTH', 16), 9)

    def stage7():
        for u in range(4 * W7ST):
            if u % 4 == 0:
                rot_idx(A, sT, sXB, u // 4, 7)
                A('s_mul_i32 s%d, s%d, %d', sT, sT, 64 * 3584)
                A('s_lshl_b32 s%d, s%d, 8', sT2, sFB)
                A('s_add_u32 s%d, s%d, s%d', sT, sT, sT2)
            reg4(St, [64 + 16 * u + 4 * k for k in range(4)], [20, 21, 22, 23], SW1, 16 * 3584)
    A('%s:', cs)
    colsum(A, sG)
    A('s_add_u32 s%d, s%d, 7', sT, sG)
    sig_dyn(A, sT)
    A('s_add_u32 s%d, s%d, 1', sG, sG)
    A('s_cmp_eq_u32 s%d, 3', sG)
    A('s_cbranch_scc1 %s', cs2)
    stamp(A)
    A('s_cmp_ge_u32 s%d, 28', sI)
    A('s_cbranch_scc1 %s', cs)
    stage7()
    A('s_branch %s', cs)
    A('%s:', cs2)
    if TOUCHAT == 2:
        extras()
    stamp(A)
    lend = A.label('LEND')
    A('s_cmp_ge_u32 s%d, 28', sI)
    A('s_cbranch_scc1 %s', lend)
    if W7ST:
        A('s_waitcnt vmcnt(%d)', 1 if TOUCHAT == 2 and not WARM else 0)
        wait_stage(A, 2, (5, 6))
        for c in range(W7ST):
            spill(St, ('w1', c), [64 + 64 * c + 4 * k for k in range(16)], w1_slot(c))
        stamp(A)
    h_stream(A, 9 + W7ST)
    A('%s:', lend)
    A('s_waitcnt lgkmcnt(0)')
    stamp_flush(A)
    A('s_endpgm')


def gen_h23(A):
    vID, vAF, vVF, vAC, vG = 64, 72, 104, 136, 72
    rest_srds(A)
    if SHST:
        a_, b_ = 104, 105
        n6 = A.label('N6')
        A('s_cmp_lg_u32 s%d, 6', sWV)
        A('s_cbranch_scc1 %s', n6)
        A('v_mov_b32 v%d, 0', a_)
        A('v_mov_b32 v%d, 0', b_)
        A('s_lshl_b32 s%d, s%d, 11', sT, sTB)
        A('s_lshl_b32 s%d, s%d, 7', sT2, sH)
        A('s_add_u32 s%d, s%d, s%d', sT, sT, sT2)
        A('s_add_u32 s%d, s%d, %d', sT, sT, FLN)
        A('v_lshlrev_b32 v106, 1, v%d', vL)
        A('s_waitcnt vmcnt(0)')
        for r in range(28):
            A('v_dot2c_f32_bf16 v%d, s%d, v%d', a_, sONES, 76 + r)
            A('v_dot2c_f32_bf16 v%d, v%d, v%d', b_, 76 + r, 76 + r)
        for mod in ('quad_perm:[1,0,3,2]', 'quad_perm:[2,3,0,1]', 'row_half_mirror'):
            for r in (a_, b_):
                A('v_add_f32_dpp v%d, v%d, v%d %s row_mask:0xf bank_mask:0xf', r, r, r, mod)
        A('v_mul_f32 v%d, 0x%x, v%d', a_, 0x3b124925, a_)
        A('v_mul_f32 v%d, 0x%x, v%d', b_, 0x3b124925, b_)
        A('v_fma_f32 v%d, -v%d, v%d, v%d', b_, a_, a_, b_)
        A('v_max_f32 v%d, 0, v%d', b_, b_)
        A('v_add_f32 v%d, 0x%x, v%d', b_, 0x3727c5ac, b_)
        A('v_rsq_f32 v109, v%d', b_)
        A('v_sub_f32 v108, 0, v%d', a_)
        A('s_waitcnt lgkmcnt(0)')
        A('s_mul_i32 s%d, s%d, 0x%x', sT2, sTAG, 1664525)
        A('s_add_u32 s%d, s%d, 0x%x', sT2, sT2, 1013904223)
        A('v_mov_b32 v110, s%d', sT2)
        A('v_mov_b32 v111, s%d', sT2)
        A('s_mov_b32 exec_lo, 0x01010101')
        A('s_mov_b32 exec_hi, 0x01010101')
        A('buffer_store_dwordx4 v[108:111], v106, s[%d:%d], s%d offen sc1', SWS, SWS + 3, sT)
        A('s_mov_b64 exec, -1')
        stamp(A, 'ln')
        A('%s:', n6)
    sTL = sKH
    A('s_sub_u32 s%d, s%d, 5', sTL, sWV)
    skip = A.label('NOST')
    A('s_cmp_eq_u32 s%d, 1', sTL)
    A('s_cbranch_scc1 %s', skip)
    A('s_mul_i32 s%d, s%d, 1568', sT, sH)
    A('s_mov_b32 m0, %d', L_PHI)
    A('buffer_load_dwordx4 v%d, s[%d:%d], s%d offen lds', vO, SP, SP + 3, sT)
    A('buffer_load_dwordx4 v%d, s[%d:%d], s%d offen offset:1024 lds', vO, SP, SP + 3, sT)
    if CODEPF & 1:
        code_touch(A, 72)
    A('%s:', skip)
    if E('TLB', 0):
        A('v_lshlrev_b32 v%d, 20, v%d', vT1, vL)
        A('s_lshl_b32 s%d, s%d, 7', sT, sI)
        for srd_ in (SWS, SOUT, SWO, SW1, SW2):
            A('buffer_load_dword v73, v%d, s[%d:%d], s%d offen', vT1, srd_, srd_ + 3, sT)
    wtr_base(A)
    sel_frags(A, vID)
    sT16 = sZA
    tag_compute(A, sT16)
    if FAST:
        skip = A.label('NORG')
        A('s_cmp_eq_u32 s%d, 0', sTL)
        A('s_cbranch_scc1 %s', skip)
        A('s_getreg_b32 s%d, hwreg(HW_REG_XCC_ID)', sT2)
        A('s_and_b32 s%d, s%d, 15', sT2, sT2)
        A('s_add_u32 s%d, s%d, s%d', sT2, sT2, sTAG)
        A('v_mov_b32 v%d, s%d', vT0, sT2)
        A('s_lshl_b32 s%d, s%d, 7', sT, sXCD)
        A('s_lshl_b32 s%d, s%d, 2', sT2, sI)
        A('s_add_u32 s%d, s%d, s%d', sT, sT, sT2)
        A('s_add_u32 s%d, s%d, %d', sT, sT, FREG)
        A('s_mov_b64 exec, 1')
        A('buffer_store_dword v%d, v%d, s[%d:%d], s%d offen sc1', vT0, vO, SWS, SWS + 3, sT)
        A('s_mov_b64 exec, -1')
        A('%s:', skip)
    six, both = A.label('SIX'), A.label('BOTH')
    A('s_cmp_eq_u32 s%d, 1', sTL)
    A('s_cbranch_scc1 %s', six)
    colsum(A, sTL)
    A('s_waitcnt vmcnt(0)')
    A('s_branch %s', both)
    A('%s:', six)
    if SHST:
        A('s_lshl_b32 s%d, s%d, 11', sC, sTB)
        A('s_add_u32 s%d, s%d, %d', sC, sC, FLN)
        A('v_lshlrev_b32 v84, 3, v%d', vL)
        A('v_add_u32 v84, %d, v84', L_EX + 1024)
        A('v_lshlrev_b32 v85, 2, v%d', vL)
        A('v_add_u32 v85, %d, v85', L_RSTD)
        lo, done = A.label('P'), A.label('PD')
        A('%s:', lo)
        for u in range(2):
            A('buffer_load_dwordx4 %s, v%d, s[%d:%d], s%d offen offset:%d sc1', v(76 + 4 * u, 4), vO, SWS, SWS + 3, sC,
              u * 1024)
        A('s_waitcnt vmcnt(0)')
        A('v_cmp_ne_u32 vcc, s%d, v78', sTAG)
        A('v_cmp_ne_u32 s[4:5], s%d, v82', sTAG)
        spin_guard(A, done)
        A('s_or_b64 vcc, vcc, s[4:5]')
        again(A, 's_cbranch_scc1', lo, E('LNSLP', 2))
        A('%s:', done)
        for u in range(2):
            A('ds_write_b64 v84, v[%d:%d] offset:%d', 76 + 4 * u, 77 + 4 * u, u * 512)
            A('ds_write_b32 v85, v%d offset:%d', 77 + 4 * u, u * 256)
        set_stage(A, 1)
        stamp(A, 'ln')
    if E('IW', 6):
        ni = A.label('NI')
        A('s_cmp_lt_u32 s%d, 28', sI)
        A('s_cbranch_scc1 %s', ni)
        if E('IWAT', -1) >= 1:
            wait_lp(A, ('x', E('IWAT', -1)), 1)
        A('s_lshl2_add_u32 s%d, s%d, s%d', sC, sXCD, sI)
        A('s_sub_u32 s%d, s%d, 28', sC, sC)
        A('v_lshlrev_b32 v%d, 7, v%d', vT1, vL)
        for bit, srd_, n in ((4, SW, 5), (1, SW1, 7), (2, SWO, 2)):
            if E('IW', 6) & bit:
                A('s_mul_i32 s%d, s%d, %d', sT, sC, n * 8192)
                for u in range(n):
                    A('buffer_load_dword v73, v%d, s[%d:%d], s%d offen', vT1, srd_, srd_ + 3, sT)
                    A('s_add_u32 s%d, s%d, 8192', sT, sT)
        A('%s:', ni)
    if FAST:
        wait_lp(A, ('x', 6), 2)
        fast_check(A)
        A('v_mov_b32 v%d, s%d', vT0, sFASTF)
        A('ds_write_b32 v%d, v%d offset:%d', vMI, vT0, M_FAST)
    A('%s:', both)
    set_stage(A, 1)
    stamp(A)
    A('s_lshl_b32 s%d, s%d, 11', sT2, sTL)
    A('v_add_u32 v%d, s%d, v%d', vTT, sT2, vO)
    A('v_add_u32 v%d, %d, v%d', vTT + 1, L_KVA, vTT)
    A('v_add_u32 v%d, %d, v%d', vTT + 2, L_KVV, vO)
    A('s_lshl_b32 s%d, s%d, 16', sXB, sH)
    A('s_add_u32 s%d, s%d, s%d', sXB, sXB, sT2)
    A('s_add_u32 s%d, s%d, %d', sXB, sXB, WS_KVP)
    A('s_lshl_b32 s%d, s%d, 12', sB, sTB)
    A('s_add_u32 s%d, s%d, s%d', sB, sB, sXB)
    A('s_lshl_b32 s%d, s%d, 1', sM0, sH)
    A('s_add_u32 s%d, s%d, s%d', sM0, sM0, sTL)
    FSH = E('F1SH', 8)
    A('s_lshl_b32 s%d, s%d, %d', sM0, sM0, 4 + FSH)
    A('s_add_u32 s%d, s%d, %d', sM0, sM0, F1)
    A('s_lshl_b32 s%d, s%d, 2', sFL, sTB)
    A('s_add_u32 s%d, s%d, s%d', sFL, sFL, sM0)
    A('s_lshl_b32 s%d, s%d, %d', sT, sTB, FSH)
    A('s_add_u32 s%d, s%d, s%d', sM0, sM0, sT)
    A('s_add_u32 s%d, s%d, s%d', sPC, SWS, sM0)
    A('s_addc_u32 s%d, s%d, 0', sPC + 1, SWS + 1)
    if E('FT', 3) & 1:
        A('s_load_dword s%d, s[%d:%d], 0 glc', sZB, sPC, sPC + 1)
    A('v_lshlrev_b32 v%d, %d, v%d', vXA, FSH, vL)
    A('v_lshlrev_b32 v%d, 2, v%d', vXA + 1, vL)
    vTA = 152
    wait_stage(A, C0)
    for k in range(8):
        A('ds_read_b128 %s, v%d offset:%d', v(vVF + 4 * k, 4), vTT + 1, (k >> 1) * 4096 + (k & 1) * 1024)
    for k in range(8):
        A('s_waitcnt lgkmcnt(%d)', 7 - k)
        mfma(A, vTA + 16 * (k >> 1), vVF + 4 * k, vID + 4 * (k & 1), (k & 1) == 0)
    for w in range(4):
        cvt8(A, vAF + 8 * w, vTA + 16 * w)

    if E('KVP', 1):
        HELP['hot'] = True
        for j, w in enumerate((0, 2, 1, 3)):
            def v_reads():
                for q in range(2):
                    A('ds_read_b128 %s, v%d offset:%d', v(vVF + 8 * w + 4 * q, 4), vTT + 2, w * 4096 + q * 1024)
                return 2
            wait_word(A, w, C0 + 1, body=v_reads, sleep=1 if j == 0 else 0)
            if j == 3:
                stamp(A)
            for q in range(2):
                A('s_waitcnt lgkmcnt(%d)', 1 - q)
                mfma(A, vAC, vAF + 8 * w + 4 * q, vVF + 8 * w + 4 * q, j == 0 and q == 0)
        HELP['hot'] = False
    else:
        def v_reads():
            for k in range(8):
                A('ds_read_b128 %s, v%d offset:%d', v(vVF + 4 * k, 4), vTT + 2, (k >> 1) * 4096 + (k & 1) * 1024)
            return 8
        wait_stage(A, C0 + 1, body=v_reads)
        stamp(A)
        for k in range(8):
            A('s_waitcnt lgkmcnt(%d)', 7 - k)
            mfma(A, vAC, vAF + 4 * k, vVF + 4 * k, k == 0)
    set_stage(A, 2)
    cvt8(A, vAF, vAC)
    TAGS = E('TAGS', 0)
    if TAGS:
        for q in range(2):
            A('v_and_b32 v%d, 0xffff, v%d', vAF + 4 * q + 3, vAF + 4 * q + 3)
            A('v_or_b32 v%d, s%d, v%d', vAF + 4 * q + 3, sT16, vAF + 4 * q + 3)
    pub_stores(A, [st4(vAF + 4 * q, sB, q * 1024) for q in range(2)], MAP == 3)
    if not TAGS:
        A('s_waitcnt vmcnt(0)')
    A('s_mov_b64 exec, 0xffff')
    two_ways(A, lambda B, bits: B('buffer_store_dword v%d, v%d, s[%d:%d], s%d offen%s', vTAG, vXA, SWS, SWS + 3, sFL,
                                  bits), MAP == 3)
    A('s_mov_b64 exec, -1')
    stamp(A)
    sRDY, sPND, sRET = sHI, sHI + 1, sPADL
    base = 68 if STAMPS else 72
    pol = A.label('POLL')
    B = sub(A)
    lo, out = B.label('P'), B.label('PD')
    B('%s:', pol)
    B('%s:', lo)
    if E('PSLEEP', 0):
        B('s_sleep %d', E('PSLEEP', 0))
    if E('SPOLL', 1) and MAP == 0:
        B('s_load_dwordx16 s[%d:%d], s[%d:%d], 0 glc', base, base + 15, sPC, sPC + 1)
        B('s_mov_b32 s%d, 0', sRDY)
        B('s_waitcnt lgkmcnt(%d)', E('PPIPE', 8))
        for p_ in range(15, -1, -1):
            B('s_cmp_eq_u32 s%d, s%d', base + p_, sTAG)
            B('s_addc_u32 s%d, s%d, s%d', sRDY, sRDY, sRDY)
    else:
        B('s_mov_b64 exec, 0xffff')
        B('buffer_load_dword v%d, v%d, s[%d:%d], s%d offen sc1', vT0, vXA + 1, SWS, SWS + 3, sM0)
        B('s_waitcnt vmcnt(0)')
        B('v_cmp_eq_u32 vcc, s%d, v%d', sTAG, vT0)
        B('s_mov_b64 exec, -1')
        B('s_mov_b32 s%d, vcc_lo', sRDY)
    B('s_sub_u32 s%d, s%d, 1', sSPIN, sSPIN)
    B('s_cselect_b32 s%d, -1, s%d', sRDY, sRDY)
    B('s_and_b32 s%d, s%d, s%d', sRDY, sRDY, sPND)
    B('s_cbranch_scc0 %s', lo)
    B('s_setpc_b64 s[%d:%d]', sRET, sRET + 1)
    over = A.label('OV')
    A('s_not_b32 s%d, s%d', base, sTAG)
    A('s_mov_b32 s%d, s%d', base + 1, base)
    for k in range(2, 16, 2):
        A('s_mov_b64 s[%d:%d], s[%d:%d]', base + k, base + k + 1, base, base + 1)
    A('s_branch %s', over)
    A.lines += B.lines
    A('%s:', over)
    A('s_mov_b32 s%d, 0', sRDY)
    A('s_mov_b32 s%d, 0xffff', sPND)
    vCK = vXA + 2
    A('v_mov_b32 v%d, 0', vCK)
    A('s_nop 1')
    vG = [72 + 4 * k for k in range(16)] + [152 + 4 * k for k in range(16)]
    GD = E('GLAG', 12)

    def gmm(k, issued):
        for q in range(2):
            A('s_waitcnt vmcnt(%d)', 2 * issued - (2 * k + q) - 1)
            mfma(A, vAC, vID + 4 * q, vG[2 * k + q], k == 0 and q == 0)
            if TAGS:
                A('v_xor_b32 v%d, s%d, v%d', vCK + 1, sT16, vG[2 * k + q] + 3)
                A('v_or_b32 v%d, v%d, v%d', vCK, vCK, vCK + 1)
    for k in range(16):
        A('s_getpc_b64 s[%d:%d]', sRET, sRET + 1)
        A('s_cmp_eq_u32 s%d, 0', sRDY)
        A('s_cbranch_scc1 %s', pol)
        A('s_ff1_i32_b32 s%d, s%d', sT, sRDY)
        A('s_bitset0_b32 s%d, s%d', sRDY, sT)
        A('s_bitset0_b32 s%d, s%d', sPND, sT)
        A('s_lshl_b32 s%d, s%d, 12', sT, sT)
        A('s_add_u32 s%d, s%d, s%d', sT, sT, sXB)
        if E('ABL', 0) & 32:
            A('s_mov_b32 s%d, s%d', sT, sB)
        for q in range(2):
            A('buffer_load_dwordx4 %s, v%d, s[%d:%d], s%d offen offset:%d sc1', v(vG[2 * k + q], 4), vO, SWS, SWS + 3,
              sT, q * 1024)
        if k == E('GST', 15):
            stamp(A)
        if k >= GD:
            gmm(k - GD, k + 1)
    for k in range(16 - GD, 16):
        gmm(k, 16)
    if TAGS:
        ok = A.label('TOK')
        A('v_cmp_lt_u32 vcc, 0xffff, v%d', vCK)
        spin_guard(A, ok)
        A('s_nop 15')
        A('s_cbranch_vccnz %s', over)
        A('%s:', ok)
    A('v_add_u32 v%d, %d, v%d', vTT, L_EX, vTT)
    cvt8(A, 72, vAC)
    for q in range(2):
        A('ds_write_b128 v%d, %s offset:%d', vTT, v(72 + 4 * q, 4), q * 1024)
    set_stage(A, 3)
    stamp(A)
    lend = A.label('LEND')
    A('s_cmp_ge_u32 s%d, 28', sI)
    A('s_cbranch_scc1 %s', lend)
    if E('ITOUCH', 0):
        A.lines.append(';ITOUCH')
    A('v_lshlrev_b32 v%d, 2, v%d', vCA, vL)
    A('v_add_u32 v%d, %d, v%d', vTT + 2, L_EX, vO)
    wait_stage(A, C0 + 7, sleep=2)
    HELP['hot'] = bool(E('STHOT', 0))
    l5 = A.label('S5')
    A('s_cmp_eq_u32 s%d, 0', sTL)
    A('s_cbranch_scc1 %s', l5)
    for gi in (0, 2, 1, 3):
        if gi == 1:
            A('s_branch %s', lend)
            A('%s:', l5)
        wait_lp(A, ('hs', gi), 1)
        if E('STPRIO', 2) != 2:
            A('s_setprio %d', E('STPRIO', 2))
        base = L_SC0 + gi * 4096
        for q in range(7):
            A('ds_read2st64_b32 v[%d:%d], v%d offset0:%d offset1:%d', 72 + 2 * q, 73 + 2 * q, vCA,
              base // 256 + 2 * q, base // 256 + 2 * q + 1)
        A('s_waitcnt lgkmcnt(0)')
        for q in range(2, 14):
            A('v_add_f32 v%d, v%d, v%d', 72 + (q & 1), 72 + (q & 1), 72 + q)
        A('v_add_f32 v%d, v72, v73', vTT)
        ln_finish(A, vTT, vTT + 1, vNM, vRS)
        hilo_m(A, vNM, 88, vT0)
        A('v_mul_f32 v90, v%d, v%d', vTT + 1, vRS)
        A('v_mul_f32 v91, 0x%x, v%d', LOG2E ^ 0x80000000, vRS)
        A('ds_write_b128 v%d, v[88:91] offset:%d', vTT + 2, gi * 1024)
        set_stage(A, 4 + gi // 2)
    HELP['hot'] = False
    A('%s:', lend)
    A('s_waitcnt lgkmcnt(0)')
    stamp_flush(A)
    A('s_endpgm')


def refresh_routines(A):
    for w in (7, 4):
        A('REFRESH_%d:', w)
        if w == 5:
            A('ds_read_b32 v%d, v%d', vPW, vCA)
        else:
            A('ds_read_b32 v%d, v%d offset:%d', vPW, vMI, M_PW + 4 * w)
        if E('CSLP', 0):
            A('s_mov_b32 vcc_hi, s%d', CACHE[w])
        A('s_waitcnt lgkmcnt(0)')
        A('v_readfirstlane_b32 s%d, v%d', CACHE[w], vPW)
        if E('CSLP', 0):
            A('s_cmp_lg_u32 vcc_hi, s%d', CACHE[w])
            A('s_cbranch_scc1 REFD_%d', w)
            A('s_sleep %d', E('CSLP', 0))
            A('REFD_%d:', w)
        A('s_sub_u32 s%d, s%d, 1', sSPIN, sSPIN)
        A('s_cselect_b32 s%d, -1, s%d', CACHE[w], CACHE[w])
        A('s_setpc_b64 s[%d:%d]', sPC, sPC + 1)


def gen_compute(A):
    vPH, vID, vWF, vAC, vPK = 40, 48, 56, 88, 120
    vMF, vCF = 136, 140
    vE = vWF
    vAC2 = vAC + 16
    vX = vXR
    A('s_setprio %d', E('CPRIO', 1))
    rest_srds(A)
    A('s_lshl_b32 s%d, s%d, 12', sM0, sWV)
    A('v_and_b32 v%d, 31, v%d', vT0, vL)
    A('v_lshlrev_b32 v%d, 7, v%d', vTT, vT0)
    A('v_add_u32 v%d, s%d, v%d', vTT, sM0, vTT)
    A('v_bfe_u32 v%d, v%d, 1, 3', vT0, vL)
    A('v_lshrrev_b32 v%d, 5, v%d', vT1, vL)
    A('v_xor_b32 v%d, v%d, v%d', vT0, vT0, vT1)
    for q in range(4):
        A('v_xor_b32 v%d, %d, v%d', vXA + q, 2 * q, vT0)
        A('v_lshl_add_u32 v%d, v%d, 4, v%d', vXA + q, vXA + q, vTT)
    wtr_base(A)
    for r in (vSM, vSM + 1, vSQ, vSQ + 1, vMF + 2, vMF + 3, vCF + 2, vCF + 3):
        A('v_mov_b32 v%d, 0', r)
    A('s_mov_b32 s%d, 0', sHI)
    A('s_mov_b32 s%d, -1', sHI + 1)
    A('s_bitcmp1_b32 s%d, 0', sH)
    A('s_cselect_b32 s%d, 0xf, 0xf0000000', sPADL)
    A('s_mov_b32 s%d, s%d', sPADL + 1, sPADL)
    A('s_cselect_b32 s%d, -1, 0', sZA)
    A('s_mov_b32 s%d, 0', sZA + 1)
    A('s_mov_b32 s%d, 0', sZB)
    A('s_cselect_b32 s%d, 0, -1', sZB + 1)
    A('s_cselect_b64 s[%d:%d], -1, 0', sODD, sODD + 1)
    vPA = vRA
    A('v_bfe_u32 v%d, v%d, 2, 2', vT0, vL)
    A('v_lshrrev_b32 v%d, 5, v%d', vT1, vL)
    A('v_lshl_add_u32 v%d, v%d, 2, v%d', vT0, vT1, vT0)
    A('v_mul_u32_u24 v%d, 56, v%d', vT0, vT0)
    A('v_and_b32 v%d, 3, v%d', vT1, vL)
    A('v_bfe_u32 v%d, v%d, 4, 1', vTT, vL)
    A('v_lshl_add_u32 v%d, v%d, 2, v%d', vT1, vTT, vT1)
    A('v_min_u32 v%d, 6, v%d', vT1, vT1)
    A('v_lshl_add_u32 v%d, v%d, 3, v%d', vT0, vT1, vT0)
    A('s_and_b32 s%d, s%d, 1', sT, sH)
    A('s_mul_i32 s%d, s%d, 224', sT, sT)
    A('s_sub_u32 s%d, %d, s%d', sT, L_PHI, sT)
    A('v_add_u32 v%d, s%d, v%d', vPA, sT, vT0)
    tag_compute(A)

    def mm1(B, acc, i, q, swap):
        buf = vWF + 16 * (i & 1)
        xf, wf = vX + (4 * i + q) * 4, buf + 4 * q
        if swap:
            mfma(B, acc, xf, wf, i == 0 and q == 0)
        else:
            mfma(B, acc, wf, xf, i == 0 and q == 0)

    def rw2(Q, pi, i, q):
        buf = vWF + 16 * (i & 1)
        for z in range(2):
            Q.op(('w', i, q), 'ds_read_b64_tr_b16 v[%d:%d], v%d offset:%d', buf + 4 * q + 2 * z, buf + 4 * q + 2 * z + 1,
                 vWA + pi, i * 4096 + q * 1024 + z * 256)

    def early(Q, w, reads):
        Q.op('ce', 'ds_read_b32 v%d, v%d offset:%d', vPK_ + 1, vMI, M_PW + 4 * w)
        for r in reads:
            Q.op('ce', r)

    def late(Q, w, n, reads):
        def slow(B, back):
            def body():
                for r in reads:
                    B(r)
                return 0
            wait_word(B, w, n, body=body)
        Q.A = A
        Q.wait('ce')
        A('v_readfirstlane_b32 s%d, v%d', sT, vPK_ + 1)
        A('s_cmp_ge_u32 s%d, %d', sT, n)
        if w == 6:
            ent, back = cold_block(A, slow)
            A('s_cbranch_scc0 %s', ent)
        else:
            back = A.label('LT')
            A('s_cbranch_scc1 %s', back)
            slow(A, back)
        A('%s:', back)

    def cf_rd(pi):
        return 'ds_read_b64 v[%d:%d], v%d offset:%d' % (vCF, vCF + 1, vCA, pi * 512)
    kreads = [cf_rd(0)] + ['ds_read_b64_tr_b16 v[%d:%d], v%d offset:%d' % (
        vPH + 4 * sidx + 2 * z, vPH + 4 * sidx + 2 * z + 1, vPA, (16 * sidx + 8 * z) * 56)
        for sidx in range(2) for z in range(2)]

    vHP, vRX, vRO = 120, 48, 39
    RESAT = E('RESAT', 0)

    def residual():
        A('s_and_b32 s%d, s%d, 1', sG, sWV)
        A('s_lshr_b32 s%d, s%d, 1', sKH, sWV)
        A('s_lshl_b32 s%d, s%d, 1', sT, sTQ)
        A('s_add_u32 s%d, s%d, s%d', sG, sG, sT)
        A('v_and_b32 v%d, 31, v%d', vRO, vL)
        A('v_mul_u32_u24 v%d, 896, v%d', vRO, vRO)
        A('v_lshrrev_b32 v%d, 5, v%d', vT1, vL)
        A('v_lshl_add_u32 v%d, v%d, 4, v%d', vRO, vT1, vRO)
        A('s_mul_i32 s%d, s%d, %d', sT, sG, 32 * 896)
        A('s_lshl_b32 s%d, s%d, 7', sT2, sNB)
        A('s_add_u32 s%d, s%d, s%d', sT, sT, sT2)
        A('s_lshl_b32 s%d, s%d, 6', sT2, sKH)
        A('s_add_u32 s%d, s%d, s%d', sT, sT, sT2)
        A('v_add_u32 v%d, s%d, v%d', vRO, sT, vRO)
        for q in range(2):
            A('buffer_load_dwordx4 %s, v%d, s[%d:%d], 0 offen offset:%d', v(vRX + 4 * q, 4), vRO, SX, SX + 3, q * 32)
    if RESAT == 0:
        residual()
    vXH = vXD
    for q in range(4):
        A('v_add_u32 v%d, 0x10000, v%d', vXH + q, vXA + q)
    Q = LdsQ(A)
    A('v_and_b32 v%d, 31, v%d', vSC, vL)
    A('s_lshl_b32 s%d, s%d, 8', sT, sWV)
    A('s_add_u32 s%d, s%d, %d', sT, sT, L_EX + 1024)
    A('v_lshl_add_u32 v%d, v%d, 3, s%d', vSC, vSC, sT)
    lnread = ['ds_read_b64 v[%d:%d], v%d' % (vNM, vRS, vSC)]
    for i in range(7):
        if i:
            stamp(A, 'k')
        if i == 0:
            A('s_waitcnt vmcnt(%d)', 2 if RESAT == 0 else 0)
        else:
            wait_lp(A, ('x', i))
        stamp(A, 'k')
        if i >= 3:
            stamp(A, 'k2')
        for q in range(4):
            Q.op(('x', i), 'ds_read_b128 %s, v%d offset:%d', v(vX + (4 * i + q) * 4, 4), (vXA if i < 4 else vXH) + q,
                 (i & 3) * 16384)
        if i in (1, 3):
            Q.stage((i + 1) // 2)
        wait_lp(A, ('W', 0, i))
        if i >= 3:
            stamp(A, 'k2')
        if SHST and i == 6:
            early(Q, 6, lnread)
        if SHST and i < 6:
            Q.op('pk2', 'ds_read_b128 v[%d:%d], v%d offset:%d', vTT, vTT + 3, vMI, M_PW + 16)
        for q in range(4):
            if i > 0:
                Q.wait(('w', i - 1, q))
                mm1(A, vAC, i - 1, q, False)
            rw2(Q, 0, i, q)
        if i < 6 and not SHST:
            Q.op('pk2', 'ds_read_b128 v[%d:%d], v%d offset:%d', vTT, vTT + 3, vMI, M_PW + 16)
        if not SHST:
            Q.wait(('x', i))
            for r in range(16):
                x = vX + 16 * i + r
                A('v_dot2c_f32_bf16 v%d, s%d, v%d', vSM + (r & 1), sONES, x)
                A('v_dot2c_f32_bf16 v%d, v%d, v%d', vSQ + (r & 1), x, x)
        if i < 6:
            Q.wait('pk2')
            A('v_readfirstlane_b32 s%d, v%d', sPROG, vTT)
            A('v_readfirstlane_b32 s%d, v%d', sPROG1, vTT + 3)
    stamp(A, 'k2')
    Q.stage(3)
    if SHST:
        late(Q, 6, 1, lnread)
    stamp(A, 'k2')
    early(Q, 5, kreads)
    B = sub(A)
    if SHST:
        pass
    else:
        B('v_add_f32 v%d, v%d, v%d', vSM, vSM, vSM + 1)
        B('v_add_f32 v%d, v%d, v%d', vSQ, vSQ, vSQ + 1)
        B('v_permlane32_swap_b32 v%d, v%d', vSM, vSQ)
        B('v_add_f32 v%d, v%d, v%d', vT0, vSM, vSQ)
        ln_finish(B, vT0, vT1, vNM, vRS)
    hilo_m(B, vNM, vMF, vT0)
    B('v_mul_f32 v%d, 0x%x, v%d', vSC, LOG2E, vRS)
    M = sub(A)
    Q.A = M
    for q in range(4):
        Q.wait(('w', 6, q))
        mm1(M, vAC, 6, q, False)
    A.lines += merge(M.lines, [[l] for l in B.lines], 0, 4)

    stamp(A, 'v')
    stamp(A, 'k2')
    late(Q, 5, 1, kreads)
    stamp(A, 'k2')
    stamp(A)
    stamp(A, 'v')

    def project(mid=None):
        mfma(A, vAC, vCF, vMF)
        if mid:
            mid()
        cvt8(A, vPK, vAC)
        mfma(A, vAC, vPH, vPK, True)
        mfma(A, vAC, vPH + 4, vPK + 4)

    def mid_k():
        A('v_and_b32 v%d, 31, v%d', vT0, vL)
        A('s_lshl_b32 s%d, s%d, 7', sT, sWV)
        A('s_add_u32 s%d, s%d, %d', sT, sT, L_RSTD)
        if not SHST:
            A('v_lshl_add_u32 v%d, v%d, 2, s%d', vT0, vT0, sT)
            A('ds_write_b32 v%d, v%d', vT0, vRS)
        A('v_lshrrev_b32 v%d, 5, v%d', vRA, vL)
        A('v_lshl_add_u32 v%d, v%d, 4, s%d', vRA, vRA, sT)
        for r in (0, 1):
            A('v_cndmask_b32 v%d, v%d, 0, s[%d:%d]', vPH + r, vPH + r, sZA, sZA + 1)
            A('v_cndmask_b32 v%d, v%d, 0, s[%d:%d]', vPH + 6 + r, vPH + 6 + r, sZB, sZB + 1)

    def gemm_head(B, pi):
        Q = LdsQ(B)
        wait_lp(B, ('W', pi, 0))
        for q in range(4):
            rw2(Q, pi, 0, q)
        return Q

    def gemm_part(B, acc, pi, swap, last_stage=None, Q=None):
        if Q is None:
            Q = gemm_head(B, pi)
        for i in range(7):
            if i == 6 and last_stage:
                Q.stage(last_stage)
            if i == 6:
                early(Q, 7, [cf_rd(pi)])
            if pi == 1 and i in (0, 2, 4, 6):
                stamp(B, 'v')
            for q in range(4):
                Q.wait(('w', i, q))
                if q == 0:
                    Q.take(4)
                mm1(B, acc, i, q, swap)
                if i < 6:
                    if q == 0:
                        wait_lp(B, ('W', pi, i + 1))
                        if i < 5:
                            Q.peek(4)
                    rw2(Q, pi, i + 1, q)
        late(Q, 7, 7 + pi, [cf_rd(pi)])

    vOW = vXD
    A('v_add_u32 v%d, s%d, v%d', vOW, sM0, vO)
    A('v_add_u32 v%d, %d, v%d', vOW, L_KVA, vOW)
    project(mid_k)
    stamp(A, 'v')
    B = sub(A)
    softmax_pm(B, vAC, vSC, vPK, vTT)
    A.lines += B.lines[:-30]
    Q = gemm_head(A, 1)
    A.lines += B.lines[-30:]
    for q, src in enumerate((vAC, vAC + 4, vPK, vPK + 4)):
        Q.op('pw', 'ds_write_b128 v%d, %s offset:%d', vOW, v(src, 4), q * 1024)
    Q.stage(C0)
    for q in range(4):
        Q.op('rs', 'ds_read_b128 %s, v%d offset:%d', v(vAC + 4 * q, 4), vRA, q * 32)
    stamp(A, 'v')
    gemm_part(A, vAC2, 1, True, None, Q)
    stamp(A, 'v')

    mfma(A, vAC2, vMF, vCF)
    A('v_mov_b32 v%d, 0x%x', vT1, ONES)
    for r in range(0, 16, 2):
        A('v_pk_mul_f32 v[%d:%d], v[%d:%d], v[%d:%d]', vAC2 + r, vAC2 + r + 1, vAC2 + r, vAC2 + r + 1, vAC + r,
          vAC + r + 1)
    cvt8(A, vPK, vAC2)
    for r in range(8):
        A('v_cndmask_b32 v%d, v%d, v%d, s[%d:%d]', vPK + r, vPK + r, vT1, sPADL, sPADL + 1)
    for q in range(2):
        A('ds_write_b128 v%d, %s offset:%d', vOW, v(vPK + 4 * q, 4), L_KVV - L_KVA + q * 1024)
    set_stage(A, C0 + 1)
    stamp(A)
    stamp(A, 'v')
    gemm_part(A, vAC, 2, False, C0 + 3)

    def unpack_hp(src=120):
        for r in range(8):
            A('v_lshlrev_b32 v%d, 16, v%d', vAC + 2 * r, src + r)
            A('v_and_b32 v%d, 0xffff0000, v%d', vAC + 2 * r + 1, src + r)
    if RESAT == 1:
        residual()
    project()
    softmax_pm(A, vAC, vSC, vPK, vTT)
    vQF = [vAC, vAC + 4, vPK, vPK + 4]
    if RESAT == 2:
        residual()
    stamp(A)
    vW1A = vXA
    A('v_bfe_u32 v%d, v%d, 2, 2', vT0, vL)
    A('v_lshrrev_b32 v%d, 5, v%d', vT1, vL)
    A('v_lshl_add_u32 v%d, v%d, 2, v%d', vT1, vT1, vT0)
    A('v_lshlrev_b32 v%d, 8, v%d', vW1A, vT1)
    A('v_lshlrev_b32 v%d, 7, v%d', vWA, vT1)
    A('v_xor_b32 v%d, s%d, v%d', vT0, sWV, vT0)
    A('v_lshl_add_u32 v%d, v%d, 6, v%d', vW1A, vT0, vW1A)
    A('v_bfe_u32 v%d, v%d, 4, 1', vT1, vL)
    A('v_lshlrev_b32 v%d, 5, v%d', vT1, vT1)
    A('v_and_b32 v%d, 3, v%d', vT0, vL)
    A('v_lshl_add_u32 v%d, v%d, 3, v%d', vT1, vT0, vT1)
    A('v_add_u32 v%d, v%d, v%d', vW1A, vW1A, vT1)
    A('v_add_u32 v%d, 0x8000, v%d', vW1A + 1, vW1A)
    A('v_add_u32 v%d, v%d, v%d', vWA, vWA, vT1)
    A('v_bfe_u32 v%d, v%d, 3, 1', vT1, vL)
    A('v_lshl_add_u32 v%d, v%d, 6, v%d', vWA, vT1, vWA)

    def w1_copy(c):
        wait_lp(A, ('w1', c))
        for q in range(4):
            for z in range(2):
                off = w1_slot(c) + (16 * q + 8 * z) * 256
                base = vW1A
                if off >= 0x8000:
                    off -= 0x8000
                    base += 1
                r = vXR + (4 * c + q) * 4 + 2 * z
                A('ds_read_b64_tr_b16 v[%d:%d], v%d offset:%d', r, r + 1, base, off)

    sCPD = sXB
    A('s_mov_b32 s%d, 0', sCPD)

    def try_copy(block):
        skip = A.label('NC')
        A('s_cmp_lg_u32 s%d, 0', sCPD)
        A('s_cbranch_scc1 %s', skip)
        if not block:
            ow = LP[('w1', 1)][0]
            if block is not None:
                A('ds_read_b32 v%d, v%d offset:%d', vPW + ow - 4, vMI, M_PW + 4 * ow)
                A('s_waitcnt lgkmcnt(0)')
            A('v_readfirstlane_b32 s%d, v%d', CACHE[ow], vPW + ow - 4)
            A('s_cmp_lt_u32 s%d, %d', CACHE[ow], LP[('w1', 1)][1])
            A('s_cbranch_scc1 %s', skip)
        w1_copy(0)
        w1_copy(1)
        A('s_mov_b32 s%d, 1', sCPD)
        A('v_mov_b32 v%d, 1', vT0)
        A('ds_write_b32 v%d, v%d offset:%d', vMY, vT0, M_CP)
        A('%s:', skip)
    vCS = vSQ

    A('s_lshl_b32 s%d, s%d, 2', sFL, sTB)
    A('s_add_u32 s%d, s%d, s%d', sFL, sFL, sWV)
    A('s_lshl_b32 s%d, s%d, 4', sFL, sFL)
    A('s_add_u32 s%d, s%d, s%d', sFL, sFL, sH)
    A('s_lshl_b32 s%d, s%d, 11', sB, sFL)
    A('s_add_u32 s%d, s%d, %d', sB, sB, WS_OB)
    if MAP == 0:
        A('s_lshl_b32 s%d, s%d, 2', sFL, sFL)
        A('s_add_u32 s%d, s%d, %d', sFL, sFL, F2)
    else:
        A('s_lshr_b32 s%d, s%d, 3', sFL, sFL)
        A('s_lshl_b32 s%d, s%d, 10', sFL, sFL)
        A('s_and_b32 s%d, s%d, 7', sT, sH)
        A('s_lshl_b32 s%d, s%d, 2', sT, sT)
        A('s_add_u32 s%d, s%d, s%d', sFL, sFL, sT)
        A('s_add_u32 s%d, s%d, %d', sFL, sFL, F2X)
    vEX = vXD + 1
    A('v_add_u32 v%d, %d, v%d', vEX, L_EX, vO)

    def ex_reads():
        for q in range(4):
            A('ds_read_b128 %s, v%d offset:%d', v(vWF + 4 * q, 4), vEX, q * 1024)
        return 4
    lo, done = A.label('W'), A.label('WD')
    A('%s:', lo)
    A('ds_read_b128 v[%d:%d], v%d offset:%d', vPW, vPW + 3, vMI, M_PW + 16)
    A('ds_read_b32 v%d, v%d offset:%d', vPK_, vMI, M_FAST)
    ex_reads()
    A('s_waitcnt lgkmcnt(4)')
    A('v_readfirstlane_b32 s%d, v%d', sFASTF, vPK_)
    A('v_min_u32 v%d, v%d, v%d', vPW + 1, vPW + 1, vPW + 2)
    A('v_readfirstlane_b32 s%d, v%d', sT, vPW + 1)
    spin_guard(A, done)
    A('s_cmp_ge_u32 s%d, 3', sT)
    A('s_cbranch_scc1 %s', done)
    try_copy(None)
    if E('CSLP', 0):
        A('s_sleep %d', E('CSLP', 0))
    A('s_branch %s', lo)
    A('%s:', done)
    stamp(A)
    for q in range(4):
        A('s_waitcnt lgkmcnt(%d)', 3 - q)
        mfma(A, vAC2, vWF + 4 * q, vQF[q], q == 0)
    A('v_cndmask_b32 v%d, v%d, v%d, s[%d:%d]', vT0, vAC2 + 12, vAC2, sODD, sODD + 1)
    A('v_mov_b32 v%d, v%d', vT1, vT0)
    A('v_permlane32_swap_b32 v%d, v%d', vT0, vT1)
    A('v_cndmask_b32 v%d, v%d, v%d, s[%d:%d]', vTT, vT1, vT0, sODD, sODD + 1)
    A('v_add_f32 v%d, 0x%x, v%d', vTT, 0x358637bd, vTT)
    A('v_rcp_f32 v%d, v%d', vTT, vTT)
    for r in range(0, 16, 2):
        A('v_pk_mul_f32 v[%d:%d], v[%d:%d], v[%d:%d] op_sel_hi:[1,0]', vAC2 + r, vAC2 + r + 1, vAC2 + r, vAC2 + r + 1,
          vTT, vTT + 1)
    cvt8(A, vPK, vAC2)
    for r in (0, 1):
        A('v_cndmask_b32 v%d, v%d, 0, s[%d:%d]', vPK + r, vPK + r, sZA, sZA + 1)
        A('v_cndmask_b32 v%d, v%d, 0, s[%d:%d]', vPK + 6 + r, vPK + 6 + r, sZB, sZB + 1)
    pub_stores(A, [st4(vPK + 4 * q, sB, q * 1024) for q in range(2)], MAP == 0 and not WTO)
    A('s_waitcnt vmcnt(2)')
    for q in range(2):
        A('v_permlane32_swap_b32 v%d, v%d', vRX + 4 * q, vRX + 4 * q + 2)
        A('v_permlane32_swap_b32 v%d, v%d', vRX + 4 * q + 1, vRX + 4 * q + 3)
    unpack_hp(vRX)
    A('s_lshl_b32 s%d, s%d, 6', sT, sKH)
    A('v_xor_b32 v%d, s%d, v%d', vWA, sT, vWA)
    A('v_xor_b32 v%d, 64, v%d', vWA + 1, vWA)
    A('s_mul_i32 s%d, s%d, %d', sT, sKH, 224 * 128)
    A('s_add_u32 s%d, s%d, %d', sT, sT, L_A)
    A('v_add_u32 v%d, s%d, v%d', vWA + 2, sT, vWA)
    A('v_add_u32 v%d, s%d, v%d', vWA + 3, sT, vWA + 1)
    vSW, vSR, vPP = vXA + 2, vXA + 3, vSM
    A('s_and_b32 s%d, s%d, 1', sC, sWV)
    A('s_lshl_b32 s%d, s%d, 12', sC, sC)
    A('v_add_u32 v%d, s%d, v%d', vSW, sC, vO)
    A('s_cmp_eq_u32 s%d, 0', sKH)
    A('s_cselect_b32 s%d, %d, %d', sT, L_SC0 >> 12, L_SC1 >> 12)
    A('s_cselect_b32 s%d, %d, %d', sT2, L_SC1 >> 12, L_SC0 >> 12)
    A('s_lshl_b32 s%d, s%d, 12', sT, sT)
    A('s_lshl_b32 s%d, s%d, 12', sT2, sT2)
    A('v_add_u32 v%d, s%d, v%d', vSR, sT2, vSW)
    A('v_add_u32 v%d, s%d, v%d', vSW, sT, vSW)
    A('v_xor_b32 v%d, 8, v%d', vPP, vMY)
    A('s_lshl_b32 s%d, s%d, 15', sB, sG)
    A('s_lshl_b32 s%d, s%d, 14', sT, sKH)
    A('s_add_u32 s%d, s%d, s%d', sB, sB, sT)
    A('s_add_u32 s%d, s%d, %d', sB, sB, WS_OB)
    if MAP == 0:
        A('s_lshl_b32 s%d, s%d, 6', sC, sG)
        A('s_lshl_b32 s%d, s%d, 5', sT, sKH)
        A('s_add_u32 s%d, s%d, s%d', sC, sC, sT)
        A('s_add_u32 s%d, s%d, %d', sC, sC, F2)
        pub_flag(A, sFL, True)
    else:
        A('s_lshl_b32 s%d, s%d, 11', sC, sG)
        A('s_lshl_b32 s%d, s%d, 10', sT, sKH)
        A('s_add_u32 s%d, s%d, s%d', sC, sC, sT)
        A('s_lshl_b32 s%d, s%d, 7', sT, sNB)
        A('s_add_u32 s%d, s%d, s%d', sC, sC, sT)
        A('s_add_u32 s%d, s%d, %d', sC, sC, F2X)
        A('v_lshlrev_b32 v%d, 7, v%d', vT1, vL)
        if not E('NODRAIN2', 0):
            A('s_waitcnt vmcnt(0)')
        A('s_mov_b64 exec, 0x7f')
        A('buffer_store_dword v%d, v%d, s[%d:%d], s%d offen sc1', vTAG, vT1, SWS, SWS + 3, sFL)
        A('s_mov_b64 exec, -1')
    set_stage(A, C0 + 5)
    stamp(A)
    fin = A.label('FIN')
    A('s_cmp_ge_u32 s%d, 28', sI)
    A('s_cbranch_scc1 %s', fin)

    vB2 = [40 + 4 * k for k in range(8)] + [224 + 4 * k for k in range(8)]
    vWF2 = 72
    vL4, vPF = vNM, vRS
    A('v_lshlrev_b32 v%d, 2, v%d', vL4, vL)

    def f2_load():
        A('s_mov_b64 exec, 0xff')
        A('buffer_load_dword v%d, v%d, s[%d:%d], s%d offen sc1', vPF, vL4, SWS, SWS + 3, sC)
        A('s_mov_b64 exec, -1')
    f2_load()
    sB3, sFL3 = sODD, sODD + 1
    sBL, sFL2, sPF, sBK, sBS, sHB, sEM = 4, 5, 6, 7, 8, 9, 10
    A('s_mul_i32 s%d, s%d, %d', sB3, sTB3, 4 * 112)
    A('s_lshl_b32 s%d, s%d, 3', sT, sFB)
    A('s_add_u32 s%d, s%d, s%d', sB3, sB3, sT)
    A('s_lshl_b32 s%d, s%d, 1', sT, sWV)
    A('s_add_u32 s%d, s%d, s%d', sB3, sB3, sT)
    A('s_lshl_b32 s%d, s%d, 10', sB3, sB3)
    A('s_add_u32 s%d, s%d, %d', sB3, sB3, WS_H1B)
    A('s_add_u32 s%d, s%d, %d', sBL, sB3, 2 * 112 * 1024)
    A('s_lshl_b32 s%d, s%d, 9', sFL3, sTB3)
    A('s_lshl_b32 s%d, s%d, 4', sT, sFB)
    A('s_add_u32 s%d, s%d, s%d', sFL3, sFL3, sT)
    A('s_lshl_b32 s%d, s%d, 2', sT, sWV)
    A('s_add_u32 s%d, s%d, s%d', sFL3, sFL3, sT)
    A('s_add_u32 s%d, s%d, %d', sFL3, sFL3, F4)
    A('s_add_u32 s%d, s%d, 256', sFL2, sFL3)
    A('s_bitcmp1_b32 s%d, 0', sFB)
    A('s_cselect_b32 s%d, s%d, s%d', sT, sBL, sB3)
    A('s_cselect_b32 s%d, s%d, s%d', sBL, sB3, sBL)
    A('s_mov_b32 s%d, s%d', sB3, sT)
    A('s_cselect_b32 s%d, s%d, s%d', sT, sFL2, sFL3)
    A('s_cselect_b32 s%d, s%d, s%d', sFL2, sFL3, sFL2)
    A('s_mov_b32 s%d, s%d', sFL3, sT)
    A('s_lshl_b32 s%d, s%d, 8', sPF, sTQ)
    A('s_mul_i32 s%d, s%d, 112', sT, sKH)
    A('s_add_u32 s%d, s%d, s%d', sPF, sPF, sT)
    A('s_add_u32 s%d, s%d, %d', sPF, sPF, F4)
    A('s_mul_i32 s%d, s%d, %d', sHB, sG, 112 * 1024)
    A('s_mul_i32 s%d, s%d, %d', sT, sKH, 56 * 1024)
    A('s_add_u32 s%d, s%d, s%d', sHB, sHB, sT)
    A('s_add_u32 s%d, s%d, %d', sHB, sHB, WS_H1B + (0x40000000 if E('ABL', 0) & 64 else 0))
    blk_init(A, sBK, sBS, 's%d' % sKH)
    A('s_bitcmp1_b32 s%d, 0', sBK)
    A('s_mov_b32 s%d, 0x0f0f0f0f', sEM)
    A('s_cselect_b32 s%d, 0x00f0f0f0, s%d', sEM, sEM)
    wait_lp(A, 'wo')

    def wo_row(k):
        hh = k // 2
        return 28 * hh - 4 * (hh & 1) + 16 * (k & 1)

    Q = LdsQ(A)
    LAG = E('P2LAG', 5)

    def read_wo(k, nt):
        buf = vWF2 + 8 * nt + 4 * (k & 1)
        for z in range(2):
            Q.op(('w', k, nt), 'ds_read_b64_tr_b16 v[%d:%d], v%d offset:%d', buf + 2 * z, buf + 2 * z + 1,
                 vWA + 2 + nt, (wo_row(k) + 8 * z) * 128)

    read_wo(0, 1)
    read_wo(0, 0)
    lo, chk2, done = A.label('P'), A.label('PC'), A.label('PD')
    A('s_branch %s', chk2)
    A('%s:', lo)
    f2_load()
    try_copy(False)
    A('%s:', chk2)
    A('s_waitcnt vmcnt(0)')
    A('v_cmp_ne_u32 vcc, s%d, v%d', sTAG, vPF)
    spin_guard(A, done)
    A('s_and_b32 s%d, vcc_lo, 0xff', sT)
    A('s_cbranch_scc1 %s', lo)
    A('%s:', done)
    stamp(A)
    stamp(A, 'p2')
    sOB = sM0
    A('s_mov_b32 s%d, s%d', sOB, sB)

    def ld_o(k):
        A('buffer_load_dwordx4 %s, v%d, s[%d:%d], s%d offen offset:%d sc1', v(vB2[k], 4), vO, SWS, SWS + 3, sOB,
          (k & 3) * 1024)
        if (k & 3) == 3:
            A('s_add_u32 s%d, s%d, 4096', sOB, sOB)
    P2I = E('P2INFL', 8)
    for k in range(P2I):
        ld_o(k)
    A('s_lshl_b32 s%d, s%d, 1', sT2, sNB)
    A('s_add_u32 s%d, s%d, s%d', sT2, sT2, sKH)
    A('s_lshl_b32 s%d, s%d, 15', sB, sG)
    A('s_add_u32 s%d, s%d, %d', sB, sB, WS_HB)
    A('s_lshl_b32 s%d, s%d, 8', sC, sT2)
    A('s_add_u32 s%d, s%d, s%d', sC, sC, sB)
    A('s_lshl_b32 s%d, s%d, 11', sT, sT2)
    A('s_add_u32 s%d, s%d, s%d', sB, sB, sT)
    A('s_add_u32 s%d, s%d, 4096', sB, sB)
    A('s_lshl_b32 s%d, s%d, 2', sFL, sT2)
    A('s_lshl_b32 s%d, s%d, 6', sT, sG)
    A('s_add_u32 s%d, s%d, s%d', sFL, sFL, sT)
    A('s_add_u32 s%d, s%d, %d', sFL, sFL, F3)
    for k in range(16 + LAG):
        if k < 16:
            if k < 15:
                read_wo(k + 1, 1)
            Q.wait(('w', k, 1), min(15, P2I + k - 1) - k)
            if k % 4 == 0:
                stamp(A, 'p2')
            mfma(A, vAC + 16, vWF2 + 8 + 4 * (k & 1), vB2[k], k == 0)
            if P2I + k < 16:
                ld_o(P2I + k)
            if P2I + k == E('LDSIG', 12):
                A('v_mov_b32 v%d, 1', vT0)
                Q.op('ld', 'ds_write_b32 v%d, v%d offset:%d', vMY, vT0, M_LD)
        j = k - LAG
        if j >= 0:
            if j < 15:
                read_wo(j + 1, 0)
            Q.wait(('w', j, 0))
            mfma(A, vAC, vWF2 + 4 * (j & 1), vB2[j])
        if k == 10:
            Q.peek(4)
        if k == 14:
            Q.take(4)
        if k == 15:
            assert not LATE
            wait_lp(A, ('w1', 4))
        if k == 16 and LAG >= 2:
            for q in range(4):
                Q.op('x', 'ds_write_b128 v%d, %s offset:%d', vSW, v(vAC + 16 + 4 * q, 4), q * 1024)
            Q.stage(C0 + 6)
    stamp(A)

    def exchange(st, sent=False):
        if not sent:
            for q in range(4):
                A('ds_write_b128 v%d, %s offset:%d', vSW, v(vAC + 16 + 4 * q, 4), q * 1024)
            set_stage(A, st)
        lo, done = A.label('W'), A.label('WD')
        A('%s:', lo)
        A('ds_read_b32 v%d, v%d', vPW, vPP)
        for q in range(4):
            A('ds_read_b128 %s, v%d offset:%d', v(vWF2 + 4 * q, 4), vSR, q * 1024)
        A('s_waitcnt lgkmcnt(4)')
        A('v_readfirstlane_b32 s%d, v%d', sT, vPW)
        spin_guard(A, done)
        A('s_cmp_ge_u32 s%d, %d', sT, st)
        A('s_cbranch_scc0 %s', lo)
        A('%s:', done)
        for q in range(4):
            A('s_waitcnt lgkmcnt(%d)', 3 - q)
            for r in (0, 2):
                a0 = vAC + 4 * q + r
                A('v_pk_add_f32 v[%d:%d], v[%d:%d], v[%d:%d]', a0, a0 + 1, a0, a0 + 1, vWF2 + 4 * q + r,
                  vWF2 + 4 * q + r + 1)

    stamp(A, 'p2')
    exchange(C0 + 6, LAG >= 2)
    stamp(A, 'p2')
    set_stage(A, C0 + 7)
    cvt8(A, vHP, vAC)
    pub_stores(A, [st4(vHP + 4 * q, sB, q * 1024) for q in range(2)], not WTO)
    A('v_mov_b32 v%d, 0', vTT)
    A('v_mov_b32 v%d, 0', vTT + 1)
    for r in range(8):
        A('v_dot2c_f32_bf16 v%d, s%d, v%d', vTT, sONES, vHP + r)
        A('v_dot2c_f32_bf16 v%d, v%d, v%d', vTT + 1, vHP + r, vHP + r)
    A('v_lshlrev_b32 v%d, 2, v%d', vTT + 2, vL)
    A('v_permlane32_swap_b32 v%d, v%d', vTT, vTT + 1)
    A('v_add_f32 v%d, v%d, v%d', vTT, vTT, vTT + 1)
    pub_stores(A, ['buffer_store_dword v%d, v%d, s[%d:%d], s%d offen%%s' % (vTT, vTT + 2, SWS, SWS + 3, sC)], not WTO)
    stamp(A, 'p2')
    try_copy(True)
    NPRE = E('CPRE', 2)
    for c in range(2, 2 + NPRE):
        w1_copy(c)
    stamp(A, 'p2')
    pub_flag(A, sFL, True)
    stamp(A, 'p2')
    stamp(A)
    if E('ITOUCH', 0):
        A.lines.append(';ITB')
    for c in range(2 + NPRE, 4):
        w1_copy(c)
    A('v_mov_b32 v%d, 0', vCS)
    A('v_mov_b32 v%d, 0', vCS + 1)
    A('s_waitcnt lgkmcnt(0)')
    for r in range(112):
        if r in (16, 32, 48):
            w1_copy(3 + r // 16)
        if r == 48:
            set_stage(A, C0 + 8)
        if r in (64, 80, 96):
            A('s_waitcnt lgkmcnt(%d)', min(15, 1 + 8 * ((96 - r) // 16)))
        A('v_dot2c_f32_bf16 v%d, s%d, v%d', vCS + (r & 1), sONES, vXR + r)
    A('v_add_f32 v%d, v%d, v%d', vCS, vCS, vCS + 1)
    hilo_c(A, vCS, vCF, vT0)
    vBR = 40
    vE3 = 72
    vMF2, vSD = 128, 132
    A('s_mov_b32 s11, s%d', sB)
    A('s_mov_b32 s%d, s%d', sB, sB3)
    A('s_mov_b32 s%d, s%d', sFL, sFL3)

    def p3_epilogue(gi, packed=False):
        B = sub(A)
        acc = vAC + 16 * (gi & 1)
        e = vE3
        sd, c1 = vSD, vSD + 1
        if packed:
            pk = lambda r: 'v[%d:%d]' % (r, r + 1)
            for r in range(0, 16, 2):
                B('v_pk_mul_f32 %s, %s, %s op_sel:[0,1] op_sel_hi:[1,1]', pk(e + r), pk(acc + r), pk(sd))
            for r in range(16):
                B('v_exp_f32 v%d, v%d', e + r, e + r)
            for r in range(0, 16, 2):
                B('v_pk_fma_f32 %s, %s, %s, %s op_sel_hi:[1,0,0]', pk(e + r), pk(e + r), pk(sd), pk(sd))
            for r in range(16):
                B('v_rcp_f32 v%d, v%d', e + r, e + r)
            for r in range(0, 16, 2):
                B('v_pk_mul_f32 %s, %s, %s', pk(e + r), pk(e + r), pk(acc + r))
            cvt8(B, acc, e)
        else:
            silu8(B, acc, e, sd, c1, acc)
            silu8(B, acc + 8, e + 8, sd, c1, acc + 4)
        blocks = [[l] for l in B.lines]
        if E('ABL', 0) & 256 and not packed:
            blocks = blocks[-4:]
        B = sub(A)
        so = sB if gi < 2 else sBL
        pub_stores(B, [st4(acc + 4 * q, so, q * 1024) for q in range(2)], WT1 == 0 or (WT1 == 2 and gi >= 2))
        if gi % 2 == 0:
            B('s_add_u32 s%d, s%d, %d', so, so, 112 * 1024)
        blocks.append(B.lines)
        return blocks

    def flag_load(B):
        B('s_mov_b64 exec, 0xfffffff')
        B('buffer_load_dword v%d, v%d, s[%d:%d], s%d offen sc1', vPF, vL4, SWS, SWS + 3, sPF)
        B('s_mov_b64 exec, -1')

    def flag_check(mask):
        def slow(B, back):
            lo = B.label('P')
            B('%s:', lo)
            flag_load(B)
            B('s_waitcnt vmcnt(0)')
            B('v_cmp_ne_u32 vcc, s%d, v%d', sTAG, vPF)
            spin_guard(B, back)
            B('s_and_b32 s%d, vcc_lo, %s', sT, mask)
            B('s_cbranch_scc1 %s', lo)
        ent, back = cold_block(A, slow)
        A('v_cmp_ne_u32 vcc, s%d, v%d', sTAG, vPF)
        A('s_and_b32 s%d, vcc_lo, %s', sT, mask)
        A('s_cbranch_scc1 %s', ent)
        A('%s:', back)

    PRE = E('P3PRE', 6)
    vHB = vXD + 2
    A('v_add_u32 v%d, %d, v%d', vHB, L_A, vO)
    A('v_add_u32 v%d, %d, v%d', vHB + 1, 65536, vO)
    Q = LdsQ(A)

    def chk(n):
        gi, k = divmod(n, 28)
        if gi == 0 and E('P3RAMP', 0):
            return k // 4 if k % 4 == 0 else None
        if gi == 0:
            return {0: 1, 8: 3, 16: 5, 24: 6}.get(k)
        return {0: 1, 8: 3, 16: 6}.get(k)

    def rd(n):
        gi, k = divmod(n, 28)
        if n + 1 < 112 and chk(n + 1) is not None:
            Q.take(7)
        if chk(n) is not None:
            wait_lp(Q.A, ('h', gi, chk(n)))
        Q.op(('b', n), 'ds_read_b128 %s, v%d offset:%d', v(vBR + 4 * (n % 8), 4), (vHB, vHB, vO, vHB + 1)[gi],
             (28672 if gi == 1 else 0) + k * 1024)
        if n + 1 in W2GATE.values() and n + 1 >= E('FINE0', 24):
            Q.A('v_mov_b32 v%d, %d', vT0, (n + 1) // 2)
            Q.op('st', 'ds_write_b32 v%d, v%d offset:%d', vMY, vT0, M_LD)
        ramp = E('P3RAMP', 0) and n < 20
        nn = n + (4 if ramp else E('P3PK', PRE + 2))
        if nn < 112 and chk(nn) is not None and not Q.peeked and (ramp or nn >= 28 or not E('P3RAMP', 0)):
            Q.peek(7)

    stamp(A, 'p2')
    nrd = [0]

    def rd_upto(n):
        while nrd[0] <= min(n, 111):
            rd(nrd[0])
            nrd[0] += 1
    rd_upto(2)
    for gi in range(4):
        acc = vAC + 16 * (gi & 1)
        M = sub(A)
        Q.A = M
        for k in range(28):
            n = 28 * gi + k
            rd_upto(n + (PRE if not E('P3RAMP', 0) else 3 if n < 22 else min(PRE, 3 + (n - 21))))
            if k == 16:
                Q.op('s6', 'ds_read_b128 v[%d:%d], v%d offset:%d', vTT, vTT + 3, vMI, M_PW + 16)
                Q.op('sf', 'ds_read_b128 %s, v%d offset:%d', v(vMF2, 4), vEX, gi * 1024)
            if k == 24:
                Q.wait('sf')
                M('v_readfirstlane_b32 s%d, v%d', sPROG, vTT)
                M('v_readfirstlane_b32 s%d, v%d', sC, vTT + LP[('st', gi)][0] - 4)

                def st_slow(B, back):
                    def st_read():
                        B('ds_read_b128 %s, v%d offset:%d', v(vMF2, 4), vEX, gi * 1024)
                        return 0
                    wait_word(B, LP[('st', gi)][0], LP[('st', gi)][1], body=st_read)
                ent, back = cold_block(M, st_slow)
            if k == 25:
                M('s_cmp_ge_u32 s%d, %d', sC, LP[('st', gi)][1])
                M('s_cbranch_scc0 %s', ent)
                M('%s:', back)
                M('v_mov_b32 v%d, v%d', vMF, vMF2)
                M('v_mov_b32 v%d, v%d', vMF + 1, vMF2 + 1)
            if k % 2 == 0:
                Q.wait(('b', n + 1))
            if k in (0, 12):
                stamp(M, 'p3')
            if gi == E('P33', 3) and k % 2 == 0 and k:
                stamp(M, 'p33')
            if gi == 3 and k == E('P3FLAGK', 11):
                pub_flag(M, sFL, True)
            if gi == 3 and k == 25:
                flag_load(M)
            mfma(M, acc, vXR + 4 * k, vBR + 4 * (n % 8), k == 0)
        mfma(M, acc, vCF, vMF)
        M('v_mov_b32 v%d, v%d', vSD, vMF2 + 2)
        M('v_mov_b32 v%d, v%d', vSD + 1, vMF2 + 3)
        A.lines += merge(M.lines, p3_epilogue(gi - 1) if gi > 0 else [], 1, E('P3STOP2', 27) if gi == 2 else 27)
        if gi == 0:
            stamp(A)
        stamp(A, 'p3')
    stamp(A)
    NB = 28
    vWF4 = 40
    vAP = vXR + 48

    def w2_base(c):
        A('s_cmp_eq_u32 s%d, 0', sKH)
        A('s_cselect_b32 s%d, %d, %d', sT, w2_slot(2 * c) >> 12, w2_slot(2 * c + 1) >> 12)
        A('s_lshl_b32 s%d, s%d, 12', sT, sT)
        A('v_add_u32 v%d, s%d, v%d', vWA + 2, sT, vWA)
        A('v_add_u32 v%d, s%d, v%d', vWA + 3, sT, vWA + 1)

    Q = LdsQ(A)

    def abuf(k):
        return vWF4 + 8 * (k & 3)

    def read_w2(k):
        if k % 4 == 3 and k < 52:
            Q.take(LP[('w2', 2 * (k // 4) + 3)][0])
        if k % 4 == 0:
            wait_lp(A, ('w2', 2 * (k // 4) + 1))
            w2_base(k // 4)
        buf = abuf(k)
        for nt in range(2):
            for z in range(2):
                Q.op(('w', k), 'ds_read_b64_tr_b16 v[%d:%d], v%d offset:%d', buf + 4 * nt + 2 * z,
                     buf + 4 * nt + 2 * z + 1, vWA + 2 + nt, ((k % 4) * 16 + 8 * z) * 128)
        if k % 4 == 0 and k < 52:
            Q.peek(LP[('w2', 2 * (k // 4) + 3)][0])
        if k % 4 == 3 and (k // 4) <= 5:
            Q.stage(C0 + 13 + k // 4)

    vq = []

    def vm_need(tag):
        i = max(j for j, x in enumerate(vq) if x == tag)
        return len(vq) - 1 - i

    def issue_b(k):
        if k % 8 == 0:
            A('s_lshl_b32 s%d, s%d, 13', sM0, sBK)
            A('s_add_u32 s%d, s%d, s%d', sM0, sM0, sHB)
            blk_next(A, sBK, sBS)
        A('buffer_load_dwordx4 %s, v%d, s[%d:%d], s%d offen offset:%d%s', v(vXR + 4 * (k % NB), 4), vO, SWS, SWS + 3,
          sM0, (k & 3) * 1024, LDB)
        vq.append(('b', k))
        if k % 8 == 3:
            A('s_add_u32 s%d, s%d, 4096', sM0, sM0)

    INFL = E('P4INFL', 10)
    assert INFL < NB
    A('s_waitcnt vmcnt(2)')
    flag_check('s%d' % sEM)
    stamp(A)
    issued = E('P4PRE', 8)
    for k in range(issued):
        issue_b(k)
    NI = E('P4INT', 0)
    blocks = p3_epilogue(3, True)
    for j, b in enumerate(blocks):
        if j < len(blocks) - 1 and issued < E('P4PRE', 8) + (NI * (j + 1)) // (len(blocks) - 1):
            issue_b(issued)
            issued += 1
        A.lines += b
    vq += ['st', 'st']
    read_w2(0)
    read_w2(1)
    while issued < INFL:
        issue_b(issued)
        issued += 1
    unpack_hp()
    stamp(A)
    KF, KL, KC = E('P4KF', 3), E('P4KL', 9), E('P4KC', 14)
    pend = False
    for k in range(56):
        if k + 2 < 56:
            read_w2(k + 2)
        need = vm_need(('b', k))
        if k == KF:
            need = min(need, vm_need('st'))
        if k == KC:
            need = min(need, vm_need('pf'))
        Q.wait(('w', k), need)
        if k % 4 == 0 and k:
            stamp(A, 'p4')
        buf = abuf(k)
        mfma(A, vAC + 16, buf + 4, vXR + 4 * (k % NB), k == 0)
        if k == KF:
            pub_flag(A, sFL2, True, False)
            vq.append('fl')
        if k == E('HCL', -1):
            for q in range(2):
                A(st4(vHP + 4 * q, 11, q * 1024) % ' sc1')
                vq.append('hc')
        if k == KL:
            flag_load(A)
            vq.append('pf')
        if k == KC:
            flag_check('0xfffffff')
            pend = True
        for _ in range(E('P4CU', 2)):
            if issued < min(56, k + 1 + INFL) and (issued < 24 or pend):
                issue_b(issued)
                issued += 1
        mfma(A, vAC, buf, vXR + 4 * (k % NB))
    stamp(A)
    if E('OUTT', 1):
        A('v_readfirstlane_b32 s%d, v%d', sC, vSR)
        A('v_readfirstlane_b32 s%d, v%d', sT2, vRO)
        A('v_and_b32 v%d, 31, v%d', vTT, vL)
        A('v_mul_u32_u24 v%d, 80, v%d', vTT, vTT)
        A('v_lshrrev_b32 v%d, 5, v%d', vT1, vL)
        A('v_lshl_add_u32 v%d, v%d, 3, v%d', vTT, vT1, vTT)
        A('v_add_u32 v%d, s%d, v%d', vTT, sC, vTT)
        A('v_lshrrev_b32 v%d, 2, v%d', vT1, vL)
        A('v_and_b32 v%d, 3, v%d', vTT + 3, vL)
        A('v_lshlrev_b32 v%d, 4, v%d', vTT + 3, vTT + 3)
        A('v_mul_u32_u24 v%d, 80, v%d', vTT + 1, vT1)
        A('v_add3_u32 v%d, v%d, v%d, s%d', vTT + 1, vTT + 1, vTT + 3, sC)
        A('v_mul_u32_u24 v%d, 896, v%d', vTT + 2, vT1)
        A('v_add_u32 v%d, v%d, v%d', vTT + 2, vTT + 2, vTT + 3)
        A('s_add_u32 s%d, s%d, %d', sC, sT2, 16 * 896)
    exchange(C0 + 27)
    cvt8(A, vHP, vAC)
    OB = ('', ' sc1', ' nt', ' sc0 sc1')[E('OUTB', 2)]
    if E('OUTT', 1):
        for q in range(4):
            A('ds_write_b64 v%d, v[%d:%d] offset:%d', vTT, vHP + 2 * q, vHP + 2 * q + 1, q * 16)
        for q in range(2):
            A('ds_read_b128 %s, v%d offset:%d', v(vHP + 4 * q, 4), vTT + 1, q * 16 * 80)
        for q in range(2):
            A('s_waitcnt lgkmcnt(%d)', 1 - q)
            A('buffer_store_dwordx4 %s, v%d, s[%d:%d], s%d offen%s', v(vHP + 4 * q, 4), vTT + 2, SOUT, SOUT + 3,
              (sT2, sC)[q], OB)
    else:
        for q in range(2):
            A('v_permlane32_swap_b32 v%d, v%d', vHP + 4 * q, vHP + 4 * q + 2)
            A('v_permlane32_swap_b32 v%d, v%d', vHP + 4 * q + 1, vHP + 4 * q + 3)
        for q in range(2):
            A('buffer_store_dwordx4 %s, v%d, s[%d:%d], 0 offen offset:%d%s', v(vHP + 4 * q, 4), vRO, SOUT, SOUT + 3,
              q * 32, OB)
    A('s_or_b32 s%d, s%d, s%d', sT, sI, sWV)
    A('s_or_b32 s%d, s%d, s%d', sT, sT, sXCD)
    A('s_cmp_lg_u32 s%d, 0', sT)
    A('s_cbranch_scc1 %s', fin)
    A('s_mov_b32 s%d, %d', sT, FEP)
    A('s_mov_b64 exec, 1')
    A('buffer_store_dword v%d, v%d, s[%d:%d], s%d offen', vTAG, vO, SWS, SWS + 3, sT)
    A('s_mov_b64 exec, -1')
    if E('ITOUCH', 0):
        A.lines.append(';ITE')
    A('%s:', fin)
    if E('PADTO', 0):
        lo = A.label('PAD')
        A('s_waitcnt vmcnt(0) lgkmcnt(0)')
        A('s_mov_b32 s6, %d', E('PADTO', 0))
        if PROBE >= 0:
            A('s_sub_u32 s7, s56, s84')
            A('s_lshl_b32 s7, s7, 2')
            A('s_cmp_ge_u32 s%d, 28', sI)
            A('s_cselect_b32 s7, 0, s7')
            A('s_add_u32 s6, s6, s7')
        A('%s:', lo)
        A('s_memrealtime s[4:5]')
        A('s_waitcnt lgkmcnt(0)')
        A('s_sub_u32 s4, s4, s84')
        A('s_cmp_lt_u32 s4, s6')
        A('s_cbranch_scc1 %s', lo)
    stamp_flush(A)


def gen():
    A = Asm()
    name = NAME + '_kernel'
    A.lines += ['.p2align 8', '.globl %s' % name, '.type %s,@function' % name, '%s:' % name]
    end = A.label('END')
    if E('PADTO', 0):
        A('s_memrealtime s[84:85]')
    A('s_load_dwordx16 s[64:79], s[0:1], 0')
    A('s_load_dwordx2 s[80:81], s[0:1], 72')
    A('s_getpc_b64 s[%d:%d]', sPC, sPC + 1)
    A('s_cmp_ge_u32 s2, 256')
    A('s_cbranch_scc1 %s', end)
    assert MAP == 0
    A('s_and_b32 s%d, s2, 7', sXCD)
    A('s_lshr_b32 s%d, s2, 3', sI)
    A('v_lshrrev_b32 v%d, 6, v0', vMY)
    A('v_and_b32 v%d, 63, v0', vL)
    A('s_and_b32 s%d, s%d, 1', sTB, sI)
    A('s_lshl1_add_u32 s%d, s%d, s%d', sTB, sXCD, sTB)
    A('v_readfirstlane_b32 s%d, v%d', sWV, vMY)
    A('s_add_u32 s%d, s%d, s%d', sC0, sXCD, sI)
    A('s_mul_i32 s%d, s%d, 37', sT, sC0)
    A('s_lshr_b32 s%d, s%d, 8', sT, sT)
    A('s_mul_i32 s%d, s%d, 7', sT, sT)
    A('s_sub_u32 s%d, s%d, s%d', sC0, sC0, sT)
    if CODEPF & 8:
        nc = A.label('NC')
        A('s_cmp_lg_u32 s%d, 5', sWV)
        A('s_cbranch_scc1 %s', nc)
        code_touch(A, 72)
        A('%s:', nc)
    x_offsets(A)
    perm = [2, 4, 6, 9, 11, 13, 0, 1, 3, 5, 7, 8, 10, 12, 14, 15]
    lo = sum(perm[i] << (4 * i) for i in range(8))
    hi = sum(perm[8 + i] << (4 * i) for i in range(8))
    A('s_mov_b32 s%d, 0x%x', sHI, lo)
    A('s_mov_b32 s%d, 0x%x', sHI + 1, hi)
    A('s_lshr_b32 s%d, s%d, 1', sT, sI)
    A('s_lshl_b32 s%d, s%d, 2', sT, sT)
    A('s_lshr_b64 s[%d:%d], s[%d:%d], s%d', sHI, sHI + 1, sHI, sHI + 1, sT)
    A('s_and_b32 s%d, s%d, 15', sH, sHI)
    A('v_lshlrev_b32 v%d, 2, v%d', vMY, vMY)
    A('v_add_u32 v%d, %d, v%d', vMY, L_MISC, vMY)
    A('v_mov_b32 v%d, 0', vT0)
    A('ds_write2st64_b32 v%d, v%d, v%d offset0:0 offset1:1', vMY, vT0, vT0)
    A('ds_write2_b32 v%d, v%d, v%d offset0:%d offset1:%d', vMY, vT0, vT0, M_FAST // 4, M_CP // 4)
    w_offsets(A)
    A('v_mov_b32 v%d, %d', vMI, L_MISC)
    A('s_mov_b32 s%d, 0x400000', sSPIN)
    A('s_mov_b32 s%d, 0', sPROG)
    A('s_mul_i32 s%d, s%d, %d', sT2, sWV, 32 * 896)
    A('s_lshl_b32 s%d, s%d, 7', sT, sC0)
    A('s_add_u32 s%d, s%d, s%d', sT, sT, sXB)
    A('s_add_u32 s%d, s%d, s%d', sT, sT, sT2)
    A('s_lshl_b32 m0, s%d, 12', sWV)
    A('s_mov_b32 s%d, 0x%x', SX + 2, 0 if E('ABL', 0) & 16 else S * D * 2)
    A('s_mov_b32 s%d, 0x20000', SX + 3)
    A('s_mov_b32 s%d, 0x%x', SW + 2, 0 if E('ABL', 0) & 8 else D * 3 * D * 2)
    A('s_mov_b32 s%d, 0x20000', SW + 3)
    A('s_waitcnt lgkmcnt(0)')
    A('s_mov_b64 s[%d:%d], s[64:65]', SX, SX + 1)
    A('s_mov_b64 s[%d:%d], s[66:67]', SW, SW + 1)
    A('s_mov_b32 s%d, 0', sPROG1)
    _st['n'] = 0
    stamp(A, 'all')
    if STAMPS:
        A('s_memrealtime s[86:87]')
    for i in range(7):
        LP[('x', i)] = (7, 1 + i)
    hn = [9]
    for gi in range(4):
        us = E('HSPOS', 3) if gi == 0 else 0
        LP[('st', gi)] = (6 - (gi & 1), 4 + gi // 2)
        for q in range(7):
            if q in HITEMS[gi > 0]:
                hn[0] += 1
                LP[('h', gi, q)] = (7, hn[0])
            if q == us:
                hn[0] += 1
                LP[('hs', gi)] = (7, hn[0])
    for pi in range(3):
        for i in range(7):
            LP[('W', pi, i)] = (4, 7 * pi + i + 1)
    l0, l1, l2, lw, lc = A.label('H0'), A.label('H1'), A.label('H23'), A.label('EW'), A.label('EC')
    l7 = A.label('E7')
    A('s_cmp_eq_u32 s%d, 4', sWV)
    A('s_cbranch_scc1 %s', lw)
    A('s_cmp_gt_u32 s%d, 4', sWV)
    A('s_cbranch_scc1 %s', l7)
    for u in range(4):
        A('buffer_load_dwordx4 v%d, s[%d:%d], s%d offen offset:%d lds', vXD + u, SX, SX + 3, sT, u * 1024)
    A('%s:', l7)
    if SHST:
        n6 = A.label('N6')
        A('s_cmp_lg_u32 s%d, 6', sWV)
        A('s_cbranch_scc1 %s', n6)
        A('s_mul_i32 s%d, s%d, %d', sT, sH, 8 * 896)
        A('s_add_u32 s%d, s%d, s%d', sT, sT, sXB)
        for u in range(7):
            A('buffer_load_dwordx4 %s, v%d, s[%d:%d], s%d offen offset:%d', v(76 + 4 * u, 4), vXD, SX, SX + 3, sT,
              u * 128)
        A('%s:', n6)
    A('s_cmp_lg_u32 s%d, 7', sWV)
    A('s_cbranch_scc1 %s', lc)
    HELP['on'] = True
    nst = {}
    prio(A, 1)
    _st['n'] = 1
    HELP['role'] = '7'
    early_x(A)
    nst[l1] = _st['n']
    A('s_branch %s', l1)
    A('%s:', lw)
    prio(A, 1)
    _st['n'] = 1
    HELP['role'] = '4'
    early_w(A)
    nst[l0] = _st['n']
    nst[l2] = 1
    A('s_branch %s', l0)
    refresh_routines(A)
    A('%s:', lc)
    A('s_barrier')
    A('s_cmp_ge_u32 s%d, 5', sWV)
    A('s_cbranch_scc1 %s', l2)
    parts = {}
    for lab, fn in ((l0, gen_h0), (l1, gen_h1), (l2, gen_h23)):
        B = sub(A)
        B('%s:', lab)
        B('s_nop 4')
        HELP['on'] = True
        prio(B, 1)
        _st['n'] = nst[lab]
        HELP['role'] = {l0: '4', l1: '7', l2: 'h'}[lab]
        fn(B)
        HELP['role'] = 'c'
        HELP['on'] = False
        parts[lab] = B.lines
    if E('H2F', 0):
        lcc = A.label('CC')
        A.lines[-2:] = ['  s_cmp_lt_u32 s%d, 5' % sWV, '  s_cbranch_scc1 %s' % lcc]
        A.lines += parts[l2]
        A('%s:', lcc)
    _st['n'] = 1
    gen_compute(A)
    A('%s:', end)
    A('s_endpgm')
    for lab in (l0, l1) if E('H2F', 0) else (l0, l1, l2):
        A.lines += parts[lab]
    A.lines += COLD
    return A, name


def main():
    out = sys.argv[1] if len(sys.argv) > 1 else 'cdna_kernels/%s.s' % NAME
    A, name = gen()
    lines, nn = fix_hazards(A.lines)
    IT = E('ITOUCH', 0)
    if IT:
        sz = sizes_of(lines)
        start, stop = lines.index(';ITB'), lines.index(';ITE')
        ol, acc, n = [], 0, 0
        for i, l in enumerate(lines):
            if start < i < stop and i in sz:
                prev = lines[i - 1].strip()
                if acc >= IT and not prev.startswith(('s_getpc', 's_endpgm', 's_branch', 's_setpc')):
                    ol += ['IT_%d:' % n, '  s_cbranch_execz IT_RET']
                    n += 1
                    acc = 4
                acc += sz[i]
            ol.append(l)
        cl_ = ['  s_call_b64 s[4:5], IT_%d' % k for k in range(n)]
        calls = ['  s_setprio 0', '  s_mov_b64 exec, 0', '  s_cmp_eq_u32 s%d, 5' % sWV, '  s_cbranch_scc1 IT_B'] + \
            cl_[0::2] + ['  s_branch IT_END', 'IT_RET:', '  s_setpc_b64 s[4:5]', 'IT_B:'] + cl_[1::2] + [
            'IT_END:', '  s_mov_b64 exec, -1']
        k = ol.index(';ITOUCH')
        lines = ol[:k] + calls + ol[k + 1:]
        print('landing points', n)
    if E('ALIGN', 0):
        lines, na = align8(lines)
        print('re-encoded', na)
    hdr = ['; generated by gen/gen20.py (hand-written generator script)',
           '; kernarg: +0 A_x +8 A_wqkv +16 A_w_phi +24 A_wo +32 B_x (unused) +40 B_w1 +48 B_w2 +56 out +64 debug +72 ws',
           '; one persistent launch: 256 workgroups x (4 matrix waves + 4 helper waves); phases',
           ';   P1 LN1+QKV+feature maps per (128 tokens, head) | kv all-gather | o | P2b h = x + o wo | P3 silu(LN2(h) w1) | P4 + w2',
           '; @launch grid=(256,1,1) block=(512,1,1) lds=%d' % LDS_SIZE,
           '.amdgcn_target "amdgcn-amd-amdhsa--gfx950"', '.text']
    tail = ['.p2align 8', '.fill 2048, 4, 0xbf800000', '.section .rodata,"a"', '.p2align 6', '''.amdhsa_kernel %s
  .amdhsa_next_free_vgpr 256
  .amdhsa_next_free_sgpr 102
  .amdhsa_accum_offset 256
  .amdhsa_group_segment_fixed_size 0
  .amdhsa_kernarg_size 80
  .amdhsa_user_sgpr_count 2
  .amdhsa_user_sgpr_kernarg_segment_ptr 1
  .amdhsa_system_sgpr_workgroup_id_x 1
  .amdhsa_float_denorm_mode_32 3
  .amdhsa_float_denorm_mode_16_64 3
.end_amdhsa_kernel''' % name]
    open(out, 'w').write('\n'.join(hdr + lines + tail) + '\n')
    print('wrote', out, 'lines', len(lines), 'nops', nn)


if __name__ == '__main__':
    main()
```

```python
import sys
import os
sys.path.insert(0, os.path.dirname(os.path.abspath(__file__)))
from asmlib import Asm, fix_hazards, align8, sizes_of, v

NAME = 'sequential_preLN__linear_kernel_hedgehog__dense_activation_silu__prompt'
S, D, H, DH, F = 2048, 448, 16, 28, 1792
MB = 1 << 20
E = lambda k, d: int(os.environ.get(k, d))
STAMPS = E('STAMPS', 0)
MAP = E('MAP', 0)
FAST = E('FAST', 1)
CODEPF = E('CODEPF', 10)
WARM = E('WARM', 0)
WT1 = E('WT1', 1)
WTO = E('WTO', 0)
TOUCHAT = E('TOUCHAT', 2)
LDB = (' sc1', '', ' nt')[E('LDB', 0)]
HLATE = E('HLATE', 1)
WS_KVP = 0
WS_OB = 2 * MB
WS_HB = 4 * MB
WS_H1B = 8 * MB
WS_FLG = 16 * MB
F1, F2, F3, F4, FREG, FEP = WS_FLG + 0x10000, WS_FLG + 0x1000, WS_FLG + 0x3000, WS_FLG + 0x70000, WS_FLG + 0x9000, WS_FLG + 0xA000
F2X = WS_FLG + 0x40000
FLN = WS_FLG + 0x80000
SHST = E('SHST', 0)
WS_STAMP = 17 * MB
WS_SIZE = 18 * MB
LOG2E = 0x3fb8aa3b
ONES = 0x3f803f80
MFMA = 'v_mfma_f32_32x32x16_bf16'
L_X = 0
L_WP = (114688, 0, 32768)
L_KVA, L_KVV = 65536, 81920
L_A = 98304
L_SC0, L_SC1 = 49152, 57344
L_XRES = L_SC0
B16 = (0, 16384, 65536, 81920, 32768)
L_PHI, L_EX, L_CF, L_MISC = 159744 - 2048 + 2048 + 1536, 155648, 159744, 163328
LDS_SIZE = 163840
M_PW, M_FAST, M_CP, M_LD = 0, 64, 96, 256
L_RSTD = L_EX

SX, SW, SP, SWS, SWO, SW1, SW2, SOUT = 12, 16, 20, 24, 28, 32, 36, 40
sTB, sH, sWV, sC0, sPROG, sT, sT2, sONES, sC, sTAG, sFASTF, sI, sXCD = 44, 45, 46, 47, 48, 49, 50, 51, 52, 53, 54, 55, 3
sHI, sPADL, sZA, sZB, sODD, sPC = 4, 6, 8, 10, 92, 94
sTQ, sNB, sTB3, sFB, sG, sKH, sB, sXB, sM0, sSPIN = 96, 97, 98, 99, 100, 101, 88, 89, 91, 90
sPROG1, sFL = 0, 1
vL, vMI, vT0, vT1, vO = 1, 2, 3, 4, 5
vTAG, vMY = 6, 7
vTT = 8
vXA = 12
vWA = 16
vSM, vSQ = 20, 22
vNM, vRS, vSC, vRA = 24, 25, 26, 27
vXD = 28
vPW = 32
vCA = 36
vXR = 144
vPK_ = 37
CACHE = {4: sPROG, 7: sPROG1, 5: sC0}

_st = {'n': 0}
C0 = 4
HELP = {'on': False}


def prio(A, hi):
    if HELP['on'] and E('HPRIO', 2) and not HELP.get('hot'):
        A('s_setprio %d', E('HPRIO', 2) if hi else 0)
LP = {}


STSET = os.environ.get('STSET', 'main')


DBGT = E('DBGT', 0)


PROBE = E('PROBE', -1)


DLY = os.environ.get('DLY', '')


def stamp(A, tag='main'):
    if DLY:
        if tag in ('main', 'all'):
            if '%s:%d' % (HELP.get('role', 'c'), _st['n']) == DLY:
                A('s_sleep 16')
            _st['n'] += 1
        return
    if PROBE >= 0:
        if not HELP['on'] and tag in ('main', 'all'):
            if _st['n'] == PROBE:
                A('s_memrealtime s[56:57]')
            _st['n'] += 1
        return
    if DBGT and not HELP['on'] and tag in ('main', 'all'):
        A('s_memrealtime s[%d:%d]', 56 + 2 * _st['n'], 57 + 2 * _st['n'])
        _st['n'] += 1
        return
    if STAMPS and STSET == 'clk' and tag == 'main' and not HELP['on']:
        _st['m'] = _st.get('m', 0) + 1
        if _st['m'] in (1, 2, 4, 8, 10, 13):
            A('s_memtime s[%d:%d]', 56 + 2 * _st['n'], 57 + 2 * _st['n'])
            A('s_memrealtime s[%d:%d]', 58 + 2 * _st['n'], 59 + 2 * _st['n'])
            _st['n'] += 2
        return
    if STAMPS and (tag == STSET or tag == 'all' or (HELP['on'] and tag == 'main')):
        assert _st['n'] < 15, 'too many stamps'
        A('s_memtime s[%d:%d]', 56 + 2 * _st['n'], 57 + 2 * _st['n'])
        _st['n'] += 1


def stamp_flush(A):
    if DBGT and not HELP['on']:
        A('s_waitcnt vmcnt(0)')
        stamp(A, 'all')
        skip = A.label('DS')
        A('s_waitcnt vmcnt(0) lgkmcnt(0)')
        A('s_cmp_ge_u32 s%d, 28', sI)
        A('s_cbranch_scc1 %s', skip)
        A('s_mov_b64 exec, 1')
        A('v_mov_b32 v1, 0')
        A('s_not_b32 s4, s56')
        A('v_mov_b32 v2, s4')
        A('global_atomic_umax v1, v2, s[86:87] offset:60')
        for i in range(_st['n']):
            A('v_mov_b32 v%d, s%d', 8 + i, 56 + 2 * i)
            A('global_atomic_umax v1, v%d, s[86:87] offset:%d', 8 + i, 4 * i)
        A('%s:', skip)
        return
    if STAMPS:
        A('s_waitcnt vmcnt(0)')
        stamp(A, 'all')
        A('s_memrealtime s[4:5]')
        A('s_waitcnt vmcnt(0) lgkmcnt(0)')
        A('s_sub_u32 s4, s4, s86')
        A('s_lshl_b32 s4, s4, 20')
        A('s_and_b32 s86, s86, 0xfffff')
        A('s_or_b32 s86, s86, s4')
        A('s_lshl_b32 s%d, s2, 3', sT)
        A('s_add_u32 s%d, s%d, s%d', sT, sT, sWV)
        A('s_lshl_b32 s%d, s%d, 6', sT, sT)
        A('s_add_u32 s%d, s%d, %d', sT, sT, WS_STAMP)
        A('s_mov_b64 exec, 1')
        A('v_mov_b32 v1, 0')
        for i in range(16):
            if i < _st['n']:
                A('v_mov_b32 v2, s%d', 56 + 2 * i)
            elif i == 15:
                A('v_mov_b32 v2, s86')
            else:
                A('v_mov_b32 v2, 0')
            A('buffer_store_dword v2, v1, s[%d:%d], s%d offen offset:%d', SWS, SWS + 3, sT, 4 * i)
            A('s_nop 1')


def srd(A, d, ptr, size):
    A('s_mov_b32 s%d, s%d', d, ptr)
    A('s_and_b32 s%d, s%d, 0xffff', d + 1, ptr + 1)
    A('s_mov_b32 s%d, 0x%x', d + 2, size)
    A('s_mov_b32 s%d, 0x20000', d + 3)


COLD = []


def cold_block(A, fn):
    ent, back = A.label('CE'), A.label('CB')
    B = sub(A)
    B('%s:', ent)
    B('s_nop 15')
    fn(B, back)
    B('s_nop 7')
    B('s_branch %s', back)
    COLD.extend(B.lines)
    return ent, back


def again(A, br, lo, sleep=0):
    slp = max(sleep * E('SLPMUL', 1), E('HSLP', 0) if HELP['on'] else E('CSLP', 0))
    if slp:
        st = A.label('ZZ')
        COLD.extend(['%s:' % st, '  s_sleep %d' % slp, '  s_branch %s' % lo])
        lo = st
    A('%s %s', br, lo)


def spin_guard(A, done):
    A('s_sub_u32 s%d, s%d, 1', sSPIN, sSPIN)
    A('s_cbranch_scc1 %s', done)


def wait_word(A, w, n, cache=None, sleep=0, body=None):
    sd = sT if cache is None else cache

    def loop(B, done, body=None):
        lo = B.label('W')
        prio(B, 0)
        B('%s:', lo)
        B('ds_read_b32 v%d, v%d offset:%d', vPW, vMI, M_PW + 4 * w)
        k = body() if body else 0
        B('s_waitcnt lgkmcnt(%d)', k)
        B('v_readfirstlane_b32 s%d, v%d', sd, vPW)
        spin_guard(B, done)
        B('s_cmp_ge_u32 s%d, %d', sd, n)
        again(B, 's_cbranch_scc0', lo, sleep)
        prio(B, 1)
    if cache is not None and body is None and not HELP['on']:
        A('s_getpc_b64 s[%d:%d]', sPC, sPC + 1)
        A('s_cmp_ge_u32 s%d, %d', sd, n)
        A('s_cbranch_scc0 REFRESH_%d', w)
        return
    done = A.label('WD')
    if cache is not None and body is None:
        A('s_cmp_ge_u32 s%d, %d', sd, n)
        A('s_cbranch_scc1 %s', done)
    loop(A, done, body)
    A('%s:', done)


def wait_lp(A, name, sleep=0):
    w, n = LP[name]
    wait_word(A, w, n, CACHE[w], sleep)


def set_stage(A, n):
    A('v_mov_b32 v%d, %d', vT0, n)
    A('ds_write_b32 v%d, v%d', vMY, vT0)


def wait_stage(A, n, which=(0, 1, 2, 3), body=None, sleep=0, base=M_PW, cache=None):
    lo, done = A.label('W'), A.label('WD')
    sT = globals()['sT'] if cache is None else cache
    if cache is not None:
        A('s_cmp_ge_u32 s%d, %d', sT, n)
        A('s_cbranch_scc1 %s', done)
    prio(A, 0)
    A('%s:', lo)
    A('ds_read_b128 v[%d:%d], v%d offset:%d', vPW, vPW + 3, vMI, base + 16 * (which[0] // 4))
    k = body() if body else 0
    A('s_waitcnt lgkmcnt(%d)', k)
    w = [x % 4 for x in which]
    if len(w) == 4:
        A('v_min3_u32 v%d, v%d, v%d, v%d', vPW, vPW, vPW + 1, vPW + 2)
        A('v_min_u32 v%d, v%d, v%d', vPW, vPW, vPW + 3)
        r = vPW
    else:
        A('v_min_u32 v%d, v%d, v%d', vPW + w[0], vPW + w[0], vPW + w[1])
        r = vPW + w[0]
    A('v_readfirstlane_b32 s%d, v%d', sT, r)
    spin_guard(A, done)
    A('s_cmp_ge_u32 s%d, %d', sT, n)
    again(A, 's_cbranch_scc0', lo, sleep)
    A('%s:', done)
    prio(A, 1)


def poll_global(A, soff, nlanes):
    lo, done = A.label('P'), A.label('PD')
    A('v_lshlrev_b32 v%d, 2, v%d', vT1, vL)
    if nlanes <= 32:
        A('s_mov_b64 exec, 0x%x', (1 << nlanes) - 1)
    else:
        A('s_mov_b32 exec_lo, 0x%x', nlanes & 0xffffffff)
        A('s_mov_b32 exec_hi, 0x%x', nlanes >> 32)
    A('%s:', lo)
    A('buffer_load_dword v%d, v%d, s[%d:%d], s%d offen sc1', vT0, vT1, SWS, SWS + 3, soff)
    A('s_waitcnt vmcnt(0)')
    A('v_cmp_ne_u32 vcc, s%d, v%d', sTAG, vT0)
    spin_guard(A, done)
    A('s_cbranch_vccnz %s', lo)
    A('%s:', done)
    A('s_mov_b64 exec, -1')


def poll_scalar(A, soff, n):
    lo, done = A.label('P'), A.label('PD')
    A('s_add_u32 s%d, s%d, s%d', sPC, SWS, soff)
    A('s_addc_u32 s%d, s%d, 0', sPC + 1, SWS + 1)
    base = 76
    assert n == 8
    A('%s:', lo)
    if E('PSLEEP', 0):
        A('s_sleep %d', E('PSLEEP', 0))
    A('s_load_dwordx%d s[%d:%d], s[%d:%d], 0 glc', n, base, base + n - 1, sPC, sPC + 1)
    A('s_waitcnt lgkmcnt(0)')
    A('s_and_b64 s[%d:%d], s[%d:%d], s[%d:%d]', sHI, sHI + 1, base, base + 1, base + 2, base + 3)
    A('s_or_b64 s[%d:%d], s[%d:%d], s[%d:%d]', sPADL, sPADL + 1, base, base + 1, base + 2, base + 3)
    for k in range(4, n, 2):
        A('s_and_b64 s[%d:%d], s[%d:%d], s[%d:%d]', sHI, sHI + 1, sHI, sHI + 1, base + k, base + k + 1)
        A('s_or_b64 s[%d:%d], s[%d:%d], s[%d:%d]', sPADL, sPADL + 1, sPADL, sPADL + 1, base + k, base + k + 1)
    A('s_and_b32 s%d, s%d, s%d', sHI, sHI, sHI + 1)
    A('s_or_b32 s%d, s%d, s%d', sPADL, sPADL, sPADL + 1)
    A('s_xor_b32 s%d, s%d, s%d', sHI, sHI, sTAG)
    A('s_xor_b32 s%d, s%d, s%d', sPADL, sPADL, sTAG)
    spin_guard(A, done)
    A('s_or_b32 s%d, s%d, s%d', sHI, sHI, sPADL)
    A('s_cbranch_scc1 %s', lo)
    A('%s:', done)


def two_ways(A, fn, local):
    if local and FAST:
        ent, back = cold_block(A, lambda B, back: fn(B, ' sc1'))
        A('s_cmp_eq_u32 s%d, 0', sFASTF)
        A('s_cbranch_scc1 %s', ent)
        fn(A, '')
        A('%s:', back)
    else:
        fn(A, ' sc1')


def pub_stores(A, stores, local):
    def fn(B, bits):
        for st in stores:
            B(st % bits)
    two_ways(A, fn, local)


def pub_flag(A, sflag, local, drain=True):
    if drain:
        A('s_waitcnt vmcnt(0)')
    A('s_mov_b64 exec, 1')
    two_ways(A, lambda B, bits: B('buffer_store_dword v%d, v%d, s[%d:%d], s%d offen%s', vTAG, vO, SWS, SWS + 3, sflag,
                                  bits), local)
    A('s_mov_b64 exec, -1')


def pub_flag4(A):
    A('v_lshlrev_b32 v%d, 9, v%d', vT1, vL)
    A('s_waitcnt vmcnt(0)')
    A('s_mov_b64 exec, 15')
    two_ways(A, lambda B, bits: B('buffer_store_dword v%d, v%d, s[%d:%d], s%d offen%s', vTAG, vT1, SWS, SWS + 3, sFL,
                                  bits), True)
    A('s_mov_b64 exec, -1')


def st4(reg, soff, off):
    return 'buffer_store_dwordx4 %s, v%d, s[%d:%d], s%d offen offset:%d%%s' % (v(reg, 4), vO, SWS, SWS + 3, soff, off)


def hilo_c(A, src, f, tmp):
    A('v_cvt_pk_bf16_f32 v%d, v%d, v%d', f, src, src)
    A('v_and_b32 v%d, 0xffff0000, v%d', tmp, f)
    A('v_sub_f32 v%d, v%d, v%d', tmp, src, tmp)
    A('v_cvt_pk_bf16_f32 v%d, v%d, 0', f + 1, tmp)


def hilo_m(A, src, f, tmp):
    A('v_cvt_pk_bf16_f32 v%d, v%d, 0', f + 1, src)
    A('v_lshlrev_b32 v%d, 16, v%d', tmp, f + 1)
    A('v_sub_f32 v%d, v%d, v%d', tmp, src, tmp)
    A('v_cvt_pk_bf16_f32 v%d, v%d, v%d', f, src, tmp)


def ln_finish(A, t0, t1, negmean, rstd):
    A('v_mul_f32 v%d, 0x%x, v%d', t0, 0x3b124925, t0)
    A('v_mov_b32 v%d, v%d', t1, t0)
    A('v_permlane32_swap_b32 v%d, v%d', t0, t1)
    A('v_fma_f32 v%d, -v%d, v%d, v%d', t1, t0, t0, t1)
    A('v_max_f32 v%d, 0, v%d', t1, t1)
    A('v_add_f32 v%d, 0x%x, v%d', t1, 0x3727c5ac, t1)
    A('v_rsq_f32 v%d, v%d', rstd, t1)
    A('v_sub_f32 v%d, 0, v%d', negmean, t0)


def softmax_pm(A, p, sc, e, t):
    A('v_cndmask_b32 v%d, v%d, v%d, s[%d:%d]', p + 12, p + 12, p + 14, sHI, sHI + 1)
    A('v_cndmask_b32 v%d, v%d, v%d, s[%d:%d]', p + 13, p + 13, p + 15, sHI, sHI + 1)
    mx, mn = t, t + 1
    A('v_max3_f32 v%d, v%d, v%d, v%d', mx, p, p + 1, p + 2)
    A('v_min3_f32 v%d, v%d, v%d, v%d', mn, p, p + 1, p + 2)
    for i in range(3, 13, 2):
        A('v_max3_f32 v%d, v%d, v%d, v%d', mx, mx, p + i, p + i + 1)
        A('v_min3_f32 v%d, v%d, v%d, v%d', mn, mn, p + i, p + i + 1)
    A('v_max_f32 v%d, v%d, v%d', mx, mx, p + 13)
    A('v_min_f32 v%d, v%d, v%d', mn, mn, p + 13)
    A('v_sub_f32 v%d, 0, v%d', mn, mn)
    A('v_permlane32_swap_b32 v%d, v%d', mx, mn)
    A('v_max_f32 v%d, v%d, v%d', mx, mx, mn)
    A('v_mul_f32 v%d, v%d, v%d', mx, mx, sc)
    A('v_mov_b32 v%d, v%d', mn, mx)
    A('v_permlane32_swap_b32 v%d, v%d', mx, mn)
    assert sc % 2 == 0 and mx % 2 == 0
    for i in range(0, 14, 2):
        A('v_pk_fma_f32 v[%d:%d], v[%d:%d], v[%d:%d], v[%d:%d] op_sel:[0,0,1] op_sel_hi:[1,0,1] neg_lo:[1,0,1] '
          'neg_hi:[1,0,1]', e + i, e + i + 1, p + i, p + i + 1, sc, sc + 1, mx, mx + 1)
        A('v_pk_fma_f32 v[%d:%d], v[%d:%d], v[%d:%d], v[%d:%d] op_sel_hi:[1,0,0] neg_lo:[0,0,1] neg_hi:[0,0,1]',
          p + i, p + i + 1, p + i, p + i + 1, sc, sc + 1, mx, mx + 1)
    for i in range(14):
        A('v_exp_f32 v%d, v%d', e + i, e + i)
        A('v_exp_f32 v%d, v%d', p + i, p + i)
    if PKSM:
        for base in (p, e):
            A('v_pk_add_f32 v[%d:%d], v[%d:%d], v[%d:%d]', base + 14, base + 15, base, base + 1, base + 2, base + 3)
        for i in range(4, 14, 2):
            for base in (p, e):
                A('v_pk_add_f32 v[%d:%d], v[%d:%d], v[%d:%d]', base + 14, base + 15, base + 14, base + 15, base + i,
                  base + i + 1)
    else:
        for base in (p, e):
            A('v_add_f32 v%d, v%d, v%d', base + 14, base, base + 2)
            A('v_add_f32 v%d, v%d, v%d', base + 15, base + 1, base + 3)
        for i in range(4, 14):
            for base in (p, e):
                A('v_add_f32 v%d, v%d, v%d', base + 14 + (i & 1), base + 14 + (i & 1), base + i)
    sp, sn = t + 2, t
    A('v_add_f32 v%d, v%d, v%d', sp, p + 14, p + 15)
    A('v_add_f32 v%d, v%d, v%d', sn, e + 14, e + 15)
    A('v_permlane32_swap_b32 v%d, v%d', sp, sn)
    A('v_add_f32 v%d, v%d, v%d', sp, sp, sn)
    A('v_rcp_f32 v%d, v%d', sp, sp)
    A('v_mov_b32 v%d, v%d', sn, sp)
    A('v_permlane32_swap_b32 v%d, v%d', sp, sn)
    for i in range(0, 14, 2):
        for base, r in ((p, sp), (e, sn)):
            if PKSM:
                A('v_pk_mul_f32 v[%d:%d], v[%d:%d], v[%d:%d] op_sel_hi:[1,0]', base + i, base + i + 1, base + i,
                  base + i + 1, r, r + 1)
            else:
                A('v_mul_f32 v%d, v%d, v%d', base + i, base + i, r)
                A('v_mul_f32 v%d, v%d, v%d', base + i + 1, base + i + 1, r)
    for i, (a0, a1) in enumerate(((0, 1), (2, 3), (4, 5), (6, None), (7, 8), (9, 10), (11, 12), (13, None))):
        for base in (p, e):
            A('v_cvt_pk_bf16_f32 v%d, v%d, %s', base + i, base + a0, '0' if a1 is None else 'v%d' % (base + a1))


PKSM = E('PKSM', 1)


def silu8(B, acc, e, sd, c1, out):
    for r in range(8):
        B('v_mul_f32 v%d, v%d, v%d', e + r, acc + r, c1)
        if r >= 1:
            B('v_exp_f32 v%d, v%d', e + r - 1, e + r - 1)
    B('v_exp_f32 v%d, v%d', e + 7, e + 7)
    for r in range(8):
        B('v_fma_f32 v%d, v%d, v%d, v%d', e + r, e + r, sd, sd)
        if r >= 1:
            B('v_rcp_f32 v%d, v%d', e + r - 1, e + r - 1)
    B('v_rcp_f32 v%d, v%d', e + 7, e + 7)
    for r in range(8):
        B('v_mul_f32 v%d, v%d, v%d', e + r, e + r, acc + r)
    cvt8(B, out, e, 4)


def cvt8(A, dst, src, n=8):
    for i in range(n):
        A('v_cvt_pk_bf16_f32 v%d, v%d, v%d', dst + i, src + 2 * i, src + 2 * i + 1)


def mfma(A, d, a_, b_, first=False):
    A('%s %s, %s, %s, %s', MFMA, v(d, 16), v(a_, 4), v(b_, 4), '0' if first else v(d, 16))


def merge(main, blocks, start, stop):
    idx = [i for i, l in enumerate(main) if l.strip().startswith('v_mfma')][start:stop]
    out, k = [], 0
    n = len(idx)
    pos = {i: j for j, i in enumerate(idx)}
    for i, l in enumerate(main):
        out.append(l)
        if i in pos:
            upto = (len(blocks) * (pos[i] + 1) + n - 1) // n
            for b in blocks[k:upto]:
                out += b
            k = max(k, upto)
    assert k >= len(blocks)
    return out


def sub(A):
    return Asm()


L_H = (L_A, L_A + 28672, 0, 65536)
W2S = [32768, 40960] + [L_A + k * 8192 for k in range(2)] + [L_SC0, L_SC1] + [L_A + k * 8192 for k in range(2, 7)] + [
    k * 8192 for k in range(4)] + [65536 + k * 8192 for k in range(4)]
FINE = E('FINE', 1)
W2GATE = {2: 8, 3: 16, 6: 24, 7: 32, 8: 40, 9: 48, 10: 56, 11: 64, 12: 72, 13: 80, 14: 84, 15: 92, 16: 100, 17: 108,
          18: 112} if FINE else {2: 28, 7: 56, 11: 84, 15: 112}
W2RE = dict(zip(range(19, 28), (0, 1, 2, 3, 6, 7, 8, 9, 10)))


def w2_slot(n):
    return W2S[W2RE.get(n, n)]


def w1_slot(c):
    return B16[c % 5]


class LdsQ:
    def __init__(self, A):
        self.A, self.q = A, []
        self.peeked = False

    def op(self, tag, fmt, *a):
        self.A(fmt, *a)
        self.q.append(tag)

    def need(self, tag):
        idx = [i for i, x in enumerate(self.q) if x == tag]
        if not idx:
            return None
        n = len(self.q) - 1 - idx[-1]
        self.q = self.q[idx[-1] + 1:]
        return min(n, 15)

    def wait(self, tag, vm=None):
        n = self.need(tag)
        if n is None and vm is None:
            return
        self.A('s_waitcnt' + ('' if vm is None else ' vmcnt(%d)' % vm) + ('' if n is None else ' lgkmcnt(%d)' % n))

    def stage(self, n):
        set_stage(self.A, n)
        self.q.append('st')

    def peek(self, w):
        if w == 5:
            self.op('pk', 'ds_read_b32 v%d, v%d', vPK_, vCA)
        else:
            self.op('pk', 'ds_read_b32 v%d, v%d offset:%d', vPK_, vMI, M_PW + 4 * w)
        self.peeked = True

    def take(self, w):
        if not self.peeked:
            return
        self.peeked = False
        self.wait('pk')
        self.A('v_readfirstlane_b32 s%d, v%d', CACHE[w], vPK_)


def tag_compute(A, t16=None):
    A('s_waitcnt lgkmcnt(0)')
    if t16 is not None:
        A('s_lshr_b32 s%d, s%d, 16', sT2, sTAG)
    A('s_mul_i32 s%d, s%d, 0x%x', sTAG, sTAG, 1664525)
    A('s_add_u32 s%d, s%d, 0x%x', sTAG, sTAG, 1013904223)
    A('v_mov_b32 v%d, s%d', vTAG, sTAG)
    if t16 is not None:
        A('s_and_b32 s%d, s%d, 0x3fff', t16, sTAG)
        A('s_and_b32 s%d, s%d, 0x4000', sT, sTAG)
        A('s_lshl_b32 s%d, s%d, 1', sT, sT)
        A('s_or_b32 s%d, s%d, s%d', t16, t16, sT)
        A('s_cmp_eq_u32 s%d, s%d', t16, sT2)
        A('s_cselect_b32 s%d, 1, 0', sT)
        A('s_xor_b32 s%d, s%d, s%d', t16, t16, sT)
        A('s_lshl_b32 s%d, s%d, 16', t16, t16)


def fast_check(A):
    A('s_getreg_b32 s%d, hwreg(HW_REG_XCC_ID)', sC)
    A('s_and_b32 s%d, s%d, 15', sC, sC)
    A('s_add_u32 s%d, s%d, s%d', sC, sC, sTAG)
    A('s_lshl_b32 s%d, s%d, 7', sT, sXCD)
    A('s_add_u32 s%d, s%d, %d', sT, sT, FREG)
    A('v_and_b32 v%d, 31, v%d', vT1, vL)
    A('v_lshlrev_b32 v%d, 2, v%d', vT1, vT1)
    A('buffer_load_dword v%d, v%d, s[%d:%d], s%d offen sc1', vT0, vT1, SWS, SWS + 3, sT)
    A('s_waitcnt vmcnt(0)')
    A('v_cmp_ne_u32 vcc, s%d, v%d', sC, vT0)
    A('s_cmp_eq_u64 vcc, 0')
    A('s_cselect_b32 s%d, 1, 0', sFASTF)


class Stream:
    def __init__(self, A, wave, depth, first=0):
        self.A, self.wave, self.depth = A, wave, depth
        self.items = []
        self.issued = 0
        self.known = 0
        self.n = first

    def wait_to(self, left):
        if self.issued - left <= self.known:
            return
        self.A('s_waitcnt vmcnt(%d)', left)
        self.known = self.issued - left
        last = None
        while self.items and self.items[0][1] <= self.known:
            last = self.items.pop(0)[0]
        if last is not None:
            set_stage(self.A, last)

    def room(self, k):
        self.wait_to(max(self.depth - k, 0))
        self.issued += k

    def done(self, name, cnt=None):
        self.n += 1
        assert LP.setdefault(name, (self.wave, self.n)) == (self.wave, self.n), name
        self.items.append((self.n, self.issued))

    def drain(self):
        self.drain_to(0)

    def drain_to(self, keep):
        while len(self.items) > keep:
            self.wait_to(self.issued - self.items[0][1])

    def save(self):
        return (list(self.items), self.issued, self.known)

    def restore(self, s):
        self.items, self.issued, self.known = list(s[0]), s[1], s[2]

    def dma4(self, lds, voffs, srd_, step=None, bits=''):
        A = self.A
        if isinstance(lds, tuple):
            A('s_add_u32 m0, s%d, %d', lds[0], lds[1])
        else:
            A('s_mov_b32 m0, %d', lds)
        self.room(4)
        for u in range(4):
            A('buffer_load_dwordx4 v%d, s[%d:%d], s%d offen offset:%d%s lds', voffs[u], srd_, srd_ + 3, sT, u * 1024,
              bits)
        if step:
            A('s_add_u32 s%d, s%d, %d', sT, sT, step)


def reg4(St, regs, voffs, srd_, step=None):
    St.room(4)
    for u in range(4):
        St.A('buffer_load_dwordx4 %s, v%d, s[%d:%d], s%d offen offset:%d', v(regs[u], 4), voffs[u], srd_, srd_ + 3, sT,
             u * 1024)
    if step:
        St.A('s_add_u32 s%d, s%d, %d', sT, sT, step)


def spill(St, name, regs, lds):
    A = St.A
    assert not St.items
    A('v_add_u32 v%d, %d, v%d', vT1, lds, vO)
    A('s_setprio %d', E('SPRIO', 0))
    for j, r in enumerate(regs):
        A('ds_write_b128 v%d, %s offset:%d', vT1, v(r, 4), j * 1024)
    St.n += 1
    assert LP.setdefault(name, (St.wave, St.n)) == (St.wave, St.n), name
    set_stage(A, St.n)


def off128(A, vW128, vXo=None):
    A('v_lshrrev_b32 v%d, 3, v%d', vW128, vL)
    A('v_mul_u32_u24 v%d, 896, v%d', vW128, vW128)
    A('v_and_b32 v%d, 7, v%d', vT1, vL)
    if vXo is not None:
        A('v_lshl_add_u32 v%d, v%d, 4, v%d', vXo, vT1, vW128)
        spread4(A, vXo, 8 * 896)
    A('v_lshrrev_b32 v%d, 2, v%d', vT0, vL)
    A('v_and_b32 v%d, 4, v%d', vT0, vT0)
    A('v_xor_b32 v%d, v%d, v%d', vT1, vT1, vT0)
    A('v_lshl_add_u32 v%d, v%d, 4, v%d', vW128, vT1, vW128)
    spread4(A, vW128, 8 * 896)


def off256(A, vW256):
    A('v_lshrrev_b32 v%d, 4, v%d', vW256, vL)
    A('v_mul_u32_u24 v%d, 3584, v%d', vW256, vW256)
    A('v_and_b32 v%d, 15, v%d', vT1, vL)
    A('v_lshrrev_b32 v%d, 2, v%d', vT0, vL)
    A('v_and_b32 v%d, 12, v%d', vT0, vT0)
    A('v_xor_b32 v%d, v%d, v%d', vT1, vT1, vT0)
    A('v_lshl_add_u32 v%d, v%d, 4, v%d', vW256, vT1, vW256)
    spread4(A, vW256, 4 * 3584)


def code_touch(A, dst):
    A('s_mul_i32 s%d, s%d, %d', sT, sI, 11 * 128)
    A('v_lshlrev_b32 v%d, 7, v%d', vT0, vL)
    A('v_add_u32 v%d, s%d, v%d', vT0, sT, vT0)
    A('s_mov_b64 exec, 0x7ff')
    A('global_load_dword v%d, v%d, s[%d:%d]', dst, vT0, sPC, sPC + 1)
    A('s_mov_b64 exec, -1')


def h_stream(A, first):
    wave = 7
    St = Stream(A, wave, E('HDEPTH', 24), first)
    if wave == 7:
        A('s_lshl_b32 s%d, s%d, 17', sB, sTB3)
        A('s_add_u32 s%d, s%d, %d', sB, sB, WS_HB + (0x40000000 if E('ABL', 0) & 128 else 0))
        rot_calc(A, sG, 'w1')
        for u in range(7):
            rot_idx(A, 4 + u, sG, u, 7)
            A('s_lshl_b32 s%d, s%d, 12', 4 + u, 4 + u)
            A('s_add_u32 s%d, s%d, s%d', 4 + u, 4 + u, sB)
            A('s_add_u32 s%d, s%d, 4096', 4 + u, 4 + u)
        A('s_lshl_b32 s%d, s%d, 8', sT2, sTB3)
        A('s_add_u32 s%d, s%d, %d', sT2, sT2, F3)
        A('v_lshlrev_b32 v%d, 2, v%d', vT1, vL)
        A('s_and_b32 s%d, s%d, 1', sC, sFB)
        A('s_lshl_b32 s%d, s%d, 16', sC, sC)
        HALF = E('HHALF', 1)
        sMK = sODD
        A('s_bitcmp1_b32 s%d, 0', sFB)
        A('s_cselect_b32 s%d, %s, 0x3fff3fff', sMK, '0' if HALF else '0x3fff3fff')
        A('s_cselect_b32 s%d, 0x3fff3fff, %s', sMK + 1, '0' if HALF else '0x3fff3fff')
        A('v_mov_b32 v41, v%d', vT1)

        def poll(B, done):
            lo = B.label('P')
            B('%s:', lo)
            B('buffer_load_dword v42, v41, s[%d:%d], s%d offen sc1', SWS, SWS + 3, sM0)
            B('s_waitcnt vmcnt(0)')
            B('v_cmp_ne_u32 vcc, s%d, v42', sTAG)
            spin_guard(B, done)
            B('s_and_b64 vcc, vcc, s[%d:%d]', sMK, sMK + 1)
            B('s_cbranch_scc1 %s', lo)
        A('s_mov_b32 s%d, s%d', sM0, sT2)
        if CODEPF & 4:
            wait_stage(A, 1, base=M_LD, sleep=1)
            code_touch(A, 63)
        wait_stage(A, C0 + 7, sleep=1)
        stamp(A)
        done = A.label('PD')
        poll(A, done)
        A('%s:', done)
        stamp(A)
        for gi in range(4):
            if gi == 1 and HALF:
                St.room(1)
                A('buffer_load_dword v42, v41, s[%d:%d], s%d offen sc1', SWS, SWS + 3, sM0)
                mark = St.issued
                A('s_mov_b32 s%d, 0x3fff3fff', sMK)
                A('s_mov_b32 s%d, 0x3fff3fff', sMK + 1)
            if gi == 2:
                wait_stage(A, C0 + 8)
                if HALF:
                    St.wait_to(St.issued - mark)
                    ent, back = cold_block(A, poll)
                    A('v_cmp_ne_u32 vcc, s%d, v42', sTAG)
                    A('s_and_b64 vcc, vcc, s[%d:%d]', sMK, sMK + 1)
                    A('s_cbranch_scc1 %s', ent)
                    A('%s:', back)
            if gi:
                A('s_xor_b32 s%d, s%d, %d', sC, sC, (gi ^ (gi - 1)) << 15)
            St.depth = E('HDEPTH0', 24) if gi == 0 else E('HDEPTH', 24)
            for u in range(7):
                A('s_add_u32 s%d, s%d, s%d', sT, 4 + u, sC)
                St.dma4(L_H[gi] + u * 4096, [vO] * 4, SWS, None, LDB)
                if u in HITEMS[gi > 0]:
                    St.done(('h', gi, u))
                if u == (E('HSPOS', 3) if gi == 0 else 0):
                    A('s_add_u32 s%d, s%d, s%d', sT, sB, sC)
                    St.dma4(L_SC0 + gi * 4096, [vO] * 4, SWS, None, ' sc1')
                    St.done(('hs', gi))
        St.drain()
    stamp(A)


def spread4(A, base, step):
    for u in range(1, 4):
        A('v_add_u32 v%d, %d, v%d', base + u, u * (step - 1024), base)


def wtr_base(A):
    A('v_lshrrev_b32 v%d, 5, v%d', vT1, vL)
    A('v_bfe_u32 v%d, v%d, 2, 2', vT0, vL)
    A('v_lshl_add_u32 v%d, v%d, 3, v%d', vT0, vT1, vT0)
    A('v_lshlrev_b32 v%d, 6, v%d', vT0, vT0)
    A('v_bfe_u32 v%d, v%d, 4, 1', vTT, vL)
    A('v_lshl_add_u32 v%d, v%d, 5, v%d', vT0, vTT, vT0)
    A('v_and_b32 v%d, 3, v%d', vTT, vL)
    A('v_lshl_add_u32 v%d, v%d, 3, v%d', vT0, vTT, vT0)
    for pi in range(3):
        A('v_add_u32 v%d, %d, v%d', vWA + pi, L_WP[pi], vT0)
    A('v_lshlrev_b32 v%d, 3, v%d', vCA, vL)
    A('v_add_u32 v%d, %d, v%d', vCA, L_CF, vCA)


def sel_frags(A, vID):
    A('v_lshrrev_b32 v%d, 5, v%d', vT1, vL)
    A('v_and_b32 v%d, 31, v%d', vT0, vL)
    A('v_lshlrev_b32 v%d, 2, v%d', vTT, vT1)
    A('v_sub_u32 v%d, v%d, v%d', vT0, vT0, vTT)
    A('v_mov_b32 v%d, 0x3f80', vTT)
    A('v_mov_b32 v%d, 0x3f800000', vTT + 1)
    for sidx in range(2):
        for rr in range(4):
            m = 16 * sidx + 8 * (rr >> 1) + 2 * (rr & 1)
            A('v_cmp_eq_u32 vcc, %d, v%d', m, vT0)
            A('v_cndmask_b32 v%d, 0, v%d, vcc', vID + 4 * sidx + rr, vTT)
            A('v_cmp_eq_u32 vcc, %d, v%d', m + 1, vT0)
            A('v_cndmask_b32 v%d, v%d, v%d, vcc', vID + 4 * sidx + rr, vID + 4 * sidx + rr, vTT + 1)


def read_w(A, pi, i, buf, sleep=0):
    wait_lp(A, ('W', pi, i), sleep)
    for q in range(4):
        for z in range(2):
            A('ds_read_b64_tr_b16 v[%d:%d], v%d offset:%d', buf + 4 * q + 2 * z, buf + 4 * q + 2 * z + 1,
              vWA + pi, i * 4096 + q * 1024 + z * 256)


def colsum(A, spi):
    vCS, vB_, buf = 40, 44, 48
    A('v_mov_b32 v%d, 0', vCS)
    A('v_mov_b32 v%d, 0', vCS + 1)
    A('s_cmp_eq_u32 s%d, 1', spi)
    A('s_cselect_b32 s%d, 0, %d', sT, L_WP[2])
    A('s_cmp_eq_u32 s%d, 0', spi)
    A('s_cselect_b32 s%d, %d, s%d', sT, L_WP[0], sT)
    assert L_WP[1] == 0
    A('v_add_u32 v%d, s%d, v%d', vB_, sT, vWA + 1)
    A('s_mul_i32 s%d, s%d, 7', sC, spi)
    A('s_add_u32 s%d, s%d, 7', sT2, sC)
    top, lo, ok = A.label('CS'), A.label('W'), A.label('WD')
    A('%s:', top)
    A('s_cmp_gt_u32 s%d, s%d', sPROG, sC)
    A('s_cbranch_scc1 %s', ok)
    prio(A, 0)
    A('%s:', lo)
    A('ds_read_b32 v%d, v%d offset:%d', vPW, vMI, M_PW + 16)
    A('s_waitcnt lgkmcnt(0)')
    A('v_readfirstlane_b32 s%d, v%d', sPROG, vPW)
    spin_guard(A, ok)
    A('s_cmp_gt_u32 s%d, s%d', sPROG, sC)
    again(A, 's_cbranch_scc0', lo)
    prio(A, 1)
    A('%s:', ok)
    for q in range(4):
        for z in range(2):
            A('ds_read_b64_tr_b16 v[%d:%d], v%d offset:%d', buf + 4 * q + 2 * z, buf + 4 * q + 2 * z + 1, vB_,
              q * 1024 + z * 256)
    A('ds_read_b32 v%d, v%d offset:%d', vPW, vMI, M_PW + 16)
    A('v_add_u32 v%d, 4096, v%d', vB_, vB_)
    A('s_add_u32 s%d, s%d, 1', sC, sC)
    for q in range(4):
        A('s_waitcnt lgkmcnt(%d)', 7 - 2 * q)
        for r in range(4):
            A('v_dot2c_f32_bf16 v%d, s%d, v%d', vCS + (r & 1), sONES, buf + 4 * q + r)
    A('s_waitcnt lgkmcnt(0)')
    A('v_readfirstlane_b32 s%d, v%d', sPROG, vPW)
    A('s_cmp_lt_u32 s%d, s%d', sC, sT2)
    A('s_cbranch_scc1 %s', top)
    A('v_add_f32 v%d, v%d, v%d', vCS, vCS, vCS + 1)
    hilo_c(A, vCS, vCS + 2, vT0)
    A('s_lshl_b32 s%d, s%d, 9', sT, spi)
    A('v_add_u32 v%d, s%d, v%d', vB_, sT, vCA)
    A('ds_write_b64 v%d, v[%d:%d]', vB_, vCS + 2, vCS + 3)


ROT = E('ROT', 1)
HITEMS = ((1, 3, 5, 6), (1, 3, 6))
W7ST = 0
LATE = E('LATE', 0)
W2R = E('W2R', 0)


def rot_calc(A, dst, kind):
    if not ROT:
        A('s_mov_b32 s%d, 0', dst)
        return
    if kind == 'w1':
        A('s_and_b32 s%d, s%d, 1', dst, sTB3)
        A('s_mul_i32 s%d, s%d, %d', dst, dst, 4 if LATE else 3)
        mod = 7
    elif kind == 'wo':
        A('s_and_b32 s%d, s%d, 3', dst, sTQ)
        A('s_lshl_b32 s%d, s%d, 1', dst, dst)
        mod = 7
    else:
        A('s_and_b32 s%d, s%d, 3', dst, sTQ)
        A('s_mul_i32 s%d, s%d, 7', dst, dst)
        A('s_lshr_b32 s%d, s%d, 1', dst, dst)
        mod = 14
    A('s_add_u32 s%d, s%d, s%d', dst, dst, sXCD)
    if kind == 'w1' and E('ROTFB', 1):
        A('s_lshr_b32 s%d, s%d, 1', sT, sFB)
        A('s_add_u32 s%d, s%d, s%d', dst, dst, sT)
        A('s_mul_i32 s%d, s%d, 37', sT, dst)
        A('s_lshr_b32 s%d, s%d, 8', sT, sT)
        A('s_mul_i32 s%d, s%d, 7', sT, sT)
        A('s_sub_u32 s%d, s%d, s%d', dst, dst, sT)
        return
    A('s_cmp_ge_u32 s%d, %d', dst, mod)
    A('s_cselect_b32 s%d, %d, 0', sT, mod)
    A('s_sub_u32 s%d, s%d, s%d', dst, dst, sT)


def rot_idx(A, dst, rot, j, mod):
    A('s_add_u32 s%d, s%d, %d', dst, rot, j)
    A('s_cmp_ge_u32 s%d, %d', dst, mod)
    A('s_cselect_b32 s%d, %d, 0', sT2, mod)
    A('s_sub_u32 s%d, s%d, s%d', dst, dst, sT2)


def blk_init(A, sb, sst, kh):
    A('s_and_b32 s%d, s%d, 1', sb, sTQ)
    if isinstance(kh, str):
        A('s_xor_b32 s%d, s%d, %s', sb, sb, kh)
    elif kh:
        A('s_xor_b32 s%d, s%d, 1', sb, sb)
    A('s_lshr_b32 s%d, s%d, 1', sT, sTQ)
    A('s_xor_b32 s%d, s%d, s%d', sT, sT, sXCD)
    A('s_sub_u32 s%d, 6, s%d', sT2, sb)
    A('s_bitcmp1_b32 s%d, 0', sT)
    A('s_cselect_b32 s%d, s%d, s%d', sb, sT2, sb)
    A('s_cselect_b32 s%d, 5, 2', sst)


def blk_next(A, sb, sst):
    A('s_add_u32 s%d, s%d, s%d', sb, sb, sst)
    A('s_cmp_ge_u32 s%d, 7', sb)
    A('s_cselect_b32 s%d, 7, 0', sT2)
    A('s_sub_u32 s%d, s%d, s%d', sb, sb, sT2)


def rest_srds(A):
    A('s_add_u32 s82, s80, %d', FEP)
    A('s_addc_u32 s83, s81, 0')
    A('s_load_dword s%d, s[82:83], 0', sTAG)
    srd(A, SP, 68, H * DH * DH * 2)
    A('s_mul_i32 s%d, s%d, 37', sTQ, sI)
    A('s_lshr_b32 s%d, s%d, 8', sTQ, sTQ)
    A('s_mul_i32 s%d, s%d, 7', sNB, sTQ)
    A('s_sub_u32 s%d, s%d, s%d', sNB, sI, sNB)
    A('s_lshr_b32 s%d, s%d, 1', sTB3, sTQ)
    A('s_mul_i32 s%d, s%d, 14', sFB, sTB3)
    A('s_sub_u32 s%d, s%d, s%d', sFB, sI, sFB)
    A('s_lshl2_add_u32 s%d, s%d, s%d', sTQ, sXCD, sTQ)
    A('s_lshl1_add_u32 s%d, s%d, s%d', sTB3, sXCD, sTB3)
    A('v_lshlrev_b32 v%d, 4, v%d', vO, vL)
    A('s_mov_b32 s%d, 0', sFASTF)
    A('s_mov_b32 s%d, 0x%x', sONES, ONES)
    ABL = E('ABL', 0)
    srd(A, SWO, 70, 0 if ABL & 1 else D * D * 2)
    srd(A, SW1, 74, 0 if ABL & 2 else D * F * 2)
    srd(A, SW2, 76, 0 if ABL & 4 else D * F * 2)
    srd(A, SOUT, 78, S * D * 2)
    srd(A, SWS, 80, WS_SIZE)


def rot_next(A):
    A('s_add_u32 s%d, s%d, 1', sC, sC)
    A('s_cmp_eq_u32 s%d, 7', sC)
    A('s_cselect_b32 s%d, 0, s%d', sC, sC)


def sig_dyn(A, sval):
    A('v_mov_b32 v%d, s%d', vT0, sval)
    A('ds_write_b32 v%d, v%d', vMY, vT0)


def x_offsets(A):
    A('v_lshrrev_b32 v%d, 3, v%d', vT0, vL)
    A('v_mul_u32_u24 v%d, 896, v%d', vT0, vT0)
    A('v_lshrrev_b32 v%d, 4, v%d', vT1, vL)
    A('v_and_b32 v%d, 7, v%d', vXD, vL)
    A('v_xor_b32 v%d, v%d, v%d', vXD, vXD, vT1)
    A('v_xor_b32 v%d, 4, v%d', vXD + 1, vXD)
    A('v_lshl_add_u32 v%d, v%d, 4, v%d', vXD, vXD, vT0)
    A('v_lshl_add_u32 v%d, v%d, 4, v%d', vXD + 1, vXD + 1, vT0)
    A('v_add_u32 v%d, %d, v%d', vXD + 1, 8 * 896 - 1024, vXD + 1)
    A('v_add_u32 v%d, %d, v%d', vXD + 2, 2 * (8 * 896 - 1024), vXD)
    A('v_add_u32 v%d, %d, v%d', vXD + 3, 2 * (8 * 896 - 1024), vXD + 1)
    A('s_mul_i32 s%d, s%d, %d', sXB, sTB, 0 if E('AB2', 0) & 16 else 128 * 896)


def w_offsets(A):
    vW = 40
    A('v_lshrrev_b32 v%d, 2, v%d', vW, vL)
    A('v_mul_u32_u24 v%d, 2688, v%d', vW, vW)
    A('v_and_b32 v%d, 3, v%d', vT1, vL)
    A('v_lshl_add_u32 v%d, v%d, 4, v%d', vW, vT1, vW)
    A('s_mul_i32 s%d, s%d, %d', sT, sH, 0 if E('AB2', 0) & 8 else 56)
    A('s_and_b32 s%d, s%d, 0xfffffff0', sT, sT)
    A('v_add_u32 v%d, s%d, v%d', vW, sT, vW)
    spread4(A, vW, 16 * 2688)


def early_x(A):
    depth = E('XDEPTH', 20)
    wsig = ((depth - 4) // 4) % 4
    lag = (depth - 4 - 4 * wsig) // 16
    A('s_mov_b32 s%d, %d', sG, 1 - lag)
    A('s_mov_b32 m0, %d', L_X + 16384)
    A('s_mov_b32 s%d, s%d', sC, sC0)
    rot_next(A)
    top = A.label('XL')
    A('%s:', top)
    A('s_lshl_b32 s%d, s%d, 7', sT, sC)
    A('s_add_u32 s%d, s%d, s%d', sT, sT, sXB)
    for w in range(4):
        A('s_waitcnt vmcnt(%d)', depth - 4)
        if w == wsig:
            A('s_max_i32 s%d, s%d, 0', sT2, sG)
            sig_dyn(A, sT2)
        for u in range(4):
            A('buffer_load_dwordx4 v%d, s[%d:%d], s%d offen offset:%d lds', vXD + u, SX, SX + 3, sT, u * 1024)
        A('s_add_u32 m0, m0, 4096')
        if w < 3:
            A('s_add_u32 s%d, s%d, %d', sT, sT, 32 * 896)
    nb = A.label('NB')
    A('s_cmp_lg_u32 s%d, %d', sG, 1 - lag)
    A('s_cbranch_scc1 %s', nb)
    A('s_barrier')
    A('%s:', nb)
    rot_next(A)
    A('s_add_u32 s%d, s%d, 1', sG, sG)
    A('s_cmp_lt_i32 s%d, %d', sG, 7 - lag)
    A('s_cbranch_scc1 %s', top)
    stamp(A)
    for n in range(7 - lag, 8):
        A('s_waitcnt vmcnt(%d)', 16 * (7 - n))
        set_stage(A, n)


def early_w(A):
    vW = 40

    def part_loop(pi, depth, floor):
        lag = (depth - 4) // 4
        stamp(A)
        A('s_mov_b32 s%d, s%d', sC, sC0)
        A('s_mov_b32 s%d, %d', sG, 7 * pi - lag)
        A('s_mov_b32 m0, %d', L_WP[pi])
        top = A.label('WL')
        A('%s:', top)
        A('s_mul_i32 s%d, s%d, %d', sT, sC, 64 * 2688)
        A('s_add_u32 s%d, s%d, %d', sT, sT, (1, 2, 0)[pi] * 896)
        A('s_max_i32 s%d, s%d, %d', sT2, sG, floor)
        A('s_waitcnt vmcnt(%d)', depth - 4)
        sig_dyn(A, sT2)
        for u in range(4):
            A('buffer_load_dwordx4 v%d, s[%d:%d], s%d offen offset:%d lds', vW + u, SW, SW + 3, sT, u * 1024)
        A('s_add_u32 m0, m0, 4096')
        nb = A.label('NB')
        A('s_cmp_lg_u32 s%d, 0', sG)
        A('s_cbranch_scc1 %s', nb)
        A('s_barrier')
        A('%s:', nb)
        rot_next(A)
        A('s_add_u32 s%d, s%d, 1', sG, sG)
        A('s_cmp_lt_i32 s%d, %d', sG, 7 * pi + 7 - lag)
        A('s_cbranch_scc1 %s', top)
        return lag
    lag = part_loop(0, E('WDEPTH', 12), 0)
    for n in range(7 - lag, 8):
        A('s_waitcnt vmcnt(%d)', 4 * (7 - n))
        set_stage(A, n)


def gen_h0(A):
    St = Stream(A, 4, E('WDEPTH2', 24), 7)
    vW, vW128, vXo, vW256 = 36, 12, 16, 20
    q4 = lambda b: [b, b + 1, b + 2, b + 3]
    for u in range(4):
        A('v_mov_b32 v%d, v%d', vW + u, 40 + u)
    rest_srds(A)
    off128(A, vW128)
    off256(A, vW256)
    A('s_lshl_b32 s%d, s%d, 7', sB, sNB)
    sR1, sRO = sG, sKH
    rot_calc(A, sR1, 'w1')
    rot_calc(A, sRO, 'wo')
    sBK, sBS = [8, 9], 10
    blk_init(A, sBK[0], sBS, 0)
    blk_init(A, sBK[1], sBS, 1)

    def wpart(pi):
        wait_stage(A, pi)
        if pi == 1 and E('XG2', 4) >= 0:
            wait_lp(A, ('x', E('XG2', 4)))
        stamp(A)
        if E('W4PRIO', -1) >= 0:
            A('s_setprio %d', E('W4PRIO', -1))
        for i in range(7):
            St.depth = E('WVDEPTH', 24) if (pi == 1 or i >= 3) else E('WDEPTH2', 24)
            rot_idx(A, sT, sC0, i, 7)
            A('s_mul_i32 s%d, s%d, %d', sT, sT, 64 * 2688)
            if pi == 1:
                A('s_add_u32 s%d, s%d, %d', sT, sT, 2 * 896)
            St.dma4(L_WP[pi] + i * 4096, q4(vW), SW)
            St.done(('W', pi, i))

    def wq():
        wpart(2)
    wpart(1)
    St.drain_to(E('WVKEEP', 7))
    lend = A.label('LEND')
    act = A.label('ACT')
    A('s_cmp_lt_u32 s%d, 28', sI)
    A('s_cbranch_scc1 %s', act)
    keep, n0 = St.save(), _st['n']
    wq()
    St.drain()
    St.restore(keep)
    St.n = 14
    if E('TOUCH', 1):
        def touch(srd_, base, per_xcd, n):
            A('s_mul_i32 s%d, s%d, %d', sT, sXCD, per_xcd)
            A('s_sub_u32 s%d, s%d, 28', sT2, sI)
            A('s_mul_i32 s%d, s%d, %d', sT2, sT2, n * 8192)
            A('s_add_u32 s%d, s%d, s%d', sT, sT, sT2)
            A('s_add_u32 s%d, s%d, %d', sT, sT, base)
            A('s_mov_b32 s%d, %d', sC, n)
            lo = A.label('T')
            A('%s:', lo)
            A('buffer_load_dword v%d, v%d, s[%d:%d], s%d offen sc1', vW + 1, vW, srd_, srd_ + 3, sT)
            A('s_add_u32 s%d, s%d, 8192', sT, sT)
            A('s_waitcnt vmcnt(%d)', E('TDEPTH', 6))
            A('s_sub_u32 s%d, s%d, 1', sC, sC)
            A('s_cmp_lg_u32 s%d, 0', sC)
            A('s_cbranch_scc1 %s', lo)
        A('v_lshlrev_b32 v%d, 7, v%d', vW, vL)
        if E('W2M', 1) == 2:
            touch(SW2, 0, 4 * 7 * 8192, 7)
        if E('TEARLY', 0):
            wait_stage(A, 3, (5, 6), sleep=2)
        else:
            wait_stage(A, C0 + 5, sleep=2)
        stamp(A)
        if HLATE and not WTO:
            touch(SWS, WS_HB, 262144, 8)
        if E('W2M', 1) == 1:
            touch(SW2, 0, 4 * 7 * 8192, 7)
        stamp(A)
        if not WT1:
            touch(SWS, WS_H1B, 8 * 112 * 1024, 28)
        if WT1 == 2:
            A('s_lshl2_add_u32 s%d, s%d, s%d', sG, sXCD, sI)
            A('s_sub_u32 s%d, s%d, 28', sG, sG)
            A('s_and_b32 s%d, s%d, 1', sT, sG)
            A('s_xor_b32 s%d, s%d, 1', sT, sT)
            A('s_lshl_b32 s%d, s%d, 13', sT, sT)
            A('s_mul_i32 s%d, s%d, %d', sT2, sG, 224 * 1024)
            A('s_add_u32 s%d, s%d, s%d', sT, sT, sT2)
            A('s_add_u32 s%d, s%d, %d', sT, sT, WS_H1B)
            for b in range(14):
                A('buffer_load_dword v%d, v%d, s[%d:%d], s%d offen sc1', vW + 1, vW, SWS, SWS + 3, sT)
                A('s_add_u32 s%d, s%d, 16384', sT, sT)
                A('s_waitcnt vmcnt(%d)', E('TDEPTH', 6))
        stamp(A)
        if E('W2WARM', 0):
            touch(SW2, 0, 0, 49)
        stamp(A)
        if E('WB3', 0):
            tag_compute(A)
            skipw = A.label('NW')
            A('s_cmp_lg_u32 s%d, 28', sI)
            A('s_cbranch_scc1 %s', skipw)
            A('s_lshl_b32 s%d, s%d, 9', sC, sXCD)
            A('s_add_u32 s%d, s%d, %d', sC, sC, F3)
            poll_global(A, sC, 0x3fff3fff3fff3fff)
            A('s_add_u32 s%d, s%d, 256', sC, sC)
            poll_global(A, sC, 0x3fff3fff3fff3fff)
            if E('WB3SLP', 0):
                A('s_sleep %d', E('WB3SLP', 0))
            A('buffer_wbl2 sc1')
            A('s_waitcnt vmcnt(0)')
            A('%s:', skipw)
        if E('H1PF', 0) and WT1:
            tag_compute(A)
            A('s_lshl2_add_u32 s%d, s%d, s%d', sG, sXCD, sI)
            A('s_sub_u32 s%d, s%d, 28', sG, sG)
            A('s_lshl_b32 s%d, s%d, 8', sM0, sG)
            A('s_add_u32 s%d, s%d, %d', sM0, sM0, F4)
            A('v_lshlrev_b32 v%d, 2, v%d', vW + 2, vL)
            A('s_bitcmp1_b32 s%d, 0', sG)
            A('s_mov_b32 s8, 0x0f0f0f0f')
            A('s_mov_b32 s9, 0x000f0f0f')
            A('s_cselect_b32 s8, 0xf0f0f0f0, s8')
            A('s_cselect_b32 s9, 0x00f0f0f0, s9')
            for ph in range(E('H1PF', 0)):
                lo, done = A.label('P'), A.label('PD')
                if ph == 0:
                    A('s_mov_b64 exec, s[8:9]')
                else:
                    A('s_mov_b32 exec_hi, 0xffffff')
                A('%s:', lo)
                A('buffer_load_dword v%d, v%d, s[%d:%d], s%d offen sc1', vT1, vW + 2, SWS, SWS + 3, sM0)
                A('s_waitcnt vmcnt(0)')
                A('v_cmp_ne_u32 vcc, s%d, v%d', sTAG, vT1)
                spin_guard(A, done)
                again(A, 's_cbranch_vccnz', lo, 2)
                A('%s:', done)
                A('s_mov_b64 exec, -1')
                A('s_and_b32 s%d, s%d, 1', sT, sG)
                if ph:
                    A('s_xor_b32 s%d, s%d, 1', sT, sT)
                A('s_lshl_b32 s%d, s%d, 13', sT, sT)
                A('s_mul_i32 s%d, s%d, %d', sT2, sG, 224 * 1024)
                A('s_add_u32 s%d, s%d, s%d', sT, sT, sT2)
                A('s_add_u32 s%d, s%d, %d', sT, sT, WS_H1B)
                for b in (1, 5, 2, 4, 0, 6, 3):
                    for g_ in range(2):
                        A('s_add_u32 s%d, s%d, %d', sT2, sT, b * 16384 + g_ * 112 * 1024)
                        A('buffer_load_dword v%d, v%d, s[%d:%d], s%d offen sc1', vW + 1, vW, SWS, SWS + 3, sT2)
    _st['n'] = n0
    A('s_branch %s', lend)
    A('%s:', act)

    def w1_off(c):
        rot_idx(A, sT, sR1, c, 7)
        A('s_mul_i32 s%d, s%d, %d', sT, sT, 64 * 3584)
        if not E('AB2', 0) & 2:
            A('s_lshl_b32 s%d, s%d, 8', sT2, sFB)
            A('s_add_u32 s%d, s%d, s%d', sT, sT, sT2)

    def w1_chunk(c):
        w1_off(c)
        for u in range(4):
            St.dma4(w1_slot(c) + u * 4096, q4(vW256), SW1, 16 * 3584 if u < 3 else None)
        St.done(('w1', c), 16)

    def w2_item(n):
        c, kh = n >> 1, n & 1
        A('s_mul_i32 s%d, s%d, %d', sT, sBK[kh], 128 * 896)
        if not E('AB2', 0) & 4:
            A('s_add_u32 s%d, s%d, s%d', sT, sT, sB)
        if kh or (c & 1):
            A('s_add_u32 s%d, s%d, %d', sT, sT, (kh * 896 + (c & 1) * 64) * 896)
        if c & 1:
            blk_next(A, sBK[kh], sBS)
        for u in range(2):
            St.dma4(w2_slot(n) + u * 4096, q4(vW128), SW2, 32 * 896 if u < 1 else None)
        St.done(('w2', n), 8)

    SR = [24, 28] + list(range(40, 256, 4))

    def staged(c0=0, c1=3):
        for u in range(4 * c0, 4 * c1):
            St.depth = min(E('WDEPTH2', 24), E('WVDEPTH', 24) + 4 * (u + 1 - 4 * c0))
            if u % 4 == 0:
                w1_off((0 if LATE else 4) + u // 4)
            reg4(St, SR[8 + 4 * u:12 + 4 * u], q4(vW256), SW1, 16 * 3584)

    def wo():
        St.drain_to(3)
        wait_stage(A, 3)
        wait_word(A, 5, 1)
        stamp(A)
        for c in range(7):
            rot_idx(A, sC, sRO, c, 7)
            A('s_mul_i32 s%d, s%d, %d', sT, sC, 64 * 896)
            if not E('AB2', 0) & 1:
                A('s_add_u32 s%d, s%d, s%d', sT, sT, sB)
            A('s_lshl_b32 s%d, s%d, 13', sC, sC)
            for u in range(2):
                St.dma4((sC, L_A + u * 4096), q4(vW128), SWO, 32 * 896 if u < 1 else None)
            if c == 2:
                St.depth = E('LDEPTH', 32)
        St.done('wo')
    staged(0, E('NSQ', 2))
    wq()
    staged(E('NSQ', 2), 3)
    wo()
    stamp(A)
    wait_stage(A, 2, (5, 6))
    stamp(A)
    if LATE:
        n3 = St.n
        St.n += 3
        w1_chunk(3)
        St.items, it3 = St.items[:-1], St.items[-1]
        St.drain()
        St.wait_to(16)
        St.n = n3
        for c in range(3):
            spill(St, ('w1', c), SR[8 + 16 * c:24 + 16 * c], w1_slot(c))
        St.n += 1
        St.items = [it3]
        St.drain()
        stamp(A)
        wait_stage(A, C0 + 3)
        wait_word(A, 7, 9)
        St.n += 1
        LP['wqfree'] = (4, St.n)
        set_stage(A, St.n)
        if LATE == 3:
            St.depth = E('LATEDEPTH', 20)
            w1_chunk(4)
        wait_stage(A, 1, base=M_CP)
        if LATE == 1:
            wait_stage(A, 1, base=M_LD)
        elif LATE == 2:
            wait_stage(A, 3, (5, 6))
        St.depth = E('LATEDEPTH', 20)
        for c in ((5, 6) if LATE == 3 else (4, 5, 6)):
            w1_chunk(c)
        St.drain()
    else:
        St.depth = E('CDEPTH', E('LDEPTH', 32))
        for c in range(4):
            w1_chunk(c)
        St.drain()
        St.wait_to(0)
        stamp(A)
        wait_stage(A, C0 + 3)
        wait_word(A, 7, 9)
        spill(St, ('w1', 4), SR[8:24], w1_slot(4))
        wait_stage(A, 1, base=M_CP)
        spill(St, ('w1', 5), SR[24:40], w1_slot(5))
        spill(St, ('w1', 6), SR[40:56], w1_slot(6))
    stamp(A)
    wait_stage(A, C0 + 8, sleep=2)
    wait_lp(A, ('h', E('W2AFTER', 2), E('W2AFTERQ', 1)), 1)
    stamp(A)
    St.depth = E('W2DEPTH', 32)
    A('s_mov_b32 s%d, 0', sXB)
    for n in range(28):
        if n in W2GATE:
            wait_stage(A, W2GATE[n] // 2, base=M_LD, cache=sXB)
        if n == 4:
            wait_stage(A, 5, (5, 6))
        if n == 19:
            stamp(A)
            St.depth = E('W2DEPTH3', 32)
        if n >= 19:
            m = W2RE[n]
            wait_stage(A, C0 + 13 + (m >> 1), (0, 1) if (m & 1) == 0 else (2, 3))
        w2_item(n)
    St.drain()
    stamp(A)
    A('%s:', lend)
    A('s_waitcnt lgkmcnt(0)')
    stamp_flush(A)
    A('s_endpgm')


def gen_h1(A):
    stamp(A)
    rest_srds(A)
    wtr_base(A)
    tag_compute(A)
    def extras():
        if CODEPF & 2:
            code_touch(A, 63)
        if WARM:
            for srd_, size in ((SWO, D * D * 2), (SW1, D * F * 2), (SW2, D * F * 2)):
                A('s_mul_i32 s%d, s2, %d', sT, size // 256)
                A('v_lshlrev_b32 v%d, 7, v%d', vT1, vL)
                A('s_mov_b64 exec, 0x%x', (1 << ((size // 256 + 127) // 128)) - 1) if size // 256 < 4096 else None
                if size // 256 >= 4096:
                    A('s_mov_b32 exec_hi, 0x%x', (1 << ((size // 256 + 127) // 128 - 32)) - 1)
                A('buffer_load_dword v63, v%d, s[%d:%d], s%d offen', vT1, srd_, srd_ + 3, sT)
                A('s_mov_b64 exec, -1')
        if E('FT', 3) & 2:
            nf = A.label('NF')
            A('s_cmp_lt_u32 s%d, 28', sI)
            A('s_cbranch_scc1 %s', nf)
            A('v_lshlrev_b32 v%d, 7, v%d', vT1, vL)
            A('s_mov_b64 exec, 0xf')
            for base, sh in ((F2, 9), (F3, 9), (F4, 10)):
                A('s_lshl_b32 s%d, s%d, %d', sT, sXCD, sh)
                A('s_add_u32 s%d, s%d, %d', sT, sT, base)
                A('buffer_load_dword v63, v%d, s[%d:%d], s%d offen sc1', vT1, SWS, SWS + 3, sT)
                A('s_mov_b64 exec, 0x%x', 0xf if base == F2 else 0xff)
            A('s_mov_b64 exec, -1')
            A('%s:', nf)
        if E('TOUCH', 1) and not WTO:
            A('s_lshl_b32 s%d, s%d, 18', sT, sXCD)
            A('s_lshl_b32 s%d, s%d, 13', sT2, sI)
            A('s_add_u32 s%d, s%d, s%d', sT, sT, sT2)
            A('v_lshlrev_b32 v%d, 7, v%d', vT1, vL)
            for base in ([WS_OB] if MAP == 0 else []) + ([] if HLATE else [WS_HB]):
                A('s_add_u32 s%d, s%d, %d', sT2, sT, base)
                A('buffer_load_dword v63, v%d, s[%d:%d], s%d offen sc1', vT1, SWS, SWS + 3, sT2)

    if TOUCHAT == 0:
        extras()
    A('s_mov_b32 s%d, 1', sG)
    off256(A, 20)
    rot_calc(A, sXB, 'w1')
    cs, cs2 = A.label('CSL'), A.label('CSM')
    St = Stream(A, 7, E('W7DEPTH', 16), 9)

    def stage7():
        for u in range(4 * W7ST):
            if u % 4 == 0:
                rot_idx(A, sT, sXB, u // 4, 7)
                A('s_mul_i32 s%d, s%d, %d', sT, sT, 64 * 3584)
                A('s_lshl_b32 s%d, s%d, 8', sT2, sFB)
                A('s_add_u32 s%d, s%d, s%d', sT, sT, sT2)
            reg4(St, [64 + 16 * u + 4 * k for k in range(4)], [20, 21, 22, 23], SW1, 16 * 3584)
    A('%s:', cs)
    colsum(A, sG)
    A('s_add_u32 s%d, s%d, 7', sT, sG)
    sig_dyn(A, sT)
    A('s_add_u32 s%d, s%d, 1', sG, sG)
    A('s_cmp_eq_u32 s%d, 3', sG)
    A('s_cbranch_scc1 %s', cs2)
    stamp(A)
    A('s_cmp_ge_u32 s%d, 28', sI)
    A('s_cbranch_scc1 %s', cs)
    stage7()
    A('s_branch %s', cs)
    A('%s:', cs2)
    if TOUCHAT == 2:
        extras()
    stamp(A)
    lend = A.label('LEND')
    A('s_cmp_ge_u32 s%d, 28', sI)
    A('s_cbranch_scc1 %s', lend)
    if W7ST:
        A('s_waitcnt vmcnt(%d)', 1 if TOUCHAT == 2 and not WARM else 0)
        wait_stage(A, 2, (5, 6))
        for c in range(W7ST):
            spill(St, ('w1', c), [64 + 64 * c + 4 * k for k in range(16)], w1_slot(c))
        stamp(A)
    h_stream(A, 9 + W7ST)
    A('%s:', lend)
    A('s_waitcnt lgkmcnt(0)')
    stamp_flush(A)
    A('s_endpgm')


def gen_h23(A):
    vID, vAF, vVF, vAC, vG = 64, 72, 104, 136, 72
    rest_srds(A)
    if SHST:
        a_, b_ = 104, 105
        n6 = A.label('N6')
        A('s_cmp_lg_u32 s%d, 6', sWV)
        A('s_cbranch_scc1 %s', n6)
        A('v_mov_b32 v%d, 0', a_)
        A('v_mov_b32 v%d, 0', b_)
        A('s_lshl_b32 s%d, s%d, 11', sT, sTB)
        A('s_lshl_b32 s%d, s%d, 7', sT2, sH)
        A('s_add_u32 s%d, s%d, s%d', sT, sT, sT2)
        A('s_add_u32 s%d, s%d, %d', sT, sT, FLN)
        A('v_lshlrev_b32 v106, 1, v%d', vL)
        A('s_waitcnt vmcnt(0)')
        for r in range(28):
            A('v_dot2c_f32_bf16 v%d, s%d, v%d', a_, sONES, 76 + r)
            A('v_dot2c_f32_bf16 v%d, v%d, v%d', b_, 76 + r, 76 + r)
        for mod in ('quad_perm:[1,0,3,2]', 'quad_perm:[2,3,0,1]', 'row_half_mirror'):
            for r in (a_, b_):
                A('v_add_f32_dpp v%d, v%d, v%d %s row_mask:0xf bank_mask:0xf', r, r, r, mod)
        A('v_mul_f32 v%d, 0x%x, v%d', a_, 0x3b124925, a_)
        A('v_mul_f32 v%d, 0x%x, v%d', b_, 0x3b124925, b_)
        A('v_fma_f32 v%d, -v%d, v%d, v%d', b_, a_, a_, b_)
        A('v_max_f32 v%d, 0, v%d', b_, b_)
        A('v_add_f32 v%d, 0x%x, v%d', b_, 0x3727c5ac, b_)
        A('v_rsq_f32 v109, v%d', b_)
        A('v_sub_f32 v108, 0, v%d', a_)
        A('s_waitcnt lgkmcnt(0)')
        A('s_mul_i32 s%d, s%d, 0x%x', sT2, sTAG, 1664525)
        A('s_add_u32 s%d, s%d, 0x%x', sT2, sT2, 1013904223)
        A('v_mov_b32 v110, s%d', sT2)
        A('v_mov_b32 v111, s%d', sT2)
        A('s_mov_b32 exec_lo, 0x01010101')
        A('s_mov_b32 exec_hi, 0x01010101')
        A('buffer_store_dwordx4 v[108:111], v106, s[%d:%d], s%d offen sc1', SWS, SWS + 3, sT)
        A('s_mov_b64 exec, -1')
        stamp(A, 'ln')
        A('%s:', n6)
    sTL = sKH
    A('s_sub_u32 s%d, s%d, 5', sTL, sWV)
    skip = A.label('NOST')
    A('s_cmp_eq_u32 s%d, 1', sTL)
    A('s_cbranch_scc1 %s', skip)
    A('s_mul_i32 s%d, s%d, 1568', sT, sH)
    A('s_mov_b32 m0, %d', L_PHI)
    A('buffer_load_dwordx4 v%d, s[%d:%d], s%d offen lds', vO, SP, SP + 3, sT)
    A('buffer_load_dwordx4 v%d, s[%d:%d], s%d offen offset:1024 lds', vO, SP, SP + 3, sT)
    if CODEPF & 1:
        code_touch(A, 72)
    A('%s:', skip)
    if E('TLB', 0):
        A('v_lshlrev_b32 v%d, 20, v%d', vT1, vL)
        A('s_lshl_b32 s%d, s%d, 7', sT, sI)
        for srd_ in (SWS, SOUT, SWO, SW1, SW2):
            A('buffer_load_dword v73, v%d, s[%d:%d], s%d offen', vT1, srd_, srd_ + 3, sT)
    wtr_base(A)
    sel_frags(A, vID)
    sT16 = sZA
    tag_compute(A, sT16)
    if FAST:
        skip = A.label('NORG')
        A('s_cmp_eq_u32 s%d, 0', sTL)
        A('s_cbranch_scc1 %s', skip)
        A('s_getreg_b32 s%d, hwreg(HW_REG_XCC_ID)', sT2)
        A('s_and_b32 s%d, s%d, 15', sT2, sT2)
        A('s_add_u32 s%d, s%d, s%d', sT2, sT2, sTAG)
        A('v_mov_b32 v%d, s%d', vT0, sT2)
        A('s_lshl_b32 s%d, s%d, 7', sT, sXCD)
        A('s_lshl_b32 s%d, s%d, 2', sT2, sI)
        A('s_add_u32 s%d, s%d, s%d', sT, sT, sT2)
        A('s_add_u32 s%d, s%d, %d', sT, sT, FREG)
        A('s_mov_b64 exec, 1')
        A('buffer_store_dword v%d, v%d, s[%d:%d], s%d offen sc1', vT0, vO, SWS, SWS + 3, sT)
        A('s_mov_b64 exec, -1')
        A('%s:', skip)
    six, both = A.label('SIX'), A.label('BOTH')
    A('s_cmp_eq_u32 s%d, 1', sTL)
    A('s_cbranch_scc1 %s', six)
    colsum(A, sTL)
    A('s_waitcnt vmcnt(0)')
    A('s_branch %s', both)
    A('%s:', six)
    if SHST:
        A('s_lshl_b32 s%d, s%d, 11', sC, sTB)
        A('s_add_u32 s%d, s%d, %d', sC, sC, FLN)
        A('v_lshlrev_b32 v84, 3, v%d', vL)
        A('v_add_u32 v84, %d, v84', L_EX + 1024)
        A('v_lshlrev_b32 v85, 2, v%d', vL)
        A('v_add_u32 v85, %d, v85', L_RSTD)
        lo, done = A.label('P'), A.label('PD')
        A('%s:', lo)
        for u in range(2):
            A('buffer_load_dwordx4 %s, v%d, s[%d:%d], s%d offen offset:%d sc1', v(76 + 4 * u, 4), vO, SWS, SWS + 3, sC,
              u * 1024)
        A('s_waitcnt vmcnt(0)')
        A('v_cmp_ne_u32 vcc, s%d, v78', sTAG)
        A('v_cmp_ne_u32 s[4:5], s%d, v82', sTAG)
        spin_guard(A, done)
        A('s_or_b64 vcc, vcc, s[4:5]')
        again(A, 's_cbranch_scc1', lo, E('LNSLP', 2))
        A('%s:', done)
        for u in range(2):
            A('ds_write_b64 v84, v[%d:%d] offset:%d', 76 + 4 * u, 77 + 4 * u, u * 512)
            A('ds_write_b32 v85, v%d offset:%d', 77 + 4 * u, u * 256)
        set_stage(A, 1)
        stamp(A, 'ln')
    if E('IW', 6):
        ni = A.label('NI')
        A('s_cmp_lt_u32 s%d, 28', sI)
        A('s_cbranch_scc1 %s', ni)
        if E('IWAT', -1) >= 1:
            wait_lp(A, ('x', E('IWAT', -1)), 1)
        A('s_lshl2_add_u32 s%d, s%d, s%d', sC, sXCD, sI)
        A('s_sub_u32 s%d, s%d, 28', sC, sC)
        A('v_lshlrev_b32 v%d, 7, v%d', vT1, vL)
        for bit, srd_, n in ((4, SW, 5), (1, SW1, 7), (2, SWO, 2)):
            if E('IW', 6) & bit:
                A('s_mul_i32 s%d, s%d, %d', sT, sC, n * 8192)
                for u in range(n):
                    A('buffer_load_dword v73, v%d, s[%d:%d], s%d offen', vT1, srd_, srd_ + 3, sT)
                    A('s_add_u32 s%d, s%d, 8192', sT, sT)
        A('%s:', ni)
    if FAST:
        wait_lp(A, ('x', 6), 2)
        fast_check(A)
        A('v_mov_b32 v%d, s%d', vT0, sFASTF)
        A('ds_write_b32 v%d, v%d offset:%d', vMI, vT0, M_FAST)
    A('%s:', both)
    set_stage(A, 1)
    stamp(A)
    A('s_lshl_b32 s%d, s%d, 11', sT2, sTL)
    A('v_add_u32 v%d, s%d, v%d', vTT, sT2, vO)
    A('v_add_u32 v%d, %d, v%d', vTT + 1, L_KVA, vTT)
    A('v_add_u32 v%d, %d, v%d', vTT + 2, L_KVV, vO)
    A('s_lshl_b32 s%d, s%d, 16', sXB, sH)
    A('s_add_u32 s%d, s%d, s%d', sXB, sXB, sT2)
    A('s_add_u32 s%d, s%d, %d', sXB, sXB, WS_KVP)
    A('s_lshl_b32 s%d, s%d, 12', sB, sTB)
    A('s_add_u32 s%d, s%d, s%d', sB, sB, sXB)
    A('s_lshl_b32 s%d, s%d, 1', sM0, sH)
    A('s_add_u32 s%d, s%d, s%d', sM0, sM0, sTL)
    FSH = E('F1SH', 8)
    A('s_lshl_b32 s%d, s%d, %d', sM0, sM0, 4 + FSH)
    A('s_add_u32 s%d, s%d, %d', sM0, sM0, F1)
    A('s_lshl_b32 s%d, s%d, 2', sFL, sTB)
    A('s_add_u32 s%d, s%d, s%d', sFL, sFL, sM0)
    A('s_lshl_b32 s%d, s%d, %d', sT, sTB, FSH)
    A('s_add_u32 s%d, s%d, s%d', sM0, sM0, sT)
    A('s_add_u32 s%d, s%d, s%d', sPC, SWS, sM0)
    A('s_addc_u32 s%d, s%d, 0', sPC + 1, SWS + 1)
    if E('FT', 3) & 1:
        A('s_load_dword s%d, s[%d:%d], 0 glc', sZB, sPC, sPC + 1)
    A('v_lshlrev_b32 v%d, %d, v%d', vXA, FSH, vL)
    A('v_lshlrev_b32 v%d, 2, v%d', vXA + 1, vL)
    vTA = 152
    wait_stage(A, C0)
    for k in range(8):
        A('ds_read_b128 %s, v%d offset:%d', v(vVF + 4 * k, 4), vTT + 1, (k >> 1) * 4096 + (k & 1) * 1024)
    for k in range(8):
        A('s_waitcnt lgkmcnt(%d)', 7 - k)
        mfma(A, vTA + 16 * (k >> 1), vVF + 4 * k, vID + 4 * (k & 1), (k & 1) == 0)
    for w in range(4):
        cvt8(A, vAF + 8 * w, vTA + 16 * w)

    def f1_hint(pos):
        if pos == (E('FPOS', 0) if E('TAGS', 1) else 0):
            A('s_mov_b64 exec, 0xffff')
            A('buffer_store_dword v%d, v%d, s[%d:%d], s%d offen sc1', vTAG, vXA, SWS, SWS + 3, sFL)
            A('s_mov_b64 exec, -1')
    f1_hint(4)
    if E('KVP', 1):
        HELP['hot'] = True
        for j, w in enumerate((0, 2, 1, 3)):
            def v_reads():
                for q in range(2):
                    A('ds_read_b128 %s, v%d offset:%d', v(vVF + 8 * w + 4 * q, 4), vTT + 2, w * 4096 + q * 1024)
                return 2
            wait_word(A, w, C0 + 1, body=v_reads, sleep=1 if j == 0 else 0)
            if j == 3:
                stamp(A)
                f1_hint(2)
            if j == 0:
                f1_hint(3)
            for q in range(2):
                A('s_waitcnt lgkmcnt(%d)', 1 - q)
                mfma(A, vAC, vAF + 8 * w + 4 * q, vVF + 8 * w + 4 * q, j == 0 and q == 0)
        HELP['hot'] = False
    else:
        def v_reads():
            for k in range(8):
                A('ds_read_b128 %s, v%d offset:%d', v(vVF + 4 * k, 4), vTT + 2, (k >> 1) * 4096 + (k & 1) * 1024)
            return 8
        wait_stage(A, C0 + 1, body=v_reads)
        stamp(A)
        for k in range(8):
            A('s_waitcnt lgkmcnt(%d)', 7 - k)
            mfma(A, vAC, vAF + 4 * k, vVF + 4 * k, k == 0)
    set_stage(A, 2)
    cvt8(A, vAF, vAC)
    TAGS = E('TAGS', 1)
    if TAGS:
        for q in range(2):
            A('v_and_b32 v%d, 0xffff, v%d', vAF + 4 * q + 3, vAF + 4 * q + 3)
            A('v_or_b32 v%d, s%d, v%d', vAF + 4 * q + 3, sT16, vAF + 4 * q + 3)
    f1_hint(1)
    pub_stores(A, [st4(vAF + 4 * q, sB, q * 1024) for q in range(2)], MAP == 3)
    if not TAGS:
        A('s_waitcnt vmcnt(0)')
    f1_hint(0)
    stamp(A)
    sRDY, sPND, sRET = sHI, sHI + 1, sPADL
    base = 68 if STAMPS else 72
    pol = A.label('POLL')
    B = sub(A)
    lo, out = B.label('P'), B.label('PD')
    B('%s:', pol)
    B('%s:', lo)
    if E('PSLEEP', 0):
        B('s_sleep %d', E('PSLEEP', 0))
    if E('SPOLL', 1) and MAP == 0:
        B('s_load_dwordx16 s[%d:%d], s[%d:%d], 0 glc', base, base + 15, sPC, sPC + 1)
        B('s_mov_b32 s%d, 0', sRDY)
        B('s_waitcnt lgkmcnt(%d)', E('PPIPE', 8))
        for p_ in range(15, -1, -1):
            B('s_cmp_eq_u32 s%d, s%d', base + p_, sTAG)
            B('s_addc_u32 s%d, s%d, s%d', sRDY, sRDY, sRDY)
    else:
        B('s_mov_b64 exec, 0xffff')
        B('buffer_load_dword v%d, v%d, s[%d:%d], s%d offen sc1', vT0, vXA + 1, SWS, SWS + 3, sM0)
        B('s_waitcnt vmcnt(0)')
        B('v_cmp_eq_u32 vcc, s%d, v%d', sTAG, vT0)
        B('s_mov_b64 exec, -1')
        B('s_mov_b32 s%d, vcc_lo', sRDY)
    B('s_sub_u32 s%d, s%d, 1', sSPIN, sSPIN)
    B('s_cselect_b32 s%d, -1, s%d', sRDY, sRDY)
    B('s_and_b32 s%d, s%d, s%d', sRDY, sRDY, sPND)
    B('s_cbranch_scc0 %s', lo)
    B('s_setpc_b64 s[%d:%d]', sRET, sRET + 1)
    over = A.label('OV')
    A('s_not_b32 s%d, s%d', base, sTAG)
    A('s_mov_b32 s%d, s%d', base + 1, base)
    for k in range(2, 16, 2):
        A('s_mov_b64 s[%d:%d], s[%d:%d]', base + k, base + k + 1, base, base + 1)
    A('s_branch %s', over)
    A.lines += B.lines
    A('%s:', over)
    A('s_mov_b32 s%d, 0', sRDY)
    A('s_mov_b32 s%d, 0xffff', sPND)
    vCK = vXA + 2
    A('v_mov_b32 v%d, 0', vCK)
    A('s_nop 1')
    vG = [72 + 4 * k for k in range(16)] + [152 + 4 * k for k in range(16)]
    GD = E('GLAG', 12)

    def gmm(k, issued):
        for q in range(2):
            A('s_waitcnt vmcnt(%d)', 2 * issued - (2 * k + q) - 1)
            mfma(A, vAC, vID + 4 * q, vG[2 * k + q], k == 0 and q == 0)
            if TAGS:
                A('v_xor_b32 v%d, s%d, v%d', vCK + 1, sT16, vG[2 * k + q] + 3)
                A('v_or_b32 v%d, v%d, v%d', vCK, vCK, vCK + 1)
    for k in range(16):
        A('s_getpc_b64 s[%d:%d]', sRET, sRET + 1)
        A('s_cmp_eq_u32 s%d, 0', sRDY)
        A('s_cbranch_scc1 %s', pol)
        A('s_ff1_i32_b32 s%d, s%d', sT, sRDY)
        A('s_bitset0_b32 s%d, s%d', sRDY, sT)
        A('s_bitset0_b32 s%d, s%d', sPND, sT)
        A('s_lshl_b32 s%d, s%d, 12', sT, sT)
        A('s_add_u32 s%d, s%d, s%d', sT, sT, sXB)
        if E('ABL', 0) & 32:
            A('s_mov_b32 s%d, s%d', sT, sB)
        for q in range(2):
            A('buffer_load_dwordx4 %s, v%d, s[%d:%d], s%d offen offset:%d sc1', v(vG[2 * k + q], 4), vO, SWS, SWS + 3,
              sT, q * 1024)
        if k == E('GST', 15):
            stamp(A)
        if k >= GD:
            gmm(k - GD, k + 1)
    for k in range(16 - GD, 16):
        gmm(k, 16)
    if TAGS:
        ok = A.label('TOK')
        A('v_cmp_lt_u32 vcc, 0xffff, v%d', vCK)
        spin_guard(A, ok)
        A('s_nop 15')
        A('s_cbranch_vccnz %s', over)
        A('%s:', ok)
    A('v_add_u32 v%d, %d, v%d', vTT, L_EX, vTT)
    cvt8(A, 72, vAC)
    for q in range(2):
        A('ds_write_b128 v%d, %s offset:%d', vTT, v(72 + 4 * q, 4), q * 1024)
    set_stage(A, 3)
    stamp(A)
    lend = A.label('LEND')
    A('s_cmp_ge_u32 s%d, 28', sI)
    A('s_cbranch_scc1 %s', lend)
    if E('ITOUCH', 0):
        A.lines.append(';ITOUCH')
    A('v_lshlrev_b32 v%d, 2, v%d', vCA, vL)
    A('v_add_u32 v%d, %d, v%d', vTT + 2, L_EX, vO)
    wait_stage(A, C0 + 7, sleep=2)
    HELP['hot'] = bool(E('STHOT', 0))
    l5 = A.label('S5')
    A('s_cmp_eq_u32 s%d, 0', sTL)
    A('s_cbranch_scc1 %s', l5)
    for gi in (0, 2, 1, 3):
        if gi == 1:
            A('s_branch %s', lend)
            A('%s:', l5)
        wait_lp(A, ('hs', gi), 1)
        if E('STPRIO', 2) != 2:
            A('s_setprio %d', E('STPRIO', 2))
        base = L_SC0 + gi * 4096
        for q in range(7):
            A('ds_read2st64_b32 v[%d:%d], v%d offset0:%d offset1:%d', 72 + 2 * q, 73 + 2 * q, vCA,
              base // 256 + 2 * q, base // 256 + 2 * q + 1)
        A('s_waitcnt lgkmcnt(0)')
        for q in range(2, 14):
            A('v_add_f32 v%d, v%d, v%d', 72 + (q & 1), 72 + (q & 1), 72 + q)
        A('v_add_f32 v%d, v72, v73', vTT)
        ln_finish(A, vTT, vTT + 1, vNM, vRS)
        hilo_m(A, vNM, 88, vT0)
        A('v_mul_f32 v90, v%d, v%d', vTT + 1, vRS)
        A('v_mul_f32 v91, 0x%x, v%d', LOG2E ^ 0x80000000, vRS)
        A('ds_write_b128 v%d, v[88:91] offset:%d', vTT + 2, gi * 1024)
        set_stage(A, 4 + gi // 2)
    HELP['hot'] = False
    A('%s:', lend)
    A('s_waitcnt lgkmcnt(0)')
    stamp_flush(A)
    A('s_endpgm')


def refresh_routines(A):
    for w in (7, 4):
        A('REFRESH_%d:', w)
        if w == 5:
            A('ds_read_b32 v%d, v%d', vPW, vCA)
        else:
            A('ds_read_b32 v%d, v%d offset:%d', vPW, vMI, M_PW + 4 * w)
        if E('CSLP', 0):
            A('s_mov_b32 vcc_hi, s%d', CACHE[w])
        A('s_waitcnt lgkmcnt(0)')
        A('v_readfirstlane_b32 s%d, v%d', CACHE[w], vPW)
        if E('CSLP', 0):
            A('s_cmp_lg_u32 vcc_hi, s%d', CACHE[w])
            A('s_cbranch_scc1 REFD_%d', w)
            A('s_sleep %d', E('CSLP', 0))
            A('REFD_%d:', w)
        A('s_sub_u32 s%d, s%d, 1', sSPIN, sSPIN)
        A('s_cselect_b32 s%d, -1, s%d', CACHE[w], CACHE[w])
        A('s_setpc_b64 s[%d:%d]', sPC, sPC + 1)


def gen_compute(A):
    vPH, vID, vWF, vAC, vPK = 40, 48, 56, 88, 120
    vMF, vCF = 136, 140
    vE = vWF
    vAC2 = vAC + 16
    vX = vXR
    A('s_setprio %d', E('CPRIO', 1))
    rest_srds(A)
    A('s_lshl_b32 s%d, s%d, 12', sM0, sWV)
    A('v_and_b32 v%d, 31, v%d', vT0, vL)
    A('v_lshlrev_b32 v%d, 7, v%d', vTT, vT0)
    A('v_add_u32 v%d, s%d, v%d', vTT, sM0, vTT)
    A('v_bfe_u32 v%d, v%d, 1, 3', vT0, vL)
    A('v_lshrrev_b32 v%d, 5, v%d', vT1, vL)
    A('v_xor_b32 v%d, v%d, v%d', vT0, vT0, vT1)
    for q in range(4):
        A('v_xor_b32 v%d, %d, v%d', vXA + q, 2 * q, vT0)
        A('v_lshl_add_u32 v%d, v%d, 4, v%d', vXA + q, vXA + q, vTT)
    wtr_base(A)
    for r in (vSM, vSM + 1, vSQ, vSQ + 1, vMF + 2, vMF + 3, vCF + 2, vCF + 3):
        A('v_mov_b32 v%d, 0', r)
    A('s_mov_b32 s%d, 0', sHI)
    A('s_mov_b32 s%d, -1', sHI + 1)
    A('s_bitcmp1_b32 s%d, 0', sH)
    A('s_cselect_b32 s%d, 0xf, 0xf0000000', sPADL)
    A('s_mov_b32 s%d, s%d', sPADL + 1, sPADL)
    A('s_cselect_b32 s%d, -1, 0', sZA)
    A('s_mov_b32 s%d, 0', sZA + 1)
    A('s_mov_b32 s%d, 0', sZB)
    A('s_cselect_b32 s%d, 0, -1', sZB + 1)
    A('s_cselect_b64 s[%d:%d], -1, 0', sODD, sODD + 1)
    vPA = vRA
    A('v_bfe_u32 v%d, v%d, 2, 2', vT0, vL)
    A('v_lshrrev_b32 v%d, 5, v%d', vT1, vL)
    A('v_lshl_add_u32 v%d, v%d, 2, v%d', vT0, vT1, vT0)
    A('v_mul_u32_u24 v%d, 56, v%d', vT0, vT0)
    A('v_and_b32 v%d, 3, v%d', vT1, vL)
    A('v_bfe_u32 v%d, v%d, 4, 1', vTT, vL)
    A('v_lshl_add_u32 v%d, v%d, 2, v%d', vT1, vTT, vT1)
    A('v_min_u32 v%d, 6, v%d', vT1, vT1)
    A('v_lshl_add_u32 v%d, v%d, 3, v%d', vT0, vT1, vT0)
    A('s_and_b32 s%d, s%d, 1', sT, sH)
    A('s_mul_i32 s%d, s%d, 224', sT, sT)
    A('s_sub_u32 s%d, %d, s%d', sT, L_PHI, sT)
    A('v_add_u32 v%d, s%d, v%d', vPA, sT, vT0)
    tag_compute(A)

    def mm1(B, acc, i, q, swap):
        buf = vWF + 16 * (i & 1)
        xf, wf = vX + (4 * i + q) * 4, buf + 4 * q
        if swap:
            mfma(B, acc, xf, wf, i == 0 and q == 0)
        else:
            mfma(B, acc, wf, xf, i == 0 and q == 0)

    def rw2(Q, pi, i, q):
        buf = vWF + 16 * (i & 1)
        for z in range(2):
            Q.op(('w', i, q), 'ds_read_b64_tr_b16 v[%d:%d], v%d offset:%d', buf + 4 * q + 2 * z, buf + 4 * q + 2 * z + 1,
                 vWA + pi, i * 4096 + q * 1024 + z * 256)

    def early(Q, w, reads):
        Q.op('ce', 'ds_read_b32 v%d, v%d offset:%d', vPK_ + 1, vMI, M_PW + 4 * w)
        for r in reads:
            Q.op('ce', r)

    def late(Q, w, n, reads):
        def slow(B, back):
            def body():
                for r in reads:
                    B(r)
                return 0
            wait_word(B, w, n, body=body)
        Q.A = A
        Q.wait('ce')
        A('v_readfirstlane_b32 s%d, v%d', sT, vPK_ + 1)
        A('s_cmp_ge_u32 s%d, %d', sT, n)
        if w == 6:
            ent, back = cold_block(A, slow)
            A('s_cbranch_scc0 %s', ent)
        else:
            back = A.label('LT')
            A('s_cbranch_scc1 %s', back)
            slow(A, back)
        A('%s:', back)

    def cf_rd(pi):
        return 'ds_read_b64 v[%d:%d], v%d offset:%d' % (vCF, vCF + 1, vCA, pi * 512)
    kreads = [cf_rd(0)] + ['ds_read_b64_tr_b16 v[%d:%d], v%d offset:%d' % (
        vPH + 4 * sidx + 2 * z, vPH + 4 * sidx + 2 * z + 1, vPA, (16 * sidx + 8 * z) * 56)
        for sidx in range(2) for z in range(2)]

    vHP, vRX, vRO = 120, 48, 39
    RESAT = E('RESAT', 0)

    def residual():
        A('s_and_b32 s%d, s%d, 1', sG, sWV)
        A('s_lshr_b32 s%d, s%d, 1', sKH, sWV)
        A('s_lshl_b32 s%d, s%d, 1', sT, sTQ)
        A('s_add_u32 s%d, s%d, s%d', sG, sG, sT)
        A('v_and_b32 v%d, 31, v%d', vRO, vL)
        A('v_mul_u32_u24 v%d, 896, v%d', vRO, vRO)
        A('v_lshrrev_b32 v%d, 5, v%d', vT1, vL)
        A('v_lshl_add_u32 v%d, v%d, 4, v%d', vRO, vT1, vRO)
        A('s_mul_i32 s%d, s%d, %d', sT, sG, 32 * 896)
        A('s_lshl_b32 s%d, s%d, 7', sT2, sNB)
        A('s_add_u32 s%d, s%d, s%d', sT, sT, sT2)
        A('s_lshl_b32 s%d, s%d, 6', sT2, sKH)
        A('s_add_u32 s%d, s%d, s%d', sT, sT, sT2)
        A('v_add_u32 v%d, s%d, v%d', vRO, sT, vRO)
        for q in range(2):
            A('buffer_load_dwordx4 %s, v%d, s[%d:%d], 0 offen offset:%d', v(vRX + 4 * q, 4), vRO, SX, SX + 3, q * 32)
    if RESAT == 0:
        residual()
    vXH = vXD
    for q in range(4):
        A('v_add_u32 v%d, 0x10000, v%d', vXH + q, vXA + q)
    Q = LdsQ(A)
    A('v_and_b32 v%d, 31, v%d', vSC, vL)
    A('s_lshl_b32 s%d, s%d, 8', sT, sWV)
    A('s_add_u32 s%d, s%d, %d', sT, sT, L_EX + 1024)
    A('v_lshl_add_u32 v%d, v%d, 3, s%d', vSC, vSC, sT)
    lnread = ['ds_read_b64 v[%d:%d], v%d' % (vNM, vRS, vSC)]
    for i in range(7):
        if i:
            stamp(A, 'k')
        if i == 0:
            A('s_waitcnt vmcnt(%d)', 2 if RESAT == 0 else 0)
        else:
            wait_lp(A, ('x', i))
        stamp(A, 'k')
        if i >= 3:
            stamp(A, 'k2')
        for q in range(4):
            Q.op(('x', i), 'ds_read_b128 %s, v%d offset:%d', v(vX + (4 * i + q) * 4, 4), (vXA if i < 4 else vXH) + q,
                 (i & 3) * 16384)
        if i in (1, 3):
            Q.stage((i + 1) // 2)
        wait_lp(A, ('W', 0, i))
        if i >= 3:
            stamp(A, 'k2')
        if SHST and i == 6:
            early(Q, 6, lnread)
        if SHST and i < 6:
            Q.op('pk2', 'ds_read_b128 v[%d:%d], v%d offset:%d', vTT, vTT + 3, vMI, M_PW + 16)
        for q in range(4):
            if i > 0:
                Q.wait(('w', i - 1, q))
                mm1(A, vAC, i - 1, q, False)
            rw2(Q, 0, i, q)
        if i < 6 and not SHST:
            Q.op('pk2', 'ds_read_b128 v[%d:%d], v%d offset:%d', vTT, vTT + 3, vMI, M_PW + 16)
        if not SHST:
            Q.wait(('x', i))
            for r in range(16):
                x = vX + 16 * i + r
                A('v_dot2c_f32_bf16 v%d, s%d, v%d', vSM + (r & 1), sONES, x)
                A('v_dot2c_f32_bf16 v%d, v%d, v%d', vSQ + (r & 1), x, x)
        if i < 6:
            Q.wait('pk2')
            A('v_readfirstlane_b32 s%d, v%d', sPROG, vTT)
            A('v_readfirstlane_b32 s%d, v%d', sPROG1, vTT + 3)
    stamp(A, 'k2')
    Q.stage(3)
    if SHST:
        late(Q, 6, 1, lnread)
    stamp(A, 'k2')
    early(Q, 5, kreads)
    B = sub(A)
    if SHST:
        pass
    else:
        B('v_add_f32 v%d, v%d, v%d', vSM, vSM, vSM + 1)
        B('v_add_f32 v%d, v%d, v%d', vSQ, vSQ, vSQ + 1)
        B('v_permlane32_swap_b32 v%d, v%d', vSM, vSQ)
        B('v_add_f32 v%d, v%d, v%d', vT0, vSM, vSQ)
        ln_finish(B, vT0, vT1, vNM, vRS)
    hilo_m(B, vNM, vMF, vT0)
    B('v_mul_f32 v%d, 0x%x, v%d', vSC, LOG2E, vRS)
    M = sub(A)
    Q.A = M
    for q in range(4):
        Q.wait(('w', 6, q))
        mm1(M, vAC, 6, q, False)
    A.lines += merge(M.lines, [[l] for l in B.lines], 0, 4)

    stamp(A, 'v')
    stamp(A, 'k2')
    late(Q, 5, 1, kreads)
    stamp(A, 'k2')
    stamp(A)
    stamp(A, 'v')

    def project(mid=None):
        mfma(A, vAC, vCF, vMF)
        if mid:
            mid()
        cvt8(A, vPK, vAC)
        mfma(A, vAC, vPH, vPK, True)
        mfma(A, vAC, vPH + 4, vPK + 4)

    def mid_k():
        A('v_and_b32 v%d, 31, v%d', vT0, vL)
        A('s_lshl_b32 s%d, s%d, 7', sT, sWV)
        A('s_add_u32 s%d, s%d, %d', sT, sT, L_RSTD)
        if not SHST:
            A('v_lshl_add_u32 v%d, v%d, 2, s%d', vT0, vT0, sT)
            A('ds_write_b32 v%d, v%d', vT0, vRS)
        A('v_lshrrev_b32 v%d, 5, v%d', vRA, vL)
        A('v_lshl_add_u32 v%d, v%d, 4, s%d', vRA, vRA, sT)
        for r in (0, 1):
            A('v_cndmask_b32 v%d, v%d, 0, s[%d:%d]', vPH + r, vPH + r, sZA, sZA + 1)
            A('v_cndmask_b32 v%d, v%d, 0, s[%d:%d]', vPH + 6 + r, vPH + 6 + r, sZB, sZB + 1)

    def gemm_head(B, pi):
        Q = LdsQ(B)
        wait_lp(B, ('W', pi, 0))
        for q in range(4):
            rw2(Q, pi, 0, q)
        return Q

    def gemm_part(B, acc, pi, swap, last_stage=None, Q=None):
        if Q is None:
            Q = gemm_head(B, pi)
        for i in range(7):
            if i == 6 and last_stage:
                Q.stage(last_stage)
            if i == 6:
                early(Q, 7, [cf_rd(pi)])
            if pi == 1 and i in (0, 2, 4, 6):
                stamp(B, 'v')
            for q in range(4):
                Q.wait(('w', i, q))
                if q == 0:
                    Q.take(4)
                mm1(B, acc, i, q, swap)
                if i < 6:
                    if q == 0:
                        wait_lp(B, ('W', pi, i + 1))
                        if i < 5:
                            Q.peek(4)
                    rw2(Q, pi, i + 1, q)
        late(Q, 7, 7 + pi, [cf_rd(pi)])

    vOW = vXD
    A('v_add_u32 v%d, s%d, v%d', vOW, sM0, vO)
    A('v_add_u32 v%d, %d, v%d', vOW, L_KVA, vOW)
    project(mid_k)
    stamp(A, 'v')
    B = sub(A)
    softmax_pm(B, vAC, vSC, vPK, vTT)
    A.lines += B.lines[:-30]
    Q = gemm_head(A, 1)
    A.lines += B.lines[-30:]
    for q, src in enumerate((vAC, vAC + 4, vPK, vPK + 4)):
        Q.op('pw', 'ds_write_b128 v%d, %s offset:%d', vOW, v(src, 4), q * 1024)
    Q.stage(C0)
    for q in range(4):
        Q.op('rs', 'ds_read_b128 %s, v%d offset:%d', v(vAC + 4 * q, 4), vRA, q * 32)
    stamp(A, 'v')
    gemm_part(A, vAC2, 1, True, None, Q)
    stamp(A, 'v')

    mfma(A, vAC2, vMF, vCF)
    A('v_mov_b32 v%d, 0x%x', vT1, ONES)
    for r in range(0, 16, 2):
        A('v_pk_mul_f32 v[%d:%d], v[%d:%d], v[%d:%d]', vAC2 + r, vAC2 + r + 1, vAC2 + r, vAC2 + r + 1, vAC + r,
          vAC + r + 1)
    cvt8(A, vPK, vAC2)
    for r in range(8):
        A('v_cndmask_b32 v%d, v%d, v%d, s[%d:%d]', vPK + r, vPK + r, vT1, sPADL, sPADL + 1)
    for q in range(2):
        A('ds_write_b128 v%d, %s offset:%d', vOW, v(vPK + 4 * q, 4), L_KVV - L_KVA + q * 1024)
    set_stage(A, C0 + 1)
    stamp(A)
    stamp(A, 'v')
    gemm_part(A, vAC, 2, False, C0 + 3)

    def unpack_hp(src=120):
        for r in range(8):
            A('v_lshlrev_b32 v%d, 16, v%d', vAC + 2 * r, src + r)
            A('v_and_b32 v%d, 0xffff0000, v%d', vAC + 2 * r + 1, src + r)
    if RESAT == 1:
        residual()
    project()
    softmax_pm(A, vAC, vSC, vPK, vTT)
    vQF = [vAC, vAC + 4, vPK, vPK + 4]
    if RESAT == 2:
        residual()
    stamp(A)
    vW1A = vXA
    A('v_bfe_u32 v%d, v%d, 2, 2', vT0, vL)
    A('v_lshrrev_b32 v%d, 5, v%d', vT1, vL)
    A('v_lshl_add_u32 v%d, v%d, 2, v%d', vT1, vT1, vT0)
    A('v_lshlrev_b32 v%d, 8, v%d', vW1A, vT1)
    A('v_lshlrev_b32 v%d, 7, v%d', vWA, vT1)
    A('v_xor_b32 v%d, s%d, v%d', vT0, sWV, vT0)
    A('v_lshl_add_u32 v%d, v%d, 6, v%d', vW1A, vT0, vW1A)
    A('v_bfe_u32 v%d, v%d, 4, 1', vT1, vL)
    A('v_lshlrev_b32 v%d, 5, v%d', vT1, vT1)
    A('v_and_b32 v%d, 3, v%d', vT0, vL)
    A('v_lshl_add_u32 v%d, v%d, 3, v%d', vT1, vT0, vT1)
    A('v_add_u32 v%d, v%d, v%d', vW1A, vW1A, vT1)
    A('v_add_u32 v%d, 0x8000, v%d', vW1A + 1, vW1A)
    A('v_add_u32 v%d, v%d, v%d', vWA, vWA, vT1)
    A('v_bfe_u32 v%d, v%d, 3, 1', vT1, vL)
    A('v_lshl_add_u32 v%d, v%d, 6, v%d', vWA, vT1, vWA)

    def w1_copy(c):
        wait_lp(A, ('w1', c))
        for q in range(4):
            for z in range(2):
                off = w1_slot(c) + (16 * q + 8 * z) * 256
                base = vW1A
                if off >= 0x8000:
                    off -= 0x8000
                    base += 1
                r = vXR + (4 * c + q) * 4 + 2 * z
                A('ds_read_b64_tr_b16 v[%d:%d], v%d offset:%d', r, r + 1, base, off)

    sCPD = sXB
    A('s_mov_b32 s%d, 0', sCPD)

    def try_copy(block):
        skip = A.label('NC')
        A('s_cmp_lg_u32 s%d, 0', sCPD)
        A('s_cbranch_scc1 %s', skip)
        if not block:
            ow = LP[('w1', 1)][0]
            if block is not None:
                A('ds_read_b32 v%d, v%d offset:%d', vPW + ow - 4, vMI, M_PW + 4 * ow)
                A('s_waitcnt lgkmcnt(0)')
            A('v_readfirstlane_b32 s%d, v%d', CACHE[ow], vPW + ow - 4)
            A('s_cmp_lt_u32 s%d, %d', CACHE[ow], LP[('w1', 1)][1])
            A('s_cbranch_scc1 %s', skip)
        w1_copy(0)
        w1_copy(1)
        A('s_mov_b32 s%d, 1', sCPD)
        A('v_mov_b32 v%d, 1', vT0)
        A('ds_write_b32 v%d, v%d offset:%d', vMY, vT0, M_CP)
        A('%s:', skip)
    vCS = vSQ

    A('s_lshl_b32 s%d, s%d, 2', sFL, sTB)
    A('s_add_u32 s%d, s%d, s%d', sFL, sFL, sWV)
    A('s_lshl_b32 s%d, s%d, 4', sFL, sFL)
    A('s_add_u32 s%d, s%d, s%d', sFL, sFL, sH)
    A('s_lshl_b32 s%d, s%d, 11', sB, sFL)
    A('s_add_u32 s%d, s%d, %d', sB, sB, WS_OB)
    if MAP == 0:
        A('s_lshl_b32 s%d, s%d, 2', sFL, sFL)
        A('s_add_u32 s%d, s%d, %d', sFL, sFL, F2)
    else:
        A('s_lshr_b32 s%d, s%d, 3', sFL, sFL)
        A('s_lshl_b32 s%d, s%d, 10', sFL, sFL)
        A('s_and_b32 s%d, s%d, 7', sT, sH)
        A('s_lshl_b32 s%d, s%d, 2', sT, sT)
        A('s_add_u32 s%d, s%d, s%d', sFL, sFL, sT)
        A('s_add_u32 s%d, s%d, %d', sFL, sFL, F2X)
    vEX = vXD + 1
    A('v_add_u32 v%d, %d, v%d', vEX, L_EX, vO)

    def ex_reads():
        for q in range(4):
            A('ds_read_b128 %s, v%d offset:%d', v(vWF + 4 * q, 4), vEX, q * 1024)
        return 4
    lo, done = A.label('W'), A.label('WD')
    A('%s:', lo)
    A('ds_read_b128 v[%d:%d], v%d offset:%d', vPW, vPW + 3, vMI, M_PW + 16)
    A('ds_read_b32 v%d, v%d offset:%d', vPK_, vMI, M_FAST)
    ex_reads()
    A('s_waitcnt lgkmcnt(4)')
    A('v_readfirstlane_b32 s%d, v%d', sFASTF, vPK_)
    A('v_min_u32 v%d, v%d, v%d', vPW + 1, vPW + 1, vPW + 2)
    A('v_readfirstlane_b32 s%d, v%d', sT, vPW + 1)
    spin_guard(A, done)
    A('s_cmp_ge_u32 s%d, 3', sT)
    A('s_cbranch_scc1 %s', done)
    try_copy(None)
    if E('CSLP', 0):
        A('s_sleep %d', E('CSLP', 0))
    A('s_branch %s', lo)
    A('%s:', done)
    stamp(A)
    for q in range(4):
        A('s_waitcnt lgkmcnt(%d)', 3 - q)
        mfma(A, vAC2, vWF + 4 * q, vQF[q], q == 0)
    A('v_cndmask_b32 v%d, v%d, v%d, s[%d:%d]', vT0, vAC2 + 12, vAC2, sODD, sODD + 1)
    A('v_mov_b32 v%d, v%d', vT1, vT0)
    A('v_permlane32_swap_b32 v%d, v%d', vT0, vT1)
    A('v_cndmask_b32 v%d, v%d, v%d, s[%d:%d]', vTT, vT1, vT0, sODD, sODD + 1)
    A('v_add_f32 v%d, 0x%x, v%d', vTT, 0x358637bd, vTT)
    A('v_rcp_f32 v%d, v%d', vTT, vTT)
    for r in range(0, 16, 2):
        A('v_pk_mul_f32 v[%d:%d], v[%d:%d], v[%d:%d] op_sel_hi:[1,0]', vAC2 + r, vAC2 + r + 1, vAC2 + r, vAC2 + r + 1,
          vTT, vTT + 1)
    cvt8(A, vPK, vAC2)
    for r in (0, 1):
        A('v_cndmask_b32 v%d, v%d, 0, s[%d:%d]', vPK + r, vPK + r, sZA, sZA + 1)
        A('v_cndmask_b32 v%d, v%d, 0, s[%d:%d]', vPK + 6 + r, vPK + 6 + r, sZB, sZB + 1)
    pub_stores(A, [st4(vPK + 4 * q, sB, q * 1024) for q in range(2)], MAP == 0 and not WTO)
    A('s_waitcnt vmcnt(2)')
    for q in range(2):
        A('v_permlane32_swap_b32 v%d, v%d', vRX + 4 * q, vRX + 4 * q + 2)
        A('v_permlane32_swap_b32 v%d, v%d', vRX + 4 * q + 1, vRX + 4 * q + 3)
    unpack_hp(vRX)
    A('s_lshl_b32 s%d, s%d, 6', sT, sKH)
    A('v_xor_b32 v%d, s%d, v%d', vWA, sT, vWA)
    A('v_xor_b32 v%d, 64, v%d', vWA + 1, vWA)
    A('s_mul_i32 s%d, s%d, %d', sT, sKH, 224 * 128)
    A('s_add_u32 s%d, s%d, %d', sT, sT, L_A)
    A('v_add_u32 v%d, s%d, v%d', vWA + 2, sT, vWA)
    A('v_add_u32 v%d, s%d, v%d', vWA + 3, sT, vWA + 1)
    vSW, vSR, vPP = vXA + 2, vXA + 3, vSM
    A('s_and_b32 s%d, s%d, 1', sC, sWV)
    A('s_lshl_b32 s%d, s%d, 12', sC, sC)
    A('v_add_u32 v%d, s%d, v%d', vSW, sC, vO)
    A('s_cmp_eq_u32 s%d, 0', sKH)
    A('s_cselect_b32 s%d, %d, %d', sT, L_SC0 >> 12, L_SC1 >> 12)
    A('s_cselect_b32 s%d, %d, %d', sT2, L_SC1 >> 12, L_SC0 >> 12)
    A('s_lshl_b32 s%d, s%d, 12', sT, sT)
    A('s_lshl_b32 s%d, s%d, 12', sT2, sT2)
    A('v_add_u32 v%d, s%d, v%d', vSR, sT2, vSW)
    A('v_add_u32 v%d, s%d, v%d', vSW, sT, vSW)
    A('v_xor_b32 v%d, 8, v%d', vPP, vMY)
    A('s_lshl_b32 s%d, s%d, 15', sB, sG)
    A('s_lshl_b32 s%d, s%d, 14', sT, sKH)
    A('s_add_u32 s%d, s%d, s%d', sB, sB, sT)
    A('s_add_u32 s%d, s%d, %d', sB, sB, WS_OB)
    if MAP == 0:
        A('s_lshl_b32 s%d, s%d, 6', sC, sG)
        A('s_lshl_b32 s%d, s%d, 5', sT, sKH)
        A('s_add_u32 s%d, s%d, s%d', sC, sC, sT)
        A('s_add_u32 s%d, s%d, %d', sC, sC, F2)
        pub_flag(A, sFL, True)
    else:
        A('s_lshl_b32 s%d, s%d, 11', sC, sG)
        A('s_lshl_b32 s%d, s%d, 10', sT, sKH)
        A('s_add_u32 s%d, s%d, s%d', sC, sC, sT)
        A('s_lshl_b32 s%d, s%d, 7', sT, sNB)
        A('s_add_u32 s%d, s%d, s%d', sC, sC, sT)
        A('s_add_u32 s%d, s%d, %d', sC, sC, F2X)
        A('v_lshlrev_b32 v%d, 7, v%d', vT1, vL)
        if not E('NODRAIN2', 0):
            A('s_waitcnt vmcnt(0)')
        A('s_mov_b64 exec, 0x7f')
        A('buffer_store_dword v%d, v%d, s[%d:%d], s%d offen sc1', vTAG, vT1, SWS, SWS + 3, sFL)
        A('s_mov_b64 exec, -1')
    set_stage(A, C0 + 5)
    stamp(A)
    fin = A.label('FIN')
    A('s_cmp_ge_u32 s%d, 28', sI)
    A('s_cbranch_scc1 %s', fin)

    vB2 = [40 + 4 * k for k in range(8)] + [224 + 4 * k for k in range(8)]
    vWF2 = 72
    vL4, vPF = vNM, vRS
    A('v_lshlrev_b32 v%d, 2, v%d', vL4, vL)

    def f2_load():
        A('s_mov_b64 exec, 0xff')
        A('buffer_load_dword v%d, v%d, s[%d:%d], s%d offen sc1', vPF, vL4, SWS, SWS + 3, sC)
        A('s_mov_b64 exec, -1')
    f2_load()
    sB3, sFL3 = sODD, sODD + 1
    sBL, sFL2, sPF, sBK, sBS, sHB, sEM = 4, 5, 6, 7, 8, 9, 10
    A('s_mul_i32 s%d, s%d, %d', sB3, sTB3, 4 * 112)
    A('s_lshl_b32 s%d, s%d, 3', sT, sFB)
    A('s_add_u32 s%d, s%d, s%d', sB3, sB3, sT)
    A('s_lshl_b32 s%d, s%d, 1', sT, sWV)
    A('s_add_u32 s%d, s%d, s%d', sB3, sB3, sT)
    A('s_lshl_b32 s%d, s%d, 10', sB3, sB3)
    A('s_add_u32 s%d, s%d, %d', sB3, sB3, WS_H1B)
    A('s_add_u32 s%d, s%d, %d', sBL, sB3, 2 * 112 * 1024)
    A('s_lshl_b32 s%d, s%d, 9', sFL3, sTB3)
    A('s_lshl_b32 s%d, s%d, 4', sT, sFB)
    A('s_add_u32 s%d, s%d, s%d', sFL3, sFL3, sT)
    A('s_lshl_b32 s%d, s%d, 2', sT, sWV)
    A('s_add_u32 s%d, s%d, s%d', sFL3, sFL3, sT)
    A('s_add_u32 s%d, s%d, %d', sFL3, sFL3, F4)
    A('s_add_u32 s%d, s%d, 256', sFL2, sFL3)
    A('s_bitcmp1_b32 s%d, 0', sFB)
    A('s_cselect_b32 s%d, s%d, s%d', sT, sBL, sB3)
    A('s_cselect_b32 s%d, s%d, s%d', sBL, sB3, sBL)
    A('s_mov_b32 s%d, s%d', sB3, sT)
    A('s_cselect_b32 s%d, s%d, s%d', sT, sFL2, sFL3)
    A('s_cselect_b32 s%d, s%d, s%d', sFL2, sFL3, sFL2)
    A('s_mov_b32 s%d, s%d', sFL3, sT)
    A('s_lshl_b32 s%d, s%d, 8', sPF, sTQ)
    A('s_mul_i32 s%d, s%d, 112', sT, sKH)
    A('s_add_u32 s%d, s%d, s%d', sPF, sPF, sT)
    A('s_add_u32 s%d, s%d, %d', sPF, sPF, F4)
    A('s_mul_i32 s%d, s%d, %d', sHB, sG, 112 * 1024)
    A('s_mul_i32 s%d, s%d, %d', sT, sKH, 56 * 1024)
    A('s_add_u32 s%d, s%d, s%d', sHB, sHB, sT)
    A('s_add_u32 s%d, s%d, %d', sHB, sHB, WS_H1B + (0x40000000 if E('ABL', 0) & 64 else 0))
    blk_init(A, sBK, sBS, 's%d' % sKH)
    A('s_bitcmp1_b32 s%d, 0', sBK)
    A('s_mov_b32 s%d, 0x0f0f0f0f', sEM)
    A('s_cselect_b32 s%d, 0x00f0f0f0, s%d', sEM, sEM)
    wait_lp(A, 'wo')

    def wo_row(k):
        hh = k // 2
        return 28 * hh - 4 * (hh & 1) + 16 * (k & 1)

    Q = LdsQ(A)
    LAG = E('P2LAG', 5)

    def read_wo(k, nt):
        buf = vWF2 + 8 * nt + 4 * (k & 1)
        for z in range(2):
            Q.op(('w', k, nt), 'ds_read_b64_tr_b16 v[%d:%d], v%d offset:%d', buf + 2 * z, buf + 2 * z + 1,
                 vWA + 2 + nt, (wo_row(k) + 8 * z) * 128)

    read_wo(0, 1)
    read_wo(0, 0)
    lo, chk2, done = A.label('P'), A.label('PC'), A.label('PD')
    A('s_branch %s', chk2)
    A('%s:', lo)
    f2_load()
    try_copy(False)
    A('%s:', chk2)
    A('s_waitcnt vmcnt(0)')
    A('v_cmp_ne_u32 vcc, s%d, v%d', sTAG, vPF)
    spin_guard(A, done)
    A('s_and_b32 s%d, vcc_lo, 0xff', sT)
    A('s_cbranch_scc1 %s', lo)
    A('%s:', done)
    stamp(A)
    stamp(A, 'p2')
    sOB = sM0
    A('s_mov_b32 s%d, s%d', sOB, sB)

    def ld_o(k):
        A('buffer_load_dwordx4 %s, v%d, s[%d:%d], s%d offen offset:%d sc1', v(vB2[k], 4), vO, SWS, SWS + 3, sOB,
          (k & 3) * 1024)
        if (k & 3) == 3:
            A('s_add_u32 s%d, s%d, 4096', sOB, sOB)
    P2I = E('P2INFL', 8)
    for k in range(P2I):
        ld_o(k)
    A('s_lshl_b32 s%d, s%d, 1', sT2, sNB)
    A('s_add_u32 s%d, s%d, s%d', sT2, sT2, sKH)
    A('s_lshl_b32 s%d, s%d, 15', sB, sG)
    A('s_add_u32 s%d, s%d, %d', sB, sB, WS_HB)
    A('s_lshl_b32 s%d, s%d, 8', sC, sT2)
    A('s_add_u32 s%d, s%d, s%d', sC, sC, sB)
    A('s_lshl_b32 s%d, s%d, 11', sT, sT2)
    A('s_add_u32 s%d, s%d, s%d', sB, sB, sT)
    A('s_add_u32 s%d, s%d, 4096', sB, sB)
    A('s_lshl_b32 s%d, s%d, 2', sFL, sT2)
    A('s_lshl_b32 s%d, s%d, 6', sT, sG)
    A('s_add_u32 s%d, s%d, s%d', sFL, sFL, sT)
    A('s_add_u32 s%d, s%d, %d', sFL, sFL, F3)
    for k in range(16 + LAG):
        if k < 16:
            if k < 15:
                read_wo(k + 1, 1)
            Q.wait(('w', k, 1), min(15, P2I + k - 1) - k)
            if k % 4 == 0:
                stamp(A, 'p2')
            mfma(A, vAC + 16, vWF2 + 8 + 4 * (k & 1), vB2[k], k == 0)
            if P2I + k < 16:
                ld_o(P2I + k)
            if P2I + k == E('LDSIG', 12):
                A('v_mov_b32 v%d, 1', vT0)
                Q.op('ld', 'ds_write_b32 v%d, v%d offset:%d', vMY, vT0, M_LD)
        j = k - LAG
        if j >= 0:
            if j < 15:
                read_wo(j + 1, 0)
            Q.wait(('w', j, 0))
            mfma(A, vAC, vWF2 + 4 * (j & 1), vB2[j])
        if k == 10:
            Q.peek(4)
        if k == 14:
            Q.take(4)
        if k == 15:
            wait_lp(A, 'wqfree' if LATE else ('w1', 4))
        if k == 16 and LAG >= 2:
            for q in range(4):
                Q.op('x', 'ds_write_b128 v%d, %s offset:%d', vSW, v(vAC + 16 + 4 * q, 4), q * 1024)
            Q.stage(C0 + 6)
    stamp(A)

    def exchange(st, sent=False):
        if not sent:
            for q in range(4):
                A('ds_write_b128 v%d, %s offset:%d', vSW, v(vAC + 16 + 4 * q, 4), q * 1024)
            set_stage(A, st)
        lo, done = A.label('W'), A.label('WD')
        A('%s:', lo)
        A('ds_read_b32 v%d, v%d', vPW, vPP)
        for q in range(4):
            A('ds_read_b128 %s, v%d offset:%d', v(vWF2 + 4 * q, 4), vSR, q * 1024)
        A('s_waitcnt lgkmcnt(4)')
        A('v_readfirstlane_b32 s%d, v%d', sT, vPW)
        spin_guard(A, done)
        A('s_cmp_ge_u32 s%d, %d', sT, st)
        A('s_cbranch_scc0 %s', lo)
        A('%s:', done)
        for q in range(4):
            A('s_waitcnt lgkmcnt(%d)', 3 - q)
            for r in (0, 2):
                a0 = vAC + 4 * q + r
                A('v_pk_add_f32 v[%d:%d], v[%d:%d], v[%d:%d]', a0, a0 + 1, a0, a0 + 1, vWF2 + 4 * q + r,
                  vWF2 + 4 * q + r + 1)

    stamp(A, 'p2')
    exchange(C0 + 6, LAG >= 2)
    stamp(A, 'p2')
    set_stage(A, C0 + 7)
    cvt8(A, vHP, vAC)
    pub_stores(A, [st4(vHP + 4 * q, sB, q * 1024) for q in range(2)], not WTO)
    A('v_mov_b32 v%d, 0', vTT)
    A('v_mov_b32 v%d, 0', vTT + 1)
    for r in range(8):
        A('v_dot2c_f32_bf16 v%d, s%d, v%d', vTT, sONES, vHP + r)
        A('v_dot2c_f32_bf16 v%d, v%d, v%d', vTT + 1, vHP + r, vHP + r)
    A('v_lshlrev_b32 v%d, 2, v%d', vTT + 2, vL)
    A('v_permlane32_swap_b32 v%d, v%d', vTT, vTT + 1)
    A('v_add_f32 v%d, v%d, v%d', vTT, vTT, vTT + 1)
    pub_stores(A, ['buffer_store_dword v%d, v%d, s[%d:%d], s%d offen%%s' % (vTT, vTT + 2, SWS, SWS + 3, sC)], not WTO)
    stamp(A, 'p2')
    try_copy(True)
    NPRE = E('CPRE', 2)
    for c in range(2, 2 + NPRE):
        w1_copy(c)
    stamp(A, 'p2')
    pub_flag(A, sFL, True)
    stamp(A, 'p2')
    stamp(A)
    if E('ITOUCH', 0):
        A.lines.append(';ITB')
    for c in range(2 + NPRE, 4):
        w1_copy(c)
    A('v_mov_b32 v%d, 0', vCS)
    A('v_mov_b32 v%d, 0', vCS + 1)
    A('s_waitcnt lgkmcnt(0)')
    for r in range(112):
        if r in (16, 32, 48):
            w1_copy(3 + r // 16)
        if r == 48:
            set_stage(A, C0 + 8)
        if r in (64, 80, 96):
            A('s_waitcnt lgkmcnt(%d)', min(15, 1 + 8 * ((96 - r) // 16)))
        A('v_dot2c_f32_bf16 v%d, s%d, v%d', vCS + (r & 1), sONES, vXR + r)
    A('v_add_f32 v%d, v%d, v%d', vCS, vCS, vCS + 1)
    hilo_c(A, vCS, vCF, vT0)
    vBR = 40
    vE3 = 72
    vMF2, vSD = 128, 132
    A('s_mov_b32 s11, s%d', sB)
    A('s_mov_b32 s%d, s%d', sB, sB3)
    A('s_mov_b32 s%d, s%d', sFL, sFL3)

    def p3_epilogue(gi, packed=False):
        B = sub(A)
        acc = vAC + 16 * (gi & 1)
        e = vE3
        sd, c1 = vSD, vSD + 1
        if packed:
            pk = lambda r: 'v[%d:%d]' % (r, r + 1)
            for r in range(0, 16, 2):
                B('v_pk_mul_f32 %s, %s, %s op_sel:[0,1] op_sel_hi:[1,1]', pk(e + r), pk(acc + r), pk(sd))
            for r in range(16):
                B('v_exp_f32 v%d, v%d', e + r, e + r)
            for r in range(0, 16, 2):
                B('v_pk_fma_f32 %s, %s, %s, %s op_sel_hi:[1,0,0]', pk(e + r), pk(e + r), pk(sd), pk(sd))
            for r in range(16):
                B('v_rcp_f32 v%d, v%d', e + r, e + r)
            for r in range(0, 16, 2):
                B('v_pk_mul_f32 %s, %s, %s', pk(e + r), pk(e + r), pk(acc + r))
            cvt8(B, acc, e)
        else:
            silu8(B, acc, e, sd, c1, acc)
            silu8(B, acc + 8, e + 8, sd, c1, acc + 4)
        blocks = [[l] for l in B.lines]
        if E('ABL', 0) & 256 and not packed:
            blocks = blocks[-4:]
        B = sub(A)
        so = sB if gi < 2 else sBL
        pub_stores(B, [st4(acc + 4 * q, so, q * 1024) for q in range(2)], WT1 == 0 or (WT1 == 2 and gi >= 2))
        if gi % 2 == 0:
            B('s_add_u32 s%d, s%d, %d', so, so, 112 * 1024)
        blocks.append(B.lines)
        return blocks

    def flag_load(B):
        B('s_mov_b64 exec, 0xfffffff')
        B('buffer_load_dword v%d, v%d, s[%d:%d], s%d offen sc1', vPF, vL4, SWS, SWS + 3, sPF)
        B('s_mov_b64 exec, -1')

    def flag_check(mask):
        def slow(B, back):
            lo = B.label('P')
            B('%s:', lo)
            flag_load(B)
            B('s_waitcnt vmcnt(0)')
            B('v_cmp_ne_u32 vcc, s%d, v%d', sTAG, vPF)
            spin_guard(B, back)
            B('s_and_b32 s%d, vcc_lo, %s', sT, mask)
            B('s_cbranch_scc1 %s', lo)
        ent, back = cold_block(A, slow)
        A('v_cmp_ne_u32 vcc, s%d, v%d', sTAG, vPF)
        A('s_and_b32 s%d, vcc_lo, %s', sT, mask)
        A('s_cbranch_scc1 %s', ent)
        A('%s:', back)

    PRE = E('P3PRE', 6)
    vHB = vXD + 2
    A('v_add_u32 v%d, %d, v%d', vHB, L_A, vO)
    A('v_add_u32 v%d, %d, v%d', vHB + 1, 65536, vO)
    Q = LdsQ(A)

    def chk(n):
        gi, k = divmod(n, 28)
        if gi == 0 and E('P3RAMP', 0):
            return k // 4 if k % 4 == 0 else None
        if gi == 0:
            return {0: 1, 8: 3, 16: 5, 24: 6}.get(k)
        return {0: 1, 8: 3, 16: 6}.get(k)

    def rd(n):
        gi, k = divmod(n, 28)
        if n + 1 < 112 and chk(n + 1) is not None:
            Q.take(7)
        if chk(n) is not None:
            wait_lp(Q.A, ('h', gi, chk(n)))
        Q.op(('b', n), 'ds_read_b128 %s, v%d offset:%d', v(vBR + 4 * (n % 8), 4), (vHB, vHB, vO, vHB + 1)[gi],
             (28672 if gi == 1 else 0) + k * 1024)
        if n + 1 in W2GATE.values() and n + 1 >= E('FINE0', 24):
            Q.A('v_mov_b32 v%d, %d', vT0, (n + 1) // 2)
            Q.op('st', 'ds_write_b32 v%d, v%d offset:%d', vMY, vT0, M_LD)
        ramp = E('P3RAMP', 0) and n < 20
        nn = n + (4 if ramp else E('P3PK', PRE + 2))
        if nn < 112 and chk(nn) is not None and not Q.peeked and (ramp or nn >= 28 or not E('P3RAMP', 0)):
            Q.peek(7)

    stamp(A, 'p2')
    nrd = [0]

    def rd_upto(n):
        while nrd[0] <= min(n, 111):
            rd(nrd[0])
            nrd[0] += 1
    rd_upto(2)
    for gi in range(4):
        acc = vAC + 16 * (gi & 1)
        M = sub(A)
        Q.A = M
        for k in range(28):
            n = 28 * gi + k
            rd_upto(n + (PRE if not E('P3RAMP', 0) else 3 if n < 22 else min(PRE, 3 + (n - 21))))
            if k == 16:
                Q.op('s6', 'ds_read_b128 v[%d:%d], v%d offset:%d', vTT, vTT + 3, vMI, M_PW + 16)
                Q.op('sf', 'ds_read_b128 %s, v%d offset:%d', v(vMF2, 4), vEX, gi * 1024)
            if k == 24:
                Q.wait('sf')
                M('v_readfirstlane_b32 s%d, v%d', sPROG, vTT)
                M('v_readfirstlane_b32 s%d, v%d', sC, vTT + LP[('st', gi)][0] - 4)

                def st_slow(B, back):
                    def st_read():
                        B('ds_read_b128 %s, v%d offset:%d', v(vMF2, 4), vEX, gi * 1024)
                        return 0
                    wait_word(B, LP[('st', gi)][0], LP[('st', gi)][1], body=st_read)
                ent, back = cold_block(M, st_slow)
            if k == 25:
                M('s_cmp_ge_u32 s%d, %d', sC, LP[('st', gi)][1])
                M('s_cbranch_scc0 %s', ent)
                M('%s:', back)
                M('v_mov_b32 v%d, v%d', vMF, vMF2)
                M('v_mov_b32 v%d, v%d', vMF + 1, vMF2 + 1)
            if k % 2 == 0:
                Q.wait(('b', n + 1))
            if k in (0, 12):
                stamp(M, 'p3')
            if gi == E('P33', 3) and k % 2 == 0 and k:
                stamp(M, 'p33')
            if gi == 3 and k == E('P3FLAGK', 11):
                pub_flag(M, sFL, True)
            if gi == 3 and k == 25:
                flag_load(M)
            mfma(M, acc, vXR + 4 * k, vBR + 4 * (n % 8), k == 0)
        mfma(M, acc, vCF, vMF)
        M('v_mov_b32 v%d, v%d', vSD, vMF2 + 2)
        M('v_mov_b32 v%d, v%d', vSD + 1, vMF2 + 3)
        A.lines += merge(M.lines, p3_epilogue(gi - 1) if gi > 0 else [], 1, E('P3STOP2', 27) if gi == 2 else 27)
        if gi == 0:
            stamp(A)
        stamp(A, 'p3')
    stamp(A)
    NB = 28
    vWF4 = 40
    vAP = vXR + 48

    def w2_base(c):
        A('s_cmp_eq_u32 s%d, 0', sKH)
        A('s_cselect_b32 s%d, %d, %d', sT, w2_slot(2 * c) >> 12, w2_slot(2 * c + 1) >> 12)
        A('s_lshl_b32 s%d, s%d, 12', sT, sT)
        A('v_add_u32 v%d, s%d, v%d', vWA + 2, sT, vWA)
        A('v_add_u32 v%d, s%d, v%d', vWA + 3, sT, vWA + 1)

    Q = LdsQ(A)

    def abuf(k):
        return vWF4 + 8 * (k & 3)

    def read_w2(k):
        if k % 4 == 3 and k < 52:
            Q.take(LP[('w2', 2 * (k // 4) + 3)][0])
        if k % 4 == 0:
            wait_lp(A, ('w2', 2 * (k // 4) + 1))
            w2_base(k // 4)
        buf = abuf(k)
        for nt in range(2):
            for z in range(2):
                Q.op(('w', k), 'ds_read_b64_tr_b16 v[%d:%d], v%d offset:%d', buf + 4 * nt + 2 * z,
                     buf + 4 * nt + 2 * z + 1, vWA + 2 + nt, ((k % 4) * 16 + 8 * z) * 128)
        if k % 4 == 0 and k < 52:
            Q.peek(LP[('w2', 2 * (k // 4) + 3)][0])
        if k % 4 == 3 and (k // 4) <= 5:
            Q.stage(C0 + 13 + k // 4)

    vq = []

    def vm_need(tag):
        i = max(j for j, x in enumerate(vq) if x == tag)
        return len(vq) - 1 - i

    def issue_b(k):
        if k % 8 == 0:
            A('s_lshl_b32 s%d, s%d, 13', sM0, sBK)
            A('s_add_u32 s%d, s%d, s%d', sM0, sM0, sHB)
            blk_next(A, sBK, sBS)
        A('buffer_load_dwordx4 %s, v%d, s[%d:%d], s%d offen offset:%d%s', v(vXR + 4 * (k % NB), 4), vO, SWS, SWS + 3,
          sM0, (k & 3) * 1024, LDB)
        vq.append(('b', k))
        if k % 8 == 3:
            A('s_add_u32 s%d, s%d, 4096', sM0, sM0)

    INFL = E('P4INFL', 10)
    assert INFL < NB
    A('s_waitcnt vmcnt(2)')
    flag_check('s%d' % sEM)
    stamp(A)
    issued = E('P4PRE', 8)
    for k in range(issued):
        issue_b(k)
    NI = E('P4INT', 0)
    blocks = p3_epilogue(3, True)
    for j, b in enumerate(blocks):
        if j < len(blocks) - 1 and issued < E('P4PRE', 8) + (NI * (j + 1)) // (len(blocks) - 1):
            issue_b(issued)
            issued += 1
        A.lines += b
    vq += ['st', 'st']
    read_w2(0)
    read_w2(1)
    while issued < INFL:
        issue_b(issued)
        issued += 1
    unpack_hp()
    stamp(A)
    KF, KL, KC = E('P4KF', 3), E('P4KL', 9), E('P4KC', 14)
    pend = False
    for k in range(56):
        if k + 2 < 56:
            read_w2(k + 2)
        need = vm_need(('b', k))
        if k == KF:
            need = min(need, vm_need('st'))
        if k == KC:
            need = min(need, vm_need('pf'))
        Q.wait(('w', k), need)
        if k % 4 == 0 and k:
            stamp(A, 'p4')
        buf = abuf(k)
        mfma(A, vAC + 16, buf + 4, vXR + 4 * (k % NB), k == 0)
        if k == KF:
            pub_flag(A, sFL2, True, False)
            vq.append('fl')
        if k == E('HCL', -1):
            for q in range(2):
                A(st4(vHP + 4 * q, 11, q * 1024) % ' sc1')
                vq.append('hc')
        if k == KL:
            flag_load(A)
            vq.append('pf')
        if k == KC:
            flag_check('0xfffffff')
            pend = True
        for _ in range(E('P4CU', 2)):
            if issued < min(56, k + 1 + INFL) and (issued < 24 or pend):
                issue_b(issued)
                issued += 1
        mfma(A, vAC, buf, vXR + 4 * (k % NB))
    stamp(A)
    if E('OUTT', 1):
        A('v_readfirstlane_b32 s%d, v%d', sC, vSR)
        A('v_readfirstlane_b32 s%d, v%d', sT2, vRO)
        A('v_and_b32 v%d, 31, v%d', vTT, vL)
        A('v_mul_u32_u24 v%d, 80, v%d', vTT, vTT)
        A('v_lshrrev_b32 v%d, 5, v%d', vT1, vL)
        A('v_lshl_add_u32 v%d, v%d, 3, v%d', vTT, vT1, vTT)
        A('v_add_u32 v%d, s%d, v%d', vTT, sC, vTT)
        A('v_lshrrev_b32 v%d, 2, v%d', vT1, vL)
        A('v_and_b32 v%d, 3, v%d', vTT + 3, vL)
        A('v_lshlrev_b32 v%d, 4, v%d', vTT + 3, vTT + 3)
        A('v_mul_u32_u24 v%d, 80, v%d', vTT + 1, vT1)
        A('v_add3_u32 v%d, v%d, v%d, s%d', vTT + 1, vTT + 1, vTT + 3, sC)
        A('v_mul_u32_u24 v%d, 896, v%d', vTT + 2, vT1)
        A('v_add_u32 v%d, v%d, v%d', vTT + 2, vTT + 2, vTT + 3)
        A('s_add_u32 s%d, s%d, %d', sC, sT2, 16 * 896)
    exchange(C0 + 27)
    cvt8(A, vHP, vAC)
    OB = ('', ' sc1', ' nt', ' sc0 sc1')[E('OUTB', 2)]
    if E('OUTT', 1):
        for q in range(4):
            A('ds_write_b64 v%d, v[%d:%d] offset:%d', vTT, vHP + 2 * q, vHP + 2 * q + 1, q * 16)
        for q in range(2):
            A('ds_read_b128 %s, v%d offset:%d', v(vHP + 4 * q, 4), vTT + 1, q * 16 * 80)
        for q in range(2):
            A('s_waitcnt lgkmcnt(%d)', 1 - q)
            A('buffer_store_dwordx4 %s, v%d, s[%d:%d], s%d offen%s', v(vHP + 4 * q, 4), vTT + 2, SOUT, SOUT + 3,
              (sT2, sC)[q], OB)
    else:
        for q in range(2):
            A('v_permlane32_swap_b32 v%d, v%d', vHP + 4 * q, vHP + 4 * q + 2)
            A('v_permlane32_swap_b32 v%d, v%d', vHP + 4 * q + 1, vHP + 4 * q + 3)
        for q in range(2):
            A('buffer_store_dwordx4 %s, v%d, s[%d:%d], 0 offen offset:%d%s', v(vHP + 4 * q, 4), vRO, SOUT, SOUT + 3,
              q * 32, OB)
    A('s_or_b32 s%d, s%d, s%d', sT, sI, sWV)
    A('s_or_b32 s%d, s%d, s%d', sT, sT, sXCD)
    A('s_cmp_lg_u32 s%d, 0', sT)
    A('s_cbranch_scc1 %s', fin)
    A('s_mov_b32 s%d, %d', sT, FEP)
    A('s_mov_b64 exec, 1')
    A('buffer_store_dword v%d, v%d, s[%d:%d], s%d offen', vTAG, vO, SWS, SWS + 3, sT)
    A('s_mov_b64 exec, -1')
    if E('ITOUCH', 0):
        A.lines.append(';ITE')
    A('%s:', fin)
    if E('PADTO', 0):
        lo = A.label('PAD')
        A('s_waitcnt vmcnt(0) lgkmcnt(0)')
        A('s_mov_b32 s6, %d', E('PADTO', 0))
        if PROBE >= 0:
            A('s_sub_u32 s7, s56, s84')
            A('s_lshl_b32 s7, s7, 2')
            A('s_cmp_ge_u32 s%d, 28', sI)
            A('s_cselect_b32 s7, 0, s7')
            A('s_add_u32 s6, s6, s7')
        A('%s:', lo)
        A('s_memrealtime s[4:5]')
        A('s_waitcnt lgkmcnt(0)')
        A('s_sub_u32 s4, s4, s84')
        A('s_cmp_lt_u32 s4, s6')
        A('s_cbranch_scc1 %s', lo)
    stamp_flush(A)


def gen():
    A = Asm()
    name = NAME + '_kernel'
    A.lines += ['.p2align 8', '.globl %s' % name, '.type %s,@function' % name, '%s:' % name]
    end = A.label('END')
    if E('PADTO', 0):
        A('s_memrealtime s[84:85]')
    A('s_load_dwordx16 s[64:79], s[0:1], 0')
    A('s_load_dwordx2 s[80:81], s[0:1], 72')
    A('s_getpc_b64 s[%d:%d]', sPC, sPC + 1)
    A('s_cmp_ge_u32 s2, 256')
    A('s_cbranch_scc1 %s', end)
    assert MAP == 0
    A('s_and_b32 s%d, s2, 7', sXCD)
    A('s_lshr_b32 s%d, s2, 3', sI)
    A('v_lshrrev_b32 v%d, 6, v0', vMY)
    A('v_and_b32 v%d, 63, v0', vL)
    A('s_and_b32 s%d, s%d, 1', sTB, sI)
    A('s_lshl1_add_u32 s%d, s%d, s%d', sTB, sXCD, sTB)
    A('v_readfirstlane_b32 s%d, v%d', sWV, vMY)
    A('s_add_u32 s%d, s%d, s%d', sC0, sXCD, sI)
    A('s_mul_i32 s%d, s%d, 37', sT, sC0)
    A('s_lshr_b32 s%d, s%d, 8', sT, sT)
    A('s_mul_i32 s%d, s%d, 7', sT, sT)
    A('s_sub_u32 s%d, s%d, s%d', sC0, sC0, sT)
    if CODEPF & 8:
        nc = A.label('NC')
        A('s_cmp_lg_u32 s%d, 5', sWV)
        A('s_cbranch_scc1 %s', nc)
        code_touch(A, 72)
        A('%s:', nc)
    x_offsets(A)
    perm = [2, 4, 6, 9, 11, 13, 0, 1, 3, 5, 7, 8, 10, 12, 14, 15]
    lo = sum(perm[i] << (4 * i) for i in range(8))
    hi = sum(perm[8 + i] << (4 * i) for i in range(8))
    A('s_mov_b32 s%d, 0x%x', sHI, lo)
    A('s_mov_b32 s%d, 0x%x', sHI + 1, hi)
    A('s_lshr_b32 s%d, s%d, 1', sT, sI)
    A('s_lshl_b32 s%d, s%d, 2', sT, sT)
    A('s_lshr_b64 s[%d:%d], s[%d:%d], s%d', sHI, sHI + 1, sHI, sHI + 1, sT)
    A('s_and_b32 s%d, s%d, 15', sH, sHI)
    A('v_lshlrev_b32 v%d, 2, v%d', vMY, vMY)
    A('v_add_u32 v%d, %d, v%d', vMY, L_MISC, vMY)
    A('v_mov_b32 v%d, 0', vT0)
    A('ds_write2st64_b32 v%d, v%d, v%d offset0:0 offset1:1', vMY, vT0, vT0)
    A('ds_write2_b32 v%d, v%d, v%d offset0:%d offset1:%d', vMY, vT0, vT0, M_FAST // 4, M_CP // 4)
    w_offsets(A)
    A('v_mov_b32 v%d, %d', vMI, L_MISC)
    A('s_mov_b32 s%d, 0x400000', sSPIN)
    A('s_mov_b32 s%d, 0', sPROG)
    A('s_mul_i32 s%d, s%d, %d', sT2, sWV, 32 * 896)
    A('s_lshl_b32 s%d, s%d, 7', sT, sC0)
    A('s_add_u32 s%d, s%d, s%d', sT, sT, sXB)
    A('s_add_u32 s%d, s%d, s%d', sT, sT, sT2)
    A('s_lshl_b32 m0, s%d, 12', sWV)
    A('s_mov_b32 s%d, 0x%x', SX + 2, 0 if E('ABL', 0) & 16 else S * D * 2)
    A('s_mov_b32 s%d, 0x20000', SX + 3)
    A('s_mov_b32 s%d, 0x%x', SW + 2, 0 if E('ABL', 0) & 8 else D * 3 * D * 2)
    A('s_mov_b32 s%d, 0x20000', SW + 3)
    A('s_waitcnt lgkmcnt(0)')
    A('s_mov_b64 s[%d:%d], s[64:65]', SX, SX + 1)
    A('s_mov_b64 s[%d:%d], s[66:67]', SW, SW + 1)
    A('s_mov_b32 s%d, 0', sPROG1)
    _st['n'] = 0
    stamp(A, 'all')
    if STAMPS:
        A('s_memrealtime s[86:87]')
    for i in range(7):
        LP[('x', i)] = (7, 1 + i)
    hn = [9]
    for gi in range(4):
        us = E('HSPOS', 3) if gi == 0 else 0
        LP[('st', gi)] = (6 - (gi & 1), 4 + gi // 2)
        for q in range(7):
            if q in HITEMS[gi > 0]:
                hn[0] += 1
                LP[('h', gi, q)] = (7, hn[0])
            if q == us:
                hn[0] += 1
                LP[('hs', gi)] = (7, hn[0])
    for pi in range(3):
        for i in range(7):
            LP[('W', pi, i)] = (4, 7 * pi + i + 1)
    l0, l1, l2, lw, lc = A.label('H0'), A.label('H1'), A.label('H23'), A.label('EW'), A.label('EC')
    l7 = A.label('E7')
    A('s_cmp_eq_u32 s%d, 4', sWV)
    A('s_cbranch_scc1 %s', lw)
    A('s_cmp_gt_u32 s%d, 4', sWV)
    A('s_cbranch_scc1 %s', l7)
    for u in range(4):
        A('buffer_load_dwordx4 v%d, s[%d:%d], s%d offen offset:%d lds', vXD + u, SX, SX + 3, sT, u * 1024)
    A('%s:', l7)
    if SHST:
        n6 = A.label('N6')
        A('s_cmp_lg_u32 s%d, 6', sWV)
        A('s_cbranch_scc1 %s', n6)
        A('s_mul_i32 s%d, s%d, %d', sT, sH, 8 * 896)
        A('s_add_u32 s%d, s%d, s%d', sT, sT, sXB)
        for u in range(7):
            A('buffer_load_dwordx4 %s, v%d, s[%d:%d], s%d offen offset:%d', v(76 + 4 * u, 4), vXD, SX, SX + 3, sT,
              u * 128)
        A('%s:', n6)
    A('s_cmp_lg_u32 s%d, 7', sWV)
    A('s_cbranch_scc1 %s', lc)
    HELP['on'] = True
    nst = {}
    prio(A, 1)
    _st['n'] = 1
    HELP['role'] = '7'
    early_x(A)
    nst[l1] = _st['n']
    A('s_branch %s', l1)
    A('%s:', lw)
    prio(A, 1)
    _st['n'] = 1
    HELP['role'] = '4'
    early_w(A)
    nst[l0] = _st['n']
    nst[l2] = 1
    A('s_branch %s', l0)
    refresh_routines(A)
    A('%s:', lc)
    A('s_barrier')
    A('s_cmp_ge_u32 s%d, 5', sWV)
    A('s_cbranch_scc1 %s', l2)
    parts = {}
    for lab, fn in ((l0, gen_h0), (l1, gen_h1), (l2, gen_h23)):
        B = sub(A)
        B('%s:', lab)
        B('s_nop 4')
        HELP['on'] = True
        prio(B, 1)
        _st['n'] = nst[lab]
        HELP['role'] = {l0: '4', l1: '7', l2: 'h'}[lab]
        fn(B)
        HELP['role'] = 'c'
        HELP['on'] = False
        parts[lab] = B.lines
    if E('H2F', 0):
        lcc = A.label('CC')
        A.lines[-2:] = ['  s_cmp_lt_u32 s%d, 5' % sWV, '  s_cbranch_scc1 %s' % lcc]
        A.lines += parts[l2]
        A('%s:', lcc)
    _st['n'] = 1
    gen_compute(A)
    A('%s:', end)
    A('s_endpgm')
    for lab in (l0, l1) if E('H2F', 0) else (l0, l1, l2):
        A.lines += parts[lab]
    A.lines += COLD
    return A, name


def main():
    out = sys.argv[1] if len(sys.argv) > 1 else 'cdna_kernels/%s.s' % NAME
    A, name = gen()
    lines, nn = fix_hazards(A.lines)
    IT = E('ITOUCH', 0)
    if IT:
        sz = sizes_of(lines)
        start, stop = lines.index(';ITB'), lines.index(';ITE')
        ol, acc, n = [], 0, 0
        for i, l in enumerate(lines):
            if start < i < stop and i in sz:
                prev = lines[i - 1].strip()
                if acc >= IT and not prev.startswith(('s_getpc', 's_endpgm', 's_branch', 's_setpc')):
                    ol += ['IT_%d:' % n, '  s_cbranch_execz IT_RET']
                    n += 1
                    acc = 4
                acc += sz[i]
            ol.append(l)
        cl_ = ['  s_call_b64 s[4:5], IT_%d' % k for k in range(n)]
        calls = ['  s_setprio 0', '  s_mov_b64 exec, 0', '  s_cmp_eq_u32 s%d, 5' % sWV, '  s_cbranch_scc1 IT_B'] + \
            cl_[0::2] + ['  s_branch IT_END', 'IT_RET:', '  s_setpc_b64 s[4:5]', 'IT_B:'] + cl_[1::2] + [
            'IT_END:', '  s_mov_b64 exec, -1']
        k = ol.index(';ITOUCH')
        lines = ol[:k] + calls + ol[k + 1:]
        print('landing points', n)
    if E('ALIGN', 0):
        lines, na = align8(lines)
        print('re-encoded', na)
    hdr = ['; generated by gen/gen20.py (hand-written generator script)',
           '; kernarg: +0 A_x +8 A_wqkv +16 A_w_phi +24 A_wo +32 B_x (unused) +40 B_w1 +48 B_w2 +56 out +64 debug +72 ws',
           '; one persistent launch: 256 workgroups x (4 matrix waves + 4 helper waves); phases',
           ';   P1 LN1+QKV+feature maps per (128 tokens, head) | kv all-gather | o | P2b h = x + o wo | P3 silu(LN2(h) w1) | P4 + w2',
           '; @launch grid=(256,1,1) block=(512,1,1) lds=%d' % LDS_SIZE,
           '.amdgcn_target "amdgcn-amd-amdhsa--gfx950"', '.text']
    tail = ['.p2align 8', '.fill 2048, 4, 0xbf800000', '.section .rodata,"a"', '.p2align 6', '''.amdhsa_kernel %s
  .amdhsa_next_free_vgpr 256
  .amdhsa_next_free_sgpr 102
  .amdhsa_accum_offset 256
  .amdhsa_group_segment_fixed_size 0
  .amdhsa_kernarg_size 80
  .amdhsa_user_sgpr_count 2
  .amdhsa_user_sgpr_kernarg_segment_ptr 1
  .amdhsa_system_sgpr_workgroup_id_x 1
  .amdhsa_float_denorm_mode_32 3
  .amdhsa_float_denorm_mode_16_64 3
.end_amdhsa_kernel''' % name]
    open(out, 'w').write('\n'.join(hdr + lines + tail) + '\n')
    print('wrote', out, 'lines', len(lines), 'nops', nn)


if __name__ == '__main__':
    main()
```
